```python
import torch

def _softmax(x, axis=-1):
    return torch.softmax(x, dim=axis)

def _gelu(x):
    return torch.nn.functional.gelu(x, approximate='tanh')

def _silu(x):
    return torch.nn.functional.silu(x)

def _sigmoid(x):
    return torch.sigmoid(x)

def _layernorm(x, axis=-1, eps=1e-05):
    m = x.mean(dim=axis, keepdim=True)
    v = x.var(dim=axis, keepdim=True, unbiased=False)
    return (x - m) / torch.sqrt(v + eps)

def _scatter_add(tgt, idx, src, axis=0):
    return tgt.clone().index_add_(axis, idx, src)

def _segment_sum(src, seg, n):
    out = torch.zeros((n,) + src.shape[1:], dtype=src.dtype)
    return out.index_add_(0, seg, src)

def _pad(x, pw):
    flat = tuple((v for pair in reversed(pw) for v in pair))
    return torch.nn.functional.pad(x, flat)
kernel_name = 'adaLN_cond__memory_aug_recurrent_mem_tr__mixer_token_mlp__prompt'

def setup_inputs():

    _w = lambda a: (lambda t: t.to(torch.bfloat16) if t.is_floating_point() else t)(torch.as_tensor(a))

    def _A_setup():
        B, S, Dm = (1, 2048, 1024)
        H, Dh = (32, 128)
        M, seg = (8, 32)
        seg = min(seg, S)
        S = S // seg * seg
        return {'x': _w((lambda *s: torch.randn(*s, dtype=torch.bfloat16) * 0.05)(B, S, Dm)), 'mem0': _w((lambda *s: torch.randn(*s, dtype=torch.bfloat16) * 0.8)(B, M, Dm)), 'Wq': _w((lambda *s: torch.randn(*s, dtype=torch.bfloat16) * 1.6)(Dm, H, Dh) * Dm ** (-0.5)), 'Wk': _w((lambda *s: torch.randn(*s, dtype=torch.bfloat16) * 1.6)(Dm, H, Dh) * Dm ** (-0.5)), 'Wv': _w((lambda *s: torch.randn(*s, dtype=torch.bfloat16) * 0.8)(Dm, H, Dh) * Dm ** (-0.5)), 'Wo': _w((lambda *s: torch.randn(*s, dtype=torch.bfloat16) * 0.8)(H, Dh, Dm) * (H * Dh) ** (-0.5)), 'seg_len': seg}
    _A_in = _A_setup()

    def _B_setup():
        B, S, D, F = (1, 2048, 1024, 3584)
        return {'x': _w((lambda *s: torch.randn(*s, dtype=torch.bfloat16) * 0.05)(B, S, D)), 'w1': _w((lambda *s: torch.randn(*s, dtype=torch.bfloat16) * 1.6)(S, F) * S ** (-0.5)), 'b1': _w((lambda *s: torch.randn(*s, dtype=torch.bfloat16) * 1.6)(F) * 0.02), 'w2': _w((lambda *s: torch.randn(*s, dtype=torch.bfloat16) * 0.2)(F, S) * F ** (-0.5)), 'b2': _w((lambda *s: torch.randn(*s, dtype=torch.bfloat16) * 0.2)(S) * 0.02)}
    _B_in = _B_setup()
    return {'A_x': _A_in['x'], 'A_mem0': _A_in['mem0'], 'A_Wq': _A_in['Wq'], 'A_Wk': _A_in['Wk'], 'A_Wv': _A_in['Wv'], 'A_Wo': _A_in['Wo'], 'A_seg_len': _A_in['seg_len'], 'B_x': _B_in['x'], 'B_w1': _B_in['w1'], 'B_b1': _B_in['b1'], 'B_w2': _B_in['w2'], 'B_b2': _B_in['b2'], 'c': _w((lambda *s: torch.randn(*s, dtype=torch.bfloat16) * 0.05)(1, 1024) * 8.0), 'w_mod': _w((lambda *s: torch.randn(*s, dtype=torch.bfloat16) * 0.05)(1024, 6 * 1024) * 1024 ** (-0.5) * 8.0)}

def reference(A_x, A_mem0, A_Wq, A_Wk, A_Wv, A_Wo, A_seg_len, B_x, B_w1, B_b1, B_w2, B_b2, c, w_mod):

    def _A_ref(x, mem0, Wq, Wk, Wv, Wo, seg_len):
        B, S, Dm = x.shape
        H, Dh = (Wq.shape[1], Wq.shape[2])
        M = mem0.shape[1]
        scale = Dh ** (-0.5)
        n_seg = S // seg_len
        L = M + seg_len
        idx = torch.arange(L)
        mask = (idx[:, None] < M) | (idx[:, None] >= idx[None, :])
        mem = mem0
        outs = []
        for s in range(n_seg):
            xs = x[:, s * seg_len:(s + 1) * seg_len, :].clone()
            h = torch.concatenate([mem, xs], axis=1)
            q = torch.einsum('btd,dhe->bhte', h, Wq)
            k = torch.einsum('btd,dhe->bhte', h, Wk)
            v = torch.einsum('btd,dhe->bhte', h, Wv)
            scores = torch.einsum('bhqe,bhke->bhqk', q, k) * scale
            scores = torch.where(mask[None, None], scores, -1000000000.0)
            p = _softmax(scores, axis=-1)
            o = torch.einsum('bhqk,bhke->bhqe', p, v)
            o = torch.einsum('bhte,hed->btd', o, Wo)
            mem = o[:, :M, :].clone()
            outs.append(o[:, M:, :])
        return torch.concatenate(outs, axis=1)

    def _B_ref(x, w1, b1, w2, b2):
        B, S, D = x.shape
        h = _layernorm(x, axis=-1)
        u = torch.einsum('bsd,sf->bdf', h, w1) + b1
        u = _gelu(u)
        y = torch.einsum('bdf,fs->bds', u, w2) + b2
        return (lambda x, *d: x.permute(*d))(y, 0, 2, 1)
    x = A_x
    mod = (_silu(c) @ w_mod).reshape(c.shape[0], 6, 1, -1)
    sa, ca, ga, sb, cb, gb = (mod[:, 0].clone(), mod[:, 1].clone(), mod[:, 2].clone(), mod[:, 3].clone(), mod[:, 4].clone(), mod[:, 5].clone())
    h = _layernorm(x, axis=-1) * (1 + ca) + sa
    x = x + ga * _A_ref(h, A_mem0, A_Wq, A_Wk, A_Wv, A_Wo, A_seg_len)
    h = _layernorm(x, axis=-1) * (1 + cb) + sb
    x = x + gb * _B_ref(h, B_w1, B_b1, B_w2, B_b2)
    return x
```

```python
import re

def v(i, n=1):
    return f"v{i}" if n == 1 else f"v[{i}:{i+n-1}]"
def a(i, n=1):
    return f"a{i}" if n == 1 else f"a[{i}:{i+n-1}]"
def s(i, n=1):
    return f"s{i}" if n == 1 else f"s[{i}:{i+n-1}]"

_reg_re = re.compile(r"^(-|\|)?(abs\()?([vas])(\d+|\[(\d+):(\d+)\])\)?\|?$")
def parse_reg(op):
    op = op.strip()
    if op in ("vcc",): return [("s", 106), ("s", 107)]
    if op == "vcc_lo": return [("s", 106)]
    if op == "vcc_hi": return [("s", 107)]
    if op == "exec": return [("s", 126), ("s", 127)]
    if op == "m0": return [("s", 124)]
    if op == "scc": return []
    m = _reg_re.match(op)
    if not m: return []
    k = m.group(3)
    if m.group(5) is not None:
        lo, hi = int(m.group(5)), int(m.group(6))
    else:
        lo = hi = int(m.group(4))
    return [(k, i) for i in range(lo, hi + 1)]

TRANS = ("v_exp_f32", "v_log_f32", "v_rcp_f32", "v_rsq_f32", "v_sqrt_f32", "v_sin_f32", "v_cos_f32", "v_rcp_iflag_f32")
def mfma_passes(m):
    if "32x32x16" in m or "32x32x8" in m: return 8
    if "16x16x32" in m or "16x16x16" in m: return 4
    if "4x4x4" in m: return 2
    raise ValueError(m)

class Ins:
    __slots__ = ("text", "mn", "kind", "w", "r", "srcC", "dpp", "passes", "nop", "store_data", "wide", "label", "target", "sconst", "lds_dma", "isload")
    def __init__(self, text):
        self.text = text
        self.label = None; self.target = None
        self.w = []; self.r = []; self.srcC = []; self.dpp = False; self.passes = 0; self.nop = 1
        self.store_data = []; self.wide = False; self.sconst = []; self.lds_dma = False; self.isload = False
        t = text.split(";")[0].strip()
        if t.endswith(":"):
            self.kind = "label"; self.label = t[:-1]; self.mn = ""; self.nop = 0; return
        if not t or t.startswith("."):
            self.kind = "dir"; self.mn = ""; self.nop = 0; return
        parts = t.split(None, 1)
        mn = parts[0]; self.mn = mn
        rest = parts[1] if len(parts) > 1 else ""
        ops = []; cur = ""; depth = 0
        for ch in rest:
            if ch in "[(": depth += 1
            if ch in "])": depth -= 1
            if ch == "," and depth == 0:
                ops.append(cur.strip()); cur = ""
            else: cur += ch
        if cur.strip(): ops.append(cur.strip())
        mods = ""
        if ops:
            lastparts = ops[-1].split(None, 1)
            if len(lastparts) > 1 and not ops[-1].startswith("hwreg"):
                ops[-1] = lastparts[0]; mods = lastparts[1]
        R = [parse_reg(o) for o in ops]
        flat = lambda L: [x for y in L for x in y]
        if mn.startswith("v_mfma"):
            self.kind = "mfma"; self.passes = mfma_passes(mn)
            self.w = R[0]; self.r = R[1] + R[2]; self.srcC = R[3]
        elif mn.startswith("v_"):
            self.kind = "trans" if mn.replace("_e32", "").replace("_e64", "") in TRANS else "valu"
            self.dpp = ("row_" in mods) or ("quad_perm" in mods) or ("_dpp" in mn)
            if mn.startswith("v_permlane") and "swap" in mn:
                self.kind = "permlane"; self.w = R[0] + R[1]; self.r = R[0] + R[1]
            elif mn.startswith("v_cmp"):
                self.w = R[0]; self.r = flat(R[1:])
            elif mn.startswith("v_readfirstlane") or mn.startswith("v_readlane"):
                self.kind = "readlane"; self.w = R[0]; self.r = flat(R[1:])
            elif mn.startswith(("v_add_co", "v_sub_co", "v_addc_co", "v_subb_co")):
                self.w = R[0] + R[1]; self.r = flat(R[2:])
            elif mn.startswith(("v_fmac", "v_dot2c", "v_mac")):
                self.w = R[0]; self.r = flat(R)
            else:
                self.w = R[0]; self.r = flat(R[1:])
                if mn.startswith("v_cndmask") and len(ops) == 3: self.r += parse_reg("vcc")
            if self.dpp: self.r += R[0]
        elif mn.startswith(("global_", "buffer_", "flat_")):
            self.kind = "vmem"
            if mn in ("buffer_inv", "buffer_wbl2"): return
            lds = (" lds" in (" " + mods)) or "_lds_" in mn or (ops and ops[-1] == "lds")
            if lds:
                self.lds_dma = True; self.r = flat(R) + [("s", 124)]
            elif "load" in mn:
                self.isload = True; self.w = R[0]; self.r = flat(R[1:])
            elif "atomic" in mn:
                if "sc0" in mods:
                    self.w = R[0]; self.r = flat(R[1:]); self.isload = True
                else: self.r = flat(R)
            else:
                self.r = flat(R)
                if mn.startswith("global_"): self.store_data = R[1]
                else: self.store_data = R[0]
                self.wide = ("x3" in mn) or ("x4" in mn)
        elif mn.startswith("ds_"):
            self.kind = "ds"
            if "read" in mn or "bpermute" in mn or "swizzle" in mn or "_rtn" in mn:
                self.isload = True; self.w = R[0]; self.r = flat(R[1:])
            else:
                self.r = flat(R)
        elif mn.startswith("s_"):
            self.kind = "salu"
            if mn == "s_nop":
                self.nop = int(ops[0], 0) + 1
            elif mn.startswith("s_cbranch") or mn == "s_branch":
                self.target = ops[0]
            elif mn.startswith(("s_cmp", "s_bitcmp", "s_waitcnt", "s_barrier", "s_sleep", "s_setprio", "s_endpgm", "s_setreg")):
                self.r = flat(R)
            else:
                self.w = R[0] if R else []; self.r = flat(R[1:])
                if "saveexec" in mn: self.w = self.w + parse_reg("exec")
        else:
            raise ValueError("unknown instr: " + text)

def need(prev, cur):
    n = 0
    pw = set(prev.w)
    isvalu = lambda k: k in ("valu", "trans", "permlane", "readlane")
    vregs = lambda L: set(x for x in L if x[0] in "va")
    sregs = lambda L: set(x for x in L if x[0] == "s")
    if isvalu(prev.kind):
        pv = vregs(prev.w); ps = sregs(prev.w)
        if cur.kind == "mfma" and pv & (set(cur.r) | set(cur.srcC)): n = max(n, 2)
        if isvalu(cur.kind):
            if cur.dpp and pv & set(cur.r): n = max(n, 2)
            if cur.kind == "permlane" and pv & set(cur.r): n = max(n, 2)
            if cur.kind == "readlane" and pv & set(cur.r): n = max(n, 1)
            if prev.kind == "trans" and cur.kind != "trans" and pv & set(cur.r): n = max(n, 1)
            if ps & set(cur.r): n = max(n, 4 if cur.kind == "readlane" else 2)
        if cur.kind == "vmem" and ps & set(cur.r): n = max(n, 5)
        if cur.kind == "salu" and ps & set(cur.r) and not cur.mn.startswith("s_cbranch"): n = max(n, 1)
    if prev.kind == "mfma":
        p = prev.passes
        big = {2: 5, 4: 8, 8: 12, 16: 20}[p]
        if cur.kind == "mfma":
            if pw & set(cur.r): n = max(n, big)
            ov = pw & set(cur.srcC)
            if ov:
                if list(prev.w) == list(cur.srcC) and prev.mn == cur.mn: n = max(n, 2 if p == 2 else 0)
                else: n = max(n, {2: 4, 4: 6, 8: 10, 16: 18}[p])
            if (pw & set(cur.w)) and not ov: n = max(n, {2: 4, 4: 6, 8: 10, 16: 18}[p])
        elif isvalu(cur.kind):
            if pw & (set(cur.r) | set(cur.w)): n = max(n, big)
            if set(prev.srcC) & set(cur.w): n = max(n, {2: 1, 4: 3, 8: 7, 16: 15}[p])
        elif cur.kind in ("vmem", "ds"):
            if pw & (set(cur.r) | set(cur.w)): n = max(n, big)
    if prev.kind == "vmem" and prev.wide and prev.store_data:
        sd = set(prev.store_data)
        if sd & set(cur.w): n = max(n, 2 if isvalu(cur.kind) else 1)
    if prev.kind == "salu" and ("s", 124) in pw and cur.kind == "vmem" and cur.lds_dma: n = max(n, 1)
    return n

class Asm:
    def __init__(self):
        self.lines = []
        self.uid = 0
    def __call__(self, text):
        for ln in text.split("\n"):
            ln = ln.strip()
            if ln: self.lines.append(ln)
    def label(self, name): self.lines.append(name + ":")
    def raw(self, text):
        for ln in text.split("\n"):
            if ln.strip(): self.lines.append(ln.strip())
    def newlabel(self, p="L"):
        self.uid += 1; return f"{p}_{self.uid}"
    def comment(self, c): self.lines.append("; " + c)
    def finish(self, window=24):
        out = []
        def scan(hist, cur):
            dist = 0; req = 0
            for p in reversed(hist):
                if p.kind in ("label", "dir"): continue
                n = need(p, cur)
                if n > dist: req = max(req, n - dist)
                dist += p.nop
                if dist >= window: break
            return req
        for ln in self.lines:
            if ln.startswith(";"):
                out.append(Ins("")); out[-1].text = ln; continue
            ins = Ins(ln)
            if ins.kind not in ("label", "dir"):
                req = scan(out[-80:], ins)
                while req > 0:
                    k = min(req, 16)
                    out.append(Ins(f"s_nop {k-1}")); req -= k
            out.append(ins)
        labels = {i.label: k for k, i in enumerate(out) if i.kind == "label"}
        errs = []
        for k, i in enumerate(out):
            if i.target and i.target in labels:
                hist = out[max(0, k - 80):k + 1]
                t = labels[i.target]
                sim = list(hist); cnt = 0
                for j in range(t, min(t + 60, len(out))):
                    c = out[j]
                    if c.kind in ("label", "dir"): continue
                    req = scan(sim, c)
                    if req > 0: errs.append(f"branch hazard: {i.text} -> {c.text} needs {req} more")
                    sim.append(c); cnt += c.nop
                    if cnt > window or c.mn in ("s_branch", "s_endpgm"): break
        if errs:
            raise RuntimeError("\n".join(errs))
        txt = []
        for i in out:
            if i.kind == "label": txt.append(i.text)
            elif i.kind == "dir": txt.append(i.text)
            else: txt.append("    " + i.text)
        return "\n".join(txt) + "\n"

def kernel_desc(name, vgpr, agpr=0, sgpr=102, wgy=False):
    acc = (vgpr + 3) // 4 * 4
    nfv = acc + agpr if agpr else vgpr
    t = f""".section .rodata,"a"
.p2align 6
.amdhsa_kernel {name}
  .amdhsa_next_free_vgpr {nfv}
  .amdhsa_next_free_sgpr {sgpr}
  .amdhsa_accum_offset {acc}
  .amdhsa_group_segment_fixed_size 0
  .amdhsa_kernarg_size 136
  .amdhsa_user_sgpr_count 2
  .amdhsa_user_sgpr_kernarg_segment_ptr 1
  .amdhsa_system_sgpr_workgroup_id_x 1
"""
    if wgy: t += "  .amdhsa_system_sgpr_workgroup_id_y 1\n"
    t += ".end_amdhsa_kernel\n.text\n"
    return t
def kernel_head(name):
    return f""".globl {name}
.p2align 8
.type {name},@function
{name}:
"""
```

```python
from asmlib import *
from layout import *

class Gemm:
    def __init__(self, A, NX, NY, swap, pfx, acc_agpr=True):
        self.A = A; self.NX = NX; self.NY = NY; self.swap = swap; self.pfx = pfx
        self.XW = 2 * NX * 16; self.YH = 2 * NY * 16
        self.RB = 2 * self.XW
        self.NIX = self.XW // 64; self.NIY = self.YH // 64
        self.XB = 32 * self.RB; self.YB = self.YH * 64
        self.SB = self.XB + self.YB
        self.NDMA = self.NIX + self.NIY
        self.nacc = NX * NY * 4
        r = 8
        self.vXr = r; r += NX
        self.vYr = r; r += 1
        self.vXd = r; r += self.NIX
        self.vYd = r; r += self.NIY
        r = (r + 3) // 4 * 4
        self.vF = r
        self.FS = (NX + NY) * 4
        r += 2 * self.FS
        self.vEnd = r
    def acc(self, jx, jy):
        return a((jx * self.NY + jy) * 4, 4)
    def accr(self, jx, jy): return (jx * self.NY + jy) * 4
    def fX(self, ph, j): return self.vF + ph * self.FS + 4 * j
    def fY(self, ph, j): return self.vF + ph * self.FS + 4 * (self.NX + j)

    def setup(self, sW, vL, ldx, ldy, T, sTmp):
        o = self.A; NX, NY = self.NX, self.NY
        vi, vg, t0, t1, t2, t3 = T[:6]
        s0, s1 = sTmp[:2]
        o(f"v_and_b32 v{vi}, 15, v{vL}")
        o(f"v_lshrrev_b32 v{vg}, 4, v{vL}")
        o(f"v_lshrrev_b32 v{t0}, 2, v{vi}")
        o(f"v_and_b32 v{t1}, 1, v{vg}")
        o(f"v_lshrrev_b32 v{t2}, 1, v{vg}")
        if self.XW == 256:
            o(f"v_lshlrev_b32 v{t3}, 3, v{t0}")
            o(f"v_lshl_add_u32 v{t3}, v{t2}, 2, v{t3}")
            o(f"v_add_u32 v{t3}, v{t3}, v{t1}")
            o(f"v_lshl_or_b32 v{t0}, v{t1}, 2, v{t0}")
        elif self.XW == 128:
            o(f"v_lshl_add_u32 v{t3}, v{vg}, 3, v{t0}")
            o(f"v_lshl_or_b32 v{t0}, v{t1}, 2, v{t0}")
        else:
            o(f"v_lshlrev_b32 v{t3}, 4, v{t2}")
            o(f"v_lshl_add_u32 v{t3}, v{t0}, 1, v{t3}")
            o(f"v_add_u32 v{t3}, v{t3}, v{t1}")
        sh = self.RB.bit_length() - 1
        o(f"v_lshlrev_b32 v{t3}, {sh}, v{t3}")
        o(f"v_and_b32 v{t1}, 3, v{vi}")
        o(f"v_lshl_add_u32 v{t3}, v{t1}, 3, v{t3}")
        o(f"s_and_b32 s{s0}, s{sW}, 1")
        o(f"s_mul_i32 s{s0}, s{s0}, {NX}")
        for j in range(NX):
            o(f"s_add_u32 s{s1}, s{s0}, {j}")
            o(f"v_xor_b32 v{t1}, s{s1}, v{t0}")
            o(f"v_lshl_add_u32 v{self.vXr+j}, v{t1}, 5, v{t3}")
        o(f"v_lshrrev_b32 v{t0}, 2, v{vi}")
        o(f"v_lshrrev_b32 v{t1}, 1, v{t0}")
        o(f"v_and_b32 v{t2}, 1, v{t0}")
        o(f"v_xor_b32 v{t2}, v{t2}, v{t1}")
        o(f"v_lshl_or_b32 v{t2}, v{t2}, 1, v{t1}")
        o(f"v_xor_b32 v{t2}, v{t2}, v{vg}")
        o(f"v_lshlrev_b32 v{t2}, 4, v{t2}")
        o(f"v_lshl_add_u32 v{t2}, v{vi}, 6, v{t2}")
        o(f"s_lshr_b32 s{s0}, s{sW}, 1")
        o(f"s_mul_i32 s{s0}, s{s0}, {NY*16*64}")
        o(f"s_add_u32 s{s0}, s{s0}, {self.XB}")
        o(f"v_add_u32 v{self.vYr}, s{s0}, v{t2}")
        ppr = self.RB // 16
        lg = ppr.bit_length() - 1
        o(f"v_lshrrev_b32 v{t0}, {lg}, v{vL}")
        o(f"v_and_b32 v{t1}, {ppr-1}, v{vL}")
        if self.XW == 256:
            o(f"v_lshlrev_b32 v{t2}, 3, v{t0}")
            o(f"v_add_u32 v{t2}, s{sW}, v{t2}")
            o(f"v_lshlrev_b32 v{t3}, 2, v{t0}")
            o(f"v_or_b32 v{t3}, s{sW}, v{t3}")
            toff = [0, 4, 16, 20]
        elif self.XW == 128:
            o(f"s_and_b32 s{s0}, s{sW}, 1")
            o(f"s_lshl_b32 s{s1}, s{s0}, 3")
            o(f"v_add_u32 v{t2}, s{s1}, v{t0}")
            o(f"s_lshr_b32 s{s1}, s{sW}, 1"); o(f"s_lshl_b32 s{s1}, s{s1}, 4")
            o(f"v_add_u32 v{t2}, s{s1}, v{t2}")
            o(f"s_lshl_b32 s{s0}, s{s0}, 2")
            o(f"v_or_b32 v{t3}, s{s0}, v{t0}")
            toff = [0, 4]
        else:
            o(f"v_lshrrev_b32 v{t3}, 1, v{t0}")
            o(f"v_and_b32 v{t2}, 1, v{t0}")
            o(f"v_lshl_add_u32 v{t2}, v{t2}, 3, v{t3}")
            o(f"s_and_b32 s{s0}, s{sW}, 1"); o(f"s_lshl_b32 s{s0}, s{s0}, 2")
            o(f"s_lshr_b32 s{s1}, s{sW}, 1"); o(f"s_lshl_b32 s{s1}, s{s1}, 4")
            o(f"s_add_u32 s{s0}, s{s0}, s{s1}")
            o(f"v_add_u32 v{t2}, s{s0}, v{t2}")
            toff = [0]
        o(f"v_lshrrev_b32 v{vi}, 1, v{t1}")
        o(f"v_xor_b32 v{vi}, v{vi}, v{t3}")
        o(f"v_lshlrev_b32 v{vi}, 5, v{vi}")
        o(f"v_and_b32 v{t1}, 1, v{t1}")
        o(f"v_lshl_or_b32 v{vi}, v{t1}, 4, v{vi}")
        o(f"s_mov_b32 s{s0}, {ldx}")
        o(f"v_mul_lo_u32 v{t2}, v{t2}, s{s0}")
        o(f"v_add_u32 v{self.vXd}, v{t2}, v{vi}")
        for t in range(1, self.NIX):
            o(f"v_add_u32 v{self.vXd+t}, {toff[t]*ldx}, v{self.vXd}")
        o(f"v_lshlrev_b32 v{t0}, 4, v{vL}")
        o(f"s_mul_i32 s{s0}, s{sW}, {self.NIY*1024}")
        o(f"v_add_u32 v{self.vYd}, s{s0}, v{t0}")
        for t in range(1, self.NIY):
            o(f"v_add_u32 v{self.vYd+t}, {t*1024}, v{self.vYd}")

    def dma(self, stage, sSrdX, sSrdY, sOffX, sOffY, sM0base):
        L = []
        for t in range(self.NIX):
            L.append([f"s_add_u32 m0, s{sM0base[0]}, {stage*self.SB + t*1024}",
                      f"buffer_load_dwordx4 v{self.vXd+t}, {s(sSrdX,4)}, s{sOffX} offen lds"])
        for t in range(self.NIY):
            L.append([f"s_add_u32 m0, s{sM0base[1]}, {stage*self.SB + self.XB + t*1024}",
                      f"buffer_load_dwordx4 v{self.vYd+t}, {s(sSrdY,4)}, s{sOffY} offen lds"])
        return L
    def reads(self, stage, ph, hi):
        L = []
        base = stage * self.SB
        def addr(reg, off):
            if off <= 65535 - 1024: return f"v{reg} offset:{off}"
            return None
        for j in range(max(self.NX, self.NY)):
            if j < self.NY:
                L.append(("Y", j, base + j * 1024))
            if j < self.NX:
                L.append(("X", j, base));
        return L

def gen_loop(G, sSrdX, sSrdY, sOffX, sOffY, sM0, sKcnt, stepX, stepY, niter, label, sW=None, stagger=False, opt=None, sSt=None, pf=None):
    opt = opt or {}
    o = G.A; NX, NY = G.NX, G.NY
    S = opt.get("S", 4)
    SB = G.SB
    sRd, sDm, sTm = sSt
    vC = G.vEnd
    G.vEnd2 = vC + NX + 1
    def rd(ph):
        L = []
        for j in range(max(NX, NY)):
            if j < NY: L.append(f"ds_read_b128 {v(G.fY(ph,j),4)}, v{vC+NX} offset:{j*1024}")
            if j < NX:
                L.append(f"ds_read_b64_tr_b16 {v(G.fX(ph,j),2)}, v{vC+j}")
                L.append(f"ds_read_b64_tr_b16 {v(G.fX(ph,j)+2,2)}, v{vC+j} offset:1024")
        return L
    def setaddr():
        return [f"v_add_u32 v{vC+j}, s{sRd}, v{G.vXr+j}" for j in range(NX)] + [f"v_add_u32 v{vC+NX}, s{sRd}, v{G.vYr}"]
    def adv(sreg):
        return [f"s_add_u32 s{sreg}, s{sreg}, {SB}", f"s_cmp_eq_u32 s{sreg}, {S*SB}", f"s_cselect_b32 s{sreg}, 0, s{sreg}"]
    def dma_groups():
        L = []
        for t in range(G.NIX):
            L.append([f"s_add_u32 m0, s{sTm}, {t*1024}", f"buffer_load_dwordx4 v{G.vXd+t}, {s(sSrdX,4)}, s{sOffX} offen lds"])
        for t in range(G.NIY):
            L.append([f"s_add_u32 m0, s{sTm+1}, {t*1024}", f"buffer_load_dwordx4 v{G.vYd+t}, {s(sSrdY,4)}, s{sOffY} offen lds"])
        return L
    def dma_pre():
        return [f"s_add_u32 s{sTm}, s{sM0[0]}, s{sDm}", f"s_add_u32 s{sTm+1}, s{sM0[1]}, s{sDm}"]
    def dma_post():
        return [f"s_add_u32 s{sOffX}, s{sOffX}, {stepX}", f"s_add_u32 s{sOffY}, s{sOffY}, {stepY}"] + adv(sDm)
    def mf(jx, jy, ph, first):
        c = "0" if first else G.acc(jx, jy)
        if G.swap: return f"v_mfma_f32_16x16x32_bf16 {G.acc(jx,jy)}, {v(G.fY(ph,jy),4)}, {v(G.fX(ph,jx),4)}, {c}"
        return f"v_mfma_f32_16x16x32_bf16 {G.acc(jx,jy)}, {v(G.fX(ph,jx),4)}, {v(G.fY(ph,jy),4)}, {c}"
    NPF = 1 if pf else 0
    def pf_ins():
        return [f"buffer_load_dword v{pf['vd']}, v{pf['vo']}, {s(pf['srd'],4)}, s{pf['off']} offen", f"s_add_u32 s{pf['off']}, s{pf['off']}, s{pf['step']}"]
    o(f"s_add_u32 s{sM0[1]}, s{sM0[1]}, {G.XB}")
    o(f"s_mov_b32 s{sDm}, 0"); o(f"s_mov_b32 s{sRd}, 0")
    for st in range(S):
        for x in dma_pre(): o(x)
        for g in dma_groups():
            for x in g: o(x)
        for x in dma_post(): o(x)
    npro = 0
    if pf:
        npro = pf['D']
        for d in range(npro):
            for x in pf_ins(): o(x)
    for x in setaddr(): o(x)
    o(f"s_waitcnt vmcnt({min(63, G.NDMA*(S-1) + npro)})")
    o("s_barrier")
    for x in rd(0): o(x)
    for x in adv(sRd): o(x)
    for x in setaddr(): o(x)
    for x in dma_pre(): o(x)
    o(f"s_waitcnt vmcnt({min(63, G.NDMA*(S-2) + npro)}) lgkmcnt(0)")
    o("s_barrier")
    def iteration(ph, first, itn=99):
        mfl = [mf(jx, jy, ph, first) for jy in range(NY) for jx in range(NX)]
        rl = rd(ph ^ 1)
        dl = dma_groups()
        if opt.get('nodma'): dl = []
        if opt.get('noread'): rl = []
        n = len(mfl)
        pre = [[] for _ in range(n)]; slots = [[] for _ in range(n)]
        used = set()
        per = max(1, n // max(1, len(dl)))
        for k, g in enumerate(dl):
            p = min(n - 1, k * per + 2)
            pre[p].append(g[0]); slots[p].append(g[1]); used.add(p)
        nr = len(rl); rspan = opt.get("rspan", n * 3 // 4)
        for k, x in enumerate(rl):
            p = min(n - 1, 1 + (k * rspan) // max(1, nr))
            while p in used and p + 1 < n: p += 1
            slots[p].append(x)
        lastr = max([k for k in range(n) if any(x.startswith("ds_read") for x in slots[k])] + [0])
        lastd = max([k for k in range(n) if any(x.startswith("buffer_load") for x in slots[k])] + [0])
        tail1 = [adv(sRd)] + [[x] for x in setaddr()]
        p = lastr + 1
        for k_, g in enumerate(tail1):
            slots[min(p, n - 1)] += g
            if n - p > len(tail1) - k_ or True: p += 1
        dp = dma_post()
        tail2 = [dp[:2], dp[2:], dma_pre()]
        p = lastd + 1
        for g in tail2:
            slots[min(p, n - 1)] += g; p += 1
        if pf: slots[n - 1] += pf_ins()
        for k in range(n):
            for x in pre[k]: o(x)
            o(mfl[k])
            for x in slots[k]: o(x)
        extra = 0
        if pf: extra = (npro + itn + 1) if itn < S - 2 else (S - 1)
        o(f"s_waitcnt vmcnt({min(63, G.NDMA*(S-2) + extra)}) lgkmcnt(0)")
        if not opt.get('nobar'): o("s_barrier")
    iteration(0, True, 0); iteration(1, False, 1)
    if niter > 2:
        o(f"s_mov_b32 s{sKcnt}, {niter//2 - 1}")
        o.label(f"{label}_loop")
        iteration(0, False); iteration(1, False)
        o(f"s_sub_u32 s{sKcnt}, s{sKcnt}, 1")
        o(f"s_cmp_lg_u32 s{sKcnt}, 0")
        o(f"s_cbranch_scc1 {label}_loop")
    o("s_waitcnt vmcnt(0)")
```

```python
from asmlib import *
from layout import *
from k_small import fbits, gfun
import math

def attn_body(A, sWS, sSeg, sHead, sQt, vL, lab, base=8):
    o = A
    r = base
    vQ = r; r += 16
    vK = r; r += 32
    vV = r; r += 32
    vKm = r; r += 8
    vVm = r; r += 8
    vS = r; r += 12
    vD = r; r += 4
    vP = r; r += 8
    vLs = r; r += 4
    vOn = r; r += 4
    vT = r; r += 12
    vO = vK
    sA, sB, sC, sD = 40, 42, 44, 46
    sT0, sT1, sSc, sMk = 48, 49, 50, 52
    l16 = vT + 10; t0, t1 = vT + 8, vT + 9
    o(f"v_lshlrev_b32 v{l16}, 4, v{vL}")
    o(f"s_lshl_b32 s{sT0}, s{sSeg}, 5"); o(f"s_add_u32 s{sT0}, s{sT0}, s{sHead}")
    o(f"s_lshl_b32 s{sT1}, s{sT0}, 13")
    o(f"s_add_u32 s{sT1}, s{sT1}, 4096")
    def base_(dst, off, extra):
        o(f"s_add_u32 s{dst}, s{sWS}, s{extra}"); o(f"s_addc_u32 s{dst+1}, s{sWS+1}, 0")
        o(f"s_add_u32 s{dst}, s{dst}, {off}"); o(f"s_addc_u32 s{dst+1}, s{dst+1}, 0")
    base_(sA, WS_K, sT1); base_(sB, WS_VT, sT1)
    o(f"s_lshl_b32 s{sC}, s{sQt}, 12"); o(f"s_add_u32 s{sT1}, s{sT1}, s{sC}"); o(f"s_sub_u32 s{sT1}, s{sT1}, 4096")
    base_(sC, WS_Q, sT1)
    o(f"s_lshl_b32 s{sT1}, s{sT0}, 11")
    base_(sD, WS_KM, sT1)
    for u in range(4): o(f"global_load_dwordx4 {v(vQ+4*u,4)}, v{l16}, {s(sC,2)} offset:{u*1024}")
    for t in range(8): o(f"global_load_dwordx4 {v(vK+4*t,4)}, v{l16}, {s(sA,2)} offset:{t*1024-4096}")
    for c in range(2): o(f"global_load_dwordx4 {v(vKm+4*c,4)}, v{l16}, {s(sD,2)} offset:{c*1024}")
    o(f"s_add_u32 s{sD}, s{sD}, {WS_VM - WS_KM}"); o(f"s_addc_u32 s{sD+1}, s{sD+1}, 0")
    for c in range(2): o(f"global_load_dwordx4 {v(vVm+4*c,4)}, v{l16}, {s(sD,2)} offset:{c*1024}")
    for t in range(8): o(f"global_load_dwordx4 {v(vV+4*t,4)}, v{l16}, {s(sB,2)} offset:{t*1024-4096}")
    for k in range(4): o(f"v_mov_b32 v{vOn+k}, 0x3f803f80")
    o(f"s_mov_b32 s{sSc}, {fbits(128 ** -0.5 * math.log2(math.e))}")
    o(f"v_and_b32 v{t0}, 15, v{vL}"); o(f"v_lshrrev_b32 v{t1}, 4, v{vL}"); o(f"v_lshlrev_b32 v{t1}, 2, v{t1}"); o(f"v_sub_u32 v{t0}, v{t0}, v{t1}")
    o("s_waitcnt vmcnt(10)")
    Sx0, Sx1, Sm = vS, vS + 4, vS + 8
    for u in range(4):
        c = "0" if u == 0 else None
        o(f"v_mfma_f32_16x16x32_bf16 {v(Sx0,4)}, {v(vK+4*u,4)}, {v(vQ+4*u,4)}, {c or v(Sx0,4)}")
        o(f"v_mfma_f32_16x16x32_bf16 {v(Sx1,4)}, {v(vK+16+4*u,4)}, {v(vQ+4*u,4)}, {c or v(Sx1,4)}")
        acc = Sm if u % 2 == 0 else vD
        cc = "0" if u < 2 else v(acc, 4)
        o(f"v_mfma_f32_16x16x32_bf16 {v(acc,4)}, {v(vKm+4*(u>>1),4)}, {v(vQ+4*u,4)}, {cc}")
    NEG = 0xff800000
    for k in range(4):
        o(f"v_mov_b32 v{vT+k}, v{vD+k}")
    for k in range(4):
        o(f"v_permlane32_swap_b32 v{vD+k}, v{vT+k}")
    for k in range(4):
        o(f"v_add_f32 v{Sm+k}, v{Sm+k}, v{vT+k}")
    o(f"v_mov_b32 v{t1}, 0xff800000")
    o(f"v_cmp_lt_u32 vcc, 31, v{vL}")
    for k in range(4): o(f"v_cndmask_b32 v{Sm+k}, v{Sm+k}, v{t1}, vcc")
    o(f"s_cmp_eq_u32 s{sQt}, 0"); o(f"s_cbranch_scc0 {lab}_q1")
    for k in range(4):
        o(f"v_cmp_gt_i32 vcc, {k}, v{t0}")
        o(f"v_cndmask_b32 v{Sx0+k}, v{Sx0+k}, v{t1}, vcc")
        o(f"v_mov_b32 v{Sx1+k}, v{t1}")
    o(f"s_branch {lab}_qd")
    A.label(f"{lab}_q1")
    for k in range(4):
        o(f"v_cmp_gt_i32 vcc, {k}, v{t0}")
        o(f"v_cndmask_b32 v{Sx1+k}, v{Sx1+k}, v{t1}, vcc")
    A.label(f"{lab}_qd")
    Sall = list(range(vS, vS + 12))
    m, t = vT, vT + 1
    o(f"v_max3_f32 v{m}, v{Sall[0]}, v{Sall[1]}, v{Sall[2]}")
    for k in range(3, 11, 2): o(f"v_max3_f32 v{m}, v{m}, v{Sall[k]}, v{Sall[k+1]}")
    o(f"v_max_f32 v{m}, v{m}, v{Sall[11]}")
    for sw in ("16", "32"):
        o(f"v_mov_b32 v{t}, v{m}"); o(f"v_permlane{sw}_swap_b32 v{m}, v{t}"); o(f"v_max_f32 v{m}, v{m}, v{t}")
    o(f"v_mul_f32 v{m}, s{sSc}, v{m}")
    for x in Sall: o(f"v_fma_f32 v{x}, v{x}, s{sSc}, -v{m}")
    for x in Sall: o(f"v_exp_f32 v{x}, v{x}")
    vPx, vPmA, vPmB = vP, vP + 4, vP + 6
    for k in range(4): o(f"v_cvt_pk_bf16_f32 v{vPx+k}, v{vS+2*k}, v{vS+2*k+1}")
    o(f"v_cvt_pk_bf16_f32 v{vPmA}, v{Sm}, v{Sm+1}"); o(f"v_cvt_pk_bf16_f32 v{vPmA+1}, v{Sm+2}, v{Sm+3}")
    o(f"v_mov_b32 v{vT+2}, v{vPmA}"); o(f"v_mov_b32 v{vT+3}, v{vPmA+1}"); o(f"v_mov_b32 v{vPmB}, 0"); o(f"v_mov_b32 v{vPmB+1}, 0")
    o(f"v_permlane32_swap_b32 v{vPmB}, v{vT+2}"); o(f"v_permlane32_swap_b32 v{vPmB+1}, v{vT+3}")
    o("s_waitcnt vmcnt(0)")
    o(f"v_mfma_f32_16x16x32_bf16 {v(vLs,4)}, {v(vOn,4)}, {v(vPx,4)}, 0")
    for tt in range(8): o(f"v_mfma_f32_16x16x32_bf16 {v(vO+4*tt,4)}, {v(vV+4*tt,4)}, {v(vPx,4)}, 0")
    o(f"v_mfma_f32_16x16x16_bf16 {v(vLs,4)}, {v(vOn,2)}, {v(vPmA,2)}, {v(vLs,4)}")
    for tt in range(8):
        c, tv = tt >> 1, tt & 1
        pm = vPmB if (c & 1) else vPmA
        o(f"v_mfma_f32_16x16x16_bf16 {v(vO+4*tt,4)}, {v(vVm+4*(c>>1)+2*tv,2)}, {v(pm,2)}, {v(vO+4*tt,4)}")
    o(f"v_rcp_f32 v{m}, v{vLs}")
    n_, rho, g_ = vT + 4, vT + 5, vT + 6
    o(f"v_and_b32 v{n_}, 15, v{vL}"); o(f"v_lshrrev_b32 v{rho}, 4, v{vL}")
    o(f"v_and_b32 v{g_}, 1, v{rho}"); o(f"v_lshrrev_b32 v{rho}, 1, v{rho}"); o(f"v_lshl_or_b32 v{rho}, v{g_}, 1, v{rho}")
    gfun(o, g_, n_, vT + 7)
    o(f"v_xor_b32 v{rho}, v{rho}, v{g_}"); o(f"v_lshl_add_u32 v{rho}, v{n_}, 2, v{rho}"); o(f"v_lshlrev_b32 v{rho}, 4, v{rho}")
    o(f"s_lshl_b32 s{sT0}, s{sHead}, 19")
    o(f"s_lshl_b32 s{sT1}, s{sSeg}, 1"); o(f"s_add_u32 s{sT1}, s{sT1}, s{sQt}"); o(f"s_lshl_b32 s{sT1}, s{sT1}, 10")
    o(f"s_add_u32 s{sT0}, s{sT0}, s{sT1}")
    base_(sA, WS_O, sT0)
    for u in range(4):
        P = vQ + 4 * u
        for h in range(2):
            tt = 2 * u + h
            for k in range(4): o(f"v_mul_f32 v{vO+4*tt+k}, v{vO+4*tt+k}, v{m}")
            o(f"v_cvt_pk_bf16_f32 v{P+2*h}, v{vO+4*tt}, v{vO+4*tt+1}"); o(f"v_cvt_pk_bf16_f32 v{P+2*h+1}, v{vO+4*tt+2}, v{vO+4*tt+3}")
        o(f"v_permlane16_swap_b32 v{P}, v{P+2}"); o(f"v_permlane16_swap_b32 v{P+1}, v{P+3}")
        o(f"global_store_dwordx4 v{rho}, {v(P,4)}, {s(sA,2)}")
        if u < 3:
            o(f"s_add_u32 s{sA}, s{sA}, 131072"); o(f"s_addc_u32 s{sA+1}, s{sA+1}, 0")
    return r

def gen_attn(name="attn_kernel"):
    A = Asm(); o = A
    o("s_cmp_ge_u32 s2, 1024"); o(f"s_cbranch_scc1 L_{name}_end")
    o(f"s_load_dwordx2 s[4:5], s[0:1], {KA_WS}")
    o("v_lshrrev_b32 v1, 6, v0"); o("v_and_b32 v0, 63, v0"); o("v_readfirstlane_b32 s3, v1")
    o("s_lshl_b32 s6, s2, 2"); o("s_add_u32 s6, s6, s3")
    o("s_lshr_b32 s7, s6, 6"); o("s_lshr_b32 s8, s6, 1"); o("s_and_b32 s8, s8, 31"); o("s_and_b32 s9, s6, 1")
    o("s_waitcnt lgkmcnt(0)")
    nv = attn_body(A, 4, 7, 8, 9, 0, f"L_{name}")
    o("s_waitcnt vmcnt(0)")
    A.label(f"L_{name}_end"); o("s_endpgm")
    return kernel_head(name) + A.finish() + kernel_desc(name, nv)
```

```python
from asmlib import *
from layout import *
from gemm import Gemm, gen_loop
from k_qkv import srd
from k_small import fbits, unpack8, LOG2E
import math

def common_head(o, name, ntiles, ptrs):
    o(f"s_cmp_ge_u32 s2, {ntiles}"); o(f"s_cbranch_scc1 L_{name}_end")
    o(f"s_load_dwordx2 s[6:7], s[0:1], {KA_WS}")
    for sreg, ka in ptrs: o(f"s_load_dwordx2 {s(sreg,2)}, s[0:1], {ka}")
    o("v_lshrrev_b32 v1, 6, v0"); o("v_and_b32 v0, 63, v0"); o("v_readfirstlane_b32 s3, v1")
    o("s_waitcnt lgkmcnt(0)")

sX, sY = 8, 12
sOffX, sOffY, sM0, sK = 20, 21, [22, 23], 24
sT = [25, 26, 27, 28]
sSt = [32, 33, 34]

def pair_pack(o, G, E, k, ra, rb, f=None):
    T = E + 16 * (k % 3) + 4
    for r in range(4): o(f"v_accvgpr_read_b32 v{T+r}, a{ra+r}")
    for r in range(4): o(f"v_accvgpr_read_b32 v{T+4+r}, a{rb+r}")
    return T

def gen_op(name="op_kernel", opt=None):
    A = Asm(); o = A
    common_head(o, name, 256, [(40, KA_WO), (42, KA_X)])
    srd(o, sX, 40, 0, 8 * MiB); srd(o, sY, 6, WS_O, 16 * MiB)
    o("s_and_b32 s25, s2, 7"); o("s_lshr_b32 s26, s2, 3"); o("s_lshl_b32 s4, s25, 1"); o("s_and_b32 s27, s26, 1"); o("s_add_u32 s4, s4, s27")
    o("s_lshr_b32 s5, s26, 1")
    o(f"s_lshl_b32 s{sOffX}, s4, 7"); o(f"s_lshl_b32 s{sOffY}, s5, 13")
    G = Gemm(A, 2, 4, False, "o")
    o(f"s_mul_i32 s{sM0[0]}, s3, {G.NIX*1024}"); o(f"s_mul_i32 s{sM0[1]}, s3, {G.NIY*1024}")
    G.setup(3, 0, 2048, 0, [1, 2, 3, 4, 5, 6], sT)
    gen_loop(G, sX, sY, sOffX, sOffY, sM0, sK, 32 * 2048, 128 * 1024, 128, f"L_{name}", opt=opt, sSt=sSt)
    E = G.vF
    o("v_and_b32 v1, 15, v0"); o("v_lshrrev_b32 v2, 4, v0"); o("v_and_b32 v3, 1, v2"); o("v_lshrrev_b32 v2, 1, v2")
    o("v_lshlrev_b32 v3, 4, v3"); o("v_lshl_add_u32 v3, v2, 3, v3")
    o("s_lshl_b32 s25, s4, 6"); o("s_and_b32 s26, s3, 1"); o("s_lshl_b32 s26, s26, 5"); o("s_add_u32 s25, s25, s26")
    o("v_add_u32 v3, s25, v3")
    o("s_lshl_b32 s25, s5, 7"); o("s_lshr_b32 s26, s3, 1"); o("s_lshl_b32 s26, s26, 6"); o("s_add_u32 s25, s25, s26")
    o("v_add_u32 v1, s25, v1")
    o("v_lshlrev_b32 v4, 11, v1"); o("v_lshl_add_u32 v4, v3, 1, v4")
    o("v_lshlrev_b32 v5, 2, v3")
    o(f"s_add_u32 s44, s6, {WS_MOD + 2*4096}"); o("s_addc_u32 s45, s7, 0")
    GA = E + 64
    o(f"global_load_dwordx4 {v(GA,4)}, v5, s[44:45]"); o(f"global_load_dwordx4 {v(GA+4,4)}, v5, s[44:45] offset:16")
    XR = E + 72
    for jy in range(4):
        o(f"v_add_u32 v6, {jy*16*2048}, v4")
        o(f"global_load_dwordx4 {v(XR+4*jy,4)}, v6, s[42:43]")
    o(f"s_add_u32 s44, s6, {WS_X1}"); o("s_addc_u32 s45, s7, 0")
    for jy in range(4):
        T = pair_pack(o, G, E, jy, G.accr(0, jy), G.accr(1, jy))
        for r in range(4): o(f"v_permlane16_swap_b32 v{T+r}, v{T+4+r}")
        if jy == 0: o("s_waitcnt vmcnt(0)")
        U = E + 48
        unpack8(o, U, XR + 4 * jy)
        for e in range(8): o(f"v_fma_f32 v{T+e}, v{T+e}, v{GA+e}, v{U+e}")
        P = T - 4
        for d in range(4): o(f"v_cvt_pk_bf16_f32 v{P+d}, v{T+2*d}, v{T+2*d+1}")
        o(f"v_add_u32 v6, {jy*16*2048}, v4")
        o(f"global_store_dwordx4 v6, {v(P,4)}, s[44:45]")
    o("s_waitcnt vmcnt(0)")
    A.label(f"L_{name}_end"); o("s_endpgm")
    return kernel_head(name) + A.finish() + kernel_desc(name, max(G.vEnd2, E + 96), G.nacc), 4 * G.SB

def gen_g1(name="g1_kernel", opt=None):
    A = Asm(); o = A
    common_head(o, name, 224, [(40, KA_W1), (42, KA_B1)])
    srd(o, sX, 40, 0, 2048 * 7168); srd(o, sY, 6, WS_H2T, 4 * MiB)
    o("s_lshr_b32 s4, s2, 3"); o("s_and_b32 s5, s2, 7")
    o(f"s_lshl_b32 s{sOffX}, s4, 8"); o(f"s_lshl_b32 s{sOffY}, s5, 13")
    G = Gemm(A, 4, 4, False, "g")
    o(f"s_mul_i32 s{sM0[0]}, s3, {G.NIX*1024}"); o(f"s_mul_i32 s{sM0[1]}, s3, {G.NIY*1024}")
    G.setup(3, 0, 7168, 0, [1, 2, 3, 4, 5, 6], sT)
    gen_loop(G, sX, sY, sOffX, sOffY, sM0, sK, 32 * 7168, 64 * 1024, 64, f"L_{name}", opt=opt, sSt=sSt)
    E = G.vF
    o("v_and_b32 v1, 15, v0"); o("v_lshrrev_b32 v2, 4, v0"); o("v_and_b32 v3, 1, v2"); o("v_lshrrev_b32 v2, 1, v2")
    o("v_lshlrev_b32 v4, 4, v3"); o("v_lshl_add_u32 v4, v2, 3, v4")
    o("v_lshl_or_b32 v2, v3, 1, v2")
    from k_small import gfun
    gfun(o, 3, 1, 5)
    o("v_xor_b32 v2, v2, v3"); o("v_lshl_add_u32 v2, v1, 2, v2"); o("v_lshlrev_b32 v2, 4, v2")
    o("s_lshl_b32 s25, s4, 7"); o("s_and_b32 s26, s3, 1"); o("s_lshl_b32 s26, s26, 6"); o("s_add_u32 s25, s25, s26")
    o("v_add_u32 v4, s25, v4"); o("v_lshlrev_b32 v4, 1, v4")
    BR = E + 64
    for jp in range(2): o(f"global_load_dwordx4 {v(BR+4*jp,4)}, v4, s[42:43] offset:{jp*64}")
    o("s_lshr_b32 s26, s25, 5"); o("s_lshl_b32 s26, s26, 16")
    o("s_lshl_b32 s27, s5, 3"); o("s_lshr_b32 s28, s3, 1"); o("s_lshl_b32 s28, s28, 2"); o("s_add_u32 s27, s27, s28"); o("s_lshl_b32 s27, s27, 10")
    o("s_add_u32 s26, s26, s27"); o(f"s_add_u32 s26, s26, {WS_U}")
    o("s_add_u32 s44, s6, s26"); o("s_addc_u32 s45, s7, 0")
    o("s_waitcnt vmcnt(0)")
    BF = E + 72
    for jp in range(2): unpack8(o, BF + 8 * jp, BR + 4 * jp)
    c1 = -2.0 * math.sqrt(2.0 / math.pi) * LOG2E
    o(f"s_mov_b32 s46, {fbits(0.044715)}"); o(f"s_mov_b32 s47, {fbits(c1)}")
    k = 0
    for jp in range(2):
        for jy in range(4):
            T = pair_pack(o, G, E, k, G.accr(2 * jp, jy), G.accr(2 * jp + 1, jy)); k += 1
            for r in range(4): o(f"v_permlane16_swap_b32 v{T+r}, v{T+4+r}")
            U = E + 48
            for e in range(8): o(f"v_add_f32 v{T+e}, v{T+e}, v{BF+8*jp+e}")
            for e in range(8): o(f"v_mul_f32 v{U+e}, v{T+e}, v{T+e}")
            for e in range(8): o(f"v_fma_f32 v{U+e}, v{U+e}, s46, 1.0")
            for e in range(8): o(f"v_mul_f32 v{U+e}, v{U+e}, v{T+e}")
            for e in range(8): o(f"v_mul_f32 v{U+e}, s47, v{U+e}")
            for e in range(8): o(f"v_exp_f32 v{U+e}, v{U+e}")
            for e in range(8): o(f"v_add_f32 v{U+e}, 1.0, v{U+e}")
            for e in range(8): o(f"v_rcp_f32 v{U+e}, v{U+e}")
            for e in range(8): o(f"v_mul_f32 v{T+e}, v{T+e}, v{U+e}")
            P = T - 4
            for d in range(4): o(f"v_cvt_pk_bf16_f32 v{P+d}, v{T+2*d}, v{T+2*d+1}")
            o(f"v_add_u32 v5, {jp*65536 + jy*1024}, v2")
            o(f"global_store_dwordx4 v5, {v(P,4)}, s[44:45]")
    o("s_waitcnt vmcnt(0)")
    A.label(f"L_{name}_end"); o("s_endpgm")
    return kernel_head(name) + A.finish() + kernel_desc(name, max(G.vEnd2, E + 96), G.nacc), 4 * G.SB

def gen_g2(name="g2_kernel", opt=None):
    A = Asm(); o = A
    common_head(o, name, 256, [(40, KA_W2), (42, KA_B2), (48, KA_OUT)])
    srd(o, sX, 40, 0, 3584 * 4096); srd(o, sY, 6, WS_U, 112 * 64 * 1024)
    o("s_and_b32 s25, s2, 7"); o("s_lshr_b32 s26, s2, 3"); o("s_lshl_b32 s4, s25, 1"); o("s_and_b32 s27, s26, 1"); o("s_add_u32 s4, s4, s27")
    o("s_lshr_b32 s5, s26, 1")
    o(f"s_lshl_b32 s{sOffX}, s4, 8"); o(f"s_lshl_b32 s{sOffY}, s5, 12")
    G = Gemm(A, 4, 2, True, "h")
    o(f"s_mul_i32 s{sM0[0]}, s3, {G.NIX*1024}"); o(f"s_mul_i32 s{sM0[1]}, s3, {G.NIY*1024}")
    G.setup(3, 0, 4096, 0, [1, 2, 3, 4, 5, 6], sT)
    gen_loop(G, sX, sY, sOffX, sOffY, sM0, sK, 32 * 4096, 64 * 1024, 112, f"L_{name}", opt=opt, sSt=sSt)
    E = G.vF
    o("v_and_b32 v1, 15, v0"); o("v_lshrrev_b32 v2, 4, v0"); o("v_and_b32 v3, 1, v2"); o("v_lshrrev_b32 v2, 1, v2")
    o("v_lshlrev_b32 v3, 4, v3"); o("v_lshl_add_u32 v3, v2, 3, v3")
    o("s_lshl_b32 s25, s5, 6"); o("s_lshr_b32 s26, s3, 1"); o("s_lshl_b32 s26, s26, 5"); o("s_add_u32 s25, s25, s26")
    o("v_add_u32 v3, s25, v3")
    o("s_lshl_b32 s25, s4, 7"); o("s_and_b32 s26, s3, 1"); o("s_lshl_b32 s26, s26, 6"); o("s_add_u32 s25, s25, s26")
    o("v_add_u32 v1, s25, v1")
    o("v_lshlrev_b32 v4, 11, v1"); o("v_lshl_add_u32 v4, v3, 1, v4")
    o("v_lshlrev_b32 v5, 2, v3")
    o(f"s_add_u32 s44, s6, {WS_MOD + 5*4096}"); o("s_addc_u32 s45, s7, 0")
    GB = E + 64
    o(f"global_load_dwordx4 {v(GB,4)}, v5, s[44:45]"); o(f"global_load_dwordx4 {v(GB+4,4)}, v5, s[44:45] offset:16")
    XR = E + 72; B2 = E + 88
    o(f"s_add_u32 s44, s6, {WS_X1}"); o("s_addc_u32 s45, s7, 0")
    o("v_lshlrev_b32 v7, 1, v1")
    for jx in range(4):
        o(f"v_add_u32 v6, {jx*16*2048}, v4")
        o(f"global_load_dwordx4 {v(XR+4*jx,4)}, v6, s[44:45]")
        o(f"global_load_ushort v{B2+jx}, v7, s[42:43] offset:{jx*32}")
    for jx in range(4):
        T = pair_pack(o, G, E, jx, G.accr(jx, 0), G.accr(jx, 1))
        for r in range(4): o(f"v_permlane16_swap_b32 v{T+r}, v{T+4+r}")
        if jx == 0: o("s_waitcnt vmcnt(0)")
        U = E + 48
        unpack8(o, U, XR + 4 * jx)
        o(f"v_lshlrev_b32 v{B2+jx}, 16, v{B2+jx}")
        for e in range(8): o(f"v_add_f32 v{T+e}, v{T+e}, v{B2+jx}")
        for e in range(8): o(f"v_fma_f32 v{T+e}, v{T+e}, v{GB+e}, v{U+e}")
        P = T - 4
        for d in range(4): o(f"v_cvt_pk_bf16_f32 v{P+d}, v{T+2*d}, v{T+2*d+1}")
        o(f"v_add_u32 v6, {jx*16*2048}, v4")
        o(f"global_store_dwordx4 v6, {v(P,4)}, s[48:49]")
    o("s_waitcnt vmcnt(0)")
    A.label(f"L_{name}_end"); o("s_endpgm")
    return kernel_head(name) + A.finish() + kernel_desc(name, max(G.vEnd2, E + 96), G.nacc), 4 * G.SB
```

```python
from asmlib import *
from layout import *
from gemm import Gemm, gen_loop

def srd(o, dst, base_pair, off, nbytes):
    o(f"s_add_u32 s{dst}, s{base_pair}, {off & 0xffffffff}")
    o(f"s_addc_u32 s{dst+1}, s{base_pair+1}, 0")
    o(f"s_and_b32 s{dst+1}, s{dst+1}, 0xffff")
    o(f"s_mov_b32 s{dst+2}, {nbytes}")
    o(f"s_mov_b32 s{dst+3}, 0x00020000")

def gen_qkv(name="qkv_kernel", prof=False, stagger=True, opt=None):
    A = Asm(); o = A
    sW, sCt, sCh = 3, 4, 5
    sWS = 6
    sX, sY, sO = 8, 12, 16
    sOffX, sOffY, sM0, sK = 20, 21, [22, 23], 24
    sT = [25, 26, 27, 28]
    sP = 30
    o("s_cmp_ge_u32 s2, 384")
    o(f"s_cbranch_scc1 L_{name}_end")
    o(f"s_load_dwordx2 {s(sWS,2)}, s[0:1], {KA_WS}")
    if prof: o("s_memrealtime s[40:41]"); o("s_memtime s[46:47]")
    o(f"s_and_b32 s{sT[0]}, s2, 7")
    o(f"s_lshr_b32 s{sT[1]}, s2, 3")
    o(f"s_mul_i32 s{sCh}, s{sT[1]}, 43"); o(f"s_lshr_b32 s{sCh}, s{sCh}, 8")
    o(f"s_mul_i32 s{sT[2]}, s{sCh}, 6"); o(f"s_sub_u32 s{sT[1]}, s{sT[1]}, s{sT[2]}")
    o(f"s_mul_i32 s{sCt}, s{sT[0]}, 6"); o(f"s_add_u32 s{sCt}, s{sCt}, s{sT[1]}")
    o(f"s_lshr_b32 s{sT[0]}, s{sCt}, 4")
    o(f"s_lshl_b32 s{sT[1]}, s{sT[0]}, 3")
    o(f"s_add_u32 s{sP}, s0, s{sT[1]}"); o(f"s_addc_u32 s{sP+1}, s1, 0")
    o(f"s_load_dwordx2 {s(sP,2)}, {s(sP,2)}, {KA_WQ}")
    o("v_lshrrev_b32 v1, 6, v0")
    o("v_and_b32 v0, 63, v0")
    o(f"v_readfirstlane_b32 s{sW}, v1")
    o("s_waitcnt lgkmcnt(0)")
    srd(o, sX, sP, 0, 8 * MiB)
    srd(o, sY, sWS, WS_H, 4 * MiB)
    o(f"s_lshl_b32 s{sT[1]}, s{sT[0]}, 24")
    o(f"s_add_u32 s{sT[1]}, s{sT[1]}, {WS_Q}")
    o(f"s_add_u32 s{sO}, s{sWS}, s{sT[1]}"); o(f"s_addc_u32 s{sO+1}, s{sWS+1}, 0"); o(f"s_and_b32 s{sO+1}, s{sO+1}, 0xffff")
    o(f"s_mov_b32 s{sO+2}, {16*MiB}"); o(f"s_mov_b32 s{sO+3}, 0x00020000")
    o(f"s_and_b32 s{sT[1]}, s{sCt}, 15")
    o(f"s_lshl_b32 s{sOffX}, s{sT[1]}, 9")
    o(f"s_lshl_b32 s{sOffY}, s{sCh}, 14")
    if opt and opt.get("same"):
        o(f"s_mov_b32 s{sOffX}, 0"); o(f"s_mov_b32 s{sOffY}, 0")
    if opt and opt.get("samex"): o(f"s_mov_b32 s{sOffX}, 0")
    if opt and opt.get("samey"): o(f"s_mov_b32 s{sOffY}, 0")
    o(f"s_lshl_b32 s{sM0[0]}, s{sW}, 12")
    o(f"s_lshl_b32 s{sM0[1]}, s{sW}, 12")
    pf = None
    if opt and opt.get("pf"):
        D = opt["pf"]; S_ = opt.get("S", 4)
        sPf, sPo, sPs = 36, 50, 51
        vPo, vPd = 7, 6
        o(f"s_and_b32 s{sT[0]}, s2, 7"); o(f"s_mul_i32 s{sT[0]}, s{sT[0]}, 6"); o(f"s_sub_u32 s{sT[0]}, s{sCt}, s{sT[0]}"); o(f"s_and_b32 s{sT[0]}, s{sT[0]}, 3")
        o(f"s_and_b32 s{sT[1]}, s{sCh}, 3")
        o(f"s_and_b32 s{sT[2]}, s{sW}, 1"); o(f"s_lshl_b32 s{sT[2]}, s{sT[2]}, 4")
        o(f"v_lshrrev_b32 v1, 2, v0"); o(f"v_add_u32 v1, s{sT[2]}, v1")
        o(f"s_cmp_lt_u32 s{sW}, 2")
        o(f"s_cselect_b32 s{sT[2]}, s{sT[1]}, s{sT[0]}"); o(f"s_lshl_b32 s{sT[2]}, s{sT[2]}, 5")
        o(f"v_add_u32 v1, s{sT[2]}, v1")
        o(f"v_lshrrev_b32 v2, 2, v1"); o(f"v_lshlrev_b32 v2, 13, v2"); o(f"v_and_b32 v3, 3, v1"); o(f"v_lshl_add_u32 v2, v3, 7, v2")
        o(f"v_lshlrev_b32 v3, 7, v1")
        o(f"s_cselect_b64 vcc, -1, 0")
        o(f"v_cndmask_b32 v{vPo}, v3, v2, vcc")
        for r in range(4): o(f"s_cselect_b32 s{sPf+r}, s{sX+r}, s{sY+r}")
        o(f"s_mov_b32 s{sT[2]}, {128*1024}")
        o(f"s_cselect_b32 s{sPs}, {32*8192}, s{sT[2]}")
        o(f"s_cselect_b32 s{sPo}, s{sOffX}, s{sOffY}")
        o(f"s_mul_i32 s{sT[2]}, s{sPs}, {S_}"); o(f"s_add_u32 s{sPo}, s{sPo}, s{sT[2]}")
        pf = dict(srd=sPf, off=sPo, step=sPs, vo=vPo, vd=vPd, D=D)
    o(f"s_cmp_ge_u32 s{sCt}, 32")
    o(f"s_cbranch_scc1 L_{name}_v")
    for swap in (False, True):
        if swap: A.label(f"L_{name}_v")
        G = Gemm(A, 8, 8, swap, "q")
        G.setup(sW, 0, 8192, 2048, [1, 2, 3, 4, 5, 28 + 0], sT)
        gen_loop(G, sX, sY, sOffX, sOffY, sM0, sK, 32 * 8192, 128 * 1024, 32, f"L_{name}_{int(swap)}", opt=opt, sSt=[32, 33, 34], pf=pf)
        if prof: o("s_memrealtime s[42:43]"); o("s_memtime s[48:49]")
        E = G.vF
        vLo = 1
        o(f"s_and_b32 s{sT[0]}, s{sCt}, 15"); o(f"s_lshl_b32 s{sT[0]}, s{sT[0]}, 1")
        o(f"s_and_b32 s{sT[1]}, s{sW}, 1"); o(f"s_add_u32 s{sT[0]}, s{sT[0]}, s{sT[1]}")
        o(f"s_lshl_b32 s{sT[1]}, s{sCh}, 3"); o(f"s_lshr_b32 s{sT[2]}, s{sW}, 1"); o(f"s_lshl_b32 s{sT[2]}, s{sT[2]}, 2")
        o(f"s_add_u32 s{sT[1]}, s{sT[1]}, s{sT[2]}")
        o(f"s_lshl_b32 s{sT[1]}, s{sT[1]}, 5"); o(f"s_add_u32 s{sT[0]}, s{sT[0]}, s{sT[1]}")
        o(f"s_lshl_b32 s{sT[0]}, s{sT[0]}, 13")
        if not swap:
            o(f"v_lshrrev_b32 v2, 4, v0")
            o(f"v_and_b32 v3, 1, v2"); o(f"v_lshrrev_b32 v2, 1, v2")
            o(f"v_lshl_or_b32 v2, v3, 1, v2")
            o(f"v_and_b32 v3, 15, v0")
            o(f"v_lshl_or_b32 v2, v2, 4, v3")
            o(f"v_lshlrev_b32 v{vLo}, 4, v2")
            k = 0
            for jy in range(8):
                off = (jy >> 1) * 262144 + (jy & 1) * 4096
                o(f"s_add_u32 s{sT[1]}, s{sT[0]}, {off}")
                for u in range(4):
                    P = E + 12 * (k % 4); k += 1
                    T = P + 4
                    for h in range(2):
                        ar = G.accr(2 * u + h, jy)
                        for r in range(4): o(f"v_accvgpr_read_b32 v{T+4*h+r}, a{ar+r}")
                    o(f"v_cvt_pk_bf16_f32 v{P}, v{T}, v{T+1}"); o(f"v_cvt_pk_bf16_f32 v{P+1}, v{T+2}, v{T+3}")
                    o(f"v_cvt_pk_bf16_f32 v{P+2}, v{T+4}, v{T+5}"); o(f"v_cvt_pk_bf16_f32 v{P+3}, v{T+6}, v{T+7}")
                    o(f"v_permlane16_swap_b32 v{P}, v{P+2}"); o(f"v_permlane16_swap_b32 v{P+1}, v{P+3}")
                    o(f"buffer_store_dwordx4 {v(P,4)}, v{vLo}, {s(sO,4)}, s{sT[1]} offen offset:{u*1024}")
        else:
            o(f"v_lshlrev_b32 v{vLo}, 4, v0")
            k = 0
            for jp in range(4):
                for half in range(2):
                    o(f"s_add_u32 s{sT[1]}, s{sT[0]}, {jp*262144 + half*4096}")
                    for tt in range(4):
                        jx = half * 4 + tt
                        P = E + 12 * (k % 4); k += 1
                        T = P + 4
                        for h in range(2):
                            ar = G.accr(jx, 2 * jp + h)
                            for r in range(4): o(f"v_accvgpr_read_b32 v{T+4*h+r}, a{ar+r}")
                        o(f"v_cvt_pk_bf16_f32 v{P}, v{T}, v{T+1}"); o(f"v_cvt_pk_bf16_f32 v{P+1}, v{T+2}, v{T+3}")
                        o(f"v_cvt_pk_bf16_f32 v{P+2}, v{T+4}, v{T+5}"); o(f"v_cvt_pk_bf16_f32 v{P+3}, v{T+6}, v{T+7}")
                        o(f"buffer_store_dwordx4 {v(P,4)}, v{vLo}, {s(sO,4)}, s{sT[1]} offen offset:{tt*1024}")
        o("s_waitcnt vmcnt(0)")
        if prof:
            o("s_memrealtime s[44:45]")
            o("s_waitcnt lgkmcnt(0)")
            o(f"s_lshl_b32 s{sT[0]}, s2, 6"); o(f"s_lshl_b32 s{sT[1]}, s{sW}, 4"); o(f"s_add_u32 s{sT[0]}, s{sT[0]}, s{sT[1]}")
            o(f"s_add_u32 s{sT[0]}, s{sT[0]}, {WS_PROF}")
            o(f"s_sub_u32 s48, s48, s46")
            o("v_mov_b32 v2, s40"); o("v_mov_b32 v3, s42"); o("v_mov_b32 v4, s44"); o("v_mov_b32 v5, s48")
            o(f"v_mov_b32 v6, s{sT[0]}")
            o("s_mov_b64 exec, 1")
            o(f"global_store_dwordx4 v6, v[2:5], {s(sWS,2)}")
            o("s_waitcnt vmcnt(0)")
        if not swap: o("s_endpgm")
        nv = G.vEnd2
    A.label(f"L_{name}_end")
    o("s_endpgm")
    return kernel_head(name) + A.finish() + kernel_desc(name, max(nv, 160), 256)

if __name__ == "__main__":
    hdr = "; @launch kernel=qkv_kernel grid=(384,1,1) block=(256,1,1) lds=163840\n.amdgcn_target \"amdgcn-amd-amdhsa--gfx950\"\n.text\n"
    import sys
    opt = {}
    for x in sys.argv[1:]:
        if "=" in x and not x.startswith("out="): opt[x.split("=")[0]] = int(x.split("=")[1])
    outn = [x.split("=")[1] for x in sys.argv if x.startswith("out=")]
    open(outn[0] if outn else "qkv_test.s", "w").write(hdr + gen_qkv(prof="prof" in sys.argv, stagger="nostag" not in sys.argv, opt=opt))
```

```python
from asmlib import *
from layout import *
import struct, math
def fbits(x): return "0x%08x" % struct.unpack("<I", struct.pack("<f", x))[0]
LOG2E = math.log2(math.e)

def wave_sum(o, vx, vt, op="v_add_f32"):
    for ctrl in ("quad_perm:[1,0,3,2]", "quad_perm:[2,3,0,1]", "row_half_mirror", "row_mirror"):
        o(f"{op}_dpp v{vx}, v{vx}, v{vx} {ctrl} row_mask:0xf bank_mask:0xf")
    for sw in ("16", "32"):
        o(f"v_mov_b32 v{vt}, v{vx}")
        o(f"v_permlane{sw}_swap_b32 v{vx}, v{vt}")
        o(f"{op} v{vx}, v{vx}, v{vt}")

def gen_pre(name="pre_kernel"):
    A = Asm(); o = A
    o("s_cmp_ge_u32 s2, 256"); o(f"s_cbranch_scc1 L_{name}_end")
    o(f"s_load_dwordx2 s[4:5], s[0:1], {KA_WS}")
    o(f"s_load_dwordx2 s[6:7], s[0:1], {KA_C}")
    o(f"s_load_dwordx2 s[8:9], s[0:1], {KA_WMOD}")
    o(f"s_load_dwordx2 s[10:11], s[0:1], {KA_MEM0}")
    o("v_lshrrev_b32 v1, 6, v0"); o("v_and_b32 v2, 63, v0"); o("v_readfirstlane_b32 s3, v1")
    for r in range(4): o(f"v_mov_b32 v{8+r}, -1")
    o("v_lshlrev_b32 v3, 4, v0")
    o("s_waitcnt lgkmcnt(0)")
    o("v_lshlrev_b32 v4, 3, v0")
    o("global_load_dwordx2 v[12:13], v4, s[6:7]")
    o("s_lshl_b32 s12, s2, 15"); o(f"s_add_u32 s12, s12, {WS_PARTF}")
    o("s_add_u32 s14, s4, s12"); o("s_addc_u32 s15, s5, 0")
    for k in range(8):
        o(f"global_store_dwordx4 v3, v[8:11], s[14:15]" + (f" offset:0" if k == 0 else ""))
        o("s_add_u32 s14, s14, 4096"); o("s_addc_u32 s15, s15, 0")
    o("s_cmp_ge_u32 s2, 128"); o(f"s_cbranch_scc1 L_{name}_f2")
    o("s_lshl_b32 s12, s2, 12")
    o(f"s_add_u32 s13, s12, {WS_RQK}"); o("s_add_u32 s14, s4, s13"); o("s_addc_u32 s15, s5, 0")
    o("global_store_dwordx4 v3, v[8:11], s[14:15]")
    o(f"s_add_u32 s13, s12, {WS_RMEM}"); o("s_add_u32 s14, s4, s13"); o("s_addc_u32 s15, s5, 0")
    o("s_cmp_lt_u32 s2, 32"); o(f"s_cbranch_scc1 L_{name}_img")
    o("global_store_dwordx4 v3, v[8:11], s[14:15]")
    o(f"s_branch L_{name}_f3")
    A.label(f"L_{name}_img")
    o("s_and_b32 s16, s2, 3"); o("s_lshl_b32 s16, s16, 2"); o("s_add_u32 s16, s16, s3"); o("s_lshl_b32 s16, s16, 7")
    o("v_and_b32 v5, 7, v2"); o("v_lshlrev_b32 v5, 11, v5")
    o("v_bfe_u32 v6, v2, 3, 1"); o("v_lshl_add_u32 v5, v6, 6, v5")
    o("v_lshrrev_b32 v6, 4, v2"); o("v_lshl_add_u32 v5, v6, 4, v5")
    o("v_add_u32 v5, s16, v5")
    o("global_load_dwordx4 v[16:19], v5, s[10:11]")
    o("s_waitcnt vmcnt(0)")
    o("global_store_dwordx4 v3, v[16:19], s[14:15]")
    o(f"s_branch L_{name}_f3")
    A.label(f"L_{name}_f2")
    o("s_cmp_ge_u32 s2, 192"); o(f"s_cbranch_scc1 L_{name}_f3")
    o("s_sub_u32 s12, s2, 128"); o("s_lshl_b32 s12, s12, 12")
    o(f"s_add_u32 s13, s12, {WS_RV}"); o("s_add_u32 s14, s4, s13"); o("s_addc_u32 s15, s5, 0")
    o("global_store_dwordx4 v3, v[8:11], s[14:15]")
    A.label(f"L_{name}_f3")
    o("s_cmp_ge_u32 s2, 192"); o(f"s_cbranch_scc1 L_{name}_done")
    o("s_waitcnt vmcnt(0)")
    o("v_lshlrev_b32 v14, 16, v12"); o("v_and_b32 v15, 0xffff0000, v12"); o("v_lshlrev_b32 v16, 16, v13"); o("v_and_b32 v17, 0xffff0000, v13")
    o(f"s_mov_b32 s12, {fbits(-LOG2E)}")
    for r in range(4):
        o(f"v_mul_f32 v{20+r}, s12, v{14+r}")
        o(f"v_exp_f32 v{20+r}, v{20+r}")
        o(f"v_add_f32 v{20+r}, 1.0, v{20+r}")
        o(f"v_rcp_f32 v{20+r}, v{20+r}")
        o(f"v_mul_f32 v{20+r}, v{14+r}, v{20+r}")
    o("v_cvt_pk_bf16_f32 v24, v20, v21"); o("v_cvt_pk_bf16_f32 v25, v22, v23")
    o("v_lshlrev_b32 v20, 16, v24"); o("v_and_b32 v21, 0xffff0000, v24"); o("v_lshlrev_b32 v22, 16, v25"); o("v_and_b32 v23, 0xffff0000, v25")
    o("v_lshlrev_b32 v4, 4, v0")
    o("ds_write_b128 v4, v[20:23]")
    o("s_waitcnt lgkmcnt(0)"); o("s_barrier")
    o("v_lshrrev_b32 v5, 2, v2"); o("s_lshl_b32 s12, s3, 8"); o("v_add_u32 v5, s12, v5")
    o("v_lshlrev_b32 v6, 2, v5")
    o("s_mov_b32 s13, 12288"); o("v_mul_lo_u32 v7, v5, s13")
    o("v_and_b32 v26, 3, v2"); o("v_lshl_add_u32 v7, v26, 4, v7")
    o("s_lshl_b32 s12, s2, 6"); o("v_add_u32 v7, s12, v7")
    W = 32; Cc = 96; AC = 112
    for it in range(16):
        o(f"global_load_dwordx4 {v(W+4*it,4)}, v7, s[8:9]")
        o(f"v_add_u32 v7, {16*12288}, v7")
        o(f"ds_read_b32 v{Cc+it}, v6 offset:{it*64}")
    for e in range(8): o(f"v_mov_b32 v{AC+e}, 0")
    o("s_waitcnt lgkmcnt(0)")
    for it in range(16):
        o(f"s_waitcnt vmcnt({15-it})")
        for d in range(4):
            o(f"v_lshlrev_b32 v27, 16, v{W+4*it+d}")
            o(f"v_and_b32 v28, 0xffff0000, v{W+4*it+d}")
            o(f"v_fmac_f32 v{AC+2*d}, v27, v{Cc+it}")
            o(f"v_fmac_f32 v{AC+2*d+1}, v28, v{Cc+it}")
    for e in range(8):
        x = AC + e
        o(f"v_add_f32_dpp v{x}, v{x}, v{x} row_ror:4 row_mask:0xf bank_mask:0xf")
        o(f"v_add_f32_dpp v{x}, v{x}, v{x} row_ror:8 row_mask:0xf bank_mask:0xf")
        for sw in ("16", "32"):
            o(f"v_mov_b32 v27, v{x}")
            o(f"v_permlane{sw}_swap_b32 v{x}, v27")
            o(f"v_add_f32 v{x}, v{x}, v27")
    o("s_lshl_b32 s12, s3, 7"); o("v_lshlrev_b32 v5, 5, v26"); o("v_add_u32 v5, s12, v5")
    o("s_mov_b64 exec, 0xf")
    o(f"ds_write_b128 v5, {v(AC,4)} offset:4096"); o(f"ds_write_b128 v5, {v(AC+4,4)} offset:4112")
    o("s_mov_b64 exec, -1")
    o("s_waitcnt lgkmcnt(0)"); o("s_barrier")
    o("s_cmp_lg_u32 s3, 0"); o(f"s_cbranch_scc1 L_{name}_done")
    o("v_lshlrev_b32 v5, 2, v2")
    o("s_mov_b64 exec, 0xffffffff")
    for w in range(4): o(f"ds_read_b32 v{32+w}, v5 offset:{4096+w*128}")
    o("s_waitcnt lgkmcnt(0)")
    o("v_add_f32 v32, v32, v33"); o("v_add_f32 v34, v34, v35"); o("v_add_f32 v32, v32, v34")
    o("v_cvt_pk_bf16_f32 v32, v32, v32"); o("v_lshlrev_b32 v32, 16, v32")
    o("s_lshl_b32 s12, s2, 7"); o(f"s_add_u32 s12, s12, {WS_MOD}"); o("v_add_u32 v5, s12, v5")
    o("global_store_dword v5, v32, s[4:5]")
    A.label(f"L_{name}_done")
    o("s_waitcnt vmcnt(0)")
    A.label(f"L_{name}_end"); o("s_endpgm")
    return kernel_head(name) + A.finish() + kernel_desc(name, 128)

def ln_rows(o, X, nrows, vt, EPS):
    for b in X:
        sm, t = vt[0], vt[1]
        o(f"v_add_f32 v{sm}, v{b}, v{b+1}")
        for e in range(2, 16): o(f"v_add_f32 v{sm}, v{sm}, v{b+e}")
        wave_sum(o, sm, t)
        o(f"v_mul_f32 v{sm}, {fbits(1.0/1024)}, v{sm}")
        for e in range(16): o(f"v_sub_f32 v{b+e}, v{b+e}, v{sm}")
        o(f"v_mul_f32 v{sm}, v{b}, v{b}")
        for e in range(1, 16): o(f"v_fmac_f32 v{sm}, v{b+e}, v{b+e}")
        wave_sum(o, sm, t)
        o(f"v_mov_b32 v{t}, {fbits(EPS)}")
        o(f"v_fmac_f32 v{t}, {fbits(1.0/1024)}, v{sm}")
        o(f"v_rsq_f32 v{t}, v{t}")
        for e in range(16): o(f"v_mul_f32 v{b+e}, v{b+e}, v{t}")

def unpack8(o, dst, src):
    for d in range(4):
        o(f"v_lshlrev_b32 v{dst+2*d}, 16, v{src+d}")
        o(f"v_and_b32 v{dst+2*d+1}, 0xffff0000, v{src+d}")

def gfun(o, dst, r, t):
    o(f"v_lshrrev_b32 v{dst}, 2, v{r}")
    o(f"v_lshrrev_b32 v{t}, 1, v{dst}")
    o(f"v_and_b32 v{dst}, 1, v{dst}")
    o(f"v_xor_b32 v{dst}, v{dst}, v{t}")
    o(f"v_lshl_or_b32 v{dst}, v{dst}, 1, v{t}")

def gen_ln1(name="ln1_kernel"):
    A = Asm(); o = A
    o("s_cmp_ge_u32 s2, 256"); o(f"s_cbranch_scc1 L_{name}_end")
    o(f"s_load_dwordx2 s[4:5], s[0:1], {KA_WS}")
    o(f"s_load_dwordx2 s[6:7], s[0:1], {KA_X}")
    o("v_lshrrev_b32 v1, 6, v0"); o("v_and_b32 v0, 63, v0"); o("v_readfirstlane_b32 s3, v1")
    o("s_lshl_b32 s8, s2, 3"); o("s_lshl_b32 s9, s3, 1"); o("s_add_u32 s8, s8, s9")
    o("v_lshlrev_b32 v2, 4, v0")
    o("s_waitcnt lgkmcnt(0)")
    o("s_lshl_b32 s9, s8, 11"); o("s_add_u32 s10, s6, s9"); o("s_addc_u32 s11, s7, 0")
    RX = [8, 16]
    for r in range(2):
        o(f"global_load_dwordx4 {v(8+8*r,4)}, v2, s[10:11] offset:{r*2048}")
        o(f"global_load_dwordx4 {v(12+8*r,4)}, v2, s[10:11] offset:{r*2048+1024}")
    o("v_lshlrev_b32 v3, 5, v0")
    o(f"s_add_u32 s12, s4, {WS_MOD}"); o("s_addc_u32 s13, s5, 0")
    SA, CA = 64, 80
    for h in range(2):
        for q in range(2):
            o(f"global_load_dwordx4 {v(SA+8*h+4*q,4)}, v3, s[12:13] offset:{h*2048+q*16}")
    o("s_add_u32 s12, s12, 4096"); o("s_addc_u32 s13, s13, 0")
    for h in range(2):
        for q in range(2):
            o(f"global_load_dwordx4 {v(CA+8*h+4*q,4)}, v3, s[12:13] offset:{h*2048+q*16}")
    o("s_waitcnt vmcnt(8)")
    X = [32, 48]
    for r in range(2):
        unpack8(o, X[r], 8 + 8 * r); unpack8(o, X[r] + 8, 12 + 8 * r)
    ln_rows(o, X, 2, [4, 5], 1e-5)
    o("s_waitcnt vmcnt(0)")
    for e in range(16): o(f"v_add_f32 v{CA+e}, 1.0, v{CA+e}")
    for r in range(2):
        for e in range(16): o(f"v_fma_f32 v{X[r]+e}, v{X[r]+e}, v{CA+e}, v{SA+e}")
        for h in range(2):
            for d in range(4): o(f"v_cvt_pk_bf16_f32 v{8+8*r+4*h+d}, v{X[r]+8*h+2*d}, v{X[r]+8*h+2*d+1}")
        o(f"s_add_u32 s14, s8, {r}"); o("s_lshr_b32 s15, s14, 4"); o("s_and_b32 s14, s14, 15")
        o("s_lshr_b32 s16, s14, 2"); o("s_lshr_b32 s17, s16, 1"); o("s_and_b32 s16, s16, 1"); o("s_xor_b32 s16, s16, s17"); o("s_lshl_b32 s16, s16, 1"); o("s_or_b32 s16, s16, s17")
        o("v_and_b32 v4, 3, v0"); o("v_xor_b32 v4, s16, v4"); o("v_lshlrev_b32 v4, 4, v4")
        o("v_lshrrev_b32 v5, 2, v0"); o("v_lshl_add_u32 v4, v5, 17, v4")
        o("s_lshl_b32 s15, s15, 10"); o("s_lshl_b32 s14, s14, 6"); o("s_add_u32 s15, s15, s14"); o(f"s_add_u32 s15, s15, {WS_H}")
        o("v_add_u32 v4, s15, v4")
        o(f"global_store_dwordx4 v4, {v(8+8*r,4)}, s[4:5]")
        o(f"v_add_u32 v4, {16*131072}, v4")
        o(f"global_store_dwordx4 v4, {v(12+8*r,4)}, s[4:5]")
    o("s_waitcnt vmcnt(0)")
    A.label(f"L_{name}_end"); o("s_endpgm")
    return kernel_head(name) + A.finish() + kernel_desc(name, 96)

def gen_ln2(name="ln2_kernel"):
    A = Asm(); o = A
    o("s_cmp_ge_u32 s2, 64"); o(f"s_cbranch_scc1 L_{name}_end")
    o(f"s_load_dwordx2 s[4:5], s[0:1], {KA_WS}")
    o("v_lshrrev_b32 v1, 6, v0"); o("v_and_b32 v0, 63, v0"); o("v_readfirstlane_b32 s3, v1")
    o("s_lshl_b32 s8, s2, 5"); o("s_lshl_b32 s9, s3, 1"); o("s_add_u32 s8, s8, s9")
    o("v_lshlrev_b32 v2, 4, v0")
    o("s_waitcnt lgkmcnt(0)")
    o("s_lshl_b32 s9, s8, 11"); o(f"s_add_u32 s9, s9, {WS_X1}"); o("s_add_u32 s10, s4, s9"); o("s_addc_u32 s11, s5, 0")
    for r in range(2):
        o(f"global_load_dwordx4 {v(8+8*r,4)}, v2, s[10:11] offset:{r*2048}")
        o(f"global_load_dwordx4 {v(12+8*r,4)}, v2, s[10:11] offset:{r*2048+1024}")
    o("v_lshlrev_b32 v3, 5, v0")
    o(f"s_add_u32 s12, s4, {WS_MOD + 3*4096}"); o("s_addc_u32 s13, s5, 0")
    SA, CA = 64, 80
    for h in range(2):
        for q in range(2):
            o(f"global_load_dwordx4 {v(SA+8*h+4*q,4)}, v3, s[12:13] offset:{h*2048+q*16}")
    o("s_add_u32 s12, s12, 4096"); o("s_addc_u32 s13, s13, 0")
    for h in range(2):
        for q in range(2):
            o(f"global_load_dwordx4 {v(CA+8*h+4*q,4)}, v3, s[12:13] offset:{h*2048+q*16}")
    o("s_waitcnt vmcnt(8)")
    X = [32, 48]
    for r in range(2):
        unpack8(o, X[r], 8 + 8 * r); unpack8(o, X[r] + 8, 12 + 8 * r)
    ln_rows(o, X, 2, [4, 5], 1e-5)
    o("s_waitcnt vmcnt(0)")
    for e in range(16): o(f"v_add_f32 v{CA+e}, 1.0, v{CA+e}")
    RS = 2048 + 64
    o(f"s_lshl_b32 s9, s3, 1"); o(f"s_mul_i32 s9, s9, {RS}")
    o("v_add_u32 v4, s9, v2")
    for r in range(2):
        for e in range(16): o(f"v_fma_f32 v{X[r]+e}, v{X[r]+e}, v{CA+e}, v{SA+e}")
        for h in range(2):
            for d in range(4): o(f"v_cvt_pk_bf16_f32 v{8+8*r+4*h+d}, v{X[r]+8*h+2*d}, v{X[r]+8*h+2*d+1}")
            o(f"ds_write_b128 v4, {v(8+8*r+4*h,4)} offset:{r*RS + h*1024}")
    o("s_waitcnt lgkmcnt(0)"); o("s_barrier")
    o("v_and_b32 v5, 15, v0"); o("v_lshrrev_b32 v6, 4, v0")
    o("v_lshrrev_b32 v7, 2, v5"); o("v_lshl_add_u32 v7, v6, 3, v7"); o(f"s_mov_b32 s9, {RS}"); o("v_mul_lo_u32 v7, v7, s9")
    o("v_and_b32 v24, 3, v5"); o("v_lshl_add_u32 v7, v24, 3, v7")
    o("s_lshl_b32 s9, s3, 7"); o("v_add_u32 v7, s9, v7")
    for k in range(4):
        o(f"ds_read_b64_tr_b16 {v(8+4*k,2)}, v7 offset:{k*32}")
        o(f"ds_read_b64_tr_b16 {v(10+4*k,2)}, v7 offset:{k*32+4*RS}")
    gfun(o, 24, 5, 25)
    o("v_xor_b32 v24, v24, v6"); o("v_lshl_add_u32 v24, v5, 2, v24"); o("v_lshlrev_b32 v24, 4, v24")
    o("s_lshl_b32 s9, s2, 16"); o("s_lshl_b32 s14, s3, 12"); o("s_add_u32 s9, s9, s14"); o(f"s_add_u32 s9, s9, {WS_H2T}")
    o("v_add_u32 v24, s9, v24")
    o("s_waitcnt lgkmcnt(0)")
    for k in range(4):
        o(f"global_store_dwordx4 v24, {v(8+4*k,4)}, s[4:5] offset:{k*1024}")
    o("s_waitcnt vmcnt(0)")
    A.label(f"L_{name}_end"); o("s_endpgm")
    return kernel_head(name) + A.finish() + kernel_desc(name, 96)
```

```python
MiB = 1 << 20
WS_MOD   = 0
WS_H     = 1 * MiB
WS_Q     = 8 * MiB
WS_K     = 24 * MiB
WS_VT    = 40 * MiB
WS_KM    = 56 * MiB
WS_VM    = 60 * MiB
WS_O     = 64 * MiB
WS_X1    = 80 * MiB
WS_H2T   = 84 * MiB
WS_U     = 88 * MiB
WS_RMEM  = 96 * MiB
WS_RQK   = 97 * MiB
WS_RV    = 98 * MiB
WS_RPART = 99 * MiB
WS_PROF  = 100 * MiB
WS_PARTF = 112 * MiB
KA_X, KA_MEM0, KA_WQ, KA_WK, KA_WV, KA_WO, KA_SEG, KA_BX, KA_W1, KA_B1, KA_W2, KA_B2, KA_C, KA_WMOD, KA_OUT, KA_DBG, KA_WS = [8 * i for i in range(17)]
WS_MEMF = 120 * MiB
```

```python
from asmlib import *
from layout import *

NSTEPS = 64
SENT = 0xFFFFFFFF

def gen_rec(name="rec_kernel", fast=True, prof=False, nsteps=NSTEPS, E1_EARLY=True, E2_DELAY=0, E3_DELAY=0, KV_FIRST=0, PF=1, VSP=2, RT=0, E2_DEPTH=3, E2_SP=0, EP=0, FIXKV=0):
    TIMER = "s_memrealtime" if RT else "s_memtime"
    A = Asm()
    o = A
    st_fast = "" if fast else " sc1"
    sWG = 2
    sW, sG, sJ, sHA, sC, sHead = 3, 4, 5, 6, 7, 8
    sWS = 10
    sT0, sT1, sT2, sT3 = 12, 13, 14, 15
    sPtr = 16
    sMEMc, sMEMn, sQK, sVR, sPART, sPART2, sKX, sKX2, sVX, sKM, sVM = 20, 22, 24, 26, 28, 30, 32, 34, 36, 38, 40
    sRq, sRv, sRp, sRm = 42, 44, 46, 48
    sStep, sSlot, sLim = 50, 51, 52
    sMaskQK, sMaskLo = 54, 56
    sSelV = 58
    sScale = 60
    sWQ, sWK, sWV, sWO, sDBG = 62, 64, 66, 68, 70
    sTs = 72
    sProf = 96
    vL = 0; vT = [1, 2, 3, 4, 5, 6, 7]
    vE3, vQKst, vVst, vVld, vPst, vPld, vMst, vKx, vL16, vKMst = 8, 9, 10, 11, 12, 13, 14, 15, 56, 57
    vA0, vA1, vAv0, vAv1 = 16, 20, 24, 28
    vSx, vSm = 32, 40
    vPx, vPmA, vPmB = 44, 48, 50
    vDelta = 52
    vNeg = 60
    vB = 64; vK = 128; vV = 160; vQ = 192; vQr = 200; vKm = 208; vKr = 216; vVm = 224
    vLdsM, vLdsO, vLdsV = 232, 233, 234
    vSent = 236
    vX = 240
    vO = 64; vOb = 96
    vOo = [112, 116, 120, 124] + [160 + 4 * i for i in range(8)]
    LDS_MEM, LDS_O, LDS_V = 0, 16384, 32768

    o(f"s_cmp_ge_u32 s{sWG}, 128")
    o("s_cbranch_scc1 L_rec_end")
    o(f"s_load_dwordx2 {s(sWQ,2)}, s[0:1], {KA_WQ}")
    o(f"s_load_dwordx2 {s(sWK,2)}, s[0:1], {KA_WK}")
    o(f"s_load_dwordx2 {s(sWV,2)}, s[0:1], {KA_WV}")
    o(f"s_load_dwordx2 {s(sWO,2)}, s[0:1], {KA_WO}")
    o(f"s_load_dwordx2 {s(sDBG,2)}, s[0:1], {KA_DBG}")
    o(f"s_load_dwordx2 {s(sWS,2)}, s[0:1], {KA_WS}")
    o(f"v_lshrrev_b32 v1, 6, v0")
    o(f"v_and_b32 v{vL}, 63, v0")
    o(f"v_readfirstlane_b32 s{sW}, v1")
    o(f"s_getreg_b32 s{sG}, hwreg(HW_REG_XCC_ID, 0, 4)")
    o("s_waitcnt lgkmcnt(0)")
    o(f"s_cmp_lg_u32 s{sW}, 0")
    o("s_cbranch_scc1 L_rec_noticket")
    o(f"s_lshl_b32 s{sT0}, s{sG}, 2")
    o(f"v_mov_b32 v1, s{sT0}")
    o("v_mov_b32 v2, 1")
    o("s_mov_b64 exec, 1")
    o(f"global_atomic_add v3, v1, v2, {s(sDBG,2)} sc0")
    o("s_waitcnt vmcnt(0)")
    o("v_mov_b32 v1, 0")
    o("ds_write_b32 v1, v3")
    o("s_waitcnt lgkmcnt(0)")
    o("s_mov_b64 exec, -1")
    A.label("L_rec_noticket")
    o("s_barrier")
    o("v_mov_b32 v1, 0")
    o("ds_read_b32 v3, v1")
    o("s_waitcnt lgkmcnt(0)")
    o(f"v_readfirstlane_b32 s{sJ}, v3")
    o("s_barrier")
    o(f"s_and_b32 s{sJ}, s{sJ}, 15")
    o(f"s_and_b32 s{sG}, s{sG}, 7")
    o(f"s_lshr_b32 s{sHA}, s{sJ}, 2")
    o(f"s_and_b32 s{sC}, s{sJ}, 3")
    o(f"s_lshl_b32 s{sHead}, s{sG}, 2")
    o(f"s_add_u32 s{sHead}, s{sHead}, s{sW}")
    vi, vg, vr = vT[0], vT[1], vT[2]
    o(f"v_and_b32 v{vi}, 15, v{vL}")
    o(f"v_lshrrev_b32 v{vg}, 4, v{vL}")
    o(f"v_and_b32 v{vr}, 7, v{vL}")
    o(f"v_lshlrev_b32 v{vL16}, 4, v{vL}")

    o(f"s_lshl_b32 s{sT0}, s{sG}, 2")
    o(f"s_add_u32 s{sT0}, s{sT0}, s{sHA}")
    o(f"s_lshl_b32 s{sT0}, s{sT0}, 8")
    o(f"s_lshl_b32 s{sT1}, s{sC}, 6")
    o(f"s_add_u32 s{sT0}, s{sT0}, s{sT1}")
    v1, v2, v3, v4 = vT[3], vT[4], vT[5], vT[6]
    o(f"v_lshrrev_b32 v{v1}, 2, v{vL}")
    o(f"v_lshlrev_b32 v{v1}, 13, v{v1}")
    o(f"v_and_b32 v{v2}, 3, v{vL}")
    o(f"v_lshl_add_u32 v{v1}, v{v2}, 4, v{v1}")
    o(f"v_add_u32 v{v1}, s{sT0}, v{v1}")
    o(f"s_lshl_b32 s{sT1}, s{sW}, 21")
    o(f"v_add_u32 v{v1}, s{sT1}, v{v1}")
    def dma_strip(sbase, ldsbase, nblk, rowstep):
        o(f"v_mov_b32 v{v2}, v{v1}")
        o(f"s_lshl_b32 s{sT2}, s{sW}, {(nblk*1024).bit_length()-1}")
        o(f"s_add_u32 s{sT2}, s{sT2}, {ldsbase}")
        for m in range(nblk):
            o(f"s_mov_b32 m0, s{sT2}")
            o(f"s_add_u32 s{sT2}, s{sT2}, 1024")
            o(f"global_load_lds_dwordx4 v{v2}, {s(sbase,2)}")
            if m + 1 < nblk: o(f"v_add_u32 v{v2}, {rowstep}, v{v2}")
    dma_strip(sWQ, 0, 16, 131072)
    dma_strip(sWK, 65536, 16, 131072)
    o(f"v_lshrrev_b32 v{v3}, 2, v{vi}")
    o(f"v_lshl_add_u32 v{v3}, v{vg}, 3, v{v3}")
    o(f"v_lshlrev_b32 v{v3}, 6, v{v3}")
    o(f"v_and_b32 v{v4}, 3, v{vi}")
    o(f"v_lshl_add_u32 v{v3}, v{v4}, 3, v{v3}")
    o("s_waitcnt vmcnt(0)")
    o("s_barrier")
    o(f"s_lshr_b32 s{sT0}, s{sW}, 1")
    o(f"s_lshl_b32 s{sT0}, s{sT0}, 16")
    o(f"s_and_b32 s{sT1}, s{sW}, 1")
    o(f"s_lshl_b32 s{sT1}, s{sT1}, 5")
    o(f"s_add_u32 s{sT0}, s{sT0}, s{sT1}")
    for i in range(16):
        o(f"s_lshl_b32 s{sT2}, s{sW}, 2")
        o(f"s_add_u32 s{sT2}, s{sT2}, {i}")
        o(f"s_and_b32 s{sT2}, s{sT2}, 15")
        o(f"s_lshl_b32 s{sT2}, s{sT2}, 12")
        o(f"s_add_u32 s{sT2}, s{sT2}, s{sT0}")
        o(f"v_add_u32 v{v4}, s{sT2}, v{v3}")
        for half in range(2):
            d = (i * 2 + half) * 4
            o(f"ds_read_b64_tr_b16 {a(d,2)}, v{v4} offset:{half*2048}")
            o(f"ds_read_b64_tr_b16 {a(d+2,2)}, v{v4} offset:{half*2048+256}")
        if i % 4 == 3: o("s_waitcnt lgkmcnt(0)")
    o("s_barrier")
    dma_strip(sWV, 0, 16, 131072)
    o(f"v_lshrrev_b32 v{v1}, 3, v{vL}")
    o(f"v_lshlrev_b32 v{v1}, 11, v{v1}")
    o(f"v_and_b32 v{v2}, 7, v{vL}")
    o(f"v_lshl_add_u32 v{v1}, v{v2}, 4, v{v1}")
    o(f"s_lshl_b32 s{sT0}, s{sG}, 20")
    o(f"s_lshl_b32 s{sT1}, s{sJ}, 7")
    o(f"s_add_u32 s{sT0}, s{sT0}, s{sT1}")
    o(f"s_lshl_b32 s{sT1}, s{sW}, 18")
    o(f"s_add_u32 s{sT0}, s{sT0}, s{sT1}")
    o(f"v_add_u32 v{v1}, s{sT0}, v{v1}")
    dma_strip(sWO, 65536, 16, 16384)
    o("s_waitcnt vmcnt(0)")
    o("s_barrier")
    o(f"s_and_b32 s{sT0}, s{sW}, 1")
    o(f"s_lshl_b32 s{sT0}, s{sT0}, 5")
    for i in range(8):
        o(f"s_lshl_b32 s{sT2}, s{sW}, 2")
        o(f"s_add_u32 s{sT2}, s{sT2}, {i}")
        o(f"s_and_b32 s{sT2}, s{sT2}, 15")
        o(f"s_lshl_b32 s{sT2}, s{sT2}, 12")
        o(f"s_add_u32 s{sT2}, s{sT2}, s{sT0}")
        o(f"v_add_u32 v{v4}, s{sT2}, v{v3}")
        for half in range(2):
            d = 128 + (i * 2 + half) * 4
            o(f"ds_read_b64_tr_b16 {a(d,2)}, v{v4} offset:{half*2048}")
            o(f"ds_read_b64_tr_b16 {a(d+2,2)}, v{v4} offset:{half*2048+256}")
        if i % 4 == 3: o("s_waitcnt lgkmcnt(0)")
    o(f"v_lshrrev_b32 v{v3}, 2, v{vi}")
    o(f"v_lshl_add_u32 v{v3}, v{vg}, 2, v{v3}")
    o(f"v_lshlrev_b32 v{v3}, 7, v{v3}")
    o(f"v_and_b32 v{v4}, 3, v{vi}")
    o(f"v_lshl_add_u32 v{v3}, v{v4}, 3, v{v3}")
    o(f"s_lshl_b32 s{sT0}, s{sW}, 5")
    o(f"s_add_u32 s{sT0}, s{sT0}, 65536")
    for hs in range(4):
        o(f"s_add_u32 s{sT2}, s{sW}, {hs}")
        o(f"s_and_b32 s{sT2}, s{sT2}, 3")
        o(f"s_lshl_b32 s{sT2}, s{sT2}, 14")
        o(f"s_add_u32 s{sT2}, s{sT2}, s{sT0}")
        o(f"v_add_u32 v{v4}, s{sT2}, v{v3}")
        for u in range(4):
            d = 192 + (hs * 4 + u) * 4
            o(f"ds_read_b64_tr_b16 {a(d,2)}, v{v4} offset:{u*4096}")
            o(f"ds_read_b64_tr_b16 {a(d+2,2)}, v{v4} offset:{u*4096+2048}")
        o("s_waitcnt lgkmcnt(0)")
    o("s_barrier")

    o(f"s_lshl_b32 s{sT0}, s{sW}, 12")
    o(f"v_add_u32 v{vE3}, s{sT0}, v{vL16}")
    o(f"v_lshrrev_b32 v{v1}, 1, v{vg}")
    o(f"v_lshlrev_b32 v{v1}, 8, v{v1}")
    o(f"v_lshl_add_u32 v{v1}, v{vr}, 4, v{v1}")
    o(f"s_lshr_b32 s{sT0}, s{sC}, 1")
    o(f"s_lshl_b32 s{sT0}, s{sT0}, 10")
    o(f"s_and_b32 s{sT1}, s{sW}, 1")
    o(f"s_lshl_b32 s{sT1}, s{sT1}, 9")
    o(f"s_add_u32 s{sT0}, s{sT0}, s{sT1}")
    o(f"s_and_b32 s{sT1}, s{sC}, 1")
    o(f"s_lshl_b32 s{sT1}, s{sT1}, 7")
    o(f"s_add_u32 s{sT0}, s{sT0}, s{sT1}")
    o(f"v_add_u32 v{vKMst}, s{sT0}, v{v1}")
    o(f"s_lshl_b32 s{sT0}, s{sHA}, 12")
    o(f"s_lshr_b32 s{sT1}, s{sW}, 1")
    o(f"s_lshl_b32 s{sT1}, s{sT1}, 11")
    o(f"s_add_u32 s{sT0}, s{sT0}, s{sT1}")
    o(f"v_add_u32 v{vQKst}, s{sT0}, v{vKMst}")
    o(f"s_lshl_b32 s{sT0}, s{sHA}, 11")
    o(f"s_lshl_b32 s{sT1}, s{sC}, 9")
    o(f"s_add_u32 s{sT0}, s{sT0}, s{sT1}")
    o(f"v_add_u32 v{vVst}, s{sT0}, v{vL16}")
    o(f"s_lshl_b32 s{sT0}, s{sW}, 11")
    o(f"v_add_u32 v{vVld}, s{sT0}, v{vL16}")
    o(f"s_lshl_b32 s{sT0}, s{sG}, 4")
    o(f"s_add_u32 s{sT0}, s{sT0}, s{sJ}")
    o(f"s_lshl_b32 s{sT0}, s{sT0}, 10")
    o(f"s_and_b32 s{sT1}, s{sW}, 1")
    o(f"s_lshl_b32 s{sT1}, s{sT1}, 9")
    o(f"s_add_u32 s{sT0}, s{sT0}, s{sT1}")
    o(f"s_lshr_b32 s{sT1}, s{sW}, 1")
    o(f"s_lshl_b32 s{sT1}, s{sT1}, 7")
    o(f"s_add_u32 s{sT0}, s{sT0}, s{sT1}")
    o(f"v_add_u32 v{vPst}, s{sT0}, v{v1}")
    o(f"v_lshlrev_b32 v{vPld}, 14, v{vg}")
    o(f"v_lshl_add_u32 v{vPld}, v{vi}, 4, v{vPld}")
    o(f"s_lshl_b32 s{sT0}, s{sJ}, 10")
    o(f"s_lshl_b32 s{sT1}, s{sW}, 8")
    o(f"s_add_u32 s{sT0}, s{sT0}, s{sT1}")
    o(f"v_add_u32 v{vPld}, s{sT0}, v{vPld}")
    o(f"v_add_u32 v{vMst}, s{sT0}, v{vL16}")
    o(f"v_lshlrev_b32 v{vKx}, 13, v{vi}")
    o(f"v_lshl_add_u32 v{vKx}, v{vg}, 4, v{vKx}")
    o(f"s_lshl_b32 s{sT0}, s{sHead}, 8")
    o(f"v_add_u32 v{vKx}, s{sT0}, v{vKx}")
    o(f"v_mov_b32 v{vLdsM}, v{vL16}")
    for d in range(4):
        o(f"v_mov_b32 v{vDelta+d}, 0")
        o(f"v_mov_b32 v{v1}, 0x3f80")
        o(f"v_cmp_eq_u32 vcc, {2*d}, v{vi}")
        o(f"v_cndmask_b32 v{vDelta+d}, v{vDelta+d}, v{v1}, vcc")
        o(f"v_mov_b32 v{v1}, 0x3f800000")
        o(f"v_cmp_eq_u32 vcc, {2*d+1}, v{vi}")
        o(f"v_cndmask_b32 v{vDelta+d}, v{vDelta+d}, v{v1}, vcc")
    o(f"v_mov_b32 v{v1}, 0xff800000")
    o(f"v_cmp_lt_u32 vcc, 31, v{vL}")
    o(f"v_cndmask_b32 v{vNeg}, 0, v{v1}, vcc")
    for r in range(1, 4): o(f"v_mov_b32 v{vNeg+r}, v{vNeg}")
    for r in range(4): o(f"v_mov_b32 v{vSent+r}, -1")
    o(f"s_mov_b32 s{sMaskQK}, 0xff"); o(f"s_mov_b32 s{sMaskQK+1}, 0xff")
    o(f"s_mov_b32 s{sSelV}, -1"); o(f"s_mov_b32 s{sSelV+1}, 0")
    import math
    cs = 128 ** -0.5 * math.log2(math.e)
    import struct
    o(f"s_mov_b32 s{sScale}, 0x{struct.unpack('<I', struct.pack('<f', cs))[0]:08x}")
    o(f"s_mov_b32 s{sLim}, 0x400000")
    o(f"s_mov_b32 s{sStep}, 0")
    def addbase(dst, off, extra_s=None):
        o(f"s_add_u32 s{dst}, s{sWS}, {off & 0xffffffff}")
        o(f"s_addc_u32 s{dst+1}, s{sWS+1}, 0")
        if extra_s is not None:
            o(f"s_add_u32 s{dst}, s{dst}, s{extra_s}")
            o(f"s_addc_u32 s{dst+1}, s{dst+1}, 0")
    o(f"s_lshl_b32 s{sT0}, s{sHead}, 13")
    o(f"s_add_u32 s{sT0}, s{sT0}, 4096")
    addbase(sKX, WS_K, sT0)
    o(f"s_lshl_b32 s{sT0}, s{sHead}, 13")
    o(f"s_add_u32 s{sT0}, s{sT0}, 4096")
    addbase(sVX, WS_VT, sT0)
    o(f"s_lshl_b32 s{sT0}, s{sG}, 2")
    o(f"s_add_u32 s{sT0}, s{sT0}, s{sHA}")
    o(f"s_lshl_b32 s{sT0}, s{sT0}, 11")
    addbase(sKM, WS_KM, sT0)
    o(f"s_lshl_b32 s{sT1}, s{sC}, 9")
    o(f"s_add_u32 s{sT0}, s{sT0}, s{sT1}")
    addbase(sVM, WS_VM, sT0)
    def load_kx():
        for t in range(8):
            o(f"global_load_dwordx4 {v(vK+t*4,4)}, v{vL16}, {s(sKX,2)} offset:{t*1024-4096}")
    load_kx()
    if prof:
        o(f"s_lshl_b32 s{sT0}, s{sG}, 4")
        o(f"s_add_u32 s{sT0}, s{sT0}, s{sJ}")
        o(f"s_lshl_b32 s{sT0}, s{sT0}, 2")
        o(f"s_add_u32 s{sT0}, s{sT0}, s{sW}")
        o(f"s_lshl_b32 s{sT0}, s{sT0}, 12")
        addbase(sProf, WS_PROF, sT0)
    nst = [0]
    def stamp():
        if not prof: return
        k = nst[0]; nst[0] += 1
        o(f"{TIMER} {s(sTs + 2*k, 2)}")

    def check(regs, lab_ok, lab_retry, tmp):
        regs = list(regs)
        o(f"v_max3_u32 v{tmp}, v{regs[0]}, v{regs[1]}, v{regs[2]}")
        k = 3
        while k + 1 < len(regs):
            o(f"v_max3_u32 v{tmp}, v{tmp}, v{regs[k]}, v{regs[k+1]}"); k += 2
        if k < len(regs):
            o(f"v_max_u32 v{tmp}, v{tmp}, v{regs[k]}")
        o(f"v_cmp_eq_u32 vcc, -1, v{tmp}")
        o(f"s_cbranch_vccz {lab_ok}")
        o(f"s_sub_u32 s{sLim}, s{sLim}, 1")
        o(f"s_cbranch_scc1 {lab_ok}_to")
        o(f"s_branch {lab_retry}")
        A.label(f"{lab_ok}_to")
        o(f"s_mov_b32 s{sLim}, 0")
        A.label(lab_ok)


    sCnt = 98
    vOo = [112, 116, 120, 124, 192, 196, 200, 204, 216, 220, 224, 228]
    vPf = 252
    def merge(main, side, every, start=0):
        side = list(side); out = [];
        for k, m_ in enumerate(main):
            out.append(m_)
            if side and k >= start and (k - start) % every == every - 1: out.append(side.pop(0))
        return out + side
    def emit(L):
        for x in L: o(x)
    def check(regs, lab_ok, lab_retry, tmp, cnt=None):
        regs = list(regs)
        o(f"v_max3_u32 v{tmp}, v{regs[0]}, v{regs[1]}, v{regs[2]}")
        k = 3
        while k + 1 < len(regs):
            o(f"v_max3_u32 v{tmp}, v{tmp}, v{regs[k]}, v{regs[k+1]}"); k += 2
        if k < len(regs):
            o(f"v_max_u32 v{tmp}, v{tmp}, v{regs[k]}")
        o(f"v_cmp_eq_u32 vcc, -1, v{tmp}")
        o(f"s_cbranch_vccz {lab_ok}")
        if prof and cnt is not None: o(f"s_add_u32 s{sCnt+cnt}, s{sCnt+cnt}, 1")
        o(f"s_sub_u32 s{sLim}, s{sLim}, 1")
        o(f"s_cbranch_scc0 {lab_retry}")
        o(f"s_mov_b32 s{sLim}, 0")
        A.label(lab_ok)
    if prof:
        for k in range(4): o(f"s_mov_b32 s{sCnt+k}, 0")
    vPfo = 58
    o(f"s_lshl_b32 s{sT1}, s{sG}, 2"); o(f"s_add_u32 s{sT1}, s{sT1}, s{sHA}"); o(f"s_lshl_b32 s{sT1}, s{sT1}, 13")
    o(f"s_lshl_b32 s{sT2}, s{sC}, 11"); o(f"s_add_u32 s{sT1}, s{sT1}, s{sT2}")
    o(f"s_and_b32 s{sT2}, s{sW}, 1"); o(f"s_lshl_b32 s{sT2}, s{sT2}, 10"); o(f"s_add_u32 s{sT1}, s{sT1}, s{sT2}")
    o(f"v_add_u32 v{vPfo}, s{sT1}, v{vL16}")
    o(f"s_cmp_lt_u32 s{sW}, 2")
    sPF = 18
    o(f"s_mov_b32 s{sT0}, {WS_K + 2*262144}")
    o(f"s_mov_b32 s{sT1}, {WS_VT + 2*262144}")
    o(f"s_cselect_b32 s{sT0}, s{sT0}, s{sT1}")
    o(f"s_add_u32 s{sPF}, s{sWS}, s{sT0}"); o(f"s_addc_u32 s{sPF+1}, s{sWS+1}, 0")
    def kx_loads():
        return [f"global_load_dwordx4 {v(vK+t*4,4)}, v{vL16}, {s(sKX,2)} offset:{t*1024-4096}" for t in range(8)]
    def vx_loads():
        return [f"global_load_dwordx4 {v(vV+4*t,4)}, v{vL16}, {s(sVX,2)} offset:{t*1024-4096}" for t in range(8)]
    A.label("L_step")
    nst[0] = 0
    o(f"s_and_b32 s{sSlot}, s{sStep}, 3")
    o(f"s_lshl_b32 s{sT0}, s{sSlot}, 17")
    o(f"s_lshl_b32 s{sT1}, s{sG}, 14")
    o(f"s_add_u32 s{sT2}, s{sT0}, s{sT1}")
    addbase(sMEMc, WS_RMEM, sT2)
    stamp()
    A.label("L_e3")
    for u in range(4):
        o(f"global_load_dwordx4 {v(vB+4*u,4)}, v{vE3}, {s(sMEMc,2)} offset:{u*1024} sc1")
    addbase(sQK, WS_RQK, sT2)
    o(f"s_lshl_b32 s{sT3}, s{sStep}, 17")
    addbase(sPART, WS_PARTF, sT3)
    o(f"s_add_u32 s{sPART2}, s{sPART}, 65536"); o(f"s_addc_u32 s{sPART2+1}, s{sPART+1}, 0")
    o(f"s_lshr_b32 s{sT3}, s{sT2}, 1")
    addbase(sVR, WS_RV, sT3)
    o(f"s_add_u32 s{sT3}, s{sStep}, 1"); o(f"s_and_b32 s{sT3}, s{sT3}, 3"); o(f"s_lshl_b32 s{sT3}, s{sT3}, 17"); o(f"s_add_u32 s{sT3}, s{sT3}, s{sT1}")
    addbase(sMEMn, WS_RMEM, sT3)
    o(f"s_xor_b32 s{sT3}, s{sT0}, {2<<17}")
    o(f"s_add_u32 s{sT3}, s{sT3}, s{sT1}")
    addbase(sRq, WS_RQK, sT3)
    o(f"s_lshr_b32 s{sT3}, s{sT3}, 1")
    addbase(sRv, WS_RV, sT3)
    o(f"s_add_u32 s{sT3}, s{sStep}, 3"); o(f"s_and_b32 s{sT3}, s{sT3}, 3"); o(f"s_lshl_b32 s{sT3}, s{sT3}, 17"); o(f"s_add_u32 s{sT3}, s{sT3}, s{sT1}")
    addbase(sRm, WS_RMEM, sT3)
    o("s_waitcnt vmcnt(0)")
    check(range(vB, vB + 16), "L_e3_ok", "L_e3", vX, 0)
    stamp()
    for u in range(4):
        o(f"ds_write_b128 v{vE3}, {v(vB+4*u,4)} offset:{LDS_MEM + u*1024}")
    def qk_mfma(i, first=False):
        for half, acc in ((0, vA0), (1, vA1)):
            c = "0" if first else v(acc, 4)
            o(f"v_mfma_f32_16x16x32_bf16 {v(acc,4)}, {a((i*2+half)*4,4)}, {v(vB+4*i,4)}, {c}")
    for i in range(4): qk_mfma(i, first=(i == 0))
    for i in (4, 8, 12):
        o(f"v_add_u32 v{vX+1+i//4}, {i*1024}, v{vE3}")
        o(f"v_and_b32 v{vX+1+i//4}, 0x3fff, v{vX+1+i//4}")
    o("s_waitcnt lgkmcnt(0)")
    o("s_barrier")
    for i in range(4, 16):
        o(f"ds_read_b128 {v(vB+4*i,4)}, v{vX+1+i//4} offset:{LDS_MEM + (i%4)*1024}")
    vxl = vx_loads()
    for i in range(4, 16):
        o(f"s_waitcnt lgkmcnt({15-i})")
        qk_mfma(i)
        if i % VSP == VSP - 1 and vxl: o(vxl.pop(0))
    stamp()
    for r in range(4):
        o(f"v_add_f32_dpp v{vA0+r}, v{vA1+r}, v{vA0+r} row_ror:8 row_mask:0xf bank_mask:0xf")
    R = vX + 4
    o(f"v_cvt_pk_bf16_f32 v{R}, v{vA0}, v{vA0+1}")
    o(f"v_cvt_pk_bf16_f32 v{R+1}, v{vA0+2}, v{vA0+3}")
    o(f"v_permlane16_swap_b32 v{R}, v{R+2}")
    o(f"v_permlane16_swap_b32 v{R+1}, v{R+3}")
    o(f"s_mov_b64 exec, {s(sMaskQK,2)}")
    o(f"global_store_dwordx4 v{vQKst}, {v(R,4)}, {s(sQK,2)}{st_fast}")
    o(f"s_cmp_lt_u32 s{sW}, 2")
    o("s_cbranch_scc1 L_nokm")
    o(f"global_store_dwordx4 v{vKMst}, {v(R,4)}, {s(sKM,2)}")
    A.label("L_nokm")
    o("s_mov_b64 exec, -1")
    stamp()
    for i in range(8):
        for half, acc in ((0, vAv0), (1, vAv1)):
            c = "0" if i == 0 else v(acc, 4)
            o(f"v_mfma_f32_16x16x32_bf16 {v(acc,4)}, {v(vB+4*i,4)}, {a(128+(i*2+half)*4,4)}, {c}")
        if vxl and i % 2 == 1: o(vxl.pop(0))
    emit(vxl)
    def e1_issue():
        for cp in range(2):
            o(f"global_load_dwordx4 {v(vQ+4*cp,4)}, v{vE3}, {s(sQK,2)} offset:{cp*1024} sc1")
        for cp in range(2):
            o(f"global_load_dwordx4 {v(vKm+4*cp,4)}, v{vE3}, {s(sQK,2)} offset:{2048+cp*1024} sc1")
    if E1_EARLY: e1_issue()
    for r in range(4):
        o(f"v_cndmask_b32 v{vAv0+r}, v{vAv1+r}, v{vAv0+r}, {s(sSelV,2)}")
    o(f"s_lshl_b32 s{sT0}, s{sW}, 10")
    o(f"v_add_u32 v{vX+1}, s{sT0}, v{vL16}")
    o(f"ds_write_b128 v{vX+1}, {v(vAv0,4)} offset:{LDS_V}")
    o("s_waitcnt lgkmcnt(0)")
    o("s_barrier")
    if not E1_EARLY: e1_issue()
    o(f"s_cmp_lg_u32 s{sW}, 0")
    o("s_cbranch_scc1 L_vred_skip")
    o(f"v_and_b32 v{vX+1}, 31, v{vL}")
    o(f"v_lshlrev_b32 v{vX+1}, 4, v{vX+1}")
    o(f"v_lshrrev_b32 v{vX+2}, 5, v{vL}")
    o(f"v_lshl_add_u32 v{vX+1}, v{vX+2}, 10, v{vX+1}")
    T = vA0
    for k, off in enumerate((0, 512, 2048, 2560)):
        o(f"ds_read_b128 {v(T+4*k,4)}, v{vX+1} offset:{LDS_V+off}")
    o("s_waitcnt lgkmcnt(0)")
    for r in range(4):
        o(f"v_add_f32 v{T+r}, v{T+r}, v{T+4+r}")
        o(f"v_add_f32 v{T+8+r}, v{T+8+r}, v{T+12+r}")
    for r in range(4):
        o(f"v_add_f32 v{T+r}, v{T+r}, v{T+8+r}")
    o(f"v_cvt_pk_bf16_f32 v{R}, v{T}, v{T+1}")
    o(f"v_cvt_pk_bf16_f32 v{R+1}, v{T+2}, v{T+3}")
    o(f"v_permlane32_swap_b32 v{R}, v{R+2}")
    o(f"v_permlane32_swap_b32 v{R+1}, v{R+3}")
    o(f"s_mov_b64 exec, {s(sSelV,2)}")
    o(f"global_store_dwordx4 v{vVst}, {v(R,4)}, {s(sVR,2)}{st_fast}")
    o(f"global_store_dwordx4 v{vL16}, {v(R,4)}, {s(sVM,2)}")
    o("s_mov_b64 exec, -1")
    o("s_waitcnt vmcnt(2)")
    o("s_branch L_e1_chk")
    A.label("L_e1_retry")
    e1_issue()
    A.label("L_vred_skip")
    o("s_waitcnt vmcnt(0)")
    A.label("L_e1_chk")
    check(list(range(vQ, vQ + 8)) + list(range(vKm, vKm + 8)), "L_e1_ok", "L_e1_retry", vX, 1)
    stamp()
    for r in range(8):
        o(f"v_mov_b32_dpp v{vQr+r}, v{vQ+r} row_ror:8 row_mask:0xf bank_mask:0xf")
    for r in range(8):
        o(f"v_mov_b32_dpp v{vKr+r}, v{vKm+r} row_ror:8 row_mask:0xf bank_mask:0xf")
    for cp in range(2):
        for odd in range(2):
            bq = (vQr if odd else vQ) + 4 * cp
            first = (cp == 0 and odd == 0)
            for kt in range(2):
                c = "0" if first else v(vSx + 4 * kt, 4)
                o(f"v_mfma_f32_16x16x32_bf16 {v(vSx+4*kt,4)}, {v(vK+(kt*4+2*cp+odd)*4,4)}, {v(bq,4)}, {c}")
            ak = (vKr if odd else vKm) + 4 * cp
            c = v(vNeg, 4) if first else v(vSm, 4)
            o(f"v_mfma_f32_16x16x32_bf16 {v(vSm,4)}, {v(ak,4)}, {v(bq,4)}, {c}")
    if not FIXKV:
        o(f"s_add_u32 s{sKX}, s{sKX}, 262144"); o(f"s_addc_u32 s{sKX+1}, s{sKX+1}, 0")
    m, t = vX + 1, vX + 2
    Sall = list(range(vSx, vSx + 8)) + list(range(vSm, vSm + 4))
    o(f"v_max3_f32 v{m}, v{Sall[0]}, v{Sall[1]}, v{Sall[2]}")
    for k in range(3, 11, 2):
        o(f"v_max3_f32 v{m}, v{m}, v{Sall[k]}, v{Sall[k+1]}")
    o(f"v_max_f32 v{m}, v{m}, v{Sall[11]}")
    for sw in ("16", "32"):
        o(f"v_mov_b32 v{t}, v{m}")
        o(f"v_permlane{sw}_swap_b32 v{m}, v{t}")
        o(f"v_max_f32 v{m}, v{m}, v{t}")
    def vm_issue():
        for mm in range(2):
            o(f"global_load_dwordx4 {v(vVm+4*mm,4)}, v{vVld}, {s(sVR,2)} offset:{mm*1024} sc1")
    vm_issue()
    o(f"v_mul_f32 v{m}, s{sScale}, v{m}")
    main = [f"v_fma_f32 v{r}, v{r}, s{sScale}, -v{m}" for r in Sall] + [f"v_exp_f32 v{r}, v{r}" for r in Sall]
    kxl = kx_loads()
    emit(merge(main, [kxl.pop(0), kxl.pop(0)], 10))
    o(f"v_cvt_pk_bf16_f32 v{vPx}, v{vSx}, v{vSx+1}")
    o(f"v_cvt_pk_bf16_f32 v{vPx+1}, v{vSx+2}, v{vSx+3}")
    o(f"v_cvt_pk_bf16_f32 v{vPx+2}, v{vSx+4}, v{vSx+5}")
    o(f"v_cvt_pk_bf16_f32 v{vPx+3}, v{vSx+6}, v{vSx+7}")
    o(f"v_cvt_pk_bf16_f32 v{vPmA}, v{vSm}, v{vSm+1}")
    o(f"v_cvt_pk_bf16_f32 v{vPmA+1}, v{vSm+2}, v{vSm+3}")
    stamp()
    for tt in range(8):
        o(f"v_mfma_f32_16x16x32_bf16 {v(vO+4*tt,4)}, {v(vV+4*tt,4)}, {v(vPx,4)}, 0")
    o(f"v_mov_b32 v{vX+4}, v{vPmA}"); o(f"v_mov_b32 v{vX+5}, v{vPmA+1}")
    o(f"v_mov_b32 v{vPmB}, 0"); o(f"v_mov_b32 v{vPmB+1}, 0")
    o(f"v_permlane32_swap_b32 v{vPmB}, v{vX+4}")
    o(f"v_permlane32_swap_b32 v{vPmB+1}, v{vX+5}")
    l_ = vX + 1
    o(f"v_add_f32 v{l_}, v{Sall[0]}, v{Sall[1]}")
    for r in Sall[2:]:
        o(f"v_add_f32 v{l_}, v{l_}, v{r}")
    for sw in ("16", "32"):
        o(f"v_mov_b32 v{t}, v{l_}")
        o(f"v_permlane{sw}_swap_b32 v{l_}, v{t}")
        o(f"v_add_f32 v{l_}, v{l_}, v{t}")
    o(f"v_rcp_f32 v{l_}, v{l_}")
    o(kxl.pop(0))
    o("s_branch L_vm_w")
    A.label("L_vm_retry")
    vm_issue()
    o("s_waitcnt vmcnt(0)")
    o("s_branch L_vm_chk")
    A.label("L_vm_w")
    o("s_waitcnt vmcnt(3)")
    A.label("L_vm_chk")
    check(range(vVm, vVm + 8), "L_vm_ok", "L_vm_retry", vX, 2)
    stamp()
    if PF: o(f"global_load_dwordx4 {v(vPf,4)}, v{vPfo}, {s(sPF,2)}")
    for tt in range(8):
        c, tv = tt >> 1, tt & 1
        pm = vPmB if (c & 1) else vPmA
        o(f"v_mfma_f32_16x16x16_bf16 {v(vO+4*tt,4)}, {v(vVm+4*(c>>1)+2*tv,2)}, {v(pm,2)}, {v(vO+4*tt,4)}")
    o(f"s_lshl_b32 s{sT0}, s{sW}, 12")
    o(f"v_add_u32 v{vX+3}, s{sT0}, v{vL16}")
    vC = vA0
    vxl = vx_loads()
    for u in range(4):
        for h in range(2):
            tt = 2 * u + h
            for r in range(4):
                o(f"v_mul_f32 v{vO+4*tt+r}, v{vO+4*tt+r}, v{l_}")
            o(f"v_cvt_pk_bf16_f32 v{vOb+4*u+2*h}, v{vO+4*tt}, v{vO+4*tt+1}")
            o(f"v_cvt_pk_bf16_f32 v{vOb+4*u+2*h+1}, v{vO+4*tt+2}, v{vO+4*tt+3}")
        o(kxl.pop(0))
        o(f"ds_write_b128 v{vX+3}, {v(vOb+4*u,4)} offset:{LDS_O+u*1024}")
        c = "0" if u == 0 else v(vC, 4)
        o(f"v_mfma_f32_16x16x32_bf16 {v(vC,4)}, {a(192+u*4,4)}, {v(vOb+4*u,4)}, {c}")
    for hs in range(1, 4):
        o(f"s_add_u32 s{sT0}, s{sW}, {hs}"); o(f"s_and_b32 s{sT0}, s{sT0}, 3"); o(f"s_lshl_b32 s{sT0}, s{sT0}, 12")
        o(f"v_add_u32 v{vX+8+hs}, s{sT0}, v{vL16}")
    o(kxl.pop(0))
    assert not kxl
    o("s_waitcnt lgkmcnt(0)")
    o("s_barrier")
    stamp()
    for hs in range(1, 4):
        for u in range(4):
            o(f"ds_read_b128 {v(vOo[(hs-1)*4+u],4)}, v{vX+8+hs} offset:{LDS_O+u*1024}")
    for hs in range(1, 4):
        for u in range(4):
            k = (hs - 1) * 4 + u
            o(f"s_waitcnt lgkmcnt({11-k})")
            o(f"v_mfma_f32_16x16x32_bf16 {v(vC,4)}, {a(192+(hs*4+u)*4,4)}, {v(vOo[k],4)}, {v(vC,4)}")
    o(f"v_cvt_pk_bf16_f32 v{R}, v{vC}, v{vC+1}")
    o(f"v_cvt_pk_bf16_f32 v{R+1}, v{vC+2}, v{vC+3}")
    o(f"v_permlane16_swap_b32 v{R}, v{R+2}")
    o(f"v_permlane16_swap_b32 v{R+1}, v{R+3}")
    o(f"s_mov_b64 exec, {s(sMaskQK,2)}")
    if EP == 2:
        o("s_waitcnt vmcnt(0)")
        o(f"{TIMER} {s(sTs + 2*5, 2)}")
    o(f"global_store_dwordx4 v{vPst}, {v(R,4)}, {s(sPART,2)} sc1")
    stamp()
    if EP == 2:
        o("s_waitcnt vmcnt(0)")
        o(f"{TIMER} {s(sTs + 2*4, 2)}")
    o(f"global_store_dwordx4 v{vQKst}, {v(vSent,4)}, {s(sRq,2)}{st_fast}")
    o(f"s_mov_b64 exec, 0xffff")
    o(f"global_store_dwordx4 v{vMst}, {v(vSent,4)}, {s(sRm,2)}{st_fast}")
    o(f"s_cmp_lg_u32 s{sW}, 0")
    o("s_cbranch_scc1 L_norv")
    o(f"s_mov_b64 exec, {s(sSelV,2)}")
    o(f"global_store_dwordx4 v{vVst}, {v(vSent,4)}, {s(sRv,2)}{st_fast}")
    A.label("L_norv")
    o("s_mov_b64 exec, -1")
    if not FIXKV:
        o(f"s_add_u32 s{sVX}, s{sVX}, 262144"); o(f"s_addc_u32 s{sVX+1}, s{sVX+1}, 0")
    o(f"s_add_u32 s{sKM}, s{sKM}, 65536"); o(f"s_addc_u32 s{sKM+1}, s{sKM+1}, 0")
    o(f"s_add_u32 s{sVM}, s{sVM}, 65536"); o(f"s_addc_u32 s{sVM+1}, s{sVM+1}, 0")
    if E2_DELAY: o(f"s_sleep {E2_DELAY}")
    sets = [vB + 8 * k for k in range(E2_DEPTH)]
    def e2_issue(b):
        o(f"global_load_dwordx4 {v(b,4)}, v{vPld}, {s(sPART,2)} sc1")
        o(f"global_load_dwordx4 {v(b+4,4)}, v{vPld}, {s(sPART2,2)} sc1")
    if EP: o(f"{TIMER} {s(sTs + 2*2, 2)}")
    for k, b in enumerate(sets):
        e2_issue(b)
        if k + 1 < len(sets) and E2_SP: o(f"s_sleep {E2_SP}")
    if EP:
        o(f"s_waitcnt vmcnt({2*(len(sets)-1)})")
        o(f"{TIMER} {s(sTs + 2*3, 2)}")
    A.label("L_e2")
    for k, b in enumerate(sets):
        o(f"s_waitcnt vmcnt({2*(len(sets)-1)})")
        regs = list(range(b, b + 8))
        o(f"v_max3_u32 v{vX}, v{regs[0]}, v{regs[1]}, v{regs[2]}")
        o(f"v_max3_u32 v{vX}, v{vX}, v{regs[3]}, v{regs[4]}")
        o(f"v_max3_u32 v{vX}, v{vX}, v{regs[5]}, v{regs[6]}")
        o(f"v_max_u32 v{vX}, v{vX}, v{regs[7]}")
        o(f"v_cmp_eq_u32 vcc, -1, v{vX}")
        o(f"s_cbranch_vccz L_e2_ok{k}")
        if prof: o(f"s_add_u32 s{sCnt+3}, s{sCnt+3}, 1")
        e2_issue(b)
    o(f"s_sub_u32 s{sLim}, s{sLim}, 1")
    o(f"s_cbranch_scc0 L_e2")
    o(f"s_mov_b32 s{sLim}, 0")
    D = vA1
    for k, b in enumerate(sets):
        A.label(f"L_e2_ok{k}")
        o(f"v_mfma_f32_16x16x32_bf16 {v(D,4)}, {v(vDelta,4)}, {v(b,4)}, 0")
        o(f"v_mfma_f32_16x16x32_bf16 {v(D,4)}, {v(vDelta,4)}, {v(b+4,4)}, {v(D,4)}")
        if k + 1 < len(sets): o("s_branch L_e2_done")
    A.label("L_e2_done")
    o(f"s_add_u32 s{sPF}, s{sPF}, 262144"); o(f"s_addc_u32 s{sPF+1}, s{sPF+1}, 0")
    stamp()
    o("s_nop 7")
    o(f"v_cvt_pk_bf16_f32 v{R}, v{D}, v{D+1}")
    o(f"v_cvt_pk_bf16_f32 v{R+1}, v{D+2}, v{D+3}")
    o(f"v_permlane16_swap_b32 v{R}, v{R+2}")
    o(f"v_permlane16_swap_b32 v{R+1}, v{R+3}")
    o(f"s_mov_b64 exec, 0xffff")
    o(f"global_store_dwordx4 v{vMst}, {v(R,4)}, {s(sMEMn,2)}{st_fast}")
    o("s_mov_b64 exec, -1")
    stamp()
    if E3_DELAY: o(f"s_sleep {E3_DELAY}")
    if prof:
        o("s_waitcnt lgkmcnt(0)")
        for k in range(nst[0]):
            o(f"v_writelane_b32 v{vX+8}, s{sTs+2*k}, {k}")
        for k in range(4):
            o(f"v_writelane_b32 v{vX+8}, s{sCnt+k}, {11+k}")
        o(f"s_lshl_b32 s{sT0}, s{sW}, 12")
        o(f"s_lshl_b32 s{sT1}, s{sStep}, 6")
        o(f"s_add_u32 s{sT0}, s{sT0}, s{sT1}")
        o(f"s_add_u32 s{sT0}, s{sT0}, 40960")
        o(f"v_lshlrev_b32 v{vX+9}, 2, v{vL}")
        o(f"v_add_u32 v{vX+9}, s{sT0}, v{vX+9}")
        o("s_mov_b64 exec, 0xffff")
        o(f"ds_write_b32 v{vX+9}, v{vX+8}")
        o("s_mov_b64 exec, -1")
    o(f"s_add_u32 s{sStep}, s{sStep}, 1")
    o(f"s_cmp_lt_u32 s{sStep}, {nsteps}")
    o("s_cbranch_scc1 L_step")
    if prof:
        o("s_waitcnt lgkmcnt(0)")
        o(f"s_lshl_b32 s{sT0}, s{sW}, 12")
        o(f"s_add_u32 s{sT0}, s{sT0}, 40960")
        o(f"v_add_u32 v{vX+9}, s{sT0}, v{vL16}")
        for k in range(4):
            o(f"ds_read_b128 {v(vB+4*k,4)}, v{vX+9} offset:{k*1024}")
        o("s_waitcnt lgkmcnt(0)")
        for k in range(4):
            o(f"global_store_dwordx4 v{vL16}, {v(vB+4*k,4)}, {s(sProf,2)} offset:{k*1024}")
    o("s_waitcnt vmcnt(0)")
    A.label("L_rec_end")
    o("s_endpgm")
    return kernel_head(name) + A.finish() + kernel_desc(name, 256, 256)

if __name__ == "__main__":
    import sys
    fast = "slow" not in sys.argv
    prof = "prof" in sys.argv
    hdr = "; @launch kernel=rec_kernel grid=(128,1,1) block=(256,1,1) lds=131072\n.amdgcn_target \"amdgcn-amd-amdhsa--gfx950\"\n.text\n"
    kw = {}
    for x in sys.argv[1:]:
        if "=" in x:
            k_, v_ = x.split("=");
            if k_ != "out": kw[k_] = int(v_)
    outn = [x.split("=")[1] for x in sys.argv if x.startswith("out=")]
    open(outn[0] if outn else "rec_test.s", "w").write(hdr + gen_rec(fast=fast, prof=prof, **kw))
```

```python
import sys
from layout import *
import k_small, k_attn, k_gemms, k_qkv
import rec6 as rec
NAME = "adaLN_cond__memory_aug_recurrent_mem_tr__mixer_token_mlp__prompt"
HDR = open("cdna_kernels/" + NAME + ".s.ref").read().split("; Override launch geometry")[0]
def build(out, recopt=None):
    recopt = recopt or dict(E2_DEPTH=2, E2_SP=3, E2_DELAY=2)
    op, l_op = k_gemms.gen_op(); g1, l_g1 = k_gemms.gen_g1(); g2, l_g2 = k_gemms.gen_g2()
    launches = [("pre_kernel", 256, 256, 8192), ("ln1_kernel", 256, 256, 0), ("qkv_kernel", 384, 256, 131072), ("rec_kernel", 128, 256, 131072),
                ("attn_kernel", 1024, 256, 0), ("op_kernel", 256, 256, l_op), ("ln2_kernel", 64, 1024, 32 * 2112), ("g1_kernel", 224, 256, l_g1), ("g2_kernel", 256, 256, l_g2)]
    t = HDR
    for k, g, b, l in launches: t += f"; @launch kernel={k} grid=({g},1,1) block=({b},1,1) lds={l}\n"
    t += '.amdgcn_target "amdgcn-amd-amdhsa--gfx950"\n.text\n'
    t += k_small.gen_pre() + k_small.gen_ln1() + k_qkv.gen_qkv(opt={"S": 4}) + rec.gen_rec(**recopt) + k_attn.gen_attn() + op + k_small.gen_ln2() + g1 + g2
    open(out, "w").write(t)
if __name__ == "__main__":
    build(sys.argv[1] if len(sys.argv) > 1 else "all.s")
```

```python
from asmlib import *
from layout import *

class Gemm:
    def __init__(self, A, NX, NY, swap, pfx, acc_agpr=True, accbase=0):
        self.accbase = accbase
        self.A = A; self.NX = NX; self.NY = NY; self.swap = swap; self.pfx = pfx
        self.XW = 2 * NX * 16; self.YH = 2 * NY * 16
        self.RB = 2 * self.XW
        self.NIX = self.XW // 64; self.NIY = self.YH // 64
        self.XB = 32 * self.RB; self.YB = self.YH * 64
        self.SB = self.XB + self.YB
        self.NDMA = self.NIX + self.NIY
        self.nacc = NX * NY * 4
        r = 8
        self.vXr = r; r += NX
        self.vYr = r; r += 1
        self.vXd = r; r += self.NIX
        self.vYd = r; r += self.NIY
        r = (r + 3) // 4 * 4
        self.vF = r
        self.FS = (NX + NY) * 4
        r += 2 * self.FS
        self.vEnd = r
    def acc(self, jx, jy):
        return a(self.accbase + (jx * self.NY + jy) * 4, 4)
    def accr(self, jx, jy): return self.accbase + (jx * self.NY + jy) * 4
    def fX(self, ph, j): return self.vF + ph * self.FS + 4 * j
    def fY(self, ph, j): return self.vF + ph * self.FS + 4 * (self.NX + j)

    def setup(self, sW, vL, ldx, ldy, T, sTmp):
        o = self.A; NX, NY = self.NX, self.NY
        vi, vg, t0, t1, t2, t3 = T[:6]
        s0, s1 = sTmp[:2]
        o(f"v_and_b32 v{vi}, 15, v{vL}")
        o(f"v_lshrrev_b32 v{vg}, 4, v{vL}")
        o(f"v_lshrrev_b32 v{t0}, 2, v{vi}")
        o(f"v_and_b32 v{t1}, 1, v{vg}")
        o(f"v_lshrrev_b32 v{t2}, 1, v{vg}")
        if self.XW == 256:
            o(f"v_lshlrev_b32 v{t3}, 3, v{t0}")
            o(f"v_lshl_add_u32 v{t3}, v{t2}, 2, v{t3}")
            o(f"v_add_u32 v{t3}, v{t3}, v{t1}")
            o(f"v_lshl_or_b32 v{t0}, v{t1}, 2, v{t0}")
        elif self.XW == 128:
            o(f"v_lshl_add_u32 v{t3}, v{vg}, 3, v{t0}")
            o(f"v_lshl_or_b32 v{t0}, v{t1}, 2, v{t0}")
        else:
            o(f"v_lshlrev_b32 v{t3}, 4, v{t2}")
            o(f"v_lshl_add_u32 v{t3}, v{t0}, 1, v{t3}")
            o(f"v_add_u32 v{t3}, v{t3}, v{t1}")
        sh = self.RB.bit_length() - 1
        o(f"v_lshlrev_b32 v{t3}, {sh}, v{t3}")
        o(f"v_and_b32 v{t1}, 3, v{vi}")
        o(f"v_lshl_add_u32 v{t3}, v{t1}, 3, v{t3}")
        o(f"s_and_b32 s{s0}, s{sW}, 1")
        o(f"s_mul_i32 s{s0}, s{s0}, {NX}")
        for j in range(NX):
            o(f"s_add_u32 s{s1}, s{s0}, {j}")
            o(f"v_xor_b32 v{t1}, s{s1}, v{t0}")
            o(f"v_lshl_add_u32 v{self.vXr+j}, v{t1}, 5, v{t3}")
        o(f"v_lshrrev_b32 v{t0}, 2, v{vi}")
        o(f"v_lshrrev_b32 v{t1}, 1, v{t0}")
        o(f"v_and_b32 v{t2}, 1, v{t0}")
        o(f"v_xor_b32 v{t2}, v{t2}, v{t1}")
        o(f"v_lshl_or_b32 v{t2}, v{t2}, 1, v{t1}")
        o(f"v_xor_b32 v{t2}, v{t2}, v{vg}")
        o(f"v_lshlrev_b32 v{t2}, 4, v{t2}")
        o(f"v_lshl_add_u32 v{t2}, v{vi}, 6, v{t2}")
        o(f"s_lshr_b32 s{s0}, s{sW}, 1")
        o(f"s_mul_i32 s{s0}, s{s0}, {NY*16*64}")
        o(f"s_add_u32 s{s0}, s{s0}, {self.XB}")
        o(f"v_add_u32 v{self.vYr}, s{s0}, v{t2}")
        ppr = self.RB // 16
        lg = ppr.bit_length() - 1
        o(f"v_lshrrev_b32 v{t0}, {lg}, v{vL}")
        o(f"v_and_b32 v{t1}, {ppr-1}, v{vL}")
        if self.XW == 256:
            o(f"v_lshlrev_b32 v{t2}, 3, v{t0}")
            o(f"v_add_u32 v{t2}, s{sW}, v{t2}")
            o(f"v_lshlrev_b32 v{t3}, 2, v{t0}")
            o(f"v_or_b32 v{t3}, s{sW}, v{t3}")
            toff = [0, 4, 16, 20]
        elif self.XW == 128:
            o(f"s_and_b32 s{s0}, s{sW}, 1")
            o(f"s_lshl_b32 s{s1}, s{s0}, 3")
            o(f"v_add_u32 v{t2}, s{s1}, v{t0}")
            o(f"s_lshr_b32 s{s1}, s{sW}, 1"); o(f"s_lshl_b32 s{s1}, s{s1}, 4")
            o(f"v_add_u32 v{t2}, s{s1}, v{t2}")
            o(f"s_lshl_b32 s{s0}, s{s0}, 2")
            o(f"v_or_b32 v{t3}, s{s0}, v{t0}")
            toff = [0, 4]
        else:
            o(f"v_lshrrev_b32 v{t3}, 1, v{t0}")
            o(f"v_and_b32 v{t2}, 1, v{t0}")
            o(f"v_lshl_add_u32 v{t2}, v{t2}, 3, v{t3}")
            o(f"s_and_b32 s{s0}, s{sW}, 1"); o(f"s_lshl_b32 s{s0}, s{s0}, 2")
            o(f"s_lshr_b32 s{s1}, s{sW}, 1"); o(f"s_lshl_b32 s{s1}, s{s1}, 4")
            o(f"s_add_u32 s{s0}, s{s0}, s{s1}")
            o(f"v_add_u32 v{t2}, s{s0}, v{t2}")
            toff = [0]
        o(f"v_lshrrev_b32 v{vi}, 1, v{t1}")
        o(f"v_xor_b32 v{vi}, v{vi}, v{t3}")
        o(f"v_lshlrev_b32 v{vi}, 5, v{vi}")
        o(f"v_and_b32 v{t1}, 1, v{t1}")
        o(f"v_lshl_or_b32 v{vi}, v{t1}, 4, v{vi}")
        o(f"s_mov_b32 s{s0}, {ldx}")
        o(f"v_mul_lo_u32 v{t2}, v{t2}, s{s0}")
        o(f"v_add_u32 v{self.vXd}, v{t2}, v{vi}")
        for t in range(1, self.NIX):
            o(f"v_add_u32 v{self.vXd+t}, {toff[t]*ldx}, v{self.vXd}")
        o(f"v_lshlrev_b32 v{t0}, 4, v{vL}")
        o(f"s_mul_i32 s{s0}, s{sW}, {self.NIY*1024}")
        o(f"v_add_u32 v{self.vYd}, s{s0}, v{t0}")
        for t in range(1, self.NIY):
            o(f"v_add_u32 v{self.vYd+t}, {t*1024}, v{self.vYd}")

    def dma(self, stage, sSrdX, sSrdY, sOffX, sOffY, sM0base):
        L = []
        for t in range(self.NIX):
            L.append([f"s_add_u32 m0, s{sM0base[0]}, {stage*self.SB + t*1024}",
                      f"buffer_load_dwordx4 v{self.vXd+t}, {s(sSrdX,4)}, s{sOffX} offen lds"])
        for t in range(self.NIY):
            L.append([f"s_add_u32 m0, s{sM0base[1]}, {stage*self.SB + self.XB + t*1024}",
                      f"buffer_load_dwordx4 v{self.vYd+t}, {s(sSrdY,4)}, s{sOffY} offen lds"])
        return L
    def reads(self, stage, ph, hi):
        L = []
        base = stage * self.SB
        def addr(reg, off):
            if off <= 65535 - 1024: return f"v{reg} offset:{off}"
            return None
        for j in range(max(self.NX, self.NY)):
            if j < self.NY:
                L.append(("Y", j, base + j * 1024))
            if j < self.NX:
                L.append(("X", j, base));
        return L

def gen_loop(G, sSrdX, sSrdY, sOffX, sOffY, sM0, sKcnt, stepX, stepY, niter, label, sW=None, stagger=False, opt=None, sSt=None, pf=None):
    opt = opt or {}
    o = G.A; NX, NY = G.NX, G.NY
    S = opt.get("S", 4)
    SB = G.SB
    sRd, sDm, sTm = sSt
    vC = G.vEnd
    G.vEnd2 = vC + NX + 1
    def rd(ph):
        L = []
        for j in range(max(NX, NY)):
            if j < NY: L.append(f"ds_read_b128 {v(G.fY(ph,j),4)}, v{vC+NX} offset:{j*1024}")
            if j < NX:
                L.append(f"ds_read_b64_tr_b16 {v(G.fX(ph,j),2)}, v{vC+j}")
                L.append(f"ds_read_b64_tr_b16 {v(G.fX(ph,j)+2,2)}, v{vC+j} offset:1024")
        return L
    def setaddr():
        return [f"v_add_u32 v{vC+j}, s{sRd}, v{G.vXr+j}" for j in range(NX)] + [f"v_add_u32 v{vC+NX}, s{sRd}, v{G.vYr}"]
    def adv(sreg):
        return [f"s_add_u32 s{sreg}, s{sreg}, {SB}", f"s_cmp_eq_u32 s{sreg}, {S*SB}", f"s_cselect_b32 s{sreg}, 0, s{sreg}"]
    def dma_groups():
        L = []
        for t in range(G.NIX):
            L.append([f"s_add_u32 m0, s{sTm}, {t*1024}", f"buffer_load_dwordx4 v{G.vXd+t}, {s(sSrdX,4)}, s{sOffX} offen lds"])
        for t in range(G.NIY):
            L.append([f"s_add_u32 m0, s{sTm+1}, {t*1024}", f"buffer_load_dwordx4 v{G.vYd+t}, {s(sSrdY,4)}, s{sOffY} offen lds"])
        return L
    def dma_pre():
        return [f"s_add_u32 s{sTm}, s{sM0[0]}, s{sDm}", f"s_add_u32 s{sTm+1}, s{sM0[1]}, s{sDm}"]
    def dma_post():
        return [f"s_add_u32 s{sOffX}, s{sOffX}, {stepX}", f"s_add_u32 s{sOffY}, s{sOffY}, {stepY}"] + adv(sDm)
    def mf(jx, jy, ph, first):
        c = "0" if first else G.acc(jx, jy)
        if G.swap: return f"v_mfma_f32_16x16x32_bf16 {G.acc(jx,jy)}, {v(G.fY(ph,jy),4)}, {v(G.fX(ph,jx),4)}, {c}"
        return f"v_mfma_f32_16x16x32_bf16 {G.acc(jx,jy)}, {v(G.fX(ph,jx),4)}, {v(G.fY(ph,jy),4)}, {c}"
    NPF = 1 if pf else 0
    def pf_ins():
        return [f"buffer_load_dword v{pf['vd']}, v{pf['vo']}, {s(pf['srd'],4)}, s{pf['off']} offen", f"s_add_u32 s{pf['off']}, s{pf['off']}, s{pf['step']}"]
    o(f"s_add_u32 s{sM0[1]}, s{sM0[1]}, {G.XB}")
    o(f"s_mov_b32 s{sDm}, 0"); o(f"s_mov_b32 s{sRd}, 0")
    for st in range(S):
        for x in dma_pre(): o(x)
        for g in dma_groups():
            for x in g: o(x)
        for x in dma_post(): o(x)
    npro = 0
    if pf:
        npro = pf['D']
        for d in range(npro):
            for x in pf_ins(): o(x)
    for x in setaddr(): o(x)
    o(f"s_waitcnt vmcnt({min(63, G.NDMA*(S-1) + npro)})")
    o("s_barrier")
    for x in rd(0): o(x)
    for x in adv(sRd): o(x)
    for x in setaddr(): o(x)
    for x in dma_pre(): o(x)
    o(f"s_waitcnt vmcnt({min(63, G.NDMA*(S-2) + npro)}) lgkmcnt(0)")
    o("s_barrier")
    def iteration(ph, first, itn=99):
        mfl = [mf(jx, jy, ph, first) for jy in range(NY) for jx in range(NX)]
        rl = rd(ph ^ 1)
        dl = dma_groups()
        if opt.get('nodma'): dl = []
        if opt.get('noread'): rl = []
        n = len(mfl)
        pre = [[] for _ in range(n)]; slots = [[] for _ in range(n)]
        used = set()
        per = max(1, n // max(1, len(dl)))
        for k, g in enumerate(dl):
            p = min(n - 1, k * per + 2)
            pre[p].append(g[0]); slots[p].append(g[1]); used.add(p)
        nr = len(rl); rspan = opt.get("rspan", n * 3 // 4)
        for k, x in enumerate(rl):
            p = min(n - 1, 1 + (k * rspan) // max(1, nr))
            while p in used and p + 1 < n: p += 1
            slots[p].append(x)
        lastr = max([k for k in range(n) if any(x.startswith("ds_read") for x in slots[k])] + [0])
        lastd = max([k for k in range(n) if any(x.startswith("buffer_load") for x in slots[k])] + [0])
        tail1 = [adv(sRd)] + [[x] for x in setaddr()]
        p = lastr + 1
        for k_, g in enumerate(tail1):
            slots[min(p, n - 1)] += g
            if n - p > len(tail1) - k_ or True: p += 1
        dp = dma_post()
        tail2 = [dp[:2], dp[2:], dma_pre()]
        p = lastd + 1
        for g in tail2:
            slots[min(p, n - 1)] += g; p += 1
        if pf: slots[n - 1] += pf_ins()
        for k in range(n):
            for x in pre[k]: o(x)
            o(mfl[k])
            for x in slots[k]: o(x)
        extra = 0
        if pf: extra = (npro + itn + 1) if itn < S - 2 else (S - 1)
        o(f"s_waitcnt vmcnt({min(63, G.NDMA*(S-2) + extra)}) lgkmcnt(0)")
        if not opt.get('nobar'): o("s_barrier")
    iteration(0, not opt.get('accum'), 0); iteration(1, False, 1)
    if niter > 2:
        o(f"s_mov_b32 s{sKcnt}, {niter//2 - 1}")
        o.label(f"{label}_loop")
        iteration(0, False); iteration(1, False)
        o(f"s_sub_u32 s{sKcnt}, s{sKcnt}, 1")
        o(f"s_cmp_lg_u32 s{sKcnt}, 0")
        o(f"s_cbranch_scc1 {label}_loop")
    o("s_waitcnt vmcnt(0)")

def gen_loop2(G, sSrdX, sSrdY, sOffX, sOffY, sM0, sKcnt, stepX, stepY, niter, label, K=4, R=12, sSt=None, opt=None):
    opt = opt or {}
    o = G.A; NX, NY = G.NX, G.NY
    SB = G.SB
    sRd, sDm, sTm = sSt
    FS = G.FS
    vF = G.vF
    vC = vF + 4 * FS
    G.vEnd2 = vC + NX + 1
    fX = lambda ph, j: vF + ph * FS + 4 * j
    fY = lambda ph, j: vF + ph * FS + 4 * (NX + j)
    def rd(ph):
        L = []
        for j in range(max(NX, NY)):
            if j < NY: L.append(f"ds_read_b128 {v(fY(ph,j),4)}, v{vC+NX} offset:{j*1024}")
            if j < NX:
                L.append(f"ds_read_b64_tr_b16 {v(fX(ph,j),2)}, v{vC+j}")
                L.append(f"ds_read_b64_tr_b16 {v(fX(ph,j)+2,2)}, v{vC+j} offset:1024")
        return L
    NRD = 2 * NX + NY
    def setaddr():
        return [f"v_add_u32 v{vC+j}, s{sRd}, v{G.vXr+j}" for j in range(NX)] + [f"v_add_u32 v{vC+NX}, s{sRd}, v{G.vYr}"]
    def adv(sreg):
        return [f"s_add_u32 s{sreg}, s{sreg}, {SB}", f"s_cmp_eq_u32 s{sreg}, {R*SB}", f"s_cselect_b32 s{sreg}, 0, s{sreg}"]
    def dma_groups():
        L = []
        for t in range(G.NIX):
            L.append([f"s_add_u32 m0, s{sTm}, {t*1024}", f"buffer_load_dwordx4 v{G.vXd+t}, {s(sSrdX,4)}, s{sOffX} offen lds"])
        for t in range(G.NIY):
            L.append([f"s_add_u32 m0, s{sTm+1}, {t*1024}", f"buffer_load_dwordx4 v{G.vYd+t}, {s(sSrdY,4)}, s{sOffY} offen lds"])
        return L
    dma_pre = lambda: [f"s_add_u32 s{sTm}, s{sM0[0]}, s{sDm}", f"s_add_u32 s{sTm+1}, s{sM0[1]}, s{sDm}"]
    dma_post = lambda: [f"s_add_u32 s{sOffX}, s{sOffX}, {stepX}", f"s_add_u32 s{sOffY}, s{sOffY}, {stepY}"] + adv(sDm)
    def mf(jx, jy, ph, first):
        c = "0" if first else G.acc(jx, jy)
        if G.swap: return f"v_mfma_f32_16x16x32_bf16 {G.acc(jx,jy)}, {v(fY(ph,jy),4)}, {v(fX(ph,jx),4)}, {c}"
        return f"v_mfma_f32_16x16x32_bf16 {G.acc(jx,jy)}, {v(fX(ph,jx),4)}, {v(fY(ph,jy),4)}, {c}"
    o(f"s_add_u32 s{sM0[1]}, s{sM0[1]}, {G.XB}")
    o(f"s_mov_b32 s{sDm}, 0"); o(f"s_mov_b32 s{sRd}, 0")
    npro = R - K + 1
    for st in range(npro):
        for x in dma_pre(): o(x)
        for g in dma_groups():
            for x in g: o(x)
        for x in dma_post(): o(x)
    for x in dma_pre(): o(x)
    OUT = (R - 2 * K - 1) * G.NDMA
    assert 0 <= OUT <= 63
    o(f"s_waitcnt vmcnt({min(63, (npro - 2) * G.NDMA)})")
    o("s_barrier")
    for ph in range(2):
        for x in setaddr(): o(x)
        for x in rd(ph): o(x)
        for x in adv(sRd): o(x)
    for x in setaddr(): o(x)
    o(f"s_waitcnt vmcnt({OUT}) lgkmcnt({NRD})")
    o("s_barrier")
    def iteration(it, first):
        ph = it % 4
        mfl = [mf(jx, jy, ph, first) for jy in range(NY) for jx in range(NX)]
        rl = rd((ph + 2) % 4)
        dl = dma_groups()
        n = len(mfl)
        pre = [[] for _ in range(n)]; slots = [[] for _ in range(n)]
        per = max(1, n // len(dl))
        for k, g in enumerate(dl):
            p = min(n - 1, k * per + 1)
            pre[p].append(g[0]); slots[p].append(g[1])
        for k, x in enumerate(rl):
            slots[min(n - 1, (k * n) // (len(rl) + len(rl) // 2))].append(x)
        slots[n - 1] += adv(sRd) + setaddr() + dma_post()[:2] + adv(sDm) + dma_pre()
        for k in range(n):
            for x in pre[k]: o(x)
            o(mfl[k])
            for x in slots[k]: o(x)
        if (it + 1) % K == 0:
            o(f"s_waitcnt vmcnt({OUT}) lgkmcnt({NRD})")
            o("s_barrier")
        else:
            o(f"s_waitcnt lgkmcnt({NRD})")
    for it in range(4): iteration(it, it == 0 and not opt.get("accum"))
    if niter > 4:
        o(f"s_mov_b32 s{sKcnt}, {niter//4 - 1}")
        o.label(f"{label}_loop")
        for it in range(4): iteration(it, False)
        o(f"s_sub_u32 s{sKcnt}, s{sKcnt}, 1")
        o(f"s_cmp_lg_u32 s{sKcnt}, 0")
        o(f"s_cbranch_scc1 {label}_loop")
    o("s_waitcnt vmcnt(0) lgkmcnt(0)")
```

```python
from asmlib import *
from layout import *
from k_small import fbits, gfun
import math

def attn_body(A, sWS, sSeg, sHead, sQt, vL, lab, base=8, sc1=False, nt=0):
    NT = ' nt' if nt else ''
    o = A
    r = base
    vQ = r; r += 16
    vK = r; r += 32
    vV = r; r += 32
    vKm = r; r += 8
    vVm = r; r += 8
    vS = r; r += 12
    vD = r; r += 4
    vP = r; r += 8
    vLs = r; r += 4
    vOn = r; r += 4
    vT = r; r += 12
    vO = vK
    sA, sB, sC, sD = 40, 42, 44, 46
    sT0, sT1, sSc, sMk = 48, 49, 50, 52
    l16 = vT + 10; t0, t1 = vT + 8, vT + 9
    o(f"v_lshlrev_b32 v{l16}, 4, v{vL}")
    o(f"s_lshl_b32 s{sT0}, s{sSeg}, 5"); o(f"s_add_u32 s{sT0}, s{sT0}, s{sHead}")
    o(f"s_lshl_b32 s{sT1}, s{sT0}, 13")
    o(f"s_add_u32 s{sT1}, s{sT1}, 4096")
    def base_(dst, off, extra):
        o(f"s_add_u32 s{dst}, s{sWS}, s{extra}"); o(f"s_addc_u32 s{dst+1}, s{sWS+1}, 0")
        o(f"s_add_u32 s{dst}, s{dst}, {off}"); o(f"s_addc_u32 s{dst+1}, s{dst+1}, 0")
    base_(sA, WS_K, sT1); base_(sB, WS_VT, sT1)
    o(f"s_lshl_b32 s{sC}, s{sQt}, 12"); o(f"s_add_u32 s{sT1}, s{sT1}, s{sC}"); o(f"s_sub_u32 s{sT1}, s{sT1}, 4096")
    base_(sC, WS_Q, sT1)
    o(f"s_lshl_b32 s{sT1}, s{sT0}, 11")
    base_(sD, WS_KM, sT1)
    for u in range(4): o(f"global_load_dwordx4 {v(vQ+4*u,4)}, v{l16}, {s(sC,2)} offset:{u*1024}{NT}")
    for t in range(8): o(f"global_load_dwordx4 {v(vK+4*t,4)}, v{l16}, {s(sA,2)} offset:{t*1024-4096}{NT}")
    for c in range(2): o(f"global_load_dwordx4 {v(vKm+4*c,4)}, v{l16}, {s(sD,2)} offset:{c*1024}{NT}")
    o(f"s_add_u32 s{sD}, s{sD}, {WS_VM - WS_KM}"); o(f"s_addc_u32 s{sD+1}, s{sD+1}, 0")
    for c in range(2): o(f"global_load_dwordx4 {v(vVm+4*c,4)}, v{l16}, {s(sD,2)} offset:{c*1024}{NT}")
    for t in range(8): o(f"global_load_dwordx4 {v(vV+4*t,4)}, v{l16}, {s(sB,2)} offset:{t*1024-4096}{NT}")
    for k in range(4): o(f"v_mov_b32 v{vOn+k}, 0x3f803f80")
    o(f"s_mov_b32 s{sSc}, {fbits(128 ** -0.5 * math.log2(math.e))}")
    o(f"v_and_b32 v{t0}, 15, v{vL}"); o(f"v_lshrrev_b32 v{t1}, 4, v{vL}"); o(f"v_lshlrev_b32 v{t1}, 2, v{t1}"); o(f"v_sub_u32 v{t0}, v{t0}, v{t1}")
    o("s_waitcnt vmcnt(10)")
    Sx0, Sx1, Sm = vS, vS + 4, vS + 8
    for u in range(4):
        c = "0" if u == 0 else None
        o(f"v_mfma_f32_16x16x32_bf16 {v(Sx0,4)}, {v(vK+4*u,4)}, {v(vQ+4*u,4)}, {c or v(Sx0,4)}")
        o(f"v_mfma_f32_16x16x32_bf16 {v(Sx1,4)}, {v(vK+16+4*u,4)}, {v(vQ+4*u,4)}, {c or v(Sx1,4)}")
        acc = Sm if u % 2 == 0 else vD
        cc = "0" if u < 2 else v(acc, 4)
        o(f"v_mfma_f32_16x16x32_bf16 {v(acc,4)}, {v(vKm+4*(u>>1),4)}, {v(vQ+4*u,4)}, {cc}")
    NEG = 0xff800000
    for k in range(4):
        o(f"v_mov_b32 v{vT+k}, v{vD+k}")
    for k in range(4):
        o(f"v_permlane32_swap_b32 v{vD+k}, v{vT+k}")
    for k in range(4):
        o(f"v_add_f32 v{Sm+k}, v{Sm+k}, v{vT+k}")
    o(f"v_mov_b32 v{t1}, 0xff800000")
    o(f"v_cmp_lt_u32 vcc, 31, v{vL}")
    for k in range(4): o(f"v_cndmask_b32 v{Sm+k}, v{Sm+k}, v{t1}, vcc")
    o(f"s_cmp_eq_u32 s{sQt}, 0"); o(f"s_cbranch_scc0 {lab}_q1")
    for k in range(4):
        o(f"v_cmp_gt_i32 vcc, {k}, v{t0}")
        o(f"v_cndmask_b32 v{Sx0+k}, v{Sx0+k}, v{t1}, vcc")
        o(f"v_mov_b32 v{Sx1+k}, v{t1}")
    o(f"s_branch {lab}_qd")
    A.label(f"{lab}_q1")
    for k in range(4):
        o(f"v_cmp_gt_i32 vcc, {k}, v{t0}")
        o(f"v_cndmask_b32 v{Sx1+k}, v{Sx1+k}, v{t1}, vcc")
    A.label(f"{lab}_qd")
    Sall = list(range(vS, vS + 12))
    m, t = vT, vT + 1
    o(f"v_max3_f32 v{m}, v{Sall[0]}, v{Sall[1]}, v{Sall[2]}")
    for k in range(3, 11, 2): o(f"v_max3_f32 v{m}, v{m}, v{Sall[k]}, v{Sall[k+1]}")
    o(f"v_max_f32 v{m}, v{m}, v{Sall[11]}")
    for sw in ("16", "32"):
        o(f"v_mov_b32 v{t}, v{m}"); o(f"v_permlane{sw}_swap_b32 v{m}, v{t}"); o(f"v_max_f32 v{m}, v{m}, v{t}")
    o(f"v_mul_f32 v{m}, s{sSc}, v{m}")
    for x in Sall: o(f"v_fma_f32 v{x}, v{x}, s{sSc}, -v{m}")
    for x in Sall: o(f"v_exp_f32 v{x}, v{x}")
    vPx, vPmA, vPmB = vP, vP + 4, vP + 6
    for k in range(4): o(f"v_cvt_pk_bf16_f32 v{vPx+k}, v{vS+2*k}, v{vS+2*k+1}")
    o(f"v_cvt_pk_bf16_f32 v{vPmA}, v{Sm}, v{Sm+1}"); o(f"v_cvt_pk_bf16_f32 v{vPmA+1}, v{Sm+2}, v{Sm+3}")
    o(f"v_mov_b32 v{vT+2}, v{vPmA}"); o(f"v_mov_b32 v{vT+3}, v{vPmA+1}"); o(f"v_mov_b32 v{vPmB}, 0"); o(f"v_mov_b32 v{vPmB+1}, 0")
    o(f"v_permlane32_swap_b32 v{vPmB}, v{vT+2}"); o(f"v_permlane32_swap_b32 v{vPmB+1}, v{vT+3}")
    o("s_waitcnt vmcnt(0)")
    o(f"v_mfma_f32_16x16x32_bf16 {v(vLs,4)}, {v(vOn,4)}, {v(vPx,4)}, 0")
    for tt in range(8): o(f"v_mfma_f32_16x16x32_bf16 {v(vO+4*tt,4)}, {v(vV+4*tt,4)}, {v(vPx,4)}, 0")
    o(f"v_mfma_f32_16x16x16_bf16 {v(vLs,4)}, {v(vOn,2)}, {v(vPmA,2)}, {v(vLs,4)}")
    for tt in range(8):
        c, tv = tt >> 1, tt & 1
        pm = vPmB if (c & 1) else vPmA
        o(f"v_mfma_f32_16x16x16_bf16 {v(vO+4*tt,4)}, {v(vVm+4*(c>>1)+2*tv,2)}, {v(pm,2)}, {v(vO+4*tt,4)}")
    o(f"v_rcp_f32 v{m}, v{vLs}")
    n_, rho, g_ = vT + 4, vT + 5, vT + 6
    o(f"v_and_b32 v{n_}, 15, v{vL}"); o(f"v_lshrrev_b32 v{rho}, 4, v{vL}")
    o(f"v_and_b32 v{g_}, 1, v{rho}"); o(f"v_lshrrev_b32 v{rho}, 1, v{rho}"); o(f"v_lshl_or_b32 v{rho}, v{g_}, 1, v{rho}")
    gfun(o, g_, n_, vT + 7)
    o(f"v_xor_b32 v{rho}, v{rho}, v{g_}"); o(f"v_lshl_add_u32 v{rho}, v{n_}, 2, v{rho}"); o(f"v_lshlrev_b32 v{rho}, 4, v{rho}")
    o(f"s_lshl_b32 s{sT0}, s{sHead}, 19")
    o(f"s_lshl_b32 s{sT1}, s{sSeg}, 1"); o(f"s_add_u32 s{sT1}, s{sT1}, s{sQt}"); o(f"s_lshl_b32 s{sT1}, s{sT1}, 10")
    o(f"s_add_u32 s{sT0}, s{sT0}, s{sT1}")
    base_(sA, WS_O, sT0)
    for u in range(4):
        P = vQ + 4 * u
        for h in range(2):
            tt = 2 * u + h
            for k in range(4): o(f"v_mul_f32 v{vO+4*tt+k}, v{vO+4*tt+k}, v{m}")
            o(f"v_cvt_pk_bf16_f32 v{P+2*h}, v{vO+4*tt}, v{vO+4*tt+1}"); o(f"v_cvt_pk_bf16_f32 v{P+2*h+1}, v{vO+4*tt+2}, v{vO+4*tt+3}")
        o(f"v_permlane16_swap_b32 v{P}, v{P+2}"); o(f"v_permlane16_swap_b32 v{P+1}, v{P+3}")
        o(f"global_store_dwordx4 v{rho}, {v(P,4)}, {s(sA,2)}" + (" sc1" if sc1 else ""))
        if u < 3:
            o(f"s_add_u32 s{sA}, s{sA}, 131072"); o(f"s_addc_u32 s{sA+1}, s{sA+1}, 0")
    return r

def gen_attn(name="attn_kernel"):
    A = Asm(); o = A
    o("s_cmp_ge_u32 s2, 1024"); o(f"s_cbranch_scc1 L_{name}_end")
    o(f"s_load_dwordx2 s[4:5], s[0:1], {KA_WS}")
    o("v_lshrrev_b32 v1, 6, v0"); o("v_and_b32 v0, 63, v0"); o("v_readfirstlane_b32 s3, v1")
    o("s_lshl_b32 s6, s2, 2"); o("s_add_u32 s6, s6, s3")
    o("s_lshr_b32 s7, s6, 6"); o("s_lshr_b32 s8, s6, 1"); o("s_and_b32 s8, s8, 31"); o("s_and_b32 s9, s6, 1")
    o("s_waitcnt lgkmcnt(0)")
    nv = attn_body(A, 4, 7, 8, 9, 0, f"L_{name}")
    o("s_waitcnt vmcnt(0)")
    A.label(f"L_{name}_end"); o("s_endpgm")
    return kernel_head(name) + A.finish() + kernel_desc(name, nv)
```

```python
from asmlib import *
from layout import *
from gemm import Gemm, gen_loop, gen_loop2, gen_loop3
from k_qkv import srd
from k_small import fbits, unpack8, LOG2E
import math

def common_head(o, name, ntiles, ptrs):
    o(f"s_cmp_ge_u32 s2, {ntiles}"); o(f"s_cbranch_scc1 L_{name}_end")
    o(f"s_load_dwordx2 s[6:7], s[0:1], {KA_WS}")
    for sreg, ka in ptrs: o(f"s_load_dwordx2 {s(sreg,2)}, s[0:1], {ka}")
    o("v_lshrrev_b32 v1, 6, v0"); o("v_and_b32 v0, 63, v0"); o("v_readfirstlane_b32 s3, v1")
    o("s_waitcnt lgkmcnt(0)")
    prof_start(o)

PROF = False
def prof_start(o):
    if PROF: o('s_memrealtime s[60:61]'); o('s_memtime s[64:65]')
def prof_mid(o):
    if PROF: o('s_memrealtime s[62:63]'); o('s_memtime s[66:67]')
def prof_end(o, idx):
    if not PROF: return
    o('s_memrealtime s[68:69]'); o('s_waitcnt lgkmcnt(0)')
    o('s_lshl_b32 s25, s2, 6'); o('s_lshl_b32 s26, s3, 4'); o('s_add_u32 s25, s25, s26'); o(f's_add_u32 s25, s25, {WS_PROF + 5*MiB + idx*65536}')
    o('s_sub_u32 s66, s66, s64')
    o('v_mov_b32 v2, s60'); o('v_mov_b32 v3, s62'); o('v_mov_b32 v4, s68'); o('v_mov_b32 v5, s66'); o('v_mov_b32 v6, s25')
    o('s_mov_b64 exec, 1'); o('global_store_dwordx4 v6, v[2:5], s[6:7]'); o('s_waitcnt vmcnt(0)')
sX, sY = 8, 12
sOffX, sOffY, sM0, sK = 20, 21, [22, 23], 24
sT = [25, 26, 27, 28]
sSt = [32, 33, 34]

def pair_pack(o, G, E, k, ra, rb, f=None):
    T = E + 16 * (k % 3) + 4
    for r in range(4): o(f"v_accvgpr_read_b32 v{T+r}, a{ra+r}")
    for r in range(4): o(f"v_accvgpr_read_b32 v{T+4+r}, a{rb+r}")
    return T

def gen_op(name="op_kernel", opt=None):
    A = Asm(); o = A
    common_head(o, name, 256, [(40, KA_WO), (42, KA_X)])
    srd(o, sX, 40, 0, 8 * MiB); srd(o, sY, 6, WS_O, 16 * MiB)
    o("s_and_b32 s25, s2, 7"); o("s_lshr_b32 s26, s2, 3")
    o("s_and_b32 s4, s25, 1"); o("s_lshl_b32 s4, s4, 3"); o("s_and_b32 s27, s26, 7"); o("s_add_u32 s4, s4, s27")
    o("s_lshr_b32 s5, s25, 1"); o("s_lshl_b32 s5, s5, 2"); o("s_lshr_b32 s27, s26, 3"); o("s_add_u32 s5, s5, s27")
    o(f"s_lshl_b32 s{sOffX}, s4, 7"); o(f"s_lshl_b32 s{sOffY}, s5, 13")
    G = Gemm(A, 2, 4, False, "o")
    o(f"s_mul_i32 s{sM0[0]}, s3, {G.NIX*1024}"); o(f"s_mul_i32 s{sM0[1]}, s3, {G.NIY*1024}")
    G.setup(3, 0, 2048, 0, [1, 2, 3, 4, 5, 6], sT)
    gen_loop2(G, sX, sY, sOffX, sOffY, sM0, sK, 32 * 2048, 128 * 1024, 128, f"L_{name}", K=4, R=12, sSt=sSt)
    prof_mid(o)
    E = G.vF
    o("v_and_b32 v1, 15, v0"); o("v_lshrrev_b32 v2, 4, v0"); o("v_and_b32 v3, 1, v2"); o("v_lshrrev_b32 v2, 1, v2")
    o("v_lshlrev_b32 v3, 4, v3"); o("v_lshl_add_u32 v3, v2, 3, v3")
    o("s_lshl_b32 s25, s4, 6"); o("s_and_b32 s26, s3, 1"); o("s_lshl_b32 s26, s26, 5"); o("s_add_u32 s25, s25, s26")
    o("v_add_u32 v3, s25, v3")
    o("s_lshl_b32 s25, s5, 7"); o("s_lshr_b32 s26, s3, 1"); o("s_lshl_b32 s26, s26, 6"); o("s_add_u32 s25, s25, s26")
    o("v_add_u32 v1, s25, v1")
    o("v_lshlrev_b32 v4, 11, v1"); o("v_lshl_add_u32 v4, v3, 1, v4")
    o("v_lshlrev_b32 v5, 2, v3")
    o(f"s_add_u32 s44, s6, {WS_MOD + 2*4096}"); o("s_addc_u32 s45, s7, 0")
    GA = E + 64
    o(f"global_load_dwordx4 {v(GA,4)}, v5, s[44:45]"); o(f"global_load_dwordx4 {v(GA+4,4)}, v5, s[44:45] offset:16")
    XR = E + 72
    for jy in range(4):
        o(f"v_add_u32 v6, {jy*16*2048}, v4")
        o(f"global_load_dwordx4 {v(XR+4*jy,4)}, v6, s[42:43]")
    o(f"s_add_u32 s44, s6, {WS_X1}"); o("s_addc_u32 s45, s7, 0")
    for jy in range(4):
        T = pair_pack(o, G, E, jy, G.accr(0, jy), G.accr(1, jy))
        for r in range(4): o(f"v_permlane16_swap_b32 v{T+r}, v{T+4+r}")
        if jy == 0: o("s_waitcnt vmcnt(0)")
        U = E + 48
        unpack8(o, U, XR + 4 * jy)
        for e in range(8): o(f"v_fma_f32 v{T+e}, v{T+e}, v{GA+e}, v{U+e}")
        P = T - 4
        for d in range(4): o(f"v_cvt_pk_bf16_f32 v{P+d}, v{T+2*d}, v{T+2*d+1}")
        o(f"v_add_u32 v6, {jy*16*2048}, v4")
        o(f"global_store_dwordx4 v6, {v(P,4)}, s[44:45]")
    o("s_waitcnt vmcnt(0)")
    prof_end(o, 0)
    A.label(f"L_{name}_end"); o("s_endpgm")
    return kernel_head(name) + A.finish() + kernel_desc(name, max(G.vEnd2, E + 96), G.nacc), 12 * G.SB

def gen_g1(name="g1_kernel", opt=None):
    A = Asm(); o = A
    common_head(o, name, 224, [(40, KA_W1), (42, KA_B1)])
    srd(o, sX, 40, 0, 2048 * 7168); srd(o, sY, 6, WS_H2T, 4 * MiB)
    o("s_and_b32 s25, s2, 7"); o("s_lshr_b32 s26, s2, 3")
    o("s_lshr_b32 s4, s25, 1"); o("s_mul_i32 s4, s4, 7"); o("s_lshr_b32 s27, s26, 2"); o("s_add_u32 s4, s4, s27")
    o("s_and_b32 s5, s25, 1"); o("s_lshl_b32 s5, s5, 2"); o("s_and_b32 s27, s26, 3"); o("s_add_u32 s5, s5, s27")
    o(f"s_lshl_b32 s{sOffX}, s4, 8"); o(f"s_lshl_b32 s{sOffY}, s5, 13")
    G = Gemm(A, 4, 4, False, "g")
    o(f"s_mul_i32 s{sM0[0]}, s3, {G.NIX*1024}"); o(f"s_mul_i32 s{sM0[1]}, s3, {G.NIY*1024}")
    G.setup(3, 0, 7168, 0, [1, 2, 3, 4, 5, 6], sT)
    gen_loop3(G, sX, sY, sOffX, sOffY, sM0, sK, 32 * 7168, 64 * 1024, 64, f"L_{name}", K=2, R=8)
    prof_mid(o)
    E = G.vF
    o("v_and_b32 v1, 15, v0"); o("v_lshrrev_b32 v2, 4, v0"); o("v_and_b32 v3, 1, v2"); o("v_lshrrev_b32 v2, 1, v2")
    o("v_lshlrev_b32 v4, 4, v3"); o("v_lshl_add_u32 v4, v2, 3, v4")
    o("v_lshl_or_b32 v2, v3, 1, v2")
    from k_small import gfun
    gfun(o, 3, 1, 5)
    o("v_xor_b32 v2, v2, v3"); o("v_lshl_add_u32 v2, v1, 2, v2"); o("v_lshlrev_b32 v2, 4, v2")
    o("s_lshl_b32 s25, s4, 7"); o("s_and_b32 s26, s3, 1"); o("s_lshl_b32 s26, s26, 6"); o("s_add_u32 s25, s25, s26")
    o("v_add_u32 v4, s25, v4"); o("v_lshlrev_b32 v4, 1, v4")
    BR = E + 64
    for jp in range(2): o(f"global_load_dwordx4 {v(BR+4*jp,4)}, v4, s[42:43] offset:{jp*64}")
    o("s_lshr_b32 s26, s25, 5"); o("s_lshl_b32 s26, s26, 16")
    o("s_lshl_b32 s27, s5, 3"); o("s_lshr_b32 s28, s3, 1"); o("s_lshl_b32 s28, s28, 2"); o("s_add_u32 s27, s27, s28"); o("s_lshl_b32 s27, s27, 10")
    o("s_add_u32 s26, s26, s27"); o(f"s_add_u32 s26, s26, {WS_U}")
    o("s_add_u32 s44, s6, s26"); o("s_addc_u32 s45, s7, 0")
    o("s_waitcnt vmcnt(0)")
    BF = E + 72
    for jp in range(2): unpack8(o, BF + 8 * jp, BR + 4 * jp)
    c1 = -2.0 * math.sqrt(2.0 / math.pi) * LOG2E
    o(f"s_mov_b32 s46, {fbits(0.044715)}"); o(f"s_mov_b32 s47, {fbits(c1)}")
    k = 0
    for jp in range(2):
        for jy in range(4):
            T = pair_pack(o, G, E, k, G.accr(2 * jp, jy), G.accr(2 * jp + 1, jy)); k += 1
            for r in range(4): o(f"v_permlane16_swap_b32 v{T+r}, v{T+4+r}")
            U = E + 48
            for e in range(8): o(f"v_add_f32 v{T+e}, v{T+e}, v{BF+8*jp+e}")
            for e in range(8): o(f"v_mul_f32 v{U+e}, v{T+e}, v{T+e}")
            for e in range(8): o(f"v_fma_f32 v{U+e}, v{U+e}, s46, 1.0")
            for e in range(8): o(f"v_mul_f32 v{U+e}, v{U+e}, v{T+e}")
            for e in range(8): o(f"v_mul_f32 v{U+e}, s47, v{U+e}")
            for e in range(8): o(f"v_exp_f32 v{U+e}, v{U+e}")
            for e in range(8): o(f"v_add_f32 v{U+e}, 1.0, v{U+e}")
            for e in range(8): o(f"v_rcp_f32 v{U+e}, v{U+e}")
            for e in range(8): o(f"v_mul_f32 v{T+e}, v{T+e}, v{U+e}")
            P = T - 4
            for d in range(4): o(f"v_cvt_pk_bf16_f32 v{P+d}, v{T+2*d}, v{T+2*d+1}")
            o(f"v_add_u32 v5, {jp*65536 + jy*1024}, v2")
            o(f"global_store_dwordx4 v5, {v(P,4)}, s[44:45]")
    o("s_waitcnt vmcnt(0)")
    prof_end(o, 1)
    A.label(f"L_{name}_end"); o("s_endpgm")
    return kernel_head(name) + A.finish() + kernel_desc(name, max(G.vEnd2, E + 96), G.nacc), 8 * G.SB

def gen_g2(name="g2_kernel", opt=None):
    A = Asm(); o = A
    common_head(o, name, 256, [(40, KA_W2), (42, KA_B2), (48, KA_OUT)])
    srd(o, sX, 40, 0, 3584 * 4096); srd(o, sY, 6, WS_U, 112 * 64 * 1024)
    o("s_and_b32 s25, s2, 7"); o("s_lshr_b32 s26, s2, 3")
    o("s_lshr_b32 s4, s25, 1"); o("s_lshl_b32 s4, s4, 2"); o("s_lshr_b32 s27, s26, 3"); o("s_add_u32 s4, s4, s27")
    o("s_and_b32 s5, s25, 1"); o("s_lshl_b32 s5, s5, 3"); o("s_and_b32 s27, s26, 7"); o("s_add_u32 s5, s5, s27")
    o(f"s_lshl_b32 s{sOffX}, s4, 8"); o(f"s_lshl_b32 s{sOffY}, s5, 12")
    G = Gemm(A, 4, 2, True, "h")
    o(f"s_mul_i32 s{sM0[0]}, s3, {G.NIX*1024}"); o(f"s_mul_i32 s{sM0[1]}, s3, {G.NIY*1024}")
    G.setup(3, 0, 4096, 0, [1, 2, 3, 4, 5, 6], sT)
    gen_loop2(G, sX, sY, sOffX, sOffY, sM0, sK, 32 * 4096, 64 * 1024, 112, f"L_{name}", K=4, R=12, sSt=sSt)
    prof_mid(o)
    E = G.vF
    o("v_and_b32 v1, 15, v0"); o("v_lshrrev_b32 v2, 4, v0"); o("v_and_b32 v3, 1, v2"); o("v_lshrrev_b32 v2, 1, v2")
    o("v_lshlrev_b32 v3, 4, v3"); o("v_lshl_add_u32 v3, v2, 3, v3")
    o("s_lshl_b32 s25, s5, 6"); o("s_lshr_b32 s26, s3, 1"); o("s_lshl_b32 s26, s26, 5"); o("s_add_u32 s25, s25, s26")
    o("v_add_u32 v3, s25, v3")
    o("s_lshl_b32 s25, s4, 7"); o("s_and_b32 s26, s3, 1"); o("s_lshl_b32 s26, s26, 6"); o("s_add_u32 s25, s25, s26")
    o("v_add_u32 v1, s25, v1")
    o("v_lshlrev_b32 v4, 11, v1"); o("v_lshl_add_u32 v4, v3, 1, v4")
    o("v_lshlrev_b32 v5, 2, v3")
    o(f"s_add_u32 s44, s6, {WS_MOD + 5*4096}"); o("s_addc_u32 s45, s7, 0")
    GB = E + 64
    o(f"global_load_dwordx4 {v(GB,4)}, v5, s[44:45]"); o(f"global_load_dwordx4 {v(GB+4,4)}, v5, s[44:45] offset:16")
    XR = E + 72; B2 = E + 88
    o(f"s_add_u32 s44, s6, {WS_X1}"); o("s_addc_u32 s45, s7, 0")
    o("v_lshlrev_b32 v7, 1, v1")
    for jx in range(4):
        o(f"v_add_u32 v6, {jx*16*2048}, v4")
        o(f"global_load_dwordx4 {v(XR+4*jx,4)}, v6, s[44:45]")
        o(f"global_load_ushort v{B2+jx}, v7, s[42:43] offset:{jx*32}")
    for jx in range(4):
        T = pair_pack(o, G, E, jx, G.accr(jx, 0), G.accr(jx, 1))
        for r in range(4): o(f"v_permlane16_swap_b32 v{T+r}, v{T+4+r}")
        if jx == 0: o("s_waitcnt vmcnt(0)")
        U = E + 48
        unpack8(o, U, XR + 4 * jx)
        o(f"v_lshlrev_b32 v{B2+jx}, 16, v{B2+jx}")
        for e in range(8): o(f"v_add_f32 v{T+e}, v{T+e}, v{B2+jx}")
        for e in range(8): o(f"v_fma_f32 v{T+e}, v{T+e}, v{GB+e}, v{U+e}")
        P = T - 4
        for d in range(4): o(f"v_cvt_pk_bf16_f32 v{P+d}, v{T+2*d}, v{T+2*d+1}")
        o(f"v_add_u32 v6, {jx*16*2048}, v4")
        o(f"global_store_dwordx4 v6, {v(P,4)}, s[48:49]")
    o("s_waitcnt vmcnt(0)")
    prof_end(o, 2)
    A.label(f"L_{name}_end"); o("s_endpgm")
    return kernel_head(name) + A.finish() + kernel_desc(name, max(G.vEnd2, E + 96), G.nacc), 12 * G.SB
```

```python
from asmlib import *
from layout import *
import struct, math
def fbits(x): return "0x%08x" % struct.unpack("<I", struct.pack("<f", x))[0]
LOG2E = math.log2(math.e)

def wave_sum(o, vx, vt, op="v_add_f32"):
    for ctrl in ("quad_perm:[1,0,3,2]", "quad_perm:[2,3,0,1]", "row_half_mirror", "row_mirror"):
        o(f"{op}_dpp v{vx}, v{vx}, v{vx} {ctrl} row_mask:0xf bank_mask:0xf")
    for sw in ("16", "32"):
        o(f"v_mov_b32 v{vt}, v{vx}")
        o(f"v_permlane{sw}_swap_b32 v{vx}, v{vt}")
        o(f"{op} v{vx}, v{vx}, v{vt}")

def gen_pre(name="pre_kernel"):
    A = Asm(); o = A
    o("s_cmp_ge_u32 s2, 256"); o(f"s_cbranch_scc1 L_{name}_end")
    o(f"s_load_dwordx2 s[4:5], s[0:1], {KA_WS}")
    o(f"s_load_dwordx2 s[6:7], s[0:1], {KA_C}")
    o(f"s_load_dwordx2 s[8:9], s[0:1], {KA_WMOD}")
    o(f"s_load_dwordx2 s[10:11], s[0:1], {KA_MEM0}")
    o("v_lshrrev_b32 v1, 6, v0"); o("v_and_b32 v2, 63, v0"); o("v_readfirstlane_b32 s3, v1")
    for r in range(4): o(f"v_mov_b32 v{8+r}, -1")
    o("v_lshlrev_b32 v3, 4, v0")
    o("s_waitcnt lgkmcnt(0)")
    o("v_lshlrev_b32 v4, 3, v0")
    o("global_load_dwordx2 v[12:13], v4, s[6:7]")
    o("s_lshl_b32 s12, s2, 15"); o(f"s_add_u32 s12, s12, {WS_PARTF}")
    o("s_add_u32 s14, s4, s12"); o("s_addc_u32 s15, s5, 0")
    for k in range(8):
        o(f"global_store_dwordx4 v3, v[8:11], s[14:15]" + (f" offset:0" if k == 0 else ""))
        o("s_add_u32 s14, s14, 4096"); o("s_addc_u32 s15, s15, 0")
    o("s_cmp_ge_u32 s2, 128"); o(f"s_cbranch_scc1 L_{name}_f2")
    o("s_lshl_b32 s12, s2, 12")
    o(f"s_add_u32 s13, s12, {WS_RQK}"); o("s_add_u32 s14, s4, s13"); o("s_addc_u32 s15, s5, 0")
    o("global_store_dwordx4 v3, v[8:11], s[14:15]")
    o(f"s_add_u32 s13, s12, {WS_RMEM}"); o("s_add_u32 s14, s4, s13"); o("s_addc_u32 s15, s5, 0")
    o("s_cmp_lt_u32 s2, 32"); o(f"s_cbranch_scc1 L_{name}_img")
    o("global_store_dwordx4 v3, v[8:11], s[14:15]")
    o(f"s_branch L_{name}_f3")
    A.label(f"L_{name}_img")
    o("s_and_b32 s16, s2, 3"); o("s_lshl_b32 s16, s16, 2"); o("s_add_u32 s16, s16, s3"); o("s_lshl_b32 s16, s16, 7")
    o("v_and_b32 v5, 7, v2"); o("v_lshlrev_b32 v5, 11, v5")
    o("v_bfe_u32 v6, v2, 3, 1"); o("v_lshl_add_u32 v5, v6, 6, v5")
    o("v_lshrrev_b32 v6, 4, v2"); o("v_lshl_add_u32 v5, v6, 4, v5")
    o("v_add_u32 v5, s16, v5")
    o("global_load_dwordx4 v[16:19], v5, s[10:11]")
    o("s_waitcnt vmcnt(0)")
    o("global_store_dwordx4 v3, v[16:19], s[14:15]")
    o(f"s_branch L_{name}_f3")
    A.label(f"L_{name}_f2")
    o("s_cmp_ge_u32 s2, 192"); o(f"s_cbranch_scc1 L_{name}_f3")
    o("s_sub_u32 s12, s2, 128"); o("s_lshl_b32 s12, s12, 12")
    o(f"s_add_u32 s13, s12, {WS_RV}"); o("s_add_u32 s14, s4, s13"); o("s_addc_u32 s15, s5, 0")
    o("global_store_dwordx4 v3, v[8:11], s[14:15]")
    A.label(f"L_{name}_f3")
    o("s_cmp_lt_u32 s2, 192"); o(f"s_cbranch_scc1 L_{name}_gemv")
    o("s_cmp_ge_u32 s2, 208"); o(f"s_cbranch_scc1 L_{name}_done")
    o("s_sub_u32 s12, s2, 192"); o("s_lshl_b32 s12, s12, 12"); o(f"s_add_u32 s12, s12, {WS_CNT}")
    o("s_add_u32 s14, s4, s12"); o("s_addc_u32 s15, s5, 0")
    for r in range(4): o(f"v_mov_b32 v{8+r}, 0")
    o("global_store_dwordx4 v3, v[8:11], s[14:15]")
    o(f"s_branch L_{name}_done")
    A.label(f"L_{name}_gemv")
    o("s_waitcnt vmcnt(0)")
    o("v_lshlrev_b32 v14, 16, v12"); o("v_and_b32 v15, 0xffff0000, v12"); o("v_lshlrev_b32 v16, 16, v13"); o("v_and_b32 v17, 0xffff0000, v13")
    o(f"s_mov_b32 s12, {fbits(-LOG2E)}")
    for r in range(4):
        o(f"v_mul_f32 v{20+r}, s12, v{14+r}")
        o(f"v_exp_f32 v{20+r}, v{20+r}")
        o(f"v_add_f32 v{20+r}, 1.0, v{20+r}")
        o(f"v_rcp_f32 v{20+r}, v{20+r}")
        o(f"v_mul_f32 v{20+r}, v{14+r}, v{20+r}")
    o("v_cvt_pk_bf16_f32 v24, v20, v21"); o("v_cvt_pk_bf16_f32 v25, v22, v23")
    o("v_lshlrev_b32 v20, 16, v24"); o("v_and_b32 v21, 0xffff0000, v24"); o("v_lshlrev_b32 v22, 16, v25"); o("v_and_b32 v23, 0xffff0000, v25")
    o("v_lshlrev_b32 v4, 4, v0")
    o("ds_write_b128 v4, v[20:23]")
    o("s_waitcnt lgkmcnt(0)"); o("s_barrier")
    o("v_lshrrev_b32 v5, 2, v2"); o("s_lshl_b32 s12, s3, 8"); o("v_add_u32 v5, s12, v5")
    o("v_lshlrev_b32 v6, 2, v5")
    o("s_mov_b32 s13, 12288"); o("v_mul_lo_u32 v7, v5, s13")
    o("v_and_b32 v26, 3, v2"); o("v_lshl_add_u32 v7, v26, 4, v7")
    o("s_lshl_b32 s12, s2, 6"); o("v_add_u32 v7, s12, v7")
    W = 32; Cc = 96; AC = 112
    for it in range(16):
        o(f"global_load_dwordx4 {v(W+4*it,4)}, v7, s[8:9]")
        o(f"v_add_u32 v7, {16*12288}, v7")
        o(f"ds_read_b32 v{Cc+it}, v6 offset:{it*64}")
    for e in range(8): o(f"v_mov_b32 v{AC+e}, 0")
    o("s_waitcnt lgkmcnt(0)")
    for it in range(16):
        o(f"s_waitcnt vmcnt({15-it})")
        for d in range(4):
            o(f"v_lshlrev_b32 v27, 16, v{W+4*it+d}")
            o(f"v_and_b32 v28, 0xffff0000, v{W+4*it+d}")
            o(f"v_fmac_f32 v{AC+2*d}, v27, v{Cc+it}")
            o(f"v_fmac_f32 v{AC+2*d+1}, v28, v{Cc+it}")
    for e in range(8):
        x = AC + e
        o(f"v_add_f32_dpp v{x}, v{x}, v{x} row_ror:4 row_mask:0xf bank_mask:0xf")
        o(f"v_add_f32_dpp v{x}, v{x}, v{x} row_ror:8 row_mask:0xf bank_mask:0xf")
        for sw in ("16", "32"):
            o(f"v_mov_b32 v27, v{x}")
            o(f"v_permlane{sw}_swap_b32 v{x}, v27")
            o(f"v_add_f32 v{x}, v{x}, v27")
    o("s_lshl_b32 s12, s3, 7"); o("v_lshlrev_b32 v5, 5, v26"); o("v_add_u32 v5, s12, v5")
    o("s_mov_b64 exec, 0xf")
    o(f"ds_write_b128 v5, {v(AC,4)} offset:4096"); o(f"ds_write_b128 v5, {v(AC+4,4)} offset:4112")
    o("s_mov_b64 exec, -1")
    o("s_waitcnt lgkmcnt(0)"); o("s_barrier")
    o("s_cmp_lg_u32 s3, 0"); o(f"s_cbranch_scc1 L_{name}_done")
    o("v_lshlrev_b32 v5, 2, v2")
    o("s_mov_b64 exec, 0xffffffff")
    for w in range(4): o(f"ds_read_b32 v{32+w}, v5 offset:{4096+w*128}")
    o("s_waitcnt lgkmcnt(0)")
    o("v_add_f32 v32, v32, v33"); o("v_add_f32 v34, v34, v35"); o("v_add_f32 v32, v32, v34")
    o("v_cvt_pk_bf16_f32 v32, v32, v32"); o("v_lshlrev_b32 v32, 16, v32")
    o("s_lshl_b32 s12, s2, 7"); o(f"s_add_u32 s12, s12, {WS_MOD}"); o("v_add_u32 v5, s12, v5")
    o("global_store_dword v5, v32, s[4:5]")
    A.label(f"L_{name}_done")
    o("s_waitcnt vmcnt(0)")
    A.label(f"L_{name}_end"); o("s_endpgm")
    return kernel_head(name) + A.finish() + kernel_desc(name, 128)

def ln_rows(o, X, nrows, vt, EPS):
    for b in X:
        sm, t = vt[0], vt[1]
        o(f"v_add_f32 v{sm}, v{b}, v{b+1}")
        for e in range(2, 16): o(f"v_add_f32 v{sm}, v{sm}, v{b+e}")
        wave_sum(o, sm, t)
        o(f"v_mul_f32 v{sm}, {fbits(1.0/1024)}, v{sm}")
        for e in range(16): o(f"v_sub_f32 v{b+e}, v{b+e}, v{sm}")
        o(f"v_mul_f32 v{sm}, v{b}, v{b}")
        for e in range(1, 16): o(f"v_fmac_f32 v{sm}, v{b+e}, v{b+e}")
        wave_sum(o, sm, t)
        o(f"v_mov_b32 v{t}, {fbits(EPS)}")
        o(f"v_fmac_f32 v{t}, {fbits(1.0/1024)}, v{sm}")
        o(f"v_rsq_f32 v{t}, v{t}")
        for e in range(16): o(f"v_mul_f32 v{b+e}, v{b+e}, v{t}")

def unpack8(o, dst, src):
    for d in range(4):
        o(f"v_lshlrev_b32 v{dst+2*d}, 16, v{src+d}")
        o(f"v_and_b32 v{dst+2*d+1}, 0xffff0000, v{src+d}")

def gfun(o, dst, r, t):
    o(f"v_lshrrev_b32 v{dst}, 2, v{r}")
    o(f"v_lshrrev_b32 v{t}, 1, v{dst}")
    o(f"v_and_b32 v{dst}, 1, v{dst}")
    o(f"v_xor_b32 v{dst}, v{dst}, v{t}")
    o(f"v_lshl_or_b32 v{dst}, v{dst}, 1, v{t}")

def gen_ln1(name="ln1_kernel"):
    A = Asm(); o = A
    o("s_cmp_ge_u32 s2, 256"); o(f"s_cbranch_scc1 L_{name}_end")
    o(f"s_load_dwordx2 s[4:5], s[0:1], {KA_WS}")
    o(f"s_load_dwordx2 s[6:7], s[0:1], {KA_X}")
    o("v_lshrrev_b32 v1, 6, v0"); o("v_and_b32 v0, 63, v0"); o("v_readfirstlane_b32 s3, v1")
    o("s_lshl_b32 s8, s2, 3"); o("s_lshl_b32 s9, s3, 1"); o("s_add_u32 s8, s8, s9")
    o("v_lshlrev_b32 v2, 4, v0")
    o("s_waitcnt lgkmcnt(0)")
    o("s_lshl_b32 s9, s8, 11"); o("s_add_u32 s10, s6, s9"); o("s_addc_u32 s11, s7, 0")
    RX = [8, 16]
    for r in range(2):
        o(f"global_load_dwordx4 {v(8+8*r,4)}, v2, s[10:11] offset:{r*2048}")
        o(f"global_load_dwordx4 {v(12+8*r,4)}, v2, s[10:11] offset:{r*2048+1024}")
    o("v_lshlrev_b32 v3, 5, v0")
    o(f"s_add_u32 s12, s4, {WS_MOD}"); o("s_addc_u32 s13, s5, 0")
    SA, CA = 64, 80
    for h in range(2):
        for q in range(2):
            o(f"global_load_dwordx4 {v(SA+8*h+4*q,4)}, v3, s[12:13] offset:{h*2048+q*16}")
    o("s_add_u32 s12, s12, 4096"); o("s_addc_u32 s13, s13, 0")
    for h in range(2):
        for q in range(2):
            o(f"global_load_dwordx4 {v(CA+8*h+4*q,4)}, v3, s[12:13] offset:{h*2048+q*16}")
    o("s_waitcnt vmcnt(8)")
    X = [32, 48]
    for r in range(2):
        unpack8(o, X[r], 8 + 8 * r); unpack8(o, X[r] + 8, 12 + 8 * r)
    ln_rows(o, X, 2, [4, 5], 1e-5)
    o("s_waitcnt vmcnt(0)")
    for e in range(16): o(f"v_add_f32 v{CA+e}, 1.0, v{CA+e}")
    for r in range(2):
        for e in range(16): o(f"v_fma_f32 v{X[r]+e}, v{X[r]+e}, v{CA+e}, v{SA+e}")
        for h in range(2):
            for d in range(4): o(f"v_cvt_pk_bf16_f32 v{8+8*r+4*h+d}, v{X[r]+8*h+2*d}, v{X[r]+8*h+2*d+1}")
        o(f"s_add_u32 s14, s8, {r}"); o("s_lshr_b32 s15, s14, 4"); o("s_and_b32 s14, s14, 15")
        o("s_lshr_b32 s16, s14, 2"); o("s_lshr_b32 s17, s16, 1"); o("s_and_b32 s16, s16, 1"); o("s_xor_b32 s16, s16, s17"); o("s_lshl_b32 s16, s16, 1"); o("s_or_b32 s16, s16, s17")
        o("v_and_b32 v4, 3, v0"); o("v_xor_b32 v4, s16, v4"); o("v_lshlrev_b32 v4, 4, v4")
        o("v_lshrrev_b32 v5, 2, v0"); o("v_lshl_add_u32 v4, v5, 17, v4")
        o("s_lshl_b32 s15, s15, 10"); o("s_lshl_b32 s14, s14, 6"); o("s_add_u32 s15, s15, s14"); o(f"s_add_u32 s15, s15, {WS_H}")
        o("v_add_u32 v4, s15, v4")
        o(f"global_store_dwordx4 v4, {v(8+8*r,4)}, s[4:5]")
        o(f"v_add_u32 v4, {16*131072}, v4")
        o(f"global_store_dwordx4 v4, {v(12+8*r,4)}, s[4:5]")
    o("s_waitcnt vmcnt(0)")
    A.label(f"L_{name}_end"); o("s_endpgm")
    return kernel_head(name) + A.finish() + kernel_desc(name, 96)

def gen_ln2(name="ln2_kernel"):
    A = Asm(); o = A
    o("s_cmp_ge_u32 s2, 64"); o(f"s_cbranch_scc1 L_{name}_end")
    o(f"s_load_dwordx2 s[4:5], s[0:1], {KA_WS}")
    o("v_lshrrev_b32 v1, 6, v0"); o("v_and_b32 v0, 63, v0"); o("v_readfirstlane_b32 s3, v1")
    o("s_lshl_b32 s8, s2, 5"); o("s_lshl_b32 s9, s3, 1"); o("s_add_u32 s8, s8, s9")
    o("v_lshlrev_b32 v2, 4, v0")
    o("s_waitcnt lgkmcnt(0)")
    o("s_lshl_b32 s9, s8, 11"); o(f"s_add_u32 s9, s9, {WS_X1}"); o("s_add_u32 s10, s4, s9"); o("s_addc_u32 s11, s5, 0")
    for r in range(2):
        o(f"global_load_dwordx4 {v(8+8*r,4)}, v2, s[10:11] offset:{r*2048}")
        o(f"global_load_dwordx4 {v(12+8*r,4)}, v2, s[10:11] offset:{r*2048+1024}")
    o("v_lshlrev_b32 v3, 5, v0")
    o(f"s_add_u32 s12, s4, {WS_MOD + 3*4096}"); o("s_addc_u32 s13, s5, 0")
    SA, CA = 64, 80
    for h in range(2):
        for q in range(2):
            o(f"global_load_dwordx4 {v(SA+8*h+4*q,4)}, v3, s[12:13] offset:{h*2048+q*16}")
    o("s_add_u32 s12, s12, 4096"); o("s_addc_u32 s13, s13, 0")
    for h in range(2):
        for q in range(2):
            o(f"global_load_dwordx4 {v(CA+8*h+4*q,4)}, v3, s[12:13] offset:{h*2048+q*16}")
    o("s_waitcnt vmcnt(8)")
    X = [32, 48]
    for r in range(2):
        unpack8(o, X[r], 8 + 8 * r); unpack8(o, X[r] + 8, 12 + 8 * r)
    ln_rows(o, X, 2, [4, 5], 1e-5)
    o("s_waitcnt vmcnt(0)")
    for e in range(16): o(f"v_add_f32 v{CA+e}, 1.0, v{CA+e}")
    RS = 2048 + 64
    o(f"s_lshl_b32 s9, s3, 1"); o(f"s_mul_i32 s9, s9, {RS}")
    o("v_add_u32 v4, s9, v2")
    for r in range(2):
        for e in range(16): o(f"v_fma_f32 v{X[r]+e}, v{X[r]+e}, v{CA+e}, v{SA+e}")
        for h in range(2):
            for d in range(4): o(f"v_cvt_pk_bf16_f32 v{8+8*r+4*h+d}, v{X[r]+8*h+2*d}, v{X[r]+8*h+2*d+1}")
            o(f"ds_write_b128 v4, {v(8+8*r+4*h,4)} offset:{r*RS + h*1024}")
    o("s_waitcnt lgkmcnt(0)"); o("s_barrier")
    o("v_and_b32 v5, 15, v0"); o("v_lshrrev_b32 v6, 4, v0")
    o("v_lshrrev_b32 v7, 2, v5"); o("v_lshl_add_u32 v7, v6, 3, v7"); o(f"s_mov_b32 s9, {RS}"); o("v_mul_lo_u32 v7, v7, s9")
    o("v_and_b32 v24, 3, v5"); o("v_lshl_add_u32 v7, v24, 3, v7")
    o("s_lshl_b32 s9, s3, 7"); o("v_add_u32 v7, s9, v7")
    for k in range(4):
        o(f"ds_read_b64_tr_b16 {v(8+4*k,2)}, v7 offset:{k*32}")
        o(f"ds_read_b64_tr_b16 {v(10+4*k,2)}, v7 offset:{k*32+4*RS}")
    gfun(o, 24, 5, 25)
    o("v_xor_b32 v24, v24, v6"); o("v_lshl_add_u32 v24, v5, 2, v24"); o("v_lshlrev_b32 v24, 4, v24")
    o("s_lshl_b32 s9, s2, 16"); o("s_lshl_b32 s14, s3, 12"); o("s_add_u32 s9, s9, s14"); o(f"s_add_u32 s9, s9, {WS_H2T}")
    o("v_add_u32 v24, s9, v24")
    o("s_waitcnt lgkmcnt(0)")
    for k in range(4):
        o(f"global_store_dwordx4 v24, {v(8+4*k,4)}, s[4:5] offset:{k*1024}")
    o("s_waitcnt vmcnt(0)")
    A.label(f"L_{name}_end"); o("s_endpgm")
    return kernel_head(name) + A.finish() + kernel_desc(name, 96)
```

```python
MiB = 1 << 20
WS_MOD   = 0
WS_H     = 1 * MiB
WS_Q     = 8 * MiB
WS_K     = 24 * MiB
WS_VT    = 40 * MiB
WS_KM    = 56 * MiB
WS_VM    = 60 * MiB
WS_O     = 64 * MiB
WS_X1    = 80 * MiB
WS_H2T   = 84 * MiB
WS_U     = 88 * MiB
WS_RMEM  = 96 * MiB
WS_RQK   = 97 * MiB
WS_RV    = 98 * MiB
WS_RPART = 99 * MiB
WS_PROF  = 100 * MiB
WS_PARTF = 112 * MiB
KA_X, KA_MEM0, KA_WQ, KA_WK, KA_WV, KA_WO, KA_SEG, KA_BX, KA_W1, KA_B1, KA_W2, KA_B2, KA_C, KA_WMOD, KA_OUT, KA_DBG, KA_WS = [8 * i for i in range(17)]
WS_MEMF = 120 * MiB
WS_CNT = 124 * MiB
CNT_KV = 0
CNT_Q = 8192
CNT_REC = 16384
CNT_ATT = 24576 + 8192
CNT_OP = CNT_ATT + 2048
CNT_LN = CNT_OP + 2048
EC_MODP, EC_FILL, EC_LN1, EC_KVH0, EC_KVH1, EC_SLOW = 8, 9, 10, 18, 26, 40
WS_MODP = 128 * 1024
EC_FILL2 = 34
```

```python
from asmlib import *
from layout import *
from gemm import Gemm, gen_loop
from k_qkv import srd
import rec12 as rec
import re

def qkv_tile(A, NY, swap, lab, sW, sCt, sTok0, opt, sig_setup, dep_wait=None):
    o = A
    sX, sY, sO = 8, 12, 16
    sOffX, sOffY, sM0, sK = 20, 21, [22, 23], 24
    sT = [25, 26, 27, 28]
    G = Gemm(A, 8, NY, swap, "q")
    o(f"s_and_b32 s{sT[1]}, s{sCt}, 15")
    o(f"s_lshl_b32 s{sOffX}, s{sT[1]}, 9")
    o(f"s_lshl_b32 s{sOffY}, s{sTok0}, 6")
    o(f"s_mul_i32 s{sM0[0]}, s{sW}, {G.NIX*1024}"); o(f"s_mul_i32 s{sM0[1]}, s{sW}, {G.NIY*1024}")
    G.setup(sW, 0, 8192, 0, [1, 2, 3, 4, 5, 6], sT)
    gen_loop(G, sX, sY, sOffX, sOffY, sM0, sK, 32 * 8192, 128 * 1024, 32, lab, opt=opt, sSt=[32, 33, 34], dep_wait=dep_wait)
    E = G.vF; vLo = 1
    o(f"s_and_b32 s{sT[0]}, s{sCt}, 15"); o(f"s_lshl_b32 s{sT[0]}, s{sT[0]}, 1")
    o(f"s_and_b32 s{sT[1]}, s{sW}, 1"); o(f"s_add_u32 s{sT[0]}, s{sT[0]}, s{sT[1]}")
    o(f"s_lshr_b32 s{sT[1]}, s{sTok0}, 5"); o(f"s_lshr_b32 s{sT[2]}, s{sW}, 1"); o(f"s_mul_i32 s{sT[2]}, s{sT[2]}, {NY//2}")
    o(f"s_add_u32 s{sT[1]}, s{sT[1]}, s{sT[2]}")
    o(f"s_lshl_b32 s{sT[1]}, s{sT[1]}, 5"); o(f"s_add_u32 s{sT[0]}, s{sT[0]}, s{sT[1]}")
    o(f"s_lshl_b32 s{sT[0]}, s{sT[0]}, 13")
    def conv(P, T, ra, rb):
        for r in range(4): o(f"v_accvgpr_read_b32 v{T+r}, a{ra+r}")
        for r in range(4): o(f"v_accvgpr_read_b32 v{T+4+r}, a{rb+r}")
        o(f"v_cvt_pk_bf16_f32 v{P}, v{T}, v{T+1}"); o(f"v_cvt_pk_bf16_f32 v{P+1}, v{T+2}, v{T+3}")
        o(f"v_cvt_pk_bf16_f32 v{P+2}, v{T+4}, v{T+5}"); o(f"v_cvt_pk_bf16_f32 v{P+3}, v{T+6}, v{T+7}")
    k = 0
    if not swap:
        o(f"v_lshrrev_b32 v2, 4, v0")
        o(f"v_and_b32 v3, 1, v2"); o(f"v_lshrrev_b32 v2, 1, v2")
        o(f"v_lshl_or_b32 v2, v3, 1, v2")
        o(f"v_and_b32 v3, 15, v0")
        o(f"v_lshl_or_b32 v2, v2, 4, v3")
        o(f"v_lshlrev_b32 v{vLo}, 4, v2")
        for jy in range(NY):
            o(f"s_add_u32 s{sT[1]}, s{sT[0]}, {(jy >> 1) * 262144 + (jy & 1) * 4096}")
            for u in range(4):
                P = E + 12 * (k % 4); k += 1
                conv(P, P + 4, G.accr(2 * u, jy), G.accr(2 * u + 1, jy))
                o(f"v_permlane16_swap_b32 v{P}, v{P+2}"); o(f"v_permlane16_swap_b32 v{P+1}, v{P+3}")
                o(f"buffer_store_dwordx4 {v(P,4)}, v{vLo}, {s(sO,4)}, s{sT[1]} offen offset:{u*1024} sc1")
    else:
        o(f"v_lshlrev_b32 v{vLo}, 4, v0")
        for jp in range(NY // 2):
            for half in range(2):
                o(f"s_add_u32 s{sT[1]}, s{sT[0]}, {jp*262144 + half*4096}")
                for tt in range(4):
                    P = E + 12 * (k % 4); k += 1
                    conv(P, P + 4, G.accr(half * 4 + tt, 2 * jp), G.accr(half * 4 + tt, 2 * jp + 1))
                    o(f"buffer_store_dwordx4 {v(P,4)}, v{vLo}, {s(sO,4)}, s{sT[1]} offen offset:{tt*1024} sc1")
    o("s_waitcnt vmcnt(0)")
    o("s_barrier")
    return G

def gen_bulk(opt, place):
    A = Asm(); o = A
    sW, sXb, sI = 3, 4, 5
    sWS = 6
    sCt, sTok, sRound, sCntOff = 36, 37, 38, 39
    sP = 40; sCNT = 42
    o(f"s_load_dwordx2 {s(sWS,2)}, s[0:1], {KA_WS}")
    o("s_waitcnt lgkmcnt(0)")
    o(f"s_add_u32 s{sCNT}, s{sWS}, {WS_CNT}"); o(f"s_addc_u32 s{sCNT+1}, s{sWS+1}, 0")
    srd(o, 12, sWS, WS_H, 4 * MiB)
    o(f"s_mov_b32 s{sRound}, 0")
    A.label("L_task")
    t0, t1, t2 = 44, 45, 46
    o(f"s_lshl_b32 s{t0}, s{sXb}, 2"); o(f"s_and_b32 s{t1}, s{sI}, 3"); o(f"s_add_u32 s{t0}, s{t0}, s{t1}"); o(f"s_add_u32 s{t0}, s{t0}, 16")
    o(f"s_lshl_b32 s{t1}, s{sXb}, 1"); o(f"s_and_b32 s{t2}, s{sI}, 1"); o(f"s_add_u32 s{t1}, s{t1}, s{t2}")
    o(f"s_lshr_b32 s{t2}, s{sI}, 2")
    o(f"s_cmp_eq_u32 s{sRound}, 0"); o("s_cbranch_scc0 L_r1")
    o(f"s_mov_b32 s{sCt}, s{t0}"); o(f"s_lshl_b32 s{sTok}, s{t2}, 6"); o("s_branch L_dec")
    A.label("L_r1")
    o(f"s_cmp_eq_u32 s{sRound}, 1"); o("s_cbranch_scc0 L_r2")
    o(f"s_mov_b32 s{sCt}, s{t0}"); o(f"s_add_u32 s{sTok}, s{t2}, 1"); o(f"s_lshl_b32 s{sTok}, s{sTok}, 8"); o("s_branch L_dec")
    A.label("L_r2")
    o(f"s_cmp_eq_u32 s{sRound}, 2"); o("s_cbranch_scc0 L_r3")
    o(f"s_cmp_lt_u32 s{sI}, 12"); o("s_cbranch_scc0 L_r2q")
    o(f"s_mov_b32 s{sCt}, s{t0}"); o(f"s_add_u32 s{sTok}, s{t2}, 5"); o(f"s_lshl_b32 s{sTok}, s{sTok}, 8"); o("s_branch L_dec")
    A.label("L_r2q")
    o(f"s_mov_b32 s{sCt}, s{t1}"); o(f"s_sub_u32 s{sTok}, s{sI}, 12"); o(f"s_lshr_b32 s{sTok}, s{sTok}, 1"); o(f"s_lshl_b32 s{sTok}, s{sTok}, 8"); o("s_branch L_dec")
    A.label("L_r3")
    o(f"s_cmp_eq_u32 s{sRound}, 3"); o("s_cbranch_scc0 L_bulk_done")
    o(f"s_cmp_lt_u32 s{sI}, 12"); o("s_cbranch_scc0 L_bulk_done")
    o(f"s_mov_b32 s{sCt}, s{t1}"); o(f"s_lshr_b32 s{sTok}, s{sI}, 1"); o(f"s_add_u32 s{sTok}, s{sTok}, 2"); o(f"s_lshl_b32 s{sTok}, s{sTok}, 8")
    A.label("L_dec")
    o(f"s_lshr_b32 s{t0}, s{sTok}, 8")
    o(f"s_lshl_b32 s{t1}, s{t0}, 3"); o(f"s_and_b32 s{t2}, s{sCt}, 15"); o(f"s_lshr_b32 s{t2}, s{t2}, 1"); o(f"s_add_u32 s{t1}, s{t1}, s{t2}"); o(f"s_lshl_b32 s{t1}, s{t1}, 7")
    o(f"s_lshl_b32 s{t0}, s{t0}, 7"); o(f"s_add_u32 s{t0}, s{t0}, {CNT_Q}")
    o(f"s_cmp_lt_u32 s{sCt}, 16"); o(f"s_cselect_b32 s{sCntOff}, s{t0}, s{t1}")
    o(f"s_lshr_b32 s{t0}, s{sCt}, 4")
    o(f"s_lshl_b32 s{t1}, s{t0}, 3")
    o(f"s_add_u32 s{sP}, s0, s{t1}"); o(f"s_addc_u32 s{sP+1}, s1, 0")
    o(f"s_load_dwordx2 {s(sP,2)}, {s(sP,2)}, {KA_WQ}")
    o(f"s_lshl_b32 s{t1}, s{t0}, 24"); o(f"s_add_u32 s{t1}, s{t1}, {WS_Q}")
    o(f"s_add_u32 s16, s{sWS}, s{t1}"); o(f"s_addc_u32 s17, s{sWS+1}, 0"); o("s_and_b32 s17, s17, 0xffff")
    o(f"s_mov_b32 s18, {16*MiB}"); o("s_mov_b32 s19, 0x00020000")
    o("s_waitcnt lgkmcnt(0)")
    srd(o, 8, sP, 0, 8 * MiB)
    o(f"s_cmp_eq_u32 s{sRound}, 0"); o("s_cbranch_scc1 L_small")
    o(f"s_cmp_ge_u32 s{sCt}, 32"); o("s_cbranch_scc1 L_bigv")
    qkv_tile(A, 8, False, "L_gA", sW, sCt, sTok, opt, None); o("s_branch L_sig")
    A.label("L_bigv")
    qkv_tile(A, 8, True, "L_gB", sW, sCt, sTok, opt, None); o("s_branch L_sig")
    A.label("L_small")
    o(f"s_cmp_ge_u32 s{sCt}, 32"); o("s_cbranch_scc1 L_smallv")
    qkv_tile(A, 2, False, "L_gC", sW, sCt, sTok, opt, None); o("s_branch L_sig")
    A.label("L_smallv")
    qkv_tile(A, 2, True, "L_gD", sW, sCt, sTok, opt, None)
    A.label("L_sig")
    o(f"s_cmp_lg_u32 s{sW}, 0"); o("s_cbranch_scc1 L_nosig")
    o(f"v_mov_b32 v2, s{sCntOff}"); o("v_mov_b32 v3, 1")
    o("s_mov_b64 exec, 1")
    o(f"global_atomic_add v2, v3, {s(sCNT,2)}")
    o("s_mov_b64 exec, -1")
    A.label("L_nosig")
    o(f"s_add_u32 s{sRound}, s{sRound}, 1")
    o("s_branch L_task")
    A.label("L_bulk_done")
    o("s_waitcnt vmcnt(0)")
    o("s_endpgm")
    return re.sub(r"\bL_", "B_L_", A.finish())

def gen_mega(name="mega_kernel", place=8, recopt=None, opt=None):
    recopt = recopt or dict(E2_DEPTH=2, E2_SP=3, E2_DELAY=2)
    opt = opt or {"S": 4}
    A = Asm(); o = A
    o("s_cmp_ge_u32 s2, 256"); o("s_cbranch_scc1 M_end")
    o(f"s_load_dwordx2 s[70:71], s[0:1], {KA_DBG}")
    o("s_memrealtime s[92:93]")
    o("v_lshrrev_b32 v1, 6, v0"); o("v_and_b32 v0, 63, v0"); o("v_readfirstlane_b32 s3, v1")
    o("s_getreg_b32 s4, hwreg(HW_REG_XCC_ID, 0, 4)")
    o("s_and_b32 s4, s4, 7")
    o("s_waitcnt lgkmcnt(0)")
    o("s_cmp_lg_u32 s3, 0"); o("s_cbranch_scc1 M_w")
    o("s_lshl_b32 s12, s4, 2"); o("v_mov_b32 v1, s12"); o("v_mov_b32 v2, 1")
    o("s_mov_b64 exec, 1")
    o("global_atomic_add v3, v1, v2, s[70:71] sc0")
    o("s_waitcnt vmcnt(0)")
    o("v_readfirstlane_b32 s5, v3")
    o("s_mov_b64 exec, 0xff")
    o("v_lshlrev_b32 v1, 2, v0")
    o("s_mov_b32 s13, 0x200000")
    A.label("M_poll")
    o("global_load_dword v4, v1, s[70:71] sc1")
    o("s_waitcnt vmcnt(0)")
    o("v_mov_b32 v5, v4")
    o("v_add_u32_dpp v5, v5, v5 quad_perm:[1,0,3,2] row_mask:0xf bank_mask:0xf")
    o("v_add_u32_dpp v5, v5, v5 quad_perm:[2,3,0,1] row_mask:0xf bank_mask:0xf")
    o("v_add_u32_dpp v5, v5, v5 row_half_mirror row_mask:0xf bank_mask:0xf")
    o("v_readfirstlane_b32 s14, v5")
    o("s_cmp_ge_u32 s14, 256"); o("s_cbranch_scc1 M_all")
    o("s_sleep 2")
    o("s_sub_u32 s13, s13, 1"); o("s_cbranch_scc0 M_poll")
    A.label("M_all")
    o("v_cmp_ne_u32 vcc, 32, v4")
    o("s_nop 1")
    o("s_cmp_eq_u64 vcc, 0")
    o("s_cselect_b32 s15, 1, 0")
    o("s_mov_b64 exec, 1")
    o("v_mov_b32 v6, s5"); o("v_mov_b32 v7, s15"); o("v_mov_b32 v1, 0")
    o("ds_write_b64 v1, v[6:7]")
    o("s_waitcnt lgkmcnt(0)")
    o("s_mov_b64 exec, -1")
    A.label("M_w")
    o("s_barrier")
    o("v_mov_b32 v1, 0")
    o("ds_read_b64 v[6:7], v1")
    o("s_waitcnt lgkmcnt(0)")
    o("v_readfirstlane_b32 s5, v6"); o("v_readfirstlane_b32 s15, v7")
    o("s_barrier")
    o("s_cmp_eq_u32 s15, 0"); o("s_cbranch_scc1 M_slow")
    if place == 8:
        o("s_cmp_lt_u32 s5, 16"); o("s_cbranch_scc1 M_rec_fast")
        o("s_sub_u32 s5, s5, 16"); o("s_branch M_bulk")
    else:
        o("s_cmp_lt_u32 s4, 4"); o("s_cbranch_scc0 M_b4")
        o("s_lshl_b32 s4, s4, 1"); o("s_lshr_b32 s12, s5, 4"); o("s_add_u32 s4, s4, s12"); o("s_and_b32 s5, s5, 15"); o("s_branch M_rec_fast")
        A.label("M_b4")
        o("s_sub_u32 s4, s4, 4"); o("s_lshl_b32 s4, s4, 1"); o("s_lshr_b32 s12, s5, 4"); o("s_add_u32 s4, s4, s12"); o("s_and_b32 s5, s5, 15"); o("s_branch M_bulk")
    A.label("M_slow")
    o("s_lshr_b32 s4, s2, 4"); o("s_and_b32 s4, s4, 7"); o("s_and_b32 s5, s2, 15")
    o("s_cmp_lt_u32 s2, 128"); o("s_cbranch_scc1 M_rec_slow")
    o("s_branch M_bulk")
    A.label("M_end"); o("s_endpgm")
    t = A.finish()
    t += "M_bulk:\n" + gen_bulk(opt, place)
    t += "M_rec_fast:\n" + rec.gen_rec(embedded=True, pfx="RF_", fast=True, KVCHK=True, **recopt)
    t += "M_rec_slow:\n" + rec.gen_rec(embedded=True, pfx="RS_", fast=False, KVCHK=True, **recopt)
    return kernel_head(name) + t + kernel_desc(name, 256, 256)
```

```python
from asmlib import *
from layout import *
from gemm import Gemm, gen_loop, gen_loop2
from k_qkv import srd
from k_small import fbits, LOG2E, wave_sum, ln_rows, unpack8, gfun
from k_attn import attn_body
from mega import qkv_tile
import rec12 as rec
import re, math

CNT_MODA, CNT_MODB, CNT_MODC = 40960, 40960 + 128, 40960 + 256
CNT_LN1 = 41984
SLOW_OFF = 65536

sW, sXb, sI, sWS = 3, 4, 5, 6
sCNT, sB, sCh, sRound, sChk, sLim = 60, 62, 63, 64, 65, 66
sCt, sTok, sCntOff = 67, 68, 69
sDBG = 70
sFt, sDtG = 81, 82

def wait_cnt(A, off, target, tag, off_s=None, sleep=3):
    o = A
    o(f"s_cmp_lg_u32 s{sW}, 0"); o(f"s_cbranch_scc1 L_wc_{tag}_b")
    if off_s is None: o(f"v_mov_b32 v2, {off}")
    else:
        o(f"s_add_u32 s44, s{off_s}, {off}"); o("v_mov_b32 v2, s44")
    A.label(f"L_wc_{tag}")
    o(f"global_load_dword v3, v2, {s(sCNT,2)} sc1")
    o("s_waitcnt vmcnt(0)")
    o("v_readfirstlane_b32 s44, v3")
    o(f"s_cmp_ge_u32 s44, {target}"); o(f"s_cbranch_scc1 L_wc_{tag}_b")
    o(f"s_sleep {sleep}")
    o(f"s_sub_u32 s{sLim}, s{sLim}, 1"); o(f"s_cbranch_scc0 L_wc_{tag}")
    o(f"s_mov_b32 s{sLim}, 0")
    A.label(f"L_wc_{tag}_b")
    o("s_barrier")

def signal(A, off, tag, off_s=None):
    o = A
    o("s_waitcnt vmcnt(0)"); o("s_barrier")
    o(f"s_cmp_lg_u32 s{sW}, 0"); o(f"s_cbranch_scc1 L_sg_{tag}")
    if off_s is None: o(f"v_mov_b32 v2, {off}")
    else:
        o(f"s_add_u32 s44, s{off_s}, {off}"); o("v_mov_b32 v2, s44")
    o("v_mov_b32 v3, 1"); o("s_mov_b64 exec, 1")
    o(f"global_atomic_add v2, v3, {s(sCNT,2)}")
    o("s_mov_b64 exec, -1")
    A.label(f"L_sg_{tag}")

def mod_task(A, sCol, tag):
    o = A
    o("s_load_dwordx2 s[8:9], s[0:1], %d" % KA_WMOD)
    o("v_lshrrev_b32 v5, 2, v0"); o(f"s_lshl_b32 s12, s{sW}, 8"); o("v_add_u32 v5, s12, v5")
    o("v_lshlrev_b32 v6, 2, v5")
    o("s_mov_b32 s13, 12288"); o("v_mul_lo_u32 v7, v5, s13")
    o("v_and_b32 v26, 3, v0"); o("v_lshl_add_u32 v7, v26, 4, v7")
    o(f"s_lshl_b32 s12, s{sCol}, 1"); o("v_add_u32 v7, s12, v7")
    o("s_waitcnt lgkmcnt(0)")
    W = 32; Cc = 96; AC = 112
    for it in range(16):
        o(f"global_load_dwordx4 {v(W+4*it,4)}, v7, s[8:9]")
        o(f"v_add_u32 v7, {16*12288}, v7")
        o(f"ds_read_b32 v{Cc+it}, v6 offset:{it*64}")
    for e in range(8): o(f"v_mov_b32 v{AC+e}, 0")
    o("s_waitcnt lgkmcnt(0)")
    for it in range(16):
        o(f"s_waitcnt vmcnt({15-it})")
        for d in range(4):
            o(f"v_lshlrev_b32 v27, 16, v{W+4*it+d}")
            o(f"v_and_b32 v28, 0xffff0000, v{W+4*it+d}")
            o(f"v_fmac_f32 v{AC+2*d}, v27, v{Cc+it}")
            o(f"v_fmac_f32 v{AC+2*d+1}, v28, v{Cc+it}")
    for e in range(8):
        x = AC + e
        o(f"v_add_f32_dpp v{x}, v{x}, v{x} row_ror:4 row_mask:0xf bank_mask:0xf")
        o(f"v_add_f32_dpp v{x}, v{x}, v{x} row_ror:8 row_mask:0xf bank_mask:0xf")
        for sw in ("16", "32"):
            o(f"v_mov_b32 v27, v{x}"); o(f"v_permlane{sw}_swap_b32 v{x}, v27"); o(f"v_add_f32 v{x}, v{x}, v27")
    o(f"s_lshl_b32 s12, s{sW}, 7"); o("v_lshlrev_b32 v5, 5, v26"); o("v_add_u32 v5, s12, v5")
    o("s_mov_b64 exec, 0xf")
    o(f"ds_write_b128 v5, {v(AC,4)} offset:4096"); o(f"ds_write_b128 v5, {v(AC+4,4)} offset:4112")
    o("s_mov_b64 exec, -1")
    o("s_waitcnt lgkmcnt(0)"); o("s_barrier")
    o(f"s_cmp_lg_u32 s{sW}, 0"); o(f"s_cbranch_scc1 L_mod_{tag}_d")
    o("v_lshlrev_b32 v5, 2, v0")
    o("s_mov_b64 exec, 0xffffffff")
    for w in range(4): o(f"ds_read_b32 v{32+w}, v5 offset:{4096+w*128}")
    o("s_waitcnt lgkmcnt(0)")
    o("v_add_f32 v32, v32, v33"); o("v_add_f32 v34, v34, v35"); o("v_add_f32 v32, v32, v34")
    o("v_cvt_pk_bf16_f32 v32, v32, v32"); o("v_lshlrev_b32 v32, 16, v32")
    o(f"s_lshl_b32 s12, s{sCol}, 2"); o(f"s_add_u32 s12, s12, {WS_MOD}"); o("v_add_u32 v5, s12, v5")
    o(f"global_store_dword v5, v32, {s(sWS,2)} sc1")
    o("s_mov_b64 exec, -1")
    A.label(f"L_mod_{tag}_d")

def silu_to_lds(A):
    o = A
    o("s_load_dwordx2 s[8:9], s[0:1], %d" % KA_C)
    o(f"s_lshl_b32 s12, s{sW}, 6"); o("v_add_u32 v4, s12, v0")
    o("v_lshlrev_b32 v5, 3, v4")
    o("s_waitcnt lgkmcnt(0)")
    o("global_load_dwordx2 v[12:13], v5, s[8:9]")
    o("s_waitcnt vmcnt(0)")
    o("v_lshlrev_b32 v14, 16, v12"); o("v_and_b32 v15, 0xffff0000, v12"); o("v_lshlrev_b32 v16, 16, v13"); o("v_and_b32 v17, 0xffff0000, v13")
    o(f"s_mov_b32 s12, {fbits(-LOG2E)}")
    for r in range(4):
        o(f"v_mul_f32 v{20+r}, s12, v{14+r}"); o(f"v_exp_f32 v{20+r}, v{20+r}"); o(f"v_add_f32 v{20+r}, 1.0, v{20+r}")
        o(f"v_rcp_f32 v{20+r}, v{20+r}"); o(f"v_mul_f32 v{20+r}, v{14+r}, v{20+r}")
    o("v_cvt_pk_bf16_f32 v24, v20, v21"); o("v_cvt_pk_bf16_f32 v25, v22, v23")
    o("v_lshlrev_b32 v20, 16, v24"); o("v_and_b32 v21, 0xffff0000, v24"); o("v_lshlrev_b32 v22, 16, v25"); o("v_and_b32 v23, 0xffff0000, v25")
    o("v_lshlrev_b32 v4, 4, v4")
    o("ds_write_b128 v4, v[20:23]")
    o("s_waitcnt lgkmcnt(0)"); o("s_barrier")

def ln1_task(A):
    o = A
    o("s_load_dwordx2 s[8:9], s[0:1], %d" % KA_X)
    o("v_lshlrev_b32 v2, 4, v0"); o("v_lshlrev_b32 v3, 5, v0")
    o(f"s_add_u32 s12, s{sWS}, {WS_MOD}"); o(f"s_addc_u32 s13, s{sWS+1}, 0")
    SA, CA = 64, 80
    for h in range(2):
        for q in range(2): o(f"global_load_dwordx4 {v(SA+8*h+4*q,4)}, v3, s[12:13] offset:{h*2048+q*16}")
    o("s_add_u32 s12, s12, 4096"); o("s_addc_u32 s13, s13, 0")
    for h in range(2):
        for q in range(2): o(f"global_load_dwordx4 {v(CA+8*h+4*q,4)}, v3, s[12:13] offset:{h*2048+q*16}")
    o(f"s_lshl_b32 s14, s{sB}, 4"); o(f"s_lshl_b32 s15, s{sW}, 2"); o("s_add_u32 s14, s14, s15")
    o("s_waitcnt lgkmcnt(0)")
    o("s_lshl_b32 s15, s14, 11"); o("s_add_u32 s10, s8, s15"); o("s_addc_u32 s11, s9, 0")
    RAW = 96
    for r in range(4):
        off = r * 2048
        if off >= 4096:
            if r == 2: o("s_add_u32 s10, s10, 4096"); o("s_addc_u32 s11, s11, 0")
            off -= 4096
        o(f"global_load_dwordx4 {v(RAW+8*r,4)}, v2, s[10:11] offset:{off}")
        o(f"global_load_dwordx4 {v(RAW+8*r+4,4)}, v2, s[10:11] offset:{off+1024}")
    o("s_waitcnt vmcnt(8)")
    for e in range(16): o(f"v_add_f32 v{CA+e}, 1.0, v{CA+e}")
    X = [32, 48]
    for pr in range(2):
        o(f"s_waitcnt vmcnt({4 if pr == 0 else 0})") if pr == 0 else None
        if pr == 1: o("s_waitcnt vmcnt(4)")
        for r in range(2):
            unpack8(o, X[r], RAW + 8 * (2 * pr + r)); unpack8(o, X[r] + 8, RAW + 8 * (2 * pr + r) + 4)
        ln_rows(o, X, 2, [4, 5], 1e-5)
        for r in range(2):
            R0 = 8 + 8 * r
            for e in range(16): o(f"v_fma_f32 v{X[r]+e}, v{X[r]+e}, v{CA+e}, v{SA+e}")
            for h in range(2):
                for d in range(4): o(f"v_cvt_pk_bf16_f32 v{R0+4*h+d}, v{X[r]+8*h+2*d}, v{X[r]+8*h+2*d+1}")
            o(f"s_add_u32 s16, s14, {2*pr+r}"); o("s_lshr_b32 s17, s16, 4"); o("s_and_b32 s16, s16, 15")
            o("s_lshr_b32 s18, s16, 2"); o("s_lshr_b32 s19, s18, 1"); o("s_and_b32 s18, s18, 1"); o("s_xor_b32 s18, s18, s19"); o("s_lshl_b32 s18, s18, 1"); o("s_or_b32 s18, s18, s19")
            o("v_and_b32 v4, 3, v0"); o("v_xor_b32 v4, s18, v4"); o("v_lshlrev_b32 v4, 4, v4")
            o("v_lshrrev_b32 v5, 2, v0"); o("v_lshl_add_u32 v4, v5, 17, v4")
            o("s_lshl_b32 s17, s17, 10"); o("s_lshl_b32 s16, s16, 6"); o("s_add_u32 s17, s17, s16"); o(f"s_add_u32 s17, s17, {WS_H}")
            o("v_add_u32 v4, s17, v4")
            o(f"global_store_dwordx4 v4, {v(R0,4)}, {s(sWS,2)} sc1")
            o(f"v_add_u32 v4, {16*131072}, v4")
            o(f"global_store_dwordx4 v4, {v(R0+4,4)}, {s(sWS,2)} sc1")
        if pr == 0: o("s_nop 1")

def op_task(A):
    o = A
    S = 4; SBW = 6144
    sX, sY = 8, 12
    o("s_load_dwordx2 s[40:41], s[0:1], %d" % KA_WO); o("s_load_dwordx2 s[46:47], s[0:1], %d" % KA_X)
    o("s_waitcnt lgkmcnt(0)")
    srd(o, sX, 40, 0, 8 * MiB); srd(o, sY, sWS, WS_O, 16 * MiB)
    sDt, sTg = 48, 49
    o(f"s_lshl_b32 s{sDt}, s{sXb}, 1"); o(f"s_and_b32 s20, s{sI}, 1"); o(f"s_add_u32 s{sDt}, s{sDt}, s20")
    o(f"s_lshr_b32 s{sTg}, s{sI}, 1"); o(f"s_lshl_b32 s20, s{sCh}, 3"); o(f"s_add_u32 s{sTg}, s{sTg}, s20")
    sOX, sOY, sLb, sRd, sDm, sK = 20, 21, 22, 23, 24, 25
    o(f"s_lshl_b32 s{sOX}, s{sDt}, 7"); o(f"s_lshl_b32 s26, s{sW}, 16"); o(f"s_add_u32 s{sOX}, s{sOX}, s26")
    o(f"s_lshl_b32 s{sOY}, s{sTg}, 11"); o(f"s_lshl_b32 s26, s{sW}, 17"); o(f"s_add_u32 s{sOY}, s{sOY}, s26")
    o(f"s_mul_i32 s{sLb}, s{sW}, {S*SBW}")
    vi, vg, t0, t1, t2, t3 = 1, 2, 3, 4, 5, 6
    vXr, vYr, vXd, vYd, vC = 8, 12, 13, 17, 20
    o(f"v_and_b32 v{vi}, 15, v0"); o(f"v_lshrrev_b32 v{vg}, 4, v0")
    o(f"v_lshrrev_b32 v{t0}, 2, v{vi}"); o(f"v_and_b32 v{t1}, 1, v{vg}"); o(f"v_lshrrev_b32 v{t2}, 1, v{vg}")
    o(f"v_lshlrev_b32 v{t3}, 4, v{t2}"); o(f"v_lshl_add_u32 v{t3}, v{t0}, 1, v{t3}"); o(f"v_add_u32 v{t3}, v{t3}, v{t1}")
    o(f"v_lshlrev_b32 v{t3}, 7, v{t3}"); o(f"v_and_b32 v{t1}, 3, v{vi}"); o(f"v_lshl_add_u32 v{t3}, v{t1}, 3, v{t3}")
    o(f"v_add_u32 v{t3}, s{sLb}, v{t3}")
    for j in range(4):
        o(f"v_xor_b32 v{t1}, {j}, v{t0}"); o(f"v_lshl_add_u32 v{vXr+j}, v{t1}, 5, v{t3}")
    gfun(o, t2, vi, t1); o(f"v_xor_b32 v{t2}, v{t2}, v{vg}"); o(f"v_lshlrev_b32 v{t2}, 4, v{t2}"); o(f"v_lshl_add_u32 v{t2}, v{vi}, 6, v{t2}")
    o(f"s_add_u32 s26, s{sLb}, 4096"); o(f"v_add_u32 v{vYr}, s26, v{t2}")
    o(f"v_lshrrev_b32 v{t0}, 3, v0"); o(f"v_and_b32 v{t1}, 7, v0")
    o(f"v_lshrrev_b32 v{t3}, 1, v{t0}"); o(f"v_and_b32 v{t2}, 1, v{t0}"); o(f"v_lshl_add_u32 v{t2}, v{t2}, 3, v{t3}")
    o(f"v_lshrrev_b32 v{vi}, 1, v{t1}"); o(f"v_xor_b32 v{vi}, v{vi}, v{t3}"); o(f"v_lshlrev_b32 v{vi}, 5, v{vi}")
    o(f"v_and_b32 v{t1}, 1, v{t1}"); o(f"v_lshl_or_b32 v{vi}, v{t1}, 4, v{vi}")
    o(f"v_lshl_add_u32 v{vXd}, v{t2}, 11, v{vi}")
    for t in range(1, 4): o(f"v_add_u32 v{vXd+t}, {(4*(t&1) + 16*(t>>1))*2048}, v{vXd}")
    o(f"v_lshlrev_b32 v{vYd}, 4, v0"); o(f"v_add_u32 v{vYd+1}, 1024, v{vYd}")
    F = 28; FS = 24
    AC = 80
    def dma():
        L = []
        for t in range(4): L.append([f"s_add_u32 m0, s26, {t*1024}", f"buffer_load_dwordx4 v{vXd+t}, {s(sX,4)}, s{sOX} offen lds"])
        for t in range(2): L.append([f"s_add_u32 m0, s26, {4096+t*1024}", f"buffer_load_dwordx4 v{vYd+t}, {s(sY,4)}, s{sOY} offen lds"])
        return L
    def adv(r): return [f"s_add_u32 s{r}, s{r}, {SBW}", f"s_cmp_eq_u32 s{r}, {S*SBW}", f"s_cselect_b32 s{r}, 0, s{r}"]
    def dma_all():
        o(f"s_add_u32 s26, s{sLb}, s{sDm}")
        for g in dma():
            o(g[0]); o("s_nop 0"); o(g[1])
        o(f"s_add_u32 s{sOX}, s{sOX}, {4*32*2048}"); o(f"s_add_u32 s{sOY}, s{sOY}, {4*131072}")
        for x in adv(sDm): o(x)
    def rd(ph):
        for j in range(5): o(f"v_add_u32 v{vC+j}, s{sRd}, v{(vXr+j) if j < 4 else vYr}")
        for j in range(2): o(f"ds_read_b128 {v(F+ph*FS+16+4*j,4)}, v{vC+4} offset:{j*1024}")
        for j in range(4):
            o(f"ds_read_b64_tr_b16 {v(F+ph*FS+4*j,2)}, v{vC+j}"); o(f"ds_read_b64_tr_b16 {v(F+ph*FS+4*j+2,2)}, v{vC+j} offset:1024")
        for x in adv(sRd): o(x)
    o(f"s_mov_b32 s{sDm}, 0"); o(f"s_mov_b32 s{sRd}, 0")
    for st in range(S): dma_all()
    o(f"s_waitcnt vmcnt({6*(S-1)})")
    rd(0)
    def iteration(ph, first):
        o(f"s_waitcnt vmcnt({6*(S-2)}) lgkmcnt(0)")
        dma_all()
        rd(ph ^ 1)
        for jy in range(2):
            for jx in range(4):
                d = AC + (jx * 2 + jy) * 4
                c = "0" if first else v(d, 4)
                o(f"v_mfma_f32_16x16x32_bf16 {v(d,4)}, {v(F+ph*FS+4*jx,4)}, {v(F+ph*FS+16+4*jy,4)}, {c}")
    iteration(0, True); iteration(1, False)
    o(f"s_mov_b32 s{sK}, 15")
    A.label("L_op_loop")
    iteration(0, False); iteration(1, False)
    o(f"s_sub_u32 s{sK}, s{sK}, 1"); o(f"s_cmp_lg_u32 s{sK}, 0"); o("s_cbranch_scc1 L_op_loop")
    o("s_waitcnt vmcnt(0) lgkmcnt(0)")
    o("s_barrier")
    o("v_lshlrev_b32 v1, 4, v0"); o(f"s_lshl_b32 s26, s{sW}, 13"); o("v_add_u32 v2, s26, v1")
    for t in range(8): o(f"ds_write_b128 v2, {v(AC+4*t,4)} offset:{t*1024}")
    o("v_and_b32 v3, 15, v0"); o("v_lshrrev_b32 v4, 4, v0"); o("v_and_b32 v5, 1, v4"); o("v_lshrrev_b32 v4, 1, v4")
    o("v_lshlrev_b32 v5, 4, v5"); o("v_lshl_add_u32 v5, v4, 3, v5")
    o(f"s_lshl_b32 s26, s{sDt}, 6"); o(f"s_and_b32 s27, s{sW}, 1"); o("s_lshl_b32 s27, s27, 5"); o("s_add_u32 s26, s26, s27")
    o("v_add_u32 v5, s26, v5")
    o(f"s_lshl_b32 s26, s{sTg}, 5"); o(f"s_lshr_b32 s27, s{sW}, 1"); o("s_lshl_b32 s27, s27, 4"); o("s_add_u32 s26, s26, s27")
    o("v_add_u32 v3, s26, v3")
    o("v_lshlrev_b32 v6, 11, v3"); o("v_lshl_add_u32 v6, v5, 1, v6")
    o("v_lshlrev_b32 v7, 2, v5")
    o(f"s_add_u32 s44, s{sWS}, {WS_MOD + 2*4096}"); o(f"s_addc_u32 s45, s{sWS+1}, 0")
    GA, XR = 28, 36
    o(f"global_load_dwordx4 {v(GA,4)}, v7, s[44:45]"); o(f"global_load_dwordx4 {v(GA+4,4)}, v7, s[44:45] offset:16")
    o(f"global_load_dwordx4 {v(XR,4)}, v6, s[46:47]")
    o("s_waitcnt lgkmcnt(0)"); o("s_barrier")
    o(f"s_and_b32 s26, s{sW}, 1"); o("s_lshl_b32 s26, s26, 12"); o(f"s_lshr_b32 s27, s{sW}, 1"); o("s_lshl_b32 s27, s27, 10"); o("s_add_u32 s26, s26, s27")
    o("v_add_u32 v2, s26, v1")
    R = 48
    for sw in range(4):
        o(f"ds_read_b128 {v(R+8*sw,4)}, v2 offset:{sw*8192}"); o(f"ds_read_b128 {v(R+8*sw+4,4)}, v2 offset:{sw*8192+2048}")
    o("s_waitcnt lgkmcnt(0)")
    for e in range(8):
        o(f"v_add_f32 v{R+e}, v{R+e}, v{R+8+e}"); o(f"v_add_f32 v{R+16+e}, v{R+16+e}, v{R+24+e}")
    for e in range(8): o(f"v_add_f32 v{R+e}, v{R+e}, v{R+16+e}")
    for r in range(4): o(f"v_permlane16_swap_b32 v{R+r}, v{R+4+r}")
    o("s_waitcnt vmcnt(0)")
    U = 40 + 40
    unpack8(o, U, XR)
    for e in range(8): o(f"v_fma_f32 v{R+e}, v{R+e}, v{GA+e}, v{U+e}")
    for d in range(4): o(f"v_cvt_pk_bf16_f32 v{XR+d}, v{R+2*d}, v{R+2*d+1}")
    o(f"s_add_u32 s44, s{sWS}, {WS_X1}"); o(f"s_addc_u32 s45, s{sWS+1}, 0")
    o(f"global_store_dwordx4 v6, {v(XR,4)}, s[44:45] sc1")

def ln2_task(A):
    o = A
    o(f"s_lshl_b32 s14, s{sCh}, 3"); o(f"s_add_u32 s14, s14, s{sXb}")
    o("v_lshlrev_b32 v2, 4, v0")
    o(f"s_lshl_b32 s15, s14, 16"); o(f"s_lshl_b32 s16, s{sW}, 14"); o("s_add_u32 s15, s15, s16"); o(f"s_add_u32 s15, s15, {WS_X1}")
    o(f"s_add_u32 s10, s{sWS}, s15"); o(f"s_addc_u32 s11, s{sWS+1}, 0")
    RAW = 96
    for r in range(8):
        if r and r % 2 == 0: o("s_add_u32 s10, s10, 4096"); o("s_addc_u32 s11, s11, 0")
        off = (r % 2) * 2048
        o(f"global_load_dwordx4 {v(RAW+8*r,4)}, v2, s[10:11] offset:{off}"); o(f"global_load_dwordx4 {v(RAW+8*r+4,4)}, v2, s[10:11] offset:{off+1024}")
    o("v_lshrrev_b32 v3, 3, v0"); o("v_and_b32 v4, 7, v0")
    o("v_lshlrev_b32 v5, 11, v3"); o("v_lshl_add_u32 v5, v4, 4, v5"); o(f"s_lshl_b32 s16, s{sI}, 7"); o("v_add_u32 v5, s16, v5")
    o(f"s_add_u32 s10, s{sWS}, s15"); o(f"s_addc_u32 s11, s{sWS+1}, 0")
    SL = 24
    o(f"global_load_dwordx4 {v(SL,4)}, v5, s[10:11]")
    o("v_lshlrev_b32 v6, 5, v4"); o(f"s_lshl_b32 s16, s{sI}, 8"); o("v_add_u32 v6, s16, v6")
    o(f"s_add_u32 s12, s{sWS}, {WS_MOD + 3*4096}"); o(f"s_addc_u32 s13, s{sWS+1}, 0")
    SB_, CB_ = 64, 72
    o(f"global_load_dwordx4 {v(SB_,4)}, v6, s[12:13]"); o(f"global_load_dwordx4 {v(SB_+4,4)}, v6, s[12:13] offset:16")
    o("s_add_u32 s12, s12, 4096"); o("s_addc_u32 s13, s13, 0")
    o(f"global_load_dwordx4 {v(CB_,4)}, v6, s[12:13]"); o(f"global_load_dwordx4 {v(CB_+4,4)}, v6, s[12:13] offset:16")
    vMean, vRs, X, sm, t = 80, 81, 32, 7, 8
    for r in range(8):
        o(f"s_waitcnt vmcnt({5 + 2*(7-r)})")
        unpack8(o, X, RAW + 8 * r); unpack8(o, X + 8, RAW + 8 * r + 4)
        o(f"v_add_f32 v{sm}, v{X}, v{X+1}")
        for e in range(2, 16): o(f"v_add_f32 v{sm}, v{sm}, v{X+e}")
        wave_sum(o, sm, t)
        o(f"v_mul_f32 v{sm}, {fbits(1.0/1024)}, v{sm}")
        for e in range(16): o(f"v_sub_f32 v{X+e}, v{X+e}, v{sm}")
        o(f"v_mul_f32 v9, v{X}, v{X}")
        for e in range(1, 16): o(f"v_fmac_f32 v9, v{X+e}, v{X+e}")
        wave_sum(o, 9, t)
        o(f"v_mov_b32 v{t}, {fbits(1e-5)}"); o(f"v_fmac_f32 v{t}, {fbits(1.0/1024)}, v9"); o(f"v_rsq_f32 v{t}, v{t}")
        o(f"v_cmp_eq_u32 vcc, {r}, v3")
        o(f"v_cndmask_b32 v{vMean}, v{vMean}, v{sm}, vcc"); o(f"v_cndmask_b32 v{vRs}, v{vRs}, v{t}, vcc")
    o("s_waitcnt vmcnt(0)")
    unpack8(o, X, SL)
    for e in range(8):
        o(f"v_sub_f32 v{X+e}, v{X+e}, v{vMean}"); o(f"v_mul_f32 v{X+e}, v{X+e}, v{vRs}")
        o(f"v_add_f32 v{CB_+e}, 1.0, v{CB_+e}"); o(f"v_fma_f32 v{X+e}, v{X+e}, v{CB_+e}, v{SB_+e}")
    for d in range(4): o(f"v_cvt_pk_bf16_f32 v{SL+d}, v{X+2*d}, v{X+2*d+1}")
    RS = 128 + 32
    o(f"s_lshl_b32 s16, s{sW}, 3"); o("v_add_u32 v5, s16, v3"); o(f"v_mul_u32_u24 v5, {RS}, v5"); o("v_lshl_add_u32 v5, v4, 4, v5")
    o(f"ds_write_b128 v5, {v(SL,4)}")
    o("s_waitcnt lgkmcnt(0)"); o("s_barrier")
    o("v_and_b32 v5, 15, v0"); o("v_lshrrev_b32 v6, 4, v0")
    o("v_lshrrev_b32 v7, 2, v5"); o("v_lshl_add_u32 v7, v6, 3, v7"); o(f"v_mul_u32_u24 v7, {RS}, v7")
    o("v_and_b32 v8, 3, v5"); o("v_lshl_add_u32 v7, v8, 3, v7"); o(f"s_lshl_b32 s16, s{sW}, 5"); o("v_add_u32 v7, s16, v7")
    o(f"ds_read_b64_tr_b16 {v(SL,2)}, v7"); o(f"ds_read_b64_tr_b16 {v(SL+2,2)}, v7 offset:{4*RS}")
    gfun(o, 8, 5, 9); o("v_xor_b32 v8, v8, v6"); o("v_lshl_add_u32 v8, v5, 2, v8"); o("v_lshlrev_b32 v8, 4, v8")
    o("s_lshl_b32 s16, s14, 16"); o(f"s_lshl_b32 s17, s{sI}, 12"); o("s_add_u32 s16, s16, s17"); o(f"s_lshl_b32 s17, s{sW}, 10"); o("s_add_u32 s16, s16, s17"); o(f"s_add_u32 s16, s16, {WS_H2T}")
    o("v_add_u32 v8, s16, v8")
    o("s_waitcnt lgkmcnt(0)")
    o(f"global_store_dwordx4 v8, {v(SL,4)}, {s(sWS,2)} sc1")

def g1_partial(A, opt):
    o = A
    sX, sY = 8, 12
    o("s_load_dwordx2 s[40:41], s[0:1], %d" % KA_W1); o("s_waitcnt lgkmcnt(0)")
    srd(o, sX, 40, 0, 2048 * 7168); srd(o, sY, sWS, WS_H2T, 4 * MiB)
    o(f"s_add_u32 s26, s{sCh}, 1"); o(f"s_lshl_b32 s{sY+2}, s26, 19")
    o(f"s_mul_i32 s{sX+2}, s26, {256*7168}")
    G = Gemm(A, 8, 4, False, "g", accbase=128)
    sOffX, sOffY, sM0, sK = 20, 21, [22, 23], 24
    o(f"s_mul_i32 s{sOffX}, s{sCh}, {256*7168}"); o(f"s_lshl_b32 s26, s{sI}, 9"); o(f"s_add_u32 s{sOffX}, s{sOffX}, s26")
    o(f"s_lshl_b32 s{sOffY}, s{sCh}, 19"); o(f"s_lshl_b32 s26, s{sXb}, 13"); o(f"s_add_u32 s{sOffY}, s{sOffY}, s26")
    o(f"s_mul_i32 s{sM0[0]}, s{sW}, {G.NIX*1024}"); o(f"s_mul_i32 s{sM0[1]}, s{sW}, {G.NIY*1024}")
    G.setup(sW, 0, 7168, 0, [1, 2, 3, 4, 5, 6], [25, 26, 27, 28])
    o2 = dict(opt); o2["accum"] = 1
    gen_loop(G, sX, sY, sOffX, sOffY, sM0, sK, 32 * 7168, 64 * 1024, 8, "L_g1", opt=o2, sSt=[32, 33, 34])
    o("s_barrier")
    return G

def g1_epilogue(A, G, sF=sI, sD=sXb):
    o = A
    E = G.vF
    o("s_load_dwordx2 s[42:43], s[0:1], %d" % KA_B1)
    o("v_and_b32 v1, 15, v0"); o("v_lshrrev_b32 v2, 4, v0"); o("v_and_b32 v3, 1, v2"); o("v_lshrrev_b32 v2, 1, v2")
    o("v_lshlrev_b32 v4, 4, v3"); o("v_lshl_add_u32 v4, v2, 3, v4")
    o("v_lshl_or_b32 v2, v3, 1, v2")
    gfun(o, 3, 1, 5)
    o("v_xor_b32 v2, v2, v3"); o("v_lshl_add_u32 v2, v1, 2, v2"); o("v_lshlrev_b32 v2, 4, v2")
    o(f"s_lshl_b32 s25, s{sF}, 8"); o(f"s_and_b32 s26, s{sW}, 1"); o("s_lshl_b32 s26, s26, 7"); o("s_add_u32 s25, s25, s26")
    o("v_add_u32 v4, s25, v4"); o("v_lshlrev_b32 v4, 1, v4")
    BR = E + 64
    o("s_waitcnt lgkmcnt(0)")
    for jp in range(4): o(f"global_load_dwordx4 {v(BR+4*jp,4)}, v4, s[42:43] offset:{jp*64}")
    o("s_lshr_b32 s26, s25, 5"); o("s_lshl_b32 s26, s26, 16")
    o(f"s_lshl_b32 s27, s{sD}, 3"); o(f"s_lshr_b32 s28, s{sW}, 1"); o("s_lshl_b32 s28, s28, 2"); o("s_add_u32 s27, s27, s28"); o("s_lshl_b32 s27, s27, 10")
    o("s_add_u32 s26, s26, s27"); o(f"s_add_u32 s26, s26, {WS_U}")
    o(f"s_add_u32 s44, s{sWS}, s26"); o(f"s_addc_u32 s45, s{sWS+1}, 0")
    o("s_waitcnt vmcnt(0)")
    BF = E + 80
    c1 = -2.0 * math.sqrt(2.0 / math.pi) * LOG2E
    o(f"s_mov_b32 s46, {fbits(0.044715)}"); o(f"s_mov_b32 s47, {fbits(c1)}")
    k = 0
    for jp in range(4):
        unpack8(o, BF, BR + 4 * jp)
        for jy in range(4):
            T = E + 16 * (k % 3) + 4; k += 1
            ra, rb = G.accr(2 * jp, jy), G.accr(2 * jp + 1, jy)
            for r in range(4): o(f"v_accvgpr_read_b32 v{T+r}, a{ra+r}")
            for r in range(4): o(f"v_accvgpr_read_b32 v{T+4+r}, a{rb+r}")
            for r in range(4): o(f"v_permlane16_swap_b32 v{T+r}, v{T+4+r}")
            U = E + 48
            for e in range(8): o(f"v_add_f32 v{T+e}, v{T+e}, v{BF+e}")
            for e in range(8): o(f"v_mul_f32 v{U+e}, v{T+e}, v{T+e}")
            for e in range(8): o(f"v_fma_f32 v{U+e}, v{U+e}, s46, 1.0")
            for e in range(8): o(f"v_mul_f32 v{U+e}, v{U+e}, v{T+e}")
            for e in range(8): o(f"v_mul_f32 v{U+e}, s47, v{U+e}")
            for e in range(8): o(f"v_exp_f32 v{U+e}, v{U+e}")
            for e in range(8): o(f"v_add_f32 v{U+e}, 1.0, v{U+e}")
            for e in range(8): o(f"v_rcp_f32 v{U+e}, v{U+e}")
            for e in range(8): o(f"v_mul_f32 v{T+e}, v{T+e}, v{U+e}")
            P = T - 4
            for d in range(4): o(f"v_cvt_pk_bf16_f32 v{P+d}, v{T+2*d}, v{T+2*d+1}")
            o(f"v_add_u32 v5, {jp*65536 + jy*1024}, v2")
            o(f"global_store_dwordx4 v5, {v(P,4)}, s[44:45]")

def prefetch_task(A, ka, nbytes, tag):
    o = A
    per = nbytes // 128
    assert per % 4096 == 0 or True
    n4k = (per + 4095) // 4096
    o(f"s_load_dwordx2 s[40:41], s[0:1], {ka}"); o("s_waitcnt lgkmcnt(0)")
    srd(o, 8, 40, 0, nbytes)
    o(f"s_mul_i32 s20, s{sB}, {n4k*4096}"); o(f"s_lshl_b32 s21, s{sW}, 10"); o("s_add_u32 s20, s20, s21")
    o("v_lshlrev_b32 v2, 4, v0")
    o(f"s_mov_b32 s22, {n4k}")
    A.label(f"L_pf_{tag}")
    o("buffer_load_dwordx4 v[8:11], v2, s[8:11], s20 offen")
    o("s_add_u32 s20, s20, 4096"); o("s_sub_u32 s22, s22, 1"); o("s_cmp_lg_u32 s22, 0")
    o(f"s_cbranch_scc0 L_pf_{tag}_d")
    o("buffer_load_dwordx4 v[12:15], v2, s[8:11], s20 offen")
    o("s_add_u32 s20, s20, 4096"); o("s_sub_u32 s22, s22, 1"); o("s_cmp_lg_u32 s22, 0")
    o("s_waitcnt vmcnt(24)")
    o(f"s_cbranch_scc1 L_pf_{tag}")
    A.label(f"L_pf_{tag}_d")
    o("s_waitcnt vmcnt(0)")

def op_pass(A, ntok_tiles_log2, opt=None):
    opt = opt or {}
    o = A
    sX, sY = 8, 12
    o("s_load_dwordx2 s[40:41], s[0:1], %d" % KA_WO); o("s_load_dwordx2 s[46:47], s[0:1], %d" % KA_X)
    sDt, sTt = 48, 49
    o(f"s_lshr_b32 s{sDt}, s{sXb}, 1"); o(f"s_lshl_b32 s{sDt}, s{sDt}, 2"); o(f"s_and_b32 s20, s{sI}, 3"); o(f"s_add_u32 s{sDt}, s{sDt}, s20")
    o(f"s_and_b32 s{sTt}, s{sXb}, 1"); o(f"s_lshl_b32 s{sTt}, s{sTt}, 2"); o(f"s_lshr_b32 s20, s{sI}, 2"); o(f"s_add_u32 s{sTt}, s{sTt}, s20")
    o(f"s_cmp_ge_u32 s{sTt}, {1 << ntok_tiles_log2}"); o(f"s_cbranch_scc1 L_opp_skip{ntok_tiles_log2}")
    o(f"s_lshl_b32 s{sTt}, s{sTt}, 6"); o(f"s_add_u32 s{sTt}, s{sTt}, s{sTok}")
    o("s_waitcnt lgkmcnt(0)")
    srd(o, sX, 40, 0, 8 * MiB); srd(o, sY, sWS, WS_O, 16 * MiB)
    G = Gemm(A, 2, 2, False, "o")
    sOffX, sOffY, sM0, sK = 20, 21, [22, 23], 24
    o(f"s_lshl_b32 s{sOffX}, s{sDt}, 7"); o(f"s_lshl_b32 s{sOffY}, s{sTt}, 6")
    o(f"s_mul_i32 s{sM0[0]}, s{sW}, {G.NIX*1024}"); o(f"s_mul_i32 s{sM0[1]}, s{sW}, {G.NIY*1024}")
    G.setup(sW, 0, 2048, 0, [1, 2, 3, 4, 5, 6], [25, 26, 27, 28])
    gen_loop2(G, sX, sY, sOffX, sOffY, sM0, sK, 32 * 2048, 128 * 1024, 128, f"L_opp{ntok_tiles_log2}", K=opt.get("opK", 4), R=opt.get("opR", 16), sSt=[32, 33, 34])
    E = G.vF
    o("v_and_b32 v1, 15, v0"); o("v_lshrrev_b32 v2, 4, v0"); o("v_and_b32 v3, 1, v2"); o("v_lshrrev_b32 v2, 1, v2")
    o("v_lshlrev_b32 v3, 4, v3"); o("v_lshl_add_u32 v3, v2, 3, v3")
    o(f"s_lshl_b32 s25, s{sDt}, 6"); o(f"s_and_b32 s26, s{sW}, 1"); o("s_lshl_b32 s26, s26, 5"); o("s_add_u32 s25, s25, s26")
    o("v_add_u32 v3, s25, v3")
    o(f"s_lshr_b32 s26, s{sW}, 1"); o("s_lshl_b32 s26, s26, 5"); o(f"s_add_u32 s25, s{sTt}, s26")
    o("v_add_u32 v1, s25, v1")
    o("v_lshlrev_b32 v4, 11, v1"); o("v_lshl_add_u32 v4, v3, 1, v4")
    o("v_lshlrev_b32 v5, 2, v3")
    o(f"s_add_u32 s44, s{sWS}, {WS_MOD + 2*4096}"); o(f"s_addc_u32 s45, s{sWS+1}, 0")
    GA = E + 64; XR = E + 72
    o(f"global_load_dwordx4 {v(GA,4)}, v5, s[44:45]"); o(f"global_load_dwordx4 {v(GA+4,4)}, v5, s[44:45] offset:16")
    for jy in range(2):
        o(f"v_add_u32 v6, {jy*16*2048}, v4"); o(f"global_load_dwordx4 {v(XR+4*jy,4)}, v6, s[46:47]")
    o(f"s_add_u32 s44, s{sWS}, {WS_X1}"); o(f"s_addc_u32 s45, s{sWS+1}, 0")
    for jy in range(2):
        T = E + 16 * jy + 4
        for r in range(4): o(f"v_accvgpr_read_b32 v{T+r}, a{G.accr(0, jy)+r}")
        for r in range(4): o(f"v_accvgpr_read_b32 v{T+4+r}, a{G.accr(1, jy)+r}")
        for r in range(4): o(f"v_permlane16_swap_b32 v{T+r}, v{T+4+r}")
        if jy == 0: o("s_waitcnt vmcnt(0)")
        U = E + 48
        unpack8(o, U, XR + 4 * jy)
        for e in range(8): o(f"v_fma_f32 v{T+e}, v{T+e}, v{GA+e}, v{U+e}")
        P = T - 4
        for d in range(4): o(f"v_cvt_pk_bf16_f32 v{P+d}, v{T+2*d}, v{T+2*d+1}")
        o(f"v_add_u32 v6, {jy*16*2048}, v4")
        o(f"global_store_dwordx4 v6, {v(P,4)}, s[44:45] sc1")
    A.label(f"L_opp_skip{ntok_tiles_log2}")

def ln2_pass(A, nks_log2):
    o = A
    if nks_log2 == 3:
        o(f"s_lshr_b32 s{sCh}, s{sTok}, 8"); ln2_task(A); return
    for h in range(2):
        o(f"s_mov_b32 s76, s{sXb}"); o(f"s_mov_b32 s77, s{sI}"); o(f"s_mov_b32 s78, s{sCh}")
        o(f"s_lshl_b32 s79, s{sXb}, 1"); o(f"s_lshr_b32 s80, s{sI}, 3"); o("s_add_u32 s79, s79, s80")
        o(f"s_and_b32 s80, s{sI}, 7"); o("s_lshl_b32 s80, s80, 1"); o(f"s_add_u32 s{sI}, s80, {h}")
        o(f"s_and_b32 s{sXb}, s79, 7"); o("s_lshr_b32 s79, s79, 3"); o(f"s_lshr_b32 s{sCh}, s{sTok}, 8"); o(f"s_add_u32 s{sCh}, s{sCh}, s79")
        ln2_task(A)
        o(f"s_mov_b32 s{sXb}, s76"); o(f"s_mov_b32 s{sI}, s77"); o(f"s_mov_b32 s{sCh}, s78")
        if h == 0: o("s_barrier")

def g1_pass(A, opt, nit, lab):
    o = A
    sX, sY = 8, 12
    o("s_load_dwordx2 s[40:41], s[0:1], %d" % KA_W1); o("s_waitcnt lgkmcnt(0)")
    srd(o, sX, 40, 0, 2048 * 7168); srd(o, sY, sWS, WS_H2T, 4 * MiB)
    o(f"s_add_u32 s26, s{sTok}, {32*nit}"); o(f"s_lshl_b32 s{sY+2}, s26, 11")
    o(f"s_mul_i32 s{sX+2}, s26, 7168")
    G = Gemm(A, 8, 4, False, "g", accbase=128)
    sOffX, sOffY, sM0, sK = 20, 21, [22, 23], 24
    o(f"s_mul_i32 s{sOffX}, s{sTok}, 7168"); o(f"s_lshl_b32 s26, s{sFt}, 9"); o(f"s_add_u32 s{sOffX}, s{sOffX}, s26")
    o(f"s_lshl_b32 s{sOffY}, s{sTok}, 11"); o(f"s_lshl_b32 s26, s{sDtG}, 13"); o(f"s_add_u32 s{sOffY}, s{sOffY}, s26")
    o(f"s_mul_i32 s{sM0[0]}, s{sW}, {G.NIX*1024}"); o(f"s_mul_i32 s{sM0[1]}, s{sW}, {G.NIY*1024}")
    G.setup(sW, 0, 7168, 0, [1, 2, 3, 4, 5, 6], [25, 26, 27, 28])
    o2 = dict(opt); o2["accum"] = 1; o2["S"] = 5
    gen_loop(G, sX, sY, sOffX, sOffY, sM0, sK, 32 * 7168, 64 * 1024, nit, lab, opt=o2, sSt=[32, 33, 34])
    o("s_barrier")
    return G

def fast_check(A, tag):
    o = A
    LB = 131072 - 64
    o(f"s_cmp_lg_u32 s{sW}, 0"); o(f"s_cbranch_scc1 L_fc_{tag}_w")
    o("s_mov_b64 exec, 0xff"); o("v_lshlrev_b32 v1, 2, v0"); o("s_mov_b32 s13, 0x200000")
    A.label(f"L_fc_{tag}_p")
    o(f"global_load_dword v4, v1, {s(sDBG,2)} sc1"); o("s_waitcnt vmcnt(0)")
    o("v_mov_b32 v5, v4")
    o("v_add_u32_dpp v5, v5, v5 quad_perm:[1,0,3,2] row_mask:0xf bank_mask:0xf")
    o("v_add_u32_dpp v5, v5, v5 quad_perm:[2,3,0,1] row_mask:0xf bank_mask:0xf")
    o("v_add_u32_dpp v5, v5, v5 row_half_mirror row_mask:0xf bank_mask:0xf")
    o("v_readfirstlane_b32 s14, v5")
    o("s_cmp_ge_u32 s14, 256"); o(f"s_cbranch_scc1 L_fc_{tag}_a")
    o("s_sleep 8"); o("s_sub_u32 s13, s13, 1"); o(f"s_cbranch_scc0 L_fc_{tag}_p")
    A.label(f"L_fc_{tag}_a")
    o("v_cmp_ne_u32 vcc, 32, v4"); o("s_nop 1"); o("s_cmp_eq_u64 vcc, 0"); o("s_cselect_b32 s15, 1, 0")
    o("s_mov_b64 exec, 1"); o("v_mov_b32 v6, s15"); o(f"v_mov_b32 v1, {LB}"); o("ds_write_b32 v1, v6"); o("s_waitcnt lgkmcnt(0)"); o("s_mov_b64 exec, -1")
    A.label(f"L_fc_{tag}_w")
    o("s_barrier")
    o(f"v_mov_b32 v1, {LB}"); o("ds_read_b32 v6, v1"); o("s_waitcnt lgkmcnt(0)"); o("v_readfirstlane_b32 s15, v6")
    o("s_barrier")

def gen_bulk(opt):
    A = Asm(); o = A
    bprof = opt.get("bprof")
    def bstamp(k, chunked=True):
        if not bprof: return
        o("s_memrealtime s[72:73]"); o("s_waitcnt lgkmcnt(0)")
        o(f"s_lshl_b32 s74, s{sB}, 10")
        if chunked:
            o(f"s_lshl_b32 s75, s{sCh}, 6"); o("s_add_u32 s74, s74, s75"); o(f"s_add_u32 s74, s74, 64")
        o(f"s_add_u32 s74, s74, {WS_PROF + 4*MiB + 0} + {k*4}")
        o("v_mov_b32 v250, s74"); o("v_mov_b32 v251, s72")
        o("s_mov_b64 exec, 1"); o(f"global_store_dword v250, v251, {s(sWS,2)}"); o("s_mov_b64 exec, -1")
    o(f"s_load_dwordx2 {s(sWS,2)}, s[0:1], {KA_WS}")
    o("s_waitcnt lgkmcnt(0)")
    o(f"s_add_u32 s{sCNT}, s{sWS}, {WS_CNT}"); o(f"s_addc_u32 s{sCNT+1}, s{sWS+1}, 0")
    o(f"s_cmp_eq_u32 s{sChk}, 0"); o("s_cbranch_scc0 L_cb"); o(f"s_add_u32 s{sCNT}, s{sCNT}, {SLOW_OFF}"); o(f"s_addc_u32 s{sCNT+1}, s{sCNT+1}, 0")
    A.label("L_cb")
    o(f"s_lshl_b32 s{sB}, s{sXb}, 4"); o(f"s_add_u32 s{sB}, s{sB}, s{sI}")
    o(f"s_mov_b32 s{sLim}, 0x400000")
    bstamp(0, False)
    silu_to_lds(A)
    o(f"s_lshl_b32 s{sCt}, s{sB}, 5")
    mod_task(A, sCt, "a")
    o(f"s_cmp_eq_u32 s{sChk}, 0"); o("s_cbranch_scc1 L_nochk")
    fast_check(A, "b")
    o("s_cmp_eq_u32 s15, 0"); o("s_cbranch_scc1 M_slow")
    A.label("L_nochk")
    o(f"s_cmp_lt_u32 s{sB}, 64"); o(f"s_cselect_b32 s{sCntOff}, {CNT_MODA}, s{sCntOff}"); o(f"s_mov_b32 s44, {CNT_MODB}"); o(f"s_cselect_b32 s{sCntOff}, s{sCntOff}, s44")
    signal(A, 0, "m1", off_s=sCntOff)
    bstamp(1, False)
    wait_cnt(A, CNT_MODA, 64, "ma")
    bstamp(2, False)
    ln1_task(A)
    o(f"s_lshr_b32 s{sCntOff}, s{sB}, 4"); o(f"s_lshl_b32 s{sCntOff}, s{sCntOff}, 7")
    signal(A, CNT_LN1, "l1", off_s=sCntOff)
    bstamp(3, False)
    srd_h = lambda: srd(o, 12, sWS, WS_H, 4 * MiB)
    o(f"s_mov_b32 s{sRound}, 0")
    A.label("L_task")
    t0, t1, t2 = 44, 45, 46
    o(f"s_lshl_b32 s{t0}, s{sXb}, 2"); o(f"s_and_b32 s{t1}, s{sI}, 3"); o(f"s_add_u32 s{t0}, s{t0}, s{t1}"); o(f"s_add_u32 s{t0}, s{t0}, 16")
    o(f"s_lshl_b32 s{t1}, s{sXb}, 1"); o(f"s_and_b32 s{t2}, s{sI}, 1"); o(f"s_add_u32 s{t1}, s{t1}, s{t2}")
    o(f"s_lshr_b32 s{t2}, s{sI}, 2")
    o(f"s_cmp_eq_u32 s{sRound}, 0"); o("s_cbranch_scc0 L_r1")
    o(f"s_mov_b32 s{sCt}, s{t0}"); o(f"s_lshl_b32 s{sTok}, s{t2}, 6"); o("s_branch L_dec")
    A.label("L_r1")
    if opt.get("thr"):
        NA = opt["thr"]
        o(f"s_cmp_ge_u32 s{sI}, {NA}"); o("s_cbranch_scc1 L_phase3")
        o(f"s_sub_u32 s{t0}, s{sRound}, 1"); o(f"s_mul_i32 s{t0}, s{t0}, {8*NA}"); o(f"s_mul_i32 s{t1}, s{sXb}, {NA}"); o(f"s_add_u32 s{t0}, s{t0}, s{t1}"); o(f"s_add_u32 s{t0}, s{t0}, s{sI}")
        o(f"s_cmp_ge_u32 s{t0}, 352"); o("s_cbranch_scc1 L_phase3")
        o(f"s_cmp_lt_u32 s{t0}, 224"); o("s_cbranch_scc0 L_thq")
        o(f"s_and_b32 s{sCt}, s{t0}, 31"); o(f"s_add_u32 s{sCt}, s{sCt}, 16"); o(f"s_lshr_b32 s{sTok}, s{t0}, 5"); o(f"s_add_u32 s{sTok}, s{sTok}, 1"); o(f"s_lshl_b32 s{sTok}, s{sTok}, 8"); o("s_branch L_dec")
        A.label("L_thq")
        o(f"s_sub_u32 s{t0}, s{t0}, 224"); o(f"s_and_b32 s{sCt}, s{t0}, 15"); o(f"s_lshr_b32 s{sTok}, s{t0}, 4"); o(f"s_lshl_b32 s{sTok}, s{sTok}, 8")
    else:
        o(f"s_cmp_eq_u32 s{sRound}, 1"); o("s_cbranch_scc0 L_r2")
        o(f"s_mov_b32 s{sCt}, s{t0}"); o(f"s_add_u32 s{sTok}, s{t2}, 1"); o(f"s_lshl_b32 s{sTok}, s{sTok}, 8"); o("s_branch L_dec")
        A.label("L_r2")
        o(f"s_cmp_eq_u32 s{sRound}, 2"); o("s_cbranch_scc0 L_r3")
        o(f"s_cmp_lt_u32 s{sI}, 12"); o("s_cbranch_scc0 L_r2q")
        o(f"s_mov_b32 s{sCt}, s{t0}"); o(f"s_add_u32 s{sTok}, s{t2}, 5"); o(f"s_lshl_b32 s{sTok}, s{sTok}, 8"); o("s_branch L_dec")
        A.label("L_r2q")
        o(f"s_mov_b32 s{sCt}, s{t1}"); o(f"s_sub_u32 s{sTok}, s{sI}, 12"); o(f"s_lshr_b32 s{sTok}, s{sTok}, 1"); o(f"s_lshl_b32 s{sTok}, s{sTok}, 8"); o("s_branch L_dec")
        A.label("L_r3")
        o(f"s_cmp_eq_u32 s{sRound}, 3"); o("s_cbranch_scc0 L_phase3")
        o(f"s_cmp_lt_u32 s{sI}, 12"); o("s_cbranch_scc0 L_phase3")
        o(f"s_mov_b32 s{sCt}, s{t1}"); o(f"s_lshr_b32 s{sTok}, s{sI}, 1"); o(f"s_add_u32 s{sTok}, s{sTok}, 2"); o(f"s_lshl_b32 s{sTok}, s{sTok}, 8")
    A.label("L_dec")
    o(f"s_lshr_b32 s{sCntOff}, s{sTok}, 8"); o(f"s_lshl_b32 s{sCntOff}, s{sCntOff}, 7")
    wait_cnt(A, CNT_LN1, 16, "l1", off_s=sCntOff)
    o(f"s_lshr_b32 s{t0}, s{sTok}, 8")
    o(f"s_lshl_b32 s{t1}, s{t0}, 3"); o(f"s_and_b32 s{t2}, s{sCt}, 15"); o(f"s_lshr_b32 s{t2}, s{t2}, 1"); o(f"s_add_u32 s{t1}, s{t1}, s{t2}"); o(f"s_lshl_b32 s{t1}, s{t1}, 7")
    o(f"s_lshl_b32 s{t0}, s{t0}, 7"); o(f"s_add_u32 s{t0}, s{t0}, {CNT_Q}")
    o(f"s_cmp_lt_u32 s{sCt}, 16"); o(f"s_cselect_b32 s{sCntOff}, s{t0}, s{t1}")
    o(f"s_lshr_b32 s{t0}, s{sCt}, 4"); o(f"s_lshl_b32 s{t1}, s{t0}, 3")
    o(f"s_add_u32 s40, s0, s{t1}"); o(f"s_addc_u32 s41, s1, 0")
    o(f"s_load_dwordx2 s[40:41], s[40:41], {KA_WQ}")
    o(f"s_lshl_b32 s{t1}, s{t0}, 24"); o(f"s_add_u32 s{t1}, s{t1}, {WS_Q}")
    o(f"s_add_u32 s16, s{sWS}, s{t1}"); o(f"s_addc_u32 s17, s{sWS+1}, 0"); o("s_and_b32 s17, s17, 0xffff")
    o(f"s_mov_b32 s18, {16*MiB}"); o("s_mov_b32 s19, 0x00020000")
    srd_h()
    o("s_waitcnt lgkmcnt(0)")
    srd(o, 8, 40, 0, 8 * MiB)
    o(f"s_cmp_eq_u32 s{sRound}, 0"); o("s_cbranch_scc1 L_small")
    o(f"s_cmp_ge_u32 s{sCt}, 32"); o("s_cbranch_scc1 L_bigv")
    qkv_tile(A, 8, False, "L_gA", sW, sCt, sTok, opt, None); o("s_branch L_sig")
    A.label("L_bigv")
    qkv_tile(A, 8, True, "L_gB", sW, sCt, sTok, opt, None); o("s_branch L_sig")
    A.label("L_small")
    osm = dict(opt); osm["S"] = 6
    o(f"s_cmp_ge_u32 s{sCt}, 32"); o("s_cbranch_scc1 L_smallv")
    qkv_tile(A, 2, False, "L_gC", sW, sCt, sTok, osm, None); o("s_branch L_sig")
    A.label("L_smallv")
    qkv_tile(A, 2, True, "L_gD", sW, sCt, sTok, osm, None)
    A.label("L_sig")
    signal(A, 0, "t", off_s=sCntOff)
    if bprof:
        o("s_memrealtime s[72:73]"); o("s_waitcnt lgkmcnt(0)")
        o(f"s_lshl_b32 s74, s{sB}, 10"); o(f"s_lshl_b32 s75, s{sRound}, 2"); o("s_add_u32 s74, s74, s75"); o(f"s_add_u32 s74, s74, {WS_PROF + 4*MiB + 16}")
        o("v_mov_b32 v250, s74"); o("v_mov_b32 v251, s72")
        o("s_mov_b64 exec, 1"); o(f"global_store_dword v250, v251, {s(sWS,2)}"); o("s_mov_b64 exec, -1")
    o(f"s_add_u32 s{sRound}, s{sRound}, 1")
    o("s_branch L_task")
    A.label("L_phase3")
    o(f"s_cmp_ge_u32 s{sB}, 64"); o("s_cbranch_scc1 L_nomod2")
    silu_to_lds(A)
    o(f"s_lshl_b32 s{sCt}, s{sB}, 5"); o(f"s_add_u32 s{sCt}, s{sCt}, 4096")
    mod_task(A, sCt, "b")
    signal(A, CNT_MODC, "m2")
    A.label("L_nomod2")
    if opt.get("wpf", 1) == 1:
        prefetch_task(A, KA_WO, 8 * MiB, "wo"); prefetch_task(A, KA_W1, 2048 * 7168, "w1"); prefetch_task(A, KA_W2, 3584 * 4096, "w2")
    if opt.get("wpf", 1) == 2:
        prefetch_task(A, KA_W2, 3584 * 4096, "w2")
    P3 = opt.get("p3", 4)
    if P3 == 4:
        for r in range(128): o(f"v_accvgpr_write_b32 a{128+r}, 0")
    if P3 == 0:
        o("s_branch L_bulk_done")
    if P3 == 5:
        passes = opt.get("passes", [(0, 2), (2, 2), (4, 2), (6, 1), (7, 1)])
        for r in range(128): o(f"v_accvgpr_write_b32 a{128+r}, 0")
        o(f"s_lshr_b32 s{sDtG}, s{sXb}, 1"); o(f"s_lshl_b32 s{sDtG}, s{sDtG}, 1"); o(f"s_and_b32 s44, s{sI}, 1"); o(f"s_add_u32 s{sDtG}, s{sDtG}, s44")
        o(f"s_and_b32 s{sFt}, s{sXb}, 1"); o(f"s_lshl_b32 s{sFt}, s{sFt}, 3"); o(f"s_lshr_b32 s44, s{sI}, 1"); o(f"s_add_u32 s{sFt}, s{sFt}, s44")
        sPass, sPn = 83, 84
        def att_chunk(tag):
            o(f"s_lshl_b32 s{sCntOff}, s{sCh}, 3"); o(f"s_add_u32 s{sCntOff}, s{sCntOff}, s{sXb}"); o(f"s_lshl_b32 s{sCntOff}, s{sCntOff}, 7")
            wait_cnt(A, CNT_REC, 32, f"rec{tag}", off_s=sCntOff, sleep=8)
            o(f"s_lshl_b32 s{sCntOff}, s{sCh}, 7")
            wait_cnt(A, CNT_Q, 16, f"q{tag}", off_s=sCntOff)
            o(f"s_lshl_b32 s56, s{sB}, 2"); o(f"s_add_u32 s56, s56, s{sW}")
            o(f"s_lshr_b32 s57, s56, 6"); o(f"s_lshl_b32 s58, s{sCh}, 3"); o("s_add_u32 s57, s57, s58")
            o("s_lshr_b32 s58, s56, 1"); o("s_and_b32 s58, s58, 31"); o("s_and_b32 s59, s56, 1")
            attn_body(A, sWS, 57, 58, 59, 0, f"L_at{tag}", sc1=True)
        def rest(nch, tag):
            o(f"s_lshl_b32 s{sCntOff}, s{sPass}, 7")
            signal(A, CNT_ATT, f"a{tag}", off_s=sCntOff)
            wait_cnt(A, CNT_ATT, 128, f"a{tag}", off_s=sCntOff, sleep=4)
            bstamp(2)
            op_pass(A, 2 if nch == 1 else 3, opt)
            signal(A, CNT_OP, f"o{tag}", off_s=sCntOff)
            bstamp(3)
            wait_cnt(A, CNT_OP, 128, f"o{tag}", off_s=sCntOff, sleep=4)
            bstamp(4)
            ln2_pass(A, 3 if nch == 1 else 4)
            signal(A, CNT_LN, f"n{tag}", off_s=sCntOff)
            bstamp(5)
            o(f"s_cmp_ge_u32 s{sFt}, 14"); o(f"s_cbranch_scc1 L_nog1{tag}")
            wait_cnt(A, CNT_LN, 128, f"n{tag}", off_s=sCntOff, sleep=4)
            bstamp(6)
            G_ = g1_pass(A, opt, 8 * nch, f"L_g1{tag}")
            bstamp(7)
            A.label(f"L_nog1{tag}")
            return G_
        wait_cnt(A, CNT_MODB, 64, "mb5"); wait_cnt(A, CNT_MODC, 64, "mc5")
        nd = sum(1 for p in passes if p[1] == 2); ns = sum(1 for p in passes if p[1] == 1)
        o(f"s_mov_b32 s{sPass}, 0")
        A.label("L_dpass")
        o(f"s_lshl_b32 s{sCh}, s{sPass}, 1"); att_chunk("A"); bstamp(0)
        o(f"s_lshl_b32 s{sCh}, s{sPass}, 1"); o(f"s_add_u32 s{sCh}, s{sCh}, 1"); att_chunk("B"); bstamp(1)
        o(f"s_lshl_b32 s{sTok}, s{sPass}, 9"); o(f"s_lshl_b32 s{sCh}, s{sPass}, 1")
        G = rest(2, "D")
        o(f"s_add_u32 s{sPass}, s{sPass}, 1"); o(f"s_cmp_lt_u32 s{sPass}, {nd}"); o("s_cbranch_scc1 L_dpass")
        if ns:
            A.label("L_spass")
            o(f"s_add_u32 s{sCh}, s{sPass}, {nd}"); att_chunk("C"); bstamp(1)
            o(f"s_add_u32 s{sCh}, s{sPass}, {nd}"); o(f"s_lshl_b32 s{sTok}, s{sCh}, 8")
            rest(1, "S")
            o(f"s_add_u32 s{sPass}, s{sPass}, 1"); o(f"s_cmp_lt_u32 s{sPass}, {nd+ns}"); o("s_cbranch_scc1 L_spass")
        o(f"s_cmp_ge_u32 s{sFt}, 14"); o("s_cbranch_scc1 L_bulk_done")
        g1_epilogue(A, G, sFt, sDtG)
        o("s_branch L_bulk_done")
    if P3 not in (0, 5):
        o(f"s_mov_b32 s{sCh}, 0")
        A.label("L_chunk")
        if P3 >= 4:
            o(f"s_lshl_b32 s{sCntOff}, s{sCh}, 10"); o(f"s_add_u32 s{sCntOff}, s{sCntOff}, {7*128}")
            wait_cnt(A, CNT_REC, 32, "rec", off_s=sCntOff)
        else:
            if opt.get("aspread", 1):
                o(f"s_lshr_b32 s55, s{sI}, 1")
            else:
                o(f"s_mov_b32 s55, s{sXb}")
            o(f"s_lshl_b32 s{sCntOff}, s{sCh}, 3"); o(f"s_add_u32 s{sCntOff}, s{sCntOff}, s55"); o(f"s_lshl_b32 s{sCntOff}, s{sCntOff}, 7")
            wait_cnt(A, CNT_REC, 32, "rec", off_s=sCntOff, sleep=opt.get("slp", 16))
        o(f"s_lshl_b32 s{sCntOff}, s{sCh}, 7")
        wait_cnt(A, CNT_Q, 16, "q", off_s=sCntOff)
        bstamp(0)
        if P3 >= 4 or not opt.get("aspread", 1):
            o(f"s_lshl_b32 s56, s{sB}, 2"); o(f"s_add_u32 s56, s56, s{sW}")
            o(f"s_lshr_b32 s57, s56, 6"); o(f"s_lshl_b32 s58, s{sCh}, 3"); o("s_add_u32 s57, s57, s58")
        else:
            o(f"s_lshl_b32 s56, s{sXb}, 1"); o(f"s_and_b32 s57, s{sI}, 1"); o("s_add_u32 s56, s56, s57"); o("s_lshl_b32 s56, s56, 2"); o(f"s_add_u32 s56, s56, s{sW}")
            o(f"s_lshr_b32 s57, s{sI}, 1"); o(f"s_lshl_b32 s58, s{sCh}, 3"); o("s_add_u32 s57, s57, s58")
        o("s_lshr_b32 s58, s56, 1"); o("s_and_b32 s58, s58, 31"); o("s_and_b32 s59, s56, 1")
        attn_body(A, sWS, 57, 58, 59, 0, "L_at", sc1=(P3 >= 4), nt=opt.get("ant", 0))
        if P3 >= 4:
            signal(A, CNT_ATT, "a", off_s=sCntOff)
            bstamp(1)
            wait_cnt(A, CNT_ATT, 128, "a", off_s=sCntOff)
            wait_cnt(A, CNT_MODB, 64, "mb")
            bstamp(2)
            op_task(A)
            signal(A, CNT_OP, "o", off_s=sCntOff)
            bstamp(3)
            wait_cnt(A, CNT_OP, 128, "o", off_s=sCntOff)
            wait_cnt(A, CNT_MODC, 64, "mc")
            bstamp(4)
            ln2_task(A)
            signal(A, CNT_LN, "n", off_s=sCntOff)
            bstamp(5)
            o(f"s_cmp_ge_u32 s{sI}, 14"); o("s_cbranch_scc1 L_nog1")
            wait_cnt(A, CNT_LN, 128, "n", off_s=sCntOff)
            bstamp(6)
            G = g1_partial(A, opt)
            bstamp(7)
            A.label("L_nog1")
            o(f"s_add_u32 s{sCh}, s{sCh}, 1"); o(f"s_cmp_lt_u32 s{sCh}, 8"); o("s_cbranch_scc1 L_chunk")
            o(f"s_cmp_ge_u32 s{sI}, 14"); o("s_cbranch_scc1 L_bulk_done")
            g1_epilogue(A, G)
        else:
            o("s_waitcnt vmcnt(0)")
            o(f"s_add_u32 s{sCh}, s{sCh}, 1"); o(f"s_cmp_lt_u32 s{sCh}, 8"); o("s_cbranch_scc1 L_chunk")
    A.label("L_bulk_done")
    o("s_waitcnt vmcnt(0)")
    o("s_endpgm")
    return re.sub(r"\bL_", "B_L_", A.finish())

def gen_mega(name="mega_kernel", recopt=None, opt=None, force_slow=False, place=8):
    recopt = recopt or dict(E2_DEPTH=2, E2_SP=3, E2_DELAY=2)
    opt = opt or {"S": 4}
    A = Asm(); o = A
    o("s_cmp_ge_u32 s2, 256"); o("s_cbranch_scc1 M_end")
    o(f"s_load_dwordx2 {s(sDBG,2)}, s[0:1], {KA_DBG}")
    o(f"s_load_dwordx2 {s(sWS,2)}, s[0:1], {KA_WS}")
    o(f"s_load_dwordx2 s[10:11], s[0:1], {KA_MEM0}")
    o("s_memrealtime s[92:93]")
    o("v_lshlrev_b32 v3, 4, v0")
    o("v_lshrrev_b32 v1, 6, v0"); o("v_and_b32 v0, 63, v0"); o(f"v_readfirstlane_b32 s{sW}, v1")
    o("s_getreg_b32 s4, hwreg(HW_REG_XCC_ID, 0, 4)"); o("s_and_b32 s4, s4, 7")
    for r in range(4): o(f"v_mov_b32 v{8+r}, -1")
    o("s_waitcnt lgkmcnt(0)")
    o("s_lshl_b32 s12, s2, 15"); o(f"s_add_u32 s12, s12, {WS_PARTF}")
    o(f"s_add_u32 s14, s{sWS}, s12"); o(f"s_addc_u32 s15, s{sWS+1}, 0")
    for k in range(8):
        o("global_store_dwordx4 v3, v[8:11], s[14:15] sc1"); o("s_add_u32 s14, s14, 4096"); o("s_addc_u32 s15, s15, 0")
    o("s_cmp_ge_u32 s2, 128"); o("s_cbranch_scc1 M_f2")
    o("s_lshl_b32 s12, s2, 12")
    o(f"s_add_u32 s13, s12, {WS_RQK}"); o(f"s_add_u32 s14, s{sWS}, s13"); o(f"s_addc_u32 s15, s{sWS+1}, 0")
    o("global_store_dwordx4 v3, v[8:11], s[14:15] sc1")
    o(f"s_add_u32 s13, s12, {WS_RMEM}"); o(f"s_add_u32 s14, s{sWS}, s13"); o(f"s_addc_u32 s15, s{sWS+1}, 0")
    o("s_cmp_lt_u32 s2, 32"); o("s_cbranch_scc1 M_img")
    o("global_store_dwordx4 v3, v[8:11], s[14:15] sc1"); o("s_branch M_f3")
    A.label("M_img")
    o(f"s_and_b32 s16, s2, 3"); o("s_lshl_b32 s16, s16, 2"); o(f"s_add_u32 s16, s16, s{sW}"); o("s_lshl_b32 s16, s16, 7")
    o("v_and_b32 v5, 7, v0"); o("v_lshlrev_b32 v5, 11, v5"); o("v_bfe_u32 v6, v0, 3, 1"); o("v_lshl_add_u32 v5, v6, 6, v5")
    o("v_lshrrev_b32 v6, 4, v0"); o("v_lshl_add_u32 v5, v6, 4, v5"); o("v_add_u32 v5, s16, v5")
    o("global_load_dwordx4 v[16:19], v5, s[10:11]"); o("s_waitcnt vmcnt(0)")
    o("global_store_dwordx4 v3, v[16:19], s[14:15] sc1"); o("s_branch M_f3")
    A.label("M_f2")
    o("s_cmp_ge_u32 s2, 192"); o("s_cbranch_scc1 M_f4")
    o("s_sub_u32 s12, s2, 128"); o("s_lshl_b32 s12, s12, 12")
    o(f"s_add_u32 s13, s12, {WS_RV}"); o(f"s_add_u32 s14, s{sWS}, s13"); o(f"s_addc_u32 s15, s{sWS+1}, 0")
    o("global_store_dwordx4 v3, v[8:11], s[14:15] sc1"); o("s_branch M_f3")
    A.label("M_f4")
    o("s_cmp_ge_u32 s2, 240"); o("s_cbranch_scc1 M_f3")
    o("s_sub_u32 s12, s2, 192"); o("s_lshl_b32 s12, s12, 12"); o(f"s_add_u32 s12, s12, {WS_CNT}")
    o(f"s_add_u32 s14, s{sWS}, s12"); o(f"s_addc_u32 s15, s{sWS+1}, 0")
    for r in range(4): o(f"v_mov_b32 v{8+r}, 0")
    o("global_store_dwordx4 v3, v[8:11], s[14:15] sc1")
    A.label("M_f3")
    o("s_waitcnt vmcnt(0)"); o("s_barrier")
    o(f"s_cmp_lg_u32 s{sW}, 0"); o("s_cbranch_scc1 M_w")
    o("s_lshl_b32 s12, s4, 2"); o("v_mov_b32 v1, s12"); o("v_mov_b32 v2, 1"); o("s_mov_b64 exec, 1")
    o(f"global_atomic_add v3, v1, v2, {s(sDBG,2)} sc0"); o("s_waitcnt vmcnt(0)")
    o("v_mov_b32 v1, 0"); o("ds_write_b32 v1, v3"); o("s_waitcnt lgkmcnt(0)"); o("s_mov_b64 exec, -1")
    A.label("M_w")
    o("s_barrier"); o("v_mov_b32 v1, 0"); o("ds_read_b32 v6, v1"); o("s_waitcnt lgkmcnt(0)"); o("v_readfirstlane_b32 s5, v6"); o("s_barrier")
    o(f"s_mov_b32 s{sChk}, 1")
    if force_slow:
        fast_check(A, "t"); o("s_branch M_slow")
    if place == 8:
        o("s_cmp_lt_u32 s5, 16"); o("s_cbranch_scc1 M_rec_fast")
        o("s_cmp_lt_u32 s5, 32"); o("s_cbranch_scc0 M_idle")
        o("s_sub_u32 s5, s5, 16"); o("s_branch M_bulk")
    else:
        o("s_cmp_lt_u32 s5, 32"); o("s_cbranch_scc0 M_idle")
        o("s_and_b32 s12, s4, 3"); o("s_lshl_b32 s12, s12, 1"); o("s_lshr_b32 s13, s5, 4"); o("s_add_u32 s12, s12, s13"); o("s_and_b32 s5, s5, 15")
        o("s_cmp_lt_u32 s4, 4"); o("s_mov_b32 s4, s12"); o("s_cbranch_scc1 M_rec_fast"); o("s_branch M_bulk")
    A.label("M_idle")
    fast_check(A, "i")
    A.label("M_slow")
    o(f"s_mov_b32 s{sChk}, 0")
    o("s_lshr_b32 s4, s2, 4"); o("s_and_b32 s4, s4, 7"); o("s_and_b32 s5, s2, 15")
    o("s_cmp_lt_u32 s2, 128"); o("s_cbranch_scc1 M_rec_slow")
    o("s_branch M_bulk")
    A.label("M_end"); o("s_endpgm")
    t = A.finish()
    t += "M_bulk:\n" + gen_bulk(opt)
    Ah = Asm(); fast_check(Ah, "r"); Ah("s_cmp_eq_u32 s15, 0"); Ah("s_cbranch_scc1 M_slow")
    hook = Ah.finish()
    t += "M_rec_fast:\n" + rec.gen_rec(embedded=True, pfx="RF_", fast=True, KVCHK=True, SIG=True, hook=hook, cntoff=0, **recopt)
    t += "M_rec_slow:\n" + rec.gen_rec(embedded=True, pfx="RS_", fast=False, KVCHK=True, SIG=True, hook=None, cntoff=SLOW_OFF, **recopt)
    return kernel_head(name) + t + kernel_desc(name, 256, 256)
```

```python
from asmlib import *
from layout import *

NSTEPS = 64
SENT = 0xFFFFFFFF

def gen_rec(name="rec_kernel", embedded=False, pfx="", KVCHK=False, SIG=False, hook=None, cntoff=0, fast=True, prof=False, nsteps=NSTEPS, E1_EARLY=True, E2_DELAY=0, E3_DELAY=0, KV_FIRST=0, PF=1, VSP=2, RT=0, E1_AT=7, E3_SALU_FIRST=0, LAST_SHORT=1, NOK=0, NOV=0, E2F='sc1', X4=0, X4LIM=4, E2_DEPTH=3, E2_SP=0, EP=0, FIXKV=0):
    TIMER = "s_memrealtime" if RT else "s_memtime"
    A = Asm()
    o = A
    st_fast = "" if fast else " sc1"
    sWG = 2
    sW, sG, sJ, sHA, sC, sHead = 3, 4, 5, 6, 7, 8
    sWS = 10
    sT0, sT1, sT2, sT3 = 12, 13, 14, 15
    sPtr = 16
    sMEMc, sMEMn, sQK, sVR, sPART, sPART2, sKX, sKX2, sVX, sKM, sVM = 20, 22, 24, 26, 28, 30, 32, 34, 36, 38, 40
    sRq, sRv, sRp, sRm = 42, 44, 46, 48
    sStep, sSlot, sLim = 50, 51, 52
    sMaskQK, sMaskLo = 54, 56
    sSelV = 58
    sScale = 60
    sWQ, sWK, sWV, sWO, sDBG = 62, 64, 66, 68, 70
    sTs = 66
    sProf = 96
    vL = 0; vT = [1, 2, 3, 4, 5, 6, 7]
    vE3, vQKst, vVst, vVld, vPst, vPld, vMst, vKx, vL16, vKMst = 8, 9, 10, 11, 12, 13, 14, 15, 56, 57
    vA0, vA1, vAv0, vAv1 = 16, 20, 24, 28
    vSx, vSm = 32, 40
    vPx, vPmA, vPmB = 44, 48, 50
    vDelta = 52
    vNeg = 60
    vB = 64; vK = 128; vV = 160; vQ = 192; vQr = 200; vKm = 208; vKr = 216; vVm = 224
    vLdsM, vLdsO, vLdsV = 232, 233, 234
    vSent = 236
    vX = 240
    vO = 64; vOb = 96
    vOo = [112, 116, 120, 124] + [160 + 4 * i for i in range(8)]
    LDS_MEM, LDS_O, LDS_V = 0, 16384, 32768

    if not embedded:
        o(f"s_cmp_ge_u32 s{sWG}, {256 if X4 else 128}")
        o("s_cbranch_scc1 L_rec_end")
        o(f"s_load_dwordx2 {s(sWQ,2)}, s[0:1], {KA_WQ}")
        o(f"s_load_dwordx2 {s(sWK,2)}, s[0:1], {KA_WK}")
        o(f"s_load_dwordx2 {s(sWV,2)}, s[0:1], {KA_WV}")
        o(f"s_load_dwordx2 {s(sWO,2)}, s[0:1], {KA_WO}")
        o(f"s_load_dwordx2 {s(sDBG,2)}, s[0:1], {KA_DBG}")
        o(f"s_load_dwordx2 {s(sWS,2)}, s[0:1], {KA_WS}")
        o(f"v_lshrrev_b32 v1, 6, v0")
        o(f"v_and_b32 v{vL}, 63, v0")
        o(f"v_readfirstlane_b32 s{sW}, v1")
        o(f"s_getreg_b32 s{sG}, hwreg(HW_REG_XCC_ID, 0, 4)")
        o("s_waitcnt lgkmcnt(0)")
        o(f"s_cmp_lg_u32 s{sW}, 0")
        o("s_cbranch_scc1 L_rec_noticket")
        o(f"s_lshl_b32 s{sT0}, s{sG}, 2")
        o(f"v_mov_b32 v1, s{sT0}")
        o("v_mov_b32 v2, 1")
        o("s_mov_b64 exec, 1")
        o(f"global_atomic_add v3, v1, v2, {s(sDBG,2)} sc0")
        o("s_waitcnt vmcnt(0)")
        o("v_mov_b32 v1, 0")
        o("ds_write_b32 v1, v3")
        o("s_waitcnt lgkmcnt(0)")
        o("s_mov_b64 exec, -1")
        A.label("L_rec_noticket")
        o("s_barrier")
        o("v_mov_b32 v1, 0")
        o("ds_read_b32 v3, v1")
        o("s_waitcnt lgkmcnt(0)")
        o(f"v_readfirstlane_b32 s{sJ}, v3")
        o("s_barrier")
        if X4:
            o(f"s_cmp_ge_u32 s{sG}, {X4LIM}"); o("s_cbranch_scc1 L_rec_end")
            o(f"s_sub_u32 s{sG}, s{sG}, {X4LIM-4}") if False else None
            o(f"s_lshl_b32 s{sG}, s{sG}, 1"); o(f"s_lshr_b32 s{sT0}, s{sJ}, 4"); o(f"s_add_u32 s{sG}, s{sG}, s{sT0}")
        o(f"s_and_b32 s{sJ}, s{sJ}, 15")
        o(f"s_and_b32 s{sG}, s{sG}, 7")
    else:
        o(f"s_load_dwordx2 {s(sWQ,2)}, s[0:1], {KA_WQ}")
        o(f"s_load_dwordx2 {s(sWK,2)}, s[0:1], {KA_WK}")
        o(f"s_load_dwordx2 {s(sWV,2)}, s[0:1], {KA_WV}")
        o(f"s_load_dwordx2 {s(sWO,2)}, s[0:1], {KA_WO}")
        o(f"s_load_dwordx2 {s(sWS,2)}, s[0:1], {KA_WS}")
        o("s_waitcnt lgkmcnt(0)")
    o(f"s_lshr_b32 s{sHA}, s{sJ}, 2")
    o(f"s_and_b32 s{sC}, s{sJ}, 3")
    o(f"s_lshl_b32 s{sHead}, s{sG}, 2")
    o(f"s_add_u32 s{sHead}, s{sHead}, s{sW}")
    vi, vg, vr = vT[0], vT[1], vT[2]
    o(f"v_and_b32 v{vi}, 15, v{vL}")
    o(f"v_lshrrev_b32 v{vg}, 4, v{vL}")
    o(f"v_and_b32 v{vr}, 7, v{vL}")
    o(f"v_lshlrev_b32 v{vL16}, 4, v{vL}")

    o(f"s_lshl_b32 s{sT0}, s{sG}, 2")
    o(f"s_add_u32 s{sT0}, s{sT0}, s{sHA}")
    o(f"s_lshl_b32 s{sT0}, s{sT0}, 8")
    o(f"s_lshl_b32 s{sT1}, s{sC}, 6")
    o(f"s_add_u32 s{sT0}, s{sT0}, s{sT1}")
    v1, v2, v3, v4 = vT[3], vT[4], vT[5], vT[6]
    o(f"v_lshrrev_b32 v{v1}, 2, v{vL}")
    o(f"v_lshlrev_b32 v{v1}, 13, v{v1}")
    o(f"v_and_b32 v{v2}, 3, v{vL}")
    o(f"v_lshl_add_u32 v{v1}, v{v2}, 4, v{v1}")
    o(f"v_add_u32 v{v1}, s{sT0}, v{v1}")
    o(f"s_lshl_b32 s{sT1}, s{sW}, 21")
    o(f"v_add_u32 v{v1}, s{sT1}, v{v1}")
    def dma_strip(sbase, ldsbase, nblk, rowstep):
        o(f"v_mov_b32 v{v2}, v{v1}")
        o(f"s_lshl_b32 s{sT2}, s{sW}, {(nblk*1024).bit_length()-1}")
        o(f"s_add_u32 s{sT2}, s{sT2}, {ldsbase}")
        for m in range(nblk):
            o(f"s_mov_b32 m0, s{sT2}")
            o(f"s_add_u32 s{sT2}, s{sT2}, 1024")
            o(f"global_load_lds_dwordx4 v{v2}, {s(sbase,2)}")
            if m + 1 < nblk: o(f"v_add_u32 v{v2}, {rowstep}, v{v2}")
    dma_strip(sWQ, 0, 16, 131072)
    dma_strip(sWK, 65536, 16, 131072)
    o(f"v_lshrrev_b32 v{v3}, 2, v{vi}")
    o(f"v_lshl_add_u32 v{v3}, v{vg}, 3, v{v3}")
    o(f"v_lshlrev_b32 v{v3}, 6, v{v3}")
    o(f"v_and_b32 v{v4}, 3, v{vi}")
    o(f"v_lshl_add_u32 v{v3}, v{v4}, 3, v{v3}")
    o("s_waitcnt vmcnt(0)")
    o("s_barrier")
    o(f"s_lshr_b32 s{sT0}, s{sW}, 1")
    o(f"s_lshl_b32 s{sT0}, s{sT0}, 16")
    o(f"s_and_b32 s{sT1}, s{sW}, 1")
    o(f"s_lshl_b32 s{sT1}, s{sT1}, 5")
    o(f"s_add_u32 s{sT0}, s{sT0}, s{sT1}")
    for i in range(16):
        o(f"s_lshl_b32 s{sT2}, s{sW}, 2")
        o(f"s_add_u32 s{sT2}, s{sT2}, {i}")
        o(f"s_and_b32 s{sT2}, s{sT2}, 15")
        o(f"s_lshl_b32 s{sT2}, s{sT2}, 12")
        o(f"s_add_u32 s{sT2}, s{sT2}, s{sT0}")
        o(f"v_add_u32 v{v4}, s{sT2}, v{v3}")
        for half in range(2):
            d = (i * 2 + half) * 4
            o(f"ds_read_b64_tr_b16 {a(d,2)}, v{v4} offset:{half*2048}")
            o(f"ds_read_b64_tr_b16 {a(d+2,2)}, v{v4} offset:{half*2048+256}")
        if i % 4 == 3: o("s_waitcnt lgkmcnt(0)")
    o("s_barrier")
    dma_strip(sWV, 0, 16, 131072)
    o(f"v_lshrrev_b32 v{v1}, 3, v{vL}")
    o(f"v_lshlrev_b32 v{v1}, 11, v{v1}")
    o(f"v_and_b32 v{v2}, 7, v{vL}")
    o(f"v_lshl_add_u32 v{v1}, v{v2}, 4, v{v1}")
    o(f"s_lshl_b32 s{sT0}, s{sG}, 20")
    o(f"s_lshl_b32 s{sT1}, s{sJ}, 7")
    o(f"s_add_u32 s{sT0}, s{sT0}, s{sT1}")
    o(f"s_lshl_b32 s{sT1}, s{sW}, 18")
    o(f"s_add_u32 s{sT0}, s{sT0}, s{sT1}")
    o(f"v_add_u32 v{v1}, s{sT0}, v{v1}")
    dma_strip(sWO, 65536, 16, 16384)
    o("s_waitcnt vmcnt(0)")
    o("s_barrier")
    o(f"s_and_b32 s{sT0}, s{sW}, 1")
    o(f"s_lshl_b32 s{sT0}, s{sT0}, 5")
    for i in range(8):
        o(f"s_lshl_b32 s{sT2}, s{sW}, 2")
        o(f"s_add_u32 s{sT2}, s{sT2}, {i}")
        o(f"s_and_b32 s{sT2}, s{sT2}, 15")
        o(f"s_lshl_b32 s{sT2}, s{sT2}, 12")
        o(f"s_add_u32 s{sT2}, s{sT2}, s{sT0}")
        o(f"v_add_u32 v{v4}, s{sT2}, v{v3}")
        for half in range(2):
            d = 128 + (i * 2 + half) * 4
            o(f"ds_read_b64_tr_b16 {a(d,2)}, v{v4} offset:{half*2048}")
            o(f"ds_read_b64_tr_b16 {a(d+2,2)}, v{v4} offset:{half*2048+256}")
        if i % 4 == 3: o("s_waitcnt lgkmcnt(0)")
    o(f"v_lshrrev_b32 v{v3}, 2, v{vi}")
    o(f"v_lshl_add_u32 v{v3}, v{vg}, 2, v{v3}")
    o(f"v_lshlrev_b32 v{v3}, 7, v{v3}")
    o(f"v_and_b32 v{v4}, 3, v{vi}")
    o(f"v_lshl_add_u32 v{v3}, v{v4}, 3, v{v3}")
    o(f"s_lshl_b32 s{sT0}, s{sW}, 14")
    o(f"s_add_u32 s{sT0}, s{sT0}, 65536")
    o(f"v_add_u32 v{v4}, s{sT0}, v{v3}")
    for ct in range(4):
        for u in range(4):
            d = 192 + (ct * 4 + u) * 4
            o(f"ds_read_b64_tr_b16 {a(d,2)}, v{v4} offset:{u*4096+ct*32}")
            o(f"ds_read_b64_tr_b16 {a(d+2,2)}, v{v4} offset:{u*4096+2048+ct*32}")
        o("s_waitcnt lgkmcnt(0)")
    o("s_barrier")

    if hook:
        A.raw(hook)
        o(f"v_and_b32 v{vi}, 15, v{vL}"); o(f"v_lshrrev_b32 v{vg}, 4, v{vL}"); o(f"v_and_b32 v{vr}, 7, v{vL}")
    o(f"s_lshl_b32 s{sT0}, s{sW}, 12")
    o(f"v_add_u32 v{vE3}, s{sT0}, v{vL16}")
    o(f"v_lshrrev_b32 v{v1}, 1, v{vg}")
    o(f"v_lshlrev_b32 v{v1}, 8, v{v1}")
    o(f"v_lshl_add_u32 v{v1}, v{vr}, 4, v{v1}")
    o(f"s_lshr_b32 s{sT0}, s{sC}, 1")
    o(f"s_lshl_b32 s{sT0}, s{sT0}, 10")
    o(f"s_and_b32 s{sT1}, s{sW}, 1")
    o(f"s_lshl_b32 s{sT1}, s{sT1}, 9")
    o(f"s_add_u32 s{sT0}, s{sT0}, s{sT1}")
    o(f"s_and_b32 s{sT1}, s{sC}, 1")
    o(f"s_lshl_b32 s{sT1}, s{sT1}, 7")
    o(f"s_add_u32 s{sT0}, s{sT0}, s{sT1}")
    o(f"v_add_u32 v{vKMst}, s{sT0}, v{v1}")
    o(f"s_lshl_b32 s{sT0}, s{sHA}, 12")
    o(f"s_lshr_b32 s{sT1}, s{sW}, 1")
    o(f"s_lshl_b32 s{sT1}, s{sT1}, 11")
    o(f"s_add_u32 s{sT0}, s{sT0}, s{sT1}")
    o(f"v_add_u32 v{vQKst}, s{sT0}, v{vKMst}")
    o(f"s_lshl_b32 s{sT0}, s{sHA}, 11")
    o(f"s_lshl_b32 s{sT1}, s{sC}, 9")
    o(f"s_add_u32 s{sT0}, s{sT0}, s{sT1}")
    o(f"v_add_u32 v{vVst}, s{sT0}, v{vL16}")
    o(f"s_lshl_b32 s{sT0}, s{sW}, 11")
    o(f"v_add_u32 v{vVld}, s{sT0}, v{vL16}")
    o(f"s_lshl_b32 s{sT0}, s{sG}, 4")
    o(f"s_add_u32 s{sT0}, s{sT0}, s{sJ}")
    o(f"s_lshl_b32 s{sT0}, s{sT0}, 10")
    o(f"s_and_b32 s{sT1}, s{sW}, 1")
    o(f"s_lshl_b32 s{sT1}, s{sT1}, 9")
    o(f"s_add_u32 s{sT0}, s{sT0}, s{sT1}")
    o(f"s_lshr_b32 s{sT1}, s{sW}, 1")
    o(f"s_lshl_b32 s{sT1}, s{sT1}, 7")
    o(f"s_add_u32 s{sT0}, s{sT0}, s{sT1}")
    o(f"v_add_u32 v{vPst}, s{sT0}, v{v1}")
    o(f"v_lshlrev_b32 v{vPld}, 14, v{vg}")
    o(f"v_lshl_add_u32 v{vPld}, v{vi}, 4, v{vPld}")
    o(f"s_lshl_b32 s{sT0}, s{sJ}, 10")
    o(f"s_lshl_b32 s{sT1}, s{sW}, 8")
    o(f"s_add_u32 s{sT0}, s{sT0}, s{sT1}")
    o(f"v_add_u32 v{vPld}, s{sT0}, v{vPld}")
    o(f"v_add_u32 v{vMst}, s{sT0}, v{vL16}")
    o(f"v_lshlrev_b32 v{vKx}, 13, v{vi}")
    o(f"v_lshl_add_u32 v{vKx}, v{vg}, 4, v{vKx}")
    o(f"s_lshl_b32 s{sT0}, s{sHead}, 8")
    o(f"v_add_u32 v{vKx}, s{sT0}, v{vKx}")
    o(f"v_mov_b32 v{vLdsM}, v{vL16}")
    for d in range(4):
        o(f"v_mov_b32 v{vDelta+d}, 0")
        o(f"v_mov_b32 v{v1}, 0x3f80")
        o(f"v_cmp_eq_u32 vcc, {2*d}, v{vi}")
        o(f"v_cndmask_b32 v{vDelta+d}, v{vDelta+d}, v{v1}, vcc")
        o(f"v_mov_b32 v{v1}, 0x3f800000")
        o(f"v_cmp_eq_u32 vcc, {2*d+1}, v{vi}")
        o(f"v_cndmask_b32 v{vDelta+d}, v{vDelta+d}, v{v1}, vcc")
    o(f"v_mov_b32 v{v1}, 0xff800000")
    o(f"v_cmp_lt_u32 vcc, 31, v{vL}")
    o(f"v_cndmask_b32 v{vNeg}, 0, v{v1}, vcc")
    for r in range(1, 4): o(f"v_mov_b32 v{vNeg+r}, v{vNeg}")
    for r in range(4): o(f"v_mov_b32 v{vSent+r}, -1")
    o(f"s_mov_b32 s{sMaskQK}, 0xff"); o(f"s_mov_b32 s{sMaskQK+1}, 0xff")
    o(f"s_mov_b32 s{sSelV}, -1"); o(f"s_mov_b32 s{sSelV+1}, 0")
    import math
    cs = 128 ** -0.5 * math.log2(math.e)
    import struct
    o(f"s_mov_b32 s{sScale}, 0x{struct.unpack('<I', struct.pack('<f', cs))[0]:08x}")
    o(f"s_mov_b32 s{sScale+1}, s{sScale}")
    o(f"s_mov_b32 s{sLim}, 0x400000")
    o(f"s_mov_b32 s{sStep}, 0")
    def addbase(dst, off, extra_s=None):
        o(f"s_add_u32 s{dst}, s{sWS}, {off & 0xffffffff}")
        o(f"s_addc_u32 s{dst+1}, s{sWS+1}, 0")
        if extra_s is not None:
            o(f"s_add_u32 s{dst}, s{dst}, s{extra_s}")
            o(f"s_addc_u32 s{dst+1}, s{dst+1}, 0")
    o(f"s_lshl_b32 s{sT0}, s{sHead}, 13")
    o(f"s_add_u32 s{sT0}, s{sT0}, 4096")
    addbase(sKX, WS_K, sT0)
    o(f"s_lshl_b32 s{sT0}, s{sHead}, 13")
    o(f"s_add_u32 s{sT0}, s{sT0}, 4096")
    addbase(sVX, WS_VT, sT0)
    o(f"s_lshl_b32 s{sT0}, s{sHead}, 11")
    addbase(sKM, WS_KM, sT0)
    addbase(sVM, WS_VM, sT0)
    sCNT = 16
    addbase(sCNT, WS_CNT + cntoff)
    def kv_wait(chunk_sreg_expr_setup, target, tag):
        o(f"s_lshl_b32 s{sT0}, s{sT0}, 3"); o(f"s_add_u32 s{sT0}, s{sT0}, s{sG}"); o(f"s_lshl_b32 s{sT0}, s{sT0}, 7")
        o(f"v_mov_b32 v{vX+2}, s{sT0}")
        A.label(f"L_kvw_{tag}")
        o(f"global_load_dword v{vX+3}, v{vX+2}, {s(sCNT,2)} sc1")
        o("s_waitcnt vmcnt(0)")
        o(f"v_readfirstlane_b32 s{sT1}, v{vX+3}")
        o(f"s_cmp_ge_u32 s{sT1}, {target}")
        o(f"s_cbranch_scc1 L_kvw_{tag}_ok")
        o("s_sleep 4")
        o(f"s_sub_u32 s{sLim}, s{sLim}, 1")
        o(f"s_cbranch_scc0 L_kvw_{tag}")
        o(f"s_mov_b32 s{sLim}, 0")
        A.label(f"L_kvw_{tag}_ok")
    if KVCHK:
        o(f"s_mov_b32 s{sT0}, 0")
        kv_wait(None, 16, "0")
    def load_kx():
        for t in range(8):
            o(f"global_load_dwordx4 {v(vK+t*4,4)}, v{vL16}, {s(sKX,2)} offset:{t*1024-4096}")
    load_kx()
    if prof:
        o(f"s_lshl_b32 s{sT0}, s{sG}, 4")
        o(f"s_add_u32 s{sT0}, s{sT0}, s{sJ}")
        o(f"s_lshl_b32 s{sT0}, s{sT0}, 2")
        o(f"s_add_u32 s{sT0}, s{sT0}, s{sW}")
        o(f"s_lshl_b32 s{sT0}, s{sT0}, 12")
        addbase(sProf, WS_PROF, sT0)
    nst = [0]
    def stamp():
        if not prof: return
        k = nst[0]; nst[0] += 1
        o(f"{TIMER} {s(sTs + 2*k, 2)}")

    def check(regs, lab_ok, lab_retry, tmp):
        regs = list(regs)
        o(f"v_max3_u32 v{tmp}, v{regs[0]}, v{regs[1]}, v{regs[2]}")
        k = 3
        while k + 1 < len(regs):
            o(f"v_max3_u32 v{tmp}, v{tmp}, v{regs[k]}, v{regs[k+1]}"); k += 2
        if k < len(regs):
            o(f"v_max_u32 v{tmp}, v{tmp}, v{regs[k]}")
        o(f"v_cmp_eq_u32 vcc, -1, v{tmp}")
        o(f"s_cbranch_vccz {lab_ok}")
        o(f"s_sub_u32 s{sLim}, s{sLim}, 1")
        o(f"s_cbranch_scc1 {lab_ok}_to")
        o(f"s_branch {lab_retry}")
        A.label(f"{lab_ok}_to")
        o(f"s_mov_b32 s{sLim}, 0")
        A.label(lab_ok)


    sCnt = 98
    vOo = [112, 116, 120, 124, 192, 196, 200, 204, 216, 220, 224, 228]
    vPf = 252
    def merge(main, side, every, start=0):
        side = list(side); out = [];
        for k, m_ in enumerate(main):
            out.append(m_)
            if side and k >= start and (k - start) % every == every - 1: out.append(side.pop(0))
        return out + side
    def emit(L):
        for x in L: o(x)
    def check(regs, lab_ok, lab_retry, tmp, cnt=None):
        regs = list(regs)
        o(f"v_max3_u32 v{tmp}, v{regs[0]}, v{regs[1]}, v{regs[2]}")
        k = 3
        while k + 1 < len(regs):
            o(f"v_max3_u32 v{tmp}, v{tmp}, v{regs[k]}, v{regs[k+1]}"); k += 2
        if k < len(regs):
            o(f"v_max_u32 v{tmp}, v{tmp}, v{regs[k]}")
        o(f"v_cmp_eq_u32 vcc, -1, v{tmp}")
        o(f"s_cbranch_vccz {lab_ok}")
        if prof and cnt is not None: o(f"s_add_u32 s{sCnt+cnt}, s{sCnt+cnt}, 1")
        o(f"s_sub_u32 s{sLim}, s{sLim}, 1")
        o(f"s_cbranch_scc0 {lab_retry}")
        o(f"s_mov_b32 s{sLim}, 0")
        A.label(lab_ok)
    sM = 88
    def mpoll(loads, tag, cnt):
        n = len(loads)
        regs = [b + r for b, _ in loads for r in range(4)]
        o(f"v_max3_u32 v{vX}, v{regs[0]}, v{regs[1]}, v{regs[2]}")
        k = 3
        while k + 1 < len(regs):
            o(f"v_max3_u32 v{vX}, v{vX}, v{regs[k]}, v{regs[k+1]}"); k += 2
        if k < len(regs): o(f"v_max_u32 v{vX}, v{vX}, v{regs[k]}")
        o(f"v_cmp_eq_u32 vcc, -1, v{vX}")
        o(f"s_cbranch_vccz L_{tag}_ok")
        A.label(f"L_{tag}_retry")
        if prof: o(f"s_add_u32 s{sCnt+cnt}, s{sCnt+cnt}, 1")
        for i, (b, rest) in enumerate(loads):
            o(f"v_max3_u32 v{vX}, v{b}, v{b+1}, v{b+2}")
            o(f"v_max_u32 v{vX}, v{vX}, v{b+3}")
            o(f"v_cmp_eq_u32 vcc, -1, v{vX}")
            o(f"s_cbranch_vccz L_{tag}_sk{i}")
            o("s_mov_b64 exec, vcc")
            o(f"global_load_dwordx4 {v(b,4)}, {rest}")
            o("s_mov_b64 exec, -1")
            A.label(f"L_{tag}_sk{i}")
        o("s_waitcnt vmcnt(0)")
        o(f"v_max3_u32 v{vX}, v{regs[0]}, v{regs[1]}, v{regs[2]}")
        k = 3
        while k + 1 < len(regs):
            o(f"v_max3_u32 v{vX}, v{vX}, v{regs[k]}, v{regs[k+1]}"); k += 2
        if k < len(regs): o(f"v_max_u32 v{vX}, v{vX}, v{regs[k]}")
        o(f"v_cmp_eq_u32 vcc, -1, v{vX}")
        o(f"s_cbranch_vccz L_{tag}_ok")
        o(f"s_sub_u32 s{sLim}, s{sLim}, 1")
        o(f"s_cbranch_scc0 L_{tag}_retry")
        o(f"s_mov_b32 s{sLim}, 0")
        A.label(f"L_{tag}_ok")
    if prof:
        for k in range(4): o(f"s_mov_b32 s{sCnt+k}, 0")
    vPfo = 58
    o(f"s_lshl_b32 s{sT1}, s{sG}, 2"); o(f"s_add_u32 s{sT1}, s{sT1}, s{sHA}"); o(f"s_lshl_b32 s{sT1}, s{sT1}, 13")
    o(f"s_lshl_b32 s{sT2}, s{sC}, 11"); o(f"s_add_u32 s{sT1}, s{sT1}, s{sT2}")
    o(f"s_and_b32 s{sT2}, s{sW}, 1"); o(f"s_lshl_b32 s{sT2}, s{sT2}, 10"); o(f"s_add_u32 s{sT1}, s{sT1}, s{sT2}")
    o(f"v_add_u32 v{vPfo}, s{sT1}, v{vL16}")
    o(f"s_cmp_lt_u32 s{sW}, 2")
    sPF = 18
    o(f"s_mov_b32 s{sT0}, {WS_K + 2*262144}")
    o(f"s_mov_b32 s{sT1}, {WS_VT + 2*262144}")
    o(f"s_cselect_b32 s{sT0}, s{sT0}, s{sT1}")
    o(f"s_add_u32 s{sPF}, s{sWS}, s{sT0}"); o(f"s_addc_u32 s{sPF+1}, s{sWS+1}, 0")
    def kx_loads():
        if NOK: return ["s_nop 0"] * 8
        return [f"global_load_dwordx4 {v(vK+t*4,4)}, v{vL16}, {s(sKX,2)} offset:{t*1024-4096}" for t in range(8)]
    def vx_loads():
        if NOV: return ["s_nop 0"] * 8
        return [f"global_load_dwordx4 {v(vV+4*t,4)}, v{vL16}, {s(sVX,2)} offset:{t*1024-4096}" for t in range(8)]
    vRd = [None, 232, 233, 234]
    for hs in (1, 2, 3):
        o(f"v_add_u32 v{vRd[hs]}, {hs*4096}, v{vE3}")
        o(f"v_and_b32 v{vRd[hs]}, 0x3fff, v{vRd[hs]}")
    vVw, vVr, vRw = 235, 59, 15
    o(f"s_lshl_b32 s{sT0}, s{sW}, 10")
    o(f"v_add_u32 v{vVw}, s{sT0}, v{vL16}")
    o(f"v_and_b32 v{vVr}, 31, v{vL}")
    o(f"v_lshlrev_b32 v{vVr}, 4, v{vVr}")
    o(f"v_lshrrev_b32 v{vX+2}, 5, v{vL}")
    o(f"v_lshl_add_u32 v{vVr}, v{vX+2}, 10, v{vVr}")
    vL4 = vX + 3
    o(f"v_lshlrev_b32 v{vL4}, 2, v{vL}")
    o(f"s_lshl_b32 s{sT0}, s{sW}, 8")
    o(f"v_add_u32 v{vRw}, s{sT0}, v{vL4}")
    vRr = [None, 1, 2, 3]
    for hs in (1, 2, 3):
        o(f"s_add_u32 s{sT0}, s{sW}, {hs}"); o(f"s_and_b32 s{sT0}, s{sT0}, 3"); o(f"s_lshl_b32 s{sT0}, s{sT0}, 8")
        o(f"v_add_u32 v{vRr[hs]}, s{sT0}, v{vL4}")
    vOnes = 4
    for r in range(4): o(f"v_mov_b32 v{vOnes+r}, 0x3f803f80")

    LDS_R = 36864
    A.label("L_step")
    nst[0] = 0
    if KVCHK:
        o(f"s_add_u32 s{sT0}, s{sStep}, 2"); o(f"s_and_b32 s{sT1}, s{sT0}, 7"); o(f"s_cmp_lg_u32 s{sT1}, 0"); o("s_cbranch_scc1 L_kvskip")
        o(f"s_cmp_ge_u32 s{sT0}, 64"); o("s_cbranch_scc1 L_kvskip")
        o(f"s_lshr_b32 s{sT0}, s{sT0}, 3")
        kv_wait(None, 4, "n")
        A.label("L_kvskip")
    o(f"s_and_b32 s{sSlot}, s{sStep}, 3")
    o(f"s_lshl_b32 s{sT0}, s{sSlot}, 17")
    o(f"s_lshl_b32 s{sT1}, s{sG}, 14")
    o(f"s_add_u32 s{sT2}, s{sT0}, s{sT1}")
    addbase(sMEMc, WS_RMEM, sT2)
    e3_loads = [(vB + 4*u, f"v{vE3}, {s(sMEMc,2)} offset:{u*1024} sc1") for u in range(4)]
    def qk_mfma(i, first=False):
        for half, acc in ((0, vA0), (1, vA1)):
            c = "0" if first else v(acc, 4)
            o(f"v_mfma_f32_16x16x32_bf16 {v(acc,4)}, {a((i*2+half)*4,4)}, {v(vB+4*i,4)}, {c}")
    def salu_bases():
        addbase(sQK, WS_RQK, sT2)
        o(f"s_lshl_b32 s{sT3}, s{sStep}, 17")
        addbase(sPART, WS_PARTF, sT3)
        o(f"s_add_u32 s{sPART2}, s{sPART}, 65536"); o(f"s_addc_u32 s{sPART2+1}, s{sPART+1}, 0")
        o(f"s_lshr_b32 s{sT3}, s{sT2}, 1")
        addbase(sVR, WS_RV, sT3)
        o(f"s_add_u32 s{sT3}, s{sStep}, 1"); o(f"s_and_b32 s{sT3}, s{sT3}, 3"); o(f"s_lshl_b32 s{sT3}, s{sT3}, 17"); o(f"s_add_u32 s{sT3}, s{sT3}, s{sT1}")
        addbase(sMEMn, WS_RMEM, sT3)
        o(f"s_xor_b32 s{sT3}, s{sT0}, {2<<17}")
        o(f"s_add_u32 s{sT3}, s{sT3}, s{sT1}")
        addbase(sRq, WS_RQK, sT3)
        o(f"s_lshr_b32 s{sT3}, s{sT3}, 1")
        addbase(sRv, WS_RV, sT3)
        o(f"s_add_u32 s{sT3}, s{sStep}, 3"); o(f"s_and_b32 s{sT3}, s{sT3}, 3"); o(f"s_lshl_b32 s{sT3}, s{sT3}, 17"); o(f"s_add_u32 s{sT3}, s{sT3}, s{sT1}")
        addbase(sRm, WS_RMEM, sT3)
    def simple_poll(loads, tag, cnt, first_wait):
        regs = [b + r for b, _ in loads for r in range(4)]
        o(f"s_waitcnt vmcnt({first_wait})")
        o(f"s_branch L_{tag}_c")
        A.label(f"L_{tag}_r")
        for b, rest in loads: o(f"global_load_dwordx4 {v(b,4)}, {rest}")
        o("s_waitcnt vmcnt(0)")
        A.label(f"L_{tag}_c")
        check(regs, f"L_{tag}_ok", f"L_{tag}_r", vX, cnt)
    if E3_SALU_FIRST: salu_bases()
    stamp()
    for b, rest in e3_loads: o(f"global_load_dwordx4 {v(b,4)}, {rest}")
    if not E3_SALU_FIRST: salu_bases()
    simple_poll(e3_loads, "e3", 0, 0)
    for u, (b, rest) in enumerate(e3_loads):
        o(f"ds_write_b128 v{vE3}, {v(b,4)} offset:{LDS_MEM + u*1024}")
    for u in range(4): qk_mfma(u, first=(u == 0))
    stamp()
    o("s_waitcnt lgkmcnt(0)")
    o("s_barrier")
    for i in range(4, 16):
        o(f"ds_read_b128 {v(vB+4*i,4)}, v{vRd[i//4]} offset:{LDS_MEM + (i%4)*1024}")
    vxl = vx_loads()
    for i in range(4, 16):
        o(f"s_waitcnt lgkmcnt({15-i})")
        qk_mfma(i)
        if i % VSP == VSP - 1 and vxl: o(vxl.pop(0))
    stamp()
    for r in range(4):
        o(f"v_add_f32_dpp v{vA0+r}, v{vA1+r}, v{vA0+r} row_ror:8 row_mask:0xf bank_mask:0xf")
    R = vX + 4
    o(f"v_cvt_pk_bf16_f32 v{R}, v{vA0}, v{vA0+1}")
    o(f"v_cvt_pk_bf16_f32 v{R+1}, v{vA0+2}, v{vA0+3}")
    o(f"v_permlane16_swap_b32 v{R}, v{R+2}")
    o(f"v_permlane16_swap_b32 v{R+1}, v{R+3}")
    o(f"s_mov_b64 exec, {s(sMaskQK,2)}")
    o(f"global_store_dwordx4 v{vQKst}, {v(R,4)}, {s(sQK,2)}{st_fast}")
    o("s_mov_b64 exec, -1")
    stamp()
    e1_loads = [(vQ + 4*cp, f"v{vE3}, {s(sQK,2)} offset:{cp*1024} sc1") for cp in range(2)] + [(vKm + 4*cp, f"v{vE3}, {s(sQK,2)} offset:{2048+cp*1024} sc1") for cp in range(2)]
    def e1_issue():
        for b, rest in e1_loads: o(f"global_load_dwordx4 {v(b,4)}, {rest}")
    for i in range(8):
        for half, acc in ((0, vAv0), (1, vAv1)):
            c = "0" if i == 0 else v(acc, 4)
            o(f"v_mfma_f32_16x16x32_bf16 {v(acc,4)}, {v(vB+4*i,4)}, {a(128+(i*2+half)*4,4)}, {c}")
        if vxl and i % 2 == 1: o(vxl.pop(0))
        if i == E1_AT:
            emit(vxl); vxl = []
            e1_issue()
    emit(vxl)
    for r in range(4):
        o(f"v_cndmask_b32 v{vAv0+r}, v{vAv1+r}, v{vAv0+r}, {s(sSelV,2)}")
    o(f"ds_write_b128 v{vVw}, {v(vAv0,4)} offset:{LDS_V}")
    o("s_waitcnt lgkmcnt(0)")
    o("s_barrier")
    o(f"s_cmp_lg_u32 s{sW}, 0")
    o("s_cbranch_scc1 L_vred_skip")
    T = vA0
    for k, off in enumerate((0, 512, 2048, 2560)):
        o(f"ds_read_b128 {v(T+4*k,4)}, v{vVr} offset:{LDS_V+off}")
    o("s_waitcnt lgkmcnt(0)")
    for r in range(4):
        o(f"v_add_f32 v{T+r}, v{T+r}, v{T+4+r}")
        o(f"v_add_f32 v{T+8+r}, v{T+8+r}, v{T+12+r}")
    for r in range(4):
        o(f"v_add_f32 v{T+r}, v{T+r}, v{T+8+r}")
    o(f"v_cvt_pk_bf16_f32 v{R}, v{T}, v{T+1}")
    o(f"v_cvt_pk_bf16_f32 v{R+1}, v{T+2}, v{T+3}")
    o(f"v_permlane32_swap_b32 v{R}, v{R+2}")
    o(f"v_permlane32_swap_b32 v{R+1}, v{R+3}")
    o(f"s_mov_b64 exec, {s(sSelV,2)}")
    o(f"global_store_dwordx4 v{vVst}, {v(R,4)}, {s(sVR,2)}{st_fast}")
    o("s_mov_b64 exec, -1")
    o("s_waitcnt vmcnt(1)")
    o("s_branch L_e1_c")
    A.label("L_e1_r")
    e1_issue()
    A.label("L_vred_skip")
    o("s_waitcnt vmcnt(0)")
    A.label("L_e1_c")
    check([b + r for b, _ in e1_loads for r in range(4)], "L_e1_ok", "L_e1_r", vX, 1)
    stamp()
    def M32(d, A_, B_, C_): return f"v_mfma_f32_16x16x32_bf16 {v(d,4)}, {A_}, {B_}, {C_}"
    def rot(dst, srcr): return [f"v_mov_b32_dpp v{dst+r}, v{srcr+r} row_ror:8 row_mask:0xf bank_mask:0xf" for r in range(4)]
    Kf = lambda kt, u: v(vK + (kt*4+u)*4, 4)
    seq = []
    seq += [M32(vSx, Kf(0,0), v(vQ,4), "0")] + rot(vQr, vQ)[:2]
    seq += [M32(vSx+4, Kf(1,0), v(vQ,4), "0")] + rot(vQr, vQ)[2:]
    seq += [M32(vSm, v(vKm,4), v(vQ,4), v(vNeg,4))] + rot(vQr+4, vQ+4)[:2]
    seq += [M32(vSx, Kf(0,2), v(vQ+4,4), v(vSx,4))] + rot(vQr+4, vQ+4)[2:]
    seq += [M32(vSx+4, Kf(1,2), v(vQ+4,4), v(vSx+4,4))] + rot(vKr, vKm)[:2]
    seq += [M32(vSm, v(vKm+4,4), v(vQ+4,4), v(vSm,4))] + rot(vKr, vKm)[2:]
    seq += [M32(vSx, Kf(0,1), v(vQr,4), v(vSx,4))] + rot(vKr+4, vKm+4)[:2]
    seq += [M32(vSx+4, Kf(1,1), v(vQr,4), v(vSx+4,4))] + rot(vKr+4, vKm+4)[2:]
    seq += [M32(vSx, Kf(0,3), v(vQr+4,4), v(vSx,4))]
    seq += [M32(vSx+4, Kf(1,3), v(vQr+4,4), v(vSx+4,4))]
    seq += [M32(vSm, v(vKr,4), v(vQr,4), v(vSm,4))]
    seq += [M32(vSm, v(vKr+4,4), v(vQr+4,4), v(vSm,4))]
    emit(seq)
    if not FIXKV:
        o(f"s_add_u32 s{sKX}, s{sKX}, 262144"); o(f"s_addc_u32 s{sKX+1}, s{sKX+1}, 0")
    vm_loads = [(vVm + 4*mm, f"v{vVld}, {s(sVR,2)} offset:{mm*1024} sc1") for mm in range(2)]
    for b, rest in vm_loads: o(f"global_load_dwordx4 {v(b,4)}, {rest}")
    m, t = vX + 1, vX + 2
    Sall = list(range(vSx, vSx + 8)) + list(range(vSm, vSm + 4))
    m2 = vX + 3
    o(f"v_max3_f32 v{m}, v{Sall[0]}, v{Sall[1]}, v{Sall[2]}")
    o(f"v_max3_f32 v{m2}, v{Sall[4]}, v{Sall[5]}, v{Sall[6]}")
    o(f"v_max3_f32 v{m}, v{m}, v{Sall[3]}, v{Sall[7]}")
    o(f"v_max3_f32 v{m2}, v{m2}, v{Sall[8]}, v{Sall[9]}")
    o(f"v_max3_f32 v{m}, v{m}, v{Sall[10]}, v{Sall[11]}")
    o(f"v_max_f32 v{m}, v{m}, v{m2}")
    for sw in ("16", "32"):
        o(f"v_mov_b32 v{t}, v{m}")
        o(f"v_permlane{sw}_swap_b32 v{m}, v{t}")
        o(f"v_max_f32 v{m}, v{m}, v{t}")
    mm_ = vX + 2
    o(f"v_mul_f32 v{mm_}, s{sScale}, v{m}")
    kxl = kx_loads()
    main = []
    for r in Sall[::2]: main.append(f"v_pk_fma_f32 {v(r,2)}, {v(r,2)}, {s(sScale,2)}, {v(mm_,2)} op_sel_hi:[1,1,0] neg_lo:[0,0,1] neg_hi:[0,0,1]")
    for k_, r in enumerate(Sall):
        main.append(f"v_exp_f32 v{r}, v{r}")
    emit(merge(main, [kxl.pop(0), kxl.pop(0)], 7))
    o(f"v_cvt_pk_bf16_f32 v{vPx}, v{vSx}, v{vSx+1}")
    o(f"v_cvt_pk_bf16_f32 v{vPx+1}, v{vSx+2}, v{vSx+3}")
    o(f"v_cvt_pk_bf16_f32 v{vPx+2}, v{vSx+4}, v{vSx+5}")
    o(f"v_cvt_pk_bf16_f32 v{vPx+3}, v{vSx+6}, v{vSx+7}")
    o(f"v_cvt_pk_bf16_f32 v{vPmA}, v{vSm}, v{vSm+1}")
    o(f"v_cvt_pk_bf16_f32 v{vPmA+1}, v{vSm+2}, v{vSm+3}")
    stamp()
    vLs = vSx
    pv = [M32(vO+4*tt, v(vV+4*tt,4), v(vPx,4), "0") for tt in range(8)]
    side = [f"v_mov_b32 v{vX+4}, v{vPmA}", f"v_mov_b32 v{vX+5}, v{vPmA+1}", f"v_mov_b32 v{vPmB}, 0", f"v_mov_b32 v{vPmB+1}, 0",
            f"v_permlane32_swap_b32 v{vPmB}, v{vX+4}", f"v_permlane32_swap_b32 v{vPmB+1}, v{vX+5}", kxl.pop(0)]
    emit(merge(pv, side, 1))
    o(M32(vLs, v(vOnes,4), v(vPx,4), "0"))
    o(f"v_mfma_f32_16x16x16_bf16 {v(vLs,4)}, {v(vOnes,2)}, {v(vPmA,2)}, {v(vLs,4)}")
    simple_poll(vm_loads, "vm", 2, 3)
    stamp()
    o(f"s_and_b32 s{sT0}, s{sStep}, 15"); o(f"s_cmp_lg_u32 s{sT0}, s{sJ}"); o("s_cbranch_scc1 L_nopub")
    for cp in range(2): o(f"global_store_dwordx4 v{vL16}, {v(vKm+4*cp,4)}, {s(sKM,2)} offset:{cp*1024} sc1")
    for cp in range(2): o(f"global_store_dwordx4 v{vL16}, {v(vVm+4*cp,4)}, {s(sVM,2)} offset:{cp*1024} sc1")
    A.label("L_nopub")
    if LAST_SHORT:
        o(f"s_cmp_eq_u32 s{sStep}, {nsteps-1}")
        o("s_cbranch_scc1 L_rec_last")
    if PF: o(f"global_load_dwordx4 {v(vPf,4)}, v{vPfo}, {s(sPF,2)}")
    def pvm(tt):
        c, tv = tt >> 1, tt & 1
        pm = vPmB if (c & 1) else vPmA
        return f"v_mfma_f32_16x16x16_bf16 {v(vO+4*tt,4)}, {v(vVm+4*(c>>1)+2*tv,2)}, {v(pm,2)}, {v(vO+4*tt,4)}"
    def cvt(tt):
        u, h = tt >> 1, tt & 1
        return [f"v_cvt_pk_bf16_f32 v{vOb+4*u+2*h}, v{vO+4*tt}, v{vO+4*tt+1}", f"v_cvt_pk_bf16_f32 v{vOb+4*u+2*h+1}, v{vO+4*tt+2}, v{vO+4*tt+3}"]
    vCa = [16, 20, 24, 28]
    for tt in range(3): o(pvm(tt))
    l_ = vX + 1
    def cm(ct, u):
        c = "0" if u == 0 else v(vCa[ct], 4)
        return f"v_mfma_f32_16x16x32_bf16 {v(vCa[ct],4)}, {a(192+(ct*4+u)*4,4)}, {v(vOb+4*u,4)}, {c}"
    pend = []
    for tt in range(8):
        if tt + 3 < 8: o(pvm(tt + 3))
        cv = cvt(tt)
        o(cv[0])
        if pend: o(pend.pop(0))
        o(cv[1])
        if pend: o(pend.pop(0))
        if tt == 0: o(f"v_rcp_f32 v{l_}, v{vLs}")
        if tt % 2 == 1:
            pend += [cm(ct, tt >> 1) for ct in range(4)]
            if kxl: o(kxl.pop(0))
    emit(pend)
    for ct in range(4):
        pass
    o(f"v_mov_b32 v{vX+2}, v{l_}")
    for ct in range(4):
        o(f"v_pk_mul_f32 {v(vCa[ct],2)}, {v(vCa[ct],2)}, {v(vX+2,2)} op_sel_hi:[1,0]")
        o(f"v_pk_mul_f32 {v(vCa[ct]+2,2)}, {v(vCa[ct]+2,2)}, {v(vX+2,2)} op_sel_hi:[1,0]")
        o(f"ds_write_b128 v{vVw}, {v(vCa[ct],4)} offset:{LDS_O+ct*4096}")
    while kxl: o(kxl.pop(0))
    o("s_waitcnt lgkmcnt(0)")
    o("s_barrier")
    stamp()
    Rr = [112, 116, 120, 124]
    for sw in range(4): o(f"ds_read_b128 {v(Rr[sw],4)}, v{vE3} offset:{LDS_O+sw*1024}")
    vC = Rr[0]
    o("s_waitcnt lgkmcnt(2)")
    o(f"v_pk_add_f32 {v(Rr[0],2)}, {v(Rr[0],2)}, {v(Rr[1],2)}"); o(f"v_pk_add_f32 {v(Rr[0]+2,2)}, {v(Rr[0]+2,2)}, {v(Rr[1]+2,2)}")
    o("s_waitcnt lgkmcnt(0)")
    o(f"v_pk_add_f32 {v(Rr[2],2)}, {v(Rr[2],2)}, {v(Rr[3],2)}"); o(f"v_pk_add_f32 {v(Rr[2]+2,2)}, {v(Rr[2]+2,2)}, {v(Rr[3]+2,2)}")
    o(f"v_pk_add_f32 {v(Rr[0],2)}, {v(Rr[0],2)}, {v(Rr[2],2)}"); o(f"v_pk_add_f32 {v(Rr[0]+2,2)}, {v(Rr[0]+2,2)}, {v(Rr[2]+2,2)}")
    o(f"v_cvt_pk_bf16_f32 v{R}, v{vC}, v{vC+1}")
    o(f"v_cvt_pk_bf16_f32 v{R+1}, v{vC+2}, v{vC+3}")
    o(f"v_permlane16_swap_b32 v{R}, v{R+2}")
    o(f"v_permlane16_swap_b32 v{R+1}, v{R+3}")
    o(f"s_mov_b64 exec, {s(sMaskQK,2)}")
    if EP == 2:
        o("s_waitcnt vmcnt(0)")
        o(f"{TIMER} {s(sTs + 2*5, 2)}")
    o(f"global_store_dwordx4 v{vPst}, {v(R,4)}, {s(sPART,2)} sc1")
    stamp()
    if EP == 2:
        o("s_waitcnt vmcnt(0)")
        o(f"{TIMER} {s(sTs + 2*4, 2)}")
    o(f"global_store_dwordx4 v{vQKst}, {v(vSent,4)}, {s(sRq,2)}{st_fast}")
    o(f"s_mov_b64 exec, 0xffff")
    o(f"global_store_dwordx4 v{vMst}, {v(vSent,4)}, {s(sRm,2)}{st_fast}")
    o(f"s_cmp_lg_u32 s{sW}, 0")
    o("s_cbranch_scc1 L_norv")
    o(f"s_mov_b64 exec, {s(sSelV,2)}")
    o(f"global_store_dwordx4 v{vVst}, {v(vSent,4)}, {s(sRv,2)}{st_fast}")
    A.label("L_norv")
    o("s_mov_b64 exec, -1")
    if not FIXKV:
        o(f"s_add_u32 s{sVX}, s{sVX}, 262144"); o(f"s_addc_u32 s{sVX+1}, s{sVX+1}, 0")
    o(f"s_add_u32 s{sKM}, s{sKM}, 65536"); o(f"s_addc_u32 s{sKM+1}, s{sKM+1}, 0")
    o(f"s_add_u32 s{sVM}, s{sVM}, 65536"); o(f"s_addc_u32 s{sVM+1}, s{sVM+1}, 0")
    if E2_DELAY: o(f"s_sleep {E2_DELAY}")
    sets = [vB + 8 * k for k in range(E2_DEPTH)]
    def e2_issue(b):
        o(f"global_load_dwordx4 {v(b,4)}, v{vPld}, {s(sPART,2)} {E2F}")
        o(f"global_load_dwordx4 {v(b+4,4)}, v{vPld}, {s(sPART2,2)} {E2F}")
    if EP: o(f"{TIMER} {s(sTs + 2*2, 2)}")
    for k, b in enumerate(sets):
        e2_issue(b)
        if k + 1 < len(sets) and E2_SP: o(f"s_sleep {E2_SP}")
    if EP:
        o(f"s_waitcnt vmcnt({2*(len(sets)-1)})")
        o(f"{TIMER} {s(sTs + 2*3, 2)}")
    A.label("L_e2")
    for k, b in enumerate(sets):
        o(f"s_waitcnt vmcnt({2*(len(sets)-1)})")
        regs = list(range(b, b + 8))
        o(f"v_max3_u32 v{vX}, v{regs[0]}, v{regs[1]}, v{regs[2]}")
        o(f"v_max3_u32 v{vX}, v{vX}, v{regs[3]}, v{regs[4]}")
        o(f"v_max3_u32 v{vX}, v{vX}, v{regs[5]}, v{regs[6]}")
        o(f"v_max_u32 v{vX}, v{vX}, v{regs[7]}")
        o(f"v_cmp_eq_u32 vcc, -1, v{vX}")
        o(f"s_cbranch_vccz L_e2_ok{k}")
        if prof: o(f"s_add_u32 s{sCnt+3}, s{sCnt+3}, 1")
        e2_issue(b)
    o(f"s_sub_u32 s{sLim}, s{sLim}, 1")
    o(f"s_cbranch_scc0 L_e2")
    o(f"s_mov_b32 s{sLim}, 0")
    D = vA1
    for k, b in enumerate(sets):
        A.label(f"L_e2_ok{k}")
        o(f"v_mfma_f32_16x16x32_bf16 {v(D,4)}, {v(vDelta,4)}, {v(b,4)}, 0")
        o(f"v_mfma_f32_16x16x32_bf16 {v(D,4)}, {v(vDelta,4)}, {v(b+4,4)}, {v(D,4)}")
        if k + 1 < len(sets): o("s_branch L_e2_done")
    A.label("L_e2_done")
    if SIG:
        o(f"s_and_b32 s{sT0}, s{sStep}, 15"); o(f"s_cmp_lg_u32 s{sT0}, s{sJ}"); o("s_cbranch_scc1 L_nosig")
        o(f"s_lshl_b32 s{sT0}, s{sStep}, 7"); o(f"s_add_u32 s{sT0}, s{sT0}, {CNT_REC}")
        o(f"v_mov_b32 v{vX+2}, s{sT0}"); o(f"v_mov_b32 v{vX+3}, 1")
        o("s_mov_b64 exec, 1")
        o(f"global_atomic_add v{vX+2}, v{vX+3}, {s(sCNT,2)}")
        o("s_mov_b64 exec, -1")
        A.label("L_nosig")
    o(f"s_add_u32 s{sPF}, s{sPF}, 262144"); o(f"s_addc_u32 s{sPF+1}, s{sPF+1}, 0")
    stamp()
    o("s_nop 7")
    o(f"v_cvt_pk_bf16_f32 v{R}, v{D}, v{D+1}")
    o(f"v_cvt_pk_bf16_f32 v{R+1}, v{D+2}, v{D+3}")
    o(f"v_permlane16_swap_b32 v{R}, v{R+2}")
    o(f"v_permlane16_swap_b32 v{R+1}, v{R+3}")
    o(f"s_mov_b64 exec, 0xffff")
    o(f"global_store_dwordx4 v{vMst}, {v(R,4)}, {s(sMEMn,2)}{st_fast}")
    o("s_mov_b64 exec, -1")
    stamp()
    if E3_DELAY: o(f"s_sleep {E3_DELAY}")
    if prof:
        o("s_waitcnt lgkmcnt(0)")
        for k in range(nst[0]):
            o(f"v_writelane_b32 v{vX+8}, s{sTs+2*k}, {k}")
        for k in range(4):
            o(f"v_writelane_b32 v{vX+8}, s{sCnt+k}, {11+k}")
        o(f"v_writelane_b32 v{vX+8}, s92, 15")
        o(f"s_lshl_b32 s{sT0}, s{sW}, 12")
        o(f"s_lshl_b32 s{sT1}, s{sStep}, 6")
        o(f"s_add_u32 s{sT0}, s{sT0}, s{sT1}")
        o(f"s_add_u32 s{sT0}, s{sT0}, 40960")
        o(f"v_lshlrev_b32 v{vX+9}, 2, v{vL}")
        o(f"v_add_u32 v{vX+9}, s{sT0}, v{vX+9}")
        o("s_mov_b64 exec, 0xffff")
        o(f"ds_write_b32 v{vX+9}, v{vX+8}")
        o("s_mov_b64 exec, -1")
    o(f"s_add_u32 s{sStep}, s{sStep}, 1")
    o(f"s_cmp_lt_u32 s{sStep}, {nsteps}")
    o("s_cbranch_scc1 L_step")
    o("s_branch L_rec_fin")
    A.label("L_rec_last")
    if SIG:
        o("s_waitcnt vmcnt(0)")
        o(f"s_and_b32 s{sT0}, s{sStep}, 15"); o(f"s_cmp_lg_u32 s{sT0}, s{sJ}"); o("s_cbranch_scc1 L_rec_fin")
        o(f"s_lshl_b32 s{sT0}, s{sStep}, 7"); o(f"s_add_u32 s{sT0}, s{sT0}, {CNT_REC}")
        o(f"v_mov_b32 v{vX+2}, s{sT0}"); o(f"v_mov_b32 v{vX+3}, 1")
        o("s_mov_b64 exec, 1")
        o(f"global_atomic_add v{vX+2}, v{vX+3}, {s(sCNT,2)}")
        o("s_mov_b64 exec, -1")
    A.label("L_rec_fin")
    if prof:
        o("s_waitcnt lgkmcnt(0)")
        o(f"s_lshl_b32 s{sT0}, s{sW}, 12")
        o(f"s_add_u32 s{sT0}, s{sT0}, 40960")
        o(f"v_add_u32 v{vX+9}, s{sT0}, v{vL16}")
        for k in range(4):
            o(f"ds_read_b128 {v(vB+4*k,4)}, v{vX+9} offset:{k*1024}")
        o("s_waitcnt lgkmcnt(0)")
        for k in range(4):
            o(f"global_store_dwordx4 v{vL16}, {v(vB+4*k,4)}, {s(sProf,2)} offset:{k*1024}")
    o("s_waitcnt vmcnt(0)")
    A.label("L_rec_end")
    o("s_endpgm")
    txt = A.finish()
    if embedded:
        import re
        return re.sub(r"\bL_", pfx + "L_", txt)
    return kernel_head(name) + txt + kernel_desc(name, 256, 256)

if __name__ == "__main__":
    import sys
    fast = "slow" not in sys.argv
    prof = "prof" in sys.argv
    ng = 256 if any(x.startswith("X4=1") for x in sys.argv) else 128
    hdr = f"; @launch kernel=rec_kernel grid=({ng},1,1) block=(256,1,1) lds=131072\n.amdgcn_target \"amdgcn-amd-amdhsa--gfx950\"\n.text\n"
    kw = {}
    for x in sys.argv[1:]:
        if "=" in x:
            k_, v_ = x.split("=");
            if k_ != "out": kw[k_] = int(v_) if v_.isdigit() else v_
    outn = [x.split("=")[1] for x in sys.argv if x.startswith("out=")]
    open(outn[0] if outn else "rec_test.s", "w").write(hdr + gen_rec(fast=fast, prof=prof, **kw))
```

```python
import sys
from layout import *
import k_gemms, mega2
NAME = "adaLN_cond__memory_aug_recurrent_mem_tr__mixer_token_mlp__prompt"
HDR = open("cdna_kernels/" + NAME + ".s.ref").read().split("; Override launch geometry")[0]
def build(out, prof=False, slow=False, place=8, opt=None):
    import k_small
    g2, l_g2 = k_gemms.gen_g2()
    p3 = (opt or {}).get("p3", 4)
    launches = [("mega_kernel", 256, 256, 131072)]
    extra = ""
    if p3 < 4:
        op, l_op = k_gemms.gen_op(); g1, l_g1 = k_gemms.gen_g1()
        if p3 == 0:
            import k_attn
            launches += [("attn_kernel", 1024, 256, 0)]; pre_extra = k_attn.gen_attn()
        else: pre_extra = ""
        launches += [("op_kernel", 256, 256, l_op), ("ln2_kernel", 64, 1024, 32 * 2112), ("g1_kernel", 224, 256, l_g1)]
        extra = pre_extra + op + k_small.gen_ln2() + g1
    launches += [("g2_kernel", 256, 256, l_g2)]
    t = HDR
    for k, g, b, l in launches: t += f"; @launch kernel={k} grid=({g},1,1) block=({b},1,1) lds={l}\n"
    t += '.amdgcn_target "amdgcn-amd-amdhsa--gfx950"\n.text\n'
    t += mega2.gen_mega(recopt=dict(E2_DEPTH=2, E2_SP=3, E2_DELAY=2, prof=prof, RT=1), force_slow=slow, place=place, opt=opt) + extra + g2
    open(out, "w").write(t)
if __name__ == "__main__":
    opt = {'S': 4}
    for x in sys.argv[2:]:
        if '=' in x: opt[x.split('=')[0]] = int(x.split('=')[1])
    build(sys.argv[1], 'prof' in sys.argv, 'slow' in sys.argv, 4 if 'p4' in sys.argv else 8, opt)
```

```python
from asmlib import *
from layout import *

class Gemm:
    def __init__(self, A, NX, NY, swap, pfx, acc_agpr=True, accbase=0):
        self.accbase = accbase
        self.A = A; self.NX = NX; self.NY = NY; self.swap = swap; self.pfx = pfx
        self.XW = 2 * NX * 16; self.YH = 2 * NY * 16
        self.RB = 2 * self.XW
        self.NIX = self.XW // 64; self.NIY = self.YH // 64
        self.XB = 32 * self.RB; self.YB = self.YH * 64
        self.SB = self.XB + self.YB
        self.NDMA = self.NIX + self.NIY
        self.nacc = NX * NY * 4
        r = 8
        self.vXr = r; r += NX
        self.vYr = r; r += 1
        self.vXd = r; r += self.NIX
        self.vYd = r; r += self.NIY
        r = (r + 3) // 4 * 4
        self.vF = r
        self.FS = (NX + NY) * 4
        r += 2 * self.FS
        self.vEnd = r
    def acc(self, jx, jy):
        return a(self.accbase + (jx * self.NY + jy) * 4, 4)
    def accr(self, jx, jy): return self.accbase + (jx * self.NY + jy) * 4
    def fX(self, ph, j): return self.vF + ph * self.FS + 4 * j
    def fY(self, ph, j): return self.vF + ph * self.FS + 4 * (self.NX + j)

    def setup(self, sW, vL, ldx, ldy, T, sTmp):
        o = self.A; NX, NY = self.NX, self.NY
        vi, vg, t0, t1, t2, t3 = T[:6]
        s0, s1 = sTmp[:2]
        o(f"v_and_b32 v{vi}, 15, v{vL}")
        o(f"v_lshrrev_b32 v{vg}, 4, v{vL}")
        o(f"v_lshrrev_b32 v{t0}, 2, v{vi}")
        o(f"v_and_b32 v{t1}, 1, v{vg}")
        o(f"v_lshrrev_b32 v{t2}, 1, v{vg}")
        if self.XW == 256:
            o(f"v_lshlrev_b32 v{t3}, 3, v{t0}")
            o(f"v_lshl_add_u32 v{t3}, v{t2}, 2, v{t3}")
            o(f"v_add_u32 v{t3}, v{t3}, v{t1}")
            o(f"v_lshl_or_b32 v{t0}, v{t1}, 2, v{t0}")
        elif self.XW == 128:
            o(f"v_lshl_add_u32 v{t3}, v{vg}, 3, v{t0}")
            o(f"v_lshl_or_b32 v{t0}, v{t1}, 2, v{t0}")
        else:
            o(f"v_lshlrev_b32 v{t3}, 4, v{t2}")
            o(f"v_lshl_add_u32 v{t3}, v{t0}, 1, v{t3}")
            o(f"v_add_u32 v{t3}, v{t3}, v{t1}")
        sh = self.RB.bit_length() - 1
        o(f"v_lshlrev_b32 v{t3}, {sh}, v{t3}")
        o(f"v_and_b32 v{t1}, 3, v{vi}")
        o(f"v_lshl_add_u32 v{t3}, v{t1}, 3, v{t3}")
        o(f"s_and_b32 s{s0}, s{sW}, 1")
        o(f"s_mul_i32 s{s0}, s{s0}, {NX}")
        for j in range(NX):
            o(f"s_add_u32 s{s1}, s{s0}, {j}")
            o(f"v_xor_b32 v{t1}, s{s1}, v{t0}")
            o(f"v_lshl_add_u32 v{self.vXr+j}, v{t1}, 5, v{t3}")
        o(f"v_lshrrev_b32 v{t0}, 2, v{vi}")
        o(f"v_lshrrev_b32 v{t1}, 1, v{t0}")
        o(f"v_and_b32 v{t2}, 1, v{t0}")
        o(f"v_xor_b32 v{t2}, v{t2}, v{t1}")
        o(f"v_lshl_or_b32 v{t2}, v{t2}, 1, v{t1}")
        o(f"v_xor_b32 v{t2}, v{t2}, v{vg}")
        o(f"v_lshlrev_b32 v{t2}, 4, v{t2}")
        o(f"v_lshl_add_u32 v{t2}, v{vi}, 6, v{t2}")
        o(f"s_lshr_b32 s{s0}, s{sW}, 1")
        o(f"s_mul_i32 s{s0}, s{s0}, {NY*16*64}")
        o(f"s_add_u32 s{s0}, s{s0}, {self.XB}")
        o(f"v_add_u32 v{self.vYr}, s{s0}, v{t2}")
        ppr = self.RB // 16
        lg = ppr.bit_length() - 1
        o(f"v_lshrrev_b32 v{t0}, {lg}, v{vL}")
        o(f"v_and_b32 v{t1}, {ppr-1}, v{vL}")
        if self.XW == 256:
            o(f"v_lshlrev_b32 v{t2}, 3, v{t0}")
            o(f"v_add_u32 v{t2}, s{sW}, v{t2}")
            o(f"v_lshlrev_b32 v{t3}, 2, v{t0}")
            o(f"v_or_b32 v{t3}, s{sW}, v{t3}")
            toff = [0, 4, 16, 20]
        elif self.XW == 128:
            o(f"s_and_b32 s{s0}, s{sW}, 1")
            o(f"s_lshl_b32 s{s1}, s{s0}, 3")
            o(f"v_add_u32 v{t2}, s{s1}, v{t0}")
            o(f"s_lshr_b32 s{s1}, s{sW}, 1"); o(f"s_lshl_b32 s{s1}, s{s1}, 4")
            o(f"v_add_u32 v{t2}, s{s1}, v{t2}")
            o(f"s_lshl_b32 s{s0}, s{s0}, 2")
            o(f"v_or_b32 v{t3}, s{s0}, v{t0}")
            toff = [0, 4]
        else:
            o(f"v_lshrrev_b32 v{t3}, 1, v{t0}")
            o(f"v_and_b32 v{t2}, 1, v{t0}")
            o(f"v_lshl_add_u32 v{t2}, v{t2}, 3, v{t3}")
            o(f"s_and_b32 s{s0}, s{sW}, 1"); o(f"s_lshl_b32 s{s0}, s{s0}, 2")
            o(f"s_lshr_b32 s{s1}, s{sW}, 1"); o(f"s_lshl_b32 s{s1}, s{s1}, 4")
            o(f"s_add_u32 s{s0}, s{s0}, s{s1}")
            o(f"v_add_u32 v{t2}, s{s0}, v{t2}")
            toff = [0]
        o(f"v_lshrrev_b32 v{vi}, 1, v{t1}")
        o(f"v_xor_b32 v{vi}, v{vi}, v{t3}")
        o(f"v_lshlrev_b32 v{vi}, 5, v{vi}")
        o(f"v_and_b32 v{t1}, 1, v{t1}")
        o(f"v_lshl_or_b32 v{vi}, v{t1}, 4, v{vi}")
        o(f"s_mov_b32 s{s0}, {ldx}")
        o(f"v_mul_lo_u32 v{t2}, v{t2}, s{s0}")
        o(f"v_add_u32 v{self.vXd}, v{t2}, v{vi}")
        for t in range(1, self.NIX):
            o(f"v_add_u32 v{self.vXd+t}, {toff[t]*ldx}, v{self.vXd}")
        o(f"v_lshlrev_b32 v{t0}, 4, v{vL}")
        o(f"s_mul_i32 s{s0}, s{sW}, {self.NIY*1024}")
        o(f"v_add_u32 v{self.vYd}, s{s0}, v{t0}")
        for t in range(1, self.NIY):
            o(f"v_add_u32 v{self.vYd+t}, {t*1024}, v{self.vYd}")

    def dma(self, stage, sSrdX, sSrdY, sOffX, sOffY, sM0base):
        L = []
        for t in range(self.NIX):
            L.append([f"s_add_u32 m0, s{sM0base[0]}, {stage*self.SB + t*1024}",
                      f"buffer_load_dwordx4 v{self.vXd+t}, {s(sSrdX,4)}, s{sOffX} offen lds"])
        for t in range(self.NIY):
            L.append([f"s_add_u32 m0, s{sM0base[1]}, {stage*self.SB + self.XB + t*1024}",
                      f"buffer_load_dwordx4 v{self.vYd+t}, {s(sSrdY,4)}, s{sOffY} offen lds"])
        return L
    def reads(self, stage, ph, hi):
        L = []
        base = stage * self.SB
        def addr(reg, off):
            if off <= 65535 - 1024: return f"v{reg} offset:{off}"
            return None
        for j in range(max(self.NX, self.NY)):
            if j < self.NY:
                L.append(("Y", j, base + j * 1024))
            if j < self.NX:
                L.append(("X", j, base));
        return L

def gen_loop(G, sSrdX, sSrdY, sOffX, sOffY, sM0, sKcnt, stepX, stepY, niter, label, sW=None, stagger=False, opt=None, sSt=None, pf=None):
    opt = opt or {}
    o = G.A; NX, NY = G.NX, G.NY
    S = opt.get("S", 4)
    SB = G.SB
    sRd, sDm, sTm = sSt
    vC = G.vEnd
    G.vEnd2 = vC + NX + 1
    def rd(ph):
        L = []
        for j in range(max(NX, NY)):
            if j < NY: L.append(f"ds_read_b128 {v(G.fY(ph,j),4)}, v{vC+NX} offset:{j*1024}")
            if j < NX:
                L.append(f"ds_read_b64_tr_b16 {v(G.fX(ph,j),2)}, v{vC+j}")
                L.append(f"ds_read_b64_tr_b16 {v(G.fX(ph,j)+2,2)}, v{vC+j} offset:1024")
        return L
    def setaddr():
        return [f"v_add_u32 v{vC+j}, s{sRd}, v{G.vXr+j}" for j in range(NX)] + [f"v_add_u32 v{vC+NX}, s{sRd}, v{G.vYr}"]
    def adv(sreg):
        return [f"s_add_u32 s{sreg}, s{sreg}, {SB}", f"s_cmp_eq_u32 s{sreg}, {S*SB}", f"s_cselect_b32 s{sreg}, 0, s{sreg}"]
    def dma_groups():
        L = []
        for t in range(G.NIX):
            L.append([f"s_add_u32 m0, s{sTm}, {t*1024}", f"buffer_load_dwordx4 v{G.vXd+t}, {s(sSrdX,4)}, s{sOffX} offen lds"])
        for t in range(G.NIY):
            L.append([f"s_add_u32 m0, s{sTm+1}, {t*1024}", f"buffer_load_dwordx4 v{G.vYd+t}, {s(sSrdY,4)}, s{sOffY} offen lds"])
        return L
    def dma_pre():
        return [f"s_add_u32 s{sTm}, s{sM0[0]}, s{sDm}", f"s_add_u32 s{sTm+1}, s{sM0[1]}, s{sDm}"]
    def dma_post():
        return [f"s_add_u32 s{sOffX}, s{sOffX}, {stepX}", f"s_add_u32 s{sOffY}, s{sOffY}, {stepY}"] + adv(sDm)
    def mf(jx, jy, ph, first):
        c = "0" if first else G.acc(jx, jy)
        if G.swap: return f"v_mfma_f32_16x16x32_bf16 {G.acc(jx,jy)}, {v(G.fY(ph,jy),4)}, {v(G.fX(ph,jx),4)}, {c}"
        return f"v_mfma_f32_16x16x32_bf16 {G.acc(jx,jy)}, {v(G.fX(ph,jx),4)}, {v(G.fY(ph,jy),4)}, {c}"
    NPF = 1 if pf else 0
    def pf_ins():
        return [f"buffer_load_dword v{pf['vd']}, v{pf['vo']}, {s(pf['srd'],4)}, s{pf['off']} offen", f"s_add_u32 s{pf['off']}, s{pf['off']}, s{pf['step']}"]
    o(f"s_add_u32 s{sM0[1]}, s{sM0[1]}, {G.XB}")
    o(f"s_mov_b32 s{sDm}, 0"); o(f"s_mov_b32 s{sRd}, 0")
    for st in range(S):
        for x in dma_pre(): o(x)
        for g in dma_groups():
            for x in g: o(x)
        for x in dma_post(): o(x)
    npro = 0
    if pf:
        npro = pf['D']
        for d in range(npro):
            for x in pf_ins(): o(x)
    for x in setaddr(): o(x)
    o(f"s_waitcnt vmcnt({min(63, G.NDMA*(S-1) + npro)})")
    o("s_barrier")
    for x in rd(0): o(x)
    for x in adv(sRd): o(x)
    for x in setaddr(): o(x)
    for x in dma_pre(): o(x)
    o(f"s_waitcnt vmcnt({min(63, G.NDMA*(S-2) + npro)}) lgkmcnt(0)")
    o("s_barrier")
    def iteration(ph, first, itn=99):
        mfl = [mf(jx, jy, ph, first) for jy in range(NY) for jx in range(NX)]
        rl = rd(ph ^ 1)
        dl = dma_groups()
        if opt.get('nodma'): dl = []
        if opt.get('noread'): rl = []
        n = len(mfl)
        pre = [[] for _ in range(n)]; slots = [[] for _ in range(n)]
        used = set()
        per = max(1, n // max(1, len(dl)))
        for k, g in enumerate(dl):
            p = min(n - 1, k * per + 2)
            pre[p].append(g[0]); slots[p].append(g[1]); used.add(p)
        nr = len(rl); rspan = opt.get("rspan", n * 3 // 4)
        for k, x in enumerate(rl):
            p = min(n - 1, 1 + (k * rspan) // max(1, nr))
            while p in used and p + 1 < n: p += 1
            slots[p].append(x)
        lastr = max([k for k in range(n) if any(x.startswith("ds_read") for x in slots[k])] + [0])
        lastd = max([k for k in range(n) if any(x.startswith("buffer_load") for x in slots[k])] + [0])
        tail1 = [adv(sRd)] + [[x] for x in setaddr()]
        p = lastr + 1
        for k_, g in enumerate(tail1):
            slots[min(p, n - 1)] += g
            if n - p > len(tail1) - k_ or True: p += 1
        dp = dma_post()
        tail2 = [dp[:2], dp[2:], dma_pre()]
        p = lastd + 1
        for g in tail2:
            slots[min(p, n - 1)] += g; p += 1
        if pf: slots[n - 1] += pf_ins()
        for k in range(n):
            for x in pre[k]: o(x)
            o(mfl[k])
            for x in slots[k]: o(x)
        extra = 0
        if pf: extra = (npro + itn + 1) if itn < S - 2 else (S - 1)
        o(f"s_waitcnt vmcnt({min(63, G.NDMA*(S-2) + extra)}) lgkmcnt(0)")
        if not opt.get('nobar'): o("s_barrier")
    iteration(0, not opt.get('accum'), 0); iteration(1, False, 1)
    if niter > 2:
        o(f"s_mov_b32 s{sKcnt}, {niter//2 - 1}")
        o.label(f"{label}_loop")
        iteration(0, False); iteration(1, False)
        o(f"s_sub_u32 s{sKcnt}, s{sKcnt}, 1")
        o(f"s_cmp_lg_u32 s{sKcnt}, 0")
        o(f"s_cbranch_scc1 {label}_loop")
    o("s_waitcnt vmcnt(0)")

def gen_loop2(G, sSrdX, sSrdY, sOffX, sOffY, sM0, sKcnt, stepX, stepY, niter, label, K=4, R=12, sSt=None, opt=None):
    opt = opt or {}
    o = G.A; NX, NY = G.NX, G.NY
    SB = G.SB
    sRd, sDm, sTm = sSt
    FS = G.FS
    vF = G.vF
    vC = vF + 4 * FS
    G.vEnd2 = vC + NX + 1
    fX = lambda ph, j: vF + ph * FS + 4 * j
    fY = lambda ph, j: vF + ph * FS + 4 * (NX + j)
    def rd(ph):
        L = []
        for j in range(max(NX, NY)):
            if j < NY: L.append(f"ds_read_b128 {v(fY(ph,j),4)}, v{vC+NX} offset:{j*1024}")
            if j < NX:
                L.append(f"ds_read_b64_tr_b16 {v(fX(ph,j),2)}, v{vC+j}")
                L.append(f"ds_read_b64_tr_b16 {v(fX(ph,j)+2,2)}, v{vC+j} offset:1024")
        return L
    NRD = 2 * NX + NY
    def setaddr():
        return [f"v_add_u32 v{vC+j}, s{sRd}, v{G.vXr+j}" for j in range(NX)] + [f"v_add_u32 v{vC+NX}, s{sRd}, v{G.vYr}"]
    def adv(sreg):
        return [f"s_add_u32 s{sreg}, s{sreg}, {SB}", f"s_cmp_eq_u32 s{sreg}, {R*SB}", f"s_cselect_b32 s{sreg}, 0, s{sreg}"]
    def dma_groups():
        L = []
        for t in range(G.NIX):
            L.append([f"s_add_u32 m0, s{sTm}, {t*1024}", f"buffer_load_dwordx4 v{G.vXd+t}, {s(sSrdX,4)}, s{sOffX} offen lds"])
        for t in range(G.NIY):
            L.append([f"s_add_u32 m0, s{sTm+1}, {t*1024}", f"buffer_load_dwordx4 v{G.vYd+t}, {s(sSrdY,4)}, s{sOffY} offen lds"])
        return L
    dma_pre = lambda: [f"s_add_u32 s{sTm}, s{sM0[0]}, s{sDm}", f"s_add_u32 s{sTm+1}, s{sM0[1]}, s{sDm}"]
    dma_post = lambda: [f"s_add_u32 s{sOffX}, s{sOffX}, {stepX}", f"s_add_u32 s{sOffY}, s{sOffY}, {stepY}"] + adv(sDm)
    def mf(jx, jy, ph, first):
        c = "0" if first else G.acc(jx, jy)
        if G.swap: return f"v_mfma_f32_16x16x32_bf16 {G.acc(jx,jy)}, {v(fY(ph,jy),4)}, {v(fX(ph,jx),4)}, {c}"
        return f"v_mfma_f32_16x16x32_bf16 {G.acc(jx,jy)}, {v(fX(ph,jx),4)}, {v(fY(ph,jy),4)}, {c}"
    o(f"s_add_u32 s{sM0[1]}, s{sM0[1]}, {G.XB}")
    o(f"s_mov_b32 s{sDm}, 0"); o(f"s_mov_b32 s{sRd}, 0")
    npro = R - K + 1
    for st in range(npro):
        for x in dma_pre(): o(x)
        for g in dma_groups():
            for x in g: o(x)
        for x in dma_post(): o(x)
    for x in dma_pre(): o(x)
    OUT = (R - 2 * K - 1) * G.NDMA
    assert 0 <= OUT <= 63
    o(f"s_waitcnt vmcnt({min(63, (npro - 2) * G.NDMA)})")
    o("s_barrier")
    for ph in range(2):
        for x in setaddr(): o(x)
        for x in rd(ph): o(x)
        for x in adv(sRd): o(x)
    for x in setaddr(): o(x)
    o(f"s_waitcnt vmcnt({OUT}) lgkmcnt({NRD})")
    o("s_barrier")
    def iteration(it, first):
        ph = it % 4
        mfl = [mf(jx, jy, ph, first) for jy in range(NY) for jx in range(NX)]
        rl = rd((ph + 2) % 4)
        dl = dma_groups()
        n = len(mfl)
        pre = [[] for _ in range(n)]; slots = [[] for _ in range(n)]
        per = max(1, n // len(dl))
        for k, g in enumerate(dl):
            p = min(n - 1, k * per + 1)
            pre[p].append(g[0]); slots[p].append(g[1])
        for k, x in enumerate(rl):
            slots[min(n - 1, (k * n) // (len(rl) + len(rl) // 2))].append(x)
        slots[n - 1] += adv(sRd) + setaddr() + dma_post()[:2] + adv(sDm) + dma_pre()
        for k in range(n):
            for x in pre[k]: o(x)
            o(mfl[k])
            for x in slots[k]: o(x)
        if (it + 1) % K == 0:
            o(f"s_waitcnt vmcnt({OUT}) lgkmcnt({NRD})")
            o("s_barrier")
        else:
            o(f"s_waitcnt lgkmcnt({NRD})")
    for it in range(4): iteration(it, it == 0 and not opt.get("accum"))
    if niter > 4:
        o(f"s_mov_b32 s{sKcnt}, {niter//4 - 1}")
        o.label(f"{label}_loop")
        for it in range(4): iteration(it, False)
        o(f"s_sub_u32 s{sKcnt}, s{sKcnt}, 1")
        o(f"s_cmp_lg_u32 s{sKcnt}, 0")
        o(f"s_cbranch_scc1 {label}_loop")
    o("s_waitcnt vmcnt(0) lgkmcnt(0)")

def gen_loop3(G, sSrdX, sSrdY, sOffX, sOffY, sM0, sKcnt, stepX, stepY, niter, label, K=2, R=8, opt=None):
    opt = opt or {}
    o = G.A; NX, NY = G.NX, G.NY
    SB = G.SB; FS = G.FS; vF = G.vF
    assert niter % R == 0 and R % 4 == 0 and R % K == 0
    nsets = (R * SB + 65535) // 65536
    vH = vF + 4 * FS
    G.vEnd2 = vH + (NX + 1) * (nsets - 1)
    per_win = max(1, 65536 // SB)
    for ws_ in range(1, (R + per_win - 1) // per_win):
        for j in range(NX): o(f"v_add_u32 v{vH+(ws_-1)*(NX+1)+j}, {ws_*per_win*SB}, v{G.vXr+j}")
        o(f"v_add_u32 v{vH+(ws_-1)*(NX+1)+NX}, {ws_*per_win*SB}, v{G.vYr}")
    G.vEnd2 = vH + (NX + 1) * ((R + per_win - 1) // per_win - 1)
    fX = lambda ph, j: vF + ph * FS + 4 * j
    fY = lambda ph, j: vF + ph * FS + 4 * (NX + j)
    def rd(stage, ph):
        ws_, rel = divmod(stage, per_win)
        xa = (lambda j: G.vXr + j) if ws_ == 0 else (lambda j: vH + (ws_ - 1) * (NX + 1) + j)
        ya = G.vYr if ws_ == 0 else vH + (ws_ - 1) * (NX + 1) + NX
        base = rel * SB
        L = []
        for j in range(max(NX, NY)):
            if j < NY: L.append(f"ds_read_b128 {v(fY(ph,j),4)}, v{ya} offset:{base + j*1024}")
            if j < NX:
                L.append(f"ds_read_b64_tr_b16 {v(fX(ph,j),2)}, v{xa(j)} offset:{base}")
                L.append(f"ds_read_b64_tr_b16 {v(fX(ph,j)+2,2)}, v{xa(j)} offset:{base+1024}")
        return L
    NRD = 2 * NX + NY
    def dma_groups(stage):
        L = []
        for t in range(G.NIX):
            L.append([f"s_add_u32 m0, s{sM0[0]}, {stage*SB + t*1024}", f"buffer_load_dwordx4 v{G.vXd+t}, {s(sSrdX,4)}, s{sOffX} offen lds"])
        for t in range(G.NIY):
            L.append([f"s_add_u32 m0, s{sM0[1]}, {stage*SB + G.XB + t*1024}", f"buffer_load_dwordx4 v{G.vYd+t}, {s(sSrdY,4)}, s{sOffY} offen lds"])
        return L
    post = lambda: [f"s_add_u32 s{sOffX}, s{sOffX}, {stepX}", f"s_add_u32 s{sOffY}, s{sOffY}, {stepY}"]
    def mf(jx, jy, ph, first):
        c = "0" if first else G.acc(jx, jy)
        if G.swap: return f"v_mfma_f32_16x16x32_bf16 {G.acc(jx,jy)}, {v(fY(ph,jy),4)}, {v(fX(ph,jx),4)}, {c}"
        return f"v_mfma_f32_16x16x32_bf16 {G.acc(jx,jy)}, {v(fX(ph,jx),4)}, {v(fY(ph,jy),4)}, {c}"
    npro = R - K + 1
    for st in range(npro):
        for g in dma_groups(st % R):
            o(g[0]); o("s_nop 0"); o(g[1])
        for x in post(): o(x)
    OUT = (R - 2 * K - 1) * G.NDMA
    assert 0 <= OUT <= 63
    o(f"s_waitcnt vmcnt({min(63, (npro - 2) * G.NDMA)})")
    o("s_barrier")
    for ph in range(2):
        for x in rd(ph, ph): o(x)
    o(f"s_waitcnt vmcnt({OUT}) lgkmcnt({NRD})")
    o("s_barrier")
    def iteration(it, first):
        ph = it % 4
        mfl = [mf(jx, jy, ph, first) for jy in range(NY) for jx in range(NX)]
        rl = rd((it + 2) % R, (ph + 2) % 4)
        dl = dma_groups((it + npro) % R)
        if opt.get('noread'): rl = []
        if opt.get('nomfma'): mfl = mfl[:1] * 1
        n = len(mfl)
        pre = [[] for _ in range(n)]; slots = [[] for _ in range(n)]
        per = max(1, n // len(dl))
        if not opt.get('nodma'):
            for k, g in enumerate(dl):
                p = min(n - 1, k * per + 1)
                pre[p].append(g[0]); slots[p].append(g[1])
        for k, x in enumerate(rl):
            slots[min(n - 1, (k * n) // len(rl))].append(x)
        slots[n - 1] += post()
        for k in range(n):
            for x in pre[k]: o(x)
            o(mfl[k])
            for x in slots[k]: o(x)
        if (it + 1) % K == 0:
            o(f"s_waitcnt vmcnt({OUT}) lgkmcnt({NRD})")
            if not opt.get('nobar'): o("s_barrier")
        else:
            o(f"s_waitcnt lgkmcnt({NRD})")
    if opt.get("accum"):
        first_block = False
    else:
        for it in range(R): iteration(it, it == 0)
        first_block = True
    nloop = niter // R - (1 if first_block else 0)
    if nloop > 0:
        o(f"s_mov_b32 s{sKcnt}, {nloop}")
        o.label(f"{label}_loop")
        for it in range(R): iteration(it, False)
        o(f"s_sub_u32 s{sKcnt}, s{sKcnt}, 1")
        o(f"s_cmp_lg_u32 s{sKcnt}, 0")
        o(f"s_cbranch_scc1 {label}_loop")
    o("s_waitcnt vmcnt(0) lgkmcnt(0)")
```

```python
from asmlib import *
from layout import *
from gemm import Gemm, gen_loop2, gen_loop3
from k_qkv import srd
from k_small import fbits, unpack8, gfun, LOG2E
import math

WS_XCH = 128 * MiB
WS_STAT = WS_CNT + 131072 + 16384
CNT_XO = 131072
CNT_ST = 131072 + 8192
CNT_XG = 131072 + 4096

sX, sY = 8, 12
sOffX, sOffY, sM0, sK = 20, 21, [22, 23], 24
sSt = [32, 33, 34]

def poll_ge(A, sBase, vAddr, target, tag, vT, sLimReg, sleep=2):
    o = A
    A.label(f"L_{tag}")
    o(f"global_load_dword v{vT}, v{vAddr}, {s(sBase,2)} sc1")
    o("s_waitcnt vmcnt(0)")
    o(f"v_readfirstlane_b32 s44, v{vT}")
    o(f"s_cmp_ge_u32 s44, {target}"); o(f"s_cbranch_scc1 L_{tag}_ok")
    o(f"s_sleep {sleep}")
    o(f"s_sub_u32 s{sLimReg}, s{sLimReg}, 1"); o(f"s_cbranch_scc0 L_{tag}")
    A.label(f"L_{tag}_ok")

def exchange(A, G, keep_tiles, send_tiles, sTile, sKh, xch_off, cnt_off, name):
    o = A
    E = G.vF
    o(f"s_lshl_b32 s25, s{sTile}, 1"); o(f"s_add_u32 s26, s25, s{sKh}"); o("s_lshl_b32 s26, s26, 2"); o("s_add_u32 s26, s26, s3"); o("s_lshl_b32 s26, s26, 13")
    o(f"s_xor_b32 s27, s{sKh}, 1"); o("s_add_u32 s27, s25, s27"); o("s_lshl_b32 s27, s27, 2"); o("s_add_u32 s27, s27, s3"); o("s_lshl_b32 s27, s27, 13")
    o(f"s_add_u32 s26, s26, {xch_off}"); o(f"s_add_u32 s27, s27, {xch_off}")
    o("s_add_u32 s40, s6, s26"); o("s_addc_u32 s41, s7, 0"); o("s_add_u32 s42, s6, s27"); o("s_addc_u32 s43, s7, 0")
    o("s_add_u32 s40, s40, 4096"); o("s_addc_u32 s41, s41, 0"); o("s_add_u32 s42, s42, 4096"); o("s_addc_u32 s43, s43, 0")
    o("v_lshlrev_b32 v1, 4, v0")
    T = E + 32
    for kh in range(2):
        if kh == 0: o(f"s_cmp_lg_u32 s{sKh}, 0"); o(f"s_cbranch_scc1 L_{name}_k1")
        else: A.label(f"L_{name}_k1")
        for t, (jx, jy) in enumerate(send_tiles(kh)):
            R = T + 4 * (t % 4)
            for r in range(4): o(f"v_accvgpr_read_b32 v{R+r}, a{G.accr(jx, jy)+r}")
            o(f"global_store_dwordx4 v1, {v(R,4)}, s[40:41] offset:{t*1024-4096} sc1")
        for t, (jx, jy) in enumerate(keep_tiles(kh)):
            for r in range(4): o(f"v_accvgpr_read_b32 v{E+4*t+r}, a{G.accr(jx, jy)+r}")
        if kh == 0: o(f"s_branch L_{name}_kd")
    A.label(f"L_{name}_kd")
    o("s_waitcnt vmcnt(0)")
    o(f"s_add_u32 s48, s6, {WS_CNT}"); o("s_addc_u32 s49, s7, 0")
    o(f"s_add_u32 s26, s25, s{sKh}"); o("s_lshl_b32 s26, s26, 2"); o("s_add_u32 s26, s26, s3"); o("s_lshl_b32 s26, s26, 2"); o(f"s_add_u32 s26, s26, {cnt_off}")
    o("v_mov_b32 v2, s26"); o("v_mov_b32 v3, 1")
    o("s_mov_b64 exec, 1"); o("global_atomic_add v2, v3, s[48:49]"); o("s_mov_b64 exec, -1")
    o(f"s_xor_b32 s27, s{sKh}, 1"); o("s_add_u32 s27, s25, s27"); o("s_lshl_b32 s27, s27, 2"); o("s_add_u32 s27, s27, s3"); o("s_lshl_b32 s27, s27, 2"); o(f"s_add_u32 s27, s27, {cnt_off}")
    o("v_mov_b32 v2, s27")
    o("s_mov_b32 s50, 0x200000")
    poll_ge(A, 48, 2, 1, f"{name}_p", 3, 50)
    for t in range(8): o(f"global_load_dwordx4 {v(T+4*t,4)}, v1, s[42:43] offset:{t*1024-4096} sc1")
    for t in range(8):
        o(f"s_waitcnt vmcnt({7-t})")
        for r in range(4): o(f"v_add_f32 v{E+4*t+r}, v{E+4*t+r}, v{T+4*t+r}")

PROF = False
def pst(o, k):
    if PROF: o(f's_memrealtime s[{64+2*k}:{65+2*k}]')
def pend(o, idx):
    if not PROF: return
    o('s_memrealtime s[76:77]'); o('s_waitcnt lgkmcnt(0)')
    o('s_lshl_b32 s25, s2, 7'); o('s_lshl_b32 s26, s3, 5'); o('s_add_u32 s25, s25, s26'); o(f's_add_u32 s25, s25, {WS_PROF + 7*MiB + idx*65536}')
    for k in range(6): o(f'v_mov_b32 v{2+k}, s{64+2*k}')
    o('v_mov_b32 v8, s76'); o('v_mov_b32 v9, 0'); o('v_mov_b32 v10, s25')
    o('s_mov_b64 exec, 1'); o('global_store_dwordx4 v10, v[2:5], s[6:7]'); o('global_store_dwordx4 v10, v[6:9], s[6:7] offset:16'); o('s_waitcnt vmcnt(0)')

def head(o, name, ptrs):
    o(f"s_cmp_ge_u32 s2, 256"); o(f"s_cbranch_scc1 L_{name}_end")
    o(f"s_load_dwordx2 s[6:7], s[0:1], {KA_WS}")
    for sreg, ka in ptrs: o(f"s_load_dwordx2 {s(sreg,2)}, s[0:1], {ka}")
    o("v_lshrrev_b32 v1, 6, v0"); o("v_and_b32 v0, 63, v0"); o("v_readfirstlane_b32 s3, v1")
    o("s_waitcnt lgkmcnt(0)")
    pst(o, 0)

LOPT = {}
def gen_opln(name="opln_kernel"):
    A = Asm(); o = A
    head(o, name, [(52, KA_WO), (54, KA_X)])
    srd(o, sX, 52, 0, 8 * MiB); srd(o, sY, 6, WS_O, 16 * MiB)
    sDt, sTt, sKh, sTile = 4, 5, 56, 57
    o("s_and_b32 s25, s2, 7"); o("s_lshr_b32 s26, s2, 3"); o(f"s_and_b32 s{sKh}, s25, 1")
    o(f"s_lshr_b32 s{sDt}, s25, 2"); o(f"s_lshl_b32 s{sDt}, s{sDt}, 2"); o("s_and_b32 s27, s26, 3"); o(f"s_add_u32 s{sDt}, s{sDt}, s27")
    o(f"s_bfe_u32 s{sTt}, s25, 0x10001"); o(f"s_lshl_b32 s{sTt}, s{sTt}, 3"); o("s_lshr_b32 s27, s26, 2"); o(f"s_add_u32 s{sTt}, s{sTt}, s27")
    o(f"s_lshl_b32 s{sTile}, s{sTt}, 3"); o(f"s_add_u32 s{sTile}, s{sTile}, s{sDt}")
    o(f"s_lshl_b32 s{sOffX}, s{sDt}, 8"); o(f"s_lshl_b32 s25, s{sKh}, 22"); o(f"s_add_u32 s{sOffX}, s{sOffX}, s25")
    o(f"s_lshl_b32 s{sOffY}, s{sTt}, 13"); o(f"s_lshl_b32 s25, s{sKh}, 23"); o(f"s_add_u32 s{sOffY}, s{sOffY}, s25")
    G = Gemm(A, 4, 4, False, "o")
    o(f"s_mul_i32 s{sM0[0]}, s3, {G.NIX*1024}"); o(f"s_mul_i32 s{sM0[1]}, s3, {G.NIY*1024}")
    G.setup(3, 0, 2048, 0, [1, 2, 3, 4, 5, 6], [25, 26, 27, 28])
    gen_loop3(G, sX, sY, sOffX, sOffY, sM0, sK, 32 * 2048, 128 * 1024, 64, f"L_{name}", K=LOPT.get("K", 2), R=8, opt=LOPT)
    o("s_barrier")
    pst(o, 1)
    E = G.vF
    keep = lambda kh: [(jx, 2 * kh + h) for h in range(2) for jx in range(4)]
    send = lambda kh: keep(kh ^ 1)
    exchange(A, G, keep, send, sTile, sKh, WS_XCH, CNT_XO, name + "x")
    pst(o, 2)
    for h in range(2):
        for p in range(2):
            a_, b_ = E + 4 * (h * 4 + 2 * p), E + 4 * (h * 4 + 2 * p + 1)
            for r in range(4): o(f"v_permlane16_swap_b32 v{a_+r}, v{b_+r}")
    o("v_and_b32 v1, 15, v0"); o("v_lshrrev_b32 v2, 4, v0"); o("v_and_b32 v3, 1, v2"); o("v_lshrrev_b32 v2, 1, v2")
    o("v_lshlrev_b32 v3, 4, v3"); o("v_lshl_add_u32 v3, v2, 3, v3")
    o(f"s_lshl_b32 s25, s{sDt}, 7"); o("s_and_b32 s26, s3, 1"); o("s_lshl_b32 s26, s26, 6"); o("s_add_u32 s25, s25, s26")
    o("v_add_u32 v4, s25, v3")
    o(f"s_lshl_b32 s58, s{sTt}, 7"); o("s_lshr_b32 s26, s3, 1"); o("s_lshl_b32 s26, s26, 6"); o("s_add_u32 s58, s58, s26"); o(f"s_lshl_b32 s26, s{sKh}, 5"); o("s_add_u32 s58, s58, s26")
    o("v_add_u32 v5, s58, v1")
    o("v_lshlrev_b32 v6, 11, v5"); o("v_lshl_add_u32 v6, v4, 1, v6")
    o("v_lshlrev_b32 v7, 2, v4")
    M = E + 64
    XR = E + 112
    for k, sec in enumerate((2, 3, 4)):
        o(f"s_add_u32 s44, s6, {WS_MOD + sec*4096}"); o("s_addc_u32 s45, s7, 0")
        for p in range(2):
            o(f"global_load_dwordx4 {v(M+16*k+8*p,4)}, v7, s[44:45] offset:{p*128}"); o(f"global_load_dwordx4 {v(M+16*k+8*p+4,4)}, v7, s[44:45] offset:{p*128+16}")
    for h in range(2):
        o(f"v_add_u32 v8, {h*16*2048}, v6")
        for p in range(2): o(f"global_load_dwordx4 {v(XR+8*h+4*p,4)}, v8, s[54:55] offset:{p*64}")
    o("s_waitcnt vmcnt(0)")
    U = E + 128
    o(f"s_add_u32 s44, s6, {WS_X1}"); o("s_addc_u32 s45, s7, 0")
    for h in range(2):
        o(f"v_add_u32 v8, {h*16*2048}, v6")
        for p in range(2):
            Y = E + 4 * (h * 4 + 2 * p)
            unpack8(o, U, XR + 8 * h + 4 * p)
            for e in range(8): o(f"v_fma_f32 v{Y+e}, v{Y+e}, v{M+8*p+e}, v{U+e}")
            P = XR + 8 * h + 4 * p
            for d in range(4): o(f"v_cvt_pk_bf16_f32 v{P+d}, v{Y+2*d}, v{Y+2*d+1}")
            o(f"global_store_dwordx4 v8, {v(P,4)}, s[44:45] offset:{p*64}")
            unpack8(o, Y, P)
    S1, S2, t_ = U, U + 2, U + 4
    for h in range(2):
        Y = E + 16 * h
        o(f"v_add_f32 v{S1+h}, v{Y}, v{Y+1}")
        for e in range(2, 16): o(f"v_add_f32 v{S1+h}, v{S1+h}, v{Y+e}")
        o(f"v_mul_f32 v{S2+h}, v{Y}, v{Y}")
        for e in range(1, 16): o(f"v_fmac_f32 v{S2+h}, v{Y+e}, v{Y+e}")
    for x in (S1, S1 + 1, S2, S2 + 1):
        for sw in ("16", "32"):
            o(f"v_mov_b32 v{t_}, v{x}"); o(f"v_permlane{sw}_swap_b32 v{x}, v{t_}"); o(f"v_add_f32 v{x}, v{x}, v{t_}")
    o(f"s_add_u32 s46, s6, {WS_STAT}"); o("s_addc_u32 s47, s7, 0")
    o("v_lshlrev_b32 v9, 3, v5")
    o("s_mov_b64 exec, 0xffff")
    for h in range(2):
        o(f"global_atomic_add_f32 v9, v{S1+h}, s[46:47] offset:{h*128}")
        o(f"global_atomic_add_f32 v9, v{S2+h}, s[46:47] offset:{h*128+4}")
    o("s_mov_b64 exec, -1")
    o("s_waitcnt vmcnt(0)")
    pst(o, 3)
    o(f"s_add_u32 s48, s6, {WS_CNT}"); o("s_addc_u32 s49, s7, 0")
    o("s_lshr_b32 s59, s58, 5"); o("s_lshl_b32 s26, s59, 7"); o(f"s_add_u32 s26, s26, {CNT_ST}")
    o("v_mov_b32 v14, s26"); o("v_mov_b32 v15, 1")
    o("s_mov_b64 exec, 1"); o("global_atomic_add v14, v15, s[48:49]"); o("s_mov_b64 exec, -1")
    o("s_mov_b32 s50, 0x200000")
    poll_ge(A, 48, 14, 16, f"{name}_st", 15, 50, sleep=6)
    for h in range(2): o(f"global_load_dwordx2 {v(S1+2*h if False else U+8+2*h,2)}, v9, s[46:47] offset:{h*128} sc1")
    o("s_waitcnt vmcnt(0)")
    pst(o, 4)
    for k in (2, ):
        for e in range(16): o(f"v_add_f32 v{M+32+e}, 1.0, v{M+32+e}")
    RS = 128 + 32
    o("s_lshl_b32 s26, s3, 13")
    o(f"v_mul_u32_u24 v10, {RS}, v1"); o("v_lshl_add_u32 v10, v3, 1, v10"); o("v_add_u32 v10, s26, v10")
    for h in range(2):
        mu, sq = U + 8 + 2 * h, U + 9 + 2 * h
        o(f"v_mul_f32 v{mu}, {fbits(1/1024)}, v{mu}")
        o(f"v_mul_f32 v{sq}, {fbits(1/1024)}, v{sq}")
        o(f"v_fma_f32 v{sq}, -v{mu}, v{mu}, v{sq}")
        o(f"v_max_f32 v{sq}, 0, v{sq}")
        o(f"v_add_f32 v{sq}, {fbits(1e-5)}, v{sq}")
        o(f"v_rsq_f32 v{sq}, v{sq}")
        for p in range(2):
            Y = E + 4 * (h * 4 + 2 * p)
            for e in range(8):
                o(f"v_sub_f32 v{Y+e}, v{Y+e}, v{mu}"); o(f"v_mul_f32 v{Y+e}, v{Y+e}, v{sq}")
                o(f"v_fma_f32 v{Y+e}, v{Y+e}, v{M+32+8*p+e}, v{M+16+8*p+e}")
            P = XR + 8 * h + 4 * p
            for d in range(4): o(f"v_cvt_pk_bf16_f32 v{P+d}, v{Y+2*d}, v{Y+2*d+1}")
            o(f"ds_write_b128 v10, {v(P,4)} offset:{h*16*RS + p*64}")
    o("s_waitcnt lgkmcnt(0)")
    o("v_lshrrev_b32 v2, 4, v0"); o("v_lshrrev_b32 v11, 2, v1"); o("v_lshl_add_u32 v11, v2, 3, v11"); o(f"v_mul_u32_u24 v11, {RS}, v11")
    o("v_and_b32 v12, 3, v1"); o("v_lshl_add_u32 v11, v12, 3, v11"); o("v_add_u32 v11, s26, v11")
    for j in range(4):
        o(f"ds_read_b64_tr_b16 {v(XR+4*j,2)}, v11 offset:{j*32}"); o(f"ds_read_b64_tr_b16 {v(XR+4*j+2,2)}, v11 offset:{j*32+4*RS}")
    gfun(o, 12, 1, 13); o("v_xor_b32 v12, v12, v2"); o("v_lshl_add_u32 v12, v1, 2, v12"); o("v_lshlrev_b32 v12, 4, v12")
    o("s_lshl_b32 s26, s59, 16"); o(f"s_lshl_b32 s27, s25, 6"); o("s_add_u32 s26, s26, s27"); o(f"s_add_u32 s26, s26, {WS_H2T}")
    o("v_add_u32 v12, s26, v12")
    o("s_waitcnt lgkmcnt(0)")
    for j in range(4): o(f"global_store_dwordx4 v12, {v(XR+4*j,4)}, s[6:7] offset:{j*1024}")
    o("s_waitcnt vmcnt(0)")
    pend(o, 0)
    A.label(f"L_{name}_end"); o("s_endpgm")
    return kernel_head(name) + A.finish() + kernel_desc(name, max(G.vEnd2, E + 144), G.nacc), 8 * G.SB

def gen_g2s(name="g2s_kernel"):
    A = Asm(); o = A
    head(o, name, [(52, KA_W2), (54, KA_B2), (60, KA_OUT)])
    srd(o, sX, 52, 0, 3584 * 4096); srd(o, sY, 6, WS_U, 112 * 64 * 1024)
    sSt_, sDt, sKh, sTile = 4, 5, 56, 57
    o("s_and_b32 s25, s2, 7"); o("s_lshr_b32 s26, s2, 3"); o(f"s_and_b32 s{sKh}, s25, 1")
    o(f"s_lshr_b32 s{sDt}, s25, 2"); o(f"s_lshl_b32 s{sDt}, s{sDt}, 2"); o("s_and_b32 s27, s26, 3"); o(f"s_add_u32 s{sDt}, s{sDt}, s27")
    o(f"s_bfe_u32 s{sSt_}, s25, 0x10001"); o(f"s_lshl_b32 s{sSt_}, s{sSt_}, 3"); o("s_lshr_b32 s27, s26, 2"); o(f"s_add_u32 s{sSt_}, s{sSt_}, s27")
    o(f"s_lshl_b32 s{sTile}, s{sSt_}, 3"); o(f"s_add_u32 s{sTile}, s{sTile}, s{sDt}")
    o(f"s_lshl_b32 s{sOffX}, s{sSt_}, 8"); o(f"s_mul_i32 s25, s{sKh}, {1792*4096}"); o(f"s_add_u32 s{sOffX}, s{sOffX}, s25")
    o(f"s_lshl_b32 s{sOffY}, s{sDt}, 13"); o(f"s_mul_i32 s25, s{sKh}, {56*65536}"); o(f"s_add_u32 s{sOffY}, s{sOffY}, s25")
    G = Gemm(A, 4, 4, True, "h")
    o(f"s_mul_i32 s{sM0[0]}, s3, {G.NIX*1024}"); o(f"s_mul_i32 s{sM0[1]}, s3, {G.NIY*1024}")
    G.setup(3, 0, 4096, 0, [1, 2, 3, 4, 5, 6], [25, 26, 27, 28])
    gen_loop3(G, sX, sY, sOffX, sOffY, sM0, sK, 32 * 4096, 64 * 1024, 56, f"L_{name}", K=2, R=8)
    pst(o, 1)
    E = G.vF
    keep = lambda kh: [(2 * kh + h, jy) for h in range(2) for jy in range(4)]
    send = lambda kh: keep(kh ^ 1)
    exchange(A, G, keep, send, sTile, sKh, WS_XCH + 8 * MiB, CNT_XG, name + "x")
    pst(o, 2)
    for h in range(2):
        for p in range(2):
            a_, b_ = E + 4 * (h * 4 + 2 * p), E + 4 * (h * 4 + 2 * p + 1)
            for r in range(4): o(f"v_permlane16_swap_b32 v{a_+r}, v{b_+r}")
    o("v_and_b32 v1, 15, v0"); o("v_lshrrev_b32 v2, 4, v0"); o("v_and_b32 v3, 1, v2"); o("v_lshrrev_b32 v2, 1, v2")
    o("v_lshlrev_b32 v3, 4, v3"); o("v_lshl_add_u32 v3, v2, 3, v3")
    o(f"s_lshl_b32 s25, s{sDt}, 7"); o("s_lshr_b32 s26, s3, 1"); o("s_lshl_b32 s26, s26, 6"); o("s_add_u32 s25, s25, s26")
    o("v_add_u32 v4, s25, v3")
    o(f"s_lshl_b32 s58, s{sSt_}, 7"); o("s_and_b32 s26, s3, 1"); o("s_lshl_b32 s26, s26, 6"); o("s_add_u32 s58, s58, s26"); o(f"s_lshl_b32 s26, s{sKh}, 5"); o("s_add_u32 s58, s58, s26")
    o("v_add_u32 v5, s58, v1")
    o("v_lshlrev_b32 v6, 11, v5"); o("v_lshl_add_u32 v6, v4, 1, v6")
    o("v_lshlrev_b32 v7, 2, v4")
    M = E + 64; XR = E + 112; B2 = E + 100
    o(f"s_add_u32 s44, s6, {WS_MOD + 5*4096}"); o("s_addc_u32 s45, s7, 0")
    for p in range(2):
        o(f"global_load_dwordx4 {v(M+8*p,4)}, v7, s[44:45] offset:{p*128}"); o(f"global_load_dwordx4 {v(M+8*p+4,4)}, v7, s[44:45] offset:{p*128+16}")
    o(f"s_add_u32 s44, s6, {WS_X1}"); o("s_addc_u32 s45, s7, 0")
    o("v_lshlrev_b32 v9, 1, v5")
    for h in range(2):
        o(f"v_add_u32 v8, {h*16*2048}, v6")
        for p in range(2): o(f"global_load_dwordx4 {v(XR+8*h+4*p,4)}, v8, s[44:45] offset:{p*64}")
        o(f"global_load_ushort v{B2+h}, v9, s[54:55] offset:{h*32}")
    o("s_waitcnt vmcnt(0)")
    U = E + 128
    for h in range(2):
        o(f"v_lshlrev_b32 v{B2+h}, 16, v{B2+h}")
        o(f"v_add_u32 v8, {h*16*2048}, v6")
        for p in range(2):
            Y = E + 4 * (h * 4 + 2 * p)
            unpack8(o, U, XR + 8 * h + 4 * p)
            for e in range(8): o(f"v_add_f32 v{Y+e}, v{Y+e}, v{B2+h}")
            for e in range(8): o(f"v_fma_f32 v{Y+e}, v{Y+e}, v{M+8*p+e}, v{U+e}")
            P = XR + 8 * h + 4 * p
            for d in range(4): o(f"v_cvt_pk_bf16_f32 v{P+d}, v{Y+2*d}, v{Y+2*d+1}")
            o(f"global_store_dwordx4 v8, {v(P,4)}, s[60:61] offset:{p*64}")
    o("s_waitcnt vmcnt(0)")
    pend(o, 1)
    A.label(f"L_{name}_end"); o("s_endpgm")
    return kernel_head(name) + A.finish() + kernel_desc(name, max(G.vEnd2, E + 144), G.nacc), 8 * G.SB
```

```python
from asmlib import *
from layout import *
from gemm import Gemm, gen_loop
from k_qkv import srd
from k_small import fbits, LOG2E, wave_sum, ln_rows, unpack8, gfun
from k_attn import attn_body
from mega import qkv_tile
import mega2
from mega2 import (sW, sXb, sI, sWS, sCNT, sB, sCh, sRound, sChk, sLim, sCt, sTok, sCntOff, sDBG, SLOW_OFF, CNT_MODB,
                   mod_task, silu_to_lds, prefetch_task, fast_check, wait_cnt, signal)
import rec13 as rec
import re, math
sEC = 94

def ewait(A, idx_imm, target, tag, idx_s=None, sleep=6):
    o = A
    o(f"s_cmp_lg_u32 s{sW}, 0"); o(f"s_cbranch_scc1 L_ew_{tag}_b")
    if idx_s is None: o(f"v_mov_b32 v2, {idx_imm*4}")
    else:
        o(f"s_lshl_b32 s44, s{idx_s}, 2"); o(f"s_add_u32 s44, s44, {idx_imm*4}"); o("v_mov_b32 v2, s44")
    A.label(f"L_ew_{tag}")
    o(f"global_load_dword v3, v2, {s(sEC,2)} sc1"); o("s_waitcnt vmcnt(0)"); o("v_readfirstlane_b32 s44, v3")
    o(f"s_cmp_ge_u32 s44, {target}"); o(f"s_cbranch_scc1 L_ew_{tag}_b")
    o(f"s_sleep {sleep}"); o(f"s_sub_u32 s{sLim}, s{sLim}, 1"); o(f"s_cbranch_scc0 L_ew_{tag}"); o(f"s_mov_b32 s{sLim}, 0")
    A.label(f"L_ew_{tag}_b")
    o("s_barrier")

def esignal(A, idx_imm, tag, idx_s=None):
    o = A
    o("s_waitcnt vmcnt(0)"); o("s_barrier")
    o(f"s_cmp_lg_u32 s{sW}, 0"); o(f"s_cbranch_scc1 L_es_{tag}")
    if idx_s is None: o(f"v_mov_b32 v2, {idx_imm*4}")
    else:
        o(f"s_lshl_b32 s44, s{idx_s}, 2"); o(f"s_add_u32 s44, s44, {idx_imm*4}"); o("v_mov_b32 v2, s44")
    o("v_mov_b32 v3, 1"); o("s_mov_b64 exec, 1"); o(f"global_atomic_add v2, v3, {s(sEC,2)}"); o("s_mov_b64 exec, -1")
    A.label(f"L_es_{tag}")

def mod_partial(A):
    o = A
    o(f"s_load_dwordx2 s[8:9], s[0:1], {KA_WMOD}"); o(f"s_load_dwordx2 s[10:11], s[0:1], {KA_C}")
    o("s_lshr_b32 s12, s2, 6"); o("s_lshl_b32 s12, s12, 8"); o(f"s_lshl_b32 s13, s{sW}, 6"); o("s_add_u32 s12, s12, s13")
    o("v_lshrrev_b32 v5, 2, v0"); o("v_add_u32 v5, s12, v5")
    o("s_mov_b32 s13, 12288"); o("v_mul_lo_u32 v7, v5, s13"); o("v_and_b32 v26, 3, v0"); o("v_lshl_add_u32 v7, v26, 4, v7")
    o("s_and_b32 s14, s2, 63"); o("s_lshl_b32 s14, s14, 6"); o("v_add_u32 v7, s14, v7")
    o("v_lshlrev_b32 v6, 1, v5")
    o("s_waitcnt lgkmcnt(0)")
    W, Cc, AC = 32, 48, 56
    for it in range(4):
        o(f"global_load_dwordx4 {v(W+4*it,4)}, v7, s[8:9]"); o(f"v_add_u32 v7, {16*12288}, v7")
        o(f"global_load_ushort v{Cc+it}, v6, s[10:11] offset:{it*32}")
    for e in range(8): o(f"v_mov_b32 v{AC+e}, 0")
    o(f"s_mov_b32 s12, {fbits(-LOG2E)}")
    o("s_waitcnt vmcnt(0)")
    for it in range(4):
        c = Cc + it
        o(f"v_lshlrev_b32 v{c}, 16, v{c}"); o(f"v_mul_f32 v27, s12, v{c}"); o("v_exp_f32 v27, v27"); o("v_add_f32 v27, 1.0, v27"); o("v_rcp_f32 v27, v27")
        o(f"v_mul_f32 v27, v{c}, v27"); o("v_cvt_pk_bf16_f32 v27, v27, v27"); o(f"v_lshlrev_b32 v{c}, 16, v27")
        for d in range(4):
            o(f"v_lshlrev_b32 v27, 16, v{W+4*it+d}"); o(f"v_and_b32 v28, 0xffff0000, v{W+4*it+d}")
            o(f"v_fmac_f32 v{AC+2*d}, v27, v{c}"); o(f"v_fmac_f32 v{AC+2*d+1}, v28, v{c}")
    for e in range(8):
        x = AC + e
        o(f"v_add_f32_dpp v{x}, v{x}, v{x} row_ror:4 row_mask:0xf bank_mask:0xf")
        o(f"v_add_f32_dpp v{x}, v{x}, v{x} row_ror:8 row_mask:0xf bank_mask:0xf")
        for sw in ("16", "32"):
            o(f"v_mov_b32 v27, v{x}"); o(f"v_permlane{sw}_swap_b32 v{x}, v27"); o(f"v_add_f32 v{x}, v{x}, v27")
    o(f"s_lshl_b32 s12, s{sW}, 7"); o("v_lshlrev_b32 v5, 5, v26"); o("v_add_u32 v5, s12, v5")
    o("s_mov_b64 exec, 0xf")
    o(f"ds_write_b128 v5, {v(AC,4)} offset:4096"); o(f"ds_write_b128 v5, {v(AC+4,4)} offset:4112")
    o("s_mov_b64 exec, -1")
    o("s_waitcnt lgkmcnt(0)"); o("s_barrier")
    o(f"s_cmp_lg_u32 s{sW}, 0"); o("s_cbranch_scc1 L_mp_d")
    o("v_lshlrev_b32 v5, 2, v0"); o("s_mov_b64 exec, 0xffffffff")
    for w in range(4): o(f"ds_read_b32 v{32+w}, v5 offset:{4096+w*128}")
    o("s_waitcnt lgkmcnt(0)")
    o("v_add_f32 v32, v32, v33"); o("v_add_f32 v34, v34, v35"); o("v_add_f32 v32, v32, v34")
    o("s_lshr_b32 s12, s2, 6"); o("s_lshl_b32 s12, s12, 13"); o("s_and_b32 s13, s2, 63"); o("s_lshl_b32 s13, s13, 7"); o("s_add_u32 s12, s12, s13"); o(f"s_add_u32 s12, s12, {WS_MODP}")
    o("v_add_u32 v5, s12, v5")
    o(f"global_store_dword v5, v32, {s(sWS,2)} sc1")
    o("s_waitcnt vmcnt(0)")
    o("s_mov_b64 exec, 1"); o(f"v_mov_b32 v2, {EC_MODP*4}"); o("v_mov_b32 v3, 1"); o(f"global_atomic_add v2, v3, {s(sEC,2)}")
    o("s_mov_b64 exec, -1")
    A.label("L_mp_d")

def fills(A, sIdx, nwg, tag):
    o = A
    o(f"s_lshl_b32 s12, s{sW}, 10"); o("v_lshlrev_b32 v3, 4, v0"); o("v_add_u32 v3, s12, v3")
    for r in range(4): o(f"v_mov_b32 v{8+r}, -1")
    per = 8 * MiB // nwg
    o(f"s_mul_i32 s12, s{sIdx}, {per}"); o(f"s_add_u32 s12, s12, {WS_PARTF}")
    o(f"s_add_u32 s14, s{sWS}, s12"); o(f"s_addc_u32 s15, s{sWS+1}, 0")
    for k in range(per // 4096):
        o("global_store_dwordx4 v3, v[8:11], s[14:15] sc1"); o("s_add_u32 s14, s14, 4096"); o("s_addc_u32 s15, s15, 0")
    o(f"s_cmp_ge_u32 s{sIdx}, 128"); o(f"s_cbranch_scc1 L_fl_{tag}_d")
    o(f"s_lshl_b32 s12, s{sIdx}, 12")
    o(f"s_add_u32 s13, s12, {WS_RQK}"); o(f"s_add_u32 s14, s{sWS}, s13"); o(f"s_addc_u32 s15, s{sWS+1}, 0")
    o("global_store_dwordx4 v3, v[8:11], s[14:15] sc1")
    o(f"s_add_u32 s13, s12, {WS_RMEM}"); o(f"s_add_u32 s14, s{sWS}, s13"); o(f"s_addc_u32 s15, s{sWS+1}, 0")
    o(f"s_cmp_lt_u32 s{sIdx}, 32"); o(f"s_cbranch_scc1 L_fl_{tag}_img")
    o("global_store_dwordx4 v3, v[8:11], s[14:15] sc1"); o(f"s_branch L_fl_{tag}_2")
    A.label(f"L_fl_{tag}_img")
    o(f"s_load_dwordx2 s[10:11], s[0:1], {KA_MEM0}")
    o(f"s_and_b32 s16, s{sIdx}, 3"); o("s_lshl_b32 s16, s16, 2"); o(f"s_add_u32 s16, s16, s{sW}"); o("s_lshl_b32 s16, s16, 7")
    o("v_and_b32 v5, 7, v0"); o("v_lshlrev_b32 v5, 11, v5"); o("v_bfe_u32 v6, v0, 3, 1"); o("v_lshl_add_u32 v5, v6, 6, v5")
    o("v_lshrrev_b32 v6, 4, v0"); o("v_lshl_add_u32 v5, v6, 4, v5"); o("v_add_u32 v5, s16, v5")
    o("s_waitcnt lgkmcnt(0)")
    o("global_load_dwordx4 v[16:19], v5, s[10:11]"); o("s_waitcnt vmcnt(0)")
    o("global_store_dwordx4 v3, v[16:19], s[14:15] sc1")
    A.label(f"L_fl_{tag}_2")
    o(f"s_cmp_ge_u32 s{sIdx}, 64"); o(f"s_cbranch_scc1 L_fl_{tag}_z")
    o(f"s_add_u32 s13, s12, {WS_RV}"); o(f"s_add_u32 s14, s{sWS}, s13"); o(f"s_addc_u32 s15, s{sWS+1}, 0")
    o("global_store_dwordx4 v3, v[8:11], s[14:15] sc1"); o(f"s_branch L_fl_{tag}_d")
    A.label(f"L_fl_{tag}_z")
    o(f"s_cmp_ge_u32 s{sIdx}, 112"); o(f"s_cbranch_scc1 L_fl_{tag}_d")
    o(f"s_sub_u32 s12, s{sIdx}, 64"); o("s_lshl_b32 s12, s12, 12"); o(f"s_add_u32 s12, s12, {WS_CNT}")
    o(f"s_add_u32 s14, s{sWS}, s12"); o(f"s_addc_u32 s15, s{sWS+1}, 0")
    for r in range(4): o(f"v_mov_b32 v{12+r}, 0")
    o("global_store_dwordx4 v3, v[12:15], s[14:15] sc1")
    A.label(f"L_fl_{tag}_d")

def ln1_task2(A):
    o = A
    o("s_load_dwordx2 s[8:9], s[0:1], %d" % KA_X)
    o("v_lshlrev_b32 v2, 4, v0")
    o(f"s_lshl_b32 s14, s{sB}, 4"); o(f"s_lshl_b32 s15, s{sW}, 2"); o("s_add_u32 s14, s14, s15")
    o("s_waitcnt lgkmcnt(0)")
    o("s_lshl_b32 s15, s14, 11"); o("s_add_u32 s10, s8, s15"); o("s_addc_u32 s11, s9, 0")
    RAW = 96
    for r in range(4):
        off = (r % 2) * 2048
        if r == 2: o("s_add_u32 s10, s10, 4096"); o("s_addc_u32 s11, s11, 0")
        o(f"global_load_dwordx4 {v(RAW+8*r,4)}, v2, s[10:11] offset:{off}"); o(f"global_load_dwordx4 {v(RAW+8*r+4,4)}, v2, s[10:11] offset:{off+1024}")
    X = [128, 144, 160, 176]
    o("s_waitcnt vmcnt(0)")
    for r in range(4):
        unpack8(o, X[r], RAW + 8 * r); unpack8(o, X[r] + 8, RAW + 8 * r + 4)
    ln_rows(o, X, 4, [4, 5], 1e-5)
    o("s_mov_b32 s83, s14")
    ewait(A, EC_MODP, 256, "mp")
    o("s_mov_b32 s14, s83")
    o("v_lshlrev_b32 v3, 5, v0")
    SA, CA, T = 64, 80, 32
    for dst, base in ((SA, 0), (CA, 4096)):
        for q in range(4):
            o(f"s_add_u32 s12, s{sWS}, {WS_MODP + q*8192 + base}"); o(f"s_addc_u32 s13, s{sWS+1}, 0")
            D = dst if q == 0 else T + 0
            tgt = dst if q == 0 else 192 + 16 * (q - 1)
            for h in range(2):
                for k in range(2): o(f"global_load_dwordx4 {v(tgt+8*h+4*k,4)}, v3, s[12:13] offset:{h*2048+k*16} sc1")
        o("s_waitcnt vmcnt(0)")
        for q in range(1, 4):
            for e in range(16): o(f"v_add_f32 v{dst+e}, v{dst+e}, v{192+16*(q-1)+e}")
        for e in range(0, 16, 2):
            o(f"v_cvt_pk_bf16_f32 v6, v{dst+e}, v{dst+e+1}"); o(f"v_lshlrev_b32 v{dst+e}, 16, v6"); o(f"v_and_b32 v{dst+e+1}, 0xffff0000, v6")
    for e in range(16): o(f"v_add_f32 v{CA+e}, 1.0, v{CA+e}")
    for r in range(4):
        R0 = RAW + 8 * r
        for e in range(16): o(f"v_fma_f32 v{X[r]+e}, v{X[r]+e}, v{CA+e}, v{SA+e}")
        for h in range(2):
            for d in range(4): o(f"v_cvt_pk_bf16_f32 v{R0+4*h+d}, v{X[r]+8*h+2*d}, v{X[r]+8*h+2*d+1}")
        o(f"s_add_u32 s16, s14, {r}"); o("s_lshr_b32 s17, s16, 4"); o("s_and_b32 s16, s16, 15")
        o("s_lshr_b32 s18, s16, 2"); o("s_lshr_b32 s19, s18, 1"); o("s_and_b32 s18, s18, 1"); o("s_xor_b32 s18, s18, s19"); o("s_lshl_b32 s18, s18, 1"); o("s_or_b32 s18, s18, s19")
        o("v_and_b32 v4, 3, v0"); o("v_xor_b32 v4, s18, v4"); o("v_lshlrev_b32 v4, 4, v4")
        o("v_lshrrev_b32 v5, 2, v0"); o("v_lshl_add_u32 v4, v5, 17, v4")
        o("s_lshl_b32 s17, s17, 10"); o("s_lshl_b32 s16, s16, 6"); o("s_add_u32 s17, s17, s16"); o(f"s_add_u32 s17, s17, {WS_H}")
        o("v_add_u32 v4, s17, v4")
        o(f"global_store_dwordx4 v4, {v(R0,4)}, {s(sWS,2)} sc1")
        o(f"v_add_u32 v4, {16*131072}, v4")
        o(f"global_store_dwordx4 v4, {v(R0+4,4)}, {s(sWS,2)} sc1")

def kv_small(A, swap, lab, sCs, opt):
    o = A
    from gemm import gen_loop3
    sX, sY, sO = 8, 12, 16
    sOffX, sOffY, sM0, sK = 20, 21, [22, 23], 24
    sT = [25, 26, 27, 28]
    G = Gemm(A, 2, 4, swap, "s")
    o(f"s_lshl_b32 s{sOffX}, s{sCs}, 7"); o(f"s_lshl_b32 s{sOffY}, s{sTok}, 6")
    o(f"s_mul_i32 s{sM0[0]}, s{sW}, {G.NIX*1024}"); o(f"s_mul_i32 s{sM0[1]}, s{sW}, {G.NIY*1024}")
    G.setup(sW, 0, 8192, 0, [1, 2, 3, 4, 5, 6], sT)
    gen_loop3(G, sX, sY, sOffX, sOffY, sM0, sK, 32 * 8192, 128 * 1024, 32, lab, K=2, R=8)
    E = G.vF; vLo = 1
    o(f"s_lshr_b32 s{sT[0]}, s{sCs}, 1")
    o(f"s_lshr_b32 s{sT[1]}, s{sTok}, 5"); o(f"s_lshr_b32 s{sT[2]}, s{sW}, 1"); o(f"s_lshl_b32 s{sT[2]}, s{sT[2]}, 1"); o(f"s_add_u32 s{sT[1]}, s{sT[1]}, s{sT[2]}")
    o(f"s_lshl_b32 s{sT[1]}, s{sT[1]}, 5"); o(f"s_add_u32 s{sT[0]}, s{sT[0]}, s{sT[1]}"); o(f"s_lshl_b32 s{sT[0]}, s{sT[0]}, 13")
    o(f"s_and_b32 s{sT[1]}, s{sCs}, 1"); o(f"s_and_b32 s{sT[2]}, s{sW}, 1")
    if not swap:
        o(f"s_lshl_b32 s{sT[1]}, s{sT[1]}, 1"); o(f"s_add_u32 s{sT[1]}, s{sT[1]}, s{sT[2]}")
    else:
        o(f"s_lshl_b32 s{sT[1]}, s{sT[1]}, 2"); o(f"s_lshl_b32 s{sT[2]}, s{sT[2]}, 1"); o(f"s_add_u32 s{sT[1]}, s{sT[1]}, s{sT[2]}")
    o(f"s_lshl_b32 s{sT[1]}, s{sT[1]}, 10"); o(f"s_add_u32 s{sT[0]}, s{sT[0]}, s{sT[1]}")
    def conv(P, T, ra, rb):
        for r in range(4): o(f"v_accvgpr_read_b32 v{T+r}, a{ra+r}")
        for r in range(4): o(f"v_accvgpr_read_b32 v{T+4+r}, a{rb+r}")
        o(f"v_cvt_pk_bf16_f32 v{P}, v{T}, v{T+1}"); o(f"v_cvt_pk_bf16_f32 v{P+1}, v{T+2}, v{T+3}")
        o(f"v_cvt_pk_bf16_f32 v{P+2}, v{T+4}, v{T+5}"); o(f"v_cvt_pk_bf16_f32 v{P+3}, v{T+6}, v{T+7}")
    k = 0
    if not swap:
        o(f"v_lshrrev_b32 v2, 4, v0"); o(f"v_and_b32 v3, 1, v2"); o(f"v_lshrrev_b32 v2, 1, v2"); o(f"v_lshl_or_b32 v2, v3, 1, v2")
        o(f"v_and_b32 v3, 15, v0"); o(f"v_lshl_or_b32 v2, v2, 4, v3"); o(f"v_lshlrev_b32 v{vLo}, 4, v2")
        for jy in range(4):
            o(f"s_add_u32 s{sT[1]}, s{sT[0]}, {(jy >> 1) * 262144 + (jy & 1) * 4096}")
            P = E + 12 * (k % 4); k += 1
            conv(P, P + 4, G.accr(0, jy), G.accr(1, jy))
            o(f"v_permlane16_swap_b32 v{P}, v{P+2}"); o(f"v_permlane16_swap_b32 v{P+1}, v{P+3}")
            o(f"buffer_store_dwordx4 {v(P,4)}, v{vLo}, {s(sO,4)}, s{sT[1]} offen sc1")
    else:
        o(f"v_lshlrev_b32 v{vLo}, 4, v0")
        for jp in range(2):
            o(f"s_add_u32 s{sT[1]}, s{sT[0]}, {jp*262144}")
            for jx in range(2):
                P = E + 12 * (k % 4); k += 1
                conv(P, P + 4, G.accr(jx, 2 * jp), G.accr(jx, 2 * jp + 1))
                o(f"buffer_store_dwordx4 {v(P,4)}, v{vLo}, {s(sO,4)}, s{sT[1]} offen offset:{jx*1024} sc1")
    o("s_waitcnt vmcnt(0)"); o("s_barrier")

def gen_bulk(opt):
    A = Asm(); o = A
    bprof = opt.get("bprof")
    def bstamp(k):
        if not bprof: return
        o("s_memrealtime s[72:73]"); o("s_waitcnt lgkmcnt(0)")
        o(f"s_lshl_b32 s74, s{sB}, 10"); o(f"s_add_u32 s74, s74, {WS_PROF + 4*MiB + k*4}")
        o("v_mov_b32 v250, s74"); o("v_mov_b32 v251, s72")
        o("s_mov_b64 exec, 1"); o(f"global_store_dword v250, v251, {s(sWS,2)}"); o("s_mov_b64 exec, -1")
    o(f"s_add_u32 s{sCNT}, s{sWS}, {WS_CNT}"); o(f"s_addc_u32 s{sCNT+1}, s{sWS+1}, 0")
    o(f"s_cmp_eq_u32 s{sChk}, 0"); o("s_cbranch_scc0 L_cb"); o(f"s_add_u32 s{sCNT}, s{sCNT}, {SLOW_OFF}"); o(f"s_addc_u32 s{sCNT+1}, s{sCNT+1}, 0")
    A.label("L_cb")
    o(f"s_lshl_b32 s{sB}, s{sXb}, 4"); o(f"s_add_u32 s{sB}, s{sB}, s{sI}")
    o(f"s_mov_b32 s{sLim}, 0x400000")
    bstamp(0)
    ln1_task2(A)
    o(f"s_lshr_b32 s{sCntOff}, s{sB}, 4")
    esignal(A, EC_LN1, "l1", idx_s=sCntOff)
    bstamp(1)
    o(f"s_cmp_eq_u32 s{sChk}, 0"); o("s_cbranch_scc1 L_nochk")
    fast_check(A, "b")
    o("s_cmp_eq_u32 s15, 0"); o("s_cbranch_scc1 M_slow")
    A.label("L_nochk")
    ewait(A, EC_LN1, 16, "l10")
    bstamp(2)
    def qkv_srds(sMat):
        o(f"s_lshl_b32 s45, s{sMat}, 3"); o("s_add_u32 s40, s0, s45"); o("s_addc_u32 s41, s1, 0")
        o(f"s_load_dwordx2 s[40:41], s[40:41], {KA_WQ}")
        o(f"s_lshl_b32 s45, s{sMat}, 24"); o(f"s_add_u32 s45, s45, {WS_Q}")
        o(f"s_add_u32 s16, s{sWS}, s45"); o(f"s_addc_u32 s17, s{sWS+1}, 0"); o("s_and_b32 s17, s17, 0xffff")
        o(f"s_mov_b32 s18, {16*MiB}"); o("s_mov_b32 s19, 0x00020000")
        srd(o, 12, sWS, WS_H, 4 * MiB)
        o("s_waitcnt lgkmcnt(0)")
        srd(o, 8, 40, 0, 8 * MiB)
    sMat, sCs = 85, 86
    o(f"s_lshr_b32 s{sMat}, s{sI}, 3"); o(f"s_add_u32 s{sMat}, s{sMat}, 1")
    o(f"s_lshl_b32 s{sCs}, s{sXb}, 3"); o(f"s_and_b32 s45, s{sI}, 7"); o(f"s_add_u32 s{sCs}, s{sCs}, s45")
    o(f"s_mov_b32 s{sTok}, 0")
    A.label("L_t0")
    qkv_srds(sMat)
    o(f"s_cmp_eq_u32 s{sMat}, 2"); o("s_cbranch_scc1 L_t0v")
    kv_small(A, False, "L_t0k", sCs, opt); o("s_branch L_t0s")
    A.label("L_t0v")
    kv_small(A, True, "L_t0vv", sCs, opt)
    A.label("L_t0s")
    o(f"s_lshr_b32 s{sCntOff}, s{sTok}, 7"); o(f"s_lshl_b32 s{sCntOff}, s{sCntOff}, 3"); o(f"s_add_u32 s{sCntOff}, s{sCntOff}, s{sXb}")
    esignal(A, EC_KVH0, "t0", idx_s=sCntOff)
    o(f"s_add_u32 s{sTok}, s{sTok}, 128"); o(f"s_cmp_lt_u32 s{sTok}, 256"); o("s_cbranch_scc1 L_t0")
    bstamp(3)
    ewait(A, EC_FILL, 128, "fl")
    o(f"s_mov_b32 s{sRound}, 0")
    A.label("L_task")
    t0, t1, t2 = 44, 45, 46
    o(f"s_lshl_b32 s{t0}, s{sXb}, 2"); o(f"s_and_b32 s{t1}, s{sI}, 3"); o(f"s_add_u32 s{t0}, s{t0}, s{t1}"); o(f"s_add_u32 s{t0}, s{t0}, 16")
    o(f"s_lshl_b32 s{t1}, s{sXb}, 1"); o(f"s_and_b32 s{t2}, s{sI}, 1"); o(f"s_add_u32 s{t1}, s{t1}, s{t2}")
    o(f"s_lshr_b32 s{t2}, s{sI}, 2")
    o(f"s_cmp_eq_u32 s{sRound}, 0"); o("s_cbranch_scc0 L_r1")
    o(f"s_mov_b32 s{sCt}, s{t0}"); o(f"s_lshl_b32 s{sTok}, s{t2}, 6"); o(f"s_add_u32 s{sTok}, s{sTok}, 256"); o("s_branch L_dec")
    A.label("L_r1")
    o(f"s_cmp_eq_u32 s{sRound}, 1"); o("s_cbranch_scc0 L_r2")
    o(f"s_mov_b32 s{sCt}, s{t0}"); o(f"s_add_u32 s{sTok}, s{t2}, 2"); o(f"s_lshl_b32 s{sTok}, s{sTok}, 8"); o("s_branch L_dec")
    A.label("L_r2")
    o(f"s_cmp_eq_u32 s{sRound}, 2"); o("s_cbranch_scc0 L_r3")
    o(f"s_cmp_lt_u32 s{sI}, 8"); o("s_cbranch_scc0 L_r2q")
    o(f"s_mov_b32 s{sCt}, s{t0}"); o(f"s_add_u32 s{sTok}, s{t2}, 6"); o(f"s_lshl_b32 s{sTok}, s{sTok}, 8"); o("s_branch L_dec")
    A.label("L_r2q")
    o(f"s_mov_b32 s{sCt}, s{t1}"); o(f"s_sub_u32 s{sTok}, s{sI}, 8"); o(f"s_lshr_b32 s{sTok}, s{sTok}, 1"); o(f"s_lshl_b32 s{sTok}, s{sTok}, 8"); o("s_branch L_dec")
    A.label("L_r3")
    o(f"s_cmp_eq_u32 s{sRound}, 3"); o("s_cbranch_scc0 L_phase3")
    o(f"s_cmp_lt_u32 s{sI}, 8"); o("s_cbranch_scc0 L_phase3")
    o(f"s_mov_b32 s{sCt}, s{t1}"); o(f"s_lshr_b32 s{sTok}, s{sI}, 1"); o(f"s_add_u32 s{sTok}, s{sTok}, 4"); o(f"s_lshl_b32 s{sTok}, s{sTok}, 8")
    A.label("L_dec")
    o(f"s_lshr_b32 s{sCntOff}, s{sTok}, 8")
    ewait(A, EC_LN1, 16, "l1", idx_s=sCntOff)
    o(f"s_lshr_b32 s{t0}, s{sTok}, 8")
    o(f"s_lshl_b32 s{t1}, s{t0}, 3"); o(f"s_and_b32 s{t2}, s{sCt}, 15"); o(f"s_lshr_b32 s{t2}, s{t2}, 1"); o(f"s_add_u32 s{t1}, s{t1}, s{t2}"); o(f"s_lshl_b32 s{t1}, s{t1}, 7")
    o(f"s_lshl_b32 s{t0}, s{t0}, 7"); o(f"s_add_u32 s{t0}, s{t0}, {CNT_Q}")
    o(f"s_cmp_lt_u32 s{sCt}, 16"); o(f"s_cselect_b32 s{sCntOff}, s{t0}, s{t1}")
    o(f"s_lshr_b32 s{sMat}, s{sCt}, 4")
    qkv_srds(sMat)
    o(f"s_cmp_eq_u32 s{sRound}, 0"); o("s_cbranch_scc1 L_small")
    o(f"s_cmp_ge_u32 s{sCt}, 32"); o("s_cbranch_scc1 L_bigv")
    qkv_tile(A, 8, False, "L_gA", sW, sCt, sTok, opt, None); o("s_branch L_sig")
    A.label("L_bigv")
    qkv_tile(A, 8, True, "L_gB", sW, sCt, sTok, opt, None); o("s_branch L_sig")
    A.label("L_small")
    osm = dict(opt); osm["S"] = 6
    o(f"s_cmp_ge_u32 s{sCt}, 32"); o("s_cbranch_scc1 L_smallv")
    qkv_tile(A, 2, False, "L_gC", sW, sCt, sTok, osm, None); o("s_branch L_sig")
    A.label("L_smallv")
    qkv_tile(A, 2, True, "L_gD", sW, sCt, sTok, osm, None)
    A.label("L_sig")
    signal(A, 0, "t", off_s=sCntOff)
    if bprof:
        o("s_memrealtime s[72:73]"); o("s_waitcnt lgkmcnt(0)")
        o(f"s_lshl_b32 s74, s{sB}, 10"); o(f"s_lshl_b32 s75, s{sRound}, 2"); o("s_add_u32 s74, s74, s75"); o(f"s_add_u32 s74, s74, {WS_PROF + 4*MiB + 16}")
        o("v_mov_b32 v250, s74"); o("v_mov_b32 v251, s72")
        o("s_mov_b64 exec, 1"); o(f"global_store_dword v250, v251, {s(sWS,2)}"); o("s_mov_b64 exec, -1")
    o(f"s_add_u32 s{sRound}, s{sRound}, 1")
    o("s_branch L_task")
    A.label("L_phase3")
    silu_to_lds(A)
    o(f"s_lshl_b32 s{sCt}, s{sB}, 5"); o(f"s_add_u32 s{sCt}, s{sCt}, 2048")
    mod_task(A, sCt, "b")
    o("s_waitcnt vmcnt(0)"); o("s_barrier")
    if opt.get("wpf", 1):
        prefetch_task(A, KA_WO, 8 * MiB, "wo"); prefetch_task(A, KA_W1, 2048 * 7168, "w1"); prefetch_task(A, KA_W2, 3584 * 4096, "w2")
    if opt.get("p3", 1) == 1:
        o(f"s_mov_b32 s{sCh}, 0")
        A.label("L_chunk")
        o(f"s_lshl_b32 s{sCntOff}, s{sCh}, 3"); o(f"s_add_u32 s{sCntOff}, s{sCntOff}, s{sXb}"); o(f"s_lshl_b32 s{sCntOff}, s{sCntOff}, 7")
        wait_cnt(A, CNT_REC, 32, "rec", off_s=sCntOff, sleep=16)
        o(f"s_lshl_b32 s{sCntOff}, s{sCh}, 7")
        wait_cnt(A, CNT_Q, 16, "q", off_s=sCntOff)
        o(f"s_lshl_b32 s56, s{sB}, 2"); o(f"s_add_u32 s56, s56, s{sW}")
        o(f"s_lshr_b32 s57, s56, 6"); o(f"s_lshl_b32 s58, s{sCh}, 3"); o("s_add_u32 s57, s57, s58")
        o("s_lshr_b32 s58, s56, 1"); o("s_and_b32 s58, s58, 31"); o("s_and_b32 s59, s56, 1")
        attn_body(A, sWS, 57, 58, 59, 0, "L_at")
        o("s_waitcnt vmcnt(0)")
        o(f"s_add_u32 s{sCh}, s{sCh}, 1"); o(f"s_cmp_lt_u32 s{sCh}, 8"); o("s_cbranch_scc1 L_chunk")
    o("s_waitcnt vmcnt(0)")
    o("s_endpgm")
    return re.sub(r"\bL_", "B_L_", A.finish())

def gen_mega(name="mega_kernel", recopt=None, opt=None, force_slow=False, place=8):
    recopt = recopt or dict(E2_DEPTH=2, E2_SP=3, E2_DELAY=2)
    opt = opt or {"S": 4}
    A = Asm(); o = A
    o("s_cmp_ge_u32 s2, 256"); o("s_cbranch_scc1 M_end")
    o(f"s_load_dwordx2 {s(sDBG,2)}, s[0:1], {KA_DBG}")
    o(f"s_load_dwordx2 {s(sWS,2)}, s[0:1], {KA_WS}")
    o("s_memrealtime s[92:93]")
    o("v_lshrrev_b32 v1, 6, v0"); o("v_and_b32 v0, 63, v0"); o(f"v_readfirstlane_b32 s{sW}, v1")
    o("s_getreg_b32 s4, hwreg(HW_REG_XCC_ID, 0, 4)"); o("s_and_b32 s4, s4, 7")
    o("s_waitcnt lgkmcnt(0)")
    o(f"s_mov_b32 s{sEC}, s{sDBG}"); o(f"s_mov_b32 s{sEC+1}, s{sDBG+1}")
    o(f"s_mov_b32 s{sChk}, 1")
    o(f"s_cmp_lg_u32 s{sW}, 0"); o("s_cbranch_scc1 M_w")
    o("s_lshl_b32 s12, s4, 2"); o("v_mov_b32 v1, s12"); o("v_mov_b32 v2, 1"); o("s_mov_b64 exec, 1")
    o(f"global_atomic_add v70, v1, v2, {s(sDBG,2)} sc0"); o("s_mov_b64 exec, -1")
    A.label("M_w")
    A.label("M_start")
    mod_partial(A)
    o(f"s_cmp_eq_u32 s{sChk}, 0"); o("s_cbranch_scc1 M_slowroles")
    o(f"s_cmp_lg_u32 s{sW}, 0"); o("s_cbranch_scc1 M_w2")
    o("s_waitcnt vmcnt(0)"); o("s_mov_b64 exec, 1"); o("v_mov_b32 v1, 0"); o("ds_write_b32 v1, v70"); o("s_waitcnt lgkmcnt(0)"); o("s_mov_b64 exec, -1")
    A.label("M_w2")
    o("s_barrier"); o("v_mov_b32 v1, 0"); o("ds_read_b32 v6, v1"); o("s_waitcnt lgkmcnt(0)"); o("v_readfirstlane_b32 s5, v6"); o("s_barrier")
    if force_slow:
        fast_check(A, "t"); o("s_branch M_slow")
    if place == 8:
        o("s_cmp_lt_u32 s5, 16"); o("s_cbranch_scc1 M_rec_fast")
        o("s_cmp_lt_u32 s5, 32"); o("s_cbranch_scc0 M_idle")
        o("s_sub_u32 s5, s5, 16"); o("s_branch M_bulk")
    else:
        o("s_cmp_lt_u32 s5, 32"); o("s_cbranch_scc0 M_idle")
        o("s_and_b32 s12, s4, 3"); o("s_lshl_b32 s12, s12, 1"); o("s_lshr_b32 s13, s5, 4"); o("s_add_u32 s12, s12, s13"); o("s_and_b32 s5, s5, 15")
        o("s_cmp_lt_u32 s4, 4"); o("s_mov_b32 s4, s12"); o("s_cbranch_scc1 M_rec_fast"); o("s_branch M_bulk")
    A.label("M_idle")
    fast_check(A, "i")
    A.label("M_slow")
    o(f"s_mov_b32 s{sChk}, 0")
    o("s_waitcnt vmcnt(0)")
    o("s_mov_b32 s87, s2")
    fills(A, 87, 256, "s")
    o("s_waitcnt vmcnt(0)"); o("s_barrier")
    o(f"s_cmp_lg_u32 s{sW}, 0"); o("s_cbranch_scc1 M_sb")
    o(f"v_mov_b32 v2, {EC_SLOW*4}"); o("v_mov_b32 v3, 1"); o("s_mov_b64 exec, 1"); o(f"global_atomic_add v2, v3, {s(sDBG,2)}"); o("s_mov_b64 exec, -1")
    o("s_mov_b32 s13, 0x200000")
    A.label("M_sp")
    o(f"global_load_dword v3, v2, {s(sDBG,2)} sc1"); o("s_waitcnt vmcnt(0)"); o("v_readfirstlane_b32 s12, v3")
    o("s_cmp_ge_u32 s12, 256"); o("s_cbranch_scc1 M_sb"); o("s_sleep 4"); o("s_sub_u32 s13, s13, 1"); o("s_cbranch_scc0 M_sp")
    A.label("M_sb")
    o("s_barrier")
    o(f"s_add_u32 s{sEC}, s{sWS}, {WS_CNT + SLOW_OFF + 49152}"); o(f"s_addc_u32 s{sEC+1}, s{sWS+1}, 0")
    o("s_branch M_start")
    A.label("M_slowroles")
    o("s_lshr_b32 s4, s2, 4"); o("s_and_b32 s4, s4, 7"); o("s_and_b32 s5, s2, 15")
    o("s_cmp_lt_u32 s2, 128"); o("s_cbranch_scc1 M_rec_slow")
    o("s_branch M_bulk")
    A.label("M_end"); o("s_endpgm")
    t = re.sub(r"\bL_", "E_L_", A.finish())
    t += "M_bulk:\n" + gen_bulk(opt)
    Ah = Asm(); esignal(Ah, EC_FILL, "rf"); fast_check(Ah, "r"); Ah("s_cmp_eq_u32 s15, 0"); Ah("s_cbranch_scc1 M_slow")
    Ap = Asm(); Ap(f"s_load_dwordx2 {s(sWS,2)}, s[0:1], {KA_WS}"); Ap("s_waitcnt lgkmcnt(0)"); Ap("s_lshl_b32 s87, s4, 4"); Ap("s_add_u32 s87, s87, s5"); fills(Ap, 87, 128, "r")
    As = Asm(); esignal(As, EC_FILL, "rs")
    t += "M_rec_fast:\n" + re.sub(r"\bL_", "RP_L_", Ap.finish()) + rec.gen_rec(embedded=True, pfx="RF_", fast=True, KVCHK=True, SIG=True, hook=Ah.finish(), cntoff=0, **recopt)
    t += "M_rec_slow:\n" + rec.gen_rec(embedded=True, pfx="RS_", fast=False, KVCHK=True, SIG=True, hook=As.finish(), cntoff=SLOW_OFF, **recopt)
    return kernel_head(name) + t + kernel_desc(name, 256, 256)
```

```python
from asmlib import *
from layout import *

NSTEPS = 64
SENT = 0xFFFFFFFF

def gen_rec(name="rec_kernel", embedded=False, pfx="", KVCHK=False, SIG=False, hook=None, cntoff=0, fast=True, prof=False, nsteps=NSTEPS, E1_EARLY=True, E2_DELAY=0, E3_DELAY=0, KV_FIRST=0, PF=1, VSP=2, RT=0, E1_AT=7, E3_SALU_FIRST=0, LAST_SHORT=1, NOK=0, NOV=0, E2F='sc1', X4=0, X4LIM=4, E2_DEPTH=3, E2_SP=0, EP=0, FIXKV=0):
    TIMER = "s_memrealtime" if RT else "s_memtime"
    A = Asm()
    o = A
    st_fast = "" if fast else " sc1"
    sWG = 2
    sW, sG, sJ, sHA, sC, sHead = 3, 4, 5, 6, 7, 8
    sWS = 10
    sT0, sT1, sT2, sT3 = 12, 13, 14, 15
    sPtr = 16
    sMEMc, sMEMn, sQK, sVR, sPART, sPART2, sKX, sKX2, sVX, sKM, sVM = 20, 22, 24, 26, 28, 30, 32, 34, 36, 38, 40
    sRq, sRv, sRp, sRm = 42, 44, 46, 48
    sStep, sSlot, sLim = 50, 51, 52
    sMaskQK, sMaskLo = 54, 56
    sSelV = 58
    sScale = 60
    sWQ, sWK, sWV, sWO, sDBG = 62, 64, 66, 68, 70
    sTs = 66
    sProf = 96
    vL = 0; vT = [1, 2, 3, 4, 5, 6, 7]
    vE3, vQKst, vVst, vVld, vPst, vPld, vMst, vKx, vL16, vKMst = 8, 9, 10, 11, 12, 13, 14, 15, 56, 57
    vA0, vA1, vAv0, vAv1 = 16, 20, 24, 28
    vSx, vSm = 32, 40
    vPx, vPmA, vPmB = 44, 48, 50
    vDelta = 52
    vNeg = 60
    vB = 64; vK = 128; vV = 160; vQ = 192; vQr = 200; vKm = 208; vKr = 216; vVm = 224
    vLdsM, vLdsO, vLdsV = 232, 233, 234
    vSent = 236
    vX = 240
    vO = 64; vOb = 96
    vOo = [112, 116, 120, 124] + [160 + 4 * i for i in range(8)]
    LDS_MEM, LDS_O, LDS_V = 0, 16384, 32768

    if not embedded:
        o(f"s_cmp_ge_u32 s{sWG}, {256 if X4 else 128}")
        o("s_cbranch_scc1 L_rec_end")
        o(f"s_load_dwordx2 {s(sWQ,2)}, s[0:1], {KA_WQ}")
        o(f"s_load_dwordx2 {s(sWK,2)}, s[0:1], {KA_WK}")
        o(f"s_load_dwordx2 {s(sWV,2)}, s[0:1], {KA_WV}")
        o(f"s_load_dwordx2 {s(sWO,2)}, s[0:1], {KA_WO}")
        o(f"s_load_dwordx2 {s(sDBG,2)}, s[0:1], {KA_DBG}")
        o(f"s_load_dwordx2 {s(sWS,2)}, s[0:1], {KA_WS}")
        o(f"v_lshrrev_b32 v1, 6, v0")
        o(f"v_and_b32 v{vL}, 63, v0")
        o(f"v_readfirstlane_b32 s{sW}, v1")
        o(f"s_getreg_b32 s{sG}, hwreg(HW_REG_XCC_ID, 0, 4)")
        o("s_waitcnt lgkmcnt(0)")
        o(f"s_cmp_lg_u32 s{sW}, 0")
        o("s_cbranch_scc1 L_rec_noticket")
        o(f"s_lshl_b32 s{sT0}, s{sG}, 2")
        o(f"v_mov_b32 v1, s{sT0}")
        o("v_mov_b32 v2, 1")
        o("s_mov_b64 exec, 1")
        o(f"global_atomic_add v3, v1, v2, {s(sDBG,2)} sc0")
        o("s_waitcnt vmcnt(0)")
        o("v_mov_b32 v1, 0")
        o("ds_write_b32 v1, v3")
        o("s_waitcnt lgkmcnt(0)")
        o("s_mov_b64 exec, -1")
        A.label("L_rec_noticket")
        o("s_barrier")
        o("v_mov_b32 v1, 0")
        o("ds_read_b32 v3, v1")
        o("s_waitcnt lgkmcnt(0)")
        o(f"v_readfirstlane_b32 s{sJ}, v3")
        o("s_barrier")
        if X4:
            o(f"s_cmp_ge_u32 s{sG}, {X4LIM}"); o("s_cbranch_scc1 L_rec_end")
            o(f"s_sub_u32 s{sG}, s{sG}, {X4LIM-4}") if False else None
            o(f"s_lshl_b32 s{sG}, s{sG}, 1"); o(f"s_lshr_b32 s{sT0}, s{sJ}, 4"); o(f"s_add_u32 s{sG}, s{sG}, s{sT0}")
        o(f"s_and_b32 s{sJ}, s{sJ}, 15")
        o(f"s_and_b32 s{sG}, s{sG}, 7")
    else:
        o(f"s_load_dwordx2 {s(sWQ,2)}, s[0:1], {KA_WQ}")
        o(f"s_load_dwordx2 {s(sWK,2)}, s[0:1], {KA_WK}")
        o(f"s_load_dwordx2 {s(sWV,2)}, s[0:1], {KA_WV}")
        o(f"s_load_dwordx2 {s(sWO,2)}, s[0:1], {KA_WO}")
        o(f"s_load_dwordx2 {s(sWS,2)}, s[0:1], {KA_WS}")
        o("s_waitcnt lgkmcnt(0)")
    o(f"s_lshr_b32 s{sHA}, s{sJ}, 2")
    o(f"s_and_b32 s{sC}, s{sJ}, 3")
    o(f"s_lshl_b32 s{sHead}, s{sG}, 2")
    o(f"s_add_u32 s{sHead}, s{sHead}, s{sW}")
    vi, vg, vr = vT[0], vT[1], vT[2]
    o(f"v_and_b32 v{vi}, 15, v{vL}")
    o(f"v_lshrrev_b32 v{vg}, 4, v{vL}")
    o(f"v_and_b32 v{vr}, 7, v{vL}")
    o(f"v_lshlrev_b32 v{vL16}, 4, v{vL}")

    o(f"s_lshl_b32 s{sT0}, s{sG}, 2")
    o(f"s_add_u32 s{sT0}, s{sT0}, s{sHA}")
    o(f"s_lshl_b32 s{sT0}, s{sT0}, 8")
    o(f"s_lshl_b32 s{sT1}, s{sC}, 6")
    o(f"s_add_u32 s{sT0}, s{sT0}, s{sT1}")
    v1, v2, v3, v4 = vT[3], vT[4], vT[5], vT[6]
    o(f"v_lshrrev_b32 v{v1}, 2, v{vL}")
    o(f"v_lshlrev_b32 v{v1}, 13, v{v1}")
    o(f"v_and_b32 v{v2}, 3, v{vL}")
    o(f"v_lshl_add_u32 v{v1}, v{v2}, 4, v{v1}")
    o(f"v_add_u32 v{v1}, s{sT0}, v{v1}")
    o(f"s_lshl_b32 s{sT1}, s{sW}, 21")
    o(f"v_add_u32 v{v1}, s{sT1}, v{v1}")
    def dma_strip(sbase, ldsbase, nblk, rowstep):
        o(f"v_mov_b32 v{v2}, v{v1}")
        o(f"s_lshl_b32 s{sT2}, s{sW}, {(nblk*1024).bit_length()-1}")
        o(f"s_add_u32 s{sT2}, s{sT2}, {ldsbase}")
        for m in range(nblk):
            o(f"s_mov_b32 m0, s{sT2}")
            o(f"s_add_u32 s{sT2}, s{sT2}, 1024")
            o(f"global_load_lds_dwordx4 v{v2}, {s(sbase,2)}")
            if m + 1 < nblk: o(f"v_add_u32 v{v2}, {rowstep}, v{v2}")
    dma_strip(sWQ, 0, 16, 131072)
    dma_strip(sWK, 65536, 16, 131072)
    o(f"v_lshrrev_b32 v{v3}, 2, v{vi}")
    o(f"v_lshl_add_u32 v{v3}, v{vg}, 3, v{v3}")
    o(f"v_lshlrev_b32 v{v3}, 6, v{v3}")
    o(f"v_and_b32 v{v4}, 3, v{vi}")
    o(f"v_lshl_add_u32 v{v3}, v{v4}, 3, v{v3}")
    o("s_waitcnt vmcnt(0)")
    o("s_barrier")
    o(f"s_lshr_b32 s{sT0}, s{sW}, 1")
    o(f"s_lshl_b32 s{sT0}, s{sT0}, 16")
    o(f"s_and_b32 s{sT1}, s{sW}, 1")
    o(f"s_lshl_b32 s{sT1}, s{sT1}, 5")
    o(f"s_add_u32 s{sT0}, s{sT0}, s{sT1}")
    for i in range(16):
        o(f"s_lshl_b32 s{sT2}, s{sW}, 2")
        o(f"s_add_u32 s{sT2}, s{sT2}, {i}")
        o(f"s_and_b32 s{sT2}, s{sT2}, 15")
        o(f"s_lshl_b32 s{sT2}, s{sT2}, 12")
        o(f"s_add_u32 s{sT2}, s{sT2}, s{sT0}")
        o(f"v_add_u32 v{v4}, s{sT2}, v{v3}")
        for half in range(2):
            d = (i * 2 + half) * 4
            o(f"ds_read_b64_tr_b16 {a(d,2)}, v{v4} offset:{half*2048}")
            o(f"ds_read_b64_tr_b16 {a(d+2,2)}, v{v4} offset:{half*2048+256}")
        if i % 4 == 3: o("s_waitcnt lgkmcnt(0)")
    o("s_barrier")
    dma_strip(sWV, 0, 16, 131072)
    o(f"v_lshrrev_b32 v{v1}, 3, v{vL}")
    o(f"v_lshlrev_b32 v{v1}, 11, v{v1}")
    o(f"v_and_b32 v{v2}, 7, v{vL}")
    o(f"v_lshl_add_u32 v{v1}, v{v2}, 4, v{v1}")
    o(f"s_lshl_b32 s{sT0}, s{sG}, 20")
    o(f"s_lshl_b32 s{sT1}, s{sJ}, 7")
    o(f"s_add_u32 s{sT0}, s{sT0}, s{sT1}")
    o(f"s_lshl_b32 s{sT1}, s{sW}, 18")
    o(f"s_add_u32 s{sT0}, s{sT0}, s{sT1}")
    o(f"v_add_u32 v{v1}, s{sT0}, v{v1}")
    dma_strip(sWO, 65536, 16, 16384)
    o("s_waitcnt vmcnt(0)")
    o("s_barrier")
    o(f"s_and_b32 s{sT0}, s{sW}, 1")
    o(f"s_lshl_b32 s{sT0}, s{sT0}, 5")
    for i in range(8):
        o(f"s_lshl_b32 s{sT2}, s{sW}, 2")
        o(f"s_add_u32 s{sT2}, s{sT2}, {i}")
        o(f"s_and_b32 s{sT2}, s{sT2}, 15")
        o(f"s_lshl_b32 s{sT2}, s{sT2}, 12")
        o(f"s_add_u32 s{sT2}, s{sT2}, s{sT0}")
        o(f"v_add_u32 v{v4}, s{sT2}, v{v3}")
        for half in range(2):
            d = 128 + (i * 2 + half) * 4
            o(f"ds_read_b64_tr_b16 {a(d,2)}, v{v4} offset:{half*2048}")
            o(f"ds_read_b64_tr_b16 {a(d+2,2)}, v{v4} offset:{half*2048+256}")
        if i % 4 == 3: o("s_waitcnt lgkmcnt(0)")
    o(f"v_lshrrev_b32 v{v3}, 2, v{vi}")
    o(f"v_lshl_add_u32 v{v3}, v{vg}, 2, v{v3}")
    o(f"v_lshlrev_b32 v{v3}, 7, v{v3}")
    o(f"v_and_b32 v{v4}, 3, v{vi}")
    o(f"v_lshl_add_u32 v{v3}, v{v4}, 3, v{v3}")
    o(f"s_lshl_b32 s{sT0}, s{sW}, 14")
    o(f"s_add_u32 s{sT0}, s{sT0}, 65536")
    o(f"v_add_u32 v{v4}, s{sT0}, v{v3}")
    for ct in range(4):
        for u in range(4):
            d = 192 + (ct * 4 + u) * 4
            o(f"ds_read_b64_tr_b16 {a(d,2)}, v{v4} offset:{u*4096+ct*32}")
            o(f"ds_read_b64_tr_b16 {a(d+2,2)}, v{v4} offset:{u*4096+2048+ct*32}")
        o("s_waitcnt lgkmcnt(0)")
    o("s_barrier")

    if hook:
        A.raw(hook)
        o(f"v_and_b32 v{vi}, 15, v{vL}"); o(f"v_lshrrev_b32 v{vg}, 4, v{vL}"); o(f"v_and_b32 v{vr}, 7, v{vL}")
    o(f"s_lshl_b32 s{sT0}, s{sW}, 12")
    o(f"v_add_u32 v{vE3}, s{sT0}, v{vL16}")
    o(f"v_lshrrev_b32 v{v1}, 1, v{vg}")
    o(f"v_lshlrev_b32 v{v1}, 8, v{v1}")
    o(f"v_lshl_add_u32 v{v1}, v{vr}, 4, v{v1}")
    o(f"s_lshr_b32 s{sT0}, s{sC}, 1")
    o(f"s_lshl_b32 s{sT0}, s{sT0}, 10")
    o(f"s_and_b32 s{sT1}, s{sW}, 1")
    o(f"s_lshl_b32 s{sT1}, s{sT1}, 9")
    o(f"s_add_u32 s{sT0}, s{sT0}, s{sT1}")
    o(f"s_and_b32 s{sT1}, s{sC}, 1")
    o(f"s_lshl_b32 s{sT1}, s{sT1}, 7")
    o(f"s_add_u32 s{sT0}, s{sT0}, s{sT1}")
    o(f"v_add_u32 v{vKMst}, s{sT0}, v{v1}")
    o(f"s_lshl_b32 s{sT0}, s{sHA}, 12")
    o(f"s_lshr_b32 s{sT1}, s{sW}, 1")
    o(f"s_lshl_b32 s{sT1}, s{sT1}, 11")
    o(f"s_add_u32 s{sT0}, s{sT0}, s{sT1}")
    o(f"v_add_u32 v{vQKst}, s{sT0}, v{vKMst}")
    o(f"s_lshl_b32 s{sT0}, s{sHA}, 11")
    o(f"s_lshl_b32 s{sT1}, s{sC}, 9")
    o(f"s_add_u32 s{sT0}, s{sT0}, s{sT1}")
    o(f"v_add_u32 v{vVst}, s{sT0}, v{vL16}")
    o(f"s_lshl_b32 s{sT0}, s{sW}, 11")
    o(f"v_add_u32 v{vVld}, s{sT0}, v{vL16}")
    o(f"s_lshl_b32 s{sT0}, s{sG}, 4")
    o(f"s_add_u32 s{sT0}, s{sT0}, s{sJ}")
    o(f"s_lshl_b32 s{sT0}, s{sT0}, 10")
    o(f"s_and_b32 s{sT1}, s{sW}, 1")
    o(f"s_lshl_b32 s{sT1}, s{sT1}, 9")
    o(f"s_add_u32 s{sT0}, s{sT0}, s{sT1}")
    o(f"s_lshr_b32 s{sT1}, s{sW}, 1")
    o(f"s_lshl_b32 s{sT1}, s{sT1}, 7")
    o(f"s_add_u32 s{sT0}, s{sT0}, s{sT1}")
    o(f"v_add_u32 v{vPst}, s{sT0}, v{v1}")
    o(f"v_lshlrev_b32 v{vPld}, 14, v{vg}")
    o(f"v_lshl_add_u32 v{vPld}, v{vi}, 4, v{vPld}")
    o(f"s_lshl_b32 s{sT0}, s{sJ}, 10")
    o(f"s_lshl_b32 s{sT1}, s{sW}, 8")
    o(f"s_add_u32 s{sT0}, s{sT0}, s{sT1}")
    o(f"v_add_u32 v{vPld}, s{sT0}, v{vPld}")
    o(f"v_add_u32 v{vMst}, s{sT0}, v{vL16}")
    o(f"v_lshlrev_b32 v{vKx}, 13, v{vi}")
    o(f"v_lshl_add_u32 v{vKx}, v{vg}, 4, v{vKx}")
    o(f"s_lshl_b32 s{sT0}, s{sHead}, 8")
    o(f"v_add_u32 v{vKx}, s{sT0}, v{vKx}")
    o(f"v_mov_b32 v{vLdsM}, v{vL16}")
    for d in range(4):
        o(f"v_mov_b32 v{vDelta+d}, 0")
        o(f"v_mov_b32 v{v1}, 0x3f80")
        o(f"v_cmp_eq_u32 vcc, {2*d}, v{vi}")
        o(f"v_cndmask_b32 v{vDelta+d}, v{vDelta+d}, v{v1}, vcc")
        o(f"v_mov_b32 v{v1}, 0x3f800000")
        o(f"v_cmp_eq_u32 vcc, {2*d+1}, v{vi}")
        o(f"v_cndmask_b32 v{vDelta+d}, v{vDelta+d}, v{v1}, vcc")
    o(f"v_mov_b32 v{v1}, 0xff800000")
    o(f"v_cmp_lt_u32 vcc, 31, v{vL}")
    o(f"v_cndmask_b32 v{vNeg}, 0, v{v1}, vcc")
    for r in range(1, 4): o(f"v_mov_b32 v{vNeg+r}, v{vNeg}")
    for r in range(4): o(f"v_mov_b32 v{vSent+r}, -1")
    o(f"s_mov_b32 s{sMaskQK}, 0xff"); o(f"s_mov_b32 s{sMaskQK+1}, 0xff")
    o(f"s_mov_b32 s{sSelV}, -1"); o(f"s_mov_b32 s{sSelV+1}, 0")
    import math
    cs = 128 ** -0.5 * math.log2(math.e)
    import struct
    o(f"s_mov_b32 s{sScale}, 0x{struct.unpack('<I', struct.pack('<f', cs))[0]:08x}")
    o(f"s_mov_b32 s{sScale+1}, s{sScale}")
    o(f"s_mov_b32 s{sLim}, 0x400000")
    o(f"s_mov_b32 s{sStep}, 0")
    def addbase(dst, off, extra_s=None):
        o(f"s_add_u32 s{dst}, s{sWS}, {off & 0xffffffff}")
        o(f"s_addc_u32 s{dst+1}, s{sWS+1}, 0")
        if extra_s is not None:
            o(f"s_add_u32 s{dst}, s{dst}, s{extra_s}")
            o(f"s_addc_u32 s{dst+1}, s{dst+1}, 0")
    o(f"s_lshl_b32 s{sT0}, s{sHead}, 13")
    o(f"s_add_u32 s{sT0}, s{sT0}, 4096")
    addbase(sKX, WS_K, sT0)
    o(f"s_lshl_b32 s{sT0}, s{sHead}, 13")
    o(f"s_add_u32 s{sT0}, s{sT0}, 4096")
    addbase(sVX, WS_VT, sT0)
    o(f"s_lshl_b32 s{sT0}, s{sHead}, 11")
    addbase(sKM, WS_KM, sT0)
    addbase(sVM, WS_VM, sT0)
    sCNT = 16
    addbase(sCNT, WS_CNT + cntoff)
    sEC = 94
    def gpoll(base, tag, sleep=12):
        o(f"s_cmp_lg_u32 s{sW}, 0"); o(f"s_cbranch_scc1 L_kvw_{tag}_ok")
        o(f"v_mov_b32 v{vX+2}, s{sT0}")
        A.label(f"L_kvw_{tag}")
        o(f"global_load_dword v{vX+3}, v{vX+2}, {s(base,2)} sc1")
        o("s_waitcnt vmcnt(0)")
        o(f"v_readfirstlane_b32 s{sT1}, v{vX+3}")
        o(f"s_cmp_ge_u32 s{sT1}, s{sT2}")
        o(f"s_cbranch_scc1 L_kvw_{tag}_ok")
        o(f"s_sleep {sleep}")
        o(f"s_sub_u32 s{sLim}, s{sLim}, 1")
        o(f"s_cbranch_scc0 L_kvw_{tag}")
        o(f"s_mov_b32 s{sLim}, 0")
        A.label(f"L_kvw_{tag}_ok")
        o("s_barrier")
    if KVCHK:
        o(f"s_mov_b32 s{sT0}, {EC_FILL*4}"); o(f"s_mov_b32 s{sT2}, 128"); gpoll(sEC, "f")
        o(f"s_lshl_b32 s{sT0}, s{sG}, 2"); o(f"s_add_u32 s{sT0}, s{sT0}, {EC_KVH0*4}"); o(f"s_mov_b32 s{sT2}, 16"); gpoll(sEC, "0")
    def load_kx():
        for t in range(8):
            o(f"global_load_dwordx4 {v(vK+t*4,4)}, v{vL16}, {s(sKX,2)} offset:{t*1024-4096}")
    load_kx()
    if prof:
        o(f"s_lshl_b32 s{sT0}, s{sG}, 4")
        o(f"s_add_u32 s{sT0}, s{sT0}, s{sJ}")
        o(f"s_lshl_b32 s{sT0}, s{sT0}, 2")
        o(f"s_add_u32 s{sT0}, s{sT0}, s{sW}")
        o(f"s_lshl_b32 s{sT0}, s{sT0}, 12")
        addbase(sProf, WS_PROF, sT0)
    nst = [0]
    def stamp():
        if not prof: return
        k = nst[0]; nst[0] += 1
        o(f"{TIMER} {s(sTs + 2*k, 2)}")

    def check(regs, lab_ok, lab_retry, tmp):
        regs = list(regs)
        o(f"v_max3_u32 v{tmp}, v{regs[0]}, v{regs[1]}, v{regs[2]}")
        k = 3
        while k + 1 < len(regs):
            o(f"v_max3_u32 v{tmp}, v{tmp}, v{regs[k]}, v{regs[k+1]}"); k += 2
        if k < len(regs):
            o(f"v_max_u32 v{tmp}, v{tmp}, v{regs[k]}")
        o(f"v_cmp_eq_u32 vcc, -1, v{tmp}")
        o(f"s_cbranch_vccz {lab_ok}")
        o(f"s_sub_u32 s{sLim}, s{sLim}, 1")
        o(f"s_cbranch_scc1 {lab_ok}_to")
        o(f"s_branch {lab_retry}")
        A.label(f"{lab_ok}_to")
        o(f"s_mov_b32 s{sLim}, 0")
        A.label(lab_ok)


    sCnt = 98
    vOo = [112, 116, 120, 124, 192, 196, 200, 204, 216, 220, 224, 228]
    vPf = 252
    def merge(main, side, every, start=0):
        side = list(side); out = [];
        for k, m_ in enumerate(main):
            out.append(m_)
            if side and k >= start and (k - start) % every == every - 1: out.append(side.pop(0))
        return out + side
    def emit(L):
        for x in L: o(x)
    def check(regs, lab_ok, lab_retry, tmp, cnt=None):
        regs = list(regs)
        o(f"v_max3_u32 v{tmp}, v{regs[0]}, v{regs[1]}, v{regs[2]}")
        k = 3
        while k + 1 < len(regs):
            o(f"v_max3_u32 v{tmp}, v{tmp}, v{regs[k]}, v{regs[k+1]}"); k += 2
        if k < len(regs):
            o(f"v_max_u32 v{tmp}, v{tmp}, v{regs[k]}")
        o(f"v_cmp_eq_u32 vcc, -1, v{tmp}")
        o(f"s_cbranch_vccz {lab_ok}")
        if prof and cnt is not None: o(f"s_add_u32 s{sCnt+cnt}, s{sCnt+cnt}, 1")
        o(f"s_sub_u32 s{sLim}, s{sLim}, 1")
        o(f"s_cbranch_scc0 {lab_retry}")
        o(f"s_mov_b32 s{sLim}, 0")
        A.label(lab_ok)
    sM = 88
    def mpoll(loads, tag, cnt):
        n = len(loads)
        regs = [b + r for b, _ in loads for r in range(4)]
        o(f"v_max3_u32 v{vX}, v{regs[0]}, v{regs[1]}, v{regs[2]}")
        k = 3
        while k + 1 < len(regs):
            o(f"v_max3_u32 v{vX}, v{vX}, v{regs[k]}, v{regs[k+1]}"); k += 2
        if k < len(regs): o(f"v_max_u32 v{vX}, v{vX}, v{regs[k]}")
        o(f"v_cmp_eq_u32 vcc, -1, v{vX}")
        o(f"s_cbranch_vccz L_{tag}_ok")
        A.label(f"L_{tag}_retry")
        if prof: o(f"s_add_u32 s{sCnt+cnt}, s{sCnt+cnt}, 1")
        for i, (b, rest) in enumerate(loads):
            o(f"v_max3_u32 v{vX}, v{b}, v{b+1}, v{b+2}")
            o(f"v_max_u32 v{vX}, v{vX}, v{b+3}")
            o(f"v_cmp_eq_u32 vcc, -1, v{vX}")
            o(f"s_cbranch_vccz L_{tag}_sk{i}")
            o("s_mov_b64 exec, vcc")
            o(f"global_load_dwordx4 {v(b,4)}, {rest}")
            o("s_mov_b64 exec, -1")
            A.label(f"L_{tag}_sk{i}")
        o("s_waitcnt vmcnt(0)")
        o(f"v_max3_u32 v{vX}, v{regs[0]}, v{regs[1]}, v{regs[2]}")
        k = 3
        while k + 1 < len(regs):
            o(f"v_max3_u32 v{vX}, v{vX}, v{regs[k]}, v{regs[k+1]}"); k += 2
        if k < len(regs): o(f"v_max_u32 v{vX}, v{vX}, v{regs[k]}")
        o(f"v_cmp_eq_u32 vcc, -1, v{vX}")
        o(f"s_cbranch_vccz L_{tag}_ok")
        o(f"s_sub_u32 s{sLim}, s{sLim}, 1")
        o(f"s_cbranch_scc0 L_{tag}_retry")
        o(f"s_mov_b32 s{sLim}, 0")
        A.label(f"L_{tag}_ok")
    if prof:
        for k in range(4): o(f"s_mov_b32 s{sCnt+k}, 0")
    vPfo = 58
    o(f"s_lshl_b32 s{sT1}, s{sG}, 2"); o(f"s_add_u32 s{sT1}, s{sT1}, s{sHA}"); o(f"s_lshl_b32 s{sT1}, s{sT1}, 13")
    o(f"s_lshl_b32 s{sT2}, s{sC}, 11"); o(f"s_add_u32 s{sT1}, s{sT1}, s{sT2}")
    o(f"s_and_b32 s{sT2}, s{sW}, 1"); o(f"s_lshl_b32 s{sT2}, s{sT2}, 10"); o(f"s_add_u32 s{sT1}, s{sT1}, s{sT2}")
    o(f"v_add_u32 v{vPfo}, s{sT1}, v{vL16}")
    o(f"s_cmp_lt_u32 s{sW}, 2")
    sPF = 18
    o(f"s_mov_b32 s{sT0}, {WS_K + 2*262144}")
    o(f"s_mov_b32 s{sT1}, {WS_VT + 2*262144}")
    o(f"s_cselect_b32 s{sT0}, s{sT0}, s{sT1}")
    o(f"s_add_u32 s{sPF}, s{sWS}, s{sT0}"); o(f"s_addc_u32 s{sPF+1}, s{sWS+1}, 0")
    def kx_loads():
        if NOK: return ["s_nop 0"] * 8
        return [f"global_load_dwordx4 {v(vK+t*4,4)}, v{vL16}, {s(sKX,2)} offset:{t*1024-4096}" for t in range(8)]
    def vx_loads():
        if NOV: return ["s_nop 0"] * 8
        return [f"global_load_dwordx4 {v(vV+4*t,4)}, v{vL16}, {s(sVX,2)} offset:{t*1024-4096}" for t in range(8)]
    vRd = [None, 232, 233, 234]
    for hs in (1, 2, 3):
        o(f"v_add_u32 v{vRd[hs]}, {hs*4096}, v{vE3}")
        o(f"v_and_b32 v{vRd[hs]}, 0x3fff, v{vRd[hs]}")
    vVw, vVr, vRw = 235, 59, 15
    o(f"s_lshl_b32 s{sT0}, s{sW}, 10")
    o(f"v_add_u32 v{vVw}, s{sT0}, v{vL16}")
    o(f"v_and_b32 v{vVr}, 31, v{vL}")
    o(f"v_lshlrev_b32 v{vVr}, 4, v{vVr}")
    o(f"v_lshrrev_b32 v{vX+2}, 5, v{vL}")
    o(f"v_lshl_add_u32 v{vVr}, v{vX+2}, 10, v{vVr}")
    vL4 = vX + 3
    o(f"v_lshlrev_b32 v{vL4}, 2, v{vL}")
    o(f"s_lshl_b32 s{sT0}, s{sW}, 8")
    o(f"v_add_u32 v{vRw}, s{sT0}, v{vL4}")
    vRr = [None, 1, 2, 3]
    for hs in (1, 2, 3):
        o(f"s_add_u32 s{sT0}, s{sW}, {hs}"); o(f"s_and_b32 s{sT0}, s{sT0}, 3"); o(f"s_lshl_b32 s{sT0}, s{sT0}, 8")
        o(f"v_add_u32 v{vRr[hs]}, s{sT0}, v{vL4}")
    vOnes = 4
    for r in range(4): o(f"v_mov_b32 v{vOnes+r}, 0x3f803f80")

    LDS_R = 36864
    A.label("L_step")
    nst[0] = 0
    if KVCHK:
        o(f"s_cmp_lg_u32 s{sStep}, 2"); o("s_cbranch_scc1 L_kvn2")
        o(f"s_lshl_b32 s{sT0}, s{sG}, 2"); o(f"s_add_u32 s{sT0}, s{sT0}, {EC_KVH1*4}"); o(f"s_mov_b32 s{sT2}, 16"); gpoll(sEC, "h1")
        A.label("L_kvn2")
        o(f"s_add_u32 s{sT0}, s{sStep}, 2"); o(f"s_and_b32 s{sT1}, s{sT0}, 7"); o(f"s_cmp_lg_u32 s{sT1}, 0"); o("s_cbranch_scc1 L_kvskip")
        o(f"s_cmp_ge_u32 s{sT0}, 64"); o("s_cbranch_scc1 L_kvskip")
        o(f"s_lshr_b32 s{sT0}, s{sT0}, 3")
        o(f"s_cmp_eq_u32 s{sT0}, 1"); o(f"s_cselect_b32 s{sT2}, 16, 4")
        o(f"s_lshl_b32 s{sT0}, s{sT0}, 3"); o(f"s_add_u32 s{sT0}, s{sT0}, s{sG}"); o(f"s_lshl_b32 s{sT0}, s{sT0}, 7")
        gpoll(sCNT, "n")
        A.label("L_kvskip")
    o(f"s_and_b32 s{sSlot}, s{sStep}, 3")
    o(f"s_lshl_b32 s{sT0}, s{sSlot}, 17")
    o(f"s_lshl_b32 s{sT1}, s{sG}, 14")
    o(f"s_add_u32 s{sT2}, s{sT0}, s{sT1}")
    addbase(sMEMc, WS_RMEM, sT2)
    e3_loads = [(vB + 4*u, f"v{vE3}, {s(sMEMc,2)} offset:{u*1024} sc1") for u in range(4)]
    def qk_mfma(i, first=False):
        for half, acc in ((0, vA0), (1, vA1)):
            c = "0" if first else v(acc, 4)
            o(f"v_mfma_f32_16x16x32_bf16 {v(acc,4)}, {a((i*2+half)*4,4)}, {v(vB+4*i,4)}, {c}")
    def salu_bases():
        addbase(sQK, WS_RQK, sT2)
        o(f"s_lshl_b32 s{sT3}, s{sStep}, 17")
        addbase(sPART, WS_PARTF, sT3)
        o(f"s_add_u32 s{sPART2}, s{sPART}, 65536"); o(f"s_addc_u32 s{sPART2+1}, s{sPART+1}, 0")
        o(f"s_lshr_b32 s{sT3}, s{sT2}, 1")
        addbase(sVR, WS_RV, sT3)
        o(f"s_add_u32 s{sT3}, s{sStep}, 1"); o(f"s_and_b32 s{sT3}, s{sT3}, 3"); o(f"s_lshl_b32 s{sT3}, s{sT3}, 17"); o(f"s_add_u32 s{sT3}, s{sT3}, s{sT1}")
        addbase(sMEMn, WS_RMEM, sT3)
        o(f"s_xor_b32 s{sT3}, s{sT0}, {2<<17}")
        o(f"s_add_u32 s{sT3}, s{sT3}, s{sT1}")
        addbase(sRq, WS_RQK, sT3)
        o(f"s_lshr_b32 s{sT3}, s{sT3}, 1")
        addbase(sRv, WS_RV, sT3)
        o(f"s_add_u32 s{sT3}, s{sStep}, 3"); o(f"s_and_b32 s{sT3}, s{sT3}, 3"); o(f"s_lshl_b32 s{sT3}, s{sT3}, 17"); o(f"s_add_u32 s{sT3}, s{sT3}, s{sT1}")
        addbase(sRm, WS_RMEM, sT3)
    def simple_poll(loads, tag, cnt, first_wait):
        regs = [b + r for b, _ in loads for r in range(4)]
        o(f"s_waitcnt vmcnt({first_wait})")
        o(f"s_branch L_{tag}_c")
        A.label(f"L_{tag}_r")
        for b, rest in loads: o(f"global_load_dwordx4 {v(b,4)}, {rest}")
        o("s_waitcnt vmcnt(0)")
        A.label(f"L_{tag}_c")
        check(regs, f"L_{tag}_ok", f"L_{tag}_r", vX, cnt)
    if E3_SALU_FIRST: salu_bases()
    stamp()
    for b, rest in e3_loads: o(f"global_load_dwordx4 {v(b,4)}, {rest}")
    if not E3_SALU_FIRST: salu_bases()
    simple_poll(e3_loads, "e3", 0, 0)
    for u, (b, rest) in enumerate(e3_loads):
        o(f"ds_write_b128 v{vE3}, {v(b,4)} offset:{LDS_MEM + u*1024}")
    for u in range(4): qk_mfma(u, first=(u == 0))
    stamp()
    o("s_waitcnt lgkmcnt(0)")
    o("s_barrier")
    for i in range(4, 16):
        o(f"ds_read_b128 {v(vB+4*i,4)}, v{vRd[i//4]} offset:{LDS_MEM + (i%4)*1024}")
    vxl = vx_loads()
    for i in range(4, 16):
        o(f"s_waitcnt lgkmcnt({15-i})")
        qk_mfma(i)
        if i % VSP == VSP - 1 and vxl: o(vxl.pop(0))
    stamp()
    for r in range(4):
        o(f"v_add_f32_dpp v{vA0+r}, v{vA1+r}, v{vA0+r} row_ror:8 row_mask:0xf bank_mask:0xf")
    R = vX + 4
    o(f"v_cvt_pk_bf16_f32 v{R}, v{vA0}, v{vA0+1}")
    o(f"v_cvt_pk_bf16_f32 v{R+1}, v{vA0+2}, v{vA0+3}")
    o(f"v_permlane16_swap_b32 v{R}, v{R+2}")
    o(f"v_permlane16_swap_b32 v{R+1}, v{R+3}")
    o(f"s_mov_b64 exec, {s(sMaskQK,2)}")
    o(f"global_store_dwordx4 v{vQKst}, {v(R,4)}, {s(sQK,2)}{st_fast}")
    o("s_mov_b64 exec, -1")
    stamp()
    e1_loads = [(vQ + 4*cp, f"v{vE3}, {s(sQK,2)} offset:{cp*1024} sc1") for cp in range(2)] + [(vKm + 4*cp, f"v{vE3}, {s(sQK,2)} offset:{2048+cp*1024} sc1") for cp in range(2)]
    def e1_issue():
        for b, rest in e1_loads: o(f"global_load_dwordx4 {v(b,4)}, {rest}")
    for i in range(8):
        for half, acc in ((0, vAv0), (1, vAv1)):
            c = "0" if i == 0 else v(acc, 4)
            o(f"v_mfma_f32_16x16x32_bf16 {v(acc,4)}, {v(vB+4*i,4)}, {a(128+(i*2+half)*4,4)}, {c}")
        if vxl and i % 2 == 1: o(vxl.pop(0))
        if i == E1_AT:
            emit(vxl); vxl = []
            e1_issue()
    emit(vxl)
    for r in range(4):
        o(f"v_cndmask_b32 v{vAv0+r}, v{vAv1+r}, v{vAv0+r}, {s(sSelV,2)}")
    o(f"ds_write_b128 v{vVw}, {v(vAv0,4)} offset:{LDS_V}")
    o("s_waitcnt lgkmcnt(0)")
    o("s_barrier")
    o(f"s_cmp_lg_u32 s{sW}, 0")
    o("s_cbranch_scc1 L_vred_skip")
    T = vA0
    for k, off in enumerate((0, 512, 2048, 2560)):
        o(f"ds_read_b128 {v(T+4*k,4)}, v{vVr} offset:{LDS_V+off}")
    o("s_waitcnt lgkmcnt(0)")
    for r in range(4):
        o(f"v_add_f32 v{T+r}, v{T+r}, v{T+4+r}")
        o(f"v_add_f32 v{T+8+r}, v{T+8+r}, v{T+12+r}")
    for r in range(4):
        o(f"v_add_f32 v{T+r}, v{T+r}, v{T+8+r}")
    o(f"v_cvt_pk_bf16_f32 v{R}, v{T}, v{T+1}")
    o(f"v_cvt_pk_bf16_f32 v{R+1}, v{T+2}, v{T+3}")
    o(f"v_permlane32_swap_b32 v{R}, v{R+2}")
    o(f"v_permlane32_swap_b32 v{R+1}, v{R+3}")
    o(f"s_mov_b64 exec, {s(sSelV,2)}")
    o(f"global_store_dwordx4 v{vVst}, {v(R,4)}, {s(sVR,2)}{st_fast}")
    o("s_mov_b64 exec, -1")
    o("s_waitcnt vmcnt(1)")
    o("s_branch L_e1_c")
    A.label("L_e1_r")
    e1_issue()
    A.label("L_vred_skip")
    o("s_waitcnt vmcnt(0)")
    A.label("L_e1_c")
    check([b + r for b, _ in e1_loads for r in range(4)], "L_e1_ok", "L_e1_r", vX, 1)
    stamp()
    def M32(d, A_, B_, C_): return f"v_mfma_f32_16x16x32_bf16 {v(d,4)}, {A_}, {B_}, {C_}"
    def rot(dst, srcr): return [f"v_mov_b32_dpp v{dst+r}, v{srcr+r} row_ror:8 row_mask:0xf bank_mask:0xf" for r in range(4)]
    Kf = lambda kt, u: v(vK + (kt*4+u)*4, 4)
    seq = []
    seq += [M32(vSx, Kf(0,0), v(vQ,4), "0")] + rot(vQr, vQ)[:2]
    seq += [M32(vSx+4, Kf(1,0), v(vQ,4), "0")] + rot(vQr, vQ)[2:]
    seq += [M32(vSm, v(vKm,4), v(vQ,4), v(vNeg,4))] + rot(vQr+4, vQ+4)[:2]
    seq += [M32(vSx, Kf(0,2), v(vQ+4,4), v(vSx,4))] + rot(vQr+4, vQ+4)[2:]
    seq += [M32(vSx+4, Kf(1,2), v(vQ+4,4), v(vSx+4,4))] + rot(vKr, vKm)[:2]
    seq += [M32(vSm, v(vKm+4,4), v(vQ+4,4), v(vSm,4))] + rot(vKr, vKm)[2:]
    seq += [M32(vSx, Kf(0,1), v(vQr,4), v(vSx,4))] + rot(vKr+4, vKm+4)[:2]
    seq += [M32(vSx+4, Kf(1,1), v(vQr,4), v(vSx+4,4))] + rot(vKr+4, vKm+4)[2:]
    seq += [M32(vSx, Kf(0,3), v(vQr+4,4), v(vSx,4))]
    seq += [M32(vSx+4, Kf(1,3), v(vQr+4,4), v(vSx+4,4))]
    seq += [M32(vSm, v(vKr,4), v(vQr,4), v(vSm,4))]
    seq += [M32(vSm, v(vKr+4,4), v(vQr+4,4), v(vSm,4))]
    emit(seq)
    if not FIXKV:
        o(f"s_add_u32 s{sKX}, s{sKX}, 262144"); o(f"s_addc_u32 s{sKX+1}, s{sKX+1}, 0")
    vm_loads = [(vVm + 4*mm, f"v{vVld}, {s(sVR,2)} offset:{mm*1024} sc1") for mm in range(2)]
    for b, rest in vm_loads: o(f"global_load_dwordx4 {v(b,4)}, {rest}")
    m, t = vX + 1, vX + 2
    Sall = list(range(vSx, vSx + 8)) + list(range(vSm, vSm + 4))
    m2 = vX + 3
    o(f"v_max3_f32 v{m}, v{Sall[0]}, v{Sall[1]}, v{Sall[2]}")
    o(f"v_max3_f32 v{m2}, v{Sall[4]}, v{Sall[5]}, v{Sall[6]}")
    o(f"v_max3_f32 v{m}, v{m}, v{Sall[3]}, v{Sall[7]}")
    o(f"v_max3_f32 v{m2}, v{m2}, v{Sall[8]}, v{Sall[9]}")
    o(f"v_max3_f32 v{m}, v{m}, v{Sall[10]}, v{Sall[11]}")
    o(f"v_max_f32 v{m}, v{m}, v{m2}")
    for sw in ("16", "32"):
        o(f"v_mov_b32 v{t}, v{m}")
        o(f"v_permlane{sw}_swap_b32 v{m}, v{t}")
        o(f"v_max_f32 v{m}, v{m}, v{t}")
    mm_ = vX + 2
    o(f"v_mul_f32 v{mm_}, s{sScale}, v{m}")
    kxl = kx_loads()
    main = []
    for r in Sall[::2]: main.append(f"v_pk_fma_f32 {v(r,2)}, {v(r,2)}, {s(sScale,2)}, {v(mm_,2)} op_sel_hi:[1,1,0] neg_lo:[0,0,1] neg_hi:[0,0,1]")
    for k_, r in enumerate(Sall):
        main.append(f"v_exp_f32 v{r}, v{r}")
    emit(merge(main, [kxl.pop(0), kxl.pop(0)], 7))
    o(f"v_cvt_pk_bf16_f32 v{vPx}, v{vSx}, v{vSx+1}")
    o(f"v_cvt_pk_bf16_f32 v{vPx+1}, v{vSx+2}, v{vSx+3}")
    o(f"v_cvt_pk_bf16_f32 v{vPx+2}, v{vSx+4}, v{vSx+5}")
    o(f"v_cvt_pk_bf16_f32 v{vPx+3}, v{vSx+6}, v{vSx+7}")
    o(f"v_cvt_pk_bf16_f32 v{vPmA}, v{vSm}, v{vSm+1}")
    o(f"v_cvt_pk_bf16_f32 v{vPmA+1}, v{vSm+2}, v{vSm+3}")
    stamp()
    vLs = vSx
    pv = [M32(vO+4*tt, v(vV+4*tt,4), v(vPx,4), "0") for tt in range(8)]
    side = [f"v_mov_b32 v{vX+4}, v{vPmA}", f"v_mov_b32 v{vX+5}, v{vPmA+1}", f"v_mov_b32 v{vPmB}, 0", f"v_mov_b32 v{vPmB+1}, 0",
            f"v_permlane32_swap_b32 v{vPmB}, v{vX+4}", f"v_permlane32_swap_b32 v{vPmB+1}, v{vX+5}", kxl.pop(0)]
    emit(merge(pv, side, 1))
    o(M32(vLs, v(vOnes,4), v(vPx,4), "0"))
    o(f"v_mfma_f32_16x16x16_bf16 {v(vLs,4)}, {v(vOnes,2)}, {v(vPmA,2)}, {v(vLs,4)}")
    simple_poll(vm_loads, "vm", 2, 3)
    stamp()
    o(f"s_and_b32 s{sT0}, s{sStep}, 15"); o(f"s_cmp_lg_u32 s{sT0}, s{sJ}"); o("s_cbranch_scc1 L_nopub")
    for cp in range(2): o(f"global_store_dwordx4 v{vL16}, {v(vKm+4*cp,4)}, {s(sKM,2)} offset:{cp*1024} sc1")
    for cp in range(2): o(f"global_store_dwordx4 v{vL16}, {v(vVm+4*cp,4)}, {s(sVM,2)} offset:{cp*1024} sc1")
    A.label("L_nopub")
    if LAST_SHORT:
        o(f"s_cmp_eq_u32 s{sStep}, {nsteps-1}")
        o("s_cbranch_scc1 L_rec_last")
    if PF: o(f"global_load_dwordx4 {v(vPf,4)}, v{vPfo}, {s(sPF,2)}")
    def pvm(tt):
        c, tv = tt >> 1, tt & 1
        pm = vPmB if (c & 1) else vPmA
        return f"v_mfma_f32_16x16x16_bf16 {v(vO+4*tt,4)}, {v(vVm+4*(c>>1)+2*tv,2)}, {v(pm,2)}, {v(vO+4*tt,4)}"
    def cvt(tt):
        u, h = tt >> 1, tt & 1
        return [f"v_cvt_pk_bf16_f32 v{vOb+4*u+2*h}, v{vO+4*tt}, v{vO+4*tt+1}", f"v_cvt_pk_bf16_f32 v{vOb+4*u+2*h+1}, v{vO+4*tt+2}, v{vO+4*tt+3}"]
    vCa = [16, 20, 24, 28]
    for tt in range(3): o(pvm(tt))
    l_ = vX + 1
    def cm(ct, u):
        c = "0" if u == 0 else v(vCa[ct], 4)
        return f"v_mfma_f32_16x16x32_bf16 {v(vCa[ct],4)}, {a(192+(ct*4+u)*4,4)}, {v(vOb+4*u,4)}, {c}"
    pend = []
    for tt in range(8):
        if tt + 3 < 8: o(pvm(tt + 3))
        cv = cvt(tt)
        o(cv[0])
        if pend: o(pend.pop(0))
        o(cv[1])
        if pend: o(pend.pop(0))
        if tt == 0: o(f"v_rcp_f32 v{l_}, v{vLs}")
        if tt % 2 == 1:
            pend += [cm(ct, tt >> 1) for ct in range(4)]
            if kxl: o(kxl.pop(0))
    emit(pend)
    for ct in range(4):
        pass
    o(f"v_mov_b32 v{vX+2}, v{l_}")
    for ct in range(4):
        o(f"v_pk_mul_f32 {v(vCa[ct],2)}, {v(vCa[ct],2)}, {v(vX+2,2)} op_sel_hi:[1,0]")
        o(f"v_pk_mul_f32 {v(vCa[ct]+2,2)}, {v(vCa[ct]+2,2)}, {v(vX+2,2)} op_sel_hi:[1,0]")
        o(f"ds_write_b128 v{vVw}, {v(vCa[ct],4)} offset:{LDS_O+ct*4096}")
    while kxl: o(kxl.pop(0))
    o("s_waitcnt lgkmcnt(0)")
    o("s_barrier")
    stamp()
    Rr = [112, 116, 120, 124]
    for sw in range(4): o(f"ds_read_b128 {v(Rr[sw],4)}, v{vE3} offset:{LDS_O+sw*1024}")
    vC = Rr[0]
    o("s_waitcnt lgkmcnt(2)")
    o(f"v_pk_add_f32 {v(Rr[0],2)}, {v(Rr[0],2)}, {v(Rr[1],2)}"); o(f"v_pk_add_f32 {v(Rr[0]+2,2)}, {v(Rr[0]+2,2)}, {v(Rr[1]+2,2)}")
    o("s_waitcnt lgkmcnt(0)")
    o(f"v_pk_add_f32 {v(Rr[2],2)}, {v(Rr[2],2)}, {v(Rr[3],2)}"); o(f"v_pk_add_f32 {v(Rr[2]+2,2)}, {v(Rr[2]+2,2)}, {v(Rr[3]+2,2)}")
    o(f"v_pk_add_f32 {v(Rr[0],2)}, {v(Rr[0],2)}, {v(Rr[2],2)}"); o(f"v_pk_add_f32 {v(Rr[0]+2,2)}, {v(Rr[0]+2,2)}, {v(Rr[2]+2,2)}")
    o(f"v_cvt_pk_bf16_f32 v{R}, v{vC}, v{vC+1}")
    o(f"v_cvt_pk_bf16_f32 v{R+1}, v{vC+2}, v{vC+3}")
    o(f"v_permlane16_swap_b32 v{R}, v{R+2}")
    o(f"v_permlane16_swap_b32 v{R+1}, v{R+3}")
    o(f"s_mov_b64 exec, {s(sMaskQK,2)}")
    if EP == 2:
        o("s_waitcnt vmcnt(0)")
        o(f"{TIMER} {s(sTs + 2*5, 2)}")
    o(f"global_store_dwordx4 v{vPst}, {v(R,4)}, {s(sPART,2)} sc1")
    stamp()
    if EP == 2:
        o("s_waitcnt vmcnt(0)")
        o(f"{TIMER} {s(sTs + 2*4, 2)}")
    o(f"global_store_dwordx4 v{vQKst}, {v(vSent,4)}, {s(sRq,2)}{st_fast}")
    o(f"s_mov_b64 exec, 0xffff")
    o(f"global_store_dwordx4 v{vMst}, {v(vSent,4)}, {s(sRm,2)}{st_fast}")
    o(f"s_cmp_lg_u32 s{sW}, 0")
    o("s_cbranch_scc1 L_norv")
    o(f"s_mov_b64 exec, {s(sSelV,2)}")
    o(f"global_store_dwordx4 v{vVst}, {v(vSent,4)}, {s(sRv,2)}{st_fast}")
    A.label("L_norv")
    o("s_mov_b64 exec, -1")
    if not FIXKV:
        o(f"s_add_u32 s{sVX}, s{sVX}, 262144"); o(f"s_addc_u32 s{sVX+1}, s{sVX+1}, 0")
    o(f"s_add_u32 s{sKM}, s{sKM}, 65536"); o(f"s_addc_u32 s{sKM+1}, s{sKM+1}, 0")
    o(f"s_add_u32 s{sVM}, s{sVM}, 65536"); o(f"s_addc_u32 s{sVM+1}, s{sVM+1}, 0")
    if E2_DELAY: o(f"s_sleep {E2_DELAY}")
    sets = [vB + 8 * k for k in range(E2_DEPTH)]
    def e2_issue(b):
        o(f"global_load_dwordx4 {v(b,4)}, v{vPld}, {s(sPART,2)} {E2F}")
        o(f"global_load_dwordx4 {v(b+4,4)}, v{vPld}, {s(sPART2,2)} {E2F}")
    if EP: o(f"{TIMER} {s(sTs + 2*2, 2)}")
    for k, b in enumerate(sets):
        e2_issue(b)
        if k + 1 < len(sets) and E2_SP: o(f"s_sleep {E2_SP}")
    if EP:
        o(f"s_waitcnt vmcnt({2*(len(sets)-1)})")
        o(f"{TIMER} {s(sTs + 2*3, 2)}")
    A.label("L_e2")
    for k, b in enumerate(sets):
        o(f"s_waitcnt vmcnt({2*(len(sets)-1)})")
        regs = list(range(b, b + 8))
        o(f"v_max3_u32 v{vX}, v{regs[0]}, v{regs[1]}, v{regs[2]}")
        o(f"v_max3_u32 v{vX}, v{vX}, v{regs[3]}, v{regs[4]}")
        o(f"v_max3_u32 v{vX}, v{vX}, v{regs[5]}, v{regs[6]}")
        o(f"v_max_u32 v{vX}, v{vX}, v{regs[7]}")
        o(f"v_cmp_eq_u32 vcc, -1, v{vX}")
        o(f"s_cbranch_vccz L_e2_ok{k}")
        if prof: o(f"s_add_u32 s{sCnt+3}, s{sCnt+3}, 1")
        e2_issue(b)
    o(f"s_sub_u32 s{sLim}, s{sLim}, 1")
    o(f"s_cbranch_scc0 L_e2")
    o(f"s_mov_b32 s{sLim}, 0")
    D = vA1
    for k, b in enumerate(sets):
        A.label(f"L_e2_ok{k}")
        o(f"v_mfma_f32_16x16x32_bf16 {v(D,4)}, {v(vDelta,4)}, {v(b,4)}, 0")
        o(f"v_mfma_f32_16x16x32_bf16 {v(D,4)}, {v(vDelta,4)}, {v(b+4,4)}, {v(D,4)}")
        if k + 1 < len(sets): o("s_branch L_e2_done")
    A.label("L_e2_done")
    if SIG:
        o(f"s_and_b32 s{sT0}, s{sStep}, 15"); o(f"s_cmp_lg_u32 s{sT0}, s{sJ}"); o("s_cbranch_scc1 L_nosig")
        o(f"s_lshl_b32 s{sT0}, s{sStep}, 7"); o(f"s_add_u32 s{sT0}, s{sT0}, {CNT_REC}")
        o(f"v_mov_b32 v{vX+2}, s{sT0}"); o(f"v_mov_b32 v{vX+3}, 1")
        o("s_mov_b64 exec, 1")
        o(f"global_atomic_add v{vX+2}, v{vX+3}, {s(sCNT,2)}")
        o("s_mov_b64 exec, -1")
        A.label("L_nosig")
    o(f"s_add_u32 s{sPF}, s{sPF}, 262144"); o(f"s_addc_u32 s{sPF+1}, s{sPF+1}, 0")
    stamp()
    o("s_nop 7")
    o(f"v_cvt_pk_bf16_f32 v{R}, v{D}, v{D+1}")
    o(f"v_cvt_pk_bf16_f32 v{R+1}, v{D+2}, v{D+3}")
    o(f"v_permlane16_swap_b32 v{R}, v{R+2}")
    o(f"v_permlane16_swap_b32 v{R+1}, v{R+3}")
    o(f"s_mov_b64 exec, 0xffff")
    o(f"global_store_dwordx4 v{vMst}, {v(R,4)}, {s(sMEMn,2)}{st_fast}")
    o("s_mov_b64 exec, -1")
    stamp()
    if E3_DELAY: o(f"s_sleep {E3_DELAY}")
    if prof:
        o("s_waitcnt lgkmcnt(0)")
        for k in range(nst[0]):
            o(f"v_writelane_b32 v{vX+8}, s{sTs+2*k}, {k}")
        for k in range(4):
            o(f"v_writelane_b32 v{vX+8}, s{sCnt+k}, {11+k}")
        o(f"v_writelane_b32 v{vX+8}, s92, 15")
        o(f"s_lshl_b32 s{sT0}, s{sW}, 12")
        o(f"s_lshl_b32 s{sT1}, s{sStep}, 6")
        o(f"s_add_u32 s{sT0}, s{sT0}, s{sT1}")
        o(f"s_add_u32 s{sT0}, s{sT0}, 40960")
        o(f"v_lshlrev_b32 v{vX+9}, 2, v{vL}")
        o(f"v_add_u32 v{vX+9}, s{sT0}, v{vX+9}")
        o("s_mov_b64 exec, 0xffff")
        o(f"ds_write_b32 v{vX+9}, v{vX+8}")
        o("s_mov_b64 exec, -1")
    o(f"s_add_u32 s{sStep}, s{sStep}, 1")
    o(f"s_cmp_lt_u32 s{sStep}, {nsteps}")
    o("s_cbranch_scc1 L_step")
    o("s_branch L_rec_fin")
    A.label("L_rec_last")
    if SIG:
        o("s_waitcnt vmcnt(0)")
        o(f"s_and_b32 s{sT0}, s{sStep}, 15"); o(f"s_cmp_lg_u32 s{sT0}, s{sJ}"); o("s_cbranch_scc1 L_rec_fin")
        o(f"s_lshl_b32 s{sT0}, s{sStep}, 7"); o(f"s_add_u32 s{sT0}, s{sT0}, {CNT_REC}")
        o(f"v_mov_b32 v{vX+2}, s{sT0}"); o(f"v_mov_b32 v{vX+3}, 1")
        o("s_mov_b64 exec, 1")
        o(f"global_atomic_add v{vX+2}, v{vX+3}, {s(sCNT,2)}")
        o("s_mov_b64 exec, -1")
    A.label("L_rec_fin")
    if prof:
        o("s_waitcnt lgkmcnt(0)")
        o(f"s_lshl_b32 s{sT0}, s{sW}, 12")
        o(f"s_add_u32 s{sT0}, s{sT0}, 40960")
        o(f"v_add_u32 v{vX+9}, s{sT0}, v{vL16}")
        for k in range(4):
            o(f"ds_read_b128 {v(vB+4*k,4)}, v{vX+9} offset:{k*1024}")
        o("s_waitcnt lgkmcnt(0)")
        for k in range(4):
            o(f"global_store_dwordx4 v{vL16}, {v(vB+4*k,4)}, {s(sProf,2)} offset:{k*1024}")
    o("s_waitcnt vmcnt(0)")
    A.label("L_rec_end")
    o("s_endpgm")
    txt = A.finish()
    if embedded:
        import re
        return re.sub(r"\bL_", pfx + "L_", txt)
    return kernel_head(name) + txt + kernel_desc(name, 256, 256)

if __name__ == "__main__":
    import sys
    fast = "slow" not in sys.argv
    prof = "prof" in sys.argv
    ng = 256 if any(x.startswith("X4=1") for x in sys.argv) else 128
    hdr = f"; @launch kernel=rec_kernel grid=({ng},1,1) block=(256,1,1) lds=131072\n.amdgcn_target \"amdgcn-amd-amdhsa--gfx950\"\n.text\n"
    kw = {}
    for x in sys.argv[1:]:
        if "=" in x:
            k_, v_ = x.split("=");
            if k_ != "out": kw[k_] = int(v_) if v_.isdigit() else v_
    outn = [x.split("=")[1] for x in sys.argv if x.startswith("out=")]
    open(outn[0] if outn else "rec_test.s", "w").write(hdr + gen_rec(fast=fast, prof=prof, **kw))
```

```python
import sys
from layout import *
import k_gemms, mega2, mega3
NAME = "adaLN_cond__memory_aug_recurrent_mem_tr__mixer_token_mlp__prompt"
HDR = open("cdna_kernels/" + NAME + ".s.ref").read().split("; Override launch geometry")[0]
def build(out, prof=False, slow=False, place=8, opt=None):
    import k_small
    g2, l_g2 = k_gemms.gen_g2()
    p3 = (opt or {}).get("p3", 4)
    launches = [("mega_kernel", 256, 256, 131072)]
    extra = ""
    if p3 < 4:
        k_gemms.PROF = bool((opt or {}).get('tprof'))
        op, l_op = k_gemms.gen_op(); g1, l_g1 = k_gemms.gen_g1()
        if p3 == 0:
            import k_attn
            k_attn.PROF = bool((opt or {}).get('tprof'))
            launches += [("attn_kernel", 1024, 256, 0)]; pre_extra = k_attn.gen_attn()
        else: pre_extra = ""
        launches += [("op_kernel", 256, 256, l_op), ("ln2_kernel", 64, 1024, 32 * 2112), ("g1_kernel", 224, 256, l_g1)]
        extra = pre_extra + op + k_small.gen_ln2() + g1
    if (opt or {}).get("tail2"):
        import k_tail
        k_tail.LOPT = {k_[2:]: v_ for k_, v_ in (opt or {}).items() if k_.startswith('l_')}
        k_tail.PROF = bool((opt or {}).get('tprof'))
        opln, l_opln = k_tail.gen_opln(); g2s, l_g2s = k_tail.gen_g2s()
        launches = [x for x in launches if x[0] not in ("op_kernel", "ln2_kernel")]
        pos = [i for i, x in enumerate(launches) if x[0] == "g1_kernel"][0]
        launches.insert(pos, ("opln_kernel", 256, 256, l_opln))
        launches += [("g2s_kernel", 256, 256, l_g2s)]
        extra = pre_extra + opln + g1; g2 = g2s
    else:
        launches += [("g2_kernel", 256, 256, l_g2)]
    t = HDR
    for k, g, b, l in launches: t += f"; @launch kernel={k} grid=({g},1,1) block=({b},1,1) lds={l}\n"
    t += '.amdgcn_target "amdgcn-amd-amdhsa--gfx950"\n.text\n'
    t += (mega3 if (opt or {}).get('m3') else mega2).gen_mega(recopt=dict(dict(E2_DEPTH=2, E2_SP=3, E2_DELAY=2, prof=prof, RT=1), **{k_[2:]: v_ for k_, v_ in (opt or {}).items() if k_.startswith('r_')}), force_slow=slow, place=place, opt=opt) + extra + g2
    open(out, "w").write(t)
if __name__ == "__main__":
    opt = {'S': 4}
    for x in sys.argv[2:]:
        if '=' in x: opt[x.split('=')[0]] = int(x.split('=')[1])
    build(sys.argv[1], 'prof' in sys.argv, 'slow' in sys.argv, 4 if 'p4' in sys.argv else 8, opt)
```

```python
from asmlib import *
from layout import *
from k_small import fbits, gfun
import math

def attn_body(A, sWS, sSeg, sHead, sQt, vL, lab, base=8, sc1=False, nt=0):
    NT = ' nt' if nt else ''
    o = A
    r = base
    vQ = r; r += 16
    vK = r; r += 32
    vV = r; r += 32
    vKm = r; r += 8
    vVm = r; r += 8
    vS = r; r += 12
    vD = r; r += 4
    vP = r; r += 8
    vLs = r; r += 4
    vOn = r; r += 4
    vT = r; r += 12
    vO = vK
    sA, sB, sC, sD = 40, 42, 44, 46
    sT0, sT1, sSc, sMk = 48, 49, 50, 52
    l16 = vT + 10; t0, t1 = vT + 8, vT + 9
    o(f"v_lshlrev_b32 v{l16}, 4, v{vL}")
    o(f"s_lshl_b32 s{sT0}, s{sSeg}, 5"); o(f"s_add_u32 s{sT0}, s{sT0}, s{sHead}")
    o(f"s_lshl_b32 s{sT1}, s{sT0}, 13")
    o(f"s_add_u32 s{sT1}, s{sT1}, 4096")
    def base_(dst, off, extra):
        o(f"s_add_u32 s{dst}, s{sWS}, s{extra}"); o(f"s_addc_u32 s{dst+1}, s{sWS+1}, 0")
        o(f"s_add_u32 s{dst}, s{dst}, {off}"); o(f"s_addc_u32 s{dst+1}, s{dst+1}, 0")
    base_(sA, WS_K, sT1); base_(sB, WS_VT, sT1)
    o(f"s_lshl_b32 s{sC}, s{sQt}, 12"); o(f"s_add_u32 s{sT1}, s{sT1}, s{sC}"); o(f"s_sub_u32 s{sT1}, s{sT1}, 4096")
    base_(sC, WS_Q, sT1)
    o(f"s_lshl_b32 s{sT1}, s{sT0}, 11")
    base_(sD, WS_KM, sT1)
    for u in range(4): o(f"global_load_dwordx4 {v(vQ+4*u,4)}, v{l16}, {s(sC,2)} offset:{u*1024}{NT}")
    for t in range(8): o(f"global_load_dwordx4 {v(vK+4*t,4)}, v{l16}, {s(sA,2)} offset:{t*1024-4096}{NT}")
    for c in range(2): o(f"global_load_dwordx4 {v(vKm+4*c,4)}, v{l16}, {s(sD,2)} offset:{c*1024}{NT}")
    o(f"s_add_u32 s{sD}, s{sD}, {WS_VM - WS_KM}"); o(f"s_addc_u32 s{sD+1}, s{sD+1}, 0")
    for c in range(2): o(f"global_load_dwordx4 {v(vVm+4*c,4)}, v{l16}, {s(sD,2)} offset:{c*1024}{NT}")
    for t in range(8): o(f"global_load_dwordx4 {v(vV+4*t,4)}, v{l16}, {s(sB,2)} offset:{t*1024-4096}{NT}")
    for k in range(4): o(f"v_mov_b32 v{vOn+k}, 0x3f803f80")
    o(f"s_mov_b32 s{sSc}, {fbits(128 ** -0.5 * math.log2(math.e))}")
    o(f"v_and_b32 v{t0}, 15, v{vL}"); o(f"v_lshrrev_b32 v{t1}, 4, v{vL}"); o(f"v_lshlrev_b32 v{t1}, 2, v{t1}"); o(f"v_sub_u32 v{t0}, v{t0}, v{t1}")
    o("s_waitcnt vmcnt(10)")
    Sx0, Sx1, Sm = vS, vS + 4, vS + 8
    for u in range(4):
        c = "0" if u == 0 else None
        o(f"v_mfma_f32_16x16x32_bf16 {v(Sx0,4)}, {v(vK+4*u,4)}, {v(vQ+4*u,4)}, {c or v(Sx0,4)}")
        o(f"v_mfma_f32_16x16x32_bf16 {v(Sx1,4)}, {v(vK+16+4*u,4)}, {v(vQ+4*u,4)}, {c or v(Sx1,4)}")
        acc = Sm if u % 2 == 0 else vD
        cc = "0" if u < 2 else v(acc, 4)
        o(f"v_mfma_f32_16x16x32_bf16 {v(acc,4)}, {v(vKm+4*(u>>1),4)}, {v(vQ+4*u,4)}, {cc}")
    NEG = 0xff800000
    for k in range(4):
        o(f"v_mov_b32 v{vT+k}, v{vD+k}")
    for k in range(4):
        o(f"v_permlane32_swap_b32 v{vD+k}, v{vT+k}")
    for k in range(4):
        o(f"v_add_f32 v{Sm+k}, v{Sm+k}, v{vT+k}")
    o(f"v_mov_b32 v{t1}, 0xff800000")
    o(f"v_cmp_lt_u32 vcc, 31, v{vL}")
    for k in range(4): o(f"v_cndmask_b32 v{Sm+k}, v{Sm+k}, v{t1}, vcc")
    o(f"s_cmp_eq_u32 s{sQt}, 0"); o(f"s_cbranch_scc0 {lab}_q1")
    for k in range(4):
        o(f"v_cmp_gt_i32 vcc, {k}, v{t0}")
        o(f"v_cndmask_b32 v{Sx0+k}, v{Sx0+k}, v{t1}, vcc")
        o(f"v_mov_b32 v{Sx1+k}, v{t1}")
    o(f"s_branch {lab}_qd")
    A.label(f"{lab}_q1")
    for k in range(4):
        o(f"v_cmp_gt_i32 vcc, {k}, v{t0}")
        o(f"v_cndmask_b32 v{Sx1+k}, v{Sx1+k}, v{t1}, vcc")
    A.label(f"{lab}_qd")
    Sall = list(range(vS, vS + 12))
    m, t = vT, vT + 1
    o(f"v_max3_f32 v{m}, v{Sall[0]}, v{Sall[1]}, v{Sall[2]}")
    for k in range(3, 11, 2): o(f"v_max3_f32 v{m}, v{m}, v{Sall[k]}, v{Sall[k+1]}")
    o(f"v_max_f32 v{m}, v{m}, v{Sall[11]}")
    for sw in ("16", "32"):
        o(f"v_mov_b32 v{t}, v{m}"); o(f"v_permlane{sw}_swap_b32 v{m}, v{t}"); o(f"v_max_f32 v{m}, v{m}, v{t}")
    o(f"v_mul_f32 v{m}, s{sSc}, v{m}")
    for x in Sall: o(f"v_fma_f32 v{x}, v{x}, s{sSc}, -v{m}")
    for x in Sall: o(f"v_exp_f32 v{x}, v{x}")
    vPx, vPmA, vPmB = vP, vP + 4, vP + 6
    for k in range(4): o(f"v_cvt_pk_bf16_f32 v{vPx+k}, v{vS+2*k}, v{vS+2*k+1}")
    o(f"v_cvt_pk_bf16_f32 v{vPmA}, v{Sm}, v{Sm+1}"); o(f"v_cvt_pk_bf16_f32 v{vPmA+1}, v{Sm+2}, v{Sm+3}")
    o(f"v_mov_b32 v{vT+2}, v{vPmA}"); o(f"v_mov_b32 v{vT+3}, v{vPmA+1}"); o(f"v_mov_b32 v{vPmB}, 0"); o(f"v_mov_b32 v{vPmB+1}, 0")
    o(f"v_permlane32_swap_b32 v{vPmB}, v{vT+2}"); o(f"v_permlane32_swap_b32 v{vPmB+1}, v{vT+3}")
    o("s_waitcnt vmcnt(0)")
    o(f"v_mfma_f32_16x16x32_bf16 {v(vLs,4)}, {v(vOn,4)}, {v(vPx,4)}, 0")
    for tt in range(8): o(f"v_mfma_f32_16x16x32_bf16 {v(vO+4*tt,4)}, {v(vV+4*tt,4)}, {v(vPx,4)}, 0")
    o(f"v_mfma_f32_16x16x16_bf16 {v(vLs,4)}, {v(vOn,2)}, {v(vPmA,2)}, {v(vLs,4)}")
    for tt in range(8):
        c, tv = tt >> 1, tt & 1
        pm = vPmB if (c & 1) else vPmA
        o(f"v_mfma_f32_16x16x16_bf16 {v(vO+4*tt,4)}, {v(vVm+4*(c>>1)+2*tv,2)}, {v(pm,2)}, {v(vO+4*tt,4)}")
    o(f"v_rcp_f32 v{m}, v{vLs}")
    n_, rho, g_ = vT + 4, vT + 5, vT + 6
    o(f"v_and_b32 v{n_}, 15, v{vL}"); o(f"v_lshrrev_b32 v{rho}, 4, v{vL}")
    o(f"v_and_b32 v{g_}, 1, v{rho}"); o(f"v_lshrrev_b32 v{rho}, 1, v{rho}"); o(f"v_lshl_or_b32 v{rho}, v{g_}, 1, v{rho}")
    gfun(o, g_, n_, vT + 7)
    o(f"v_xor_b32 v{rho}, v{rho}, v{g_}"); o(f"v_lshl_add_u32 v{rho}, v{n_}, 2, v{rho}"); o(f"v_lshlrev_b32 v{rho}, 4, v{rho}")
    o(f"s_lshl_b32 s{sT0}, s{sHead}, 19")
    o(f"s_lshl_b32 s{sT1}, s{sSeg}, 1"); o(f"s_add_u32 s{sT1}, s{sT1}, s{sQt}"); o(f"s_lshl_b32 s{sT1}, s{sT1}, 10")
    o(f"s_add_u32 s{sT0}, s{sT0}, s{sT1}")
    base_(sA, WS_O, sT0)
    for u in range(4):
        P = vQ + 4 * u
        for h in range(2):
            tt = 2 * u + h
            for k in range(4): o(f"v_mul_f32 v{vO+4*tt+k}, v{vO+4*tt+k}, v{m}")
            o(f"v_cvt_pk_bf16_f32 v{P+2*h}, v{vO+4*tt}, v{vO+4*tt+1}"); o(f"v_cvt_pk_bf16_f32 v{P+2*h+1}, v{vO+4*tt+2}, v{vO+4*tt+3}")
        o(f"v_permlane16_swap_b32 v{P}, v{P+2}"); o(f"v_permlane16_swap_b32 v{P+1}, v{P+3}")
        o(f"global_store_dwordx4 v{rho}, {v(P,4)}, {s(sA,2)}" + (" sc1" if sc1 else ""))
        if u < 3:
            o(f"s_add_u32 s{sA}, s{sA}, 131072"); o(f"s_addc_u32 s{sA+1}, s{sA+1}, 0")
    return r

PROF = False
def gen_attn(name="attn_kernel"):
    A = Asm(); o = A
    o("s_cmp_ge_u32 s2, 1024"); o(f"s_cbranch_scc1 L_{name}_end")
    o(f"s_load_dwordx2 s[4:5], s[0:1], {KA_WS}")
    o("v_lshrrev_b32 v1, 6, v0"); o("v_and_b32 v0, 63, v0"); o("v_readfirstlane_b32 s3, v1")
    o("s_lshl_b32 s6, s2, 2"); o("s_add_u32 s6, s6, s3")
    o("s_lshr_b32 s7, s6, 6"); o("s_lshr_b32 s8, s6, 1"); o("s_and_b32 s8, s8, 31"); o("s_and_b32 s9, s6, 1")
    o("s_waitcnt lgkmcnt(0)")
    if PROF: o("s_memrealtime s[60:61]")
    nv = attn_body(A, 4, 7, 8, 9, 0, f"L_{name}")
    o("s_waitcnt vmcnt(0)")
    if PROF:
        o("s_memrealtime s[62:63]"); o("s_waitcnt lgkmcnt(0)")
        o("s_lshl_b32 s25, s2, 5"); o("s_lshl_b32 s26, s3, 3"); o("s_add_u32 s25, s25, s26"); o(f"s_add_u32 s25, s25, {WS_PROF + 6*MiB}")
        o("v_mov_b32 v2, s60"); o("v_mov_b32 v3, s62"); o("v_mov_b32 v4, s25"); o("s_mov_b64 exec, 1"); o("global_store_dwordx2 v4, v[2:3], s[4:5]"); o("s_waitcnt vmcnt(0)")
    A.label(f"L_{name}_end"); o("s_endpgm")
    return kernel_head(name) + A.finish() + kernel_desc(name, nv)
```

```python
from asmlib import *
from layout import *
from gemm import Gemm, gen_loop, gen_loop2
from k_qkv import srd
from k_small import fbits, LOG2E, wave_sum, ln_rows, unpack8, gfun
from k_attn import attn_body
from mega import qkv_tile
import rec12 as rec
import re, math

CNT_MODA, CNT_MODB, CNT_MODC = 40960, 40960 + 128, 40960 + 256
CNT_LN1 = 41984
SLOW_OFF = 65536

sW, sXb, sI, sWS = 3, 4, 5, 6
sCNT, sB, sCh, sRound, sChk, sLim = 60, 62, 63, 64, 65, 66
sCt, sTok, sCntOff = 67, 68, 69
sDBG = 70
sFt, sDtG = 81, 82

def wait_cnt(A, off, target, tag, off_s=None, sleep=3):
    o = A
    o(f"s_cmp_lg_u32 s{sW}, 0"); o(f"s_cbranch_scc1 L_wc_{tag}_b")
    if off_s is None: o(f"v_mov_b32 v2, {off}")
    else:
        o(f"s_add_u32 s44, s{off_s}, {off}"); o("v_mov_b32 v2, s44")
    A.label(f"L_wc_{tag}")
    o(f"global_load_dword v3, v2, {s(sCNT,2)} sc1")
    o("s_waitcnt vmcnt(0)")
    o("v_readfirstlane_b32 s44, v3")
    o(f"s_cmp_ge_u32 s44, {target}"); o(f"s_cbranch_scc1 L_wc_{tag}_b")
    o(f"s_sleep {sleep}")
    o(f"s_sub_u32 s{sLim}, s{sLim}, 1"); o(f"s_cbranch_scc0 L_wc_{tag}")
    o(f"s_mov_b32 s{sLim}, 0")
    A.label(f"L_wc_{tag}_b")
    o("s_barrier")

def signal(A, off, tag, off_s=None):
    o = A
    o("s_waitcnt vmcnt(0)"); o("s_barrier")
    o(f"s_cmp_lg_u32 s{sW}, 0"); o(f"s_cbranch_scc1 L_sg_{tag}")
    if off_s is None: o(f"v_mov_b32 v2, {off}")
    else:
        o(f"s_add_u32 s44, s{off_s}, {off}"); o("v_mov_b32 v2, s44")
    o("v_mov_b32 v3, 1"); o("s_mov_b64 exec, 1")
    o(f"global_atomic_add v2, v3, {s(sCNT,2)}")
    o("s_mov_b64 exec, -1")
    A.label(f"L_sg_{tag}")

def mod_task(A, sCol, tag):
    o = A
    o("s_load_dwordx2 s[8:9], s[0:1], %d" % KA_WMOD)
    o("v_lshrrev_b32 v5, 2, v0"); o(f"s_lshl_b32 s12, s{sW}, 8"); o("v_add_u32 v5, s12, v5")
    o("v_lshlrev_b32 v6, 2, v5")
    o("s_mov_b32 s13, 12288"); o("v_mul_lo_u32 v7, v5, s13")
    o("v_and_b32 v26, 3, v0"); o("v_lshl_add_u32 v7, v26, 4, v7")
    o(f"s_lshl_b32 s12, s{sCol}, 1"); o("v_add_u32 v7, s12, v7")
    o("s_waitcnt lgkmcnt(0)")
    W = 32; Cc = 96; AC = 112
    for it in range(16):
        o(f"global_load_dwordx4 {v(W+4*it,4)}, v7, s[8:9]")
        o(f"v_add_u32 v7, {16*12288}, v7")
        o(f"ds_read_b32 v{Cc+it}, v6 offset:{it*64}")
    for e in range(8): o(f"v_mov_b32 v{AC+e}, 0")
    o("s_waitcnt lgkmcnt(0)")
    for it in range(16):
        o(f"s_waitcnt vmcnt({15-it})")
        for d in range(4):
            o(f"v_lshlrev_b32 v27, 16, v{W+4*it+d}")
            o(f"v_and_b32 v28, 0xffff0000, v{W+4*it+d}")
            o(f"v_fmac_f32 v{AC+2*d}, v27, v{Cc+it}")
            o(f"v_fmac_f32 v{AC+2*d+1}, v28, v{Cc+it}")
    for e in range(8):
        x = AC + e
        o(f"v_add_f32_dpp v{x}, v{x}, v{x} row_ror:4 row_mask:0xf bank_mask:0xf")
        o(f"v_add_f32_dpp v{x}, v{x}, v{x} row_ror:8 row_mask:0xf bank_mask:0xf")
        for sw in ("16", "32"):
            o(f"v_mov_b32 v27, v{x}"); o(f"v_permlane{sw}_swap_b32 v{x}, v27"); o(f"v_add_f32 v{x}, v{x}, v27")
    o(f"s_lshl_b32 s12, s{sW}, 7"); o("v_lshlrev_b32 v5, 5, v26"); o("v_add_u32 v5, s12, v5")
    o("s_mov_b64 exec, 0xf")
    o(f"ds_write_b128 v5, {v(AC,4)} offset:4096"); o(f"ds_write_b128 v5, {v(AC+4,4)} offset:4112")
    o("s_mov_b64 exec, -1")
    o("s_waitcnt lgkmcnt(0)"); o("s_barrier")
    o(f"s_cmp_lg_u32 s{sW}, 0"); o(f"s_cbranch_scc1 L_mod_{tag}_d")
    o("v_lshlrev_b32 v5, 2, v0")
    o("s_mov_b64 exec, 0xffffffff")
    for w in range(4): o(f"ds_read_b32 v{32+w}, v5 offset:{4096+w*128}")
    o("s_waitcnt lgkmcnt(0)")
    o("v_add_f32 v32, v32, v33"); o("v_add_f32 v34, v34, v35"); o("v_add_f32 v32, v32, v34")
    o("v_cvt_pk_bf16_f32 v32, v32, v32"); o("v_lshlrev_b32 v32, 16, v32")
    o(f"s_lshl_b32 s12, s{sCol}, 2"); o(f"s_add_u32 s12, s12, {WS_MOD}"); o("v_add_u32 v5, s12, v5")
    o(f"global_store_dword v5, v32, {s(sWS,2)} sc1")
    o("s_mov_b64 exec, -1")
    A.label(f"L_mod_{tag}_d")

def silu_to_lds(A):
    o = A
    o("s_load_dwordx2 s[8:9], s[0:1], %d" % KA_C)
    o(f"s_lshl_b32 s12, s{sW}, 6"); o("v_add_u32 v4, s12, v0")
    o("v_lshlrev_b32 v5, 3, v4")
    o("s_waitcnt lgkmcnt(0)")
    o("global_load_dwordx2 v[12:13], v5, s[8:9]")
    o("s_waitcnt vmcnt(0)")
    o("v_lshlrev_b32 v14, 16, v12"); o("v_and_b32 v15, 0xffff0000, v12"); o("v_lshlrev_b32 v16, 16, v13"); o("v_and_b32 v17, 0xffff0000, v13")
    o(f"s_mov_b32 s12, {fbits(-LOG2E)}")
    for r in range(4):
        o(f"v_mul_f32 v{20+r}, s12, v{14+r}"); o(f"v_exp_f32 v{20+r}, v{20+r}"); o(f"v_add_f32 v{20+r}, 1.0, v{20+r}")
        o(f"v_rcp_f32 v{20+r}, v{20+r}"); o(f"v_mul_f32 v{20+r}, v{14+r}, v{20+r}")
    o("v_cvt_pk_bf16_f32 v24, v20, v21"); o("v_cvt_pk_bf16_f32 v25, v22, v23")
    o("v_lshlrev_b32 v20, 16, v24"); o("v_and_b32 v21, 0xffff0000, v24"); o("v_lshlrev_b32 v22, 16, v25"); o("v_and_b32 v23, 0xffff0000, v25")
    o("v_lshlrev_b32 v4, 4, v4")
    o("ds_write_b128 v4, v[20:23]")
    o("s_waitcnt lgkmcnt(0)"); o("s_barrier")

def ln1_task(A):
    o = A
    o("s_load_dwordx2 s[8:9], s[0:1], %d" % KA_X)
    o("v_lshlrev_b32 v2, 4, v0"); o("v_lshlrev_b32 v3, 5, v0")
    o(f"s_add_u32 s12, s{sWS}, {WS_MOD}"); o(f"s_addc_u32 s13, s{sWS+1}, 0")
    SA, CA = 64, 80
    for h in range(2):
        for q in range(2): o(f"global_load_dwordx4 {v(SA+8*h+4*q,4)}, v3, s[12:13] offset:{h*2048+q*16}")
    o("s_add_u32 s12, s12, 4096"); o("s_addc_u32 s13, s13, 0")
    for h in range(2):
        for q in range(2): o(f"global_load_dwordx4 {v(CA+8*h+4*q,4)}, v3, s[12:13] offset:{h*2048+q*16}")
    o(f"s_lshl_b32 s14, s{sB}, 4"); o(f"s_lshl_b32 s15, s{sW}, 2"); o("s_add_u32 s14, s14, s15")
    o("s_waitcnt lgkmcnt(0)")
    o("s_lshl_b32 s15, s14, 11"); o("s_add_u32 s10, s8, s15"); o("s_addc_u32 s11, s9, 0")
    RAW = 96
    for r in range(4):
        off = r * 2048
        if off >= 4096:
            if r == 2: o("s_add_u32 s10, s10, 4096"); o("s_addc_u32 s11, s11, 0")
            off -= 4096
        o(f"global_load_dwordx4 {v(RAW+8*r,4)}, v2, s[10:11] offset:{off}")
        o(f"global_load_dwordx4 {v(RAW+8*r+4,4)}, v2, s[10:11] offset:{off+1024}")
    o("s_waitcnt vmcnt(8)")
    for e in range(16): o(f"v_add_f32 v{CA+e}, 1.0, v{CA+e}")
    X = [32, 48]
    for pr in range(2):
        o(f"s_waitcnt vmcnt({4 if pr == 0 else 0})") if pr == 0 else None
        if pr == 1: o("s_waitcnt vmcnt(4)")
        for r in range(2):
            unpack8(o, X[r], RAW + 8 * (2 * pr + r)); unpack8(o, X[r] + 8, RAW + 8 * (2 * pr + r) + 4)
        ln_rows(o, X, 2, [4, 5], 1e-5)
        for r in range(2):
            R0 = 8 + 8 * r
            for e in range(16): o(f"v_fma_f32 v{X[r]+e}, v{X[r]+e}, v{CA+e}, v{SA+e}")
            for h in range(2):
                for d in range(4): o(f"v_cvt_pk_bf16_f32 v{R0+4*h+d}, v{X[r]+8*h+2*d}, v{X[r]+8*h+2*d+1}")
            o(f"s_add_u32 s16, s14, {2*pr+r}"); o("s_lshr_b32 s17, s16, 4"); o("s_and_b32 s16, s16, 15")
            o("s_lshr_b32 s18, s16, 2"); o("s_lshr_b32 s19, s18, 1"); o("s_and_b32 s18, s18, 1"); o("s_xor_b32 s18, s18, s19"); o("s_lshl_b32 s18, s18, 1"); o("s_or_b32 s18, s18, s19")
            o("v_and_b32 v4, 3, v0"); o("v_xor_b32 v4, s18, v4"); o("v_lshlrev_b32 v4, 4, v4")
            o("v_lshrrev_b32 v5, 2, v0"); o("v_lshl_add_u32 v4, v5, 17, v4")
            o("s_lshl_b32 s17, s17, 10"); o("s_lshl_b32 s16, s16, 6"); o("s_add_u32 s17, s17, s16"); o(f"s_add_u32 s17, s17, {WS_H}")
            o("v_add_u32 v4, s17, v4")
            o(f"global_store_dwordx4 v4, {v(R0,4)}, {s(sWS,2)} sc1")
            o(f"v_add_u32 v4, {16*131072}, v4")
            o(f"global_store_dwordx4 v4, {v(R0+4,4)}, {s(sWS,2)} sc1")
        if pr == 0: o("s_nop 1")

def op_task(A):
    o = A
    S = 4; SBW = 6144
    sX, sY = 8, 12
    o("s_load_dwordx2 s[40:41], s[0:1], %d" % KA_WO); o("s_load_dwordx2 s[46:47], s[0:1], %d" % KA_X)
    o("s_waitcnt lgkmcnt(0)")
    srd(o, sX, 40, 0, 8 * MiB); srd(o, sY, sWS, WS_O, 16 * MiB)
    sDt, sTg = 48, 49
    o(f"s_lshl_b32 s{sDt}, s{sXb}, 1"); o(f"s_and_b32 s20, s{sI}, 1"); o(f"s_add_u32 s{sDt}, s{sDt}, s20")
    o(f"s_lshr_b32 s{sTg}, s{sI}, 1"); o(f"s_lshl_b32 s20, s{sCh}, 3"); o(f"s_add_u32 s{sTg}, s{sTg}, s20")
    sOX, sOY, sLb, sRd, sDm, sK = 20, 21, 22, 23, 24, 25
    o(f"s_lshl_b32 s{sOX}, s{sDt}, 7"); o(f"s_lshl_b32 s26, s{sW}, 16"); o(f"s_add_u32 s{sOX}, s{sOX}, s26")
    o(f"s_lshl_b32 s{sOY}, s{sTg}, 11"); o(f"s_lshl_b32 s26, s{sW}, 17"); o(f"s_add_u32 s{sOY}, s{sOY}, s26")
    o(f"s_mul_i32 s{sLb}, s{sW}, {S*SBW}")
    vi, vg, t0, t1, t2, t3 = 1, 2, 3, 4, 5, 6
    vXr, vYr, vXd, vYd, vC = 8, 12, 13, 17, 20
    o(f"v_and_b32 v{vi}, 15, v0"); o(f"v_lshrrev_b32 v{vg}, 4, v0")
    o(f"v_lshrrev_b32 v{t0}, 2, v{vi}"); o(f"v_and_b32 v{t1}, 1, v{vg}"); o(f"v_lshrrev_b32 v{t2}, 1, v{vg}")
    o(f"v_lshlrev_b32 v{t3}, 4, v{t2}"); o(f"v_lshl_add_u32 v{t3}, v{t0}, 1, v{t3}"); o(f"v_add_u32 v{t3}, v{t3}, v{t1}")
    o(f"v_lshlrev_b32 v{t3}, 7, v{t3}"); o(f"v_and_b32 v{t1}, 3, v{vi}"); o(f"v_lshl_add_u32 v{t3}, v{t1}, 3, v{t3}")
    o(f"v_add_u32 v{t3}, s{sLb}, v{t3}")
    for j in range(4):
        o(f"v_xor_b32 v{t1}, {j}, v{t0}"); o(f"v_lshl_add_u32 v{vXr+j}, v{t1}, 5, v{t3}")
    gfun(o, t2, vi, t1); o(f"v_xor_b32 v{t2}, v{t2}, v{vg}"); o(f"v_lshlrev_b32 v{t2}, 4, v{t2}"); o(f"v_lshl_add_u32 v{t2}, v{vi}, 6, v{t2}")
    o(f"s_add_u32 s26, s{sLb}, 4096"); o(f"v_add_u32 v{vYr}, s26, v{t2}")
    o(f"v_lshrrev_b32 v{t0}, 3, v0"); o(f"v_and_b32 v{t1}, 7, v0")
    o(f"v_lshrrev_b32 v{t3}, 1, v{t0}"); o(f"v_and_b32 v{t2}, 1, v{t0}"); o(f"v_lshl_add_u32 v{t2}, v{t2}, 3, v{t3}")
    o(f"v_lshrrev_b32 v{vi}, 1, v{t1}"); o(f"v_xor_b32 v{vi}, v{vi}, v{t3}"); o(f"v_lshlrev_b32 v{vi}, 5, v{vi}")
    o(f"v_and_b32 v{t1}, 1, v{t1}"); o(f"v_lshl_or_b32 v{vi}, v{t1}, 4, v{vi}")
    o(f"v_lshl_add_u32 v{vXd}, v{t2}, 11, v{vi}")
    for t in range(1, 4): o(f"v_add_u32 v{vXd+t}, {(4*(t&1) + 16*(t>>1))*2048}, v{vXd}")
    o(f"v_lshlrev_b32 v{vYd}, 4, v0"); o(f"v_add_u32 v{vYd+1}, 1024, v{vYd}")
    F = 28; FS = 24
    AC = 80
    def dma():
        L = []
        for t in range(4): L.append([f"s_add_u32 m0, s26, {t*1024}", f"buffer_load_dwordx4 v{vXd+t}, {s(sX,4)}, s{sOX} offen lds"])
        for t in range(2): L.append([f"s_add_u32 m0, s26, {4096+t*1024}", f"buffer_load_dwordx4 v{vYd+t}, {s(sY,4)}, s{sOY} offen lds"])
        return L
    def adv(r): return [f"s_add_u32 s{r}, s{r}, {SBW}", f"s_cmp_eq_u32 s{r}, {S*SBW}", f"s_cselect_b32 s{r}, 0, s{r}"]
    def dma_all():
        o(f"s_add_u32 s26, s{sLb}, s{sDm}")
        for g in dma():
            o(g[0]); o("s_nop 0"); o(g[1])
        o(f"s_add_u32 s{sOX}, s{sOX}, {4*32*2048}"); o(f"s_add_u32 s{sOY}, s{sOY}, {4*131072}")
        for x in adv(sDm): o(x)
    def rd(ph):
        for j in range(5): o(f"v_add_u32 v{vC+j}, s{sRd}, v{(vXr+j) if j < 4 else vYr}")
        for j in range(2): o(f"ds_read_b128 {v(F+ph*FS+16+4*j,4)}, v{vC+4} offset:{j*1024}")
        for j in range(4):
            o(f"ds_read_b64_tr_b16 {v(F+ph*FS+4*j,2)}, v{vC+j}"); o(f"ds_read_b64_tr_b16 {v(F+ph*FS+4*j+2,2)}, v{vC+j} offset:1024")
        for x in adv(sRd): o(x)
    o(f"s_mov_b32 s{sDm}, 0"); o(f"s_mov_b32 s{sRd}, 0")
    for st in range(S): dma_all()
    o(f"s_waitcnt vmcnt({6*(S-1)})")
    rd(0)
    def iteration(ph, first):
        o(f"s_waitcnt vmcnt({6*(S-2)}) lgkmcnt(0)")
        dma_all()
        rd(ph ^ 1)
        for jy in range(2):
            for jx in range(4):
                d = AC + (jx * 2 + jy) * 4
                c = "0" if first else v(d, 4)
                o(f"v_mfma_f32_16x16x32_bf16 {v(d,4)}, {v(F+ph*FS+4*jx,4)}, {v(F+ph*FS+16+4*jy,4)}, {c}")
    iteration(0, True); iteration(1, False)
    o(f"s_mov_b32 s{sK}, 15")
    A.label("L_op_loop")
    iteration(0, False); iteration(1, False)
    o(f"s_sub_u32 s{sK}, s{sK}, 1"); o(f"s_cmp_lg_u32 s{sK}, 0"); o("s_cbranch_scc1 L_op_loop")
    o("s_waitcnt vmcnt(0) lgkmcnt(0)")
    o("s_barrier")
    o("v_lshlrev_b32 v1, 4, v0"); o(f"s_lshl_b32 s26, s{sW}, 13"); o("v_add_u32 v2, s26, v1")
    for t in range(8): o(f"ds_write_b128 v2, {v(AC+4*t,4)} offset:{t*1024}")
    o("v_and_b32 v3, 15, v0"); o("v_lshrrev_b32 v4, 4, v0"); o("v_and_b32 v5, 1, v4"); o("v_lshrrev_b32 v4, 1, v4")
    o("v_lshlrev_b32 v5, 4, v5"); o("v_lshl_add_u32 v5, v4, 3, v5")
    o(f"s_lshl_b32 s26, s{sDt}, 6"); o(f"s_and_b32 s27, s{sW}, 1"); o("s_lshl_b32 s27, s27, 5"); o("s_add_u32 s26, s26, s27")
    o("v_add_u32 v5, s26, v5")
    o(f"s_lshl_b32 s26, s{sTg}, 5"); o(f"s_lshr_b32 s27, s{sW}, 1"); o("s_lshl_b32 s27, s27, 4"); o("s_add_u32 s26, s26, s27")
    o("v_add_u32 v3, s26, v3")
    o("v_lshlrev_b32 v6, 11, v3"); o("v_lshl_add_u32 v6, v5, 1, v6")
    o("v_lshlrev_b32 v7, 2, v5")
    o(f"s_add_u32 s44, s{sWS}, {WS_MOD + 2*4096}"); o(f"s_addc_u32 s45, s{sWS+1}, 0")
    GA, XR = 28, 36
    o(f"global_load_dwordx4 {v(GA,4)}, v7, s[44:45]"); o(f"global_load_dwordx4 {v(GA+4,4)}, v7, s[44:45] offset:16")
    o(f"global_load_dwordx4 {v(XR,4)}, v6, s[46:47]")
    o("s_waitcnt lgkmcnt(0)"); o("s_barrier")
    o(f"s_and_b32 s26, s{sW}, 1"); o("s_lshl_b32 s26, s26, 12"); o(f"s_lshr_b32 s27, s{sW}, 1"); o("s_lshl_b32 s27, s27, 10"); o("s_add_u32 s26, s26, s27")
    o("v_add_u32 v2, s26, v1")
    R = 48
    for sw in range(4):
        o(f"ds_read_b128 {v(R+8*sw,4)}, v2 offset:{sw*8192}"); o(f"ds_read_b128 {v(R+8*sw+4,4)}, v2 offset:{sw*8192+2048}")
    o("s_waitcnt lgkmcnt(0)")
    for e in range(8):
        o(f"v_add_f32 v{R+e}, v{R+e}, v{R+8+e}"); o(f"v_add_f32 v{R+16+e}, v{R+16+e}, v{R+24+e}")
    for e in range(8): o(f"v_add_f32 v{R+e}, v{R+e}, v{R+16+e}")
    for r in range(4): o(f"v_permlane16_swap_b32 v{R+r}, v{R+4+r}")
    o("s_waitcnt vmcnt(0)")
    U = 40 + 40
    unpack8(o, U, XR)
    for e in range(8): o(f"v_fma_f32 v{R+e}, v{R+e}, v{GA+e}, v{U+e}")
    for d in range(4): o(f"v_cvt_pk_bf16_f32 v{XR+d}, v{R+2*d}, v{R+2*d+1}")
    o(f"s_add_u32 s44, s{sWS}, {WS_X1}"); o(f"s_addc_u32 s45, s{sWS+1}, 0")
    o(f"global_store_dwordx4 v6, {v(XR,4)}, s[44:45] sc1")

def ln2_task(A):
    o = A
    o(f"s_lshl_b32 s14, s{sCh}, 3"); o(f"s_add_u32 s14, s14, s{sXb}")
    o("v_lshlrev_b32 v2, 4, v0")
    o(f"s_lshl_b32 s15, s14, 16"); o(f"s_lshl_b32 s16, s{sW}, 14"); o("s_add_u32 s15, s15, s16"); o(f"s_add_u32 s15, s15, {WS_X1}")
    o(f"s_add_u32 s10, s{sWS}, s15"); o(f"s_addc_u32 s11, s{sWS+1}, 0")
    RAW = 96
    for r in range(8):
        if r and r % 2 == 0: o("s_add_u32 s10, s10, 4096"); o("s_addc_u32 s11, s11, 0")
        off = (r % 2) * 2048
        o(f"global_load_dwordx4 {v(RAW+8*r,4)}, v2, s[10:11] offset:{off}"); o(f"global_load_dwordx4 {v(RAW+8*r+4,4)}, v2, s[10:11] offset:{off+1024}")
    o("v_lshrrev_b32 v3, 3, v0"); o("v_and_b32 v4, 7, v0")
    o("v_lshlrev_b32 v5, 11, v3"); o("v_lshl_add_u32 v5, v4, 4, v5"); o(f"s_lshl_b32 s16, s{sI}, 7"); o("v_add_u32 v5, s16, v5")
    o(f"s_add_u32 s10, s{sWS}, s15"); o(f"s_addc_u32 s11, s{sWS+1}, 0")
    SL = 24
    o(f"global_load_dwordx4 {v(SL,4)}, v5, s[10:11]")
    o("v_lshlrev_b32 v6, 5, v4"); o(f"s_lshl_b32 s16, s{sI}, 8"); o("v_add_u32 v6, s16, v6")
    o(f"s_add_u32 s12, s{sWS}, {WS_MOD + 3*4096}"); o(f"s_addc_u32 s13, s{sWS+1}, 0")
    SB_, CB_ = 64, 72
    o(f"global_load_dwordx4 {v(SB_,4)}, v6, s[12:13]"); o(f"global_load_dwordx4 {v(SB_+4,4)}, v6, s[12:13] offset:16")
    o("s_add_u32 s12, s12, 4096"); o("s_addc_u32 s13, s13, 0")
    o(f"global_load_dwordx4 {v(CB_,4)}, v6, s[12:13]"); o(f"global_load_dwordx4 {v(CB_+4,4)}, v6, s[12:13] offset:16")
    vMean, vRs, X, sm, t = 80, 81, 32, 7, 8
    for r in range(8):
        o(f"s_waitcnt vmcnt({5 + 2*(7-r)})")
        unpack8(o, X, RAW + 8 * r); unpack8(o, X + 8, RAW + 8 * r + 4)
        o(f"v_add_f32 v{sm}, v{X}, v{X+1}")
        for e in range(2, 16): o(f"v_add_f32 v{sm}, v{sm}, v{X+e}")
        wave_sum(o, sm, t)
        o(f"v_mul_f32 v{sm}, {fbits(1.0/1024)}, v{sm}")
        for e in range(16): o(f"v_sub_f32 v{X+e}, v{X+e}, v{sm}")
        o(f"v_mul_f32 v9, v{X}, v{X}")
        for e in range(1, 16): o(f"v_fmac_f32 v9, v{X+e}, v{X+e}")
        wave_sum(o, 9, t)
        o(f"v_mov_b32 v{t}, {fbits(1e-5)}"); o(f"v_fmac_f32 v{t}, {fbits(1.0/1024)}, v9"); o(f"v_rsq_f32 v{t}, v{t}")
        o(f"v_cmp_eq_u32 vcc, {r}, v3")
        o(f"v_cndmask_b32 v{vMean}, v{vMean}, v{sm}, vcc"); o(f"v_cndmask_b32 v{vRs}, v{vRs}, v{t}, vcc")
    o("s_waitcnt vmcnt(0)")
    unpack8(o, X, SL)
    for e in range(8):
        o(f"v_sub_f32 v{X+e}, v{X+e}, v{vMean}"); o(f"v_mul_f32 v{X+e}, v{X+e}, v{vRs}")
        o(f"v_add_f32 v{CB_+e}, 1.0, v{CB_+e}"); o(f"v_fma_f32 v{X+e}, v{X+e}, v{CB_+e}, v{SB_+e}")
    for d in range(4): o(f"v_cvt_pk_bf16_f32 v{SL+d}, v{X+2*d}, v{X+2*d+1}")
    RS = 128 + 32
    o(f"s_lshl_b32 s16, s{sW}, 3"); o("v_add_u32 v5, s16, v3"); o(f"v_mul_u32_u24 v5, {RS}, v5"); o("v_lshl_add_u32 v5, v4, 4, v5")
    o(f"ds_write_b128 v5, {v(SL,4)}")
    o("s_waitcnt lgkmcnt(0)"); o("s_barrier")
    o("v_and_b32 v5, 15, v0"); o("v_lshrrev_b32 v6, 4, v0")
    o("v_lshrrev_b32 v7, 2, v5"); o("v_lshl_add_u32 v7, v6, 3, v7"); o(f"v_mul_u32_u24 v7, {RS}, v7")
    o("v_and_b32 v8, 3, v5"); o("v_lshl_add_u32 v7, v8, 3, v7"); o(f"s_lshl_b32 s16, s{sW}, 5"); o("v_add_u32 v7, s16, v7")
    o(f"ds_read_b64_tr_b16 {v(SL,2)}, v7"); o(f"ds_read_b64_tr_b16 {v(SL+2,2)}, v7 offset:{4*RS}")
    gfun(o, 8, 5, 9); o("v_xor_b32 v8, v8, v6"); o("v_lshl_add_u32 v8, v5, 2, v8"); o("v_lshlrev_b32 v8, 4, v8")
    o("s_lshl_b32 s16, s14, 16"); o(f"s_lshl_b32 s17, s{sI}, 12"); o("s_add_u32 s16, s16, s17"); o(f"s_lshl_b32 s17, s{sW}, 10"); o("s_add_u32 s16, s16, s17"); o(f"s_add_u32 s16, s16, {WS_H2T}")
    o("v_add_u32 v8, s16, v8")
    o("s_waitcnt lgkmcnt(0)")
    o(f"global_store_dwordx4 v8, {v(SL,4)}, {s(sWS,2)} sc1")

def g1_partial(A, opt):
    o = A
    sX, sY = 8, 12
    o("s_load_dwordx2 s[40:41], s[0:1], %d" % KA_W1); o("s_waitcnt lgkmcnt(0)")
    srd(o, sX, 40, 0, 2048 * 7168); srd(o, sY, sWS, WS_H2T, 4 * MiB)
    o(f"s_add_u32 s26, s{sCh}, 1"); o(f"s_lshl_b32 s{sY+2}, s26, 19")
    o(f"s_mul_i32 s{sX+2}, s26, {256*7168}")
    G = Gemm(A, 8, 4, False, "g", accbase=128)
    sOffX, sOffY, sM0, sK = 20, 21, [22, 23], 24
    o(f"s_mul_i32 s{sOffX}, s{sCh}, {256*7168}"); o(f"s_lshl_b32 s26, s{sI}, 9"); o(f"s_add_u32 s{sOffX}, s{sOffX}, s26")
    o(f"s_lshl_b32 s{sOffY}, s{sCh}, 19"); o(f"s_lshl_b32 s26, s{sXb}, 13"); o(f"s_add_u32 s{sOffY}, s{sOffY}, s26")
    o(f"s_mul_i32 s{sM0[0]}, s{sW}, {G.NIX*1024}"); o(f"s_mul_i32 s{sM0[1]}, s{sW}, {G.NIY*1024}")
    G.setup(sW, 0, 7168, 0, [1, 2, 3, 4, 5, 6], [25, 26, 27, 28])
    o2 = dict(opt); o2["accum"] = 1
    gen_loop(G, sX, sY, sOffX, sOffY, sM0, sK, 32 * 7168, 64 * 1024, 8, "L_g1", opt=o2, sSt=[32, 33, 34])
    o("s_barrier")
    return G

def g1_epilogue(A, G, sF=sI, sD=sXb):
    o = A
    E = G.vF
    o("s_load_dwordx2 s[42:43], s[0:1], %d" % KA_B1)
    o("v_and_b32 v1, 15, v0"); o("v_lshrrev_b32 v2, 4, v0"); o("v_and_b32 v3, 1, v2"); o("v_lshrrev_b32 v2, 1, v2")
    o("v_lshlrev_b32 v4, 4, v3"); o("v_lshl_add_u32 v4, v2, 3, v4")
    o("v_lshl_or_b32 v2, v3, 1, v2")
    gfun(o, 3, 1, 5)
    o("v_xor_b32 v2, v2, v3"); o("v_lshl_add_u32 v2, v1, 2, v2"); o("v_lshlrev_b32 v2, 4, v2")
    o(f"s_lshl_b32 s25, s{sF}, 8"); o(f"s_and_b32 s26, s{sW}, 1"); o("s_lshl_b32 s26, s26, 7"); o("s_add_u32 s25, s25, s26")
    o("v_add_u32 v4, s25, v4"); o("v_lshlrev_b32 v4, 1, v4")
    BR = E + 64
    o("s_waitcnt lgkmcnt(0)")
    for jp in range(4): o(f"global_load_dwordx4 {v(BR+4*jp,4)}, v4, s[42:43] offset:{jp*64}")
    o("s_lshr_b32 s26, s25, 5"); o("s_lshl_b32 s26, s26, 16")
    o(f"s_lshl_b32 s27, s{sD}, 3"); o(f"s_lshr_b32 s28, s{sW}, 1"); o("s_lshl_b32 s28, s28, 2"); o("s_add_u32 s27, s27, s28"); o("s_lshl_b32 s27, s27, 10")
    o("s_add_u32 s26, s26, s27"); o(f"s_add_u32 s26, s26, {WS_U}")
    o(f"s_add_u32 s44, s{sWS}, s26"); o(f"s_addc_u32 s45, s{sWS+1}, 0")
    o("s_waitcnt vmcnt(0)")
    BF = E + 80
    c1 = -2.0 * math.sqrt(2.0 / math.pi) * LOG2E
    o(f"s_mov_b32 s46, {fbits(0.044715)}"); o(f"s_mov_b32 s47, {fbits(c1)}")
    k = 0
    for jp in range(4):
        unpack8(o, BF, BR + 4 * jp)
        for jy in range(4):
            T = E + 16 * (k % 3) + 4; k += 1
            ra, rb = G.accr(2 * jp, jy), G.accr(2 * jp + 1, jy)
            for r in range(4): o(f"v_accvgpr_read_b32 v{T+r}, a{ra+r}")
            for r in range(4): o(f"v_accvgpr_read_b32 v{T+4+r}, a{rb+r}")
            for r in range(4): o(f"v_permlane16_swap_b32 v{T+r}, v{T+4+r}")
            U = E + 48
            for e in range(8): o(f"v_add_f32 v{T+e}, v{T+e}, v{BF+e}")
            for e in range(8): o(f"v_mul_f32 v{U+e}, v{T+e}, v{T+e}")
            for e in range(8): o(f"v_fma_f32 v{U+e}, v{U+e}, s46, 1.0")
            for e in range(8): o(f"v_mul_f32 v{U+e}, v{U+e}, v{T+e}")
            for e in range(8): o(f"v_mul_f32 v{U+e}, s47, v{U+e}")
            for e in range(8): o(f"v_exp_f32 v{U+e}, v{U+e}")
            for e in range(8): o(f"v_add_f32 v{U+e}, 1.0, v{U+e}")
            for e in range(8): o(f"v_rcp_f32 v{U+e}, v{U+e}")
            for e in range(8): o(f"v_mul_f32 v{T+e}, v{T+e}, v{U+e}")
            P = T - 4
            for d in range(4): o(f"v_cvt_pk_bf16_f32 v{P+d}, v{T+2*d}, v{T+2*d+1}")
            o(f"v_add_u32 v5, {jp*65536 + jy*1024}, v2")
            o(f"global_store_dwordx4 v5, {v(P,4)}, s[44:45]")

def prefetch_task(A, ka, nbytes, tag):
    o = A
    per = nbytes // 128
    assert per % 4096 == 0 or True
    n4k = (per + 4095) // 4096
    o(f"s_load_dwordx2 s[40:41], s[0:1], {ka}"); o("s_waitcnt lgkmcnt(0)")
    srd(o, 8, 40, 0, nbytes)
    o(f"s_mul_i32 s20, s{sB}, {n4k*4096}"); o(f"s_lshl_b32 s21, s{sW}, 10"); o("s_add_u32 s20, s20, s21")
    o("v_lshlrev_b32 v2, 4, v0")
    o(f"s_mov_b32 s22, {n4k}")
    A.label(f"L_pf_{tag}")
    o("buffer_load_dwordx4 v[8:11], v2, s[8:11], s20 offen")
    o("s_add_u32 s20, s20, 4096"); o("s_sub_u32 s22, s22, 1"); o("s_cmp_lg_u32 s22, 0")
    o(f"s_cbranch_scc0 L_pf_{tag}_d")
    o("buffer_load_dwordx4 v[12:15], v2, s[8:11], s20 offen")
    o("s_add_u32 s20, s20, 4096"); o("s_sub_u32 s22, s22, 1"); o("s_cmp_lg_u32 s22, 0")
    o("s_waitcnt vmcnt(24)")
    o(f"s_cbranch_scc1 L_pf_{tag}")
    A.label(f"L_pf_{tag}_d")
    o("s_waitcnt vmcnt(0)")

def op_pass(A, ntok_tiles_log2, opt=None):
    opt = opt or {}
    o = A
    sX, sY = 8, 12
    o("s_load_dwordx2 s[40:41], s[0:1], %d" % KA_WO); o("s_load_dwordx2 s[46:47], s[0:1], %d" % KA_X)
    sDt, sTt = 48, 49
    o(f"s_lshr_b32 s{sDt}, s{sXb}, 1"); o(f"s_lshl_b32 s{sDt}, s{sDt}, 2"); o(f"s_and_b32 s20, s{sI}, 3"); o(f"s_add_u32 s{sDt}, s{sDt}, s20")
    o(f"s_and_b32 s{sTt}, s{sXb}, 1"); o(f"s_lshl_b32 s{sTt}, s{sTt}, 2"); o(f"s_lshr_b32 s20, s{sI}, 2"); o(f"s_add_u32 s{sTt}, s{sTt}, s20")
    o(f"s_cmp_ge_u32 s{sTt}, {1 << ntok_tiles_log2}"); o(f"s_cbranch_scc1 L_opp_skip{ntok_tiles_log2}")
    o(f"s_lshl_b32 s{sTt}, s{sTt}, 6"); o(f"s_add_u32 s{sTt}, s{sTt}, s{sTok}")
    o("s_waitcnt lgkmcnt(0)")
    srd(o, sX, 40, 0, 8 * MiB); srd(o, sY, sWS, WS_O, 16 * MiB)
    G = Gemm(A, 2, 2, False, "o")
    sOffX, sOffY, sM0, sK = 20, 21, [22, 23], 24
    o(f"s_lshl_b32 s{sOffX}, s{sDt}, 7"); o(f"s_lshl_b32 s{sOffY}, s{sTt}, 6")
    o(f"s_mul_i32 s{sM0[0]}, s{sW}, {G.NIX*1024}"); o(f"s_mul_i32 s{sM0[1]}, s{sW}, {G.NIY*1024}")
    G.setup(sW, 0, 2048, 0, [1, 2, 3, 4, 5, 6], [25, 26, 27, 28])
    gen_loop2(G, sX, sY, sOffX, sOffY, sM0, sK, 32 * 2048, 128 * 1024, 128, f"L_opp{ntok_tiles_log2}", K=opt.get("opK", 4), R=opt.get("opR", 16), sSt=[32, 33, 34])
    E = G.vF
    o("v_and_b32 v1, 15, v0"); o("v_lshrrev_b32 v2, 4, v0"); o("v_and_b32 v3, 1, v2"); o("v_lshrrev_b32 v2, 1, v2")
    o("v_lshlrev_b32 v3, 4, v3"); o("v_lshl_add_u32 v3, v2, 3, v3")
    o(f"s_lshl_b32 s25, s{sDt}, 6"); o(f"s_and_b32 s26, s{sW}, 1"); o("s_lshl_b32 s26, s26, 5"); o("s_add_u32 s25, s25, s26")
    o("v_add_u32 v3, s25, v3")
    o(f"s_lshr_b32 s26, s{sW}, 1"); o("s_lshl_b32 s26, s26, 5"); o(f"s_add_u32 s25, s{sTt}, s26")
    o("v_add_u32 v1, s25, v1")
    o("v_lshlrev_b32 v4, 11, v1"); o("v_lshl_add_u32 v4, v3, 1, v4")
    o("v_lshlrev_b32 v5, 2, v3")
    o(f"s_add_u32 s44, s{sWS}, {WS_MOD + 2*4096}"); o(f"s_addc_u32 s45, s{sWS+1}, 0")
    GA = E + 64; XR = E + 72
    o(f"global_load_dwordx4 {v(GA,4)}, v5, s[44:45]"); o(f"global_load_dwordx4 {v(GA+4,4)}, v5, s[44:45] offset:16")
    for jy in range(2):
        o(f"v_add_u32 v6, {jy*16*2048}, v4"); o(f"global_load_dwordx4 {v(XR+4*jy,4)}, v6, s[46:47]")
    o(f"s_add_u32 s44, s{sWS}, {WS_X1}"); o(f"s_addc_u32 s45, s{sWS+1}, 0")
    for jy in range(2):
        T = E + 16 * jy + 4
        for r in range(4): o(f"v_accvgpr_read_b32 v{T+r}, a{G.accr(0, jy)+r}")
        for r in range(4): o(f"v_accvgpr_read_b32 v{T+4+r}, a{G.accr(1, jy)+r}")
        for r in range(4): o(f"v_permlane16_swap_b32 v{T+r}, v{T+4+r}")
        if jy == 0: o("s_waitcnt vmcnt(0)")
        U = E + 48
        unpack8(o, U, XR + 4 * jy)
        for e in range(8): o(f"v_fma_f32 v{T+e}, v{T+e}, v{GA+e}, v{U+e}")
        P = T - 4
        for d in range(4): o(f"v_cvt_pk_bf16_f32 v{P+d}, v{T+2*d}, v{T+2*d+1}")
        o(f"v_add_u32 v6, {jy*16*2048}, v4")
        o(f"global_store_dwordx4 v6, {v(P,4)}, s[44:45] sc1")
    A.label(f"L_opp_skip{ntok_tiles_log2}")

def ln2_pass(A, nks_log2):
    o = A
    if nks_log2 == 3:
        o(f"s_lshr_b32 s{sCh}, s{sTok}, 8"); ln2_task(A); return
    for h in range(2):
        o(f"s_mov_b32 s76, s{sXb}"); o(f"s_mov_b32 s77, s{sI}"); o(f"s_mov_b32 s78, s{sCh}")
        o(f"s_lshl_b32 s79, s{sXb}, 1"); o(f"s_lshr_b32 s80, s{sI}, 3"); o("s_add_u32 s79, s79, s80")
        o(f"s_and_b32 s80, s{sI}, 7"); o("s_lshl_b32 s80, s80, 1"); o(f"s_add_u32 s{sI}, s80, {h}")
        o(f"s_and_b32 s{sXb}, s79, 7"); o("s_lshr_b32 s79, s79, 3"); o(f"s_lshr_b32 s{sCh}, s{sTok}, 8"); o(f"s_add_u32 s{sCh}, s{sCh}, s79")
        ln2_task(A)
        o(f"s_mov_b32 s{sXb}, s76"); o(f"s_mov_b32 s{sI}, s77"); o(f"s_mov_b32 s{sCh}, s78")
        if h == 0: o("s_barrier")

def g1_pass(A, opt, nit, lab):
    o = A
    sX, sY = 8, 12
    o("s_load_dwordx2 s[40:41], s[0:1], %d" % KA_W1); o("s_waitcnt lgkmcnt(0)")
    srd(o, sX, 40, 0, 2048 * 7168); srd(o, sY, sWS, WS_H2T, 4 * MiB)
    o(f"s_add_u32 s26, s{sTok}, {32*nit}"); o(f"s_lshl_b32 s{sY+2}, s26, 11")
    o(f"s_mul_i32 s{sX+2}, s26, 7168")
    G = Gemm(A, 8, 4, False, "g", accbase=128)
    sOffX, sOffY, sM0, sK = 20, 21, [22, 23], 24
    o(f"s_mul_i32 s{sOffX}, s{sTok}, 7168"); o(f"s_lshl_b32 s26, s{sFt}, 9"); o(f"s_add_u32 s{sOffX}, s{sOffX}, s26")
    o(f"s_lshl_b32 s{sOffY}, s{sTok}, 11"); o(f"s_lshl_b32 s26, s{sDtG}, 13"); o(f"s_add_u32 s{sOffY}, s{sOffY}, s26")
    o(f"s_mul_i32 s{sM0[0]}, s{sW}, {G.NIX*1024}"); o(f"s_mul_i32 s{sM0[1]}, s{sW}, {G.NIY*1024}")
    G.setup(sW, 0, 7168, 0, [1, 2, 3, 4, 5, 6], [25, 26, 27, 28])
    o2 = dict(opt); o2["accum"] = 1; o2["S"] = 5
    gen_loop(G, sX, sY, sOffX, sOffY, sM0, sK, 32 * 7168, 64 * 1024, nit, lab, opt=o2, sSt=[32, 33, 34])
    o("s_barrier")
    return G

def fast_check(A, tag):
    o = A
    LB = 131072 - 64
    o(f"s_cmp_lg_u32 s{sW}, 0"); o(f"s_cbranch_scc1 L_fc_{tag}_w")
    o("s_mov_b64 exec, 0xff"); o("v_lshlrev_b32 v1, 2, v0"); o("s_mov_b32 s13, 0x200000")
    A.label(f"L_fc_{tag}_p")
    o(f"global_load_dword v4, v1, {s(sDBG,2)} sc1"); o("s_waitcnt vmcnt(0)")
    o("v_mov_b32 v5, v4")
    o("v_add_u32_dpp v5, v5, v5 quad_perm:[1,0,3,2] row_mask:0xf bank_mask:0xf")
    o("v_add_u32_dpp v5, v5, v5 quad_perm:[2,3,0,1] row_mask:0xf bank_mask:0xf")
    o("v_add_u32_dpp v5, v5, v5 row_half_mirror row_mask:0xf bank_mask:0xf")
    o("v_readfirstlane_b32 s14, v5")
    o("s_cmp_ge_u32 s14, 256"); o(f"s_cbranch_scc1 L_fc_{tag}_a")
    o("s_sleep 8"); o("s_sub_u32 s13, s13, 1"); o(f"s_cbranch_scc0 L_fc_{tag}_p")
    A.label(f"L_fc_{tag}_a")
    o("v_cmp_ne_u32 vcc, 32, v4"); o("s_nop 1"); o("s_cmp_eq_u64 vcc, 0"); o("s_cselect_b32 s15, 1, 0")
    o("s_mov_b64 exec, 1"); o("v_mov_b32 v6, s15"); o(f"v_mov_b32 v1, {LB}"); o("ds_write_b32 v1, v6"); o("s_waitcnt lgkmcnt(0)"); o("s_mov_b64 exec, -1")
    A.label(f"L_fc_{tag}_w")
    o("s_barrier")
    o(f"v_mov_b32 v1, {LB}"); o("ds_read_b32 v6, v1"); o("s_waitcnt lgkmcnt(0)"); o("v_readfirstlane_b32 s15, v6")
    o("s_barrier")

def gen_bulk(opt):
    A = Asm(); o = A
    bprof = opt.get("bprof")
    def bstamp(k, chunked=True):
        if not bprof: return
        o("s_memrealtime s[72:73]"); o("s_waitcnt lgkmcnt(0)")
        o(f"s_lshl_b32 s74, s{sB}, 10")
        if chunked:
            o(f"s_lshl_b32 s75, s{sCh}, 6"); o("s_add_u32 s74, s74, s75"); o(f"s_add_u32 s74, s74, 64")
        o(f"s_add_u32 s74, s74, {WS_PROF + 4*MiB + 0} + {k*4}")
        o("v_mov_b32 v250, s74"); o("v_mov_b32 v251, s72")
        o("s_mov_b64 exec, 1"); o(f"global_store_dword v250, v251, {s(sWS,2)}"); o("s_mov_b64 exec, -1")
    o(f"s_load_dwordx2 {s(sWS,2)}, s[0:1], {KA_WS}")
    o("s_waitcnt lgkmcnt(0)")
    o(f"s_add_u32 s{sCNT}, s{sWS}, {WS_CNT}"); o(f"s_addc_u32 s{sCNT+1}, s{sWS+1}, 0")
    o(f"s_cmp_eq_u32 s{sChk}, 0"); o("s_cbranch_scc0 L_cb"); o(f"s_add_u32 s{sCNT}, s{sCNT}, {SLOW_OFF}"); o(f"s_addc_u32 s{sCNT+1}, s{sCNT+1}, 0")
    A.label("L_cb")
    o(f"s_lshl_b32 s{sB}, s{sXb}, 4"); o(f"s_add_u32 s{sB}, s{sB}, s{sI}")
    o(f"s_mov_b32 s{sLim}, 0x400000")
    bstamp(0, False)
    silu_to_lds(A)
    o(f"s_lshl_b32 s{sCt}, s{sB}, 5")
    mod_task(A, sCt, "a")
    o(f"s_cmp_eq_u32 s{sChk}, 0"); o("s_cbranch_scc1 L_nochk")
    fast_check(A, "b")
    o("s_cmp_eq_u32 s15, 0"); o("s_cbranch_scc1 M_slow")
    A.label("L_nochk")
    o(f"s_cmp_lt_u32 s{sB}, 64"); o(f"s_cselect_b32 s{sCntOff}, {CNT_MODA}, s{sCntOff}"); o(f"s_mov_b32 s44, {CNT_MODB}"); o(f"s_cselect_b32 s{sCntOff}, s{sCntOff}, s44")
    signal(A, 0, "m1", off_s=sCntOff)
    bstamp(1, False)
    wait_cnt(A, CNT_MODA, 64, "ma")
    bstamp(2, False)
    ln1_task(A)
    o(f"s_lshr_b32 s{sCntOff}, s{sB}, 4"); o(f"s_lshl_b32 s{sCntOff}, s{sCntOff}, 7")
    signal(A, CNT_LN1, "l1", off_s=sCntOff)
    bstamp(3, False)
    srd_h = lambda: srd(o, 12, sWS, WS_H, 4 * MiB)
    o(f"s_mov_b32 s{sRound}, 0")
    A.label("L_task")
    t0, t1, t2 = 44, 45, 46
    o(f"s_lshl_b32 s{t0}, s{sXb}, 2"); o(f"s_and_b32 s{t1}, s{sI}, 3"); o(f"s_add_u32 s{t0}, s{t0}, s{t1}"); o(f"s_add_u32 s{t0}, s{t0}, 16")
    o(f"s_lshl_b32 s{t1}, s{sXb}, 1"); o(f"s_and_b32 s{t2}, s{sI}, 1"); o(f"s_add_u32 s{t1}, s{t1}, s{t2}")
    o(f"s_lshr_b32 s{t2}, s{sI}, 2")
    o(f"s_cmp_eq_u32 s{sRound}, 0"); o("s_cbranch_scc0 L_r1")
    o(f"s_mov_b32 s{sCt}, s{t0}"); o(f"s_lshl_b32 s{sTok}, s{t2}, 6"); o("s_branch L_dec")
    A.label("L_r1")
    if opt.get("thr"):
        NA = opt["thr"]
        o(f"s_cmp_ge_u32 s{sI}, {NA}"); o("s_cbranch_scc1 L_phase3")
        o(f"s_sub_u32 s{t0}, s{sRound}, 1"); o(f"s_mul_i32 s{t0}, s{t0}, {8*NA}"); o(f"s_mul_i32 s{t1}, s{sXb}, {NA}"); o(f"s_add_u32 s{t0}, s{t0}, s{t1}"); o(f"s_add_u32 s{t0}, s{t0}, s{sI}")
        o(f"s_cmp_ge_u32 s{t0}, 352"); o("s_cbranch_scc1 L_phase3")
        o(f"s_cmp_lt_u32 s{t0}, 224"); o("s_cbranch_scc0 L_thq")
        o(f"s_and_b32 s{sCt}, s{t0}, 31"); o(f"s_add_u32 s{sCt}, s{sCt}, 16"); o(f"s_lshr_b32 s{sTok}, s{t0}, 5"); o(f"s_add_u32 s{sTok}, s{sTok}, 1"); o(f"s_lshl_b32 s{sTok}, s{sTok}, 8"); o("s_branch L_dec")
        A.label("L_thq")
        o(f"s_sub_u32 s{t0}, s{t0}, 224"); o(f"s_and_b32 s{sCt}, s{t0}, 15"); o(f"s_lshr_b32 s{sTok}, s{t0}, 4"); o(f"s_lshl_b32 s{sTok}, s{sTok}, 8")
    else:
        o(f"s_cmp_eq_u32 s{sRound}, 1"); o("s_cbranch_scc0 L_r2")
        o(f"s_mov_b32 s{sCt}, s{t0}"); o(f"s_add_u32 s{sTok}, s{t2}, 1"); o(f"s_lshl_b32 s{sTok}, s{sTok}, 8"); o("s_branch L_dec")
        A.label("L_r2")
        o(f"s_cmp_eq_u32 s{sRound}, 2"); o("s_cbranch_scc0 L_r3")
        o(f"s_cmp_lt_u32 s{sI}, 12"); o("s_cbranch_scc0 L_r2q")
        o(f"s_mov_b32 s{sCt}, s{t0}"); o(f"s_add_u32 s{sTok}, s{t2}, 5"); o(f"s_lshl_b32 s{sTok}, s{sTok}, 8"); o("s_branch L_dec")
        A.label("L_r2q")
        o(f"s_mov_b32 s{sCt}, s{t1}"); o(f"s_sub_u32 s{sTok}, s{sI}, 12"); o(f"s_lshr_b32 s{sTok}, s{sTok}, 1"); o(f"s_lshl_b32 s{sTok}, s{sTok}, 8"); o("s_branch L_dec")
        A.label("L_r3")
        o(f"s_cmp_eq_u32 s{sRound}, 3"); o("s_cbranch_scc0 L_phase3")
        o(f"s_cmp_lt_u32 s{sI}, 12"); o("s_cbranch_scc0 L_phase3")
        o(f"s_mov_b32 s{sCt}, s{t1}"); o(f"s_lshr_b32 s{sTok}, s{sI}, 1"); o(f"s_add_u32 s{sTok}, s{sTok}, 2"); o(f"s_lshl_b32 s{sTok}, s{sTok}, 8")
    A.label("L_dec")
    o(f"s_lshr_b32 s{sCntOff}, s{sTok}, 8"); o(f"s_lshl_b32 s{sCntOff}, s{sCntOff}, 7")
    wait_cnt(A, CNT_LN1, 16, "l1", off_s=sCntOff)
    o(f"s_lshr_b32 s{t0}, s{sTok}, 8")
    o(f"s_lshl_b32 s{t1}, s{t0}, 3"); o(f"s_and_b32 s{t2}, s{sCt}, 15"); o(f"s_lshr_b32 s{t2}, s{t2}, 1"); o(f"s_add_u32 s{t1}, s{t1}, s{t2}"); o(f"s_lshl_b32 s{t1}, s{t1}, 7")
    o(f"s_lshl_b32 s{t0}, s{t0}, 7"); o(f"s_add_u32 s{t0}, s{t0}, {CNT_Q}")
    o(f"s_cmp_lt_u32 s{sCt}, 16"); o(f"s_cselect_b32 s{sCntOff}, s{t0}, s{t1}")
    o(f"s_lshr_b32 s{t0}, s{sCt}, 4"); o(f"s_lshl_b32 s{t1}, s{t0}, 3")
    o(f"s_add_u32 s40, s0, s{t1}"); o(f"s_addc_u32 s41, s1, 0")
    o(f"s_load_dwordx2 s[40:41], s[40:41], {KA_WQ}")
    o(f"s_lshl_b32 s{t1}, s{t0}, 24"); o(f"s_add_u32 s{t1}, s{t1}, {WS_Q}")
    o(f"s_add_u32 s16, s{sWS}, s{t1}"); o(f"s_addc_u32 s17, s{sWS+1}, 0"); o("s_and_b32 s17, s17, 0xffff")
    o(f"s_mov_b32 s18, {16*MiB}"); o("s_mov_b32 s19, 0x00020000")
    srd_h()
    o("s_waitcnt lgkmcnt(0)")
    srd(o, 8, 40, 0, 8 * MiB)
    o(f"s_cmp_eq_u32 s{sRound}, 0"); o("s_cbranch_scc1 L_small")
    o(f"s_cmp_ge_u32 s{sCt}, 32"); o("s_cbranch_scc1 L_bigv")
    qkv_tile(A, 8, False, "L_gA", sW, sCt, sTok, opt, None); o("s_branch L_sig")
    A.label("L_bigv")
    qkv_tile(A, 8, True, "L_gB", sW, sCt, sTok, opt, None); o("s_branch L_sig")
    A.label("L_small")
    osm = dict(opt); osm["S"] = 6
    o(f"s_cmp_ge_u32 s{sCt}, 32"); o("s_cbranch_scc1 L_smallv")
    qkv_tile(A, 2, False, "L_gC", sW, sCt, sTok, osm, None); o("s_branch L_sig")
    A.label("L_smallv")
    qkv_tile(A, 2, True, "L_gD", sW, sCt, sTok, osm, None)
    A.label("L_sig")
    signal(A, 0, "t", off_s=sCntOff)
    if bprof:
        o("s_memrealtime s[72:73]"); o("s_waitcnt lgkmcnt(0)")
        o(f"s_lshl_b32 s74, s{sB}, 10"); o(f"s_lshl_b32 s75, s{sRound}, 2"); o("s_add_u32 s74, s74, s75"); o(f"s_add_u32 s74, s74, {WS_PROF + 4*MiB + 16}")
        o("v_mov_b32 v250, s74"); o("v_mov_b32 v251, s72")
        o("s_mov_b64 exec, 1"); o(f"global_store_dword v250, v251, {s(sWS,2)}"); o("s_mov_b64 exec, -1")
    o(f"s_add_u32 s{sRound}, s{sRound}, 1")
    o("s_branch L_task")
    A.label("L_phase3")
    o(f"s_cmp_ge_u32 s{sB}, 64"); o("s_cbranch_scc1 L_nomod2")
    silu_to_lds(A)
    o(f"s_lshl_b32 s{sCt}, s{sB}, 5"); o(f"s_add_u32 s{sCt}, s{sCt}, 4096")
    mod_task(A, sCt, "b")
    signal(A, CNT_MODC, "m2")
    A.label("L_nomod2")
    if opt.get("wpf", 1) == 1:
        prefetch_task(A, KA_WO, 8 * MiB, "wo"); prefetch_task(A, KA_W1, 2048 * 7168, "w1"); prefetch_task(A, KA_W2, 3584 * 4096, "w2")
    if opt.get("wpf", 1) == 2:
        prefetch_task(A, KA_W2, 3584 * 4096, "w2")
    P3 = opt.get("p3", 4)
    if P3 == 4:
        for r in range(128): o(f"v_accvgpr_write_b32 a{128+r}, 0")
    if P3 == 0:
        o("s_branch L_bulk_done")
    if P3 == 5:
        passes = opt.get("passes", [(0, 2), (2, 2), (4, 2), (6, 1), (7, 1)])
        for r in range(128): o(f"v_accvgpr_write_b32 a{128+r}, 0")
        o(f"s_lshr_b32 s{sDtG}, s{sXb}, 1"); o(f"s_lshl_b32 s{sDtG}, s{sDtG}, 1"); o(f"s_and_b32 s44, s{sI}, 1"); o(f"s_add_u32 s{sDtG}, s{sDtG}, s44")
        o(f"s_and_b32 s{sFt}, s{sXb}, 1"); o(f"s_lshl_b32 s{sFt}, s{sFt}, 3"); o(f"s_lshr_b32 s44, s{sI}, 1"); o(f"s_add_u32 s{sFt}, s{sFt}, s44")
        sPass, sPn = 83, 84
        def att_chunk(tag):
            o(f"s_lshl_b32 s{sCntOff}, s{sCh}, 3"); o(f"s_add_u32 s{sCntOff}, s{sCntOff}, s{sXb}"); o(f"s_lshl_b32 s{sCntOff}, s{sCntOff}, 7")
            wait_cnt(A, CNT_REC, 32, f"rec{tag}", off_s=sCntOff, sleep=8)
            o(f"s_lshl_b32 s{sCntOff}, s{sCh}, 7")
            wait_cnt(A, CNT_Q, 16, f"q{tag}", off_s=sCntOff)
            o(f"s_lshl_b32 s56, s{sB}, 2"); o(f"s_add_u32 s56, s56, s{sW}")
            o(f"s_lshr_b32 s57, s56, 6"); o(f"s_lshl_b32 s58, s{sCh}, 3"); o("s_add_u32 s57, s57, s58")
            o("s_lshr_b32 s58, s56, 1"); o("s_and_b32 s58, s58, 31"); o("s_and_b32 s59, s56, 1")
            attn_body(A, sWS, 57, 58, 59, 0, f"L_at{tag}", sc1=True)
        def rest(nch, tag):
            o(f"s_lshl_b32 s{sCntOff}, s{sPass}, 7")
            signal(A, CNT_ATT, f"a{tag}", off_s=sCntOff)
            wait_cnt(A, CNT_ATT, 128, f"a{tag}", off_s=sCntOff, sleep=4)
            bstamp(2)
            op_pass(A, 2 if nch == 1 else 3, opt)
            signal(A, CNT_OP, f"o{tag}", off_s=sCntOff)
            bstamp(3)
            wait_cnt(A, CNT_OP, 128, f"o{tag}", off_s=sCntOff, sleep=4)
            bstamp(4)
            ln2_pass(A, 3 if nch == 1 else 4)
            signal(A, CNT_LN, f"n{tag}", off_s=sCntOff)
            bstamp(5)
            o(f"s_cmp_ge_u32 s{sFt}, 14"); o(f"s_cbranch_scc1 L_nog1{tag}")
            wait_cnt(A, CNT_LN, 128, f"n{tag}", off_s=sCntOff, sleep=4)
            bstamp(6)
            G_ = g1_pass(A, opt, 8 * nch, f"L_g1{tag}")
            bstamp(7)
            A.label(f"L_nog1{tag}")
            return G_
        wait_cnt(A, CNT_MODB, 64, "mb5"); wait_cnt(A, CNT_MODC, 64, "mc5")
        nd = sum(1 for p in passes if p[1] == 2); ns = sum(1 for p in passes if p[1] == 1)
        o(f"s_mov_b32 s{sPass}, 0")
        A.label("L_dpass")
        o(f"s_lshl_b32 s{sCh}, s{sPass}, 1"); att_chunk("A"); bstamp(0)
        o(f"s_lshl_b32 s{sCh}, s{sPass}, 1"); o(f"s_add_u32 s{sCh}, s{sCh}, 1"); att_chunk("B"); bstamp(1)
        o(f"s_lshl_b32 s{sTok}, s{sPass}, 9"); o(f"s_lshl_b32 s{sCh}, s{sPass}, 1")
        G = rest(2, "D")
        o(f"s_add_u32 s{sPass}, s{sPass}, 1"); o(f"s_cmp_lt_u32 s{sPass}, {nd}"); o("s_cbranch_scc1 L_dpass")
        if ns:
            A.label("L_spass")
            o(f"s_add_u32 s{sCh}, s{sPass}, {nd}"); att_chunk("C"); bstamp(1)
            o(f"s_add_u32 s{sCh}, s{sPass}, {nd}"); o(f"s_lshl_b32 s{sTok}, s{sCh}, 8")
            rest(1, "S")
            o(f"s_add_u32 s{sPass}, s{sPass}, 1"); o(f"s_cmp_lt_u32 s{sPass}, {nd+ns}"); o("s_cbranch_scc1 L_spass")
        o(f"s_cmp_ge_u32 s{sFt}, 14"); o("s_cbranch_scc1 L_bulk_done")
        g1_epilogue(A, G, sFt, sDtG)
        o("s_branch L_bulk_done")
    if P3 not in (0, 5):
        o(f"s_mov_b32 s{sCh}, 0")
        A.label("L_chunk")
        if P3 >= 4:
            o(f"s_lshl_b32 s{sCntOff}, s{sCh}, 10"); o(f"s_add_u32 s{sCntOff}, s{sCntOff}, {7*128}")
            wait_cnt(A, CNT_REC, 32, "rec", off_s=sCntOff)
        else:
            if opt.get("aspread", 1):
                o(f"s_lshr_b32 s55, s{sI}, 1")
            else:
                o(f"s_mov_b32 s55, s{sXb}")
            o(f"s_lshl_b32 s{sCntOff}, s{sCh}, 3"); o(f"s_add_u32 s{sCntOff}, s{sCntOff}, s55"); o(f"s_lshl_b32 s{sCntOff}, s{sCntOff}, 7")
            wait_cnt(A, CNT_REC, 32, "rec", off_s=sCntOff, sleep=opt.get("slp", 16))
        o(f"s_lshl_b32 s{sCntOff}, s{sCh}, 7")
        wait_cnt(A, CNT_Q, 16, "q", off_s=sCntOff)
        bstamp(0)
        if P3 >= 4 or not opt.get("aspread", 1):
            o(f"s_lshl_b32 s56, s{sB}, 2"); o(f"s_add_u32 s56, s56, s{sW}")
            o(f"s_lshr_b32 s57, s56, 6"); o(f"s_lshl_b32 s58, s{sCh}, 3"); o("s_add_u32 s57, s57, s58")
        else:
            o(f"s_lshl_b32 s56, s{sXb}, 1"); o(f"s_and_b32 s57, s{sI}, 1"); o("s_add_u32 s56, s56, s57"); o("s_lshl_b32 s56, s56, 2"); o(f"s_add_u32 s56, s56, s{sW}")
            o(f"s_lshr_b32 s57, s{sI}, 1"); o(f"s_lshl_b32 s58, s{sCh}, 3"); o("s_add_u32 s57, s57, s58")
        o("s_lshr_b32 s58, s56, 1"); o("s_and_b32 s58, s58, 31"); o("s_and_b32 s59, s56, 1")
        if opt.get("aser"):
            o("s_mov_b32 s54, 0")
            A.label("L_aser")
            o(f"s_cmp_lg_u32 s{sW}, s54"); o("s_cbranch_scc1 L_aser_s")
        attn_body(A, sWS, 57, 58, 59, 0, "L_at", sc1=(P3 >= 4), nt=opt.get("ant", 0))
        if opt.get("aser"):
            o("s_waitcnt vmcnt(0)")
            A.label("L_aser_s")
            o("s_barrier")
            o("s_add_u32 s54, s54, 1"); o("s_cmp_lt_u32 s54, 4"); o("s_cbranch_scc1 L_aser")
        if P3 >= 4:
            signal(A, CNT_ATT, "a", off_s=sCntOff)
            bstamp(1)
            wait_cnt(A, CNT_ATT, 128, "a", off_s=sCntOff)
            wait_cnt(A, CNT_MODB, 64, "mb")
            bstamp(2)
            op_task(A)
            signal(A, CNT_OP, "o", off_s=sCntOff)
            bstamp(3)
            wait_cnt(A, CNT_OP, 128, "o", off_s=sCntOff)
            wait_cnt(A, CNT_MODC, 64, "mc")
            bstamp(4)
            ln2_task(A)
            signal(A, CNT_LN, "n", off_s=sCntOff)
            bstamp(5)
            o(f"s_cmp_ge_u32 s{sI}, 14"); o("s_cbranch_scc1 L_nog1")
            wait_cnt(A, CNT_LN, 128, "n", off_s=sCntOff)
            bstamp(6)
            G = g1_partial(A, opt)
            bstamp(7)
            A.label("L_nog1")
            o(f"s_add_u32 s{sCh}, s{sCh}, 1"); o(f"s_cmp_lt_u32 s{sCh}, 8"); o("s_cbranch_scc1 L_chunk")
            o(f"s_cmp_ge_u32 s{sI}, 14"); o("s_cbranch_scc1 L_bulk_done")
            g1_epilogue(A, G)
        else:
            o("s_waitcnt vmcnt(0)")
            o(f"s_add_u32 s{sCh}, s{sCh}, 1"); o(f"s_cmp_lt_u32 s{sCh}, 8"); o("s_cbranch_scc1 L_chunk")
    A.label("L_bulk_done")
    o("s_waitcnt vmcnt(0)")
    o("s_endpgm")
    return re.sub(r"\bL_", "B_L_", A.finish())

def gen_mega(name="mega_kernel", recopt=None, opt=None, force_slow=False, place=8):
    recopt = recopt or dict(E2_DEPTH=2, E2_SP=3, E2_DELAY=2)
    opt = opt or {"S": 4}
    A = Asm(); o = A
    o("s_cmp_ge_u32 s2, 256"); o("s_cbranch_scc1 M_end")
    o(f"s_load_dwordx2 {s(sDBG,2)}, s[0:1], {KA_DBG}")
    o(f"s_load_dwordx2 {s(sWS,2)}, s[0:1], {KA_WS}")
    o(f"s_load_dwordx2 s[10:11], s[0:1], {KA_MEM0}")
    o("s_memrealtime s[92:93]")
    o("v_lshlrev_b32 v3, 4, v0")
    o("v_lshrrev_b32 v1, 6, v0"); o("v_and_b32 v0, 63, v0"); o(f"v_readfirstlane_b32 s{sW}, v1")
    o("s_getreg_b32 s4, hwreg(HW_REG_XCC_ID, 0, 4)"); o("s_and_b32 s4, s4, 7")
    for r in range(4): o(f"v_mov_b32 v{8+r}, -1")
    o("s_waitcnt lgkmcnt(0)")
    if opt.get("tlb"):
        st = opt["tlb"]
        o(f"s_cmp_lg_u32 s{sW}, 1"); o("s_cbranch_scc1 M_notlb")
        o(f"v_lshlrev_b32 v4, {st}, v0")
        srd(o, 16, sWS, 0, 144 * MiB)
        o("buffer_load_dword v40, v4, s[16:19], 0 offen")
        o(f"s_mov_b32 s20, {64 << st}"); o("buffer_load_dword v41, v4, s[16:19], s20 offen")
        for k, (ka, nb) in enumerate(((KA_X, 4 * MiB), (KA_WQ, 8 * MiB), (KA_WK, 8 * MiB), (KA_WV, 8 * MiB), (KA_WO, 8 * MiB), (KA_WMOD, 12 * MiB))):
            o(f"s_load_dwordx2 s[20:21], s[0:1], {ka}"); o("s_waitcnt lgkmcnt(0)")
            srd(o, 16, 20, 0, nb)
            o(f"buffer_load_dword v{42+k}, v4, s[16:19], 0 offen")
        A.label("M_notlb")
    o("s_lshl_b32 s12, s2, 15"); o(f"s_add_u32 s12, s12, {WS_PARTF}")
    o(f"s_add_u32 s14, s{sWS}, s12"); o(f"s_addc_u32 s15, s{sWS+1}, 0")
    for k in range(8):
        o("global_store_dwordx4 v3, v[8:11], s[14:15] sc1"); o("s_add_u32 s14, s14, 4096"); o("s_addc_u32 s15, s15, 0")
    o("s_cmp_ge_u32 s2, 128"); o("s_cbranch_scc1 M_f2")
    o("s_lshl_b32 s12, s2, 12")
    o(f"s_add_u32 s13, s12, {WS_RQK}"); o(f"s_add_u32 s14, s{sWS}, s13"); o(f"s_addc_u32 s15, s{sWS+1}, 0")
    o("global_store_dwordx4 v3, v[8:11], s[14:15] sc1")
    o(f"s_add_u32 s13, s12, {WS_RMEM}"); o(f"s_add_u32 s14, s{sWS}, s13"); o(f"s_addc_u32 s15, s{sWS+1}, 0")
    o("s_cmp_lt_u32 s2, 32"); o("s_cbranch_scc1 M_img")
    o("global_store_dwordx4 v3, v[8:11], s[14:15] sc1"); o("s_branch M_f3")
    A.label("M_img")
    o(f"s_and_b32 s16, s2, 3"); o("s_lshl_b32 s16, s16, 2"); o(f"s_add_u32 s16, s16, s{sW}"); o("s_lshl_b32 s16, s16, 7")
    o("v_and_b32 v5, 7, v0"); o("v_lshlrev_b32 v5, 11, v5"); o("v_bfe_u32 v6, v0, 3, 1"); o("v_lshl_add_u32 v5, v6, 6, v5")
    o("v_lshrrev_b32 v6, 4, v0"); o("v_lshl_add_u32 v5, v6, 4, v5"); o("v_add_u32 v5, s16, v5")
    o("global_load_dwordx4 v[16:19], v5, s[10:11]"); o("s_waitcnt vmcnt(0)")
    o("global_store_dwordx4 v3, v[16:19], s[14:15] sc1"); o("s_branch M_f3")
    A.label("M_f2")
    o("s_cmp_ge_u32 s2, 192"); o("s_cbranch_scc1 M_f4")
    o("s_sub_u32 s12, s2, 128"); o("s_lshl_b32 s12, s12, 12")
    o(f"s_add_u32 s13, s12, {WS_RV}"); o(f"s_add_u32 s14, s{sWS}, s13"); o(f"s_addc_u32 s15, s{sWS+1}, 0")
    o("global_store_dwordx4 v3, v[8:11], s[14:15] sc1"); o("s_branch M_f3")
    A.label("M_f4")
    o("s_cmp_ge_u32 s2, 240"); o("s_cbranch_scc1 M_f3")
    o("s_sub_u32 s12, s2, 192"); o("s_lshl_b32 s12, s12, 12"); o(f"s_add_u32 s12, s12, {WS_CNT}")
    o(f"s_add_u32 s14, s{sWS}, s12"); o(f"s_addc_u32 s15, s{sWS+1}, 0")
    for r in range(4): o(f"v_mov_b32 v{8+r}, 0")
    o("global_store_dwordx4 v3, v[8:11], s[14:15] sc1")
    A.label("M_f3")
    o("s_waitcnt vmcnt(0)"); o("s_barrier")
    o(f"s_cmp_lg_u32 s{sW}, 0"); o("s_cbranch_scc1 M_w")
    o("s_lshl_b32 s12, s4, 2"); o("v_mov_b32 v1, s12"); o("v_mov_b32 v2, 1"); o("s_mov_b64 exec, 1")
    o(f"global_atomic_add v3, v1, v2, {s(sDBG,2)} sc0"); o("s_waitcnt vmcnt(0)")
    o("v_mov_b32 v1, 0"); o("ds_write_b32 v1, v3"); o("s_waitcnt lgkmcnt(0)"); o("s_mov_b64 exec, -1")
    A.label("M_w")
    o("s_barrier"); o("v_mov_b32 v1, 0"); o("ds_read_b32 v6, v1"); o("s_waitcnt lgkmcnt(0)"); o("v_readfirstlane_b32 s5, v6"); o("s_barrier")
    o(f"s_mov_b32 s{sChk}, 1")
    if force_slow:
        fast_check(A, "t"); o("s_branch M_slow")
    if place == 8:
        o("s_cmp_lt_u32 s5, 16"); o("s_cbranch_scc1 M_rec_fast")
        o("s_cmp_lt_u32 s5, 32"); o("s_cbranch_scc0 M_idle")
        o("s_sub_u32 s5, s5, 16"); o("s_branch M_bulk")
    else:
        o("s_cmp_lt_u32 s5, 32"); o("s_cbranch_scc0 M_idle")
        o("s_and_b32 s12, s4, 3"); o("s_lshl_b32 s12, s12, 1"); o("s_lshr_b32 s13, s5, 4"); o("s_add_u32 s12, s12, s13"); o("s_and_b32 s5, s5, 15")
        o("s_cmp_lt_u32 s4, 4"); o("s_mov_b32 s4, s12"); o("s_cbranch_scc1 M_rec_fast"); o("s_branch M_bulk")
    A.label("M_idle")
    fast_check(A, "i")
    A.label("M_slow")
    o(f"s_mov_b32 s{sChk}, 0")
    o("s_lshr_b32 s4, s2, 4"); o("s_and_b32 s4, s4, 7"); o("s_and_b32 s5, s2, 15")
    o("s_cmp_lt_u32 s2, 128"); o("s_cbranch_scc1 M_rec_slow")
    o("s_branch M_bulk")
    A.label("M_end"); o("s_endpgm")
    t = A.finish()
    t += "M_bulk:\n" + gen_bulk(opt)
    Ah = Asm(); fast_check(Ah, "r"); Ah("s_cmp_eq_u32 s15, 0"); Ah("s_cbranch_scc1 M_slow")
    hook = Ah.finish()
    t += "M_rec_fast:\n" + rec.gen_rec(embedded=True, pfx="RF_", fast=True, KVCHK=True, SIG=(opt.get("p3", 4) != 0), hook=hook, cntoff=0, **recopt)
    t += "M_rec_slow:\n" + rec.gen_rec(embedded=True, pfx="RS_", fast=False, KVCHK=True, SIG=(opt.get("p3", 4) != 0), hook=None, cntoff=SLOW_OFF, **recopt)
    return kernel_head(name) + t + kernel_desc(name, 256, 256)
```

```python
from asmlib import *
from layout import *

NSTEPS = 64
SENT = 0xFFFFFFFF

def gen_rec(name="rec_kernel", embedded=False, pfx="", KVCHK=False, SIG=False, hook=None, cntoff=0, fast=True, prof=False, nsteps=NSTEPS, E1_EARLY=True, E2_DELAY=0, E3_DELAY=0, KV_FIRST=0, PF=1, VSP=2, RT=0, E1_AT=7, E3_SALU_FIRST=0, LAST_SHORT=1, NOK=0, NOV=0, E2F='sc1', X4=0, X4LIM=4, E2_DEPTH=3, E2_SP=0, EP=0, FIXKV=0):
    TIMER = "s_memrealtime" if RT else "s_memtime"
    A = Asm()
    o = A
    st_fast = "" if fast else " sc1"
    sWG = 2
    sW, sG, sJ, sHA, sC, sHead = 3, 4, 5, 6, 7, 8
    sWS = 10
    sT0, sT1, sT2, sT3 = 12, 13, 14, 15
    sPtr = 16
    sMEMc, sMEMn, sQK, sVR, sPART, sPART2, sKX, sKX2, sVX, sKM, sVM = 20, 22, 24, 26, 28, 30, 32, 34, 36, 38, 40
    sRq, sRv, sRp, sRm = 42, 44, 46, 48
    sStep, sSlot, sLim = 50, 51, 52
    sMaskQK, sMaskLo = 54, 56
    sSelV = 58
    sScale = 60
    sWQ, sWK, sWV, sWO, sDBG = 62, 64, 66, 68, 70
    sTs = 66
    sProf = 96
    vL = 0; vT = [1, 2, 3, 4, 5, 6, 7]
    vE3, vQKst, vVst, vVld, vPst, vPld, vMst, vKx, vL16, vKMst = 8, 9, 10, 11, 12, 13, 14, 15, 56, 57
    vA0, vA1, vAv0, vAv1 = 16, 20, 24, 28
    vSx, vSm = 32, 40
    vPx, vPmA, vPmB = 44, 48, 50
    vDelta = 52
    vNeg = 60
    vB = 64; vK = 128; vV = 160; vQ = 192; vQr = 200; vKm = 208; vKr = 216; vVm = 224
    vLdsM, vLdsO, vLdsV = 232, 233, 234
    vSent = 236
    vX = 240
    vO = 64; vOb = 96
    vOo = [112, 116, 120, 124] + [160 + 4 * i for i in range(8)]
    LDS_MEM, LDS_O, LDS_V = 0, 16384, 32768

    if not embedded:
        o(f"s_cmp_ge_u32 s{sWG}, {256 if X4 else 128}")
        o("s_cbranch_scc1 L_rec_end")
        o(f"s_load_dwordx2 {s(sWQ,2)}, s[0:1], {KA_WQ}")
        o(f"s_load_dwordx2 {s(sWK,2)}, s[0:1], {KA_WK}")
        o(f"s_load_dwordx2 {s(sWV,2)}, s[0:1], {KA_WV}")
        o(f"s_load_dwordx2 {s(sWO,2)}, s[0:1], {KA_WO}")
        o(f"s_load_dwordx2 {s(sDBG,2)}, s[0:1], {KA_DBG}")
        o(f"s_load_dwordx2 {s(sWS,2)}, s[0:1], {KA_WS}")
        o(f"v_lshrrev_b32 v1, 6, v0")
        o(f"v_and_b32 v{vL}, 63, v0")
        o(f"v_readfirstlane_b32 s{sW}, v1")
        o(f"s_getreg_b32 s{sG}, hwreg(HW_REG_XCC_ID, 0, 4)")
        o("s_waitcnt lgkmcnt(0)")
        o(f"s_cmp_lg_u32 s{sW}, 0")
        o("s_cbranch_scc1 L_rec_noticket")
        o(f"s_lshl_b32 s{sT0}, s{sG}, 2")
        o(f"v_mov_b32 v1, s{sT0}")
        o("v_mov_b32 v2, 1")
        o("s_mov_b64 exec, 1")
        o(f"global_atomic_add v3, v1, v2, {s(sDBG,2)} sc0")
        o("s_waitcnt vmcnt(0)")
        o("v_mov_b32 v1, 0")
        o("ds_write_b32 v1, v3")
        o("s_waitcnt lgkmcnt(0)")
        o("s_mov_b64 exec, -1")
        A.label("L_rec_noticket")
        o("s_barrier")
        o("v_mov_b32 v1, 0")
        o("ds_read_b32 v3, v1")
        o("s_waitcnt lgkmcnt(0)")
        o(f"v_readfirstlane_b32 s{sJ}, v3")
        o("s_barrier")
        if X4:
            o(f"s_cmp_ge_u32 s{sG}, {X4LIM}"); o("s_cbranch_scc1 L_rec_end")
            o(f"s_sub_u32 s{sG}, s{sG}, {X4LIM-4}") if False else None
            o(f"s_lshl_b32 s{sG}, s{sG}, 1"); o(f"s_lshr_b32 s{sT0}, s{sJ}, 4"); o(f"s_add_u32 s{sG}, s{sG}, s{sT0}")
        o(f"s_and_b32 s{sJ}, s{sJ}, 15")
        o(f"s_and_b32 s{sG}, s{sG}, 7")
    else:
        o(f"s_load_dwordx2 {s(sWQ,2)}, s[0:1], {KA_WQ}")
        o(f"s_load_dwordx2 {s(sWK,2)}, s[0:1], {KA_WK}")
        o(f"s_load_dwordx2 {s(sWV,2)}, s[0:1], {KA_WV}")
        o(f"s_load_dwordx2 {s(sWO,2)}, s[0:1], {KA_WO}")
        o(f"s_load_dwordx2 {s(sWS,2)}, s[0:1], {KA_WS}")
        o("s_waitcnt lgkmcnt(0)")
    o(f"s_lshr_b32 s{sHA}, s{sJ}, 2")
    o(f"s_and_b32 s{sC}, s{sJ}, 3")
    o(f"s_lshl_b32 s{sHead}, s{sG}, 2")
    o(f"s_add_u32 s{sHead}, s{sHead}, s{sW}")
    vi, vg, vr = vT[0], vT[1], vT[2]
    o(f"v_and_b32 v{vi}, 15, v{vL}")
    o(f"v_lshrrev_b32 v{vg}, 4, v{vL}")
    o(f"v_and_b32 v{vr}, 7, v{vL}")
    o(f"v_lshlrev_b32 v{vL16}, 4, v{vL}")

    o(f"s_lshl_b32 s{sT0}, s{sG}, 2")
    o(f"s_add_u32 s{sT0}, s{sT0}, s{sHA}")
    o(f"s_lshl_b32 s{sT0}, s{sT0}, 8")
    o(f"s_lshl_b32 s{sT1}, s{sC}, 6")
    o(f"s_add_u32 s{sT0}, s{sT0}, s{sT1}")
    v1, v2, v3, v4 = vT[3], vT[4], vT[5], vT[6]
    o(f"v_lshrrev_b32 v{v1}, 2, v{vL}")
    o(f"v_lshlrev_b32 v{v1}, 13, v{v1}")
    o(f"v_and_b32 v{v2}, 3, v{vL}")
    o(f"v_lshl_add_u32 v{v1}, v{v2}, 4, v{v1}")
    o(f"v_add_u32 v{v1}, s{sT0}, v{v1}")
    o(f"s_lshl_b32 s{sT1}, s{sW}, 21")
    o(f"v_add_u32 v{v1}, s{sT1}, v{v1}")
    def dma_strip(sbase, ldsbase, nblk, rowstep):
        o(f"v_mov_b32 v{v2}, v{v1}")
        o(f"s_lshl_b32 s{sT2}, s{sW}, {(nblk*1024).bit_length()-1}")
        o(f"s_add_u32 s{sT2}, s{sT2}, {ldsbase}")
        for m in range(nblk):
            o(f"s_mov_b32 m0, s{sT2}")
            o(f"s_add_u32 s{sT2}, s{sT2}, 1024")
            o(f"global_load_lds_dwordx4 v{v2}, {s(sbase,2)}")
            if m + 1 < nblk: o(f"v_add_u32 v{v2}, {rowstep}, v{v2}")
    dma_strip(sWQ, 0, 16, 131072)
    dma_strip(sWK, 65536, 16, 131072)
    o(f"v_lshrrev_b32 v{v3}, 2, v{vi}")
    o(f"v_lshl_add_u32 v{v3}, v{vg}, 3, v{v3}")
    o(f"v_lshlrev_b32 v{v3}, 6, v{v3}")
    o(f"v_and_b32 v{v4}, 3, v{vi}")
    o(f"v_lshl_add_u32 v{v3}, v{v4}, 3, v{v3}")
    o("s_waitcnt vmcnt(0)")
    o("s_barrier")
    o(f"s_lshr_b32 s{sT0}, s{sW}, 1")
    o(f"s_lshl_b32 s{sT0}, s{sT0}, 16")
    o(f"s_and_b32 s{sT1}, s{sW}, 1")
    o(f"s_lshl_b32 s{sT1}, s{sT1}, 5")
    o(f"s_add_u32 s{sT0}, s{sT0}, s{sT1}")
    for i in range(16):
        o(f"s_lshl_b32 s{sT2}, s{sW}, 2")
        o(f"s_add_u32 s{sT2}, s{sT2}, {i}")
        o(f"s_and_b32 s{sT2}, s{sT2}, 15")
        o(f"s_lshl_b32 s{sT2}, s{sT2}, 12")
        o(f"s_add_u32 s{sT2}, s{sT2}, s{sT0}")
        o(f"v_add_u32 v{v4}, s{sT2}, v{v3}")
        for half in range(2):
            d = (i * 2 + half) * 4
            o(f"ds_read_b64_tr_b16 {a(d,2)}, v{v4} offset:{half*2048}")
            o(f"ds_read_b64_tr_b16 {a(d+2,2)}, v{v4} offset:{half*2048+256}")
        if i % 4 == 3: o("s_waitcnt lgkmcnt(0)")
    o("s_barrier")
    dma_strip(sWV, 0, 16, 131072)
    o(f"v_lshrrev_b32 v{v1}, 3, v{vL}")
    o(f"v_lshlrev_b32 v{v1}, 11, v{v1}")
    o(f"v_and_b32 v{v2}, 7, v{vL}")
    o(f"v_lshl_add_u32 v{v1}, v{v2}, 4, v{v1}")
    o(f"s_lshl_b32 s{sT0}, s{sG}, 20")
    o(f"s_lshl_b32 s{sT1}, s{sJ}, 7")
    o(f"s_add_u32 s{sT0}, s{sT0}, s{sT1}")
    o(f"s_lshl_b32 s{sT1}, s{sW}, 18")
    o(f"s_add_u32 s{sT0}, s{sT0}, s{sT1}")
    o(f"v_add_u32 v{v1}, s{sT0}, v{v1}")
    dma_strip(sWO, 65536, 16, 16384)
    o("s_waitcnt vmcnt(0)")
    o("s_barrier")
    o(f"s_and_b32 s{sT0}, s{sW}, 1")
    o(f"s_lshl_b32 s{sT0}, s{sT0}, 5")
    for i in range(8):
        o(f"s_lshl_b32 s{sT2}, s{sW}, 2")
        o(f"s_add_u32 s{sT2}, s{sT2}, {i}")
        o(f"s_and_b32 s{sT2}, s{sT2}, 15")
        o(f"s_lshl_b32 s{sT2}, s{sT2}, 12")
        o(f"s_add_u32 s{sT2}, s{sT2}, s{sT0}")
        o(f"v_add_u32 v{v4}, s{sT2}, v{v3}")
        for half in range(2):
            d = 128 + (i * 2 + half) * 4
            o(f"ds_read_b64_tr_b16 {a(d,2)}, v{v4} offset:{half*2048}")
            o(f"ds_read_b64_tr_b16 {a(d+2,2)}, v{v4} offset:{half*2048+256}")
        if i % 4 == 3: o("s_waitcnt lgkmcnt(0)")
    o(f"v_lshrrev_b32 v{v3}, 2, v{vi}")
    o(f"v_lshl_add_u32 v{v3}, v{vg}, 2, v{v3}")
    o(f"v_lshlrev_b32 v{v3}, 7, v{v3}")
    o(f"v_and_b32 v{v4}, 3, v{vi}")
    o(f"v_lshl_add_u32 v{v3}, v{v4}, 3, v{v3}")
    o(f"s_lshl_b32 s{sT0}, s{sW}, 14")
    o(f"s_add_u32 s{sT0}, s{sT0}, 65536")
    o(f"v_add_u32 v{v4}, s{sT0}, v{v3}")
    for ct in range(4):
        for u in range(4):
            d = 192 + (ct * 4 + u) * 4
            o(f"ds_read_b64_tr_b16 {a(d,2)}, v{v4} offset:{u*4096+ct*32}")
            o(f"ds_read_b64_tr_b16 {a(d+2,2)}, v{v4} offset:{u*4096+2048+ct*32}")
        o("s_waitcnt lgkmcnt(0)")
    o("s_barrier")

    if hook:
        A.raw(hook)
        o(f"v_and_b32 v{vi}, 15, v{vL}"); o(f"v_lshrrev_b32 v{vg}, 4, v{vL}"); o(f"v_and_b32 v{vr}, 7, v{vL}")
    o(f"s_lshl_b32 s{sT0}, s{sW}, 12")
    o(f"v_add_u32 v{vE3}, s{sT0}, v{vL16}")
    o(f"v_lshrrev_b32 v{v1}, 1, v{vg}")
    o(f"v_lshlrev_b32 v{v1}, 8, v{v1}")
    o(f"v_lshl_add_u32 v{v1}, v{vr}, 4, v{v1}")
    o(f"s_lshr_b32 s{sT0}, s{sC}, 1")
    o(f"s_lshl_b32 s{sT0}, s{sT0}, 10")
    o(f"s_and_b32 s{sT1}, s{sW}, 1")
    o(f"s_lshl_b32 s{sT1}, s{sT1}, 9")
    o(f"s_add_u32 s{sT0}, s{sT0}, s{sT1}")
    o(f"s_and_b32 s{sT1}, s{sC}, 1")
    o(f"s_lshl_b32 s{sT1}, s{sT1}, 7")
    o(f"s_add_u32 s{sT0}, s{sT0}, s{sT1}")
    o(f"v_add_u32 v{vKMst}, s{sT0}, v{v1}")
    o(f"s_lshl_b32 s{sT0}, s{sHA}, 12")
    o(f"s_lshr_b32 s{sT1}, s{sW}, 1")
    o(f"s_lshl_b32 s{sT1}, s{sT1}, 11")
    o(f"s_add_u32 s{sT0}, s{sT0}, s{sT1}")
    o(f"v_add_u32 v{vQKst}, s{sT0}, v{vKMst}")
    o(f"s_lshl_b32 s{sT0}, s{sHA}, 11")
    o(f"s_lshl_b32 s{sT1}, s{sC}, 9")
    o(f"s_add_u32 s{sT0}, s{sT0}, s{sT1}")
    o(f"v_add_u32 v{vVst}, s{sT0}, v{vL16}")
    o(f"s_lshl_b32 s{sT0}, s{sW}, 11")
    o(f"v_add_u32 v{vVld}, s{sT0}, v{vL16}")
    o(f"s_lshl_b32 s{sT0}, s{sG}, 4")
    o(f"s_add_u32 s{sT0}, s{sT0}, s{sJ}")
    o(f"s_lshl_b32 s{sT0}, s{sT0}, 10")
    o(f"s_and_b32 s{sT1}, s{sW}, 1")
    o(f"s_lshl_b32 s{sT1}, s{sT1}, 9")
    o(f"s_add_u32 s{sT0}, s{sT0}, s{sT1}")
    o(f"s_lshr_b32 s{sT1}, s{sW}, 1")
    o(f"s_lshl_b32 s{sT1}, s{sT1}, 7")
    o(f"s_add_u32 s{sT0}, s{sT0}, s{sT1}")
    o(f"v_add_u32 v{vPst}, s{sT0}, v{v1}")
    o(f"v_lshlrev_b32 v{vPld}, 14, v{vg}")
    o(f"v_lshl_add_u32 v{vPld}, v{vi}, 4, v{vPld}")
    o(f"s_lshl_b32 s{sT0}, s{sJ}, 10")
    o(f"s_lshl_b32 s{sT1}, s{sW}, 8")
    o(f"s_add_u32 s{sT0}, s{sT0}, s{sT1}")
    o(f"v_add_u32 v{vPld}, s{sT0}, v{vPld}")
    o(f"v_add_u32 v{vMst}, s{sT0}, v{vL16}")
    o(f"v_lshlrev_b32 v{vKx}, 13, v{vi}")
    o(f"v_lshl_add_u32 v{vKx}, v{vg}, 4, v{vKx}")
    o(f"s_lshl_b32 s{sT0}, s{sHead}, 8")
    o(f"v_add_u32 v{vKx}, s{sT0}, v{vKx}")
    o(f"v_mov_b32 v{vLdsM}, v{vL16}")
    for d in range(4):
        o(f"v_mov_b32 v{vDelta+d}, 0")
        o(f"v_mov_b32 v{v1}, 0x3f80")
        o(f"v_cmp_eq_u32 vcc, {2*d}, v{vi}")
        o(f"v_cndmask_b32 v{vDelta+d}, v{vDelta+d}, v{v1}, vcc")
        o(f"v_mov_b32 v{v1}, 0x3f800000")
        o(f"v_cmp_eq_u32 vcc, {2*d+1}, v{vi}")
        o(f"v_cndmask_b32 v{vDelta+d}, v{vDelta+d}, v{v1}, vcc")
    o(f"v_mov_b32 v{v1}, 0xff800000")
    o(f"v_cmp_lt_u32 vcc, 31, v{vL}")
    o(f"v_cndmask_b32 v{vNeg}, 0, v{v1}, vcc")
    for r in range(1, 4): o(f"v_mov_b32 v{vNeg+r}, v{vNeg}")
    for r in range(4): o(f"v_mov_b32 v{vSent+r}, -1")
    o(f"s_mov_b32 s{sMaskQK}, 0xff"); o(f"s_mov_b32 s{sMaskQK+1}, 0xff")
    o(f"s_mov_b32 s{sSelV}, -1"); o(f"s_mov_b32 s{sSelV+1}, 0")
    import math
    cs = 128 ** -0.5 * math.log2(math.e)
    import struct
    o(f"s_mov_b32 s{sScale}, 0x{struct.unpack('<I', struct.pack('<f', cs))[0]:08x}")
    o(f"s_mov_b32 s{sScale+1}, s{sScale}")
    o(f"s_mov_b32 s{sLim}, 0x400000")
    o(f"s_mov_b32 s{sStep}, 0")
    def addbase(dst, off, extra_s=None):
        o(f"s_add_u32 s{dst}, s{sWS}, {off & 0xffffffff}")
        o(f"s_addc_u32 s{dst+1}, s{sWS+1}, 0")
        if extra_s is not None:
            o(f"s_add_u32 s{dst}, s{dst}, s{extra_s}")
            o(f"s_addc_u32 s{dst+1}, s{dst+1}, 0")
    o(f"s_lshl_b32 s{sT0}, s{sHead}, 13")
    o(f"s_add_u32 s{sT0}, s{sT0}, 4096")
    addbase(sKX, WS_K, sT0)
    o(f"s_lshl_b32 s{sT0}, s{sHead}, 13")
    o(f"s_add_u32 s{sT0}, s{sT0}, 4096")
    addbase(sVX, WS_VT, sT0)
    o(f"s_lshl_b32 s{sT0}, s{sHead}, 11")
    addbase(sKM, WS_KM, sT0)
    addbase(sVM, WS_VM, sT0)
    sCNT = 16
    addbase(sCNT, WS_CNT + cntoff)
    def kv_wait(chunk_sreg_expr_setup, target, tag):
        o(f"s_lshl_b32 s{sT0}, s{sT0}, 3"); o(f"s_add_u32 s{sT0}, s{sT0}, s{sG}"); o(f"s_lshl_b32 s{sT0}, s{sT0}, 7")
        o(f"v_mov_b32 v{vX+2}, s{sT0}")
        A.label(f"L_kvw_{tag}")
        o(f"global_load_dword v{vX+3}, v{vX+2}, {s(sCNT,2)} sc1")
        o("s_waitcnt vmcnt(0)")
        o(f"v_readfirstlane_b32 s{sT1}, v{vX+3}")
        o(f"s_cmp_ge_u32 s{sT1}, {target}")
        o(f"s_cbranch_scc1 L_kvw_{tag}_ok")
        o("s_sleep 4")
        o(f"s_sub_u32 s{sLim}, s{sLim}, 1")
        o(f"s_cbranch_scc0 L_kvw_{tag}")
        o(f"s_mov_b32 s{sLim}, 0")
        A.label(f"L_kvw_{tag}_ok")
    if KVCHK:
        o(f"s_mov_b32 s{sT0}, 0")
        kv_wait(None, 16, "0")
    def load_kx():
        for t in range(8):
            o(f"global_load_dwordx4 {v(vK+t*4,4)}, v{vL16}, {s(sKX,2)} offset:{t*1024-4096}")
    load_kx()
    if prof:
        o(f"s_lshl_b32 s{sT0}, s{sG}, 4")
        o(f"s_add_u32 s{sT0}, s{sT0}, s{sJ}")
        o(f"s_lshl_b32 s{sT0}, s{sT0}, 2")
        o(f"s_add_u32 s{sT0}, s{sT0}, s{sW}")
        o(f"s_lshl_b32 s{sT0}, s{sT0}, 12")
        addbase(sProf, WS_PROF, sT0)
    nst = [0]
    def stamp():
        if not prof: return
        k = nst[0]; nst[0] += 1
        o(f"{TIMER} {s(sTs + 2*k, 2)}")

    def check(regs, lab_ok, lab_retry, tmp):
        regs = list(regs)
        o(f"v_max3_u32 v{tmp}, v{regs[0]}, v{regs[1]}, v{regs[2]}")
        k = 3
        while k + 1 < len(regs):
            o(f"v_max3_u32 v{tmp}, v{tmp}, v{regs[k]}, v{regs[k+1]}"); k += 2
        if k < len(regs):
            o(f"v_max_u32 v{tmp}, v{tmp}, v{regs[k]}")
        o(f"v_cmp_eq_u32 vcc, -1, v{tmp}")
        o(f"s_cbranch_vccz {lab_ok}")
        o(f"s_sub_u32 s{sLim}, s{sLim}, 1")
        o(f"s_cbranch_scc1 {lab_ok}_to")
        o(f"s_branch {lab_retry}")
        A.label(f"{lab_ok}_to")
        o(f"s_mov_b32 s{sLim}, 0")
        A.label(lab_ok)


    sCnt = 98
    vOo = [112, 116, 120, 124, 192, 196, 200, 204, 216, 220, 224, 228]
    vPf = 252
    def merge(main, side, every, start=0):
        side = list(side); out = [];
        for k, m_ in enumerate(main):
            out.append(m_)
            if side and k >= start and (k - start) % every == every - 1: out.append(side.pop(0))
        return out + side
    def emit(L):
        for x in L: o(x)
    def check(regs, lab_ok, lab_retry, tmp, cnt=None):
        regs = list(regs)
        o(f"v_max3_u32 v{tmp}, v{regs[0]}, v{regs[1]}, v{regs[2]}")
        k = 3
        while k + 1 < len(regs):
            o(f"v_max3_u32 v{tmp}, v{tmp}, v{regs[k]}, v{regs[k+1]}"); k += 2
        if k < len(regs):
            o(f"v_max_u32 v{tmp}, v{tmp}, v{regs[k]}")
        o(f"v_cmp_eq_u32 vcc, -1, v{tmp}")
        o(f"s_cbranch_vccz {lab_ok}")
        if prof and cnt is not None: o(f"s_add_u32 s{sCnt+cnt}, s{sCnt+cnt}, 1")
        o(f"s_sub_u32 s{sLim}, s{sLim}, 1")
        o(f"s_cbranch_scc0 {lab_retry}")
        o(f"s_mov_b32 s{sLim}, 0")
        A.label(lab_ok)
    sM = 88
    def mpoll(loads, tag, cnt):
        n = len(loads)
        regs = [b + r for b, _ in loads for r in range(4)]
        o(f"v_max3_u32 v{vX}, v{regs[0]}, v{regs[1]}, v{regs[2]}")
        k = 3
        while k + 1 < len(regs):
            o(f"v_max3_u32 v{vX}, v{vX}, v{regs[k]}, v{regs[k+1]}"); k += 2
        if k < len(regs): o(f"v_max_u32 v{vX}, v{vX}, v{regs[k]}")
        o(f"v_cmp_eq_u32 vcc, -1, v{vX}")
        o(f"s_cbranch_vccz L_{tag}_ok")
        A.label(f"L_{tag}_retry")
        if prof: o(f"s_add_u32 s{sCnt+cnt}, s{sCnt+cnt}, 1")
        for i, (b, rest) in enumerate(loads):
            o(f"v_max3_u32 v{vX}, v{b}, v{b+1}, v{b+2}")
            o(f"v_max_u32 v{vX}, v{vX}, v{b+3}")
            o(f"v_cmp_eq_u32 vcc, -1, v{vX}")
            o(f"s_cbranch_vccz L_{tag}_sk{i}")
            o("s_mov_b64 exec, vcc")
            o(f"global_load_dwordx4 {v(b,4)}, {rest}")
            o("s_mov_b64 exec, -1")
            A.label(f"L_{tag}_sk{i}")
        o("s_waitcnt vmcnt(0)")
        o(f"v_max3_u32 v{vX}, v{regs[0]}, v{regs[1]}, v{regs[2]}")
        k = 3
        while k + 1 < len(regs):
            o(f"v_max3_u32 v{vX}, v{vX}, v{regs[k]}, v{regs[k+1]}"); k += 2
        if k < len(regs): o(f"v_max_u32 v{vX}, v{vX}, v{regs[k]}")
        o(f"v_cmp_eq_u32 vcc, -1, v{vX}")
        o(f"s_cbranch_vccz L_{tag}_ok")
        o(f"s_sub_u32 s{sLim}, s{sLim}, 1")
        o(f"s_cbranch_scc0 L_{tag}_retry")
        o(f"s_mov_b32 s{sLim}, 0")
        A.label(f"L_{tag}_ok")
    if prof:
        for k in range(4): o(f"s_mov_b32 s{sCnt+k}, 0")
    vPfo = 58
    o(f"s_lshl_b32 s{sT1}, s{sG}, 2"); o(f"s_add_u32 s{sT1}, s{sT1}, s{sHA}"); o(f"s_lshl_b32 s{sT1}, s{sT1}, 13")
    o(f"s_lshl_b32 s{sT2}, s{sC}, 11"); o(f"s_add_u32 s{sT1}, s{sT1}, s{sT2}")
    o(f"s_and_b32 s{sT2}, s{sW}, 1"); o(f"s_lshl_b32 s{sT2}, s{sT2}, 10"); o(f"s_add_u32 s{sT1}, s{sT1}, s{sT2}")
    o(f"v_add_u32 v{vPfo}, s{sT1}, v{vL16}")
    o(f"s_cmp_lt_u32 s{sW}, 2")
    sPF = 18
    o(f"s_mov_b32 s{sT0}, {WS_K + 2*262144}")
    o(f"s_mov_b32 s{sT1}, {WS_VT + 2*262144}")
    o(f"s_cselect_b32 s{sT0}, s{sT0}, s{sT1}")
    o(f"s_add_u32 s{sPF}, s{sWS}, s{sT0}"); o(f"s_addc_u32 s{sPF+1}, s{sWS+1}, 0")
    def kx_loads():
        if NOK: return ["s_nop 0"] * 8
        return [f"global_load_dwordx4 {v(vK+t*4,4)}, v{vL16}, {s(sKX,2)} offset:{t*1024-4096}" for t in range(8)]
    def vx_loads():
        if NOV: return ["s_nop 0"] * 8
        return [f"global_load_dwordx4 {v(vV+4*t,4)}, v{vL16}, {s(sVX,2)} offset:{t*1024-4096}" for t in range(8)]
    vRd = [None, 232, 233, 234]
    for hs in (1, 2, 3):
        o(f"v_add_u32 v{vRd[hs]}, {hs*4096}, v{vE3}")
        o(f"v_and_b32 v{vRd[hs]}, 0x3fff, v{vRd[hs]}")
    vVw, vVr, vRw = 235, 59, 15
    o(f"s_lshl_b32 s{sT0}, s{sW}, 10")
    o(f"v_add_u32 v{vVw}, s{sT0}, v{vL16}")
    o(f"v_and_b32 v{vVr}, 31, v{vL}")
    o(f"v_lshlrev_b32 v{vVr}, 4, v{vVr}")
    o(f"v_lshrrev_b32 v{vX+2}, 5, v{vL}")
    o(f"v_lshl_add_u32 v{vVr}, v{vX+2}, 10, v{vVr}")
    vL4 = vX + 3
    o(f"v_lshlrev_b32 v{vL4}, 2, v{vL}")
    o(f"s_lshl_b32 s{sT0}, s{sW}, 8")
    o(f"v_add_u32 v{vRw}, s{sT0}, v{vL4}")
    vRr = [None, 1, 2, 3]
    for hs in (1, 2, 3):
        o(f"s_add_u32 s{sT0}, s{sW}, {hs}"); o(f"s_and_b32 s{sT0}, s{sT0}, 3"); o(f"s_lshl_b32 s{sT0}, s{sT0}, 8")
        o(f"v_add_u32 v{vRr[hs]}, s{sT0}, v{vL4}")
    vOnes = 4
    for r in range(4): o(f"v_mov_b32 v{vOnes+r}, 0x3f803f80")

    LDS_R = 36864
    A.label("L_step")
    nst[0] = 0
    if KVCHK:
        o(f"s_add_u32 s{sT0}, s{sStep}, 2"); o(f"s_and_b32 s{sT1}, s{sT0}, 7"); o(f"s_cmp_lg_u32 s{sT1}, 0"); o("s_cbranch_scc1 L_kvskip")
        o(f"s_cmp_ge_u32 s{sT0}, 64"); o("s_cbranch_scc1 L_kvskip")
        o(f"s_lshr_b32 s{sT0}, s{sT0}, 3")
        kv_wait(None, 4, "n")
        A.label("L_kvskip")
    o(f"s_and_b32 s{sSlot}, s{sStep}, 3")
    o(f"s_lshl_b32 s{sT0}, s{sSlot}, 17")
    o(f"s_lshl_b32 s{sT1}, s{sG}, 14")
    o(f"s_add_u32 s{sT2}, s{sT0}, s{sT1}")
    addbase(sMEMc, WS_RMEM, sT2)
    e3_loads = [(vB + 4*u, f"v{vE3}, {s(sMEMc,2)} offset:{u*1024} sc1") for u in range(4)]
    def qk_mfma(i, first=False):
        for half, acc in ((0, vA0), (1, vA1)):
            c = "0" if first else v(acc, 4)
            o(f"v_mfma_f32_16x16x32_bf16 {v(acc,4)}, {a((i*2+half)*4,4)}, {v(vB+4*i,4)}, {c}")
    def salu_bases():
        addbase(sQK, WS_RQK, sT2)
        o(f"s_lshl_b32 s{sT3}, s{sStep}, 17")
        addbase(sPART, WS_PARTF, sT3)
        o(f"s_add_u32 s{sPART2}, s{sPART}, 65536"); o(f"s_addc_u32 s{sPART2+1}, s{sPART+1}, 0")
        o(f"s_lshr_b32 s{sT3}, s{sT2}, 1")
        addbase(sVR, WS_RV, sT3)
        o(f"s_add_u32 s{sT3}, s{sStep}, 1"); o(f"s_and_b32 s{sT3}, s{sT3}, 3"); o(f"s_lshl_b32 s{sT3}, s{sT3}, 17"); o(f"s_add_u32 s{sT3}, s{sT3}, s{sT1}")
        addbase(sMEMn, WS_RMEM, sT3)
        o(f"s_xor_b32 s{sT3}, s{sT0}, {2<<17}")
        o(f"s_add_u32 s{sT3}, s{sT3}, s{sT1}")
        addbase(sRq, WS_RQK, sT3)
        o(f"s_lshr_b32 s{sT3}, s{sT3}, 1")
        addbase(sRv, WS_RV, sT3)
        o(f"s_add_u32 s{sT3}, s{sStep}, 3"); o(f"s_and_b32 s{sT3}, s{sT3}, 3"); o(f"s_lshl_b32 s{sT3}, s{sT3}, 17"); o(f"s_add_u32 s{sT3}, s{sT3}, s{sT1}")
        addbase(sRm, WS_RMEM, sT3)
    def simple_poll(loads, tag, cnt, first_wait):
        regs = [b + r for b, _ in loads for r in range(4)]
        o(f"s_waitcnt vmcnt({first_wait})")
        o(f"s_branch L_{tag}_c")
        A.label(f"L_{tag}_r")
        for b, rest in loads: o(f"global_load_dwordx4 {v(b,4)}, {rest}")
        o("s_waitcnt vmcnt(0)")
        A.label(f"L_{tag}_c")
        check(regs, f"L_{tag}_ok", f"L_{tag}_r", vX, cnt)
    if E3_SALU_FIRST: salu_bases()
    stamp()
    for b, rest in e3_loads: o(f"global_load_dwordx4 {v(b,4)}, {rest}")
    if not E3_SALU_FIRST: salu_bases()
    simple_poll(e3_loads, "e3", 0, 0)
    if SIG:
        o(f"s_sub_u32 s{sT3}, s{sStep}, 1"); o(f"s_cbranch_scc1 L_nosig")
        o(f"s_and_b32 s{sT0}, s{sT3}, 15"); o(f"s_cmp_lg_u32 s{sT0}, s{sJ}"); o("s_cbranch_scc1 L_nosig")
        o(f"s_lshl_b32 s{sT0}, s{sT3}, 7"); o(f"s_add_u32 s{sT0}, s{sT0}, {CNT_REC}")
        o(f"v_mov_b32 v{vX+2}, s{sT0}"); o(f"v_mov_b32 v{vX+3}, 1")
        o("s_mov_b64 exec, 1")
        o(f"global_atomic_add v{vX+2}, v{vX+3}, {s(sCNT,2)}")
        o("s_mov_b64 exec, -1")
        A.label("L_nosig")
    for u, (b, rest) in enumerate(e3_loads):
        o(f"ds_write_b128 v{vE3}, {v(b,4)} offset:{LDS_MEM + u*1024}")
    for u in range(4): qk_mfma(u, first=(u == 0))
    stamp()
    o("s_waitcnt lgkmcnt(0)")
    o("s_barrier")
    for i in range(4, 16):
        o(f"ds_read_b128 {v(vB+4*i,4)}, v{vRd[i//4]} offset:{LDS_MEM + (i%4)*1024}")
    vxl = vx_loads()
    for i in range(4, 16):
        o(f"s_waitcnt lgkmcnt({15-i})")
        qk_mfma(i)
        if i % VSP == VSP - 1 and vxl: o(vxl.pop(0))
    stamp()
    for r in range(4):
        o(f"v_add_f32_dpp v{vA0+r}, v{vA1+r}, v{vA0+r} row_ror:8 row_mask:0xf bank_mask:0xf")
    R = vX + 4
    o(f"v_cvt_pk_bf16_f32 v{R}, v{vA0}, v{vA0+1}")
    o(f"v_cvt_pk_bf16_f32 v{R+1}, v{vA0+2}, v{vA0+3}")
    o(f"v_permlane16_swap_b32 v{R}, v{R+2}")
    o(f"v_permlane16_swap_b32 v{R+1}, v{R+3}")
    o(f"s_mov_b64 exec, {s(sMaskQK,2)}")
    o(f"global_store_dwordx4 v{vQKst}, {v(R,4)}, {s(sQK,2)}{st_fast}")
    o("s_mov_b64 exec, -1")
    stamp()
    e1_loads = [(vQ + 4*cp, f"v{vE3}, {s(sQK,2)} offset:{cp*1024} sc1") for cp in range(2)] + [(vKm + 4*cp, f"v{vE3}, {s(sQK,2)} offset:{2048+cp*1024} sc1") for cp in range(2)]
    def e1_issue():
        for b, rest in e1_loads: o(f"global_load_dwordx4 {v(b,4)}, {rest}")
    for i in range(8):
        for half, acc in ((0, vAv0), (1, vAv1)):
            c = "0" if i == 0 else v(acc, 4)
            o(f"v_mfma_f32_16x16x32_bf16 {v(acc,4)}, {v(vB+4*i,4)}, {a(128+(i*2+half)*4,4)}, {c}")
        if vxl and i % 2 == 1: o(vxl.pop(0))
        if i == E1_AT:
            emit(vxl); vxl = []
            e1_issue()
    emit(vxl)
    for r in range(4):
        o(f"v_cndmask_b32 v{vAv0+r}, v{vAv1+r}, v{vAv0+r}, {s(sSelV,2)}")
    o(f"ds_write_b128 v{vVw}, {v(vAv0,4)} offset:{LDS_V}")
    o("s_waitcnt lgkmcnt(0)")
    o("s_barrier")
    o(f"s_cmp_lg_u32 s{sW}, 0")
    o("s_cbranch_scc1 L_vred_skip")
    T = vA0
    for k, off in enumerate((0, 512, 2048, 2560)):
        o(f"ds_read_b128 {v(T+4*k,4)}, v{vVr} offset:{LDS_V+off}")
    o("s_waitcnt lgkmcnt(0)")
    for r in range(4):
        o(f"v_add_f32 v{T+r}, v{T+r}, v{T+4+r}")
        o(f"v_add_f32 v{T+8+r}, v{T+8+r}, v{T+12+r}")
    for r in range(4):
        o(f"v_add_f32 v{T+r}, v{T+r}, v{T+8+r}")
    o(f"v_cvt_pk_bf16_f32 v{R}, v{T}, v{T+1}")
    o(f"v_cvt_pk_bf16_f32 v{R+1}, v{T+2}, v{T+3}")
    o(f"v_permlane32_swap_b32 v{R}, v{R+2}")
    o(f"v_permlane32_swap_b32 v{R+1}, v{R+3}")
    o(f"s_mov_b64 exec, {s(sSelV,2)}")
    o(f"global_store_dwordx4 v{vVst}, {v(R,4)}, {s(sVR,2)}{st_fast}")
    o("s_mov_b64 exec, -1")
    o("s_waitcnt vmcnt(1)")
    o("s_branch L_e1_c")
    A.label("L_e1_r")
    e1_issue()
    A.label("L_vred_skip")
    o("s_waitcnt vmcnt(0)")
    A.label("L_e1_c")
    check([b + r for b, _ in e1_loads for r in range(4)], "L_e1_ok", "L_e1_r", vX, 1)
    stamp()
    def M32(d, A_, B_, C_): return f"v_mfma_f32_16x16x32_bf16 {v(d,4)}, {A_}, {B_}, {C_}"
    def rot(dst, srcr): return [f"v_mov_b32_dpp v{dst+r}, v{srcr+r} row_ror:8 row_mask:0xf bank_mask:0xf" for r in range(4)]
    Kf = lambda kt, u: v(vK + (kt*4+u)*4, 4)
    seq = []
    seq += [M32(vSx, Kf(0,0), v(vQ,4), "0")] + rot(vQr, vQ)[:2]
    seq += [M32(vSx+4, Kf(1,0), v(vQ,4), "0")] + rot(vQr, vQ)[2:]
    seq += [M32(vSm, v(vKm,4), v(vQ,4), v(vNeg,4))] + rot(vQr+4, vQ+4)[:2]
    seq += [M32(vSx, Kf(0,2), v(vQ+4,4), v(vSx,4))] + rot(vQr+4, vQ+4)[2:]
    seq += [M32(vSx+4, Kf(1,2), v(vQ+4,4), v(vSx+4,4))] + rot(vKr, vKm)[:2]
    seq += [M32(vSm, v(vKm+4,4), v(vQ+4,4), v(vSm,4))] + rot(vKr, vKm)[2:]
    seq += [M32(vSx, Kf(0,1), v(vQr,4), v(vSx,4))] + rot(vKr+4, vKm+4)[:2]
    seq += [M32(vSx+4, Kf(1,1), v(vQr,4), v(vSx+4,4))] + rot(vKr+4, vKm+4)[2:]
    seq += [M32(vSx, Kf(0,3), v(vQr+4,4), v(vSx,4))]
    seq += [M32(vSx+4, Kf(1,3), v(vQr+4,4), v(vSx+4,4))]
    seq += [M32(vSm, v(vKr,4), v(vQr,4), v(vSm,4))]
    seq += [M32(vSm, v(vKr+4,4), v(vQr+4,4), v(vSm,4))]
    emit(seq)
    if not FIXKV:
        o(f"s_add_u32 s{sKX}, s{sKX}, 262144"); o(f"s_addc_u32 s{sKX+1}, s{sKX+1}, 0")
    vm_loads = [(vVm + 4*mm, f"v{vVld}, {s(sVR,2)} offset:{mm*1024} sc1") for mm in range(2)]
    for b, rest in vm_loads: o(f"global_load_dwordx4 {v(b,4)}, {rest}")
    m, t = vX + 1, vX + 2
    Sall = list(range(vSx, vSx + 8)) + list(range(vSm, vSm + 4))
    m2 = vX + 3
    o(f"v_max3_f32 v{m}, v{Sall[0]}, v{Sall[1]}, v{Sall[2]}")
    o(f"v_max3_f32 v{m2}, v{Sall[4]}, v{Sall[5]}, v{Sall[6]}")
    o(f"v_max3_f32 v{m}, v{m}, v{Sall[3]}, v{Sall[7]}")
    o(f"v_max3_f32 v{m2}, v{m2}, v{Sall[8]}, v{Sall[9]}")
    o(f"v_max3_f32 v{m}, v{m}, v{Sall[10]}, v{Sall[11]}")
    o(f"v_max_f32 v{m}, v{m}, v{m2}")
    for sw in ("16", "32"):
        o(f"v_mov_b32 v{t}, v{m}")
        o(f"v_permlane{sw}_swap_b32 v{m}, v{t}")
        o(f"v_max_f32 v{m}, v{m}, v{t}")
    mm_ = vX + 2
    o(f"v_mul_f32 v{mm_}, s{sScale}, v{m}")
    kxl = kx_loads()
    main = []
    for r in Sall[::2]: main.append(f"v_pk_fma_f32 {v(r,2)}, {v(r,2)}, {s(sScale,2)}, {v(mm_,2)} op_sel_hi:[1,1,0] neg_lo:[0,0,1] neg_hi:[0,0,1]")
    for k_, r in enumerate(Sall):
        main.append(f"v_exp_f32 v{r}, v{r}")
    emit(merge(main, [kxl.pop(0), kxl.pop(0)], 7))
    o(f"v_cvt_pk_bf16_f32 v{vPx}, v{vSx}, v{vSx+1}")
    o(f"v_cvt_pk_bf16_f32 v{vPx+1}, v{vSx+2}, v{vSx+3}")
    o(f"v_cvt_pk_bf16_f32 v{vPx+2}, v{vSx+4}, v{vSx+5}")
    o(f"v_cvt_pk_bf16_f32 v{vPx+3}, v{vSx+6}, v{vSx+7}")
    o(f"v_cvt_pk_bf16_f32 v{vPmA}, v{vSm}, v{vSm+1}")
    o(f"v_cvt_pk_bf16_f32 v{vPmA+1}, v{vSm+2}, v{vSm+3}")
    stamp()
    vLs = vSx
    pv = [M32(vO+4*tt, v(vV+4*tt,4), v(vPx,4), "0") for tt in range(8)]
    side = [f"v_mov_b32 v{vX+4}, v{vPmA}", f"v_mov_b32 v{vX+5}, v{vPmA+1}", f"v_mov_b32 v{vPmB}, 0", f"v_mov_b32 v{vPmB+1}, 0",
            f"v_permlane32_swap_b32 v{vPmB}, v{vX+4}", f"v_permlane32_swap_b32 v{vPmB+1}, v{vX+5}", kxl.pop(0)]
    emit(merge(pv, side, 1))
    o(M32(vLs, v(vOnes,4), v(vPx,4), "0"))
    o(f"v_mfma_f32_16x16x16_bf16 {v(vLs,4)}, {v(vOnes,2)}, {v(vPmA,2)}, {v(vLs,4)}")
    simple_poll(vm_loads, "vm", 2, 3)
    stamp()
    o(f"s_and_b32 s{sT0}, s{sStep}, 15"); o(f"s_cmp_lg_u32 s{sT0}, s{sJ}"); o("s_cbranch_scc1 L_nopub")
    for cp in range(2): o(f"global_store_dwordx4 v{vL16}, {v(vKm+4*cp,4)}, {s(sKM,2)} offset:{cp*1024} sc1")
    for cp in range(2): o(f"global_store_dwordx4 v{vL16}, {v(vVm+4*cp,4)}, {s(sVM,2)} offset:{cp*1024} sc1")
    A.label("L_nopub")
    if LAST_SHORT:
        o(f"s_cmp_eq_u32 s{sStep}, {nsteps-1}")
        o("s_cbranch_scc1 L_rec_last")
    if PF: o(f"global_load_dwordx4 {v(vPf,4)}, v{vPfo}, {s(sPF,2)}")
    def pvm(tt):
        c, tv = tt >> 1, tt & 1
        pm = vPmB if (c & 1) else vPmA
        return f"v_mfma_f32_16x16x16_bf16 {v(vO+4*tt,4)}, {v(vVm+4*(c>>1)+2*tv,2)}, {v(pm,2)}, {v(vO+4*tt,4)}"
    def cvt(tt):
        u, h = tt >> 1, tt & 1
        return [f"v_cvt_pk_bf16_f32 v{vOb+4*u+2*h}, v{vO+4*tt}, v{vO+4*tt+1}", f"v_cvt_pk_bf16_f32 v{vOb+4*u+2*h+1}, v{vO+4*tt+2}, v{vO+4*tt+3}"]
    vCa = [16, 20, 24, 28]
    for tt in range(3): o(pvm(tt))
    l_ = vX + 1
    def cm(ct, u):
        c = "0" if u == 0 else v(vCa[ct], 4)
        return f"v_mfma_f32_16x16x32_bf16 {v(vCa[ct],4)}, {a(192+(ct*4+u)*4,4)}, {v(vOb+4*u,4)}, {c}"
    pend = []
    for tt in range(8):
        if tt + 3 < 8: o(pvm(tt + 3))
        cv = cvt(tt)
        o(cv[0])
        if pend: o(pend.pop(0))
        o(cv[1])
        if pend: o(pend.pop(0))
        if tt == 0: o(f"v_rcp_f32 v{l_}, v{vLs}")
        if tt % 2 == 1:
            pend += [cm(ct, tt >> 1) for ct in range(4)]
            if kxl: o(kxl.pop(0))
    emit(pend)
    for ct in range(4):
        pass
    o(f"v_mov_b32 v{vX+2}, v{l_}")
    for ct in range(4):
        o(f"v_pk_mul_f32 {v(vCa[ct],2)}, {v(vCa[ct],2)}, {v(vX+2,2)} op_sel_hi:[1,0]")
        o(f"v_pk_mul_f32 {v(vCa[ct]+2,2)}, {v(vCa[ct]+2,2)}, {v(vX+2,2)} op_sel_hi:[1,0]")
        o(f"ds_write_b128 v{vVw}, {v(vCa[ct],4)} offset:{LDS_O+ct*4096}")
    while kxl: o(kxl.pop(0))
    o("s_waitcnt lgkmcnt(0)")
    o("s_barrier")
    stamp()
    Rr = [112, 116, 120, 124]
    for sw in range(4): o(f"ds_read_b128 {v(Rr[sw],4)}, v{vE3} offset:{LDS_O+sw*1024}")
    vC = Rr[0]
    o("s_waitcnt lgkmcnt(2)")
    o(f"v_pk_add_f32 {v(Rr[0],2)}, {v(Rr[0],2)}, {v(Rr[1],2)}"); o(f"v_pk_add_f32 {v(Rr[0]+2,2)}, {v(Rr[0]+2,2)}, {v(Rr[1]+2,2)}")
    o("s_waitcnt lgkmcnt(0)")
    o(f"v_pk_add_f32 {v(Rr[2],2)}, {v(Rr[2],2)}, {v(Rr[3],2)}"); o(f"v_pk_add_f32 {v(Rr[2]+2,2)}, {v(Rr[2]+2,2)}, {v(Rr[3]+2,2)}")
    o(f"v_pk_add_f32 {v(Rr[0],2)}, {v(Rr[0],2)}, {v(Rr[2],2)}"); o(f"v_pk_add_f32 {v(Rr[0]+2,2)}, {v(Rr[0]+2,2)}, {v(Rr[2]+2,2)}")
    o(f"v_cvt_pk_bf16_f32 v{R}, v{vC}, v{vC+1}")
    o(f"v_cvt_pk_bf16_f32 v{R+1}, v{vC+2}, v{vC+3}")
    o(f"v_permlane16_swap_b32 v{R}, v{R+2}")
    o(f"v_permlane16_swap_b32 v{R+1}, v{R+3}")
    o(f"s_mov_b64 exec, {s(sMaskQK,2)}")
    if EP == 2:
        o("s_waitcnt vmcnt(0)")
        o(f"{TIMER} {s(sTs + 2*5, 2)}")
    o(f"global_store_dwordx4 v{vPst}, {v(R,4)}, {s(sPART,2)} sc1")
    stamp()
    if EP == 2:
        o("s_waitcnt vmcnt(0)")
        o(f"{TIMER} {s(sTs + 2*4, 2)}")
    o(f"global_store_dwordx4 v{vQKst}, {v(vSent,4)}, {s(sRq,2)}{st_fast}")
    o(f"s_mov_b64 exec, 0xffff")
    o(f"global_store_dwordx4 v{vMst}, {v(vSent,4)}, {s(sRm,2)}{st_fast}")
    o(f"s_cmp_lg_u32 s{sW}, 0")
    o("s_cbranch_scc1 L_norv")
    o(f"s_mov_b64 exec, {s(sSelV,2)}")
    o(f"global_store_dwordx4 v{vVst}, {v(vSent,4)}, {s(sRv,2)}{st_fast}")
    A.label("L_norv")
    o("s_mov_b64 exec, -1")
    if not FIXKV:
        o(f"s_add_u32 s{sVX}, s{sVX}, 262144"); o(f"s_addc_u32 s{sVX+1}, s{sVX+1}, 0")
    o(f"s_add_u32 s{sKM}, s{sKM}, 65536"); o(f"s_addc_u32 s{sKM+1}, s{sKM+1}, 0")
    o(f"s_add_u32 s{sVM}, s{sVM}, 65536"); o(f"s_addc_u32 s{sVM+1}, s{sVM+1}, 0")
    if E2_DELAY: o(f"s_sleep {E2_DELAY}")
    sets = [vB + 8 * k for k in range(E2_DEPTH)]
    def e2_issue(b):
        o(f"global_load_dwordx4 {v(b,4)}, v{vPld}, {s(sPART,2)} {E2F}")
        o(f"global_load_dwordx4 {v(b+4,4)}, v{vPld}, {s(sPART2,2)} {E2F}")
    if EP: o(f"{TIMER} {s(sTs + 2*2, 2)}")
    for k, b in enumerate(sets):
        e2_issue(b)
        if k + 1 < len(sets) and E2_SP: o(f"s_sleep {E2_SP}")
    if EP:
        o(f"s_waitcnt vmcnt({2*(len(sets)-1)})")
        o(f"{TIMER} {s(sTs + 2*3, 2)}")
    A.label("L_e2")
    for k, b in enumerate(sets):
        o(f"s_waitcnt vmcnt({2*(len(sets)-1)})")
        regs = list(range(b, b + 8))
        o(f"v_max3_u32 v{vX}, v{regs[0]}, v{regs[1]}, v{regs[2]}")
        o(f"v_max3_u32 v{vX}, v{vX}, v{regs[3]}, v{regs[4]}")
        o(f"v_max3_u32 v{vX}, v{vX}, v{regs[5]}, v{regs[6]}")
        o(f"v_max_u32 v{vX}, v{vX}, v{regs[7]}")
        o(f"v_cmp_eq_u32 vcc, -1, v{vX}")
        o(f"s_cbranch_vccz L_e2_ok{k}")
        if prof: o(f"s_add_u32 s{sCnt+3}, s{sCnt+3}, 1")
        e2_issue(b)
    o(f"s_sub_u32 s{sLim}, s{sLim}, 1")
    o(f"s_cbranch_scc0 L_e2")
    o(f"s_mov_b32 s{sLim}, 0")
    D = vA1
    for k, b in enumerate(sets):
        A.label(f"L_e2_ok{k}")
        o(f"v_mfma_f32_16x16x32_bf16 {v(D,4)}, {v(vDelta,4)}, {v(b,4)}, 0")
        o(f"v_mfma_f32_16x16x32_bf16 {v(D,4)}, {v(vDelta,4)}, {v(b+4,4)}, {v(D,4)}")
        if k + 1 < len(sets): o("s_branch L_e2_done")
    A.label("L_e2_done")
    o(f"s_add_u32 s{sPF}, s{sPF}, 262144"); o(f"s_addc_u32 s{sPF+1}, s{sPF+1}, 0")
    stamp()
    o("s_nop 7")
    o(f"v_cvt_pk_bf16_f32 v{R}, v{D}, v{D+1}")
    o(f"v_cvt_pk_bf16_f32 v{R+1}, v{D+2}, v{D+3}")
    o(f"v_permlane16_swap_b32 v{R}, v{R+2}")
    o(f"v_permlane16_swap_b32 v{R+1}, v{R+3}")
    o(f"s_mov_b64 exec, 0xffff")
    o(f"global_store_dwordx4 v{vMst}, {v(R,4)}, {s(sMEMn,2)}{st_fast}")
    o("s_mov_b64 exec, -1")
    stamp()
    if E3_DELAY: o(f"s_sleep {E3_DELAY}")
    if prof:
        o("s_waitcnt lgkmcnt(0)")
        for k in range(nst[0]):
            o(f"v_writelane_b32 v{vX+8}, s{sTs+2*k}, {k}")
        for k in range(4):
            o(f"v_writelane_b32 v{vX+8}, s{sCnt+k}, {11+k}")
        o(f"v_writelane_b32 v{vX+8}, s92, 15")
        o(f"s_lshl_b32 s{sT0}, s{sW}, 12")
        o(f"s_lshl_b32 s{sT1}, s{sStep}, 6")
        o(f"s_add_u32 s{sT0}, s{sT0}, s{sT1}")
        o(f"s_add_u32 s{sT0}, s{sT0}, 40960")
        o(f"v_lshlrev_b32 v{vX+9}, 2, v{vL}")
        o(f"v_add_u32 v{vX+9}, s{sT0}, v{vX+9}")
        o("s_mov_b64 exec, 0xffff")
        o(f"ds_write_b32 v{vX+9}, v{vX+8}")
        o("s_mov_b64 exec, -1")
    o(f"s_add_u32 s{sStep}, s{sStep}, 1")
    o(f"s_cmp_lt_u32 s{sStep}, {nsteps}")
    o("s_cbranch_scc1 L_step")
    o("s_branch L_rec_fin")
    A.label("L_rec_last")
    if SIG:
        o("s_waitcnt vmcnt(0)")
        o(f"s_and_b32 s{sT0}, s{sStep}, 15"); o(f"s_cmp_lg_u32 s{sT0}, s{sJ}"); o("s_cbranch_scc1 L_rec_fin")
        o(f"s_lshl_b32 s{sT0}, s{sStep}, 7"); o(f"s_add_u32 s{sT0}, s{sT0}, {CNT_REC}")
        o(f"v_mov_b32 v{vX+2}, s{sT0}"); o(f"v_mov_b32 v{vX+3}, 1")
        o("s_mov_b64 exec, 1")
        o(f"global_atomic_add v{vX+2}, v{vX+3}, {s(sCNT,2)}")
        o("s_mov_b64 exec, -1")
    A.label("L_rec_fin")
    if prof:
        o("s_waitcnt lgkmcnt(0)")
        o(f"s_lshl_b32 s{sT0}, s{sW}, 12")
        o(f"s_add_u32 s{sT0}, s{sT0}, 40960")
        o(f"v_add_u32 v{vX+9}, s{sT0}, v{vL16}")
        for k in range(4):
            o(f"ds_read_b128 {v(vB+4*k,4)}, v{vX+9} offset:{k*1024}")
        o("s_waitcnt lgkmcnt(0)")
        for k in range(4):
            o(f"global_store_dwordx4 v{vL16}, {v(vB+4*k,4)}, {s(sProf,2)} offset:{k*1024}")
    o("s_waitcnt vmcnt(0)")
    A.label("L_rec_end")
    o("s_endpgm")
    txt = A.finish()
    if embedded:
        import re
        return re.sub(r"\bL_", pfx + "L_", txt)
    return kernel_head(name) + txt + kernel_desc(name, 256, 256)

if __name__ == "__main__":
    import sys
    fast = "slow" not in sys.argv
    prof = "prof" in sys.argv
    ng = 256 if any(x.startswith("X4=1") for x in sys.argv) else 128
    hdr = f"; @launch kernel=rec_kernel grid=({ng},1,1) block=(256,1,1) lds=131072\n.amdgcn_target \"amdgcn-amd-amdhsa--gfx950\"\n.text\n"
    kw = {}
    for x in sys.argv[1:]:
        if "=" in x:
            k_, v_ = x.split("=");
            if k_ != "out": kw[k_] = int(v_) if v_.isdigit() else v_
    outn = [x.split("=")[1] for x in sys.argv if x.startswith("out=")]
    open(outn[0] if outn else "rec_test.s", "w").write(hdr + gen_rec(fast=fast, prof=prof, **kw))
```

```python
from asmlib import *
from layout import *

NSTEPS = 64
SENT = 0xFFFFFFFF

def gen_rec(name="rec_kernel", embedded=False, pfx="", KVCHK=False, SIG=False, hook=None, cntoff=0, fast=True, prof=False, nsteps=NSTEPS, E1_EARLY=True, E2_DELAY=0, E3_DELAY=0, KV_FIRST=0, PF=1, VSP=2, RT=0, E1_AT=7, E3_SALU_FIRST=0, LAST_SHORT=1, NOK=0, NOV=0, E2F='sc1', X4=0, X4LIM=4, E2_DEPTH=3, E2_SP=0, EP=0, FIXKV=0):
    TIMER = "s_memrealtime" if RT else "s_memtime"
    A = Asm()
    o = A
    st_fast = "" if fast else " sc1"
    sWG = 2
    sW, sG, sJ, sHA, sC, sHead = 3, 4, 5, 6, 7, 8
    sWS = 10
    sT0, sT1, sT2, sT3 = 12, 13, 14, 15
    sPtr = 16
    sMEMc, sMEMn, sQK, sVR, sPART, sPART2, sKX, sKX2, sVX, sKM, sVM = 20, 22, 24, 26, 28, 30, 32, 34, 36, 38, 40
    sRq, sRv, sRp, sRm = 42, 44, 46, 48
    sStep, sSlot, sLim = 50, 51, 52
    sMaskQK, sMaskLo = 54, 56
    sSelV = 58
    sScale = 60
    sWQ, sWK, sWV, sWO, sDBG = 62, 64, 66, 68, 70
    sTs = 66
    sProf = 96
    vL = 0; vT = [1, 2, 3, 4, 5, 6, 7]
    vE3, vQKst, vVst, vVld, vPst, vPld, vMst, vKx, vL16, vKMst = 8, 9, 10, 11, 12, 13, 14, 15, 56, 57
    vA0, vA1, vAv0, vAv1 = 16, 20, 24, 28
    vSx, vSm = 32, 40
    vPx, vPmA, vPmB = 44, 48, 50
    vDelta = 52
    vNeg = 60
    vB = 64; vK = 128; vV = 160; vQ = 192; vQr = 200; vKm = 208; vKr = 216; vVm = 224
    vLdsM, vLdsO, vLdsV = 232, 233, 234
    vSent = 236
    vFlag = 57
    vX = 240
    vO = 64; vOb = 96
    vOo = [112, 116, 120, 124] + [160 + 4 * i for i in range(8)]
    LDS_MEM, LDS_O, LDS_V = 0, 16384, 32768

    if not embedded:
        o(f"s_cmp_ge_u32 s{sWG}, {256 if X4 else 128}")
        o("s_cbranch_scc1 L_rec_end")
        o(f"s_load_dwordx2 {s(sWQ,2)}, s[0:1], {KA_WQ}")
        o(f"s_load_dwordx2 {s(sWK,2)}, s[0:1], {KA_WK}")
        o(f"s_load_dwordx2 {s(sWV,2)}, s[0:1], {KA_WV}")
        o(f"s_load_dwordx2 {s(sWO,2)}, s[0:1], {KA_WO}")
        o(f"s_load_dwordx2 {s(sDBG,2)}, s[0:1], {KA_DBG}")
        o(f"s_load_dwordx2 {s(sWS,2)}, s[0:1], {KA_WS}")
        o(f"v_lshrrev_b32 v1, 6, v0")
        o(f"v_and_b32 v{vL}, 63, v0")
        o(f"v_readfirstlane_b32 s{sW}, v1")
        o(f"s_getreg_b32 s{sG}, hwreg(HW_REG_XCC_ID, 0, 4)")
        o("s_waitcnt lgkmcnt(0)")
        o(f"s_cmp_lg_u32 s{sW}, 0")
        o("s_cbranch_scc1 L_rec_noticket")
        o(f"s_lshl_b32 s{sT0}, s{sG}, 2")
        o(f"v_mov_b32 v1, s{sT0}")
        o("v_mov_b32 v2, 1")
        o("s_mov_b64 exec, 1")
        o(f"global_atomic_add v3, v1, v2, {s(sDBG,2)} sc0")
        o("s_waitcnt vmcnt(0)")
        o("v_mov_b32 v1, 0")
        o("ds_write_b32 v1, v3")
        o("s_waitcnt lgkmcnt(0)")
        o("s_mov_b64 exec, -1")
        A.label("L_rec_noticket")
        o("s_barrier")
        o("v_mov_b32 v1, 0")
        o("ds_read_b32 v3, v1")
        o("s_waitcnt lgkmcnt(0)")
        o(f"v_readfirstlane_b32 s{sJ}, v3")
        o("s_barrier")
        if X4:
            o(f"s_cmp_ge_u32 s{sG}, {X4LIM}"); o("s_cbranch_scc1 L_rec_end")
            o(f"s_sub_u32 s{sG}, s{sG}, {X4LIM-4}") if False else None
            o(f"s_lshl_b32 s{sG}, s{sG}, 1"); o(f"s_lshr_b32 s{sT0}, s{sJ}, 4"); o(f"s_add_u32 s{sG}, s{sG}, s{sT0}")
        o(f"s_and_b32 s{sJ}, s{sJ}, 15")
        o(f"s_and_b32 s{sG}, s{sG}, 7")
    else:
        o(f"s_load_dwordx2 {s(sWQ,2)}, s[0:1], {KA_WQ}")
        o(f"s_load_dwordx2 {s(sWK,2)}, s[0:1], {KA_WK}")
        o(f"s_load_dwordx2 {s(sWV,2)}, s[0:1], {KA_WV}")
        o(f"s_load_dwordx2 {s(sWO,2)}, s[0:1], {KA_WO}")
        o(f"s_load_dwordx2 {s(sWS,2)}, s[0:1], {KA_WS}")
        o("s_waitcnt lgkmcnt(0)")
    o(f"s_lshr_b32 s{sHA}, s{sJ}, 2")
    o(f"s_and_b32 s{sC}, s{sJ}, 3")
    o(f"s_lshl_b32 s{sHead}, s{sG}, 2")
    o(f"s_add_u32 s{sHead}, s{sHead}, s{sW}")
    vi, vg, vr = vT[0], vT[1], vT[2]
    o(f"v_and_b32 v{vi}, 15, v{vL}")
    o(f"v_lshrrev_b32 v{vg}, 4, v{vL}")
    o(f"v_and_b32 v{vr}, 7, v{vL}")
    o(f"v_lshlrev_b32 v{vL16}, 4, v{vL}")

    o(f"s_lshl_b32 s{sT0}, s{sG}, 2")
    o(f"s_add_u32 s{sT0}, s{sT0}, s{sHA}")
    o(f"s_lshl_b32 s{sT0}, s{sT0}, 8")
    o(f"s_lshl_b32 s{sT1}, s{sC}, 6")
    o(f"s_add_u32 s{sT0}, s{sT0}, s{sT1}")
    v1, v2, v3, v4 = vT[3], vT[4], vT[5], vT[6]
    o(f"v_lshrrev_b32 v{v1}, 2, v{vL}")
    o(f"v_lshlrev_b32 v{v1}, 13, v{v1}")
    o(f"v_and_b32 v{v2}, 3, v{vL}")
    o(f"v_lshl_add_u32 v{v1}, v{v2}, 4, v{v1}")
    o(f"v_add_u32 v{v1}, s{sT0}, v{v1}")
    o(f"s_lshl_b32 s{sT1}, s{sW}, 21")
    o(f"v_add_u32 v{v1}, s{sT1}, v{v1}")
    def dma_strip(sbase, ldsbase, nblk, rowstep):
        o(f"v_mov_b32 v{v2}, v{v1}")
        o(f"s_lshl_b32 s{sT2}, s{sW}, {(nblk*1024).bit_length()-1}")
        o(f"s_add_u32 s{sT2}, s{sT2}, {ldsbase}")
        for m in range(nblk):
            o(f"s_mov_b32 m0, s{sT2}")
            o(f"s_add_u32 s{sT2}, s{sT2}, 1024")
            o(f"global_load_lds_dwordx4 v{v2}, {s(sbase,2)}")
            if m + 1 < nblk: o(f"v_add_u32 v{v2}, {rowstep}, v{v2}")
    dma_strip(sWQ, 0, 16, 131072)
    dma_strip(sWK, 65536, 16, 131072)
    o(f"v_lshrrev_b32 v{v3}, 2, v{vi}")
    o(f"v_lshl_add_u32 v{v3}, v{vg}, 3, v{v3}")
    o(f"v_lshlrev_b32 v{v3}, 6, v{v3}")
    o(f"v_and_b32 v{v4}, 3, v{vi}")
    o(f"v_lshl_add_u32 v{v3}, v{v4}, 3, v{v3}")
    o("s_waitcnt vmcnt(0)")
    o("s_barrier")
    o(f"s_lshr_b32 s{sT0}, s{sW}, 1")
    o(f"s_lshl_b32 s{sT0}, s{sT0}, 16")
    o(f"s_and_b32 s{sT1}, s{sW}, 1")
    o(f"s_lshl_b32 s{sT1}, s{sT1}, 5")
    o(f"s_add_u32 s{sT0}, s{sT0}, s{sT1}")
    for i in range(16):
        o(f"s_lshl_b32 s{sT2}, s{sW}, 2")
        o(f"s_add_u32 s{sT2}, s{sT2}, {i}")
        o(f"s_and_b32 s{sT2}, s{sT2}, 15")
        o(f"s_lshl_b32 s{sT2}, s{sT2}, 12")
        o(f"s_add_u32 s{sT2}, s{sT2}, s{sT0}")
        o(f"v_add_u32 v{v4}, s{sT2}, v{v3}")
        for half in range(2):
            d = (i * 2 + half) * 4
            o(f"ds_read_b64_tr_b16 {a(d,2)}, v{v4} offset:{half*2048}")
            o(f"ds_read_b64_tr_b16 {a(d+2,2)}, v{v4} offset:{half*2048+256}")
        if i % 4 == 3: o("s_waitcnt lgkmcnt(0)")
    o("s_barrier")
    dma_strip(sWV, 0, 16, 131072)
    o(f"v_lshrrev_b32 v{v1}, 3, v{vL}")
    o(f"v_lshlrev_b32 v{v1}, 11, v{v1}")
    o(f"v_and_b32 v{v2}, 7, v{vL}")
    o(f"v_lshl_add_u32 v{v1}, v{v2}, 4, v{v1}")
    o(f"s_lshl_b32 s{sT0}, s{sG}, 20")
    o(f"s_lshl_b32 s{sT1}, s{sJ}, 7")
    o(f"s_add_u32 s{sT0}, s{sT0}, s{sT1}")
    o(f"s_lshl_b32 s{sT1}, s{sW}, 18")
    o(f"s_add_u32 s{sT0}, s{sT0}, s{sT1}")
    o(f"v_add_u32 v{v1}, s{sT0}, v{v1}")
    dma_strip(sWO, 65536, 16, 16384)
    o("s_waitcnt vmcnt(0)")
    o("s_barrier")
    o(f"s_and_b32 s{sT0}, s{sW}, 1")
    o(f"s_lshl_b32 s{sT0}, s{sT0}, 5")
    for i in range(8):
        o(f"s_lshl_b32 s{sT2}, s{sW}, 2")
        o(f"s_add_u32 s{sT2}, s{sT2}, {i}")
        o(f"s_and_b32 s{sT2}, s{sT2}, 15")
        o(f"s_lshl_b32 s{sT2}, s{sT2}, 12")
        o(f"s_add_u32 s{sT2}, s{sT2}, s{sT0}")
        o(f"v_add_u32 v{v4}, s{sT2}, v{v3}")
        for half in range(2):
            d = 128 + (i * 2 + half) * 4
            o(f"ds_read_b64_tr_b16 {a(d,2)}, v{v4} offset:{half*2048}")
            o(f"ds_read_b64_tr_b16 {a(d+2,2)}, v{v4} offset:{half*2048+256}")
        if i % 4 == 3: o("s_waitcnt lgkmcnt(0)")
    o(f"v_lshrrev_b32 v{v3}, 2, v{vi}")
    o(f"v_lshl_add_u32 v{v3}, v{vg}, 2, v{v3}")
    o(f"v_lshlrev_b32 v{v3}, 7, v{v3}")
    o(f"v_and_b32 v{v4}, 3, v{vi}")
    o(f"v_lshl_add_u32 v{v3}, v{v4}, 3, v{v3}")
    o(f"s_lshl_b32 s{sT0}, s{sW}, 14")
    o(f"s_add_u32 s{sT0}, s{sT0}, 65536")
    o(f"v_add_u32 v{v4}, s{sT0}, v{v3}")
    for ct in range(4):
        for u in range(4):
            d = 192 + (ct * 4 + u) * 4
            o(f"ds_read_b64_tr_b16 {a(d,2)}, v{v4} offset:{u*4096+ct*32}")
            o(f"ds_read_b64_tr_b16 {a(d+2,2)}, v{v4} offset:{u*4096+2048+ct*32}")
        o("s_waitcnt lgkmcnt(0)")
    o("s_barrier")

    if hook:
        A.raw(hook)
        o(f"v_and_b32 v{vi}, 15, v{vL}"); o(f"v_lshrrev_b32 v{vg}, 4, v{vL}"); o(f"v_and_b32 v{vr}, 7, v{vL}")
    o(f"s_lshl_b32 s{sT0}, s{sW}, 12")
    o(f"v_add_u32 v{vE3}, s{sT0}, v{vL16}")
    o(f"v_lshrrev_b32 v{v1}, 1, v{vg}")
    o(f"v_lshlrev_b32 v{v1}, 8, v{v1}")
    o(f"v_lshl_add_u32 v{v1}, v{vr}, 4, v{v1}")
    o(f"s_lshr_b32 s{sT0}, s{sC}, 1")
    o(f"s_lshl_b32 s{sT0}, s{sT0}, 10")
    o(f"s_and_b32 s{sT1}, s{sW}, 1")
    o(f"s_lshl_b32 s{sT1}, s{sT1}, 9")
    o(f"s_add_u32 s{sT0}, s{sT0}, s{sT1}")
    o(f"s_and_b32 s{sT1}, s{sC}, 1")
    o(f"s_lshl_b32 s{sT1}, s{sT1}, 7")
    o(f"s_add_u32 s{sT0}, s{sT0}, s{sT1}")
    o(f"v_add_u32 v{vKMst}, s{sT0}, v{v1}")
    o(f"s_lshl_b32 s{sT0}, s{sHA}, 12")
    o(f"s_lshr_b32 s{sT1}, s{sW}, 1")
    o(f"s_lshl_b32 s{sT1}, s{sT1}, 11")
    o(f"s_add_u32 s{sT0}, s{sT0}, s{sT1}")
    o(f"v_add_u32 v{vQKst}, s{sT0}, v{vKMst}")
    o(f"s_lshl_b32 s{sT0}, s{sHA}, 11")
    o(f"s_lshl_b32 s{sT1}, s{sC}, 9")
    o(f"s_add_u32 s{sT0}, s{sT0}, s{sT1}")
    o(f"v_add_u32 v{vVst}, s{sT0}, v{vL16}")
    o(f"s_lshl_b32 s{sT0}, s{sW}, 11")
    o(f"v_add_u32 v{vVld}, s{sT0}, v{vL16}")
    o(f"s_lshl_b32 s{sT0}, s{sG}, 4")
    o(f"s_add_u32 s{sT0}, s{sT0}, s{sJ}")
    o(f"s_lshl_b32 s{sT0}, s{sT0}, 10")
    o(f"s_and_b32 s{sT1}, s{sW}, 1")
    o(f"s_lshl_b32 s{sT1}, s{sT1}, 9")
    o(f"s_add_u32 s{sT0}, s{sT0}, s{sT1}")
    o(f"s_lshr_b32 s{sT1}, s{sW}, 1")
    o(f"s_lshl_b32 s{sT1}, s{sT1}, 7")
    o(f"s_add_u32 s{sT0}, s{sT0}, s{sT1}")
    o(f"v_add_u32 v{vPst}, s{sT0}, v{v1}")
    o(f"v_lshlrev_b32 v{vPld}, 14, v{vg}")
    o(f"v_lshl_add_u32 v{vPld}, v{vi}, 4, v{vPld}")
    o(f"s_lshl_b32 s{sT0}, s{sJ}, 10")
    o(f"s_lshl_b32 s{sT1}, s{sW}, 8")
    o(f"s_add_u32 s{sT0}, s{sT0}, s{sT1}")
    o(f"v_add_u32 v{vPld}, s{sT0}, v{vPld}")
    o(f"v_add_u32 v{vMst}, s{sT0}, v{vL16}")
    o(f"v_lshlrev_b32 v{vKx}, 13, v{vi}")
    o(f"v_lshl_add_u32 v{vKx}, v{vg}, 4, v{vKx}")
    o(f"s_lshl_b32 s{sT0}, s{sHead}, 8")
    o(f"v_add_u32 v{vKx}, s{sT0}, v{vKx}")
    o(f"v_mov_b32 v{vLdsM}, v{vL16}")
    for d in range(4):
        o(f"v_mov_b32 v{vDelta+d}, 0")
        o(f"v_mov_b32 v{v1}, 0x3f80")
        o(f"v_cmp_eq_u32 vcc, {2*d}, v{vi}")
        o(f"v_cndmask_b32 v{vDelta+d}, v{vDelta+d}, v{v1}, vcc")
        o(f"v_mov_b32 v{v1}, 0x3f800000")
        o(f"v_cmp_eq_u32 vcc, {2*d+1}, v{vi}")
        o(f"v_cndmask_b32 v{vDelta+d}, v{vDelta+d}, v{v1}, vcc")
    o(f"v_mov_b32 v{v1}, 0xff800000")
    o(f"v_cmp_lt_u32 vcc, 31, v{vL}")
    o(f"v_cndmask_b32 v{vNeg}, 0, v{v1}, vcc")
    for r in range(1, 4): o(f"v_mov_b32 v{vNeg+r}, v{vNeg}")
    for r in range(4): o(f"v_mov_b32 v{vSent+r}, -1")
    o(f"s_mov_b32 s{sMaskQK}, 0xff"); o(f"s_mov_b32 s{sMaskQK+1}, 0xff")
    o(f"s_mov_b32 s{sSelV}, -1"); o(f"s_mov_b32 s{sSelV+1}, 0")
    import math
    cs = 128 ** -0.5 * math.log2(math.e)
    import struct
    o(f"s_mov_b32 s{sScale}, 0x{struct.unpack('<I', struct.pack('<f', cs))[0]:08x}")
    o(f"s_mov_b32 s{sScale+1}, s{sScale}")
    o(f"s_mov_b32 s{sLim}, 0x400000")
    o(f"s_mov_b32 s{sStep}, 0")
    def addbase(dst, off, extra_s=None):
        o(f"s_add_u32 s{dst}, s{sWS}, {off & 0xffffffff}")
        o(f"s_addc_u32 s{dst+1}, s{sWS+1}, 0")
        if extra_s is not None:
            o(f"s_add_u32 s{dst}, s{dst}, s{extra_s}")
            o(f"s_addc_u32 s{dst+1}, s{dst+1}, 0")
    o(f"s_lshl_b32 s{sT0}, s{sHead}, 13")
    o(f"s_add_u32 s{sT0}, s{sT0}, 4096")
    addbase(sKX, WS_K, sT0)
    o(f"s_lshl_b32 s{sT0}, s{sHead}, 13")
    o(f"s_add_u32 s{sT0}, s{sT0}, 4096")
    addbase(sVX, WS_VT, sT0)
    o(f"s_lshl_b32 s{sT0}, s{sHead}, 11")
    addbase(sKM, WS_KM, sT0)
    addbase(sVM, WS_VM, sT0)
    sCNT = 16
    addbase(sCNT, WS_CNT + cntoff)
    def kv_wait(chunk_sreg_expr_setup, target, tag):
        o(f"s_lshl_b32 s{sT0}, s{sT0}, 3"); o(f"s_add_u32 s{sT0}, s{sT0}, s{sG}"); o(f"s_lshl_b32 s{sT0}, s{sT0}, 7")
        o(f"v_mov_b32 v{vX+2}, s{sT0}")
        A.label(f"L_kvw_{tag}")
        o(f"global_load_dword v{vX+3}, v{vX+2}, {s(sCNT,2)} sc1")
        o("s_waitcnt vmcnt(0)")
        o(f"v_readfirstlane_b32 s{sT1}, v{vX+3}")
        o(f"s_cmp_ge_u32 s{sT1}, {target}")
        o(f"s_cbranch_scc1 L_kvw_{tag}_ok")
        o("s_sleep 4")
        o(f"s_sub_u32 s{sLim}, s{sLim}, 1")
        o(f"s_cbranch_scc0 L_kvw_{tag}")
        o(f"s_mov_b32 s{sLim}, 0")
        A.label(f"L_kvw_{tag}_ok")
    if KVCHK:
        o(f"s_mov_b32 s{sT0}, 0")
        kv_wait(None, 16, "0")
    def load_kx():
        for t in range(8):
            o(f"global_load_dwordx4 {v(vK+t*4,4)}, v{vL16}, {s(sKX,2)} offset:{t*1024-4096}")
    load_kx()
    if prof:
        o(f"s_lshl_b32 s{sT0}, s{sG}, 4")
        o(f"s_add_u32 s{sT0}, s{sT0}, s{sJ}")
        o(f"s_lshl_b32 s{sT0}, s{sT0}, 2")
        o(f"s_add_u32 s{sT0}, s{sT0}, s{sW}")
        o(f"s_lshl_b32 s{sT0}, s{sT0}, 12")
        addbase(sProf, WS_PROF, sT0)
    nst = [0]
    def stamp():
        if not prof: return
        k = nst[0]; nst[0] += 1
        o(f"{TIMER} {s(sTs + 2*k, 2)}")

    def check(regs, lab_ok, lab_retry, tmp):
        regs = list(regs)
        o(f"v_max3_u32 v{tmp}, v{regs[0]}, v{regs[1]}, v{regs[2]}")
        k = 3
        while k + 1 < len(regs):
            o(f"v_max3_u32 v{tmp}, v{tmp}, v{regs[k]}, v{regs[k+1]}"); k += 2
        if k < len(regs):
            o(f"v_max_u32 v{tmp}, v{tmp}, v{regs[k]}")
        o(f"v_cmp_eq_u32 vcc, -1, v{tmp}")
        o(f"s_cbranch_vccz {lab_ok}")
        o(f"s_sub_u32 s{sLim}, s{sLim}, 1")
        o(f"s_cbranch_scc1 {lab_ok}_to")
        o(f"s_branch {lab_retry}")
        A.label(f"{lab_ok}_to")
        o(f"s_mov_b32 s{sLim}, 0")
        A.label(lab_ok)


    sCnt = 98
    vOo = [112, 116, 120, 124, 192, 196, 200, 204, 216, 220, 224, 228]
    vPf = 252
    def merge(main, side, every, start=0):
        side = list(side); out = [];
        for k, m_ in enumerate(main):
            out.append(m_)
            if side and k >= start and (k - start) % every == every - 1: out.append(side.pop(0))
        return out + side
    def emit(L):
        for x in L: o(x)
    def check(regs, lab_ok, lab_retry, tmp, cnt=None):
        regs = list(regs)
        o(f"v_max3_u32 v{tmp}, v{regs[0]}, v{regs[1]}, v{regs[2]}")
        k = 3
        while k + 1 < len(regs):
            o(f"v_max3_u32 v{tmp}, v{tmp}, v{regs[k]}, v{regs[k+1]}"); k += 2
        if k < len(regs):
            o(f"v_max_u32 v{tmp}, v{tmp}, v{regs[k]}")
        o(f"v_cmp_eq_u32 vcc, -1, v{tmp}")
        o(f"s_cbranch_vccz {lab_ok}")
        if prof and cnt is not None: o(f"s_add_u32 s{sCnt+cnt}, s{sCnt+cnt}, 1")
        o(f"s_sub_u32 s{sLim}, s{sLim}, 1")
        o(f"s_cbranch_scc0 {lab_retry}")
        o(f"s_mov_b32 s{sLim}, 0")
        A.label(lab_ok)
    sM = 88
    def mpoll(loads, tag, cnt):
        n = len(loads)
        regs = [b + r for b, _ in loads for r in range(4)]
        o(f"v_max3_u32 v{vX}, v{regs[0]}, v{regs[1]}, v{regs[2]}")
        k = 3
        while k + 1 < len(regs):
            o(f"v_max3_u32 v{vX}, v{vX}, v{regs[k]}, v{regs[k+1]}"); k += 2
        if k < len(regs): o(f"v_max_u32 v{vX}, v{vX}, v{regs[k]}")
        o(f"v_cmp_eq_u32 vcc, -1, v{vX}")
        o(f"s_cbranch_vccz L_{tag}_ok")
        A.label(f"L_{tag}_retry")
        if prof: o(f"s_add_u32 s{sCnt+cnt}, s{sCnt+cnt}, 1")
        for i, (b, rest) in enumerate(loads):
            o(f"v_max3_u32 v{vX}, v{b}, v{b+1}, v{b+2}")
            o(f"v_max_u32 v{vX}, v{vX}, v{b+3}")
            o(f"v_cmp_eq_u32 vcc, -1, v{vX}")
            o(f"s_cbranch_vccz L_{tag}_sk{i}")
            o("s_mov_b64 exec, vcc")
            o(f"global_load_dwordx4 {v(b,4)}, {rest}")
            o("s_mov_b64 exec, -1")
            A.label(f"L_{tag}_sk{i}")
        o("s_waitcnt vmcnt(0)")
        o(f"v_max3_u32 v{vX}, v{regs[0]}, v{regs[1]}, v{regs[2]}")
        k = 3
        while k + 1 < len(regs):
            o(f"v_max3_u32 v{vX}, v{vX}, v{regs[k]}, v{regs[k+1]}"); k += 2
        if k < len(regs): o(f"v_max_u32 v{vX}, v{vX}, v{regs[k]}")
        o(f"v_cmp_eq_u32 vcc, -1, v{vX}")
        o(f"s_cbranch_vccz L_{tag}_ok")
        o(f"s_sub_u32 s{sLim}, s{sLim}, 1")
        o(f"s_cbranch_scc0 L_{tag}_retry")
        o(f"s_mov_b32 s{sLim}, 0")
        A.label(f"L_{tag}_ok")
    if prof:
        for k in range(4): o(f"s_mov_b32 s{sCnt+k}, 0")
    vPfo = 58
    o(f"s_lshl_b32 s{sT1}, s{sG}, 2"); o(f"s_add_u32 s{sT1}, s{sT1}, s{sHA}"); o(f"s_lshl_b32 s{sT1}, s{sT1}, 13")
    o(f"s_lshl_b32 s{sT2}, s{sC}, 11"); o(f"s_add_u32 s{sT1}, s{sT1}, s{sT2}")
    o(f"s_and_b32 s{sT2}, s{sW}, 1"); o(f"s_lshl_b32 s{sT2}, s{sT2}, 10"); o(f"s_add_u32 s{sT1}, s{sT1}, s{sT2}")
    o(f"v_add_u32 v{vPfo}, s{sT1}, v{vL16}")
    o(f"s_cmp_lt_u32 s{sW}, 2")
    sPF = 18
    o(f"s_mov_b32 s{sT0}, {WS_K + 2*262144}")
    o(f"s_mov_b32 s{sT1}, {WS_VT + 2*262144}")
    o(f"s_cselect_b32 s{sT0}, s{sT0}, s{sT1}")
    o(f"s_add_u32 s{sPF}, s{sWS}, s{sT0}"); o(f"s_addc_u32 s{sPF+1}, s{sWS+1}, 0")
    def kx_loads():
        if NOK: return ["s_nop 0"] * 8
        return [f"global_load_dwordx4 {v(vK+t*4,4)}, v{vL16}, {s(sKX,2)} offset:{t*1024-4096}" for t in range(8)]
    def vx_loads():
        if NOV: return ["s_nop 0"] * 8
        return [f"global_load_dwordx4 {v(vV+4*t,4)}, v{vL16}, {s(sVX,2)} offset:{t*1024-4096}" for t in range(8)]
    vRd = [None, 232, 233, 234]
    for hs in (1, 2, 3):
        o(f"v_add_u32 v{vRd[hs]}, {hs*4096}, v{vE3}")
        o(f"v_and_b32 v{vRd[hs]}, 0x3fff, v{vRd[hs]}")
    vVw, vVr, vRw = 235, 59, 15
    o(f"s_lshl_b32 s{sT0}, s{sW}, 10")
    o(f"v_add_u32 v{vVw}, s{sT0}, v{vL16}")
    o(f"v_and_b32 v{vVr}, 31, v{vL}")
    o(f"v_lshlrev_b32 v{vVr}, 4, v{vVr}")
    o(f"v_lshrrev_b32 v{vX+2}, 5, v{vL}")
    o(f"v_lshl_add_u32 v{vVr}, v{vX+2}, 10, v{vVr}")
    vL4 = vX + 3
    o(f"v_lshlrev_b32 v{vL4}, 2, v{vL}")
    o(f"s_lshl_b32 s{sT0}, s{sW}, 8")
    o(f"v_add_u32 v{vRw}, s{sT0}, v{vL4}")
    vRr = [None, 1, 2, 3]
    for hs in (1, 2, 3):
        o(f"s_add_u32 s{sT0}, s{sW}, {hs}"); o(f"s_and_b32 s{sT0}, s{sT0}, 3"); o(f"s_lshl_b32 s{sT0}, s{sT0}, 8")
        o(f"v_add_u32 v{vRr[hs]}, s{sT0}, v{vL4}")
    vOnes = 4
    for r in range(4): o(f"v_mov_b32 v{vOnes+r}, 0x3f803f80")

    LDS_R = 36864
    A.label("L_step")
    nst[0] = 0
    if KVCHK:
        o(f"s_add_u32 s{sT0}, s{sStep}, 2"); o(f"s_and_b32 s{sT1}, s{sT0}, 7"); o(f"s_cmp_lg_u32 s{sT1}, 0"); o("s_cbranch_scc1 L_kvskip")
        o(f"s_cmp_ge_u32 s{sT0}, 64"); o("s_cbranch_scc1 L_kvskip")
        o(f"v_readfirstlane_b32 s{sT1}, v{vFlag}")
        o(f"s_cmp_ge_u32 s{sT1}, 4"); o("s_cbranch_scc1 L_kvskip")
        o(f"s_lshr_b32 s{sT0}, s{sT0}, 3")
        kv_wait(None, 4, "n")
        A.label("L_kvskip")
    o(f"s_and_b32 s{sSlot}, s{sStep}, 3")
    o(f"s_lshl_b32 s{sT0}, s{sSlot}, 17")
    o(f"s_lshl_b32 s{sT1}, s{sG}, 14")
    o(f"s_add_u32 s{sT2}, s{sT0}, s{sT1}")
    addbase(sMEMc, WS_RMEM, sT2)
    e3_loads = [(vB + 4*u, f"v{vE3}, {s(sMEMc,2)} offset:{u*1024} sc1") for u in range(4)]
    def qk_mfma(i, first=False):
        for half, acc in ((0, vA0), (1, vA1)):
            c = "0" if first else v(acc, 4)
            o(f"v_mfma_f32_16x16x32_bf16 {v(acc,4)}, {a((i*2+half)*4,4)}, {v(vB+4*i,4)}, {c}")
    def salu_bases():
        addbase(sQK, WS_RQK, sT2)
        o(f"s_lshl_b32 s{sT3}, s{sStep}, 17")
        addbase(sPART, WS_PARTF, sT3)
        o(f"s_add_u32 s{sPART2}, s{sPART}, 65536"); o(f"s_addc_u32 s{sPART2+1}, s{sPART+1}, 0")
        o(f"s_lshr_b32 s{sT3}, s{sT2}, 1")
        addbase(sVR, WS_RV, sT3)
        o(f"s_add_u32 s{sT3}, s{sStep}, 1"); o(f"s_and_b32 s{sT3}, s{sT3}, 3"); o(f"s_lshl_b32 s{sT3}, s{sT3}, 17"); o(f"s_add_u32 s{sT3}, s{sT3}, s{sT1}")
        addbase(sMEMn, WS_RMEM, sT3)
        o(f"s_xor_b32 s{sT3}, s{sT0}, {2<<17}")
        o(f"s_add_u32 s{sT3}, s{sT3}, s{sT1}")
        addbase(sRq, WS_RQK, sT3)
        o(f"s_lshr_b32 s{sT3}, s{sT3}, 1")
        addbase(sRv, WS_RV, sT3)
        o(f"s_add_u32 s{sT3}, s{sStep}, 3"); o(f"s_and_b32 s{sT3}, s{sT3}, 3"); o(f"s_lshl_b32 s{sT3}, s{sT3}, 17"); o(f"s_add_u32 s{sT3}, s{sT3}, s{sT1}")
        addbase(sRm, WS_RMEM, sT3)
    def simple_poll(loads, tag, cnt, first_wait):
        regs = [b + r for b, _ in loads for r in range(4)]
        o(f"s_waitcnt vmcnt({first_wait})")
        o(f"s_branch L_{tag}_c")
        A.label(f"L_{tag}_r")
        for b, rest in loads: o(f"global_load_dwordx4 {v(b,4)}, {rest}")
        o("s_waitcnt vmcnt(0)")
        A.label(f"L_{tag}_c")
        check(regs, f"L_{tag}_ok", f"L_{tag}_r", vX, cnt)
    if E3_SALU_FIRST: salu_bases()
    stamp()
    for b, rest in e3_loads: o(f"global_load_dwordx4 {v(b,4)}, {rest}")
    if not E3_SALU_FIRST: salu_bases()
    simple_poll(e3_loads, "e3", 0, 0)
    if SIG:
        o(f"s_sub_u32 s{sT3}, s{sStep}, 1"); o(f"s_cbranch_scc1 L_nosig")
        o(f"s_and_b32 s{sT0}, s{sT3}, 15"); o(f"s_cmp_lg_u32 s{sT0}, s{sJ}"); o("s_cbranch_scc1 L_nosig")
        o(f"s_lshl_b32 s{sT0}, s{sT3}, 7"); o(f"s_add_u32 s{sT0}, s{sT0}, {CNT_REC}")
        o(f"v_mov_b32 v{vX+2}, s{sT0}"); o(f"v_mov_b32 v{vX+3}, 1")
        o("s_mov_b64 exec, 1")
        o(f"global_atomic_add v{vX+2}, v{vX+3}, {s(sCNT,2)}")
        o("s_mov_b64 exec, -1")
        A.label("L_nosig")
    for u, (b, rest) in enumerate(e3_loads):
        o(f"ds_write_b128 v{vE3}, {v(b,4)} offset:{LDS_MEM + u*1024}")
    for u in range(4): qk_mfma(u, first=(u == 0))
    stamp()
    o("s_waitcnt lgkmcnt(0)")
    o("s_barrier")
    for i in range(4, 16):
        o(f"ds_read_b128 {v(vB+4*i,4)}, v{vRd[i//4]} offset:{LDS_MEM + (i%4)*1024}")
    vxl = vx_loads()
    for i in range(4, 16):
        o(f"s_waitcnt lgkmcnt({15-i})")
        qk_mfma(i)
        if i % VSP == VSP - 1 and vxl: o(vxl.pop(0))
    stamp()
    for r in range(4):
        o(f"v_add_f32_dpp v{vA0+r}, v{vA1+r}, v{vA0+r} row_ror:8 row_mask:0xf bank_mask:0xf")
    R = vX + 4
    o(f"v_cvt_pk_bf16_f32 v{R}, v{vA0}, v{vA0+1}")
    o(f"v_cvt_pk_bf16_f32 v{R+1}, v{vA0+2}, v{vA0+3}")
    o(f"v_permlane16_swap_b32 v{R}, v{R+2}")
    o(f"v_permlane16_swap_b32 v{R+1}, v{R+3}")
    o(f"s_mov_b64 exec, {s(sMaskQK,2)}")
    o(f"global_store_dwordx4 v{vQKst}, {v(R,4)}, {s(sQK,2)}{st_fast}")
    o("s_mov_b64 exec, -1")
    stamp()
    e1_loads = [(vQ + 4*cp, f"v{vE3}, {s(sQK,2)} offset:{cp*1024} sc1") for cp in range(2)] + [(vKm + 4*cp, f"v{vE3}, {s(sQK,2)} offset:{2048+cp*1024} sc1") for cp in range(2)]
    def e1_issue():
        for b, rest in e1_loads: o(f"global_load_dwordx4 {v(b,4)}, {rest}")
    for i in range(8):
        for half, acc in ((0, vAv0), (1, vAv1)):
            c = "0" if i == 0 else v(acc, 4)
            o(f"v_mfma_f32_16x16x32_bf16 {v(acc,4)}, {v(vB+4*i,4)}, {a(128+(i*2+half)*4,4)}, {c}")
        if vxl and i % 2 == 1: o(vxl.pop(0))
        if i == E1_AT:
            emit(vxl); vxl = []
            e1_issue()
    emit(vxl)
    for r in range(4):
        o(f"v_cndmask_b32 v{vAv0+r}, v{vAv1+r}, v{vAv0+r}, {s(sSelV,2)}")
    o(f"ds_write_b128 v{vVw}, {v(vAv0,4)} offset:{LDS_V}")
    o("s_waitcnt lgkmcnt(0)")
    o("s_barrier")
    o(f"s_cmp_lg_u32 s{sW}, 0")
    o("s_cbranch_scc1 L_vred_skip")
    T = vA0
    for k, off in enumerate((0, 512, 2048, 2560)):
        o(f"ds_read_b128 {v(T+4*k,4)}, v{vVr} offset:{LDS_V+off}")
    o("s_waitcnt lgkmcnt(0)")
    for r in range(4):
        o(f"v_add_f32 v{T+r}, v{T+r}, v{T+4+r}")
        o(f"v_add_f32 v{T+8+r}, v{T+8+r}, v{T+12+r}")
    for r in range(4):
        o(f"v_add_f32 v{T+r}, v{T+r}, v{T+8+r}")
    o(f"v_cvt_pk_bf16_f32 v{R}, v{T}, v{T+1}")
    o(f"v_cvt_pk_bf16_f32 v{R+1}, v{T+2}, v{T+3}")
    o(f"v_permlane32_swap_b32 v{R}, v{R+2}")
    o(f"v_permlane32_swap_b32 v{R+1}, v{R+3}")
    o(f"s_mov_b64 exec, {s(sSelV,2)}")
    o(f"global_store_dwordx4 v{vVst}, {v(R,4)}, {s(sVR,2)}{st_fast}")
    o("s_mov_b64 exec, -1")
    o("s_waitcnt vmcnt(1)")
    o("s_branch L_e1_c")
    A.label("L_e1_r")
    e1_issue()
    A.label("L_vred_skip")
    o("s_waitcnt vmcnt(0)")
    A.label("L_e1_c")
    check([b + r for b, _ in e1_loads for r in range(4)], "L_e1_ok", "L_e1_r", vX, 1)
    stamp()
    def M32(d, A_, B_, C_): return f"v_mfma_f32_16x16x32_bf16 {v(d,4)}, {A_}, {B_}, {C_}"
    def rot(dst, srcr): return [f"v_mov_b32_dpp v{dst+r}, v{srcr+r} row_ror:8 row_mask:0xf bank_mask:0xf" for r in range(4)]
    Kf = lambda kt, u: v(vK + (kt*4+u)*4, 4)
    seq = []
    seq += [M32(vSx, Kf(0,0), v(vQ,4), "0")] + rot(vQr, vQ)[:2]
    seq += [M32(vSx+4, Kf(1,0), v(vQ,4), "0")] + rot(vQr, vQ)[2:]
    seq += [M32(vSm, v(vKm,4), v(vQ,4), v(vNeg,4))] + rot(vQr+4, vQ+4)[:2]
    seq += [M32(vSx, Kf(0,2), v(vQ+4,4), v(vSx,4))] + rot(vQr+4, vQ+4)[2:]
    seq += [M32(vSx+4, Kf(1,2), v(vQ+4,4), v(vSx+4,4))] + rot(vKr, vKm)[:2]
    seq += [M32(vSm, v(vKm+4,4), v(vQ+4,4), v(vSm,4))] + rot(vKr, vKm)[2:]
    seq += [M32(vSx, Kf(0,1), v(vQr,4), v(vSx,4))] + rot(vKr+4, vKm+4)[:2]
    seq += [M32(vSx+4, Kf(1,1), v(vQr,4), v(vSx+4,4))] + rot(vKr+4, vKm+4)[2:]
    seq += [M32(vSx, Kf(0,3), v(vQr+4,4), v(vSx,4))]
    seq += [M32(vSx+4, Kf(1,3), v(vQr+4,4), v(vSx+4,4))]
    seq += [M32(vSm, v(vKr,4), v(vQr,4), v(vSm,4))]
    seq += [M32(vSm, v(vKr+4,4), v(vQr+4,4), v(vSm,4))]
    emit(seq)
    if not FIXKV:
        o(f"s_add_u32 s{sKX}, s{sKX}, 262144"); o(f"s_addc_u32 s{sKX+1}, s{sKX+1}, 0")
    vm_loads = [(vVm + 4*mm, f"v{vVld}, {s(sVR,2)} offset:{mm*1024} sc1") for mm in range(2)]
    for b, rest in vm_loads: o(f"global_load_dwordx4 {v(b,4)}, {rest}")
    m, t = vX + 1, vX + 2
    Sall = list(range(vSx, vSx + 8)) + list(range(vSm, vSm + 4))
    m2 = vX + 3
    o(f"v_max3_f32 v{m}, v{Sall[0]}, v{Sall[1]}, v{Sall[2]}")
    o(f"v_max3_f32 v{m2}, v{Sall[4]}, v{Sall[5]}, v{Sall[6]}")
    o(f"v_max3_f32 v{m}, v{m}, v{Sall[3]}, v{Sall[7]}")
    o(f"v_max3_f32 v{m2}, v{m2}, v{Sall[8]}, v{Sall[9]}")
    o(f"v_max3_f32 v{m}, v{m}, v{Sall[10]}, v{Sall[11]}")
    o(f"v_max_f32 v{m}, v{m}, v{m2}")
    for sw in ("16", "32"):
        o(f"v_mov_b32 v{t}, v{m}")
        o(f"v_permlane{sw}_swap_b32 v{m}, v{t}")
        o(f"v_max_f32 v{m}, v{m}, v{t}")
    mm_ = vX + 2
    o(f"v_mul_f32 v{mm_}, s{sScale}, v{m}")
    kxl = kx_loads()
    main = []
    for r in Sall[::2]: main.append(f"v_pk_fma_f32 {v(r,2)}, {v(r,2)}, {s(sScale,2)}, {v(mm_,2)} op_sel_hi:[1,1,0] neg_lo:[0,0,1] neg_hi:[0,0,1]")
    for k_, r in enumerate(Sall):
        main.append(f"v_exp_f32 v{r}, v{r}")
    emit(merge(main, [kxl.pop(0), kxl.pop(0)], 7))
    o(f"v_cvt_pk_bf16_f32 v{vPx}, v{vSx}, v{vSx+1}")
    o(f"v_cvt_pk_bf16_f32 v{vPx+1}, v{vSx+2}, v{vSx+3}")
    o(f"v_cvt_pk_bf16_f32 v{vPx+2}, v{vSx+4}, v{vSx+5}")
    o(f"v_cvt_pk_bf16_f32 v{vPx+3}, v{vSx+6}, v{vSx+7}")
    o(f"v_cvt_pk_bf16_f32 v{vPmA}, v{vSm}, v{vSm+1}")
    o(f"v_cvt_pk_bf16_f32 v{vPmA+1}, v{vSm+2}, v{vSm+3}")
    stamp()
    vLs = vSx
    pv = [M32(vO+4*tt, v(vV+4*tt,4), v(vPx,4), "0") for tt in range(8)]
    side = [f"v_mov_b32 v{vX+4}, v{vPmA}", f"v_mov_b32 v{vX+5}, v{vPmA+1}", f"v_mov_b32 v{vPmB}, 0", f"v_mov_b32 v{vPmB+1}, 0",
            f"v_permlane32_swap_b32 v{vPmB}, v{vX+4}", f"v_permlane32_swap_b32 v{vPmB+1}, v{vX+5}", kxl.pop(0)]
    emit(merge(pv, side, 1))
    o(M32(vLs, v(vOnes,4), v(vPx,4), "0"))
    o(f"v_mfma_f32_16x16x16_bf16 {v(vLs,4)}, {v(vOnes,2)}, {v(vPmA,2)}, {v(vLs,4)}")
    simple_poll(vm_loads, "vm", 2, 3)
    stamp()
    if KVCHK:
        o(f"s_add_u32 s{sT0}, s{sStep}, 3"); o(f"s_and_b32 s{sT1}, s{sT0}, 7"); o(f"s_cmp_lg_u32 s{sT1}, 0"); o("s_cbranch_scc1 L_nofl")
        o(f"s_lshr_b32 s{sT0}, s{sT0}, 3"); o(f"s_lshl_b32 s{sT0}, s{sT0}, 3"); o(f"s_add_u32 s{sT0}, s{sT0}, s{sG}"); o(f"s_lshl_b32 s{sT0}, s{sT0}, 7")
        o(f"v_mov_b32 v{vFlag}, s{sT0}")
        o(f"global_load_dword v{vFlag}, v{vFlag}, {s(sCNT,2)} sc1")
        A.label("L_nofl")
    o(f"s_and_b32 s{sT0}, s{sStep}, 15"); o(f"s_cmp_lg_u32 s{sT0}, s{sJ}"); o("s_cbranch_scc1 L_nopub")
    for cp in range(2): o(f"global_store_dwordx4 v{vL16}, {v(vKm+4*cp,4)}, {s(sKM,2)} offset:{cp*1024}" + (" sc1" if SIG else ""))
    for cp in range(2): o(f"global_store_dwordx4 v{vL16}, {v(vVm+4*cp,4)}, {s(sVM,2)} offset:{cp*1024}" + (" sc1" if SIG else ""))
    A.label("L_nopub")
    if LAST_SHORT:
        o(f"s_cmp_eq_u32 s{sStep}, {nsteps-1}")
        o("s_cbranch_scc1 L_rec_last")
    if PF: o(f"global_load_dwordx4 {v(vPf,4)}, v{vPfo}, {s(sPF,2)}")
    def pvm(tt):
        c, tv = tt >> 1, tt & 1
        pm = vPmB if (c & 1) else vPmA
        return f"v_mfma_f32_16x16x16_bf16 {v(vO+4*tt,4)}, {v(vVm+4*(c>>1)+2*tv,2)}, {v(pm,2)}, {v(vO+4*tt,4)}"
    def cvt(tt):
        u, h = tt >> 1, tt & 1
        return [f"v_cvt_pk_bf16_f32 v{vOb+4*u+2*h}, v{vO+4*tt}, v{vO+4*tt+1}", f"v_cvt_pk_bf16_f32 v{vOb+4*u+2*h+1}, v{vO+4*tt+2}, v{vO+4*tt+3}"]
    vCa = [16, 20, 24, 28]
    for tt in range(3): o(pvm(tt))
    l_ = vX + 1
    def cm(ct, u):
        c = "0" if u == 0 else v(vCa[ct], 4)
        return f"v_mfma_f32_16x16x32_bf16 {v(vCa[ct],4)}, {a(192+(ct*4+u)*4,4)}, {v(vOb+4*u,4)}, {c}"
    pend = []
    for tt in range(8):
        if tt + 3 < 8: o(pvm(tt + 3))
        cv = cvt(tt)
        o(cv[0])
        if pend: o(pend.pop(0))
        o(cv[1])
        if pend: o(pend.pop(0))
        if tt == 0: o(f"v_rcp_f32 v{l_}, v{vLs}")
        if tt % 2 == 1:
            pend += [cm(ct, tt >> 1) for ct in range(4)]
            if kxl: o(kxl.pop(0))
    emit(pend)
    for ct in range(4):
        pass
    o(f"v_mov_b32 v{vX+2}, v{l_}")
    for ct in range(4):
        o(f"v_pk_mul_f32 {v(vCa[ct],2)}, {v(vCa[ct],2)}, {v(vX+2,2)} op_sel_hi:[1,0]")
        o(f"v_pk_mul_f32 {v(vCa[ct]+2,2)}, {v(vCa[ct]+2,2)}, {v(vX+2,2)} op_sel_hi:[1,0]")
        o(f"ds_write_b128 v{vVw}, {v(vCa[ct],4)} offset:{LDS_O+ct*4096}")
    while kxl: o(kxl.pop(0))
    o("s_waitcnt lgkmcnt(0)")
    o("s_barrier")
    stamp()
    Rr = [112, 116, 120, 124]
    for sw in range(4): o(f"ds_read_b128 {v(Rr[sw],4)}, v{vE3} offset:{LDS_O+sw*1024}")
    vC = Rr[0]
    o("s_waitcnt lgkmcnt(2)")
    o(f"v_pk_add_f32 {v(Rr[0],2)}, {v(Rr[0],2)}, {v(Rr[1],2)}"); o(f"v_pk_add_f32 {v(Rr[0]+2,2)}, {v(Rr[0]+2,2)}, {v(Rr[1]+2,2)}")
    o("s_waitcnt lgkmcnt(0)")
    o(f"v_pk_add_f32 {v(Rr[2],2)}, {v(Rr[2],2)}, {v(Rr[3],2)}"); o(f"v_pk_add_f32 {v(Rr[2]+2,2)}, {v(Rr[2]+2,2)}, {v(Rr[3]+2,2)}")
    o(f"v_pk_add_f32 {v(Rr[0],2)}, {v(Rr[0],2)}, {v(Rr[2],2)}"); o(f"v_pk_add_f32 {v(Rr[0]+2,2)}, {v(Rr[0]+2,2)}, {v(Rr[2]+2,2)}")
    o(f"v_cvt_pk_bf16_f32 v{R}, v{vC}, v{vC+1}")
    o(f"v_cvt_pk_bf16_f32 v{R+1}, v{vC+2}, v{vC+3}")
    o(f"v_permlane16_swap_b32 v{R}, v{R+2}")
    o(f"v_permlane16_swap_b32 v{R+1}, v{R+3}")
    o(f"s_mov_b64 exec, {s(sMaskQK,2)}")
    if EP == 2:
        o("s_waitcnt vmcnt(0)")
        o(f"{TIMER} {s(sTs + 2*5, 2)}")
    o(f"global_store_dwordx4 v{vPst}, {v(R,4)}, {s(sPART,2)} sc1")
    stamp()
    if EP == 2:
        o("s_waitcnt vmcnt(0)")
        o(f"{TIMER} {s(sTs + 2*4, 2)}")
    o(f"global_store_dwordx4 v{vQKst}, {v(vSent,4)}, {s(sRq,2)}{st_fast}")
    o(f"s_mov_b64 exec, 0xffff")
    o(f"global_store_dwordx4 v{vMst}, {v(vSent,4)}, {s(sRm,2)}{st_fast}")
    o(f"s_cmp_lg_u32 s{sW}, 0")
    o("s_cbranch_scc1 L_norv")
    o(f"s_mov_b64 exec, {s(sSelV,2)}")
    o(f"global_store_dwordx4 v{vVst}, {v(vSent,4)}, {s(sRv,2)}{st_fast}")
    A.label("L_norv")
    o("s_mov_b64 exec, -1")
    if not FIXKV:
        o(f"s_add_u32 s{sVX}, s{sVX}, 262144"); o(f"s_addc_u32 s{sVX+1}, s{sVX+1}, 0")
    o(f"s_add_u32 s{sKM}, s{sKM}, 65536"); o(f"s_addc_u32 s{sKM+1}, s{sKM+1}, 0")
    o(f"s_add_u32 s{sVM}, s{sVM}, 65536"); o(f"s_addc_u32 s{sVM+1}, s{sVM+1}, 0")
    if E2_DELAY: o(f"s_sleep {E2_DELAY}")
    sets = [vB + 8 * k for k in range(E2_DEPTH)]
    def e2_issue(b):
        o(f"global_load_dwordx4 {v(b,4)}, v{vPld}, {s(sPART,2)} {E2F}")
        o(f"global_load_dwordx4 {v(b+4,4)}, v{vPld}, {s(sPART2,2)} {E2F}")
    if EP: o(f"{TIMER} {s(sTs + 2*2, 2)}")
    for k, b in enumerate(sets):
        e2_issue(b)
        if k + 1 < len(sets) and E2_SP: o(f"s_sleep {E2_SP}")
    if EP:
        o(f"s_waitcnt vmcnt({2*(len(sets)-1)})")
        o(f"{TIMER} {s(sTs + 2*3, 2)}")
    A.label("L_e2")
    for k, b in enumerate(sets):
        o(f"s_waitcnt vmcnt({2*(len(sets)-1)})")
        regs = list(range(b, b + 8))
        o(f"v_max3_u32 v{vX}, v{regs[0]}, v{regs[1]}, v{regs[2]}")
        o(f"v_max3_u32 v{vX}, v{vX}, v{regs[3]}, v{regs[4]}")
        o(f"v_max3_u32 v{vX}, v{vX}, v{regs[5]}, v{regs[6]}")
        o(f"v_max_u32 v{vX}, v{vX}, v{regs[7]}")
        o(f"v_cmp_eq_u32 vcc, -1, v{vX}")
        o(f"s_cbranch_vccz L_e2_ok{k}")
        if prof: o(f"s_add_u32 s{sCnt+3}, s{sCnt+3}, 1")
        e2_issue(b)
    o(f"s_sub_u32 s{sLim}, s{sLim}, 1")
    o(f"s_cbranch_scc0 L_e2")
    o(f"s_mov_b32 s{sLim}, 0")
    D = vA1
    for k, b in enumerate(sets):
        A.label(f"L_e2_ok{k}")
        o(f"v_mfma_f32_16x16x32_bf16 {v(D,4)}, {v(vDelta,4)}, {v(b,4)}, 0")
        o(f"v_mfma_f32_16x16x32_bf16 {v(D,4)}, {v(vDelta,4)}, {v(b+4,4)}, {v(D,4)}")
        if k + 1 < len(sets): o("s_branch L_e2_done")
    A.label("L_e2_done")
    o(f"s_add_u32 s{sPF}, s{sPF}, 262144"); o(f"s_addc_u32 s{sPF+1}, s{sPF+1}, 0")
    stamp()
    o("s_nop 7")
    o(f"v_cvt_pk_bf16_f32 v{R}, v{D}, v{D+1}")
    o(f"v_cvt_pk_bf16_f32 v{R+1}, v{D+2}, v{D+3}")
    o(f"v_permlane16_swap_b32 v{R}, v{R+2}")
    o(f"v_permlane16_swap_b32 v{R+1}, v{R+3}")
    o(f"s_mov_b64 exec, 0xffff")
    o(f"global_store_dwordx4 v{vMst}, {v(R,4)}, {s(sMEMn,2)}{st_fast}")
    o("s_mov_b64 exec, -1")
    stamp()
    if E3_DELAY: o(f"s_sleep {E3_DELAY}")
    if prof:
        o("s_waitcnt lgkmcnt(0)")
        for k in range(nst[0]):
            o(f"v_writelane_b32 v{vX+8}, s{sTs+2*k}, {k}")
        for k in range(4):
            o(f"v_writelane_b32 v{vX+8}, s{sCnt+k}, {11+k}")
        o(f"v_writelane_b32 v{vX+8}, s92, 15")
        o(f"s_lshl_b32 s{sT0}, s{sW}, 12")
        o(f"s_lshl_b32 s{sT1}, s{sStep}, 6")
        o(f"s_add_u32 s{sT0}, s{sT0}, s{sT1}")
        o(f"s_add_u32 s{sT0}, s{sT0}, 40960")
        o(f"v_lshlrev_b32 v{vX+9}, 2, v{vL}")
        o(f"v_add_u32 v{vX+9}, s{sT0}, v{vX+9}")
        o("s_mov_b64 exec, 0xffff")
        o(f"ds_write_b32 v{vX+9}, v{vX+8}")
        o("s_mov_b64 exec, -1")
    o(f"s_add_u32 s{sStep}, s{sStep}, 1")
    o(f"s_cmp_lt_u32 s{sStep}, {nsteps}")
    o("s_cbranch_scc1 L_step")
    o("s_branch L_rec_fin")
    A.label("L_rec_last")
    if SIG:
        o("s_waitcnt vmcnt(0)")
        o(f"s_and_b32 s{sT0}, s{sStep}, 15"); o(f"s_cmp_lg_u32 s{sT0}, s{sJ}"); o("s_cbranch_scc1 L_rec_fin")
        o(f"s_lshl_b32 s{sT0}, s{sStep}, 7"); o(f"s_add_u32 s{sT0}, s{sT0}, {CNT_REC}")
        o(f"v_mov_b32 v{vX+2}, s{sT0}"); o(f"v_mov_b32 v{vX+3}, 1")
        o("s_mov_b64 exec, 1")
        o(f"global_atomic_add v{vX+2}, v{vX+3}, {s(sCNT,2)}")
        o("s_mov_b64 exec, -1")
    A.label("L_rec_fin")
    if prof:
        o("s_waitcnt lgkmcnt(0)")
        o(f"s_lshl_b32 s{sT0}, s{sW}, 12")
        o(f"s_add_u32 s{sT0}, s{sT0}, 40960")
        o(f"v_add_u32 v{vX+9}, s{sT0}, v{vL16}")
        for k in range(4):
            o(f"ds_read_b128 {v(vB+4*k,4)}, v{vX+9} offset:{k*1024}")
        o("s_waitcnt lgkmcnt(0)")
        for k in range(4):
            o(f"global_store_dwordx4 v{vL16}, {v(vB+4*k,4)}, {s(sProf,2)} offset:{k*1024}")
    o("s_waitcnt vmcnt(0)")
    A.label("L_rec_end")
    o("s_endpgm")
    txt = A.finish()
    if embedded:
        import re
        return re.sub(r"\bL_", pfx + "L_", txt)
    return kernel_head(name) + txt + kernel_desc(name, 256, 256)

if __name__ == "__main__":
    import sys
    fast = "slow" not in sys.argv
    prof = "prof" in sys.argv
    ng = 256 if any(x.startswith("X4=1") for x in sys.argv) else 128
    hdr = f"; @launch kernel=rec_kernel grid=({ng},1,1) block=(256,1,1) lds=131072\n.amdgcn_target \"amdgcn-amd-amdhsa--gfx950\"\n.text\n"
    kw = {}
    for x in sys.argv[1:]:
        if "=" in x:
            k_, v_ = x.split("=");
            if k_ != "out": kw[k_] = int(v_) if v_.isdigit() else v_
    outn = [x.split("=")[1] for x in sys.argv if x.startswith("out=")]
    open(outn[0] if outn else "rec_test.s", "w").write(hdr + gen_rec(fast=fast, prof=prof, **kw))
```

```python
from asmlib import *
from layout import *
from k_small import fbits, gfun
import math

def attn_body(A, sWS, sSeg, sHead, sQt, vL, lab, base=8, sc1=False, nt=0):
    NT = ' nt' if nt else ''
    o = A
    r = base
    vQ = r; r += 16
    vK = r; r += 32
    vV = r; r += 32
    vKm = r; r += 8
    vVm = r; r += 8
    vS = r; r += 12
    vD = r; r += 4
    vP = r; r += 8
    vLs = r; r += 4
    vOn = r; r += 4
    vT = r; r += 12
    vO = vK
    sA, sB, sC, sD = 40, 42, 44, 46
    sT0, sT1, sSc, sMk = 48, 49, 50, 52
    l16 = vT + 10; t0, t1 = vT + 8, vT + 9
    o(f"v_lshlrev_b32 v{l16}, 4, v{vL}")
    o(f"s_lshl_b32 s{sT0}, s{sSeg}, 5"); o(f"s_add_u32 s{sT0}, s{sT0}, s{sHead}")
    o(f"s_lshl_b32 s{sT1}, s{sT0}, 13")
    o(f"s_add_u32 s{sT1}, s{sT1}, 4096")
    def base_(dst, off, extra):
        o(f"s_add_u32 s{dst}, s{sWS}, s{extra}"); o(f"s_addc_u32 s{dst+1}, s{sWS+1}, 0")
        o(f"s_add_u32 s{dst}, s{dst}, {off}"); o(f"s_addc_u32 s{dst+1}, s{dst+1}, 0")
    base_(sA, WS_K, sT1); base_(sB, WS_VT, sT1)
    o(f"s_lshl_b32 s{sC}, s{sQt}, 12"); o(f"s_add_u32 s{sT1}, s{sT1}, s{sC}"); o(f"s_sub_u32 s{sT1}, s{sT1}, 4096")
    base_(sC, WS_Q, sT1)
    o(f"s_lshl_b32 s{sT1}, s{sT0}, 11")
    base_(sD, WS_KM, sT1)
    for u in range(4): o(f"global_load_dwordx4 {v(vQ+4*u,4)}, v{l16}, {s(sC,2)} offset:{u*1024}{NT}")
    for t in range(8): o(f"global_load_dwordx4 {v(vK+4*t,4)}, v{l16}, {s(sA,2)} offset:{t*1024-4096}{NT}")
    for c in range(2): o(f"global_load_dwordx4 {v(vKm+4*c,4)}, v{l16}, {s(sD,2)} offset:{c*1024}{NT}")
    o(f"s_add_u32 s{sD}, s{sD}, {WS_VM - WS_KM}"); o(f"s_addc_u32 s{sD+1}, s{sD+1}, 0")
    for c in range(2): o(f"global_load_dwordx4 {v(vVm+4*c,4)}, v{l16}, {s(sD,2)} offset:{c*1024}{NT}")
    for t in range(8): o(f"global_load_dwordx4 {v(vV+4*t,4)}, v{l16}, {s(sB,2)} offset:{t*1024-4096}{NT}")
    for k in range(4): o(f"v_mov_b32 v{vOn+k}, 0x3f803f80")
    o(f"s_mov_b32 s{sSc}, {fbits(128 ** -0.5 * math.log2(math.e))}")
    o(f"v_and_b32 v{t0}, 15, v{vL}"); o(f"v_lshrrev_b32 v{t1}, 4, v{vL}"); o(f"v_lshlrev_b32 v{t1}, 2, v{t1}"); o(f"v_sub_u32 v{t0}, v{t0}, v{t1}")
    o("s_waitcnt vmcnt(10)")
    Sx0, Sx1, Sm = vS, vS + 4, vS + 8
    for u in range(4):
        c = "0" if u == 0 else None
        o(f"v_mfma_f32_16x16x32_bf16 {v(Sx0,4)}, {v(vK+4*u,4)}, {v(vQ+4*u,4)}, {c or v(Sx0,4)}")
        o(f"v_mfma_f32_16x16x32_bf16 {v(Sx1,4)}, {v(vK+16+4*u,4)}, {v(vQ+4*u,4)}, {c or v(Sx1,4)}")
        acc = Sm if u % 2 == 0 else vD
        cc = "0" if u < 2 else v(acc, 4)
        o(f"v_mfma_f32_16x16x32_bf16 {v(acc,4)}, {v(vKm+4*(u>>1),4)}, {v(vQ+4*u,4)}, {cc}")
    NEG = 0xff800000
    for k in range(4):
        o(f"v_mov_b32 v{vT+k}, v{vD+k}")
    for k in range(4):
        o(f"v_permlane32_swap_b32 v{vD+k}, v{vT+k}")
    for k in range(4):
        o(f"v_add_f32 v{Sm+k}, v{Sm+k}, v{vT+k}")
    o(f"v_mov_b32 v{t1}, 0xff800000")
    o(f"v_cmp_lt_u32 vcc, 31, v{vL}")
    for k in range(4): o(f"v_cndmask_b32 v{Sm+k}, v{Sm+k}, v{t1}, vcc")
    o(f"s_cmp_eq_u32 s{sQt}, 0"); o(f"s_cbranch_scc0 {lab}_q1")
    for k in range(4):
        o(f"v_cmp_gt_i32 vcc, {k}, v{t0}")
        o(f"v_cndmask_b32 v{Sx0+k}, v{Sx0+k}, v{t1}, vcc")
        o(f"v_mov_b32 v{Sx1+k}, v{t1}")
    o(f"s_branch {lab}_qd")
    A.label(f"{lab}_q1")
    for k in range(4):
        o(f"v_cmp_gt_i32 vcc, {k}, v{t0}")
        o(f"v_cndmask_b32 v{Sx1+k}, v{Sx1+k}, v{t1}, vcc")
    A.label(f"{lab}_qd")
    Sall = list(range(vS, vS + 12))
    m, t = vT, vT + 1
    o(f"v_max3_f32 v{m}, v{Sall[0]}, v{Sall[1]}, v{Sall[2]}")
    for k in range(3, 11, 2): o(f"v_max3_f32 v{m}, v{m}, v{Sall[k]}, v{Sall[k+1]}")
    o(f"v_max_f32 v{m}, v{m}, v{Sall[11]}")
    for sw in ("16", "32"):
        o(f"v_mov_b32 v{t}, v{m}"); o(f"v_permlane{sw}_swap_b32 v{m}, v{t}"); o(f"v_max_f32 v{m}, v{m}, v{t}")
    o(f"v_mul_f32 v{m}, s{sSc}, v{m}")
    for x in Sall: o(f"v_fma_f32 v{x}, v{x}, s{sSc}, -v{m}")
    for x in Sall: o(f"v_exp_f32 v{x}, v{x}")
    vPx, vPmA, vPmB = vP, vP + 4, vP + 6
    for k in range(4): o(f"v_cvt_pk_bf16_f32 v{vPx+k}, v{vS+2*k}, v{vS+2*k+1}")
    o(f"v_cvt_pk_bf16_f32 v{vPmA}, v{Sm}, v{Sm+1}"); o(f"v_cvt_pk_bf16_f32 v{vPmA+1}, v{Sm+2}, v{Sm+3}")
    o(f"v_mov_b32 v{vT+2}, v{vPmA}"); o(f"v_mov_b32 v{vT+3}, v{vPmA+1}"); o(f"v_mov_b32 v{vPmB}, 0"); o(f"v_mov_b32 v{vPmB+1}, 0")
    o(f"v_permlane32_swap_b32 v{vPmB}, v{vT+2}"); o(f"v_permlane32_swap_b32 v{vPmB+1}, v{vT+3}")
    o("s_waitcnt vmcnt(0)")
    o(f"v_mfma_f32_16x16x32_bf16 {v(vLs,4)}, {v(vOn,4)}, {v(vPx,4)}, 0")
    for tt in range(8): o(f"v_mfma_f32_16x16x32_bf16 {v(vO+4*tt,4)}, {v(vV+4*tt,4)}, {v(vPx,4)}, 0")
    o(f"v_mfma_f32_16x16x16_bf16 {v(vLs,4)}, {v(vOn,2)}, {v(vPmA,2)}, {v(vLs,4)}")
    for tt in range(8):
        c, tv = tt >> 1, tt & 1
        pm = vPmB if (c & 1) else vPmA
        o(f"v_mfma_f32_16x16x16_bf16 {v(vO+4*tt,4)}, {v(vVm+4*(c>>1)+2*tv,2)}, {v(pm,2)}, {v(vO+4*tt,4)}")
    o(f"v_rcp_f32 v{m}, v{vLs}")
    n_, rho, g_ = vT + 4, vT + 5, vT + 6
    o(f"v_and_b32 v{n_}, 15, v{vL}"); o(f"v_lshrrev_b32 v{rho}, 4, v{vL}")
    o(f"v_and_b32 v{g_}, 1, v{rho}"); o(f"v_lshrrev_b32 v{rho}, 1, v{rho}"); o(f"v_lshl_or_b32 v{rho}, v{g_}, 1, v{rho}")
    gfun(o, g_, n_, vT + 7)
    o(f"v_xor_b32 v{rho}, v{rho}, v{g_}"); o(f"v_lshl_add_u32 v{rho}, v{n_}, 2, v{rho}"); o(f"v_lshlrev_b32 v{rho}, 4, v{rho}")
    o(f"s_lshl_b32 s{sT0}, s{sHead}, 19")
    o(f"s_lshl_b32 s{sT1}, s{sSeg}, 1"); o(f"s_add_u32 s{sT1}, s{sT1}, s{sQt}"); o(f"s_lshl_b32 s{sT1}, s{sT1}, 10")
    o(f"s_add_u32 s{sT0}, s{sT0}, s{sT1}")
    base_(sA, WS_O, sT0)
    for u in range(4):
        P = vQ + 4 * u
        for h in range(2):
            tt = 2 * u + h
            for k in range(4): o(f"v_mul_f32 v{vO+4*tt+k}, v{vO+4*tt+k}, v{m}")
            o(f"v_cvt_pk_bf16_f32 v{P+2*h}, v{vO+4*tt}, v{vO+4*tt+1}"); o(f"v_cvt_pk_bf16_f32 v{P+2*h+1}, v{vO+4*tt+2}, v{vO+4*tt+3}")
        o(f"v_permlane16_swap_b32 v{P}, v{P+2}"); o(f"v_permlane16_swap_b32 v{P+1}, v{P+3}")
        o(f"global_store_dwordx4 v{rho}, {v(P,4)}, {s(sA,2)}" + (" sc1" if sc1 else ""))
        if u < 3:
            o(f"s_add_u32 s{sA}, s{sA}, 131072"); o(f"s_addc_u32 s{sA+1}, s{sA+1}, 0")
    return r

PROF = False
def gen_attn(name="attn_kernel"):
    A = Asm(); o = A
    o("s_cmp_ge_u32 s2, 1024"); o(f"s_cbranch_scc1 L_{name}_end")
    o(f"s_load_dwordx2 s[4:5], s[0:1], {KA_WS}")
    o("v_lshrrev_b32 v1, 6, v0"); o("v_and_b32 v0, 63, v0"); o("v_readfirstlane_b32 s3, v1")
    o("s_lshl_b32 s6, s2, 2"); o("s_add_u32 s6, s6, s3")
    o("s_lshr_b32 s7, s6, 6"); o("s_lshr_b32 s8, s6, 1"); o("s_and_b32 s8, s8, 31"); o("s_and_b32 s9, s6, 1")
    o("s_waitcnt lgkmcnt(0)")
    if PROF: o("s_memrealtime s[60:61]")
    nv = attn_body(A, 4, 7, 8, 9, 0, f"L_{name}")
    o("s_waitcnt vmcnt(0)")
    if PROF:
        o("s_memrealtime s[62:63]"); o("s_waitcnt lgkmcnt(0)")
        o("s_lshl_b32 s25, s2, 5"); o("s_lshl_b32 s26, s3, 3"); o("s_add_u32 s25, s25, s26"); o(f"s_add_u32 s25, s25, {WS_PROF + 6*MiB}")
        o("v_mov_b32 v2, s60"); o("v_mov_b32 v3, s62"); o("v_mov_b32 v4, s25"); o("s_mov_b64 exec, 1"); o("global_store_dwordx2 v4, v[2:3], s[4:5]"); o("s_waitcnt vmcnt(0)")
    A.label(f"L_{name}_end"); o("s_endpgm")
    return kernel_head(name) + A.finish() + kernel_desc(name, nv)

def gen_attn2(name="attn_kernel"):
    A = Asm(); o = A
    o("s_cmp_ge_u32 s2, 512"); o(f"s_cbranch_scc1 L_{name}_end")
    o(f"s_load_dwordx2 s[4:5], s[0:1], {KA_WS}")
    o("v_lshrrev_b32 v1, 6, v0"); o("v_and_b32 v0, 63, v0"); o("v_readfirstlane_b32 s3, v1")
    o("s_lshl_b32 s6, s2, 2"); o("s_add_u32 s6, s6, s3")
    sSeg, sHead, sWS = 7, 8, 4
    o(f"s_lshr_b32 s{sSeg}, s6, 5"); o(f"s_and_b32 s{sHead}, s6, 31")
    o("s_waitcnt lgkmcnt(0)")
    if PROF: o("s_memrealtime s[60:61]")
    vL = 0
    r = 8
    vQ = r; r += 32
    vK = r; r += 32
    vV = r; r += 32
    vKm = r; r += 8
    vVm = r; r += 8
    vS = r; r += 12
    vD = r; r += 4
    vP = r; r += 8
    vLs = r; r += 4
    vOn = r; r += 4
    vO = r; r += 32
    vT = r; r += 12
    sA, sB, sC, sD = 40, 42, 44, 46
    sT0, sT1, sSc = 48, 49, 50
    l16 = vT + 10; t0, t1 = vT + 8, vT + 9
    o(f"v_lshlrev_b32 v{l16}, 4, v{vL}")
    o(f"s_lshl_b32 s{sT1}, s6, 13"); o(f"s_add_u32 s{sT1}, s{sT1}, 4096")
    def base_(dst, off, extra):
        o(f"s_add_u32 s{dst}, s{sWS}, s{extra}"); o(f"s_addc_u32 s{dst+1}, s{sWS+1}, 0")
        o(f"s_add_u32 s{dst}, s{dst}, {off}"); o(f"s_addc_u32 s{dst+1}, s{dst+1}, 0")
    base_(sA, WS_K, sT1); base_(sB, WS_VT, sT1); base_(sC, WS_Q, sT1)
    o(f"s_lshl_b32 s{sT1}, s6, 11"); base_(sD, WS_KM, sT1)
    for t in range(8): o(f"global_load_dwordx4 {v(vQ+4*t,4)}, v{l16}, {s(sC,2)} offset:{t*1024-4096}")
    for t in range(8): o(f"global_load_dwordx4 {v(vK+4*t,4)}, v{l16}, {s(sA,2)} offset:{t*1024-4096}")
    for c in range(2): o(f"global_load_dwordx4 {v(vKm+4*c,4)}, v{l16}, {s(sD,2)} offset:{c*1024}")
    o(f"s_add_u32 s{sD}, s{sD}, {WS_VM - WS_KM}"); o(f"s_addc_u32 s{sD+1}, s{sD+1}, 0")
    for c in range(2): o(f"global_load_dwordx4 {v(vVm+4*c,4)}, v{l16}, {s(sD,2)} offset:{c*1024}")
    for t in range(8): o(f"global_load_dwordx4 {v(vV+4*t,4)}, v{l16}, {s(sB,2)} offset:{t*1024-4096}")
    for k in range(4): o(f"v_mov_b32 v{vOn+k}, 0x3f803f80")
    o(f"s_mov_b32 s{sSc}, {fbits(128 ** -0.5 * math.log2(math.e))}")
    o(f"v_and_b32 v{t0}, 15, v{vL}"); o(f"v_lshrrev_b32 v{t1}, 4, v{vL}"); o(f"v_lshlrev_b32 v{t1}, 2, v{t1}"); o(f"v_sub_u32 v{t0}, v{t0}, v{t1}")
    o(f"v_mov_b32 v{t1}, 0xff800000")
    n_, rho, g_ = vT + 4, vT + 11, vT + 6
    o(f"v_and_b32 v{n_}, 15, v{vL}"); o(f"v_lshrrev_b32 v{rho}, 4, v{vL}")
    o(f"v_and_b32 v{g_}, 1, v{rho}"); o(f"v_lshrrev_b32 v{rho}, 1, v{rho}"); o(f"v_lshl_or_b32 v{rho}, v{g_}, 1, v{rho}")
    gfun(o, g_, n_, vT + 7)
    o(f"v_xor_b32 v{rho}, v{rho}, v{g_}"); o(f"v_lshl_add_u32 v{rho}, v{n_}, 2, v{rho}"); o(f"v_lshlrev_b32 v{rho}, 4, v{rho}")
    o("s_waitcnt vmcnt(10)")
    Sx0, Sx1, Sm = vS, vS + 4, vS + 8
    for qt in range(2):
        Q = vQ + 16 * qt
        for u in range(4):
            c = "0" if u == 0 else None
            o(f"v_mfma_f32_16x16x32_bf16 {v(Sx0,4)}, {v(vK+4*u,4)}, {v(Q+4*u,4)}, {c or v(Sx0,4)}")
            if qt == 1: o(f"v_mfma_f32_16x16x32_bf16 {v(Sx1,4)}, {v(vK+16+4*u,4)}, {v(Q+4*u,4)}, {c or v(Sx1,4)}")
            acc = Sm if u % 2 == 0 else vD
            cc = "0" if u < 2 else v(acc, 4)
            o(f"v_mfma_f32_16x16x32_bf16 {v(acc,4)}, {v(vKm+4*(u>>1),4)}, {v(Q+4*u,4)}, {cc}")
        for k in range(4): o(f"v_mov_b32 v{vT+k}, v{vD+k}")
        for k in range(4): o(f"v_permlane32_swap_b32 v{vD+k}, v{vT+k}")
        for k in range(4): o(f"v_add_f32 v{Sm+k}, v{Sm+k}, v{vT+k}")
        o(f"v_cmp_lt_u32 vcc, 31, v{vL}")
        for k in range(4): o(f"v_cndmask_b32 v{Sm+k}, v{Sm+k}, v{t1}, vcc")
        diag = Sx0 if qt == 0 else Sx1
        for k in range(4):
            o(f"v_cmp_gt_i32 vcc, {k}, v{t0}"); o(f"v_cndmask_b32 v{diag+k}, v{diag+k}, v{t1}, vcc")
        Sall = list(range(Sx0, Sx0 + 4)) + (list(range(Sx1, Sx1 + 4)) if qt == 1 else []) + list(range(Sm, Sm + 4))
        m, t = vT, vT + 1
        o(f"v_max3_f32 v{m}, v{Sall[0]}, v{Sall[1]}, v{Sall[2]}")
        k = 3
        while k + 1 < len(Sall): o(f"v_max3_f32 v{m}, v{m}, v{Sall[k]}, v{Sall[k+1]}"); k += 2
        if k < len(Sall): o(f"v_max_f32 v{m}, v{m}, v{Sall[k]}")
        for sw in ("16", "32"):
            o(f"v_mov_b32 v{t}, v{m}"); o(f"v_permlane{sw}_swap_b32 v{m}, v{t}"); o(f"v_max_f32 v{m}, v{m}, v{t}")
        o(f"v_mul_f32 v{m}, s{sSc}, v{m}")
        for x in Sall: o(f"v_fma_f32 v{x}, v{x}, s{sSc}, -v{m}")
        for x in Sall: o(f"v_exp_f32 v{x}, v{x}")
        vPx, vPmA, vPmB = vP, vP + 4, vP + 6
        o(f"v_cvt_pk_bf16_f32 v{vPx}, v{Sx0}, v{Sx0+1}"); o(f"v_cvt_pk_bf16_f32 v{vPx+1}, v{Sx0+2}, v{Sx0+3}")
        if qt == 1:
            o(f"v_cvt_pk_bf16_f32 v{vPx+2}, v{Sx1}, v{Sx1+1}"); o(f"v_cvt_pk_bf16_f32 v{vPx+3}, v{Sx1+2}, v{Sx1+3}")
        else:
            o(f"v_mov_b32 v{vPx+2}, 0"); o(f"v_mov_b32 v{vPx+3}, 0")
        o(f"v_cvt_pk_bf16_f32 v{vPmA}, v{Sm}, v{Sm+1}"); o(f"v_cvt_pk_bf16_f32 v{vPmA+1}, v{Sm+2}, v{Sm+3}")
        o(f"v_mov_b32 v{vT+2}, v{vPmA}"); o(f"v_mov_b32 v{vT+3}, v{vPmA+1}"); o(f"v_mov_b32 v{vPmB}, 0"); o(f"v_mov_b32 v{vPmB+1}, 0")
        o(f"v_permlane32_swap_b32 v{vPmB}, v{vT+2}"); o(f"v_permlane32_swap_b32 v{vPmB+1}, v{vT+3}")
        if qt == 0: o("s_waitcnt vmcnt(0)")
        o(f"v_mfma_f32_16x16x32_bf16 {v(vLs,4)}, {v(vOn,4)}, {v(vPx,4)}, 0")
        for tt in range(8): o(f"v_mfma_f32_16x16x32_bf16 {v(vO+4*tt,4)}, {v(vV+4*tt,4)}, {v(vPx,4)}, 0")
        o(f"v_mfma_f32_16x16x16_bf16 {v(vLs,4)}, {v(vOn,2)}, {v(vPmA,2)}, {v(vLs,4)}")
        for tt in range(8):
            c, tv = tt >> 1, tt & 1
            pm = vPmB if (c & 1) else vPmA
            o(f"v_mfma_f32_16x16x16_bf16 {v(vO+4*tt,4)}, {v(vVm+4*(c>>1)+2*tv,2)}, {v(pm,2)}, {v(vO+4*tt,4)}")
        o(f"v_rcp_f32 v{m}, v{vLs}")
        o(f"s_lshl_b32 s{sT0}, s{sHead}, 19")
        o(f"s_lshl_b32 s{sT1}, s{sSeg}, 1"); o(f"s_add_u32 s{sT1}, s{sT1}, {qt}"); o(f"s_lshl_b32 s{sT1}, s{sT1}, 10")
        o(f"s_add_u32 s{sT0}, s{sT0}, s{sT1}")
        base_(sA, WS_O, sT0)
        for u in range(4):
            P = Q + 4 * u
            for h in range(2):
                tt = 2 * u + h
                for k in range(4): o(f"v_mul_f32 v{vO+4*tt+k}, v{vO+4*tt+k}, v{m}")
                o(f"v_cvt_pk_bf16_f32 v{P+2*h}, v{vO+4*tt}, v{vO+4*tt+1}"); o(f"v_cvt_pk_bf16_f32 v{P+2*h+1}, v{vO+4*tt+2}, v{vO+4*tt+3}")
            o(f"v_permlane16_swap_b32 v{P}, v{P+2}"); o(f"v_permlane16_swap_b32 v{P+1}, v{P+3}")
            o(f"global_store_dwordx4 v{rho}, {v(P,4)}, {s(sA,2)}")
            if u < 3:
                o(f"s_add_u32 s{sA}, s{sA}, 131072"); o(f"s_addc_u32 s{sA+1}, s{sA+1}, 0")
    o("s_waitcnt vmcnt(0)")
    if PROF:
        o("s_memrealtime s[62:63]"); o("s_waitcnt lgkmcnt(0)")
        o("s_lshl_b32 s25, s2, 5"); o("s_lshl_b32 s26, s3, 3"); o("s_add_u32 s25, s25, s26"); o(f"s_add_u32 s25, s25, {WS_PROF + 6*MiB}")
        o("v_mov_b32 v2, s60"); o("v_mov_b32 v3, s62"); o("v_mov_b32 v4, s25"); o("s_mov_b64 exec, 1"); o("global_store_dwordx2 v4, v[2:3], s[4:5]"); o("s_waitcnt vmcnt(0)")
    A.label(f"L_{name}_end"); o("s_endpgm")
    return kernel_head(name) + A.finish() + kernel_desc(name, r)
```

```python
from asmlib import *
from layout import *

NSTEPS = 64
SENT = 0xFFFFFFFF

def gen_rec(name="rec_kernel", embedded=False, pfx="", KVCHK=False, SIG=False, hook=None, cntoff=0, fast=True, prof=False, nsteps=NSTEPS, E1_EARLY=True, E2_DELAY=0, E3_DELAY=0, KV_FIRST=0, PF=1, PFE=0, VSP=2, RT=0, E1_AT=7, E3_SALU_FIRST=0, LAST_SHORT=1, NOK=0, NOV=0, E2F='sc1', X4=0, X4LIM=4, E2_DEPTH=3, E2_SP=0, EP=0, FIXKV=0):
    TIMER = "s_memrealtime" if RT else "s_memtime"
    A = Asm()
    o = A
    st_fast = "" if fast else " sc1"
    sWG = 2
    sW, sG, sJ, sHA, sC, sHead = 3, 4, 5, 6, 7, 8
    sWS = 10
    sT0, sT1, sT2, sT3 = 12, 13, 14, 15
    sPtr = 16
    sMEMc, sMEMn, sQK, sVR, sPART, sPART2, sKX, sKX2, sVX, sKM, sVM = 20, 22, 24, 26, 28, 30, 32, 34, 36, 38, 40
    sRq, sRv, sRp, sRm = 42, 44, 46, 48
    sStep, sSlot, sLim = 50, 51, 52
    sMaskQK, sMaskLo = 54, 56
    sSelV = 58
    sScale = 60
    sWQ, sWK, sWV, sWO, sDBG = 62, 64, 66, 68, 70
    sTs = 66
    sProf = 96
    vL = 0; vT = [1, 2, 3, 4, 5, 6, 7]
    vE3, vQKst, vVst, vVld, vPst, vPld, vMst, vKx, vL16, vKMst = 8, 9, 10, 11, 12, 13, 14, 15, 56, 57
    vA0, vA1, vAv0, vAv1 = 16, 20, 24, 28
    vSx, vSm = 32, 40
    vPx, vPmA, vPmB = 44, 48, 50
    vDelta = 52
    vNeg = 60
    vB = 64; vK = 128; vV = 160; vQ = 192; vQr = 200; vKm = 208; vKr = 216; vVm = 224
    vLdsM, vLdsO, vLdsV = 232, 233, 234
    vSent = 236
    vFlag = 57
    vX = 240
    vO = 64; vOb = 96
    vOo = [112, 116, 120, 124] + [160 + 4 * i for i in range(8)]
    LDS_MEM, LDS_O, LDS_V = 0, 16384, 32768

    if not embedded:
        o(f"s_cmp_ge_u32 s{sWG}, {256 if X4 else 128}")
        o("s_cbranch_scc1 L_rec_end")
        o(f"s_load_dwordx2 {s(sWQ,2)}, s[0:1], {KA_WQ}")
        o(f"s_load_dwordx2 {s(sWK,2)}, s[0:1], {KA_WK}")
        o(f"s_load_dwordx2 {s(sWV,2)}, s[0:1], {KA_WV}")
        o(f"s_load_dwordx2 {s(sWO,2)}, s[0:1], {KA_WO}")
        o(f"s_load_dwordx2 {s(sDBG,2)}, s[0:1], {KA_DBG}")
        o(f"s_load_dwordx2 {s(sWS,2)}, s[0:1], {KA_WS}")
        o(f"v_lshrrev_b32 v1, 6, v0")
        o(f"v_and_b32 v{vL}, 63, v0")
        o(f"v_readfirstlane_b32 s{sW}, v1")
        o(f"s_getreg_b32 s{sG}, hwreg(HW_REG_XCC_ID, 0, 4)")
        o("s_waitcnt lgkmcnt(0)")
        o(f"s_cmp_lg_u32 s{sW}, 0")
        o("s_cbranch_scc1 L_rec_noticket")
        o(f"s_lshl_b32 s{sT0}, s{sG}, 2")
        o(f"v_mov_b32 v1, s{sT0}")
        o("v_mov_b32 v2, 1")
        o("s_mov_b64 exec, 1")
        o(f"global_atomic_add v3, v1, v2, {s(sDBG,2)} sc0")
        o("s_waitcnt vmcnt(0)")
        o("v_mov_b32 v1, 0")
        o("ds_write_b32 v1, v3")
        o("s_waitcnt lgkmcnt(0)")
        o("s_mov_b64 exec, -1")
        A.label("L_rec_noticket")
        o("s_barrier")
        o("v_mov_b32 v1, 0")
        o("ds_read_b32 v3, v1")
        o("s_waitcnt lgkmcnt(0)")
        o(f"v_readfirstlane_b32 s{sJ}, v3")
        o("s_barrier")
        if X4:
            o(f"s_cmp_ge_u32 s{sG}, {X4LIM}"); o("s_cbranch_scc1 L_rec_end")
            o(f"s_sub_u32 s{sG}, s{sG}, {X4LIM-4}") if False else None
            o(f"s_lshl_b32 s{sG}, s{sG}, 1"); o(f"s_lshr_b32 s{sT0}, s{sJ}, 4"); o(f"s_add_u32 s{sG}, s{sG}, s{sT0}")
        o(f"s_and_b32 s{sJ}, s{sJ}, 15")
        o(f"s_and_b32 s{sG}, s{sG}, 7")
    else:
        o(f"s_load_dwordx2 {s(sWQ,2)}, s[0:1], {KA_WQ}")
        o(f"s_load_dwordx2 {s(sWK,2)}, s[0:1], {KA_WK}")
        o(f"s_load_dwordx2 {s(sWV,2)}, s[0:1], {KA_WV}")
        o(f"s_load_dwordx2 {s(sWO,2)}, s[0:1], {KA_WO}")
        o(f"s_load_dwordx2 {s(sWS,2)}, s[0:1], {KA_WS}")
        o("s_waitcnt lgkmcnt(0)")
    o(f"s_lshr_b32 s{sHA}, s{sJ}, 2")
    o(f"s_and_b32 s{sC}, s{sJ}, 3")
    o(f"s_lshl_b32 s{sHead}, s{sG}, 2")
    o(f"s_add_u32 s{sHead}, s{sHead}, s{sW}")
    vi, vg, vr = vT[0], vT[1], vT[2]
    o(f"v_and_b32 v{vi}, 15, v{vL}")
    o(f"v_lshrrev_b32 v{vg}, 4, v{vL}")
    o(f"v_and_b32 v{vr}, 7, v{vL}")
    o(f"v_lshlrev_b32 v{vL16}, 4, v{vL}")

    o(f"s_lshl_b32 s{sT0}, s{sG}, 2")
    o(f"s_add_u32 s{sT0}, s{sT0}, s{sHA}")
    o(f"s_lshl_b32 s{sT0}, s{sT0}, 8")
    o(f"s_lshl_b32 s{sT1}, s{sC}, 6")
    o(f"s_add_u32 s{sT0}, s{sT0}, s{sT1}")
    v1, v2, v3, v4 = vT[3], vT[4], vT[5], vT[6]
    o(f"v_lshrrev_b32 v{v1}, 2, v{vL}")
    o(f"v_lshlrev_b32 v{v1}, 13, v{v1}")
    o(f"v_and_b32 v{v2}, 3, v{vL}")
    o(f"v_lshl_add_u32 v{v1}, v{v2}, 4, v{v1}")
    o(f"v_add_u32 v{v1}, s{sT0}, v{v1}")
    o(f"s_lshl_b32 s{sT1}, s{sW}, 21")
    o(f"v_add_u32 v{v1}, s{sT1}, v{v1}")
    def dma_strip(sbase, ldsbase, nblk, rowstep):
        o(f"v_mov_b32 v{v2}, v{v1}")
        o(f"s_lshl_b32 s{sT2}, s{sW}, {(nblk*1024).bit_length()-1}")
        o(f"s_add_u32 s{sT2}, s{sT2}, {ldsbase}")
        for m in range(nblk):
            o(f"s_mov_b32 m0, s{sT2}")
            o(f"s_add_u32 s{sT2}, s{sT2}, 1024")
            o(f"global_load_lds_dwordx4 v{v2}, {s(sbase,2)}")
            if m + 1 < nblk: o(f"v_add_u32 v{v2}, {rowstep}, v{v2}")
    dma_strip(sWQ, 0, 16, 131072)
    dma_strip(sWK, 65536, 16, 131072)
    o(f"v_lshrrev_b32 v{v3}, 2, v{vi}")
    o(f"v_lshl_add_u32 v{v3}, v{vg}, 3, v{v3}")
    o(f"v_lshlrev_b32 v{v3}, 6, v{v3}")
    o(f"v_and_b32 v{v4}, 3, v{vi}")
    o(f"v_lshl_add_u32 v{v3}, v{v4}, 3, v{v3}")
    o("s_waitcnt vmcnt(0)")
    o("s_barrier")
    o(f"s_lshr_b32 s{sT0}, s{sW}, 1")
    o(f"s_lshl_b32 s{sT0}, s{sT0}, 16")
    o(f"s_and_b32 s{sT1}, s{sW}, 1")
    o(f"s_lshl_b32 s{sT1}, s{sT1}, 5")
    o(f"s_add_u32 s{sT0}, s{sT0}, s{sT1}")
    for i in range(16):
        o(f"s_lshl_b32 s{sT2}, s{sW}, 2")
        o(f"s_add_u32 s{sT2}, s{sT2}, {i}")
        o(f"s_and_b32 s{sT2}, s{sT2}, 15")
        o(f"s_lshl_b32 s{sT2}, s{sT2}, 12")
        o(f"s_add_u32 s{sT2}, s{sT2}, s{sT0}")
        o(f"v_add_u32 v{v4}, s{sT2}, v{v3}")
        for half in range(2):
            d = (i * 2 + half) * 4
            o(f"ds_read_b64_tr_b16 {a(d,2)}, v{v4} offset:{half*2048}")
            o(f"ds_read_b64_tr_b16 {a(d+2,2)}, v{v4} offset:{half*2048+256}")
        if i % 4 == 3: o("s_waitcnt lgkmcnt(0)")
    o("s_barrier")
    dma_strip(sWV, 0, 16, 131072)
    o(f"v_lshrrev_b32 v{v1}, 3, v{vL}")
    o(f"v_lshlrev_b32 v{v1}, 11, v{v1}")
    o(f"v_and_b32 v{v2}, 7, v{vL}")
    o(f"v_lshl_add_u32 v{v1}, v{v2}, 4, v{v1}")
    o(f"s_lshl_b32 s{sT0}, s{sG}, 20")
    o(f"s_lshl_b32 s{sT1}, s{sJ}, 7")
    o(f"s_add_u32 s{sT0}, s{sT0}, s{sT1}")
    o(f"s_lshl_b32 s{sT1}, s{sW}, 18")
    o(f"s_add_u32 s{sT0}, s{sT0}, s{sT1}")
    o(f"v_add_u32 v{v1}, s{sT0}, v{v1}")
    dma_strip(sWO, 65536, 16, 16384)
    o("s_waitcnt vmcnt(0)")
    o("s_barrier")
    o(f"s_and_b32 s{sT0}, s{sW}, 1")
    o(f"s_lshl_b32 s{sT0}, s{sT0}, 5")
    for i in range(8):
        o(f"s_lshl_b32 s{sT2}, s{sW}, 2")
        o(f"s_add_u32 s{sT2}, s{sT2}, {i}")
        o(f"s_and_b32 s{sT2}, s{sT2}, 15")
        o(f"s_lshl_b32 s{sT2}, s{sT2}, 12")
        o(f"s_add_u32 s{sT2}, s{sT2}, s{sT0}")
        o(f"v_add_u32 v{v4}, s{sT2}, v{v3}")
        for half in range(2):
            d = 128 + (i * 2 + half) * 4
            o(f"ds_read_b64_tr_b16 {a(d,2)}, v{v4} offset:{half*2048}")
            o(f"ds_read_b64_tr_b16 {a(d+2,2)}, v{v4} offset:{half*2048+256}")
        if i % 4 == 3: o("s_waitcnt lgkmcnt(0)")
    o(f"v_lshrrev_b32 v{v3}, 2, v{vi}")
    o(f"v_lshl_add_u32 v{v3}, v{vg}, 2, v{v3}")
    o(f"v_lshlrev_b32 v{v3}, 7, v{v3}")
    o(f"v_and_b32 v{v4}, 3, v{vi}")
    o(f"v_lshl_add_u32 v{v3}, v{v4}, 3, v{v3}")
    o(f"s_lshl_b32 s{sT0}, s{sW}, 14")
    o(f"s_add_u32 s{sT0}, s{sT0}, 65536")
    o(f"v_add_u32 v{v4}, s{sT0}, v{v3}")
    for ct in range(4):
        for u in range(4):
            d = 192 + (ct * 4 + u) * 4
            o(f"ds_read_b64_tr_b16 {a(d,2)}, v{v4} offset:{u*4096+ct*32}")
            o(f"ds_read_b64_tr_b16 {a(d+2,2)}, v{v4} offset:{u*4096+2048+ct*32}")
        o("s_waitcnt lgkmcnt(0)")
    o("s_barrier")

    if hook:
        A.raw(hook)
        o(f"v_and_b32 v{vi}, 15, v{vL}"); o(f"v_lshrrev_b32 v{vg}, 4, v{vL}"); o(f"v_and_b32 v{vr}, 7, v{vL}")
    o(f"s_lshl_b32 s{sT0}, s{sW}, 12")
    o(f"v_add_u32 v{vE3}, s{sT0}, v{vL16}")
    o(f"v_lshrrev_b32 v{v1}, 1, v{vg}")
    o(f"v_lshlrev_b32 v{v1}, 8, v{v1}")
    o(f"v_lshl_add_u32 v{v1}, v{vr}, 4, v{v1}")
    o(f"s_lshr_b32 s{sT0}, s{sC}, 1")
    o(f"s_lshl_b32 s{sT0}, s{sT0}, 10")
    o(f"s_and_b32 s{sT1}, s{sW}, 1")
    o(f"s_lshl_b32 s{sT1}, s{sT1}, 9")
    o(f"s_add_u32 s{sT0}, s{sT0}, s{sT1}")
    o(f"s_and_b32 s{sT1}, s{sC}, 1")
    o(f"s_lshl_b32 s{sT1}, s{sT1}, 7")
    o(f"s_add_u32 s{sT0}, s{sT0}, s{sT1}")
    o(f"v_add_u32 v{vKMst}, s{sT0}, v{v1}")
    o(f"s_lshl_b32 s{sT0}, s{sHA}, 12")
    o(f"s_lshr_b32 s{sT1}, s{sW}, 1")
    o(f"s_lshl_b32 s{sT1}, s{sT1}, 11")
    o(f"s_add_u32 s{sT0}, s{sT0}, s{sT1}")
    o(f"v_add_u32 v{vQKst}, s{sT0}, v{vKMst}")
    o(f"s_lshl_b32 s{sT0}, s{sHA}, 11")
    o(f"s_lshl_b32 s{sT1}, s{sC}, 9")
    o(f"s_add_u32 s{sT0}, s{sT0}, s{sT1}")
    o(f"v_add_u32 v{vVst}, s{sT0}, v{vL16}")
    o(f"s_lshl_b32 s{sT0}, s{sW}, 11")
    o(f"v_add_u32 v{vVld}, s{sT0}, v{vL16}")
    o(f"s_lshl_b32 s{sT0}, s{sG}, 4")
    o(f"s_add_u32 s{sT0}, s{sT0}, s{sJ}")
    o(f"s_lshl_b32 s{sT0}, s{sT0}, 10")
    o(f"s_and_b32 s{sT1}, s{sW}, 1")
    o(f"s_lshl_b32 s{sT1}, s{sT1}, 9")
    o(f"s_add_u32 s{sT0}, s{sT0}, s{sT1}")
    o(f"s_lshr_b32 s{sT1}, s{sW}, 1")
    o(f"s_lshl_b32 s{sT1}, s{sT1}, 7")
    o(f"s_add_u32 s{sT0}, s{sT0}, s{sT1}")
    o(f"v_add_u32 v{vPst}, s{sT0}, v{v1}")
    o(f"v_lshlrev_b32 v{vPld}, 14, v{vg}")
    o(f"v_lshl_add_u32 v{vPld}, v{vi}, 4, v{vPld}")
    o(f"s_lshl_b32 s{sT0}, s{sJ}, 10")
    o(f"s_lshl_b32 s{sT1}, s{sW}, 8")
    o(f"s_add_u32 s{sT0}, s{sT0}, s{sT1}")
    o(f"v_add_u32 v{vPld}, s{sT0}, v{vPld}")
    o(f"v_add_u32 v{vMst}, s{sT0}, v{vL16}")
    o(f"v_lshlrev_b32 v{vKx}, 13, v{vi}")
    o(f"v_lshl_add_u32 v{vKx}, v{vg}, 4, v{vKx}")
    o(f"s_lshl_b32 s{sT0}, s{sHead}, 8")
    o(f"v_add_u32 v{vKx}, s{sT0}, v{vKx}")
    o(f"v_mov_b32 v{vLdsM}, v{vL16}")
    for d in range(4):
        o(f"v_mov_b32 v{vDelta+d}, 0")
        o(f"v_mov_b32 v{v1}, 0x3f80")
        o(f"v_cmp_eq_u32 vcc, {2*d}, v{vi}")
        o(f"v_cndmask_b32 v{vDelta+d}, v{vDelta+d}, v{v1}, vcc")
        o(f"v_mov_b32 v{v1}, 0x3f800000")
        o(f"v_cmp_eq_u32 vcc, {2*d+1}, v{vi}")
        o(f"v_cndmask_b32 v{vDelta+d}, v{vDelta+d}, v{v1}, vcc")
    o(f"v_mov_b32 v{v1}, 0xff800000")
    o(f"v_cmp_lt_u32 vcc, 31, v{vL}")
    o(f"v_cndmask_b32 v{vNeg}, 0, v{v1}, vcc")
    for r in range(1, 4): o(f"v_mov_b32 v{vNeg+r}, v{vNeg}")
    for r in range(4): o(f"v_mov_b32 v{vSent+r}, -1")
    o(f"s_mov_b32 s{sMaskQK}, 0xff"); o(f"s_mov_b32 s{sMaskQK+1}, 0xff")
    o(f"s_mov_b32 s{sSelV}, -1"); o(f"s_mov_b32 s{sSelV+1}, 0")
    import math
    cs = 128 ** -0.5 * math.log2(math.e)
    import struct
    o(f"s_mov_b32 s{sScale}, 0x{struct.unpack('<I', struct.pack('<f', cs))[0]:08x}")
    o(f"s_mov_b32 s{sScale+1}, s{sScale}")
    o(f"s_mov_b32 s{sLim}, 0x400000")
    o(f"s_mov_b32 s{sStep}, 0")
    def addbase(dst, off, extra_s=None):
        o(f"s_add_u32 s{dst}, s{sWS}, {off & 0xffffffff}")
        o(f"s_addc_u32 s{dst+1}, s{sWS+1}, 0")
        if extra_s is not None:
            o(f"s_add_u32 s{dst}, s{dst}, s{extra_s}")
            o(f"s_addc_u32 s{dst+1}, s{dst+1}, 0")
    o(f"s_lshl_b32 s{sT0}, s{sHead}, 13")
    o(f"s_add_u32 s{sT0}, s{sT0}, 4096")
    addbase(sKX, WS_K, sT0)
    o(f"s_lshl_b32 s{sT0}, s{sHead}, 13")
    o(f"s_add_u32 s{sT0}, s{sT0}, 4096")
    addbase(sVX, WS_VT, sT0)
    o(f"s_lshl_b32 s{sT0}, s{sHead}, 11")
    addbase(sKM, WS_KM, sT0)
    addbase(sVM, WS_VM, sT0)
    sCNT = 16
    addbase(sCNT, WS_CNT + cntoff)
    def kv_wait(chunk_sreg_expr_setup, target, tag):
        o(f"s_lshl_b32 s{sT0}, s{sT0}, 3"); o(f"s_add_u32 s{sT0}, s{sT0}, s{sG}"); o(f"s_lshl_b32 s{sT0}, s{sT0}, 7")
        o(f"v_mov_b32 v{vX+2}, s{sT0}")
        A.label(f"L_kvw_{tag}")
        o(f"global_load_dword v{vX+3}, v{vX+2}, {s(sCNT,2)} sc1")
        o("s_waitcnt vmcnt(0)")
        o(f"v_readfirstlane_b32 s{sT1}, v{vX+3}")
        o(f"s_cmp_ge_u32 s{sT1}, {target}")
        o(f"s_cbranch_scc1 L_kvw_{tag}_ok")
        o("s_sleep 4")
        o(f"s_sub_u32 s{sLim}, s{sLim}, 1")
        o(f"s_cbranch_scc0 L_kvw_{tag}")
        o(f"s_mov_b32 s{sLim}, 0")
        A.label(f"L_kvw_{tag}_ok")
    if KVCHK:
        o(f"s_mov_b32 s{sT0}, 0")
        kv_wait(None, 16, "0")
    def load_kx():
        for t in range(8):
            o(f"global_load_dwordx4 {v(vK+t*4,4)}, v{vL16}, {s(sKX,2)} offset:{t*1024-4096}")
    load_kx()
    if prof:
        o(f"s_lshl_b32 s{sT0}, s{sG}, 4")
        o(f"s_add_u32 s{sT0}, s{sT0}, s{sJ}")
        o(f"s_lshl_b32 s{sT0}, s{sT0}, 2")
        o(f"s_add_u32 s{sT0}, s{sT0}, s{sW}")
        o(f"s_lshl_b32 s{sT0}, s{sT0}, 12")
        addbase(sProf, WS_PROF, sT0)
    nst = [0]
    def stamp():
        if not prof: return
        k = nst[0]; nst[0] += 1
        o(f"{TIMER} {s(sTs + 2*k, 2)}")

    def check(regs, lab_ok, lab_retry, tmp):
        regs = list(regs)
        o(f"v_max3_u32 v{tmp}, v{regs[0]}, v{regs[1]}, v{regs[2]}")
        k = 3
        while k + 1 < len(regs):
            o(f"v_max3_u32 v{tmp}, v{tmp}, v{regs[k]}, v{regs[k+1]}"); k += 2
        if k < len(regs):
            o(f"v_max_u32 v{tmp}, v{tmp}, v{regs[k]}")
        o(f"v_cmp_eq_u32 vcc, -1, v{tmp}")
        o(f"s_cbranch_vccz {lab_ok}")
        o(f"s_sub_u32 s{sLim}, s{sLim}, 1")
        o(f"s_cbranch_scc1 {lab_ok}_to")
        o(f"s_branch {lab_retry}")
        A.label(f"{lab_ok}_to")
        o(f"s_mov_b32 s{sLim}, 0")
        A.label(lab_ok)


    sCnt = 98
    vOo = [112, 116, 120, 124, 192, 196, 200, 204, 216, 220, 224, 228]
    vPf = 252
    def merge(main, side, every, start=0):
        side = list(side); out = [];
        for k, m_ in enumerate(main):
            out.append(m_)
            if side and k >= start and (k - start) % every == every - 1: out.append(side.pop(0))
        return out + side
    def emit(L):
        for x in L: o(x)
    def check(regs, lab_ok, lab_retry, tmp, cnt=None):
        regs = list(regs)
        o(f"v_max3_u32 v{tmp}, v{regs[0]}, v{regs[1]}, v{regs[2]}")
        k = 3
        while k + 1 < len(regs):
            o(f"v_max3_u32 v{tmp}, v{tmp}, v{regs[k]}, v{regs[k+1]}"); k += 2
        if k < len(regs):
            o(f"v_max_u32 v{tmp}, v{tmp}, v{regs[k]}")
        o(f"v_cmp_eq_u32 vcc, -1, v{tmp}")
        o(f"s_cbranch_vccz {lab_ok}")
        if prof and cnt is not None: o(f"s_add_u32 s{sCnt+cnt}, s{sCnt+cnt}, 1")
        o(f"s_sub_u32 s{sLim}, s{sLim}, 1")
        o(f"s_cbranch_scc0 {lab_retry}")
        o(f"s_mov_b32 s{sLim}, 0")
        A.label(lab_ok)
    sM = 88
    def mpoll(loads, tag, cnt):
        n = len(loads)
        regs = [b + r for b, _ in loads for r in range(4)]
        o(f"v_max3_u32 v{vX}, v{regs[0]}, v{regs[1]}, v{regs[2]}")
        k = 3
        while k + 1 < len(regs):
            o(f"v_max3_u32 v{vX}, v{vX}, v{regs[k]}, v{regs[k+1]}"); k += 2
        if k < len(regs): o(f"v_max_u32 v{vX}, v{vX}, v{regs[k]}")
        o(f"v_cmp_eq_u32 vcc, -1, v{vX}")
        o(f"s_cbranch_vccz L_{tag}_ok")
        A.label(f"L_{tag}_retry")
        if prof: o(f"s_add_u32 s{sCnt+cnt}, s{sCnt+cnt}, 1")
        for i, (b, rest) in enumerate(loads):
            o(f"v_max3_u32 v{vX}, v{b}, v{b+1}, v{b+2}")
            o(f"v_max_u32 v{vX}, v{vX}, v{b+3}")
            o(f"v_cmp_eq_u32 vcc, -1, v{vX}")
            o(f"s_cbranch_vccz L_{tag}_sk{i}")
            o("s_mov_b64 exec, vcc")
            o(f"global_load_dwordx4 {v(b,4)}, {rest}")
            o("s_mov_b64 exec, -1")
            A.label(f"L_{tag}_sk{i}")
        o("s_waitcnt vmcnt(0)")
        o(f"v_max3_u32 v{vX}, v{regs[0]}, v{regs[1]}, v{regs[2]}")
        k = 3
        while k + 1 < len(regs):
            o(f"v_max3_u32 v{vX}, v{vX}, v{regs[k]}, v{regs[k+1]}"); k += 2
        if k < len(regs): o(f"v_max_u32 v{vX}, v{vX}, v{regs[k]}")
        o(f"v_cmp_eq_u32 vcc, -1, v{vX}")
        o(f"s_cbranch_vccz L_{tag}_ok")
        o(f"s_sub_u32 s{sLim}, s{sLim}, 1")
        o(f"s_cbranch_scc0 L_{tag}_retry")
        o(f"s_mov_b32 s{sLim}, 0")
        A.label(f"L_{tag}_ok")
    if prof:
        for k in range(4): o(f"s_mov_b32 s{sCnt+k}, 0")
    vPfo = 58
    o(f"s_lshl_b32 s{sT1}, s{sG}, 2"); o(f"s_add_u32 s{sT1}, s{sT1}, s{sHA}"); o(f"s_lshl_b32 s{sT1}, s{sT1}, 13")
    o(f"s_lshl_b32 s{sT2}, s{sC}, 11"); o(f"s_add_u32 s{sT1}, s{sT1}, s{sT2}")
    o(f"s_and_b32 s{sT2}, s{sW}, 1"); o(f"s_lshl_b32 s{sT2}, s{sT2}, 10"); o(f"s_add_u32 s{sT1}, s{sT1}, s{sT2}")
    o(f"v_add_u32 v{vPfo}, s{sT1}, v{vL16}")
    o(f"s_cmp_lt_u32 s{sW}, 2")
    sPF = 18
    o(f"s_mov_b32 s{sT0}, {WS_K + 2*262144}")
    o(f"s_mov_b32 s{sT1}, {WS_VT + 2*262144}")
    o(f"s_cselect_b32 s{sT0}, s{sT0}, s{sT1}")
    o(f"s_add_u32 s{sPF}, s{sWS}, s{sT0}"); o(f"s_addc_u32 s{sPF+1}, s{sWS+1}, 0")
    def kx_loads():
        if NOK: return ["s_nop 0"] * 8
        return [f"global_load_dwordx4 {v(vK+t*4,4)}, v{vL16}, {s(sKX,2)} offset:{t*1024-4096}" for t in range(8)]
    def vx_loads():
        if NOV: return ["s_nop 0"] * 8
        return [f"global_load_dwordx4 {v(vV+4*t,4)}, v{vL16}, {s(sVX,2)} offset:{t*1024-4096}" for t in range(8)]
    vRd = [None, 232, 233, 234]
    for hs in (1, 2, 3):
        o(f"v_add_u32 v{vRd[hs]}, {hs*4096}, v{vE3}")
        o(f"v_and_b32 v{vRd[hs]}, 0x3fff, v{vRd[hs]}")
    vVw, vVr, vRw = 235, 59, 15
    o(f"s_lshl_b32 s{sT0}, s{sW}, 10")
    o(f"v_add_u32 v{vVw}, s{sT0}, v{vL16}")
    o(f"v_and_b32 v{vVr}, 31, v{vL}")
    o(f"v_lshlrev_b32 v{vVr}, 4, v{vVr}")
    o(f"v_lshrrev_b32 v{vX+2}, 5, v{vL}")
    o(f"v_lshl_add_u32 v{vVr}, v{vX+2}, 10, v{vVr}")
    vL4 = vX + 3
    o(f"v_lshlrev_b32 v{vL4}, 2, v{vL}")
    o(f"s_lshl_b32 s{sT0}, s{sW}, 8")
    o(f"v_add_u32 v{vRw}, s{sT0}, v{vL4}")
    vRr = [None, 1, 2, 3]
    for hs in (1, 2, 3):
        o(f"s_add_u32 s{sT0}, s{sW}, {hs}"); o(f"s_and_b32 s{sT0}, s{sT0}, 3"); o(f"s_lshl_b32 s{sT0}, s{sT0}, 8")
        o(f"v_add_u32 v{vRr[hs]}, s{sT0}, v{vL4}")
    vOnes = 4
    for r in range(4): o(f"v_mov_b32 v{vOnes+r}, 0x3f803f80")

    LDS_R = 36864
    A.label("L_step")
    nst[0] = 0
    if KVCHK:
        o(f"s_add_u32 s{sT0}, s{sStep}, 2"); o(f"s_and_b32 s{sT1}, s{sT0}, 7"); o(f"s_cmp_lg_u32 s{sT1}, 0"); o("s_cbranch_scc1 L_kvskip")
        o(f"s_cmp_ge_u32 s{sT0}, 64"); o("s_cbranch_scc1 L_kvskip")
        o(f"v_readfirstlane_b32 s{sT1}, v{vFlag}")
        o(f"s_cmp_ge_u32 s{sT1}, 4"); o("s_cbranch_scc1 L_kvskip")
        o(f"s_lshr_b32 s{sT0}, s{sT0}, 3")
        kv_wait(None, 4, "n")
        A.label("L_kvskip")
    o(f"s_and_b32 s{sSlot}, s{sStep}, 3")
    o(f"s_lshl_b32 s{sT0}, s{sSlot}, 17")
    o(f"s_lshl_b32 s{sT1}, s{sG}, 14")
    o(f"s_add_u32 s{sT2}, s{sT0}, s{sT1}")
    addbase(sMEMc, WS_RMEM, sT2)
    e3_loads = [(vB + 4*u, f"v{vE3}, {s(sMEMc,2)} offset:{u*1024} sc1") for u in range(4)]
    def qk_mfma(i, first=False):
        for half, acc in ((0, vA0), (1, vA1)):
            c = "0" if first else v(acc, 4)
            o(f"v_mfma_f32_16x16x32_bf16 {v(acc,4)}, {a((i*2+half)*4,4)}, {v(vB+4*i,4)}, {c}")
    def salu_bases():
        addbase(sQK, WS_RQK, sT2)
        o(f"s_lshl_b32 s{sT3}, s{sStep}, 17")
        addbase(sPART, WS_PARTF, sT3)
        o(f"s_add_u32 s{sPART2}, s{sPART}, 65536"); o(f"s_addc_u32 s{sPART2+1}, s{sPART+1}, 0")
        o(f"s_lshr_b32 s{sT3}, s{sT2}, 1")
        addbase(sVR, WS_RV, sT3)
        o(f"s_add_u32 s{sT3}, s{sStep}, 1"); o(f"s_and_b32 s{sT3}, s{sT3}, 3"); o(f"s_lshl_b32 s{sT3}, s{sT3}, 17"); o(f"s_add_u32 s{sT3}, s{sT3}, s{sT1}")
        addbase(sMEMn, WS_RMEM, sT3)
        o(f"s_xor_b32 s{sT3}, s{sT0}, {2<<17}")
        o(f"s_add_u32 s{sT3}, s{sT3}, s{sT1}")
        addbase(sRq, WS_RQK, sT3)
        o(f"s_lshr_b32 s{sT3}, s{sT3}, 1")
        addbase(sRv, WS_RV, sT3)
        o(f"s_add_u32 s{sT3}, s{sStep}, 3"); o(f"s_and_b32 s{sT3}, s{sT3}, 3"); o(f"s_lshl_b32 s{sT3}, s{sT3}, 17"); o(f"s_add_u32 s{sT3}, s{sT3}, s{sT1}")
        addbase(sRm, WS_RMEM, sT3)
    def simple_poll(loads, tag, cnt, first_wait):
        regs = [b + r for b, _ in loads for r in range(4)]
        o(f"s_waitcnt vmcnt({first_wait})")
        o(f"s_branch L_{tag}_c")
        A.label(f"L_{tag}_r")
        for b, rest in loads: o(f"global_load_dwordx4 {v(b,4)}, {rest}")
        o("s_waitcnt vmcnt(0)")
        A.label(f"L_{tag}_c")
        check(regs, f"L_{tag}_ok", f"L_{tag}_r", vX, cnt)
    if E3_SALU_FIRST: salu_bases()
    stamp()
    for b, rest in e3_loads: o(f"global_load_dwordx4 {v(b,4)}, {rest}")
    if not E3_SALU_FIRST: salu_bases()
    simple_poll(e3_loads, "e3", 0, 0)
    if SIG:
        o(f"s_sub_u32 s{sT3}, s{sStep}, 1"); o(f"s_cbranch_scc1 L_nosig")
        o(f"s_and_b32 s{sT0}, s{sT3}, 15"); o(f"s_cmp_lg_u32 s{sT0}, s{sJ}"); o("s_cbranch_scc1 L_nosig")
        o(f"s_lshl_b32 s{sT0}, s{sT3}, 7"); o(f"s_add_u32 s{sT0}, s{sT0}, {CNT_REC}")
        o(f"v_mov_b32 v{vX+2}, s{sT0}"); o(f"v_mov_b32 v{vX+3}, 1")
        o("s_mov_b64 exec, 1")
        o(f"global_atomic_add v{vX+2}, v{vX+3}, {s(sCNT,2)}")
        o("s_mov_b64 exec, -1")
        A.label("L_nosig")
    for u, (b, rest) in enumerate(e3_loads):
        o(f"ds_write_b128 v{vE3}, {v(b,4)} offset:{LDS_MEM + u*1024}")
    for u in range(4): qk_mfma(u, first=(u == 0))
    stamp()
    o("s_waitcnt lgkmcnt(0)")
    o("s_barrier")
    for i in range(4, 16):
        o(f"ds_read_b128 {v(vB+4*i,4)}, v{vRd[i//4]} offset:{LDS_MEM + (i%4)*1024}")
    vxl = vx_loads()
    for i in range(4, 16):
        o(f"s_waitcnt lgkmcnt({15-i})")
        qk_mfma(i)
        if i % VSP == VSP - 1 and vxl: o(vxl.pop(0))
    stamp()
    for r in range(4):
        o(f"v_add_f32_dpp v{vA0+r}, v{vA1+r}, v{vA0+r} row_ror:8 row_mask:0xf bank_mask:0xf")
    R = vX + 4
    o(f"v_cvt_pk_bf16_f32 v{R}, v{vA0}, v{vA0+1}")
    o(f"v_cvt_pk_bf16_f32 v{R+1}, v{vA0+2}, v{vA0+3}")
    o(f"v_permlane16_swap_b32 v{R}, v{R+2}")
    o(f"v_permlane16_swap_b32 v{R+1}, v{R+3}")
    o(f"s_mov_b64 exec, {s(sMaskQK,2)}")
    o(f"global_store_dwordx4 v{vQKst}, {v(R,4)}, {s(sQK,2)}{st_fast}")
    o("s_mov_b64 exec, -1")
    stamp()
    e1_loads = [(vQ + 4*cp, f"v{vE3}, {s(sQK,2)} offset:{cp*1024} sc1") for cp in range(2)] + [(vKm + 4*cp, f"v{vE3}, {s(sQK,2)} offset:{2048+cp*1024} sc1") for cp in range(2)]
    def e1_issue():
        for b, rest in e1_loads: o(f"global_load_dwordx4 {v(b,4)}, {rest}")
    for i in range(8):
        for half, acc in ((0, vAv0), (1, vAv1)):
            c = "0" if i == 0 else v(acc, 4)
            o(f"v_mfma_f32_16x16x32_bf16 {v(acc,4)}, {v(vB+4*i,4)}, {a(128+(i*2+half)*4,4)}, {c}")
        if vxl and i % 2 == 1: o(vxl.pop(0))
        if i == E1_AT:
            emit(vxl); vxl = []
            e1_issue()
    emit(vxl)
    for r in range(4):
        o(f"v_cndmask_b32 v{vAv0+r}, v{vAv1+r}, v{vAv0+r}, {s(sSelV,2)}")
    o(f"ds_write_b128 v{vVw}, {v(vAv0,4)} offset:{LDS_V}")
    o("s_waitcnt lgkmcnt(0)")
    o("s_barrier")
    o(f"s_cmp_lg_u32 s{sW}, 0")
    o("s_cbranch_scc1 L_vred_skip")
    T = vA0
    for k, off in enumerate((0, 512, 2048, 2560)):
        o(f"ds_read_b128 {v(T+4*k,4)}, v{vVr} offset:{LDS_V+off}")
    o("s_waitcnt lgkmcnt(0)")
    for r in range(4):
        o(f"v_add_f32 v{T+r}, v{T+r}, v{T+4+r}")
        o(f"v_add_f32 v{T+8+r}, v{T+8+r}, v{T+12+r}")
    for r in range(4):
        o(f"v_add_f32 v{T+r}, v{T+r}, v{T+8+r}")
    o(f"v_cvt_pk_bf16_f32 v{R}, v{T}, v{T+1}")
    o(f"v_cvt_pk_bf16_f32 v{R+1}, v{T+2}, v{T+3}")
    o(f"v_permlane32_swap_b32 v{R}, v{R+2}")
    o(f"v_permlane32_swap_b32 v{R+1}, v{R+3}")
    o(f"s_mov_b64 exec, {s(sSelV,2)}")
    o(f"global_store_dwordx4 v{vVst}, {v(R,4)}, {s(sVR,2)}{st_fast}")
    o("s_mov_b64 exec, -1")
    o("s_waitcnt vmcnt(1)")
    o("s_branch L_e1_c")
    A.label("L_e1_r")
    e1_issue()
    A.label("L_vred_skip")
    o("s_waitcnt vmcnt(0)")
    A.label("L_e1_c")
    check([b + r for b, _ in e1_loads for r in range(4)], "L_e1_ok", "L_e1_r", vX, 1)
    stamp()
    def M32(d, A_, B_, C_): return f"v_mfma_f32_16x16x32_bf16 {v(d,4)}, {A_}, {B_}, {C_}"
    def rot(dst, srcr): return [f"v_mov_b32_dpp v{dst+r}, v{srcr+r} row_ror:8 row_mask:0xf bank_mask:0xf" for r in range(4)]
    Kf = lambda kt, u: v(vK + (kt*4+u)*4, 4)
    seq = []
    seq += [M32(vSx, Kf(0,0), v(vQ,4), "0")] + rot(vQr, vQ)[:2]
    seq += [M32(vSx+4, Kf(1,0), v(vQ,4), "0")] + rot(vQr, vQ)[2:]
    seq += [M32(vSm, v(vKm,4), v(vQ,4), v(vNeg,4))] + rot(vQr+4, vQ+4)[:2]
    seq += [M32(vSx, Kf(0,2), v(vQ+4,4), v(vSx,4))] + rot(vQr+4, vQ+4)[2:]
    seq += [M32(vSx+4, Kf(1,2), v(vQ+4,4), v(vSx+4,4))] + rot(vKr, vKm)[:2]
    seq += [M32(vSm, v(vKm+4,4), v(vQ+4,4), v(vSm,4))] + rot(vKr, vKm)[2:]
    seq += [M32(vSx, Kf(0,1), v(vQr,4), v(vSx,4))] + rot(vKr+4, vKm+4)[:2]
    seq += [M32(vSx+4, Kf(1,1), v(vQr,4), v(vSx+4,4))] + rot(vKr+4, vKm+4)[2:]
    seq += [M32(vSx, Kf(0,3), v(vQr+4,4), v(vSx,4))]
    seq += [M32(vSx+4, Kf(1,3), v(vQr+4,4), v(vSx+4,4))]
    seq += [M32(vSm, v(vKr,4), v(vQr,4), v(vSm,4))]
    seq += [M32(vSm, v(vKr+4,4), v(vQr+4,4), v(vSm,4))]
    emit(seq)
    if not FIXKV:
        o(f"s_add_u32 s{sKX}, s{sKX}, 262144"); o(f"s_addc_u32 s{sKX+1}, s{sKX+1}, 0")
    vm_loads = [(vVm + 4*mm, f"v{vVld}, {s(sVR,2)} offset:{mm*1024} sc1") for mm in range(2)]
    for b, rest in vm_loads: o(f"global_load_dwordx4 {v(b,4)}, {rest}")
    if PF and PFE: o(f"global_load_dwordx4 {v(vPf,4)}, v{vPfo}, {s(sPF,2)}")
    m, t = vX + 1, vX + 2
    Sall = list(range(vSx, vSx + 8)) + list(range(vSm, vSm + 4))
    m2 = vX + 3
    o(f"v_max3_f32 v{m}, v{Sall[0]}, v{Sall[1]}, v{Sall[2]}")
    o(f"v_max3_f32 v{m2}, v{Sall[4]}, v{Sall[5]}, v{Sall[6]}")
    o(f"v_max3_f32 v{m}, v{m}, v{Sall[3]}, v{Sall[7]}")
    o(f"v_max3_f32 v{m2}, v{m2}, v{Sall[8]}, v{Sall[9]}")
    o(f"v_max3_f32 v{m}, v{m}, v{Sall[10]}, v{Sall[11]}")
    o(f"v_max_f32 v{m}, v{m}, v{m2}")
    for sw in ("16", "32"):
        o(f"v_mov_b32 v{t}, v{m}")
        o(f"v_permlane{sw}_swap_b32 v{m}, v{t}")
        o(f"v_max_f32 v{m}, v{m}, v{t}")
    mm_ = vX + 2
    o(f"v_mul_f32 v{mm_}, s{sScale}, v{m}")
    kxl = kx_loads()
    main = []
    for r in Sall[::2]: main.append(f"v_pk_fma_f32 {v(r,2)}, {v(r,2)}, {s(sScale,2)}, {v(mm_,2)} op_sel_hi:[1,1,0] neg_lo:[0,0,1] neg_hi:[0,0,1]")
    for k_, r in enumerate(Sall):
        main.append(f"v_exp_f32 v{r}, v{r}")
    emit(merge(main, [kxl.pop(0), kxl.pop(0)], 7))
    o(f"v_cvt_pk_bf16_f32 v{vPx}, v{vSx}, v{vSx+1}")
    o(f"v_cvt_pk_bf16_f32 v{vPx+1}, v{vSx+2}, v{vSx+3}")
    o(f"v_cvt_pk_bf16_f32 v{vPx+2}, v{vSx+4}, v{vSx+5}")
    o(f"v_cvt_pk_bf16_f32 v{vPx+3}, v{vSx+6}, v{vSx+7}")
    o(f"v_cvt_pk_bf16_f32 v{vPmA}, v{vSm}, v{vSm+1}")
    o(f"v_cvt_pk_bf16_f32 v{vPmA+1}, v{vSm+2}, v{vSm+3}")
    stamp()
    vLs = vSx
    pv = [M32(vO+4*tt, v(vV+4*tt,4), v(vPx,4), "0") for tt in range(8)]
    side = [f"v_mov_b32 v{vX+4}, v{vPmA}", f"v_mov_b32 v{vX+5}, v{vPmA+1}", f"v_mov_b32 v{vPmB}, 0", f"v_mov_b32 v{vPmB+1}, 0",
            f"v_permlane32_swap_b32 v{vPmB}, v{vX+4}", f"v_permlane32_swap_b32 v{vPmB+1}, v{vX+5}", kxl.pop(0)]
    emit(merge(pv, side, 1))
    o(M32(vLs, v(vOnes,4), v(vPx,4), "0"))
    o(f"v_mfma_f32_16x16x16_bf16 {v(vLs,4)}, {v(vOnes,2)}, {v(vPmA,2)}, {v(vLs,4)}")
    simple_poll(vm_loads, "vm", 2, 4 if (PF and PFE) else 3)
    stamp()
    if KVCHK:
        o(f"s_add_u32 s{sT0}, s{sStep}, 3"); o(f"s_and_b32 s{sT1}, s{sT0}, 7"); o(f"s_cmp_lg_u32 s{sT1}, 0"); o("s_cbranch_scc1 L_nofl")
        o(f"s_lshr_b32 s{sT0}, s{sT0}, 3"); o(f"s_lshl_b32 s{sT0}, s{sT0}, 3"); o(f"s_add_u32 s{sT0}, s{sT0}, s{sG}"); o(f"s_lshl_b32 s{sT0}, s{sT0}, 7")
        o(f"v_mov_b32 v{vFlag}, s{sT0}")
        o(f"global_load_dword v{vFlag}, v{vFlag}, {s(sCNT,2)} sc1")
        A.label("L_nofl")
    o(f"s_and_b32 s{sT0}, s{sStep}, 15"); o(f"s_cmp_lg_u32 s{sT0}, s{sJ}"); o("s_cbranch_scc1 L_nopub")
    for cp in range(2): o(f"global_store_dwordx4 v{vL16}, {v(vKm+4*cp,4)}, {s(sKM,2)} offset:{cp*1024}" + (" sc1" if SIG else ""))
    for cp in range(2): o(f"global_store_dwordx4 v{vL16}, {v(vVm+4*cp,4)}, {s(sVM,2)} offset:{cp*1024}" + (" sc1" if SIG else ""))
    A.label("L_nopub")
    if LAST_SHORT:
        o(f"s_cmp_eq_u32 s{sStep}, {nsteps-1}")
        o("s_cbranch_scc1 L_rec_last")
    if PF and not PFE: o(f"global_load_dwordx4 {v(vPf,4)}, v{vPfo}, {s(sPF,2)}")
    def pvm(tt):
        c, tv = tt >> 1, tt & 1
        pm = vPmB if (c & 1) else vPmA
        return f"v_mfma_f32_16x16x16_bf16 {v(vO+4*tt,4)}, {v(vVm+4*(c>>1)+2*tv,2)}, {v(pm,2)}, {v(vO+4*tt,4)}"
    def cvt(tt):
        u, h = tt >> 1, tt & 1
        return [f"v_cvt_pk_bf16_f32 v{vOb+4*u+2*h}, v{vO+4*tt}, v{vO+4*tt+1}", f"v_cvt_pk_bf16_f32 v{vOb+4*u+2*h+1}, v{vO+4*tt+2}, v{vO+4*tt+3}"]
    vCa = [16, 20, 24, 28]
    for tt in range(3): o(pvm(tt))
    l_ = vX + 1
    def cm(ct, u):
        c = "0" if u == 0 else v(vCa[ct], 4)
        return f"v_mfma_f32_16x16x32_bf16 {v(vCa[ct],4)}, {a(192+(ct*4+u)*4,4)}, {v(vOb+4*u,4)}, {c}"
    pend = []
    for tt in range(8):
        if tt + 3 < 8: o(pvm(tt + 3))
        cv = cvt(tt)
        o(cv[0])
        if pend: o(pend.pop(0))
        o(cv[1])
        if pend: o(pend.pop(0))
        if tt == 0: o(f"v_rcp_f32 v{l_}, v{vLs}")
        if tt % 2 == 1:
            pend += [cm(ct, tt >> 1) for ct in range(4)]
            if kxl: o(kxl.pop(0))
    emit(pend)
    for ct in range(4):
        pass
    o(f"v_mov_b32 v{vX+2}, v{l_}")
    for ct in range(4):
        o(f"v_pk_mul_f32 {v(vCa[ct],2)}, {v(vCa[ct],2)}, {v(vX+2,2)} op_sel_hi:[1,0]")
        o(f"v_pk_mul_f32 {v(vCa[ct]+2,2)}, {v(vCa[ct]+2,2)}, {v(vX+2,2)} op_sel_hi:[1,0]")
        o(f"ds_write_b128 v{vVw}, {v(vCa[ct],4)} offset:{LDS_O+ct*4096}")
    while kxl: o(kxl.pop(0))
    o("s_waitcnt lgkmcnt(0)")
    o("s_barrier")
    stamp()
    Rr = [112, 116, 120, 124]
    for sw in range(4): o(f"ds_read_b128 {v(Rr[sw],4)}, v{vE3} offset:{LDS_O+sw*1024}")
    vC = Rr[0]
    o("s_waitcnt lgkmcnt(2)")
    o(f"v_pk_add_f32 {v(Rr[0],2)}, {v(Rr[0],2)}, {v(Rr[1],2)}"); o(f"v_pk_add_f32 {v(Rr[0]+2,2)}, {v(Rr[0]+2,2)}, {v(Rr[1]+2,2)}")
    o("s_waitcnt lgkmcnt(0)")
    o(f"v_pk_add_f32 {v(Rr[2],2)}, {v(Rr[2],2)}, {v(Rr[3],2)}"); o(f"v_pk_add_f32 {v(Rr[2]+2,2)}, {v(Rr[2]+2,2)}, {v(Rr[3]+2,2)}")
    o(f"v_pk_add_f32 {v(Rr[0],2)}, {v(Rr[0],2)}, {v(Rr[2],2)}"); o(f"v_pk_add_f32 {v(Rr[0]+2,2)}, {v(Rr[0]+2,2)}, {v(Rr[2]+2,2)}")
    o(f"v_cvt_pk_bf16_f32 v{R}, v{vC}, v{vC+1}")
    o(f"v_cvt_pk_bf16_f32 v{R+1}, v{vC+2}, v{vC+3}")
    o(f"v_permlane16_swap_b32 v{R}, v{R+2}")
    o(f"v_permlane16_swap_b32 v{R+1}, v{R+3}")
    o(f"s_mov_b64 exec, {s(sMaskQK,2)}")
    if EP == 2:
        o("s_waitcnt vmcnt(0)")
        o(f"{TIMER} {s(sTs + 2*5, 2)}")
    o(f"global_store_dwordx4 v{vPst}, {v(R,4)}, {s(sPART,2)} sc1")
    stamp()
    if EP == 2:
        o("s_waitcnt vmcnt(0)")
        o(f"{TIMER} {s(sTs + 2*4, 2)}")
    o(f"global_store_dwordx4 v{vQKst}, {v(vSent,4)}, {s(sRq,2)}{st_fast}")
    o(f"s_mov_b64 exec, 0xffff")
    o(f"global_store_dwordx4 v{vMst}, {v(vSent,4)}, {s(sRm,2)}{st_fast}")
    o(f"s_cmp_lg_u32 s{sW}, 0")
    o("s_cbranch_scc1 L_norv")
    o(f"s_mov_b64 exec, {s(sSelV,2)}")
    o(f"global_store_dwordx4 v{vVst}, {v(vSent,4)}, {s(sRv,2)}{st_fast}")
    A.label("L_norv")
    o("s_mov_b64 exec, -1")
    if not FIXKV:
        o(f"s_add_u32 s{sVX}, s{sVX}, 262144"); o(f"s_addc_u32 s{sVX+1}, s{sVX+1}, 0")
    o(f"s_add_u32 s{sKM}, s{sKM}, 65536"); o(f"s_addc_u32 s{sKM+1}, s{sKM+1}, 0")
    o(f"s_add_u32 s{sVM}, s{sVM}, 65536"); o(f"s_addc_u32 s{sVM+1}, s{sVM+1}, 0")
    if E2_DELAY: o(f"s_sleep {E2_DELAY}")
    sets = [vB + 8 * k for k in range(E2_DEPTH)]
    def e2_issue(b):
        o(f"global_load_dwordx4 {v(b,4)}, v{vPld}, {s(sPART,2)} {E2F}")
        o(f"global_load_dwordx4 {v(b+4,4)}, v{vPld}, {s(sPART2,2)} {E2F}")
    if EP: o(f"{TIMER} {s(sTs + 2*2, 2)}")
    for k, b in enumerate(sets):
        e2_issue(b)
        if k + 1 < len(sets) and E2_SP: o(f"s_sleep {E2_SP}")
    if EP:
        o(f"s_waitcnt vmcnt({2*(len(sets)-1)})")
        o(f"{TIMER} {s(sTs + 2*3, 2)}")
    A.label("L_e2")
    for k, b in enumerate(sets):
        o(f"s_waitcnt vmcnt({2*(len(sets)-1)})")
        regs = list(range(b, b + 8))
        o(f"v_max3_u32 v{vX}, v{regs[0]}, v{regs[1]}, v{regs[2]}")
        o(f"v_max3_u32 v{vX}, v{vX}, v{regs[3]}, v{regs[4]}")
        o(f"v_max3_u32 v{vX}, v{vX}, v{regs[5]}, v{regs[6]}")
        o(f"v_max_u32 v{vX}, v{vX}, v{regs[7]}")
        o(f"v_cmp_eq_u32 vcc, -1, v{vX}")
        o(f"s_cbranch_vccz L_e2_ok{k}")
        if prof: o(f"s_add_u32 s{sCnt+3}, s{sCnt+3}, 1")
        e2_issue(b)
    o(f"s_sub_u32 s{sLim}, s{sLim}, 1")
    o(f"s_cbranch_scc0 L_e2")
    o(f"s_mov_b32 s{sLim}, 0")
    D = vA1
    for k, b in enumerate(sets):
        A.label(f"L_e2_ok{k}")
        o(f"v_mfma_f32_16x16x32_bf16 {v(D,4)}, {v(vDelta,4)}, {v(b,4)}, 0")
        o(f"v_mfma_f32_16x16x32_bf16 {v(D,4)}, {v(vDelta,4)}, {v(b+4,4)}, {v(D,4)}")
        if k + 1 < len(sets): o("s_branch L_e2_done")
    A.label("L_e2_done")
    o(f"s_add_u32 s{sPF}, s{sPF}, 262144"); o(f"s_addc_u32 s{sPF+1}, s{sPF+1}, 0")
    stamp()
    o("s_nop 7")
    o(f"v_cvt_pk_bf16_f32 v{R}, v{D}, v{D+1}")
    o(f"v_cvt_pk_bf16_f32 v{R+1}, v{D+2}, v{D+3}")
    o(f"v_permlane16_swap_b32 v{R}, v{R+2}")
    o(f"v_permlane16_swap_b32 v{R+1}, v{R+3}")
    o(f"s_mov_b64 exec, 0xffff")
    o(f"global_store_dwordx4 v{vMst}, {v(R,4)}, {s(sMEMn,2)}{st_fast}")
    o("s_mov_b64 exec, -1")
    stamp()
    if E3_DELAY: o(f"s_sleep {E3_DELAY}")
    if prof:
        o("s_waitcnt lgkmcnt(0)")
        for k in range(nst[0]):
            o(f"v_writelane_b32 v{vX+8}, s{sTs+2*k}, {k}")
        for k in range(4):
            o(f"v_writelane_b32 v{vX+8}, s{sCnt+k}, {11+k}")
        o(f"v_writelane_b32 v{vX+8}, s92, 15")
        o(f"s_lshl_b32 s{sT0}, s{sW}, 12")
        o(f"s_lshl_b32 s{sT1}, s{sStep}, 6")
        o(f"s_add_u32 s{sT0}, s{sT0}, s{sT1}")
        o(f"s_add_u32 s{sT0}, s{sT0}, 40960")
        o(f"v_lshlrev_b32 v{vX+9}, 2, v{vL}")
        o(f"v_add_u32 v{vX+9}, s{sT0}, v{vX+9}")
        o("s_mov_b64 exec, 0xffff")
        o(f"ds_write_b32 v{vX+9}, v{vX+8}")
        o("s_mov_b64 exec, -1")
    o(f"s_add_u32 s{sStep}, s{sStep}, 1")
    o(f"s_cmp_lt_u32 s{sStep}, {nsteps}")
    o("s_cbranch_scc1 L_step")
    o("s_branch L_rec_fin")
    A.label("L_rec_last")
    if SIG:
        o("s_waitcnt vmcnt(0)")
        o(f"s_and_b32 s{sT0}, s{sStep}, 15"); o(f"s_cmp_lg_u32 s{sT0}, s{sJ}"); o("s_cbranch_scc1 L_rec_fin")
        o(f"s_lshl_b32 s{sT0}, s{sStep}, 7"); o(f"s_add_u32 s{sT0}, s{sT0}, {CNT_REC}")
        o(f"v_mov_b32 v{vX+2}, s{sT0}"); o(f"v_mov_b32 v{vX+3}, 1")
        o("s_mov_b64 exec, 1")
        o(f"global_atomic_add v{vX+2}, v{vX+3}, {s(sCNT,2)}")
        o("s_mov_b64 exec, -1")
    A.label("L_rec_fin")
    if prof:
        o("s_waitcnt lgkmcnt(0)")
        o(f"s_lshl_b32 s{sT0}, s{sW}, 12")
        o(f"s_add_u32 s{sT0}, s{sT0}, 40960")
        o(f"v_add_u32 v{vX+9}, s{sT0}, v{vL16}")
        for k in range(4):
            o(f"ds_read_b128 {v(vB+4*k,4)}, v{vX+9} offset:{k*1024}")
        o("s_waitcnt lgkmcnt(0)")
        for k in range(4):
            o(f"global_store_dwordx4 v{vL16}, {v(vB+4*k,4)}, {s(sProf,2)} offset:{k*1024}")
    o("s_waitcnt vmcnt(0)")
    A.label("L_rec_end")
    o("s_endpgm")
    txt = A.finish()
    if embedded:
        import re
        return re.sub(r"\bL_", pfx + "L_", txt)
    return kernel_head(name) + txt + kernel_desc(name, 256, 256)

if __name__ == "__main__":
    import sys
    fast = "slow" not in sys.argv
    prof = "prof" in sys.argv
    ng = 256 if any(x.startswith("X4=1") for x in sys.argv) else 128
    hdr = f"; @launch kernel=rec_kernel grid=({ng},1,1) block=(256,1,1) lds=131072\n.amdgcn_target \"amdgcn-amd-amdhsa--gfx950\"\n.text\n"
    kw = {}
    for x in sys.argv[1:]:
        if "=" in x:
            k_, v_ = x.split("=");
            if k_ != "out": kw[k_] = int(v_) if v_.isdigit() else v_
    outn = [x.split("=")[1] for x in sys.argv if x.startswith("out=")]
    open(outn[0] if outn else "rec_test.s", "w").write(hdr + gen_rec(fast=fast, prof=prof, **kw))
```

```python
import sys
from layout import *
import k_gemms, mega2, mega3
NAME = "adaLN_cond__memory_aug_recurrent_mem_tr__mixer_token_mlp__prompt"
HDR = open("cdna_kernels/" + NAME + ".s.ref").read().split("; Override launch geometry")[0]
def build(out, prof=False, slow=False, place=8, opt=None):
    import k_small
    g2, l_g2 = k_gemms.gen_g2()
    p3 = (opt or {}).get("p3", 4)
    launches = [("mega_kernel", 256, 256, 131072)]
    extra = ""
    if p3 < 4:
        k_gemms.PROF = bool((opt or {}).get('tprof'))
        op, l_op = k_gemms.gen_op(); g1, l_g1 = k_gemms.gen_g1()
        if p3 == 0:
            import k_attn
            k_attn.PROF = bool((opt or {}).get('tprof'))
            if (opt or {}).get("at2"):
                launches += [("attn_kernel", 512, 256, 0)]; pre_extra = k_attn.gen_attn2()
            else:
                launches += [("attn_kernel", 1024, 256, 0)]; pre_extra = k_attn.gen_attn()
        else: pre_extra = ""
        launches += [("op_kernel", 256, 256, l_op), ("ln2_kernel", 64, 1024, 32 * 2112), ("g1_kernel", 224, 256, l_g1)]
        extra = pre_extra + op + k_small.gen_ln2() + g1
    if (opt or {}).get("tail2"):
        import k_tail
        k_tail.LOPT = {k_[2:]: v_ for k_, v_ in (opt or {}).items() if k_.startswith('l_')}
        k_tail.SENT = bool((opt or {}).get('sent'))
        k_tail.PROF = bool((opt or {}).get('tprof'))
        opln, l_opln = k_tail.gen_opln(); g2s, l_g2s = k_tail.gen_g2s()
        launches = [x for x in launches if x[0] not in ("op_kernel", "ln2_kernel")]
        pos = [i for i, x in enumerate(launches) if x[0] == "g1_kernel"][0]
        launches.insert(pos, ("opln_kernel", 256, 256, l_opln))
        launches += [("g2s_kernel", 256, 256, l_g2s)]
        extra = pre_extra + opln + g1; g2 = g2s
    else:
        launches += [("g2_kernel", 256, 256, l_g2)]
    t = HDR
    for k, g, b, l in launches: t += f"; @launch kernel={k} grid=({g},1,1) block=({b},1,1) lds={l}\n"
    t += '.amdgcn_target "amdgcn-amd-amdhsa--gfx950"\n.text\n'
    t += (mega3 if (opt or {}).get('m3') else mega2).gen_mega(recopt=dict(dict(E2_DEPTH=2, E2_SP=3, E2_DELAY=2, prof=prof, RT=1), **{k_[2:]: v_ for k_, v_ in (opt or {}).items() if k_.startswith('r_')}), force_slow=slow, place=place, opt=opt) + extra + g2
    open(out, "w").write(t)
if __name__ == "__main__":
    opt = {'S': 4}
    for x in sys.argv[2:]:
        if '=' in x: opt[x.split('=')[0]] = int(x.split('=')[1])
    build(sys.argv[1], 'prof' in sys.argv, 'slow' in sys.argv, 4 if 'p4' in sys.argv else 8, opt)
```

```python
from asmlib import *
from layout import *
from gemm import Gemm, gen_loop
from k_qkv import srd
from k_small import fbits, LOG2E, wave_sum, ln_rows, unpack8, gfun
from k_attn import attn_body
from mega import qkv_tile
import mega2
from mega2 import (sW, sXb, sI, sWS, sCNT, sB, sCh, sRound, sChk, sLim, sCt, sTok, sCntOff, sDBG, SLOW_OFF, CNT_MODB,
                   mod_task, silu_to_lds, prefetch_task, fast_check, wait_cnt, signal)
import rec12 as rec
import re, math
sEC = 94

def ewait(A, idx_imm, target, tag, idx_s=None, sleep=6):
    o = A
    o(f"s_cmp_lg_u32 s{sW}, 0"); o(f"s_cbranch_scc1 L_ew_{tag}_b")
    if idx_s is None: o(f"v_mov_b32 v2, {idx_imm*4}")
    else:
        o(f"s_lshl_b32 s44, s{idx_s}, 2"); o(f"s_add_u32 s44, s44, {idx_imm*4}"); o("v_mov_b32 v2, s44")
    A.label(f"L_ew_{tag}")
    o(f"global_load_dword v3, v2, {s(sEC,2)} sc1"); o("s_waitcnt vmcnt(0)"); o("v_readfirstlane_b32 s44, v3")
    o(f"s_cmp_ge_u32 s44, {target}"); o(f"s_cbranch_scc1 L_ew_{tag}_b")
    o(f"s_sleep {sleep}"); o(f"s_sub_u32 s{sLim}, s{sLim}, 1"); o(f"s_cbranch_scc0 L_ew_{tag}"); o(f"s_mov_b32 s{sLim}, 0")
    A.label(f"L_ew_{tag}_b")
    o("s_barrier")

def esignal(A, idx_imm, tag, idx_s=None):
    o = A
    o("s_waitcnt vmcnt(0)"); o("s_barrier")
    o(f"s_cmp_lg_u32 s{sW}, 0"); o(f"s_cbranch_scc1 L_es_{tag}")
    if idx_s is None: o(f"v_mov_b32 v2, {idx_imm*4}")
    else:
        o(f"s_lshl_b32 s44, s{idx_s}, 2"); o(f"s_add_u32 s44, s44, {idx_imm*4}"); o("v_mov_b32 v2, s44")
    o("v_mov_b32 v3, 1"); o("s_mov_b64 exec, 1"); o(f"global_atomic_add v2, v3, {s(sEC,2)}"); o("s_mov_b64 exec, -1")
    A.label(f"L_es_{tag}")

def mod_partial(A):
    o = A
    o(f"s_load_dwordx2 s[8:9], s[0:1], {KA_WMOD}"); o(f"s_load_dwordx2 s[10:11], s[0:1], {KA_C}")
    o("s_lshr_b32 s12, s2, 6"); o("s_lshl_b32 s12, s12, 8"); o(f"s_lshl_b32 s13, s{sW}, 6"); o("s_add_u32 s12, s12, s13")
    o("v_lshrrev_b32 v5, 2, v0"); o("v_add_u32 v5, s12, v5")
    o("s_mov_b32 s13, 12288"); o("v_mul_lo_u32 v7, v5, s13"); o("v_and_b32 v26, 3, v0"); o("v_lshl_add_u32 v7, v26, 4, v7")
    o("s_and_b32 s14, s2, 63"); o("s_lshl_b32 s14, s14, 6"); o("v_add_u32 v7, s14, v7")
    o("v_lshlrev_b32 v6, 1, v5")
    o("s_waitcnt lgkmcnt(0)")
    W, Cc, AC = 32, 48, 56
    for it in range(4):
        o(f"global_load_dwordx4 {v(W+4*it,4)}, v7, s[8:9]"); o(f"v_add_u32 v7, {16*12288}, v7")
        o(f"global_load_ushort v{Cc+it}, v6, s[10:11] offset:{it*32}")
    for e in range(8): o(f"v_mov_b32 v{AC+e}, 0")
    o(f"s_mov_b32 s12, {fbits(-LOG2E)}")
    o("s_waitcnt vmcnt(0)")
    for it in range(4):
        c = Cc + it
        o(f"v_lshlrev_b32 v{c}, 16, v{c}"); o(f"v_mul_f32 v27, s12, v{c}"); o("v_exp_f32 v27, v27"); o("v_add_f32 v27, 1.0, v27"); o("v_rcp_f32 v27, v27")
        o(f"v_mul_f32 v27, v{c}, v27"); o("v_cvt_pk_bf16_f32 v27, v27, v27"); o(f"v_lshlrev_b32 v{c}, 16, v27")
        for d in range(4):
            o(f"v_lshlrev_b32 v27, 16, v{W+4*it+d}"); o(f"v_and_b32 v28, 0xffff0000, v{W+4*it+d}")
            o(f"v_fmac_f32 v{AC+2*d}, v27, v{c}"); o(f"v_fmac_f32 v{AC+2*d+1}, v28, v{c}")
    for e in range(8):
        x = AC + e
        o(f"v_add_f32_dpp v{x}, v{x}, v{x} row_ror:4 row_mask:0xf bank_mask:0xf")
        o(f"v_add_f32_dpp v{x}, v{x}, v{x} row_ror:8 row_mask:0xf bank_mask:0xf")
        for sw in ("16", "32"):
            o(f"v_mov_b32 v27, v{x}"); o(f"v_permlane{sw}_swap_b32 v{x}, v27"); o(f"v_add_f32 v{x}, v{x}, v27")
    o(f"s_lshl_b32 s12, s{sW}, 7"); o("v_lshlrev_b32 v5, 5, v26"); o("v_add_u32 v5, s12, v5")
    o("s_mov_b64 exec, 0xf")
    o(f"ds_write_b128 v5, {v(AC,4)} offset:4096"); o(f"ds_write_b128 v5, {v(AC+4,4)} offset:4112")
    o("s_mov_b64 exec, -1")
    o("s_waitcnt lgkmcnt(0)"); o("s_barrier")
    o(f"s_cmp_lg_u32 s{sW}, 0"); o("s_cbranch_scc1 L_mp_d")
    o("v_lshlrev_b32 v5, 2, v0"); o("s_mov_b64 exec, 0xffffffff")
    for w in range(4): o(f"ds_read_b32 v{32+w}, v5 offset:{4096+w*128}")
    o("s_waitcnt lgkmcnt(0)")
    o("v_add_f32 v32, v32, v33"); o("v_add_f32 v34, v34, v35"); o("v_add_f32 v32, v32, v34")
    o("s_lshr_b32 s12, s2, 6"); o("s_lshl_b32 s12, s12, 13"); o("s_and_b32 s13, s2, 63"); o("s_lshl_b32 s13, s13, 7"); o("s_add_u32 s12, s12, s13"); o(f"s_add_u32 s12, s12, {WS_MODP}")
    o("v_add_u32 v5, s12, v5")
    o(f"global_store_dword v5, v32, {s(sWS,2)} sc1")
    o("s_waitcnt vmcnt(0)")
    o("s_mov_b64 exec, 1"); o(f"v_mov_b32 v2, {EC_MODP*4}"); o("v_mov_b32 v3, 1"); o(f"global_atomic_add v2, v3, {s(sEC,2)}")
    o("s_mov_b64 exec, -1")
    A.label("L_mp_d")

def fills(A, sIdx, nwg, tag, p0=0, p1=8 * MiB, small=True):
    o = A
    o(f"s_lshl_b32 s12, s{sW}, 10"); o("v_lshlrev_b32 v3, 4, v0"); o("v_add_u32 v3, s12, v3")
    for r in range(4): o(f"v_mov_b32 v{8+r}, -1")
    per = (p1 - p0) // nwg
    assert per % 4096 == 0
    o(f"s_mul_i32 s12, s{sIdx}, {per}"); o(f"s_add_u32 s12, s12, {WS_PARTF + p0}")
    o(f"s_add_u32 s14, s{sWS}, s12"); o(f"s_addc_u32 s15, s{sWS+1}, 0")
    for k in range(per // 4096):
        o("global_store_dwordx4 v3, v[8:11], s[14:15] sc1"); o("s_add_u32 s14, s14, 4096"); o("s_addc_u32 s15, s15, 0")
    if not small: return
    o(f"s_cmp_ge_u32 s{sIdx}, 128"); o(f"s_cbranch_scc1 L_fl_{tag}_d")
    o(f"s_lshl_b32 s12, s{sIdx}, 12")
    o(f"s_add_u32 s13, s12, {WS_RQK}"); o(f"s_add_u32 s14, s{sWS}, s13"); o(f"s_addc_u32 s15, s{sWS+1}, 0")
    o("global_store_dwordx4 v3, v[8:11], s[14:15] sc1")
    o(f"s_add_u32 s13, s12, {WS_RMEM}"); o(f"s_add_u32 s14, s{sWS}, s13"); o(f"s_addc_u32 s15, s{sWS+1}, 0")
    o(f"s_cmp_lt_u32 s{sIdx}, 32"); o(f"s_cbranch_scc1 L_fl_{tag}_img")
    o("global_store_dwordx4 v3, v[8:11], s[14:15] sc1"); o(f"s_branch L_fl_{tag}_2")
    A.label(f"L_fl_{tag}_img")
    o(f"s_load_dwordx2 s[10:11], s[0:1], {KA_MEM0}")
    o(f"s_and_b32 s16, s{sIdx}, 3"); o("s_lshl_b32 s16, s16, 2"); o(f"s_add_u32 s16, s16, s{sW}"); o("s_lshl_b32 s16, s16, 7")
    o("v_and_b32 v5, 7, v0"); o("v_lshlrev_b32 v5, 11, v5"); o("v_bfe_u32 v6, v0, 3, 1"); o("v_lshl_add_u32 v5, v6, 6, v5")
    o("v_lshrrev_b32 v6, 4, v0"); o("v_lshl_add_u32 v5, v6, 4, v5"); o("v_add_u32 v5, s16, v5")
    o("s_waitcnt lgkmcnt(0)")
    o("global_load_dwordx4 v[16:19], v5, s[10:11]"); o("s_waitcnt vmcnt(0)")
    o("global_store_dwordx4 v3, v[16:19], s[14:15] sc1")
    A.label(f"L_fl_{tag}_2")
    o(f"s_cmp_ge_u32 s{sIdx}, 64"); o(f"s_cbranch_scc1 L_fl_{tag}_z")
    o(f"s_add_u32 s13, s12, {WS_RV}"); o(f"s_add_u32 s14, s{sWS}, s13"); o(f"s_addc_u32 s15, s{sWS+1}, 0")
    o("global_store_dwordx4 v3, v[8:11], s[14:15] sc1"); o(f"s_branch L_fl_{tag}_d")
    A.label(f"L_fl_{tag}_z")
    o(f"s_cmp_ge_u32 s{sIdx}, 112"); o(f"s_cbranch_scc1 L_fl_{tag}_d")
    o(f"s_sub_u32 s12, s{sIdx}, 64"); o("s_lshl_b32 s12, s12, 12"); o(f"s_add_u32 s12, s12, {WS_CNT}")
    o(f"s_add_u32 s14, s{sWS}, s12"); o(f"s_addc_u32 s15, s{sWS+1}, 0")
    for r in range(4): o(f"v_mov_b32 v{12+r}, 0")
    o("global_store_dwordx4 v3, v[12:15], s[14:15] sc1")
    A.label(f"L_fl_{tag}_d")

def ln1_task2(A):
    o = A
    o("s_load_dwordx2 s[8:9], s[0:1], %d" % KA_X)
    o("v_lshlrev_b32 v2, 4, v0")
    o(f"s_lshl_b32 s14, s{sB}, 4"); o(f"s_lshl_b32 s15, s{sW}, 2"); o("s_add_u32 s14, s14, s15")
    o("s_waitcnt lgkmcnt(0)")
    o("s_lshl_b32 s15, s14, 11"); o("s_add_u32 s10, s8, s15"); o("s_addc_u32 s11, s9, 0")
    RAW = 96
    for r in range(4):
        off = (r % 2) * 2048
        if r == 2: o("s_add_u32 s10, s10, 4096"); o("s_addc_u32 s11, s11, 0")
        o(f"global_load_dwordx4 {v(RAW+8*r,4)}, v2, s[10:11] offset:{off}"); o(f"global_load_dwordx4 {v(RAW+8*r+4,4)}, v2, s[10:11] offset:{off+1024}")
    X = [128, 144, 160, 176]
    o("s_waitcnt vmcnt(0)")
    for r in range(4):
        unpack8(o, X[r], RAW + 8 * r); unpack8(o, X[r] + 8, RAW + 8 * r + 4)
    ln_rows(o, X, 4, [4, 5], 1e-5)
    o("s_mov_b32 s83, s14")
    ewait(A, EC_MODP, 256, "mp")
    o("s_mov_b32 s14, s83")
    o("v_lshlrev_b32 v3, 5, v0")
    SA, CA, T = 64, 80, 32
    for dst, base in ((SA, 0), (CA, 4096)):
        for q in range(4):
            o(f"s_add_u32 s12, s{sWS}, {WS_MODP + q*8192 + base}"); o(f"s_addc_u32 s13, s{sWS+1}, 0")
            D = dst if q == 0 else T + 0
            tgt = dst if q == 0 else 192 + 16 * (q - 1)
            for h in range(2):
                for k in range(2): o(f"global_load_dwordx4 {v(tgt+8*h+4*k,4)}, v3, s[12:13] offset:{h*2048+k*16} sc1")
        o("s_waitcnt vmcnt(0)")
        for q in range(1, 4):
            for e in range(16): o(f"v_add_f32 v{dst+e}, v{dst+e}, v{192+16*(q-1)+e}")
        for e in range(0, 16, 2):
            o(f"v_cvt_pk_bf16_f32 v6, v{dst+e}, v{dst+e+1}"); o(f"v_lshlrev_b32 v{dst+e}, 16, v6"); o(f"v_and_b32 v{dst+e+1}, 0xffff0000, v6")
    for e in range(16): o(f"v_add_f32 v{CA+e}, 1.0, v{CA+e}")
    for r in range(4):
        R0 = RAW + 8 * r
        for e in range(16): o(f"v_fma_f32 v{X[r]+e}, v{X[r]+e}, v{CA+e}, v{SA+e}")
        for h in range(2):
            for d in range(4): o(f"v_cvt_pk_bf16_f32 v{R0+4*h+d}, v{X[r]+8*h+2*d}, v{X[r]+8*h+2*d+1}")
        o(f"s_add_u32 s16, s14, {r}"); o("s_lshr_b32 s17, s16, 4"); o("s_and_b32 s16, s16, 15")
        o("s_lshr_b32 s18, s16, 2"); o("s_lshr_b32 s19, s18, 1"); o("s_and_b32 s18, s18, 1"); o("s_xor_b32 s18, s18, s19"); o("s_lshl_b32 s18, s18, 1"); o("s_or_b32 s18, s18, s19")
        o("v_and_b32 v4, 3, v0"); o("v_xor_b32 v4, s18, v4"); o("v_lshlrev_b32 v4, 4, v4")
        o("v_lshrrev_b32 v5, 2, v0"); o("v_lshl_add_u32 v4, v5, 17, v4")
        o("s_lshl_b32 s17, s17, 10"); o("s_lshl_b32 s16, s16, 6"); o("s_add_u32 s17, s17, s16"); o(f"s_add_u32 s17, s17, {WS_H}")
        o("v_add_u32 v4, s17, v4")
        o(f"global_store_dwordx4 v4, {v(R0,4)}, {s(sWS,2)} sc1")
        o(f"v_add_u32 v4, {16*131072}, v4")
        o(f"global_store_dwordx4 v4, {v(R0+4,4)}, {s(sWS,2)} sc1")

def kv_small(A, swap, lab, sCs, opt):
    o = A
    from gemm import gen_loop3
    sX, sY, sO = 8, 12, 16
    sOffX, sOffY, sM0, sK = 20, 21, [22, 23], 24
    sT = [25, 26, 27, 28]
    G = Gemm(A, 2, 4, swap, "s")
    o(f"s_lshl_b32 s{sOffX}, s{sCs}, 7"); o(f"s_lshl_b32 s{sOffY}, s{sTok}, 6")
    o(f"s_mul_i32 s{sM0[0]}, s{sW}, {G.NIX*1024}"); o(f"s_mul_i32 s{sM0[1]}, s{sW}, {G.NIY*1024}")
    G.setup(sW, 0, 8192, 0, [1, 2, 3, 4, 5, 6], sT)
    gen_loop3(G, sX, sY, sOffX, sOffY, sM0, sK, 32 * 8192, 128 * 1024, 32, lab, K=2, R=8)
    E = G.vF; vLo = 1
    o(f"s_lshr_b32 s{sT[0]}, s{sCs}, 1")
    o(f"s_lshr_b32 s{sT[1]}, s{sTok}, 5"); o(f"s_lshr_b32 s{sT[2]}, s{sW}, 1"); o(f"s_lshl_b32 s{sT[2]}, s{sT[2]}, 1"); o(f"s_add_u32 s{sT[1]}, s{sT[1]}, s{sT[2]}")
    o(f"s_lshl_b32 s{sT[1]}, s{sT[1]}, 5"); o(f"s_add_u32 s{sT[0]}, s{sT[0]}, s{sT[1]}"); o(f"s_lshl_b32 s{sT[0]}, s{sT[0]}, 13")
    o(f"s_and_b32 s{sT[1]}, s{sCs}, 1"); o(f"s_and_b32 s{sT[2]}, s{sW}, 1")
    if not swap:
        o(f"s_lshl_b32 s{sT[1]}, s{sT[1]}, 1"); o(f"s_add_u32 s{sT[1]}, s{sT[1]}, s{sT[2]}")
    else:
        o(f"s_lshl_b32 s{sT[1]}, s{sT[1]}, 2"); o(f"s_lshl_b32 s{sT[2]}, s{sT[2]}, 1"); o(f"s_add_u32 s{sT[1]}, s{sT[1]}, s{sT[2]}")
    o(f"s_lshl_b32 s{sT[1]}, s{sT[1]}, 10"); o(f"s_add_u32 s{sT[0]}, s{sT[0]}, s{sT[1]}")
    def conv(P, T, ra, rb):
        for r in range(4): o(f"v_accvgpr_read_b32 v{T+r}, a{ra+r}")
        for r in range(4): o(f"v_accvgpr_read_b32 v{T+4+r}, a{rb+r}")
        o(f"v_cvt_pk_bf16_f32 v{P}, v{T}, v{T+1}"); o(f"v_cvt_pk_bf16_f32 v{P+1}, v{T+2}, v{T+3}")
        o(f"v_cvt_pk_bf16_f32 v{P+2}, v{T+4}, v{T+5}"); o(f"v_cvt_pk_bf16_f32 v{P+3}, v{T+6}, v{T+7}")
    k = 0
    if not swap:
        o(f"v_lshrrev_b32 v2, 4, v0"); o(f"v_and_b32 v3, 1, v2"); o(f"v_lshrrev_b32 v2, 1, v2"); o(f"v_lshl_or_b32 v2, v3, 1, v2")
        o(f"v_and_b32 v3, 15, v0"); o(f"v_lshl_or_b32 v2, v2, 4, v3"); o(f"v_lshlrev_b32 v{vLo}, 4, v2")
        for jy in range(4):
            o(f"s_add_u32 s{sT[1]}, s{sT[0]}, {(jy >> 1) * 262144 + (jy & 1) * 4096}")
            P = E + 12 * (k % 4); k += 1
            conv(P, P + 4, G.accr(0, jy), G.accr(1, jy))
            o(f"v_permlane16_swap_b32 v{P}, v{P+2}"); o(f"v_permlane16_swap_b32 v{P+1}, v{P+3}")
            o(f"buffer_store_dwordx4 {v(P,4)}, v{vLo}, {s(sO,4)}, s{sT[1]} offen sc1")
    else:
        o(f"v_lshlrev_b32 v{vLo}, 4, v0")
        for jp in range(2):
            o(f"s_add_u32 s{sT[1]}, s{sT[0]}, {jp*262144}")
            for jx in range(2):
                P = E + 12 * (k % 4); k += 1
                conv(P, P + 4, G.accr(jx, 2 * jp), G.accr(jx, 2 * jp + 1))
                o(f"buffer_store_dwordx4 {v(P,4)}, v{vLo}, {s(sO,4)}, s{sT[1]} offen offset:{jx*1024} sc1")
    o("s_waitcnt vmcnt(0)"); o("s_barrier")

def gen_bulk(opt):
    A = Asm(); o = A
    bprof = opt.get("bprof")
    def bstamp(k):
        if not bprof: return
        o("s_memrealtime s[72:73]"); o("s_waitcnt lgkmcnt(0)")
        o(f"s_lshl_b32 s74, s{sB}, 10"); o(f"s_add_u32 s74, s74, {WS_PROF + 4*MiB + k*4}")
        o("v_mov_b32 v250, s74"); o("v_mov_b32 v251, s72")
        o("s_mov_b64 exec, 1"); o(f"global_store_dword v250, v251, {s(sWS,2)}"); o("s_mov_b64 exec, -1")
    o(f"s_add_u32 s{sCNT}, s{sWS}, {WS_CNT}"); o(f"s_addc_u32 s{sCNT+1}, s{sWS+1}, 0")
    o(f"s_cmp_eq_u32 s{sChk}, 0"); o("s_cbranch_scc0 L_cb"); o(f"s_add_u32 s{sCNT}, s{sCNT}, {SLOW_OFF}"); o(f"s_addc_u32 s{sCNT+1}, s{sCNT+1}, 0")
    A.label("L_cb")
    o(f"s_lshl_b32 s{sB}, s{sXb}, 4"); o(f"s_add_u32 s{sB}, s{sB}, s{sI}")
    o(f"s_mov_b32 s{sLim}, 0x400000")
    bstamp(0)
    o(f"s_cmp_eq_u32 s{sChk}, 0"); o("s_cbranch_scc1 L_nofill")
    fills(A, sB, 128, "b", 0, 1 * MiB)
    A.label("L_nofill")
    ln1_task2(A)
    o(f"s_lshr_b32 s{sCntOff}, s{sB}, 4")
    esignal(A, EC_LN1, "l1", idx_s=sCntOff)
    esignal(A, EC_FILL, "fl")
    bstamp(1)
    o(f"s_cmp_eq_u32 s{sChk}, 0"); o("s_cbranch_scc1 L_nochk")
    fast_check(A, "b")
    o("s_cmp_eq_u32 s15, 0"); o("s_cbranch_scc1 M_slow")
    A.label("L_nochk")
    ewait(A, EC_LN1, 16, "l10")
    bstamp(2)
    def qkv_srds(sMat):
        o(f"s_lshl_b32 s45, s{sMat}, 3"); o("s_add_u32 s40, s0, s45"); o("s_addc_u32 s41, s1, 0")
        o(f"s_load_dwordx2 s[40:41], s[40:41], {KA_WQ}")
        o(f"s_lshl_b32 s45, s{sMat}, 24"); o(f"s_add_u32 s45, s45, {WS_Q}")
        o(f"s_add_u32 s16, s{sWS}, s45"); o(f"s_addc_u32 s17, s{sWS+1}, 0"); o("s_and_b32 s17, s17, 0xffff")
        o(f"s_mov_b32 s18, {16*MiB}"); o("s_mov_b32 s19, 0x00020000")
        srd(o, 12, sWS, WS_H, 4 * MiB)
        o("s_waitcnt lgkmcnt(0)")
        srd(o, 8, 40, 0, 8 * MiB)
    sMat, sCs = 85, 86
    o(f"s_lshr_b32 s{sMat}, s{sI}, 3"); o(f"s_add_u32 s{sMat}, s{sMat}, 1")
    o(f"s_lshl_b32 s{sCs}, s{sXb}, 3"); o(f"s_and_b32 s45, s{sI}, 7"); o(f"s_add_u32 s{sCs}, s{sCs}, s45")
    o(f"s_mov_b32 s{sTok}, 0")
    A.label("L_t0")
    qkv_srds(sMat)
    o(f"s_cmp_eq_u32 s{sMat}, 2"); o("s_cbranch_scc1 L_t0v")
    kv_small(A, False, "L_t0k", sCs, opt); o("s_branch L_t0s")
    A.label("L_t0v")
    kv_small(A, True, "L_t0vv", sCs, opt)
    A.label("L_t0s")
    o(f"s_lshr_b32 s{sCntOff}, s{sTok}, 7"); o(f"s_lshl_b32 s{sCntOff}, s{sCntOff}, 3"); o(f"s_add_u32 s{sCntOff}, s{sCntOff}, s{sXb}")
    esignal(A, EC_KVH0, "t0", idx_s=sCntOff)
    o(f"s_add_u32 s{sTok}, s{sTok}, 128"); o(f"s_cmp_lt_u32 s{sTok}, 256"); o("s_cbranch_scc1 L_t0")
    bstamp(3)
    o(f"s_cmp_eq_u32 s{sChk}, 0"); o("s_cbranch_scc1 L_nofill2")
    fills(A, sB, 128, "b2", 1 * MiB, 8 * MiB, small=False)
    A.label("L_nofill2")
    esignal(A, EC_FILL2, "fl2")
    ewait(A, EC_FILL, 128, "fl")
    o(f"s_mov_b32 s{sRound}, 0")
    A.label("L_task")
    t0, t1, t2 = 44, 45, 46
    o(f"s_lshl_b32 s{t0}, s{sXb}, 2"); o(f"s_and_b32 s{t1}, s{sI}, 3"); o(f"s_add_u32 s{t0}, s{t0}, s{t1}"); o(f"s_add_u32 s{t0}, s{t0}, 16")
    o(f"s_lshl_b32 s{t1}, s{sXb}, 1"); o(f"s_and_b32 s{t2}, s{sI}, 1"); o(f"s_add_u32 s{t1}, s{t1}, s{t2}")
    o(f"s_lshr_b32 s{t2}, s{sI}, 2")
    o(f"s_cmp_eq_u32 s{sRound}, 0"); o("s_cbranch_scc0 L_r1")
    o(f"s_mov_b32 s{sCt}, s{t0}"); o(f"s_lshl_b32 s{sTok}, s{t2}, 6"); o(f"s_add_u32 s{sTok}, s{sTok}, 256"); o("s_branch L_dec")
    A.label("L_r1")
    o(f"s_cmp_eq_u32 s{sRound}, 1"); o("s_cbranch_scc0 L_r2")
    o(f"s_mov_b32 s{sCt}, s{t0}"); o(f"s_add_u32 s{sTok}, s{t2}, 2"); o(f"s_lshl_b32 s{sTok}, s{sTok}, 8"); o("s_branch L_dec")
    A.label("L_r2")
    o(f"s_cmp_eq_u32 s{sRound}, 2"); o("s_cbranch_scc0 L_r3")
    o(f"s_cmp_lt_u32 s{sI}, 8"); o("s_cbranch_scc0 L_r2q")
    o(f"s_mov_b32 s{sCt}, s{t0}"); o(f"s_add_u32 s{sTok}, s{t2}, 6"); o(f"s_lshl_b32 s{sTok}, s{sTok}, 8"); o("s_branch L_dec")
    A.label("L_r2q")
    o(f"s_mov_b32 s{sCt}, s{t1}"); o(f"s_sub_u32 s{sTok}, s{sI}, 8"); o(f"s_lshr_b32 s{sTok}, s{sTok}, 1"); o(f"s_lshl_b32 s{sTok}, s{sTok}, 8"); o("s_branch L_dec")
    A.label("L_r3")
    o(f"s_cmp_eq_u32 s{sRound}, 3"); o("s_cbranch_scc0 L_phase3")
    o(f"s_cmp_lt_u32 s{sI}, 8"); o("s_cbranch_scc0 L_phase3")
    o(f"s_mov_b32 s{sCt}, s{t1}"); o(f"s_lshr_b32 s{sTok}, s{sI}, 1"); o(f"s_add_u32 s{sTok}, s{sTok}, 4"); o(f"s_lshl_b32 s{sTok}, s{sTok}, 8")
    A.label("L_dec")
    o(f"s_lshr_b32 s{sCntOff}, s{sTok}, 8")
    ewait(A, EC_LN1, 16, "l1", idx_s=sCntOff)
    o(f"s_lshr_b32 s{t0}, s{sTok}, 8")
    o(f"s_lshl_b32 s{t1}, s{t0}, 3"); o(f"s_and_b32 s{t2}, s{sCt}, 15"); o(f"s_lshr_b32 s{t2}, s{t2}, 1"); o(f"s_add_u32 s{t1}, s{t1}, s{t2}"); o(f"s_lshl_b32 s{t1}, s{t1}, 7")
    o(f"s_lshl_b32 s{t0}, s{t0}, 7"); o(f"s_add_u32 s{t0}, s{t0}, {CNT_Q}")
    o(f"s_cmp_lt_u32 s{sCt}, 16"); o(f"s_cselect_b32 s{sCntOff}, s{t0}, s{t1}")
    o(f"s_lshr_b32 s{sMat}, s{sCt}, 4")
    qkv_srds(sMat)
    o(f"s_cmp_eq_u32 s{sRound}, 0"); o("s_cbranch_scc1 L_small")
    o(f"s_cmp_ge_u32 s{sCt}, 32"); o("s_cbranch_scc1 L_bigv")
    qkv_tile(A, 8, False, "L_gA", sW, sCt, sTok, opt, None); o("s_branch L_sig")
    A.label("L_bigv")
    qkv_tile(A, 8, True, "L_gB", sW, sCt, sTok, opt, None); o("s_branch L_sig")
    A.label("L_small")
    osm = dict(opt); osm["S"] = 6
    o(f"s_cmp_ge_u32 s{sCt}, 32"); o("s_cbranch_scc1 L_smallv")
    qkv_tile(A, 2, False, "L_gC", sW, sCt, sTok, osm, None); o("s_branch L_sig")
    A.label("L_smallv")
    qkv_tile(A, 2, True, "L_gD", sW, sCt, sTok, osm, None)
    A.label("L_sig")
    signal(A, 0, "t", off_s=sCntOff)
    if bprof:
        o("s_memrealtime s[72:73]"); o("s_waitcnt lgkmcnt(0)")
        o(f"s_lshl_b32 s74, s{sB}, 10"); o(f"s_lshl_b32 s75, s{sRound}, 2"); o("s_add_u32 s74, s74, s75"); o(f"s_add_u32 s74, s74, {WS_PROF + 4*MiB + 16}")
        o("v_mov_b32 v250, s74"); o("v_mov_b32 v251, s72")
        o("s_mov_b64 exec, 1"); o(f"global_store_dword v250, v251, {s(sWS,2)}"); o("s_mov_b64 exec, -1")
    o(f"s_add_u32 s{sRound}, s{sRound}, 1")
    o("s_branch L_task")
    A.label("L_phase3")
    silu_to_lds(A)
    o(f"s_lshl_b32 s{sCt}, s{sB}, 5"); o(f"s_add_u32 s{sCt}, s{sCt}, 2048")
    mod_task(A, sCt, "b")
    o("s_waitcnt vmcnt(0)"); o("s_barrier")
    if opt.get("wpf", 1):
        prefetch_task(A, KA_WO, 8 * MiB, "wo"); prefetch_task(A, KA_W1, 2048 * 7168, "w1"); prefetch_task(A, KA_W2, 3584 * 4096, "w2")
    if opt.get("p3", 1) == 1:
        o(f"s_mov_b32 s{sCh}, 0")
        A.label("L_chunk")
        o(f"s_lshl_b32 s{sCntOff}, s{sCh}, 3"); o(f"s_add_u32 s{sCntOff}, s{sCntOff}, s{sXb}"); o(f"s_lshl_b32 s{sCntOff}, s{sCntOff}, 7")
        wait_cnt(A, CNT_REC, 32, "rec", off_s=sCntOff, sleep=16)
        o(f"s_lshl_b32 s{sCntOff}, s{sCh}, 7")
        wait_cnt(A, CNT_Q, 16, "q", off_s=sCntOff)
        o(f"s_lshl_b32 s56, s{sB}, 2"); o(f"s_add_u32 s56, s56, s{sW}")
        o(f"s_lshr_b32 s57, s56, 6"); o(f"s_lshl_b32 s58, s{sCh}, 3"); o("s_add_u32 s57, s57, s58")
        o("s_lshr_b32 s58, s56, 1"); o("s_and_b32 s58, s58, 31"); o("s_and_b32 s59, s56, 1")
        attn_body(A, sWS, 57, 58, 59, 0, "L_at")
        o("s_waitcnt vmcnt(0)")
        o(f"s_add_u32 s{sCh}, s{sCh}, 1"); o(f"s_cmp_lt_u32 s{sCh}, 8"); o("s_cbranch_scc1 L_chunk")
    o("s_waitcnt vmcnt(0)")
    o("s_endpgm")
    return re.sub(r"\bL_", "B_L_", A.finish())

def gen_mega(name="mega_kernel", recopt=None, opt=None, force_slow=False, place=8):
    recopt = recopt or dict(E2_DEPTH=2, E2_SP=3, E2_DELAY=2)
    opt = opt or {"S": 4}
    A = Asm(); o = A
    o("s_cmp_ge_u32 s2, 256"); o("s_cbranch_scc1 M_end")
    o(f"s_load_dwordx2 {s(sDBG,2)}, s[0:1], {KA_DBG}")
    o(f"s_load_dwordx2 {s(sWS,2)}, s[0:1], {KA_WS}")
    o("s_memrealtime s[92:93]")
    o("v_lshrrev_b32 v1, 6, v0"); o("v_and_b32 v0, 63, v0"); o(f"v_readfirstlane_b32 s{sW}, v1")
    o("s_getreg_b32 s4, hwreg(HW_REG_XCC_ID, 0, 4)"); o("s_and_b32 s4, s4, 7")
    o("s_waitcnt lgkmcnt(0)")
    o(f"s_mov_b32 s{sEC}, s{sDBG}"); o(f"s_mov_b32 s{sEC+1}, s{sDBG+1}")
    o(f"s_mov_b32 s{sChk}, 1")
    o(f"s_cmp_lg_u32 s{sW}, 0"); o("s_cbranch_scc1 M_w")
    o("s_lshl_b32 s12, s4, 2"); o("v_mov_b32 v1, s12"); o("v_mov_b32 v2, 1"); o("s_mov_b64 exec, 1")
    o(f"global_atomic_add v70, v1, v2, {s(sDBG,2)} sc0"); o("s_mov_b64 exec, -1")
    A.label("M_w")
    A.label("M_start")
    mod_partial(A)
    o(f"s_cmp_eq_u32 s{sChk}, 0"); o("s_cbranch_scc1 M_slowroles")
    o(f"s_cmp_lg_u32 s{sW}, 0"); o("s_cbranch_scc1 M_w2")
    o("s_waitcnt vmcnt(0)"); o("s_mov_b64 exec, 1"); o("v_mov_b32 v1, 0"); o("ds_write_b32 v1, v70"); o("s_waitcnt lgkmcnt(0)"); o("s_mov_b64 exec, -1")
    A.label("M_w2")
    o("s_barrier"); o("v_mov_b32 v1, 0"); o("ds_read_b32 v6, v1"); o("s_waitcnt lgkmcnt(0)"); o("v_readfirstlane_b32 s5, v6"); o("s_barrier")
    if force_slow:
        fast_check(A, "t"); o("s_branch M_slow")
    if place == 8:
        o("s_cmp_lt_u32 s5, 16"); o("s_cbranch_scc1 M_rec_fast")
        o("s_cmp_lt_u32 s5, 32"); o("s_cbranch_scc0 M_idle")
        o("s_sub_u32 s5, s5, 16"); o("s_branch M_bulk")
    else:
        o("s_cmp_lt_u32 s5, 32"); o("s_cbranch_scc0 M_idle")
        o("s_and_b32 s12, s4, 3"); o("s_lshl_b32 s12, s12, 1"); o("s_lshr_b32 s13, s5, 4"); o("s_add_u32 s12, s12, s13"); o("s_and_b32 s5, s5, 15")
        o("s_cmp_lt_u32 s4, 4"); o("s_mov_b32 s4, s12"); o("s_cbranch_scc1 M_rec_fast"); o("s_branch M_bulk")
    A.label("M_idle")
    fast_check(A, "i")
    A.label("M_slow")
    o(f"s_mov_b32 s{sChk}, 0")
    o("s_waitcnt vmcnt(0)")
    o("s_mov_b32 s87, s2")
    fills(A, 87, 256, "s")
    o("s_waitcnt vmcnt(0)"); o("s_barrier")
    o(f"s_cmp_lg_u32 s{sW}, 0"); o("s_cbranch_scc1 M_sb")
    o(f"v_mov_b32 v2, {EC_SLOW*4}"); o("v_mov_b32 v3, 1"); o("s_mov_b64 exec, 1"); o(f"global_atomic_add v2, v3, {s(sDBG,2)}"); o("s_mov_b64 exec, -1")
    o("s_mov_b32 s13, 0x200000")
    A.label("M_sp")
    o(f"global_load_dword v3, v2, {s(sDBG,2)} sc1"); o("s_waitcnt vmcnt(0)"); o("v_readfirstlane_b32 s12, v3")
    o("s_cmp_ge_u32 s12, 256"); o("s_cbranch_scc1 M_sb"); o("s_sleep 4"); o("s_sub_u32 s13, s13, 1"); o("s_cbranch_scc0 M_sp")
    A.label("M_sb")
    o("s_barrier")
    o(f"s_add_u32 s{sEC}, s{sWS}, {WS_CNT + SLOW_OFF + 49152}"); o(f"s_addc_u32 s{sEC+1}, s{sWS+1}, 0")
    o("s_branch M_start")
    A.label("M_slowroles")
    o("s_lshr_b32 s4, s2, 4"); o("s_and_b32 s4, s4, 7"); o("s_and_b32 s5, s2, 15")
    o("s_cmp_lt_u32 s2, 128"); o("s_cbranch_scc1 M_rec_slow")
    o("s_branch M_bulk")
    A.label("M_end"); o("s_endpgm")
    t = re.sub(r"\bL_", "E_L_", A.finish())
    t += "M_bulk:\n" + gen_bulk(opt)
    Ah = Asm(); fast_check(Ah, "r"); Ah("s_cmp_eq_u32 s15, 0"); Ah("s_cbranch_scc1 M_slow")
    sig = opt.get("p3", 1) != 0
    t += "M_rec_fast:\n" + rec.gen_rec(embedded=True, pfx="RF_", fast=True, KVCHK=True, SIG=sig, EARLY=True, hook=Ah.finish(), cntoff=0, **recopt)
    t += "M_rec_slow:\n" + rec.gen_rec(embedded=True, pfx="RS_", fast=False, KVCHK=True, SIG=sig, EARLY=True, hook=None, cntoff=SLOW_OFF, **recopt)
    return kernel_head(name) + t + kernel_desc(name, 256, 256)
```

```python
from asmlib import *
from layout import *

NSTEPS = 64
SENT = 0xFFFFFFFF

def gen_rec(name="rec_kernel", embedded=False, pfx="", KVCHK=False, SIG=False, hook=None, cntoff=0, EARLY=False, fast=True, prof=False, nsteps=NSTEPS, E1_EARLY=True, E2_DELAY=0, E3_DELAY=0, KV_FIRST=0, PF=1, PFE=0, VSP=2, RT=0, E1_AT=7, E3_SALU_FIRST=0, LAST_SHORT=1, NOK=0, NOV=0, E2F='sc1', X4=0, X4LIM=4, E2_DEPTH=3, E2_SP=0, EP=0, FIXKV=0):
    TIMER = "s_memrealtime" if RT else "s_memtime"
    A = Asm()
    o = A
    st_fast = "" if fast else " sc1"
    sWG = 2
    sW, sG, sJ, sHA, sC, sHead = 3, 4, 5, 6, 7, 8
    sWS = 10
    sT0, sT1, sT2, sT3 = 12, 13, 14, 15
    sPtr = 16
    sMEMc, sMEMn, sQK, sVR, sPART, sPART2, sKX, sKX2, sVX, sKM, sVM = 20, 22, 24, 26, 28, 30, 32, 34, 36, 38, 40
    sRq, sRv, sRp, sRm = 42, 44, 46, 48
    sStep, sSlot, sLim = 50, 51, 52
    sMaskQK, sMaskLo = 54, 56
    sSelV = 58
    sScale = 60
    sWQ, sWK, sWV, sWO, sDBG = 62, 64, 66, 68, 70
    sTs = 66
    sProf = 96
    vL = 0; vT = [1, 2, 3, 4, 5, 6, 7]
    vE3, vQKst, vVst, vVld, vPst, vPld, vMst, vKx, vL16, vKMst = 8, 9, 10, 11, 12, 13, 14, 15, 56, 57
    vA0, vA1, vAv0, vAv1 = 16, 20, 24, 28
    vSx, vSm = 32, 40
    vPx, vPmA, vPmB = 44, 48, 50
    vDelta = 52
    vNeg = 60
    vB = 64; vK = 128; vV = 160; vQ = 192; vQr = 200; vKm = 208; vKr = 216; vVm = 224
    vLdsM, vLdsO, vLdsV = 232, 233, 234
    vSent = 236
    vFlag = 57
    vX = 240
    vO = 64; vOb = 96
    vOo = [112, 116, 120, 124] + [160 + 4 * i for i in range(8)]
    LDS_MEM, LDS_O, LDS_V = 0, 16384, 32768

    if not embedded:
        o(f"s_cmp_ge_u32 s{sWG}, {256 if X4 else 128}")
        o("s_cbranch_scc1 L_rec_end")
        o(f"s_load_dwordx2 {s(sWQ,2)}, s[0:1], {KA_WQ}")
        o(f"s_load_dwordx2 {s(sWK,2)}, s[0:1], {KA_WK}")
        o(f"s_load_dwordx2 {s(sWV,2)}, s[0:1], {KA_WV}")
        o(f"s_load_dwordx2 {s(sWO,2)}, s[0:1], {KA_WO}")
        o(f"s_load_dwordx2 {s(sDBG,2)}, s[0:1], {KA_DBG}")
        o(f"s_load_dwordx2 {s(sWS,2)}, s[0:1], {KA_WS}")
        o(f"v_lshrrev_b32 v1, 6, v0")
        o(f"v_and_b32 v{vL}, 63, v0")
        o(f"v_readfirstlane_b32 s{sW}, v1")
        o(f"s_getreg_b32 s{sG}, hwreg(HW_REG_XCC_ID, 0, 4)")
        o("s_waitcnt lgkmcnt(0)")
        o(f"s_cmp_lg_u32 s{sW}, 0")
        o("s_cbranch_scc1 L_rec_noticket")
        o(f"s_lshl_b32 s{sT0}, s{sG}, 2")
        o(f"v_mov_b32 v1, s{sT0}")
        o("v_mov_b32 v2, 1")
        o("s_mov_b64 exec, 1")
        o(f"global_atomic_add v3, v1, v2, {s(sDBG,2)} sc0")
        o("s_waitcnt vmcnt(0)")
        o("v_mov_b32 v1, 0")
        o("ds_write_b32 v1, v3")
        o("s_waitcnt lgkmcnt(0)")
        o("s_mov_b64 exec, -1")
        A.label("L_rec_noticket")
        o("s_barrier")
        o("v_mov_b32 v1, 0")
        o("ds_read_b32 v3, v1")
        o("s_waitcnt lgkmcnt(0)")
        o(f"v_readfirstlane_b32 s{sJ}, v3")
        o("s_barrier")
        if X4:
            o(f"s_cmp_ge_u32 s{sG}, {X4LIM}"); o("s_cbranch_scc1 L_rec_end")
            o(f"s_sub_u32 s{sG}, s{sG}, {X4LIM-4}") if False else None
            o(f"s_lshl_b32 s{sG}, s{sG}, 1"); o(f"s_lshr_b32 s{sT0}, s{sJ}, 4"); o(f"s_add_u32 s{sG}, s{sG}, s{sT0}")
        o(f"s_and_b32 s{sJ}, s{sJ}, 15")
        o(f"s_and_b32 s{sG}, s{sG}, 7")
    else:
        o(f"s_load_dwordx2 {s(sWQ,2)}, s[0:1], {KA_WQ}")
        o(f"s_load_dwordx2 {s(sWK,2)}, s[0:1], {KA_WK}")
        o(f"s_load_dwordx2 {s(sWV,2)}, s[0:1], {KA_WV}")
        o(f"s_load_dwordx2 {s(sWO,2)}, s[0:1], {KA_WO}")
        o(f"s_load_dwordx2 {s(sWS,2)}, s[0:1], {KA_WS}")
        o("s_waitcnt lgkmcnt(0)")
    o(f"s_lshr_b32 s{sHA}, s{sJ}, 2")
    o(f"s_and_b32 s{sC}, s{sJ}, 3")
    o(f"s_lshl_b32 s{sHead}, s{sG}, 2")
    o(f"s_add_u32 s{sHead}, s{sHead}, s{sW}")
    vi, vg, vr = vT[0], vT[1], vT[2]
    o(f"v_and_b32 v{vi}, 15, v{vL}")
    o(f"v_lshrrev_b32 v{vg}, 4, v{vL}")
    o(f"v_and_b32 v{vr}, 7, v{vL}")
    o(f"v_lshlrev_b32 v{vL16}, 4, v{vL}")

    o(f"s_lshl_b32 s{sT0}, s{sG}, 2")
    o(f"s_add_u32 s{sT0}, s{sT0}, s{sHA}")
    o(f"s_lshl_b32 s{sT0}, s{sT0}, 8")
    o(f"s_lshl_b32 s{sT1}, s{sC}, 6")
    o(f"s_add_u32 s{sT0}, s{sT0}, s{sT1}")
    v1, v2, v3, v4 = vT[3], vT[4], vT[5], vT[6]
    o(f"v_lshrrev_b32 v{v1}, 2, v{vL}")
    o(f"v_lshlrev_b32 v{v1}, 13, v{v1}")
    o(f"v_and_b32 v{v2}, 3, v{vL}")
    o(f"v_lshl_add_u32 v{v1}, v{v2}, 4, v{v1}")
    o(f"v_add_u32 v{v1}, s{sT0}, v{v1}")
    o(f"s_lshl_b32 s{sT1}, s{sW}, 21")
    o(f"v_add_u32 v{v1}, s{sT1}, v{v1}")
    def dma_strip(sbase, ldsbase, nblk, rowstep):
        o(f"v_mov_b32 v{v2}, v{v1}")
        o(f"s_lshl_b32 s{sT2}, s{sW}, {(nblk*1024).bit_length()-1}")
        o(f"s_add_u32 s{sT2}, s{sT2}, {ldsbase}")
        for m in range(nblk):
            o(f"s_mov_b32 m0, s{sT2}")
            o(f"s_add_u32 s{sT2}, s{sT2}, 1024")
            o(f"global_load_lds_dwordx4 v{v2}, {s(sbase,2)}")
            if m + 1 < nblk: o(f"v_add_u32 v{v2}, {rowstep}, v{v2}")
    dma_strip(sWQ, 0, 16, 131072)
    dma_strip(sWK, 65536, 16, 131072)
    o(f"v_lshrrev_b32 v{v3}, 2, v{vi}")
    o(f"v_lshl_add_u32 v{v3}, v{vg}, 3, v{v3}")
    o(f"v_lshlrev_b32 v{v3}, 6, v{v3}")
    o(f"v_and_b32 v{v4}, 3, v{vi}")
    o(f"v_lshl_add_u32 v{v3}, v{v4}, 3, v{v3}")
    o("s_waitcnt vmcnt(0)")
    o("s_barrier")
    o(f"s_lshr_b32 s{sT0}, s{sW}, 1")
    o(f"s_lshl_b32 s{sT0}, s{sT0}, 16")
    o(f"s_and_b32 s{sT1}, s{sW}, 1")
    o(f"s_lshl_b32 s{sT1}, s{sT1}, 5")
    o(f"s_add_u32 s{sT0}, s{sT0}, s{sT1}")
    for i in range(16):
        o(f"s_lshl_b32 s{sT2}, s{sW}, 2")
        o(f"s_add_u32 s{sT2}, s{sT2}, {i}")
        o(f"s_and_b32 s{sT2}, s{sT2}, 15")
        o(f"s_lshl_b32 s{sT2}, s{sT2}, 12")
        o(f"s_add_u32 s{sT2}, s{sT2}, s{sT0}")
        o(f"v_add_u32 v{v4}, s{sT2}, v{v3}")
        for half in range(2):
            d = (i * 2 + half) * 4
            o(f"ds_read_b64_tr_b16 {a(d,2)}, v{v4} offset:{half*2048}")
            o(f"ds_read_b64_tr_b16 {a(d+2,2)}, v{v4} offset:{half*2048+256}")
        if i % 4 == 3: o("s_waitcnt lgkmcnt(0)")
    o("s_barrier")
    dma_strip(sWV, 0, 16, 131072)
    o(f"v_lshrrev_b32 v{v1}, 3, v{vL}")
    o(f"v_lshlrev_b32 v{v1}, 11, v{v1}")
    o(f"v_and_b32 v{v2}, 7, v{vL}")
    o(f"v_lshl_add_u32 v{v1}, v{v2}, 4, v{v1}")
    o(f"s_lshl_b32 s{sT0}, s{sG}, 20")
    o(f"s_lshl_b32 s{sT1}, s{sJ}, 7")
    o(f"s_add_u32 s{sT0}, s{sT0}, s{sT1}")
    o(f"s_lshl_b32 s{sT1}, s{sW}, 18")
    o(f"s_add_u32 s{sT0}, s{sT0}, s{sT1}")
    o(f"v_add_u32 v{v1}, s{sT0}, v{v1}")
    dma_strip(sWO, 65536, 16, 16384)
    o("s_waitcnt vmcnt(0)")
    o("s_barrier")
    o(f"s_and_b32 s{sT0}, s{sW}, 1")
    o(f"s_lshl_b32 s{sT0}, s{sT0}, 5")
    for i in range(8):
        o(f"s_lshl_b32 s{sT2}, s{sW}, 2")
        o(f"s_add_u32 s{sT2}, s{sT2}, {i}")
        o(f"s_and_b32 s{sT2}, s{sT2}, 15")
        o(f"s_lshl_b32 s{sT2}, s{sT2}, 12")
        o(f"s_add_u32 s{sT2}, s{sT2}, s{sT0}")
        o(f"v_add_u32 v{v4}, s{sT2}, v{v3}")
        for half in range(2):
            d = 128 + (i * 2 + half) * 4
            o(f"ds_read_b64_tr_b16 {a(d,2)}, v{v4} offset:{half*2048}")
            o(f"ds_read_b64_tr_b16 {a(d+2,2)}, v{v4} offset:{half*2048+256}")
        if i % 4 == 3: o("s_waitcnt lgkmcnt(0)")
    o(f"v_lshrrev_b32 v{v3}, 2, v{vi}")
    o(f"v_lshl_add_u32 v{v3}, v{vg}, 2, v{v3}")
    o(f"v_lshlrev_b32 v{v3}, 7, v{v3}")
    o(f"v_and_b32 v{v4}, 3, v{vi}")
    o(f"v_lshl_add_u32 v{v3}, v{v4}, 3, v{v3}")
    o(f"s_lshl_b32 s{sT0}, s{sW}, 14")
    o(f"s_add_u32 s{sT0}, s{sT0}, 65536")
    o(f"v_add_u32 v{v4}, s{sT0}, v{v3}")
    for ct in range(4):
        for u in range(4):
            d = 192 + (ct * 4 + u) * 4
            o(f"ds_read_b64_tr_b16 {a(d,2)}, v{v4} offset:{u*4096+ct*32}")
            o(f"ds_read_b64_tr_b16 {a(d+2,2)}, v{v4} offset:{u*4096+2048+ct*32}")
        o("s_waitcnt lgkmcnt(0)")
    o("s_barrier")

    if hook:
        A.raw(hook)
        o(f"v_and_b32 v{vi}, 15, v{vL}"); o(f"v_lshrrev_b32 v{vg}, 4, v{vL}"); o(f"v_and_b32 v{vr}, 7, v{vL}")
    o(f"s_lshl_b32 s{sT0}, s{sW}, 12")
    o(f"v_add_u32 v{vE3}, s{sT0}, v{vL16}")
    o(f"v_lshrrev_b32 v{v1}, 1, v{vg}")
    o(f"v_lshlrev_b32 v{v1}, 8, v{v1}")
    o(f"v_lshl_add_u32 v{v1}, v{vr}, 4, v{v1}")
    o(f"s_lshr_b32 s{sT0}, s{sC}, 1")
    o(f"s_lshl_b32 s{sT0}, s{sT0}, 10")
    o(f"s_and_b32 s{sT1}, s{sW}, 1")
    o(f"s_lshl_b32 s{sT1}, s{sT1}, 9")
    o(f"s_add_u32 s{sT0}, s{sT0}, s{sT1}")
    o(f"s_and_b32 s{sT1}, s{sC}, 1")
    o(f"s_lshl_b32 s{sT1}, s{sT1}, 7")
    o(f"s_add_u32 s{sT0}, s{sT0}, s{sT1}")
    o(f"v_add_u32 v{vKMst}, s{sT0}, v{v1}")
    o(f"s_lshl_b32 s{sT0}, s{sHA}, 12")
    o(f"s_lshr_b32 s{sT1}, s{sW}, 1")
    o(f"s_lshl_b32 s{sT1}, s{sT1}, 11")
    o(f"s_add_u32 s{sT0}, s{sT0}, s{sT1}")
    o(f"v_add_u32 v{vQKst}, s{sT0}, v{vKMst}")
    o(f"s_lshl_b32 s{sT0}, s{sHA}, 11")
    o(f"s_lshl_b32 s{sT1}, s{sC}, 9")
    o(f"s_add_u32 s{sT0}, s{sT0}, s{sT1}")
    o(f"v_add_u32 v{vVst}, s{sT0}, v{vL16}")
    o(f"s_lshl_b32 s{sT0}, s{sW}, 11")
    o(f"v_add_u32 v{vVld}, s{sT0}, v{vL16}")
    o(f"s_lshl_b32 s{sT0}, s{sG}, 4")
    o(f"s_add_u32 s{sT0}, s{sT0}, s{sJ}")
    o(f"s_lshl_b32 s{sT0}, s{sT0}, 10")
    o(f"s_and_b32 s{sT1}, s{sW}, 1")
    o(f"s_lshl_b32 s{sT1}, s{sT1}, 9")
    o(f"s_add_u32 s{sT0}, s{sT0}, s{sT1}")
    o(f"s_lshr_b32 s{sT1}, s{sW}, 1")
    o(f"s_lshl_b32 s{sT1}, s{sT1}, 7")
    o(f"s_add_u32 s{sT0}, s{sT0}, s{sT1}")
    o(f"v_add_u32 v{vPst}, s{sT0}, v{v1}")
    o(f"v_lshlrev_b32 v{vPld}, 14, v{vg}")
    o(f"v_lshl_add_u32 v{vPld}, v{vi}, 4, v{vPld}")
    o(f"s_lshl_b32 s{sT0}, s{sJ}, 10")
    o(f"s_lshl_b32 s{sT1}, s{sW}, 8")
    o(f"s_add_u32 s{sT0}, s{sT0}, s{sT1}")
    o(f"v_add_u32 v{vPld}, s{sT0}, v{vPld}")
    o(f"v_add_u32 v{vMst}, s{sT0}, v{vL16}")
    o(f"v_lshlrev_b32 v{vKx}, 13, v{vi}")
    o(f"v_lshl_add_u32 v{vKx}, v{vg}, 4, v{vKx}")
    o(f"s_lshl_b32 s{sT0}, s{sHead}, 8")
    o(f"v_add_u32 v{vKx}, s{sT0}, v{vKx}")
    o(f"v_mov_b32 v{vLdsM}, v{vL16}")
    for d in range(4):
        o(f"v_mov_b32 v{vDelta+d}, 0")
        o(f"v_mov_b32 v{v1}, 0x3f80")
        o(f"v_cmp_eq_u32 vcc, {2*d}, v{vi}")
        o(f"v_cndmask_b32 v{vDelta+d}, v{vDelta+d}, v{v1}, vcc")
        o(f"v_mov_b32 v{v1}, 0x3f800000")
        o(f"v_cmp_eq_u32 vcc, {2*d+1}, v{vi}")
        o(f"v_cndmask_b32 v{vDelta+d}, v{vDelta+d}, v{v1}, vcc")
    o(f"v_mov_b32 v{v1}, 0xff800000")
    o(f"v_cmp_lt_u32 vcc, 31, v{vL}")
    o(f"v_cndmask_b32 v{vNeg}, 0, v{v1}, vcc")
    for r in range(1, 4): o(f"v_mov_b32 v{vNeg+r}, v{vNeg}")
    for r in range(4): o(f"v_mov_b32 v{vSent+r}, -1")
    o(f"s_mov_b32 s{sMaskQK}, 0xff"); o(f"s_mov_b32 s{sMaskQK+1}, 0xff")
    o(f"s_mov_b32 s{sSelV}, -1"); o(f"s_mov_b32 s{sSelV+1}, 0")
    import math
    cs = 128 ** -0.5 * math.log2(math.e)
    import struct
    o(f"s_mov_b32 s{sScale}, 0x{struct.unpack('<I', struct.pack('<f', cs))[0]:08x}")
    o(f"s_mov_b32 s{sScale+1}, s{sScale}")
    o(f"s_mov_b32 s{sLim}, 0x400000")
    o(f"s_mov_b32 s{sStep}, 0")
    def addbase(dst, off, extra_s=None):
        o(f"s_add_u32 s{dst}, s{sWS}, {off & 0xffffffff}")
        o(f"s_addc_u32 s{dst+1}, s{sWS+1}, 0")
        if extra_s is not None:
            o(f"s_add_u32 s{dst}, s{dst}, s{extra_s}")
            o(f"s_addc_u32 s{dst+1}, s{dst+1}, 0")
    o(f"s_lshl_b32 s{sT0}, s{sHead}, 13")
    o(f"s_add_u32 s{sT0}, s{sT0}, 4096")
    addbase(sKX, WS_K, sT0)
    o(f"s_lshl_b32 s{sT0}, s{sHead}, 13")
    o(f"s_add_u32 s{sT0}, s{sT0}, 4096")
    addbase(sVX, WS_VT, sT0)
    o(f"s_lshl_b32 s{sT0}, s{sHead}, 11")
    addbase(sKM, WS_KM, sT0)
    addbase(sVM, WS_VM, sT0)
    sCNT = 16
    addbase(sCNT, WS_CNT + cntoff)
    def kv_wait(chunk_sreg_expr_setup, target, tag):
        o(f"s_lshl_b32 s{sT0}, s{sT0}, 3"); o(f"s_add_u32 s{sT0}, s{sT0}, s{sG}"); o(f"s_lshl_b32 s{sT0}, s{sT0}, 7")
        o(f"v_mov_b32 v{vX+2}, s{sT0}")
        A.label(f"L_kvw_{tag}")
        o(f"global_load_dword v{vX+3}, v{vX+2}, {s(sCNT,2)} sc1")
        o("s_waitcnt vmcnt(0)")
        o(f"v_readfirstlane_b32 s{sT1}, v{vX+3}")
        o(f"s_cmp_ge_u32 s{sT1}, {target}")
        o(f"s_cbranch_scc1 L_kvw_{tag}_ok")
        o("s_sleep 4")
        o(f"s_sub_u32 s{sLim}, s{sLim}, 1")
        o(f"s_cbranch_scc0 L_kvw_{tag}")
        o(f"s_mov_b32 s{sLim}, 0")
        A.label(f"L_kvw_{tag}_ok")
    sEC = 94
    def gpoll(base, tag, sleep=12):
        o(f"s_cmp_lg_u32 s{sW}, 0"); o(f"s_cbranch_scc1 L_gp_{tag}_ok")
        o(f"v_mov_b32 v{vX+2}, s{sT0}")
        A.label(f"L_gp_{tag}")
        o(f"global_load_dword v{vX+3}, v{vX+2}, {s(base,2)} sc1")
        o("s_waitcnt vmcnt(0)")
        o(f"v_readfirstlane_b32 s{sT1}, v{vX+3}")
        o(f"s_cmp_ge_u32 s{sT1}, s{sT2}")
        o(f"s_cbranch_scc1 L_gp_{tag}_ok")
        o(f"s_sleep {sleep}")
        o(f"s_sub_u32 s{sLim}, s{sLim}, 1")
        o(f"s_cbranch_scc0 L_gp_{tag}")
        o(f"s_mov_b32 s{sLim}, 0")
        A.label(f"L_gp_{tag}_ok")
        o("s_barrier")
    if KVCHK and not EARLY:
        o(f"s_mov_b32 s{sT0}, 0")
        kv_wait(None, 16, "0")
    if KVCHK and EARLY:
        o(f"s_mov_b32 s{sT0}, {EC_FILL*4}"); o(f"s_mov_b32 s{sT2}, 128"); gpoll(sEC, "f")
        o(f"s_lshl_b32 s{sT0}, s{sG}, 2"); o(f"s_add_u32 s{sT0}, s{sT0}, {EC_KVH0*4}"); o(f"s_mov_b32 s{sT2}, 16"); gpoll(sEC, "0")
    def load_kx():
        for t in range(8):
            o(f"global_load_dwordx4 {v(vK+t*4,4)}, v{vL16}, {s(sKX,2)} offset:{t*1024-4096}")
    load_kx()
    if prof:
        o(f"s_lshl_b32 s{sT0}, s{sG}, 4")
        o(f"s_add_u32 s{sT0}, s{sT0}, s{sJ}")
        o(f"s_lshl_b32 s{sT0}, s{sT0}, 2")
        o(f"s_add_u32 s{sT0}, s{sT0}, s{sW}")
        o(f"s_lshl_b32 s{sT0}, s{sT0}, 12")
        addbase(sProf, WS_PROF, sT0)
    nst = [0]
    def stamp():
        if not prof: return
        k = nst[0]; nst[0] += 1
        o(f"{TIMER} {s(sTs + 2*k, 2)}")

    def check(regs, lab_ok, lab_retry, tmp):
        regs = list(regs)
        o(f"v_max3_u32 v{tmp}, v{regs[0]}, v{regs[1]}, v{regs[2]}")
        k = 3
        while k + 1 < len(regs):
            o(f"v_max3_u32 v{tmp}, v{tmp}, v{regs[k]}, v{regs[k+1]}"); k += 2
        if k < len(regs):
            o(f"v_max_u32 v{tmp}, v{tmp}, v{regs[k]}")
        o(f"v_cmp_eq_u32 vcc, -1, v{tmp}")
        o(f"s_cbranch_vccz {lab_ok}")
        o(f"s_sub_u32 s{sLim}, s{sLim}, 1")
        o(f"s_cbranch_scc1 {lab_ok}_to")
        o(f"s_branch {lab_retry}")
        A.label(f"{lab_ok}_to")
        o(f"s_mov_b32 s{sLim}, 0")
        A.label(lab_ok)


    sCnt = 98
    vOo = [112, 116, 120, 124, 192, 196, 200, 204, 216, 220, 224, 228]
    vPf = 252
    def merge(main, side, every, start=0):
        side = list(side); out = [];
        for k, m_ in enumerate(main):
            out.append(m_)
            if side and k >= start and (k - start) % every == every - 1: out.append(side.pop(0))
        return out + side
    def emit(L):
        for x in L: o(x)
    def check(regs, lab_ok, lab_retry, tmp, cnt=None):
        regs = list(regs)
        o(f"v_max3_u32 v{tmp}, v{regs[0]}, v{regs[1]}, v{regs[2]}")
        k = 3
        while k + 1 < len(regs):
            o(f"v_max3_u32 v{tmp}, v{tmp}, v{regs[k]}, v{regs[k+1]}"); k += 2
        if k < len(regs):
            o(f"v_max_u32 v{tmp}, v{tmp}, v{regs[k]}")
        o(f"v_cmp_eq_u32 vcc, -1, v{tmp}")
        o(f"s_cbranch_vccz {lab_ok}")
        if prof and cnt is not None: o(f"s_add_u32 s{sCnt+cnt}, s{sCnt+cnt}, 1")
        o(f"s_sub_u32 s{sLim}, s{sLim}, 1")
        o(f"s_cbranch_scc0 {lab_retry}")
        o(f"s_mov_b32 s{sLim}, 0")
        A.label(lab_ok)
    sM = 88
    def mpoll(loads, tag, cnt):
        n = len(loads)
        regs = [b + r for b, _ in loads for r in range(4)]
        o(f"v_max3_u32 v{vX}, v{regs[0]}, v{regs[1]}, v{regs[2]}")
        k = 3
        while k + 1 < len(regs):
            o(f"v_max3_u32 v{vX}, v{vX}, v{regs[k]}, v{regs[k+1]}"); k += 2
        if k < len(regs): o(f"v_max_u32 v{vX}, v{vX}, v{regs[k]}")
        o(f"v_cmp_eq_u32 vcc, -1, v{vX}")
        o(f"s_cbranch_vccz L_{tag}_ok")
        A.label(f"L_{tag}_retry")
        if prof: o(f"s_add_u32 s{sCnt+cnt}, s{sCnt+cnt}, 1")
        for i, (b, rest) in enumerate(loads):
            o(f"v_max3_u32 v{vX}, v{b}, v{b+1}, v{b+2}")
            o(f"v_max_u32 v{vX}, v{vX}, v{b+3}")
            o(f"v_cmp_eq_u32 vcc, -1, v{vX}")
            o(f"s_cbranch_vccz L_{tag}_sk{i}")
            o("s_mov_b64 exec, vcc")
            o(f"global_load_dwordx4 {v(b,4)}, {rest}")
            o("s_mov_b64 exec, -1")
            A.label(f"L_{tag}_sk{i}")
        o("s_waitcnt vmcnt(0)")
        o(f"v_max3_u32 v{vX}, v{regs[0]}, v{regs[1]}, v{regs[2]}")
        k = 3
        while k + 1 < len(regs):
            o(f"v_max3_u32 v{vX}, v{vX}, v{regs[k]}, v{regs[k+1]}"); k += 2
        if k < len(regs): o(f"v_max_u32 v{vX}, v{vX}, v{regs[k]}")
        o(f"v_cmp_eq_u32 vcc, -1, v{vX}")
        o(f"s_cbranch_vccz L_{tag}_ok")
        o(f"s_sub_u32 s{sLim}, s{sLim}, 1")
        o(f"s_cbranch_scc0 L_{tag}_retry")
        o(f"s_mov_b32 s{sLim}, 0")
        A.label(f"L_{tag}_ok")
    if prof:
        for k in range(4): o(f"s_mov_b32 s{sCnt+k}, 0")
    vPfo = 58
    o(f"s_lshl_b32 s{sT1}, s{sG}, 2"); o(f"s_add_u32 s{sT1}, s{sT1}, s{sHA}"); o(f"s_lshl_b32 s{sT1}, s{sT1}, 13")
    o(f"s_lshl_b32 s{sT2}, s{sC}, 11"); o(f"s_add_u32 s{sT1}, s{sT1}, s{sT2}")
    o(f"s_and_b32 s{sT2}, s{sW}, 1"); o(f"s_lshl_b32 s{sT2}, s{sT2}, 10"); o(f"s_add_u32 s{sT1}, s{sT1}, s{sT2}")
    o(f"v_add_u32 v{vPfo}, s{sT1}, v{vL16}")
    o(f"s_cmp_lt_u32 s{sW}, 2")
    sPF = 18
    o(f"s_mov_b32 s{sT0}, {WS_K + 2*262144}")
    o(f"s_mov_b32 s{sT1}, {WS_VT + 2*262144}")
    o(f"s_cselect_b32 s{sT0}, s{sT0}, s{sT1}")
    o(f"s_add_u32 s{sPF}, s{sWS}, s{sT0}"); o(f"s_addc_u32 s{sPF+1}, s{sWS+1}, 0")
    def kx_loads():
        if NOK: return ["s_nop 0"] * 8
        return [f"global_load_dwordx4 {v(vK+t*4,4)}, v{vL16}, {s(sKX,2)} offset:{t*1024-4096}" for t in range(8)]
    def vx_loads():
        if NOV: return ["s_nop 0"] * 8
        return [f"global_load_dwordx4 {v(vV+4*t,4)}, v{vL16}, {s(sVX,2)} offset:{t*1024-4096}" for t in range(8)]
    vRd = [None, 232, 233, 234]
    for hs in (1, 2, 3):
        o(f"v_add_u32 v{vRd[hs]}, {hs*4096}, v{vE3}")
        o(f"v_and_b32 v{vRd[hs]}, 0x3fff, v{vRd[hs]}")
    vVw, vVr, vRw = 235, 59, 15
    o(f"s_lshl_b32 s{sT0}, s{sW}, 10")
    o(f"v_add_u32 v{vVw}, s{sT0}, v{vL16}")
    o(f"v_and_b32 v{vVr}, 31, v{vL}")
    o(f"v_lshlrev_b32 v{vVr}, 4, v{vVr}")
    o(f"v_lshrrev_b32 v{vX+2}, 5, v{vL}")
    o(f"v_lshl_add_u32 v{vVr}, v{vX+2}, 10, v{vVr}")
    vL4 = vX + 3
    o(f"v_lshlrev_b32 v{vL4}, 2, v{vL}")
    o(f"s_lshl_b32 s{sT0}, s{sW}, 8")
    o(f"v_add_u32 v{vRw}, s{sT0}, v{vL4}")
    vRr = [None, 1, 2, 3]
    for hs in (1, 2, 3):
        o(f"s_add_u32 s{sT0}, s{sW}, {hs}"); o(f"s_and_b32 s{sT0}, s{sT0}, 3"); o(f"s_lshl_b32 s{sT0}, s{sT0}, 8")
        o(f"v_add_u32 v{vRr[hs]}, s{sT0}, v{vL4}")
    vOnes = 4
    for r in range(4): o(f"v_mov_b32 v{vOnes+r}, 0x3f803f80")

    LDS_R = 36864
    A.label("L_step")
    nst[0] = 0
    if KVCHK:
        if EARLY:
            o(f"s_cmp_lg_u32 s{sStep}, 2"); o("s_cbranch_scc1 L_kvn2")
            o(f"s_lshl_b32 s{sT0}, s{sG}, 2"); o(f"s_add_u32 s{sT0}, s{sT0}, {EC_KVH1*4}"); o(f"s_mov_b32 s{sT2}, 16"); gpoll(sEC, "h1", 4)
            A.label("L_kvn2")
            o(f"s_cmp_lg_u32 s{sStep}, 6"); o("s_cbranch_scc1 L_kvn6")
            o(f"s_mov_b32 s{sT0}, {EC_FILL2*4}"); o(f"s_mov_b32 s{sT2}, 128"); gpoll(sEC, "f2", 4)
            A.label("L_kvn6")
        o(f"s_add_u32 s{sT0}, s{sStep}, 2"); o(f"s_and_b32 s{sT1}, s{sT0}, 7"); o(f"s_cmp_lg_u32 s{sT1}, 0"); o("s_cbranch_scc1 L_kvskip")
        o(f"s_cmp_ge_u32 s{sT0}, 64"); o("s_cbranch_scc1 L_kvskip")
        o(f"s_lshr_b32 s{sT0}, s{sT0}, 3")
        if EARLY:
            o(f"s_cmp_eq_u32 s{sT0}, 1"); o(f"s_cselect_b32 s{sT2}, 16, 4")
        else:
            o(f"s_mov_b32 s{sT2}, 4")
        o(f"v_readfirstlane_b32 s{sT1}, v{vFlag}")
        o(f"s_cmp_ge_u32 s{sT1}, s{sT2}"); o("s_cbranch_scc1 L_kvskip")
        o(f"s_lshl_b32 s{sT0}, s{sT0}, 3"); o(f"s_add_u32 s{sT0}, s{sT0}, s{sG}"); o(f"s_lshl_b32 s{sT0}, s{sT0}, 7")
        gpoll(sCNT, "n", 4)
        A.label("L_kvskip")
    o(f"s_and_b32 s{sSlot}, s{sStep}, 3")
    o(f"s_lshl_b32 s{sT0}, s{sSlot}, 17")
    o(f"s_lshl_b32 s{sT1}, s{sG}, 14")
    o(f"s_add_u32 s{sT2}, s{sT0}, s{sT1}")
    addbase(sMEMc, WS_RMEM, sT2)
    e3_loads = [(vB + 4*u, f"v{vE3}, {s(sMEMc,2)} offset:{u*1024} sc1") for u in range(4)]
    def qk_mfma(i, first=False):
        for half, acc in ((0, vA0), (1, vA1)):
            c = "0" if first else v(acc, 4)
            o(f"v_mfma_f32_16x16x32_bf16 {v(acc,4)}, {a((i*2+half)*4,4)}, {v(vB+4*i,4)}, {c}")
    def salu_bases():
        addbase(sQK, WS_RQK, sT2)
        o(f"s_lshl_b32 s{sT3}, s{sStep}, 17")
        addbase(sPART, WS_PARTF, sT3)
        o(f"s_add_u32 s{sPART2}, s{sPART}, 65536"); o(f"s_addc_u32 s{sPART2+1}, s{sPART+1}, 0")
        o(f"s_lshr_b32 s{sT3}, s{sT2}, 1")
        addbase(sVR, WS_RV, sT3)
        o(f"s_add_u32 s{sT3}, s{sStep}, 1"); o(f"s_and_b32 s{sT3}, s{sT3}, 3"); o(f"s_lshl_b32 s{sT3}, s{sT3}, 17"); o(f"s_add_u32 s{sT3}, s{sT3}, s{sT1}")
        addbase(sMEMn, WS_RMEM, sT3)
        o(f"s_xor_b32 s{sT3}, s{sT0}, {2<<17}")
        o(f"s_add_u32 s{sT3}, s{sT3}, s{sT1}")
        addbase(sRq, WS_RQK, sT3)
        o(f"s_lshr_b32 s{sT3}, s{sT3}, 1")
        addbase(sRv, WS_RV, sT3)
        o(f"s_add_u32 s{sT3}, s{sStep}, 3"); o(f"s_and_b32 s{sT3}, s{sT3}, 3"); o(f"s_lshl_b32 s{sT3}, s{sT3}, 17"); o(f"s_add_u32 s{sT3}, s{sT3}, s{sT1}")
        addbase(sRm, WS_RMEM, sT3)
    def simple_poll(loads, tag, cnt, first_wait):
        regs = [b + r for b, _ in loads for r in range(4)]
        o(f"s_waitcnt vmcnt({first_wait})")
        o(f"s_branch L_{tag}_c")
        A.label(f"L_{tag}_r")
        for b, rest in loads: o(f"global_load_dwordx4 {v(b,4)}, {rest}")
        o("s_waitcnt vmcnt(0)")
        A.label(f"L_{tag}_c")
        check(regs, f"L_{tag}_ok", f"L_{tag}_r", vX, cnt)
    if E3_SALU_FIRST: salu_bases()
    stamp()
    for b, rest in e3_loads: o(f"global_load_dwordx4 {v(b,4)}, {rest}")
    if not E3_SALU_FIRST: salu_bases()
    simple_poll(e3_loads, "e3", 0, 0)
    if SIG:
        o(f"s_sub_u32 s{sT3}, s{sStep}, 1"); o(f"s_cbranch_scc1 L_nosig")
        o(f"s_and_b32 s{sT0}, s{sT3}, 15"); o(f"s_cmp_lg_u32 s{sT0}, s{sJ}"); o("s_cbranch_scc1 L_nosig")
        o(f"s_lshl_b32 s{sT0}, s{sT3}, 7"); o(f"s_add_u32 s{sT0}, s{sT0}, {CNT_REC}")
        o(f"v_mov_b32 v{vX+2}, s{sT0}"); o(f"v_mov_b32 v{vX+3}, 1")
        o("s_mov_b64 exec, 1")
        o(f"global_atomic_add v{vX+2}, v{vX+3}, {s(sCNT,2)}")
        o("s_mov_b64 exec, -1")
        A.label("L_nosig")
    for u, (b, rest) in enumerate(e3_loads):
        o(f"ds_write_b128 v{vE3}, {v(b,4)} offset:{LDS_MEM + u*1024}")
    for u in range(4): qk_mfma(u, first=(u == 0))
    stamp()
    o("s_waitcnt lgkmcnt(0)")
    o("s_barrier")
    for i in range(4, 16):
        o(f"ds_read_b128 {v(vB+4*i,4)}, v{vRd[i//4]} offset:{LDS_MEM + (i%4)*1024}")
    vxl = vx_loads()
    for i in range(4, 16):
        o(f"s_waitcnt lgkmcnt({15-i})")
        qk_mfma(i)
        if i % VSP == VSP - 1 and vxl: o(vxl.pop(0))
    stamp()
    for r in range(4):
        o(f"v_add_f32_dpp v{vA0+r}, v{vA1+r}, v{vA0+r} row_ror:8 row_mask:0xf bank_mask:0xf")
    R = vX + 4
    o(f"v_cvt_pk_bf16_f32 v{R}, v{vA0}, v{vA0+1}")
    o(f"v_cvt_pk_bf16_f32 v{R+1}, v{vA0+2}, v{vA0+3}")
    o(f"v_permlane16_swap_b32 v{R}, v{R+2}")
    o(f"v_permlane16_swap_b32 v{R+1}, v{R+3}")
    o(f"s_mov_b64 exec, {s(sMaskQK,2)}")
    o(f"global_store_dwordx4 v{vQKst}, {v(R,4)}, {s(sQK,2)}{st_fast}")
    o("s_mov_b64 exec, -1")
    stamp()
    e1_loads = [(vQ + 4*cp, f"v{vE3}, {s(sQK,2)} offset:{cp*1024} sc1") for cp in range(2)] + [(vKm + 4*cp, f"v{vE3}, {s(sQK,2)} offset:{2048+cp*1024} sc1") for cp in range(2)]
    def e1_issue():
        for b, rest in e1_loads: o(f"global_load_dwordx4 {v(b,4)}, {rest}")
    for i in range(8):
        for half, acc in ((0, vAv0), (1, vAv1)):
            c = "0" if i == 0 else v(acc, 4)
            o(f"v_mfma_f32_16x16x32_bf16 {v(acc,4)}, {v(vB+4*i,4)}, {a(128+(i*2+half)*4,4)}, {c}")
        if vxl and i % 2 == 1: o(vxl.pop(0))
        if i == E1_AT:
            emit(vxl); vxl = []
            e1_issue()
    emit(vxl)
    for r in range(4):
        o(f"v_cndmask_b32 v{vAv0+r}, v{vAv1+r}, v{vAv0+r}, {s(sSelV,2)}")
    o(f"ds_write_b128 v{vVw}, {v(vAv0,4)} offset:{LDS_V}")
    o("s_waitcnt lgkmcnt(0)")
    o("s_barrier")
    o(f"s_cmp_lg_u32 s{sW}, 0")
    o("s_cbranch_scc1 L_vred_skip")
    T = vA0
    for k, off in enumerate((0, 512, 2048, 2560)):
        o(f"ds_read_b128 {v(T+4*k,4)}, v{vVr} offset:{LDS_V+off}")
    o("s_waitcnt lgkmcnt(0)")
    for r in range(4):
        o(f"v_add_f32 v{T+r}, v{T+r}, v{T+4+r}")
        o(f"v_add_f32 v{T+8+r}, v{T+8+r}, v{T+12+r}")
    for r in range(4):
        o(f"v_add_f32 v{T+r}, v{T+r}, v{T+8+r}")
    o(f"v_cvt_pk_bf16_f32 v{R}, v{T}, v{T+1}")
    o(f"v_cvt_pk_bf16_f32 v{R+1}, v{T+2}, v{T+3}")
    o(f"v_permlane32_swap_b32 v{R}, v{R+2}")
    o(f"v_permlane32_swap_b32 v{R+1}, v{R+3}")
    o(f"s_mov_b64 exec, {s(sSelV,2)}")
    o(f"global_store_dwordx4 v{vVst}, {v(R,4)}, {s(sVR,2)}{st_fast}")
    o("s_mov_b64 exec, -1")
    o("s_waitcnt vmcnt(1)")
    o("s_branch L_e1_c")
    A.label("L_e1_r")
    e1_issue()
    A.label("L_vred_skip")
    o("s_waitcnt vmcnt(0)")
    A.label("L_e1_c")
    check([b + r for b, _ in e1_loads for r in range(4)], "L_e1_ok", "L_e1_r", vX, 1)
    stamp()
    def M32(d, A_, B_, C_): return f"v_mfma_f32_16x16x32_bf16 {v(d,4)}, {A_}, {B_}, {C_}"
    def rot(dst, srcr): return [f"v_mov_b32_dpp v{dst+r}, v{srcr+r} row_ror:8 row_mask:0xf bank_mask:0xf" for r in range(4)]
    Kf = lambda kt, u: v(vK + (kt*4+u)*4, 4)
    seq = []
    seq += [M32(vSx, Kf(0,0), v(vQ,4), "0")] + rot(vQr, vQ)[:2]
    seq += [M32(vSx+4, Kf(1,0), v(vQ,4), "0")] + rot(vQr, vQ)[2:]
    seq += [M32(vSm, v(vKm,4), v(vQ,4), v(vNeg,4))] + rot(vQr+4, vQ+4)[:2]
    seq += [M32(vSx, Kf(0,2), v(vQ+4,4), v(vSx,4))] + rot(vQr+4, vQ+4)[2:]
    seq += [M32(vSx+4, Kf(1,2), v(vQ+4,4), v(vSx+4,4))] + rot(vKr, vKm)[:2]
    seq += [M32(vSm, v(vKm+4,4), v(vQ+4,4), v(vSm,4))] + rot(vKr, vKm)[2:]
    seq += [M32(vSx, Kf(0,1), v(vQr,4), v(vSx,4))] + rot(vKr+4, vKm+4)[:2]
    seq += [M32(vSx+4, Kf(1,1), v(vQr,4), v(vSx+4,4))] + rot(vKr+4, vKm+4)[2:]
    seq += [M32(vSx, Kf(0,3), v(vQr+4,4), v(vSx,4))]
    seq += [M32(vSx+4, Kf(1,3), v(vQr+4,4), v(vSx+4,4))]
    seq += [M32(vSm, v(vKr,4), v(vQr,4), v(vSm,4))]
    seq += [M32(vSm, v(vKr+4,4), v(vQr+4,4), v(vSm,4))]
    emit(seq)
    if not FIXKV:
        o(f"s_add_u32 s{sKX}, s{sKX}, 262144"); o(f"s_addc_u32 s{sKX+1}, s{sKX+1}, 0")
    vm_loads = [(vVm + 4*mm, f"v{vVld}, {s(sVR,2)} offset:{mm*1024} sc1") for mm in range(2)]
    for b, rest in vm_loads: o(f"global_load_dwordx4 {v(b,4)}, {rest}")
    if PF and PFE: o(f"global_load_dwordx4 {v(vPf,4)}, v{vPfo}, {s(sPF,2)}")
    m, t = vX + 1, vX + 2
    Sall = list(range(vSx, vSx + 8)) + list(range(vSm, vSm + 4))
    m2 = vX + 3
    o(f"v_max3_f32 v{m}, v{Sall[0]}, v{Sall[1]}, v{Sall[2]}")
    o(f"v_max3_f32 v{m2}, v{Sall[4]}, v{Sall[5]}, v{Sall[6]}")
    o(f"v_max3_f32 v{m}, v{m}, v{Sall[3]}, v{Sall[7]}")
    o(f"v_max3_f32 v{m2}, v{m2}, v{Sall[8]}, v{Sall[9]}")
    o(f"v_max3_f32 v{m}, v{m}, v{Sall[10]}, v{Sall[11]}")
    o(f"v_max_f32 v{m}, v{m}, v{m2}")
    for sw in ("16", "32"):
        o(f"v_mov_b32 v{t}, v{m}")
        o(f"v_permlane{sw}_swap_b32 v{m}, v{t}")
        o(f"v_max_f32 v{m}, v{m}, v{t}")
    mm_ = vX + 2
    o(f"v_mul_f32 v{mm_}, s{sScale}, v{m}")
    kxl = kx_loads()
    main = []
    for r in Sall[::2]: main.append(f"v_pk_fma_f32 {v(r,2)}, {v(r,2)}, {s(sScale,2)}, {v(mm_,2)} op_sel_hi:[1,1,0] neg_lo:[0,0,1] neg_hi:[0,0,1]")
    for k_, r in enumerate(Sall):
        main.append(f"v_exp_f32 v{r}, v{r}")
    emit(merge(main, [kxl.pop(0), kxl.pop(0)], 7))
    o(f"v_cvt_pk_bf16_f32 v{vPx}, v{vSx}, v{vSx+1}")
    o(f"v_cvt_pk_bf16_f32 v{vPx+1}, v{vSx+2}, v{vSx+3}")
    o(f"v_cvt_pk_bf16_f32 v{vPx+2}, v{vSx+4}, v{vSx+5}")
    o(f"v_cvt_pk_bf16_f32 v{vPx+3}, v{vSx+6}, v{vSx+7}")
    o(f"v_cvt_pk_bf16_f32 v{vPmA}, v{vSm}, v{vSm+1}")
    o(f"v_cvt_pk_bf16_f32 v{vPmA+1}, v{vSm+2}, v{vSm+3}")
    stamp()
    vLs = vSx
    pv = [M32(vO+4*tt, v(vV+4*tt,4), v(vPx,4), "0") for tt in range(8)]
    side = [f"v_mov_b32 v{vX+4}, v{vPmA}", f"v_mov_b32 v{vX+5}, v{vPmA+1}", f"v_mov_b32 v{vPmB}, 0", f"v_mov_b32 v{vPmB+1}, 0",
            f"v_permlane32_swap_b32 v{vPmB}, v{vX+4}", f"v_permlane32_swap_b32 v{vPmB+1}, v{vX+5}", kxl.pop(0)]
    emit(merge(pv, side, 1))
    o(M32(vLs, v(vOnes,4), v(vPx,4), "0"))
    o(f"v_mfma_f32_16x16x16_bf16 {v(vLs,4)}, {v(vOnes,2)}, {v(vPmA,2)}, {v(vLs,4)}")
    simple_poll(vm_loads, "vm", 2, 4 if (PF and PFE) else 3)
    stamp()
    if KVCHK:
        o(f"s_add_u32 s{sT0}, s{sStep}, 3"); o(f"s_and_b32 s{sT1}, s{sT0}, 7"); o(f"s_cmp_lg_u32 s{sT1}, 0"); o("s_cbranch_scc1 L_nofl")
        o(f"s_lshr_b32 s{sT0}, s{sT0}, 3"); o(f"s_lshl_b32 s{sT0}, s{sT0}, 3"); o(f"s_add_u32 s{sT0}, s{sT0}, s{sG}"); o(f"s_lshl_b32 s{sT0}, s{sT0}, 7")
        o(f"v_mov_b32 v{vFlag}, s{sT0}")
        o(f"global_load_dword v{vFlag}, v{vFlag}, {s(sCNT,2)} sc1")
        A.label("L_nofl")
    o(f"s_and_b32 s{sT0}, s{sStep}, 15"); o(f"s_cmp_lg_u32 s{sT0}, s{sJ}"); o("s_cbranch_scc1 L_nopub")
    for cp in range(2): o(f"global_store_dwordx4 v{vL16}, {v(vKm+4*cp,4)}, {s(sKM,2)} offset:{cp*1024}" + (" sc1" if SIG else ""))
    for cp in range(2): o(f"global_store_dwordx4 v{vL16}, {v(vVm+4*cp,4)}, {s(sVM,2)} offset:{cp*1024}" + (" sc1" if SIG else ""))
    A.label("L_nopub")
    if LAST_SHORT:
        o(f"s_cmp_eq_u32 s{sStep}, {nsteps-1}")
        o("s_cbranch_scc1 L_rec_last")
    if PF and not PFE: o(f"global_load_dwordx4 {v(vPf,4)}, v{vPfo}, {s(sPF,2)}")
    def pvm(tt):
        c, tv = tt >> 1, tt & 1
        pm = vPmB if (c & 1) else vPmA
        return f"v_mfma_f32_16x16x16_bf16 {v(vO+4*tt,4)}, {v(vVm+4*(c>>1)+2*tv,2)}, {v(pm,2)}, {v(vO+4*tt,4)}"
    def cvt(tt):
        u, h = tt >> 1, tt & 1
        return [f"v_cvt_pk_bf16_f32 v{vOb+4*u+2*h}, v{vO+4*tt}, v{vO+4*tt+1}", f"v_cvt_pk_bf16_f32 v{vOb+4*u+2*h+1}, v{vO+4*tt+2}, v{vO+4*tt+3}"]
    vCa = [16, 20, 24, 28]
    for tt in range(3): o(pvm(tt))
    l_ = vX + 1
    def cm(ct, u):
        c = "0" if u == 0 else v(vCa[ct], 4)
        return f"v_mfma_f32_16x16x32_bf16 {v(vCa[ct],4)}, {a(192+(ct*4+u)*4,4)}, {v(vOb+4*u,4)}, {c}"
    pend = []
    for tt in range(8):
        if tt + 3 < 8: o(pvm(tt + 3))
        cv = cvt(tt)
        o(cv[0])
        if pend: o(pend.pop(0))
        o(cv[1])
        if pend: o(pend.pop(0))
        if tt == 0: o(f"v_rcp_f32 v{l_}, v{vLs}")
        if tt % 2 == 1:
            pend += [cm(ct, tt >> 1) for ct in range(4)]
            if kxl: o(kxl.pop(0))
    emit(pend)
    for ct in range(4):
        pass
    o(f"v_mov_b32 v{vX+2}, v{l_}")
    for ct in range(4):
        o(f"v_pk_mul_f32 {v(vCa[ct],2)}, {v(vCa[ct],2)}, {v(vX+2,2)} op_sel_hi:[1,0]")
        o(f"v_pk_mul_f32 {v(vCa[ct]+2,2)}, {v(vCa[ct]+2,2)}, {v(vX+2,2)} op_sel_hi:[1,0]")
        o(f"ds_write_b128 v{vVw}, {v(vCa[ct],4)} offset:{LDS_O+ct*4096}")
    while kxl: o(kxl.pop(0))
    o("s_waitcnt lgkmcnt(0)")
    o("s_barrier")
    stamp()
    Rr = [112, 116, 120, 124]
    for sw in range(4): o(f"ds_read_b128 {v(Rr[sw],4)}, v{vE3} offset:{LDS_O+sw*1024}")
    vC = Rr[0]
    o("s_waitcnt lgkmcnt(2)")
    o(f"v_pk_add_f32 {v(Rr[0],2)}, {v(Rr[0],2)}, {v(Rr[1],2)}"); o(f"v_pk_add_f32 {v(Rr[0]+2,2)}, {v(Rr[0]+2,2)}, {v(Rr[1]+2,2)}")
    o("s_waitcnt lgkmcnt(0)")
    o(f"v_pk_add_f32 {v(Rr[2],2)}, {v(Rr[2],2)}, {v(Rr[3],2)}"); o(f"v_pk_add_f32 {v(Rr[2]+2,2)}, {v(Rr[2]+2,2)}, {v(Rr[3]+2,2)}")
    o(f"v_pk_add_f32 {v(Rr[0],2)}, {v(Rr[0],2)}, {v(Rr[2],2)}"); o(f"v_pk_add_f32 {v(Rr[0]+2,2)}, {v(Rr[0]+2,2)}, {v(Rr[2]+2,2)}")
    o(f"v_cvt_pk_bf16_f32 v{R}, v{vC}, v{vC+1}")
    o(f"v_cvt_pk_bf16_f32 v{R+1}, v{vC+2}, v{vC+3}")
    o(f"v_permlane16_swap_b32 v{R}, v{R+2}")
    o(f"v_permlane16_swap_b32 v{R+1}, v{R+3}")
    o(f"s_mov_b64 exec, {s(sMaskQK,2)}")
    if EP == 2:
        o("s_waitcnt vmcnt(0)")
        o(f"{TIMER} {s(sTs + 2*5, 2)}")
    o(f"global_store_dwordx4 v{vPst}, {v(R,4)}, {s(sPART,2)} sc1")
    stamp()
    if EP == 2:
        o("s_waitcnt vmcnt(0)")
        o(f"{TIMER} {s(sTs + 2*4, 2)}")
    o(f"global_store_dwordx4 v{vQKst}, {v(vSent,4)}, {s(sRq,2)}{st_fast}")
    o(f"s_mov_b64 exec, 0xffff")
    o(f"global_store_dwordx4 v{vMst}, {v(vSent,4)}, {s(sRm,2)}{st_fast}")
    o(f"s_cmp_lg_u32 s{sW}, 0")
    o("s_cbranch_scc1 L_norv")
    o(f"s_mov_b64 exec, {s(sSelV,2)}")
    o(f"global_store_dwordx4 v{vVst}, {v(vSent,4)}, {s(sRv,2)}{st_fast}")
    A.label("L_norv")
    o("s_mov_b64 exec, -1")
    if not FIXKV:
        o(f"s_add_u32 s{sVX}, s{sVX}, 262144"); o(f"s_addc_u32 s{sVX+1}, s{sVX+1}, 0")
    o(f"s_add_u32 s{sKM}, s{sKM}, 65536"); o(f"s_addc_u32 s{sKM+1}, s{sKM+1}, 0")
    o(f"s_add_u32 s{sVM}, s{sVM}, 65536"); o(f"s_addc_u32 s{sVM+1}, s{sVM+1}, 0")
    if E2_DELAY: o(f"s_sleep {E2_DELAY}")
    sets = [vB + 8 * k for k in range(E2_DEPTH)]
    def e2_issue(b):
        o(f"global_load_dwordx4 {v(b,4)}, v{vPld}, {s(sPART,2)} {E2F}")
        o(f"global_load_dwordx4 {v(b+4,4)}, v{vPld}, {s(sPART2,2)} {E2F}")
    if EP: o(f"{TIMER} {s(sTs + 2*2, 2)}")
    for k, b in enumerate(sets):
        e2_issue(b)
        if k + 1 < len(sets) and E2_SP: o(f"s_sleep {E2_SP}")
    if EP:
        o(f"s_waitcnt vmcnt({2*(len(sets)-1)})")
        o(f"{TIMER} {s(sTs + 2*3, 2)}")
    A.label("L_e2")
    for k, b in enumerate(sets):
        o(f"s_waitcnt vmcnt({2*(len(sets)-1)})")
        regs = list(range(b, b + 8))
        o(f"v_max3_u32 v{vX}, v{regs[0]}, v{regs[1]}, v{regs[2]}")
        o(f"v_max3_u32 v{vX}, v{vX}, v{regs[3]}, v{regs[4]}")
        o(f"v_max3_u32 v{vX}, v{vX}, v{regs[5]}, v{regs[6]}")
        o(f"v_max_u32 v{vX}, v{vX}, v{regs[7]}")
        o(f"v_cmp_eq_u32 vcc, -1, v{vX}")
        o(f"s_cbranch_vccz L_e2_ok{k}")
        if prof: o(f"s_add_u32 s{sCnt+3}, s{sCnt+3}, 1")
        e2_issue(b)
    o(f"s_sub_u32 s{sLim}, s{sLim}, 1")
    o(f"s_cbranch_scc0 L_e2")
    o(f"s_mov_b32 s{sLim}, 0")
    D = vA1
    for k, b in enumerate(sets):
        A.label(f"L_e2_ok{k}")
        o(f"v_mfma_f32_16x16x32_bf16 {v(D,4)}, {v(vDelta,4)}, {v(b,4)}, 0")
        o(f"v_mfma_f32_16x16x32_bf16 {v(D,4)}, {v(vDelta,4)}, {v(b+4,4)}, {v(D,4)}")
        if k + 1 < len(sets): o("s_branch L_e2_done")
    A.label("L_e2_done")
    o(f"s_add_u32 s{sPF}, s{sPF}, 262144"); o(f"s_addc_u32 s{sPF+1}, s{sPF+1}, 0")
    stamp()
    o("s_nop 7")
    o(f"v_cvt_pk_bf16_f32 v{R}, v{D}, v{D+1}")
    o(f"v_cvt_pk_bf16_f32 v{R+1}, v{D+2}, v{D+3}")
    o(f"v_permlane16_swap_b32 v{R}, v{R+2}")
    o(f"v_permlane16_swap_b32 v{R+1}, v{R+3}")
    o(f"s_mov_b64 exec, 0xffff")
    o(f"global_store_dwordx4 v{vMst}, {v(R,4)}, {s(sMEMn,2)}{st_fast}")
    o("s_mov_b64 exec, -1")
    stamp()
    if E3_DELAY: o(f"s_sleep {E3_DELAY}")
    if prof:
        o("s_waitcnt lgkmcnt(0)")
        for k in range(nst[0]):
            o(f"v_writelane_b32 v{vX+8}, s{sTs+2*k}, {k}")
        for k in range(4):
            o(f"v_writelane_b32 v{vX+8}, s{sCnt+k}, {11+k}")
        o(f"v_writelane_b32 v{vX+8}, s92, 15")
        o(f"s_lshl_b32 s{sT0}, s{sW}, 12")
        o(f"s_lshl_b32 s{sT1}, s{sStep}, 6")
        o(f"s_add_u32 s{sT0}, s{sT0}, s{sT1}")
        o(f"s_add_u32 s{sT0}, s{sT0}, 40960")
        o(f"v_lshlrev_b32 v{vX+9}, 2, v{vL}")
        o(f"v_add_u32 v{vX+9}, s{sT0}, v{vX+9}")
        o("s_mov_b64 exec, 0xffff")
        o(f"ds_write_b32 v{vX+9}, v{vX+8}")
        o("s_mov_b64 exec, -1")
    o(f"s_add_u32 s{sStep}, s{sStep}, 1")
    o(f"s_cmp_lt_u32 s{sStep}, {nsteps}")
    o("s_cbranch_scc1 L_step")
    o("s_branch L_rec_fin")
    A.label("L_rec_last")
    if SIG:
        o("s_waitcnt vmcnt(0)")
        o(f"s_and_b32 s{sT0}, s{sStep}, 15"); o(f"s_cmp_lg_u32 s{sT0}, s{sJ}"); o("s_cbranch_scc1 L_rec_fin")
        o(f"s_lshl_b32 s{sT0}, s{sStep}, 7"); o(f"s_add_u32 s{sT0}, s{sT0}, {CNT_REC}")
        o(f"v_mov_b32 v{vX+2}, s{sT0}"); o(f"v_mov_b32 v{vX+3}, 1")
        o("s_mov_b64 exec, 1")
        o(f"global_atomic_add v{vX+2}, v{vX+3}, {s(sCNT,2)}")
        o("s_mov_b64 exec, -1")
    A.label("L_rec_fin")
    if prof:
        o("s_waitcnt lgkmcnt(0)")
        o(f"s_lshl_b32 s{sT0}, s{sW}, 12")
        o(f"s_add_u32 s{sT0}, s{sT0}, 40960")
        o(f"v_add_u32 v{vX+9}, s{sT0}, v{vL16}")
        for k in range(4):
            o(f"ds_read_b128 {v(vB+4*k,4)}, v{vX+9} offset:{k*1024}")
        o("s_waitcnt lgkmcnt(0)")
        for k in range(4):
            o(f"global_store_dwordx4 v{vL16}, {v(vB+4*k,4)}, {s(sProf,2)} offset:{k*1024}")
    o("s_waitcnt vmcnt(0)")
    A.label("L_rec_end")
    o("s_endpgm")
    txt = A.finish()
    if embedded:
        import re
        return re.sub(r"\bL_", pfx + "L_", txt)
    return kernel_head(name) + txt + kernel_desc(name, 256, 256)

if __name__ == "__main__":
    import sys
    fast = "slow" not in sys.argv
    prof = "prof" in sys.argv
    ng = 256 if any(x.startswith("X4=1") for x in sys.argv) else 128
    hdr = f"; @launch kernel=rec_kernel grid=({ng},1,1) block=(256,1,1) lds=131072\n.amdgcn_target \"amdgcn-amd-amdhsa--gfx950\"\n.text\n"
    kw = {}
    for x in sys.argv[1:]:
        if "=" in x:
            k_, v_ = x.split("=");
            if k_ != "out": kw[k_] = int(v_) if v_.isdigit() else v_
    outn = [x.split("=")[1] for x in sys.argv if x.startswith("out=")]
    open(outn[0] if outn else "rec_test.s", "w").write(hdr + gen_rec(fast=fast, prof=prof, **kw))
```

```python
from asmlib import *
from layout import *

NSTEPS = 64
SENT = 0xFFFFFFFF

def gen_rec(name="rec_kernel", embedded=False, pfx="", KVCHK=False, SIG=False, hook=None, cntoff=0, EARLY=False, fast=True, prof=False, nsteps=NSTEPS, E1_EARLY=True, E2_DELAY=0, E3_DELAY=0, KV_FIRST=0, PF=1, PFE=0, VSP=2, RT=0, E1_AT=7, E3_SALU_FIRST=0, LAST_SHORT=1, NOK=0, NOV=0, E2F='sc1', X4=0, X4LIM=4, E2_DEPTH=3, E2_SP=0, EP=0, FIXKV=0):
    TIMER = "s_memrealtime" if RT else "s_memtime"
    A = Asm()
    o = A
    st_fast = "" if fast else " sc1"
    sWG = 2
    sW, sG, sJ, sHA, sC, sHead = 3, 4, 5, 6, 7, 8
    sWS = 10
    sT0, sT1, sT2, sT3 = 12, 13, 14, 15
    sPtr = 16
    sMEMc, sMEMn, sQK, sVR, sPART, sPART2, sKX, sKX2, sVX, sKM, sVM = 20, 22, 24, 26, 28, 30, 32, 34, 36, 38, 40
    sRq, sRv, sRp, sRm = 42, 44, 46, 48
    sStep, sSlot, sLim = 50, 51, 52
    sMaskQK, sMaskLo = 54, 56
    sSelV = 58
    sScale = 60
    sWQ, sWK, sWV, sWO, sDBG = 62, 64, 66, 68, 70
    sTs = 66
    sProf = 96
    vL = 0; vT = [1, 2, 3, 4, 5, 6, 7]
    vE3, vQKst, vVst, vVld, vPst, vPld, vMst, vKx, vL16, vKMst = 8, 9, 10, 11, 12, 13, 14, 15, 56, 57
    vA0, vA1, vAv0, vAv1 = 16, 20, 24, 28
    vSx, vSm = 32, 40
    vPx, vPmA, vPmB = 44, 48, 50
    vDelta = 52
    vNeg = 60
    vB = 64; vK = 128; vV = 160; vQ = 192; vQr = 200; vKm = 208; vKr = 216; vVm = 224
    vLdsM, vLdsO, vLdsV = 232, 233, 234
    vSent = 236
    vFlag = 57
    vX = 240
    vO = 64; vOb = 96
    vOo = [112, 116, 120, 124] + [160 + 4 * i for i in range(8)]
    LDS_MEM, LDS_O, LDS_V = 0, 16384, 32768

    if not embedded:
        o(f"s_cmp_ge_u32 s{sWG}, {256 if X4 else 128}")
        o("s_cbranch_scc1 L_rec_end")
        o(f"s_load_dwordx2 {s(sWQ,2)}, s[0:1], {KA_WQ}")
        o(f"s_load_dwordx2 {s(sWK,2)}, s[0:1], {KA_WK}")
        o(f"s_load_dwordx2 {s(sWV,2)}, s[0:1], {KA_WV}")
        o(f"s_load_dwordx2 {s(sWO,2)}, s[0:1], {KA_WO}")
        o(f"s_load_dwordx2 {s(sDBG,2)}, s[0:1], {KA_DBG}")
        o(f"s_load_dwordx2 {s(sWS,2)}, s[0:1], {KA_WS}")
        o(f"v_lshrrev_b32 v1, 6, v0")
        o(f"v_and_b32 v{vL}, 63, v0")
        o(f"v_readfirstlane_b32 s{sW}, v1")
        o(f"s_getreg_b32 s{sG}, hwreg(HW_REG_XCC_ID, 0, 4)")
        o("s_waitcnt lgkmcnt(0)")
        o(f"s_cmp_lg_u32 s{sW}, 0")
        o("s_cbranch_scc1 L_rec_noticket")
        o(f"s_lshl_b32 s{sT0}, s{sG}, 2")
        o(f"v_mov_b32 v1, s{sT0}")
        o("v_mov_b32 v2, 1")
        o("s_mov_b64 exec, 1")
        o(f"global_atomic_add v3, v1, v2, {s(sDBG,2)} sc0")
        o("s_waitcnt vmcnt(0)")
        o("v_mov_b32 v1, 0")
        o("ds_write_b32 v1, v3")
        o("s_waitcnt lgkmcnt(0)")
        o("s_mov_b64 exec, -1")
        A.label("L_rec_noticket")
        o("s_barrier")
        o("v_mov_b32 v1, 0")
        o("ds_read_b32 v3, v1")
        o("s_waitcnt lgkmcnt(0)")
        o(f"v_readfirstlane_b32 s{sJ}, v3")
        o("s_barrier")
        if X4:
            o(f"s_cmp_ge_u32 s{sG}, {X4LIM}"); o("s_cbranch_scc1 L_rec_end")
            o(f"s_sub_u32 s{sG}, s{sG}, {X4LIM-4}") if False else None
            o(f"s_lshl_b32 s{sG}, s{sG}, 1"); o(f"s_lshr_b32 s{sT0}, s{sJ}, 4"); o(f"s_add_u32 s{sG}, s{sG}, s{sT0}")
        o(f"s_and_b32 s{sJ}, s{sJ}, 15")
        o(f"s_and_b32 s{sG}, s{sG}, 7")
    else:
        o(f"s_load_dwordx2 {s(sWQ,2)}, s[0:1], {KA_WQ}")
        o(f"s_load_dwordx2 {s(sWK,2)}, s[0:1], {KA_WK}")
        o(f"s_load_dwordx2 {s(sWV,2)}, s[0:1], {KA_WV}")
        o(f"s_load_dwordx2 {s(sWO,2)}, s[0:1], {KA_WO}")
        o(f"s_load_dwordx2 {s(sWS,2)}, s[0:1], {KA_WS}")
        o("s_waitcnt lgkmcnt(0)")
    o(f"s_lshr_b32 s{sHA}, s{sJ}, 2")
    o(f"s_and_b32 s{sC}, s{sJ}, 3")
    o(f"s_lshl_b32 s{sHead}, s{sG}, 2")
    o(f"s_add_u32 s{sHead}, s{sHead}, s{sW}")
    vi, vg, vr = vT[0], vT[1], vT[2]
    o(f"v_and_b32 v{vi}, 15, v{vL}")
    o(f"v_lshrrev_b32 v{vg}, 4, v{vL}")
    o(f"v_and_b32 v{vr}, 7, v{vL}")
    o(f"v_lshlrev_b32 v{vL16}, 4, v{vL}")

    o(f"s_lshl_b32 s{sT0}, s{sG}, 2")
    o(f"s_add_u32 s{sT0}, s{sT0}, s{sHA}")
    o(f"s_lshl_b32 s{sT0}, s{sT0}, 8")
    o(f"s_lshl_b32 s{sT1}, s{sC}, 6")
    o(f"s_add_u32 s{sT0}, s{sT0}, s{sT1}")
    v1, v2, v3, v4 = vT[3], vT[4], vT[5], vT[6]
    o(f"v_lshrrev_b32 v{v1}, 2, v{vL}")
    o(f"v_lshlrev_b32 v{v1}, 13, v{v1}")
    o(f"v_and_b32 v{v2}, 3, v{vL}")
    o(f"v_lshl_add_u32 v{v1}, v{v2}, 4, v{v1}")
    o(f"v_add_u32 v{v1}, s{sT0}, v{v1}")
    o(f"s_lshl_b32 s{sT1}, s{sW}, 21")
    o(f"v_add_u32 v{v1}, s{sT1}, v{v1}")
    def dma_strip(sbase, ldsbase, nblk, rowstep):
        o(f"v_mov_b32 v{v2}, v{v1}")
        o(f"s_lshl_b32 s{sT2}, s{sW}, {(nblk*1024).bit_length()-1}")
        o(f"s_add_u32 s{sT2}, s{sT2}, {ldsbase}")
        for m in range(nblk):
            o(f"s_mov_b32 m0, s{sT2}")
            o(f"s_add_u32 s{sT2}, s{sT2}, 1024")
            o(f"global_load_lds_dwordx4 v{v2}, {s(sbase,2)}")
            if m + 1 < nblk: o(f"v_add_u32 v{v2}, {rowstep}, v{v2}")
    dma_strip(sWQ, 0, 16, 131072)
    dma_strip(sWK, 65536, 16, 131072)
    o(f"v_lshrrev_b32 v{v3}, 2, v{vi}")
    o(f"v_lshl_add_u32 v{v3}, v{vg}, 3, v{v3}")
    o(f"v_lshlrev_b32 v{v3}, 6, v{v3}")
    o(f"v_and_b32 v{v4}, 3, v{vi}")
    o(f"v_lshl_add_u32 v{v3}, v{v4}, 3, v{v3}")
    o("s_waitcnt vmcnt(0)")
    o("s_barrier")
    o(f"s_lshr_b32 s{sT0}, s{sW}, 1")
    o(f"s_lshl_b32 s{sT0}, s{sT0}, 16")
    o(f"s_and_b32 s{sT1}, s{sW}, 1")
    o(f"s_lshl_b32 s{sT1}, s{sT1}, 5")
    o(f"s_add_u32 s{sT0}, s{sT0}, s{sT1}")
    for i in range(16):
        o(f"s_lshl_b32 s{sT2}, s{sW}, 2")
        o(f"s_add_u32 s{sT2}, s{sT2}, {i}")
        o(f"s_and_b32 s{sT2}, s{sT2}, 15")
        o(f"s_lshl_b32 s{sT2}, s{sT2}, 12")
        o(f"s_add_u32 s{sT2}, s{sT2}, s{sT0}")
        o(f"v_add_u32 v{v4}, s{sT2}, v{v3}")
        for half in range(2):
            d = (i * 2 + half) * 4
            o(f"ds_read_b64_tr_b16 {a(d,2)}, v{v4} offset:{half*2048}")
            o(f"ds_read_b64_tr_b16 {a(d+2,2)}, v{v4} offset:{half*2048+256}")
        if i % 4 == 3: o("s_waitcnt lgkmcnt(0)")
    o("s_barrier")
    dma_strip(sWV, 0, 16, 131072)
    o(f"v_lshrrev_b32 v{v1}, 3, v{vL}")
    o(f"v_lshlrev_b32 v{v1}, 11, v{v1}")
    o(f"v_and_b32 v{v2}, 7, v{vL}")
    o(f"v_lshl_add_u32 v{v1}, v{v2}, 4, v{v1}")
    o(f"s_lshl_b32 s{sT0}, s{sG}, 20")
    o(f"s_lshl_b32 s{sT1}, s{sJ}, 7")
    o(f"s_add_u32 s{sT0}, s{sT0}, s{sT1}")
    o(f"s_lshl_b32 s{sT1}, s{sW}, 18")
    o(f"s_add_u32 s{sT0}, s{sT0}, s{sT1}")
    o(f"v_add_u32 v{v1}, s{sT0}, v{v1}")
    dma_strip(sWO, 65536, 16, 16384)
    o("s_waitcnt vmcnt(0)")
    o("s_barrier")
    o(f"s_and_b32 s{sT0}, s{sW}, 1")
    o(f"s_lshl_b32 s{sT0}, s{sT0}, 5")
    for i in range(8):
        o(f"s_lshl_b32 s{sT2}, s{sW}, 2")
        o(f"s_add_u32 s{sT2}, s{sT2}, {i}")
        o(f"s_and_b32 s{sT2}, s{sT2}, 15")
        o(f"s_lshl_b32 s{sT2}, s{sT2}, 12")
        o(f"s_add_u32 s{sT2}, s{sT2}, s{sT0}")
        o(f"v_add_u32 v{v4}, s{sT2}, v{v3}")
        for half in range(2):
            d = 128 + (i * 2 + half) * 4
            o(f"ds_read_b64_tr_b16 {a(d,2)}, v{v4} offset:{half*2048}")
            o(f"ds_read_b64_tr_b16 {a(d+2,2)}, v{v4} offset:{half*2048+256}")
        if i % 4 == 3: o("s_waitcnt lgkmcnt(0)")
    o(f"v_lshrrev_b32 v{v3}, 2, v{vi}")
    o(f"v_lshl_add_u32 v{v3}, v{vg}, 2, v{v3}")
    o(f"v_lshlrev_b32 v{v3}, 7, v{v3}")
    o(f"v_and_b32 v{v4}, 3, v{vi}")
    o(f"v_lshl_add_u32 v{v3}, v{v4}, 3, v{v3}")
    o(f"s_lshl_b32 s{sT0}, s{sW}, 14")
    o(f"s_add_u32 s{sT0}, s{sT0}, 65536")
    o(f"v_add_u32 v{v4}, s{sT0}, v{v3}")
    for ct in range(4):
        for u in range(4):
            d = 192 + (ct * 4 + u) * 4
            o(f"ds_read_b64_tr_b16 {a(d,2)}, v{v4} offset:{u*4096+ct*32}")
            o(f"ds_read_b64_tr_b16 {a(d+2,2)}, v{v4} offset:{u*4096+2048+ct*32}")
        o("s_waitcnt lgkmcnt(0)")
    o("s_barrier")

    if hook:
        A.raw(hook)
        o(f"v_and_b32 v{vi}, 15, v{vL}"); o(f"v_lshrrev_b32 v{vg}, 4, v{vL}"); o(f"v_and_b32 v{vr}, 7, v{vL}")
    o(f"s_lshl_b32 s{sT0}, s{sW}, 12")
    o(f"v_add_u32 v{vE3}, s{sT0}, v{vL16}")
    o(f"v_lshrrev_b32 v{v1}, 1, v{vg}")
    o(f"v_lshlrev_b32 v{v1}, 8, v{v1}")
    o(f"v_lshl_add_u32 v{v1}, v{vr}, 4, v{v1}")
    o(f"s_lshr_b32 s{sT0}, s{sC}, 1")
    o(f"s_lshl_b32 s{sT0}, s{sT0}, 10")
    o(f"s_and_b32 s{sT1}, s{sW}, 1")
    o(f"s_lshl_b32 s{sT1}, s{sT1}, 9")
    o(f"s_add_u32 s{sT0}, s{sT0}, s{sT1}")
    o(f"s_and_b32 s{sT1}, s{sC}, 1")
    o(f"s_lshl_b32 s{sT1}, s{sT1}, 7")
    o(f"s_add_u32 s{sT0}, s{sT0}, s{sT1}")
    o(f"v_add_u32 v{vKMst}, s{sT0}, v{v1}")
    o(f"s_lshl_b32 s{sT0}, s{sHA}, 12")
    o(f"s_lshr_b32 s{sT1}, s{sW}, 1")
    o(f"s_lshl_b32 s{sT1}, s{sT1}, 11")
    o(f"s_add_u32 s{sT0}, s{sT0}, s{sT1}")
    o(f"v_add_u32 v{vQKst}, s{sT0}, v{vKMst}")
    o(f"s_lshl_b32 s{sT0}, s{sHA}, 11")
    o(f"s_lshl_b32 s{sT1}, s{sC}, 9")
    o(f"s_add_u32 s{sT0}, s{sT0}, s{sT1}")
    o(f"v_add_u32 v{vVst}, s{sT0}, v{vL16}")
    o(f"s_lshl_b32 s{sT0}, s{sW}, 11")
    o(f"v_add_u32 v{vVld}, s{sT0}, v{vL16}")
    o(f"s_lshl_b32 s{sT0}, s{sG}, 4")
    o(f"s_add_u32 s{sT0}, s{sT0}, s{sJ}")
    o(f"s_lshl_b32 s{sT0}, s{sT0}, 10")
    o(f"s_and_b32 s{sT1}, s{sW}, 1")
    o(f"s_lshl_b32 s{sT1}, s{sT1}, 9")
    o(f"s_add_u32 s{sT0}, s{sT0}, s{sT1}")
    o(f"s_lshr_b32 s{sT1}, s{sW}, 1")
    o(f"s_lshl_b32 s{sT1}, s{sT1}, 7")
    o(f"s_add_u32 s{sT0}, s{sT0}, s{sT1}")
    o(f"v_add_u32 v{vPst}, s{sT0}, v{v1}")
    o(f"v_lshlrev_b32 v{vPld}, 14, v{vg}")
    o(f"v_lshl_add_u32 v{vPld}, v{vi}, 4, v{vPld}")
    o(f"s_lshl_b32 s{sT0}, s{sJ}, 10")
    o(f"s_lshl_b32 s{sT1}, s{sW}, 8")
    o(f"s_add_u32 s{sT0}, s{sT0}, s{sT1}")
    o(f"v_add_u32 v{vPld}, s{sT0}, v{vPld}")
    o(f"v_add_u32 v{vMst}, s{sT0}, v{vL16}")
    o(f"v_lshlrev_b32 v{vKx}, 13, v{vi}")
    o(f"v_lshl_add_u32 v{vKx}, v{vg}, 4, v{vKx}")
    o(f"s_lshl_b32 s{sT0}, s{sHead}, 8")
    o(f"v_add_u32 v{vKx}, s{sT0}, v{vKx}")
    o(f"v_mov_b32 v{vLdsM}, v{vL16}")
    for d in range(4):
        o(f"v_mov_b32 v{vDelta+d}, 0")
        o(f"v_mov_b32 v{v1}, 0x3f80")
        o(f"v_cmp_eq_u32 vcc, {2*d}, v{vi}")
        o(f"v_cndmask_b32 v{vDelta+d}, v{vDelta+d}, v{v1}, vcc")
        o(f"v_mov_b32 v{v1}, 0x3f800000")
        o(f"v_cmp_eq_u32 vcc, {2*d+1}, v{vi}")
        o(f"v_cndmask_b32 v{vDelta+d}, v{vDelta+d}, v{v1}, vcc")
    o(f"v_mov_b32 v{v1}, 0xff800000")
    o(f"v_cmp_lt_u32 vcc, 31, v{vL}")
    o(f"v_cndmask_b32 v{vNeg}, 0, v{v1}, vcc")
    for r in range(1, 4): o(f"v_mov_b32 v{vNeg+r}, v{vNeg}")
    for r in range(4): o(f"v_mov_b32 v{vSent+r}, -1")
    o(f"s_mov_b32 s{sMaskQK}, 0xff"); o(f"s_mov_b32 s{sMaskQK+1}, 0xff")
    o(f"s_mov_b32 s{sSelV}, -1"); o(f"s_mov_b32 s{sSelV+1}, 0")
    import math
    cs = 128 ** -0.5 * math.log2(math.e)
    import struct
    o(f"s_mov_b32 s{sScale}, 0x{struct.unpack('<I', struct.pack('<f', cs))[0]:08x}")
    o(f"s_mov_b32 s{sScale+1}, s{sScale}")
    o(f"s_mov_b32 s{sLim}, 0x400000")
    o(f"s_mov_b32 s{sStep}, 0")
    def addbase(dst, off, extra_s=None):
        o(f"s_add_u32 s{dst}, s{sWS}, {off & 0xffffffff}")
        o(f"s_addc_u32 s{dst+1}, s{sWS+1}, 0")
        if extra_s is not None:
            o(f"s_add_u32 s{dst}, s{dst}, s{extra_s}")
            o(f"s_addc_u32 s{dst+1}, s{dst+1}, 0")
    o(f"s_lshl_b32 s{sT0}, s{sHead}, 13")
    o(f"s_add_u32 s{sT0}, s{sT0}, 4096")
    addbase(sKX, WS_K, sT0)
    o(f"s_lshl_b32 s{sT0}, s{sHead}, 13")
    o(f"s_add_u32 s{sT0}, s{sT0}, 4096")
    addbase(sVX, WS_VT, sT0)
    o(f"s_lshl_b32 s{sT0}, s{sHead}, 11")
    addbase(sKM, WS_KM, sT0)
    addbase(sVM, WS_VM, sT0)
    sCNT = 16
    addbase(sCNT, WS_CNT + cntoff)
    def kv_wait(chunk_sreg_expr_setup, target, tag):
        o(f"s_lshl_b32 s{sT0}, s{sT0}, 3"); o(f"s_add_u32 s{sT0}, s{sT0}, s{sG}"); o(f"s_lshl_b32 s{sT0}, s{sT0}, 7")
        o(f"v_mov_b32 v{vX+2}, s{sT0}")
        A.label(f"L_kvw_{tag}")
        o(f"global_load_dword v{vX+3}, v{vX+2}, {s(sCNT,2)} sc1")
        o("s_waitcnt vmcnt(0)")
        o(f"v_readfirstlane_b32 s{sT1}, v{vX+3}")
        o(f"s_cmp_ge_u32 s{sT1}, {target}")
        o(f"s_cbranch_scc1 L_kvw_{tag}_ok")
        o("s_sleep 4")
        o(f"s_sub_u32 s{sLim}, s{sLim}, 1")
        o(f"s_cbranch_scc0 L_kvw_{tag}")
        o(f"s_mov_b32 s{sLim}, 0")
        A.label(f"L_kvw_{tag}_ok")
    sEC = 94
    def gpoll(base, tag, sleep=12, allwaves=False):
        if not allwaves:
            o(f"s_cmp_lg_u32 s{sW}, 0"); o(f"s_cbranch_scc1 L_gp_{tag}_ok")
        o(f"v_mov_b32 v{vX+2}, s{sT0}")
        A.label(f"L_gp_{tag}")
        o(f"global_load_dword v{vX+3}, v{vX+2}, {s(base,2)} sc1")
        o("s_waitcnt vmcnt(0)")
        o(f"v_readfirstlane_b32 s{sT1}, v{vX+3}")
        o(f"s_cmp_ge_u32 s{sT1}, s{sT2}")
        o(f"s_cbranch_scc1 L_gp_{tag}_ok")
        o(f"s_sleep {sleep}")
        o(f"s_sub_u32 s{sLim}, s{sLim}, 1")
        o(f"s_cbranch_scc0 L_gp_{tag}")
        o(f"s_mov_b32 s{sLim}, 0")
        A.label(f"L_gp_{tag}_ok")
        if not allwaves: o("s_barrier")
    if KVCHK and not EARLY:
        o(f"s_mov_b32 s{sT0}, 0")
        kv_wait(None, 16, "0")
    if KVCHK and EARLY:
        o(f"s_mov_b32 s{sT0}, {EC_FILL*4}"); o(f"s_mov_b32 s{sT2}, 128"); gpoll(sEC, "f")
        o(f"s_lshl_b32 s{sT0}, s{sG}, 2"); o(f"s_add_u32 s{sT0}, s{sT0}, {EC_KVH0*4}"); o(f"s_mov_b32 s{sT2}, 16"); gpoll(sEC, "0")
    def load_kx():
        for t in range(8):
            o(f"global_load_dwordx4 {v(vK+t*4,4)}, v{vL16}, {s(sKX,2)} offset:{t*1024-4096}")
    load_kx()
    if prof:
        o(f"s_lshl_b32 s{sT0}, s{sG}, 4")
        o(f"s_add_u32 s{sT0}, s{sT0}, s{sJ}")
        o(f"s_lshl_b32 s{sT0}, s{sT0}, 2")
        o(f"s_add_u32 s{sT0}, s{sT0}, s{sW}")
        o(f"s_lshl_b32 s{sT0}, s{sT0}, 12")
        addbase(sProf, WS_PROF, sT0)
    nst = [0]
    def stamp():
        if not prof: return
        k = nst[0]; nst[0] += 1
        o(f"{TIMER} {s(sTs + 2*k, 2)}")

    def check(regs, lab_ok, lab_retry, tmp):
        regs = list(regs)
        o(f"v_max3_u32 v{tmp}, v{regs[0]}, v{regs[1]}, v{regs[2]}")
        k = 3
        while k + 1 < len(regs):
            o(f"v_max3_u32 v{tmp}, v{tmp}, v{regs[k]}, v{regs[k+1]}"); k += 2
        if k < len(regs):
            o(f"v_max_u32 v{tmp}, v{tmp}, v{regs[k]}")
        o(f"v_cmp_eq_u32 vcc, -1, v{tmp}")
        o(f"s_cbranch_vccz {lab_ok}")
        o(f"s_sub_u32 s{sLim}, s{sLim}, 1")
        o(f"s_cbranch_scc1 {lab_ok}_to")
        o(f"s_branch {lab_retry}")
        A.label(f"{lab_ok}_to")
        o(f"s_mov_b32 s{sLim}, 0")
        A.label(lab_ok)


    sCnt = 98
    vOo = [112, 116, 120, 124, 192, 196, 200, 204, 216, 220, 224, 228]
    vPf = 252
    def merge(main, side, every, start=0):
        side = list(side); out = [];
        for k, m_ in enumerate(main):
            out.append(m_)
            if side and k >= start and (k - start) % every == every - 1: out.append(side.pop(0))
        return out + side
    def emit(L):
        for x in L: o(x)
    def check(regs, lab_ok, lab_retry, tmp, cnt=None):
        regs = list(regs)
        o(f"v_max3_u32 v{tmp}, v{regs[0]}, v{regs[1]}, v{regs[2]}")
        k = 3
        while k + 1 < len(regs):
            o(f"v_max3_u32 v{tmp}, v{tmp}, v{regs[k]}, v{regs[k+1]}"); k += 2
        if k < len(regs):
            o(f"v_max_u32 v{tmp}, v{tmp}, v{regs[k]}")
        o(f"v_cmp_eq_u32 vcc, -1, v{tmp}")
        o(f"s_cbranch_vccz {lab_ok}")
        if prof and cnt is not None: o(f"s_add_u32 s{sCnt+cnt}, s{sCnt+cnt}, 1")
        o(f"s_sub_u32 s{sLim}, s{sLim}, 1")
        o(f"s_cbranch_scc0 {lab_retry}")
        o(f"s_mov_b32 s{sLim}, 0")
        A.label(lab_ok)
    sM = 88
    def mpoll(loads, tag, cnt):
        n = len(loads)
        regs = [b + r for b, _ in loads for r in range(4)]
        o(f"v_max3_u32 v{vX}, v{regs[0]}, v{regs[1]}, v{regs[2]}")
        k = 3
        while k + 1 < len(regs):
            o(f"v_max3_u32 v{vX}, v{vX}, v{regs[k]}, v{regs[k+1]}"); k += 2
        if k < len(regs): o(f"v_max_u32 v{vX}, v{vX}, v{regs[k]}")
        o(f"v_cmp_eq_u32 vcc, -1, v{vX}")
        o(f"s_cbranch_vccz L_{tag}_ok")
        A.label(f"L_{tag}_retry")
        if prof: o(f"s_add_u32 s{sCnt+cnt}, s{sCnt+cnt}, 1")
        for i, (b, rest) in enumerate(loads):
            o(f"v_max3_u32 v{vX}, v{b}, v{b+1}, v{b+2}")
            o(f"v_max_u32 v{vX}, v{vX}, v{b+3}")
            o(f"v_cmp_eq_u32 vcc, -1, v{vX}")
            o(f"s_cbranch_vccz L_{tag}_sk{i}")
            o("s_mov_b64 exec, vcc")
            o(f"global_load_dwordx4 {v(b,4)}, {rest}")
            o("s_mov_b64 exec, -1")
            A.label(f"L_{tag}_sk{i}")
        o("s_waitcnt vmcnt(0)")
        o(f"v_max3_u32 v{vX}, v{regs[0]}, v{regs[1]}, v{regs[2]}")
        k = 3
        while k + 1 < len(regs):
            o(f"v_max3_u32 v{vX}, v{vX}, v{regs[k]}, v{regs[k+1]}"); k += 2
        if k < len(regs): o(f"v_max_u32 v{vX}, v{vX}, v{regs[k]}")
        o(f"v_cmp_eq_u32 vcc, -1, v{vX}")
        o(f"s_cbranch_vccz L_{tag}_ok")
        o(f"s_sub_u32 s{sLim}, s{sLim}, 1")
        o(f"s_cbranch_scc0 L_{tag}_retry")
        o(f"s_mov_b32 s{sLim}, 0")
        A.label(f"L_{tag}_ok")
    if prof:
        for k in range(4): o(f"s_mov_b32 s{sCnt+k}, 0")
    vPfo = 58
    o(f"s_lshl_b32 s{sT1}, s{sG}, 2"); o(f"s_add_u32 s{sT1}, s{sT1}, s{sHA}"); o(f"s_lshl_b32 s{sT1}, s{sT1}, 13")
    o(f"s_lshl_b32 s{sT2}, s{sC}, 11"); o(f"s_add_u32 s{sT1}, s{sT1}, s{sT2}")
    o(f"s_and_b32 s{sT2}, s{sW}, 1"); o(f"s_lshl_b32 s{sT2}, s{sT2}, 10"); o(f"s_add_u32 s{sT1}, s{sT1}, s{sT2}")
    o(f"v_add_u32 v{vPfo}, s{sT1}, v{vL16}")
    o(f"s_cmp_lt_u32 s{sW}, 2")
    sPF = 18
    o(f"s_mov_b32 s{sT0}, {WS_K + 2*262144}")
    o(f"s_mov_b32 s{sT1}, {WS_VT + 2*262144}")
    o(f"s_cselect_b32 s{sT0}, s{sT0}, s{sT1}")
    o(f"s_add_u32 s{sPF}, s{sWS}, s{sT0}"); o(f"s_addc_u32 s{sPF+1}, s{sWS+1}, 0")
    def kx_loads():
        if NOK: return ["s_nop 0"] * 8
        return [f"global_load_dwordx4 {v(vK+t*4,4)}, v{vL16}, {s(sKX,2)} offset:{t*1024-4096}" for t in range(8)]
    def vx_loads():
        if NOV: return ["s_nop 0"] * 8
        return [f"global_load_dwordx4 {v(vV+4*t,4)}, v{vL16}, {s(sVX,2)} offset:{t*1024-4096}" for t in range(8)]
    vRd = [None, 232, 233, 234]
    for hs in (1, 2, 3):
        o(f"v_add_u32 v{vRd[hs]}, {hs*4096}, v{vE3}")
        o(f"v_and_b32 v{vRd[hs]}, 0x3fff, v{vRd[hs]}")
    vVw, vVr, vRw = 235, 59, 15
    o(f"s_lshl_b32 s{sT0}, s{sW}, 10")
    o(f"v_add_u32 v{vVw}, s{sT0}, v{vL16}")
    o(f"v_and_b32 v{vVr}, 31, v{vL}")
    o(f"v_lshlrev_b32 v{vVr}, 4, v{vVr}")
    o(f"v_lshrrev_b32 v{vX+2}, 5, v{vL}")
    o(f"v_lshl_add_u32 v{vVr}, v{vX+2}, 10, v{vVr}")
    vL4 = vX + 3
    o(f"v_lshlrev_b32 v{vL4}, 2, v{vL}")
    o(f"s_lshl_b32 s{sT0}, s{sW}, 8")
    o(f"v_add_u32 v{vRw}, s{sT0}, v{vL4}")
    vRr = [None, 1, 2, 3]
    for hs in (1, 2, 3):
        o(f"s_add_u32 s{sT0}, s{sW}, {hs}"); o(f"s_and_b32 s{sT0}, s{sT0}, 3"); o(f"s_lshl_b32 s{sT0}, s{sT0}, 8")
        o(f"v_add_u32 v{vRr[hs]}, s{sT0}, v{vL4}")
    vOnes = 4
    for r in range(4): o(f"v_mov_b32 v{vOnes+r}, 0x3f803f80")

    LDS_R = 36864
    A.label("L_step")
    nst[0] = 0
    if KVCHK:
        if EARLY:
            o(f"s_cmp_lg_u32 s{sStep}, 2"); o("s_cbranch_scc1 L_kvn2")
            o(f"s_lshl_b32 s{sT0}, s{sG}, 2"); o(f"s_add_u32 s{sT0}, s{sT0}, {EC_KVH1*4}"); o(f"s_mov_b32 s{sT2}, 16"); gpoll(sEC, "h1", 4)
            A.label("L_kvn2")
            o(f"s_cmp_lg_u32 s{sStep}, 6"); o("s_cbranch_scc1 L_kvn6")
            o(f"s_mov_b32 s{sT0}, {EC_FILL2*4}"); o(f"s_mov_b32 s{sT2}, 128"); gpoll(sEC, "f2", 4)
            A.label("L_kvn6")
        o(f"s_add_u32 s{sT0}, s{sStep}, 2"); o(f"s_and_b32 s{sT1}, s{sT0}, 7"); o(f"s_cmp_lg_u32 s{sT1}, 0"); o("s_cbranch_scc1 L_kvskip")
        o(f"s_cmp_ge_u32 s{sT0}, 64"); o("s_cbranch_scc1 L_kvskip")
        o(f"s_lshr_b32 s{sT0}, s{sT0}, 3")
        if EARLY:
            o(f"s_cmp_eq_u32 s{sT0}, 1"); o(f"s_cselect_b32 s{sT2}, 16, 4")
        else:
            o(f"s_mov_b32 s{sT2}, 4")
        o(f"v_readfirstlane_b32 s{sT1}, v{vFlag}")
        o(f"s_cmp_ge_u32 s{sT1}, s{sT2}"); o("s_cbranch_scc1 L_kvskip")
        o(f"s_lshl_b32 s{sT0}, s{sT0}, 3"); o(f"s_add_u32 s{sT0}, s{sT0}, s{sG}"); o(f"s_lshl_b32 s{sT0}, s{sT0}, 7")
        gpoll(sCNT, "n", 4, allwaves=True)
        A.label("L_kvskip")
    o(f"s_and_b32 s{sSlot}, s{sStep}, 3")
    o(f"s_lshl_b32 s{sT0}, s{sSlot}, 17")
    o(f"s_lshl_b32 s{sT1}, s{sG}, 14")
    o(f"s_add_u32 s{sT2}, s{sT0}, s{sT1}")
    addbase(sMEMc, WS_RMEM, sT2)
    e3_loads = [(vB + 4*u, f"v{vE3}, {s(sMEMc,2)} offset:{u*1024} sc1") for u in range(4)]
    def qk_mfma(i, first=False):
        for half, acc in ((0, vA0), (1, vA1)):
            c = "0" if first else v(acc, 4)
            o(f"v_mfma_f32_16x16x32_bf16 {v(acc,4)}, {a((i*2+half)*4,4)}, {v(vB+4*i,4)}, {c}")
    def salu_bases():
        addbase(sQK, WS_RQK, sT2)
        o(f"s_lshl_b32 s{sT3}, s{sStep}, 17")
        addbase(sPART, WS_PARTF, sT3)
        o(f"s_add_u32 s{sPART2}, s{sPART}, 65536"); o(f"s_addc_u32 s{sPART2+1}, s{sPART+1}, 0")
        o(f"s_lshr_b32 s{sT3}, s{sT2}, 1")
        addbase(sVR, WS_RV, sT3)
        o(f"s_add_u32 s{sT3}, s{sStep}, 1"); o(f"s_and_b32 s{sT3}, s{sT3}, 3"); o(f"s_lshl_b32 s{sT3}, s{sT3}, 17"); o(f"s_add_u32 s{sT3}, s{sT3}, s{sT1}")
        addbase(sMEMn, WS_RMEM, sT3)
        o(f"s_xor_b32 s{sT3}, s{sT0}, {2<<17}")
        o(f"s_add_u32 s{sT3}, s{sT3}, s{sT1}")
        addbase(sRq, WS_RQK, sT3)
        o(f"s_lshr_b32 s{sT3}, s{sT3}, 1")
        addbase(sRv, WS_RV, sT3)
        o(f"s_add_u32 s{sT3}, s{sStep}, 3"); o(f"s_and_b32 s{sT3}, s{sT3}, 3"); o(f"s_lshl_b32 s{sT3}, s{sT3}, 17"); o(f"s_add_u32 s{sT3}, s{sT3}, s{sT1}")
        addbase(sRm, WS_RMEM, sT3)
    def simple_poll(loads, tag, cnt, first_wait):
        regs = [b + r for b, _ in loads for r in range(4)]
        o(f"s_waitcnt vmcnt({first_wait})")
        o(f"s_branch L_{tag}_c")
        A.label(f"L_{tag}_r")
        for b, rest in loads: o(f"global_load_dwordx4 {v(b,4)}, {rest}")
        o("s_waitcnt vmcnt(0)")
        A.label(f"L_{tag}_c")
        check(regs, f"L_{tag}_ok", f"L_{tag}_r", vX, cnt)
    if E3_SALU_FIRST: salu_bases()
    stamp()
    for b, rest in e3_loads: o(f"global_load_dwordx4 {v(b,4)}, {rest}")
    if not E3_SALU_FIRST: salu_bases()
    simple_poll(e3_loads, "e3", 0, 0)
    if SIG:
        o(f"s_sub_u32 s{sT3}, s{sStep}, 1"); o(f"s_cbranch_scc1 L_nosig")
        o(f"s_and_b32 s{sT0}, s{sT3}, 15"); o(f"s_cmp_lg_u32 s{sT0}, s{sJ}"); o("s_cbranch_scc1 L_nosig")
        o(f"s_lshl_b32 s{sT0}, s{sT3}, 7"); o(f"s_add_u32 s{sT0}, s{sT0}, {CNT_REC}")
        o(f"v_mov_b32 v{vX+2}, s{sT0}"); o(f"v_mov_b32 v{vX+3}, 1")
        o("s_mov_b64 exec, 1")
        o(f"global_atomic_add v{vX+2}, v{vX+3}, {s(sCNT,2)}")
        o("s_mov_b64 exec, -1")
        A.label("L_nosig")
    for u, (b, rest) in enumerate(e3_loads):
        o(f"ds_write_b128 v{vE3}, {v(b,4)} offset:{LDS_MEM + u*1024}")
    for u in range(4): qk_mfma(u, first=(u == 0))
    stamp()
    o("s_waitcnt lgkmcnt(0)")
    o("s_barrier")
    for i in range(4, 16):
        o(f"ds_read_b128 {v(vB+4*i,4)}, v{vRd[i//4]} offset:{LDS_MEM + (i%4)*1024}")
    vxl = vx_loads()
    for i in range(4, 16):
        o(f"s_waitcnt lgkmcnt({15-i})")
        qk_mfma(i)
        if i % VSP == VSP - 1 and vxl: o(vxl.pop(0))
    stamp()
    for r in range(4):
        o(f"v_add_f32_dpp v{vA0+r}, v{vA1+r}, v{vA0+r} row_ror:8 row_mask:0xf bank_mask:0xf")
    R = vX + 4
    o(f"v_cvt_pk_bf16_f32 v{R}, v{vA0}, v{vA0+1}")
    o(f"v_cvt_pk_bf16_f32 v{R+1}, v{vA0+2}, v{vA0+3}")
    o(f"v_permlane16_swap_b32 v{R}, v{R+2}")
    o(f"v_permlane16_swap_b32 v{R+1}, v{R+3}")
    o(f"s_mov_b64 exec, {s(sMaskQK,2)}")
    o(f"global_store_dwordx4 v{vQKst}, {v(R,4)}, {s(sQK,2)}{st_fast}")
    o("s_mov_b64 exec, -1")
    stamp()
    e1_loads = [(vQ + 4*cp, f"v{vE3}, {s(sQK,2)} offset:{cp*1024} sc1") for cp in range(2)] + [(vKm + 4*cp, f"v{vE3}, {s(sQK,2)} offset:{2048+cp*1024} sc1") for cp in range(2)]
    def e1_issue():
        for b, rest in e1_loads: o(f"global_load_dwordx4 {v(b,4)}, {rest}")
    for i in range(8):
        for half, acc in ((0, vAv0), (1, vAv1)):
            c = "0" if i == 0 else v(acc, 4)
            o(f"v_mfma_f32_16x16x32_bf16 {v(acc,4)}, {v(vB+4*i,4)}, {a(128+(i*2+half)*4,4)}, {c}")
        if vxl and i % 2 == 1: o(vxl.pop(0))
        if i == E1_AT:
            emit(vxl); vxl = []
            e1_issue()
    emit(vxl)
    for r in range(4):
        o(f"v_cndmask_b32 v{vAv0+r}, v{vAv1+r}, v{vAv0+r}, {s(sSelV,2)}")
    o(f"ds_write_b128 v{vVw}, {v(vAv0,4)} offset:{LDS_V}")
    o("s_waitcnt lgkmcnt(0)")
    o("s_barrier")
    o(f"s_cmp_lg_u32 s{sW}, 0")
    o("s_cbranch_scc1 L_vred_skip")
    T = vA0
    for k, off in enumerate((0, 512, 2048, 2560)):
        o(f"ds_read_b128 {v(T+4*k,4)}, v{vVr} offset:{LDS_V+off}")
    o("s_waitcnt lgkmcnt(0)")
    for r in range(4):
        o(f"v_add_f32 v{T+r}, v{T+r}, v{T+4+r}")
        o(f"v_add_f32 v{T+8+r}, v{T+8+r}, v{T+12+r}")
    for r in range(4):
        o(f"v_add_f32 v{T+r}, v{T+r}, v{T+8+r}")
    o(f"v_cvt_pk_bf16_f32 v{R}, v{T}, v{T+1}")
    o(f"v_cvt_pk_bf16_f32 v{R+1}, v{T+2}, v{T+3}")
    o(f"v_permlane32_swap_b32 v{R}, v{R+2}")
    o(f"v_permlane32_swap_b32 v{R+1}, v{R+3}")
    o(f"s_mov_b64 exec, {s(sSelV,2)}")
    o(f"global_store_dwordx4 v{vVst}, {v(R,4)}, {s(sVR,2)}{st_fast}")
    o("s_mov_b64 exec, -1")
    o("s_waitcnt vmcnt(1)")
    o("s_branch L_e1_c")
    A.label("L_e1_r")
    e1_issue()
    A.label("L_vred_skip")
    o("s_waitcnt vmcnt(0)")
    A.label("L_e1_c")
    check([b + r for b, _ in e1_loads for r in range(4)], "L_e1_ok", "L_e1_r", vX, 1)
    stamp()
    def M32(d, A_, B_, C_): return f"v_mfma_f32_16x16x32_bf16 {v(d,4)}, {A_}, {B_}, {C_}"
    def rot(dst, srcr): return [f"v_mov_b32_dpp v{dst+r}, v{srcr+r} row_ror:8 row_mask:0xf bank_mask:0xf" for r in range(4)]
    Kf = lambda kt, u: v(vK + (kt*4+u)*4, 4)
    seq = []
    seq += [M32(vSx, Kf(0,0), v(vQ,4), "0")] + rot(vQr, vQ)[:2]
    seq += [M32(vSx+4, Kf(1,0), v(vQ,4), "0")] + rot(vQr, vQ)[2:]
    seq += [M32(vSm, v(vKm,4), v(vQ,4), v(vNeg,4))] + rot(vQr+4, vQ+4)[:2]
    seq += [M32(vSx, Kf(0,2), v(vQ+4,4), v(vSx,4))] + rot(vQr+4, vQ+4)[2:]
    seq += [M32(vSx+4, Kf(1,2), v(vQ+4,4), v(vSx+4,4))] + rot(vKr, vKm)[:2]
    seq += [M32(vSm, v(vKm+4,4), v(vQ+4,4), v(vSm,4))] + rot(vKr, vKm)[2:]
    seq += [M32(vSx, Kf(0,1), v(vQr,4), v(vSx,4))] + rot(vKr+4, vKm+4)[:2]
    seq += [M32(vSx+4, Kf(1,1), v(vQr,4), v(vSx+4,4))] + rot(vKr+4, vKm+4)[2:]
    seq += [M32(vSx, Kf(0,3), v(vQr+4,4), v(vSx,4))]
    seq += [M32(vSx+4, Kf(1,3), v(vQr+4,4), v(vSx+4,4))]
    seq += [M32(vSm, v(vKr,4), v(vQr,4), v(vSm,4))]
    seq += [M32(vSm, v(vKr+4,4), v(vQr+4,4), v(vSm,4))]
    emit(seq)
    if not FIXKV:
        o(f"s_add_u32 s{sKX}, s{sKX}, 262144"); o(f"s_addc_u32 s{sKX+1}, s{sKX+1}, 0")
    vm_loads = [(vVm + 4*mm, f"v{vVld}, {s(sVR,2)} offset:{mm*1024} sc1") for mm in range(2)]
    for b, rest in vm_loads: o(f"global_load_dwordx4 {v(b,4)}, {rest}")
    if PF and PFE: o(f"global_load_dwordx4 {v(vPf,4)}, v{vPfo}, {s(sPF,2)}")
    m, t = vX + 1, vX + 2
    Sall = list(range(vSx, vSx + 8)) + list(range(vSm, vSm + 4))
    m2 = vX + 3
    o(f"v_max3_f32 v{m}, v{Sall[0]}, v{Sall[1]}, v{Sall[2]}")
    o(f"v_max3_f32 v{m2}, v{Sall[4]}, v{Sall[5]}, v{Sall[6]}")
    o(f"v_max3_f32 v{m}, v{m}, v{Sall[3]}, v{Sall[7]}")
    o(f"v_max3_f32 v{m2}, v{m2}, v{Sall[8]}, v{Sall[9]}")
    o(f"v_max3_f32 v{m}, v{m}, v{Sall[10]}, v{Sall[11]}")
    o(f"v_max_f32 v{m}, v{m}, v{m2}")
    for sw in ("16", "32"):
        o(f"v_mov_b32 v{t}, v{m}")
        o(f"v_permlane{sw}_swap_b32 v{m}, v{t}")
        o(f"v_max_f32 v{m}, v{m}, v{t}")
    mm_ = vX + 2
    o(f"v_mul_f32 v{mm_}, s{sScale}, v{m}")
    kxl = kx_loads()
    main = []
    for r in Sall[::2]: main.append(f"v_pk_fma_f32 {v(r,2)}, {v(r,2)}, {s(sScale,2)}, {v(mm_,2)} op_sel_hi:[1,1,0] neg_lo:[0,0,1] neg_hi:[0,0,1]")
    for k_, r in enumerate(Sall):
        main.append(f"v_exp_f32 v{r}, v{r}")
    emit(merge(main, [kxl.pop(0), kxl.pop(0)], 7))
    o(f"v_cvt_pk_bf16_f32 v{vPx}, v{vSx}, v{vSx+1}")
    o(f"v_cvt_pk_bf16_f32 v{vPx+1}, v{vSx+2}, v{vSx+3}")
    o(f"v_cvt_pk_bf16_f32 v{vPx+2}, v{vSx+4}, v{vSx+5}")
    o(f"v_cvt_pk_bf16_f32 v{vPx+3}, v{vSx+6}, v{vSx+7}")
    o(f"v_cvt_pk_bf16_f32 v{vPmA}, v{vSm}, v{vSm+1}")
    o(f"v_cvt_pk_bf16_f32 v{vPmA+1}, v{vSm+2}, v{vSm+3}")
    stamp()
    vLs = vSx
    pv = [M32(vO+4*tt, v(vV+4*tt,4), v(vPx,4), "0") for tt in range(8)]
    side = [f"v_mov_b32 v{vX+4}, v{vPmA}", f"v_mov_b32 v{vX+5}, v{vPmA+1}", f"v_mov_b32 v{vPmB}, 0", f"v_mov_b32 v{vPmB+1}, 0",
            f"v_permlane32_swap_b32 v{vPmB}, v{vX+4}", f"v_permlane32_swap_b32 v{vPmB+1}, v{vX+5}", kxl.pop(0)]
    emit(merge(pv, side, 1))
    o(M32(vLs, v(vOnes,4), v(vPx,4), "0"))
    o(f"v_mfma_f32_16x16x16_bf16 {v(vLs,4)}, {v(vOnes,2)}, {v(vPmA,2)}, {v(vLs,4)}")
    simple_poll(vm_loads, "vm", 2, 4 if (PF and PFE) else 3)
    stamp()
    if KVCHK:
        o(f"s_add_u32 s{sT0}, s{sStep}, 3"); o(f"s_and_b32 s{sT1}, s{sT0}, 7"); o(f"s_cmp_lg_u32 s{sT1}, 0"); o("s_cbranch_scc1 L_nofl")
        o(f"s_lshr_b32 s{sT0}, s{sT0}, 3"); o(f"s_lshl_b32 s{sT0}, s{sT0}, 3"); o(f"s_add_u32 s{sT0}, s{sT0}, s{sG}"); o(f"s_lshl_b32 s{sT0}, s{sT0}, 7")
        o(f"v_mov_b32 v{vFlag}, s{sT0}")
        o(f"global_load_dword v{vFlag}, v{vFlag}, {s(sCNT,2)} sc1")
        A.label("L_nofl")
    o(f"s_and_b32 s{sT0}, s{sStep}, 15"); o(f"s_cmp_lg_u32 s{sT0}, s{sJ}"); o("s_cbranch_scc1 L_nopub")
    for cp in range(2): o(f"global_store_dwordx4 v{vL16}, {v(vKm+4*cp,4)}, {s(sKM,2)} offset:{cp*1024}" + (" sc1" if SIG else ""))
    for cp in range(2): o(f"global_store_dwordx4 v{vL16}, {v(vVm+4*cp,4)}, {s(sVM,2)} offset:{cp*1024}" + (" sc1" if SIG else ""))
    A.label("L_nopub")
    if LAST_SHORT:
        o(f"s_cmp_eq_u32 s{sStep}, {nsteps-1}")
        o("s_cbranch_scc1 L_rec_last")
    if PF and not PFE: o(f"global_load_dwordx4 {v(vPf,4)}, v{vPfo}, {s(sPF,2)}")
    def pvm(tt):
        c, tv = tt >> 1, tt & 1
        pm = vPmB if (c & 1) else vPmA
        return f"v_mfma_f32_16x16x16_bf16 {v(vO+4*tt,4)}, {v(vVm+4*(c>>1)+2*tv,2)}, {v(pm,2)}, {v(vO+4*tt,4)}"
    def cvt(tt):
        u, h = tt >> 1, tt & 1
        return [f"v_cvt_pk_bf16_f32 v{vOb+4*u+2*h}, v{vO+4*tt}, v{vO+4*tt+1}", f"v_cvt_pk_bf16_f32 v{vOb+4*u+2*h+1}, v{vO+4*tt+2}, v{vO+4*tt+3}"]
    vCa = [16, 20, 24, 28]
    for tt in range(3): o(pvm(tt))
    l_ = vX + 1
    def cm(ct, u):
        c = "0" if u == 0 else v(vCa[ct], 4)
        return f"v_mfma_f32_16x16x32_bf16 {v(vCa[ct],4)}, {a(192+(ct*4+u)*4,4)}, {v(vOb+4*u,4)}, {c}"
    pend = []
    for tt in range(8):
        if tt + 3 < 8: o(pvm(tt + 3))
        cv = cvt(tt)
        o(cv[0])
        if pend: o(pend.pop(0))
        o(cv[1])
        if pend: o(pend.pop(0))
        if tt == 0: o(f"v_rcp_f32 v{l_}, v{vLs}")
        if tt % 2 == 1:
            pend += [cm(ct, tt >> 1) for ct in range(4)]
            if kxl: o(kxl.pop(0))
    emit(pend)
    for ct in range(4):
        pass
    o(f"v_mov_b32 v{vX+2}, v{l_}")
    for ct in range(4):
        o(f"v_pk_mul_f32 {v(vCa[ct],2)}, {v(vCa[ct],2)}, {v(vX+2,2)} op_sel_hi:[1,0]")
        o(f"v_pk_mul_f32 {v(vCa[ct]+2,2)}, {v(vCa[ct]+2,2)}, {v(vX+2,2)} op_sel_hi:[1,0]")
        o(f"ds_write_b128 v{vVw}, {v(vCa[ct],4)} offset:{LDS_O+ct*4096}")
    while kxl: o(kxl.pop(0))
    o("s_waitcnt lgkmcnt(0)")
    o("s_barrier")
    stamp()
    Rr = [112, 116, 120, 124]
    for sw in range(4): o(f"ds_read_b128 {v(Rr[sw],4)}, v{vE3} offset:{LDS_O+sw*1024}")
    vC = Rr[0]
    o("s_waitcnt lgkmcnt(2)")
    o(f"v_pk_add_f32 {v(Rr[0],2)}, {v(Rr[0],2)}, {v(Rr[1],2)}"); o(f"v_pk_add_f32 {v(Rr[0]+2,2)}, {v(Rr[0]+2,2)}, {v(Rr[1]+2,2)}")
    o("s_waitcnt lgkmcnt(0)")
    o(f"v_pk_add_f32 {v(Rr[2],2)}, {v(Rr[2],2)}, {v(Rr[3],2)}"); o(f"v_pk_add_f32 {v(Rr[2]+2,2)}, {v(Rr[2]+2,2)}, {v(Rr[3]+2,2)}")
    o(f"v_pk_add_f32 {v(Rr[0],2)}, {v(Rr[0],2)}, {v(Rr[2],2)}"); o(f"v_pk_add_f32 {v(Rr[0]+2,2)}, {v(Rr[0]+2,2)}, {v(Rr[2]+2,2)}")
    o(f"v_cvt_pk_bf16_f32 v{R}, v{vC}, v{vC+1}")
    o(f"v_cvt_pk_bf16_f32 v{R+1}, v{vC+2}, v{vC+3}")
    o(f"v_permlane16_swap_b32 v{R}, v{R+2}")
    o(f"v_permlane16_swap_b32 v{R+1}, v{R+3}")
    o(f"s_mov_b64 exec, {s(sMaskQK,2)}")
    if EP == 2:
        o("s_waitcnt vmcnt(0)")
        o(f"{TIMER} {s(sTs + 2*5, 2)}")
    o(f"global_store_dwordx4 v{vPst}, {v(R,4)}, {s(sPART,2)} sc1")
    stamp()
    if EP == 2:
        o("s_waitcnt vmcnt(0)")
        o(f"{TIMER} {s(sTs + 2*4, 2)}")
    o(f"global_store_dwordx4 v{vQKst}, {v(vSent,4)}, {s(sRq,2)}{st_fast}")
    o(f"s_mov_b64 exec, 0xffff")
    o(f"global_store_dwordx4 v{vMst}, {v(vSent,4)}, {s(sRm,2)}{st_fast}")
    o(f"s_cmp_lg_u32 s{sW}, 0")
    o("s_cbranch_scc1 L_norv")
    o(f"s_mov_b64 exec, {s(sSelV,2)}")
    o(f"global_store_dwordx4 v{vVst}, {v(vSent,4)}, {s(sRv,2)}{st_fast}")
    A.label("L_norv")
    o("s_mov_b64 exec, -1")
    if not FIXKV:
        o(f"s_add_u32 s{sVX}, s{sVX}, 262144"); o(f"s_addc_u32 s{sVX+1}, s{sVX+1}, 0")
    o(f"s_add_u32 s{sKM}, s{sKM}, 65536"); o(f"s_addc_u32 s{sKM+1}, s{sKM+1}, 0")
    o(f"s_add_u32 s{sVM}, s{sVM}, 65536"); o(f"s_addc_u32 s{sVM+1}, s{sVM+1}, 0")
    if E2_DELAY: o(f"s_sleep {E2_DELAY}")
    sets = [vB + 8 * k for k in range(E2_DEPTH)]
    def e2_issue(b):
        o(f"global_load_dwordx4 {v(b,4)}, v{vPld}, {s(sPART,2)} {E2F}")
        o(f"global_load_dwordx4 {v(b+4,4)}, v{vPld}, {s(sPART2,2)} {E2F}")
    if EP: o(f"{TIMER} {s(sTs + 2*2, 2)}")
    for k, b in enumerate(sets):
        e2_issue(b)
        if k + 1 < len(sets) and E2_SP: o(f"s_sleep {E2_SP}")
    if EP:
        o(f"s_waitcnt vmcnt({2*(len(sets)-1)})")
        o(f"{TIMER} {s(sTs + 2*3, 2)}")
    A.label("L_e2")
    for k, b in enumerate(sets):
        o(f"s_waitcnt vmcnt({2*(len(sets)-1)})")
        regs = list(range(b, b + 8))
        o(f"v_max3_u32 v{vX}, v{regs[0]}, v{regs[1]}, v{regs[2]}")
        o(f"v_max3_u32 v{vX}, v{vX}, v{regs[3]}, v{regs[4]}")
        o(f"v_max3_u32 v{vX}, v{vX}, v{regs[5]}, v{regs[6]}")
        o(f"v_max_u32 v{vX}, v{vX}, v{regs[7]}")
        o(f"v_cmp_eq_u32 vcc, -1, v{vX}")
        o(f"s_cbranch_vccz L_e2_ok{k}")
        if prof: o(f"s_add_u32 s{sCnt+3}, s{sCnt+3}, 1")
        e2_issue(b)
    o(f"s_sub_u32 s{sLim}, s{sLim}, 1")
    o(f"s_cbranch_scc0 L_e2")
    o(f"s_mov_b32 s{sLim}, 0")
    D = vA1
    for k, b in enumerate(sets):
        A.label(f"L_e2_ok{k}")
        o(f"v_mfma_f32_16x16x32_bf16 {v(D,4)}, {v(vDelta,4)}, {v(b,4)}, 0")
        o(f"v_mfma_f32_16x16x32_bf16 {v(D,4)}, {v(vDelta,4)}, {v(b+4,4)}, {v(D,4)}")
        if k + 1 < len(sets): o("s_branch L_e2_done")
    A.label("L_e2_done")
    o(f"s_add_u32 s{sPF}, s{sPF}, 262144"); o(f"s_addc_u32 s{sPF+1}, s{sPF+1}, 0")
    stamp()
    o("s_nop 7")
    o(f"v_cvt_pk_bf16_f32 v{R}, v{D}, v{D+1}")
    o(f"v_cvt_pk_bf16_f32 v{R+1}, v{D+2}, v{D+3}")
    o(f"v_permlane16_swap_b32 v{R}, v{R+2}")
    o(f"v_permlane16_swap_b32 v{R+1}, v{R+3}")
    o(f"s_mov_b64 exec, 0xffff")
    o(f"global_store_dwordx4 v{vMst}, {v(R,4)}, {s(sMEMn,2)}{st_fast}")
    o("s_mov_b64 exec, -1")
    stamp()
    if E3_DELAY: o(f"s_sleep {E3_DELAY}")
    if prof:
        o("s_waitcnt lgkmcnt(0)")
        for k in range(nst[0]):
            o(f"v_writelane_b32 v{vX+8}, s{sTs+2*k}, {k}")
        for k in range(4):
            o(f"v_writelane_b32 v{vX+8}, s{sCnt+k}, {11+k}")
        o(f"v_writelane_b32 v{vX+8}, s92, 15")
        o(f"s_lshl_b32 s{sT0}, s{sW}, 12")
        o(f"s_lshl_b32 s{sT1}, s{sStep}, 6")
        o(f"s_add_u32 s{sT0}, s{sT0}, s{sT1}")
        o(f"s_add_u32 s{sT0}, s{sT0}, 40960")
        o(f"v_lshlrev_b32 v{vX+9}, 2, v{vL}")
        o(f"v_add_u32 v{vX+9}, s{sT0}, v{vX+9}")
        o("s_mov_b64 exec, 0xffff")
        o(f"ds_write_b32 v{vX+9}, v{vX+8}")
        o("s_mov_b64 exec, -1")
    o(f"s_add_u32 s{sStep}, s{sStep}, 1")
    o(f"s_cmp_lt_u32 s{sStep}, {nsteps}")
    o("s_cbranch_scc1 L_step")
    o("s_branch L_rec_fin")
    A.label("L_rec_last")
    if SIG:
        o("s_waitcnt vmcnt(0)")
        o(f"s_and_b32 s{sT0}, s{sStep}, 15"); o(f"s_cmp_lg_u32 s{sT0}, s{sJ}"); o("s_cbranch_scc1 L_rec_fin")
        o(f"s_lshl_b32 s{sT0}, s{sStep}, 7"); o(f"s_add_u32 s{sT0}, s{sT0}, {CNT_REC}")
        o(f"v_mov_b32 v{vX+2}, s{sT0}"); o(f"v_mov_b32 v{vX+3}, 1")
        o("s_mov_b64 exec, 1")
        o(f"global_atomic_add v{vX+2}, v{vX+3}, {s(sCNT,2)}")
        o("s_mov_b64 exec, -1")
    A.label("L_rec_fin")
    if prof:
        o("s_waitcnt lgkmcnt(0)")
        o(f"s_lshl_b32 s{sT0}, s{sW}, 12")
        o(f"s_add_u32 s{sT0}, s{sT0}, 40960")
        o(f"v_add_u32 v{vX+9}, s{sT0}, v{vL16}")
        for k in range(4):
            o(f"ds_read_b128 {v(vB+4*k,4)}, v{vX+9} offset:{k*1024}")
        o("s_waitcnt lgkmcnt(0)")
        for k in range(4):
            o(f"global_store_dwordx4 v{vL16}, {v(vB+4*k,4)}, {s(sProf,2)} offset:{k*1024}")
    o("s_waitcnt vmcnt(0)")
    A.label("L_rec_end")
    o("s_endpgm")
    txt = A.finish()
    if embedded:
        import re
        return re.sub(r"\bL_", pfx + "L_", txt)
    return kernel_head(name) + txt + kernel_desc(name, 256, 256)

if __name__ == "__main__":
    import sys
    fast = "slow" not in sys.argv
    prof = "prof" in sys.argv
    ng = 256 if any(x.startswith("X4=1") for x in sys.argv) else 128
    hdr = f"; @launch kernel=rec_kernel grid=({ng},1,1) block=(256,1,1) lds=131072\n.amdgcn_target \"amdgcn-amd-amdhsa--gfx950\"\n.text\n"
    kw = {}
    for x in sys.argv[1:]:
        if "=" in x:
            k_, v_ = x.split("=");
            if k_ != "out": kw[k_] = int(v_) if v_.isdigit() else v_
    outn = [x.split("=")[1] for x in sys.argv if x.startswith("out=")]
    open(outn[0] if outn else "rec_test.s", "w").write(hdr + gen_rec(fast=fast, prof=prof, **kw))
```

```python
from asmlib import *
from layout import *
from gemm import Gemm, gen_loop, gen_loop2
from k_qkv import srd
from k_small import fbits, LOG2E, wave_sum, ln_rows, unpack8, gfun
from k_attn import attn_body
from mega import qkv_tile
import rec12 as rec
import re, math

CNT_MODA, CNT_MODB, CNT_MODC = 40960, 40960 + 128, 40960 + 256
CNT_LN1 = 41984
SLOW_OFF = 65536

sW, sXb, sI, sWS = 3, 4, 5, 6
sCNT, sB, sCh, sRound, sChk, sLim = 60, 62, 63, 64, 65, 66
sCt, sTok, sCntOff = 67, 68, 69
sDBG = 70
sFt, sDtG = 81, 82

def wait_cnt(A, off, target, tag, off_s=None, sleep=3):
    o = A
    o(f"s_cmp_lg_u32 s{sW}, 0"); o(f"s_cbranch_scc1 L_wc_{tag}_b")
    if off_s is None: o(f"v_mov_b32 v2, {off}")
    else:
        o(f"s_add_u32 s44, s{off_s}, {off}"); o("v_mov_b32 v2, s44")
    A.label(f"L_wc_{tag}")
    o(f"global_load_dword v3, v2, {s(sCNT,2)} sc1")
    o("s_waitcnt vmcnt(0)")
    o("v_readfirstlane_b32 s44, v3")
    o(f"s_cmp_ge_u32 s44, {target}"); o(f"s_cbranch_scc1 L_wc_{tag}_b")
    o(f"s_sleep {sleep}")
    o(f"s_sub_u32 s{sLim}, s{sLim}, 1"); o(f"s_cbranch_scc0 L_wc_{tag}")
    o(f"s_mov_b32 s{sLim}, 0")
    A.label(f"L_wc_{tag}_b")
    o("s_barrier")

def signal(A, off, tag, off_s=None):
    o = A
    o("s_waitcnt vmcnt(0)"); o("s_barrier")
    o(f"s_cmp_lg_u32 s{sW}, 0"); o(f"s_cbranch_scc1 L_sg_{tag}")
    if off_s is None: o(f"v_mov_b32 v2, {off}")
    else:
        o(f"s_add_u32 s44, s{off_s}, {off}"); o("v_mov_b32 v2, s44")
    o("v_mov_b32 v3, 1"); o("s_mov_b64 exec, 1")
    o(f"global_atomic_add v2, v3, {s(sCNT,2)}")
    o("s_mov_b64 exec, -1")
    A.label(f"L_sg_{tag}")

def mod_task(A, sCol, tag):
    o = A
    o("s_load_dwordx2 s[8:9], s[0:1], %d" % KA_WMOD)
    o("v_lshrrev_b32 v5, 2, v0"); o(f"s_lshl_b32 s12, s{sW}, 8"); o("v_add_u32 v5, s12, v5")
    o("v_lshlrev_b32 v6, 2, v5")
    o("s_mov_b32 s13, 12288"); o("v_mul_lo_u32 v7, v5, s13")
    o("v_and_b32 v26, 3, v0"); o("v_lshl_add_u32 v7, v26, 4, v7")
    o(f"s_lshl_b32 s12, s{sCol}, 1"); o("v_add_u32 v7, s12, v7")
    o("s_waitcnt lgkmcnt(0)")
    W = 32; Cc = 96; AC = 112
    for it in range(16):
        o(f"global_load_dwordx4 {v(W+4*it,4)}, v7, s[8:9]")
        o(f"v_add_u32 v7, {16*12288}, v7")
        o(f"ds_read_b32 v{Cc+it}, v6 offset:{it*64}")
    for e in range(8): o(f"v_mov_b32 v{AC+e}, 0")
    o("s_waitcnt lgkmcnt(0)")
    for it in range(16):
        o(f"s_waitcnt vmcnt({15-it})")
        for d in range(4):
            o(f"v_lshlrev_b32 v27, 16, v{W+4*it+d}")
            o(f"v_and_b32 v28, 0xffff0000, v{W+4*it+d}")
            o(f"v_fmac_f32 v{AC+2*d}, v27, v{Cc+it}")
            o(f"v_fmac_f32 v{AC+2*d+1}, v28, v{Cc+it}")
    for e in range(8):
        x = AC + e
        o(f"v_add_f32_dpp v{x}, v{x}, v{x} row_ror:4 row_mask:0xf bank_mask:0xf")
        o(f"v_add_f32_dpp v{x}, v{x}, v{x} row_ror:8 row_mask:0xf bank_mask:0xf")
        for sw in ("16", "32"):
            o(f"v_mov_b32 v27, v{x}"); o(f"v_permlane{sw}_swap_b32 v{x}, v27"); o(f"v_add_f32 v{x}, v{x}, v27")
    o(f"s_lshl_b32 s12, s{sW}, 7"); o("v_lshlrev_b32 v5, 5, v26"); o("v_add_u32 v5, s12, v5")
    o("s_mov_b64 exec, 0xf")
    o(f"ds_write_b128 v5, {v(AC,4)} offset:4096"); o(f"ds_write_b128 v5, {v(AC+4,4)} offset:4112")
    o("s_mov_b64 exec, -1")
    o("s_waitcnt lgkmcnt(0)"); o("s_barrier")
    o(f"s_cmp_lg_u32 s{sW}, 0"); o(f"s_cbranch_scc1 L_mod_{tag}_d")
    o("v_lshlrev_b32 v5, 2, v0")
    o("s_mov_b64 exec, 0xffffffff")
    for w in range(4): o(f"ds_read_b32 v{32+w}, v5 offset:{4096+w*128}")
    o("s_waitcnt lgkmcnt(0)")
    o("v_add_f32 v32, v32, v33"); o("v_add_f32 v34, v34, v35"); o("v_add_f32 v32, v32, v34")
    o("v_cvt_pk_bf16_f32 v32, v32, v32"); o("v_lshlrev_b32 v32, 16, v32")
    o(f"s_lshl_b32 s12, s{sCol}, 2"); o(f"s_add_u32 s12, s12, {WS_MOD}"); o("v_add_u32 v5, s12, v5")
    o(f"global_store_dword v5, v32, {s(sWS,2)} sc1")
    o("s_mov_b64 exec, -1")
    A.label(f"L_mod_{tag}_d")

def silu_to_lds(A, pre=None):
    o = A
    if pre: o(f"s_mov_b64 s[8:9], s[{pre}:{pre+1}]")
    else: o("s_load_dwordx2 s[8:9], s[0:1], %d" % KA_C)
    o(f"s_lshl_b32 s12, s{sW}, 6"); o("v_add_u32 v4, s12, v0")
    o("v_lshlrev_b32 v5, 3, v4")
    o("s_waitcnt lgkmcnt(0)")
    o("global_load_dwordx2 v[12:13], v5, s[8:9]")
    o("s_waitcnt vmcnt(0)")
    o("v_lshlrev_b32 v14, 16, v12"); o("v_and_b32 v15, 0xffff0000, v12"); o("v_lshlrev_b32 v16, 16, v13"); o("v_and_b32 v17, 0xffff0000, v13")
    o(f"s_mov_b32 s12, {fbits(-LOG2E)}")
    for r in range(4):
        o(f"v_mul_f32 v{20+r}, s12, v{14+r}"); o(f"v_exp_f32 v{20+r}, v{20+r}"); o(f"v_add_f32 v{20+r}, 1.0, v{20+r}")
        o(f"v_rcp_f32 v{20+r}, v{20+r}"); o(f"v_mul_f32 v{20+r}, v{14+r}, v{20+r}")
    o("v_cvt_pk_bf16_f32 v24, v20, v21"); o("v_cvt_pk_bf16_f32 v25, v22, v23")
    o("v_lshlrev_b32 v20, 16, v24"); o("v_and_b32 v21, 0xffff0000, v24"); o("v_lshlrev_b32 v22, 16, v25"); o("v_and_b32 v23, 0xffff0000, v25")
    o("v_lshlrev_b32 v4, 4, v4")
    o("ds_write_b128 v4, v[20:23]")
    o("s_waitcnt lgkmcnt(0)"); o("s_barrier")

def ln1_task(A):
    o = A
    o("s_load_dwordx2 s[8:9], s[0:1], %d" % KA_X)
    o("v_lshlrev_b32 v2, 4, v0"); o("v_lshlrev_b32 v3, 5, v0")
    o(f"s_add_u32 s12, s{sWS}, {WS_MOD}"); o(f"s_addc_u32 s13, s{sWS+1}, 0")
    SA, CA = 64, 80
    for h in range(2):
        for q in range(2): o(f"global_load_dwordx4 {v(SA+8*h+4*q,4)}, v3, s[12:13] offset:{h*2048+q*16}")
    o("s_add_u32 s12, s12, 4096"); o("s_addc_u32 s13, s13, 0")
    for h in range(2):
        for q in range(2): o(f"global_load_dwordx4 {v(CA+8*h+4*q,4)}, v3, s[12:13] offset:{h*2048+q*16}")
    o(f"s_lshl_b32 s14, s{sB}, 4"); o(f"s_lshl_b32 s15, s{sW}, 2"); o("s_add_u32 s14, s14, s15")
    o("s_waitcnt lgkmcnt(0)")
    o("s_lshl_b32 s15, s14, 11"); o("s_add_u32 s10, s8, s15"); o("s_addc_u32 s11, s9, 0")
    RAW = 96
    for r in range(4):
        off = r * 2048
        if off >= 4096:
            if r == 2: o("s_add_u32 s10, s10, 4096"); o("s_addc_u32 s11, s11, 0")
            off -= 4096
        o(f"global_load_dwordx4 {v(RAW+8*r,4)}, v2, s[10:11] offset:{off}")
        o(f"global_load_dwordx4 {v(RAW+8*r+4,4)}, v2, s[10:11] offset:{off+1024}")
    o("s_waitcnt vmcnt(8)")
    for e in range(16): o(f"v_add_f32 v{CA+e}, 1.0, v{CA+e}")
    X = [32, 48]
    for pr in range(2):
        o(f"s_waitcnt vmcnt({4 if pr == 0 else 0})") if pr == 0 else None
        if pr == 1: o("s_waitcnt vmcnt(4)")
        for r in range(2):
            unpack8(o, X[r], RAW + 8 * (2 * pr + r)); unpack8(o, X[r] + 8, RAW + 8 * (2 * pr + r) + 4)
        ln_rows(o, X, 2, [4, 5], 1e-5)
        for r in range(2):
            R0 = 8 + 8 * r
            for e in range(16): o(f"v_fma_f32 v{X[r]+e}, v{X[r]+e}, v{CA+e}, v{SA+e}")
            for h in range(2):
                for d in range(4): o(f"v_cvt_pk_bf16_f32 v{R0+4*h+d}, v{X[r]+8*h+2*d}, v{X[r]+8*h+2*d+1}")
            o(f"s_add_u32 s16, s14, {2*pr+r}"); o("s_lshr_b32 s17, s16, 4"); o("s_and_b32 s16, s16, 15")
            o("s_lshr_b32 s18, s16, 2"); o("s_lshr_b32 s19, s18, 1"); o("s_and_b32 s18, s18, 1"); o("s_xor_b32 s18, s18, s19"); o("s_lshl_b32 s18, s18, 1"); o("s_or_b32 s18, s18, s19")
            o("v_and_b32 v4, 3, v0"); o("v_xor_b32 v4, s18, v4"); o("v_lshlrev_b32 v4, 4, v4")
            o("v_lshrrev_b32 v5, 2, v0"); o("v_lshl_add_u32 v4, v5, 17, v4")
            o("s_lshl_b32 s17, s17, 10"); o("s_lshl_b32 s16, s16, 6"); o("s_add_u32 s17, s17, s16"); o(f"s_add_u32 s17, s17, {WS_H}")
            o("v_add_u32 v4, s17, v4")
            o(f"global_store_dwordx4 v4, {v(R0,4)}, {s(sWS,2)} sc1")
            o(f"v_add_u32 v4, {16*131072}, v4")
            o(f"global_store_dwordx4 v4, {v(R0+4,4)}, {s(sWS,2)} sc1")
        if pr == 0: o("s_nop 1")

def op_task(A):
    o = A
    S = 4; SBW = 6144
    sX, sY = 8, 12
    o("s_load_dwordx2 s[40:41], s[0:1], %d" % KA_WO); o("s_load_dwordx2 s[46:47], s[0:1], %d" % KA_X)
    o("s_waitcnt lgkmcnt(0)")
    srd(o, sX, 40, 0, 8 * MiB); srd(o, sY, sWS, WS_O, 16 * MiB)
    sDt, sTg = 48, 49
    o(f"s_lshl_b32 s{sDt}, s{sXb}, 1"); o(f"s_and_b32 s20, s{sI}, 1"); o(f"s_add_u32 s{sDt}, s{sDt}, s20")
    o(f"s_lshr_b32 s{sTg}, s{sI}, 1"); o(f"s_lshl_b32 s20, s{sCh}, 3"); o(f"s_add_u32 s{sTg}, s{sTg}, s20")
    sOX, sOY, sLb, sRd, sDm, sK = 20, 21, 22, 23, 24, 25
    o(f"s_lshl_b32 s{sOX}, s{sDt}, 7"); o(f"s_lshl_b32 s26, s{sW}, 16"); o(f"s_add_u32 s{sOX}, s{sOX}, s26")
    o(f"s_lshl_b32 s{sOY}, s{sTg}, 11"); o(f"s_lshl_b32 s26, s{sW}, 17"); o(f"s_add_u32 s{sOY}, s{sOY}, s26")
    o(f"s_mul_i32 s{sLb}, s{sW}, {S*SBW}")
    vi, vg, t0, t1, t2, t3 = 1, 2, 3, 4, 5, 6
    vXr, vYr, vXd, vYd, vC = 8, 12, 13, 17, 20
    o(f"v_and_b32 v{vi}, 15, v0"); o(f"v_lshrrev_b32 v{vg}, 4, v0")
    o(f"v_lshrrev_b32 v{t0}, 2, v{vi}"); o(f"v_and_b32 v{t1}, 1, v{vg}"); o(f"v_lshrrev_b32 v{t2}, 1, v{vg}")
    o(f"v_lshlrev_b32 v{t3}, 4, v{t2}"); o(f"v_lshl_add_u32 v{t3}, v{t0}, 1, v{t3}"); o(f"v_add_u32 v{t3}, v{t3}, v{t1}")
    o(f"v_lshlrev_b32 v{t3}, 7, v{t3}"); o(f"v_and_b32 v{t1}, 3, v{vi}"); o(f"v_lshl_add_u32 v{t3}, v{t1}, 3, v{t3}")
    o(f"v_add_u32 v{t3}, s{sLb}, v{t3}")
    for j in range(4):
        o(f"v_xor_b32 v{t1}, {j}, v{t0}"); o(f"v_lshl_add_u32 v{vXr+j}, v{t1}, 5, v{t3}")
    gfun(o, t2, vi, t1); o(f"v_xor_b32 v{t2}, v{t2}, v{vg}"); o(f"v_lshlrev_b32 v{t2}, 4, v{t2}"); o(f"v_lshl_add_u32 v{t2}, v{vi}, 6, v{t2}")
    o(f"s_add_u32 s26, s{sLb}, 4096"); o(f"v_add_u32 v{vYr}, s26, v{t2}")
    o(f"v_lshrrev_b32 v{t0}, 3, v0"); o(f"v_and_b32 v{t1}, 7, v0")
    o(f"v_lshrrev_b32 v{t3}, 1, v{t0}"); o(f"v_and_b32 v{t2}, 1, v{t0}"); o(f"v_lshl_add_u32 v{t2}, v{t2}, 3, v{t3}")
    o(f"v_lshrrev_b32 v{vi}, 1, v{t1}"); o(f"v_xor_b32 v{vi}, v{vi}, v{t3}"); o(f"v_lshlrev_b32 v{vi}, 5, v{vi}")
    o(f"v_and_b32 v{t1}, 1, v{t1}"); o(f"v_lshl_or_b32 v{vi}, v{t1}, 4, v{vi}")
    o(f"v_lshl_add_u32 v{vXd}, v{t2}, 11, v{vi}")
    for t in range(1, 4): o(f"v_add_u32 v{vXd+t}, {(4*(t&1) + 16*(t>>1))*2048}, v{vXd}")
    o(f"v_lshlrev_b32 v{vYd}, 4, v0"); o(f"v_add_u32 v{vYd+1}, 1024, v{vYd}")
    F = 28; FS = 24
    AC = 80
    def dma():
        L = []
        for t in range(4): L.append([f"s_add_u32 m0, s26, {t*1024}", f"buffer_load_dwordx4 v{vXd+t}, {s(sX,4)}, s{sOX} offen lds"])
        for t in range(2): L.append([f"s_add_u32 m0, s26, {4096+t*1024}", f"buffer_load_dwordx4 v{vYd+t}, {s(sY,4)}, s{sOY} offen lds"])
        return L
    def adv(r): return [f"s_add_u32 s{r}, s{r}, {SBW}", f"s_cmp_eq_u32 s{r}, {S*SBW}", f"s_cselect_b32 s{r}, 0, s{r}"]
    def dma_all():
        o(f"s_add_u32 s26, s{sLb}, s{sDm}")
        for g in dma():
            o(g[0]); o("s_nop 0"); o(g[1])
        o(f"s_add_u32 s{sOX}, s{sOX}, {4*32*2048}"); o(f"s_add_u32 s{sOY}, s{sOY}, {4*131072}")
        for x in adv(sDm): o(x)
    def rd(ph):
        for j in range(5): o(f"v_add_u32 v{vC+j}, s{sRd}, v{(vXr+j) if j < 4 else vYr}")
        for j in range(2): o(f"ds_read_b128 {v(F+ph*FS+16+4*j,4)}, v{vC+4} offset:{j*1024}")
        for j in range(4):
            o(f"ds_read_b64_tr_b16 {v(F+ph*FS+4*j,2)}, v{vC+j}"); o(f"ds_read_b64_tr_b16 {v(F+ph*FS+4*j+2,2)}, v{vC+j} offset:1024")
        for x in adv(sRd): o(x)
    o(f"s_mov_b32 s{sDm}, 0"); o(f"s_mov_b32 s{sRd}, 0")
    for st in range(S): dma_all()
    o(f"s_waitcnt vmcnt({6*(S-1)})")
    rd(0)
    def iteration(ph, first):
        o(f"s_waitcnt vmcnt({6*(S-2)}) lgkmcnt(0)")
        dma_all()
        rd(ph ^ 1)
        for jy in range(2):
            for jx in range(4):
                d = AC + (jx * 2 + jy) * 4
                c = "0" if first else v(d, 4)
                o(f"v_mfma_f32_16x16x32_bf16 {v(d,4)}, {v(F+ph*FS+4*jx,4)}, {v(F+ph*FS+16+4*jy,4)}, {c}")
    iteration(0, True); iteration(1, False)
    o(f"s_mov_b32 s{sK}, 15")
    A.label("L_op_loop")
    iteration(0, False); iteration(1, False)
    o(f"s_sub_u32 s{sK}, s{sK}, 1"); o(f"s_cmp_lg_u32 s{sK}, 0"); o("s_cbranch_scc1 L_op_loop")
    o("s_waitcnt vmcnt(0) lgkmcnt(0)")
    o("s_barrier")
    o("v_lshlrev_b32 v1, 4, v0"); o(f"s_lshl_b32 s26, s{sW}, 13"); o("v_add_u32 v2, s26, v1")
    for t in range(8): o(f"ds_write_b128 v2, {v(AC+4*t,4)} offset:{t*1024}")
    o("v_and_b32 v3, 15, v0"); o("v_lshrrev_b32 v4, 4, v0"); o("v_and_b32 v5, 1, v4"); o("v_lshrrev_b32 v4, 1, v4")
    o("v_lshlrev_b32 v5, 4, v5"); o("v_lshl_add_u32 v5, v4, 3, v5")
    o(f"s_lshl_b32 s26, s{sDt}, 6"); o(f"s_and_b32 s27, s{sW}, 1"); o("s_lshl_b32 s27, s27, 5"); o("s_add_u32 s26, s26, s27")
    o("v_add_u32 v5, s26, v5")
    o(f"s_lshl_b32 s26, s{sTg}, 5"); o(f"s_lshr_b32 s27, s{sW}, 1"); o("s_lshl_b32 s27, s27, 4"); o("s_add_u32 s26, s26, s27")
    o("v_add_u32 v3, s26, v3")
    o("v_lshlrev_b32 v6, 11, v3"); o("v_lshl_add_u32 v6, v5, 1, v6")
    o("v_lshlrev_b32 v7, 2, v5")
    o(f"s_add_u32 s44, s{sWS}, {WS_MOD + 2*4096}"); o(f"s_addc_u32 s45, s{sWS+1}, 0")
    GA, XR = 28, 36
    o(f"global_load_dwordx4 {v(GA,4)}, v7, s[44:45]"); o(f"global_load_dwordx4 {v(GA+4,4)}, v7, s[44:45] offset:16")
    o(f"global_load_dwordx4 {v(XR,4)}, v6, s[46:47]")
    o("s_waitcnt lgkmcnt(0)"); o("s_barrier")
    o(f"s_and_b32 s26, s{sW}, 1"); o("s_lshl_b32 s26, s26, 12"); o(f"s_lshr_b32 s27, s{sW}, 1"); o("s_lshl_b32 s27, s27, 10"); o("s_add_u32 s26, s26, s27")
    o("v_add_u32 v2, s26, v1")
    R = 48
    for sw in range(4):
        o(f"ds_read_b128 {v(R+8*sw,4)}, v2 offset:{sw*8192}"); o(f"ds_read_b128 {v(R+8*sw+4,4)}, v2 offset:{sw*8192+2048}")
    o("s_waitcnt lgkmcnt(0)")
    for e in range(8):
        o(f"v_add_f32 v{R+e}, v{R+e}, v{R+8+e}"); o(f"v_add_f32 v{R+16+e}, v{R+16+e}, v{R+24+e}")
    for e in range(8): o(f"v_add_f32 v{R+e}, v{R+e}, v{R+16+e}")
    for r in range(4): o(f"v_permlane16_swap_b32 v{R+r}, v{R+4+r}")
    o("s_waitcnt vmcnt(0)")
    U = 40 + 40
    unpack8(o, U, XR)
    for e in range(8): o(f"v_fma_f32 v{R+e}, v{R+e}, v{GA+e}, v{U+e}")
    for d in range(4): o(f"v_cvt_pk_bf16_f32 v{XR+d}, v{R+2*d}, v{R+2*d+1}")
    o(f"s_add_u32 s44, s{sWS}, {WS_X1}"); o(f"s_addc_u32 s45, s{sWS+1}, 0")
    o(f"global_store_dwordx4 v6, {v(XR,4)}, s[44:45] sc1")

def ln2_task(A):
    o = A
    o(f"s_lshl_b32 s14, s{sCh}, 3"); o(f"s_add_u32 s14, s14, s{sXb}")
    o("v_lshlrev_b32 v2, 4, v0")
    o(f"s_lshl_b32 s15, s14, 16"); o(f"s_lshl_b32 s16, s{sW}, 14"); o("s_add_u32 s15, s15, s16"); o(f"s_add_u32 s15, s15, {WS_X1}")
    o(f"s_add_u32 s10, s{sWS}, s15"); o(f"s_addc_u32 s11, s{sWS+1}, 0")
    RAW = 96
    for r in range(8):
        if r and r % 2 == 0: o("s_add_u32 s10, s10, 4096"); o("s_addc_u32 s11, s11, 0")
        off = (r % 2) * 2048
        o(f"global_load_dwordx4 {v(RAW+8*r,4)}, v2, s[10:11] offset:{off}"); o(f"global_load_dwordx4 {v(RAW+8*r+4,4)}, v2, s[10:11] offset:{off+1024}")
    o("v_lshrrev_b32 v3, 3, v0"); o("v_and_b32 v4, 7, v0")
    o("v_lshlrev_b32 v5, 11, v3"); o("v_lshl_add_u32 v5, v4, 4, v5"); o(f"s_lshl_b32 s16, s{sI}, 7"); o("v_add_u32 v5, s16, v5")
    o(f"s_add_u32 s10, s{sWS}, s15"); o(f"s_addc_u32 s11, s{sWS+1}, 0")
    SL = 24
    o(f"global_load_dwordx4 {v(SL,4)}, v5, s[10:11]")
    o("v_lshlrev_b32 v6, 5, v4"); o(f"s_lshl_b32 s16, s{sI}, 8"); o("v_add_u32 v6, s16, v6")
    o(f"s_add_u32 s12, s{sWS}, {WS_MOD + 3*4096}"); o(f"s_addc_u32 s13, s{sWS+1}, 0")
    SB_, CB_ = 64, 72
    o(f"global_load_dwordx4 {v(SB_,4)}, v6, s[12:13]"); o(f"global_load_dwordx4 {v(SB_+4,4)}, v6, s[12:13] offset:16")
    o("s_add_u32 s12, s12, 4096"); o("s_addc_u32 s13, s13, 0")
    o(f"global_load_dwordx4 {v(CB_,4)}, v6, s[12:13]"); o(f"global_load_dwordx4 {v(CB_+4,4)}, v6, s[12:13] offset:16")
    vMean, vRs, X, sm, t = 80, 81, 32, 7, 8
    for r in range(8):
        o(f"s_waitcnt vmcnt({5 + 2*(7-r)})")
        unpack8(o, X, RAW + 8 * r); unpack8(o, X + 8, RAW + 8 * r + 4)
        o(f"v_add_f32 v{sm}, v{X}, v{X+1}")
        for e in range(2, 16): o(f"v_add_f32 v{sm}, v{sm}, v{X+e}")
        wave_sum(o, sm, t)
        o(f"v_mul_f32 v{sm}, {fbits(1.0/1024)}, v{sm}")
        for e in range(16): o(f"v_sub_f32 v{X+e}, v{X+e}, v{sm}")
        o(f"v_mul_f32 v9, v{X}, v{X}")
        for e in range(1, 16): o(f"v_fmac_f32 v9, v{X+e}, v{X+e}")
        wave_sum(o, 9, t)
        o(f"v_mov_b32 v{t}, {fbits(1e-5)}"); o(f"v_fmac_f32 v{t}, {fbits(1.0/1024)}, v9"); o(f"v_rsq_f32 v{t}, v{t}")
        o(f"v_cmp_eq_u32 vcc, {r}, v3")
        o(f"v_cndmask_b32 v{vMean}, v{vMean}, v{sm}, vcc"); o(f"v_cndmask_b32 v{vRs}, v{vRs}, v{t}, vcc")
    o("s_waitcnt vmcnt(0)")
    unpack8(o, X, SL)
    for e in range(8):
        o(f"v_sub_f32 v{X+e}, v{X+e}, v{vMean}"); o(f"v_mul_f32 v{X+e}, v{X+e}, v{vRs}")
        o(f"v_add_f32 v{CB_+e}, 1.0, v{CB_+e}"); o(f"v_fma_f32 v{X+e}, v{X+e}, v{CB_+e}, v{SB_+e}")
    for d in range(4): o(f"v_cvt_pk_bf16_f32 v{SL+d}, v{X+2*d}, v{X+2*d+1}")
    RS = 128 + 32
    o(f"s_lshl_b32 s16, s{sW}, 3"); o("v_add_u32 v5, s16, v3"); o(f"v_mul_u32_u24 v5, {RS}, v5"); o("v_lshl_add_u32 v5, v4, 4, v5")
    o(f"ds_write_b128 v5, {v(SL,4)}")
    o("s_waitcnt lgkmcnt(0)"); o("s_barrier")
    o("v_and_b32 v5, 15, v0"); o("v_lshrrev_b32 v6, 4, v0")
    o("v_lshrrev_b32 v7, 2, v5"); o("v_lshl_add_u32 v7, v6, 3, v7"); o(f"v_mul_u32_u24 v7, {RS}, v7")
    o("v_and_b32 v8, 3, v5"); o("v_lshl_add_u32 v7, v8, 3, v7"); o(f"s_lshl_b32 s16, s{sW}, 5"); o("v_add_u32 v7, s16, v7")
    o(f"ds_read_b64_tr_b16 {v(SL,2)}, v7"); o(f"ds_read_b64_tr_b16 {v(SL+2,2)}, v7 offset:{4*RS}")
    gfun(o, 8, 5, 9); o("v_xor_b32 v8, v8, v6"); o("v_lshl_add_u32 v8, v5, 2, v8"); o("v_lshlrev_b32 v8, 4, v8")
    o("s_lshl_b32 s16, s14, 16"); o(f"s_lshl_b32 s17, s{sI}, 12"); o("s_add_u32 s16, s16, s17"); o(f"s_lshl_b32 s17, s{sW}, 10"); o("s_add_u32 s16, s16, s17"); o(f"s_add_u32 s16, s16, {WS_H2T}")
    o("v_add_u32 v8, s16, v8")
    o("s_waitcnt lgkmcnt(0)")
    o(f"global_store_dwordx4 v8, {v(SL,4)}, {s(sWS,2)} sc1")

def g1_partial(A, opt):
    o = A
    sX, sY = 8, 12
    o("s_load_dwordx2 s[40:41], s[0:1], %d" % KA_W1); o("s_waitcnt lgkmcnt(0)")
    srd(o, sX, 40, 0, 2048 * 7168); srd(o, sY, sWS, WS_H2T, 4 * MiB)
    o(f"s_add_u32 s26, s{sCh}, 1"); o(f"s_lshl_b32 s{sY+2}, s26, 19")
    o(f"s_mul_i32 s{sX+2}, s26, {256*7168}")
    G = Gemm(A, 8, 4, False, "g", accbase=128)
    sOffX, sOffY, sM0, sK = 20, 21, [22, 23], 24
    o(f"s_mul_i32 s{sOffX}, s{sCh}, {256*7168}"); o(f"s_lshl_b32 s26, s{sI}, 9"); o(f"s_add_u32 s{sOffX}, s{sOffX}, s26")
    o(f"s_lshl_b32 s{sOffY}, s{sCh}, 19"); o(f"s_lshl_b32 s26, s{sXb}, 13"); o(f"s_add_u32 s{sOffY}, s{sOffY}, s26")
    o(f"s_mul_i32 s{sM0[0]}, s{sW}, {G.NIX*1024}"); o(f"s_mul_i32 s{sM0[1]}, s{sW}, {G.NIY*1024}")
    G.setup(sW, 0, 7168, 0, [1, 2, 3, 4, 5, 6], [25, 26, 27, 28])
    o2 = dict(opt); o2["accum"] = 1
    gen_loop(G, sX, sY, sOffX, sOffY, sM0, sK, 32 * 7168, 64 * 1024, 8, "L_g1", opt=o2, sSt=[32, 33, 34])
    o("s_barrier")
    return G

def g1_epilogue(A, G, sF=sI, sD=sXb):
    o = A
    E = G.vF
    o("s_load_dwordx2 s[42:43], s[0:1], %d" % KA_B1)
    o("v_and_b32 v1, 15, v0"); o("v_lshrrev_b32 v2, 4, v0"); o("v_and_b32 v3, 1, v2"); o("v_lshrrev_b32 v2, 1, v2")
    o("v_lshlrev_b32 v4, 4, v3"); o("v_lshl_add_u32 v4, v2, 3, v4")
    o("v_lshl_or_b32 v2, v3, 1, v2")
    gfun(o, 3, 1, 5)
    o("v_xor_b32 v2, v2, v3"); o("v_lshl_add_u32 v2, v1, 2, v2"); o("v_lshlrev_b32 v2, 4, v2")
    o(f"s_lshl_b32 s25, s{sF}, 8"); o(f"s_and_b32 s26, s{sW}, 1"); o("s_lshl_b32 s26, s26, 7"); o("s_add_u32 s25, s25, s26")
    o("v_add_u32 v4, s25, v4"); o("v_lshlrev_b32 v4, 1, v4")
    BR = E + 64
    o("s_waitcnt lgkmcnt(0)")
    for jp in range(4): o(f"global_load_dwordx4 {v(BR+4*jp,4)}, v4, s[42:43] offset:{jp*64}")
    o("s_lshr_b32 s26, s25, 5"); o("s_lshl_b32 s26, s26, 16")
    o(f"s_lshl_b32 s27, s{sD}, 3"); o(f"s_lshr_b32 s28, s{sW}, 1"); o("s_lshl_b32 s28, s28, 2"); o("s_add_u32 s27, s27, s28"); o("s_lshl_b32 s27, s27, 10")
    o("s_add_u32 s26, s26, s27"); o(f"s_add_u32 s26, s26, {WS_U}")
    o(f"s_add_u32 s44, s{sWS}, s26"); o(f"s_addc_u32 s45, s{sWS+1}, 0")
    o("s_waitcnt vmcnt(0)")
    BF = E + 80
    c1 = -2.0 * math.sqrt(2.0 / math.pi) * LOG2E
    o(f"s_mov_b32 s46, {fbits(0.044715)}"); o(f"s_mov_b32 s47, {fbits(c1)}")
    k = 0
    for jp in range(4):
        unpack8(o, BF, BR + 4 * jp)
        for jy in range(4):
            T = E + 16 * (k % 3) + 4; k += 1
            ra, rb = G.accr(2 * jp, jy), G.accr(2 * jp + 1, jy)
            for r in range(4): o(f"v_accvgpr_read_b32 v{T+r}, a{ra+r}")
            for r in range(4): o(f"v_accvgpr_read_b32 v{T+4+r}, a{rb+r}")
            for r in range(4): o(f"v_permlane16_swap_b32 v{T+r}, v{T+4+r}")
            U = E + 48
            for e in range(8): o(f"v_add_f32 v{T+e}, v{T+e}, v{BF+e}")
            for e in range(8): o(f"v_mul_f32 v{U+e}, v{T+e}, v{T+e}")
            for e in range(8): o(f"v_fma_f32 v{U+e}, v{U+e}, s46, 1.0")
            for e in range(8): o(f"v_mul_f32 v{U+e}, v{U+e}, v{T+e}")
            for e in range(8): o(f"v_mul_f32 v{U+e}, s47, v{U+e}")
            for e in range(8): o(f"v_exp_f32 v{U+e}, v{U+e}")
            for e in range(8): o(f"v_add_f32 v{U+e}, 1.0, v{U+e}")
            for e in range(8): o(f"v_rcp_f32 v{U+e}, v{U+e}")
            for e in range(8): o(f"v_mul_f32 v{T+e}, v{T+e}, v{U+e}")
            P = T - 4
            for d in range(4): o(f"v_cvt_pk_bf16_f32 v{P+d}, v{T+2*d}, v{T+2*d+1}")
            o(f"v_add_u32 v5, {jp*65536 + jy*1024}, v2")
            o(f"global_store_dwordx4 v5, {v(P,4)}, s[44:45]")

def prefetch_task(A, ka, nbytes, tag):
    o = A
    per = nbytes // 128
    assert per % 4096 == 0 or True
    n4k = (per + 4095) // 4096
    o(f"s_load_dwordx2 s[40:41], s[0:1], {ka}"); o("s_waitcnt lgkmcnt(0)")
    srd(o, 8, 40, 0, nbytes)
    o(f"s_mul_i32 s20, s{sB}, {n4k*4096}"); o(f"s_lshl_b32 s21, s{sW}, 10"); o("s_add_u32 s20, s20, s21")
    o("v_lshlrev_b32 v2, 4, v0")
    o(f"s_mov_b32 s22, {n4k}")
    A.label(f"L_pf_{tag}")
    o("buffer_load_dwordx4 v[8:11], v2, s[8:11], s20 offen")
    o("s_add_u32 s20, s20, 4096"); o("s_sub_u32 s22, s22, 1"); o("s_cmp_lg_u32 s22, 0")
    o(f"s_cbranch_scc0 L_pf_{tag}_d")
    o("buffer_load_dwordx4 v[12:15], v2, s[8:11], s20 offen")
    o("s_add_u32 s20, s20, 4096"); o("s_sub_u32 s22, s22, 1"); o("s_cmp_lg_u32 s22, 0")
    o("s_waitcnt vmcnt(24)")
    o(f"s_cbranch_scc1 L_pf_{tag}")
    A.label(f"L_pf_{tag}_d")
    o("s_waitcnt vmcnt(0)")

def op_pass(A, ntok_tiles_log2, opt=None):
    opt = opt or {}
    o = A
    sX, sY = 8, 12
    o("s_load_dwordx2 s[40:41], s[0:1], %d" % KA_WO); o("s_load_dwordx2 s[46:47], s[0:1], %d" % KA_X)
    sDt, sTt = 48, 49
    o(f"s_lshr_b32 s{sDt}, s{sXb}, 1"); o(f"s_lshl_b32 s{sDt}, s{sDt}, 2"); o(f"s_and_b32 s20, s{sI}, 3"); o(f"s_add_u32 s{sDt}, s{sDt}, s20")
    o(f"s_and_b32 s{sTt}, s{sXb}, 1"); o(f"s_lshl_b32 s{sTt}, s{sTt}, 2"); o(f"s_lshr_b32 s20, s{sI}, 2"); o(f"s_add_u32 s{sTt}, s{sTt}, s20")
    o(f"s_cmp_ge_u32 s{sTt}, {1 << ntok_tiles_log2}"); o(f"s_cbranch_scc1 L_opp_skip{ntok_tiles_log2}")
    o(f"s_lshl_b32 s{sTt}, s{sTt}, 6"); o(f"s_add_u32 s{sTt}, s{sTt}, s{sTok}")
    o("s_waitcnt lgkmcnt(0)")
    srd(o, sX, 40, 0, 8 * MiB); srd(o, sY, sWS, WS_O, 16 * MiB)
    G = Gemm(A, 2, 2, False, "o")
    sOffX, sOffY, sM0, sK = 20, 21, [22, 23], 24
    o(f"s_lshl_b32 s{sOffX}, s{sDt}, 7"); o(f"s_lshl_b32 s{sOffY}, s{sTt}, 6")
    o(f"s_mul_i32 s{sM0[0]}, s{sW}, {G.NIX*1024}"); o(f"s_mul_i32 s{sM0[1]}, s{sW}, {G.NIY*1024}")
    G.setup(sW, 0, 2048, 0, [1, 2, 3, 4, 5, 6], [25, 26, 27, 28])
    gen_loop2(G, sX, sY, sOffX, sOffY, sM0, sK, 32 * 2048, 128 * 1024, 128, f"L_opp{ntok_tiles_log2}", K=opt.get("opK", 4), R=opt.get("opR", 16), sSt=[32, 33, 34])
    E = G.vF
    o("v_and_b32 v1, 15, v0"); o("v_lshrrev_b32 v2, 4, v0"); o("v_and_b32 v3, 1, v2"); o("v_lshrrev_b32 v2, 1, v2")
    o("v_lshlrev_b32 v3, 4, v3"); o("v_lshl_add_u32 v3, v2, 3, v3")
    o(f"s_lshl_b32 s25, s{sDt}, 6"); o(f"s_and_b32 s26, s{sW}, 1"); o("s_lshl_b32 s26, s26, 5"); o("s_add_u32 s25, s25, s26")
    o("v_add_u32 v3, s25, v3")
    o(f"s_lshr_b32 s26, s{sW}, 1"); o("s_lshl_b32 s26, s26, 5"); o(f"s_add_u32 s25, s{sTt}, s26")
    o("v_add_u32 v1, s25, v1")
    o("v_lshlrev_b32 v4, 11, v1"); o("v_lshl_add_u32 v4, v3, 1, v4")
    o("v_lshlrev_b32 v5, 2, v3")
    o(f"s_add_u32 s44, s{sWS}, {WS_MOD + 2*4096}"); o(f"s_addc_u32 s45, s{sWS+1}, 0")
    GA = E + 64; XR = E + 72
    o(f"global_load_dwordx4 {v(GA,4)}, v5, s[44:45]"); o(f"global_load_dwordx4 {v(GA+4,4)}, v5, s[44:45] offset:16")
    for jy in range(2):
        o(f"v_add_u32 v6, {jy*16*2048}, v4"); o(f"global_load_dwordx4 {v(XR+4*jy,4)}, v6, s[46:47]")
    o(f"s_add_u32 s44, s{sWS}, {WS_X1}"); o(f"s_addc_u32 s45, s{sWS+1}, 0")
    for jy in range(2):
        T = E + 16 * jy + 4
        for r in range(4): o(f"v_accvgpr_read_b32 v{T+r}, a{G.accr(0, jy)+r}")
        for r in range(4): o(f"v_accvgpr_read_b32 v{T+4+r}, a{G.accr(1, jy)+r}")
        for r in range(4): o(f"v_permlane16_swap_b32 v{T+r}, v{T+4+r}")
        if jy == 0: o("s_waitcnt vmcnt(0)")
        U = E + 48
        unpack8(o, U, XR + 4 * jy)
        for e in range(8): o(f"v_fma_f32 v{T+e}, v{T+e}, v{GA+e}, v{U+e}")
        P = T - 4
        for d in range(4): o(f"v_cvt_pk_bf16_f32 v{P+d}, v{T+2*d}, v{T+2*d+1}")
        o(f"v_add_u32 v6, {jy*16*2048}, v4")
        o(f"global_store_dwordx4 v6, {v(P,4)}, s[44:45] sc1")
    A.label(f"L_opp_skip{ntok_tiles_log2}")

def ln2_pass(A, nks_log2):
    o = A
    if nks_log2 == 3:
        o(f"s_lshr_b32 s{sCh}, s{sTok}, 8"); ln2_task(A); return
    for h in range(2):
        o(f"s_mov_b32 s76, s{sXb}"); o(f"s_mov_b32 s77, s{sI}"); o(f"s_mov_b32 s78, s{sCh}")
        o(f"s_lshl_b32 s79, s{sXb}, 1"); o(f"s_lshr_b32 s80, s{sI}, 3"); o("s_add_u32 s79, s79, s80")
        o(f"s_and_b32 s80, s{sI}, 7"); o("s_lshl_b32 s80, s80, 1"); o(f"s_add_u32 s{sI}, s80, {h}")
        o(f"s_and_b32 s{sXb}, s79, 7"); o("s_lshr_b32 s79, s79, 3"); o(f"s_lshr_b32 s{sCh}, s{sTok}, 8"); o(f"s_add_u32 s{sCh}, s{sCh}, s79")
        ln2_task(A)
        o(f"s_mov_b32 s{sXb}, s76"); o(f"s_mov_b32 s{sI}, s77"); o(f"s_mov_b32 s{sCh}, s78")
        if h == 0: o("s_barrier")

def g1_pass(A, opt, nit, lab):
    o = A
    sX, sY = 8, 12
    o("s_load_dwordx2 s[40:41], s[0:1], %d" % KA_W1); o("s_waitcnt lgkmcnt(0)")
    srd(o, sX, 40, 0, 2048 * 7168); srd(o, sY, sWS, WS_H2T, 4 * MiB)
    o(f"s_add_u32 s26, s{sTok}, {32*nit}"); o(f"s_lshl_b32 s{sY+2}, s26, 11")
    o(f"s_mul_i32 s{sX+2}, s26, 7168")
    G = Gemm(A, 8, 4, False, "g", accbase=128)
    sOffX, sOffY, sM0, sK = 20, 21, [22, 23], 24
    o(f"s_mul_i32 s{sOffX}, s{sTok}, 7168"); o(f"s_lshl_b32 s26, s{sFt}, 9"); o(f"s_add_u32 s{sOffX}, s{sOffX}, s26")
    o(f"s_lshl_b32 s{sOffY}, s{sTok}, 11"); o(f"s_lshl_b32 s26, s{sDtG}, 13"); o(f"s_add_u32 s{sOffY}, s{sOffY}, s26")
    o(f"s_mul_i32 s{sM0[0]}, s{sW}, {G.NIX*1024}"); o(f"s_mul_i32 s{sM0[1]}, s{sW}, {G.NIY*1024}")
    G.setup(sW, 0, 7168, 0, [1, 2, 3, 4, 5, 6], [25, 26, 27, 28])
    o2 = dict(opt); o2["accum"] = 1; o2["S"] = 5
    gen_loop(G, sX, sY, sOffX, sOffY, sM0, sK, 32 * 7168, 64 * 1024, nit, lab, opt=o2, sSt=[32, 33, 34])
    o("s_barrier")
    return G

def fast_check(A, tag):
    o = A
    LB = 131072 - 64
    o(f"s_cmp_lg_u32 s{sW}, 0"); o(f"s_cbranch_scc1 L_fc_{tag}_w")
    o("s_mov_b64 exec, 0xff"); o("v_lshlrev_b32 v1, 2, v0"); o("s_mov_b32 s13, 0x200000")
    A.label(f"L_fc_{tag}_p")
    o(f"global_load_dword v4, v1, {s(sDBG,2)} sc1"); o("s_waitcnt vmcnt(0)")
    o("v_mov_b32 v5, v4")
    o("v_add_u32_dpp v5, v5, v5 quad_perm:[1,0,3,2] row_mask:0xf bank_mask:0xf")
    o("v_add_u32_dpp v5, v5, v5 quad_perm:[2,3,0,1] row_mask:0xf bank_mask:0xf")
    o("v_add_u32_dpp v5, v5, v5 row_half_mirror row_mask:0xf bank_mask:0xf")
    o("v_readfirstlane_b32 s14, v5")
    o("s_cmp_ge_u32 s14, 256"); o(f"s_cbranch_scc1 L_fc_{tag}_a")
    o("s_sleep 8"); o("s_sub_u32 s13, s13, 1"); o(f"s_cbranch_scc0 L_fc_{tag}_p")
    A.label(f"L_fc_{tag}_a")
    o("v_cmp_ne_u32 vcc, 32, v4"); o("s_nop 1"); o("s_cmp_eq_u64 vcc, 0"); o("s_cselect_b32 s15, 1, 0")
    o("s_mov_b64 exec, 1"); o("v_mov_b32 v6, s15"); o(f"v_mov_b32 v1, {LB}"); o("ds_write_b32 v1, v6"); o("s_waitcnt lgkmcnt(0)"); o("s_mov_b64 exec, -1")
    A.label(f"L_fc_{tag}_w")
    o("s_barrier")
    o(f"v_mov_b32 v1, {LB}"); o("ds_read_b32 v6, v1"); o("s_waitcnt lgkmcnt(0)"); o("v_readfirstlane_b32 s15, v6")
    o("s_barrier")

WS_MODP2 = 128 * 1024
CNT_FILL2 = 43520
def mod_half(A):
    o = A
    o("s_mov_b64 s[8:9], s[76:77]")
    o(f"s_lshr_b32 s12, s{sB}, 6"); o("s_lshl_b32 s12, s12, 9"); o(f"s_lshl_b32 s13, s{sW}, 7"); o("s_add_u32 s12, s12, s13")
    o("v_lshrrev_b32 v5, 2, v0"); o("v_add_u32 v5, s12, v5"); o("v_lshlrev_b32 v6, 2, v5")
    o("s_mov_b32 s13, 12288"); o("v_mul_lo_u32 v7, v5, s13"); o("v_and_b32 v26, 3, v0"); o("v_lshl_add_u32 v7, v26, 4, v7")
    o(f"s_and_b32 s12, s{sB}, 63"); o("s_lshl_b32 s12, s12, 6"); o("v_add_u32 v7, s12, v7")
    W = 32
    for it in range(8):
        o(f"global_load_dwordx4 {v(W+4*it,4)}, v7, s[8:9]"); o(f"v_add_u32 v7, {16*12288}, v7")
    return W

def mod_half_finish(A, W, younger):
    o = A
    Cc, AC = 64, 72
    for it in range(8): o(f"ds_read_b32 v{Cc+it}, v6 offset:{it*64}")
    for e in range(8): o(f"v_mov_b32 v{AC+e}, 0")
    o("s_waitcnt lgkmcnt(0)")
    for it in range(8):
        o(f"s_waitcnt vmcnt({7-it+younger})")
        for d in range(4):
            o(f"v_lshlrev_b32 v27, 16, v{W+4*it+d}"); o(f"v_and_b32 v28, 0xffff0000, v{W+4*it+d}")
            o(f"v_fmac_f32 v{AC+2*d}, v27, v{Cc+it}"); o(f"v_fmac_f32 v{AC+2*d+1}, v28, v{Cc+it}")
    for e in range(8):
        x = AC + e
        o(f"v_add_f32_dpp v{x}, v{x}, v{x} row_ror:4 row_mask:0xf bank_mask:0xf")
        o(f"v_add_f32_dpp v{x}, v{x}, v{x} row_ror:8 row_mask:0xf bank_mask:0xf")
        for sw in ("16", "32"):
            o(f"v_mov_b32 v27, v{x}"); o(f"v_permlane{sw}_swap_b32 v{x}, v27"); o(f"v_add_f32 v{x}, v{x}, v27")
    o(f"s_lshl_b32 s12, s{sW}, 7"); o("v_lshlrev_b32 v5, 5, v26"); o("v_add_u32 v5, s12, v5")
    o("s_mov_b64 exec, 0xf")
    o(f"ds_write_b128 v5, {v(AC,4)} offset:4096"); o(f"ds_write_b128 v5, {v(AC+4,4)} offset:4112")
    o("s_mov_b64 exec, -1")
    o("s_waitcnt lgkmcnt(0)"); o("s_barrier")
    o(f"s_cmp_lg_u32 s{sW}, 0"); o("s_cbranch_scc1 L_mh_d")
    o("v_lshlrev_b32 v5, 2, v0"); o("s_mov_b64 exec, 0xffffffff")
    for w in range(4): o(f"ds_read_b32 v{32+w}, v5 offset:{4096+w*128}")
    o("s_waitcnt lgkmcnt(0)")
    o("v_add_f32 v32, v32, v33"); o("v_add_f32 v34, v34, v35"); o("v_add_f32 v32, v32, v34")
    o(f"s_lshr_b32 s12, s{sB}, 6"); o("s_lshl_b32 s12, s12, 13"); o(f"s_and_b32 s13, s{sB}, 63"); o("s_lshl_b32 s13, s13, 7"); o("s_add_u32 s12, s12, s13"); o(f"s_add_u32 s12, s12, {WS_MODP2}")
    o("v_add_u32 v5, s12, v5")
    o(f"global_store_dword v5, v32, {s(sWS,2)} sc1")
    o("s_mov_b64 exec, -1")
    A.label("L_mh_d")

def ln1_pre(A):
    o = A
    o("s_mov_b64 s[16:17], s[78:79]")
    o("v_lshlrev_b32 v2, 4, v0")
    o(f"s_lshl_b32 s14, s{sB}, 4"); o(f"s_lshl_b32 s15, s{sW}, 2"); o("s_add_u32 s14, s14, s15"); o("s_lshl_b32 s15, s14, 11")
    o("s_add_u32 s16, s16, s15"); o("s_addc_u32 s17, s17, 0")
    for r in range(4):
        off = (r % 2) * 2048
        if r == 2: o("s_add_u32 s16, s16, 4096"); o("s_addc_u32 s17, s17, 0")
        o(f"global_load_dwordx4 {v(96+8*r,4)}, v2, s[16:17] offset:{off}"); o(f"global_load_dwordx4 {v(96+8*r+4,4)}, v2, s[16:17] offset:{off+1024}")

def ln1_stats(A):
    o = A
    X = [128, 144, 160, 176]
    for r in range(4):
        unpack8(o, X[r], 96 + 8 * r); unpack8(o, X[r] + 8, 96 + 8 * r + 4)
    ln_rows(o, X, 4, [4, 5], 1e-5)

def ln1_fin(A):
    o = A
    RAW = 96; X = [128, 144, 160, 176]
    o("v_lshlrev_b32 v3, 5, v0")
    SA, CA = 64, 80
    TT = {SA: 192, CA: 208}
    for dst, base in ((SA, 0), (CA, 4096)):
        for q in range(2):
            o(f"s_add_u32 s12, s{sWS}, {WS_MODP2 + q*8192 + base}"); o(f"s_addc_u32 s13, s{sWS+1}, 0")
            tgt = dst if q == 0 else TT[dst]
            for h in range(2):
                for k in range(2): o(f"global_load_dwordx4 {v(tgt+8*h+4*k,4)}, v3, s[12:13] offset:{h*2048+k*16} sc1")
    o(f"s_lshl_b32 s14, s{sB}, 4"); o(f"s_lshl_b32 s15, s{sW}, 2"); o("s_add_u32 s14, s14, s15")
    o("s_waitcnt vmcnt(0)")
    for dst in (SA, CA):
        for e in range(16): o(f"v_add_f32 v{dst+e}, v{dst+e}, v{TT[dst]+e}")
        for e in range(0, 16, 2):
            o(f"v_cvt_pk_bf16_f32 v6, v{dst+e}, v{dst+e+1}"); o(f"v_lshlrev_b32 v{dst+e}, 16, v6"); o(f"v_and_b32 v{dst+e+1}, 0xffff0000, v6")
    for e in range(16): o(f"v_add_f32 v{CA+e}, 1.0, v{CA+e}")
    for r in range(4):
        R0 = RAW + 8 * r
        for e in range(16): o(f"v_fma_f32 v{X[r]+e}, v{X[r]+e}, v{CA+e}, v{SA+e}")
        for h in range(2):
            for d in range(4): o(f"v_cvt_pk_bf16_f32 v{R0+4*h+d}, v{X[r]+8*h+2*d}, v{X[r]+8*h+2*d+1}")
        o(f"s_add_u32 s16, s14, {r}"); o("s_lshr_b32 s17, s16, 4"); o("s_and_b32 s16, s16, 15")
        o("s_lshr_b32 s18, s16, 2"); o("s_lshr_b32 s19, s18, 1"); o("s_and_b32 s18, s18, 1"); o("s_xor_b32 s18, s18, s19"); o("s_lshl_b32 s18, s18, 1"); o("s_or_b32 s18, s18, s19")
        o("v_and_b32 v4, 3, v0"); o("v_xor_b32 v4, s18, v4"); o("v_lshlrev_b32 v4, 4, v4")
        o("v_lshrrev_b32 v5, 2, v0"); o("v_lshl_add_u32 v4, v5, 17, v4")
        o("s_lshl_b32 s17, s17, 10"); o("s_lshl_b32 s16, s16, 6"); o("s_add_u32 s17, s17, s16"); o(f"s_add_u32 s17, s17, {WS_H}")
        o("v_add_u32 v4, s17, v4")
        o(f"global_store_dwordx4 v4, {v(R0,4)}, {s(sWS,2)} sc1")
        o(f"v_add_u32 v4, {16*131072}, v4")
        o(f"global_store_dwordx4 v4, {v(R0+4,4)}, {s(sWS,2)} sc1")

def gen_bulk(opt):
    A = Asm(); o = A
    bprof = opt.get("bprof")
    def bstamp(k, chunked=True):
        if not bprof: return
        o("s_memrealtime s[72:73]"); o("s_waitcnt lgkmcnt(0)")
        o(f"s_lshl_b32 s74, s{sB}, 10")
        if chunked:
            o(f"s_lshl_b32 s75, s{sCh}, 6"); o("s_add_u32 s74, s74, s75"); o(f"s_add_u32 s74, s74, 64")
        o(f"s_add_u32 s74, s74, {WS_PROF + 4*MiB + 0} + {k*4}")
        o("v_mov_b32 v250, s74"); o("v_mov_b32 v251, s72")
        o("s_mov_b64 exec, 1"); o(f"global_store_dword v250, v251, {s(sWS,2)}"); o("s_mov_b64 exec, -1")
    o(f"s_load_dwordx2 {s(sWS,2)}, s[0:1], {KA_WS}")
    o(f"s_load_dwordx2 s[76:77], s[0:1], {KA_WMOD}"); o(f"s_load_dwordx2 s[78:79], s[0:1], {KA_X}"); o(f"s_load_dwordx2 s[84:85], s[0:1], {KA_C}")
    o("s_waitcnt lgkmcnt(0)")
    o(f"s_add_u32 s{sCNT}, s{sWS}, {WS_CNT}"); o(f"s_addc_u32 s{sCNT+1}, s{sWS+1}, 0")
    o(f"s_cmp_eq_u32 s{sChk}, 0"); o("s_cbranch_scc0 L_cb"); o(f"s_add_u32 s{sCNT}, s{sCNT}, {SLOW_OFF}"); o(f"s_addc_u32 s{sCNT+1}, s{sCNT+1}, 0")
    A.label("L_cb")
    o(f"s_lshl_b32 s{sB}, s{sXb}, 4"); o(f"s_add_u32 s{sB}, s{sB}, s{sI}")
    o(f"s_mov_b32 s{sLim}, 0x400000")
    bstamp(0, False)
    ST2 = opt.get("st2")
    if ST2:
        W_ = mod_half(A)
        ln1_pre(A)
        silu_to_lds(A, pre=84)
        mod_half_finish(A, W_, 0)
        ln1_stats(A)
        o(f"s_cmp_eq_u32 s{sChk}, 0"); o("s_cbranch_scc1 L_nochk")
        fast_check(A, "b")
        o("s_cmp_eq_u32 s15, 0"); o("s_cbranch_scc1 M_slow")
        A.label("L_nochk")
        signal(A, CNT_MODA, "m1")
        bstamp(1, False)
        wait_cnt(A, CNT_MODA, 128, "ma")
        bstamp(2, False)
        ln1_fin(A)
        o(f"s_lshr_b32 s{sCntOff}, s{sB}, 4"); o(f"s_lshl_b32 s{sCntOff}, s{sCntOff}, 7")
        signal(A, CNT_LN1, "l1", off_s=sCntOff)
    else:
        silu_to_lds(A)
        o(f"s_lshl_b32 s{sCt}, s{sB}, 5")
        mod_task(A, sCt, "a")
        o(f"s_cmp_eq_u32 s{sChk}, 0"); o("s_cbranch_scc1 L_nochk")
        fast_check(A, "b")
        o("s_cmp_eq_u32 s15, 0"); o("s_cbranch_scc1 M_slow")
        A.label("L_nochk")
        o(f"s_cmp_lt_u32 s{sB}, 64"); o(f"s_cselect_b32 s{sCntOff}, {CNT_MODA}, s{sCntOff}"); o(f"s_mov_b32 s44, {CNT_MODB}"); o(f"s_cselect_b32 s{sCntOff}, s{sCntOff}, s44")
        signal(A, 0, "m1", off_s=sCntOff)
        bstamp(1, False)
        wait_cnt(A, CNT_MODA, 64, "ma")
        bstamp(2, False)
        ln1_task(A)
        o(f"s_lshr_b32 s{sCntOff}, s{sB}, 4"); o(f"s_lshl_b32 s{sCntOff}, s{sCntOff}, 7")
        signal(A, CNT_LN1, "l1", off_s=sCntOff)
    bstamp(3, False)
    srd_h = lambda: srd(o, 12, sWS, WS_H, 4 * MiB)
    o(f"s_mov_b32 s{sRound}, 0")
    A.label("L_task")
    t0, t1, t2 = 44, 45, 46
    o(f"s_lshl_b32 s{t0}, s{sXb}, 2"); o(f"s_and_b32 s{t1}, s{sI}, 3"); o(f"s_add_u32 s{t0}, s{t0}, s{t1}"); o(f"s_add_u32 s{t0}, s{t0}, 16")
    o(f"s_lshl_b32 s{t1}, s{sXb}, 1"); o(f"s_and_b32 s{t2}, s{sI}, 1"); o(f"s_add_u32 s{t1}, s{t1}, s{t2}")
    o(f"s_lshr_b32 s{t2}, s{sI}, 2")
    o(f"s_cmp_eq_u32 s{sRound}, 0"); o("s_cbranch_scc0 L_r1")
    o(f"s_mov_b32 s{sCt}, s{t0}"); o(f"s_lshl_b32 s{sTok}, s{t2}, 6"); o("s_branch L_dec")
    A.label("L_r1")
    if opt.get("thr"):
        NA = opt["thr"]
        o(f"s_cmp_ge_u32 s{sI}, {NA}"); o("s_cbranch_scc1 L_phase3")
        o(f"s_sub_u32 s{t0}, s{sRound}, 1"); o(f"s_mul_i32 s{t0}, s{t0}, {8*NA}"); o(f"s_mul_i32 s{t1}, s{sXb}, {NA}"); o(f"s_add_u32 s{t0}, s{t0}, s{t1}"); o(f"s_add_u32 s{t0}, s{t0}, s{sI}")
        o(f"s_cmp_ge_u32 s{t0}, 352"); o("s_cbranch_scc1 L_phase3")
        o(f"s_cmp_lt_u32 s{t0}, 224"); o("s_cbranch_scc0 L_thq")
        o(f"s_and_b32 s{sCt}, s{t0}, 31"); o(f"s_add_u32 s{sCt}, s{sCt}, 16"); o(f"s_lshr_b32 s{sTok}, s{t0}, 5"); o(f"s_add_u32 s{sTok}, s{sTok}, 1"); o(f"s_lshl_b32 s{sTok}, s{sTok}, 8"); o("s_branch L_dec")
        A.label("L_thq")
        o(f"s_sub_u32 s{t0}, s{t0}, 224"); o(f"s_and_b32 s{sCt}, s{t0}, 15"); o(f"s_lshr_b32 s{sTok}, s{t0}, 4"); o(f"s_lshl_b32 s{sTok}, s{sTok}, 8")
    else:
        o(f"s_cmp_eq_u32 s{sRound}, 1"); o("s_cbranch_scc0 L_r2")
        o(f"s_mov_b32 s{sCt}, s{t0}"); o(f"s_add_u32 s{sTok}, s{t2}, 1"); o(f"s_lshl_b32 s{sTok}, s{sTok}, 8"); o("s_branch L_dec")
        A.label("L_r2")
        o(f"s_cmp_eq_u32 s{sRound}, 2"); o("s_cbranch_scc0 L_r3")
        o(f"s_cmp_lt_u32 s{sI}, 12"); o("s_cbranch_scc0 L_r2q")
        o(f"s_mov_b32 s{sCt}, s{t0}"); o(f"s_add_u32 s{sTok}, s{t2}, 5"); o(f"s_lshl_b32 s{sTok}, s{sTok}, 8"); o("s_branch L_dec")
        A.label("L_r2q")
        o(f"s_mov_b32 s{sCt}, s{t1}"); o(f"s_sub_u32 s{sTok}, s{sI}, 12"); o(f"s_lshr_b32 s{sTok}, s{sTok}, 1"); o(f"s_lshl_b32 s{sTok}, s{sTok}, 8"); o("s_branch L_dec")
        A.label("L_r3")
        o(f"s_cmp_eq_u32 s{sRound}, 3"); o("s_cbranch_scc0 L_phase3")
        o(f"s_cmp_lt_u32 s{sI}, 12"); o("s_cbranch_scc0 L_phase3")
        o(f"s_mov_b32 s{sCt}, s{t1}"); o(f"s_lshr_b32 s{sTok}, s{sI}, 1"); o(f"s_add_u32 s{sTok}, s{sTok}, 2"); o(f"s_lshl_b32 s{sTok}, s{sTok}, 8")
    A.label("L_dec")
    o(f"s_lshr_b32 s{sCntOff}, s{sTok}, 8"); o(f"s_lshl_b32 s{sCntOff}, s{sCntOff}, 7")
    wait_cnt(A, CNT_LN1, 16, "l1", off_s=sCntOff)
    o(f"s_lshr_b32 s{t0}, s{sTok}, 8")
    o(f"s_lshl_b32 s{t1}, s{t0}, 3"); o(f"s_and_b32 s{t2}, s{sCt}, 15"); o(f"s_lshr_b32 s{t2}, s{t2}, 1"); o(f"s_add_u32 s{t1}, s{t1}, s{t2}"); o(f"s_lshl_b32 s{t1}, s{t1}, 7")
    o(f"s_lshl_b32 s{t0}, s{t0}, 7"); o(f"s_add_u32 s{t0}, s{t0}, {CNT_Q}")
    o(f"s_cmp_lt_u32 s{sCt}, 16"); o(f"s_cselect_b32 s{sCntOff}, s{t0}, s{t1}")
    o(f"s_lshr_b32 s{t0}, s{sCt}, 4"); o(f"s_lshl_b32 s{t1}, s{t0}, 3")
    o(f"s_add_u32 s40, s0, s{t1}"); o(f"s_addc_u32 s41, s1, 0")
    o(f"s_load_dwordx2 s[40:41], s[40:41], {KA_WQ}")
    o(f"s_lshl_b32 s{t1}, s{t0}, 24"); o(f"s_add_u32 s{t1}, s{t1}, {WS_Q}")
    o(f"s_add_u32 s16, s{sWS}, s{t1}"); o(f"s_addc_u32 s17, s{sWS+1}, 0"); o("s_and_b32 s17, s17, 0xffff")
    o(f"s_mov_b32 s18, {16*MiB}"); o("s_mov_b32 s19, 0x00020000")
    srd_h()
    o("s_waitcnt lgkmcnt(0)")
    srd(o, 8, 40, 0, 8 * MiB)
    o(f"s_cmp_eq_u32 s{sRound}, 0"); o("s_cbranch_scc1 L_small")
    o(f"s_cmp_ge_u32 s{sCt}, 32"); o("s_cbranch_scc1 L_bigv")
    qkv_tile(A, 8, False, "L_gA", sW, sCt, sTok, opt, None); o("s_branch L_sig")
    A.label("L_bigv")
    qkv_tile(A, 8, True, "L_gB", sW, sCt, sTok, opt, None); o("s_branch L_sig")
    A.label("L_small")
    osm = dict(opt); osm["S"] = 6
    o(f"s_cmp_ge_u32 s{sCt}, 32"); o("s_cbranch_scc1 L_smallv")
    qkv_tile(A, 2, False, "L_gC", sW, sCt, sTok, osm, None); o("s_branch L_sig")
    A.label("L_smallv")
    qkv_tile(A, 2, True, "L_gD", sW, sCt, sTok, osm, None)
    A.label("L_sig")
    signal(A, 0, "t", off_s=sCntOff)
    if ST2:
        o(f"s_cmp_lg_u32 s{sRound}, 0"); o("s_cbranch_scc1 L_nolate")
        o(f"s_lshl_b32 s12, s{sW}, 10"); o("v_lshlrev_b32 v3, 4, v0"); o("v_add_u32 v3, s12, v3")
        for r in range(4): o(f"v_mov_b32 v{8+r}, -1")
        o(f"s_mul_i32 s12, s{sB}, {7*MiB//128}"); o(f"s_add_u32 s12, s12, {WS_PARTF + MiB}")
        o(f"s_add_u32 s14, s{sWS}, s12"); o(f"s_addc_u32 s15, s{sWS+1}, 0")
        for k in range(14):
            o("global_store_dwordx4 v3, v[8:11], s[14:15] sc1"); o("s_add_u32 s14, s14, 4096"); o("s_addc_u32 s15, s15, 0")
        signal(A, CNT_FILL2, "f2")
        A.label("L_nolate")
    if bprof:
        o("s_memrealtime s[72:73]"); o("s_waitcnt lgkmcnt(0)")
        o(f"s_lshl_b32 s74, s{sB}, 10"); o(f"s_lshl_b32 s75, s{sRound}, 2"); o("s_add_u32 s74, s74, s75"); o(f"s_add_u32 s74, s74, {WS_PROF + 4*MiB + 16}")
        o("v_mov_b32 v250, s74"); o("v_mov_b32 v251, s72")
        o("s_mov_b64 exec, 1"); o(f"global_store_dword v250, v251, {s(sWS,2)}"); o("s_mov_b64 exec, -1")
    o(f"s_add_u32 s{sRound}, s{sRound}, 1")
    o("s_branch L_task")
    A.label("L_phase3")
    if not opt.get("st2"): o(f"s_cmp_ge_u32 s{sB}, 64"); o("s_cbranch_scc1 L_nomod2")
    silu_to_lds(A)
    o(f"s_lshl_b32 s{sCt}, s{sB}, 5"); o(f"s_add_u32 s{sCt}, s{sCt}, {2048 if opt.get('st2') else 4096}")
    mod_task(A, sCt, "b")
    signal(A, CNT_MODC, "m2")
    A.label("L_nomod2")
    if opt.get("wpf", 1) == 1:
        prefetch_task(A, KA_WO, 8 * MiB, "wo"); prefetch_task(A, KA_W1, 2048 * 7168, "w1"); prefetch_task(A, KA_W2, 3584 * 4096, "w2")
    if opt.get("wpf", 1) == 2:
        prefetch_task(A, KA_W2, 3584 * 4096, "w2")
    P3 = opt.get("p3", 4)
    if P3 == 4:
        for r in range(128): o(f"v_accvgpr_write_b32 a{128+r}, 0")
    if P3 == 0:
        o("s_branch L_bulk_done")
    if P3 == 5:
        passes = opt.get("passes", [(0, 2), (2, 2), (4, 2), (6, 1), (7, 1)])
        for r in range(128): o(f"v_accvgpr_write_b32 a{128+r}, 0")
        o(f"s_lshr_b32 s{sDtG}, s{sXb}, 1"); o(f"s_lshl_b32 s{sDtG}, s{sDtG}, 1"); o(f"s_and_b32 s44, s{sI}, 1"); o(f"s_add_u32 s{sDtG}, s{sDtG}, s44")
        o(f"s_and_b32 s{sFt}, s{sXb}, 1"); o(f"s_lshl_b32 s{sFt}, s{sFt}, 3"); o(f"s_lshr_b32 s44, s{sI}, 1"); o(f"s_add_u32 s{sFt}, s{sFt}, s44")
        sPass, sPn = 83, 84
        def att_chunk(tag):
            o(f"s_lshl_b32 s{sCntOff}, s{sCh}, 3"); o(f"s_add_u32 s{sCntOff}, s{sCntOff}, s{sXb}"); o(f"s_lshl_b32 s{sCntOff}, s{sCntOff}, 7")
            wait_cnt(A, CNT_REC, 32, f"rec{tag}", off_s=sCntOff, sleep=8)
            o(f"s_lshl_b32 s{sCntOff}, s{sCh}, 7")
            wait_cnt(A, CNT_Q, 16, f"q{tag}", off_s=sCntOff)
            o(f"s_lshl_b32 s56, s{sB}, 2"); o(f"s_add_u32 s56, s56, s{sW}")
            o(f"s_lshr_b32 s57, s56, 6"); o(f"s_lshl_b32 s58, s{sCh}, 3"); o("s_add_u32 s57, s57, s58")
            o("s_lshr_b32 s58, s56, 1"); o("s_and_b32 s58, s58, 31"); o("s_and_b32 s59, s56, 1")
            attn_body(A, sWS, 57, 58, 59, 0, f"L_at{tag}", sc1=True)
        def rest(nch, tag):
            o(f"s_lshl_b32 s{sCntOff}, s{sPass}, 7")
            signal(A, CNT_ATT, f"a{tag}", off_s=sCntOff)
            wait_cnt(A, CNT_ATT, 128, f"a{tag}", off_s=sCntOff, sleep=4)
            bstamp(2)
            op_pass(A, 2 if nch == 1 else 3, opt)
            signal(A, CNT_OP, f"o{tag}", off_s=sCntOff)
            bstamp(3)
            wait_cnt(A, CNT_OP, 128, f"o{tag}", off_s=sCntOff, sleep=4)
            bstamp(4)
            ln2_pass(A, 3 if nch == 1 else 4)
            signal(A, CNT_LN, f"n{tag}", off_s=sCntOff)
            bstamp(5)
            o(f"s_cmp_ge_u32 s{sFt}, 14"); o(f"s_cbranch_scc1 L_nog1{tag}")
            wait_cnt(A, CNT_LN, 128, f"n{tag}", off_s=sCntOff, sleep=4)
            bstamp(6)
            G_ = g1_pass(A, opt, 8 * nch, f"L_g1{tag}")
            bstamp(7)
            A.label(f"L_nog1{tag}")
            return G_
        wait_cnt(A, CNT_MODB, 64, "mb5"); wait_cnt(A, CNT_MODC, 64, "mc5")
        nd = sum(1 for p in passes if p[1] == 2); ns = sum(1 for p in passes if p[1] == 1)
        o(f"s_mov_b32 s{sPass}, 0")
        A.label("L_dpass")
        o(f"s_lshl_b32 s{sCh}, s{sPass}, 1"); att_chunk("A"); bstamp(0)
        o(f"s_lshl_b32 s{sCh}, s{sPass}, 1"); o(f"s_add_u32 s{sCh}, s{sCh}, 1"); att_chunk("B"); bstamp(1)
        o(f"s_lshl_b32 s{sTok}, s{sPass}, 9"); o(f"s_lshl_b32 s{sCh}, s{sPass}, 1")
        G = rest(2, "D")
        o(f"s_add_u32 s{sPass}, s{sPass}, 1"); o(f"s_cmp_lt_u32 s{sPass}, {nd}"); o("s_cbranch_scc1 L_dpass")
        if ns:
            A.label("L_spass")
            o(f"s_add_u32 s{sCh}, s{sPass}, {nd}"); att_chunk("C"); bstamp(1)
            o(f"s_add_u32 s{sCh}, s{sPass}, {nd}"); o(f"s_lshl_b32 s{sTok}, s{sCh}, 8")
            rest(1, "S")
            o(f"s_add_u32 s{sPass}, s{sPass}, 1"); o(f"s_cmp_lt_u32 s{sPass}, {nd+ns}"); o("s_cbranch_scc1 L_spass")
        o(f"s_cmp_ge_u32 s{sFt}, 14"); o("s_cbranch_scc1 L_bulk_done")
        g1_epilogue(A, G, sFt, sDtG)
        o("s_branch L_bulk_done")
    if P3 not in (0, 5):
        o(f"s_mov_b32 s{sCh}, 0")
        A.label("L_chunk")
        if P3 >= 4:
            o(f"s_lshl_b32 s{sCntOff}, s{sCh}, 10"); o(f"s_add_u32 s{sCntOff}, s{sCntOff}, {7*128}")
            wait_cnt(A, CNT_REC, 32, "rec", off_s=sCntOff)
        else:
            if opt.get("aspread", 1):
                o(f"s_lshr_b32 s55, s{sI}, 1")
            else:
                o(f"s_mov_b32 s55, s{sXb}")
            o(f"s_lshl_b32 s{sCntOff}, s{sCh}, 3"); o(f"s_add_u32 s{sCntOff}, s{sCntOff}, s55"); o(f"s_lshl_b32 s{sCntOff}, s{sCntOff}, 7")
            wait_cnt(A, CNT_REC, 32, "rec", off_s=sCntOff, sleep=opt.get("slp", 16))
        o(f"s_lshl_b32 s{sCntOff}, s{sCh}, 7")
        wait_cnt(A, CNT_Q, 16, "q", off_s=sCntOff)
        bstamp(0)
        if P3 >= 4 or not opt.get("aspread", 1):
            o(f"s_lshl_b32 s56, s{sB}, 2"); o(f"s_add_u32 s56, s56, s{sW}")
            o(f"s_lshr_b32 s57, s56, 6"); o(f"s_lshl_b32 s58, s{sCh}, 3"); o("s_add_u32 s57, s57, s58")
        else:
            o(f"s_lshl_b32 s56, s{sXb}, 1"); o(f"s_and_b32 s57, s{sI}, 1"); o("s_add_u32 s56, s56, s57"); o("s_lshl_b32 s56, s56, 2"); o(f"s_add_u32 s56, s56, s{sW}")
            o(f"s_lshr_b32 s57, s{sI}, 1"); o(f"s_lshl_b32 s58, s{sCh}, 3"); o("s_add_u32 s57, s57, s58")
        o("s_lshr_b32 s58, s56, 1"); o("s_and_b32 s58, s58, 31"); o("s_and_b32 s59, s56, 1")
        if opt.get("aser"):
            o("s_mov_b32 s54, 0")
            A.label("L_aser")
            o(f"s_cmp_lg_u32 s{sW}, s54"); o("s_cbranch_scc1 L_aser_s")
        attn_body(A, sWS, 57, 58, 59, 0, "L_at", sc1=(P3 >= 4), nt=opt.get("ant", 0))
        if opt.get("aser"):
            o("s_waitcnt vmcnt(0)")
            A.label("L_aser_s")
            o("s_barrier")
            o("s_add_u32 s54, s54, 1"); o("s_cmp_lt_u32 s54, 4"); o("s_cbranch_scc1 L_aser")
        if P3 >= 4:
            signal(A, CNT_ATT, "a", off_s=sCntOff)
            bstamp(1)
            wait_cnt(A, CNT_ATT, 128, "a", off_s=sCntOff)
            wait_cnt(A, CNT_MODB, 64, "mb")
            bstamp(2)
            op_task(A)
            signal(A, CNT_OP, "o", off_s=sCntOff)
            bstamp(3)
            wait_cnt(A, CNT_OP, 128, "o", off_s=sCntOff)
            wait_cnt(A, CNT_MODC, 64, "mc")
            bstamp(4)
            ln2_task(A)
            signal(A, CNT_LN, "n", off_s=sCntOff)
            bstamp(5)
            o(f"s_cmp_ge_u32 s{sI}, 14"); o("s_cbranch_scc1 L_nog1")
            wait_cnt(A, CNT_LN, 128, "n", off_s=sCntOff)
            bstamp(6)
            G = g1_partial(A, opt)
            bstamp(7)
            A.label("L_nog1")
            o(f"s_add_u32 s{sCh}, s{sCh}, 1"); o(f"s_cmp_lt_u32 s{sCh}, 8"); o("s_cbranch_scc1 L_chunk")
            o(f"s_cmp_ge_u32 s{sI}, 14"); o("s_cbranch_scc1 L_bulk_done")
            g1_epilogue(A, G)
        else:
            o("s_waitcnt vmcnt(0)")
            o(f"s_add_u32 s{sCh}, s{sCh}, 1"); o(f"s_cmp_lt_u32 s{sCh}, 8"); o("s_cbranch_scc1 L_chunk")
    A.label("L_bulk_done")
    o("s_waitcnt vmcnt(0)")
    o("s_endpgm")
    return re.sub(r"\bL_", "B_L_", A.finish())

def gen_mega(name="mega_kernel", recopt=None, opt=None, force_slow=False, place=8):
    recopt = recopt or dict(E2_DEPTH=2, E2_SP=3, E2_DELAY=2)
    opt = opt or {"S": 4}
    A = Asm(); o = A
    o("s_cmp_ge_u32 s2, 256"); o("s_cbranch_scc1 M_end")
    o(f"s_load_dwordx2 {s(sDBG,2)}, s[0:1], {KA_DBG}")
    o(f"s_load_dwordx2 {s(sWS,2)}, s[0:1], {KA_WS}")
    o(f"s_load_dwordx2 s[10:11], s[0:1], {KA_MEM0}")
    o("s_memrealtime s[92:93]")
    o("v_lshlrev_b32 v3, 4, v0")
    o("v_lshrrev_b32 v1, 6, v0"); o("v_and_b32 v0, 63, v0"); o(f"v_readfirstlane_b32 s{sW}, v1")
    o("s_getreg_b32 s4, hwreg(HW_REG_XCC_ID, 0, 4)"); o("s_and_b32 s4, s4, 7")
    for r in range(4): o(f"v_mov_b32 v{8+r}, -1")
    o("s_waitcnt lgkmcnt(0)")
    if opt.get("tlb"):
        st = opt["tlb"]
        o(f"s_cmp_lg_u32 s{sW}, 1"); o("s_cbranch_scc1 M_notlb")
        o(f"v_lshlrev_b32 v4, {st}, v0")
        srd(o, 16, sWS, 0, 144 * MiB)
        o("buffer_load_dword v40, v4, s[16:19], 0 offen")
        o(f"s_mov_b32 s20, {64 << st}"); o("buffer_load_dword v41, v4, s[16:19], s20 offen")
        for k, (ka, nb) in enumerate(((KA_X, 4 * MiB), (KA_WQ, 8 * MiB), (KA_WK, 8 * MiB), (KA_WV, 8 * MiB), (KA_WO, 8 * MiB), (KA_WMOD, 12 * MiB))):
            o(f"s_load_dwordx2 s[20:21], s[0:1], {ka}"); o("s_waitcnt lgkmcnt(0)")
            srd(o, 16, 20, 0, nb)
            o(f"buffer_load_dword v{42+k}, v4, s[16:19], 0 offen")
        A.label("M_notlb")
    o(f"s_lshl_b32 s12, s2, {12 if opt.get('st2') else 15}"); o(f"s_add_u32 s12, s12, {WS_PARTF}")
    o(f"s_add_u32 s14, s{sWS}, s12"); o(f"s_addc_u32 s15, s{sWS+1}, 0")
    for k in range(1 if opt.get('st2') else 8):
        o("global_store_dwordx4 v3, v[8:11], s[14:15] sc1"); o("s_add_u32 s14, s14, 4096"); o("s_addc_u32 s15, s15, 0")
    o("s_cmp_ge_u32 s2, 128"); o("s_cbranch_scc1 M_f2")
    o("s_lshl_b32 s12, s2, 12")
    o(f"s_add_u32 s13, s12, {WS_RQK}"); o(f"s_add_u32 s14, s{sWS}, s13"); o(f"s_addc_u32 s15, s{sWS+1}, 0")
    o("global_store_dwordx4 v3, v[8:11], s[14:15] sc1")
    o(f"s_add_u32 s13, s12, {WS_RMEM}"); o(f"s_add_u32 s14, s{sWS}, s13"); o(f"s_addc_u32 s15, s{sWS+1}, 0")
    o("s_cmp_lt_u32 s2, 32"); o("s_cbranch_scc1 M_img")
    o("global_store_dwordx4 v3, v[8:11], s[14:15] sc1"); o("s_branch M_f3")
    A.label("M_img")
    o(f"s_and_b32 s16, s2, 3"); o("s_lshl_b32 s16, s16, 2"); o(f"s_add_u32 s16, s16, s{sW}"); o("s_lshl_b32 s16, s16, 7")
    o("v_and_b32 v5, 7, v0"); o("v_lshlrev_b32 v5, 11, v5"); o("v_bfe_u32 v6, v0, 3, 1"); o("v_lshl_add_u32 v5, v6, 6, v5")
    o("v_lshrrev_b32 v6, 4, v0"); o("v_lshl_add_u32 v5, v6, 4, v5"); o("v_add_u32 v5, s16, v5")
    o("global_load_dwordx4 v[16:19], v5, s[10:11]"); o("s_waitcnt vmcnt(0)")
    o("global_store_dwordx4 v3, v[16:19], s[14:15] sc1"); o("s_branch M_f3")
    A.label("M_f2")
    o("s_cmp_ge_u32 s2, 192"); o("s_cbranch_scc1 M_f4")
    o("s_sub_u32 s12, s2, 128"); o("s_lshl_b32 s12, s12, 12")
    o(f"s_add_u32 s13, s12, {WS_RV}"); o(f"s_add_u32 s14, s{sWS}, s13"); o(f"s_addc_u32 s15, s{sWS+1}, 0")
    o("global_store_dwordx4 v3, v[8:11], s[14:15] sc1"); o("s_branch M_f3")
    A.label("M_f4")
    o("s_cmp_ge_u32 s2, 240"); o("s_cbranch_scc1 M_f3")
    o("s_sub_u32 s12, s2, 192"); o("s_lshl_b32 s12, s12, 12"); o(f"s_add_u32 s12, s12, {WS_CNT}")
    o(f"s_add_u32 s14, s{sWS}, s12"); o(f"s_addc_u32 s15, s{sWS+1}, 0")
    for r in range(4): o(f"v_mov_b32 v{8+r}, 0")
    o("global_store_dwordx4 v3, v[8:11], s[14:15] sc1")
    A.label("M_f3")
    o("s_waitcnt vmcnt(0)"); o("s_barrier")
    o(f"s_cmp_lg_u32 s{sW}, 0"); o("s_cbranch_scc1 M_w")
    o("s_lshl_b32 s12, s4, 2"); o("v_mov_b32 v1, s12"); o("v_mov_b32 v2, 1"); o("s_mov_b64 exec, 1")
    o(f"global_atomic_add v3, v1, v2, {s(sDBG,2)} sc0"); o("s_waitcnt vmcnt(0)")
    o("v_mov_b32 v1, 0"); o("ds_write_b32 v1, v3"); o("s_waitcnt lgkmcnt(0)"); o("s_mov_b64 exec, -1")
    A.label("M_w")
    o("s_barrier"); o("v_mov_b32 v1, 0"); o("ds_read_b32 v6, v1"); o("s_waitcnt lgkmcnt(0)"); o("v_readfirstlane_b32 s5, v6"); o("s_barrier")
    o(f"s_mov_b32 s{sChk}, 1")
    if force_slow:
        fast_check(A, "t"); o("s_branch M_slow")
    if place == 8:
        o("s_cmp_lt_u32 s5, 16"); o("s_cbranch_scc1 M_rec_fast")
        o("s_cmp_lt_u32 s5, 32"); o("s_cbranch_scc0 M_idle")
        o("s_sub_u32 s5, s5, 16"); o("s_branch M_bulk")
    else:
        o("s_cmp_lt_u32 s5, 32"); o("s_cbranch_scc0 M_idle")
        o("s_and_b32 s12, s4, 3"); o("s_lshl_b32 s12, s12, 1"); o("s_lshr_b32 s13, s5, 4"); o("s_add_u32 s12, s12, s13"); o("s_and_b32 s5, s5, 15")
        o("s_cmp_lt_u32 s4, 4"); o("s_mov_b32 s4, s12"); o("s_cbranch_scc1 M_rec_fast"); o("s_branch M_bulk")
    A.label("M_idle")
    fast_check(A, "i")
    A.label("M_slow")
    o(f"s_mov_b32 s{sChk}, 0")
    o("s_lshr_b32 s4, s2, 4"); o("s_and_b32 s4, s4, 7"); o("s_and_b32 s5, s2, 15")
    o("s_cmp_lt_u32 s2, 128"); o("s_cbranch_scc1 M_rec_slow")
    o("s_branch M_bulk")
    A.label("M_end"); o("s_endpgm")
    t = A.finish()
    t += "M_bulk:\n" + gen_bulk(opt)
    Ah = Asm(); fast_check(Ah, "r"); Ah("s_cmp_eq_u32 s15, 0"); Ah("s_cbranch_scc1 M_slow")
    hook = Ah.finish()
    pre = ""
    if opt.get("rwait"):
        Ap = Asm()
        fast_check(Ap, "p"); Ap("s_cmp_eq_u32 s15, 0"); Ap("s_cbranch_scc1 M_slow")
        Ap(f"s_load_dwordx2 {s(sWS,2)}, s[0:1], {KA_WS}"); Ap("s_waitcnt lgkmcnt(0)")
        Ap(f"s_add_u32 s{sCNT}, s{sWS}, {WS_CNT}"); Ap(f"s_addc_u32 s{sCNT+1}, s{sWS+1}, 0"); Ap(f"s_mov_b32 s{sLim}, 0x400000")
        wait_cnt(Ap, CNT_MODA if opt["rwait"] == 1 else CNT_LN1, 128 if opt["rwait"] == 1 else 16, "rp", sleep=8)
        pre = re.sub(r"\bL_", "RP_L_", Ap.finish())
    t += "M_rec_fast:\n" + pre + rec.gen_rec(embedded=True, pfx="RF_", fast=True, KVCHK=True, SIG=(opt.get("p3", 4) != 0), hook=hook, cntoff=0, FILL2=(CNT_FILL2 if opt.get('st2') else None), **recopt)
    t += "M_rec_slow:\n" + rec.gen_rec(embedded=True, pfx="RS_", fast=False, KVCHK=True, SIG=(opt.get("p3", 4) != 0), hook=None, cntoff=SLOW_OFF, FILL2=(CNT_FILL2 if opt.get('st2') else None), **recopt)
    return kernel_head(name) + t + kernel_desc(name, 256, 256)
```

```python
from asmlib import *
from layout import *
from gemm import Gemm, gen_loop
from k_qkv import srd
from k_small import fbits, LOG2E, wave_sum, ln_rows, unpack8, gfun
from k_attn import attn_body
from mega import qkv_tile
import mega2
from mega2 import (sW, sXb, sI, sWS, sCNT, sB, sCh, sRound, sChk, sLim, sCt, sTok, sCntOff, sDBG, SLOW_OFF, CNT_MODB,
                   mod_task, silu_to_lds, prefetch_task, fast_check, wait_cnt, signal)
import rec12 as rec
import re, math
sEC = 94

def ewait(A, idx_imm, target, tag, idx_s=None, sleep=6):
    o = A
    o(f"s_cmp_lg_u32 s{sW}, 0"); o(f"s_cbranch_scc1 L_ew_{tag}_b")
    if idx_s is None: o(f"v_mov_b32 v2, {idx_imm*4}")
    else:
        o(f"s_lshl_b32 s44, s{idx_s}, 2"); o(f"s_add_u32 s44, s44, {idx_imm*4}"); o("v_mov_b32 v2, s44")
    A.label(f"L_ew_{tag}")
    o(f"global_load_dword v3, v2, {s(sEC,2)} sc1"); o("s_waitcnt vmcnt(0)"); o("v_readfirstlane_b32 s44, v3")
    o(f"s_cmp_ge_u32 s44, {target}"); o(f"s_cbranch_scc1 L_ew_{tag}_b")
    o(f"s_sleep {sleep}"); o(f"s_sub_u32 s{sLim}, s{sLim}, 1"); o(f"s_cbranch_scc0 L_ew_{tag}"); o(f"s_mov_b32 s{sLim}, 0")
    A.label(f"L_ew_{tag}_b")
    o("s_barrier")

def esignal(A, idx_imm, tag, idx_s=None):
    o = A
    o("s_waitcnt vmcnt(0)"); o("s_barrier")
    o(f"s_cmp_lg_u32 s{sW}, 0"); o(f"s_cbranch_scc1 L_es_{tag}")
    if idx_s is None: o(f"v_mov_b32 v2, {idx_imm*4}")
    else:
        o(f"s_lshl_b32 s44, s{idx_s}, 2"); o(f"s_add_u32 s44, s44, {idx_imm*4}"); o("v_mov_b32 v2, s44")
    o("v_mov_b32 v3, 1"); o("s_mov_b64 exec, 1"); o(f"global_atomic_add v2, v3, {s(sEC,2)}"); o("s_mov_b64 exec, -1")
    A.label(f"L_es_{tag}")

def mod_issue(A):
    o = A
    o("s_lshr_b32 s12, s2, 6"); o("s_lshl_b32 s12, s12, 8"); o(f"s_lshl_b32 s13, s{sW}, 6"); o("s_add_u32 s12, s12, s13")
    o("v_lshrrev_b32 v5, 2, v0"); o("v_add_u32 v5, s12, v5")
    o("s_mov_b32 s13, 12288"); o("v_mul_lo_u32 v7, v5, s13"); o("v_and_b32 v26, 3, v0"); o("v_lshl_add_u32 v7, v26, 4, v7")
    o("s_and_b32 s14, s2, 63"); o("s_lshl_b32 s14, s14, 6"); o("v_add_u32 v7, s14, v7")
    o("v_lshlrev_b32 v6, 1, v5")
    W, Cc = 32, 48
    for it in range(4):
        o(f"global_load_dwordx4 {v(W+4*it,4)}, v7, s[8:9]"); o(f"v_add_u32 v7, {16*12288}, v7")
        o(f"global_load_ushort v{Cc+it}, v6, s[10:11] offset:{it*32}")

def mod_finish(A, younger=0):
    o = A
    W, Cc, AC = 32, 48, 56
    for e in range(8): o(f"v_mov_b32 v{AC+e}, 0")
    o(f"s_mov_b32 s12, {fbits(-LOG2E)}")
    o(f"s_waitcnt vmcnt({younger})")
    for it in range(4):
        c = Cc + it
        o(f"v_lshlrev_b32 v{c}, 16, v{c}"); o(f"v_mul_f32 v27, s12, v{c}"); o("v_exp_f32 v27, v27"); o("v_add_f32 v27, 1.0, v27"); o("v_rcp_f32 v27, v27")
        o(f"v_mul_f32 v27, v{c}, v27"); o("v_cvt_pk_bf16_f32 v27, v27, v27"); o(f"v_lshlrev_b32 v{c}, 16, v27")
        for d in range(4):
            o(f"v_lshlrev_b32 v27, 16, v{W+4*it+d}"); o(f"v_and_b32 v28, 0xffff0000, v{W+4*it+d}")
            o(f"v_fmac_f32 v{AC+2*d}, v27, v{c}"); o(f"v_fmac_f32 v{AC+2*d+1}, v28, v{c}")
    for e in range(8):
        x = AC + e
        o(f"v_add_f32_dpp v{x}, v{x}, v{x} row_ror:4 row_mask:0xf bank_mask:0xf")
        o(f"v_add_f32_dpp v{x}, v{x}, v{x} row_ror:8 row_mask:0xf bank_mask:0xf")
        for sw in ("16", "32"):
            o(f"v_mov_b32 v27, v{x}"); o(f"v_permlane{sw}_swap_b32 v{x}, v27"); o(f"v_add_f32 v{x}, v{x}, v27")
    o(f"s_lshl_b32 s12, s{sW}, 7"); o("v_lshlrev_b32 v5, 5, v26"); o("v_add_u32 v5, s12, v5")
    o("s_mov_b64 exec, 0xf")
    o(f"ds_write_b128 v5, {v(AC,4)} offset:4096"); o(f"ds_write_b128 v5, {v(AC+4,4)} offset:4112")
    o("s_mov_b64 exec, -1")
    o("s_waitcnt lgkmcnt(0)"); o("s_barrier")
    o(f"s_cmp_lg_u32 s{sW}, 3"); o("s_cbranch_scc1 L_mp_d")
    o("v_lshlrev_b32 v5, 2, v0"); o("s_mov_b64 exec, 0xffffffff")
    for w in range(4): o(f"ds_read_b32 v{32+w}, v5 offset:{4096+w*128}")
    o("s_waitcnt lgkmcnt(0)")
    o("v_add_f32 v32, v32, v33"); o("v_add_f32 v34, v34, v35"); o("v_add_f32 v32, v32, v34")
    o("s_lshr_b32 s12, s2, 6"); o("s_lshl_b32 s12, s12, 13"); o("s_and_b32 s13, s2, 63"); o("s_lshl_b32 s13, s13, 7"); o("s_add_u32 s12, s12, s13"); o(f"s_add_u32 s12, s12, {WS_MODP}")
    o("v_add_u32 v5, s12, v5")
    o(f"global_store_dword v5, v32, {s(sWS,2)} sc1")
    o("s_waitcnt vmcnt(0)")
    o("s_mov_b64 exec, 1"); o(f"v_mov_b32 v2, {EC_MODP*4}"); o("v_mov_b32 v3, 1"); o(f"global_atomic_add v2, v3, {s(sEC,2)}")
    o("s_mov_b64 exec, -1")
    A.label("L_mp_d")

def fills(A, sIdx, nwg, tag, p0=0, p1=8 * MiB, small=True):
    o = A
    o(f"s_lshl_b32 s12, s{sW}, 10"); o("v_lshlrev_b32 v3, 4, v0"); o("v_add_u32 v3, s12, v3")
    for r in range(4): o(f"v_mov_b32 v{8+r}, -1")
    per = (p1 - p0) // nwg
    assert per % 4096 == 0
    o(f"s_mul_i32 s12, s{sIdx}, {per}"); o(f"s_add_u32 s12, s12, {WS_PARTF + p0}")
    o(f"s_add_u32 s14, s{sWS}, s12"); o(f"s_addc_u32 s15, s{sWS+1}, 0")
    for k in range(per // 4096):
        o("global_store_dwordx4 v3, v[8:11], s[14:15] sc1"); o("s_add_u32 s14, s14, 4096"); o("s_addc_u32 s15, s15, 0")
    if not small: return
    o(f"s_cmp_ge_u32 s{sIdx}, 128"); o(f"s_cbranch_scc1 L_fl_{tag}_d")
    o(f"s_lshl_b32 s12, s{sIdx}, 12")
    o(f"s_add_u32 s13, s12, {WS_RQK}"); o(f"s_add_u32 s14, s{sWS}, s13"); o(f"s_addc_u32 s15, s{sWS+1}, 0")
    o("global_store_dwordx4 v3, v[8:11], s[14:15] sc1")
    o(f"s_add_u32 s13, s12, {WS_RMEM}"); o(f"s_add_u32 s14, s{sWS}, s13"); o(f"s_addc_u32 s15, s{sWS+1}, 0")
    o(f"s_cmp_lt_u32 s{sIdx}, 32"); o(f"s_cbranch_scc1 L_fl_{tag}_img")
    o("global_store_dwordx4 v3, v[8:11], s[14:15] sc1"); o(f"s_branch L_fl_{tag}_2")
    A.label(f"L_fl_{tag}_img")
    o(f"s_load_dwordx2 s[10:11], s[0:1], {KA_MEM0}")
    o(f"s_and_b32 s16, s{sIdx}, 3"); o("s_lshl_b32 s16, s16, 2"); o(f"s_add_u32 s16, s16, s{sW}"); o("s_lshl_b32 s16, s16, 7")
    o("v_and_b32 v5, 7, v0"); o("v_lshlrev_b32 v5, 11, v5"); o("v_bfe_u32 v6, v0, 3, 1"); o("v_lshl_add_u32 v5, v6, 6, v5")
    o("v_lshrrev_b32 v6, 4, v0"); o("v_lshl_add_u32 v5, v6, 4, v5"); o("v_add_u32 v5, s16, v5")
    o("s_waitcnt lgkmcnt(0)")
    o("global_load_dwordx4 v[16:19], v5, s[10:11]"); o("s_waitcnt vmcnt(0)")
    o("global_store_dwordx4 v3, v[16:19], s[14:15] sc1")
    A.label(f"L_fl_{tag}_2")
    o(f"s_cmp_ge_u32 s{sIdx}, 64"); o(f"s_cbranch_scc1 L_fl_{tag}_z")
    o(f"s_add_u32 s13, s12, {WS_RV}"); o(f"s_add_u32 s14, s{sWS}, s13"); o(f"s_addc_u32 s15, s{sWS+1}, 0")
    o("global_store_dwordx4 v3, v[8:11], s[14:15] sc1"); o(f"s_branch L_fl_{tag}_d")
    A.label(f"L_fl_{tag}_z")
    o(f"s_cmp_ge_u32 s{sIdx}, 112"); o(f"s_cbranch_scc1 L_fl_{tag}_d")
    o(f"s_sub_u32 s12, s{sIdx}, 64"); o("s_lshl_b32 s12, s12, 12"); o(f"s_add_u32 s12, s12, {WS_CNT}")
    o(f"s_add_u32 s14, s{sWS}, s12"); o(f"s_addc_u32 s15, s{sWS+1}, 0")
    for r in range(4): o(f"v_mov_b32 v{12+r}, 0")
    o("global_store_dwordx4 v3, v[12:15], s[14:15] sc1")
    A.label(f"L_fl_{tag}_d")

def ln1_issue(A):
    o = A
    o("v_lshlrev_b32 v2, 4, v0")
    o(f"s_lshl_b32 s14, s{sB}, 4"); o(f"s_lshl_b32 s15, s{sW}, 2"); o("s_add_u32 s14, s14, s15")
    o("s_lshl_b32 s15, s14, 11"); o("s_add_u32 s16, s88, s15"); o("s_addc_u32 s17, s89, 0")
    RAW = 96
    for r in range(4):
        off = (r % 2) * 2048
        if r == 2: o("s_add_u32 s16, s16, 4096"); o("s_addc_u32 s17, s17, 0")
        o(f"global_load_dwordx4 {v(RAW+8*r,4)}, v2, s[16:17] offset:{off}"); o(f"global_load_dwordx4 {v(RAW+8*r+4,4)}, v2, s[16:17] offset:{off+1024}")

def ln1_task2(A):
    o = A
    RAW = 96
    o(f"s_lshl_b32 s14, s{sB}, 4"); o(f"s_lshl_b32 s15, s{sW}, 2"); o("s_add_u32 s14, s14, s15")
    X = [128, 144, 160, 176]
    for r in range(4):
        unpack8(o, X[r], RAW + 8 * r); unpack8(o, X[r] + 8, RAW + 8 * r + 4)
    ln_rows(o, X, 4, [4, 5], 1e-5)
    o("s_mov_b32 s83, s14")
    ewait(A, EC_MODP, 256, "mp")
    o("s_mov_b32 s14, s83")
    o("v_lshlrev_b32 v3, 5, v0")
    SA, CA, T = 64, 80, 32
    TT = {SA: 192, CA: 8}
    for dst, base in ((SA, 0), (CA, 4096)):
        for q in range(4):
            o(f"s_add_u32 s12, s{sWS}, {WS_MODP + q*8192 + base}"); o(f"s_addc_u32 s13, s{sWS+1}, 0")
            tgt = dst if q == 0 else TT[dst] + 16 * (q - 1)
            for h in range(2):
                for k in range(2): o(f"global_load_dwordx4 {v(tgt+8*h+4*k,4)}, v3, s[12:13] offset:{h*2048+k*16} sc1")
    o("s_waitcnt vmcnt(0)")
    for dst in (SA, CA):
        for q in range(1, 4):
            for e in range(16): o(f"v_add_f32 v{dst+e}, v{dst+e}, v{TT[dst]+16*(q-1)+e}")
        for e in range(0, 16, 2):
            o(f"v_cvt_pk_bf16_f32 v6, v{dst+e}, v{dst+e+1}"); o(f"v_lshlrev_b32 v{dst+e}, 16, v6"); o(f"v_and_b32 v{dst+e+1}, 0xffff0000, v6")
    for e in range(16): o(f"v_add_f32 v{CA+e}, 1.0, v{CA+e}")
    for r in range(4):
        R0 = RAW + 8 * r
        for e in range(16): o(f"v_fma_f32 v{X[r]+e}, v{X[r]+e}, v{CA+e}, v{SA+e}")
        for h in range(2):
            for d in range(4): o(f"v_cvt_pk_bf16_f32 v{R0+4*h+d}, v{X[r]+8*h+2*d}, v{X[r]+8*h+2*d+1}")
        o(f"s_add_u32 s16, s14, {r}"); o("s_lshr_b32 s17, s16, 4"); o("s_and_b32 s16, s16, 15")
        o("s_lshr_b32 s18, s16, 2"); o("s_lshr_b32 s19, s18, 1"); o("s_and_b32 s18, s18, 1"); o("s_xor_b32 s18, s18, s19"); o("s_lshl_b32 s18, s18, 1"); o("s_or_b32 s18, s18, s19")
        o("v_and_b32 v4, 3, v0"); o("v_xor_b32 v4, s18, v4"); o("v_lshlrev_b32 v4, 4, v4")
        o("v_lshrrev_b32 v5, 2, v0"); o("v_lshl_add_u32 v4, v5, 17, v4")
        o("s_lshl_b32 s17, s17, 10"); o("s_lshl_b32 s16, s16, 6"); o("s_add_u32 s17, s17, s16"); o(f"s_add_u32 s17, s17, {WS_H}")
        o("v_add_u32 v4, s17, v4")
        o(f"global_store_dwordx4 v4, {v(R0,4)}, {s(sWS,2)} sc1")
        o(f"v_add_u32 v4, {16*131072}, v4")
        o(f"global_store_dwordx4 v4, {v(R0+4,4)}, {s(sWS,2)} sc1")

def kv_small(A, swap, lab, sCs, opt):
    o = A
    from gemm import gen_loop3
    sX, sY, sO = 8, 12, 16
    sOffX, sOffY, sM0, sK = 20, 21, [22, 23], 24
    sT = [25, 26, 27, 28]
    G = Gemm(A, 2, 4, swap, "s")
    o(f"s_lshl_b32 s{sOffX}, s{sCs}, 7"); o(f"s_lshl_b32 s{sOffY}, s{sTok}, 6")
    o(f"s_mul_i32 s{sM0[0]}, s{sW}, {G.NIX*1024}"); o(f"s_mul_i32 s{sM0[1]}, s{sW}, {G.NIY*1024}")
    G.setup(sW, 0, 8192, 0, [1, 2, 3, 4, 5, 6], sT)
    gen_loop3(G, sX, sY, sOffX, sOffY, sM0, sK, 32 * 8192, 128 * 1024, 32, lab, K=2, R=8)
    E = G.vF; vLo = 1
    o(f"s_lshr_b32 s{sT[0]}, s{sCs}, 1")
    o(f"s_lshr_b32 s{sT[1]}, s{sTok}, 5"); o(f"s_lshr_b32 s{sT[2]}, s{sW}, 1"); o(f"s_lshl_b32 s{sT[2]}, s{sT[2]}, 1"); o(f"s_add_u32 s{sT[1]}, s{sT[1]}, s{sT[2]}")
    o(f"s_lshl_b32 s{sT[1]}, s{sT[1]}, 5"); o(f"s_add_u32 s{sT[0]}, s{sT[0]}, s{sT[1]}"); o(f"s_lshl_b32 s{sT[0]}, s{sT[0]}, 13")
    o(f"s_and_b32 s{sT[1]}, s{sCs}, 1"); o(f"s_and_b32 s{sT[2]}, s{sW}, 1")
    if not swap:
        o(f"s_lshl_b32 s{sT[1]}, s{sT[1]}, 1"); o(f"s_add_u32 s{sT[1]}, s{sT[1]}, s{sT[2]}")
    else:
        o(f"s_lshl_b32 s{sT[1]}, s{sT[1]}, 2"); o(f"s_lshl_b32 s{sT[2]}, s{sT[2]}, 1"); o(f"s_add_u32 s{sT[1]}, s{sT[1]}, s{sT[2]}")
    o(f"s_lshl_b32 s{sT[1]}, s{sT[1]}, 10"); o(f"s_add_u32 s{sT[0]}, s{sT[0]}, s{sT[1]}")
    def conv(P, T, ra, rb):
        for r in range(4): o(f"v_accvgpr_read_b32 v{T+r}, a{ra+r}")
        for r in range(4): o(f"v_accvgpr_read_b32 v{T+4+r}, a{rb+r}")
        o(f"v_cvt_pk_bf16_f32 v{P}, v{T}, v{T+1}"); o(f"v_cvt_pk_bf16_f32 v{P+1}, v{T+2}, v{T+3}")
        o(f"v_cvt_pk_bf16_f32 v{P+2}, v{T+4}, v{T+5}"); o(f"v_cvt_pk_bf16_f32 v{P+3}, v{T+6}, v{T+7}")
    k = 0
    if not swap:
        o(f"v_lshrrev_b32 v2, 4, v0"); o(f"v_and_b32 v3, 1, v2"); o(f"v_lshrrev_b32 v2, 1, v2"); o(f"v_lshl_or_b32 v2, v3, 1, v2")
        o(f"v_and_b32 v3, 15, v0"); o(f"v_lshl_or_b32 v2, v2, 4, v3"); o(f"v_lshlrev_b32 v{vLo}, 4, v2")
        for jy in range(4):
            o(f"s_add_u32 s{sT[1]}, s{sT[0]}, {(jy >> 1) * 262144 + (jy & 1) * 4096}")
            P = E + 12 * (k % 4); k += 1
            conv(P, P + 4, G.accr(0, jy), G.accr(1, jy))
            o(f"v_permlane16_swap_b32 v{P}, v{P+2}"); o(f"v_permlane16_swap_b32 v{P+1}, v{P+3}")
            o(f"buffer_store_dwordx4 {v(P,4)}, v{vLo}, {s(sO,4)}, s{sT[1]} offen sc1")
    else:
        o(f"v_lshlrev_b32 v{vLo}, 4, v0")
        for jp in range(2):
            o(f"s_add_u32 s{sT[1]}, s{sT[0]}, {jp*262144}")
            for jx in range(2):
                P = E + 12 * (k % 4); k += 1
                conv(P, P + 4, G.accr(jx, 2 * jp), G.accr(jx, 2 * jp + 1))
                o(f"buffer_store_dwordx4 {v(P,4)}, v{vLo}, {s(sO,4)}, s{sT[1]} offen offset:{jx*1024} sc1")
    o("s_waitcnt vmcnt(0)"); o("s_barrier")

def gen_bulk(opt):
    A = Asm(); o = A
    bprof = opt.get("bprof")
    def bstamp(k):
        if not bprof: return
        o("s_memrealtime s[72:73]"); o("s_waitcnt lgkmcnt(0)")
        o(f"s_lshl_b32 s74, s{sB}, 10"); o(f"s_add_u32 s74, s74, {WS_PROF + 4*MiB + k*4}")
        o("v_mov_b32 v250, s74"); o("v_mov_b32 v251, s72")
        o("s_mov_b64 exec, 1"); o(f"global_store_dword v250, v251, {s(sWS,2)}"); o("s_mov_b64 exec, -1")
    o(f"s_add_u32 s{sCNT}, s{sWS}, {WS_CNT}"); o(f"s_addc_u32 s{sCNT+1}, s{sWS+1}, 0")
    o(f"s_cmp_eq_u32 s{sChk}, 0"); o("s_cbranch_scc0 L_cb"); o(f"s_add_u32 s{sCNT}, s{sCNT}, {SLOW_OFF}"); o(f"s_addc_u32 s{sCNT+1}, s{sCNT+1}, 0")
    A.label("L_cb")
    o(f"s_lshl_b32 s{sB}, s{sXb}, 4"); o(f"s_add_u32 s{sB}, s{sB}, s{sI}")
    o(f"s_mov_b32 s{sLim}, 0x400000")
    bstamp(0)
    o("s_waitcnt vmcnt(0)")
    o(f"s_cmp_eq_u32 s{sChk}, 0"); o("s_cbranch_scc1 L_nofill")
    fills(A, sB, 128, "b", 0, 1 * MiB)
    A.label("L_nofill")
    ln1_task2(A)
    o(f"s_lshr_b32 s{sCntOff}, s{sB}, 4")
    esignal(A, EC_LN1, "l1", idx_s=sCntOff)
    esignal(A, EC_FILL, "fl")
    bstamp(1)
    o(f"s_cmp_eq_u32 s{sChk}, 0"); o("s_cbranch_scc1 L_nochk")
    fast_check(A, "b")
    o("s_cmp_eq_u32 s15, 0"); o("s_cbranch_scc1 M_slow")
    A.label("L_nochk")
    ewait(A, EC_LN1, 16, "l10")
    bstamp(2)
    def qkv_srds(sMat):
        o(f"s_lshl_b32 s45, s{sMat}, 3"); o("s_add_u32 s40, s0, s45"); o("s_addc_u32 s41, s1, 0")
        o(f"s_load_dwordx2 s[40:41], s[40:41], {KA_WQ}")
        o(f"s_lshl_b32 s45, s{sMat}, 24"); o(f"s_add_u32 s45, s45, {WS_Q}")
        o(f"s_add_u32 s16, s{sWS}, s45"); o(f"s_addc_u32 s17, s{sWS+1}, 0"); o("s_and_b32 s17, s17, 0xffff")
        o(f"s_mov_b32 s18, {16*MiB}"); o("s_mov_b32 s19, 0x00020000")
        srd(o, 12, sWS, WS_H, 4 * MiB)
        o("s_waitcnt lgkmcnt(0)")
        srd(o, 8, 40, 0, 8 * MiB)
    sMat, sCs = 85, 86
    o(f"s_lshr_b32 s{sMat}, s{sI}, 3"); o(f"s_add_u32 s{sMat}, s{sMat}, 1")
    o(f"s_lshl_b32 s{sCs}, s{sXb}, 3"); o(f"s_and_b32 s45, s{sI}, 7"); o(f"s_add_u32 s{sCs}, s{sCs}, s45")
    o(f"s_mov_b32 s{sTok}, 0")
    A.label("L_t0")
    qkv_srds(sMat)
    o(f"s_cmp_eq_u32 s{sMat}, 2"); o("s_cbranch_scc1 L_t0v")
    kv_small(A, False, "L_t0k", sCs, opt); o("s_branch L_t0s")
    A.label("L_t0v")
    kv_small(A, True, "L_t0vv", sCs, opt)
    A.label("L_t0s")
    o(f"s_lshr_b32 s{sCntOff}, s{sTok}, 7"); o(f"s_lshl_b32 s{sCntOff}, s{sCntOff}, 3"); o(f"s_add_u32 s{sCntOff}, s{sCntOff}, s{sXb}")
    esignal(A, EC_KVH0, "t0", idx_s=sCntOff)
    o(f"s_add_u32 s{sTok}, s{sTok}, 128"); o(f"s_cmp_lt_u32 s{sTok}, 256"); o("s_cbranch_scc1 L_t0")
    bstamp(3)
    o(f"s_cmp_eq_u32 s{sChk}, 0"); o("s_cbranch_scc1 L_nofill2")
    fills(A, sB, 128, "b2", 1 * MiB, 8 * MiB, small=False)
    A.label("L_nofill2")
    esignal(A, EC_FILL2, "fl2")
    ewait(A, EC_FILL, 128, "fl")
    o(f"s_mov_b32 s{sRound}, 0")
    A.label("L_task")
    t0, t1, t2 = 44, 45, 46
    o(f"s_lshl_b32 s{t0}, s{sXb}, 2"); o(f"s_and_b32 s{t1}, s{sI}, 3"); o(f"s_add_u32 s{t0}, s{t0}, s{t1}"); o(f"s_add_u32 s{t0}, s{t0}, 16")
    o(f"s_lshl_b32 s{t1}, s{sXb}, 1"); o(f"s_and_b32 s{t2}, s{sI}, 1"); o(f"s_add_u32 s{t1}, s{t1}, s{t2}")
    o(f"s_lshr_b32 s{t2}, s{sI}, 2")
    o(f"s_cmp_eq_u32 s{sRound}, 0"); o("s_cbranch_scc0 L_r1")
    o(f"s_mov_b32 s{sCt}, s{t0}"); o(f"s_lshl_b32 s{sTok}, s{t2}, 6"); o(f"s_add_u32 s{sTok}, s{sTok}, 256"); o("s_branch L_dec")
    A.label("L_r1")
    o(f"s_cmp_eq_u32 s{sRound}, 1"); o("s_cbranch_scc0 L_r2")
    o(f"s_mov_b32 s{sCt}, s{t0}"); o(f"s_add_u32 s{sTok}, s{t2}, 2"); o(f"s_lshl_b32 s{sTok}, s{sTok}, 8"); o("s_branch L_dec")
    A.label("L_r2")
    o(f"s_cmp_eq_u32 s{sRound}, 2"); o("s_cbranch_scc0 L_r3")
    o(f"s_cmp_lt_u32 s{sI}, 8"); o("s_cbranch_scc0 L_r2q")
    o(f"s_mov_b32 s{sCt}, s{t0}"); o(f"s_add_u32 s{sTok}, s{t2}, 6"); o(f"s_lshl_b32 s{sTok}, s{sTok}, 8"); o("s_branch L_dec")
    A.label("L_r2q")
    o(f"s_mov_b32 s{sCt}, s{t1}"); o(f"s_sub_u32 s{sTok}, s{sI}, 8"); o(f"s_lshr_b32 s{sTok}, s{sTok}, 1"); o(f"s_lshl_b32 s{sTok}, s{sTok}, 8"); o("s_branch L_dec")
    A.label("L_r3")
    o(f"s_cmp_eq_u32 s{sRound}, 3"); o("s_cbranch_scc0 L_phase3")
    o(f"s_cmp_lt_u32 s{sI}, 8"); o("s_cbranch_scc0 L_phase3")
    o(f"s_mov_b32 s{sCt}, s{t1}"); o(f"s_lshr_b32 s{sTok}, s{sI}, 1"); o(f"s_add_u32 s{sTok}, s{sTok}, 4"); o(f"s_lshl_b32 s{sTok}, s{sTok}, 8")
    A.label("L_dec")
    o(f"s_lshr_b32 s{sCntOff}, s{sTok}, 8")
    ewait(A, EC_LN1, 16, "l1", idx_s=sCntOff)
    o(f"s_lshr_b32 s{t0}, s{sTok}, 8")
    o(f"s_lshl_b32 s{t1}, s{t0}, 3"); o(f"s_and_b32 s{t2}, s{sCt}, 15"); o(f"s_lshr_b32 s{t2}, s{t2}, 1"); o(f"s_add_u32 s{t1}, s{t1}, s{t2}"); o(f"s_lshl_b32 s{t1}, s{t1}, 7")
    o(f"s_lshl_b32 s{t0}, s{t0}, 7"); o(f"s_add_u32 s{t0}, s{t0}, {CNT_Q}")
    o(f"s_cmp_lt_u32 s{sCt}, 16"); o(f"s_cselect_b32 s{sCntOff}, s{t0}, s{t1}")
    o(f"s_lshr_b32 s{sMat}, s{sCt}, 4")
    qkv_srds(sMat)
    o(f"s_cmp_eq_u32 s{sRound}, 0"); o("s_cbranch_scc1 L_small")
    o(f"s_cmp_ge_u32 s{sCt}, 32"); o("s_cbranch_scc1 L_bigv")
    qkv_tile(A, 8, False, "L_gA", sW, sCt, sTok, opt, None); o("s_branch L_sig")
    A.label("L_bigv")
    qkv_tile(A, 8, True, "L_gB", sW, sCt, sTok, opt, None); o("s_branch L_sig")
    A.label("L_small")
    osm = dict(opt); osm["S"] = 6
    o(f"s_cmp_ge_u32 s{sCt}, 32"); o("s_cbranch_scc1 L_smallv")
    qkv_tile(A, 2, False, "L_gC", sW, sCt, sTok, osm, None); o("s_branch L_sig")
    A.label("L_smallv")
    qkv_tile(A, 2, True, "L_gD", sW, sCt, sTok, osm, None)
    A.label("L_sig")
    signal(A, 0, "t", off_s=sCntOff)
    if bprof:
        o("s_memrealtime s[72:73]"); o("s_waitcnt lgkmcnt(0)")
        o(f"s_lshl_b32 s74, s{sB}, 10"); o(f"s_lshl_b32 s75, s{sRound}, 2"); o("s_add_u32 s74, s74, s75"); o(f"s_add_u32 s74, s74, {WS_PROF + 4*MiB + 16}")
        o("v_mov_b32 v250, s74"); o("v_mov_b32 v251, s72")
        o("s_mov_b64 exec, 1"); o(f"global_store_dword v250, v251, {s(sWS,2)}"); o("s_mov_b64 exec, -1")
    o(f"s_add_u32 s{sRound}, s{sRound}, 1")
    o("s_branch L_task")
    A.label("L_phase3")
    silu_to_lds(A)
    o(f"s_lshl_b32 s{sCt}, s{sB}, 5"); o(f"s_add_u32 s{sCt}, s{sCt}, 2048")
    mod_task(A, sCt, "b")
    o("s_waitcnt vmcnt(0)"); o("s_barrier")
    if opt.get("wpf", 1):
        prefetch_task(A, KA_WO, 8 * MiB, "wo"); prefetch_task(A, KA_W1, 2048 * 7168, "w1"); prefetch_task(A, KA_W2, 3584 * 4096, "w2")
    if opt.get("p3", 1) == 1:
        o(f"s_mov_b32 s{sCh}, 0")
        A.label("L_chunk")
        o(f"s_lshl_b32 s{sCntOff}, s{sCh}, 3"); o(f"s_add_u32 s{sCntOff}, s{sCntOff}, s{sXb}"); o(f"s_lshl_b32 s{sCntOff}, s{sCntOff}, 7")
        wait_cnt(A, CNT_REC, 32, "rec", off_s=sCntOff, sleep=16)
        o(f"s_lshl_b32 s{sCntOff}, s{sCh}, 7")
        wait_cnt(A, CNT_Q, 16, "q", off_s=sCntOff)
        o(f"s_lshl_b32 s56, s{sB}, 2"); o(f"s_add_u32 s56, s56, s{sW}")
        o(f"s_lshr_b32 s57, s56, 6"); o(f"s_lshl_b32 s58, s{sCh}, 3"); o("s_add_u32 s57, s57, s58")
        o("s_lshr_b32 s58, s56, 1"); o("s_and_b32 s58, s58, 31"); o("s_and_b32 s59, s56, 1")
        attn_body(A, sWS, 57, 58, 59, 0, "L_at")
        o("s_waitcnt vmcnt(0)")
        o(f"s_add_u32 s{sCh}, s{sCh}, 1"); o(f"s_cmp_lt_u32 s{sCh}, 8"); o("s_cbranch_scc1 L_chunk")
    o("s_waitcnt vmcnt(0)")
    o("s_endpgm")
    return re.sub(r"\bL_", "B_L_", A.finish())

def gen_mega(name="mega_kernel", recopt=None, opt=None, force_slow=False, place=8):
    recopt = recopt or dict(E2_DEPTH=2, E2_SP=3, E2_DELAY=2)
    opt = opt or {"S": 4}
    A = Asm(); o = A
    o("s_cmp_ge_u32 s2, 256"); o("s_cbranch_scc1 M_end")
    o(f"s_load_dwordx2 {s(sDBG,2)}, s[0:1], {KA_DBG}")
    o(f"s_load_dwordx2 {s(sWS,2)}, s[0:1], {KA_WS}")
    o("s_memrealtime s[92:93]")
    o("v_lshrrev_b32 v1, 6, v0"); o("v_and_b32 v0, 63, v0"); o(f"v_readfirstlane_b32 s{sW}, v1")
    o("s_getreg_b32 s4, hwreg(HW_REG_XCC_ID, 0, 4)"); o("s_and_b32 s4, s4, 7")
    o("s_waitcnt lgkmcnt(0)")
    o(f"s_mov_b32 s{sEC}, s{sDBG}"); o(f"s_mov_b32 s{sEC+1}, s{sDBG+1}")
    o(f"s_mov_b32 s{sChk}, 1")
    o(f"s_load_dwordx2 s[8:9], s[0:1], {KA_WMOD}"); o(f"s_load_dwordx2 s[10:11], s[0:1], {KA_C}"); o(f"s_load_dwordx2 s[88:89], s[0:1], {KA_X}")
    o(f"s_cmp_lg_u32 s{sW}, 0"); o("s_cbranch_scc1 M_w")
    o("s_lshl_b32 s12, s4, 2"); o("v_mov_b32 v1, s12"); o("v_mov_b32 v2, 1"); o("s_mov_b64 exec, 1")
    o(f"global_atomic_add v70, v1, v2, {s(sDBG,2)} sc0"); o("s_mov_b64 exec, -1")
    A.label("M_w")
    o("s_waitcnt lgkmcnt(0)")
    mod_issue(A)
    o(f"s_cmp_lg_u32 s{sW}, 0"); o("s_cbranch_scc1 M_w2")
    o("s_waitcnt vmcnt(8)"); o("s_mov_b64 exec, 1"); o("v_mov_b32 v1, 0"); o("ds_write_b32 v1, v70"); o("s_waitcnt lgkmcnt(0)"); o("s_mov_b64 exec, -1")
    A.label("M_w2")
    o("s_barrier"); o("v_mov_b32 v1, 0"); o("ds_read_b32 v6, v1"); o("s_waitcnt lgkmcnt(0)"); o("v_readfirstlane_b32 s5, v6"); o("s_barrier")
    if force_slow:
        o("s_waitcnt vmcnt(0)"); fast_check(A, "t"); o("s_branch M_slow")
    if place == 8:
        o("s_cmp_lt_u32 s5, 16"); o("s_cbranch_scc1 M_recf")
        o("s_cmp_lt_u32 s5, 32"); o("s_cbranch_scc0 M_idle0")
        o("s_sub_u32 s5, s5, 16"); o("s_branch M_blk")
    else:
        o("s_cmp_lt_u32 s5, 32"); o("s_cbranch_scc0 M_idle0")
        o("s_and_b32 s12, s4, 3"); o("s_lshl_b32 s12, s12, 1"); o("s_lshr_b32 s13, s5, 4"); o("s_add_u32 s12, s12, s13"); o("s_and_b32 s5, s5, 15")
        o("s_cmp_lt_u32 s4, 4"); o("s_mov_b32 s4, s12"); o("s_cbranch_scc1 M_recf"); o("s_branch M_blk")
    A.label("M_recf")
    mod_finish(A); o("s_branch M_rec_fast")
    A.label("M_blk")
    o(f"s_lshl_b32 s{sB}, s{sXb}, 4"); o(f"s_add_u32 s{sB}, s{sB}, s{sI}")
    ln1_issue(A)
    Ab = Asm(); mod_finish(Ab, younger=8); A.raw(re.sub(r"\bL_", "L2_", Ab.finish()))
    o("s_branch M_bulk")
    A.label("M_idle0")
    Ac = Asm(); mod_finish(Ac); A.raw(re.sub(r"\bL_", "L3_", Ac.finish()))
    A.label("M_idle")
    fast_check(A, "i")
    A.label("M_slow")
    o(f"s_mov_b32 s{sChk}, 0")
    o("s_waitcnt vmcnt(0)")
    o("s_mov_b32 s87, s2")
    fills(A, 87, 256, "s")
    o("s_waitcnt vmcnt(0)"); o("s_barrier")
    o(f"s_cmp_lg_u32 s{sW}, 0"); o("s_cbranch_scc1 M_sb")
    o(f"v_mov_b32 v2, {EC_SLOW*4}"); o("v_mov_b32 v3, 1"); o("s_mov_b64 exec, 1"); o(f"global_atomic_add v2, v3, {s(sDBG,2)}"); o("s_mov_b64 exec, -1")
    o("s_mov_b32 s13, 0x200000")
    A.label("M_sp")
    o(f"global_load_dword v3, v2, {s(sDBG,2)} sc1"); o("s_waitcnt vmcnt(0)"); o("v_readfirstlane_b32 s12, v3")
    o("s_cmp_ge_u32 s12, 256"); o("s_cbranch_scc1 M_sb"); o("s_sleep 4"); o("s_sub_u32 s13, s13, 1"); o("s_cbranch_scc0 M_sp")
    A.label("M_sb")
    o("s_barrier")
    o(f"s_add_u32 s{sEC}, s{sWS}, {WS_CNT + SLOW_OFF + 49152}"); o(f"s_addc_u32 s{sEC+1}, s{sWS+1}, 0")
    o(f"s_load_dwordx2 s[8:9], s[0:1], {KA_WMOD}"); o(f"s_load_dwordx2 s[10:11], s[0:1], {KA_C}"); o(f"s_load_dwordx2 s[88:89], s[0:1], {KA_X}")
    o("s_waitcnt lgkmcnt(0)")
    Ad = Asm(); mod_issue(Ad); mod_finish(Ad); A.raw(re.sub(r"\bL_", "L4_", Ad.finish()))
    o("s_lshr_b32 s4, s2, 4"); o("s_and_b32 s4, s4, 7"); o("s_and_b32 s5, s2, 15")
    o("s_cmp_lt_u32 s2, 128"); o("s_cbranch_scc1 M_rec_slow")
    o(f"s_lshl_b32 s{sB}, s{sXb}, 4"); o(f"s_add_u32 s{sB}, s{sB}, s{sI}")
    ln1_issue(A)
    o("s_branch M_bulk")
    A.label("M_end"); o("s_endpgm")
    t = re.sub(r"\bL_", "E_L_", A.finish())
    t += "M_bulk:\n" + gen_bulk(opt)
    Ah = Asm(); fast_check(Ah, "r"); Ah("s_cmp_eq_u32 s15, 0"); Ah("s_cbranch_scc1 M_slow")
    sig = opt.get("p3", 1) != 0
    t += "M_rec_fast:\n" + rec.gen_rec(embedded=True, pfx="RF_", fast=True, KVCHK=True, SIG=sig, EARLY=True, hook=Ah.finish(), cntoff=0, **recopt)
    t += "M_rec_slow:\n" + rec.gen_rec(embedded=True, pfx="RS_", fast=False, KVCHK=True, SIG=sig, EARLY=True, hook=None, cntoff=SLOW_OFF, **recopt)
    return kernel_head(name) + t + kernel_desc(name, 256, 256)
```

```python
from asmlib import *
from layout import *

NSTEPS = 64
SENT = 0xFFFFFFFF

def gen_rec(name="rec_kernel", embedded=False, pfx="", KVCHK=False, SIG=False, hook=None, cntoff=0, EARLY=False, FILL2=None, fast=True, prof=False, nsteps=NSTEPS, E1_EARLY=True, E2_DELAY=0, E3_DELAY=0, KV_FIRST=0, PF=1, PFE=0, VSP=2, RT=0, E1_AT=7, E3_SALU_FIRST=0, LAST_SHORT=1, NOK=0, NOV=0, E2F='sc1', X4=0, X4LIM=4, E2_DEPTH=3, E2_SP=0, EP=0, FIXKV=0):
    TIMER = "s_memrealtime" if RT else "s_memtime"
    A = Asm()
    o = A
    st_fast = "" if fast else " sc1"
    sWG = 2
    sW, sG, sJ, sHA, sC, sHead = 3, 4, 5, 6, 7, 8
    sWS = 10
    sT0, sT1, sT2, sT3 = 12, 13, 14, 15
    sPtr = 16
    sMEMc, sMEMn, sQK, sVR, sPART, sPART2, sKX, sKX2, sVX, sKM, sVM = 20, 22, 24, 26, 28, 30, 32, 34, 36, 38, 40
    sRq, sRv, sRp, sRm = 42, 44, 46, 48
    sStep, sSlot, sLim = 50, 51, 52
    sMaskQK, sMaskLo = 54, 56
    sSelV = 58
    sScale = 60
    sWQ, sWK, sWV, sWO, sDBG = 62, 64, 66, 68, 70
    sTs = 66
    sProf = 96
    vL = 0; vT = [1, 2, 3, 4, 5, 6, 7]
    vE3, vQKst, vVst, vVld, vPst, vPld, vMst, vKx, vL16, vKMst = 8, 9, 10, 11, 12, 13, 14, 15, 56, 57
    vA0, vA1, vAv0, vAv1 = 16, 20, 24, 28
    vSx, vSm = 32, 40
    vPx, vPmA, vPmB = 44, 48, 50
    vDelta = 52
    vNeg = 60
    vB = 64; vK = 128; vV = 160; vQ = 192; vQr = 200; vKm = 208; vKr = 216; vVm = 224
    vLdsM, vLdsO, vLdsV = 232, 233, 234
    vSent = 236
    vFlag = 57
    vX = 240
    vO = 64; vOb = 96
    vOo = [112, 116, 120, 124] + [160 + 4 * i for i in range(8)]
    LDS_MEM, LDS_O, LDS_V = 0, 16384, 32768

    if not embedded:
        o(f"s_cmp_ge_u32 s{sWG}, {256 if X4 else 128}")
        o("s_cbranch_scc1 L_rec_end")
        o(f"s_load_dwordx2 {s(sWQ,2)}, s[0:1], {KA_WQ}")
        o(f"s_load_dwordx2 {s(sWK,2)}, s[0:1], {KA_WK}")
        o(f"s_load_dwordx2 {s(sWV,2)}, s[0:1], {KA_WV}")
        o(f"s_load_dwordx2 {s(sWO,2)}, s[0:1], {KA_WO}")
        o(f"s_load_dwordx2 {s(sDBG,2)}, s[0:1], {KA_DBG}")
        o(f"s_load_dwordx2 {s(sWS,2)}, s[0:1], {KA_WS}")
        o(f"v_lshrrev_b32 v1, 6, v0")
        o(f"v_and_b32 v{vL}, 63, v0")
        o(f"v_readfirstlane_b32 s{sW}, v1")
        o(f"s_getreg_b32 s{sG}, hwreg(HW_REG_XCC_ID, 0, 4)")
        o("s_waitcnt lgkmcnt(0)")
        o(f"s_cmp_lg_u32 s{sW}, 0")
        o("s_cbranch_scc1 L_rec_noticket")
        o(f"s_lshl_b32 s{sT0}, s{sG}, 2")
        o(f"v_mov_b32 v1, s{sT0}")
        o("v_mov_b32 v2, 1")
        o("s_mov_b64 exec, 1")
        o(f"global_atomic_add v3, v1, v2, {s(sDBG,2)} sc0")
        o("s_waitcnt vmcnt(0)")
        o("v_mov_b32 v1, 0")
        o("ds_write_b32 v1, v3")
        o("s_waitcnt lgkmcnt(0)")
        o("s_mov_b64 exec, -1")
        A.label("L_rec_noticket")
        o("s_barrier")
        o("v_mov_b32 v1, 0")
        o("ds_read_b32 v3, v1")
        o("s_waitcnt lgkmcnt(0)")
        o(f"v_readfirstlane_b32 s{sJ}, v3")
        o("s_barrier")
        if X4:
            o(f"s_cmp_ge_u32 s{sG}, {X4LIM}"); o("s_cbranch_scc1 L_rec_end")
            o(f"s_sub_u32 s{sG}, s{sG}, {X4LIM-4}") if False else None
            o(f"s_lshl_b32 s{sG}, s{sG}, 1"); o(f"s_lshr_b32 s{sT0}, s{sJ}, 4"); o(f"s_add_u32 s{sG}, s{sG}, s{sT0}")
        o(f"s_and_b32 s{sJ}, s{sJ}, 15")
        o(f"s_and_b32 s{sG}, s{sG}, 7")
    else:
        o(f"s_load_dwordx2 {s(sWQ,2)}, s[0:1], {KA_WQ}")
        o(f"s_load_dwordx2 {s(sWK,2)}, s[0:1], {KA_WK}")
        o(f"s_load_dwordx2 {s(sWV,2)}, s[0:1], {KA_WV}")
        o(f"s_load_dwordx2 {s(sWO,2)}, s[0:1], {KA_WO}")
        o(f"s_load_dwordx2 {s(sWS,2)}, s[0:1], {KA_WS}")
        o("s_waitcnt lgkmcnt(0)")
    o(f"s_lshr_b32 s{sHA}, s{sJ}, 2")
    o(f"s_and_b32 s{sC}, s{sJ}, 3")
    o(f"s_lshl_b32 s{sHead}, s{sG}, 2")
    o(f"s_add_u32 s{sHead}, s{sHead}, s{sW}")
    vi, vg, vr = vT[0], vT[1], vT[2]
    o(f"v_and_b32 v{vi}, 15, v{vL}")
    o(f"v_lshrrev_b32 v{vg}, 4, v{vL}")
    o(f"v_and_b32 v{vr}, 7, v{vL}")
    o(f"v_lshlrev_b32 v{vL16}, 4, v{vL}")

    o(f"s_lshl_b32 s{sT0}, s{sG}, 2")
    o(f"s_add_u32 s{sT0}, s{sT0}, s{sHA}")
    o(f"s_lshl_b32 s{sT0}, s{sT0}, 8")
    o(f"s_lshl_b32 s{sT1}, s{sC}, 6")
    o(f"s_add_u32 s{sT0}, s{sT0}, s{sT1}")
    v1, v2, v3, v4 = vT[3], vT[4], vT[5], vT[6]
    o(f"v_lshrrev_b32 v{v1}, 2, v{vL}")
    o(f"v_lshlrev_b32 v{v1}, 13, v{v1}")
    o(f"v_and_b32 v{v2}, 3, v{vL}")
    o(f"v_lshl_add_u32 v{v1}, v{v2}, 4, v{v1}")
    o(f"v_add_u32 v{v1}, s{sT0}, v{v1}")
    o(f"s_lshl_b32 s{sT1}, s{sW}, 21")
    o(f"v_add_u32 v{v1}, s{sT1}, v{v1}")
    def dma_strip(sbase, ldsbase, nblk, rowstep):
        o(f"v_mov_b32 v{v2}, v{v1}")
        o(f"s_lshl_b32 s{sT2}, s{sW}, {(nblk*1024).bit_length()-1}")
        o(f"s_add_u32 s{sT2}, s{sT2}, {ldsbase}")
        for m in range(nblk):
            o(f"s_mov_b32 m0, s{sT2}")
            o(f"s_add_u32 s{sT2}, s{sT2}, 1024")
            o(f"global_load_lds_dwordx4 v{v2}, {s(sbase,2)}")
            if m + 1 < nblk: o(f"v_add_u32 v{v2}, {rowstep}, v{v2}")
    dma_strip(sWQ, 0, 16, 131072)
    dma_strip(sWK, 65536, 16, 131072)
    o(f"v_lshrrev_b32 v{v3}, 2, v{vi}")
    o(f"v_lshl_add_u32 v{v3}, v{vg}, 3, v{v3}")
    o(f"v_lshlrev_b32 v{v3}, 6, v{v3}")
    o(f"v_and_b32 v{v4}, 3, v{vi}")
    o(f"v_lshl_add_u32 v{v3}, v{v4}, 3, v{v3}")
    o("s_waitcnt vmcnt(0)")
    o("s_barrier")
    o(f"s_lshr_b32 s{sT0}, s{sW}, 1")
    o(f"s_lshl_b32 s{sT0}, s{sT0}, 16")
    o(f"s_and_b32 s{sT1}, s{sW}, 1")
    o(f"s_lshl_b32 s{sT1}, s{sT1}, 5")
    o(f"s_add_u32 s{sT0}, s{sT0}, s{sT1}")
    for i in range(16):
        o(f"s_lshl_b32 s{sT2}, s{sW}, 2")
        o(f"s_add_u32 s{sT2}, s{sT2}, {i}")
        o(f"s_and_b32 s{sT2}, s{sT2}, 15")
        o(f"s_lshl_b32 s{sT2}, s{sT2}, 12")
        o(f"s_add_u32 s{sT2}, s{sT2}, s{sT0}")
        o(f"v_add_u32 v{v4}, s{sT2}, v{v3}")
        for half in range(2):
            d = (i * 2 + half) * 4
            o(f"ds_read_b64_tr_b16 {a(d,2)}, v{v4} offset:{half*2048}")
            o(f"ds_read_b64_tr_b16 {a(d+2,2)}, v{v4} offset:{half*2048+256}")
        if i % 4 == 3: o("s_waitcnt lgkmcnt(0)")
    o("s_barrier")
    dma_strip(sWV, 0, 16, 131072)
    o(f"v_lshrrev_b32 v{v1}, 3, v{vL}")
    o(f"v_lshlrev_b32 v{v1}, 11, v{v1}")
    o(f"v_and_b32 v{v2}, 7, v{vL}")
    o(f"v_lshl_add_u32 v{v1}, v{v2}, 4, v{v1}")
    o(f"s_lshl_b32 s{sT0}, s{sG}, 20")
    o(f"s_lshl_b32 s{sT1}, s{sJ}, 7")
    o(f"s_add_u32 s{sT0}, s{sT0}, s{sT1}")
    o(f"s_lshl_b32 s{sT1}, s{sW}, 18")
    o(f"s_add_u32 s{sT0}, s{sT0}, s{sT1}")
    o(f"v_add_u32 v{v1}, s{sT0}, v{v1}")
    dma_strip(sWO, 65536, 16, 16384)
    o("s_waitcnt vmcnt(0)")
    o("s_barrier")
    o(f"s_and_b32 s{sT0}, s{sW}, 1")
    o(f"s_lshl_b32 s{sT0}, s{sT0}, 5")
    for i in range(8):
        o(f"s_lshl_b32 s{sT2}, s{sW}, 2")
        o(f"s_add_u32 s{sT2}, s{sT2}, {i}")
        o(f"s_and_b32 s{sT2}, s{sT2}, 15")
        o(f"s_lshl_b32 s{sT2}, s{sT2}, 12")
        o(f"s_add_u32 s{sT2}, s{sT2}, s{sT0}")
        o(f"v_add_u32 v{v4}, s{sT2}, v{v3}")
        for half in range(2):
            d = 128 + (i * 2 + half) * 4
            o(f"ds_read_b64_tr_b16 {a(d,2)}, v{v4} offset:{half*2048}")
            o(f"ds_read_b64_tr_b16 {a(d+2,2)}, v{v4} offset:{half*2048+256}")
        if i % 4 == 3: o("s_waitcnt lgkmcnt(0)")
    o(f"v_lshrrev_b32 v{v3}, 2, v{vi}")
    o(f"v_lshl_add_u32 v{v3}, v{vg}, 2, v{v3}")
    o(f"v_lshlrev_b32 v{v3}, 7, v{v3}")
    o(f"v_and_b32 v{v4}, 3, v{vi}")
    o(f"v_lshl_add_u32 v{v3}, v{v4}, 3, v{v3}")
    o(f"s_lshl_b32 s{sT0}, s{sW}, 14")
    o(f"s_add_u32 s{sT0}, s{sT0}, 65536")
    o(f"v_add_u32 v{v4}, s{sT0}, v{v3}")
    for ct in range(4):
        for u in range(4):
            d = 192 + (ct * 4 + u) * 4
            o(f"ds_read_b64_tr_b16 {a(d,2)}, v{v4} offset:{u*4096+ct*32}")
            o(f"ds_read_b64_tr_b16 {a(d+2,2)}, v{v4} offset:{u*4096+2048+ct*32}")
        o("s_waitcnt lgkmcnt(0)")
    o("s_barrier")

    if hook:
        A.raw(hook)
        o(f"v_and_b32 v{vi}, 15, v{vL}"); o(f"v_lshrrev_b32 v{vg}, 4, v{vL}"); o(f"v_and_b32 v{vr}, 7, v{vL}")
    o(f"s_lshl_b32 s{sT0}, s{sW}, 12")
    o(f"v_add_u32 v{vE3}, s{sT0}, v{vL16}")
    o(f"v_lshrrev_b32 v{v1}, 1, v{vg}")
    o(f"v_lshlrev_b32 v{v1}, 8, v{v1}")
    o(f"v_lshl_add_u32 v{v1}, v{vr}, 4, v{v1}")
    o(f"s_lshr_b32 s{sT0}, s{sC}, 1")
    o(f"s_lshl_b32 s{sT0}, s{sT0}, 10")
    o(f"s_and_b32 s{sT1}, s{sW}, 1")
    o(f"s_lshl_b32 s{sT1}, s{sT1}, 9")
    o(f"s_add_u32 s{sT0}, s{sT0}, s{sT1}")
    o(f"s_and_b32 s{sT1}, s{sC}, 1")
    o(f"s_lshl_b32 s{sT1}, s{sT1}, 7")
    o(f"s_add_u32 s{sT0}, s{sT0}, s{sT1}")
    o(f"v_add_u32 v{vKMst}, s{sT0}, v{v1}")
    o(f"s_lshl_b32 s{sT0}, s{sHA}, 12")
    o(f"s_lshr_b32 s{sT1}, s{sW}, 1")
    o(f"s_lshl_b32 s{sT1}, s{sT1}, 11")
    o(f"s_add_u32 s{sT0}, s{sT0}, s{sT1}")
    o(f"v_add_u32 v{vQKst}, s{sT0}, v{vKMst}")
    o(f"s_lshl_b32 s{sT0}, s{sHA}, 11")
    o(f"s_lshl_b32 s{sT1}, s{sC}, 9")
    o(f"s_add_u32 s{sT0}, s{sT0}, s{sT1}")
    o(f"v_add_u32 v{vVst}, s{sT0}, v{vL16}")
    o(f"s_lshl_b32 s{sT0}, s{sW}, 11")
    o(f"v_add_u32 v{vVld}, s{sT0}, v{vL16}")
    o(f"s_lshl_b32 s{sT0}, s{sG}, 4")
    o(f"s_add_u32 s{sT0}, s{sT0}, s{sJ}")
    o(f"s_lshl_b32 s{sT0}, s{sT0}, 10")
    o(f"s_and_b32 s{sT1}, s{sW}, 1")
    o(f"s_lshl_b32 s{sT1}, s{sT1}, 9")
    o(f"s_add_u32 s{sT0}, s{sT0}, s{sT1}")
    o(f"s_lshr_b32 s{sT1}, s{sW}, 1")
    o(f"s_lshl_b32 s{sT1}, s{sT1}, 7")
    o(f"s_add_u32 s{sT0}, s{sT0}, s{sT1}")
    o(f"v_add_u32 v{vPst}, s{sT0}, v{v1}")
    o(f"v_lshlrev_b32 v{vPld}, 14, v{vg}")
    o(f"v_lshl_add_u32 v{vPld}, v{vi}, 4, v{vPld}")
    o(f"s_lshl_b32 s{sT0}, s{sJ}, 10")
    o(f"s_lshl_b32 s{sT1}, s{sW}, 8")
    o(f"s_add_u32 s{sT0}, s{sT0}, s{sT1}")
    o(f"v_add_u32 v{vPld}, s{sT0}, v{vPld}")
    o(f"v_add_u32 v{vMst}, s{sT0}, v{vL16}")
    o(f"v_lshlrev_b32 v{vKx}, 13, v{vi}")
    o(f"v_lshl_add_u32 v{vKx}, v{vg}, 4, v{vKx}")
    o(f"s_lshl_b32 s{sT0}, s{sHead}, 8")
    o(f"v_add_u32 v{vKx}, s{sT0}, v{vKx}")
    o(f"v_mov_b32 v{vLdsM}, v{vL16}")
    for d in range(4):
        o(f"v_mov_b32 v{vDelta+d}, 0")
        o(f"v_mov_b32 v{v1}, 0x3f80")
        o(f"v_cmp_eq_u32 vcc, {2*d}, v{vi}")
        o(f"v_cndmask_b32 v{vDelta+d}, v{vDelta+d}, v{v1}, vcc")
        o(f"v_mov_b32 v{v1}, 0x3f800000")
        o(f"v_cmp_eq_u32 vcc, {2*d+1}, v{vi}")
        o(f"v_cndmask_b32 v{vDelta+d}, v{vDelta+d}, v{v1}, vcc")
    o(f"v_mov_b32 v{v1}, 0xff800000")
    o(f"v_cmp_lt_u32 vcc, 31, v{vL}")
    o(f"v_cndmask_b32 v{vNeg}, 0, v{v1}, vcc")
    for r in range(1, 4): o(f"v_mov_b32 v{vNeg+r}, v{vNeg}")
    for r in range(4): o(f"v_mov_b32 v{vSent+r}, -1")
    o(f"s_mov_b32 s{sMaskQK}, 0xff"); o(f"s_mov_b32 s{sMaskQK+1}, 0xff")
    o(f"s_mov_b32 s{sSelV}, -1"); o(f"s_mov_b32 s{sSelV+1}, 0")
    import math
    cs = 128 ** -0.5 * math.log2(math.e)
    import struct
    o(f"s_mov_b32 s{sScale}, 0x{struct.unpack('<I', struct.pack('<f', cs))[0]:08x}")
    o(f"s_mov_b32 s{sScale+1}, s{sScale}")
    o(f"s_mov_b32 s{sLim}, 0x400000")
    o(f"s_mov_b32 s{sStep}, 0")
    def addbase(dst, off, extra_s=None):
        o(f"s_add_u32 s{dst}, s{sWS}, {off & 0xffffffff}")
        o(f"s_addc_u32 s{dst+1}, s{sWS+1}, 0")
        if extra_s is not None:
            o(f"s_add_u32 s{dst}, s{dst}, s{extra_s}")
            o(f"s_addc_u32 s{dst+1}, s{dst+1}, 0")
    o(f"s_lshl_b32 s{sT0}, s{sHead}, 13")
    o(f"s_add_u32 s{sT0}, s{sT0}, 4096")
    addbase(sKX, WS_K, sT0)
    o(f"s_lshl_b32 s{sT0}, s{sHead}, 13")
    o(f"s_add_u32 s{sT0}, s{sT0}, 4096")
    addbase(sVX, WS_VT, sT0)
    o(f"s_lshl_b32 s{sT0}, s{sHead}, 11")
    addbase(sKM, WS_KM, sT0)
    addbase(sVM, WS_VM, sT0)
    sCNT = 16
    addbase(sCNT, WS_CNT + cntoff)
    def kv_wait(chunk_sreg_expr_setup, target, tag):
        o(f"s_lshl_b32 s{sT0}, s{sT0}, 3"); o(f"s_add_u32 s{sT0}, s{sT0}, s{sG}"); o(f"s_lshl_b32 s{sT0}, s{sT0}, 7")
        o(f"v_mov_b32 v{vX+2}, s{sT0}")
        A.label(f"L_kvw_{tag}")
        o(f"global_load_dword v{vX+3}, v{vX+2}, {s(sCNT,2)} sc1")
        o("s_waitcnt vmcnt(0)")
        o(f"v_readfirstlane_b32 s{sT1}, v{vX+3}")
        o(f"s_cmp_ge_u32 s{sT1}, {target}")
        o(f"s_cbranch_scc1 L_kvw_{tag}_ok")
        o("s_sleep 4")
        o(f"s_sub_u32 s{sLim}, s{sLim}, 1")
        o(f"s_cbranch_scc0 L_kvw_{tag}")
        o(f"s_mov_b32 s{sLim}, 0")
        A.label(f"L_kvw_{tag}_ok")
    sEC = 94
    def gpoll(base, tag, sleep=12, allwaves=False):
        if not allwaves:
            o(f"s_cmp_lg_u32 s{sW}, 0"); o(f"s_cbranch_scc1 L_gp_{tag}_ok")
        o(f"v_mov_b32 v{vX+2}, s{sT0}")
        A.label(f"L_gp_{tag}")
        o(f"global_load_dword v{vX+3}, v{vX+2}, {s(base,2)} sc1")
        o("s_waitcnt vmcnt(0)")
        o(f"v_readfirstlane_b32 s{sT1}, v{vX+3}")
        o(f"s_cmp_ge_u32 s{sT1}, s{sT2}")
        o(f"s_cbranch_scc1 L_gp_{tag}_ok")
        o(f"s_sleep {sleep}")
        o(f"s_sub_u32 s{sLim}, s{sLim}, 1")
        o(f"s_cbranch_scc0 L_gp_{tag}")
        o(f"s_mov_b32 s{sLim}, 0")
        A.label(f"L_gp_{tag}_ok")
        if not allwaves: o("s_barrier")
    if KVCHK and not EARLY:
        o(f"s_mov_b32 s{sT0}, 0")
        kv_wait(None, 16, "0")
    if KVCHK and EARLY:
        o(f"s_mov_b32 s{sT0}, {EC_FILL*4}"); o(f"s_mov_b32 s{sT2}, 128"); gpoll(sEC, "f")
        o(f"s_lshl_b32 s{sT0}, s{sG}, 2"); o(f"s_add_u32 s{sT0}, s{sT0}, {EC_KVH0*4}"); o(f"s_mov_b32 s{sT2}, 16"); gpoll(sEC, "0")
    def load_kx():
        for t in range(8):
            o(f"global_load_dwordx4 {v(vK+t*4,4)}, v{vL16}, {s(sKX,2)} offset:{t*1024-4096}")
    load_kx()
    if prof:
        o(f"s_lshl_b32 s{sT0}, s{sG}, 4")
        o(f"s_add_u32 s{sT0}, s{sT0}, s{sJ}")
        o(f"s_lshl_b32 s{sT0}, s{sT0}, 2")
        o(f"s_add_u32 s{sT0}, s{sT0}, s{sW}")
        o(f"s_lshl_b32 s{sT0}, s{sT0}, 12")
        addbase(sProf, WS_PROF, sT0)
    nst = [0]
    def stamp():
        if not prof: return
        k = nst[0]; nst[0] += 1
        o(f"{TIMER} {s(sTs + 2*k, 2)}")

    def check(regs, lab_ok, lab_retry, tmp):
        regs = list(regs)
        o(f"v_max3_u32 v{tmp}, v{regs[0]}, v{regs[1]}, v{regs[2]}")
        k = 3
        while k + 1 < len(regs):
            o(f"v_max3_u32 v{tmp}, v{tmp}, v{regs[k]}, v{regs[k+1]}"); k += 2
        if k < len(regs):
            o(f"v_max_u32 v{tmp}, v{tmp}, v{regs[k]}")
        o(f"v_cmp_eq_u32 vcc, -1, v{tmp}")
        o(f"s_cbranch_vccz {lab_ok}")
        o(f"s_sub_u32 s{sLim}, s{sLim}, 1")
        o(f"s_cbranch_scc1 {lab_ok}_to")
        o(f"s_branch {lab_retry}")
        A.label(f"{lab_ok}_to")
        o(f"s_mov_b32 s{sLim}, 0")
        A.label(lab_ok)


    sCnt = 98
    vOo = [112, 116, 120, 124, 192, 196, 200, 204, 216, 220, 224, 228]
    vPf = 252
    def merge(main, side, every, start=0):
        side = list(side); out = [];
        for k, m_ in enumerate(main):
            out.append(m_)
            if side and k >= start and (k - start) % every == every - 1: out.append(side.pop(0))
        return out + side
    def emit(L):
        for x in L: o(x)
    def check(regs, lab_ok, lab_retry, tmp, cnt=None):
        regs = list(regs)
        o(f"v_max3_u32 v{tmp}, v{regs[0]}, v{regs[1]}, v{regs[2]}")
        k = 3
        while k + 1 < len(regs):
            o(f"v_max3_u32 v{tmp}, v{tmp}, v{regs[k]}, v{regs[k+1]}"); k += 2
        if k < len(regs):
            o(f"v_max_u32 v{tmp}, v{tmp}, v{regs[k]}")
        o(f"v_cmp_eq_u32 vcc, -1, v{tmp}")
        o(f"s_cbranch_vccz {lab_ok}")
        if prof and cnt is not None: o(f"s_add_u32 s{sCnt+cnt}, s{sCnt+cnt}, 1")
        o(f"s_sub_u32 s{sLim}, s{sLim}, 1")
        o(f"s_cbranch_scc0 {lab_retry}")
        o(f"s_mov_b32 s{sLim}, 0")
        A.label(lab_ok)
    sM = 88
    def mpoll(loads, tag, cnt):
        n = len(loads)
        regs = [b + r for b, _ in loads for r in range(4)]
        o(f"v_max3_u32 v{vX}, v{regs[0]}, v{regs[1]}, v{regs[2]}")
        k = 3
        while k + 1 < len(regs):
            o(f"v_max3_u32 v{vX}, v{vX}, v{regs[k]}, v{regs[k+1]}"); k += 2
        if k < len(regs): o(f"v_max_u32 v{vX}, v{vX}, v{regs[k]}")
        o(f"v_cmp_eq_u32 vcc, -1, v{vX}")
        o(f"s_cbranch_vccz L_{tag}_ok")
        A.label(f"L_{tag}_retry")
        if prof: o(f"s_add_u32 s{sCnt+cnt}, s{sCnt+cnt}, 1")
        for i, (b, rest) in enumerate(loads):
            o(f"v_max3_u32 v{vX}, v{b}, v{b+1}, v{b+2}")
            o(f"v_max_u32 v{vX}, v{vX}, v{b+3}")
            o(f"v_cmp_eq_u32 vcc, -1, v{vX}")
            o(f"s_cbranch_vccz L_{tag}_sk{i}")
            o("s_mov_b64 exec, vcc")
            o(f"global_load_dwordx4 {v(b,4)}, {rest}")
            o("s_mov_b64 exec, -1")
            A.label(f"L_{tag}_sk{i}")
        o("s_waitcnt vmcnt(0)")
        o(f"v_max3_u32 v{vX}, v{regs[0]}, v{regs[1]}, v{regs[2]}")
        k = 3
        while k + 1 < len(regs):
            o(f"v_max3_u32 v{vX}, v{vX}, v{regs[k]}, v{regs[k+1]}"); k += 2
        if k < len(regs): o(f"v_max_u32 v{vX}, v{vX}, v{regs[k]}")
        o(f"v_cmp_eq_u32 vcc, -1, v{vX}")
        o(f"s_cbranch_vccz L_{tag}_ok")
        o(f"s_sub_u32 s{sLim}, s{sLim}, 1")
        o(f"s_cbranch_scc0 L_{tag}_retry")
        o(f"s_mov_b32 s{sLim}, 0")
        A.label(f"L_{tag}_ok")
    if prof:
        for k in range(4): o(f"s_mov_b32 s{sCnt+k}, 0")
    vPfo = 58
    o(f"s_lshl_b32 s{sT1}, s{sG}, 2"); o(f"s_add_u32 s{sT1}, s{sT1}, s{sHA}"); o(f"s_lshl_b32 s{sT1}, s{sT1}, 13")
    o(f"s_lshl_b32 s{sT2}, s{sC}, 11"); o(f"s_add_u32 s{sT1}, s{sT1}, s{sT2}")
    o(f"s_and_b32 s{sT2}, s{sW}, 1"); o(f"s_lshl_b32 s{sT2}, s{sT2}, 10"); o(f"s_add_u32 s{sT1}, s{sT1}, s{sT2}")
    o(f"v_add_u32 v{vPfo}, s{sT1}, v{vL16}")
    o(f"s_cmp_lt_u32 s{sW}, 2")
    sPF = 18
    o(f"s_mov_b32 s{sT0}, {WS_K + 2*262144}")
    o(f"s_mov_b32 s{sT1}, {WS_VT + 2*262144}")
    o(f"s_cselect_b32 s{sT0}, s{sT0}, s{sT1}")
    o(f"s_add_u32 s{sPF}, s{sWS}, s{sT0}"); o(f"s_addc_u32 s{sPF+1}, s{sWS+1}, 0")
    def kx_loads():
        if NOK: return ["s_nop 0"] * 8
        return [f"global_load_dwordx4 {v(vK+t*4,4)}, v{vL16}, {s(sKX,2)} offset:{t*1024-4096}" for t in range(8)]
    def vx_loads():
        if NOV: return ["s_nop 0"] * 8
        return [f"global_load_dwordx4 {v(vV+4*t,4)}, v{vL16}, {s(sVX,2)} offset:{t*1024-4096}" for t in range(8)]
    vRd = [None, 232, 233, 234]
    for hs in (1, 2, 3):
        o(f"v_add_u32 v{vRd[hs]}, {hs*4096}, v{vE3}")
        o(f"v_and_b32 v{vRd[hs]}, 0x3fff, v{vRd[hs]}")
    vVw, vVr, vRw = 235, 59, 15
    o(f"s_lshl_b32 s{sT0}, s{sW}, 10")
    o(f"v_add_u32 v{vVw}, s{sT0}, v{vL16}")
    o(f"v_and_b32 v{vVr}, 31, v{vL}")
    o(f"v_lshlrev_b32 v{vVr}, 4, v{vVr}")
    o(f"v_lshrrev_b32 v{vX+2}, 5, v{vL}")
    o(f"v_lshl_add_u32 v{vVr}, v{vX+2}, 10, v{vVr}")
    vL4 = vX + 3
    o(f"v_lshlrev_b32 v{vL4}, 2, v{vL}")
    o(f"s_lshl_b32 s{sT0}, s{sW}, 8")
    o(f"v_add_u32 v{vRw}, s{sT0}, v{vL4}")
    vRr = [None, 1, 2, 3]
    for hs in (1, 2, 3):
        o(f"s_add_u32 s{sT0}, s{sW}, {hs}"); o(f"s_and_b32 s{sT0}, s{sT0}, 3"); o(f"s_lshl_b32 s{sT0}, s{sT0}, 8")
        o(f"v_add_u32 v{vRr[hs]}, s{sT0}, v{vL4}")
    vOnes = 4
    for r in range(4): o(f"v_mov_b32 v{vOnes+r}, 0x3f803f80")

    LDS_R = 36864
    A.label("L_step")
    nst[0] = 0
    if KVCHK:
        if FILL2 is not None:
            o(f"s_cmp_lg_u32 s{sStep}, 6"); o("s_cbranch_scc1 L_kvf2")
            o(f"s_mov_b32 s{sT0}, {FILL2}"); o(f"s_mov_b32 s{sT2}, 128"); gpoll(sCNT, "l2", 4)
            A.label("L_kvf2")
        if EARLY:
            o(f"s_cmp_lg_u32 s{sStep}, 2"); o("s_cbranch_scc1 L_kvn2")
            o(f"s_lshl_b32 s{sT0}, s{sG}, 2"); o(f"s_add_u32 s{sT0}, s{sT0}, {EC_KVH1*4}"); o(f"s_mov_b32 s{sT2}, 16"); gpoll(sEC, "h1", 4)
            A.label("L_kvn2")
            o(f"s_cmp_lg_u32 s{sStep}, 6"); o("s_cbranch_scc1 L_kvn6")
            o(f"s_mov_b32 s{sT0}, {EC_FILL2*4}"); o(f"s_mov_b32 s{sT2}, 128"); gpoll(sEC, "f2", 4)
            A.label("L_kvn6")
        o(f"s_add_u32 s{sT0}, s{sStep}, 2"); o(f"s_and_b32 s{sT1}, s{sT0}, 7"); o(f"s_cmp_lg_u32 s{sT1}, 0"); o("s_cbranch_scc1 L_kvskip")
        o(f"s_cmp_ge_u32 s{sT0}, 64"); o("s_cbranch_scc1 L_kvskip")
        o(f"s_lshr_b32 s{sT0}, s{sT0}, 3")
        if EARLY:
            o(f"s_cmp_eq_u32 s{sT0}, 1"); o(f"s_cselect_b32 s{sT2}, 16, 4")
        else:
            o(f"s_mov_b32 s{sT2}, 4")
        o(f"v_readfirstlane_b32 s{sT1}, v{vFlag}")
        o(f"s_cmp_ge_u32 s{sT1}, s{sT2}"); o("s_cbranch_scc1 L_kvskip")
        o(f"s_lshl_b32 s{sT0}, s{sT0}, 3"); o(f"s_add_u32 s{sT0}, s{sT0}, s{sG}"); o(f"s_lshl_b32 s{sT0}, s{sT0}, 7")
        gpoll(sCNT, "n", 4, allwaves=True)
        A.label("L_kvskip")
    o(f"s_and_b32 s{sSlot}, s{sStep}, 3")
    o(f"s_lshl_b32 s{sT0}, s{sSlot}, 17")
    o(f"s_lshl_b32 s{sT1}, s{sG}, 14")
    o(f"s_add_u32 s{sT2}, s{sT0}, s{sT1}")
    addbase(sMEMc, WS_RMEM, sT2)
    e3_loads = [(vB + 4*u, f"v{vE3}, {s(sMEMc,2)} offset:{u*1024} sc1") for u in range(4)]
    def qk_mfma(i, first=False):
        for half, acc in ((0, vA0), (1, vA1)):
            c = "0" if first else v(acc, 4)
            o(f"v_mfma_f32_16x16x32_bf16 {v(acc,4)}, {a((i*2+half)*4,4)}, {v(vB+4*i,4)}, {c}")
    def salu_bases():
        addbase(sQK, WS_RQK, sT2)
        o(f"s_lshl_b32 s{sT3}, s{sStep}, 17")
        addbase(sPART, WS_PARTF, sT3)
        o(f"s_add_u32 s{sPART2}, s{sPART}, 65536"); o(f"s_addc_u32 s{sPART2+1}, s{sPART+1}, 0")
        o(f"s_lshr_b32 s{sT3}, s{sT2}, 1")
        addbase(sVR, WS_RV, sT3)
        o(f"s_add_u32 s{sT3}, s{sStep}, 1"); o(f"s_and_b32 s{sT3}, s{sT3}, 3"); o(f"s_lshl_b32 s{sT3}, s{sT3}, 17"); o(f"s_add_u32 s{sT3}, s{sT3}, s{sT1}")
        addbase(sMEMn, WS_RMEM, sT3)
        o(f"s_xor_b32 s{sT3}, s{sT0}, {2<<17}")
        o(f"s_add_u32 s{sT3}, s{sT3}, s{sT1}")
        addbase(sRq, WS_RQK, sT3)
        o(f"s_lshr_b32 s{sT3}, s{sT3}, 1")
        addbase(sRv, WS_RV, sT3)
        o(f"s_add_u32 s{sT3}, s{sStep}, 3"); o(f"s_and_b32 s{sT3}, s{sT3}, 3"); o(f"s_lshl_b32 s{sT3}, s{sT3}, 17"); o(f"s_add_u32 s{sT3}, s{sT3}, s{sT1}")
        addbase(sRm, WS_RMEM, sT3)
    def simple_poll(loads, tag, cnt, first_wait):
        regs = [b + r for b, _ in loads for r in range(4)]
        o(f"s_waitcnt vmcnt({first_wait})")
        o(f"s_branch L_{tag}_c")
        A.label(f"L_{tag}_r")
        for b, rest in loads: o(f"global_load_dwordx4 {v(b,4)}, {rest}")
        o("s_waitcnt vmcnt(0)")
        A.label(f"L_{tag}_c")
        check(regs, f"L_{tag}_ok", f"L_{tag}_r", vX, cnt)
    if E3_SALU_FIRST: salu_bases()
    stamp()
    for b, rest in e3_loads: o(f"global_load_dwordx4 {v(b,4)}, {rest}")
    if not E3_SALU_FIRST: salu_bases()
    simple_poll(e3_loads, "e3", 0, 0)
    if SIG:
        o(f"s_sub_u32 s{sT3}, s{sStep}, 1"); o(f"s_cbranch_scc1 L_nosig")
        o(f"s_and_b32 s{sT0}, s{sT3}, 15"); o(f"s_cmp_lg_u32 s{sT0}, s{sJ}"); o("s_cbranch_scc1 L_nosig")
        o(f"s_lshl_b32 s{sT0}, s{sT3}, 7"); o(f"s_add_u32 s{sT0}, s{sT0}, {CNT_REC}")
        o(f"v_mov_b32 v{vX+2}, s{sT0}"); o(f"v_mov_b32 v{vX+3}, 1")
        o("s_mov_b64 exec, 1")
        o(f"global_atomic_add v{vX+2}, v{vX+3}, {s(sCNT,2)}")
        o("s_mov_b64 exec, -1")
        A.label("L_nosig")
    for u, (b, rest) in enumerate(e3_loads):
        o(f"ds_write_b128 v{vE3}, {v(b,4)} offset:{LDS_MEM + u*1024}")
    for u in range(4): qk_mfma(u, first=(u == 0))
    stamp()
    o("s_waitcnt lgkmcnt(0)")
    o("s_barrier")
    for i in range(4, 16):
        o(f"ds_read_b128 {v(vB+4*i,4)}, v{vRd[i//4]} offset:{LDS_MEM + (i%4)*1024}")
    vxl = vx_loads()
    for i in range(4, 16):
        o(f"s_waitcnt lgkmcnt({15-i})")
        qk_mfma(i)
        if i % VSP == VSP - 1 and vxl: o(vxl.pop(0))
    stamp()
    for r in range(4):
        o(f"v_add_f32_dpp v{vA0+r}, v{vA1+r}, v{vA0+r} row_ror:8 row_mask:0xf bank_mask:0xf")
    R = vX + 4
    o(f"v_cvt_pk_bf16_f32 v{R}, v{vA0}, v{vA0+1}")
    o(f"v_cvt_pk_bf16_f32 v{R+1}, v{vA0+2}, v{vA0+3}")
    o(f"v_permlane16_swap_b32 v{R}, v{R+2}")
    o(f"v_permlane16_swap_b32 v{R+1}, v{R+3}")
    o(f"s_mov_b64 exec, {s(sMaskQK,2)}")
    o(f"global_store_dwordx4 v{vQKst}, {v(R,4)}, {s(sQK,2)}{st_fast}")
    o("s_mov_b64 exec, -1")
    stamp()
    e1_loads = [(vQ + 4*cp, f"v{vE3}, {s(sQK,2)} offset:{cp*1024} sc1") for cp in range(2)] + [(vKm + 4*cp, f"v{vE3}, {s(sQK,2)} offset:{2048+cp*1024} sc1") for cp in range(2)]
    def e1_issue():
        for b, rest in e1_loads: o(f"global_load_dwordx4 {v(b,4)}, {rest}")
    for i in range(8):
        for half, acc in ((0, vAv0), (1, vAv1)):
            c = "0" if i == 0 else v(acc, 4)
            o(f"v_mfma_f32_16x16x32_bf16 {v(acc,4)}, {v(vB+4*i,4)}, {a(128+(i*2+half)*4,4)}, {c}")
        if vxl and i % 2 == 1: o(vxl.pop(0))
        if i == E1_AT:
            emit(vxl); vxl = []
            e1_issue()
    emit(vxl)
    for r in range(4):
        o(f"v_cndmask_b32 v{vAv0+r}, v{vAv1+r}, v{vAv0+r}, {s(sSelV,2)}")
    o(f"ds_write_b128 v{vVw}, {v(vAv0,4)} offset:{LDS_V}")
    o("s_waitcnt lgkmcnt(0)")
    o("s_barrier")
    o(f"s_cmp_lg_u32 s{sW}, 0")
    o("s_cbranch_scc1 L_vred_skip")
    T = vA0
    for k, off in enumerate((0, 512, 2048, 2560)):
        o(f"ds_read_b128 {v(T+4*k,4)}, v{vVr} offset:{LDS_V+off}")
    o("s_waitcnt lgkmcnt(0)")
    for r in range(4):
        o(f"v_add_f32 v{T+r}, v{T+r}, v{T+4+r}")
        o(f"v_add_f32 v{T+8+r}, v{T+8+r}, v{T+12+r}")
    for r in range(4):
        o(f"v_add_f32 v{T+r}, v{T+r}, v{T+8+r}")
    o(f"v_cvt_pk_bf16_f32 v{R}, v{T}, v{T+1}")
    o(f"v_cvt_pk_bf16_f32 v{R+1}, v{T+2}, v{T+3}")
    o(f"v_permlane32_swap_b32 v{R}, v{R+2}")
    o(f"v_permlane32_swap_b32 v{R+1}, v{R+3}")
    o(f"s_mov_b64 exec, {s(sSelV,2)}")
    o(f"global_store_dwordx4 v{vVst}, {v(R,4)}, {s(sVR,2)}{st_fast}")
    o("s_mov_b64 exec, -1")
    o("s_waitcnt vmcnt(1)")
    o("s_branch L_e1_c")
    A.label("L_e1_r")
    e1_issue()
    A.label("L_vred_skip")
    o("s_waitcnt vmcnt(0)")
    A.label("L_e1_c")
    check([b + r for b, _ in e1_loads for r in range(4)], "L_e1_ok", "L_e1_r", vX, 1)
    stamp()
    def M32(d, A_, B_, C_): return f"v_mfma_f32_16x16x32_bf16 {v(d,4)}, {A_}, {B_}, {C_}"
    def rot(dst, srcr): return [f"v_mov_b32_dpp v{dst+r}, v{srcr+r} row_ror:8 row_mask:0xf bank_mask:0xf" for r in range(4)]
    Kf = lambda kt, u: v(vK + (kt*4+u)*4, 4)
    seq = []
    seq += [M32(vSx, Kf(0,0), v(vQ,4), "0")] + rot(vQr, vQ)[:2]
    seq += [M32(vSx+4, Kf(1,0), v(vQ,4), "0")] + rot(vQr, vQ)[2:]
    seq += [M32(vSm, v(vKm,4), v(vQ,4), v(vNeg,4))] + rot(vQr+4, vQ+4)[:2]
    seq += [M32(vSx, Kf(0,2), v(vQ+4,4), v(vSx,4))] + rot(vQr+4, vQ+4)[2:]
    seq += [M32(vSx+4, Kf(1,2), v(vQ+4,4), v(vSx+4,4))] + rot(vKr, vKm)[:2]
    seq += [M32(vSm, v(vKm+4,4), v(vQ+4,4), v(vSm,4))] + rot(vKr, vKm)[2:]
    seq += [M32(vSx, Kf(0,1), v(vQr,4), v(vSx,4))] + rot(vKr+4, vKm+4)[:2]
    seq += [M32(vSx+4, Kf(1,1), v(vQr,4), v(vSx+4,4))] + rot(vKr+4, vKm+4)[2:]
    seq += [M32(vSx, Kf(0,3), v(vQr+4,4), v(vSx,4))]
    seq += [M32(vSx+4, Kf(1,3), v(vQr+4,4), v(vSx+4,4))]
    seq += [M32(vSm, v(vKr,4), v(vQr,4), v(vSm,4))]
    seq += [M32(vSm, v(vKr+4,4), v(vQr+4,4), v(vSm,4))]
    emit(seq)
    if not FIXKV:
        o(f"s_add_u32 s{sKX}, s{sKX}, 262144"); o(f"s_addc_u32 s{sKX+1}, s{sKX+1}, 0")
    vm_loads = [(vVm + 4*mm, f"v{vVld}, {s(sVR,2)} offset:{mm*1024} sc1") for mm in range(2)]
    for b, rest in vm_loads: o(f"global_load_dwordx4 {v(b,4)}, {rest}")
    if PF and PFE: o(f"global_load_dwordx4 {v(vPf,4)}, v{vPfo}, {s(sPF,2)}")
    m, t = vX + 1, vX + 2
    Sall = list(range(vSx, vSx + 8)) + list(range(vSm, vSm + 4))
    m2 = vX + 3
    o(f"v_max3_f32 v{m}, v{Sall[0]}, v{Sall[1]}, v{Sall[2]}")
    o(f"v_max3_f32 v{m2}, v{Sall[4]}, v{Sall[5]}, v{Sall[6]}")
    o(f"v_max3_f32 v{m}, v{m}, v{Sall[3]}, v{Sall[7]}")
    o(f"v_max3_f32 v{m2}, v{m2}, v{Sall[8]}, v{Sall[9]}")
    o(f"v_max3_f32 v{m}, v{m}, v{Sall[10]}, v{Sall[11]}")
    o(f"v_max_f32 v{m}, v{m}, v{m2}")
    for sw in ("16", "32"):
        o(f"v_mov_b32 v{t}, v{m}")
        o(f"v_permlane{sw}_swap_b32 v{m}, v{t}")
        o(f"v_max_f32 v{m}, v{m}, v{t}")
    mm_ = vX + 2
    o(f"v_mul_f32 v{mm_}, s{sScale}, v{m}")
    kxl = kx_loads()
    main = []
    for r in Sall[::2]: main.append(f"v_pk_fma_f32 {v(r,2)}, {v(r,2)}, {s(sScale,2)}, {v(mm_,2)} op_sel_hi:[1,1,0] neg_lo:[0,0,1] neg_hi:[0,0,1]")
    for k_, r in enumerate(Sall):
        main.append(f"v_exp_f32 v{r}, v{r}")
    emit(merge(main, [kxl.pop(0), kxl.pop(0)], 7))
    o(f"v_cvt_pk_bf16_f32 v{vPx}, v{vSx}, v{vSx+1}")
    o(f"v_cvt_pk_bf16_f32 v{vPx+1}, v{vSx+2}, v{vSx+3}")
    o(f"v_cvt_pk_bf16_f32 v{vPx+2}, v{vSx+4}, v{vSx+5}")
    o(f"v_cvt_pk_bf16_f32 v{vPx+3}, v{vSx+6}, v{vSx+7}")
    o(f"v_cvt_pk_bf16_f32 v{vPmA}, v{vSm}, v{vSm+1}")
    o(f"v_cvt_pk_bf16_f32 v{vPmA+1}, v{vSm+2}, v{vSm+3}")
    stamp()
    vLs = vSx
    pv = [M32(vO+4*tt, v(vV+4*tt,4), v(vPx,4), "0") for tt in range(8)]
    side = [f"v_mov_b32 v{vX+4}, v{vPmA}", f"v_mov_b32 v{vX+5}, v{vPmA+1}", f"v_mov_b32 v{vPmB}, 0", f"v_mov_b32 v{vPmB+1}, 0",
            f"v_permlane32_swap_b32 v{vPmB}, v{vX+4}", f"v_permlane32_swap_b32 v{vPmB+1}, v{vX+5}", kxl.pop(0)]
    emit(merge(pv, side, 1))
    o(M32(vLs, v(vOnes,4), v(vPx,4), "0"))
    o(f"v_mfma_f32_16x16x16_bf16 {v(vLs,4)}, {v(vOnes,2)}, {v(vPmA,2)}, {v(vLs,4)}")
    simple_poll(vm_loads, "vm", 2, 4 if (PF and PFE) else 3)
    stamp()
    if KVCHK:
        o(f"s_add_u32 s{sT0}, s{sStep}, 3"); o(f"s_and_b32 s{sT1}, s{sT0}, 7"); o(f"s_cmp_lg_u32 s{sT1}, 0"); o("s_cbranch_scc1 L_nofl")
        o(f"s_lshr_b32 s{sT0}, s{sT0}, 3"); o(f"s_lshl_b32 s{sT0}, s{sT0}, 3"); o(f"s_add_u32 s{sT0}, s{sT0}, s{sG}"); o(f"s_lshl_b32 s{sT0}, s{sT0}, 7")
        o(f"v_mov_b32 v{vFlag}, s{sT0}")
        o(f"global_load_dword v{vFlag}, v{vFlag}, {s(sCNT,2)} sc1")
        A.label("L_nofl")
    o(f"s_and_b32 s{sT0}, s{sStep}, 15"); o(f"s_cmp_lg_u32 s{sT0}, s{sJ}"); o("s_cbranch_scc1 L_nopub")
    for cp in range(2): o(f"global_store_dwordx4 v{vL16}, {v(vKm+4*cp,4)}, {s(sKM,2)} offset:{cp*1024}" + (" sc1" if SIG else ""))
    for cp in range(2): o(f"global_store_dwordx4 v{vL16}, {v(vVm+4*cp,4)}, {s(sVM,2)} offset:{cp*1024}" + (" sc1" if SIG else ""))
    A.label("L_nopub")
    if LAST_SHORT:
        o(f"s_cmp_eq_u32 s{sStep}, {nsteps-1}")
        o("s_cbranch_scc1 L_rec_last")
    if PF and not PFE: o(f"global_load_dwordx4 {v(vPf,4)}, v{vPfo}, {s(sPF,2)}")
    def pvm(tt):
        c, tv = tt >> 1, tt & 1
        pm = vPmB if (c & 1) else vPmA
        return f"v_mfma_f32_16x16x16_bf16 {v(vO+4*tt,4)}, {v(vVm+4*(c>>1)+2*tv,2)}, {v(pm,2)}, {v(vO+4*tt,4)}"
    def cvt(tt):
        u, h = tt >> 1, tt & 1
        return [f"v_cvt_pk_bf16_f32 v{vOb+4*u+2*h}, v{vO+4*tt}, v{vO+4*tt+1}", f"v_cvt_pk_bf16_f32 v{vOb+4*u+2*h+1}, v{vO+4*tt+2}, v{vO+4*tt+3}"]
    vCa = [16, 20, 24, 28]
    for tt in range(3): o(pvm(tt))
    l_ = vX + 1
    def cm(ct, u):
        c = "0" if u == 0 else v(vCa[ct], 4)
        return f"v_mfma_f32_16x16x32_bf16 {v(vCa[ct],4)}, {a(192+(ct*4+u)*4,4)}, {v(vOb+4*u,4)}, {c}"
    pend = []
    for tt in range(8):
        if tt + 3 < 8: o(pvm(tt + 3))
        cv = cvt(tt)
        o(cv[0])
        if pend: o(pend.pop(0))
        o(cv[1])
        if pend: o(pend.pop(0))
        if tt == 0: o(f"v_rcp_f32 v{l_}, v{vLs}")
        if tt % 2 == 1:
            pend += [cm(ct, tt >> 1) for ct in range(4)]
            if kxl: o(kxl.pop(0))
    emit(pend)
    for ct in range(4):
        pass
    o(f"v_mov_b32 v{vX+2}, v{l_}")
    for ct in range(4):
        o(f"v_pk_mul_f32 {v(vCa[ct],2)}, {v(vCa[ct],2)}, {v(vX+2,2)} op_sel_hi:[1,0]")
        o(f"v_pk_mul_f32 {v(vCa[ct]+2,2)}, {v(vCa[ct]+2,2)}, {v(vX+2,2)} op_sel_hi:[1,0]")
        o(f"ds_write_b128 v{vVw}, {v(vCa[ct],4)} offset:{LDS_O+ct*4096}")
    while kxl: o(kxl.pop(0))
    o("s_waitcnt lgkmcnt(0)")
    o("s_barrier")
    stamp()
    Rr = [112, 116, 120, 124]
    for sw in range(4): o(f"ds_read_b128 {v(Rr[sw],4)}, v{vE3} offset:{LDS_O+sw*1024}")
    vC = Rr[0]
    o("s_waitcnt lgkmcnt(2)")
    o(f"v_pk_add_f32 {v(Rr[0],2)}, {v(Rr[0],2)}, {v(Rr[1],2)}"); o(f"v_pk_add_f32 {v(Rr[0]+2,2)}, {v(Rr[0]+2,2)}, {v(Rr[1]+2,2)}")
    o("s_waitcnt lgkmcnt(0)")
    o(f"v_pk_add_f32 {v(Rr[2],2)}, {v(Rr[2],2)}, {v(Rr[3],2)}"); o(f"v_pk_add_f32 {v(Rr[2]+2,2)}, {v(Rr[2]+2,2)}, {v(Rr[3]+2,2)}")
    o(f"v_pk_add_f32 {v(Rr[0],2)}, {v(Rr[0],2)}, {v(Rr[2],2)}"); o(f"v_pk_add_f32 {v(Rr[0]+2,2)}, {v(Rr[0]+2,2)}, {v(Rr[2]+2,2)}")
    o(f"v_cvt_pk_bf16_f32 v{R}, v{vC}, v{vC+1}")
    o(f"v_cvt_pk_bf16_f32 v{R+1}, v{vC+2}, v{vC+3}")
    o(f"v_permlane16_swap_b32 v{R}, v{R+2}")
    o(f"v_permlane16_swap_b32 v{R+1}, v{R+3}")
    o(f"s_mov_b64 exec, {s(sMaskQK,2)}")
    if EP == 2:
        o("s_waitcnt vmcnt(0)")
        o(f"{TIMER} {s(sTs + 2*5, 2)}")
    o(f"global_store_dwordx4 v{vPst}, {v(R,4)}, {s(sPART,2)} sc1")
    stamp()
    if EP == 2:
        o("s_waitcnt vmcnt(0)")
        o(f"{TIMER} {s(sTs + 2*4, 2)}")
    o(f"global_store_dwordx4 v{vQKst}, {v(vSent,4)}, {s(sRq,2)}{st_fast}")
    o(f"s_mov_b64 exec, 0xffff")
    o(f"global_store_dwordx4 v{vMst}, {v(vSent,4)}, {s(sRm,2)}{st_fast}")
    o(f"s_cmp_lg_u32 s{sW}, 0")
    o("s_cbranch_scc1 L_norv")
    o(f"s_mov_b64 exec, {s(sSelV,2)}")
    o(f"global_store_dwordx4 v{vVst}, {v(vSent,4)}, {s(sRv,2)}{st_fast}")
    A.label("L_norv")
    o("s_mov_b64 exec, -1")
    if not FIXKV:
        o(f"s_add_u32 s{sVX}, s{sVX}, 262144"); o(f"s_addc_u32 s{sVX+1}, s{sVX+1}, 0")
    o(f"s_add_u32 s{sKM}, s{sKM}, 65536"); o(f"s_addc_u32 s{sKM+1}, s{sKM+1}, 0")
    o(f"s_add_u32 s{sVM}, s{sVM}, 65536"); o(f"s_addc_u32 s{sVM+1}, s{sVM+1}, 0")
    if E2_DELAY: o(f"s_sleep {E2_DELAY}")
    sets = [vB + 8 * k for k in range(E2_DEPTH)]
    def e2_issue(b):
        o(f"global_load_dwordx4 {v(b,4)}, v{vPld}, {s(sPART,2)} {E2F}")
        o(f"global_load_dwordx4 {v(b+4,4)}, v{vPld}, {s(sPART2,2)} {E2F}")
    if EP: o(f"{TIMER} {s(sTs + 2*2, 2)}")
    for k, b in enumerate(sets):
        e2_issue(b)
        if k + 1 < len(sets) and E2_SP: o(f"s_sleep {E2_SP}")
    if EP:
        o(f"s_waitcnt vmcnt({2*(len(sets)-1)})")
        o(f"{TIMER} {s(sTs + 2*3, 2)}")
    A.label("L_e2")
    for k, b in enumerate(sets):
        o(f"s_waitcnt vmcnt({2*(len(sets)-1)})")
        regs = list(range(b, b + 8))
        o(f"v_max3_u32 v{vX}, v{regs[0]}, v{regs[1]}, v{regs[2]}")
        o(f"v_max3_u32 v{vX}, v{vX}, v{regs[3]}, v{regs[4]}")
        o(f"v_max3_u32 v{vX}, v{vX}, v{regs[5]}, v{regs[6]}")
        o(f"v_max_u32 v{vX}, v{vX}, v{regs[7]}")
        o(f"v_cmp_eq_u32 vcc, -1, v{vX}")
        o(f"s_cbranch_vccz L_e2_ok{k}")
        if prof: o(f"s_add_u32 s{sCnt+3}, s{sCnt+3}, 1")
        e2_issue(b)
    o(f"s_sub_u32 s{sLim}, s{sLim}, 1")
    o(f"s_cbranch_scc0 L_e2")
    o(f"s_mov_b32 s{sLim}, 0")
    D = vA1
    for k, b in enumerate(sets):
        A.label(f"L_e2_ok{k}")
        o(f"v_mfma_f32_16x16x32_bf16 {v(D,4)}, {v(vDelta,4)}, {v(b,4)}, 0")
        o(f"v_mfma_f32_16x16x32_bf16 {v(D,4)}, {v(vDelta,4)}, {v(b+4,4)}, {v(D,4)}")
        if k + 1 < len(sets): o("s_branch L_e2_done")
    A.label("L_e2_done")
    o(f"s_add_u32 s{sPF}, s{sPF}, 262144"); o(f"s_addc_u32 s{sPF+1}, s{sPF+1}, 0")
    stamp()
    o("s_nop 7")
    o(f"v_cvt_pk_bf16_f32 v{R}, v{D}, v{D+1}")
    o(f"v_cvt_pk_bf16_f32 v{R+1}, v{D+2}, v{D+3}")
    o(f"v_permlane16_swap_b32 v{R}, v{R+2}")
    o(f"v_permlane16_swap_b32 v{R+1}, v{R+3}")
    o(f"s_mov_b64 exec, 0xffff")
    o(f"global_store_dwordx4 v{vMst}, {v(R,4)}, {s(sMEMn,2)}{st_fast}")
    o("s_mov_b64 exec, -1")
    stamp()
    if E3_DELAY: o(f"s_sleep {E3_DELAY}")
    if prof:
        o("s_waitcnt lgkmcnt(0)")
        for k in range(nst[0]):
            o(f"v_writelane_b32 v{vX+8}, s{sTs+2*k}, {k}")
        for k in range(4):
            o(f"v_writelane_b32 v{vX+8}, s{sCnt+k}, {11+k}")
        o(f"v_writelane_b32 v{vX+8}, s92, 15")
        o(f"s_lshl_b32 s{sT0}, s{sW}, 12")
        o(f"s_lshl_b32 s{sT1}, s{sStep}, 6")
        o(f"s_add_u32 s{sT0}, s{sT0}, s{sT1}")
        o(f"s_add_u32 s{sT0}, s{sT0}, 40960")
        o(f"v_lshlrev_b32 v{vX+9}, 2, v{vL}")
        o(f"v_add_u32 v{vX+9}, s{sT0}, v{vX+9}")
        o("s_mov_b64 exec, 0xffff")
        o(f"ds_write_b32 v{vX+9}, v{vX+8}")
        o("s_mov_b64 exec, -1")
    o(f"s_add_u32 s{sStep}, s{sStep}, 1")
    o(f"s_cmp_lt_u32 s{sStep}, {nsteps}")
    o("s_cbranch_scc1 L_step")
    o("s_branch L_rec_fin")
    A.label("L_rec_last")
    if SIG:
        o("s_waitcnt vmcnt(0)")
        o(f"s_and_b32 s{sT0}, s{sStep}, 15"); o(f"s_cmp_lg_u32 s{sT0}, s{sJ}"); o("s_cbranch_scc1 L_rec_fin")
        o(f"s_lshl_b32 s{sT0}, s{sStep}, 7"); o(f"s_add_u32 s{sT0}, s{sT0}, {CNT_REC}")
        o(f"v_mov_b32 v{vX+2}, s{sT0}"); o(f"v_mov_b32 v{vX+3}, 1")
        o("s_mov_b64 exec, 1")
        o(f"global_atomic_add v{vX+2}, v{vX+3}, {s(sCNT,2)}")
        o("s_mov_b64 exec, -1")
    A.label("L_rec_fin")
    if prof:
        o("s_waitcnt lgkmcnt(0)")
        o(f"s_lshl_b32 s{sT0}, s{sW}, 12")
        o(f"s_add_u32 s{sT0}, s{sT0}, 40960")
        o(f"v_add_u32 v{vX+9}, s{sT0}, v{vL16}")
        for k in range(4):
            o(f"ds_read_b128 {v(vB+4*k,4)}, v{vX+9} offset:{k*1024}")
        o("s_waitcnt lgkmcnt(0)")
        for k in range(4):
            o(f"global_store_dwordx4 v{vL16}, {v(vB+4*k,4)}, {s(sProf,2)} offset:{k*1024}")
    o("s_waitcnt vmcnt(0)")
    A.label("L_rec_end")
    o("s_endpgm")
    txt = A.finish()
    if embedded:
        import re
        return re.sub(r"\bL_", pfx + "L_", txt)
    return kernel_head(name) + txt + kernel_desc(name, 256, 256)

if __name__ == "__main__":
    import sys
    fast = "slow" not in sys.argv
    prof = "prof" in sys.argv
    ng = 256 if any(x.startswith("X4=1") for x in sys.argv) else 128
    hdr = f"; @launch kernel=rec_kernel grid=({ng},1,1) block=(256,1,1) lds=131072\n.amdgcn_target \"amdgcn-amd-amdhsa--gfx950\"\n.text\n"
    kw = {}
    for x in sys.argv[1:]:
        if "=" in x:
            k_, v_ = x.split("=");
            if k_ != "out": kw[k_] = int(v_) if v_.isdigit() else v_
    outn = [x.split("=")[1] for x in sys.argv if x.startswith("out=")]
    open(outn[0] if outn else "rec_test.s", "w").write(hdr + gen_rec(fast=fast, prof=prof, **kw))
```

```python
from asmlib import *
from layout import *
from gemm import Gemm, gen_loop2, gen_loop3
from k_qkv import srd
from k_small import fbits, unpack8, gfun, LOG2E
import math

WS_XCH = 128 * MiB
WS_STAT = WS_CNT + 131072 + 16384
CNT_XO = 131072
CNT_ST = 131072 + 8192
CNT_XG = 131072 + 4096

sX, sY = 8, 12
sOffX, sOffY, sM0, sK = 20, 21, [22, 23], 24
sSt = [32, 33, 34]

def poll_ge(A, sBase, vAddr, target, tag, vT, sLimReg, sleep=2):
    o = A
    A.label(f"L_{tag}")
    o(f"global_load_dword v{vT}, v{vAddr}, {s(sBase,2)} sc1")
    o("s_waitcnt vmcnt(0)")
    o(f"v_readfirstlane_b32 s44, v{vT}")
    o(f"s_cmp_ge_u32 s44, {target}"); o(f"s_cbranch_scc1 L_{tag}_ok")
    o(f"s_sleep {sleep}")
    o(f"s_sub_u32 s{sLimReg}, s{sLimReg}, 1"); o(f"s_cbranch_scc0 L_{tag}")
    A.label(f"L_{tag}_ok")

def exchange(A, G, keep_tiles, send_tiles, sTile, sKh, xch_off, cnt_off, name):
    o = A
    E = G.vF
    o(f"s_lshl_b32 s25, s{sTile}, 1"); o(f"s_add_u32 s26, s25, s{sKh}"); o("s_lshl_b32 s26, s26, 2"); o("s_add_u32 s26, s26, s3"); o("s_lshl_b32 s26, s26, 13")
    o(f"s_xor_b32 s27, s{sKh}, 1"); o("s_add_u32 s27, s25, s27"); o("s_lshl_b32 s27, s27, 2"); o("s_add_u32 s27, s27, s3"); o("s_lshl_b32 s27, s27, 13")
    o(f"s_add_u32 s26, s26, {xch_off}"); o(f"s_add_u32 s27, s27, {xch_off}")
    o("s_add_u32 s40, s6, s26"); o("s_addc_u32 s41, s7, 0"); o("s_add_u32 s42, s6, s27"); o("s_addc_u32 s43, s7, 0")
    o("s_add_u32 s40, s40, 4096"); o("s_addc_u32 s41, s41, 0"); o("s_add_u32 s42, s42, 4096"); o("s_addc_u32 s43, s43, 0")
    o("v_lshlrev_b32 v1, 4, v0")
    T = E + 32
    for kh in range(2):
        if kh == 0: o(f"s_cmp_lg_u32 s{sKh}, 0"); o(f"s_cbranch_scc1 L_{name}_k1")
        else: A.label(f"L_{name}_k1")
        for t, (jx, jy) in enumerate(send_tiles(kh)):
            R = T + 4 * (t % 4)
            for r in range(4): o(f"v_accvgpr_read_b32 v{R+r}, a{G.accr(jx, jy)+r}")
            o(f"global_store_dwordx4 v1, {v(R,4)}, s[40:41] offset:{t*1024-4096} sc1")
        for t, (jx, jy) in enumerate(keep_tiles(kh)):
            for r in range(4): o(f"v_accvgpr_read_b32 v{E+4*t+r}, a{G.accr(jx, jy)+r}")
        if kh == 0: o(f"s_branch L_{name}_kd")
    A.label(f"L_{name}_kd")
    o("s_waitcnt vmcnt(0)")
    o(f"s_add_u32 s48, s6, {WS_CNT}"); o("s_addc_u32 s49, s7, 0")
    o(f"s_add_u32 s26, s25, s{sKh}"); o("s_lshl_b32 s26, s26, 2"); o("s_add_u32 s26, s26, s3"); o("s_lshl_b32 s26, s26, 2"); o(f"s_add_u32 s26, s26, {cnt_off}")
    o("v_mov_b32 v2, s26"); o("v_mov_b32 v3, 1")
    o("s_mov_b64 exec, 1"); o("global_atomic_add v2, v3, s[48:49]"); o("s_mov_b64 exec, -1")
    o(f"s_xor_b32 s27, s{sKh}, 1"); o("s_add_u32 s27, s25, s27"); o("s_lshl_b32 s27, s27, 2"); o("s_add_u32 s27, s27, s3"); o("s_lshl_b32 s27, s27, 2"); o(f"s_add_u32 s27, s27, {cnt_off}")
    o("v_mov_b32 v2, s27")
    o("s_mov_b32 s50, 0x200000")
    poll_ge(A, 48, 2, 1, f"{name}_p", 3, 50)
    for t in range(8): o(f"global_load_dwordx4 {v(T+4*t,4)}, v1, s[42:43] offset:{t*1024-4096} sc1")
    for t in range(8):
        o(f"s_waitcnt vmcnt({7-t})")
        for r in range(4): o(f"v_add_f32 v{E+4*t+r}, v{E+4*t+r}, v{T+4*t+r}")

PROF = False
def pst(o, k):
    if PROF: o(f's_memrealtime s[{64+2*k}:{65+2*k}]')
def pend(o, idx):
    if not PROF: return
    o('s_memrealtime s[76:77]'); o('s_waitcnt lgkmcnt(0)')
    o('s_lshl_b32 s25, s2, 7'); o('s_lshl_b32 s26, s3, 5'); o('s_add_u32 s25, s25, s26'); o(f's_add_u32 s25, s25, {WS_PROF + 7*MiB + idx*65536}')
    for k in range(6): o(f'v_mov_b32 v{2+k}, s{64+2*k}')
    o('v_mov_b32 v8, s76'); o('v_mov_b32 v9, 0'); o('v_mov_b32 v10, s25')
    o('s_mov_b64 exec, 1'); o('global_store_dwordx4 v10, v[2:5], s[6:7]'); o('global_store_dwordx4 v10, v[6:9], s[6:7] offset:16'); o('s_waitcnt vmcnt(0)')

def head(o, name, ptrs):
    o(f"s_cmp_ge_u32 s2, 256"); o(f"s_cbranch_scc1 L_{name}_end")
    o(f"s_load_dwordx2 s[6:7], s[0:1], {KA_WS}")
    for sreg, ka in ptrs: o(f"s_load_dwordx2 {s(sreg,2)}, s[0:1], {ka}")
    o("v_lshrrev_b32 v1, 6, v0"); o("v_and_b32 v0, 63, v0"); o("v_readfirstlane_b32 s3, v1")
    o("s_waitcnt lgkmcnt(0)")
    pst(o, 0)

LOPT = {}
def gen_opln(name="opln_kernel"):
    A = Asm(); o = A
    head(o, name, [(52, KA_WO), (54, KA_X)])
    srd(o, sX, 52, 0, 8 * MiB); srd(o, sY, 6, WS_O, 16 * MiB)
    sDt, sTt, sKh, sTile = 4, 5, 56, 57
    o("s_and_b32 s25, s2, 7"); o("s_lshr_b32 s26, s2, 3"); o(f"s_and_b32 s{sKh}, s25, 1")
    o(f"s_lshr_b32 s{sDt}, s25, 2"); o(f"s_lshl_b32 s{sDt}, s{sDt}, 2"); o("s_and_b32 s27, s26, 3"); o(f"s_add_u32 s{sDt}, s{sDt}, s27")
    o(f"s_bfe_u32 s{sTt}, s25, 0x10001"); o(f"s_lshl_b32 s{sTt}, s{sTt}, 3"); o("s_lshr_b32 s27, s26, 2"); o(f"s_add_u32 s{sTt}, s{sTt}, s27")
    o(f"s_lshl_b32 s{sTile}, s{sTt}, 3"); o(f"s_add_u32 s{sTile}, s{sTile}, s{sDt}")
    o(f"s_lshl_b32 s{sOffX}, s{sDt}, 8"); o(f"s_lshl_b32 s25, s{sKh}, 22"); o(f"s_add_u32 s{sOffX}, s{sOffX}, s25")
    o(f"s_lshl_b32 s{sOffY}, s{sTt}, 13"); o(f"s_lshl_b32 s25, s{sKh}, 23"); o(f"s_add_u32 s{sOffY}, s{sOffY}, s25")
    G = Gemm(A, 4, 4, False, "o")
    o(f"s_mul_i32 s{sM0[0]}, s3, {G.NIX*1024}"); o(f"s_mul_i32 s{sM0[1]}, s3, {G.NIY*1024}")
    G.setup(3, 0, 2048, 0, [1, 2, 3, 4, 5, 6], [25, 26, 27, 28])
    gen_loop3(G, sX, sY, sOffX, sOffY, sM0, sK, 32 * 2048, 128 * 1024, 64, f"L_{name}", K=LOPT.get("K", 2), R=8, opt=LOPT)
    o("s_barrier")
    pst(o, 1)
    E = G.vF
    keep = lambda kh: [(jx, 2 * kh + h) for h in range(2) for jx in range(4)]
    send = lambda kh: keep(kh ^ 1)
    o("v_and_b32 v1, 15, v0"); o("v_lshrrev_b32 v2, 4, v0"); o("v_and_b32 v3, 1, v2"); o("v_lshrrev_b32 v2, 1, v2")
    o("v_lshlrev_b32 v3, 4, v3"); o("v_lshl_add_u32 v3, v2, 3, v3")
    o(f"s_lshl_b32 s25, s{sDt}, 7"); o("s_and_b32 s26, s3, 1"); o("s_lshl_b32 s26, s26, 6"); o("s_add_u32 s25, s25, s26")
    o("v_add_u32 v4, s25, v3")
    o(f"s_lshl_b32 s58, s{sTt}, 7"); o("s_lshr_b32 s26, s3, 1"); o("s_lshl_b32 s26, s26, 6"); o("s_add_u32 s58, s58, s26"); o(f"s_lshl_b32 s26, s{sKh}, 5"); o("s_add_u32 s58, s58, s26")
    o("v_add_u32 v5, s58, v1")
    o("v_lshlrev_b32 v6, 11, v5"); o("v_lshl_add_u32 v6, v4, 1, v6")
    o("v_lshlrev_b32 v7, 2, v4")
    M = E + 64
    XR = E + 112
    for k, sec in enumerate((2, 3, 4)):
        o(f"s_add_u32 s44, s6, {WS_MOD + sec*4096}"); o("s_addc_u32 s45, s7, 0")
        for p in range(2):
            o(f"global_load_dwordx4 {v(M+16*k+8*p,4)}, v7, s[44:45] offset:{p*128}"); o(f"global_load_dwordx4 {v(M+16*k+8*p+4,4)}, v7, s[44:45] offset:{p*128+16}")
    for h in range(2):
        o(f"v_add_u32 v8, {h*16*2048}, v6")
        for p in range(2): o(f"global_load_dwordx4 {v(XR+8*h+4*p,4)}, v8, s[54:55] offset:{p*64}")
    o("v_mov_b32 v17, v1"); o("v_mov_b32 v18, v3"); o("s_mov_b32 s62, s25")
    exchange(A, G, keep, send, sTile, sKh, WS_XCH, CNT_XO, name + "x")
    pst(o, 2)
    for h in range(2):
        for p in range(2):
            a_, b_ = E + 4 * (h * 4 + 2 * p), E + 4 * (h * 4 + 2 * p + 1)
            for r in range(4): o(f"v_permlane16_swap_b32 v{a_+r}, v{b_+r}")
    o("v_mov_b32 v1, v17"); o("v_mov_b32 v3, v18"); o("s_mov_b32 s25, s62")
    o("s_waitcnt vmcnt(0)")
    U = E + 128
    o(f"s_add_u32 s44, s6, {WS_X1}"); o("s_addc_u32 s45, s7, 0")
    for h in range(2):
        o(f"v_add_u32 v8, {h*16*2048}, v6")
        for p in range(2):
            Y = E + 4 * (h * 4 + 2 * p)
            unpack8(o, U, XR + 8 * h + 4 * p)
            for e in range(8): o(f"v_fma_f32 v{Y+e}, v{Y+e}, v{M+8*p+e}, v{U+e}")
            P = XR + 8 * h + 4 * p
            for d in range(4): o(f"v_cvt_pk_bf16_f32 v{P+d}, v{Y+2*d}, v{Y+2*d+1}")
            o(f"global_store_dwordx4 v8, {v(P,4)}, s[44:45] offset:{p*64}")
            unpack8(o, Y, P)
    S1, S2, t_ = U, U + 2, U + 4
    for h in range(2):
        Y = E + 16 * h
        o(f"v_add_f32 v{S1+h}, v{Y}, v{Y+1}")
        for e in range(2, 16): o(f"v_add_f32 v{S1+h}, v{S1+h}, v{Y+e}")
        o(f"v_mul_f32 v{S2+h}, v{Y}, v{Y}")
        for e in range(1, 16): o(f"v_fmac_f32 v{S2+h}, v{Y+e}, v{Y+e}")
    for x in (S1, S1 + 1, S2, S2 + 1):
        for sw in ("16", "32"):
            o(f"v_mov_b32 v{t_}, v{x}"); o(f"v_permlane{sw}_swap_b32 v{x}, v{t_}"); o(f"v_add_f32 v{x}, v{x}, v{t_}")
    o(f"s_add_u32 s46, s6, {WS_STAT}"); o("s_addc_u32 s47, s7, 0")
    o("v_lshlrev_b32 v9, 3, v5")
    o("s_mov_b64 exec, 0xffff")
    for h in range(2):
        o(f"global_atomic_add_f32 v9, v{S1+h}, s[46:47] offset:{h*128}")
        o(f"global_atomic_add_f32 v9, v{S2+h}, s[46:47] offset:{h*128+4}")
    o("s_mov_b64 exec, -1")
    o("s_waitcnt vmcnt(0)")
    pst(o, 3)
    o(f"s_add_u32 s48, s6, {WS_CNT}"); o("s_addc_u32 s49, s7, 0")
    o("s_lshr_b32 s59, s58, 5"); o("s_lshl_b32 s26, s59, 7"); o(f"s_add_u32 s26, s26, {CNT_ST}")
    o("v_mov_b32 v14, s26"); o("v_mov_b32 v15, 1")
    o("s_mov_b64 exec, 1"); o("global_atomic_add v14, v15, s[48:49]"); o("s_mov_b64 exec, -1")
    o("s_mov_b32 s50, 0x200000")
    poll_ge(A, 48, 14, 16, f"{name}_st", 15, 50, sleep=6)
    for h in range(2): o(f"global_load_dwordx2 {v(S1+2*h if False else U+8+2*h,2)}, v9, s[46:47] offset:{h*128} sc1")
    o("s_waitcnt vmcnt(0)")
    pst(o, 4)
    for k in (2, ):
        for e in range(16): o(f"v_add_f32 v{M+32+e}, 1.0, v{M+32+e}")
    RS = 128 + 32
    o("s_lshl_b32 s26, s3, 13")
    o(f"v_mul_u32_u24 v10, {RS}, v1"); o("v_lshl_add_u32 v10, v3, 1, v10"); o("v_add_u32 v10, s26, v10")
    for h in range(2):
        mu, sq = U + 8 + 2 * h, U + 9 + 2 * h
        o(f"v_mul_f32 v{mu}, {fbits(1/1024)}, v{mu}")
        o(f"v_mul_f32 v{sq}, {fbits(1/1024)}, v{sq}")
        o(f"v_fma_f32 v{sq}, -v{mu}, v{mu}, v{sq}")
        o(f"v_max_f32 v{sq}, 0, v{sq}")
        o(f"v_add_f32 v{sq}, {fbits(1e-5)}, v{sq}")
        o(f"v_rsq_f32 v{sq}, v{sq}")
        for p in range(2):
            Y = E + 4 * (h * 4 + 2 * p)
            for e in range(8):
                o(f"v_sub_f32 v{Y+e}, v{Y+e}, v{mu}"); o(f"v_mul_f32 v{Y+e}, v{Y+e}, v{sq}")
                o(f"v_fma_f32 v{Y+e}, v{Y+e}, v{M+32+8*p+e}, v{M+16+8*p+e}")
            P = XR + 8 * h + 4 * p
            for d in range(4): o(f"v_cvt_pk_bf16_f32 v{P+d}, v{Y+2*d}, v{Y+2*d+1}")
            o(f"ds_write_b128 v10, {v(P,4)} offset:{h*16*RS + p*64}")
    o("s_waitcnt lgkmcnt(0)")
    o("v_lshrrev_b32 v2, 4, v0"); o("v_lshrrev_b32 v11, 2, v1"); o("v_lshl_add_u32 v11, v2, 3, v11"); o(f"v_mul_u32_u24 v11, {RS}, v11")
    o("v_and_b32 v12, 3, v1"); o("v_lshl_add_u32 v11, v12, 3, v11"); o("v_add_u32 v11, s26, v11")
    for j in range(4):
        o(f"ds_read_b64_tr_b16 {v(XR+4*j,2)}, v11 offset:{j*32}"); o(f"ds_read_b64_tr_b16 {v(XR+4*j+2,2)}, v11 offset:{j*32+4*RS}")
    gfun(o, 12, 1, 13); o("v_xor_b32 v12, v12, v2"); o("v_lshl_add_u32 v12, v1, 2, v12"); o("v_lshlrev_b32 v12, 4, v12")
    o("s_lshl_b32 s26, s59, 16"); o(f"s_lshl_b32 s27, s25, 6"); o("s_add_u32 s26, s26, s27"); o(f"s_add_u32 s26, s26, {WS_H2T}")
    o("v_add_u32 v12, s26, v12")
    o("s_waitcnt lgkmcnt(0)")
    for j in range(4): o(f"global_store_dwordx4 v12, {v(XR+4*j,4)}, s[6:7] offset:{j*1024}")
    o("s_waitcnt vmcnt(0)")
    pend(o, 0)
    A.label(f"L_{name}_end"); o("s_endpgm")
    return kernel_head(name) + A.finish() + kernel_desc(name, max(G.vEnd2, E + 144), G.nacc), 8 * G.SB

def gen_g2s(name="g2s_kernel"):
    A = Asm(); o = A
    head(o, name, [(52, KA_W2), (54, KA_B2), (60, KA_OUT)])
    srd(o, sX, 52, 0, 3584 * 4096); srd(o, sY, 6, WS_U, 112 * 64 * 1024)
    sSt_, sDt, sKh, sTile = 4, 5, 56, 57
    o("s_and_b32 s25, s2, 7"); o("s_lshr_b32 s26, s2, 3"); o(f"s_and_b32 s{sKh}, s25, 1")
    o(f"s_lshr_b32 s{sDt}, s25, 2"); o(f"s_lshl_b32 s{sDt}, s{sDt}, 2"); o("s_and_b32 s27, s26, 3"); o(f"s_add_u32 s{sDt}, s{sDt}, s27")
    o(f"s_bfe_u32 s{sSt_}, s25, 0x10001"); o(f"s_lshl_b32 s{sSt_}, s{sSt_}, 3"); o("s_lshr_b32 s27, s26, 2"); o(f"s_add_u32 s{sSt_}, s{sSt_}, s27")
    o(f"s_lshl_b32 s{sTile}, s{sSt_}, 3"); o(f"s_add_u32 s{sTile}, s{sTile}, s{sDt}")
    o(f"s_lshl_b32 s{sOffX}, s{sSt_}, 8"); o(f"s_mul_i32 s25, s{sKh}, {1792*4096}"); o(f"s_add_u32 s{sOffX}, s{sOffX}, s25")
    o(f"s_lshl_b32 s{sOffY}, s{sDt}, 13"); o(f"s_mul_i32 s25, s{sKh}, {56*65536}"); o(f"s_add_u32 s{sOffY}, s{sOffY}, s25")
    G = Gemm(A, 4, 4, True, "h")
    o(f"s_mul_i32 s{sM0[0]}, s3, {G.NIX*1024}"); o(f"s_mul_i32 s{sM0[1]}, s3, {G.NIY*1024}")
    G.setup(3, 0, 4096, 0, [1, 2, 3, 4, 5, 6], [25, 26, 27, 28])
    gen_loop3(G, sX, sY, sOffX, sOffY, sM0, sK, 32 * 4096, 64 * 1024, 56, f"L_{name}", K=2, R=8)
    pst(o, 1)
    E = G.vF
    keep = lambda kh: [(2 * kh + h, jy) for h in range(2) for jy in range(4)]
    send = lambda kh: keep(kh ^ 1)
    o("v_and_b32 v1, 15, v0"); o("v_lshrrev_b32 v2, 4, v0"); o("v_and_b32 v3, 1, v2"); o("v_lshrrev_b32 v2, 1, v2")
    o("v_lshlrev_b32 v3, 4, v3"); o("v_lshl_add_u32 v3, v2, 3, v3")
    o(f"s_lshl_b32 s25, s{sDt}, 7"); o("s_lshr_b32 s26, s3, 1"); o("s_lshl_b32 s26, s26, 6"); o("s_add_u32 s25, s25, s26")
    o("v_add_u32 v4, s25, v3")
    o(f"s_lshl_b32 s58, s{sSt_}, 7"); o("s_and_b32 s26, s3, 1"); o("s_lshl_b32 s26, s26, 6"); o("s_add_u32 s58, s58, s26"); o(f"s_lshl_b32 s26, s{sKh}, 5"); o("s_add_u32 s58, s58, s26")
    o("v_add_u32 v5, s58, v1")
    o("v_lshlrev_b32 v6, 11, v5"); o("v_lshl_add_u32 v6, v4, 1, v6")
    o("v_lshlrev_b32 v7, 2, v4")
    M = E + 64; XR = E + 112; B2 = E + 100
    o(f"s_add_u32 s44, s6, {WS_MOD + 5*4096}"); o("s_addc_u32 s45, s7, 0")
    for p in range(2):
        o(f"global_load_dwordx4 {v(M+8*p,4)}, v7, s[44:45] offset:{p*128}"); o(f"global_load_dwordx4 {v(M+8*p+4,4)}, v7, s[44:45] offset:{p*128+16}")
    o(f"s_add_u32 s44, s6, {WS_X1}"); o("s_addc_u32 s45, s7, 0")
    o("v_lshlrev_b32 v9, 1, v5")
    for h in range(2):
        o(f"v_add_u32 v8, {h*16*2048}, v6")
        for p in range(2): o(f"global_load_dwordx4 {v(XR+8*h+4*p,4)}, v8, s[44:45] offset:{p*64}")
        o(f"global_load_ushort v{B2+h}, v9, s[54:55] offset:{h*32}")
    exchange(A, G, keep, send, sTile, sKh, WS_XCH + 8 * MiB, CNT_XG, name + "x")
    pst(o, 2)
    for h in range(2):
        for p in range(2):
            a_, b_ = E + 4 * (h * 4 + 2 * p), E + 4 * (h * 4 + 2 * p + 1)
            for r in range(4): o(f"v_permlane16_swap_b32 v{a_+r}, v{b_+r}")
    o("s_waitcnt vmcnt(0)")
    U = E + 128
    for h in range(2):
        o(f"v_lshlrev_b32 v{B2+h}, 16, v{B2+h}")
        o(f"v_add_u32 v8, {h*16*2048}, v6")
        for p in range(2):
            Y = E + 4 * (h * 4 + 2 * p)
            unpack8(o, U, XR + 8 * h + 4 * p)
            for e in range(8): o(f"v_add_f32 v{Y+e}, v{Y+e}, v{B2+h}")
            for e in range(8): o(f"v_fma_f32 v{Y+e}, v{Y+e}, v{M+8*p+e}, v{U+e}")
            P = XR + 8 * h + 4 * p
            for d in range(4): o(f"v_cvt_pk_bf16_f32 v{P+d}, v{Y+2*d}, v{Y+2*d+1}")
            o(f"global_store_dwordx4 v8, {v(P,4)}, s[60:61] offset:{p*64}")
    o("s_waitcnt vmcnt(0)")
    pend(o, 1)
    A.label(f"L_{name}_end"); o("s_endpgm")
    return kernel_head(name) + A.finish() + kernel_desc(name, max(G.vEnd2, E + 144), G.nacc), 8 * G.SB
```

```python
from asmlib import *
from layout import *
from gemm import Gemm, gen_loop, gen_loop2
from k_qkv import srd
from k_small import fbits, LOG2E, wave_sum, ln_rows, unpack8, gfun
from k_attn import attn_body
from mega import qkv_tile
import rec12 as rec
import re, math

CNT_MODA, CNT_MODB, CNT_MODC = 40960, 40960 + 128, 40960 + 256
CNT_LN1 = 41984
CNT_RLY = 24576
SLOW_OFF = 65536

sW, sXb, sI, sWS = 3, 4, 5, 6
sCNT, sB, sCh, sRound, sChk, sLim = 60, 62, 63, 64, 65, 66
sCt, sTok, sCntOff = 67, 68, 69
sDBG = 70
sFt, sDtG = 81, 82

def wait_cnt(A, off, target, tag, off_s=None, sleep=3):
    o = A
    o(f"s_cmp_lg_u32 s{sW}, 0"); o(f"s_cbranch_scc1 L_wc_{tag}_b")
    if off_s is None: o(f"v_mov_b32 v2, {off}")
    else:
        o(f"s_add_u32 s44, s{off_s}, {off}"); o("v_mov_b32 v2, s44")
    A.label(f"L_wc_{tag}")
    o(f"global_load_dword v3, v2, {s(sCNT,2)} sc1")
    o("s_waitcnt vmcnt(0)")
    o("v_readfirstlane_b32 s44, v3")
    o(f"s_cmp_ge_u32 s44, {target}"); o(f"s_cbranch_scc1 L_wc_{tag}_b")
    o(f"s_sleep {sleep}")
    o(f"s_sub_u32 s{sLim}, s{sLim}, 1"); o(f"s_cbranch_scc0 L_wc_{tag}")
    o(f"s_mov_b32 s{sLim}, 0")
    A.label(f"L_wc_{tag}_b")
    o("s_barrier")

def signal(A, off, tag, off_s=None):
    o = A
    o("s_waitcnt vmcnt(0)"); o("s_barrier")
    o(f"s_cmp_lg_u32 s{sW}, 0"); o(f"s_cbranch_scc1 L_sg_{tag}")
    if off_s is None: o(f"v_mov_b32 v2, {off}")
    else:
        o(f"s_add_u32 s44, s{off_s}, {off}"); o("v_mov_b32 v2, s44")
    o("v_mov_b32 v3, 1"); o("s_mov_b64 exec, 1")
    o(f"global_atomic_add v2, v3, {s(sCNT,2)}")
    o("s_mov_b64 exec, -1")
    A.label(f"L_sg_{tag}")

def mod_task(A, sCol, tag):
    o = A
    o("s_load_dwordx2 s[8:9], s[0:1], %d" % KA_WMOD)
    o("v_lshrrev_b32 v5, 2, v0"); o(f"s_lshl_b32 s12, s{sW}, 8"); o("v_add_u32 v5, s12, v5")
    o("v_lshlrev_b32 v6, 2, v5")
    o("s_mov_b32 s13, 12288"); o("v_mul_lo_u32 v7, v5, s13")
    o("v_and_b32 v26, 3, v0"); o("v_lshl_add_u32 v7, v26, 4, v7")
    o(f"s_lshl_b32 s12, s{sCol}, 1"); o("v_add_u32 v7, s12, v7")
    o("s_waitcnt lgkmcnt(0)")
    W = 32; Cc = 96; AC = 112
    for it in range(16):
        o(f"global_load_dwordx4 {v(W+4*it,4)}, v7, s[8:9]")
        o(f"v_add_u32 v7, {16*12288}, v7")
        o(f"ds_read_b32 v{Cc+it}, v6 offset:{it*64}")
    for e in range(8): o(f"v_mov_b32 v{AC+e}, 0")
    o("s_waitcnt lgkmcnt(0)")
    for it in range(16):
        o(f"s_waitcnt vmcnt({15-it})")
        for d in range(4):
            o(f"v_lshlrev_b32 v27, 16, v{W+4*it+d}")
            o(f"v_and_b32 v28, 0xffff0000, v{W+4*it+d}")
            o(f"v_fmac_f32 v{AC+2*d}, v27, v{Cc+it}")
            o(f"v_fmac_f32 v{AC+2*d+1}, v28, v{Cc+it}")
    for e in range(8):
        x = AC + e
        o(f"v_add_f32_dpp v{x}, v{x}, v{x} row_ror:4 row_mask:0xf bank_mask:0xf")
        o(f"v_add_f32_dpp v{x}, v{x}, v{x} row_ror:8 row_mask:0xf bank_mask:0xf")
        for sw in ("16", "32"):
            o(f"v_mov_b32 v27, v{x}"); o(f"v_permlane{sw}_swap_b32 v{x}, v27"); o(f"v_add_f32 v{x}, v{x}, v27")
    o(f"s_lshl_b32 s12, s{sW}, 7"); o("v_lshlrev_b32 v5, 5, v26"); o("v_add_u32 v5, s12, v5")
    o("s_mov_b64 exec, 0xf")
    o(f"ds_write_b128 v5, {v(AC,4)} offset:4096"); o(f"ds_write_b128 v5, {v(AC+4,4)} offset:4112")
    o("s_mov_b64 exec, -1")
    o("s_waitcnt lgkmcnt(0)"); o("s_barrier")
    o(f"s_cmp_lg_u32 s{sW}, 0"); o(f"s_cbranch_scc1 L_mod_{tag}_d")
    o("v_lshlrev_b32 v5, 2, v0")
    o("s_mov_b64 exec, 0xffffffff")
    for w in range(4): o(f"ds_read_b32 v{32+w}, v5 offset:{4096+w*128}")
    o("s_waitcnt lgkmcnt(0)")
    o("v_add_f32 v32, v32, v33"); o("v_add_f32 v34, v34, v35"); o("v_add_f32 v32, v32, v34")
    o("v_cvt_pk_bf16_f32 v32, v32, v32"); o("v_lshlrev_b32 v32, 16, v32")
    o(f"s_lshl_b32 s12, s{sCol}, 2"); o(f"s_add_u32 s12, s12, {WS_MOD}"); o("v_add_u32 v5, s12, v5")
    o(f"global_store_dword v5, v32, {s(sWS,2)} sc1")
    o("s_mov_b64 exec, -1")
    A.label(f"L_mod_{tag}_d")

def silu_to_lds(A, pre=None):
    o = A
    if pre: o(f"s_mov_b64 s[8:9], s[{pre}:{pre+1}]")
    else: o("s_load_dwordx2 s[8:9], s[0:1], %d" % KA_C)
    o(f"s_lshl_b32 s12, s{sW}, 6"); o("v_add_u32 v4, s12, v0")
    o("v_lshlrev_b32 v5, 3, v4")
    o("s_waitcnt lgkmcnt(0)")
    o("global_load_dwordx2 v[12:13], v5, s[8:9]")
    o("s_waitcnt vmcnt(0)")
    o("v_lshlrev_b32 v14, 16, v12"); o("v_and_b32 v15, 0xffff0000, v12"); o("v_lshlrev_b32 v16, 16, v13"); o("v_and_b32 v17, 0xffff0000, v13")
    o(f"s_mov_b32 s12, {fbits(-LOG2E)}")
    for r in range(4):
        o(f"v_mul_f32 v{20+r}, s12, v{14+r}"); o(f"v_exp_f32 v{20+r}, v{20+r}"); o(f"v_add_f32 v{20+r}, 1.0, v{20+r}")
        o(f"v_rcp_f32 v{20+r}, v{20+r}"); o(f"v_mul_f32 v{20+r}, v{14+r}, v{20+r}")
    o("v_cvt_pk_bf16_f32 v24, v20, v21"); o("v_cvt_pk_bf16_f32 v25, v22, v23")
    o("v_lshlrev_b32 v20, 16, v24"); o("v_and_b32 v21, 0xffff0000, v24"); o("v_lshlrev_b32 v22, 16, v25"); o("v_and_b32 v23, 0xffff0000, v25")
    o("v_lshlrev_b32 v4, 4, v4")
    o("ds_write_b128 v4, v[20:23]")
    o("s_waitcnt lgkmcnt(0)"); o("s_barrier")

def ln1_task(A):
    o = A
    o("s_load_dwordx2 s[8:9], s[0:1], %d" % KA_X)
    o("v_lshlrev_b32 v2, 4, v0"); o("v_lshlrev_b32 v3, 5, v0")
    o(f"s_add_u32 s12, s{sWS}, {WS_MOD}"); o(f"s_addc_u32 s13, s{sWS+1}, 0")
    SA, CA = 64, 80
    for h in range(2):
        for q in range(2): o(f"global_load_dwordx4 {v(SA+8*h+4*q,4)}, v3, s[12:13] offset:{h*2048+q*16}")
    o("s_add_u32 s12, s12, 4096"); o("s_addc_u32 s13, s13, 0")
    for h in range(2):
        for q in range(2): o(f"global_load_dwordx4 {v(CA+8*h+4*q,4)}, v3, s[12:13] offset:{h*2048+q*16}")
    o(f"s_lshl_b32 s14, s{sB}, 4"); o(f"s_lshl_b32 s15, s{sW}, 2"); o("s_add_u32 s14, s14, s15")
    o("s_waitcnt lgkmcnt(0)")
    o("s_lshl_b32 s15, s14, 11"); o("s_add_u32 s10, s8, s15"); o("s_addc_u32 s11, s9, 0")
    RAW = 96
    for r in range(4):
        off = r * 2048
        if off >= 4096:
            if r == 2: o("s_add_u32 s10, s10, 4096"); o("s_addc_u32 s11, s11, 0")
            off -= 4096
        o(f"global_load_dwordx4 {v(RAW+8*r,4)}, v2, s[10:11] offset:{off}")
        o(f"global_load_dwordx4 {v(RAW+8*r+4,4)}, v2, s[10:11] offset:{off+1024}")
    o("s_waitcnt vmcnt(8)")
    for e in range(16): o(f"v_add_f32 v{CA+e}, 1.0, v{CA+e}")
    X = [32, 48]
    for pr in range(2):
        o(f"s_waitcnt vmcnt({4 if pr == 0 else 0})") if pr == 0 else None
        if pr == 1: o("s_waitcnt vmcnt(4)")
        for r in range(2):
            unpack8(o, X[r], RAW + 8 * (2 * pr + r)); unpack8(o, X[r] + 8, RAW + 8 * (2 * pr + r) + 4)
        ln_rows(o, X, 2, [4, 5], 1e-5)
        for r in range(2):
            R0 = 8 + 8 * r
            for e in range(16): o(f"v_fma_f32 v{X[r]+e}, v{X[r]+e}, v{CA+e}, v{SA+e}")
            for h in range(2):
                for d in range(4): o(f"v_cvt_pk_bf16_f32 v{R0+4*h+d}, v{X[r]+8*h+2*d}, v{X[r]+8*h+2*d+1}")
            o(f"s_add_u32 s16, s14, {2*pr+r}"); o("s_lshr_b32 s17, s16, 4"); o("s_and_b32 s16, s16, 15")
            o("s_lshr_b32 s18, s16, 2"); o("s_lshr_b32 s19, s18, 1"); o("s_and_b32 s18, s18, 1"); o("s_xor_b32 s18, s18, s19"); o("s_lshl_b32 s18, s18, 1"); o("s_or_b32 s18, s18, s19")
            o("v_and_b32 v4, 3, v0"); o("v_xor_b32 v4, s18, v4"); o("v_lshlrev_b32 v4, 4, v4")
            o("v_lshrrev_b32 v5, 2, v0"); o("v_lshl_add_u32 v4, v5, 17, v4")
            o("s_lshl_b32 s17, s17, 10"); o("s_lshl_b32 s16, s16, 6"); o("s_add_u32 s17, s17, s16"); o(f"s_add_u32 s17, s17, {WS_H}")
            o("v_add_u32 v4, s17, v4")
            o(f"global_store_dwordx4 v4, {v(R0,4)}, {s(sWS,2)} sc1")
            o(f"v_add_u32 v4, {16*131072}, v4")
            o(f"global_store_dwordx4 v4, {v(R0+4,4)}, {s(sWS,2)} sc1")
        if pr == 0: o("s_nop 1")

def op_task(A):
    o = A
    S = 4; SBW = 6144
    sX, sY = 8, 12
    o("s_load_dwordx2 s[40:41], s[0:1], %d" % KA_WO); o("s_load_dwordx2 s[46:47], s[0:1], %d" % KA_X)
    o("s_waitcnt lgkmcnt(0)")
    srd(o, sX, 40, 0, 8 * MiB); srd(o, sY, sWS, WS_O, 16 * MiB)
    sDt, sTg = 48, 49
    o(f"s_lshl_b32 s{sDt}, s{sXb}, 1"); o(f"s_and_b32 s20, s{sI}, 1"); o(f"s_add_u32 s{sDt}, s{sDt}, s20")
    o(f"s_lshr_b32 s{sTg}, s{sI}, 1"); o(f"s_lshl_b32 s20, s{sCh}, 3"); o(f"s_add_u32 s{sTg}, s{sTg}, s20")
    sOX, sOY, sLb, sRd, sDm, sK = 20, 21, 22, 23, 24, 25
    o(f"s_lshl_b32 s{sOX}, s{sDt}, 7"); o(f"s_lshl_b32 s26, s{sW}, 16"); o(f"s_add_u32 s{sOX}, s{sOX}, s26")
    o(f"s_lshl_b32 s{sOY}, s{sTg}, 11"); o(f"s_lshl_b32 s26, s{sW}, 17"); o(f"s_add_u32 s{sOY}, s{sOY}, s26")
    o(f"s_mul_i32 s{sLb}, s{sW}, {S*SBW}")
    vi, vg, t0, t1, t2, t3 = 1, 2, 3, 4, 5, 6
    vXr, vYr, vXd, vYd, vC = 8, 12, 13, 17, 20
    o(f"v_and_b32 v{vi}, 15, v0"); o(f"v_lshrrev_b32 v{vg}, 4, v0")
    o(f"v_lshrrev_b32 v{t0}, 2, v{vi}"); o(f"v_and_b32 v{t1}, 1, v{vg}"); o(f"v_lshrrev_b32 v{t2}, 1, v{vg}")
    o(f"v_lshlrev_b32 v{t3}, 4, v{t2}"); o(f"v_lshl_add_u32 v{t3}, v{t0}, 1, v{t3}"); o(f"v_add_u32 v{t3}, v{t3}, v{t1}")
    o(f"v_lshlrev_b32 v{t3}, 7, v{t3}"); o(f"v_and_b32 v{t1}, 3, v{vi}"); o(f"v_lshl_add_u32 v{t3}, v{t1}, 3, v{t3}")
    o(f"v_add_u32 v{t3}, s{sLb}, v{t3}")
    for j in range(4):
        o(f"v_xor_b32 v{t1}, {j}, v{t0}"); o(f"v_lshl_add_u32 v{vXr+j}, v{t1}, 5, v{t3}")
    gfun(o, t2, vi, t1); o(f"v_xor_b32 v{t2}, v{t2}, v{vg}"); o(f"v_lshlrev_b32 v{t2}, 4, v{t2}"); o(f"v_lshl_add_u32 v{t2}, v{vi}, 6, v{t2}")
    o(f"s_add_u32 s26, s{sLb}, 4096"); o(f"v_add_u32 v{vYr}, s26, v{t2}")
    o(f"v_lshrrev_b32 v{t0}, 3, v0"); o(f"v_and_b32 v{t1}, 7, v0")
    o(f"v_lshrrev_b32 v{t3}, 1, v{t0}"); o(f"v_and_b32 v{t2}, 1, v{t0}"); o(f"v_lshl_add_u32 v{t2}, v{t2}, 3, v{t3}")
    o(f"v_lshrrev_b32 v{vi}, 1, v{t1}"); o(f"v_xor_b32 v{vi}, v{vi}, v{t3}"); o(f"v_lshlrev_b32 v{vi}, 5, v{vi}")
    o(f"v_and_b32 v{t1}, 1, v{t1}"); o(f"v_lshl_or_b32 v{vi}, v{t1}, 4, v{vi}")
    o(f"v_lshl_add_u32 v{vXd}, v{t2}, 11, v{vi}")
    for t in range(1, 4): o(f"v_add_u32 v{vXd+t}, {(4*(t&1) + 16*(t>>1))*2048}, v{vXd}")
    o(f"v_lshlrev_b32 v{vYd}, 4, v0"); o(f"v_add_u32 v{vYd+1}, 1024, v{vYd}")
    F = 28; FS = 24
    AC = 80
    def dma():
        L = []
        for t in range(4): L.append([f"s_add_u32 m0, s26, {t*1024}", f"buffer_load_dwordx4 v{vXd+t}, {s(sX,4)}, s{sOX} offen lds"])
        for t in range(2): L.append([f"s_add_u32 m0, s26, {4096+t*1024}", f"buffer_load_dwordx4 v{vYd+t}, {s(sY,4)}, s{sOY} offen lds"])
        return L
    def adv(r): return [f"s_add_u32 s{r}, s{r}, {SBW}", f"s_cmp_eq_u32 s{r}, {S*SBW}", f"s_cselect_b32 s{r}, 0, s{r}"]
    def dma_all():
        o(f"s_add_u32 s26, s{sLb}, s{sDm}")
        for g in dma():
            o(g[0]); o("s_nop 0"); o(g[1])
        o(f"s_add_u32 s{sOX}, s{sOX}, {4*32*2048}"); o(f"s_add_u32 s{sOY}, s{sOY}, {4*131072}")
        for x in adv(sDm): o(x)
    def rd(ph):
        for j in range(5): o(f"v_add_u32 v{vC+j}, s{sRd}, v{(vXr+j) if j < 4 else vYr}")
        for j in range(2): o(f"ds_read_b128 {v(F+ph*FS+16+4*j,4)}, v{vC+4} offset:{j*1024}")
        for j in range(4):
            o(f"ds_read_b64_tr_b16 {v(F+ph*FS+4*j,2)}, v{vC+j}"); o(f"ds_read_b64_tr_b16 {v(F+ph*FS+4*j+2,2)}, v{vC+j} offset:1024")
        for x in adv(sRd): o(x)
    o(f"s_mov_b32 s{sDm}, 0"); o(f"s_mov_b32 s{sRd}, 0")
    for st in range(S): dma_all()
    o(f"s_waitcnt vmcnt({6*(S-1)})")
    rd(0)
    def iteration(ph, first):
        o(f"s_waitcnt vmcnt({6*(S-2)}) lgkmcnt(0)")
        dma_all()
        rd(ph ^ 1)
        for jy in range(2):
            for jx in range(4):
                d = AC + (jx * 2 + jy) * 4
                c = "0" if first else v(d, 4)
                o(f"v_mfma_f32_16x16x32_bf16 {v(d,4)}, {v(F+ph*FS+4*jx,4)}, {v(F+ph*FS+16+4*jy,4)}, {c}")
    iteration(0, True); iteration(1, False)
    o(f"s_mov_b32 s{sK}, 15")
    A.label("L_op_loop")
    iteration(0, False); iteration(1, False)
    o(f"s_sub_u32 s{sK}, s{sK}, 1"); o(f"s_cmp_lg_u32 s{sK}, 0"); o("s_cbranch_scc1 L_op_loop")
    o("s_waitcnt vmcnt(0) lgkmcnt(0)")
    o("s_barrier")
    o("v_lshlrev_b32 v1, 4, v0"); o(f"s_lshl_b32 s26, s{sW}, 13"); o("v_add_u32 v2, s26, v1")
    for t in range(8): o(f"ds_write_b128 v2, {v(AC+4*t,4)} offset:{t*1024}")
    o("v_and_b32 v3, 15, v0"); o("v_lshrrev_b32 v4, 4, v0"); o("v_and_b32 v5, 1, v4"); o("v_lshrrev_b32 v4, 1, v4")
    o("v_lshlrev_b32 v5, 4, v5"); o("v_lshl_add_u32 v5, v4, 3, v5")
    o(f"s_lshl_b32 s26, s{sDt}, 6"); o(f"s_and_b32 s27, s{sW}, 1"); o("s_lshl_b32 s27, s27, 5"); o("s_add_u32 s26, s26, s27")
    o("v_add_u32 v5, s26, v5")
    o(f"s_lshl_b32 s26, s{sTg}, 5"); o(f"s_lshr_b32 s27, s{sW}, 1"); o("s_lshl_b32 s27, s27, 4"); o("s_add_u32 s26, s26, s27")
    o("v_add_u32 v3, s26, v3")
    o("v_lshlrev_b32 v6, 11, v3"); o("v_lshl_add_u32 v6, v5, 1, v6")
    o("v_lshlrev_b32 v7, 2, v5")
    o(f"s_add_u32 s44, s{sWS}, {WS_MOD + 2*4096}"); o(f"s_addc_u32 s45, s{sWS+1}, 0")
    GA, XR = 28, 36
    o(f"global_load_dwordx4 {v(GA,4)}, v7, s[44:45]"); o(f"global_load_dwordx4 {v(GA+4,4)}, v7, s[44:45] offset:16")
    o(f"global_load_dwordx4 {v(XR,4)}, v6, s[46:47]")
    o("s_waitcnt lgkmcnt(0)"); o("s_barrier")
    o(f"s_and_b32 s26, s{sW}, 1"); o("s_lshl_b32 s26, s26, 12"); o(f"s_lshr_b32 s27, s{sW}, 1"); o("s_lshl_b32 s27, s27, 10"); o("s_add_u32 s26, s26, s27")
    o("v_add_u32 v2, s26, v1")
    R = 48
    for sw in range(4):
        o(f"ds_read_b128 {v(R+8*sw,4)}, v2 offset:{sw*8192}"); o(f"ds_read_b128 {v(R+8*sw+4,4)}, v2 offset:{sw*8192+2048}")
    o("s_waitcnt lgkmcnt(0)")
    for e in range(8):
        o(f"v_add_f32 v{R+e}, v{R+e}, v{R+8+e}"); o(f"v_add_f32 v{R+16+e}, v{R+16+e}, v{R+24+e}")
    for e in range(8): o(f"v_add_f32 v{R+e}, v{R+e}, v{R+16+e}")
    for r in range(4): o(f"v_permlane16_swap_b32 v{R+r}, v{R+4+r}")
    o("s_waitcnt vmcnt(0)")
    U = 40 + 40
    unpack8(o, U, XR)
    for e in range(8): o(f"v_fma_f32 v{R+e}, v{R+e}, v{GA+e}, v{U+e}")
    for d in range(4): o(f"v_cvt_pk_bf16_f32 v{XR+d}, v{R+2*d}, v{R+2*d+1}")
    o(f"s_add_u32 s44, s{sWS}, {WS_X1}"); o(f"s_addc_u32 s45, s{sWS+1}, 0")
    o(f"global_store_dwordx4 v6, {v(XR,4)}, s[44:45] sc1")

def ln2_task(A):
    o = A
    o(f"s_lshl_b32 s14, s{sCh}, 3"); o(f"s_add_u32 s14, s14, s{sXb}")
    o("v_lshlrev_b32 v2, 4, v0")
    o(f"s_lshl_b32 s15, s14, 16"); o(f"s_lshl_b32 s16, s{sW}, 14"); o("s_add_u32 s15, s15, s16"); o(f"s_add_u32 s15, s15, {WS_X1}")
    o(f"s_add_u32 s10, s{sWS}, s15"); o(f"s_addc_u32 s11, s{sWS+1}, 0")
    RAW = 96
    for r in range(8):
        if r and r % 2 == 0: o("s_add_u32 s10, s10, 4096"); o("s_addc_u32 s11, s11, 0")
        off = (r % 2) * 2048
        o(f"global_load_dwordx4 {v(RAW+8*r,4)}, v2, s[10:11] offset:{off}"); o(f"global_load_dwordx4 {v(RAW+8*r+4,4)}, v2, s[10:11] offset:{off+1024}")
    o("v_lshrrev_b32 v3, 3, v0"); o("v_and_b32 v4, 7, v0")
    o("v_lshlrev_b32 v5, 11, v3"); o("v_lshl_add_u32 v5, v4, 4, v5"); o(f"s_lshl_b32 s16, s{sI}, 7"); o("v_add_u32 v5, s16, v5")
    o(f"s_add_u32 s10, s{sWS}, s15"); o(f"s_addc_u32 s11, s{sWS+1}, 0")
    SL = 24
    o(f"global_load_dwordx4 {v(SL,4)}, v5, s[10:11]")
    o("v_lshlrev_b32 v6, 5, v4"); o(f"s_lshl_b32 s16, s{sI}, 8"); o("v_add_u32 v6, s16, v6")
    o(f"s_add_u32 s12, s{sWS}, {WS_MOD + 3*4096}"); o(f"s_addc_u32 s13, s{sWS+1}, 0")
    SB_, CB_ = 64, 72
    o(f"global_load_dwordx4 {v(SB_,4)}, v6, s[12:13]"); o(f"global_load_dwordx4 {v(SB_+4,4)}, v6, s[12:13] offset:16")
    o("s_add_u32 s12, s12, 4096"); o("s_addc_u32 s13, s13, 0")
    o(f"global_load_dwordx4 {v(CB_,4)}, v6, s[12:13]"); o(f"global_load_dwordx4 {v(CB_+4,4)}, v6, s[12:13] offset:16")
    vMean, vRs, X, sm, t = 80, 81, 32, 7, 8
    for r in range(8):
        o(f"s_waitcnt vmcnt({5 + 2*(7-r)})")
        unpack8(o, X, RAW + 8 * r); unpack8(o, X + 8, RAW + 8 * r + 4)
        o(f"v_add_f32 v{sm}, v{X}, v{X+1}")
        for e in range(2, 16): o(f"v_add_f32 v{sm}, v{sm}, v{X+e}")
        wave_sum(o, sm, t)
        o(f"v_mul_f32 v{sm}, {fbits(1.0/1024)}, v{sm}")
        for e in range(16): o(f"v_sub_f32 v{X+e}, v{X+e}, v{sm}")
        o(f"v_mul_f32 v9, v{X}, v{X}")
        for e in range(1, 16): o(f"v_fmac_f32 v9, v{X+e}, v{X+e}")
        wave_sum(o, 9, t)
        o(f"v_mov_b32 v{t}, {fbits(1e-5)}"); o(f"v_fmac_f32 v{t}, {fbits(1.0/1024)}, v9"); o(f"v_rsq_f32 v{t}, v{t}")
        o(f"v_cmp_eq_u32 vcc, {r}, v3")
        o(f"v_cndmask_b32 v{vMean}, v{vMean}, v{sm}, vcc"); o(f"v_cndmask_b32 v{vRs}, v{vRs}, v{t}, vcc")
    o("s_waitcnt vmcnt(0)")
    unpack8(o, X, SL)
    for e in range(8):
        o(f"v_sub_f32 v{X+e}, v{X+e}, v{vMean}"); o(f"v_mul_f32 v{X+e}, v{X+e}, v{vRs}")
        o(f"v_add_f32 v{CB_+e}, 1.0, v{CB_+e}"); o(f"v_fma_f32 v{X+e}, v{X+e}, v{CB_+e}, v{SB_+e}")
    for d in range(4): o(f"v_cvt_pk_bf16_f32 v{SL+d}, v{X+2*d}, v{X+2*d+1}")
    RS = 128 + 32
    o(f"s_lshl_b32 s16, s{sW}, 3"); o("v_add_u32 v5, s16, v3"); o(f"v_mul_u32_u24 v5, {RS}, v5"); o("v_lshl_add_u32 v5, v4, 4, v5")
    o(f"ds_write_b128 v5, {v(SL,4)}")
    o("s_waitcnt lgkmcnt(0)"); o("s_barrier")
    o("v_and_b32 v5, 15, v0"); o("v_lshrrev_b32 v6, 4, v0")
    o("v_lshrrev_b32 v7, 2, v5"); o("v_lshl_add_u32 v7, v6, 3, v7"); o(f"v_mul_u32_u24 v7, {RS}, v7")
    o("v_and_b32 v8, 3, v5"); o("v_lshl_add_u32 v7, v8, 3, v7"); o(f"s_lshl_b32 s16, s{sW}, 5"); o("v_add_u32 v7, s16, v7")
    o(f"ds_read_b64_tr_b16 {v(SL,2)}, v7"); o(f"ds_read_b64_tr_b16 {v(SL+2,2)}, v7 offset:{4*RS}")
    gfun(o, 8, 5, 9); o("v_xor_b32 v8, v8, v6"); o("v_lshl_add_u32 v8, v5, 2, v8"); o("v_lshlrev_b32 v8, 4, v8")
    o("s_lshl_b32 s16, s14, 16"); o(f"s_lshl_b32 s17, s{sI}, 12"); o("s_add_u32 s16, s16, s17"); o(f"s_lshl_b32 s17, s{sW}, 10"); o("s_add_u32 s16, s16, s17"); o(f"s_add_u32 s16, s16, {WS_H2T}")
    o("v_add_u32 v8, s16, v8")
    o("s_waitcnt lgkmcnt(0)")
    o(f"global_store_dwordx4 v8, {v(SL,4)}, {s(sWS,2)} sc1")

def g1_partial(A, opt):
    o = A
    sX, sY = 8, 12
    o("s_load_dwordx2 s[40:41], s[0:1], %d" % KA_W1); o("s_waitcnt lgkmcnt(0)")
    srd(o, sX, 40, 0, 2048 * 7168); srd(o, sY, sWS, WS_H2T, 4 * MiB)
    o(f"s_add_u32 s26, s{sCh}, 1"); o(f"s_lshl_b32 s{sY+2}, s26, 19")
    o(f"s_mul_i32 s{sX+2}, s26, {256*7168}")
    G = Gemm(A, 8, 4, False, "g", accbase=128)
    sOffX, sOffY, sM0, sK = 20, 21, [22, 23], 24
    o(f"s_mul_i32 s{sOffX}, s{sCh}, {256*7168}"); o(f"s_lshl_b32 s26, s{sI}, 9"); o(f"s_add_u32 s{sOffX}, s{sOffX}, s26")
    o(f"s_lshl_b32 s{sOffY}, s{sCh}, 19"); o(f"s_lshl_b32 s26, s{sXb}, 13"); o(f"s_add_u32 s{sOffY}, s{sOffY}, s26")
    o(f"s_mul_i32 s{sM0[0]}, s{sW}, {G.NIX*1024}"); o(f"s_mul_i32 s{sM0[1]}, s{sW}, {G.NIY*1024}")
    G.setup(sW, 0, 7168, 0, [1, 2, 3, 4, 5, 6], [25, 26, 27, 28])
    o2 = dict(opt); o2["accum"] = 1
    gen_loop(G, sX, sY, sOffX, sOffY, sM0, sK, 32 * 7168, 64 * 1024, 8, "L_g1", opt=o2, sSt=[32, 33, 34])
    o("s_barrier")
    return G

def g1_epilogue(A, G, sF=sI, sD=sXb):
    o = A
    E = G.vF
    o("s_load_dwordx2 s[42:43], s[0:1], %d" % KA_B1)
    o("v_and_b32 v1, 15, v0"); o("v_lshrrev_b32 v2, 4, v0"); o("v_and_b32 v3, 1, v2"); o("v_lshrrev_b32 v2, 1, v2")
    o("v_lshlrev_b32 v4, 4, v3"); o("v_lshl_add_u32 v4, v2, 3, v4")
    o("v_lshl_or_b32 v2, v3, 1, v2")
    gfun(o, 3, 1, 5)
    o("v_xor_b32 v2, v2, v3"); o("v_lshl_add_u32 v2, v1, 2, v2"); o("v_lshlrev_b32 v2, 4, v2")
    o(f"s_lshl_b32 s25, s{sF}, 8"); o(f"s_and_b32 s26, s{sW}, 1"); o("s_lshl_b32 s26, s26, 7"); o("s_add_u32 s25, s25, s26")
    o("v_add_u32 v4, s25, v4"); o("v_lshlrev_b32 v4, 1, v4")
    BR = E + 64
    o("s_waitcnt lgkmcnt(0)")
    for jp in range(4): o(f"global_load_dwordx4 {v(BR+4*jp,4)}, v4, s[42:43] offset:{jp*64}")
    o("s_lshr_b32 s26, s25, 5"); o("s_lshl_b32 s26, s26, 16")
    o(f"s_lshl_b32 s27, s{sD}, 3"); o(f"s_lshr_b32 s28, s{sW}, 1"); o("s_lshl_b32 s28, s28, 2"); o("s_add_u32 s27, s27, s28"); o("s_lshl_b32 s27, s27, 10")
    o("s_add_u32 s26, s26, s27"); o(f"s_add_u32 s26, s26, {WS_U}")
    o(f"s_add_u32 s44, s{sWS}, s26"); o(f"s_addc_u32 s45, s{sWS+1}, 0")
    o("s_waitcnt vmcnt(0)")
    BF = E + 80
    c1 = -2.0 * math.sqrt(2.0 / math.pi) * LOG2E
    o(f"s_mov_b32 s46, {fbits(0.044715)}"); o(f"s_mov_b32 s47, {fbits(c1)}")
    k = 0
    for jp in range(4):
        unpack8(o, BF, BR + 4 * jp)
        for jy in range(4):
            T = E + 16 * (k % 3) + 4; k += 1
            ra, rb = G.accr(2 * jp, jy), G.accr(2 * jp + 1, jy)
            for r in range(4): o(f"v_accvgpr_read_b32 v{T+r}, a{ra+r}")
            for r in range(4): o(f"v_accvgpr_read_b32 v{T+4+r}, a{rb+r}")
            for r in range(4): o(f"v_permlane16_swap_b32 v{T+r}, v{T+4+r}")
            U = E + 48
            for e in range(8): o(f"v_add_f32 v{T+e}, v{T+e}, v{BF+e}")
            for e in range(8): o(f"v_mul_f32 v{U+e}, v{T+e}, v{T+e}")
            for e in range(8): o(f"v_fma_f32 v{U+e}, v{U+e}, s46, 1.0")
            for e in range(8): o(f"v_mul_f32 v{U+e}, v{U+e}, v{T+e}")
            for e in range(8): o(f"v_mul_f32 v{U+e}, s47, v{U+e}")
            for e in range(8): o(f"v_exp_f32 v{U+e}, v{U+e}")
            for e in range(8): o(f"v_add_f32 v{U+e}, 1.0, v{U+e}")
            for e in range(8): o(f"v_rcp_f32 v{U+e}, v{U+e}")
            for e in range(8): o(f"v_mul_f32 v{T+e}, v{T+e}, v{U+e}")
            P = T - 4
            for d in range(4): o(f"v_cvt_pk_bf16_f32 v{P+d}, v{T+2*d}, v{T+2*d+1}")
            o(f"v_add_u32 v5, {jp*65536 + jy*1024}, v2")
            o(f"global_store_dwordx4 v5, {v(P,4)}, s[44:45]")

def prefetch_task(A, ka, nbytes, tag):
    o = A
    per = nbytes // 128
    assert per % 4096 == 0 or True
    n4k = (per + 4095) // 4096
    o(f"s_load_dwordx2 s[40:41], s[0:1], {ka}"); o("s_waitcnt lgkmcnt(0)")
    srd(o, 8, 40, 0, nbytes)
    o(f"s_mul_i32 s20, s{sB}, {n4k*4096}"); o(f"s_lshl_b32 s21, s{sW}, 10"); o("s_add_u32 s20, s20, s21")
    o("v_lshlrev_b32 v2, 4, v0")
    o(f"s_mov_b32 s22, {n4k}")
    A.label(f"L_pf_{tag}")
    o("buffer_load_dwordx4 v[8:11], v2, s[8:11], s20 offen")
    o("s_add_u32 s20, s20, 4096"); o("s_sub_u32 s22, s22, 1"); o("s_cmp_lg_u32 s22, 0")
    o(f"s_cbranch_scc0 L_pf_{tag}_d")
    o("buffer_load_dwordx4 v[12:15], v2, s[8:11], s20 offen")
    o("s_add_u32 s20, s20, 4096"); o("s_sub_u32 s22, s22, 1"); o("s_cmp_lg_u32 s22, 0")
    o("s_waitcnt vmcnt(24)")
    o(f"s_cbranch_scc1 L_pf_{tag}")
    A.label(f"L_pf_{tag}_d")
    o("s_waitcnt vmcnt(0)")

def op_pass(A, ntok_tiles_log2, opt=None):
    opt = opt or {}
    o = A
    sX, sY = 8, 12
    o("s_load_dwordx2 s[40:41], s[0:1], %d" % KA_WO); o("s_load_dwordx2 s[46:47], s[0:1], %d" % KA_X)
    sDt, sTt = 48, 49
    o(f"s_lshr_b32 s{sDt}, s{sXb}, 1"); o(f"s_lshl_b32 s{sDt}, s{sDt}, 2"); o(f"s_and_b32 s20, s{sI}, 3"); o(f"s_add_u32 s{sDt}, s{sDt}, s20")
    o(f"s_and_b32 s{sTt}, s{sXb}, 1"); o(f"s_lshl_b32 s{sTt}, s{sTt}, 2"); o(f"s_lshr_b32 s20, s{sI}, 2"); o(f"s_add_u32 s{sTt}, s{sTt}, s20")
    o(f"s_cmp_ge_u32 s{sTt}, {1 << ntok_tiles_log2}"); o(f"s_cbranch_scc1 L_opp_skip{ntok_tiles_log2}")
    o(f"s_lshl_b32 s{sTt}, s{sTt}, 6"); o(f"s_add_u32 s{sTt}, s{sTt}, s{sTok}")
    o("s_waitcnt lgkmcnt(0)")
    srd(o, sX, 40, 0, 8 * MiB); srd(o, sY, sWS, WS_O, 16 * MiB)
    G = Gemm(A, 2, 2, False, "o")
    sOffX, sOffY, sM0, sK = 20, 21, [22, 23], 24
    o(f"s_lshl_b32 s{sOffX}, s{sDt}, 7"); o(f"s_lshl_b32 s{sOffY}, s{sTt}, 6")
    o(f"s_mul_i32 s{sM0[0]}, s{sW}, {G.NIX*1024}"); o(f"s_mul_i32 s{sM0[1]}, s{sW}, {G.NIY*1024}")
    G.setup(sW, 0, 2048, 0, [1, 2, 3, 4, 5, 6], [25, 26, 27, 28])
    gen_loop2(G, sX, sY, sOffX, sOffY, sM0, sK, 32 * 2048, 128 * 1024, 128, f"L_opp{ntok_tiles_log2}", K=opt.get("opK", 4), R=opt.get("opR", 16), sSt=[32, 33, 34])
    E = G.vF
    o("v_and_b32 v1, 15, v0"); o("v_lshrrev_b32 v2, 4, v0"); o("v_and_b32 v3, 1, v2"); o("v_lshrrev_b32 v2, 1, v2")
    o("v_lshlrev_b32 v3, 4, v3"); o("v_lshl_add_u32 v3, v2, 3, v3")
    o(f"s_lshl_b32 s25, s{sDt}, 6"); o(f"s_and_b32 s26, s{sW}, 1"); o("s_lshl_b32 s26, s26, 5"); o("s_add_u32 s25, s25, s26")
    o("v_add_u32 v3, s25, v3")
    o(f"s_lshr_b32 s26, s{sW}, 1"); o("s_lshl_b32 s26, s26, 5"); o(f"s_add_u32 s25, s{sTt}, s26")
    o("v_add_u32 v1, s25, v1")
    o("v_lshlrev_b32 v4, 11, v1"); o("v_lshl_add_u32 v4, v3, 1, v4")
    o("v_lshlrev_b32 v5, 2, v3")
    o(f"s_add_u32 s44, s{sWS}, {WS_MOD + 2*4096}"); o(f"s_addc_u32 s45, s{sWS+1}, 0")
    GA = E + 64; XR = E + 72
    o(f"global_load_dwordx4 {v(GA,4)}, v5, s[44:45]"); o(f"global_load_dwordx4 {v(GA+4,4)}, v5, s[44:45] offset:16")
    for jy in range(2):
        o(f"v_add_u32 v6, {jy*16*2048}, v4"); o(f"global_load_dwordx4 {v(XR+4*jy,4)}, v6, s[46:47]")
    o(f"s_add_u32 s44, s{sWS}, {WS_X1}"); o(f"s_addc_u32 s45, s{sWS+1}, 0")
    for jy in range(2):
        T = E + 16 * jy + 4
        for r in range(4): o(f"v_accvgpr_read_b32 v{T+r}, a{G.accr(0, jy)+r}")
        for r in range(4): o(f"v_accvgpr_read_b32 v{T+4+r}, a{G.accr(1, jy)+r}")
        for r in range(4): o(f"v_permlane16_swap_b32 v{T+r}, v{T+4+r}")
        if jy == 0: o("s_waitcnt vmcnt(0)")
        U = E + 48
        unpack8(o, U, XR + 4 * jy)
        for e in range(8): o(f"v_fma_f32 v{T+e}, v{T+e}, v{GA+e}, v{U+e}")
        P = T - 4
        for d in range(4): o(f"v_cvt_pk_bf16_f32 v{P+d}, v{T+2*d}, v{T+2*d+1}")
        o(f"v_add_u32 v6, {jy*16*2048}, v4")
        o(f"global_store_dwordx4 v6, {v(P,4)}, s[44:45] sc1")
    A.label(f"L_opp_skip{ntok_tiles_log2}")

def ln2_pass(A, nks_log2):
    o = A
    if nks_log2 == 3:
        o(f"s_lshr_b32 s{sCh}, s{sTok}, 8"); ln2_task(A); return
    for h in range(2):
        o(f"s_mov_b32 s76, s{sXb}"); o(f"s_mov_b32 s77, s{sI}"); o(f"s_mov_b32 s78, s{sCh}")
        o(f"s_lshl_b32 s79, s{sXb}, 1"); o(f"s_lshr_b32 s80, s{sI}, 3"); o("s_add_u32 s79, s79, s80")
        o(f"s_and_b32 s80, s{sI}, 7"); o("s_lshl_b32 s80, s80, 1"); o(f"s_add_u32 s{sI}, s80, {h}")
        o(f"s_and_b32 s{sXb}, s79, 7"); o("s_lshr_b32 s79, s79, 3"); o(f"s_lshr_b32 s{sCh}, s{sTok}, 8"); o(f"s_add_u32 s{sCh}, s{sCh}, s79")
        ln2_task(A)
        o(f"s_mov_b32 s{sXb}, s76"); o(f"s_mov_b32 s{sI}, s77"); o(f"s_mov_b32 s{sCh}, s78")
        if h == 0: o("s_barrier")

def g1_pass(A, opt, nit, lab):
    o = A
    sX, sY = 8, 12
    o("s_load_dwordx2 s[40:41], s[0:1], %d" % KA_W1); o("s_waitcnt lgkmcnt(0)")
    srd(o, sX, 40, 0, 2048 * 7168); srd(o, sY, sWS, WS_H2T, 4 * MiB)
    o(f"s_add_u32 s26, s{sTok}, {32*nit}"); o(f"s_lshl_b32 s{sY+2}, s26, 11")
    o(f"s_mul_i32 s{sX+2}, s26, 7168")
    G = Gemm(A, 8, 4, False, "g", accbase=128)
    sOffX, sOffY, sM0, sK = 20, 21, [22, 23], 24
    o(f"s_mul_i32 s{sOffX}, s{sTok}, 7168"); o(f"s_lshl_b32 s26, s{sFt}, 9"); o(f"s_add_u32 s{sOffX}, s{sOffX}, s26")
    o(f"s_lshl_b32 s{sOffY}, s{sTok}, 11"); o(f"s_lshl_b32 s26, s{sDtG}, 13"); o(f"s_add_u32 s{sOffY}, s{sOffY}, s26")
    o(f"s_mul_i32 s{sM0[0]}, s{sW}, {G.NIX*1024}"); o(f"s_mul_i32 s{sM0[1]}, s{sW}, {G.NIY*1024}")
    G.setup(sW, 0, 7168, 0, [1, 2, 3, 4, 5, 6], [25, 26, 27, 28])
    o2 = dict(opt); o2["accum"] = 1; o2["S"] = 5
    gen_loop(G, sX, sY, sOffX, sOffY, sM0, sK, 32 * 7168, 64 * 1024, nit, lab, opt=o2, sSt=[32, 33, 34])
    o("s_barrier")
    return G

def fast_check(A, tag):
    o = A
    LB = 131072 - 64
    o(f"s_cmp_lg_u32 s{sW}, 0"); o(f"s_cbranch_scc1 L_fc_{tag}_w")
    o("s_mov_b64 exec, 0xff"); o("v_lshlrev_b32 v1, 2, v0"); o("s_mov_b32 s13, 0x200000")
    A.label(f"L_fc_{tag}_p")
    o(f"global_load_dword v4, v1, {s(sDBG,2)} sc1"); o("s_waitcnt vmcnt(0)")
    o("v_mov_b32 v5, v4")
    o("v_add_u32_dpp v5, v5, v5 quad_perm:[1,0,3,2] row_mask:0xf bank_mask:0xf")
    o("v_add_u32_dpp v5, v5, v5 quad_perm:[2,3,0,1] row_mask:0xf bank_mask:0xf")
    o("v_add_u32_dpp v5, v5, v5 row_half_mirror row_mask:0xf bank_mask:0xf")
    o("v_readfirstlane_b32 s14, v5")
    o("s_cmp_ge_u32 s14, 256"); o(f"s_cbranch_scc1 L_fc_{tag}_a")
    o("s_sleep 8"); o("s_sub_u32 s13, s13, 1"); o(f"s_cbranch_scc0 L_fc_{tag}_p")
    A.label(f"L_fc_{tag}_a")
    o("v_cmp_ne_u32 vcc, 32, v4"); o("s_nop 1"); o("s_cmp_eq_u64 vcc, 0"); o("s_cselect_b32 s15, 1, 0")
    o("s_mov_b64 exec, 1"); o("v_mov_b32 v6, s15"); o(f"v_mov_b32 v1, {LB}"); o("ds_write_b32 v1, v6"); o("s_waitcnt lgkmcnt(0)"); o("s_mov_b64 exec, -1")
    A.label(f"L_fc_{tag}_w")
    o("s_barrier")
    o(f"v_mov_b32 v1, {LB}"); o("ds_read_b32 v6, v1"); o("s_waitcnt lgkmcnt(0)"); o("v_readfirstlane_b32 s15, v6")
    o("s_barrier")

WS_MODP2 = 128 * 1024
CNT_FILL2 = 43520
def mod_half(A):
    o = A
    o("s_mov_b64 s[8:9], s[76:77]")
    o(f"s_lshr_b32 s12, s{sB}, 6"); o("s_lshl_b32 s12, s12, 9"); o(f"s_lshl_b32 s13, s{sW}, 7"); o("s_add_u32 s12, s12, s13")
    o("v_lshrrev_b32 v5, 2, v0"); o("v_add_u32 v5, s12, v5"); o("v_lshlrev_b32 v6, 2, v5")
    o("s_mov_b32 s13, 12288"); o("v_mul_lo_u32 v7, v5, s13"); o("v_and_b32 v26, 3, v0"); o("v_lshl_add_u32 v7, v26, 4, v7")
    o(f"s_and_b32 s12, s{sB}, 63"); o("s_lshl_b32 s12, s12, 6"); o("v_add_u32 v7, s12, v7")
    W = 32
    for it in range(8):
        o(f"global_load_dwordx4 {v(W+4*it,4)}, v7, s[8:9]"); o(f"v_add_u32 v7, {16*12288}, v7")
    return W

def mod_half_finish(A, W, younger):
    o = A
    Cc, AC = 64, 72
    for it in range(8): o(f"ds_read_b32 v{Cc+it}, v6 offset:{it*64}")
    for e in range(8): o(f"v_mov_b32 v{AC+e}, 0")
    o("s_waitcnt lgkmcnt(0)")
    for it in range(8):
        o(f"s_waitcnt vmcnt({7-it+younger})")
        for d in range(4):
            o(f"v_lshlrev_b32 v27, 16, v{W+4*it+d}"); o(f"v_and_b32 v28, 0xffff0000, v{W+4*it+d}")
            o(f"v_fmac_f32 v{AC+2*d}, v27, v{Cc+it}"); o(f"v_fmac_f32 v{AC+2*d+1}, v28, v{Cc+it}")
    for e in range(8):
        x = AC + e
        o(f"v_add_f32_dpp v{x}, v{x}, v{x} row_ror:4 row_mask:0xf bank_mask:0xf")
        o(f"v_add_f32_dpp v{x}, v{x}, v{x} row_ror:8 row_mask:0xf bank_mask:0xf")
        for sw in ("16", "32"):
            o(f"v_mov_b32 v27, v{x}"); o(f"v_permlane{sw}_swap_b32 v{x}, v27"); o(f"v_add_f32 v{x}, v{x}, v27")
    o(f"s_lshl_b32 s12, s{sW}, 7"); o("v_lshlrev_b32 v5, 5, v26"); o("v_add_u32 v5, s12, v5")
    o("s_mov_b64 exec, 0xf")
    o(f"ds_write_b128 v5, {v(AC,4)} offset:4096"); o(f"ds_write_b128 v5, {v(AC+4,4)} offset:4112")
    o("s_mov_b64 exec, -1")
    o("s_waitcnt lgkmcnt(0)"); o("s_barrier")
    o(f"s_cmp_lg_u32 s{sW}, 0"); o("s_cbranch_scc1 L_mh_d")
    o("v_lshlrev_b32 v5, 2, v0"); o("s_mov_b64 exec, 0xffffffff")
    for w in range(4): o(f"ds_read_b32 v{32+w}, v5 offset:{4096+w*128}")
    o("s_waitcnt lgkmcnt(0)")
    o("v_add_f32 v32, v32, v33"); o("v_add_f32 v34, v34, v35"); o("v_add_f32 v32, v32, v34")
    o(f"s_lshr_b32 s12, s{sB}, 6"); o("s_lshl_b32 s12, s12, 13"); o(f"s_and_b32 s13, s{sB}, 63"); o("s_lshl_b32 s13, s13, 7"); o("s_add_u32 s12, s12, s13"); o(f"s_add_u32 s12, s12, {WS_MODP2}")
    o("v_add_u32 v5, s12, v5")
    o(f"global_store_dword v5, v32, {s(sWS,2)} sc1")
    o("s_mov_b64 exec, -1")
    A.label("L_mh_d")

def ln1_pre(A):
    o = A
    o("s_mov_b64 s[16:17], s[78:79]")
    o("v_lshlrev_b32 v2, 4, v0")
    o(f"s_lshl_b32 s14, s{sB}, 4"); o(f"s_lshl_b32 s15, s{sW}, 2"); o("s_add_u32 s14, s14, s15"); o("s_lshl_b32 s15, s14, 11")
    o("s_add_u32 s16, s16, s15"); o("s_addc_u32 s17, s17, 0")
    for r in range(4):
        off = (r % 2) * 2048
        if r == 2: o("s_add_u32 s16, s16, 4096"); o("s_addc_u32 s17, s17, 0")
        o(f"global_load_dwordx4 {v(96+8*r,4)}, v2, s[16:17] offset:{off}"); o(f"global_load_dwordx4 {v(96+8*r+4,4)}, v2, s[16:17] offset:{off+1024}")

def ln1_stats(A):
    o = A
    X = [128, 144, 160, 176]
    for r in range(4):
        unpack8(o, X[r], 96 + 8 * r); unpack8(o, X[r] + 8, 96 + 8 * r + 4)
    ln_rows(o, X, 4, [4, 5], 1e-5)

def ln1_fin(A):
    o = A
    RAW = 96; X = [128, 144, 160, 176]
    o("v_lshlrev_b32 v3, 5, v0")
    SA, CA = 64, 80
    TT = {SA: 192, CA: 208}
    for dst, base in ((SA, 0), (CA, 4096)):
        for q in range(2):
            o(f"s_add_u32 s12, s{sWS}, {WS_MODP2 + q*8192 + base}"); o(f"s_addc_u32 s13, s{sWS+1}, 0")
            tgt = dst if q == 0 else TT[dst]
            for h in range(2):
                for k in range(2): o(f"global_load_dwordx4 {v(tgt+8*h+4*k,4)}, v3, s[12:13] offset:{h*2048+k*16} sc1")
    o(f"s_lshl_b32 s14, s{sB}, 4"); o(f"s_lshl_b32 s15, s{sW}, 2"); o("s_add_u32 s14, s14, s15")
    o("s_waitcnt vmcnt(0)")
    for dst in (SA, CA):
        for e in range(16): o(f"v_add_f32 v{dst+e}, v{dst+e}, v{TT[dst]+e}")
        for e in range(0, 16, 2):
            o(f"v_cvt_pk_bf16_f32 v6, v{dst+e}, v{dst+e+1}"); o(f"v_lshlrev_b32 v{dst+e}, 16, v6"); o(f"v_and_b32 v{dst+e+1}, 0xffff0000, v6")
    for e in range(16): o(f"v_add_f32 v{CA+e}, 1.0, v{CA+e}")
    for r in range(4):
        R0 = RAW + 8 * r
        for e in range(16): o(f"v_fma_f32 v{X[r]+e}, v{X[r]+e}, v{CA+e}, v{SA+e}")
        for h in range(2):
            for d in range(4): o(f"v_cvt_pk_bf16_f32 v{R0+4*h+d}, v{X[r]+8*h+2*d}, v{X[r]+8*h+2*d+1}")
        o(f"s_add_u32 s16, s14, {r}"); o("s_lshr_b32 s17, s16, 4"); o("s_and_b32 s16, s16, 15")
        o("s_lshr_b32 s18, s16, 2"); o("s_lshr_b32 s19, s18, 1"); o("s_and_b32 s18, s18, 1"); o("s_xor_b32 s18, s18, s19"); o("s_lshl_b32 s18, s18, 1"); o("s_or_b32 s18, s18, s19")
        o("v_and_b32 v4, 3, v0"); o("v_xor_b32 v4, s18, v4"); o("v_lshlrev_b32 v4, 4, v4")
        o("v_lshrrev_b32 v5, 2, v0"); o("v_lshl_add_u32 v4, v5, 17, v4")
        o("s_lshl_b32 s17, s17, 10"); o("s_lshl_b32 s16, s16, 6"); o("s_add_u32 s17, s17, s16"); o(f"s_add_u32 s17, s17, {WS_H}")
        o("v_add_u32 v4, s17, v4")
        o(f"global_store_dwordx4 v4, {v(R0,4)}, {s(sWS,2)} sc1")
        o(f"v_add_u32 v4, {16*131072}, v4")
        o(f"global_store_dwordx4 v4, {v(R0+4,4)}, {s(sWS,2)} sc1")

def gen_bulk(opt):
    A = Asm(); o = A
    bprof = opt.get("bprof")
    def bstamp(k, chunked=True):
        if not bprof: return
        o("s_memrealtime s[72:73]"); o("s_waitcnt lgkmcnt(0)")
        o(f"s_lshl_b32 s74, s{sB}, 10")
        if chunked:
            o(f"s_lshl_b32 s75, s{sCh}, 6"); o("s_add_u32 s74, s74, s75"); o(f"s_add_u32 s74, s74, 64")
        o(f"s_add_u32 s74, s74, {WS_PROF + 4*MiB + 0} + {k*4}")
        o("v_mov_b32 v250, s74"); o("v_mov_b32 v251, s72")
        o("s_mov_b64 exec, 1"); o(f"global_store_dword v250, v251, {s(sWS,2)}"); o("s_mov_b64 exec, -1")
    o(f"s_load_dwordx2 {s(sWS,2)}, s[0:1], {KA_WS}")
    o(f"s_load_dwordx2 s[76:77], s[0:1], {KA_WMOD}"); o(f"s_load_dwordx2 s[78:79], s[0:1], {KA_X}"); o(f"s_load_dwordx2 s[84:85], s[0:1], {KA_C}")
    o("s_waitcnt lgkmcnt(0)")
    o(f"s_add_u32 s{sCNT}, s{sWS}, {WS_CNT}"); o(f"s_addc_u32 s{sCNT+1}, s{sWS+1}, 0")
    o(f"s_cmp_eq_u32 s{sChk}, 0"); o("s_cbranch_scc0 L_cb"); o(f"s_add_u32 s{sCNT}, s{sCNT}, {SLOW_OFF}"); o(f"s_addc_u32 s{sCNT+1}, s{sCNT+1}, 0")
    A.label("L_cb")
    o(f"s_lshl_b32 s{sB}, s{sXb}, 4"); o(f"s_add_u32 s{sB}, s{sB}, s{sI}")
    o(f"s_mov_b32 s{sLim}, 0x400000")
    bstamp(0, False)
    ST2 = opt.get("st2")
    if ST2:
        W_ = mod_half(A)
        ln1_pre(A)
        silu_to_lds(A, pre=84)
        mod_half_finish(A, W_, 0)
        ln1_stats(A)
        o(f"s_cmp_eq_u32 s{sChk}, 0"); o("s_cbranch_scc1 L_nochk")
        fast_check(A, "b")
        o("s_cmp_eq_u32 s15, 0"); o("s_cbranch_scc1 M_slow")
        A.label("L_nochk")
        signal(A, CNT_MODA, "m1")
        bstamp(1, False)
        wait_cnt(A, CNT_MODA, 128, "ma")
        bstamp(2, False)
        ln1_fin(A)
        o(f"s_lshr_b32 s{sCntOff}, s{sB}, 4"); o(f"s_lshl_b32 s{sCntOff}, s{sCntOff}, 7")
        signal(A, CNT_LN1, "l1", off_s=sCntOff)
    else:
        silu_to_lds(A)
        o(f"s_lshl_b32 s{sCt}, s{sB}, 5")
        mod_task(A, sCt, "a")
        o(f"s_cmp_eq_u32 s{sChk}, 0"); o("s_cbranch_scc1 L_nochk")
        fast_check(A, "b")
        o("s_cmp_eq_u32 s15, 0"); o("s_cbranch_scc1 M_slow")
        A.label("L_nochk")
        o(f"s_cmp_lt_u32 s{sB}, 64"); o(f"s_cselect_b32 s{sCntOff}, {CNT_MODA}, s{sCntOff}"); o(f"s_mov_b32 s44, {CNT_MODB}"); o(f"s_cselect_b32 s{sCntOff}, s{sCntOff}, s44")
        signal(A, 0, "m1", off_s=sCntOff)
        bstamp(1, False)
        wait_cnt(A, CNT_MODA, 64, "ma")
        bstamp(2, False)
        ln1_task(A)
        o(f"s_lshr_b32 s{sCntOff}, s{sB}, 4"); o(f"s_lshl_b32 s{sCntOff}, s{sCntOff}, 7")
        signal(A, CNT_LN1, "l1", off_s=sCntOff)
    bstamp(3, False)
    srd_h = lambda: srd(o, 12, sWS, WS_H, 4 * MiB)
    o(f"s_mov_b32 s{sRound}, 0")
    A.label("L_task")
    t0, t1, t2 = 44, 45, 46
    o(f"s_lshl_b32 s{t0}, s{sXb}, 2"); o(f"s_and_b32 s{t1}, s{sI}, 3"); o(f"s_add_u32 s{t0}, s{t0}, s{t1}"); o(f"s_add_u32 s{t0}, s{t0}, 16")
    o(f"s_lshl_b32 s{t1}, s{sXb}, 1"); o(f"s_and_b32 s{t2}, s{sI}, 1"); o(f"s_add_u32 s{t1}, s{t1}, s{t2}")
    o(f"s_lshr_b32 s{t2}, s{sI}, 2")
    o(f"s_cmp_eq_u32 s{sRound}, 0"); o("s_cbranch_scc0 L_r1")
    o(f"s_mov_b32 s{sCt}, s{t0}"); o(f"s_lshl_b32 s{sTok}, s{t2}, 6"); o("s_branch L_dec")
    A.label("L_r1")
    if opt.get("thr"):
        NA = opt["thr"]
        o(f"s_cmp_ge_u32 s{sI}, {NA}"); o("s_cbranch_scc1 L_phase3")
        o(f"s_sub_u32 s{t0}, s{sRound}, 1"); o(f"s_mul_i32 s{t0}, s{t0}, {8*NA}"); o(f"s_mul_i32 s{t1}, s{sXb}, {NA}"); o(f"s_add_u32 s{t0}, s{t0}, s{t1}"); o(f"s_add_u32 s{t0}, s{t0}, s{sI}")
        o(f"s_cmp_ge_u32 s{t0}, 352"); o("s_cbranch_scc1 L_phase3")
        o(f"s_cmp_lt_u32 s{t0}, 224"); o("s_cbranch_scc0 L_thq")
        o(f"s_and_b32 s{sCt}, s{t0}, 31"); o(f"s_add_u32 s{sCt}, s{sCt}, 16"); o(f"s_lshr_b32 s{sTok}, s{t0}, 5"); o(f"s_add_u32 s{sTok}, s{sTok}, 1"); o(f"s_lshl_b32 s{sTok}, s{sTok}, 8"); o("s_branch L_dec")
        A.label("L_thq")
        o(f"s_sub_u32 s{t0}, s{t0}, 224"); o(f"s_and_b32 s{sCt}, s{t0}, 15"); o(f"s_lshr_b32 s{sTok}, s{t0}, 4"); o(f"s_lshl_b32 s{sTok}, s{sTok}, 8")
    else:
        o(f"s_cmp_eq_u32 s{sRound}, 1"); o("s_cbranch_scc0 L_r2")
        o(f"s_mov_b32 s{sCt}, s{t0}"); o(f"s_add_u32 s{sTok}, s{t2}, 1"); o(f"s_lshl_b32 s{sTok}, s{sTok}, 8"); o("s_branch L_dec")
        A.label("L_r2")
        o(f"s_cmp_eq_u32 s{sRound}, 2"); o("s_cbranch_scc0 L_r3")
        o(f"s_cmp_lt_u32 s{sI}, 12"); o("s_cbranch_scc0 L_r2q")
        o(f"s_mov_b32 s{sCt}, s{t0}"); o(f"s_add_u32 s{sTok}, s{t2}, 5"); o(f"s_lshl_b32 s{sTok}, s{sTok}, 8"); o("s_branch L_dec")
        A.label("L_r2q")
        o(f"s_mov_b32 s{sCt}, s{t1}"); o(f"s_sub_u32 s{sTok}, s{sI}, 12"); o(f"s_lshr_b32 s{sTok}, s{sTok}, 1"); o(f"s_lshl_b32 s{sTok}, s{sTok}, 8"); o("s_branch L_dec")
        A.label("L_r3")
        o(f"s_cmp_eq_u32 s{sRound}, 3"); o("s_cbranch_scc0 L_phase3")
        o(f"s_cmp_lt_u32 s{sI}, 12"); o("s_cbranch_scc0 L_phase3")
        o(f"s_mov_b32 s{sCt}, s{t1}"); o(f"s_lshr_b32 s{sTok}, s{sI}, 1"); o(f"s_add_u32 s{sTok}, s{sTok}, 2"); o(f"s_lshl_b32 s{sTok}, s{sTok}, 8")
    A.label("L_dec")
    o(f"s_lshr_b32 s{sCntOff}, s{sTok}, 8"); o(f"s_lshl_b32 s{sCntOff}, s{sCntOff}, 7")
    wait_cnt(A, CNT_LN1, 16, "l1", off_s=sCntOff)
    o(f"s_lshr_b32 s{t0}, s{sTok}, 8")
    o(f"s_lshl_b32 s{t1}, s{t0}, 3"); o(f"s_and_b32 s{t2}, s{sCt}, 15"); o(f"s_lshr_b32 s{t2}, s{t2}, 1"); o(f"s_add_u32 s{t1}, s{t1}, s{t2}"); o(f"s_lshl_b32 s{t1}, s{t1}, 7")
    o(f"s_lshl_b32 s{t0}, s{t0}, 7"); o(f"s_add_u32 s{t0}, s{t0}, {CNT_Q}")
    o(f"s_cmp_lt_u32 s{sCt}, 16"); o(f"s_cselect_b32 s{sCntOff}, s{t0}, s{t1}")
    o(f"s_lshr_b32 s{t0}, s{sCt}, 4"); o(f"s_lshl_b32 s{t1}, s{t0}, 3")
    o(f"s_add_u32 s40, s0, s{t1}"); o(f"s_addc_u32 s41, s1, 0")
    o(f"s_load_dwordx2 s[40:41], s[40:41], {KA_WQ}")
    o(f"s_lshl_b32 s{t1}, s{t0}, 24"); o(f"s_add_u32 s{t1}, s{t1}, {WS_Q}")
    o(f"s_add_u32 s16, s{sWS}, s{t1}"); o(f"s_addc_u32 s17, s{sWS+1}, 0"); o("s_and_b32 s17, s17, 0xffff")
    o(f"s_mov_b32 s18, {16*MiB}"); o("s_mov_b32 s19, 0x00020000")
    srd_h()
    o("s_waitcnt lgkmcnt(0)")
    srd(o, 8, 40, 0, 8 * MiB)
    o(f"s_cmp_eq_u32 s{sRound}, 0"); o("s_cbranch_scc1 L_small")
    o(f"s_cmp_ge_u32 s{sCt}, 32"); o("s_cbranch_scc1 L_bigv")
    qkv_tile(A, 8, False, "L_gA", sW, sCt, sTok, opt, None); o("s_branch L_sig")
    A.label("L_bigv")
    qkv_tile(A, 8, True, "L_gB", sW, sCt, sTok, opt, None); o("s_branch L_sig")
    A.label("L_small")
    osm = dict(opt); osm["S"] = 6
    o(f"s_cmp_ge_u32 s{sCt}, 32"); o("s_cbranch_scc1 L_smallv")
    qkv_tile(A, 2, False, "L_gC", sW, sCt, sTok, osm, None); o("s_branch L_sig")
    A.label("L_smallv")
    qkv_tile(A, 2, True, "L_gD", sW, sCt, sTok, osm, None)
    A.label("L_sig")
    signal(A, 0, "t", off_s=sCntOff)
    if ST2:
        o(f"s_cmp_lg_u32 s{sRound}, 0"); o("s_cbranch_scc1 L_nolate")
        o(f"s_lshl_b32 s12, s{sW}, 10"); o("v_lshlrev_b32 v3, 4, v0"); o("v_add_u32 v3, s12, v3")
        for r in range(4): o(f"v_mov_b32 v{8+r}, -1")
        o(f"s_mul_i32 s12, s{sB}, {7*MiB//128}"); o(f"s_add_u32 s12, s12, {WS_PARTF + MiB}")
        o(f"s_add_u32 s14, s{sWS}, s12"); o(f"s_addc_u32 s15, s{sWS+1}, 0")
        for k in range(14):
            o("global_store_dwordx4 v3, v[8:11], s[14:15] sc1"); o("s_add_u32 s14, s14, 4096"); o("s_addc_u32 s15, s15, 0")
        signal(A, CNT_FILL2, "f2")
        A.label("L_nolate")
    if bprof:
        o("s_memrealtime s[72:73]"); o("s_waitcnt lgkmcnt(0)")
        o(f"s_lshl_b32 s74, s{sB}, 10"); o(f"s_lshl_b32 s75, s{sRound}, 2"); o("s_add_u32 s74, s74, s75"); o(f"s_add_u32 s74, s74, {WS_PROF + 4*MiB + 16}")
        o("v_mov_b32 v250, s74"); o("v_mov_b32 v251, s72")
        o("s_mov_b64 exec, 1"); o(f"global_store_dword v250, v251, {s(sWS,2)}"); o("s_mov_b64 exec, -1")
    o(f"s_add_u32 s{sRound}, s{sRound}, 1")
    o("s_branch L_task")
    A.label("L_phase3")
    if not opt.get("st2"): o(f"s_cmp_ge_u32 s{sB}, 64"); o("s_cbranch_scc1 L_nomod2")
    silu_to_lds(A)
    o(f"s_lshl_b32 s{sCt}, s{sB}, 5"); o(f"s_add_u32 s{sCt}, s{sCt}, {2048 if opt.get('st2') else 4096}")
    mod_task(A, sCt, "b")
    signal(A, CNT_MODC, "m2")
    A.label("L_nomod2")
    if opt.get("wpf", 1) == 1:
        prefetch_task(A, KA_WO, 8 * MiB, "wo"); prefetch_task(A, KA_W1, 2048 * 7168, "w1"); prefetch_task(A, KA_W2, 3584 * 4096, "w2")
    if opt.get("wpf", 1) == 2:
        prefetch_task(A, KA_W2, 3584 * 4096, "w2")
    P3 = opt.get("p3", 4)
    if P3 == 4:
        for r in range(128): o(f"v_accvgpr_write_b32 a{128+r}, 0")
    if P3 == 0:
        o("s_branch L_bulk_done")
    if P3 == 5:
        passes = opt.get("passes", [(0, 2), (2, 2), (4, 2), (6, 1), (7, 1)])
        for r in range(128): o(f"v_accvgpr_write_b32 a{128+r}, 0")
        o(f"s_lshr_b32 s{sDtG}, s{sXb}, 1"); o(f"s_lshl_b32 s{sDtG}, s{sDtG}, 1"); o(f"s_and_b32 s44, s{sI}, 1"); o(f"s_add_u32 s{sDtG}, s{sDtG}, s44")
        o(f"s_and_b32 s{sFt}, s{sXb}, 1"); o(f"s_lshl_b32 s{sFt}, s{sFt}, 3"); o(f"s_lshr_b32 s44, s{sI}, 1"); o(f"s_add_u32 s{sFt}, s{sFt}, s44")
        sPass, sPn = 83, 84
        def att_chunk(tag):
            o(f"s_lshl_b32 s{sCntOff}, s{sCh}, 3"); o(f"s_add_u32 s{sCntOff}, s{sCntOff}, s{sXb}"); o(f"s_lshl_b32 s{sCntOff}, s{sCntOff}, 7")
            wait_cnt(A, CNT_REC, 32, f"rec{tag}", off_s=sCntOff, sleep=8)
            o(f"s_lshl_b32 s{sCntOff}, s{sCh}, 7")
            wait_cnt(A, CNT_Q, 16, f"q{tag}", off_s=sCntOff)
            o(f"s_lshl_b32 s56, s{sB}, 2"); o(f"s_add_u32 s56, s56, s{sW}")
            o(f"s_lshr_b32 s57, s56, 6"); o(f"s_lshl_b32 s58, s{sCh}, 3"); o("s_add_u32 s57, s57, s58")
            o("s_lshr_b32 s58, s56, 1"); o("s_and_b32 s58, s58, 31"); o("s_and_b32 s59, s56, 1")
            attn_body(A, sWS, 57, 58, 59, 0, f"L_at{tag}", sc1=True)
        def rest(nch, tag):
            o(f"s_lshl_b32 s{sCntOff}, s{sPass}, 7")
            signal(A, CNT_ATT, f"a{tag}", off_s=sCntOff)
            wait_cnt(A, CNT_ATT, 128, f"a{tag}", off_s=sCntOff, sleep=4)
            bstamp(2)
            op_pass(A, 2 if nch == 1 else 3, opt)
            signal(A, CNT_OP, f"o{tag}", off_s=sCntOff)
            bstamp(3)
            wait_cnt(A, CNT_OP, 128, f"o{tag}", off_s=sCntOff, sleep=4)
            bstamp(4)
            ln2_pass(A, 3 if nch == 1 else 4)
            signal(A, CNT_LN, f"n{tag}", off_s=sCntOff)
            bstamp(5)
            o(f"s_cmp_ge_u32 s{sFt}, 14"); o(f"s_cbranch_scc1 L_nog1{tag}")
            wait_cnt(A, CNT_LN, 128, f"n{tag}", off_s=sCntOff, sleep=4)
            bstamp(6)
            G_ = g1_pass(A, opt, 8 * nch, f"L_g1{tag}")
            bstamp(7)
            A.label(f"L_nog1{tag}")
            return G_
        wait_cnt(A, CNT_MODB, 64, "mb5"); wait_cnt(A, CNT_MODC, 64, "mc5")
        nd = sum(1 for p in passes if p[1] == 2); ns = sum(1 for p in passes if p[1] == 1)
        o(f"s_mov_b32 s{sPass}, 0")
        A.label("L_dpass")
        o(f"s_lshl_b32 s{sCh}, s{sPass}, 1"); att_chunk("A"); bstamp(0)
        o(f"s_lshl_b32 s{sCh}, s{sPass}, 1"); o(f"s_add_u32 s{sCh}, s{sCh}, 1"); att_chunk("B"); bstamp(1)
        o(f"s_lshl_b32 s{sTok}, s{sPass}, 9"); o(f"s_lshl_b32 s{sCh}, s{sPass}, 1")
        G = rest(2, "D")
        o(f"s_add_u32 s{sPass}, s{sPass}, 1"); o(f"s_cmp_lt_u32 s{sPass}, {nd}"); o("s_cbranch_scc1 L_dpass")
        if ns:
            A.label("L_spass")
            o(f"s_add_u32 s{sCh}, s{sPass}, {nd}"); att_chunk("C"); bstamp(1)
            o(f"s_add_u32 s{sCh}, s{sPass}, {nd}"); o(f"s_lshl_b32 s{sTok}, s{sCh}, 8")
            rest(1, "S")
            o(f"s_add_u32 s{sPass}, s{sPass}, 1"); o(f"s_cmp_lt_u32 s{sPass}, {nd+ns}"); o("s_cbranch_scc1 L_spass")
        o(f"s_cmp_ge_u32 s{sFt}, 14"); o("s_cbranch_scc1 L_bulk_done")
        g1_epilogue(A, G, sFt, sDtG)
        o("s_branch L_bulk_done")
    if P3 not in (0, 5):
        o(f"s_mov_b32 s{sCh}, 0")
        A.label("L_chunk")
        if P3 >= 4:
            o(f"s_lshl_b32 s{sCntOff}, s{sCh}, 10"); o(f"s_add_u32 s{sCntOff}, s{sCntOff}, {7*128}")
            wait_cnt(A, CNT_REC, 32, "rec", off_s=sCntOff)
        else:
            if opt.get("aspread", 1):
                o(f"s_lshr_b32 s55, s{sI}, 1")
            else:
                o(f"s_mov_b32 s55, s{sXb}")
            o(f"s_lshl_b32 s{sCntOff}, s{sCh}, 3"); o(f"s_add_u32 s{sCntOff}, s{sCntOff}, s55"); o(f"s_lshl_b32 s{sCntOff}, s{sCntOff}, 7")
            if opt.get("relay"):
                o(f"s_cmp_lg_u32 s{sI}, 0"); o("s_cbranch_scc1 L_rly_w")
                wait_cnt(A, CNT_REC, 32, "rec", off_s=sCntOff, sleep=opt["relay"])
                signal(A, CNT_RLY, "rly", off_s=sCntOff)
                o("s_branch L_rly_d")
                A.label("L_rly_w")
                wait_cnt(A, CNT_RLY, 1, "rlw", off_s=sCntOff, sleep=16)
                A.label("L_rly_d")
            else:
                wait_cnt(A, CNT_REC, 32, "rec", off_s=sCntOff, sleep=opt.get("slp", 16))
        o(f"s_lshl_b32 s{sCntOff}, s{sCh}, 7")
        wait_cnt(A, CNT_Q, 16, "q", off_s=sCntOff)
        bstamp(0)
        if P3 >= 4 or not opt.get("aspread", 1):
            o(f"s_lshl_b32 s56, s{sB}, 2"); o(f"s_add_u32 s56, s56, s{sW}")
            o(f"s_lshr_b32 s57, s56, 6"); o(f"s_lshl_b32 s58, s{sCh}, 3"); o("s_add_u32 s57, s57, s58")
        else:
            o(f"s_lshl_b32 s56, s{sXb}, 1"); o(f"s_and_b32 s57, s{sI}, 1"); o("s_add_u32 s56, s56, s57"); o("s_lshl_b32 s56, s56, 2"); o(f"s_add_u32 s56, s56, s{sW}")
            o(f"s_lshr_b32 s57, s{sI}, 1"); o(f"s_lshl_b32 s58, s{sCh}, 3"); o("s_add_u32 s57, s57, s58")
        o("s_lshr_b32 s58, s56, 1"); o("s_and_b32 s58, s58, 31"); o("s_and_b32 s59, s56, 1")
        if opt.get("aser"):
            o("s_mov_b32 s54, 0")
            A.label("L_aser")
            o(f"s_cmp_lg_u32 s{sW}, s54"); o("s_cbranch_scc1 L_aser_s")
        attn_body(A, sWS, 57, 58, 59, 0, "L_at", sc1=(P3 >= 4), nt=opt.get("ant", 0))
        if opt.get("aser"):
            o("s_waitcnt vmcnt(0)")
            A.label("L_aser_s")
            o("s_barrier")
            o("s_add_u32 s54, s54, 1"); o("s_cmp_lt_u32 s54, 4"); o("s_cbranch_scc1 L_aser")
        if P3 >= 4:
            signal(A, CNT_ATT, "a", off_s=sCntOff)
            bstamp(1)
            wait_cnt(A, CNT_ATT, 128, "a", off_s=sCntOff)
            wait_cnt(A, CNT_MODB, 64, "mb")
            bstamp(2)
            op_task(A)
            signal(A, CNT_OP, "o", off_s=sCntOff)
            bstamp(3)
            wait_cnt(A, CNT_OP, 128, "o", off_s=sCntOff)
            wait_cnt(A, CNT_MODC, 64, "mc")
            bstamp(4)
            ln2_task(A)
            signal(A, CNT_LN, "n", off_s=sCntOff)
            bstamp(5)
            o(f"s_cmp_ge_u32 s{sI}, 14"); o("s_cbranch_scc1 L_nog1")
            wait_cnt(A, CNT_LN, 128, "n", off_s=sCntOff)
            bstamp(6)
            G = g1_partial(A, opt)
            bstamp(7)
            A.label("L_nog1")
            o(f"s_add_u32 s{sCh}, s{sCh}, 1"); o(f"s_cmp_lt_u32 s{sCh}, 8"); o("s_cbranch_scc1 L_chunk")
            o(f"s_cmp_ge_u32 s{sI}, 14"); o("s_cbranch_scc1 L_bulk_done")
            g1_epilogue(A, G)
        else:
            o("s_waitcnt vmcnt(0)")
            o(f"s_add_u32 s{sCh}, s{sCh}, 1"); o(f"s_cmp_lt_u32 s{sCh}, 8"); o("s_cbranch_scc1 L_chunk")
    A.label("L_bulk_done")
    o("s_waitcnt vmcnt(0)")
    o("s_endpgm")
    return re.sub(r"\bL_", "B_L_", A.finish())

def gen_mega(name="mega_kernel", recopt=None, opt=None, force_slow=False, place=8):
    recopt = recopt or dict(E2_DEPTH=2, E2_SP=3, E2_DELAY=2)
    opt = opt or {"S": 4}
    A = Asm(); o = A
    o("s_cmp_ge_u32 s2, 256"); o("s_cbranch_scc1 M_end")
    o(f"s_load_dwordx2 {s(sDBG,2)}, s[0:1], {KA_DBG}")
    o(f"s_load_dwordx2 {s(sWS,2)}, s[0:1], {KA_WS}")
    o(f"s_load_dwordx2 s[10:11], s[0:1], {KA_MEM0}")
    o("s_memrealtime s[92:93]")
    o("v_lshlrev_b32 v3, 4, v0")
    o("v_lshrrev_b32 v1, 6, v0"); o("v_and_b32 v0, 63, v0"); o(f"v_readfirstlane_b32 s{sW}, v1")
    o("s_getreg_b32 s4, hwreg(HW_REG_XCC_ID, 0, 4)"); o("s_and_b32 s4, s4, 7")
    for r in range(4): o(f"v_mov_b32 v{8+r}, -1")
    o("s_waitcnt lgkmcnt(0)")
    if opt.get("tlb"):
        st = opt["tlb"]
        o(f"s_cmp_lg_u32 s{sW}, 1"); o("s_cbranch_scc1 M_notlb")
        o(f"v_lshlrev_b32 v4, {st}, v0")
        srd(o, 16, sWS, 0, 144 * MiB)
        o("buffer_load_dword v40, v4, s[16:19], 0 offen")
        o(f"s_mov_b32 s20, {64 << st}"); o("buffer_load_dword v41, v4, s[16:19], s20 offen")
        for k, (ka, nb) in enumerate(((KA_X, 4 * MiB), (KA_WQ, 8 * MiB), (KA_WK, 8 * MiB), (KA_WV, 8 * MiB), (KA_WO, 8 * MiB), (KA_WMOD, 12 * MiB))):
            o(f"s_load_dwordx2 s[20:21], s[0:1], {ka}"); o("s_waitcnt lgkmcnt(0)")
            srd(o, 16, 20, 0, nb)
            o(f"buffer_load_dword v{42+k}, v4, s[16:19], 0 offen")
        A.label("M_notlb")
    o(f"s_lshl_b32 s12, s2, {12 if opt.get('st2') else 15}"); o(f"s_add_u32 s12, s12, {WS_PARTF}")
    o(f"s_add_u32 s14, s{sWS}, s12"); o(f"s_addc_u32 s15, s{sWS+1}, 0")
    for k in range(1 if opt.get('st2') else 8):
        o("global_store_dwordx4 v3, v[8:11], s[14:15] sc1"); o("s_add_u32 s14, s14, 4096"); o("s_addc_u32 s15, s15, 0")
    o("s_cmp_ge_u32 s2, 128"); o("s_cbranch_scc1 M_f2")
    o("s_lshl_b32 s12, s2, 12")
    o(f"s_add_u32 s13, s12, {WS_RQK}"); o(f"s_add_u32 s14, s{sWS}, s13"); o(f"s_addc_u32 s15, s{sWS+1}, 0")
    o("global_store_dwordx4 v3, v[8:11], s[14:15] sc1")
    o(f"s_add_u32 s13, s12, {WS_RMEM}"); o(f"s_add_u32 s14, s{sWS}, s13"); o(f"s_addc_u32 s15, s{sWS+1}, 0")
    o("s_cmp_lt_u32 s2, 32"); o("s_cbranch_scc1 M_img")
    o("global_store_dwordx4 v3, v[8:11], s[14:15] sc1"); o("s_branch M_f3")
    A.label("M_img")
    o(f"s_and_b32 s16, s2, 3"); o("s_lshl_b32 s16, s16, 2"); o(f"s_add_u32 s16, s16, s{sW}"); o("s_lshl_b32 s16, s16, 7")
    o("v_and_b32 v5, 7, v0"); o("v_lshlrev_b32 v5, 11, v5"); o("v_bfe_u32 v6, v0, 3, 1"); o("v_lshl_add_u32 v5, v6, 6, v5")
    o("v_lshrrev_b32 v6, 4, v0"); o("v_lshl_add_u32 v5, v6, 4, v5"); o("v_add_u32 v5, s16, v5")
    o("global_load_dwordx4 v[16:19], v5, s[10:11]"); o("s_waitcnt vmcnt(0)")
    o("global_store_dwordx4 v3, v[16:19], s[14:15] sc1"); o("s_branch M_f3")
    A.label("M_f2")
    o("s_cmp_ge_u32 s2, 192"); o("s_cbranch_scc1 M_f4")
    o("s_sub_u32 s12, s2, 128"); o("s_lshl_b32 s12, s12, 12")
    o(f"s_add_u32 s13, s12, {WS_RV}"); o(f"s_add_u32 s14, s{sWS}, s13"); o(f"s_addc_u32 s15, s{sWS+1}, 0")
    o("global_store_dwordx4 v3, v[8:11], s[14:15] sc1"); o("s_branch M_f3")
    A.label("M_f4")
    o("s_cmp_ge_u32 s2, 240"); o("s_cbranch_scc1 M_f3")
    o("s_sub_u32 s12, s2, 192"); o("s_lshl_b32 s12, s12, 12"); o(f"s_add_u32 s12, s12, {WS_CNT}")
    o(f"s_add_u32 s14, s{sWS}, s12"); o(f"s_addc_u32 s15, s{sWS+1}, 0")
    for r in range(4): o(f"v_mov_b32 v{8+r}, 0")
    o("global_store_dwordx4 v3, v[8:11], s[14:15] sc1")
    A.label("M_f3")
    o("s_waitcnt vmcnt(0)"); o("s_barrier")
    o(f"s_cmp_lg_u32 s{sW}, 0"); o("s_cbranch_scc1 M_w")
    o("s_lshl_b32 s12, s4, 2"); o("v_mov_b32 v1, s12"); o("v_mov_b32 v2, 1"); o("s_mov_b64 exec, 1")
    o(f"global_atomic_add v3, v1, v2, {s(sDBG,2)} sc0"); o("s_waitcnt vmcnt(0)")
    o("v_mov_b32 v1, 0"); o("ds_write_b32 v1, v3"); o("s_waitcnt lgkmcnt(0)"); o("s_mov_b64 exec, -1")
    A.label("M_w")
    o("s_barrier"); o("v_mov_b32 v1, 0"); o("ds_read_b32 v6, v1"); o("s_waitcnt lgkmcnt(0)"); o("v_readfirstlane_b32 s5, v6"); o("s_barrier")
    o(f"s_mov_b32 s{sChk}, 1")
    if force_slow:
        fast_check(A, "t"); o("s_branch M_slow")
    if place == 8:
        o("s_cmp_lt_u32 s5, 16"); o("s_cbranch_scc1 M_rec_fast")
        o("s_cmp_lt_u32 s5, 32"); o("s_cbranch_scc0 M_idle")
        o("s_sub_u32 s5, s5, 16"); o("s_branch M_bulk")
    else:
        o("s_cmp_lt_u32 s5, 32"); o("s_cbranch_scc0 M_idle")
        o("s_and_b32 s12, s4, 3"); o("s_lshl_b32 s12, s12, 1"); o("s_lshr_b32 s13, s5, 4"); o("s_add_u32 s12, s12, s13"); o("s_and_b32 s5, s5, 15")
        o("s_cmp_lt_u32 s4, 4"); o("s_mov_b32 s4, s12"); o("s_cbranch_scc1 M_rec_fast"); o("s_branch M_bulk")
    A.label("M_idle")
    fast_check(A, "i")
    A.label("M_slow")
    o(f"s_mov_b32 s{sChk}, 0")
    o("s_lshr_b32 s4, s2, 4"); o("s_and_b32 s4, s4, 7"); o("s_and_b32 s5, s2, 15")
    o("s_cmp_lt_u32 s2, 128"); o("s_cbranch_scc1 M_rec_slow")
    o("s_branch M_bulk")
    A.label("M_end"); o("s_endpgm")
    t = A.finish()
    t += "M_bulk:\n" + gen_bulk(opt)
    Ah = Asm(); fast_check(Ah, "r"); Ah("s_cmp_eq_u32 s15, 0"); Ah("s_cbranch_scc1 M_slow")
    hook = Ah.finish()
    pre = ""
    if opt.get("rwait"):
        Ap = Asm()
        fast_check(Ap, "p"); Ap("s_cmp_eq_u32 s15, 0"); Ap("s_cbranch_scc1 M_slow")
        Ap(f"s_load_dwordx2 {s(sWS,2)}, s[0:1], {KA_WS}"); Ap("s_waitcnt lgkmcnt(0)")
        Ap(f"s_add_u32 s{sCNT}, s{sWS}, {WS_CNT}"); Ap(f"s_addc_u32 s{sCNT+1}, s{sWS+1}, 0"); Ap(f"s_mov_b32 s{sLim}, 0x400000")
        wait_cnt(Ap, CNT_MODA if opt["rwait"] == 1 else CNT_LN1, 128 if opt["rwait"] == 1 else 16, "rp", sleep=8)
        pre = re.sub(r"\bL_", "RP_L_", Ap.finish())
    t += "M_rec_fast:\n" + pre + rec.gen_rec(embedded=True, pfx="RF_", fast=True, KVCHK=True, SIG=(opt.get("p3", 4) != 0), hook=hook, cntoff=0, FILL2=(CNT_FILL2 if opt.get('st2') else None), **recopt)
    t += "M_rec_slow:\n" + rec.gen_rec(embedded=True, pfx="RS_", fast=False, KVCHK=True, SIG=(opt.get("p3", 4) != 0), hook=None, cntoff=SLOW_OFF, FILL2=(CNT_FILL2 if opt.get('st2') else None), **recopt)
    return kernel_head(name) + t + kernel_desc(name, 256, 256)
```

```python
from asmlib import *
from layout import *

NSTEPS = 64
SENT = 0xFFFFFFFF

def gen_rec(name="rec_kernel", embedded=False, pfx="", KVCHK=False, SIG=False, hook=None, cntoff=0, EARLY=False, FILL2=None, fast=True, prof=False, nsteps=NSTEPS, E1_EARLY=True, E2_DELAY=0, E3_DELAY=0, KV_FIRST=0, PF=1, PFE=0, VSP=2, RT=0, E1_AT=7, E3_SALU_FIRST=0, LAST_SHORT=1, NOK=0, NOV=0, E2F='sc1', X4=0, X4LIM=4, E2_DEPTH=3, E2_SP=0, EP=0, FIXKV=0):
    TIMER = "s_memrealtime" if RT else "s_memtime"
    A = Asm()
    o = A
    st_fast = "" if fast else " sc1"
    sWG = 2
    sW, sG, sJ, sHA, sC, sHead = 3, 4, 5, 6, 7, 8
    sWS = 10
    sT0, sT1, sT2, sT3 = 12, 13, 14, 15
    sPtr = 16
    sMEMc, sMEMn, sQK, sVR, sPART, sPART2, sKX, sKX2, sVX, sKM, sVM = 20, 22, 24, 26, 28, 30, 32, 34, 36, 38, 40
    sRq, sRv, sRp, sRm = 42, 44, 46, 48
    sStep, sSlot, sLim = 50, 51, 52
    sMaskQK, sMaskLo = 54, 56
    sSelV = 58
    sScale = 60
    sWQ, sWK, sWV, sWO, sDBG = 62, 64, 66, 68, 70
    sTs = 66
    sProf = 96
    vL = 0; vT = [1, 2, 3, 4, 5, 6, 7]
    vE3, vQKst, vVst, vVld, vPst, vPld, vMst, vKx, vL16, vKMst = 8, 9, 10, 11, 12, 13, 14, 15, 56, 57
    vA0, vA1, vAv0, vAv1 = 16, 20, 24, 28
    vSx, vSm = 32, 40
    vPx, vPmA, vPmB = 44, 48, 50
    vDelta = 52
    vNeg = 60
    vB = 64; vK = 128; vV = 160; vQ = 192; vQr = 200; vKm = 208; vKr = 216; vVm = 224
    vLdsM, vLdsO, vLdsV = 232, 233, 234
    vSent = 236
    vFlag = 57
    vX = 240
    vO = 64; vOb = 96
    vOo = [112, 116, 120, 124] + [160 + 4 * i for i in range(8)]
    LDS_MEM, LDS_O, LDS_V = 0, 16384, 32768

    if not embedded:
        o(f"s_cmp_ge_u32 s{sWG}, {256 if X4 else 128}")
        o("s_cbranch_scc1 L_rec_end")
        o(f"s_load_dwordx2 {s(sWQ,2)}, s[0:1], {KA_WQ}")
        o(f"s_load_dwordx2 {s(sWK,2)}, s[0:1], {KA_WK}")
        o(f"s_load_dwordx2 {s(sWV,2)}, s[0:1], {KA_WV}")
        o(f"s_load_dwordx2 {s(sWO,2)}, s[0:1], {KA_WO}")
        o(f"s_load_dwordx2 {s(sDBG,2)}, s[0:1], {KA_DBG}")
        o(f"s_load_dwordx2 {s(sWS,2)}, s[0:1], {KA_WS}")
        o(f"v_lshrrev_b32 v1, 6, v0")
        o(f"v_and_b32 v{vL}, 63, v0")
        o(f"v_readfirstlane_b32 s{sW}, v1")
        o(f"s_getreg_b32 s{sG}, hwreg(HW_REG_XCC_ID, 0, 4)")
        o("s_waitcnt lgkmcnt(0)")
        o(f"s_cmp_lg_u32 s{sW}, 0")
        o("s_cbranch_scc1 L_rec_noticket")
        o(f"s_lshl_b32 s{sT0}, s{sG}, 2")
        o(f"v_mov_b32 v1, s{sT0}")
        o("v_mov_b32 v2, 1")
        o("s_mov_b64 exec, 1")
        o(f"global_atomic_add v3, v1, v2, {s(sDBG,2)} sc0")
        o("s_waitcnt vmcnt(0)")
        o("v_mov_b32 v1, 0")
        o("ds_write_b32 v1, v3")
        o("s_waitcnt lgkmcnt(0)")
        o("s_mov_b64 exec, -1")
        A.label("L_rec_noticket")
        o("s_barrier")
        o("v_mov_b32 v1, 0")
        o("ds_read_b32 v3, v1")
        o("s_waitcnt lgkmcnt(0)")
        o(f"v_readfirstlane_b32 s{sJ}, v3")
        o("s_barrier")
        if X4:
            o(f"s_cmp_ge_u32 s{sG}, {X4LIM}"); o("s_cbranch_scc1 L_rec_end")
            o(f"s_sub_u32 s{sG}, s{sG}, {X4LIM-4}") if False else None
            o(f"s_lshl_b32 s{sG}, s{sG}, 1"); o(f"s_lshr_b32 s{sT0}, s{sJ}, 4"); o(f"s_add_u32 s{sG}, s{sG}, s{sT0}")
        o(f"s_and_b32 s{sJ}, s{sJ}, 15")
        o(f"s_and_b32 s{sG}, s{sG}, 7")
    else:
        o(f"s_load_dwordx2 {s(sWQ,2)}, s[0:1], {KA_WQ}")
        o(f"s_load_dwordx2 {s(sWK,2)}, s[0:1], {KA_WK}")
        o(f"s_load_dwordx2 {s(sWV,2)}, s[0:1], {KA_WV}")
        o(f"s_load_dwordx2 {s(sWO,2)}, s[0:1], {KA_WO}")
        o(f"s_load_dwordx2 {s(sWS,2)}, s[0:1], {KA_WS}")
        o("s_waitcnt lgkmcnt(0)")
    o(f"s_lshr_b32 s{sHA}, s{sJ}, 2")
    o(f"s_and_b32 s{sC}, s{sJ}, 3")
    o(f"s_lshl_b32 s{sHead}, s{sG}, 2")
    o(f"s_add_u32 s{sHead}, s{sHead}, s{sW}")
    vi, vg, vr = vT[0], vT[1], vT[2]
    o(f"v_and_b32 v{vi}, 15, v{vL}")
    o(f"v_lshrrev_b32 v{vg}, 4, v{vL}")
    o(f"v_and_b32 v{vr}, 7, v{vL}")
    o(f"v_lshlrev_b32 v{vL16}, 4, v{vL}")

    o(f"s_lshl_b32 s{sT0}, s{sG}, 2")
    o(f"s_add_u32 s{sT0}, s{sT0}, s{sHA}")
    o(f"s_lshl_b32 s{sT0}, s{sT0}, 8")
    o(f"s_lshl_b32 s{sT1}, s{sC}, 6")
    o(f"s_add_u32 s{sT0}, s{sT0}, s{sT1}")
    v1, v2, v3, v4 = vT[3], vT[4], vT[5], vT[6]
    o(f"v_lshrrev_b32 v{v1}, 2, v{vL}")
    o(f"v_lshlrev_b32 v{v1}, 13, v{v1}")
    o(f"v_and_b32 v{v2}, 3, v{vL}")
    o(f"v_lshl_add_u32 v{v1}, v{v2}, 4, v{v1}")
    o(f"v_add_u32 v{v1}, s{sT0}, v{v1}")
    o(f"s_lshl_b32 s{sT1}, s{sW}, 21")
    o(f"v_add_u32 v{v1}, s{sT1}, v{v1}")
    def dma_strip(sbase, ldsbase, nblk, rowstep):
        o(f"v_mov_b32 v{v2}, v{v1}")
        o(f"s_lshl_b32 s{sT2}, s{sW}, {(nblk*1024).bit_length()-1}")
        o(f"s_add_u32 s{sT2}, s{sT2}, {ldsbase}")
        for m in range(nblk):
            o(f"s_mov_b32 m0, s{sT2}")
            o(f"s_add_u32 s{sT2}, s{sT2}, 1024")
            o(f"global_load_lds_dwordx4 v{v2}, {s(sbase,2)}")
            if m + 1 < nblk: o(f"v_add_u32 v{v2}, {rowstep}, v{v2}")
    dma_strip(sWQ, 0, 16, 131072)
    dma_strip(sWK, 65536, 16, 131072)
    o(f"v_lshrrev_b32 v{v3}, 2, v{vi}")
    o(f"v_lshl_add_u32 v{v3}, v{vg}, 3, v{v3}")
    o(f"v_lshlrev_b32 v{v3}, 6, v{v3}")
    o(f"v_and_b32 v{v4}, 3, v{vi}")
    o(f"v_lshl_add_u32 v{v3}, v{v4}, 3, v{v3}")
    o("s_waitcnt vmcnt(0)")
    o("s_barrier")
    o(f"s_lshr_b32 s{sT0}, s{sW}, 1")
    o(f"s_lshl_b32 s{sT0}, s{sT0}, 16")
    o(f"s_and_b32 s{sT1}, s{sW}, 1")
    o(f"s_lshl_b32 s{sT1}, s{sT1}, 5")
    o(f"s_add_u32 s{sT0}, s{sT0}, s{sT1}")
    for i in range(16):
        o(f"s_lshl_b32 s{sT2}, s{sW}, 2")
        o(f"s_add_u32 s{sT2}, s{sT2}, {i}")
        o(f"s_and_b32 s{sT2}, s{sT2}, 15")
        o(f"s_lshl_b32 s{sT2}, s{sT2}, 12")
        o(f"s_add_u32 s{sT2}, s{sT2}, s{sT0}")
        o(f"v_add_u32 v{v4}, s{sT2}, v{v3}")
        for half in range(2):
            d = (i * 2 + half) * 4
            o(f"ds_read_b64_tr_b16 {a(d,2)}, v{v4} offset:{half*2048}")
            o(f"ds_read_b64_tr_b16 {a(d+2,2)}, v{v4} offset:{half*2048+256}")
        if i % 4 == 3: o("s_waitcnt lgkmcnt(0)")
    o("s_barrier")
    dma_strip(sWV, 0, 16, 131072)
    o(f"v_lshrrev_b32 v{v1}, 3, v{vL}")
    o(f"v_lshlrev_b32 v{v1}, 11, v{v1}")
    o(f"v_and_b32 v{v2}, 7, v{vL}")
    o(f"v_lshl_add_u32 v{v1}, v{v2}, 4, v{v1}")
    o(f"s_lshl_b32 s{sT0}, s{sG}, 20")
    o(f"s_lshl_b32 s{sT1}, s{sJ}, 7")
    o(f"s_add_u32 s{sT0}, s{sT0}, s{sT1}")
    o(f"s_lshl_b32 s{sT1}, s{sW}, 18")
    o(f"s_add_u32 s{sT0}, s{sT0}, s{sT1}")
    o(f"v_add_u32 v{v1}, s{sT0}, v{v1}")
    dma_strip(sWO, 65536, 16, 16384)
    o("s_waitcnt vmcnt(0)")
    o("s_barrier")
    o(f"s_and_b32 s{sT0}, s{sW}, 1")
    o(f"s_lshl_b32 s{sT0}, s{sT0}, 5")
    for i in range(8):
        o(f"s_lshl_b32 s{sT2}, s{sW}, 2")
        o(f"s_add_u32 s{sT2}, s{sT2}, {i}")
        o(f"s_and_b32 s{sT2}, s{sT2}, 15")
        o(f"s_lshl_b32 s{sT2}, s{sT2}, 12")
        o(f"s_add_u32 s{sT2}, s{sT2}, s{sT0}")
        o(f"v_add_u32 v{v4}, s{sT2}, v{v3}")
        for half in range(2):
            d = 128 + (i * 2 + half) * 4
            o(f"ds_read_b64_tr_b16 {a(d,2)}, v{v4} offset:{half*2048}")
            o(f"ds_read_b64_tr_b16 {a(d+2,2)}, v{v4} offset:{half*2048+256}")
        if i % 4 == 3: o("s_waitcnt lgkmcnt(0)")
    o(f"v_lshrrev_b32 v{v3}, 2, v{vi}")
    o(f"v_lshl_add_u32 v{v3}, v{vg}, 2, v{v3}")
    o(f"v_lshlrev_b32 v{v3}, 7, v{v3}")
    o(f"v_and_b32 v{v4}, 3, v{vi}")
    o(f"v_lshl_add_u32 v{v3}, v{v4}, 3, v{v3}")
    o(f"s_lshl_b32 s{sT0}, s{sW}, 14")
    o(f"s_add_u32 s{sT0}, s{sT0}, 65536")
    o(f"v_add_u32 v{v4}, s{sT0}, v{v3}")
    for ct in range(4):
        for u in range(4):
            d = 192 + (ct * 4 + u) * 4
            o(f"ds_read_b64_tr_b16 {a(d,2)}, v{v4} offset:{u*4096+ct*32}")
            o(f"ds_read_b64_tr_b16 {a(d+2,2)}, v{v4} offset:{u*4096+2048+ct*32}")
        o("s_waitcnt lgkmcnt(0)")
    o("s_barrier")

    if hook:
        A.raw(hook)
        o(f"v_and_b32 v{vi}, 15, v{vL}"); o(f"v_lshrrev_b32 v{vg}, 4, v{vL}"); o(f"v_and_b32 v{vr}, 7, v{vL}")
    o(f"s_lshl_b32 s{sT0}, s{sW}, 12")
    o(f"v_add_u32 v{vE3}, s{sT0}, v{vL16}")
    o(f"v_lshrrev_b32 v{v1}, 1, v{vg}")
    o(f"v_lshlrev_b32 v{v1}, 8, v{v1}")
    o(f"v_lshl_add_u32 v{v1}, v{vr}, 4, v{v1}")
    o(f"s_lshr_b32 s{sT0}, s{sC}, 1")
    o(f"s_lshl_b32 s{sT0}, s{sT0}, 10")
    o(f"s_and_b32 s{sT1}, s{sW}, 1")
    o(f"s_lshl_b32 s{sT1}, s{sT1}, 9")
    o(f"s_add_u32 s{sT0}, s{sT0}, s{sT1}")
    o(f"s_and_b32 s{sT1}, s{sC}, 1")
    o(f"s_lshl_b32 s{sT1}, s{sT1}, 7")
    o(f"s_add_u32 s{sT0}, s{sT0}, s{sT1}")
    o(f"v_add_u32 v{vKMst}, s{sT0}, v{v1}")
    o(f"s_lshl_b32 s{sT0}, s{sHA}, 12")
    o(f"s_lshr_b32 s{sT1}, s{sW}, 1")
    o(f"s_lshl_b32 s{sT1}, s{sT1}, 11")
    o(f"s_add_u32 s{sT0}, s{sT0}, s{sT1}")
    o(f"v_add_u32 v{vQKst}, s{sT0}, v{vKMst}")
    o(f"s_lshl_b32 s{sT0}, s{sHA}, 11")
    o(f"s_lshl_b32 s{sT1}, s{sC}, 9")
    o(f"s_add_u32 s{sT0}, s{sT0}, s{sT1}")
    o(f"v_add_u32 v{vVst}, s{sT0}, v{vL16}")
    o(f"s_lshl_b32 s{sT0}, s{sW}, 11")
    o(f"v_add_u32 v{vVld}, s{sT0}, v{vL16}")
    o(f"s_lshl_b32 s{sT0}, s{sG}, 4")
    o(f"s_add_u32 s{sT0}, s{sT0}, s{sJ}")
    o(f"s_lshl_b32 s{sT0}, s{sT0}, 10")
    o(f"s_and_b32 s{sT1}, s{sW}, 1")
    o(f"s_lshl_b32 s{sT1}, s{sT1}, 9")
    o(f"s_add_u32 s{sT0}, s{sT0}, s{sT1}")
    o(f"s_lshr_b32 s{sT1}, s{sW}, 1")
    o(f"s_lshl_b32 s{sT1}, s{sT1}, 7")
    o(f"s_add_u32 s{sT0}, s{sT0}, s{sT1}")
    o(f"v_add_u32 v{vPst}, s{sT0}, v{v1}")
    o(f"v_lshlrev_b32 v{vPld}, 14, v{vg}")
    o(f"v_lshl_add_u32 v{vPld}, v{vi}, 4, v{vPld}")
    o(f"s_lshl_b32 s{sT0}, s{sJ}, 10")
    o(f"s_lshl_b32 s{sT1}, s{sW}, 8")
    o(f"s_add_u32 s{sT0}, s{sT0}, s{sT1}")
    o(f"v_add_u32 v{vPld}, s{sT0}, v{vPld}")
    o(f"v_add_u32 v{vMst}, s{sT0}, v{vL16}")
    o(f"v_lshlrev_b32 v{vKx}, 13, v{vi}")
    o(f"v_lshl_add_u32 v{vKx}, v{vg}, 4, v{vKx}")
    o(f"s_lshl_b32 s{sT0}, s{sHead}, 8")
    o(f"v_add_u32 v{vKx}, s{sT0}, v{vKx}")
    o(f"v_mov_b32 v{vLdsM}, v{vL16}")
    for d in range(4):
        o(f"v_mov_b32 v{vDelta+d}, 0")
        o(f"v_mov_b32 v{v1}, 0x3f80")
        o(f"v_cmp_eq_u32 vcc, {2*d}, v{vi}")
        o(f"v_cndmask_b32 v{vDelta+d}, v{vDelta+d}, v{v1}, vcc")
        o(f"v_mov_b32 v{v1}, 0x3f800000")
        o(f"v_cmp_eq_u32 vcc, {2*d+1}, v{vi}")
        o(f"v_cndmask_b32 v{vDelta+d}, v{vDelta+d}, v{v1}, vcc")
    o(f"v_mov_b32 v{v1}, 0xff800000")
    o(f"v_cmp_lt_u32 vcc, 31, v{vL}")
    o(f"v_cndmask_b32 v{vNeg}, 0, v{v1}, vcc")
    for r in range(1, 4): o(f"v_mov_b32 v{vNeg+r}, v{vNeg}")
    for r in range(4): o(f"v_mov_b32 v{vSent+r}, -1")
    o(f"s_mov_b32 s{sMaskQK}, 0xff"); o(f"s_mov_b32 s{sMaskQK+1}, 0xff")
    o(f"s_mov_b32 s{sSelV}, -1"); o(f"s_mov_b32 s{sSelV+1}, 0")
    import math
    cs = 128 ** -0.5 * math.log2(math.e)
    import struct
    o(f"s_mov_b32 s{sScale}, 0x{struct.unpack('<I', struct.pack('<f', cs))[0]:08x}")
    o(f"s_mov_b32 s{sScale+1}, s{sScale}")
    o(f"s_mov_b32 s{sLim}, 0x400000")
    o(f"s_mov_b32 s{sStep}, 0")
    def addbase(dst, off, extra_s=None):
        o(f"s_add_u32 s{dst}, s{sWS}, {off & 0xffffffff}")
        o(f"s_addc_u32 s{dst+1}, s{sWS+1}, 0")
        if extra_s is not None:
            o(f"s_add_u32 s{dst}, s{dst}, s{extra_s}")
            o(f"s_addc_u32 s{dst+1}, s{dst+1}, 0")
    o(f"s_lshl_b32 s{sT0}, s{sHead}, 13")
    o(f"s_add_u32 s{sT0}, s{sT0}, 4096")
    addbase(sKX, WS_K, sT0)
    o(f"s_lshl_b32 s{sT0}, s{sHead}, 13")
    o(f"s_add_u32 s{sT0}, s{sT0}, 4096")
    addbase(sVX, WS_VT, sT0)
    o(f"s_lshl_b32 s{sT0}, s{sHead}, 11")
    addbase(sKM, WS_KM, sT0)
    addbase(sVM, WS_VM, sT0)
    sCNT = 16
    addbase(sCNT, WS_CNT + cntoff)
    def kv_wait(chunk_sreg_expr_setup, target, tag):
        o(f"s_lshl_b32 s{sT0}, s{sT0}, 3"); o(f"s_add_u32 s{sT0}, s{sT0}, s{sG}"); o(f"s_lshl_b32 s{sT0}, s{sT0}, 7")
        o(f"v_mov_b32 v{vX+2}, s{sT0}")
        A.label(f"L_kvw_{tag}")
        o(f"global_load_dword v{vX+3}, v{vX+2}, {s(sCNT,2)} sc1")
        o("s_waitcnt vmcnt(0)")
        o(f"v_readfirstlane_b32 s{sT1}, v{vX+3}")
        o(f"s_cmp_ge_u32 s{sT1}, {target}")
        o(f"s_cbranch_scc1 L_kvw_{tag}_ok")
        o("s_sleep 4")
        o(f"s_sub_u32 s{sLim}, s{sLim}, 1")
        o(f"s_cbranch_scc0 L_kvw_{tag}")
        o(f"s_mov_b32 s{sLim}, 0")
        A.label(f"L_kvw_{tag}_ok")
    sEC = 94
    def gpoll(base, tag, sleep=12, allwaves=False):
        if not allwaves:
            o(f"s_cmp_lg_u32 s{sW}, 0"); o(f"s_cbranch_scc1 L_gp_{tag}_ok")
        o(f"v_mov_b32 v{vX+2}, s{sT0}")
        A.label(f"L_gp_{tag}")
        o(f"global_load_dword v{vX+3}, v{vX+2}, {s(base,2)} sc1")
        o("s_waitcnt vmcnt(0)")
        o(f"v_readfirstlane_b32 s{sT1}, v{vX+3}")
        o(f"s_cmp_ge_u32 s{sT1}, s{sT2}")
        o(f"s_cbranch_scc1 L_gp_{tag}_ok")
        o(f"s_sleep {sleep}")
        o(f"s_sub_u32 s{sLim}, s{sLim}, 1")
        o(f"s_cbranch_scc0 L_gp_{tag}")
        o(f"s_mov_b32 s{sLim}, 0")
        A.label(f"L_gp_{tag}_ok")
        if not allwaves: o("s_barrier")
    if KVCHK and not EARLY:
        o(f"s_mov_b32 s{sT0}, 0")
        kv_wait(None, 16, "0")
    if KVCHK and EARLY:
        o(f"s_mov_b32 s{sT0}, {EC_FILL*4}"); o(f"s_mov_b32 s{sT2}, 128"); gpoll(sEC, "f")
        o(f"s_lshl_b32 s{sT0}, s{sG}, 2"); o(f"s_add_u32 s{sT0}, s{sT0}, {EC_KVH0*4}"); o(f"s_mov_b32 s{sT2}, 16"); gpoll(sEC, "0")
    def load_kx():
        for t in range(8):
            o(f"global_load_dwordx4 {v(vK+t*4,4)}, v{vL16}, {s(sKX,2)} offset:{t*1024-4096}")
    load_kx()
    if prof:
        o(f"s_lshl_b32 s{sT0}, s{sG}, 4")
        o(f"s_add_u32 s{sT0}, s{sT0}, s{sJ}")
        o(f"s_lshl_b32 s{sT0}, s{sT0}, 2")
        o(f"s_add_u32 s{sT0}, s{sT0}, s{sW}")
        o(f"s_lshl_b32 s{sT0}, s{sT0}, 12")
        addbase(sProf, WS_PROF, sT0)
    nst = [0]
    def stamp():
        if not prof: return
        k = nst[0]; nst[0] += 1
        o(f"{TIMER} {s(sTs + 2*k, 2)}")

    def check(regs, lab_ok, lab_retry, tmp):
        regs = list(regs)
        o(f"v_max3_u32 v{tmp}, v{regs[0]}, v{regs[1]}, v{regs[2]}")
        k = 3
        while k + 1 < len(regs):
            o(f"v_max3_u32 v{tmp}, v{tmp}, v{regs[k]}, v{regs[k+1]}"); k += 2
        if k < len(regs):
            o(f"v_max_u32 v{tmp}, v{tmp}, v{regs[k]}")
        o(f"v_cmp_eq_u32 vcc, -1, v{tmp}")
        o(f"s_cbranch_vccz {lab_ok}")
        o(f"s_sub_u32 s{sLim}, s{sLim}, 1")
        o(f"s_cbranch_scc1 {lab_ok}_to")
        o(f"s_branch {lab_retry}")
        A.label(f"{lab_ok}_to")
        o(f"s_mov_b32 s{sLim}, 0")
        A.label(lab_ok)


    sCnt = 98
    vOo = [112, 116, 120, 124, 192, 196, 200, 204, 216, 220, 224, 228]
    vPf = 252
    def merge(main, side, every, start=0):
        side = list(side); out = [];
        for k, m_ in enumerate(main):
            out.append(m_)
            if side and k >= start and (k - start) % every == every - 1: out.append(side.pop(0))
        return out + side
    def emit(L):
        for x in L: o(x)
    def check(regs, lab_ok, lab_retry, tmp, cnt=None):
        regs = list(regs)
        o(f"v_max3_u32 v{tmp}, v{regs[0]}, v{regs[1]}, v{regs[2]}")
        k = 3
        while k + 1 < len(regs):
            o(f"v_max3_u32 v{tmp}, v{tmp}, v{regs[k]}, v{regs[k+1]}"); k += 2
        if k < len(regs):
            o(f"v_max_u32 v{tmp}, v{tmp}, v{regs[k]}")
        o(f"v_cmp_eq_u32 vcc, -1, v{tmp}")
        o(f"s_cbranch_vccz {lab_ok}")
        if prof and cnt is not None: o(f"s_add_u32 s{sCnt+cnt}, s{sCnt+cnt}, 1")
        o(f"s_sub_u32 s{sLim}, s{sLim}, 1")
        o(f"s_cbranch_scc0 {lab_retry}")
        o(f"s_mov_b32 s{sLim}, 0")
        A.label(lab_ok)
    sM = 88
    def mpoll(loads, tag, cnt):
        n = len(loads)
        regs = [b + r for b, _ in loads for r in range(4)]
        o(f"v_max3_u32 v{vX}, v{regs[0]}, v{regs[1]}, v{regs[2]}")
        k = 3
        while k + 1 < len(regs):
            o(f"v_max3_u32 v{vX}, v{vX}, v{regs[k]}, v{regs[k+1]}"); k += 2
        if k < len(regs): o(f"v_max_u32 v{vX}, v{vX}, v{regs[k]}")
        o(f"v_cmp_eq_u32 vcc, -1, v{vX}")
        o(f"s_cbranch_vccz L_{tag}_ok")
        A.label(f"L_{tag}_retry")
        if prof: o(f"s_add_u32 s{sCnt+cnt}, s{sCnt+cnt}, 1")
        for i, (b, rest) in enumerate(loads):
            o(f"v_max3_u32 v{vX}, v{b}, v{b+1}, v{b+2}")
            o(f"v_max_u32 v{vX}, v{vX}, v{b+3}")
            o(f"v_cmp_eq_u32 vcc, -1, v{vX}")
            o(f"s_cbranch_vccz L_{tag}_sk{i}")
            o("s_mov_b64 exec, vcc")
            o(f"global_load_dwordx4 {v(b,4)}, {rest}")
            o("s_mov_b64 exec, -1")
            A.label(f"L_{tag}_sk{i}")
        o("s_waitcnt vmcnt(0)")
        o(f"v_max3_u32 v{vX}, v{regs[0]}, v{regs[1]}, v{regs[2]}")
        k = 3
        while k + 1 < len(regs):
            o(f"v_max3_u32 v{vX}, v{vX}, v{regs[k]}, v{regs[k+1]}"); k += 2
        if k < len(regs): o(f"v_max_u32 v{vX}, v{vX}, v{regs[k]}")
        o(f"v_cmp_eq_u32 vcc, -1, v{vX}")
        o(f"s_cbranch_vccz L_{tag}_ok")
        o(f"s_sub_u32 s{sLim}, s{sLim}, 1")
        o(f"s_cbranch_scc0 L_{tag}_retry")
        o(f"s_mov_b32 s{sLim}, 0")
        A.label(f"L_{tag}_ok")
    if prof:
        for k in range(4): o(f"s_mov_b32 s{sCnt+k}, 0")
    vPfo = 58
    o(f"s_lshl_b32 s{sT1}, s{sG}, 2"); o(f"s_add_u32 s{sT1}, s{sT1}, s{sHA}"); o(f"s_lshl_b32 s{sT1}, s{sT1}, 13")
    o(f"s_lshl_b32 s{sT2}, s{sC}, 11"); o(f"s_add_u32 s{sT1}, s{sT1}, s{sT2}")
    o(f"s_and_b32 s{sT2}, s{sW}, 1"); o(f"s_lshl_b32 s{sT2}, s{sT2}, 10"); o(f"s_add_u32 s{sT1}, s{sT1}, s{sT2}")
    o(f"v_add_u32 v{vPfo}, s{sT1}, v{vL16}")
    o(f"s_cmp_lt_u32 s{sW}, 2")
    sPF = 18
    o(f"s_mov_b32 s{sT0}, {WS_K + 2*262144}")
    o(f"s_mov_b32 s{sT1}, {WS_VT + 2*262144}")
    o(f"s_cselect_b32 s{sT0}, s{sT0}, s{sT1}")
    o(f"s_add_u32 s{sPF}, s{sWS}, s{sT0}"); o(f"s_addc_u32 s{sPF+1}, s{sWS+1}, 0")
    def kx_loads():
        if NOK: return ["s_nop 0"] * 8
        return [f"global_load_dwordx4 {v(vK+t*4,4)}, v{vL16}, {s(sKX,2)} offset:{t*1024-4096}" for t in range(8)]
    def vx_loads():
        if NOV: return ["s_nop 0"] * 8
        return [f"global_load_dwordx4 {v(vV+4*t,4)}, v{vL16}, {s(sVX,2)} offset:{t*1024-4096}" for t in range(8)]
    vRd = [None, 232, 233, 234]
    for hs in (1, 2, 3):
        o(f"v_add_u32 v{vRd[hs]}, {hs*4096}, v{vE3}")
        o(f"v_and_b32 v{vRd[hs]}, 0x3fff, v{vRd[hs]}")
    vVw, vVr, vRw = 235, 59, 15
    o(f"s_lshl_b32 s{sT0}, s{sW}, 10")
    o(f"v_add_u32 v{vVw}, s{sT0}, v{vL16}")
    o(f"v_and_b32 v{vVr}, 31, v{vL}")
    o(f"v_lshlrev_b32 v{vVr}, 4, v{vVr}")
    o(f"v_lshrrev_b32 v{vX+2}, 5, v{vL}")
    o(f"v_lshl_add_u32 v{vVr}, v{vX+2}, 10, v{vVr}")
    vL4 = vX + 3
    o(f"v_lshlrev_b32 v{vL4}, 2, v{vL}")
    o(f"s_lshl_b32 s{sT0}, s{sW}, 8")
    o(f"v_add_u32 v{vRw}, s{sT0}, v{vL4}")
    vRr = [None, 1, 2, 3]
    for hs in (1, 2, 3):
        o(f"s_add_u32 s{sT0}, s{sW}, {hs}"); o(f"s_and_b32 s{sT0}, s{sT0}, 3"); o(f"s_lshl_b32 s{sT0}, s{sT0}, 8")
        o(f"v_add_u32 v{vRr[hs]}, s{sT0}, v{vL4}")
    vOnes = 4
    for r in range(4): o(f"v_mov_b32 v{vOnes+r}, 0x3f803f80")

    LDS_R = 36864
    A.label("L_step")
    nst[0] = 0
    if KVCHK:
        if FILL2 is not None:
            o(f"s_cmp_lg_u32 s{sStep}, 6"); o("s_cbranch_scc1 L_kvf2")
            o(f"s_mov_b32 s{sT0}, {FILL2}"); o(f"s_mov_b32 s{sT2}, 128"); gpoll(sCNT, "l2", 4)
            A.label("L_kvf2")
        if EARLY:
            o(f"s_cmp_lg_u32 s{sStep}, 2"); o("s_cbranch_scc1 L_kvn2")
            o(f"s_lshl_b32 s{sT0}, s{sG}, 2"); o(f"s_add_u32 s{sT0}, s{sT0}, {EC_KVH1*4}"); o(f"s_mov_b32 s{sT2}, 16"); gpoll(sEC, "h1", 4)
            A.label("L_kvn2")
            o(f"s_cmp_lg_u32 s{sStep}, 6"); o("s_cbranch_scc1 L_kvn6")
            o(f"s_mov_b32 s{sT0}, {EC_FILL2*4}"); o(f"s_mov_b32 s{sT2}, 128"); gpoll(sEC, "f2", 4)
            A.label("L_kvn6")
        o(f"s_add_u32 s{sT0}, s{sStep}, 2"); o(f"s_and_b32 s{sT1}, s{sT0}, 7"); o(f"s_cmp_lg_u32 s{sT1}, 0"); o("s_cbranch_scc1 L_kvskip")
        o(f"s_cmp_ge_u32 s{sT0}, 64"); o("s_cbranch_scc1 L_kvskip")
        o(f"s_lshr_b32 s{sT0}, s{sT0}, 3")
        if EARLY:
            o(f"s_cmp_eq_u32 s{sT0}, 1"); o(f"s_cselect_b32 s{sT2}, 16, 4")
        else:
            o(f"s_mov_b32 s{sT2}, 4")
        o(f"v_readfirstlane_b32 s{sT1}, v{vFlag}")
        o(f"s_cmp_ge_u32 s{sT1}, s{sT2}"); o("s_cbranch_scc1 L_kvskip")
        o(f"s_lshl_b32 s{sT0}, s{sT0}, 3"); o(f"s_add_u32 s{sT0}, s{sT0}, s{sG}"); o(f"s_lshl_b32 s{sT0}, s{sT0}, 7")
        gpoll(sCNT, "n", 4, allwaves=True)
        A.label("L_kvskip")
    o(f"s_and_b32 s{sSlot}, s{sStep}, 3")
    o(f"s_lshl_b32 s{sT0}, s{sSlot}, 17")
    o(f"s_lshl_b32 s{sT1}, s{sG}, 14")
    o(f"s_add_u32 s{sT2}, s{sT0}, s{sT1}")
    addbase(sMEMc, WS_RMEM, sT2)
    e3_loads = [(vB + 4*u, f"v{vE3}, {s(sMEMc,2)} offset:{u*1024} sc1") for u in range(4)]
    def qk_mfma(i, first=False):
        for half, acc in ((0, vA0), (1, vA1)):
            c = "0" if first else v(acc, 4)
            o(f"v_mfma_f32_16x16x32_bf16 {v(acc,4)}, {a((i*2+half)*4,4)}, {v(vB+4*i,4)}, {c}")
    def salu_bases():
        addbase(sQK, WS_RQK, sT2)
        o(f"s_lshl_b32 s{sT3}, s{sStep}, 17")
        addbase(sPART, WS_PARTF, sT3)
        o(f"s_add_u32 s{sPART2}, s{sPART}, 65536"); o(f"s_addc_u32 s{sPART2+1}, s{sPART+1}, 0")
        o(f"s_lshr_b32 s{sT3}, s{sT2}, 1")
        addbase(sVR, WS_RV, sT3)
        o(f"s_add_u32 s{sT3}, s{sStep}, 1"); o(f"s_and_b32 s{sT3}, s{sT3}, 3"); o(f"s_lshl_b32 s{sT3}, s{sT3}, 17"); o(f"s_add_u32 s{sT3}, s{sT3}, s{sT1}")
        addbase(sMEMn, WS_RMEM, sT3)
        o(f"s_xor_b32 s{sT3}, s{sT0}, {2<<17}")
        o(f"s_add_u32 s{sT3}, s{sT3}, s{sT1}")
        addbase(sRq, WS_RQK, sT3)
        o(f"s_lshr_b32 s{sT3}, s{sT3}, 1")
        addbase(sRv, WS_RV, sT3)
        o(f"s_add_u32 s{sT3}, s{sStep}, 3"); o(f"s_and_b32 s{sT3}, s{sT3}, 3"); o(f"s_lshl_b32 s{sT3}, s{sT3}, 17"); o(f"s_add_u32 s{sT3}, s{sT3}, s{sT1}")
        addbase(sRm, WS_RMEM, sT3)
    def simple_poll(loads, tag, cnt, first_wait):
        regs = [b + r for b, _ in loads for r in range(4)]
        o(f"s_waitcnt vmcnt({first_wait})")
        o(f"s_branch L_{tag}_c")
        A.label(f"L_{tag}_r")
        for b, rest in loads: o(f"global_load_dwordx4 {v(b,4)}, {rest}")
        o("s_waitcnt vmcnt(0)")
        A.label(f"L_{tag}_c")
        check(regs, f"L_{tag}_ok", f"L_{tag}_r", vX, cnt)
    n0 = len(A.lines); salu_bases(); sl = A.lines[n0:]; del A.lines[n0:]
    nb = len(sl) if E3_SALU_FIRST == 1 else (0 if E3_SALU_FIRST == 0 else min(len(sl), E3_SALU_FIRST))
    while 0 < nb < len(sl) and sl[nb].startswith("s_addc"): nb += 1
    for x in sl[:nb]: o(x)
    stamp()
    for b, rest in e3_loads: o(f"global_load_dwordx4 {v(b,4)}, {rest}")
    for x in sl[nb:]: o(x)
    simple_poll(e3_loads, "e3", 0, 0)
    if SIG:
        o(f"s_sub_u32 s{sT3}, s{sStep}, 1"); o(f"s_cbranch_scc1 L_nosig")
        o(f"s_and_b32 s{sT0}, s{sT3}, 15"); o(f"s_cmp_lg_u32 s{sT0}, s{sJ}"); o("s_cbranch_scc1 L_nosig")
        o(f"s_lshl_b32 s{sT0}, s{sT3}, 7"); o(f"s_add_u32 s{sT0}, s{sT0}, {CNT_REC}")
        o(f"v_mov_b32 v{vX+2}, s{sT0}"); o(f"v_mov_b32 v{vX+3}, 1")
        o("s_mov_b64 exec, 1")
        o(f"global_atomic_add v{vX+2}, v{vX+3}, {s(sCNT,2)}")
        o("s_mov_b64 exec, -1")
        A.label("L_nosig")
    for u, (b, rest) in enumerate(e3_loads):
        o(f"ds_write_b128 v{vE3}, {v(b,4)} offset:{LDS_MEM + u*1024}")
    for u in range(4): qk_mfma(u, first=(u == 0))
    stamp()
    o("s_waitcnt lgkmcnt(0)")
    o("s_barrier")
    for i in range(4, 16):
        o(f"ds_read_b128 {v(vB+4*i,4)}, v{vRd[i//4]} offset:{LDS_MEM + (i%4)*1024}")
    vxl = vx_loads()
    for i in range(4, 16):
        o(f"s_waitcnt lgkmcnt({15-i})")
        qk_mfma(i)
        if i % VSP == VSP - 1 and vxl: o(vxl.pop(0))
    stamp()
    for r in range(4):
        o(f"v_add_f32_dpp v{vA0+r}, v{vA1+r}, v{vA0+r} row_ror:8 row_mask:0xf bank_mask:0xf")
    R = vX + 4
    o(f"v_cvt_pk_bf16_f32 v{R}, v{vA0}, v{vA0+1}")
    o(f"v_cvt_pk_bf16_f32 v{R+1}, v{vA0+2}, v{vA0+3}")
    o(f"v_permlane16_swap_b32 v{R}, v{R+2}")
    o(f"v_permlane16_swap_b32 v{R+1}, v{R+3}")
    o(f"s_mov_b64 exec, {s(sMaskQK,2)}")
    o(f"global_store_dwordx4 v{vQKst}, {v(R,4)}, {s(sQK,2)}{st_fast}")
    o("s_mov_b64 exec, -1")
    stamp()
    e1_loads = [(vQ + 4*cp, f"v{vE3}, {s(sQK,2)} offset:{cp*1024} sc1") for cp in range(2)] + [(vKm + 4*cp, f"v{vE3}, {s(sQK,2)} offset:{2048+cp*1024} sc1") for cp in range(2)]
    def e1_issue():
        for b, rest in e1_loads: o(f"global_load_dwordx4 {v(b,4)}, {rest}")
    for i in range(8):
        for half, acc in ((0, vAv0), (1, vAv1)):
            c = "0" if i == 0 else v(acc, 4)
            o(f"v_mfma_f32_16x16x32_bf16 {v(acc,4)}, {v(vB+4*i,4)}, {a(128+(i*2+half)*4,4)}, {c}")
        if vxl and i % 2 == 1: o(vxl.pop(0))
        if i == E1_AT:
            emit(vxl); vxl = []
            e1_issue()
    emit(vxl)
    for r in range(4):
        o(f"v_cndmask_b32 v{vAv0+r}, v{vAv1+r}, v{vAv0+r}, {s(sSelV,2)}")
    o(f"ds_write_b128 v{vVw}, {v(vAv0,4)} offset:{LDS_V}")
    o("s_waitcnt lgkmcnt(0)")
    o("s_barrier")
    o(f"s_cmp_lg_u32 s{sW}, 0")
    o("s_cbranch_scc1 L_vred_skip")
    T = vA0
    for k, off in enumerate((0, 512, 2048, 2560)):
        o(f"ds_read_b128 {v(T+4*k,4)}, v{vVr} offset:{LDS_V+off}")
    o("s_waitcnt lgkmcnt(0)")
    for r in range(4):
        o(f"v_add_f32 v{T+r}, v{T+r}, v{T+4+r}")
        o(f"v_add_f32 v{T+8+r}, v{T+8+r}, v{T+12+r}")
    for r in range(4):
        o(f"v_add_f32 v{T+r}, v{T+r}, v{T+8+r}")
    o(f"v_cvt_pk_bf16_f32 v{R}, v{T}, v{T+1}")
    o(f"v_cvt_pk_bf16_f32 v{R+1}, v{T+2}, v{T+3}")
    o(f"v_permlane32_swap_b32 v{R}, v{R+2}")
    o(f"v_permlane32_swap_b32 v{R+1}, v{R+3}")
    o(f"s_mov_b64 exec, {s(sSelV,2)}")
    o(f"global_store_dwordx4 v{vVst}, {v(R,4)}, {s(sVR,2)}{st_fast}")
    o("s_mov_b64 exec, -1")
    o("s_waitcnt vmcnt(1)")
    o("s_branch L_e1_c")
    A.label("L_e1_r")
    e1_issue()
    A.label("L_vred_skip")
    o("s_waitcnt vmcnt(0)")
    A.label("L_e1_c")
    check([b + r for b, _ in e1_loads for r in range(4)], "L_e1_ok", "L_e1_r", vX, 1)
    stamp()
    def M32(d, A_, B_, C_): return f"v_mfma_f32_16x16x32_bf16 {v(d,4)}, {A_}, {B_}, {C_}"
    def rot(dst, srcr): return [f"v_mov_b32_dpp v{dst+r}, v{srcr+r} row_ror:8 row_mask:0xf bank_mask:0xf" for r in range(4)]
    Kf = lambda kt, u: v(vK + (kt*4+u)*4, 4)
    seq = []
    seq += [M32(vSx, Kf(0,0), v(vQ,4), "0")] + rot(vQr, vQ)[:2]
    seq += [M32(vSx+4, Kf(1,0), v(vQ,4), "0")] + rot(vQr, vQ)[2:]
    seq += [M32(vSm, v(vKm,4), v(vQ,4), v(vNeg,4))] + rot(vQr+4, vQ+4)[:2]
    seq += [M32(vSx, Kf(0,2), v(vQ+4,4), v(vSx,4))] + rot(vQr+4, vQ+4)[2:]
    seq += [M32(vSx+4, Kf(1,2), v(vQ+4,4), v(vSx+4,4))] + rot(vKr, vKm)[:2]
    seq += [M32(vSm, v(vKm+4,4), v(vQ+4,4), v(vSm,4))] + rot(vKr, vKm)[2:]
    seq += [M32(vSx, Kf(0,1), v(vQr,4), v(vSx,4))] + rot(vKr+4, vKm+4)[:2]
    seq += [M32(vSx+4, Kf(1,1), v(vQr,4), v(vSx+4,4))] + rot(vKr+4, vKm+4)[2:]
    seq += [M32(vSx, Kf(0,3), v(vQr+4,4), v(vSx,4))]
    seq += [M32(vSx+4, Kf(1,3), v(vQr+4,4), v(vSx+4,4))]
    seq += [M32(vSm, v(vKr,4), v(vQr,4), v(vSm,4))]
    seq += [M32(vSm, v(vKr+4,4), v(vQr+4,4), v(vSm,4))]
    emit(seq)
    if not FIXKV:
        o(f"s_add_u32 s{sKX}, s{sKX}, 262144"); o(f"s_addc_u32 s{sKX+1}, s{sKX+1}, 0")
    vm_loads = [(vVm + 4*mm, f"v{vVld}, {s(sVR,2)} offset:{mm*1024} sc1") for mm in range(2)]
    for b, rest in vm_loads: o(f"global_load_dwordx4 {v(b,4)}, {rest}")
    if PF and PFE: o(f"global_load_dwordx4 {v(vPf,4)}, v{vPfo}, {s(sPF,2)}")
    m, t = vX + 1, vX + 2
    Sall = list(range(vSx, vSx + 8)) + list(range(vSm, vSm + 4))
    m2 = vX + 3
    o(f"v_max3_f32 v{m}, v{Sall[0]}, v{Sall[1]}, v{Sall[2]}")
    o(f"v_max3_f32 v{m2}, v{Sall[4]}, v{Sall[5]}, v{Sall[6]}")
    o(f"v_max3_f32 v{m}, v{m}, v{Sall[3]}, v{Sall[7]}")
    o(f"v_max3_f32 v{m2}, v{m2}, v{Sall[8]}, v{Sall[9]}")
    o(f"v_max3_f32 v{m}, v{m}, v{Sall[10]}, v{Sall[11]}")
    o(f"v_max_f32 v{m}, v{m}, v{m2}")
    for sw in ("16", "32"):
        o(f"v_mov_b32 v{t}, v{m}")
        o(f"v_permlane{sw}_swap_b32 v{m}, v{t}")
        o(f"v_max_f32 v{m}, v{m}, v{t}")
    mm_ = vX + 2
    o(f"v_mul_f32 v{mm_}, s{sScale}, v{m}")
    kxl = kx_loads()
    main = []
    for r in Sall[::2]: main.append(f"v_pk_fma_f32 {v(r,2)}, {v(r,2)}, {s(sScale,2)}, {v(mm_,2)} op_sel_hi:[1,1,0] neg_lo:[0,0,1] neg_hi:[0,0,1]")
    for k_, r in enumerate(Sall):
        main.append(f"v_exp_f32 v{r}, v{r}")
    emit(merge(main, [kxl.pop(0), kxl.pop(0)], 7))
    o(f"v_cvt_pk_bf16_f32 v{vPx}, v{vSx}, v{vSx+1}")
    o(f"v_cvt_pk_bf16_f32 v{vPx+1}, v{vSx+2}, v{vSx+3}")
    o(f"v_cvt_pk_bf16_f32 v{vPx+2}, v{vSx+4}, v{vSx+5}")
    o(f"v_cvt_pk_bf16_f32 v{vPx+3}, v{vSx+6}, v{vSx+7}")
    o(f"v_cvt_pk_bf16_f32 v{vPmA}, v{vSm}, v{vSm+1}")
    o(f"v_cvt_pk_bf16_f32 v{vPmA+1}, v{vSm+2}, v{vSm+3}")
    stamp()
    vLs = vSx
    pv = [M32(vO+4*tt, v(vV+4*tt,4), v(vPx,4), "0") for tt in range(8)]
    side = [f"v_mov_b32 v{vX+4}, v{vPmA}", f"v_mov_b32 v{vX+5}, v{vPmA+1}", f"v_mov_b32 v{vPmB}, 0", f"v_mov_b32 v{vPmB+1}, 0",
            f"v_permlane32_swap_b32 v{vPmB}, v{vX+4}", f"v_permlane32_swap_b32 v{vPmB+1}, v{vX+5}", kxl.pop(0)]
    emit(merge(pv, side, 1))
    o(M32(vLs, v(vOnes,4), v(vPx,4), "0"))
    o(f"v_mfma_f32_16x16x16_bf16 {v(vLs,4)}, {v(vOnes,2)}, {v(vPmA,2)}, {v(vLs,4)}")
    simple_poll(vm_loads, "vm", 2, 4 if (PF and PFE) else 3)
    stamp()
    if KVCHK:
        o(f"s_add_u32 s{sT0}, s{sStep}, 3"); o(f"s_and_b32 s{sT1}, s{sT0}, 7"); o(f"s_cmp_lg_u32 s{sT1}, 0"); o("s_cbranch_scc1 L_nofl")
        o(f"s_lshr_b32 s{sT0}, s{sT0}, 3"); o(f"s_lshl_b32 s{sT0}, s{sT0}, 3"); o(f"s_add_u32 s{sT0}, s{sT0}, s{sG}"); o(f"s_lshl_b32 s{sT0}, s{sT0}, 7")
        o(f"v_mov_b32 v{vFlag}, s{sT0}")
        o(f"global_load_dword v{vFlag}, v{vFlag}, {s(sCNT,2)} sc1")
        A.label("L_nofl")
    o(f"s_and_b32 s{sT0}, s{sStep}, 15"); o(f"s_cmp_lg_u32 s{sT0}, s{sJ}"); o("s_cbranch_scc1 L_nopub")
    for cp in range(2): o(f"global_store_dwordx4 v{vL16}, {v(vKm+4*cp,4)}, {s(sKM,2)} offset:{cp*1024}" + (" sc1" if SIG else ""))
    for cp in range(2): o(f"global_store_dwordx4 v{vL16}, {v(vVm+4*cp,4)}, {s(sVM,2)} offset:{cp*1024}" + (" sc1" if SIG else ""))
    A.label("L_nopub")
    if LAST_SHORT:
        o(f"s_cmp_eq_u32 s{sStep}, {nsteps-1}")
        o("s_cbranch_scc1 L_rec_last")
    if PF and not PFE: o(f"global_load_dwordx4 {v(vPf,4)}, v{vPfo}, {s(sPF,2)}")
    def pvm(tt):
        c, tv = tt >> 1, tt & 1
        pm = vPmB if (c & 1) else vPmA
        return f"v_mfma_f32_16x16x16_bf16 {v(vO+4*tt,4)}, {v(vVm+4*(c>>1)+2*tv,2)}, {v(pm,2)}, {v(vO+4*tt,4)}"
    def cvt(tt):
        u, h = tt >> 1, tt & 1
        return [f"v_cvt_pk_bf16_f32 v{vOb+4*u+2*h}, v{vO+4*tt}, v{vO+4*tt+1}", f"v_cvt_pk_bf16_f32 v{vOb+4*u+2*h+1}, v{vO+4*tt+2}, v{vO+4*tt+3}"]
    vCa = [16, 20, 24, 28]
    for tt in range(3): o(pvm(tt))
    l_ = vX + 1
    def cm(ct, u):
        c = "0" if u == 0 else v(vCa[ct], 4)
        return f"v_mfma_f32_16x16x32_bf16 {v(vCa[ct],4)}, {a(192+(ct*4+u)*4,4)}, {v(vOb+4*u,4)}, {c}"
    pend = []
    for tt in range(8):
        if tt + 3 < 8: o(pvm(tt + 3))
        cv = cvt(tt)
        o(cv[0])
        if pend: o(pend.pop(0))
        o(cv[1])
        if pend: o(pend.pop(0))
        if tt == 0: o(f"v_rcp_f32 v{l_}, v{vLs}")
        if tt % 2 == 1:
            pend += [cm(ct, tt >> 1) for ct in range(4)]
            if kxl: o(kxl.pop(0))
    emit(pend)
    for ct in range(4):
        pass
    o(f"v_mov_b32 v{vX+2}, v{l_}")
    for ct in range(4):
        o(f"v_pk_mul_f32 {v(vCa[ct],2)}, {v(vCa[ct],2)}, {v(vX+2,2)} op_sel_hi:[1,0]")
        o(f"v_pk_mul_f32 {v(vCa[ct]+2,2)}, {v(vCa[ct]+2,2)}, {v(vX+2,2)} op_sel_hi:[1,0]")
        o(f"ds_write_b128 v{vVw}, {v(vCa[ct],4)} offset:{LDS_O+ct*4096}")
    while kxl: o(kxl.pop(0))
    o("s_waitcnt lgkmcnt(0)")
    o("s_barrier")
    stamp()
    Rr = [112, 116, 120, 124]
    for sw in range(4): o(f"ds_read_b128 {v(Rr[sw],4)}, v{vE3} offset:{LDS_O+sw*1024}")
    vC = Rr[0]
    o("s_waitcnt lgkmcnt(2)")
    o(f"v_pk_add_f32 {v(Rr[0],2)}, {v(Rr[0],2)}, {v(Rr[1],2)}"); o(f"v_pk_add_f32 {v(Rr[0]+2,2)}, {v(Rr[0]+2,2)}, {v(Rr[1]+2,2)}")
    o("s_waitcnt lgkmcnt(0)")
    o(f"v_pk_add_f32 {v(Rr[2],2)}, {v(Rr[2],2)}, {v(Rr[3],2)}"); o(f"v_pk_add_f32 {v(Rr[2]+2,2)}, {v(Rr[2]+2,2)}, {v(Rr[3]+2,2)}")
    o(f"v_pk_add_f32 {v(Rr[0],2)}, {v(Rr[0],2)}, {v(Rr[2],2)}"); o(f"v_pk_add_f32 {v(Rr[0]+2,2)}, {v(Rr[0]+2,2)}, {v(Rr[2]+2,2)}")
    o(f"v_cvt_pk_bf16_f32 v{R}, v{vC}, v{vC+1}")
    o(f"v_cvt_pk_bf16_f32 v{R+1}, v{vC+2}, v{vC+3}")
    o(f"v_permlane16_swap_b32 v{R}, v{R+2}")
    o(f"v_permlane16_swap_b32 v{R+1}, v{R+3}")
    o(f"s_mov_b64 exec, {s(sMaskQK,2)}")
    if EP == 2:
        o("s_waitcnt vmcnt(0)")
        o(f"{TIMER} {s(sTs + 2*5, 2)}")
    o(f"global_store_dwordx4 v{vPst}, {v(R,4)}, {s(sPART,2)} sc1")
    stamp()
    if EP == 2:
        o("s_waitcnt vmcnt(0)")
        o(f"{TIMER} {s(sTs + 2*4, 2)}")
    o(f"global_store_dwordx4 v{vQKst}, {v(vSent,4)}, {s(sRq,2)}{st_fast}")
    o(f"s_mov_b64 exec, 0xffff")
    o(f"global_store_dwordx4 v{vMst}, {v(vSent,4)}, {s(sRm,2)}{st_fast}")
    o(f"s_cmp_lg_u32 s{sW}, 0")
    o("s_cbranch_scc1 L_norv")
    o(f"s_mov_b64 exec, {s(sSelV,2)}")
    o(f"global_store_dwordx4 v{vVst}, {v(vSent,4)}, {s(sRv,2)}{st_fast}")
    A.label("L_norv")
    o("s_mov_b64 exec, -1")
    if not FIXKV:
        o(f"s_add_u32 s{sVX}, s{sVX}, 262144"); o(f"s_addc_u32 s{sVX+1}, s{sVX+1}, 0")
    o(f"s_add_u32 s{sKM}, s{sKM}, 65536"); o(f"s_addc_u32 s{sKM+1}, s{sKM+1}, 0")
    o(f"s_add_u32 s{sVM}, s{sVM}, 65536"); o(f"s_addc_u32 s{sVM+1}, s{sVM+1}, 0")
    if E2_DELAY: o(f"s_sleep {E2_DELAY}")
    sets = [vB + 8 * k for k in range(E2_DEPTH)]
    def e2_issue(b):
        o(f"global_load_dwordx4 {v(b,4)}, v{vPld}, {s(sPART,2)} {E2F}")
        o(f"global_load_dwordx4 {v(b+4,4)}, v{vPld}, {s(sPART2,2)} {E2F}")
    if EP: o(f"{TIMER} {s(sTs + 2*2, 2)}")
    for k, b in enumerate(sets):
        e2_issue(b)
        if k + 1 < len(sets) and E2_SP: o(f"s_sleep {E2_SP}")
    if EP:
        o(f"s_waitcnt vmcnt({2*(len(sets)-1)})")
        o(f"{TIMER} {s(sTs + 2*3, 2)}")
    A.label("L_e2")
    for k, b in enumerate(sets):
        o(f"s_waitcnt vmcnt({2*(len(sets)-1)})")
        regs = list(range(b, b + 8))
        o(f"v_max3_u32 v{vX}, v{regs[0]}, v{regs[1]}, v{regs[2]}")
        o(f"v_max3_u32 v{vX}, v{vX}, v{regs[3]}, v{regs[4]}")
        o(f"v_max3_u32 v{vX}, v{vX}, v{regs[5]}, v{regs[6]}")
        o(f"v_max_u32 v{vX}, v{vX}, v{regs[7]}")
        o(f"v_cmp_eq_u32 vcc, -1, v{vX}")
        o(f"s_cbranch_vccz L_e2_ok{k}")
        if prof: o(f"s_add_u32 s{sCnt+3}, s{sCnt+3}, 1")
        e2_issue(b)
    o(f"s_sub_u32 s{sLim}, s{sLim}, 1")
    o(f"s_cbranch_scc0 L_e2")
    o(f"s_mov_b32 s{sLim}, 0")
    D = vA1
    for k, b in enumerate(sets):
        A.label(f"L_e2_ok{k}")
        o(f"v_mfma_f32_16x16x32_bf16 {v(D,4)}, {v(vDelta,4)}, {v(b,4)}, 0")
        o(f"v_mfma_f32_16x16x32_bf16 {v(D,4)}, {v(vDelta,4)}, {v(b+4,4)}, {v(D,4)}")
        if k + 1 < len(sets): o("s_branch L_e2_done")
    A.label("L_e2_done")
    o(f"s_add_u32 s{sPF}, s{sPF}, 262144"); o(f"s_addc_u32 s{sPF+1}, s{sPF+1}, 0")
    stamp()
    o("s_nop 7")
    o(f"v_cvt_pk_bf16_f32 v{R}, v{D}, v{D+1}")
    o(f"v_cvt_pk_bf16_f32 v{R+1}, v{D+2}, v{D+3}")
    o(f"v_permlane16_swap_b32 v{R}, v{R+2}")
    o(f"v_permlane16_swap_b32 v{R+1}, v{R+3}")
    o(f"s_mov_b64 exec, 0xffff")
    o(f"global_store_dwordx4 v{vMst}, {v(R,4)}, {s(sMEMn,2)}{st_fast}")
    o("s_mov_b64 exec, -1")
    stamp()
    if E3_DELAY: o(f"s_sleep {E3_DELAY}")
    if prof:
        o("s_waitcnt lgkmcnt(0)")
        for k in range(nst[0]):
            o(f"v_writelane_b32 v{vX+8}, s{sTs+2*k}, {k}")
        for k in range(4):
            o(f"v_writelane_b32 v{vX+8}, s{sCnt+k}, {11+k}")
        o(f"v_writelane_b32 v{vX+8}, s92, 15")
        o(f"s_lshl_b32 s{sT0}, s{sW}, 12")
        o(f"s_lshl_b32 s{sT1}, s{sStep}, 6")
        o(f"s_add_u32 s{sT0}, s{sT0}, s{sT1}")
        o(f"s_add_u32 s{sT0}, s{sT0}, 40960")
        o(f"v_lshlrev_b32 v{vX+9}, 2, v{vL}")
        o(f"v_add_u32 v{vX+9}, s{sT0}, v{vX+9}")
        o("s_mov_b64 exec, 0xffff")
        o(f"ds_write_b32 v{vX+9}, v{vX+8}")
        o("s_mov_b64 exec, -1")
    o(f"s_add_u32 s{sStep}, s{sStep}, 1")
    o(f"s_cmp_lt_u32 s{sStep}, {nsteps}")
    o("s_cbranch_scc1 L_step")
    o("s_branch L_rec_fin")
    A.label("L_rec_last")
    if SIG:
        o("s_waitcnt vmcnt(0)")
        o(f"s_and_b32 s{sT0}, s{sStep}, 15"); o(f"s_cmp_lg_u32 s{sT0}, s{sJ}"); o("s_cbranch_scc1 L_rec_fin")
        o(f"s_lshl_b32 s{sT0}, s{sStep}, 7"); o(f"s_add_u32 s{sT0}, s{sT0}, {CNT_REC}")
        o(f"v_mov_b32 v{vX+2}, s{sT0}"); o(f"v_mov_b32 v{vX+3}, 1")
        o("s_mov_b64 exec, 1")
        o(f"global_atomic_add v{vX+2}, v{vX+3}, {s(sCNT,2)}")
        o("s_mov_b64 exec, -1")
    A.label("L_rec_fin")
    if prof:
        o("s_waitcnt lgkmcnt(0)")
        o(f"s_lshl_b32 s{sT0}, s{sW}, 12")
        o(f"s_add_u32 s{sT0}, s{sT0}, 40960")
        o(f"v_add_u32 v{vX+9}, s{sT0}, v{vL16}")
        for k in range(4):
            o(f"ds_read_b128 {v(vB+4*k,4)}, v{vX+9} offset:{k*1024}")
        o("s_waitcnt lgkmcnt(0)")
        for k in range(4):
            o(f"global_store_dwordx4 v{vL16}, {v(vB+4*k,4)}, {s(sProf,2)} offset:{k*1024}")
    o("s_waitcnt vmcnt(0)")
    A.label("L_rec_end")
    o("s_endpgm")
    txt = A.finish()
    if embedded:
        import re
        return re.sub(r"\bL_", pfx + "L_", txt)
    return kernel_head(name) + txt + kernel_desc(name, 256, 256)

if __name__ == "__main__":
    import sys
    fast = "slow" not in sys.argv
    prof = "prof" in sys.argv
    ng = 256 if any(x.startswith("X4=1") for x in sys.argv) else 128
    hdr = f"; @launch kernel=rec_kernel grid=({ng},1,1) block=(256,1,1) lds=131072\n.amdgcn_target \"amdgcn-amd-amdhsa--gfx950\"\n.text\n"
    kw = {}
    for x in sys.argv[1:]:
        if "=" in x:
            k_, v_ = x.split("=");
            if k_ != "out": kw[k_] = int(v_) if v_.isdigit() else v_
    outn = [x.split("=")[1] for x in sys.argv if x.startswith("out=")]
    open(outn[0] if outn else "rec_test.s", "w").write(hdr + gen_rec(fast=fast, prof=prof, **kw))
```

```python
from asmlib import *
from layout import *

NSTEPS = 64
SENT = 0xFFFFFFFF

def gen_rec(name="rec_kernel", embedded=False, pfx="", KVCHK=False, SIG=False, hook=None, cntoff=0, EARLY=False, FILL2=None, fast=True, prof=False, nsteps=NSTEPS, E1_EARLY=True, E2_DELAY=0, E3_DELAY=0, KV_FIRST=0, PF=1, PFE=0, REORD=0, VSP=2, RT=0, E1_AT=7, E3_SALU_FIRST=0, LAST_SHORT=1, NOK=0, NOV=0, E2F='sc1', X4=0, X4LIM=4, E2_DEPTH=3, E2_SP=0, EP=0, FIXKV=0):
    TIMER = "s_memrealtime" if RT else "s_memtime"
    A = Asm()
    o = A
    st_fast = "" if fast else " sc1"
    sWG = 2
    sW, sG, sJ, sHA, sC, sHead = 3, 4, 5, 6, 7, 8
    sWS = 10
    sT0, sT1, sT2, sT3 = 12, 13, 14, 15
    sPtr = 16
    sMEMc, sMEMn, sQK, sVR, sPART, sPART2, sKX, sKX2, sVX, sKM, sVM = 20, 22, 24, 26, 28, 30, 32, 34, 36, 38, 40
    sRq, sRv, sRp, sRm = 42, 44, 46, 48
    sStep, sSlot, sLim = 50, 51, 52
    sMaskQK, sMaskLo = 54, 56
    sSelV = 58
    sScale = 60
    sWQ, sWK, sWV, sWO, sDBG = 62, 64, 66, 68, 70
    sTs = 66
    sProf = 96
    vL = 0; vT = [1, 2, 3, 4, 5, 6, 7]
    vE3, vQKst, vVst, vVld, vPst, vPld, vMst, vKx, vL16, vKMst = 8, 9, 10, 11, 12, 13, 14, 15, 56, 57
    vA0, vA1, vAv0, vAv1 = 16, 20, 24, 28
    vSx, vSm = 32, 40
    vPx, vPmA, vPmB = 44, 48, 50
    vDelta = 52
    vNeg = 60
    vB = 64; vK = 128; vV = 160; vQ = 192; vQr = 200; vKm = 208; vKr = 216; vVm = 224
    vLdsM, vLdsO, vLdsV = 232, 233, 234
    vSent = 236
    vFlag = 57
    vX = 240
    vO = 64; vOb = 96
    vOo = [112, 116, 120, 124] + [160 + 4 * i for i in range(8)]
    LDS_MEM, LDS_O, LDS_V = 0, 16384, 32768

    if not embedded:
        o(f"s_cmp_ge_u32 s{sWG}, {256 if X4 else 128}")
        o("s_cbranch_scc1 L_rec_end")
        o(f"s_load_dwordx2 {s(sWQ,2)}, s[0:1], {KA_WQ}")
        o(f"s_load_dwordx2 {s(sWK,2)}, s[0:1], {KA_WK}")
        o(f"s_load_dwordx2 {s(sWV,2)}, s[0:1], {KA_WV}")
        o(f"s_load_dwordx2 {s(sWO,2)}, s[0:1], {KA_WO}")
        o(f"s_load_dwordx2 {s(sDBG,2)}, s[0:1], {KA_DBG}")
        o(f"s_load_dwordx2 {s(sWS,2)}, s[0:1], {KA_WS}")
        o(f"v_lshrrev_b32 v1, 6, v0")
        o(f"v_and_b32 v{vL}, 63, v0")
        o(f"v_readfirstlane_b32 s{sW}, v1")
        o(f"s_getreg_b32 s{sG}, hwreg(HW_REG_XCC_ID, 0, 4)")
        o("s_waitcnt lgkmcnt(0)")
        o(f"s_cmp_lg_u32 s{sW}, 0")
        o("s_cbranch_scc1 L_rec_noticket")
        o(f"s_lshl_b32 s{sT0}, s{sG}, 2")
        o(f"v_mov_b32 v1, s{sT0}")
        o("v_mov_b32 v2, 1")
        o("s_mov_b64 exec, 1")
        o(f"global_atomic_add v3, v1, v2, {s(sDBG,2)} sc0")
        o("s_waitcnt vmcnt(0)")
        o("v_mov_b32 v1, 0")
        o("ds_write_b32 v1, v3")
        o("s_waitcnt lgkmcnt(0)")
        o("s_mov_b64 exec, -1")
        A.label("L_rec_noticket")
        o("s_barrier")
        o("v_mov_b32 v1, 0")
        o("ds_read_b32 v3, v1")
        o("s_waitcnt lgkmcnt(0)")
        o(f"v_readfirstlane_b32 s{sJ}, v3")
        o("s_barrier")
        if X4:
            o(f"s_cmp_ge_u32 s{sG}, {X4LIM}"); o("s_cbranch_scc1 L_rec_end")
            o(f"s_sub_u32 s{sG}, s{sG}, {X4LIM-4}") if False else None
            o(f"s_lshl_b32 s{sG}, s{sG}, 1"); o(f"s_lshr_b32 s{sT0}, s{sJ}, 4"); o(f"s_add_u32 s{sG}, s{sG}, s{sT0}")
        o(f"s_and_b32 s{sJ}, s{sJ}, 15")
        o(f"s_and_b32 s{sG}, s{sG}, 7")
    else:
        o(f"s_load_dwordx2 {s(sWQ,2)}, s[0:1], {KA_WQ}")
        o(f"s_load_dwordx2 {s(sWK,2)}, s[0:1], {KA_WK}")
        o(f"s_load_dwordx2 {s(sWV,2)}, s[0:1], {KA_WV}")
        o(f"s_load_dwordx2 {s(sWO,2)}, s[0:1], {KA_WO}")
        o(f"s_load_dwordx2 {s(sWS,2)}, s[0:1], {KA_WS}")
        o("s_waitcnt lgkmcnt(0)")
    o(f"s_lshr_b32 s{sHA}, s{sJ}, 2")
    o(f"s_and_b32 s{sC}, s{sJ}, 3")
    o(f"s_lshl_b32 s{sHead}, s{sG}, 2")
    o(f"s_add_u32 s{sHead}, s{sHead}, s{sW}")
    vi, vg, vr = vT[0], vT[1], vT[2]
    o(f"v_and_b32 v{vi}, 15, v{vL}")
    o(f"v_lshrrev_b32 v{vg}, 4, v{vL}")
    o(f"v_and_b32 v{vr}, 7, v{vL}")
    o(f"v_lshlrev_b32 v{vL16}, 4, v{vL}")

    o(f"s_lshl_b32 s{sT0}, s{sG}, 2")
    o(f"s_add_u32 s{sT0}, s{sT0}, s{sHA}")
    o(f"s_lshl_b32 s{sT0}, s{sT0}, 8")
    o(f"s_lshl_b32 s{sT1}, s{sC}, 6")
    o(f"s_add_u32 s{sT0}, s{sT0}, s{sT1}")
    v1, v2, v3, v4 = vT[3], vT[4], vT[5], vT[6]
    o(f"v_lshrrev_b32 v{v1}, 2, v{vL}")
    o(f"v_lshlrev_b32 v{v1}, 13, v{v1}")
    o(f"v_and_b32 v{v2}, 3, v{vL}")
    o(f"v_lshl_add_u32 v{v1}, v{v2}, 4, v{v1}")
    o(f"v_add_u32 v{v1}, s{sT0}, v{v1}")
    o(f"s_lshl_b32 s{sT1}, s{sW}, 21")
    o(f"v_add_u32 v{v1}, s{sT1}, v{v1}")
    def dma_strip(sbase, ldsbase, nblk, rowstep):
        o(f"v_mov_b32 v{v2}, v{v1}")
        o(f"s_lshl_b32 s{sT2}, s{sW}, {(nblk*1024).bit_length()-1}")
        o(f"s_add_u32 s{sT2}, s{sT2}, {ldsbase}")
        for m in range(nblk):
            o(f"s_mov_b32 m0, s{sT2}")
            o(f"s_add_u32 s{sT2}, s{sT2}, 1024")
            o(f"global_load_lds_dwordx4 v{v2}, {s(sbase,2)}")
            if m + 1 < nblk: o(f"v_add_u32 v{v2}, {rowstep}, v{v2}")
    dma_strip(sWQ, 0, 16, 131072)
    dma_strip(sWK, 65536, 16, 131072)
    o(f"v_lshrrev_b32 v{v3}, 2, v{vi}")
    o(f"v_lshl_add_u32 v{v3}, v{vg}, 3, v{v3}")
    o(f"v_lshlrev_b32 v{v3}, 6, v{v3}")
    o(f"v_and_b32 v{v4}, 3, v{vi}")
    o(f"v_lshl_add_u32 v{v3}, v{v4}, 3, v{v3}")
    o("s_waitcnt vmcnt(0)")
    o("s_barrier")
    o(f"s_lshr_b32 s{sT0}, s{sW}, 1")
    o(f"s_lshl_b32 s{sT0}, s{sT0}, 16")
    o(f"s_and_b32 s{sT1}, s{sW}, 1")
    o(f"s_lshl_b32 s{sT1}, s{sT1}, 5")
    o(f"s_add_u32 s{sT0}, s{sT0}, s{sT1}")
    for i in range(16):
        o(f"s_lshl_b32 s{sT2}, s{sW}, 2")
        o(f"s_add_u32 s{sT2}, s{sT2}, {i}")
        o(f"s_and_b32 s{sT2}, s{sT2}, 15")
        o(f"s_lshl_b32 s{sT2}, s{sT2}, 12")
        o(f"s_add_u32 s{sT2}, s{sT2}, s{sT0}")
        o(f"v_add_u32 v{v4}, s{sT2}, v{v3}")
        for half in range(2):
            d = (i * 2 + half) * 4
            o(f"ds_read_b64_tr_b16 {a(d,2)}, v{v4} offset:{half*2048}")
            o(f"ds_read_b64_tr_b16 {a(d+2,2)}, v{v4} offset:{half*2048+256}")
        if i % 4 == 3: o("s_waitcnt lgkmcnt(0)")
    o("s_barrier")
    dma_strip(sWV, 0, 16, 131072)
    o(f"v_lshrrev_b32 v{v1}, 3, v{vL}")
    o(f"v_lshlrev_b32 v{v1}, 11, v{v1}")
    o(f"v_and_b32 v{v2}, 7, v{vL}")
    o(f"v_lshl_add_u32 v{v1}, v{v2}, 4, v{v1}")
    o(f"s_lshl_b32 s{sT0}, s{sG}, 20")
    o(f"s_lshl_b32 s{sT1}, s{sJ}, 7")
    o(f"s_add_u32 s{sT0}, s{sT0}, s{sT1}")
    o(f"s_lshl_b32 s{sT1}, s{sW}, 18")
    o(f"s_add_u32 s{sT0}, s{sT0}, s{sT1}")
    o(f"v_add_u32 v{v1}, s{sT0}, v{v1}")
    dma_strip(sWO, 65536, 16, 16384)
    o("s_waitcnt vmcnt(0)")
    o("s_barrier")
    o(f"s_and_b32 s{sT0}, s{sW}, 1")
    o(f"s_lshl_b32 s{sT0}, s{sT0}, 5")
    for i in range(8):
        o(f"s_lshl_b32 s{sT2}, s{sW}, 2")
        o(f"s_add_u32 s{sT2}, s{sT2}, {i}")
        o(f"s_and_b32 s{sT2}, s{sT2}, 15")
        o(f"s_lshl_b32 s{sT2}, s{sT2}, 12")
        o(f"s_add_u32 s{sT2}, s{sT2}, s{sT0}")
        o(f"v_add_u32 v{v4}, s{sT2}, v{v3}")
        for half in range(2):
            d = 128 + (i * 2 + half) * 4
            o(f"ds_read_b64_tr_b16 {a(d,2)}, v{v4} offset:{half*2048}")
            o(f"ds_read_b64_tr_b16 {a(d+2,2)}, v{v4} offset:{half*2048+256}")
        if i % 4 == 3: o("s_waitcnt lgkmcnt(0)")
    o(f"v_lshrrev_b32 v{v3}, 2, v{vi}")
    o(f"v_lshl_add_u32 v{v3}, v{vg}, 2, v{v3}")
    o(f"v_lshlrev_b32 v{v3}, 7, v{v3}")
    o(f"v_and_b32 v{v4}, 3, v{vi}")
    o(f"v_lshl_add_u32 v{v3}, v{v4}, 3, v{v3}")
    o(f"s_lshl_b32 s{sT0}, s{sW}, 14")
    o(f"s_add_u32 s{sT0}, s{sT0}, 65536")
    o(f"v_add_u32 v{v4}, s{sT0}, v{v3}")
    for ct in range(4):
        for u in range(4):
            d = 192 + (ct * 4 + u) * 4
            o(f"ds_read_b64_tr_b16 {a(d,2)}, v{v4} offset:{u*4096+ct*32}")
            o(f"ds_read_b64_tr_b16 {a(d+2,2)}, v{v4} offset:{u*4096+2048+ct*32}")
        o("s_waitcnt lgkmcnt(0)")
    o("s_barrier")

    if hook:
        A.raw(hook)
        o(f"v_and_b32 v{vi}, 15, v{vL}"); o(f"v_lshrrev_b32 v{vg}, 4, v{vL}"); o(f"v_and_b32 v{vr}, 7, v{vL}")
    o(f"s_lshl_b32 s{sT0}, s{sW}, 12")
    o(f"v_add_u32 v{vE3}, s{sT0}, v{vL16}")
    o(f"v_lshrrev_b32 v{v1}, 1, v{vg}")
    o(f"v_lshlrev_b32 v{v1}, 8, v{v1}")
    o(f"v_lshl_add_u32 v{v1}, v{vr}, 4, v{v1}")
    o(f"s_lshr_b32 s{sT0}, s{sC}, 1")
    o(f"s_lshl_b32 s{sT0}, s{sT0}, 10")
    o(f"s_and_b32 s{sT1}, s{sW}, 1")
    o(f"s_lshl_b32 s{sT1}, s{sT1}, 9")
    o(f"s_add_u32 s{sT0}, s{sT0}, s{sT1}")
    o(f"s_and_b32 s{sT1}, s{sC}, 1")
    o(f"s_lshl_b32 s{sT1}, s{sT1}, 7")
    o(f"s_add_u32 s{sT0}, s{sT0}, s{sT1}")
    o(f"v_add_u32 v{vKMst}, s{sT0}, v{v1}")
    o(f"s_lshl_b32 s{sT0}, s{sHA}, 12")
    o(f"s_lshr_b32 s{sT1}, s{sW}, 1")
    o(f"s_lshl_b32 s{sT1}, s{sT1}, 11")
    o(f"s_add_u32 s{sT0}, s{sT0}, s{sT1}")
    o(f"v_add_u32 v{vQKst}, s{sT0}, v{vKMst}")
    o(f"s_lshl_b32 s{sT0}, s{sHA}, 11")
    o(f"s_lshl_b32 s{sT1}, s{sC}, 9")
    o(f"s_add_u32 s{sT0}, s{sT0}, s{sT1}")
    o(f"v_add_u32 v{vVst}, s{sT0}, v{vL16}")
    o(f"s_lshl_b32 s{sT0}, s{sW}, 11")
    o(f"v_add_u32 v{vVld}, s{sT0}, v{vL16}")
    o(f"s_lshl_b32 s{sT0}, s{sG}, 4")
    o(f"s_add_u32 s{sT0}, s{sT0}, s{sJ}")
    o(f"s_lshl_b32 s{sT0}, s{sT0}, 10")
    o(f"s_and_b32 s{sT1}, s{sW}, 1")
    o(f"s_lshl_b32 s{sT1}, s{sT1}, 9")
    o(f"s_add_u32 s{sT0}, s{sT0}, s{sT1}")
    o(f"s_lshr_b32 s{sT1}, s{sW}, 1")
    o(f"s_lshl_b32 s{sT1}, s{sT1}, 7")
    o(f"s_add_u32 s{sT0}, s{sT0}, s{sT1}")
    o(f"v_add_u32 v{vPst}, s{sT0}, v{v1}")
    o(f"v_lshlrev_b32 v{vPld}, 14, v{vg}")
    o(f"v_lshl_add_u32 v{vPld}, v{vi}, 4, v{vPld}")
    o(f"s_lshl_b32 s{sT0}, s{sJ}, 10")
    o(f"s_lshl_b32 s{sT1}, s{sW}, 8")
    o(f"s_add_u32 s{sT0}, s{sT0}, s{sT1}")
    o(f"v_add_u32 v{vPld}, s{sT0}, v{vPld}")
    o(f"v_add_u32 v{vMst}, s{sT0}, v{vL16}")
    o(f"v_lshlrev_b32 v{vKx}, 13, v{vi}")
    o(f"v_lshl_add_u32 v{vKx}, v{vg}, 4, v{vKx}")
    o(f"s_lshl_b32 s{sT0}, s{sHead}, 8")
    o(f"v_add_u32 v{vKx}, s{sT0}, v{vKx}")
    o(f"v_mov_b32 v{vLdsM}, v{vL16}")
    for d in range(4):
        o(f"v_mov_b32 v{vDelta+d}, 0")
        o(f"v_mov_b32 v{v1}, 0x3f80")
        o(f"v_cmp_eq_u32 vcc, {2*d}, v{vi}")
        o(f"v_cndmask_b32 v{vDelta+d}, v{vDelta+d}, v{v1}, vcc")
        o(f"v_mov_b32 v{v1}, 0x3f800000")
        o(f"v_cmp_eq_u32 vcc, {2*d+1}, v{vi}")
        o(f"v_cndmask_b32 v{vDelta+d}, v{vDelta+d}, v{v1}, vcc")
    o(f"v_mov_b32 v{v1}, 0xff800000")
    o(f"v_cmp_lt_u32 vcc, 31, v{vL}")
    o(f"v_cndmask_b32 v{vNeg}, 0, v{v1}, vcc")
    for r in range(1, 4): o(f"v_mov_b32 v{vNeg+r}, v{vNeg}")
    for r in range(4): o(f"v_mov_b32 v{vSent+r}, -1")
    o(f"s_mov_b32 s{sMaskQK}, 0xff"); o(f"s_mov_b32 s{sMaskQK+1}, 0xff")
    o(f"s_mov_b32 s{sSelV}, -1"); o(f"s_mov_b32 s{sSelV+1}, 0")
    import math
    cs = 128 ** -0.5 * math.log2(math.e)
    import struct
    o(f"s_mov_b32 s{sScale}, 0x{struct.unpack('<I', struct.pack('<f', cs))[0]:08x}")
    o(f"s_mov_b32 s{sScale+1}, s{sScale}")
    o(f"s_mov_b32 s{sLim}, 0x400000")
    o(f"s_mov_b32 s{sStep}, 0")
    def addbase(dst, off, extra_s=None):
        o(f"s_add_u32 s{dst}, s{sWS}, {off & 0xffffffff}")
        o(f"s_addc_u32 s{dst+1}, s{sWS+1}, 0")
        if extra_s is not None:
            o(f"s_add_u32 s{dst}, s{dst}, s{extra_s}")
            o(f"s_addc_u32 s{dst+1}, s{dst+1}, 0")
    o(f"s_lshl_b32 s{sT0}, s{sHead}, 13")
    o(f"s_add_u32 s{sT0}, s{sT0}, 4096")
    addbase(sKX, WS_K, sT0)
    o(f"s_lshl_b32 s{sT0}, s{sHead}, 13")
    o(f"s_add_u32 s{sT0}, s{sT0}, 4096")
    addbase(sVX, WS_VT, sT0)
    o(f"s_lshl_b32 s{sT0}, s{sHead}, 11")
    addbase(sKM, WS_KM, sT0)
    addbase(sVM, WS_VM, sT0)
    sCNT = 16
    addbase(sCNT, WS_CNT + cntoff)
    def kv_wait(chunk_sreg_expr_setup, target, tag):
        o(f"s_lshl_b32 s{sT0}, s{sT0}, 3"); o(f"s_add_u32 s{sT0}, s{sT0}, s{sG}"); o(f"s_lshl_b32 s{sT0}, s{sT0}, 7")
        o(f"v_mov_b32 v{vX+2}, s{sT0}")
        A.label(f"L_kvw_{tag}")
        o(f"global_load_dword v{vX+3}, v{vX+2}, {s(sCNT,2)} sc1")
        o("s_waitcnt vmcnt(0)")
        o(f"v_readfirstlane_b32 s{sT1}, v{vX+3}")
        o(f"s_cmp_ge_u32 s{sT1}, {target}")
        o(f"s_cbranch_scc1 L_kvw_{tag}_ok")
        o("s_sleep 4")
        o(f"s_sub_u32 s{sLim}, s{sLim}, 1")
        o(f"s_cbranch_scc0 L_kvw_{tag}")
        o(f"s_mov_b32 s{sLim}, 0")
        A.label(f"L_kvw_{tag}_ok")
    sEC = 94
    def gpoll(base, tag, sleep=12, allwaves=False):
        if not allwaves:
            o(f"s_cmp_lg_u32 s{sW}, 0"); o(f"s_cbranch_scc1 L_gp_{tag}_ok")
        o(f"v_mov_b32 v{vX+2}, s{sT0}")
        A.label(f"L_gp_{tag}")
        o(f"global_load_dword v{vX+3}, v{vX+2}, {s(base,2)} sc1")
        o("s_waitcnt vmcnt(0)")
        o(f"v_readfirstlane_b32 s{sT1}, v{vX+3}")
        o(f"s_cmp_ge_u32 s{sT1}, s{sT2}")
        o(f"s_cbranch_scc1 L_gp_{tag}_ok")
        o(f"s_sleep {sleep}")
        o(f"s_sub_u32 s{sLim}, s{sLim}, 1")
        o(f"s_cbranch_scc0 L_gp_{tag}")
        o(f"s_mov_b32 s{sLim}, 0")
        A.label(f"L_gp_{tag}_ok")
        if not allwaves: o("s_barrier")
    if KVCHK and not EARLY:
        o(f"s_mov_b32 s{sT0}, 0")
        kv_wait(None, 16, "0")
    if KVCHK and EARLY:
        o(f"s_mov_b32 s{sT0}, {EC_FILL*4}"); o(f"s_mov_b32 s{sT2}, 128"); gpoll(sEC, "f")
        o(f"s_lshl_b32 s{sT0}, s{sG}, 2"); o(f"s_add_u32 s{sT0}, s{sT0}, {EC_KVH0*4}"); o(f"s_mov_b32 s{sT2}, 16"); gpoll(sEC, "0")
    def load_kx():
        for t in range(8):
            o(f"global_load_dwordx4 {v(vK+t*4,4)}, v{vL16}, {s(sKX,2)} offset:{t*1024-4096}")
    load_kx()
    if prof:
        o(f"s_lshl_b32 s{sT0}, s{sG}, 4")
        o(f"s_add_u32 s{sT0}, s{sT0}, s{sJ}")
        o(f"s_lshl_b32 s{sT0}, s{sT0}, 2")
        o(f"s_add_u32 s{sT0}, s{sT0}, s{sW}")
        o(f"s_lshl_b32 s{sT0}, s{sT0}, 12")
        addbase(sProf, WS_PROF, sT0)
    nst = [0]
    def stamp():
        if not prof: return
        k = nst[0]; nst[0] += 1
        o(f"{TIMER} {s(sTs + 2*k, 2)}")

    def check(regs, lab_ok, lab_retry, tmp):
        regs = list(regs)
        o(f"v_max3_u32 v{tmp}, v{regs[0]}, v{regs[1]}, v{regs[2]}")
        k = 3
        while k + 1 < len(regs):
            o(f"v_max3_u32 v{tmp}, v{tmp}, v{regs[k]}, v{regs[k+1]}"); k += 2
        if k < len(regs):
            o(f"v_max_u32 v{tmp}, v{tmp}, v{regs[k]}")
        o(f"v_cmp_eq_u32 vcc, -1, v{tmp}")
        o(f"s_cbranch_vccz {lab_ok}")
        o(f"s_sub_u32 s{sLim}, s{sLim}, 1")
        o(f"s_cbranch_scc1 {lab_ok}_to")
        o(f"s_branch {lab_retry}")
        A.label(f"{lab_ok}_to")
        o(f"s_mov_b32 s{sLim}, 0")
        A.label(lab_ok)


    sCnt = 98
    vOo = [112, 116, 120, 124, 192, 196, 200, 204, 216, 220, 224, 228]
    vPf = 252
    def merge(main, side, every, start=0):
        side = list(side); out = [];
        for k, m_ in enumerate(main):
            out.append(m_)
            if side and k >= start and (k - start) % every == every - 1: out.append(side.pop(0))
        return out + side
    def emit(L):
        for x in L: o(x)
    def check(regs, lab_ok, lab_retry, tmp, cnt=None):
        regs = list(regs)
        o(f"v_max3_u32 v{tmp}, v{regs[0]}, v{regs[1]}, v{regs[2]}")
        k = 3
        while k + 1 < len(regs):
            o(f"v_max3_u32 v{tmp}, v{tmp}, v{regs[k]}, v{regs[k+1]}"); k += 2
        if k < len(regs):
            o(f"v_max_u32 v{tmp}, v{tmp}, v{regs[k]}")
        o(f"v_cmp_eq_u32 vcc, -1, v{tmp}")
        o(f"s_cbranch_vccz {lab_ok}")
        if prof and cnt is not None: o(f"s_add_u32 s{sCnt+cnt}, s{sCnt+cnt}, 1")
        o(f"s_sub_u32 s{sLim}, s{sLim}, 1")
        o(f"s_cbranch_scc0 {lab_retry}")
        o(f"s_mov_b32 s{sLim}, 0")
        A.label(lab_ok)
    sM = 88
    def mpoll(loads, tag, cnt):
        n = len(loads)
        regs = [b + r for b, _ in loads for r in range(4)]
        o(f"v_max3_u32 v{vX}, v{regs[0]}, v{regs[1]}, v{regs[2]}")
        k = 3
        while k + 1 < len(regs):
            o(f"v_max3_u32 v{vX}, v{vX}, v{regs[k]}, v{regs[k+1]}"); k += 2
        if k < len(regs): o(f"v_max_u32 v{vX}, v{vX}, v{regs[k]}")
        o(f"v_cmp_eq_u32 vcc, -1, v{vX}")
        o(f"s_cbranch_vccz L_{tag}_ok")
        A.label(f"L_{tag}_retry")
        if prof: o(f"s_add_u32 s{sCnt+cnt}, s{sCnt+cnt}, 1")
        for i, (b, rest) in enumerate(loads):
            o(f"v_max3_u32 v{vX}, v{b}, v{b+1}, v{b+2}")
            o(f"v_max_u32 v{vX}, v{vX}, v{b+3}")
            o(f"v_cmp_eq_u32 vcc, -1, v{vX}")
            o(f"s_cbranch_vccz L_{tag}_sk{i}")
            o("s_mov_b64 exec, vcc")
            o(f"global_load_dwordx4 {v(b,4)}, {rest}")
            o("s_mov_b64 exec, -1")
            A.label(f"L_{tag}_sk{i}")
        o("s_waitcnt vmcnt(0)")
        o(f"v_max3_u32 v{vX}, v{regs[0]}, v{regs[1]}, v{regs[2]}")
        k = 3
        while k + 1 < len(regs):
            o(f"v_max3_u32 v{vX}, v{vX}, v{regs[k]}, v{regs[k+1]}"); k += 2
        if k < len(regs): o(f"v_max_u32 v{vX}, v{vX}, v{regs[k]}")
        o(f"v_cmp_eq_u32 vcc, -1, v{vX}")
        o(f"s_cbranch_vccz L_{tag}_ok")
        o(f"s_sub_u32 s{sLim}, s{sLim}, 1")
        o(f"s_cbranch_scc0 L_{tag}_retry")
        o(f"s_mov_b32 s{sLim}, 0")
        A.label(f"L_{tag}_ok")
    if prof:
        for k in range(4): o(f"s_mov_b32 s{sCnt+k}, 0")
    vPfo = 58
    o(f"s_lshl_b32 s{sT1}, s{sG}, 2"); o(f"s_add_u32 s{sT1}, s{sT1}, s{sHA}"); o(f"s_lshl_b32 s{sT1}, s{sT1}, 13")
    o(f"s_lshl_b32 s{sT2}, s{sC}, 11"); o(f"s_add_u32 s{sT1}, s{sT1}, s{sT2}")
    o(f"s_and_b32 s{sT2}, s{sW}, 1"); o(f"s_lshl_b32 s{sT2}, s{sT2}, 10"); o(f"s_add_u32 s{sT1}, s{sT1}, s{sT2}")
    o(f"v_add_u32 v{vPfo}, s{sT1}, v{vL16}")
    o(f"s_cmp_lt_u32 s{sW}, 2")
    sPF = 18
    o(f"s_mov_b32 s{sT0}, {WS_K + 2*262144}")
    o(f"s_mov_b32 s{sT1}, {WS_VT + 2*262144}")
    o(f"s_cselect_b32 s{sT0}, s{sT0}, s{sT1}")
    o(f"s_add_u32 s{sPF}, s{sWS}, s{sT0}"); o(f"s_addc_u32 s{sPF+1}, s{sWS+1}, 0")
    def kx_loads():
        if NOK: return ["s_nop 0"] * 8
        return [f"global_load_dwordx4 {v(vK+t*4,4)}, v{vL16}, {s(sKX,2)} offset:{t*1024-4096}" for t in range(8)]
    def vx_loads():
        if NOV: return ["s_nop 0"] * 8
        return [f"global_load_dwordx4 {v(vV+4*t,4)}, v{vL16}, {s(sVX,2)} offset:{t*1024-4096}" for t in range(8)]
    vRd = [None, 232, 233, 234]
    for hs in (1, 2, 3):
        o(f"v_add_u32 v{vRd[hs]}, {hs*4096}, v{vE3}")
        o(f"v_and_b32 v{vRd[hs]}, 0x3fff, v{vRd[hs]}")
    vVw, vVr, vRw = 235, 59, 15
    o(f"s_lshl_b32 s{sT0}, s{sW}, 10")
    o(f"v_add_u32 v{vVw}, s{sT0}, v{vL16}")
    o(f"v_and_b32 v{vVr}, 31, v{vL}")
    o(f"v_lshlrev_b32 v{vVr}, 4, v{vVr}")
    o(f"v_lshrrev_b32 v{vX+2}, 5, v{vL}")
    o(f"v_lshl_add_u32 v{vVr}, v{vX+2}, 10, v{vVr}")
    vL4 = vX + 3
    o(f"v_lshlrev_b32 v{vL4}, 2, v{vL}")
    o(f"s_lshl_b32 s{sT0}, s{sW}, 8")
    o(f"v_add_u32 v{vRw}, s{sT0}, v{vL4}")
    vRr = [None, 1, 2, 3]
    for hs in (1, 2, 3):
        o(f"s_add_u32 s{sT0}, s{sW}, {hs}"); o(f"s_and_b32 s{sT0}, s{sT0}, 3"); o(f"s_lshl_b32 s{sT0}, s{sT0}, 8")
        o(f"v_add_u32 v{vRr[hs]}, s{sT0}, v{vL4}")
    vOnes = 4
    for r in range(4): o(f"v_mov_b32 v{vOnes+r}, 0x3f803f80")

    LDS_R = 36864
    A.label("L_step")
    nst[0] = 0
    if KVCHK:
        if FILL2 is not None:
            o(f"s_cmp_lg_u32 s{sStep}, 6"); o("s_cbranch_scc1 L_kvf2")
            o(f"s_mov_b32 s{sT0}, {FILL2}"); o(f"s_mov_b32 s{sT2}, 128"); gpoll(sCNT, "l2", 4)
            A.label("L_kvf2")
        if EARLY:
            o(f"s_cmp_lg_u32 s{sStep}, 2"); o("s_cbranch_scc1 L_kvn2")
            o(f"s_lshl_b32 s{sT0}, s{sG}, 2"); o(f"s_add_u32 s{sT0}, s{sT0}, {EC_KVH1*4}"); o(f"s_mov_b32 s{sT2}, 16"); gpoll(sEC, "h1", 4)
            A.label("L_kvn2")
            o(f"s_cmp_lg_u32 s{sStep}, 6"); o("s_cbranch_scc1 L_kvn6")
            o(f"s_mov_b32 s{sT0}, {EC_FILL2*4}"); o(f"s_mov_b32 s{sT2}, 128"); gpoll(sEC, "f2", 4)
            A.label("L_kvn6")
        o(f"s_add_u32 s{sT0}, s{sStep}, 2"); o(f"s_and_b32 s{sT1}, s{sT0}, 7"); o(f"s_cmp_lg_u32 s{sT1}, 0"); o("s_cbranch_scc1 L_kvskip")
        o(f"s_cmp_ge_u32 s{sT0}, 64"); o("s_cbranch_scc1 L_kvskip")
        o(f"s_lshr_b32 s{sT0}, s{sT0}, 3")
        if EARLY:
            o(f"s_cmp_eq_u32 s{sT0}, 1"); o(f"s_cselect_b32 s{sT2}, 16, 4")
        else:
            o(f"s_mov_b32 s{sT2}, 4")
        o(f"v_readfirstlane_b32 s{sT1}, v{vFlag}")
        o(f"s_cmp_ge_u32 s{sT1}, s{sT2}"); o("s_cbranch_scc1 L_kvskip")
        o(f"s_lshl_b32 s{sT0}, s{sT0}, 3"); o(f"s_add_u32 s{sT0}, s{sT0}, s{sG}"); o(f"s_lshl_b32 s{sT0}, s{sT0}, 7")
        gpoll(sCNT, "n", 4, allwaves=True)
        A.label("L_kvskip")
    o(f"s_and_b32 s{sSlot}, s{sStep}, 3")
    o(f"s_lshl_b32 s{sT0}, s{sSlot}, 17")
    o(f"s_lshl_b32 s{sT1}, s{sG}, 14")
    o(f"s_add_u32 s{sT2}, s{sT0}, s{sT1}")
    addbase(sMEMc, WS_RMEM, sT2)
    e3_loads = [(vB + 4*u, f"v{vE3}, {s(sMEMc,2)} offset:{u*1024} sc1") for u in range(4)]
    def qk_mfma(i, first=False):
        for half, acc in ((0, vA0), (1, vA1)):
            c = "0" if first else v(acc, 4)
            o(f"v_mfma_f32_16x16x32_bf16 {v(acc,4)}, {a((i*2+half)*4,4)}, {v(vB+4*i,4)}, {c}")
    def salu_bases():
        addbase(sQK, WS_RQK, sT2)
        o(f"s_lshl_b32 s{sT3}, s{sStep}, 17")
        addbase(sPART, WS_PARTF, sT3)
        o(f"s_add_u32 s{sPART2}, s{sPART}, 65536"); o(f"s_addc_u32 s{sPART2+1}, s{sPART+1}, 0")
        o(f"s_lshr_b32 s{sT3}, s{sT2}, 1")
        addbase(sVR, WS_RV, sT3)
        o(f"s_add_u32 s{sT3}, s{sStep}, 1"); o(f"s_and_b32 s{sT3}, s{sT3}, 3"); o(f"s_lshl_b32 s{sT3}, s{sT3}, 17"); o(f"s_add_u32 s{sT3}, s{sT3}, s{sT1}")
        addbase(sMEMn, WS_RMEM, sT3)
        o(f"s_xor_b32 s{sT3}, s{sT0}, {2<<17}")
        o(f"s_add_u32 s{sT3}, s{sT3}, s{sT1}")
        addbase(sRq, WS_RQK, sT3)
        o(f"s_lshr_b32 s{sT3}, s{sT3}, 1")
        addbase(sRv, WS_RV, sT3)
        o(f"s_add_u32 s{sT3}, s{sStep}, 3"); o(f"s_and_b32 s{sT3}, s{sT3}, 3"); o(f"s_lshl_b32 s{sT3}, s{sT3}, 17"); o(f"s_add_u32 s{sT3}, s{sT3}, s{sT1}")
        addbase(sRm, WS_RMEM, sT3)
    def simple_poll(loads, tag, cnt, first_wait):
        regs = [b + r for b, _ in loads for r in range(4)]
        o(f"s_waitcnt vmcnt({first_wait})")
        o(f"s_branch L_{tag}_c")
        A.label(f"L_{tag}_r")
        for b, rest in loads: o(f"global_load_dwordx4 {v(b,4)}, {rest}")
        o("s_waitcnt vmcnt(0)")
        A.label(f"L_{tag}_c")
        check(regs, f"L_{tag}_ok", f"L_{tag}_r", vX, cnt)
    n0 = len(A.lines); salu_bases(); sl = A.lines[n0:]; del A.lines[n0:]
    nb = len(sl) if E3_SALU_FIRST == 1 else (0 if E3_SALU_FIRST == 0 else min(len(sl), E3_SALU_FIRST))
    while 0 < nb < len(sl) and sl[nb].startswith("s_addc"): nb += 1
    for x in sl[:nb]: o(x)
    stamp()
    for b, rest in e3_loads: o(f"global_load_dwordx4 {v(b,4)}, {rest}")
    for x in sl[nb:]: o(x)
    simple_poll(e3_loads, "e3", 0, 0)
    if SIG:
        o(f"s_sub_u32 s{sT3}, s{sStep}, 1"); o(f"s_cbranch_scc1 L_nosig")
        o(f"s_and_b32 s{sT0}, s{sT3}, 15"); o(f"s_cmp_lg_u32 s{sT0}, s{sJ}"); o("s_cbranch_scc1 L_nosig")
        o(f"s_lshl_b32 s{sT0}, s{sT3}, 7"); o(f"s_add_u32 s{sT0}, s{sT0}, {CNT_REC}")
        o(f"v_mov_b32 v{vX+2}, s{sT0}"); o(f"v_mov_b32 v{vX+3}, 1")
        o("s_mov_b64 exec, 1")
        o(f"global_atomic_add v{vX+2}, v{vX+3}, {s(sCNT,2)}")
        o("s_mov_b64 exec, -1")
        A.label("L_nosig")
    for u, (b, rest) in enumerate(e3_loads):
        o(f"ds_write_b128 v{vE3}, {v(b,4)} offset:{LDS_MEM + u*1024}")
    for u in range(4): qk_mfma(u, first=(u == 0))
    stamp()
    o("s_waitcnt lgkmcnt(0)")
    o("s_barrier")
    for i in range(4, 16):
        o(f"ds_read_b128 {v(vB+4*i,4)}, v{vRd[i//4]} offset:{LDS_MEM + (i%4)*1024}")
    vxl = vx_loads()
    for i in range(4, 16):
        o(f"s_waitcnt lgkmcnt({15-i})")
        qk_mfma(i)
        if i % VSP == VSP - 1 and vxl: o(vxl.pop(0))
    stamp()
    for r in range(4):
        o(f"v_add_f32_dpp v{vA0+r}, v{vA1+r}, v{vA0+r} row_ror:8 row_mask:0xf bank_mask:0xf")
    R = vX + 4
    o(f"v_cvt_pk_bf16_f32 v{R}, v{vA0}, v{vA0+1}")
    o(f"v_cvt_pk_bf16_f32 v{R+1}, v{vA0+2}, v{vA0+3}")
    o(f"v_permlane16_swap_b32 v{R}, v{R+2}")
    o(f"v_permlane16_swap_b32 v{R+1}, v{R+3}")
    o(f"s_mov_b64 exec, {s(sMaskQK,2)}")
    o(f"global_store_dwordx4 v{vQKst}, {v(R,4)}, {s(sQK,2)}{st_fast}")
    o("s_mov_b64 exec, -1")
    stamp()
    e1_loads = [(vQ + 4*cp, f"v{vE3}, {s(sQK,2)} offset:{cp*1024} sc1") for cp in range(2)] + [(vKm + 4*cp, f"v{vE3}, {s(sQK,2)} offset:{2048+cp*1024} sc1") for cp in range(2)]
    def e1_issue():
        for b, rest in e1_loads: o(f"global_load_dwordx4 {v(b,4)}, {rest}")
    for i in range(8):
        for half, acc in ((0, vAv0), (1, vAv1)):
            c = "0" if i == 0 else v(acc, 4)
            o(f"v_mfma_f32_16x16x32_bf16 {v(acc,4)}, {v(vB+4*i,4)}, {a(128+(i*2+half)*4,4)}, {c}")
        if vxl and i % 2 == 1: o(vxl.pop(0))
        if i == E1_AT:
            emit(vxl); vxl = []
            e1_issue()
    emit(vxl)
    for r in range(4):
        o(f"v_cndmask_b32 v{vAv0+r}, v{vAv1+r}, v{vAv0+r}, {s(sSelV,2)}")
    o(f"ds_write_b128 v{vVw}, {v(vAv0,4)} offset:{LDS_V}")
    o("s_waitcnt lgkmcnt(0)")
    o("s_barrier")
    o(f"s_cmp_lg_u32 s{sW}, 0")
    o("s_cbranch_scc1 L_vred_skip")
    T = vA0
    for k, off in enumerate((0, 512, 2048, 2560)):
        o(f"ds_read_b128 {v(T+4*k,4)}, v{vVr} offset:{LDS_V+off}")
    o("s_waitcnt lgkmcnt(0)")
    for r in range(4):
        o(f"v_add_f32 v{T+r}, v{T+r}, v{T+4+r}")
        o(f"v_add_f32 v{T+8+r}, v{T+8+r}, v{T+12+r}")
    for r in range(4):
        o(f"v_add_f32 v{T+r}, v{T+r}, v{T+8+r}")
    o(f"v_cvt_pk_bf16_f32 v{R}, v{T}, v{T+1}")
    o(f"v_cvt_pk_bf16_f32 v{R+1}, v{T+2}, v{T+3}")
    o(f"v_permlane32_swap_b32 v{R}, v{R+2}")
    o(f"v_permlane32_swap_b32 v{R+1}, v{R+3}")
    o(f"s_mov_b64 exec, {s(sSelV,2)}")
    o(f"global_store_dwordx4 v{vVst}, {v(R,4)}, {s(sVR,2)}{st_fast}")
    o("s_mov_b64 exec, -1")
    o("s_waitcnt vmcnt(1)")
    o("s_branch L_e1_c")
    A.label("L_e1_r")
    e1_issue()
    A.label("L_vred_skip")
    o("s_waitcnt vmcnt(0)")
    A.label("L_e1_c")
    check([b + r for b, _ in e1_loads for r in range(4)], "L_e1_ok", "L_e1_r", vX, 1)
    stamp()
    def M32(d, A_, B_, C_): return f"v_mfma_f32_16x16x32_bf16 {v(d,4)}, {A_}, {B_}, {C_}"
    def rot(dst, srcr): return [f"v_mov_b32_dpp v{dst+r}, v{srcr+r} row_ror:8 row_mask:0xf bank_mask:0xf" for r in range(4)]
    Kf = lambda kt, u: v(vK + (kt*4+u)*4, 4)
    seq = []
    seq += [M32(vSx, Kf(0,0), v(vQ,4), "0")] + rot(vQr, vQ)[:2]
    seq += [M32(vSx+4, Kf(1,0), v(vQ,4), "0")] + rot(vQr, vQ)[2:]
    seq += [M32(vSm, v(vKm,4), v(vQ,4), v(vNeg,4))] + rot(vQr+4, vQ+4)[:2]
    seq += [M32(vSx, Kf(0,2), v(vQ+4,4), v(vSx,4))] + rot(vQr+4, vQ+4)[2:]
    seq += [M32(vSx+4, Kf(1,2), v(vQ+4,4), v(vSx+4,4))] + rot(vKr, vKm)[:2]
    seq += [M32(vSm, v(vKm+4,4), v(vQ+4,4), v(vSm,4))] + rot(vKr, vKm)[2:]
    seq += [M32(vSx, Kf(0,1), v(vQr,4), v(vSx,4))] + rot(vKr+4, vKm+4)[:2]
    seq += [M32(vSx+4, Kf(1,1), v(vQr,4), v(vSx+4,4))] + rot(vKr+4, vKm+4)[2:]
    seq += [M32(vSx, Kf(0,3), v(vQr+4,4), v(vSx,4))]
    seq += [M32(vSx+4, Kf(1,3), v(vQr+4,4), v(vSx+4,4))]
    seq += [M32(vSm, v(vKr,4), v(vQr,4), v(vSm,4))]
    seq += [M32(vSm, v(vKr+4,4), v(vQr+4,4), v(vSm,4))]
    emit(seq)
    if not FIXKV:
        o(f"s_add_u32 s{sKX}, s{sKX}, 262144"); o(f"s_addc_u32 s{sKX+1}, s{sKX+1}, 0")
    vm_loads = [(vVm + 4*mm, f"v{vVld}, {s(sVR,2)} offset:{mm*1024} sc1") for mm in range(2)]
    for b, rest in vm_loads: o(f"global_load_dwordx4 {v(b,4)}, {rest}")
    if PF and PFE: o(f"global_load_dwordx4 {v(vPf,4)}, v{vPfo}, {s(sPF,2)}")
    m, t = vX + 1, vX + 2
    Sall = list(range(vSx, vSx + 8)) + list(range(vSm, vSm + 4))
    m2 = vX + 3
    o(f"v_max3_f32 v{m}, v{Sall[0]}, v{Sall[1]}, v{Sall[2]}")
    o(f"v_max3_f32 v{m2}, v{Sall[4]}, v{Sall[5]}, v{Sall[6]}")
    o(f"v_max3_f32 v{m}, v{m}, v{Sall[3]}, v{Sall[7]}")
    o(f"v_max3_f32 v{m2}, v{m2}, v{Sall[8]}, v{Sall[9]}")
    o(f"v_max3_f32 v{m}, v{m}, v{Sall[10]}, v{Sall[11]}")
    o(f"v_max_f32 v{m}, v{m}, v{m2}")
    for sw in ("16", "32"):
        o(f"v_mov_b32 v{t}, v{m}")
        o(f"v_permlane{sw}_swap_b32 v{m}, v{t}")
        o(f"v_max_f32 v{m}, v{m}, v{t}")
    mm_ = vX + 2
    o(f"v_mul_f32 v{mm_}, s{sScale}, v{m}")
    kxl = kx_loads()
    main = []
    for r in Sall[::2]: main.append(f"v_pk_fma_f32 {v(r,2)}, {v(r,2)}, {s(sScale,2)}, {v(mm_,2)} op_sel_hi:[1,1,0] neg_lo:[0,0,1] neg_hi:[0,0,1]")
    for k_, r in enumerate(Sall):
        main.append(f"v_exp_f32 v{r}, v{r}")
    emit(merge(main, [kxl.pop(0), kxl.pop(0)], 7))
    o(f"v_cvt_pk_bf16_f32 v{vPx}, v{vSx}, v{vSx+1}")
    o(f"v_cvt_pk_bf16_f32 v{vPx+1}, v{vSx+2}, v{vSx+3}")
    o(f"v_cvt_pk_bf16_f32 v{vPx+2}, v{vSx+4}, v{vSx+5}")
    o(f"v_cvt_pk_bf16_f32 v{vPx+3}, v{vSx+6}, v{vSx+7}")
    o(f"v_cvt_pk_bf16_f32 v{vPmA}, v{vSm}, v{vSm+1}")
    o(f"v_cvt_pk_bf16_f32 v{vPmA+1}, v{vSm+2}, v{vSm+3}")
    stamp()
    vLs = vSx
    pv = [M32(vO+4*tt, v(vV+4*tt,4), v(vPx,4), "0") for tt in range(8)]
    side = [f"v_mov_b32 v{vX+4}, v{vPmA}", f"v_mov_b32 v{vX+5}, v{vPmA+1}", f"v_mov_b32 v{vPmB}, 0", f"v_mov_b32 v{vPmB+1}, 0",
            f"v_permlane32_swap_b32 v{vPmB}, v{vX+4}", f"v_permlane32_swap_b32 v{vPmB+1}, v{vX+5}", kxl.pop(0)]
    emit(merge(pv, side, 1))
    o(M32(vLs, v(vOnes,4), v(vPx,4), "0"))
    o(f"v_mfma_f32_16x16x16_bf16 {v(vLs,4)}, {v(vOnes,2)}, {v(vPmA,2)}, {v(vLs,4)}")
    simple_poll(vm_loads, "vm", 2, 4 if (PF and PFE) else 3)
    stamp()
    def pvm(tt):
        c, tv = tt >> 1, tt & 1
        pm = vPmB if (c & 1) else vPmA
        return f"v_mfma_f32_16x16x16_bf16 {v(vO+4*tt,4)}, {v(vVm+4*(c>>1)+2*tv,2)}, {v(pm,2)}, {v(vO+4*tt,4)}"
    def cvt(tt):
        u, h = tt >> 1, tt & 1
        return [f"v_cvt_pk_bf16_f32 v{vOb+4*u+2*h}, v{vO+4*tt}, v{vO+4*tt+1}", f"v_cvt_pk_bf16_f32 v{vOb+4*u+2*h+1}, v{vO+4*tt+2}, v{vO+4*tt+3}"]
    if REORD:
        for tt in range(4): o(pvm(tt))
    if KVCHK:
        o(f"s_add_u32 s{sT0}, s{sStep}, 3"); o(f"s_and_b32 s{sT1}, s{sT0}, 7"); o(f"s_cmp_lg_u32 s{sT1}, 0"); o("s_cbranch_scc1 L_nofl")
        o(f"s_lshr_b32 s{sT0}, s{sT0}, 3"); o(f"s_lshl_b32 s{sT0}, s{sT0}, 3"); o(f"s_add_u32 s{sT0}, s{sT0}, s{sG}"); o(f"s_lshl_b32 s{sT0}, s{sT0}, 7")
        o(f"v_mov_b32 v{vFlag}, s{sT0}")
        o(f"global_load_dword v{vFlag}, v{vFlag}, {s(sCNT,2)} sc1")
        A.label("L_nofl")
    o(f"s_and_b32 s{sT0}, s{sStep}, 15"); o(f"s_cmp_lg_u32 s{sT0}, s{sJ}"); o("s_cbranch_scc1 L_nopub")
    for cp in range(2): o(f"global_store_dwordx4 v{vL16}, {v(vKm+4*cp,4)}, {s(sKM,2)} offset:{cp*1024}" + (" sc1" if SIG else ""))
    for cp in range(2): o(f"global_store_dwordx4 v{vL16}, {v(vVm+4*cp,4)}, {s(sVM,2)} offset:{cp*1024}" + (" sc1" if SIG else ""))
    A.label("L_nopub")
    if LAST_SHORT:
        o(f"s_cmp_eq_u32 s{sStep}, {nsteps-1}")
        o("s_cbranch_scc1 L_rec_last")
    if PF and not PFE: o(f"global_load_dwordx4 {v(vPf,4)}, v{vPfo}, {s(sPF,2)}")
    if not REORD:
        for tt in range(3): o(pvm(tt))
    vCa = [16, 20, 24, 28]
    l_ = vX + 1
    def cm(ct, u):
        c = "0" if u == 0 else v(vCa[ct], 4)
        return f"v_mfma_f32_16x16x32_bf16 {v(vCa[ct],4)}, {a(192+(ct*4+u)*4,4)}, {v(vOb+4*u,4)}, {c}"
    pend = []
    for tt in range(8):
        if REORD:
            if tt + 4 < 8: o(pvm(tt + 4))
        elif tt + 3 < 8: o(pvm(tt + 3))
        cv = cvt(tt)
        o(cv[0])
        if pend: o(pend.pop(0))
        o(cv[1])
        if pend: o(pend.pop(0))
        if tt == 0: o(f"v_rcp_f32 v{l_}, v{vLs}")
        if tt % 2 == 1:
            pend += [cm(ct, tt >> 1) for ct in range(4)]
            if kxl: o(kxl.pop(0))
    emit(pend)
    for ct in range(4):
        pass
    o(f"v_mov_b32 v{vX+2}, v{l_}")
    for ct in range(4):
        o(f"v_pk_mul_f32 {v(vCa[ct],2)}, {v(vCa[ct],2)}, {v(vX+2,2)} op_sel_hi:[1,0]")
        o(f"v_pk_mul_f32 {v(vCa[ct]+2,2)}, {v(vCa[ct]+2,2)}, {v(vX+2,2)} op_sel_hi:[1,0]")
        o(f"ds_write_b128 v{vVw}, {v(vCa[ct],4)} offset:{LDS_O+ct*4096}")
    while kxl: o(kxl.pop(0))
    o("s_waitcnt lgkmcnt(0)")
    o("s_barrier")
    stamp()
    Rr = [112, 116, 120, 124]
    for sw in range(4): o(f"ds_read_b128 {v(Rr[sw],4)}, v{vE3} offset:{LDS_O+sw*1024}")
    vC = Rr[0]
    o("s_waitcnt lgkmcnt(2)")
    o(f"v_pk_add_f32 {v(Rr[0],2)}, {v(Rr[0],2)}, {v(Rr[1],2)}"); o(f"v_pk_add_f32 {v(Rr[0]+2,2)}, {v(Rr[0]+2,2)}, {v(Rr[1]+2,2)}")
    o("s_waitcnt lgkmcnt(0)")
    o(f"v_pk_add_f32 {v(Rr[2],2)}, {v(Rr[2],2)}, {v(Rr[3],2)}"); o(f"v_pk_add_f32 {v(Rr[2]+2,2)}, {v(Rr[2]+2,2)}, {v(Rr[3]+2,2)}")
    o(f"v_pk_add_f32 {v(Rr[0],2)}, {v(Rr[0],2)}, {v(Rr[2],2)}"); o(f"v_pk_add_f32 {v(Rr[0]+2,2)}, {v(Rr[0]+2,2)}, {v(Rr[2]+2,2)}")
    o(f"v_cvt_pk_bf16_f32 v{R}, v{vC}, v{vC+1}")
    o(f"v_cvt_pk_bf16_f32 v{R+1}, v{vC+2}, v{vC+3}")
    o(f"v_permlane16_swap_b32 v{R}, v{R+2}")
    o(f"v_permlane16_swap_b32 v{R+1}, v{R+3}")
    o(f"s_mov_b64 exec, {s(sMaskQK,2)}")
    if EP == 2:
        o("s_waitcnt vmcnt(0)")
        o(f"{TIMER} {s(sTs + 2*5, 2)}")
    o(f"global_store_dwordx4 v{vPst}, {v(R,4)}, {s(sPART,2)} sc1")
    stamp()
    if EP == 2:
        o("s_waitcnt vmcnt(0)")
        o(f"{TIMER} {s(sTs + 2*4, 2)}")
    o(f"global_store_dwordx4 v{vQKst}, {v(vSent,4)}, {s(sRq,2)}{st_fast}")
    o(f"s_mov_b64 exec, 0xffff")
    o(f"global_store_dwordx4 v{vMst}, {v(vSent,4)}, {s(sRm,2)}{st_fast}")
    o(f"s_cmp_lg_u32 s{sW}, 0")
    o("s_cbranch_scc1 L_norv")
    o(f"s_mov_b64 exec, {s(sSelV,2)}")
    o(f"global_store_dwordx4 v{vVst}, {v(vSent,4)}, {s(sRv,2)}{st_fast}")
    A.label("L_norv")
    o("s_mov_b64 exec, -1")
    if not FIXKV:
        o(f"s_add_u32 s{sVX}, s{sVX}, 262144"); o(f"s_addc_u32 s{sVX+1}, s{sVX+1}, 0")
    o(f"s_add_u32 s{sKM}, s{sKM}, 65536"); o(f"s_addc_u32 s{sKM+1}, s{sKM+1}, 0")
    o(f"s_add_u32 s{sVM}, s{sVM}, 65536"); o(f"s_addc_u32 s{sVM+1}, s{sVM+1}, 0")
    if E2_DELAY: o(f"s_sleep {E2_DELAY}")
    sets = [vB + 8 * k for k in range(E2_DEPTH)]
    def e2_issue(b):
        o(f"global_load_dwordx4 {v(b,4)}, v{vPld}, {s(sPART,2)} {E2F}")
        o(f"global_load_dwordx4 {v(b+4,4)}, v{vPld}, {s(sPART2,2)} {E2F}")
    if EP: o(f"{TIMER} {s(sTs + 2*2, 2)}")
    for k, b in enumerate(sets):
        e2_issue(b)
        if k + 1 < len(sets) and E2_SP: o(f"s_sleep {E2_SP}")
    if EP:
        o(f"s_waitcnt vmcnt({2*(len(sets)-1)})")
        o(f"{TIMER} {s(sTs + 2*3, 2)}")
    A.label("L_e2")
    for k, b in enumerate(sets):
        o(f"s_waitcnt vmcnt({2*(len(sets)-1)})")
        regs = list(range(b, b + 8))
        o(f"v_max3_u32 v{vX}, v{regs[0]}, v{regs[1]}, v{regs[2]}")
        o(f"v_max3_u32 v{vX}, v{vX}, v{regs[3]}, v{regs[4]}")
        o(f"v_max3_u32 v{vX}, v{vX}, v{regs[5]}, v{regs[6]}")
        o(f"v_max_u32 v{vX}, v{vX}, v{regs[7]}")
        o(f"v_cmp_eq_u32 vcc, -1, v{vX}")
        o(f"s_cbranch_vccz L_e2_ok{k}")
        if prof: o(f"s_add_u32 s{sCnt+3}, s{sCnt+3}, 1")
        e2_issue(b)
    o(f"s_sub_u32 s{sLim}, s{sLim}, 1")
    o(f"s_cbranch_scc0 L_e2")
    o(f"s_mov_b32 s{sLim}, 0")
    D = vA1
    for k, b in enumerate(sets):
        A.label(f"L_e2_ok{k}")
        o(f"v_mfma_f32_16x16x32_bf16 {v(D,4)}, {v(vDelta,4)}, {v(b,4)}, 0")
        o(f"v_mfma_f32_16x16x32_bf16 {v(D,4)}, {v(vDelta,4)}, {v(b+4,4)}, {v(D,4)}")
        if k + 1 < len(sets): o("s_branch L_e2_done")
    A.label("L_e2_done")
    o(f"s_add_u32 s{sPF}, s{sPF}, 262144"); o(f"s_addc_u32 s{sPF+1}, s{sPF+1}, 0")
    stamp()
    o("s_nop 7")
    o(f"v_cvt_pk_bf16_f32 v{R}, v{D}, v{D+1}")
    o(f"v_cvt_pk_bf16_f32 v{R+1}, v{D+2}, v{D+3}")
    o(f"v_permlane16_swap_b32 v{R}, v{R+2}")
    o(f"v_permlane16_swap_b32 v{R+1}, v{R+3}")
    o(f"s_mov_b64 exec, 0xffff")
    o(f"global_store_dwordx4 v{vMst}, {v(R,4)}, {s(sMEMn,2)}{st_fast}")
    o("s_mov_b64 exec, -1")
    stamp()
    if E3_DELAY: o(f"s_sleep {E3_DELAY}")
    if prof:
        o("s_waitcnt lgkmcnt(0)")
        for k in range(nst[0]):
            o(f"v_writelane_b32 v{vX+8}, s{sTs+2*k}, {k}")
        for k in range(4):
            o(f"v_writelane_b32 v{vX+8}, s{sCnt+k}, {11+k}")
        o(f"v_writelane_b32 v{vX+8}, s92, 15")
        o(f"s_lshl_b32 s{sT0}, s{sW}, 12")
        o(f"s_lshl_b32 s{sT1}, s{sStep}, 6")
        o(f"s_add_u32 s{sT0}, s{sT0}, s{sT1}")
        o(f"s_add_u32 s{sT0}, s{sT0}, 40960")
        o(f"v_lshlrev_b32 v{vX+9}, 2, v{vL}")
        o(f"v_add_u32 v{vX+9}, s{sT0}, v{vX+9}")
        o("s_mov_b64 exec, 0xffff")
        o(f"ds_write_b32 v{vX+9}, v{vX+8}")
        o("s_mov_b64 exec, -1")
    o(f"s_add_u32 s{sStep}, s{sStep}, 1")
    o(f"s_cmp_lt_u32 s{sStep}, {nsteps}")
    o("s_cbranch_scc1 L_step")
    o("s_branch L_rec_fin")
    A.label("L_rec_last")
    if SIG:
        o("s_waitcnt vmcnt(0)")
        o(f"s_and_b32 s{sT0}, s{sStep}, 15"); o(f"s_cmp_lg_u32 s{sT0}, s{sJ}"); o("s_cbranch_scc1 L_rec_fin")
        o(f"s_lshl_b32 s{sT0}, s{sStep}, 7"); o(f"s_add_u32 s{sT0}, s{sT0}, {CNT_REC}")
        o(f"v_mov_b32 v{vX+2}, s{sT0}"); o(f"v_mov_b32 v{vX+3}, 1")
        o("s_mov_b64 exec, 1")
        o(f"global_atomic_add v{vX+2}, v{vX+3}, {s(sCNT,2)}")
        o("s_mov_b64 exec, -1")
    A.label("L_rec_fin")
    if prof:
        o("s_waitcnt lgkmcnt(0)")
        o(f"s_lshl_b32 s{sT0}, s{sW}, 12")
        o(f"s_add_u32 s{sT0}, s{sT0}, 40960")
        o(f"v_add_u32 v{vX+9}, s{sT0}, v{vL16}")
        for k in range(4):
            o(f"ds_read_b128 {v(vB+4*k,4)}, v{vX+9} offset:{k*1024}")
        o("s_waitcnt lgkmcnt(0)")
        for k in range(4):
            o(f"global_store_dwordx4 v{vL16}, {v(vB+4*k,4)}, {s(sProf,2)} offset:{k*1024}")
    o("s_waitcnt vmcnt(0)")
    A.label("L_rec_end")
    o("s_endpgm")
    txt = A.finish()
    if embedded:
        import re
        return re.sub(r"\bL_", pfx + "L_", txt)
    return kernel_head(name) + txt + kernel_desc(name, 256, 256)

if __name__ == "__main__":
    import sys
    fast = "slow" not in sys.argv
    prof = "prof" in sys.argv
    ng = 256 if any(x.startswith("X4=1") for x in sys.argv) else 128
    hdr = f"; @launch kernel=rec_kernel grid=({ng},1,1) block=(256,1,1) lds=131072\n.amdgcn_target \"amdgcn-amd-amdhsa--gfx950\"\n.text\n"
    kw = {}
    for x in sys.argv[1:]:
        if "=" in x:
            k_, v_ = x.split("=");
            if k_ != "out": kw[k_] = int(v_) if v_.isdigit() else v_
    outn = [x.split("=")[1] for x in sys.argv if x.startswith("out=")]
    open(outn[0] if outn else "rec_test.s", "w").write(hdr + gen_rec(fast=fast, prof=prof, **kw))
```

```python
from asmlib import *
from layout import *

NSTEPS = 64
SENT = 0xFFFFFFFF

def gen_rec(name="rec_kernel", embedded=False, pfx="", KVCHK=False, SIG=False, hook=None, cntoff=0, EARLY=False, FILL2=None, fast=True, prof=False, nsteps=NSTEPS, E1_EARLY=True, E2_DELAY=0, E3_DELAY=0, KV_FIRST=0, PF=1, PFE=0, REORD=0, FC=0, VSP=2, RT=0, E1_AT=7, E3_SALU_FIRST=0, LAST_SHORT=1, NOK=0, NOV=0, E2F='sc1', X4=0, X4LIM=4, E2_DEPTH=3, E2_SP=0, EP=0, FIXKV=0):
    TIMER = "s_memrealtime" if RT else "s_memtime"
    A = Asm()
    o = A
    st_fast = "" if fast else " sc1"
    sWG = 2
    sW, sG, sJ, sHA, sC, sHead = 3, 4, 5, 6, 7, 8
    sWS = 10
    sT0, sT1, sT2, sT3 = 12, 13, 14, 15
    sPtr = 16
    sMEMc, sMEMn, sQK, sVR, sPART, sPART2, sKX, sKX2, sVX, sKM, sVM = 20, 22, 24, 26, 28, 30, 32, 34, 36, 38, 40
    sRq, sRv, sRp, sRm = 42, 44, 46, 48
    sStep, sSlot, sLim = 50, 51, 52
    sMaskQK, sMaskLo = 54, 56
    sSelV = 58
    sScale = 60
    sWQ, sWK, sWV, sWO, sDBG = 62, 64, 66, 68, 70
    sTs = 66
    sProf = 96
    vL = 0; vT = [1, 2, 3, 4, 5, 6, 7]
    vE3, vQKst, vVst, vVld, vPst, vPld, vMst, vKx, vL16, vKMst = 8, 9, 10, 11, 12, 13, 14, 15, 56, 57
    vA0, vA1, vAv0, vAv1 = 16, 20, 24, 28
    vSx, vSm = 32, 40
    vPx, vPmA, vPmB = 44, 48, 50
    vDelta = 52
    vNeg = 60
    vB = 64; vK = 128; vV = 160; vQ = 192; vQr = 200; vKm = 208; vKr = 216; vVm = 224
    vLdsM, vLdsO, vLdsV = 232, 233, 234
    vSent = 236
    vFlag = 57
    vX = 240
    vO = 64; vOb = 96
    vOo = [112, 116, 120, 124] + [160 + 4 * i for i in range(8)]
    LDS_MEM, LDS_O, LDS_V = 0, 16384, 32768

    if not embedded:
        o(f"s_cmp_ge_u32 s{sWG}, {256 if X4 else 128}")
        o("s_cbranch_scc1 L_rec_end")
        o(f"s_load_dwordx2 {s(sWQ,2)}, s[0:1], {KA_WQ}")
        o(f"s_load_dwordx2 {s(sWK,2)}, s[0:1], {KA_WK}")
        o(f"s_load_dwordx2 {s(sWV,2)}, s[0:1], {KA_WV}")
        o(f"s_load_dwordx2 {s(sWO,2)}, s[0:1], {KA_WO}")
        o(f"s_load_dwordx2 {s(sDBG,2)}, s[0:1], {KA_DBG}")
        o(f"s_load_dwordx2 {s(sWS,2)}, s[0:1], {KA_WS}")
        o(f"v_lshrrev_b32 v1, 6, v0")
        o(f"v_and_b32 v{vL}, 63, v0")
        o(f"v_readfirstlane_b32 s{sW}, v1")
        o(f"s_getreg_b32 s{sG}, hwreg(HW_REG_XCC_ID, 0, 4)")
        o("s_waitcnt lgkmcnt(0)")
        o(f"s_cmp_lg_u32 s{sW}, 0")
        o("s_cbranch_scc1 L_rec_noticket")
        o(f"s_lshl_b32 s{sT0}, s{sG}, 2")
        o(f"v_mov_b32 v1, s{sT0}")
        o("v_mov_b32 v2, 1")
        o("s_mov_b64 exec, 1")
        o(f"global_atomic_add v3, v1, v2, {s(sDBG,2)} sc0")
        o("s_waitcnt vmcnt(0)")
        o("v_mov_b32 v1, 0")
        o("ds_write_b32 v1, v3")
        o("s_waitcnt lgkmcnt(0)")
        o("s_mov_b64 exec, -1")
        A.label("L_rec_noticket")
        o("s_barrier")
        o("v_mov_b32 v1, 0")
        o("ds_read_b32 v3, v1")
        o("s_waitcnt lgkmcnt(0)")
        o(f"v_readfirstlane_b32 s{sJ}, v3")
        o("s_barrier")
        if X4:
            o(f"s_cmp_ge_u32 s{sG}, {X4LIM}"); o("s_cbranch_scc1 L_rec_end")
            o(f"s_sub_u32 s{sG}, s{sG}, {X4LIM-4}") if False else None
            o(f"s_lshl_b32 s{sG}, s{sG}, 1"); o(f"s_lshr_b32 s{sT0}, s{sJ}, 4"); o(f"s_add_u32 s{sG}, s{sG}, s{sT0}")
        o(f"s_and_b32 s{sJ}, s{sJ}, 15")
        o(f"s_and_b32 s{sG}, s{sG}, 7")
    else:
        o(f"s_load_dwordx2 {s(sWQ,2)}, s[0:1], {KA_WQ}")
        o(f"s_load_dwordx2 {s(sWK,2)}, s[0:1], {KA_WK}")
        o(f"s_load_dwordx2 {s(sWV,2)}, s[0:1], {KA_WV}")
        o(f"s_load_dwordx2 {s(sWO,2)}, s[0:1], {KA_WO}")
        o(f"s_load_dwordx2 {s(sWS,2)}, s[0:1], {KA_WS}")
        o("s_waitcnt lgkmcnt(0)")
    o(f"s_lshr_b32 s{sHA}, s{sJ}, 2")
    o(f"s_and_b32 s{sC}, s{sJ}, 3")
    o(f"s_lshl_b32 s{sHead}, s{sG}, 2")
    o(f"s_add_u32 s{sHead}, s{sHead}, s{sW}")
    vi, vg, vr = vT[0], vT[1], vT[2]
    o(f"v_and_b32 v{vi}, 15, v{vL}")
    o(f"v_lshrrev_b32 v{vg}, 4, v{vL}")
    o(f"v_and_b32 v{vr}, 7, v{vL}")
    o(f"v_lshlrev_b32 v{vL16}, 4, v{vL}")

    o(f"s_lshl_b32 s{sT0}, s{sG}, 2")
    o(f"s_add_u32 s{sT0}, s{sT0}, s{sHA}")
    o(f"s_lshl_b32 s{sT0}, s{sT0}, 8")
    o(f"s_lshl_b32 s{sT1}, s{sC}, 6")
    o(f"s_add_u32 s{sT0}, s{sT0}, s{sT1}")
    v1, v2, v3, v4 = vT[3], vT[4], vT[5], vT[6]
    o(f"v_lshrrev_b32 v{v1}, 2, v{vL}")
    o(f"v_lshlrev_b32 v{v1}, 13, v{v1}")
    o(f"v_and_b32 v{v2}, 3, v{vL}")
    o(f"v_lshl_add_u32 v{v1}, v{v2}, 4, v{v1}")
    o(f"v_add_u32 v{v1}, s{sT0}, v{v1}")
    o(f"s_lshl_b32 s{sT1}, s{sW}, 21")
    o(f"v_add_u32 v{v1}, s{sT1}, v{v1}")
    def dma_strip(sbase, ldsbase, nblk, rowstep):
        o(f"v_mov_b32 v{v2}, v{v1}")
        o(f"s_lshl_b32 s{sT2}, s{sW}, {(nblk*1024).bit_length()-1}")
        o(f"s_add_u32 s{sT2}, s{sT2}, {ldsbase}")
        for m in range(nblk):
            o(f"s_mov_b32 m0, s{sT2}")
            o(f"s_add_u32 s{sT2}, s{sT2}, 1024")
            o(f"global_load_lds_dwordx4 v{v2}, {s(sbase,2)}")
            if m + 1 < nblk: o(f"v_add_u32 v{v2}, {rowstep}, v{v2}")
    dma_strip(sWQ, 0, 16, 131072)
    dma_strip(sWK, 65536, 16, 131072)
    o(f"v_lshrrev_b32 v{v3}, 2, v{vi}")
    o(f"v_lshl_add_u32 v{v3}, v{vg}, 3, v{v3}")
    o(f"v_lshlrev_b32 v{v3}, 6, v{v3}")
    o(f"v_and_b32 v{v4}, 3, v{vi}")
    o(f"v_lshl_add_u32 v{v3}, v{v4}, 3, v{v3}")
    o("s_waitcnt vmcnt(0)")
    o("s_barrier")
    o(f"s_lshr_b32 s{sT0}, s{sW}, 1")
    o(f"s_lshl_b32 s{sT0}, s{sT0}, 16")
    o(f"s_and_b32 s{sT1}, s{sW}, 1")
    o(f"s_lshl_b32 s{sT1}, s{sT1}, 5")
    o(f"s_add_u32 s{sT0}, s{sT0}, s{sT1}")
    for i in range(16):
        o(f"s_lshl_b32 s{sT2}, s{sW}, 2")
        o(f"s_add_u32 s{sT2}, s{sT2}, {i}")
        o(f"s_and_b32 s{sT2}, s{sT2}, 15")
        o(f"s_lshl_b32 s{sT2}, s{sT2}, 12")
        o(f"s_add_u32 s{sT2}, s{sT2}, s{sT0}")
        o(f"v_add_u32 v{v4}, s{sT2}, v{v3}")
        for half in range(2):
            d = (i * 2 + half) * 4
            o(f"ds_read_b64_tr_b16 {a(d,2)}, v{v4} offset:{half*2048}")
            o(f"ds_read_b64_tr_b16 {a(d+2,2)}, v{v4} offset:{half*2048+256}")
        if i % 4 == 3: o("s_waitcnt lgkmcnt(0)")
    o("s_barrier")
    dma_strip(sWV, 0, 16, 131072)
    o(f"v_lshrrev_b32 v{v1}, 3, v{vL}")
    o(f"v_lshlrev_b32 v{v1}, 11, v{v1}")
    o(f"v_and_b32 v{v2}, 7, v{vL}")
    o(f"v_lshl_add_u32 v{v1}, v{v2}, 4, v{v1}")
    o(f"s_lshl_b32 s{sT0}, s{sG}, 20")
    o(f"s_lshl_b32 s{sT1}, s{sJ}, 7")
    o(f"s_add_u32 s{sT0}, s{sT0}, s{sT1}")
    o(f"s_lshl_b32 s{sT1}, s{sW}, 18")
    o(f"s_add_u32 s{sT0}, s{sT0}, s{sT1}")
    o(f"v_add_u32 v{v1}, s{sT0}, v{v1}")
    dma_strip(sWO, 65536, 16, 16384)
    o("s_waitcnt vmcnt(0)")
    o("s_barrier")
    o(f"s_and_b32 s{sT0}, s{sW}, 1")
    o(f"s_lshl_b32 s{sT0}, s{sT0}, 5")
    for i in range(8):
        o(f"s_lshl_b32 s{sT2}, s{sW}, 2")
        o(f"s_add_u32 s{sT2}, s{sT2}, {i}")
        o(f"s_and_b32 s{sT2}, s{sT2}, 15")
        o(f"s_lshl_b32 s{sT2}, s{sT2}, 12")
        o(f"s_add_u32 s{sT2}, s{sT2}, s{sT0}")
        o(f"v_add_u32 v{v4}, s{sT2}, v{v3}")
        for half in range(2):
            d = 128 + (i * 2 + half) * 4
            o(f"ds_read_b64_tr_b16 {a(d,2)}, v{v4} offset:{half*2048}")
            o(f"ds_read_b64_tr_b16 {a(d+2,2)}, v{v4} offset:{half*2048+256}")
        if i % 4 == 3: o("s_waitcnt lgkmcnt(0)")
    o(f"v_lshrrev_b32 v{v3}, 2, v{vi}")
    o(f"v_lshl_add_u32 v{v3}, v{vg}, 2, v{v3}")
    o(f"v_lshlrev_b32 v{v3}, 7, v{v3}")
    o(f"v_and_b32 v{v4}, 3, v{vi}")
    o(f"v_lshl_add_u32 v{v3}, v{v4}, 3, v{v3}")
    o(f"s_lshl_b32 s{sT0}, s{sW}, 14")
    o(f"s_add_u32 s{sT0}, s{sT0}, 65536")
    o(f"v_add_u32 v{v4}, s{sT0}, v{v3}")
    for ct in range(4):
        for u in range(4):
            d = 192 + (ct * 4 + u) * 4
            o(f"ds_read_b64_tr_b16 {a(d,2)}, v{v4} offset:{u*4096+ct*32}")
            o(f"ds_read_b64_tr_b16 {a(d+2,2)}, v{v4} offset:{u*4096+2048+ct*32}")
        o("s_waitcnt lgkmcnt(0)")
    o("s_barrier")

    if hook:
        A.raw(hook)
        o(f"v_and_b32 v{vi}, 15, v{vL}"); o(f"v_lshrrev_b32 v{vg}, 4, v{vL}"); o(f"v_and_b32 v{vr}, 7, v{vL}")
    o(f"s_lshl_b32 s{sT0}, s{sW}, 12")
    o(f"v_add_u32 v{vE3}, s{sT0}, v{vL16}")
    o(f"v_lshrrev_b32 v{v1}, 1, v{vg}")
    o(f"v_lshlrev_b32 v{v1}, 8, v{v1}")
    o(f"v_lshl_add_u32 v{v1}, v{vr}, 4, v{v1}")
    o(f"s_lshr_b32 s{sT0}, s{sC}, 1")
    o(f"s_lshl_b32 s{sT0}, s{sT0}, 10")
    o(f"s_and_b32 s{sT1}, s{sW}, 1")
    o(f"s_lshl_b32 s{sT1}, s{sT1}, 9")
    o(f"s_add_u32 s{sT0}, s{sT0}, s{sT1}")
    o(f"s_and_b32 s{sT1}, s{sC}, 1")
    o(f"s_lshl_b32 s{sT1}, s{sT1}, 7")
    o(f"s_add_u32 s{sT0}, s{sT0}, s{sT1}")
    o(f"v_add_u32 v{vKMst}, s{sT0}, v{v1}")
    o(f"s_lshl_b32 s{sT0}, s{sHA}, 12")
    o(f"s_lshr_b32 s{sT1}, s{sW}, 1")
    o(f"s_lshl_b32 s{sT1}, s{sT1}, 11")
    o(f"s_add_u32 s{sT0}, s{sT0}, s{sT1}")
    o(f"v_add_u32 v{vQKst}, s{sT0}, v{vKMst}")
    o(f"s_lshl_b32 s{sT0}, s{sHA}, 11")
    o(f"s_lshl_b32 s{sT1}, s{sC}, 9")
    o(f"s_add_u32 s{sT0}, s{sT0}, s{sT1}")
    o(f"v_add_u32 v{vVst}, s{sT0}, v{vL16}")
    o(f"s_lshl_b32 s{sT0}, s{sW}, 11")
    o(f"v_add_u32 v{vVld}, s{sT0}, v{vL16}")
    o(f"s_lshl_b32 s{sT0}, s{sG}, 4")
    o(f"s_add_u32 s{sT0}, s{sT0}, s{sJ}")
    o(f"s_lshl_b32 s{sT0}, s{sT0}, 10")
    o(f"s_and_b32 s{sT1}, s{sW}, 1")
    o(f"s_lshl_b32 s{sT1}, s{sT1}, 9")
    o(f"s_add_u32 s{sT0}, s{sT0}, s{sT1}")
    o(f"s_lshr_b32 s{sT1}, s{sW}, 1")
    o(f"s_lshl_b32 s{sT1}, s{sT1}, 7")
    o(f"s_add_u32 s{sT0}, s{sT0}, s{sT1}")
    o(f"v_add_u32 v{vPst}, s{sT0}, v{v1}")
    o(f"v_lshlrev_b32 v{vPld}, 14, v{vg}")
    o(f"v_lshl_add_u32 v{vPld}, v{vi}, 4, v{vPld}")
    o(f"s_lshl_b32 s{sT0}, s{sJ}, 10")
    o(f"s_lshl_b32 s{sT1}, s{sW}, 8")
    o(f"s_add_u32 s{sT0}, s{sT0}, s{sT1}")
    o(f"v_add_u32 v{vPld}, s{sT0}, v{vPld}")
    o(f"v_add_u32 v{vMst}, s{sT0}, v{vL16}")
    o(f"v_lshlrev_b32 v{vKx}, 13, v{vi}")
    o(f"v_lshl_add_u32 v{vKx}, v{vg}, 4, v{vKx}")
    o(f"s_lshl_b32 s{sT0}, s{sHead}, 8")
    o(f"v_add_u32 v{vKx}, s{sT0}, v{vKx}")
    o(f"v_mov_b32 v{vLdsM}, v{vL16}")
    for d in range(4):
        o(f"v_mov_b32 v{vDelta+d}, 0")
        o(f"v_mov_b32 v{v1}, 0x3f80")
        o(f"v_cmp_eq_u32 vcc, {2*d}, v{vi}")
        o(f"v_cndmask_b32 v{vDelta+d}, v{vDelta+d}, v{v1}, vcc")
        o(f"v_mov_b32 v{v1}, 0x3f800000")
        o(f"v_cmp_eq_u32 vcc, {2*d+1}, v{vi}")
        o(f"v_cndmask_b32 v{vDelta+d}, v{vDelta+d}, v{v1}, vcc")
    o(f"v_mov_b32 v{v1}, 0xff800000")
    o(f"v_cmp_lt_u32 vcc, 31, v{vL}")
    o(f"v_cndmask_b32 v{vNeg}, 0, v{v1}, vcc")
    for r in range(1, 4): o(f"v_mov_b32 v{vNeg+r}, v{vNeg}")
    for r in range(4): o(f"v_mov_b32 v{vSent+r}, -1")
    o(f"s_mov_b32 s{sMaskQK}, 0xff"); o(f"s_mov_b32 s{sMaskQK+1}, 0xff")
    o(f"s_mov_b32 s{sSelV}, -1"); o(f"s_mov_b32 s{sSelV+1}, 0")
    import math
    cs = 128 ** -0.5 * math.log2(math.e)
    import struct
    o(f"s_mov_b32 s{sScale}, 0x{struct.unpack('<I', struct.pack('<f', cs))[0]:08x}")
    o(f"s_mov_b32 s{sScale+1}, s{sScale}")
    o(f"s_mov_b32 s{sLim}, 0x400000")
    o(f"s_mov_b32 s{sStep}, 0")
    def addbase(dst, off, extra_s=None):
        o(f"s_add_u32 s{dst}, s{sWS}, {off & 0xffffffff}")
        o(f"s_addc_u32 s{dst+1}, s{sWS+1}, 0")
        if extra_s is not None:
            o(f"s_add_u32 s{dst}, s{dst}, s{extra_s}")
            o(f"s_addc_u32 s{dst+1}, s{dst+1}, 0")
    o(f"s_lshl_b32 s{sT0}, s{sHead}, 13")
    o(f"s_add_u32 s{sT0}, s{sT0}, 4096")
    addbase(sKX, WS_K, sT0)
    o(f"s_lshl_b32 s{sT0}, s{sHead}, 13")
    o(f"s_add_u32 s{sT0}, s{sT0}, 4096")
    addbase(sVX, WS_VT, sT0)
    o(f"s_lshl_b32 s{sT0}, s{sHead}, 11")
    addbase(sKM, WS_KM, sT0)
    addbase(sVM, WS_VM, sT0)
    sCNT = 16
    addbase(sCNT, WS_CNT + cntoff)
    def kv_wait(chunk_sreg_expr_setup, target, tag):
        o(f"s_lshl_b32 s{sT0}, s{sT0}, 3"); o(f"s_add_u32 s{sT0}, s{sT0}, s{sG}"); o(f"s_lshl_b32 s{sT0}, s{sT0}, 7")
        o(f"v_mov_b32 v{vX+2}, s{sT0}")
        A.label(f"L_kvw_{tag}")
        o(f"global_load_dword v{vX+3}, v{vX+2}, {s(sCNT,2)} sc1")
        o("s_waitcnt vmcnt(0)")
        o(f"v_readfirstlane_b32 s{sT1}, v{vX+3}")
        o(f"s_cmp_ge_u32 s{sT1}, {target}")
        o(f"s_cbranch_scc1 L_kvw_{tag}_ok")
        o("s_sleep 4")
        o(f"s_sub_u32 s{sLim}, s{sLim}, 1")
        o(f"s_cbranch_scc0 L_kvw_{tag}")
        o(f"s_mov_b32 s{sLim}, 0")
        A.label(f"L_kvw_{tag}_ok")
    sEC = 94
    def gpoll(base, tag, sleep=12, allwaves=False):
        if not allwaves:
            o(f"s_cmp_lg_u32 s{sW}, 0"); o(f"s_cbranch_scc1 L_gp_{tag}_ok")
        o(f"v_mov_b32 v{vX+2}, s{sT0}")
        A.label(f"L_gp_{tag}")
        o(f"global_load_dword v{vX+3}, v{vX+2}, {s(base,2)} sc1")
        o("s_waitcnt vmcnt(0)")
        o(f"v_readfirstlane_b32 s{sT1}, v{vX+3}")
        o(f"s_cmp_ge_u32 s{sT1}, s{sT2}")
        o(f"s_cbranch_scc1 L_gp_{tag}_ok")
        o(f"s_sleep {sleep}")
        o(f"s_sub_u32 s{sLim}, s{sLim}, 1")
        o(f"s_cbranch_scc0 L_gp_{tag}")
        o(f"s_mov_b32 s{sLim}, 0")
        A.label(f"L_gp_{tag}_ok")
        if not allwaves: o("s_barrier")
    if KVCHK and not EARLY:
        o(f"s_mov_b32 s{sT0}, 0")
        kv_wait(None, 16, "0")
    if KVCHK and EARLY:
        o(f"s_mov_b32 s{sT0}, {EC_FILL*4}"); o(f"s_mov_b32 s{sT2}, 128"); gpoll(sEC, "f")
        o(f"s_lshl_b32 s{sT0}, s{sG}, 2"); o(f"s_add_u32 s{sT0}, s{sT0}, {EC_KVH0*4}"); o(f"s_mov_b32 s{sT2}, 16"); gpoll(sEC, "0")
    def load_kx():
        for t in range(8):
            o(f"global_load_dwordx4 {v(vK+t*4,4)}, v{vL16}, {s(sKX,2)} offset:{t*1024-4096}")
    load_kx()
    if prof:
        o(f"s_lshl_b32 s{sT0}, s{sG}, 4")
        o(f"s_add_u32 s{sT0}, s{sT0}, s{sJ}")
        o(f"s_lshl_b32 s{sT0}, s{sT0}, 2")
        o(f"s_add_u32 s{sT0}, s{sT0}, s{sW}")
        o(f"s_lshl_b32 s{sT0}, s{sT0}, 12")
        addbase(sProf, WS_PROF, sT0)
    nst = [0]
    def stamp():
        if not prof: return
        k = nst[0]; nst[0] += 1
        o(f"{TIMER} {s(sTs + 2*k, 2)}")

    def check(regs, lab_ok, lab_retry, tmp):
        regs = list(regs)
        o(f"v_max3_u32 v{tmp}, v{regs[0]}, v{regs[1]}, v{regs[2]}")
        k = 3
        while k + 1 < len(regs):
            o(f"v_max3_u32 v{tmp}, v{tmp}, v{regs[k]}, v{regs[k+1]}"); k += 2
        if k < len(regs):
            o(f"v_max_u32 v{tmp}, v{tmp}, v{regs[k]}")
        o(f"v_cmp_eq_u32 vcc, -1, v{tmp}")
        o(f"s_cbranch_vccz {lab_ok}")
        o(f"s_sub_u32 s{sLim}, s{sLim}, 1")
        o(f"s_cbranch_scc1 {lab_ok}_to")
        o(f"s_branch {lab_retry}")
        A.label(f"{lab_ok}_to")
        o(f"s_mov_b32 s{sLim}, 0")
        A.label(lab_ok)


    sCnt = 98
    vOo = [112, 116, 120, 124, 192, 196, 200, 204, 216, 220, 224, 228]
    vPf = 252
    def merge(main, side, every, start=0):
        side = list(side); out = [];
        for k, m_ in enumerate(main):
            out.append(m_)
            if side and k >= start and (k - start) % every == every - 1: out.append(side.pop(0))
        return out + side
    def emit(L):
        for x in L: o(x)
    def check(regs, lab_ok, lab_retry, tmp, cnt=None):
        regs = list(regs)
        o(f"v_max3_u32 v{tmp}, v{regs[0]}, v{regs[1]}, v{regs[2]}")
        k = 3
        while k + 1 < len(regs):
            o(f"v_max3_u32 v{tmp}, v{tmp}, v{regs[k]}, v{regs[k+1]}"); k += 2
        if k < len(regs):
            o(f"v_max_u32 v{tmp}, v{tmp}, v{regs[k]}")
        o(f"v_cmp_eq_u32 vcc, -1, v{tmp}")
        o(f"s_cbranch_vccz {lab_ok}")
        if prof and cnt is not None: o(f"s_add_u32 s{sCnt+cnt}, s{sCnt+cnt}, 1")
        o(f"s_sub_u32 s{sLim}, s{sLim}, 1")
        o(f"s_cbranch_scc0 {lab_retry}")
        o(f"s_mov_b32 s{sLim}, 0")
        A.label(lab_ok)
    sM = 88
    def mpoll(loads, tag, cnt):
        n = len(loads)
        regs = [b + r for b, _ in loads for r in range(4)]
        o(f"v_max3_u32 v{vX}, v{regs[0]}, v{regs[1]}, v{regs[2]}")
        k = 3
        while k + 1 < len(regs):
            o(f"v_max3_u32 v{vX}, v{vX}, v{regs[k]}, v{regs[k+1]}"); k += 2
        if k < len(regs): o(f"v_max_u32 v{vX}, v{vX}, v{regs[k]}")
        o(f"v_cmp_eq_u32 vcc, -1, v{vX}")
        o(f"s_cbranch_vccz L_{tag}_ok")
        A.label(f"L_{tag}_retry")
        if prof: o(f"s_add_u32 s{sCnt+cnt}, s{sCnt+cnt}, 1")
        for i, (b, rest) in enumerate(loads):
            o(f"v_max3_u32 v{vX}, v{b}, v{b+1}, v{b+2}")
            o(f"v_max_u32 v{vX}, v{vX}, v{b+3}")
            o(f"v_cmp_eq_u32 vcc, -1, v{vX}")
            o(f"s_cbranch_vccz L_{tag}_sk{i}")
            o("s_mov_b64 exec, vcc")
            o(f"global_load_dwordx4 {v(b,4)}, {rest}")
            o("s_mov_b64 exec, -1")
            A.label(f"L_{tag}_sk{i}")
        o("s_waitcnt vmcnt(0)")
        o(f"v_max3_u32 v{vX}, v{regs[0]}, v{regs[1]}, v{regs[2]}")
        k = 3
        while k + 1 < len(regs):
            o(f"v_max3_u32 v{vX}, v{vX}, v{regs[k]}, v{regs[k+1]}"); k += 2
        if k < len(regs): o(f"v_max_u32 v{vX}, v{vX}, v{regs[k]}")
        o(f"v_cmp_eq_u32 vcc, -1, v{vX}")
        o(f"s_cbranch_vccz L_{tag}_ok")
        o(f"s_sub_u32 s{sLim}, s{sLim}, 1")
        o(f"s_cbranch_scc0 L_{tag}_retry")
        o(f"s_mov_b32 s{sLim}, 0")
        A.label(f"L_{tag}_ok")
    if prof:
        for k in range(4): o(f"s_mov_b32 s{sCnt+k}, 0")
    vPfo = 58
    o(f"s_lshl_b32 s{sT1}, s{sG}, 2"); o(f"s_add_u32 s{sT1}, s{sT1}, s{sHA}"); o(f"s_lshl_b32 s{sT1}, s{sT1}, 13")
    o(f"s_lshl_b32 s{sT2}, s{sC}, 11"); o(f"s_add_u32 s{sT1}, s{sT1}, s{sT2}")
    o(f"s_and_b32 s{sT2}, s{sW}, 1"); o(f"s_lshl_b32 s{sT2}, s{sT2}, 10"); o(f"s_add_u32 s{sT1}, s{sT1}, s{sT2}")
    o(f"v_add_u32 v{vPfo}, s{sT1}, v{vL16}")
    o(f"s_cmp_lt_u32 s{sW}, 2")
    sPF = 18
    o(f"s_mov_b32 s{sT0}, {WS_K + 2*262144}")
    o(f"s_mov_b32 s{sT1}, {WS_VT + 2*262144}")
    o(f"s_cselect_b32 s{sT0}, s{sT0}, s{sT1}")
    o(f"s_add_u32 s{sPF}, s{sWS}, s{sT0}"); o(f"s_addc_u32 s{sPF+1}, s{sWS+1}, 0")
    def kx_loads():
        if NOK: return ["s_nop 0"] * 8
        return [f"global_load_dwordx4 {v(vK+t*4,4)}, v{vL16}, {s(sKX,2)} offset:{t*1024-4096}" for t in range(8)]
    def vx_loads():
        if NOV: return ["s_nop 0"] * 8
        return [f"global_load_dwordx4 {v(vV+4*t,4)}, v{vL16}, {s(sVX,2)} offset:{t*1024-4096}" for t in range(8)]
    vRd = [None, 232, 233, 234]
    for hs in (1, 2, 3):
        o(f"v_add_u32 v{vRd[hs]}, {hs*4096}, v{vE3}")
        o(f"v_and_b32 v{vRd[hs]}, 0x3fff, v{vRd[hs]}")
    vVw, vVr, vRw = 235, 59, 15
    o(f"s_lshl_b32 s{sT0}, s{sW}, 10")
    o(f"v_add_u32 v{vVw}, s{sT0}, v{vL16}")
    o(f"v_and_b32 v{vVr}, 31, v{vL}")
    o(f"v_lshlrev_b32 v{vVr}, 4, v{vVr}")
    o(f"v_lshrrev_b32 v{vX+2}, 5, v{vL}")
    o(f"v_lshl_add_u32 v{vVr}, v{vX+2}, 10, v{vVr}")
    vL4 = vX + 3
    o(f"v_lshlrev_b32 v{vL4}, 2, v{vL}")
    o(f"s_lshl_b32 s{sT0}, s{sW}, 8")
    o(f"v_add_u32 v{vRw}, s{sT0}, v{vL4}")
    vRr = [None, 1, 2, 3]
    for hs in (1, 2, 3):
        o(f"s_add_u32 s{sT0}, s{sW}, {hs}"); o(f"s_and_b32 s{sT0}, s{sT0}, 3"); o(f"s_lshl_b32 s{sT0}, s{sT0}, 8")
        o(f"v_add_u32 v{vRr[hs]}, s{sT0}, v{vL4}")
    vOnes = 4
    for r in range(4): o(f"v_mov_b32 v{vOnes+r}, 0x3f803f80")

    LDS_R = 36864
    A.label("L_step")
    nst[0] = 0
    if KVCHK:
        if FILL2 is not None:
            o(f"s_cmp_lg_u32 s{sStep}, 6"); o("s_cbranch_scc1 L_kvf2")
            o(f"s_mov_b32 s{sT0}, {FILL2}"); o(f"s_mov_b32 s{sT2}, 128"); gpoll(sCNT, "l2", 4)
            A.label("L_kvf2")
        if EARLY:
            o(f"s_cmp_lg_u32 s{sStep}, 2"); o("s_cbranch_scc1 L_kvn2")
            o(f"s_lshl_b32 s{sT0}, s{sG}, 2"); o(f"s_add_u32 s{sT0}, s{sT0}, {EC_KVH1*4}"); o(f"s_mov_b32 s{sT2}, 16"); gpoll(sEC, "h1", 4)
            A.label("L_kvn2")
            o(f"s_cmp_lg_u32 s{sStep}, 6"); o("s_cbranch_scc1 L_kvn6")
            o(f"s_mov_b32 s{sT0}, {EC_FILL2*4}"); o(f"s_mov_b32 s{sT2}, 128"); gpoll(sEC, "f2", 4)
            A.label("L_kvn6")
        o(f"s_add_u32 s{sT0}, s{sStep}, 2"); o(f"s_and_b32 s{sT1}, s{sT0}, 7"); o(f"s_cmp_lg_u32 s{sT1}, 0"); o("s_cbranch_scc1 L_kvskip")
        o(f"s_cmp_ge_u32 s{sT0}, 64"); o("s_cbranch_scc1 L_kvskip")
        o(f"s_lshr_b32 s{sT0}, s{sT0}, 3")
        if EARLY:
            o(f"s_cmp_eq_u32 s{sT0}, 1"); o(f"s_cselect_b32 s{sT2}, 16, 4")
        else:
            o(f"s_mov_b32 s{sT2}, 4")
        o(f"v_readfirstlane_b32 s{sT1}, v{vFlag}")
        o(f"s_cmp_ge_u32 s{sT1}, s{sT2}"); o("s_cbranch_scc1 L_kvskip")
        o(f"s_lshl_b32 s{sT0}, s{sT0}, 3"); o(f"s_add_u32 s{sT0}, s{sT0}, s{sG}"); o(f"s_lshl_b32 s{sT0}, s{sT0}, 7")
        gpoll(sCNT, "n", 4, allwaves=True)
        A.label("L_kvskip")
    o(f"s_and_b32 s{sSlot}, s{sStep}, 3")
    o(f"s_lshl_b32 s{sT0}, s{sSlot}, 17")
    o(f"s_lshl_b32 s{sT1}, s{sG}, 14")
    o(f"s_add_u32 s{sT2}, s{sT0}, s{sT1}")
    addbase(sMEMc, WS_RMEM, sT2)
    e3_loads = [(vB + 4*u, f"v{vE3}, {s(sMEMc,2)} offset:{u*1024} sc1") for u in range(4)]
    def qk_mfma(i, first=False):
        for half, acc in ((0, vA0), (1, vA1)):
            c = "0" if first else v(acc, 4)
            o(f"v_mfma_f32_16x16x32_bf16 {v(acc,4)}, {a((i*2+half)*4,4)}, {v(vB+4*i,4)}, {c}")
    def salu_bases():
        addbase(sQK, WS_RQK, sT2)
        o(f"s_lshl_b32 s{sT3}, s{sStep}, 17")
        addbase(sPART, WS_PARTF, sT3)
        o(f"s_add_u32 s{sPART2}, s{sPART}, 65536"); o(f"s_addc_u32 s{sPART2+1}, s{sPART+1}, 0")
        o(f"s_lshr_b32 s{sT3}, s{sT2}, 1")
        addbase(sVR, WS_RV, sT3)
        o(f"s_add_u32 s{sT3}, s{sStep}, 1"); o(f"s_and_b32 s{sT3}, s{sT3}, 3"); o(f"s_lshl_b32 s{sT3}, s{sT3}, 17"); o(f"s_add_u32 s{sT3}, s{sT3}, s{sT1}")
        addbase(sMEMn, WS_RMEM, sT3)
        o(f"s_xor_b32 s{sT3}, s{sT0}, {2<<17}")
        o(f"s_add_u32 s{sT3}, s{sT3}, s{sT1}")
        addbase(sRq, WS_RQK, sT3)
        o(f"s_lshr_b32 s{sT3}, s{sT3}, 1")
        addbase(sRv, WS_RV, sT3)
        o(f"s_add_u32 s{sT3}, s{sStep}, 3"); o(f"s_and_b32 s{sT3}, s{sT3}, 3"); o(f"s_lshl_b32 s{sT3}, s{sT3}, 17"); o(f"s_add_u32 s{sT3}, s{sT3}, s{sT1}")
        addbase(sRm, WS_RMEM, sT3)
    def simple_poll(loads, tag, cnt, first_wait):
        regs = [b + r for b, _ in loads for r in range(4)]
        o(f"s_waitcnt vmcnt({first_wait})")
        o(f"s_branch L_{tag}_c")
        A.label(f"L_{tag}_r")
        for b, rest in loads: o(f"global_load_dwordx4 {v(b,4)}, {rest}")
        o("s_waitcnt vmcnt(0)")
        A.label(f"L_{tag}_c")
        check(regs, f"L_{tag}_ok", f"L_{tag}_r", vX, cnt)
    def chk_list(regs, tmp):
        regs = list(regs); L = [f"v_max3_u32 v{tmp}, v{regs[0]}, v{regs[1]}, v{regs[2]}"]
        k = 3
        while k + 1 < len(regs):
            L.append(f"v_max3_u32 v{tmp}, v{tmp}, v{regs[k]}, v{regs[k+1]}"); k += 2
        if k < len(regs): L.append(f"v_max_u32 v{tmp}, v{tmp}, v{regs[k]}")
        L.append(f"v_cmp_eq_u32 vcc, -1, v{tmp}")
        return L
    def retry_tail(tag, cnt, issue, back):
        o(f"s_cbranch_vccz L_{tag}_fok")
        if prof: o(f"s_add_u32 s{sCnt+cnt}, s{sCnt+cnt}, 1")
        o(f"s_sub_u32 s{sLim}, s{sLim}, 1")
        o(f"s_cbranch_scc1 L_{tag}_fto")
        issue()
        o("s_waitcnt vmcnt(0)")
        o(f"s_branch {back}")
        A.label(f"L_{tag}_fto")
        o(f"s_mov_b32 s{sLim}, 0")
        A.label(f"L_{tag}_fok")
    n0 = len(A.lines); salu_bases(); sl = A.lines[n0:]; del A.lines[n0:]
    nb = len(sl) if E3_SALU_FIRST == 1 else (0 if E3_SALU_FIRST == 0 else min(len(sl), E3_SALU_FIRST))
    while 0 < nb < len(sl) and sl[nb].startswith("s_addc"): nb += 1
    for x in sl[:nb]: o(x)
    stamp()
    for b, rest in e3_loads: o(f"global_load_dwordx4 {v(b,4)}, {rest}")
    for x in sl[nb:]: o(x)
    if FC & 16:
        simple_poll(e3_loads, "e3", 0, 0)
        def qk1(i, half, first):
            acc = vA0 if half == 0 else vA1
            c = "0" if first else v(acc, 4)
            return f"v_mfma_f32_16x16x32_bf16 {v(acc,4)}, {a((i*2+half)*4,4)}, {v(vB+4*i,4)}, {c}"
        wr = [f"ds_write_b128 v{vE3}, {v(b,4)} offset:{LDS_MEM + u*1024}" for u, (b, rest) in enumerate(e3_loads)]
        emit([wr[0], qk1(0, 0, True), wr[1], qk1(0, 1, True), wr[2], qk1(1, 0, False), wr[3], qk1(1, 1, False)])
        stamp()
        o("s_waitcnt lgkmcnt(0)")
        o("s_barrier")
        for i in range(4, 16):
            o(f"ds_read_b128 {v(vB+4*i,4)}, v{vRd[i//4]} offset:{LDS_MEM + (i%4)*1024}")
        for u in (2, 3): qk_mfma(u)
    elif FC & 1:
        assert not SIG
        o("s_waitcnt vmcnt(0)")
        A.label("L_e3_go")
        ck = chk_list(range(vB, vB + 16), vX)
        def qk1(i, half, first):
            acc = vA0 if half == 0 else vA1
            c = "0" if first else v(acc, 4)
            return f"v_mfma_f32_16x16x32_bf16 {v(acc,4)}, {a((i*2+half)*4,4)}, {v(vB+4*i,4)}, {c}"
        wr = [f"ds_write_b128 v{vE3}, {v(b,4)} offset:{LDS_MEM + u*1024}" for u, (b, rest) in enumerate(e3_loads)]
        sq = [wr[0], qk1(0, 0, True), ck[0], ck[1], wr[1], qk1(0, 1, True), ck[2], ck[3], wr[2], qk1(1, 0, False), ck[4], ck[5], wr[3], qk1(1, 1, False)] + ck[6:]
        emit(sq)
        retry_tail("e3", 0, lambda: [o(f"global_load_dwordx4 {v(b,4)}, {rest}") for b, rest in e3_loads], "L_e3_go")
        stamp()
        o("s_waitcnt lgkmcnt(0)")
        o("s_barrier")
        for i in range(4, 16):
            o(f"ds_read_b128 {v(vB+4*i,4)}, v{vRd[i//4]} offset:{LDS_MEM + (i%4)*1024}")
        for u in (2, 3): qk_mfma(u)
    else:
        simple_poll(e3_loads, "e3", 0, 0)
        if SIG:
            o(f"s_sub_u32 s{sT3}, s{sStep}, 1"); o(f"s_cbranch_scc1 L_nosig")
            o(f"s_and_b32 s{sT0}, s{sT3}, 15"); o(f"s_cmp_lg_u32 s{sT0}, s{sJ}"); o("s_cbranch_scc1 L_nosig")
            o(f"s_lshl_b32 s{sT0}, s{sT3}, 7"); o(f"s_add_u32 s{sT0}, s{sT0}, {CNT_REC}")
            o(f"v_mov_b32 v{vX+2}, s{sT0}"); o(f"v_mov_b32 v{vX+3}, 1")
            o("s_mov_b64 exec, 1")
            o(f"global_atomic_add v{vX+2}, v{vX+3}, {s(sCNT,2)}")
            o("s_mov_b64 exec, -1")
            A.label("L_nosig")
        for u, (b, rest) in enumerate(e3_loads):
            o(f"ds_write_b128 v{vE3}, {v(b,4)} offset:{LDS_MEM + u*1024}")
        for u in range(4): qk_mfma(u, first=(u == 0))
        stamp()
        o("s_waitcnt lgkmcnt(0)")
        o("s_barrier")
        for i in range(4, 16):
            o(f"ds_read_b128 {v(vB+4*i,4)}, v{vRd[i//4]} offset:{LDS_MEM + (i%4)*1024}")
    vxl = vx_loads()
    for i in range(4, 16):
        o(f"s_waitcnt lgkmcnt({15-i})")
        qk_mfma(i)
        if i % VSP == VSP - 1 and vxl: o(vxl.pop(0))
    stamp()
    for r in range(4):
        o(f"v_add_f32_dpp v{vA0+r}, v{vA1+r}, v{vA0+r} row_ror:8 row_mask:0xf bank_mask:0xf")
    R = vX + 4
    o(f"v_cvt_pk_bf16_f32 v{R}, v{vA0}, v{vA0+1}")
    o(f"v_cvt_pk_bf16_f32 v{R+1}, v{vA0+2}, v{vA0+3}")
    o(f"v_permlane16_swap_b32 v{R}, v{R+2}")
    o(f"v_permlane16_swap_b32 v{R+1}, v{R+3}")
    o(f"s_mov_b64 exec, {s(sMaskQK,2)}")
    o(f"global_store_dwordx4 v{vQKst}, {v(R,4)}, {s(sQK,2)}{st_fast}")
    o("s_mov_b64 exec, -1")
    stamp()
    e1_loads = [(vQ + 4*cp, f"v{vE3}, {s(sQK,2)} offset:{cp*1024} sc1") for cp in range(2)] + [(vKm + 4*cp, f"v{vE3}, {s(sQK,2)} offset:{2048+cp*1024} sc1") for cp in range(2)]
    def e1_issue():
        for b, rest in e1_loads: o(f"global_load_dwordx4 {v(b,4)}, {rest}")
    for i in range(8):
        for half, acc in ((0, vAv0), (1, vAv1)):
            c = "0" if i == 0 else v(acc, 4)
            o(f"v_mfma_f32_16x16x32_bf16 {v(acc,4)}, {v(vB+4*i,4)}, {a(128+(i*2+half)*4,4)}, {c}")
        if vxl and i % 2 == 1: o(vxl.pop(0))
        if i == E1_AT:
            emit(vxl); vxl = []
            e1_issue()
    emit(vxl)
    for r in range(4):
        o(f"v_cndmask_b32 v{vAv0+r}, v{vAv1+r}, v{vAv0+r}, {s(sSelV,2)}")
    o(f"ds_write_b128 v{vVw}, {v(vAv0,4)} offset:{LDS_V}")
    o("s_waitcnt lgkmcnt(0)")
    o("s_barrier")
    o(f"s_cmp_lg_u32 s{sW}, 0")
    o("s_cbranch_scc1 L_vred_skip")
    T = vA0
    for k, off in enumerate((0, 512, 2048, 2560)):
        o(f"ds_read_b128 {v(T+4*k,4)}, v{vVr} offset:{LDS_V+off}")
    o("s_waitcnt lgkmcnt(0)")
    for r in range(4):
        o(f"v_add_f32 v{T+r}, v{T+r}, v{T+4+r}")
        o(f"v_add_f32 v{T+8+r}, v{T+8+r}, v{T+12+r}")
    for r in range(4):
        o(f"v_add_f32 v{T+r}, v{T+r}, v{T+8+r}")
    o(f"v_cvt_pk_bf16_f32 v{R}, v{T}, v{T+1}")
    o(f"v_cvt_pk_bf16_f32 v{R+1}, v{T+2}, v{T+3}")
    o(f"v_permlane32_swap_b32 v{R}, v{R+2}")
    o(f"v_permlane32_swap_b32 v{R+1}, v{R+3}")
    o(f"s_mov_b64 exec, {s(sSelV,2)}")
    o(f"global_store_dwordx4 v{vVst}, {v(R,4)}, {s(sVR,2)}{st_fast}")
    o("s_mov_b64 exec, -1")
    o("s_waitcnt vmcnt(1)")
    o("s_branch L_e1_c")
    A.label("L_e1_r")
    e1_issue()
    A.label("L_vred_skip")
    o("s_waitcnt vmcnt(0)")
    A.label("L_e1_c")
    if not (FC & 2): check([b + r for b, _ in e1_loads for r in range(4)], "L_e1_ok", "L_e1_r", vX, 1)
    stamp()
    def M32(d, A_, B_, C_): return f"v_mfma_f32_16x16x32_bf16 {v(d,4)}, {A_}, {B_}, {C_}"
    def rot(dst, srcr): return [f"v_mov_b32_dpp v{dst+r}, v{srcr+r} row_ror:8 row_mask:0xf bank_mask:0xf" for r in range(4)]
    Kf = lambda kt, u: v(vK + (kt*4+u)*4, 4)
    seq = []
    seq += [M32(vSx, Kf(0,0), v(vQ,4), "0")] + rot(vQr, vQ)[:2]
    seq += [M32(vSx+4, Kf(1,0), v(vQ,4), "0")] + rot(vQr, vQ)[2:]
    seq += [M32(vSm, v(vKm,4), v(vQ,4), v(vNeg,4))] + rot(vQr+4, vQ+4)[:2]
    seq += [M32(vSx, Kf(0,2), v(vQ+4,4), v(vSx,4))] + rot(vQr+4, vQ+4)[2:]
    seq += [M32(vSx+4, Kf(1,2), v(vQ+4,4), v(vSx+4,4))] + rot(vKr, vKm)[:2]
    seq += [M32(vSm, v(vKm+4,4), v(vQ+4,4), v(vSm,4))] + rot(vKr, vKm)[2:]
    seq += [M32(vSx, Kf(0,1), v(vQr,4), v(vSx,4))] + rot(vKr+4, vKm+4)[:2]
    seq += [M32(vSx+4, Kf(1,1), v(vQr,4), v(vSx+4,4))] + rot(vKr+4, vKm+4)[2:]
    seq += [M32(vSx, Kf(0,3), v(vQr+4,4), v(vSx,4))]
    seq += [M32(vSx+4, Kf(1,3), v(vQr+4,4), v(vSx+4,4))]
    seq += [M32(vSm, v(vKr,4), v(vQr,4), v(vSm,4))]
    seq += [M32(vSm, v(vKr+4,4), v(vQr+4,4), v(vSm,4))]
    if FC & 2:
        ck = chk_list([b + r_ for b, _ in e1_loads for r_ in range(4)], vX)
        tail4 = seq[-4:]; seq = seq[:-4]
        sq2 = []
        for k_, m_ in enumerate(tail4):
            sq2.append(m_); sq2 += ck[2*k_:2*k_+2]
        sq2 += ck[8:]
        emit(seq + sq2)
        retry_tail("e1", 1, e1_issue, "L_e1_c")
    else:
        emit(seq)
    if not FIXKV:
        o(f"s_add_u32 s{sKX}, s{sKX}, 262144"); o(f"s_addc_u32 s{sKX+1}, s{sKX+1}, 0")
    vm_loads = [(vVm + 4*mm, f"v{vVld}, {s(sVR,2)} offset:{mm*1024} sc1") for mm in range(2)]
    for b, rest in vm_loads: o(f"global_load_dwordx4 {v(b,4)}, {rest}")
    if PF and PFE: o(f"global_load_dwordx4 {v(vPf,4)}, v{vPfo}, {s(sPF,2)}")
    m, t = vX + 1, vX + 2
    Sall = list(range(vSx, vSx + 8)) + list(range(vSm, vSm + 4))
    m2 = vX + 3
    o(f"v_max3_f32 v{m}, v{Sall[0]}, v{Sall[1]}, v{Sall[2]}")
    o(f"v_max3_f32 v{m2}, v{Sall[4]}, v{Sall[5]}, v{Sall[6]}")
    o(f"v_max3_f32 v{m}, v{m}, v{Sall[3]}, v{Sall[7]}")
    o(f"v_max3_f32 v{m2}, v{m2}, v{Sall[8]}, v{Sall[9]}")
    o(f"v_max3_f32 v{m}, v{m}, v{Sall[10]}, v{Sall[11]}")
    o(f"v_max_f32 v{m}, v{m}, v{m2}")
    for sw in ("16", "32"):
        o(f"v_mov_b32 v{t}, v{m}")
        o(f"v_permlane{sw}_swap_b32 v{m}, v{t}")
        o(f"v_max_f32 v{m}, v{m}, v{t}")
    mm_ = vX + 2
    o(f"v_mul_f32 v{mm_}, s{sScale}, v{m}")
    kxl = kx_loads()
    main = []
    for r in Sall[::2]: main.append(f"v_pk_fma_f32 {v(r,2)}, {v(r,2)}, {s(sScale,2)}, {v(mm_,2)} op_sel_hi:[1,1,0] neg_lo:[0,0,1] neg_hi:[0,0,1]")
    for k_, r in enumerate(Sall):
        main.append(f"v_exp_f32 v{r}, v{r}")
    emit(merge(main, [kxl.pop(0), kxl.pop(0)], 7))
    o(f"v_cvt_pk_bf16_f32 v{vPx}, v{vSx}, v{vSx+1}")
    o(f"v_cvt_pk_bf16_f32 v{vPx+1}, v{vSx+2}, v{vSx+3}")
    o(f"v_cvt_pk_bf16_f32 v{vPx+2}, v{vSx+4}, v{vSx+5}")
    o(f"v_cvt_pk_bf16_f32 v{vPx+3}, v{vSx+6}, v{vSx+7}")
    o(f"v_cvt_pk_bf16_f32 v{vPmA}, v{vSm}, v{vSm+1}")
    o(f"v_cvt_pk_bf16_f32 v{vPmA+1}, v{vSm+2}, v{vSm+3}")
    stamp()
    vLs = vSx
    pv = [M32(vO+4*tt, v(vV+4*tt,4), v(vPx,4), "0") for tt in range(8)]
    side = [f"v_mov_b32 v{vX+4}, v{vPmA}", f"v_mov_b32 v{vX+5}, v{vPmA+1}", f"v_mov_b32 v{vPmB}, 0", f"v_mov_b32 v{vPmB+1}, 0",
            f"v_permlane32_swap_b32 v{vPmB}, v{vX+4}", f"v_permlane32_swap_b32 v{vPmB+1}, v{vX+5}", kxl.pop(0)]
    if FC & 4:
        o(M32(vLs, v(vOnes,4), v(vPx,4), "0"))
        emit(merge(pv[:5], side, 1)[:12])
        o(f"s_waitcnt vmcnt({4 if (PF and PFE) else 3})")
        A.label("L_vm_go")
        ck = chk_list(range(vVm, vVm + 8), vX)
        sq3 = [pv[5]] + ck[:2] + [pv[6]] + ck[2:4] + [pv[7]] + ck[4:]
        o(f"v_mfma_f32_16x16x16_bf16 {v(vLs,4)}, {v(vOnes,2)}, {v(vPmA,2)}, {v(vLs,4)}")
        emit(sq3)
        o("s_cbranch_vccz L_vm_fok")
        A.label("L_vm_rr")
        if prof: o(f"s_add_u32 s{sCnt+2}, s{sCnt+2}, 1")
        o(f"s_sub_u32 s{sLim}, s{sLim}, 1"); o("s_cbranch_scc1 L_vm_fto")
        for b, rest in vm_loads: o(f"global_load_dwordx4 {v(b,4)}, {rest}")
        o("s_waitcnt vmcnt(0)")
        emit(chk_list(range(vVm, vVm + 8), vX))
        o("s_cbranch_vccnz L_vm_rr"); o("s_branch L_vm_fok")
        A.label("L_vm_fto"); o(f"s_mov_b32 s{sLim}, 0")
        A.label("L_vm_fok")
    else:
        emit(merge(pv, side, 1))
        o(M32(vLs, v(vOnes,4), v(vPx,4), "0"))
        o(f"v_mfma_f32_16x16x16_bf16 {v(vLs,4)}, {v(vOnes,2)}, {v(vPmA,2)}, {v(vLs,4)}")
        simple_poll(vm_loads, "vm", 2, 4 if (PF and PFE) else 3)
    stamp()
    def pvm(tt):
        c, tv = tt >> 1, tt & 1
        pm = vPmB if (c & 1) else vPmA
        return f"v_mfma_f32_16x16x16_bf16 {v(vO+4*tt,4)}, {v(vVm+4*(c>>1)+2*tv,2)}, {v(pm,2)}, {v(vO+4*tt,4)}"
    def cvt(tt):
        u, h = tt >> 1, tt & 1
        return [f"v_cvt_pk_bf16_f32 v{vOb+4*u+2*h}, v{vO+4*tt}, v{vO+4*tt+1}", f"v_cvt_pk_bf16_f32 v{vOb+4*u+2*h+1}, v{vO+4*tt+2}, v{vO+4*tt+3}"]
    if REORD:
        for tt in range(4): o(pvm(tt))
    if KVCHK:
        o(f"s_add_u32 s{sT0}, s{sStep}, 3"); o(f"s_and_b32 s{sT1}, s{sT0}, 7"); o(f"s_cmp_lg_u32 s{sT1}, 0"); o("s_cbranch_scc1 L_nofl")
        o(f"s_lshr_b32 s{sT0}, s{sT0}, 3"); o(f"s_lshl_b32 s{sT0}, s{sT0}, 3"); o(f"s_add_u32 s{sT0}, s{sT0}, s{sG}"); o(f"s_lshl_b32 s{sT0}, s{sT0}, 7")
        o(f"v_mov_b32 v{vFlag}, s{sT0}")
        o(f"global_load_dword v{vFlag}, v{vFlag}, {s(sCNT,2)} sc1")
        A.label("L_nofl")
    o(f"s_and_b32 s{sT0}, s{sStep}, 15"); o(f"s_cmp_lg_u32 s{sT0}, s{sJ}"); o("s_cbranch_scc1 L_nopub")
    for cp in range(2): o(f"global_store_dwordx4 v{vL16}, {v(vKm+4*cp,4)}, {s(sKM,2)} offset:{cp*1024}" + (" sc1" if SIG else ""))
    for cp in range(2): o(f"global_store_dwordx4 v{vL16}, {v(vVm+4*cp,4)}, {s(sVM,2)} offset:{cp*1024}" + (" sc1" if SIG else ""))
    A.label("L_nopub")
    if LAST_SHORT:
        o(f"s_cmp_eq_u32 s{sStep}, {nsteps-1}")
        o("s_cbranch_scc1 L_rec_last")
    if PF and not PFE: o(f"global_load_dwordx4 {v(vPf,4)}, v{vPfo}, {s(sPF,2)}")
    if not REORD:
        for tt in range(3): o(pvm(tt))
    vCa = [16, 20, 24, 28]
    l_ = vX + 1
    def cm(ct, u):
        c = "0" if u == 0 else v(vCa[ct], 4)
        return f"v_mfma_f32_16x16x32_bf16 {v(vCa[ct],4)}, {a(192+(ct*4+u)*4,4)}, {v(vOb+4*u,4)}, {c}"
    pend = []
    for tt in range(8):
        if REORD:
            if tt + 4 < 8: o(pvm(tt + 4))
        elif tt + 3 < 8: o(pvm(tt + 3))
        cv = cvt(tt)
        o(cv[0])
        if pend: o(pend.pop(0))
        o(cv[1])
        if pend: o(pend.pop(0))
        if tt == 0: o(f"v_rcp_f32 v{l_}, v{vLs}")
        if tt % 2 == 1:
            pend += [cm(ct, tt >> 1) for ct in range(4)]
            if kxl: o(kxl.pop(0))
    emit(pend)
    for ct in range(4):
        pass
    o(f"v_mov_b32 v{vX+2}, v{l_}")
    for ct in range(4):
        o(f"v_pk_mul_f32 {v(vCa[ct],2)}, {v(vCa[ct],2)}, {v(vX+2,2)} op_sel_hi:[1,0]")
        o(f"v_pk_mul_f32 {v(vCa[ct]+2,2)}, {v(vCa[ct]+2,2)}, {v(vX+2,2)} op_sel_hi:[1,0]")
        o(f"ds_write_b128 v{vVw}, {v(vCa[ct],4)} offset:{LDS_O+ct*4096}")
    while kxl: o(kxl.pop(0))
    o("s_waitcnt lgkmcnt(0)")
    o("s_barrier")
    stamp()
    Rr = [112, 116, 120, 124]
    for sw in range(4): o(f"ds_read_b128 {v(Rr[sw],4)}, v{vE3} offset:{LDS_O+sw*1024}")
    vC = Rr[0]
    o("s_waitcnt lgkmcnt(2)")
    o(f"v_pk_add_f32 {v(Rr[0],2)}, {v(Rr[0],2)}, {v(Rr[1],2)}"); o(f"v_pk_add_f32 {v(Rr[0]+2,2)}, {v(Rr[0]+2,2)}, {v(Rr[1]+2,2)}")
    o("s_waitcnt lgkmcnt(0)")
    o(f"v_pk_add_f32 {v(Rr[2],2)}, {v(Rr[2],2)}, {v(Rr[3],2)}"); o(f"v_pk_add_f32 {v(Rr[2]+2,2)}, {v(Rr[2]+2,2)}, {v(Rr[3]+2,2)}")
    o(f"v_pk_add_f32 {v(Rr[0],2)}, {v(Rr[0],2)}, {v(Rr[2],2)}"); o(f"v_pk_add_f32 {v(Rr[0]+2,2)}, {v(Rr[0]+2,2)}, {v(Rr[2]+2,2)}")
    o(f"v_cvt_pk_bf16_f32 v{R}, v{vC}, v{vC+1}")
    o(f"v_cvt_pk_bf16_f32 v{R+1}, v{vC+2}, v{vC+3}")
    o(f"v_permlane16_swap_b32 v{R}, v{R+2}")
    o(f"v_permlane16_swap_b32 v{R+1}, v{R+3}")
    o(f"s_mov_b64 exec, {s(sMaskQK,2)}")
    if EP == 2:
        o("s_waitcnt vmcnt(0)")
        o(f"{TIMER} {s(sTs + 2*5, 2)}")
    o(f"global_store_dwordx4 v{vPst}, {v(R,4)}, {s(sPART,2)} sc1")
    stamp()
    if EP == 2:
        o("s_waitcnt vmcnt(0)")
        o(f"{TIMER} {s(sTs + 2*4, 2)}")
    o(f"global_store_dwordx4 v{vQKst}, {v(vSent,4)}, {s(sRq,2)}{st_fast}")
    o(f"s_mov_b64 exec, 0xffff")
    o(f"global_store_dwordx4 v{vMst}, {v(vSent,4)}, {s(sRm,2)}{st_fast}")
    o(f"s_cmp_lg_u32 s{sW}, 0")
    o("s_cbranch_scc1 L_norv")
    o(f"s_mov_b64 exec, {s(sSelV,2)}")
    o(f"global_store_dwordx4 v{vVst}, {v(vSent,4)}, {s(sRv,2)}{st_fast}")
    A.label("L_norv")
    o("s_mov_b64 exec, -1")
    if not FIXKV:
        o(f"s_add_u32 s{sVX}, s{sVX}, 262144"); o(f"s_addc_u32 s{sVX+1}, s{sVX+1}, 0")
    o(f"s_add_u32 s{sKM}, s{sKM}, 65536"); o(f"s_addc_u32 s{sKM+1}, s{sKM+1}, 0")
    o(f"s_add_u32 s{sVM}, s{sVM}, 65536"); o(f"s_addc_u32 s{sVM+1}, s{sVM+1}, 0")
    if E2_DELAY: o(f"s_sleep {E2_DELAY}")
    sets = [vB + 8 * k for k in range(E2_DEPTH)]
    def e2_issue(b):
        o(f"global_load_dwordx4 {v(b,4)}, v{vPld}, {s(sPART,2)} {E2F}")
        o(f"global_load_dwordx4 {v(b+4,4)}, v{vPld}, {s(sPART2,2)} {E2F}")
    if EP: o(f"{TIMER} {s(sTs + 2*2, 2)}")
    for k, b in enumerate(sets):
        e2_issue(b)
        if k + 1 < len(sets) and E2_SP: o(f"s_sleep {E2_SP}")
    if EP:
        o(f"s_waitcnt vmcnt({2*(len(sets)-1)})")
        o(f"{TIMER} {s(sTs + 2*3, 2)}")
    if FC & 8:
        assert E2_DEPTH == 1
        b = sets[0]; D = vA1
        o("s_waitcnt vmcnt(0)")
        A.label("L_e2_go")
        o(f"v_mfma_f32_16x16x32_bf16 {v(D,4)}, {v(vDelta,4)}, {v(b,4)}, 0")
        o(f"v_mfma_f32_16x16x32_bf16 {v(D,4)}, {v(vDelta,4)}, {v(b+4,4)}, {v(D,4)}")
        emit(chk_list(range(b, b + 8), vX))
        retry_tail("e2", 3, lambda: e2_issue(b), "L_e2_go")
    else:
        A.label("L_e2")
        for k, b in enumerate(sets):
            o(f"s_waitcnt vmcnt({2*(len(sets)-1)})")
            regs = list(range(b, b + 8))
            o(f"v_max3_u32 v{vX}, v{regs[0]}, v{regs[1]}, v{regs[2]}")
            o(f"v_max3_u32 v{vX}, v{vX}, v{regs[3]}, v{regs[4]}")
            o(f"v_max3_u32 v{vX}, v{vX}, v{regs[5]}, v{regs[6]}")
            o(f"v_max_u32 v{vX}, v{vX}, v{regs[7]}")
            o(f"v_cmp_eq_u32 vcc, -1, v{vX}")
            o(f"s_cbranch_vccz L_e2_ok{k}")
            if prof: o(f"s_add_u32 s{sCnt+3}, s{sCnt+3}, 1")
            e2_issue(b)
        o(f"s_sub_u32 s{sLim}, s{sLim}, 1")
        o(f"s_cbranch_scc0 L_e2")
        o(f"s_mov_b32 s{sLim}, 0")
        D = vA1
        for k, b in enumerate(sets):
            A.label(f"L_e2_ok{k}")
            o(f"v_mfma_f32_16x16x32_bf16 {v(D,4)}, {v(vDelta,4)}, {v(b,4)}, 0")
            o(f"v_mfma_f32_16x16x32_bf16 {v(D,4)}, {v(vDelta,4)}, {v(b+4,4)}, {v(D,4)}")
            if k + 1 < len(sets): o("s_branch L_e2_done")
    A.label("L_e2_done")
    o(f"s_add_u32 s{sPF}, s{sPF}, 262144"); o(f"s_addc_u32 s{sPF+1}, s{sPF+1}, 0")
    stamp()
    o("s_nop 7")
    o(f"v_cvt_pk_bf16_f32 v{R}, v{D}, v{D+1}")
    o(f"v_cvt_pk_bf16_f32 v{R+1}, v{D+2}, v{D+3}")
    o(f"v_permlane16_swap_b32 v{R}, v{R+2}")
    o(f"v_permlane16_swap_b32 v{R+1}, v{R+3}")
    o(f"s_mov_b64 exec, 0xffff")
    o(f"global_store_dwordx4 v{vMst}, {v(R,4)}, {s(sMEMn,2)}{st_fast}")
    o("s_mov_b64 exec, -1")
    stamp()
    if E3_DELAY: o(f"s_sleep {E3_DELAY}")
    if prof:
        o("s_waitcnt lgkmcnt(0)")
        for k in range(nst[0]):
            o(f"v_writelane_b32 v{vX+8}, s{sTs+2*k}, {k}")
        for k in range(4):
            o(f"v_writelane_b32 v{vX+8}, s{sCnt+k}, {11+k}")
        o(f"v_writelane_b32 v{vX+8}, s92, 15")
        o(f"s_lshl_b32 s{sT0}, s{sW}, 12")
        o(f"s_lshl_b32 s{sT1}, s{sStep}, 6")
        o(f"s_add_u32 s{sT0}, s{sT0}, s{sT1}")
        o(f"s_add_u32 s{sT0}, s{sT0}, 40960")
        o(f"v_lshlrev_b32 v{vX+9}, 2, v{vL}")
        o(f"v_add_u32 v{vX+9}, s{sT0}, v{vX+9}")
        o("s_mov_b64 exec, 0xffff")
        o(f"ds_write_b32 v{vX+9}, v{vX+8}")
        o("s_mov_b64 exec, -1")
    o(f"s_add_u32 s{sStep}, s{sStep}, 1")
    o(f"s_cmp_lt_u32 s{sStep}, {nsteps}")
    o("s_cbranch_scc1 L_step")
    o("s_branch L_rec_fin")
    A.label("L_rec_last")
    if SIG:
        o("s_waitcnt vmcnt(0)")
        o(f"s_and_b32 s{sT0}, s{sStep}, 15"); o(f"s_cmp_lg_u32 s{sT0}, s{sJ}"); o("s_cbranch_scc1 L_rec_fin")
        o(f"s_lshl_b32 s{sT0}, s{sStep}, 7"); o(f"s_add_u32 s{sT0}, s{sT0}, {CNT_REC}")
        o(f"v_mov_b32 v{vX+2}, s{sT0}"); o(f"v_mov_b32 v{vX+3}, 1")
        o("s_mov_b64 exec, 1")
        o(f"global_atomic_add v{vX+2}, v{vX+3}, {s(sCNT,2)}")
        o("s_mov_b64 exec, -1")
    A.label("L_rec_fin")
    if prof:
        o("s_waitcnt lgkmcnt(0)")
        o(f"s_lshl_b32 s{sT0}, s{sW}, 12")
        o(f"s_add_u32 s{sT0}, s{sT0}, 40960")
        o(f"v_add_u32 v{vX+9}, s{sT0}, v{vL16}")
        for k in range(4):
            o(f"ds_read_b128 {v(vB+4*k,4)}, v{vX+9} offset:{k*1024}")
        o("s_waitcnt lgkmcnt(0)")
        for k in range(4):
            o(f"global_store_dwordx4 v{vL16}, {v(vB+4*k,4)}, {s(sProf,2)} offset:{k*1024}")
    o("s_waitcnt vmcnt(0)")
    A.label("L_rec_end")
    o("s_endpgm")
    txt = A.finish()
    if embedded:
        import re
        return re.sub(r"\bL_", pfx + "L_", txt)
    return kernel_head(name) + txt + kernel_desc(name, 256, 256)

if __name__ == "__main__":
    import sys
    fast = "slow" not in sys.argv
    prof = "prof" in sys.argv
    ng = 256 if any(x.startswith("X4=1") for x in sys.argv) else 128
    hdr = f"; @launch kernel=rec_kernel grid=({ng},1,1) block=(256,1,1) lds=131072\n.amdgcn_target \"amdgcn-amd-amdhsa--gfx950\"\n.text\n"
    kw = {}
    for x in sys.argv[1:]:
        if "=" in x:
            k_, v_ = x.split("=");
            if k_ != "out": kw[k_] = int(v_) if v_.isdigit() else v_
    outn = [x.split("=")[1] for x in sys.argv if x.startswith("out=")]
    open(outn[0] if outn else "rec_test.s", "w").write(hdr + gen_rec(fast=fast, prof=prof, **kw))
```

```python
from asmlib import *
from layout import *

NSTEPS = 64
SENT = 0xFFFFFFFF

def gen_rec(name="rec_kernel", embedded=False, pfx="", KVCHK=False, SIG=False, hook=None, cntoff=0, EARLY=False, FILL2=None, fast=True, prof=False, nsteps=NSTEPS, E1_EARLY=True, E2_DELAY=0, E3_DELAY=0, KV_FIRST=0, PF=1, PFE=0, REORD=0, FC=0, E3_SP=0, VSP=2, RT=0, E1_AT=7, E3_SALU_FIRST=0, LAST_SHORT=1, NOK=0, NOV=0, E2F='sc1', X4=0, X4LIM=4, E2_DEPTH=3, E2_SP=0, EP=0, FIXKV=0):
    TIMER = "s_memrealtime" if RT else "s_memtime"
    A = Asm()
    o = A
    st_fast = "" if fast else " sc1"
    sWG = 2
    sW, sG, sJ, sHA, sC, sHead = 3, 4, 5, 6, 7, 8
    sWS = 10
    sT0, sT1, sT2, sT3 = 12, 13, 14, 15
    sPtr = 16
    sMEMc, sMEMn, sQK, sVR, sPART, sPART2, sKX, sKX2, sVX, sKM, sVM = 20, 22, 24, 26, 28, 30, 32, 34, 36, 38, 40
    sRq, sRv, sRp, sRm = 42, 44, 46, 48
    sStep, sSlot, sLim = 50, 51, 52
    sMaskQK, sMaskLo = 54, 56
    sSelV = 58
    sScale = 60
    sWQ, sWK, sWV, sWO, sDBG = 62, 64, 66, 68, 70
    sTs = 66
    sProf = 96
    vL = 0; vT = [1, 2, 3, 4, 5, 6, 7]
    vE3, vQKst, vVst, vVld, vPst, vPld, vMst, vKx, vL16, vKMst = 8, 9, 10, 11, 12, 13, 14, 15, 56, 57
    vA0, vA1, vAv0, vAv1 = 16, 20, 24, 28
    vSx, vSm = 32, 40
    vPx, vPmA, vPmB = 44, 48, 50
    vDelta = 52
    vNeg = 60
    vB = 64; vK = 128; vV = 160; vQ = 192; vQr = 200; vKm = 208; vKr = 216; vVm = 224
    vLdsM, vLdsO, vLdsV = 232, 233, 234
    vSent = 236
    vFlag = 57
    vX = 240
    vO = 64; vOb = 96
    vOo = [112, 116, 120, 124] + [160 + 4 * i for i in range(8)]
    LDS_MEM, LDS_O, LDS_V = 0, 16384, 32768

    if not embedded:
        o(f"s_cmp_ge_u32 s{sWG}, {256 if X4 else 128}")
        o("s_cbranch_scc1 L_rec_end")
        o(f"s_load_dwordx2 {s(sWQ,2)}, s[0:1], {KA_WQ}")
        o(f"s_load_dwordx2 {s(sWK,2)}, s[0:1], {KA_WK}")
        o(f"s_load_dwordx2 {s(sWV,2)}, s[0:1], {KA_WV}")
        o(f"s_load_dwordx2 {s(sWO,2)}, s[0:1], {KA_WO}")
        o(f"s_load_dwordx2 {s(sDBG,2)}, s[0:1], {KA_DBG}")
        o(f"s_load_dwordx2 {s(sWS,2)}, s[0:1], {KA_WS}")
        o(f"v_lshrrev_b32 v1, 6, v0")
        o(f"v_and_b32 v{vL}, 63, v0")
        o(f"v_readfirstlane_b32 s{sW}, v1")
        o(f"s_getreg_b32 s{sG}, hwreg(HW_REG_XCC_ID, 0, 4)")
        o("s_waitcnt lgkmcnt(0)")
        o(f"s_cmp_lg_u32 s{sW}, 0")
        o("s_cbranch_scc1 L_rec_noticket")
        o(f"s_lshl_b32 s{sT0}, s{sG}, 2")
        o(f"v_mov_b32 v1, s{sT0}")
        o("v_mov_b32 v2, 1")
        o("s_mov_b64 exec, 1")
        o(f"global_atomic_add v3, v1, v2, {s(sDBG,2)} sc0")
        o("s_waitcnt vmcnt(0)")
        o("v_mov_b32 v1, 0")
        o("ds_write_b32 v1, v3")
        o("s_waitcnt lgkmcnt(0)")
        o("s_mov_b64 exec, -1")
        A.label("L_rec_noticket")
        o("s_barrier")
        o("v_mov_b32 v1, 0")
        o("ds_read_b32 v3, v1")
        o("s_waitcnt lgkmcnt(0)")
        o(f"v_readfirstlane_b32 s{sJ}, v3")
        o("s_barrier")
        if X4:
            o(f"s_cmp_ge_u32 s{sG}, {X4LIM}"); o("s_cbranch_scc1 L_rec_end")
            o(f"s_sub_u32 s{sG}, s{sG}, {X4LIM-4}") if False else None
            o(f"s_lshl_b32 s{sG}, s{sG}, 1"); o(f"s_lshr_b32 s{sT0}, s{sJ}, 4"); o(f"s_add_u32 s{sG}, s{sG}, s{sT0}")
        o(f"s_and_b32 s{sJ}, s{sJ}, 15")
        o(f"s_and_b32 s{sG}, s{sG}, 7")
    else:
        o(f"s_load_dwordx2 {s(sWQ,2)}, s[0:1], {KA_WQ}")
        o(f"s_load_dwordx2 {s(sWK,2)}, s[0:1], {KA_WK}")
        o(f"s_load_dwordx2 {s(sWV,2)}, s[0:1], {KA_WV}")
        o(f"s_load_dwordx2 {s(sWO,2)}, s[0:1], {KA_WO}")
        o(f"s_load_dwordx2 {s(sWS,2)}, s[0:1], {KA_WS}")
        o("s_waitcnt lgkmcnt(0)")
    o(f"s_lshr_b32 s{sHA}, s{sJ}, 2")
    o(f"s_and_b32 s{sC}, s{sJ}, 3")
    o(f"s_lshl_b32 s{sHead}, s{sG}, 2")
    o(f"s_add_u32 s{sHead}, s{sHead}, s{sW}")
    vi, vg, vr = vT[0], vT[1], vT[2]
    o(f"v_and_b32 v{vi}, 15, v{vL}")
    o(f"v_lshrrev_b32 v{vg}, 4, v{vL}")
    o(f"v_and_b32 v{vr}, 7, v{vL}")
    o(f"v_lshlrev_b32 v{vL16}, 4, v{vL}")

    o(f"s_lshl_b32 s{sT0}, s{sG}, 2")
    o(f"s_add_u32 s{sT0}, s{sT0}, s{sHA}")
    o(f"s_lshl_b32 s{sT0}, s{sT0}, 8")
    o(f"s_lshl_b32 s{sT1}, s{sC}, 6")
    o(f"s_add_u32 s{sT0}, s{sT0}, s{sT1}")
    v1, v2, v3, v4 = vT[3], vT[4], vT[5], vT[6]
    o(f"v_lshrrev_b32 v{v1}, 2, v{vL}")
    o(f"v_lshlrev_b32 v{v1}, 13, v{v1}")
    o(f"v_and_b32 v{v2}, 3, v{vL}")
    o(f"v_lshl_add_u32 v{v1}, v{v2}, 4, v{v1}")
    o(f"v_add_u32 v{v1}, s{sT0}, v{v1}")
    o(f"s_lshl_b32 s{sT1}, s{sW}, 21")
    o(f"v_add_u32 v{v1}, s{sT1}, v{v1}")
    def dma_strip(sbase, ldsbase, nblk, rowstep):
        o(f"v_mov_b32 v{v2}, v{v1}")
        o(f"s_lshl_b32 s{sT2}, s{sW}, {(nblk*1024).bit_length()-1}")
        o(f"s_add_u32 s{sT2}, s{sT2}, {ldsbase}")
        for m in range(nblk):
            o(f"s_mov_b32 m0, s{sT2}")
            o(f"s_add_u32 s{sT2}, s{sT2}, 1024")
            o(f"global_load_lds_dwordx4 v{v2}, {s(sbase,2)}")
            if m + 1 < nblk: o(f"v_add_u32 v{v2}, {rowstep}, v{v2}")
    dma_strip(sWQ, 0, 16, 131072)
    dma_strip(sWK, 65536, 16, 131072)
    o(f"v_lshrrev_b32 v{v3}, 2, v{vi}")
    o(f"v_lshl_add_u32 v{v3}, v{vg}, 3, v{v3}")
    o(f"v_lshlrev_b32 v{v3}, 6, v{v3}")
    o(f"v_and_b32 v{v4}, 3, v{vi}")
    o(f"v_lshl_add_u32 v{v3}, v{v4}, 3, v{v3}")
    o("s_waitcnt vmcnt(0)")
    o("s_barrier")
    o(f"s_lshr_b32 s{sT0}, s{sW}, 1")
    o(f"s_lshl_b32 s{sT0}, s{sT0}, 16")
    o(f"s_and_b32 s{sT1}, s{sW}, 1")
    o(f"s_lshl_b32 s{sT1}, s{sT1}, 5")
    o(f"s_add_u32 s{sT0}, s{sT0}, s{sT1}")
    for i in range(16):
        o(f"s_lshl_b32 s{sT2}, s{sW}, 2")
        o(f"s_add_u32 s{sT2}, s{sT2}, {i}")
        o(f"s_and_b32 s{sT2}, s{sT2}, 15")
        o(f"s_lshl_b32 s{sT2}, s{sT2}, 12")
        o(f"s_add_u32 s{sT2}, s{sT2}, s{sT0}")
        o(f"v_add_u32 v{v4}, s{sT2}, v{v3}")
        for half in range(2):
            d = (i * 2 + half) * 4
            o(f"ds_read_b64_tr_b16 {a(d,2)}, v{v4} offset:{half*2048}")
            o(f"ds_read_b64_tr_b16 {a(d+2,2)}, v{v4} offset:{half*2048+256}")
        if i % 4 == 3: o("s_waitcnt lgkmcnt(0)")
    o("s_barrier")
    dma_strip(sWV, 0, 16, 131072)
    o(f"v_lshrrev_b32 v{v1}, 3, v{vL}")
    o(f"v_lshlrev_b32 v{v1}, 11, v{v1}")
    o(f"v_and_b32 v{v2}, 7, v{vL}")
    o(f"v_lshl_add_u32 v{v1}, v{v2}, 4, v{v1}")
    o(f"s_lshl_b32 s{sT0}, s{sG}, 20")
    o(f"s_lshl_b32 s{sT1}, s{sJ}, 7")
    o(f"s_add_u32 s{sT0}, s{sT0}, s{sT1}")
    o(f"s_lshl_b32 s{sT1}, s{sW}, 18")
    o(f"s_add_u32 s{sT0}, s{sT0}, s{sT1}")
    o(f"v_add_u32 v{v1}, s{sT0}, v{v1}")
    dma_strip(sWO, 65536, 16, 16384)
    o("s_waitcnt vmcnt(0)")
    o("s_barrier")
    o(f"s_and_b32 s{sT0}, s{sW}, 1")
    o(f"s_lshl_b32 s{sT0}, s{sT0}, 5")
    for i in range(8):
        o(f"s_lshl_b32 s{sT2}, s{sW}, 2")
        o(f"s_add_u32 s{sT2}, s{sT2}, {i}")
        o(f"s_and_b32 s{sT2}, s{sT2}, 15")
        o(f"s_lshl_b32 s{sT2}, s{sT2}, 12")
        o(f"s_add_u32 s{sT2}, s{sT2}, s{sT0}")
        o(f"v_add_u32 v{v4}, s{sT2}, v{v3}")
        for half in range(2):
            d = 128 + (i * 2 + half) * 4
            o(f"ds_read_b64_tr_b16 {a(d,2)}, v{v4} offset:{half*2048}")
            o(f"ds_read_b64_tr_b16 {a(d+2,2)}, v{v4} offset:{half*2048+256}")
        if i % 4 == 3: o("s_waitcnt lgkmcnt(0)")
    o(f"v_lshrrev_b32 v{v3}, 2, v{vi}")
    o(f"v_lshl_add_u32 v{v3}, v{vg}, 2, v{v3}")
    o(f"v_lshlrev_b32 v{v3}, 7, v{v3}")
    o(f"v_and_b32 v{v4}, 3, v{vi}")
    o(f"v_lshl_add_u32 v{v3}, v{v4}, 3, v{v3}")
    o(f"s_lshl_b32 s{sT0}, s{sW}, 14")
    o(f"s_add_u32 s{sT0}, s{sT0}, 65536")
    o(f"v_add_u32 v{v4}, s{sT0}, v{v3}")
    for ct in range(4):
        for u in range(4):
            d = 192 + (ct * 4 + u) * 4
            o(f"ds_read_b64_tr_b16 {a(d,2)}, v{v4} offset:{u*4096+ct*32}")
            o(f"ds_read_b64_tr_b16 {a(d+2,2)}, v{v4} offset:{u*4096+2048+ct*32}")
        o("s_waitcnt lgkmcnt(0)")
    o("s_barrier")

    if hook:
        A.raw(hook)
        o(f"v_and_b32 v{vi}, 15, v{vL}"); o(f"v_lshrrev_b32 v{vg}, 4, v{vL}"); o(f"v_and_b32 v{vr}, 7, v{vL}")
    o(f"s_lshl_b32 s{sT0}, s{sW}, 12")
    o(f"v_add_u32 v{vE3}, s{sT0}, v{vL16}")
    o(f"v_lshrrev_b32 v{v1}, 1, v{vg}")
    o(f"v_lshlrev_b32 v{v1}, 8, v{v1}")
    o(f"v_lshl_add_u32 v{v1}, v{vr}, 4, v{v1}")
    o(f"s_lshr_b32 s{sT0}, s{sC}, 1")
    o(f"s_lshl_b32 s{sT0}, s{sT0}, 10")
    o(f"s_and_b32 s{sT1}, s{sW}, 1")
    o(f"s_lshl_b32 s{sT1}, s{sT1}, 9")
    o(f"s_add_u32 s{sT0}, s{sT0}, s{sT1}")
    o(f"s_and_b32 s{sT1}, s{sC}, 1")
    o(f"s_lshl_b32 s{sT1}, s{sT1}, 7")
    o(f"s_add_u32 s{sT0}, s{sT0}, s{sT1}")
    o(f"v_add_u32 v{vKMst}, s{sT0}, v{v1}")
    o(f"s_lshl_b32 s{sT0}, s{sHA}, 12")
    o(f"s_lshr_b32 s{sT1}, s{sW}, 1")
    o(f"s_lshl_b32 s{sT1}, s{sT1}, 11")
    o(f"s_add_u32 s{sT0}, s{sT0}, s{sT1}")
    o(f"v_add_u32 v{vQKst}, s{sT0}, v{vKMst}")
    o(f"s_lshl_b32 s{sT0}, s{sHA}, 11")
    o(f"s_lshl_b32 s{sT1}, s{sC}, 9")
    o(f"s_add_u32 s{sT0}, s{sT0}, s{sT1}")
    o(f"v_add_u32 v{vVst}, s{sT0}, v{vL16}")
    o(f"s_lshl_b32 s{sT0}, s{sW}, 11")
    o(f"v_add_u32 v{vVld}, s{sT0}, v{vL16}")
    o(f"s_lshl_b32 s{sT0}, s{sG}, 4")
    o(f"s_add_u32 s{sT0}, s{sT0}, s{sJ}")
    o(f"s_lshl_b32 s{sT0}, s{sT0}, 10")
    o(f"s_and_b32 s{sT1}, s{sW}, 1")
    o(f"s_lshl_b32 s{sT1}, s{sT1}, 9")
    o(f"s_add_u32 s{sT0}, s{sT0}, s{sT1}")
    o(f"s_lshr_b32 s{sT1}, s{sW}, 1")
    o(f"s_lshl_b32 s{sT1}, s{sT1}, 7")
    o(f"s_add_u32 s{sT0}, s{sT0}, s{sT1}")
    o(f"v_add_u32 v{vPst}, s{sT0}, v{v1}")
    o(f"v_lshlrev_b32 v{vPld}, 14, v{vg}")
    o(f"v_lshl_add_u32 v{vPld}, v{vi}, 4, v{vPld}")
    o(f"s_lshl_b32 s{sT0}, s{sJ}, 10")
    o(f"s_lshl_b32 s{sT1}, s{sW}, 8")
    o(f"s_add_u32 s{sT0}, s{sT0}, s{sT1}")
    o(f"v_add_u32 v{vPld}, s{sT0}, v{vPld}")
    o(f"v_add_u32 v{vMst}, s{sT0}, v{vL16}")
    o(f"v_lshlrev_b32 v{vKx}, 13, v{vi}")
    o(f"v_lshl_add_u32 v{vKx}, v{vg}, 4, v{vKx}")
    o(f"s_lshl_b32 s{sT0}, s{sHead}, 8")
    o(f"v_add_u32 v{vKx}, s{sT0}, v{vKx}")
    o(f"v_mov_b32 v{vLdsM}, v{vL16}")
    for d in range(4):
        o(f"v_mov_b32 v{vDelta+d}, 0")
        o(f"v_mov_b32 v{v1}, 0x3f80")
        o(f"v_cmp_eq_u32 vcc, {2*d}, v{vi}")
        o(f"v_cndmask_b32 v{vDelta+d}, v{vDelta+d}, v{v1}, vcc")
        o(f"v_mov_b32 v{v1}, 0x3f800000")
        o(f"v_cmp_eq_u32 vcc, {2*d+1}, v{vi}")
        o(f"v_cndmask_b32 v{vDelta+d}, v{vDelta+d}, v{v1}, vcc")
    o(f"v_mov_b32 v{v1}, 0xff800000")
    o(f"v_cmp_lt_u32 vcc, 31, v{vL}")
    o(f"v_cndmask_b32 v{vNeg}, 0, v{v1}, vcc")
    for r in range(1, 4): o(f"v_mov_b32 v{vNeg+r}, v{vNeg}")
    for r in range(4): o(f"v_mov_b32 v{vSent+r}, -1")
    o(f"s_mov_b32 s{sMaskQK}, 0xff"); o(f"s_mov_b32 s{sMaskQK+1}, 0xff")
    o(f"s_mov_b32 s{sSelV}, -1"); o(f"s_mov_b32 s{sSelV+1}, 0")
    import math
    cs = 128 ** -0.5 * math.log2(math.e)
    import struct
    o(f"s_mov_b32 s{sScale}, 0x{struct.unpack('<I', struct.pack('<f', cs))[0]:08x}")
    o(f"s_mov_b32 s{sScale+1}, s{sScale}")
    o(f"s_mov_b32 s{sLim}, 0x400000")
    o(f"s_mov_b32 s{sStep}, 0")
    def addbase(dst, off, extra_s=None):
        o(f"s_add_u32 s{dst}, s{sWS}, {off & 0xffffffff}")
        o(f"s_addc_u32 s{dst+1}, s{sWS+1}, 0")
        if extra_s is not None:
            o(f"s_add_u32 s{dst}, s{dst}, s{extra_s}")
            o(f"s_addc_u32 s{dst+1}, s{dst+1}, 0")
    o(f"s_lshl_b32 s{sT0}, s{sHead}, 13")
    o(f"s_add_u32 s{sT0}, s{sT0}, 4096")
    addbase(sKX, WS_K, sT0)
    o(f"s_lshl_b32 s{sT0}, s{sHead}, 13")
    o(f"s_add_u32 s{sT0}, s{sT0}, 4096")
    addbase(sVX, WS_VT, sT0)
    o(f"s_lshl_b32 s{sT0}, s{sHead}, 11")
    addbase(sKM, WS_KM, sT0)
    addbase(sVM, WS_VM, sT0)
    sCNT = 16
    addbase(sCNT, WS_CNT + cntoff)
    def kv_wait(chunk_sreg_expr_setup, target, tag):
        o(f"s_lshl_b32 s{sT0}, s{sT0}, 3"); o(f"s_add_u32 s{sT0}, s{sT0}, s{sG}"); o(f"s_lshl_b32 s{sT0}, s{sT0}, 7")
        o(f"v_mov_b32 v{vX+2}, s{sT0}")
        A.label(f"L_kvw_{tag}")
        o(f"global_load_dword v{vX+3}, v{vX+2}, {s(sCNT,2)} sc1")
        o("s_waitcnt vmcnt(0)")
        o(f"v_readfirstlane_b32 s{sT1}, v{vX+3}")
        o(f"s_cmp_ge_u32 s{sT1}, {target}")
        o(f"s_cbranch_scc1 L_kvw_{tag}_ok")
        o("s_sleep 4")
        o(f"s_sub_u32 s{sLim}, s{sLim}, 1")
        o(f"s_cbranch_scc0 L_kvw_{tag}")
        o(f"s_mov_b32 s{sLim}, 0")
        A.label(f"L_kvw_{tag}_ok")
    sEC = 94
    def gpoll(base, tag, sleep=12, allwaves=False):
        if not allwaves:
            o(f"s_cmp_lg_u32 s{sW}, 0"); o(f"s_cbranch_scc1 L_gp_{tag}_ok")
        o(f"v_mov_b32 v{vX+2}, s{sT0}")
        A.label(f"L_gp_{tag}")
        o(f"global_load_dword v{vX+3}, v{vX+2}, {s(base,2)} sc1")
        o("s_waitcnt vmcnt(0)")
        o(f"v_readfirstlane_b32 s{sT1}, v{vX+3}")
        o(f"s_cmp_ge_u32 s{sT1}, s{sT2}")
        o(f"s_cbranch_scc1 L_gp_{tag}_ok")
        o(f"s_sleep {sleep}")
        o(f"s_sub_u32 s{sLim}, s{sLim}, 1")
        o(f"s_cbranch_scc0 L_gp_{tag}")
        o(f"s_mov_b32 s{sLim}, 0")
        A.label(f"L_gp_{tag}_ok")
        if not allwaves: o("s_barrier")
    if KVCHK and not EARLY:
        o(f"s_mov_b32 s{sT0}, 0")
        kv_wait(None, 16, "0")
    if KVCHK and EARLY:
        o(f"s_mov_b32 s{sT0}, {EC_FILL*4}"); o(f"s_mov_b32 s{sT2}, 128"); gpoll(sEC, "f")
        o(f"s_lshl_b32 s{sT0}, s{sG}, 2"); o(f"s_add_u32 s{sT0}, s{sT0}, {EC_KVH0*4}"); o(f"s_mov_b32 s{sT2}, 16"); gpoll(sEC, "0")
    def load_kx():
        for t in range(8):
            o(f"global_load_dwordx4 {v(vK+t*4,4)}, v{vL16}, {s(sKX,2)} offset:{t*1024-4096}")
    load_kx()
    if prof:
        o(f"s_lshl_b32 s{sT0}, s{sG}, 4")
        o(f"s_add_u32 s{sT0}, s{sT0}, s{sJ}")
        o(f"s_lshl_b32 s{sT0}, s{sT0}, 2")
        o(f"s_add_u32 s{sT0}, s{sT0}, s{sW}")
        o(f"s_lshl_b32 s{sT0}, s{sT0}, 12")
        addbase(sProf, WS_PROF, sT0)
    nst = [0]
    def stamp():
        if not prof: return
        k = nst[0]; nst[0] += 1
        o(f"{TIMER} {s(sTs + 2*k, 2)}")

    def check(regs, lab_ok, lab_retry, tmp):
        regs = list(regs)
        o(f"v_max3_u32 v{tmp}, v{regs[0]}, v{regs[1]}, v{regs[2]}")
        k = 3
        while k + 1 < len(regs):
            o(f"v_max3_u32 v{tmp}, v{tmp}, v{regs[k]}, v{regs[k+1]}"); k += 2
        if k < len(regs):
            o(f"v_max_u32 v{tmp}, v{tmp}, v{regs[k]}")
        o(f"v_cmp_eq_u32 vcc, -1, v{tmp}")
        o(f"s_cbranch_vccz {lab_ok}")
        o(f"s_sub_u32 s{sLim}, s{sLim}, 1")
        o(f"s_cbranch_scc1 {lab_ok}_to")
        o(f"s_branch {lab_retry}")
        A.label(f"{lab_ok}_to")
        o(f"s_mov_b32 s{sLim}, 0")
        A.label(lab_ok)


    sCnt = 98
    vOo = [112, 116, 120, 124, 192, 196, 200, 204, 216, 220, 224, 228]
    vPf = 252
    def merge(main, side, every, start=0):
        side = list(side); out = [];
        for k, m_ in enumerate(main):
            out.append(m_)
            if side and k >= start and (k - start) % every == every - 1: out.append(side.pop(0))
        return out + side
    def emit(L):
        for x in L: o(x)
    def check(regs, lab_ok, lab_retry, tmp, cnt=None):
        regs = list(regs)
        o(f"v_max3_u32 v{tmp}, v{regs[0]}, v{regs[1]}, v{regs[2]}")
        k = 3
        while k + 1 < len(regs):
            o(f"v_max3_u32 v{tmp}, v{tmp}, v{regs[k]}, v{regs[k+1]}"); k += 2
        if k < len(regs):
            o(f"v_max_u32 v{tmp}, v{tmp}, v{regs[k]}")
        o(f"v_cmp_eq_u32 vcc, -1, v{tmp}")
        o(f"s_cbranch_vccz {lab_ok}")
        if prof and cnt is not None: o(f"s_add_u32 s{sCnt+cnt}, s{sCnt+cnt}, 1")
        o(f"s_sub_u32 s{sLim}, s{sLim}, 1")
        o(f"s_cbranch_scc0 {lab_retry}")
        o(f"s_mov_b32 s{sLim}, 0")
        A.label(lab_ok)
    sM = 88
    def mpoll(loads, tag, cnt):
        n = len(loads)
        regs = [b + r for b, _ in loads for r in range(4)]
        o(f"v_max3_u32 v{vX}, v{regs[0]}, v{regs[1]}, v{regs[2]}")
        k = 3
        while k + 1 < len(regs):
            o(f"v_max3_u32 v{vX}, v{vX}, v{regs[k]}, v{regs[k+1]}"); k += 2
        if k < len(regs): o(f"v_max_u32 v{vX}, v{vX}, v{regs[k]}")
        o(f"v_cmp_eq_u32 vcc, -1, v{vX}")
        o(f"s_cbranch_vccz L_{tag}_ok")
        A.label(f"L_{tag}_retry")
        if prof: o(f"s_add_u32 s{sCnt+cnt}, s{sCnt+cnt}, 1")
        for i, (b, rest) in enumerate(loads):
            o(f"v_max3_u32 v{vX}, v{b}, v{b+1}, v{b+2}")
            o(f"v_max_u32 v{vX}, v{vX}, v{b+3}")
            o(f"v_cmp_eq_u32 vcc, -1, v{vX}")
            o(f"s_cbranch_vccz L_{tag}_sk{i}")
            o("s_mov_b64 exec, vcc")
            o(f"global_load_dwordx4 {v(b,4)}, {rest}")
            o("s_mov_b64 exec, -1")
            A.label(f"L_{tag}_sk{i}")
        o("s_waitcnt vmcnt(0)")
        o(f"v_max3_u32 v{vX}, v{regs[0]}, v{regs[1]}, v{regs[2]}")
        k = 3
        while k + 1 < len(regs):
            o(f"v_max3_u32 v{vX}, v{vX}, v{regs[k]}, v{regs[k+1]}"); k += 2
        if k < len(regs): o(f"v_max_u32 v{vX}, v{vX}, v{regs[k]}")
        o(f"v_cmp_eq_u32 vcc, -1, v{vX}")
        o(f"s_cbranch_vccz L_{tag}_ok")
        o(f"s_sub_u32 s{sLim}, s{sLim}, 1")
        o(f"s_cbranch_scc0 L_{tag}_retry")
        o(f"s_mov_b32 s{sLim}, 0")
        A.label(f"L_{tag}_ok")
    if prof:
        for k in range(4): o(f"s_mov_b32 s{sCnt+k}, 0")
    vPfo = 58
    o(f"s_lshl_b32 s{sT1}, s{sG}, 2"); o(f"s_add_u32 s{sT1}, s{sT1}, s{sHA}"); o(f"s_lshl_b32 s{sT1}, s{sT1}, 13")
    o(f"s_lshl_b32 s{sT2}, s{sC}, 11"); o(f"s_add_u32 s{sT1}, s{sT1}, s{sT2}")
    o(f"s_and_b32 s{sT2}, s{sW}, 1"); o(f"s_lshl_b32 s{sT2}, s{sT2}, 10"); o(f"s_add_u32 s{sT1}, s{sT1}, s{sT2}")
    o(f"v_add_u32 v{vPfo}, s{sT1}, v{vL16}")
    o(f"s_cmp_lt_u32 s{sW}, 2")
    sPF = 18
    o(f"s_mov_b32 s{sT0}, {WS_K + 2*262144}")
    o(f"s_mov_b32 s{sT1}, {WS_VT + 2*262144}")
    o(f"s_cselect_b32 s{sT0}, s{sT0}, s{sT1}")
    o(f"s_add_u32 s{sPF}, s{sWS}, s{sT0}"); o(f"s_addc_u32 s{sPF+1}, s{sWS+1}, 0")
    def kx_loads():
        if NOK: return ["s_nop 0"] * 8
        return [f"global_load_dwordx4 {v(vK+t*4,4)}, v{vL16}, {s(sKX,2)} offset:{t*1024-4096}" for t in range(8)]
    def vx_loads():
        if NOV: return ["s_nop 0"] * 8
        return [f"global_load_dwordx4 {v(vV+4*t,4)}, v{vL16}, {s(sVX,2)} offset:{t*1024-4096}" for t in range(8)]
    vRd = [None, 232, 233, 234]
    for hs in (1, 2, 3):
        o(f"v_add_u32 v{vRd[hs]}, {hs*4096}, v{vE3}")
        o(f"v_and_b32 v{vRd[hs]}, 0x3fff, v{vRd[hs]}")
    vVw, vVr, vRw = 235, 59, 15
    o(f"s_lshl_b32 s{sT0}, s{sW}, 10")
    o(f"v_add_u32 v{vVw}, s{sT0}, v{vL16}")
    o(f"v_and_b32 v{vVr}, 31, v{vL}")
    o(f"v_lshlrev_b32 v{vVr}, 4, v{vVr}")
    o(f"v_lshrrev_b32 v{vX+2}, 5, v{vL}")
    o(f"v_lshl_add_u32 v{vVr}, v{vX+2}, 10, v{vVr}")
    vL4 = vX + 3
    o(f"v_lshlrev_b32 v{vL4}, 2, v{vL}")
    o(f"s_lshl_b32 s{sT0}, s{sW}, 8")
    o(f"v_add_u32 v{vRw}, s{sT0}, v{vL4}")
    vRr = [None, 1, 2, 3]
    for hs in (1, 2, 3):
        o(f"s_add_u32 s{sT0}, s{sW}, {hs}"); o(f"s_and_b32 s{sT0}, s{sT0}, 3"); o(f"s_lshl_b32 s{sT0}, s{sT0}, 8")
        o(f"v_add_u32 v{vRr[hs]}, s{sT0}, v{vL4}")
    vOnes = 4
    for r in range(4): o(f"v_mov_b32 v{vOnes+r}, 0x3f803f80")

    LDS_R = 36864
    A.label("L_step")
    nst[0] = 0
    if KVCHK:
        if FILL2 is not None:
            o(f"s_cmp_lg_u32 s{sStep}, 6"); o("s_cbranch_scc1 L_kvf2")
            o(f"s_mov_b32 s{sT0}, {FILL2}"); o(f"s_mov_b32 s{sT2}, 128"); gpoll(sCNT, "l2", 4)
            A.label("L_kvf2")
        if EARLY:
            o(f"s_cmp_lg_u32 s{sStep}, 2"); o("s_cbranch_scc1 L_kvn2")
            o(f"s_lshl_b32 s{sT0}, s{sG}, 2"); o(f"s_add_u32 s{sT0}, s{sT0}, {EC_KVH1*4}"); o(f"s_mov_b32 s{sT2}, 16"); gpoll(sEC, "h1", 4)
            A.label("L_kvn2")
            o(f"s_cmp_lg_u32 s{sStep}, 6"); o("s_cbranch_scc1 L_kvn6")
            o(f"s_mov_b32 s{sT0}, {EC_FILL2*4}"); o(f"s_mov_b32 s{sT2}, 128"); gpoll(sEC, "f2", 4)
            A.label("L_kvn6")
        o(f"s_add_u32 s{sT0}, s{sStep}, 2"); o(f"s_and_b32 s{sT1}, s{sT0}, 7"); o(f"s_cmp_lg_u32 s{sT1}, 0"); o("s_cbranch_scc1 L_kvskip")
        o(f"s_cmp_ge_u32 s{sT0}, 64"); o("s_cbranch_scc1 L_kvskip")
        o(f"s_lshr_b32 s{sT0}, s{sT0}, 3")
        if EARLY:
            o(f"s_cmp_eq_u32 s{sT0}, 1"); o(f"s_cselect_b32 s{sT2}, 16, 4")
        else:
            o(f"s_mov_b32 s{sT2}, 4")
        o(f"v_readfirstlane_b32 s{sT1}, v{vFlag}")
        o(f"s_cmp_ge_u32 s{sT1}, s{sT2}"); o("s_cbranch_scc1 L_kvskip")
        o(f"s_lshl_b32 s{sT0}, s{sT0}, 3"); o(f"s_add_u32 s{sT0}, s{sT0}, s{sG}"); o(f"s_lshl_b32 s{sT0}, s{sT0}, 7")
        gpoll(sCNT, "n", 4, allwaves=True)
        A.label("L_kvskip")
    o(f"s_and_b32 s{sSlot}, s{sStep}, 3")
    o(f"s_lshl_b32 s{sT0}, s{sSlot}, 17")
    o(f"s_lshl_b32 s{sT1}, s{sG}, 14")
    o(f"s_add_u32 s{sT2}, s{sT0}, s{sT1}")
    addbase(sMEMc, WS_RMEM, sT2)
    e3_loads = [(vB + 4*u, f"v{vE3}, {s(sMEMc,2)} offset:{u*1024} sc1") for u in range(4)]
    def qk_mfma(i, first=False):
        for half, acc in ((0, vA0), (1, vA1)):
            c = "0" if first else v(acc, 4)
            o(f"v_mfma_f32_16x16x32_bf16 {v(acc,4)}, {a((i*2+half)*4,4)}, {v(vB+4*i,4)}, {c}")
    def salu_bases():
        addbase(sQK, WS_RQK, sT2)
        o(f"s_lshl_b32 s{sT3}, s{sStep}, 17")
        addbase(sPART, WS_PARTF, sT3)
        o(f"s_add_u32 s{sPART2}, s{sPART}, 65536"); o(f"s_addc_u32 s{sPART2+1}, s{sPART+1}, 0")
        o(f"s_lshr_b32 s{sT3}, s{sT2}, 1")
        addbase(sVR, WS_RV, sT3)
        o(f"s_add_u32 s{sT3}, s{sStep}, 1"); o(f"s_and_b32 s{sT3}, s{sT3}, 3"); o(f"s_lshl_b32 s{sT3}, s{sT3}, 17"); o(f"s_add_u32 s{sT3}, s{sT3}, s{sT1}")
        addbase(sMEMn, WS_RMEM, sT3)
        o(f"s_xor_b32 s{sT3}, s{sT0}, {2<<17}")
        o(f"s_add_u32 s{sT3}, s{sT3}, s{sT1}")
        addbase(sRq, WS_RQK, sT3)
        o(f"s_lshr_b32 s{sT3}, s{sT3}, 1")
        addbase(sRv, WS_RV, sT3)
        o(f"s_add_u32 s{sT3}, s{sStep}, 3"); o(f"s_and_b32 s{sT3}, s{sT3}, 3"); o(f"s_lshl_b32 s{sT3}, s{sT3}, 17"); o(f"s_add_u32 s{sT3}, s{sT3}, s{sT1}")
        addbase(sRm, WS_RMEM, sT3)
    def simple_poll(loads, tag, cnt, first_wait):
        regs = [b + r for b, _ in loads for r in range(4)]
        o(f"s_waitcnt vmcnt({first_wait})")
        o(f"s_branch L_{tag}_c")
        A.label(f"L_{tag}_r")
        for b, rest in loads: o(f"global_load_dwordx4 {v(b,4)}, {rest}")
        o("s_waitcnt vmcnt(0)")
        A.label(f"L_{tag}_c")
        check(regs, f"L_{tag}_ok", f"L_{tag}_r", vX, cnt)
    def chk_list(regs, tmp):
        regs = list(regs); L = [f"v_max3_u32 v{tmp}, v{regs[0]}, v{regs[1]}, v{regs[2]}"]
        k = 3
        while k + 1 < len(regs):
            L.append(f"v_max3_u32 v{tmp}, v{tmp}, v{regs[k]}, v{regs[k+1]}"); k += 2
        if k < len(regs): L.append(f"v_max_u32 v{tmp}, v{tmp}, v{regs[k]}")
        L.append(f"v_cmp_eq_u32 vcc, -1, v{tmp}")
        return L
    def retry_tail(tag, cnt, issue, back):
        o(f"s_cbranch_vccz L_{tag}_fok")
        if prof: o(f"s_add_u32 s{sCnt+cnt}, s{sCnt+cnt}, 1")
        o(f"s_sub_u32 s{sLim}, s{sLim}, 1")
        o(f"s_cbranch_scc1 L_{tag}_fto")
        issue()
        o("s_waitcnt vmcnt(0)")
        o(f"s_branch {back}")
        A.label(f"L_{tag}_fto")
        o(f"s_mov_b32 s{sLim}, 0")
        A.label(f"L_{tag}_fok")
    n0 = len(A.lines); salu_bases(); sl = A.lines[n0:]; del A.lines[n0:]
    nb = len(sl) if E3_SALU_FIRST == 1 else (0 if E3_SALU_FIRST == 0 else min(len(sl), E3_SALU_FIRST))
    while 0 < nb < len(sl) and sl[nb].startswith("s_addc"): nb += 1
    for x in sl[:nb]: o(x)
    stamp()
    for b, rest in e3_loads: o(f"global_load_dwordx4 {v(b,4)}, {rest}")
    for x in sl[nb:]: o(x)
    if FC & 16:
        def qk1(i, half, first, src=None):
            acc = vA0 if half == 0 else vA1
            c = "0" if first else v(acc, 4)
            sr = (vB + 4 * i) if src is None else src
            return f"v_mfma_f32_16x16x32_bf16 {v(acc,4)}, {a((i*2+half)*4,4)}, {v(sr,4)}, {c}"
        wr = [f"ds_write_b128 v{vE3}, {v(b,4)} offset:{LDS_MEM + u*1024}" for u, (b, rest) in enumerate(e3_loads)]
        if FC & 32:
            v2 = 192
            e3b = [(v2 + 4 * u, rest) for u, (b, rest) in enumerate(e3_loads)]
            issA = lambda: [o(f"global_load_dwordx4 {v(b,4)}, {rest}") for b, rest in e3_loads]
            issB = lambda: [o(f"global_load_dwordx4 {v(b,4)}, {rest}") for b, rest in e3b]
            if E3_SP: o(f"s_sleep {E3_SP}")
            issB()
            A.label("L_e3_lp")
            o("s_waitcnt vmcnt(4)")
            emit(chk_list(range(vB, vB + 16), vX)); o("s_cbranch_vccz L_e3_okA")
            if prof: o(f"s_add_u32 s{sCnt}, s{sCnt}, 1")
            issA()
            o("s_waitcnt vmcnt(4)")
            emit(chk_list(range(v2, v2 + 16), vX)); o("s_cbranch_vccz L_e3_okB")
            if prof: o(f"s_add_u32 s{sCnt}, s{sCnt}, 1")
            issB()
            o(f"s_sub_u32 s{sLim}, s{sLim}, 1"); o("s_cbranch_scc0 L_e3_lp"); o(f"s_mov_b32 s{sLim}, 0")
            A.label("L_e3_okB")
            wrB = [f"ds_write_b128 v{vE3}, {v(b,4)} offset:{LDS_MEM + u*1024}" for u, (b, rest) in enumerate(e3b)]
            emit([wrB[0], qk1(0, 0, True, v2), wrB[1], qk1(0, 1, True, v2), wrB[2], qk1(1, 0, False, v2 + 4), wrB[3], qk1(1, 1, False, v2 + 4),
                  qk1(2, 0, False, v2 + 8), qk1(2, 1, False, v2 + 8), qk1(3, 0, False, v2 + 12), qk1(3, 1, False, v2 + 12)])
            o("s_mov_b32 s89, 1")
            o("s_branch L_e3_j")
            A.label("L_e3_okA")
            o("s_mov_b32 s89, 0")
            emit([wr[0], qk1(0, 0, True), wr[1], qk1(0, 1, True), wr[2], qk1(1, 0, False), wr[3], qk1(1, 1, False)])
            A.label("L_e3_j")
        else:
            simple_poll(e3_loads, "e3", 0, 0)
            emit([wr[0], qk1(0, 0, True), wr[1], qk1(0, 1, True), wr[2], qk1(1, 0, False), wr[3], qk1(1, 1, False)])
        stamp()
        o("s_waitcnt lgkmcnt(0)")
        o("s_barrier")
        for i in range(4, 16):
            o(f"ds_read_b128 {v(vB+4*i,4)}, v{vRd[i//4]} offset:{LDS_MEM + (i%4)*1024}")
        if FC & 32:
            o("s_cmp_lg_u32 s89, 0"); o("s_cbranch_scc1 L_e3_sk")
        for u in (2, 3): qk_mfma(u)
        if FC & 32: A.label("L_e3_sk")
    elif FC & 1:
        assert not SIG
        o("s_waitcnt vmcnt(0)")
        A.label("L_e3_go")
        ck = chk_list(range(vB, vB + 16), vX)
        def qk1(i, half, first):
            acc = vA0 if half == 0 else vA1
            c = "0" if first else v(acc, 4)
            return f"v_mfma_f32_16x16x32_bf16 {v(acc,4)}, {a((i*2+half)*4,4)}, {v(vB+4*i,4)}, {c}"
        wr = [f"ds_write_b128 v{vE3}, {v(b,4)} offset:{LDS_MEM + u*1024}" for u, (b, rest) in enumerate(e3_loads)]
        sq = [wr[0], qk1(0, 0, True), ck[0], ck[1], wr[1], qk1(0, 1, True), ck[2], ck[3], wr[2], qk1(1, 0, False), ck[4], ck[5], wr[3], qk1(1, 1, False)] + ck[6:]
        emit(sq)
        retry_tail("e3", 0, lambda: [o(f"global_load_dwordx4 {v(b,4)}, {rest}") for b, rest in e3_loads], "L_e3_go")
        stamp()
        o("s_waitcnt lgkmcnt(0)")
        o("s_barrier")
        for i in range(4, 16):
            o(f"ds_read_b128 {v(vB+4*i,4)}, v{vRd[i//4]} offset:{LDS_MEM + (i%4)*1024}")
        for u in (2, 3): qk_mfma(u)
    else:
        simple_poll(e3_loads, "e3", 0, 0)
        if SIG:
            o(f"s_sub_u32 s{sT3}, s{sStep}, 1"); o(f"s_cbranch_scc1 L_nosig")
            o(f"s_and_b32 s{sT0}, s{sT3}, 15"); o(f"s_cmp_lg_u32 s{sT0}, s{sJ}"); o("s_cbranch_scc1 L_nosig")
            o(f"s_lshl_b32 s{sT0}, s{sT3}, 7"); o(f"s_add_u32 s{sT0}, s{sT0}, {CNT_REC}")
            o(f"v_mov_b32 v{vX+2}, s{sT0}"); o(f"v_mov_b32 v{vX+3}, 1")
            o("s_mov_b64 exec, 1")
            o(f"global_atomic_add v{vX+2}, v{vX+3}, {s(sCNT,2)}")
            o("s_mov_b64 exec, -1")
            A.label("L_nosig")
        for u, (b, rest) in enumerate(e3_loads):
            o(f"ds_write_b128 v{vE3}, {v(b,4)} offset:{LDS_MEM + u*1024}")
        for u in range(4): qk_mfma(u, first=(u == 0))
        stamp()
        o("s_waitcnt lgkmcnt(0)")
        o("s_barrier")
        for i in range(4, 16):
            o(f"ds_read_b128 {v(vB+4*i,4)}, v{vRd[i//4]} offset:{LDS_MEM + (i%4)*1024}")
    vxl = vx_loads()
    for i in range(4, 16):
        o(f"s_waitcnt lgkmcnt({15-i})")
        qk_mfma(i)
        if i % VSP == VSP - 1 and vxl: o(vxl.pop(0))
    stamp()
    for r in range(4):
        o(f"v_add_f32_dpp v{vA0+r}, v{vA1+r}, v{vA0+r} row_ror:8 row_mask:0xf bank_mask:0xf")
    R = vX + 4
    o(f"v_cvt_pk_bf16_f32 v{R}, v{vA0}, v{vA0+1}")
    o(f"v_cvt_pk_bf16_f32 v{R+1}, v{vA0+2}, v{vA0+3}")
    o(f"v_permlane16_swap_b32 v{R}, v{R+2}")
    o(f"v_permlane16_swap_b32 v{R+1}, v{R+3}")
    o(f"s_mov_b64 exec, {s(sMaskQK,2)}")
    o(f"global_store_dwordx4 v{vQKst}, {v(R,4)}, {s(sQK,2)}{st_fast}")
    o("s_mov_b64 exec, -1")
    stamp()
    if FC & 32: o("s_waitcnt vmcnt(7)")
    e1_loads = [(vQ + 4*cp, f"v{vE3}, {s(sQK,2)} offset:{cp*1024} sc1") for cp in range(2)] + [(vKm + 4*cp, f"v{vE3}, {s(sQK,2)} offset:{2048+cp*1024} sc1") for cp in range(2)]
    def e1_issue():
        for b, rest in e1_loads: o(f"global_load_dwordx4 {v(b,4)}, {rest}")
    for i in range(8):
        for half, acc in ((0, vAv0), (1, vAv1)):
            c = "0" if i == 0 else v(acc, 4)
            o(f"v_mfma_f32_16x16x32_bf16 {v(acc,4)}, {v(vB+4*i,4)}, {a(128+(i*2+half)*4,4)}, {c}")
        if vxl and i % 2 == 1: o(vxl.pop(0))
        if i == E1_AT:
            emit(vxl); vxl = []
            e1_issue()
    emit(vxl)
    for r in range(4):
        o(f"v_cndmask_b32 v{vAv0+r}, v{vAv1+r}, v{vAv0+r}, {s(sSelV,2)}")
    o(f"ds_write_b128 v{vVw}, {v(vAv0,4)} offset:{LDS_V}")
    o("s_waitcnt lgkmcnt(0)")
    o("s_barrier")
    o(f"s_cmp_lg_u32 s{sW}, 0")
    o("s_cbranch_scc1 L_vred_skip")
    T = vA0
    for k, off in enumerate((0, 512, 2048, 2560)):
        o(f"ds_read_b128 {v(T+4*k,4)}, v{vVr} offset:{LDS_V+off}")
    o("s_waitcnt lgkmcnt(0)")
    for r in range(4):
        o(f"v_add_f32 v{T+r}, v{T+r}, v{T+4+r}")
        o(f"v_add_f32 v{T+8+r}, v{T+8+r}, v{T+12+r}")
    for r in range(4):
        o(f"v_add_f32 v{T+r}, v{T+r}, v{T+8+r}")
    o(f"v_cvt_pk_bf16_f32 v{R}, v{T}, v{T+1}")
    o(f"v_cvt_pk_bf16_f32 v{R+1}, v{T+2}, v{T+3}")
    o(f"v_permlane32_swap_b32 v{R}, v{R+2}")
    o(f"v_permlane32_swap_b32 v{R+1}, v{R+3}")
    o(f"s_mov_b64 exec, {s(sSelV,2)}")
    o(f"global_store_dwordx4 v{vVst}, {v(R,4)}, {s(sVR,2)}{st_fast}")
    o("s_mov_b64 exec, -1")
    o("s_waitcnt vmcnt(1)")
    o("s_branch L_e1_c")
    A.label("L_e1_r")
    e1_issue()
    A.label("L_vred_skip")
    o("s_waitcnt vmcnt(0)")
    A.label("L_e1_c")
    if not (FC & 2): check([b + r for b, _ in e1_loads for r in range(4)], "L_e1_ok", "L_e1_r", vX, 1)
    stamp()
    def M32(d, A_, B_, C_): return f"v_mfma_f32_16x16x32_bf16 {v(d,4)}, {A_}, {B_}, {C_}"
    def rot(dst, srcr): return [f"v_mov_b32_dpp v{dst+r}, v{srcr+r} row_ror:8 row_mask:0xf bank_mask:0xf" for r in range(4)]
    Kf = lambda kt, u: v(vK + (kt*4+u)*4, 4)
    seq = []
    seq += [M32(vSx, Kf(0,0), v(vQ,4), "0")] + rot(vQr, vQ)[:2]
    seq += [M32(vSx+4, Kf(1,0), v(vQ,4), "0")] + rot(vQr, vQ)[2:]
    seq += [M32(vSm, v(vKm,4), v(vQ,4), v(vNeg,4))] + rot(vQr+4, vQ+4)[:2]
    seq += [M32(vSx, Kf(0,2), v(vQ+4,4), v(vSx,4))] + rot(vQr+4, vQ+4)[2:]
    seq += [M32(vSx+4, Kf(1,2), v(vQ+4,4), v(vSx+4,4))] + rot(vKr, vKm)[:2]
    seq += [M32(vSm, v(vKm+4,4), v(vQ+4,4), v(vSm,4))] + rot(vKr, vKm)[2:]
    seq += [M32(vSx, Kf(0,1), v(vQr,4), v(vSx,4))] + rot(vKr+4, vKm+4)[:2]
    seq += [M32(vSx+4, Kf(1,1), v(vQr,4), v(vSx+4,4))] + rot(vKr+4, vKm+4)[2:]
    seq += [M32(vSx, Kf(0,3), v(vQr+4,4), v(vSx,4))]
    seq += [M32(vSx+4, Kf(1,3), v(vQr+4,4), v(vSx+4,4))]
    seq += [M32(vSm, v(vKr,4), v(vQr,4), v(vSm,4))]
    seq += [M32(vSm, v(vKr+4,4), v(vQr+4,4), v(vSm,4))]
    if FC & 2:
        ck = chk_list([b + r_ for b, _ in e1_loads for r_ in range(4)], vX)
        tail4 = seq[-4:]; seq = seq[:-4]
        sq2 = []
        for k_, m_ in enumerate(tail4):
            sq2.append(m_); sq2 += ck[2*k_:2*k_+2]
        sq2 += ck[8:]
        emit(seq + sq2)
        retry_tail("e1", 1, e1_issue, "L_e1_c")
    else:
        emit(seq)
    if not FIXKV:
        o(f"s_add_u32 s{sKX}, s{sKX}, 262144"); o(f"s_addc_u32 s{sKX+1}, s{sKX+1}, 0")
    vm_loads = [(vVm + 4*mm, f"v{vVld}, {s(sVR,2)} offset:{mm*1024} sc1") for mm in range(2)]
    for b, rest in vm_loads: o(f"global_load_dwordx4 {v(b,4)}, {rest}")
    if PF and PFE: o(f"global_load_dwordx4 {v(vPf,4)}, v{vPfo}, {s(sPF,2)}")
    m, t = vX + 1, vX + 2
    Sall = list(range(vSx, vSx + 8)) + list(range(vSm, vSm + 4))
    m2 = vX + 3
    o(f"v_max3_f32 v{m}, v{Sall[0]}, v{Sall[1]}, v{Sall[2]}")
    o(f"v_max3_f32 v{m2}, v{Sall[4]}, v{Sall[5]}, v{Sall[6]}")
    o(f"v_max3_f32 v{m}, v{m}, v{Sall[3]}, v{Sall[7]}")
    o(f"v_max3_f32 v{m2}, v{m2}, v{Sall[8]}, v{Sall[9]}")
    o(f"v_max3_f32 v{m}, v{m}, v{Sall[10]}, v{Sall[11]}")
    o(f"v_max_f32 v{m}, v{m}, v{m2}")
    for sw in ("16", "32"):
        o(f"v_mov_b32 v{t}, v{m}")
        o(f"v_permlane{sw}_swap_b32 v{m}, v{t}")
        o(f"v_max_f32 v{m}, v{m}, v{t}")
    mm_ = vX + 2
    o(f"v_mul_f32 v{mm_}, s{sScale}, v{m}")
    kxl = kx_loads()
    main = []
    for r in Sall[::2]: main.append(f"v_pk_fma_f32 {v(r,2)}, {v(r,2)}, {s(sScale,2)}, {v(mm_,2)} op_sel_hi:[1,1,0] neg_lo:[0,0,1] neg_hi:[0,0,1]")
    for k_, r in enumerate(Sall):
        main.append(f"v_exp_f32 v{r}, v{r}")
    emit(merge(main, [kxl.pop(0), kxl.pop(0)], 7))
    o(f"v_cvt_pk_bf16_f32 v{vPx}, v{vSx}, v{vSx+1}")
    o(f"v_cvt_pk_bf16_f32 v{vPx+1}, v{vSx+2}, v{vSx+3}")
    o(f"v_cvt_pk_bf16_f32 v{vPx+2}, v{vSx+4}, v{vSx+5}")
    o(f"v_cvt_pk_bf16_f32 v{vPx+3}, v{vSx+6}, v{vSx+7}")
    o(f"v_cvt_pk_bf16_f32 v{vPmA}, v{vSm}, v{vSm+1}")
    o(f"v_cvt_pk_bf16_f32 v{vPmA+1}, v{vSm+2}, v{vSm+3}")
    stamp()
    vLs = vSx
    pv = [M32(vO+4*tt, v(vV+4*tt,4), v(vPx,4), "0") for tt in range(8)]
    side = [f"v_mov_b32 v{vX+4}, v{vPmA}", f"v_mov_b32 v{vX+5}, v{vPmA+1}", f"v_mov_b32 v{vPmB}, 0", f"v_mov_b32 v{vPmB+1}, 0",
            f"v_permlane32_swap_b32 v{vPmB}, v{vX+4}", f"v_permlane32_swap_b32 v{vPmB+1}, v{vX+5}", kxl.pop(0)]
    if FC & 4:
        o(M32(vLs, v(vOnes,4), v(vPx,4), "0"))
        emit(merge(pv[:5], side, 1)[:12])
        o(f"s_waitcnt vmcnt({4 if (PF and PFE) else 3})")
        A.label("L_vm_go")
        ck = chk_list(range(vVm, vVm + 8), vX)
        sq3 = [pv[5]] + ck[:2] + [pv[6]] + ck[2:4] + [pv[7]] + ck[4:]
        o(f"v_mfma_f32_16x16x16_bf16 {v(vLs,4)}, {v(vOnes,2)}, {v(vPmA,2)}, {v(vLs,4)}")
        emit(sq3)
        o("s_cbranch_vccz L_vm_fok")
        A.label("L_vm_rr")
        if prof: o(f"s_add_u32 s{sCnt+2}, s{sCnt+2}, 1")
        o(f"s_sub_u32 s{sLim}, s{sLim}, 1"); o("s_cbranch_scc1 L_vm_fto")
        for b, rest in vm_loads: o(f"global_load_dwordx4 {v(b,4)}, {rest}")
        o("s_waitcnt vmcnt(0)")
        emit(chk_list(range(vVm, vVm + 8), vX))
        o("s_cbranch_vccnz L_vm_rr"); o("s_branch L_vm_fok")
        A.label("L_vm_fto"); o(f"s_mov_b32 s{sLim}, 0")
        A.label("L_vm_fok")
    else:
        emit(merge(pv, side, 1))
        o(M32(vLs, v(vOnes,4), v(vPx,4), "0"))
        o(f"v_mfma_f32_16x16x16_bf16 {v(vLs,4)}, {v(vOnes,2)}, {v(vPmA,2)}, {v(vLs,4)}")
        simple_poll(vm_loads, "vm", 2, 4 if (PF and PFE) else 3)
    stamp()
    def pvm(tt):
        c, tv = tt >> 1, tt & 1
        pm = vPmB if (c & 1) else vPmA
        return f"v_mfma_f32_16x16x16_bf16 {v(vO+4*tt,4)}, {v(vVm+4*(c>>1)+2*tv,2)}, {v(pm,2)}, {v(vO+4*tt,4)}"
    def cvt(tt):
        u, h = tt >> 1, tt & 1
        return [f"v_cvt_pk_bf16_f32 v{vOb+4*u+2*h}, v{vO+4*tt}, v{vO+4*tt+1}", f"v_cvt_pk_bf16_f32 v{vOb+4*u+2*h+1}, v{vO+4*tt+2}, v{vO+4*tt+3}"]
    if REORD:
        for tt in range(4): o(pvm(tt))
    if KVCHK:
        o(f"s_add_u32 s{sT0}, s{sStep}, 3"); o(f"s_and_b32 s{sT1}, s{sT0}, 7"); o(f"s_cmp_lg_u32 s{sT1}, 0"); o("s_cbranch_scc1 L_nofl")
        o(f"s_lshr_b32 s{sT0}, s{sT0}, 3"); o(f"s_lshl_b32 s{sT0}, s{sT0}, 3"); o(f"s_add_u32 s{sT0}, s{sT0}, s{sG}"); o(f"s_lshl_b32 s{sT0}, s{sT0}, 7")
        o(f"v_mov_b32 v{vFlag}, s{sT0}")
        o(f"global_load_dword v{vFlag}, v{vFlag}, {s(sCNT,2)} sc1")
        A.label("L_nofl")
    o(f"s_and_b32 s{sT0}, s{sStep}, 15"); o(f"s_cmp_lg_u32 s{sT0}, s{sJ}"); o("s_cbranch_scc1 L_nopub")
    for cp in range(2): o(f"global_store_dwordx4 v{vL16}, {v(vKm+4*cp,4)}, {s(sKM,2)} offset:{cp*1024}" + (" sc1" if SIG else ""))
    for cp in range(2): o(f"global_store_dwordx4 v{vL16}, {v(vVm+4*cp,4)}, {s(sVM,2)} offset:{cp*1024}" + (" sc1" if SIG else ""))
    A.label("L_nopub")
    if LAST_SHORT:
        o(f"s_cmp_eq_u32 s{sStep}, {nsteps-1}")
        o("s_cbranch_scc1 L_rec_last")
    if PF and not PFE: o(f"global_load_dwordx4 {v(vPf,4)}, v{vPfo}, {s(sPF,2)}")
    if not REORD:
        for tt in range(3): o(pvm(tt))
    vCa = [16, 20, 24, 28]
    l_ = vX + 1
    def cm(ct, u):
        c = "0" if u == 0 else v(vCa[ct], 4)
        return f"v_mfma_f32_16x16x32_bf16 {v(vCa[ct],4)}, {a(192+(ct*4+u)*4,4)}, {v(vOb+4*u,4)}, {c}"
    pend = []
    for tt in range(8):
        if REORD:
            if tt + 4 < 8: o(pvm(tt + 4))
        elif tt + 3 < 8: o(pvm(tt + 3))
        cv = cvt(tt)
        o(cv[0])
        if pend: o(pend.pop(0))
        o(cv[1])
        if pend: o(pend.pop(0))
        if tt == 0: o(f"v_rcp_f32 v{l_}, v{vLs}")
        if tt % 2 == 1:
            pend += [cm(ct, tt >> 1) for ct in range(4)]
            if kxl: o(kxl.pop(0))
    emit(pend)
    for ct in range(4):
        pass
    o(f"v_mov_b32 v{vX+2}, v{l_}")
    for ct in range(4):
        o(f"v_pk_mul_f32 {v(vCa[ct],2)}, {v(vCa[ct],2)}, {v(vX+2,2)} op_sel_hi:[1,0]")
        o(f"v_pk_mul_f32 {v(vCa[ct]+2,2)}, {v(vCa[ct]+2,2)}, {v(vX+2,2)} op_sel_hi:[1,0]")
        o(f"ds_write_b128 v{vVw}, {v(vCa[ct],4)} offset:{LDS_O+ct*4096}")
    while kxl: o(kxl.pop(0))
    o("s_waitcnt lgkmcnt(0)")
    o("s_barrier")
    stamp()
    Rr = [112, 116, 120, 124]
    for sw in range(4): o(f"ds_read_b128 {v(Rr[sw],4)}, v{vE3} offset:{LDS_O+sw*1024}")
    vC = Rr[0]
    o("s_waitcnt lgkmcnt(2)")
    o(f"v_pk_add_f32 {v(Rr[0],2)}, {v(Rr[0],2)}, {v(Rr[1],2)}"); o(f"v_pk_add_f32 {v(Rr[0]+2,2)}, {v(Rr[0]+2,2)}, {v(Rr[1]+2,2)}")
    o("s_waitcnt lgkmcnt(0)")
    o(f"v_pk_add_f32 {v(Rr[2],2)}, {v(Rr[2],2)}, {v(Rr[3],2)}"); o(f"v_pk_add_f32 {v(Rr[2]+2,2)}, {v(Rr[2]+2,2)}, {v(Rr[3]+2,2)}")
    o(f"v_pk_add_f32 {v(Rr[0],2)}, {v(Rr[0],2)}, {v(Rr[2],2)}"); o(f"v_pk_add_f32 {v(Rr[0]+2,2)}, {v(Rr[0]+2,2)}, {v(Rr[2]+2,2)}")
    o(f"v_cvt_pk_bf16_f32 v{R}, v{vC}, v{vC+1}")
    o(f"v_cvt_pk_bf16_f32 v{R+1}, v{vC+2}, v{vC+3}")
    o(f"v_permlane16_swap_b32 v{R}, v{R+2}")
    o(f"v_permlane16_swap_b32 v{R+1}, v{R+3}")
    o(f"s_mov_b64 exec, {s(sMaskQK,2)}")
    if EP == 2:
        o("s_waitcnt vmcnt(0)")
        o(f"{TIMER} {s(sTs + 2*5, 2)}")
    o(f"global_store_dwordx4 v{vPst}, {v(R,4)}, {s(sPART,2)} sc1")
    stamp()
    if EP == 2:
        o("s_waitcnt vmcnt(0)")
        o(f"{TIMER} {s(sTs + 2*4, 2)}")
    o(f"global_store_dwordx4 v{vQKst}, {v(vSent,4)}, {s(sRq,2)}{st_fast}")
    o(f"s_mov_b64 exec, 0xffff")
    o(f"global_store_dwordx4 v{vMst}, {v(vSent,4)}, {s(sRm,2)}{st_fast}")
    o(f"s_cmp_lg_u32 s{sW}, 0")
    o("s_cbranch_scc1 L_norv")
    o(f"s_mov_b64 exec, {s(sSelV,2)}")
    o(f"global_store_dwordx4 v{vVst}, {v(vSent,4)}, {s(sRv,2)}{st_fast}")
    A.label("L_norv")
    o("s_mov_b64 exec, -1")
    if not FIXKV:
        o(f"s_add_u32 s{sVX}, s{sVX}, 262144"); o(f"s_addc_u32 s{sVX+1}, s{sVX+1}, 0")
    o(f"s_add_u32 s{sKM}, s{sKM}, 65536"); o(f"s_addc_u32 s{sKM+1}, s{sKM+1}, 0")
    o(f"s_add_u32 s{sVM}, s{sVM}, 65536"); o(f"s_addc_u32 s{sVM+1}, s{sVM+1}, 0")
    if E2_DELAY: o(f"s_sleep {E2_DELAY}")
    sets = [vB + 8 * k for k in range(E2_DEPTH)]
    def e2_issue(b):
        o(f"global_load_dwordx4 {v(b,4)}, v{vPld}, {s(sPART,2)} {E2F}")
        o(f"global_load_dwordx4 {v(b+4,4)}, v{vPld}, {s(sPART2,2)} {E2F}")
    if EP: o(f"{TIMER} {s(sTs + 2*2, 2)}")
    for k, b in enumerate(sets):
        e2_issue(b)
        if k + 1 < len(sets) and E2_SP: o(f"s_sleep {E2_SP}")
    if EP:
        o(f"s_waitcnt vmcnt({2*(len(sets)-1)})")
        o(f"{TIMER} {s(sTs + 2*3, 2)}")
    if FC & 8:
        assert E2_DEPTH == 1
        b = sets[0]; D = vA1
        o("s_waitcnt vmcnt(0)")
        A.label("L_e2_go")
        o(f"v_mfma_f32_16x16x32_bf16 {v(D,4)}, {v(vDelta,4)}, {v(b,4)}, 0")
        o(f"v_mfma_f32_16x16x32_bf16 {v(D,4)}, {v(vDelta,4)}, {v(b+4,4)}, {v(D,4)}")
        emit(chk_list(range(b, b + 8), vX))
        retry_tail("e2", 3, lambda: e2_issue(b), "L_e2_go")
    else:
        A.label("L_e2")
        for k, b in enumerate(sets):
            o(f"s_waitcnt vmcnt({2*(len(sets)-1)})")
            regs = list(range(b, b + 8))
            o(f"v_max3_u32 v{vX}, v{regs[0]}, v{regs[1]}, v{regs[2]}")
            o(f"v_max3_u32 v{vX}, v{vX}, v{regs[3]}, v{regs[4]}")
            o(f"v_max3_u32 v{vX}, v{vX}, v{regs[5]}, v{regs[6]}")
            o(f"v_max_u32 v{vX}, v{vX}, v{regs[7]}")
            o(f"v_cmp_eq_u32 vcc, -1, v{vX}")
            o(f"s_cbranch_vccz L_e2_ok{k}")
            if prof: o(f"s_add_u32 s{sCnt+3}, s{sCnt+3}, 1")
            e2_issue(b)
        o(f"s_sub_u32 s{sLim}, s{sLim}, 1")
        o(f"s_cbranch_scc0 L_e2")
        o(f"s_mov_b32 s{sLim}, 0")
        D = vA1
        for k, b in enumerate(sets):
            A.label(f"L_e2_ok{k}")
            o(f"v_mfma_f32_16x16x32_bf16 {v(D,4)}, {v(vDelta,4)}, {v(b,4)}, 0")
            o(f"v_mfma_f32_16x16x32_bf16 {v(D,4)}, {v(vDelta,4)}, {v(b+4,4)}, {v(D,4)}")
            if k + 1 < len(sets): o("s_branch L_e2_done")
    A.label("L_e2_done")
    o(f"s_add_u32 s{sPF}, s{sPF}, 262144"); o(f"s_addc_u32 s{sPF+1}, s{sPF+1}, 0")
    stamp()
    o("s_nop 7")
    o(f"v_cvt_pk_bf16_f32 v{R}, v{D}, v{D+1}")
    o(f"v_cvt_pk_bf16_f32 v{R+1}, v{D+2}, v{D+3}")
    o(f"v_permlane16_swap_b32 v{R}, v{R+2}")
    o(f"v_permlane16_swap_b32 v{R+1}, v{R+3}")
    o(f"s_mov_b64 exec, 0xffff")
    o(f"global_store_dwordx4 v{vMst}, {v(R,4)}, {s(sMEMn,2)}{st_fast}")
    o("s_mov_b64 exec, -1")
    stamp()
    if E3_DELAY: o(f"s_sleep {E3_DELAY}")
    if prof:
        o("s_waitcnt lgkmcnt(0)")
        for k in range(nst[0]):
            o(f"v_writelane_b32 v{vX+8}, s{sTs+2*k}, {k}")
        for k in range(4):
            o(f"v_writelane_b32 v{vX+8}, s{sCnt+k}, {11+k}")
        o(f"v_writelane_b32 v{vX+8}, s92, 15")
        o(f"s_lshl_b32 s{sT0}, s{sW}, 12")
        o(f"s_lshl_b32 s{sT1}, s{sStep}, 6")
        o(f"s_add_u32 s{sT0}, s{sT0}, s{sT1}")
        o(f"s_add_u32 s{sT0}, s{sT0}, 40960")
        o(f"v_lshlrev_b32 v{vX+9}, 2, v{vL}")
        o(f"v_add_u32 v{vX+9}, s{sT0}, v{vX+9}")
        o("s_mov_b64 exec, 0xffff")
        o(f"ds_write_b32 v{vX+9}, v{vX+8}")
        o("s_mov_b64 exec, -1")
    o(f"s_add_u32 s{sStep}, s{sStep}, 1")
    o(f"s_cmp_lt_u32 s{sStep}, {nsteps}")
    o("s_cbranch_scc1 L_step")
    o("s_branch L_rec_fin")
    A.label("L_rec_last")
    if SIG:
        o("s_waitcnt vmcnt(0)")
        o(f"s_and_b32 s{sT0}, s{sStep}, 15"); o(f"s_cmp_lg_u32 s{sT0}, s{sJ}"); o("s_cbranch_scc1 L_rec_fin")
        o(f"s_lshl_b32 s{sT0}, s{sStep}, 7"); o(f"s_add_u32 s{sT0}, s{sT0}, {CNT_REC}")
        o(f"v_mov_b32 v{vX+2}, s{sT0}"); o(f"v_mov_b32 v{vX+3}, 1")
        o("s_mov_b64 exec, 1")
        o(f"global_atomic_add v{vX+2}, v{vX+3}, {s(sCNT,2)}")
        o("s_mov_b64 exec, -1")
    A.label("L_rec_fin")
    if prof:
        o("s_waitcnt lgkmcnt(0)")
        o(f"s_lshl_b32 s{sT0}, s{sW}, 12")
        o(f"s_add_u32 s{sT0}, s{sT0}, 40960")
        o(f"v_add_u32 v{vX+9}, s{sT0}, v{vL16}")
        for k in range(4):
            o(f"ds_read_b128 {v(vB+4*k,4)}, v{vX+9} offset:{k*1024}")
        o("s_waitcnt lgkmcnt(0)")
        for k in range(4):
            o(f"global_store_dwordx4 v{vL16}, {v(vB+4*k,4)}, {s(sProf,2)} offset:{k*1024}")
    o("s_waitcnt vmcnt(0)")
    A.label("L_rec_end")
    o("s_endpgm")
    txt = A.finish()
    if embedded:
        import re
        return re.sub(r"\bL_", pfx + "L_", txt)
    return kernel_head(name) + txt + kernel_desc(name, 256, 256)

if __name__ == "__main__":
    import sys
    fast = "slow" not in sys.argv
    prof = "prof" in sys.argv
    ng = 256 if any(x.startswith("X4=1") for x in sys.argv) else 128
    hdr = f"; @launch kernel=rec_kernel grid=({ng},1,1) block=(256,1,1) lds=131072\n.amdgcn_target \"amdgcn-amd-amdhsa--gfx950\"\n.text\n"
    kw = {}
    for x in sys.argv[1:]:
        if "=" in x:
            k_, v_ = x.split("=");
            if k_ != "out": kw[k_] = int(v_) if v_.isdigit() else v_
    outn = [x.split("=")[1] for x in sys.argv if x.startswith("out=")]
    open(outn[0] if outn else "rec_test.s", "w").write(hdr + gen_rec(fast=fast, prof=prof, **kw))
```

```python
from asmlib import *
from layout import *
from gemm import Gemm, gen_loop2, gen_loop3
from k_qkv import srd
from k_small import fbits, unpack8, gfun, LOG2E
import math

SENT = False
WS_STATP = 144 * MiB + 0
WS_XCH = 128 * MiB
WS_STAT = WS_CNT + 131072 + 16384
CNT_XO = 131072
CNT_ST = 131072 + 8192
CNT_XG = 131072 + 4096

sX, sY = 8, 12
sOffX, sOffY, sM0, sK = 20, 21, [22, 23], 24
sSt = [32, 33, 34]

def poll_ge(A, sBase, vAddr, target, tag, vT, sLimReg, sleep=2):
    o = A
    A.label(f"L_{tag}")
    o(f"global_load_dword v{vT}, v{vAddr}, {s(sBase,2)} sc1")
    o("s_waitcnt vmcnt(0)")
    o(f"v_readfirstlane_b32 s44, v{vT}")
    o(f"s_cmp_ge_u32 s44, {target}"); o(f"s_cbranch_scc1 L_{tag}_ok")
    o(f"s_sleep {sleep}")
    o(f"s_sub_u32 s{sLimReg}, s{sLimReg}, 1"); o(f"s_cbranch_scc0 L_{tag}")
    A.label(f"L_{tag}_ok")

def exchange(A, G, keep_tiles, send_tiles, sTile, sKh, xch_off, cnt_off, name):
    o = A
    E = G.vF
    o(f"s_lshl_b32 s25, s{sTile}, 1"); o(f"s_add_u32 s26, s25, s{sKh}"); o("s_lshl_b32 s26, s26, 2"); o("s_add_u32 s26, s26, s3"); o("s_lshl_b32 s26, s26, 13")
    o(f"s_xor_b32 s27, s{sKh}, 1"); o("s_add_u32 s27, s25, s27"); o("s_lshl_b32 s27, s27, 2"); o("s_add_u32 s27, s27, s3"); o("s_lshl_b32 s27, s27, 13")
    o(f"s_add_u32 s26, s26, {xch_off}"); o(f"s_add_u32 s27, s27, {xch_off}")
    o("s_add_u32 s40, s6, s26"); o("s_addc_u32 s41, s7, 0"); o("s_add_u32 s42, s6, s27"); o("s_addc_u32 s43, s7, 0")
    o("s_add_u32 s40, s40, 4096"); o("s_addc_u32 s41, s41, 0"); o("s_add_u32 s42, s42, 4096"); o("s_addc_u32 s43, s43, 0")
    o("v_lshlrev_b32 v1, 4, v0")
    T = E + 32
    for kh in range(2):
        if kh == 0: o(f"s_cmp_lg_u32 s{sKh}, 0"); o(f"s_cbranch_scc1 L_{name}_k1")
        else: A.label(f"L_{name}_k1")
        for t, (jx, jy) in enumerate(send_tiles(kh)):
            R = T + 4 * (t % 4)
            for r in range(4): o(f"v_accvgpr_read_b32 v{R+r}, a{G.accr(jx, jy)+r}")
            o(f"global_store_dwordx4 v1, {v(R,4)}, s[40:41] offset:{t*1024-4096} sc1")
        for t, (jx, jy) in enumerate(keep_tiles(kh)):
            for r in range(4): o(f"v_accvgpr_read_b32 v{E+4*t+r}, a{G.accr(jx, jy)+r}")
        if kh == 0: o(f"s_branch L_{name}_kd")
    A.label(f"L_{name}_kd")
    if SENT:
        o("s_mov_b32 s50, 0x200000")
        A.label(f"L_{name}_sp")
        for k_ in range(8): o(f"global_load_dwordx4 {v(T+4*k_,4)}, v1, s[42:43] offset:{k_*1024-4096} sc1")
        o("s_waitcnt vmcnt(0)")
        regs = list(range(T, T + 32))
        o(f"v_max3_u32 v2, v{regs[0]}, v{regs[1]}, v{regs[2]}")
        k_ = 3
        while k_ + 1 < len(regs):
            o(f"v_max3_u32 v2, v2, v{regs[k_]}, v{regs[k_+1]}"); k_ += 2
        if k_ < len(regs): o(f"v_max_u32 v2, v2, v{regs[k_]}")
        o("v_cmp_eq_u32 vcc, -1, v2"); o(f"s_cbranch_vccz L_{name}_sok")
        o("s_sub_u32 s50, s50, 1"); o(f"s_cbranch_scc0 L_{name}_sp")
        A.label(f"L_{name}_sok")
        for k_ in range(32): o(f"v_add_f32 v{E+k_}, v{E+k_}, v{T+k_}")
        return
    o("s_waitcnt vmcnt(0)")
    o(f"s_add_u32 s48, s6, {WS_CNT}"); o("s_addc_u32 s49, s7, 0")
    o(f"s_add_u32 s26, s25, s{sKh}"); o("s_lshl_b32 s26, s26, 2"); o("s_add_u32 s26, s26, s3"); o("s_lshl_b32 s26, s26, 2"); o(f"s_add_u32 s26, s26, {cnt_off}")
    o("v_mov_b32 v2, s26"); o("v_mov_b32 v3, 1")
    o("s_mov_b64 exec, 1"); o("global_atomic_add v2, v3, s[48:49]"); o("s_mov_b64 exec, -1")
    o(f"s_xor_b32 s27, s{sKh}, 1"); o("s_add_u32 s27, s25, s27"); o("s_lshl_b32 s27, s27, 2"); o("s_add_u32 s27, s27, s3"); o("s_lshl_b32 s27, s27, 2"); o(f"s_add_u32 s27, s27, {cnt_off}")
    o("v_mov_b32 v2, s27")
    o("s_mov_b32 s50, 0x200000")
    poll_ge(A, 48, 2, 1, f"{name}_p", 3, 50)
    for t in range(8): o(f"global_load_dwordx4 {v(T+4*t,4)}, v1, s[42:43] offset:{t*1024-4096} sc1")
    for t in range(8):
        o(f"s_waitcnt vmcnt({7-t})")
        for r in range(4): o(f"v_add_f32 v{E+4*t+r}, v{E+4*t+r}, v{T+4*t+r}")


PROF = False
def pst(o, k):
    if PROF: o(f's_memrealtime s[{64+2*k}:{65+2*k}]')
def pend(o, idx):
    if not PROF: return
    o('s_memrealtime s[76:77]'); o('s_waitcnt lgkmcnt(0)')
    o('s_lshl_b32 s25, s2, 7'); o('s_lshl_b32 s26, s3, 5'); o('s_add_u32 s25, s25, s26'); o(f's_add_u32 s25, s25, {WS_PROF + 7*MiB + idx*65536}')
    for k in range(6): o(f'v_mov_b32 v{2+k}, s{64+2*k}')
    o('v_mov_b32 v8, s76'); o('v_mov_b32 v9, 0'); o('v_mov_b32 v10, s25')
    o('s_mov_b64 exec, 1'); o('global_store_dwordx4 v10, v[2:5], s[6:7]'); o('global_store_dwordx4 v10, v[6:9], s[6:7] offset:16'); o('s_waitcnt vmcnt(0)')

def head(o, name, ptrs):
    o(f"s_cmp_ge_u32 s2, 256"); o(f"s_cbranch_scc1 L_{name}_end")
    o(f"s_load_dwordx2 s[6:7], s[0:1], {KA_WS}")
    for sreg, ka in ptrs: o(f"s_load_dwordx2 {s(sreg,2)}, s[0:1], {ka}")
    o("v_lshrrev_b32 v1, 6, v0"); o("v_and_b32 v0, 63, v0"); o("v_readfirstlane_b32 s3, v1")
    o("s_waitcnt lgkmcnt(0)")
    pst(o, 0)

LOPT = {}
def gen_opln(name="opln_kernel"):
    A = Asm(); o = A
    head(o, name, [(52, KA_WO), (54, KA_X)])
    srd(o, sX, 52, 0, 8 * MiB); srd(o, sY, 6, WS_O, 16 * MiB)
    sDt, sTt, sKh, sTile = 4, 5, 56, 57
    o("s_and_b32 s25, s2, 7"); o("s_lshr_b32 s26, s2, 3"); o(f"s_and_b32 s{sKh}, s25, 1")
    o(f"s_lshr_b32 s{sDt}, s25, 2"); o(f"s_lshl_b32 s{sDt}, s{sDt}, 2"); o("s_and_b32 s27, s26, 3"); o(f"s_add_u32 s{sDt}, s{sDt}, s27")
    o(f"s_bfe_u32 s{sTt}, s25, 0x10001"); o(f"s_lshl_b32 s{sTt}, s{sTt}, 3"); o("s_lshr_b32 s27, s26, 2"); o(f"s_add_u32 s{sTt}, s{sTt}, s27")
    o(f"s_lshl_b32 s{sTile}, s{sTt}, 3"); o(f"s_add_u32 s{sTile}, s{sTile}, s{sDt}")
    o(f"s_lshl_b32 s{sOffX}, s{sDt}, 8"); o(f"s_lshl_b32 s25, s{sKh}, 22"); o(f"s_add_u32 s{sOffX}, s{sOffX}, s25")
    o(f"s_lshl_b32 s{sOffY}, s{sTt}, 13"); o(f"s_lshl_b32 s25, s{sKh}, 23"); o(f"s_add_u32 s{sOffY}, s{sOffY}, s25")
    G = Gemm(A, 4, 4, False, "o")
    o(f"s_mul_i32 s{sM0[0]}, s3, {G.NIX*1024}"); o(f"s_mul_i32 s{sM0[1]}, s3, {G.NIY*1024}")
    G.setup(3, 0, 2048, 0, [1, 2, 3, 4, 5, 6], [25, 26, 27, 28])
    gen_loop3(G, sX, sY, sOffX, sOffY, sM0, sK, 32 * 2048, 128 * 1024, 64, f"L_{name}", K=LOPT.get("K", 2), R=8, opt=LOPT)
    o("s_barrier")
    pst(o, 1)
    E = G.vF
    keep = lambda kh: [(jx, 2 * kh + h) for h in range(2) for jx in range(4)]
    send = lambda kh: keep(kh ^ 1)
    o("v_and_b32 v1, 15, v0"); o("v_lshrrev_b32 v2, 4, v0"); o("v_and_b32 v3, 1, v2"); o("v_lshrrev_b32 v2, 1, v2")
    o("v_lshlrev_b32 v3, 4, v3"); o("v_lshl_add_u32 v3, v2, 3, v3")
    o(f"s_lshl_b32 s25, s{sDt}, 7"); o("s_and_b32 s26, s3, 1"); o("s_lshl_b32 s26, s26, 6"); o("s_add_u32 s25, s25, s26")
    o("v_add_u32 v4, s25, v3")
    o(f"s_lshl_b32 s58, s{sTt}, 7"); o("s_lshr_b32 s26, s3, 1"); o("s_lshl_b32 s26, s26, 6"); o("s_add_u32 s58, s58, s26"); o(f"s_lshl_b32 s26, s{sKh}, 5"); o("s_add_u32 s58, s58, s26")
    o("v_add_u32 v5, s58, v1")
    o("v_lshlrev_b32 v6, 11, v5"); o("v_lshl_add_u32 v6, v4, 1, v6")
    o("v_lshlrev_b32 v7, 2, v4")
    M = E + 64
    XR = E + 112
    for k, sec in enumerate((2, 3, 4)):
        o(f"s_add_u32 s44, s6, {WS_MOD + sec*4096}"); o("s_addc_u32 s45, s7, 0")
        for p in range(2):
            o(f"global_load_dwordx4 {v(M+16*k+8*p,4)}, v7, s[44:45] offset:{p*128}"); o(f"global_load_dwordx4 {v(M+16*k+8*p+4,4)}, v7, s[44:45] offset:{p*128+16}")
    for h in range(2):
        o(f"v_add_u32 v8, {h*16*2048}, v6")
        for p in range(2): o(f"global_load_dwordx4 {v(XR+8*h+4*p,4)}, v8, s[54:55] offset:{p*64}")
    o("v_mov_b32 v17, v1"); o("v_mov_b32 v18, v3"); o("s_mov_b32 s62, s25")
    exchange(A, G, keep, send, sTile, sKh, WS_XCH, CNT_XO, name + "x")
    pst(o, 2)
    for h in range(2):
        for p in range(2):
            a_, b_ = E + 4 * (h * 4 + 2 * p), E + 4 * (h * 4 + 2 * p + 1)
            for r in range(4): o(f"v_permlane16_swap_b32 v{a_+r}, v{b_+r}")
    o("v_mov_b32 v1, v17"); o("v_mov_b32 v3, v18"); o("s_mov_b32 s25, s62")
    o("s_waitcnt vmcnt(0)")
    U = E + 128
    o(f"s_add_u32 s44, s6, {WS_X1}"); o("s_addc_u32 s45, s7, 0")
    for h in range(2):
        o(f"v_add_u32 v8, {h*16*2048}, v6")
        for p in range(2):
            Y = E + 4 * (h * 4 + 2 * p)
            unpack8(o, U, XR + 8 * h + 4 * p)
            for e in range(8): o(f"v_fma_f32 v{Y+e}, v{Y+e}, v{M+8*p+e}, v{U+e}")
            P = XR + 8 * h + 4 * p
            for d in range(4): o(f"v_cvt_pk_bf16_f32 v{P+d}, v{Y+2*d}, v{Y+2*d+1}")
            o(f"global_store_dwordx4 v8, {v(P,4)}, s[44:45] offset:{p*64}")
            unpack8(o, Y, P)
    S1, S2, t_ = U, U + 2, U + 4
    for h in range(2):
        Y = E + 16 * h
        o(f"v_add_f32 v{S1+h}, v{Y}, v{Y+1}")
        for e in range(2, 16): o(f"v_add_f32 v{S1+h}, v{S1+h}, v{Y+e}")
        o(f"v_mul_f32 v{S2+h}, v{Y}, v{Y}")
        for e in range(1, 16): o(f"v_fmac_f32 v{S2+h}, v{Y+e}, v{Y+e}")
    for x in (S1, S1 + 1, S2, S2 + 1):
        for sw in ("16", "32"):
            o(f"v_mov_b32 v{t_}, v{x}"); o(f"v_permlane{sw}_swap_b32 v{x}, v{t_}"); o(f"v_add_f32 v{x}, v{x}, v{t_}")
    if SENT:
        o("s_lshr_b32 s59, s58, 5")
        o(f"s_lshl_b32 s26, s59, 12"); o(f"s_lshl_b32 s27, s{sDt}, 1"); o("s_and_b32 s28, s3, 1"); o("s_add_u32 s27, s27, s28"); o("s_lshl_b32 s27, s27, 8")
        o(f"s_add_u32 s46, s6, {WS_STATP}"); o("s_addc_u32 s47, s7, 0"); o("s_add_u32 s46, s46, s26"); o("s_addc_u32 s47, s47, 0")
        o("v_lshlrev_b32 v9, 3, v1"); o("v_add_u32 v14, s27, v9")
        for h in range(2):
            o(f"v_mov_b32 v{U+8+2*h}, v{S1+h}"); o(f"v_mov_b32 v{U+9+2*h}, v{S2+h}")
        o("s_mov_b64 exec, 0xffff")
        for h in range(2): o(f"global_store_dwordx2 v14, {v(U+8+2*h,2)}, s[46:47] offset:{h*128} sc1")
        o("s_mov_b64 exec, -1")
        pst(o, 3)
        o("v_lshrrev_b32 v15, 4, v0"); o("v_lshlrev_b32 v15, 10, v15"); o("v_add_u32 v15, v15, v9")
        PS = E + 144 - 0
        PS = E + 32
        o("s_mov_b32 s50, 0x200000")
        A.label(f"L_{name}_stp")
        for h in range(2):
            for k_ in range(4): o(f"global_load_dwordx2 {v(PS+16*h+2*k_+0,2) if False else v(PS+8*h+2*k_,2)}, v15, s[46:47] offset:{k_*256+h*128} sc1")
        o("s_waitcnt vmcnt(0)")
        regs = list(range(PS, PS + 16))
        o(f"v_max3_u32 v2, v{regs[0]}, v{regs[1]}, v{regs[2]}")
        k_ = 3
        while k_ + 1 < len(regs):
            o(f"v_max3_u32 v2, v2, v{regs[k_]}, v{regs[k_+1]}"); k_ += 2
        if k_ < len(regs): o(f"v_max_u32 v2, v2, v{regs[k_]}")
        o("v_cmp_eq_u32 vcc, -1, v2"); o(f"s_cbranch_vccz L_{name}_stok")
        o("s_sleep 1"); o("s_sub_u32 s50, s50, 1"); o(f"s_cbranch_scc0 L_{name}_stp")
        A.label(f"L_{name}_stok")
        for h in range(2):
            b_ = PS + 8 * h
            o(f"v_add_f32 v{U+8+2*h}, v{b_}, v{b_+2}"); o(f"v_add_f32 v{U+9+2*h}, v{b_+1}, v{b_+3}")
            o(f"v_add_f32 v{b_+4}, v{b_+4}, v{b_+6}"); o(f"v_add_f32 v{b_+5}, v{b_+5}, v{b_+7}")
            o(f"v_add_f32 v{U+8+2*h}, v{U+8+2*h}, v{b_+4}"); o(f"v_add_f32 v{U+9+2*h}, v{U+9+2*h}, v{b_+5}")
        for x in range(U + 8, U + 12):
            for sw in ("16", "32"):
                o(f"v_mov_b32 v{t_}, v{x}"); o(f"v_permlane{sw}_swap_b32 v{x}, v{t_}"); o(f"v_add_f32 v{x}, v{x}, v{t_}")
    else:
        o(f"s_add_u32 s46, s6, {WS_STAT}"); o("s_addc_u32 s47, s7, 0")
        o("v_lshlrev_b32 v9, 3, v5")
        o("s_mov_b64 exec, 0xffff")
        for h in range(2):
            o(f"global_atomic_add_f32 v9, v{S1+h}, s[46:47] offset:{h*128}")
            o(f"global_atomic_add_f32 v9, v{S2+h}, s[46:47] offset:{h*128+4}")
        o("s_mov_b64 exec, -1")
        o("s_waitcnt vmcnt(0)")
        pst(o, 3)
        o(f"s_add_u32 s48, s6, {WS_CNT}"); o("s_addc_u32 s49, s7, 0")
        o("s_lshr_b32 s59, s58, 5"); o("s_lshl_b32 s26, s59, 7"); o(f"s_add_u32 s26, s26, {CNT_ST}")
        o("v_mov_b32 v14, s26"); o("v_mov_b32 v15, 1")
        o("s_mov_b64 exec, 1"); o("global_atomic_add v14, v15, s[48:49]"); o("s_mov_b64 exec, -1")
        o("s_mov_b32 s50, 0x200000")
        poll_ge(A, 48, 14, 16, f"{name}_st", 15, 50, sleep=6)
        for h in range(2): o(f"global_load_dwordx2 {v(S1+2*h if False else U+8+2*h,2)}, v9, s[46:47] offset:{h*128} sc1")
        o("s_waitcnt vmcnt(0)")
    pst(o, 4)
    for k in (2, ):
        for e in range(16): o(f"v_add_f32 v{M+32+e}, 1.0, v{M+32+e}")
    RS = 128 + 32
    o("s_lshl_b32 s26, s3, 13")
    o(f"v_mul_u32_u24 v10, {RS}, v1"); o("v_lshl_add_u32 v10, v3, 1, v10"); o("v_add_u32 v10, s26, v10")
    for h in range(2):
        mu, sq = U + 8 + 2 * h, U + 9 + 2 * h
        o(f"v_mul_f32 v{mu}, {fbits(1/1024)}, v{mu}")
        o(f"v_mul_f32 v{sq}, {fbits(1/1024)}, v{sq}")
        o(f"v_fma_f32 v{sq}, -v{mu}, v{mu}, v{sq}")
        o(f"v_max_f32 v{sq}, 0, v{sq}")
        o(f"v_add_f32 v{sq}, {fbits(1e-5)}, v{sq}")
        o(f"v_rsq_f32 v{sq}, v{sq}")
        for p in range(2):
            Y = E + 4 * (h * 4 + 2 * p)
            for e in range(8):
                o(f"v_sub_f32 v{Y+e}, v{Y+e}, v{mu}"); o(f"v_mul_f32 v{Y+e}, v{Y+e}, v{sq}")
                o(f"v_fma_f32 v{Y+e}, v{Y+e}, v{M+32+8*p+e}, v{M+16+8*p+e}")
            P = XR + 8 * h + 4 * p
            for d in range(4): o(f"v_cvt_pk_bf16_f32 v{P+d}, v{Y+2*d}, v{Y+2*d+1}")
            o(f"ds_write_b128 v10, {v(P,4)} offset:{h*16*RS + p*64}")
    o("s_waitcnt lgkmcnt(0)")
    o("v_lshrrev_b32 v2, 4, v0"); o("v_lshrrev_b32 v11, 2, v1"); o("v_lshl_add_u32 v11, v2, 3, v11"); o(f"v_mul_u32_u24 v11, {RS}, v11")
    o("v_and_b32 v12, 3, v1"); o("v_lshl_add_u32 v11, v12, 3, v11"); o("v_add_u32 v11, s26, v11")
    for j in range(4):
        o(f"ds_read_b64_tr_b16 {v(XR+4*j,2)}, v11 offset:{j*32}"); o(f"ds_read_b64_tr_b16 {v(XR+4*j+2,2)}, v11 offset:{j*32+4*RS}")
    gfun(o, 12, 1, 13); o("v_xor_b32 v12, v12, v2"); o("v_lshl_add_u32 v12, v1, 2, v12"); o("v_lshlrev_b32 v12, 4, v12")
    o("s_lshl_b32 s26, s59, 16"); o(f"s_lshl_b32 s27, s25, 6"); o("s_add_u32 s26, s26, s27"); o(f"s_add_u32 s26, s26, {WS_H2T}")
    o("v_add_u32 v12, s26, v12")
    o("s_waitcnt lgkmcnt(0)")
    for j in range(4): o(f"global_store_dwordx4 v12, {v(XR+4*j,4)}, s[6:7] offset:{j*1024}")
    o("s_waitcnt vmcnt(0)")
    pend(o, 0)
    A.label(f"L_{name}_end"); o("s_endpgm")
    return kernel_head(name) + A.finish() + kernel_desc(name, max(G.vEnd2, E + 144), G.nacc), 8 * G.SB

def gen_g2s(name="g2s_kernel"):
    A = Asm(); o = A
    head(o, name, [(52, KA_W2), (54, KA_B2), (60, KA_OUT)])
    srd(o, sX, 52, 0, 3584 * 4096); srd(o, sY, 6, WS_U, 112 * 64 * 1024)
    sSt_, sDt, sKh, sTile = 4, 5, 56, 57
    o("s_and_b32 s25, s2, 7"); o("s_lshr_b32 s26, s2, 3"); o(f"s_and_b32 s{sKh}, s25, 1")
    o(f"s_lshr_b32 s{sDt}, s25, 2"); o(f"s_lshl_b32 s{sDt}, s{sDt}, 2"); o("s_and_b32 s27, s26, 3"); o(f"s_add_u32 s{sDt}, s{sDt}, s27")
    o(f"s_bfe_u32 s{sSt_}, s25, 0x10001"); o(f"s_lshl_b32 s{sSt_}, s{sSt_}, 3"); o("s_lshr_b32 s27, s26, 2"); o(f"s_add_u32 s{sSt_}, s{sSt_}, s27")
    o(f"s_lshl_b32 s{sTile}, s{sSt_}, 3"); o(f"s_add_u32 s{sTile}, s{sTile}, s{sDt}")
    o(f"s_lshl_b32 s{sOffX}, s{sSt_}, 8"); o(f"s_mul_i32 s25, s{sKh}, {1792*4096}"); o(f"s_add_u32 s{sOffX}, s{sOffX}, s25")
    o(f"s_lshl_b32 s{sOffY}, s{sDt}, 13"); o(f"s_mul_i32 s25, s{sKh}, {56*65536}"); o(f"s_add_u32 s{sOffY}, s{sOffY}, s25")
    G = Gemm(A, 4, 4, True, "h")
    o(f"s_mul_i32 s{sM0[0]}, s3, {G.NIX*1024}"); o(f"s_mul_i32 s{sM0[1]}, s3, {G.NIY*1024}")
    G.setup(3, 0, 4096, 0, [1, 2, 3, 4, 5, 6], [25, 26, 27, 28])
    gen_loop3(G, sX, sY, sOffX, sOffY, sM0, sK, 32 * 4096, 64 * 1024, 56, f"L_{name}", K=2, R=8)
    pst(o, 1)
    E = G.vF
    keep = lambda kh: [(2 * kh + h, jy) for h in range(2) for jy in range(4)]
    send = lambda kh: keep(kh ^ 1)
    o("v_and_b32 v1, 15, v0"); o("v_lshrrev_b32 v2, 4, v0"); o("v_and_b32 v3, 1, v2"); o("v_lshrrev_b32 v2, 1, v2")
    o("v_lshlrev_b32 v3, 4, v3"); o("v_lshl_add_u32 v3, v2, 3, v3")
    o(f"s_lshl_b32 s25, s{sDt}, 7"); o("s_lshr_b32 s26, s3, 1"); o("s_lshl_b32 s26, s26, 6"); o("s_add_u32 s25, s25, s26")
    o("v_add_u32 v4, s25, v3")
    o(f"s_lshl_b32 s58, s{sSt_}, 7"); o("s_and_b32 s26, s3, 1"); o("s_lshl_b32 s26, s26, 6"); o("s_add_u32 s58, s58, s26"); o(f"s_lshl_b32 s26, s{sKh}, 5"); o("s_add_u32 s58, s58, s26")
    o("v_add_u32 v5, s58, v1")
    o("v_lshlrev_b32 v6, 11, v5"); o("v_lshl_add_u32 v6, v4, 1, v6")
    o("v_lshlrev_b32 v7, 2, v4")
    M = E + 64; XR = E + 112; B2 = E + 100
    o(f"s_add_u32 s44, s6, {WS_MOD + 5*4096}"); o("s_addc_u32 s45, s7, 0")
    for p in range(2):
        o(f"global_load_dwordx4 {v(M+8*p,4)}, v7, s[44:45] offset:{p*128}"); o(f"global_load_dwordx4 {v(M+8*p+4,4)}, v7, s[44:45] offset:{p*128+16}")
    o(f"s_add_u32 s44, s6, {WS_X1}"); o("s_addc_u32 s45, s7, 0")
    o("v_lshlrev_b32 v9, 1, v5")
    for h in range(2):
        o(f"v_add_u32 v8, {h*16*2048}, v6")
        for p in range(2): o(f"global_load_dwordx4 {v(XR+8*h+4*p,4)}, v8, s[44:45] offset:{p*64}")
        o(f"global_load_ushort v{B2+h}, v9, s[54:55] offset:{h*32}")
    exchange(A, G, keep, send, sTile, sKh, WS_XCH + 8 * MiB, CNT_XG, name + "x")
    pst(o, 2)
    for h in range(2):
        for p in range(2):
            a_, b_ = E + 4 * (h * 4 + 2 * p), E + 4 * (h * 4 + 2 * p + 1)
            for r in range(4): o(f"v_permlane16_swap_b32 v{a_+r}, v{b_+r}")
    o("s_waitcnt vmcnt(0)")
    U = E + 128
    for h in range(2):
        o(f"v_lshlrev_b32 v{B2+h}, 16, v{B2+h}")
        o(f"v_add_u32 v8, {h*16*2048}, v6")
        for p in range(2):
            Y = E + 4 * (h * 4 + 2 * p)
            unpack8(o, U, XR + 8 * h + 4 * p)
            for e in range(8): o(f"v_add_f32 v{Y+e}, v{Y+e}, v{B2+h}")
            for e in range(8): o(f"v_fma_f32 v{Y+e}, v{Y+e}, v{M+8*p+e}, v{U+e}")
            P = XR + 8 * h + 4 * p
            for d in range(4): o(f"v_cvt_pk_bf16_f32 v{P+d}, v{Y+2*d}, v{Y+2*d+1}")
            o(f"global_store_dwordx4 v8, {v(P,4)}, s[60:61] offset:{p*64}")
    o("s_waitcnt vmcnt(0)")
    pend(o, 1)
    A.label(f"L_{name}_end"); o("s_endpgm")
    return kernel_head(name) + A.finish() + kernel_desc(name, max(G.vEnd2, E + 144), G.nacc), 8 * G.SB
```

```python
from asmlib import *
from layout import *
from gemm import Gemm, gen_loop, gen_loop2
from k_qkv import srd
from k_small import fbits, LOG2E, wave_sum, ln_rows, unpack8, gfun
from k_attn import attn_body
from mega import qkv_tile
import rec12 as rec
import re, math

CNT_MODA, CNT_MODB, CNT_MODC = 40960, 40960 + 128, 40960 + 256
CNT_LN1 = 41984
CNT_RLY = 24576
SLOW_OFF = 65536

sW, sXb, sI, sWS = 3, 4, 5, 6
sCNT, sB, sCh, sRound, sChk, sLim = 60, 62, 63, 64, 65, 66
sCt, sTok, sCntOff = 67, 68, 69
sDBG = 70
sFt, sDtG = 81, 82

def wait_cnt(A, off, target, tag, off_s=None, sleep=3):
    o = A
    o(f"s_cmp_lg_u32 s{sW}, 0"); o(f"s_cbranch_scc1 L_wc_{tag}_b")
    if off_s is None: o(f"v_mov_b32 v2, {off}")
    else:
        o(f"s_add_u32 s44, s{off_s}, {off}"); o("v_mov_b32 v2, s44")
    A.label(f"L_wc_{tag}")
    o(f"global_load_dword v3, v2, {s(sCNT,2)} sc1")
    o("s_waitcnt vmcnt(0)")
    o("v_readfirstlane_b32 s44, v3")
    o(f"s_cmp_ge_u32 s44, {target}"); o(f"s_cbranch_scc1 L_wc_{tag}_b")
    o(f"s_sleep {sleep}")
    o(f"s_sub_u32 s{sLim}, s{sLim}, 1"); o(f"s_cbranch_scc0 L_wc_{tag}")
    o(f"s_mov_b32 s{sLim}, 0")
    A.label(f"L_wc_{tag}_b")
    o("s_barrier")

def signal(A, off, tag, off_s=None):
    o = A
    o("s_waitcnt vmcnt(0)"); o("s_barrier")
    o(f"s_cmp_lg_u32 s{sW}, 0"); o(f"s_cbranch_scc1 L_sg_{tag}")
    if off_s is None: o(f"v_mov_b32 v2, {off}")
    else:
        o(f"s_add_u32 s44, s{off_s}, {off}"); o("v_mov_b32 v2, s44")
    o("v_mov_b32 v3, 1"); o("s_mov_b64 exec, 1")
    o(f"global_atomic_add v2, v3, {s(sCNT,2)}")
    o("s_mov_b64 exec, -1")
    A.label(f"L_sg_{tag}")

def mod_task(A, sCol, tag):
    o = A
    o("s_load_dwordx2 s[8:9], s[0:1], %d" % KA_WMOD)
    o("v_lshrrev_b32 v5, 2, v0"); o(f"s_lshl_b32 s12, s{sW}, 8"); o("v_add_u32 v5, s12, v5")
    o("v_lshlrev_b32 v6, 2, v5")
    o("s_mov_b32 s13, 12288"); o("v_mul_lo_u32 v7, v5, s13")
    o("v_and_b32 v26, 3, v0"); o("v_lshl_add_u32 v7, v26, 4, v7")
    o(f"s_lshl_b32 s12, s{sCol}, 1"); o("v_add_u32 v7, s12, v7")
    o("s_waitcnt lgkmcnt(0)")
    W = 32; Cc = 96; AC = 112
    for it in range(16):
        o(f"global_load_dwordx4 {v(W+4*it,4)}, v7, s[8:9]")
        o(f"v_add_u32 v7, {16*12288}, v7")
        o(f"ds_read_b32 v{Cc+it}, v6 offset:{it*64}")
    for e in range(8): o(f"v_mov_b32 v{AC+e}, 0")
    o("s_waitcnt lgkmcnt(0)")
    for it in range(16):
        o(f"s_waitcnt vmcnt({15-it})")
        for d in range(4):
            o(f"v_lshlrev_b32 v27, 16, v{W+4*it+d}")
            o(f"v_and_b32 v28, 0xffff0000, v{W+4*it+d}")
            o(f"v_fmac_f32 v{AC+2*d}, v27, v{Cc+it}")
            o(f"v_fmac_f32 v{AC+2*d+1}, v28, v{Cc+it}")
    for e in range(8):
        x = AC + e
        o(f"v_add_f32_dpp v{x}, v{x}, v{x} row_ror:4 row_mask:0xf bank_mask:0xf")
        o(f"v_add_f32_dpp v{x}, v{x}, v{x} row_ror:8 row_mask:0xf bank_mask:0xf")
        for sw in ("16", "32"):
            o(f"v_mov_b32 v27, v{x}"); o(f"v_permlane{sw}_swap_b32 v{x}, v27"); o(f"v_add_f32 v{x}, v{x}, v27")
    o(f"s_lshl_b32 s12, s{sW}, 7"); o("v_lshlrev_b32 v5, 5, v26"); o("v_add_u32 v5, s12, v5")
    o("s_mov_b64 exec, 0xf")
    o(f"ds_write_b128 v5, {v(AC,4)} offset:4096"); o(f"ds_write_b128 v5, {v(AC+4,4)} offset:4112")
    o("s_mov_b64 exec, -1")
    o("s_waitcnt lgkmcnt(0)"); o("s_barrier")
    o(f"s_cmp_lg_u32 s{sW}, 0"); o(f"s_cbranch_scc1 L_mod_{tag}_d")
    o("v_lshlrev_b32 v5, 2, v0")
    o("s_mov_b64 exec, 0xffffffff")
    for w in range(4): o(f"ds_read_b32 v{32+w}, v5 offset:{4096+w*128}")
    o("s_waitcnt lgkmcnt(0)")
    o("v_add_f32 v32, v32, v33"); o("v_add_f32 v34, v34, v35"); o("v_add_f32 v32, v32, v34")
    o("v_cvt_pk_bf16_f32 v32, v32, v32"); o("v_lshlrev_b32 v32, 16, v32")
    o(f"s_lshl_b32 s12, s{sCol}, 2"); o(f"s_add_u32 s12, s12, {WS_MOD}"); o("v_add_u32 v5, s12, v5")
    o(f"global_store_dword v5, v32, {s(sWS,2)} sc1")
    o("s_mov_b64 exec, -1")
    A.label(f"L_mod_{tag}_d")

def silu_to_lds(A, pre=None):
    o = A
    if pre: o(f"s_mov_b64 s[8:9], s[{pre}:{pre+1}]")
    else: o("s_load_dwordx2 s[8:9], s[0:1], %d" % KA_C)
    o(f"s_lshl_b32 s12, s{sW}, 6"); o("v_add_u32 v4, s12, v0")
    o("v_lshlrev_b32 v5, 3, v4")
    o("s_waitcnt lgkmcnt(0)")
    o("global_load_dwordx2 v[12:13], v5, s[8:9]")
    o("s_waitcnt vmcnt(0)")
    o("v_lshlrev_b32 v14, 16, v12"); o("v_and_b32 v15, 0xffff0000, v12"); o("v_lshlrev_b32 v16, 16, v13"); o("v_and_b32 v17, 0xffff0000, v13")
    o(f"s_mov_b32 s12, {fbits(-LOG2E)}")
    for r in range(4):
        o(f"v_mul_f32 v{20+r}, s12, v{14+r}"); o(f"v_exp_f32 v{20+r}, v{20+r}"); o(f"v_add_f32 v{20+r}, 1.0, v{20+r}")
        o(f"v_rcp_f32 v{20+r}, v{20+r}"); o(f"v_mul_f32 v{20+r}, v{14+r}, v{20+r}")
    o("v_cvt_pk_bf16_f32 v24, v20, v21"); o("v_cvt_pk_bf16_f32 v25, v22, v23")
    o("v_lshlrev_b32 v20, 16, v24"); o("v_and_b32 v21, 0xffff0000, v24"); o("v_lshlrev_b32 v22, 16, v25"); o("v_and_b32 v23, 0xffff0000, v25")
    o("v_lshlrev_b32 v4, 4, v4")
    o("ds_write_b128 v4, v[20:23]")
    o("s_waitcnt lgkmcnt(0)"); o("s_barrier")

def ln1_task(A):
    o = A
    o("s_load_dwordx2 s[8:9], s[0:1], %d" % KA_X)
    o("v_lshlrev_b32 v2, 4, v0"); o("v_lshlrev_b32 v3, 5, v0")
    o(f"s_add_u32 s12, s{sWS}, {WS_MOD}"); o(f"s_addc_u32 s13, s{sWS+1}, 0")
    SA, CA = 64, 80
    for h in range(2):
        for q in range(2): o(f"global_load_dwordx4 {v(SA+8*h+4*q,4)}, v3, s[12:13] offset:{h*2048+q*16}")
    o("s_add_u32 s12, s12, 4096"); o("s_addc_u32 s13, s13, 0")
    for h in range(2):
        for q in range(2): o(f"global_load_dwordx4 {v(CA+8*h+4*q,4)}, v3, s[12:13] offset:{h*2048+q*16}")
    o(f"s_lshl_b32 s14, s{sB}, 4"); o(f"s_lshl_b32 s15, s{sW}, 2"); o("s_add_u32 s14, s14, s15")
    o("s_waitcnt lgkmcnt(0)")
    o("s_lshl_b32 s15, s14, 11"); o("s_add_u32 s10, s8, s15"); o("s_addc_u32 s11, s9, 0")
    RAW = 96
    for r in range(4):
        off = r * 2048
        if off >= 4096:
            if r == 2: o("s_add_u32 s10, s10, 4096"); o("s_addc_u32 s11, s11, 0")
            off -= 4096
        o(f"global_load_dwordx4 {v(RAW+8*r,4)}, v2, s[10:11] offset:{off}")
        o(f"global_load_dwordx4 {v(RAW+8*r+4,4)}, v2, s[10:11] offset:{off+1024}")
    o("s_waitcnt vmcnt(8)")
    for e in range(16): o(f"v_add_f32 v{CA+e}, 1.0, v{CA+e}")
    X = [32, 48]
    for pr in range(2):
        o(f"s_waitcnt vmcnt({4 if pr == 0 else 0})") if pr == 0 else None
        if pr == 1: o("s_waitcnt vmcnt(4)")
        for r in range(2):
            unpack8(o, X[r], RAW + 8 * (2 * pr + r)); unpack8(o, X[r] + 8, RAW + 8 * (2 * pr + r) + 4)
        ln_rows(o, X, 2, [4, 5], 1e-5)
        for r in range(2):
            R0 = 8 + 8 * r
            for e in range(16): o(f"v_fma_f32 v{X[r]+e}, v{X[r]+e}, v{CA+e}, v{SA+e}")
            for h in range(2):
                for d in range(4): o(f"v_cvt_pk_bf16_f32 v{R0+4*h+d}, v{X[r]+8*h+2*d}, v{X[r]+8*h+2*d+1}")
            o(f"s_add_u32 s16, s14, {2*pr+r}"); o("s_lshr_b32 s17, s16, 4"); o("s_and_b32 s16, s16, 15")
            o("s_lshr_b32 s18, s16, 2"); o("s_lshr_b32 s19, s18, 1"); o("s_and_b32 s18, s18, 1"); o("s_xor_b32 s18, s18, s19"); o("s_lshl_b32 s18, s18, 1"); o("s_or_b32 s18, s18, s19")
            o("v_and_b32 v4, 3, v0"); o("v_xor_b32 v4, s18, v4"); o("v_lshlrev_b32 v4, 4, v4")
            o("v_lshrrev_b32 v5, 2, v0"); o("v_lshl_add_u32 v4, v5, 17, v4")
            o("s_lshl_b32 s17, s17, 10"); o("s_lshl_b32 s16, s16, 6"); o("s_add_u32 s17, s17, s16"); o(f"s_add_u32 s17, s17, {WS_H}")
            o("v_add_u32 v4, s17, v4")
            o(f"global_store_dwordx4 v4, {v(R0,4)}, {s(sWS,2)} sc1")
            o(f"v_add_u32 v4, {16*131072}, v4")
            o(f"global_store_dwordx4 v4, {v(R0+4,4)}, {s(sWS,2)} sc1")
        if pr == 0: o("s_nop 1")

def op_task(A):
    o = A
    S = 4; SBW = 6144
    sX, sY = 8, 12
    o("s_load_dwordx2 s[40:41], s[0:1], %d" % KA_WO); o("s_load_dwordx2 s[46:47], s[0:1], %d" % KA_X)
    o("s_waitcnt lgkmcnt(0)")
    srd(o, sX, 40, 0, 8 * MiB); srd(o, sY, sWS, WS_O, 16 * MiB)
    sDt, sTg = 48, 49
    o(f"s_lshl_b32 s{sDt}, s{sXb}, 1"); o(f"s_and_b32 s20, s{sI}, 1"); o(f"s_add_u32 s{sDt}, s{sDt}, s20")
    o(f"s_lshr_b32 s{sTg}, s{sI}, 1"); o(f"s_lshl_b32 s20, s{sCh}, 3"); o(f"s_add_u32 s{sTg}, s{sTg}, s20")
    sOX, sOY, sLb, sRd, sDm, sK = 20, 21, 22, 23, 24, 25
    o(f"s_lshl_b32 s{sOX}, s{sDt}, 7"); o(f"s_lshl_b32 s26, s{sW}, 16"); o(f"s_add_u32 s{sOX}, s{sOX}, s26")
    o(f"s_lshl_b32 s{sOY}, s{sTg}, 11"); o(f"s_lshl_b32 s26, s{sW}, 17"); o(f"s_add_u32 s{sOY}, s{sOY}, s26")
    o(f"s_mul_i32 s{sLb}, s{sW}, {S*SBW}")
    vi, vg, t0, t1, t2, t3 = 1, 2, 3, 4, 5, 6
    vXr, vYr, vXd, vYd, vC = 8, 12, 13, 17, 20
    o(f"v_and_b32 v{vi}, 15, v0"); o(f"v_lshrrev_b32 v{vg}, 4, v0")
    o(f"v_lshrrev_b32 v{t0}, 2, v{vi}"); o(f"v_and_b32 v{t1}, 1, v{vg}"); o(f"v_lshrrev_b32 v{t2}, 1, v{vg}")
    o(f"v_lshlrev_b32 v{t3}, 4, v{t2}"); o(f"v_lshl_add_u32 v{t3}, v{t0}, 1, v{t3}"); o(f"v_add_u32 v{t3}, v{t3}, v{t1}")
    o(f"v_lshlrev_b32 v{t3}, 7, v{t3}"); o(f"v_and_b32 v{t1}, 3, v{vi}"); o(f"v_lshl_add_u32 v{t3}, v{t1}, 3, v{t3}")
    o(f"v_add_u32 v{t3}, s{sLb}, v{t3}")
    for j in range(4):
        o(f"v_xor_b32 v{t1}, {j}, v{t0}"); o(f"v_lshl_add_u32 v{vXr+j}, v{t1}, 5, v{t3}")
    gfun(o, t2, vi, t1); o(f"v_xor_b32 v{t2}, v{t2}, v{vg}"); o(f"v_lshlrev_b32 v{t2}, 4, v{t2}"); o(f"v_lshl_add_u32 v{t2}, v{vi}, 6, v{t2}")
    o(f"s_add_u32 s26, s{sLb}, 4096"); o(f"v_add_u32 v{vYr}, s26, v{t2}")
    o(f"v_lshrrev_b32 v{t0}, 3, v0"); o(f"v_and_b32 v{t1}, 7, v0")
    o(f"v_lshrrev_b32 v{t3}, 1, v{t0}"); o(f"v_and_b32 v{t2}, 1, v{t0}"); o(f"v_lshl_add_u32 v{t2}, v{t2}, 3, v{t3}")
    o(f"v_lshrrev_b32 v{vi}, 1, v{t1}"); o(f"v_xor_b32 v{vi}, v{vi}, v{t3}"); o(f"v_lshlrev_b32 v{vi}, 5, v{vi}")
    o(f"v_and_b32 v{t1}, 1, v{t1}"); o(f"v_lshl_or_b32 v{vi}, v{t1}, 4, v{vi}")
    o(f"v_lshl_add_u32 v{vXd}, v{t2}, 11, v{vi}")
    for t in range(1, 4): o(f"v_add_u32 v{vXd+t}, {(4*(t&1) + 16*(t>>1))*2048}, v{vXd}")
    o(f"v_lshlrev_b32 v{vYd}, 4, v0"); o(f"v_add_u32 v{vYd+1}, 1024, v{vYd}")
    F = 28; FS = 24
    AC = 80
    def dma():
        L = []
        for t in range(4): L.append([f"s_add_u32 m0, s26, {t*1024}", f"buffer_load_dwordx4 v{vXd+t}, {s(sX,4)}, s{sOX} offen lds"])
        for t in range(2): L.append([f"s_add_u32 m0, s26, {4096+t*1024}", f"buffer_load_dwordx4 v{vYd+t}, {s(sY,4)}, s{sOY} offen lds"])
        return L
    def adv(r): return [f"s_add_u32 s{r}, s{r}, {SBW}", f"s_cmp_eq_u32 s{r}, {S*SBW}", f"s_cselect_b32 s{r}, 0, s{r}"]
    def dma_all():
        o(f"s_add_u32 s26, s{sLb}, s{sDm}")
        for g in dma():
            o(g[0]); o("s_nop 0"); o(g[1])
        o(f"s_add_u32 s{sOX}, s{sOX}, {4*32*2048}"); o(f"s_add_u32 s{sOY}, s{sOY}, {4*131072}")
        for x in adv(sDm): o(x)
    def rd(ph):
        for j in range(5): o(f"v_add_u32 v{vC+j}, s{sRd}, v{(vXr+j) if j < 4 else vYr}")
        for j in range(2): o(f"ds_read_b128 {v(F+ph*FS+16+4*j,4)}, v{vC+4} offset:{j*1024}")
        for j in range(4):
            o(f"ds_read_b64_tr_b16 {v(F+ph*FS+4*j,2)}, v{vC+j}"); o(f"ds_read_b64_tr_b16 {v(F+ph*FS+4*j+2,2)}, v{vC+j} offset:1024")
        for x in adv(sRd): o(x)
    o(f"s_mov_b32 s{sDm}, 0"); o(f"s_mov_b32 s{sRd}, 0")
    for st in range(S): dma_all()
    o(f"s_waitcnt vmcnt({6*(S-1)})")
    rd(0)
    def iteration(ph, first):
        o(f"s_waitcnt vmcnt({6*(S-2)}) lgkmcnt(0)")
        dma_all()
        rd(ph ^ 1)
        for jy in range(2):
            for jx in range(4):
                d = AC + (jx * 2 + jy) * 4
                c = "0" if first else v(d, 4)
                o(f"v_mfma_f32_16x16x32_bf16 {v(d,4)}, {v(F+ph*FS+4*jx,4)}, {v(F+ph*FS+16+4*jy,4)}, {c}")
    iteration(0, True); iteration(1, False)
    o(f"s_mov_b32 s{sK}, 15")
    A.label("L_op_loop")
    iteration(0, False); iteration(1, False)
    o(f"s_sub_u32 s{sK}, s{sK}, 1"); o(f"s_cmp_lg_u32 s{sK}, 0"); o("s_cbranch_scc1 L_op_loop")
    o("s_waitcnt vmcnt(0) lgkmcnt(0)")
    o("s_barrier")
    o("v_lshlrev_b32 v1, 4, v0"); o(f"s_lshl_b32 s26, s{sW}, 13"); o("v_add_u32 v2, s26, v1")
    for t in range(8): o(f"ds_write_b128 v2, {v(AC+4*t,4)} offset:{t*1024}")
    o("v_and_b32 v3, 15, v0"); o("v_lshrrev_b32 v4, 4, v0"); o("v_and_b32 v5, 1, v4"); o("v_lshrrev_b32 v4, 1, v4")
    o("v_lshlrev_b32 v5, 4, v5"); o("v_lshl_add_u32 v5, v4, 3, v5")
    o(f"s_lshl_b32 s26, s{sDt}, 6"); o(f"s_and_b32 s27, s{sW}, 1"); o("s_lshl_b32 s27, s27, 5"); o("s_add_u32 s26, s26, s27")
    o("v_add_u32 v5, s26, v5")
    o(f"s_lshl_b32 s26, s{sTg}, 5"); o(f"s_lshr_b32 s27, s{sW}, 1"); o("s_lshl_b32 s27, s27, 4"); o("s_add_u32 s26, s26, s27")
    o("v_add_u32 v3, s26, v3")
    o("v_lshlrev_b32 v6, 11, v3"); o("v_lshl_add_u32 v6, v5, 1, v6")
    o("v_lshlrev_b32 v7, 2, v5")
    o(f"s_add_u32 s44, s{sWS}, {WS_MOD + 2*4096}"); o(f"s_addc_u32 s45, s{sWS+1}, 0")
    GA, XR = 28, 36
    o(f"global_load_dwordx4 {v(GA,4)}, v7, s[44:45]"); o(f"global_load_dwordx4 {v(GA+4,4)}, v7, s[44:45] offset:16")
    o(f"global_load_dwordx4 {v(XR,4)}, v6, s[46:47]")
    o("s_waitcnt lgkmcnt(0)"); o("s_barrier")
    o(f"s_and_b32 s26, s{sW}, 1"); o("s_lshl_b32 s26, s26, 12"); o(f"s_lshr_b32 s27, s{sW}, 1"); o("s_lshl_b32 s27, s27, 10"); o("s_add_u32 s26, s26, s27")
    o("v_add_u32 v2, s26, v1")
    R = 48
    for sw in range(4):
        o(f"ds_read_b128 {v(R+8*sw,4)}, v2 offset:{sw*8192}"); o(f"ds_read_b128 {v(R+8*sw+4,4)}, v2 offset:{sw*8192+2048}")
    o("s_waitcnt lgkmcnt(0)")
    for e in range(8):
        o(f"v_add_f32 v{R+e}, v{R+e}, v{R+8+e}"); o(f"v_add_f32 v{R+16+e}, v{R+16+e}, v{R+24+e}")
    for e in range(8): o(f"v_add_f32 v{R+e}, v{R+e}, v{R+16+e}")
    for r in range(4): o(f"v_permlane16_swap_b32 v{R+r}, v{R+4+r}")
    o("s_waitcnt vmcnt(0)")
    U = 40 + 40
    unpack8(o, U, XR)
    for e in range(8): o(f"v_fma_f32 v{R+e}, v{R+e}, v{GA+e}, v{U+e}")
    for d in range(4): o(f"v_cvt_pk_bf16_f32 v{XR+d}, v{R+2*d}, v{R+2*d+1}")
    o(f"s_add_u32 s44, s{sWS}, {WS_X1}"); o(f"s_addc_u32 s45, s{sWS+1}, 0")
    o(f"global_store_dwordx4 v6, {v(XR,4)}, s[44:45] sc1")

def ln2_task(A):
    o = A
    o(f"s_lshl_b32 s14, s{sCh}, 3"); o(f"s_add_u32 s14, s14, s{sXb}")
    o("v_lshlrev_b32 v2, 4, v0")
    o(f"s_lshl_b32 s15, s14, 16"); o(f"s_lshl_b32 s16, s{sW}, 14"); o("s_add_u32 s15, s15, s16"); o(f"s_add_u32 s15, s15, {WS_X1}")
    o(f"s_add_u32 s10, s{sWS}, s15"); o(f"s_addc_u32 s11, s{sWS+1}, 0")
    RAW = 96
    for r in range(8):
        if r and r % 2 == 0: o("s_add_u32 s10, s10, 4096"); o("s_addc_u32 s11, s11, 0")
        off = (r % 2) * 2048
        o(f"global_load_dwordx4 {v(RAW+8*r,4)}, v2, s[10:11] offset:{off}"); o(f"global_load_dwordx4 {v(RAW+8*r+4,4)}, v2, s[10:11] offset:{off+1024}")
    o("v_lshrrev_b32 v3, 3, v0"); o("v_and_b32 v4, 7, v0")
    o("v_lshlrev_b32 v5, 11, v3"); o("v_lshl_add_u32 v5, v4, 4, v5"); o(f"s_lshl_b32 s16, s{sI}, 7"); o("v_add_u32 v5, s16, v5")
    o(f"s_add_u32 s10, s{sWS}, s15"); o(f"s_addc_u32 s11, s{sWS+1}, 0")
    SL = 24
    o(f"global_load_dwordx4 {v(SL,4)}, v5, s[10:11]")
    o("v_lshlrev_b32 v6, 5, v4"); o(f"s_lshl_b32 s16, s{sI}, 8"); o("v_add_u32 v6, s16, v6")
    o(f"s_add_u32 s12, s{sWS}, {WS_MOD + 3*4096}"); o(f"s_addc_u32 s13, s{sWS+1}, 0")
    SB_, CB_ = 64, 72
    o(f"global_load_dwordx4 {v(SB_,4)}, v6, s[12:13]"); o(f"global_load_dwordx4 {v(SB_+4,4)}, v6, s[12:13] offset:16")
    o("s_add_u32 s12, s12, 4096"); o("s_addc_u32 s13, s13, 0")
    o(f"global_load_dwordx4 {v(CB_,4)}, v6, s[12:13]"); o(f"global_load_dwordx4 {v(CB_+4,4)}, v6, s[12:13] offset:16")
    vMean, vRs, X, sm, t = 80, 81, 32, 7, 8
    for r in range(8):
        o(f"s_waitcnt vmcnt({5 + 2*(7-r)})")
        unpack8(o, X, RAW + 8 * r); unpack8(o, X + 8, RAW + 8 * r + 4)
        o(f"v_add_f32 v{sm}, v{X}, v{X+1}")
        for e in range(2, 16): o(f"v_add_f32 v{sm}, v{sm}, v{X+e}")
        wave_sum(o, sm, t)
        o(f"v_mul_f32 v{sm}, {fbits(1.0/1024)}, v{sm}")
        for e in range(16): o(f"v_sub_f32 v{X+e}, v{X+e}, v{sm}")
        o(f"v_mul_f32 v9, v{X}, v{X}")
        for e in range(1, 16): o(f"v_fmac_f32 v9, v{X+e}, v{X+e}")
        wave_sum(o, 9, t)
        o(f"v_mov_b32 v{t}, {fbits(1e-5)}"); o(f"v_fmac_f32 v{t}, {fbits(1.0/1024)}, v9"); o(f"v_rsq_f32 v{t}, v{t}")
        o(f"v_cmp_eq_u32 vcc, {r}, v3")
        o(f"v_cndmask_b32 v{vMean}, v{vMean}, v{sm}, vcc"); o(f"v_cndmask_b32 v{vRs}, v{vRs}, v{t}, vcc")
    o("s_waitcnt vmcnt(0)")
    unpack8(o, X, SL)
    for e in range(8):
        o(f"v_sub_f32 v{X+e}, v{X+e}, v{vMean}"); o(f"v_mul_f32 v{X+e}, v{X+e}, v{vRs}")
        o(f"v_add_f32 v{CB_+e}, 1.0, v{CB_+e}"); o(f"v_fma_f32 v{X+e}, v{X+e}, v{CB_+e}, v{SB_+e}")
    for d in range(4): o(f"v_cvt_pk_bf16_f32 v{SL+d}, v{X+2*d}, v{X+2*d+1}")
    RS = 128 + 32
    o(f"s_lshl_b32 s16, s{sW}, 3"); o("v_add_u32 v5, s16, v3"); o(f"v_mul_u32_u24 v5, {RS}, v5"); o("v_lshl_add_u32 v5, v4, 4, v5")
    o(f"ds_write_b128 v5, {v(SL,4)}")
    o("s_waitcnt lgkmcnt(0)"); o("s_barrier")
    o("v_and_b32 v5, 15, v0"); o("v_lshrrev_b32 v6, 4, v0")
    o("v_lshrrev_b32 v7, 2, v5"); o("v_lshl_add_u32 v7, v6, 3, v7"); o(f"v_mul_u32_u24 v7, {RS}, v7")
    o("v_and_b32 v8, 3, v5"); o("v_lshl_add_u32 v7, v8, 3, v7"); o(f"s_lshl_b32 s16, s{sW}, 5"); o("v_add_u32 v7, s16, v7")
    o(f"ds_read_b64_tr_b16 {v(SL,2)}, v7"); o(f"ds_read_b64_tr_b16 {v(SL+2,2)}, v7 offset:{4*RS}")
    gfun(o, 8, 5, 9); o("v_xor_b32 v8, v8, v6"); o("v_lshl_add_u32 v8, v5, 2, v8"); o("v_lshlrev_b32 v8, 4, v8")
    o("s_lshl_b32 s16, s14, 16"); o(f"s_lshl_b32 s17, s{sI}, 12"); o("s_add_u32 s16, s16, s17"); o(f"s_lshl_b32 s17, s{sW}, 10"); o("s_add_u32 s16, s16, s17"); o(f"s_add_u32 s16, s16, {WS_H2T}")
    o("v_add_u32 v8, s16, v8")
    o("s_waitcnt lgkmcnt(0)")
    o(f"global_store_dwordx4 v8, {v(SL,4)}, {s(sWS,2)} sc1")

def g1_partial(A, opt):
    o = A
    sX, sY = 8, 12
    o("s_load_dwordx2 s[40:41], s[0:1], %d" % KA_W1); o("s_waitcnt lgkmcnt(0)")
    srd(o, sX, 40, 0, 2048 * 7168); srd(o, sY, sWS, WS_H2T, 4 * MiB)
    o(f"s_add_u32 s26, s{sCh}, 1"); o(f"s_lshl_b32 s{sY+2}, s26, 19")
    o(f"s_mul_i32 s{sX+2}, s26, {256*7168}")
    G = Gemm(A, 8, 4, False, "g", accbase=128)
    sOffX, sOffY, sM0, sK = 20, 21, [22, 23], 24
    o(f"s_mul_i32 s{sOffX}, s{sCh}, {256*7168}"); o(f"s_lshl_b32 s26, s{sI}, 9"); o(f"s_add_u32 s{sOffX}, s{sOffX}, s26")
    o(f"s_lshl_b32 s{sOffY}, s{sCh}, 19"); o(f"s_lshl_b32 s26, s{sXb}, 13"); o(f"s_add_u32 s{sOffY}, s{sOffY}, s26")
    o(f"s_mul_i32 s{sM0[0]}, s{sW}, {G.NIX*1024}"); o(f"s_mul_i32 s{sM0[1]}, s{sW}, {G.NIY*1024}")
    G.setup(sW, 0, 7168, 0, [1, 2, 3, 4, 5, 6], [25, 26, 27, 28])
    o2 = dict(opt); o2["accum"] = 1
    gen_loop(G, sX, sY, sOffX, sOffY, sM0, sK, 32 * 7168, 64 * 1024, 8, "L_g1", opt=o2, sSt=[32, 33, 34])
    o("s_barrier")
    return G

def g1_epilogue(A, G, sF=sI, sD=sXb):
    o = A
    E = G.vF
    o("s_load_dwordx2 s[42:43], s[0:1], %d" % KA_B1)
    o("v_and_b32 v1, 15, v0"); o("v_lshrrev_b32 v2, 4, v0"); o("v_and_b32 v3, 1, v2"); o("v_lshrrev_b32 v2, 1, v2")
    o("v_lshlrev_b32 v4, 4, v3"); o("v_lshl_add_u32 v4, v2, 3, v4")
    o("v_lshl_or_b32 v2, v3, 1, v2")
    gfun(o, 3, 1, 5)
    o("v_xor_b32 v2, v2, v3"); o("v_lshl_add_u32 v2, v1, 2, v2"); o("v_lshlrev_b32 v2, 4, v2")
    o(f"s_lshl_b32 s25, s{sF}, 8"); o(f"s_and_b32 s26, s{sW}, 1"); o("s_lshl_b32 s26, s26, 7"); o("s_add_u32 s25, s25, s26")
    o("v_add_u32 v4, s25, v4"); o("v_lshlrev_b32 v4, 1, v4")
    BR = E + 64
    o("s_waitcnt lgkmcnt(0)")
    for jp in range(4): o(f"global_load_dwordx4 {v(BR+4*jp,4)}, v4, s[42:43] offset:{jp*64}")
    o("s_lshr_b32 s26, s25, 5"); o("s_lshl_b32 s26, s26, 16")
    o(f"s_lshl_b32 s27, s{sD}, 3"); o(f"s_lshr_b32 s28, s{sW}, 1"); o("s_lshl_b32 s28, s28, 2"); o("s_add_u32 s27, s27, s28"); o("s_lshl_b32 s27, s27, 10")
    o("s_add_u32 s26, s26, s27"); o(f"s_add_u32 s26, s26, {WS_U}")
    o(f"s_add_u32 s44, s{sWS}, s26"); o(f"s_addc_u32 s45, s{sWS+1}, 0")
    o("s_waitcnt vmcnt(0)")
    BF = E + 80
    c1 = -2.0 * math.sqrt(2.0 / math.pi) * LOG2E
    o(f"s_mov_b32 s46, {fbits(0.044715)}"); o(f"s_mov_b32 s47, {fbits(c1)}")
    k = 0
    for jp in range(4):
        unpack8(o, BF, BR + 4 * jp)
        for jy in range(4):
            T = E + 16 * (k % 3) + 4; k += 1
            ra, rb = G.accr(2 * jp, jy), G.accr(2 * jp + 1, jy)
            for r in range(4): o(f"v_accvgpr_read_b32 v{T+r}, a{ra+r}")
            for r in range(4): o(f"v_accvgpr_read_b32 v{T+4+r}, a{rb+r}")
            for r in range(4): o(f"v_permlane16_swap_b32 v{T+r}, v{T+4+r}")
            U = E + 48
            for e in range(8): o(f"v_add_f32 v{T+e}, v{T+e}, v{BF+e}")
            for e in range(8): o(f"v_mul_f32 v{U+e}, v{T+e}, v{T+e}")
            for e in range(8): o(f"v_fma_f32 v{U+e}, v{U+e}, s46, 1.0")
            for e in range(8): o(f"v_mul_f32 v{U+e}, v{U+e}, v{T+e}")
            for e in range(8): o(f"v_mul_f32 v{U+e}, s47, v{U+e}")
            for e in range(8): o(f"v_exp_f32 v{U+e}, v{U+e}")
            for e in range(8): o(f"v_add_f32 v{U+e}, 1.0, v{U+e}")
            for e in range(8): o(f"v_rcp_f32 v{U+e}, v{U+e}")
            for e in range(8): o(f"v_mul_f32 v{T+e}, v{T+e}, v{U+e}")
            P = T - 4
            for d in range(4): o(f"v_cvt_pk_bf16_f32 v{P+d}, v{T+2*d}, v{T+2*d+1}")
            o(f"v_add_u32 v5, {jp*65536 + jy*1024}, v2")
            o(f"global_store_dwordx4 v5, {v(P,4)}, s[44:45]")

def prefetch_task(A, ka, nbytes, tag):
    o = A
    per = nbytes // 128
    assert per % 4096 == 0 or True
    n4k = (per + 4095) // 4096
    o(f"s_load_dwordx2 s[40:41], s[0:1], {ka}"); o("s_waitcnt lgkmcnt(0)")
    srd(o, 8, 40, 0, nbytes)
    o(f"s_mul_i32 s20, s{sB}, {n4k*4096}"); o(f"s_lshl_b32 s21, s{sW}, 10"); o("s_add_u32 s20, s20, s21")
    o("v_lshlrev_b32 v2, 4, v0")
    o(f"s_mov_b32 s22, {n4k}")
    A.label(f"L_pf_{tag}")
    o("buffer_load_dwordx4 v[8:11], v2, s[8:11], s20 offen")
    o("s_add_u32 s20, s20, 4096"); o("s_sub_u32 s22, s22, 1"); o("s_cmp_lg_u32 s22, 0")
    o(f"s_cbranch_scc0 L_pf_{tag}_d")
    o("buffer_load_dwordx4 v[12:15], v2, s[8:11], s20 offen")
    o("s_add_u32 s20, s20, 4096"); o("s_sub_u32 s22, s22, 1"); o("s_cmp_lg_u32 s22, 0")
    o("s_waitcnt vmcnt(24)")
    o(f"s_cbranch_scc1 L_pf_{tag}")
    A.label(f"L_pf_{tag}_d")
    o("s_waitcnt vmcnt(0)")

def op_pass(A, ntok_tiles_log2, opt=None):
    opt = opt or {}
    o = A
    sX, sY = 8, 12
    o("s_load_dwordx2 s[40:41], s[0:1], %d" % KA_WO); o("s_load_dwordx2 s[46:47], s[0:1], %d" % KA_X)
    sDt, sTt = 48, 49
    o(f"s_lshr_b32 s{sDt}, s{sXb}, 1"); o(f"s_lshl_b32 s{sDt}, s{sDt}, 2"); o(f"s_and_b32 s20, s{sI}, 3"); o(f"s_add_u32 s{sDt}, s{sDt}, s20")
    o(f"s_and_b32 s{sTt}, s{sXb}, 1"); o(f"s_lshl_b32 s{sTt}, s{sTt}, 2"); o(f"s_lshr_b32 s20, s{sI}, 2"); o(f"s_add_u32 s{sTt}, s{sTt}, s20")
    o(f"s_cmp_ge_u32 s{sTt}, {1 << ntok_tiles_log2}"); o(f"s_cbranch_scc1 L_opp_skip{ntok_tiles_log2}")
    o(f"s_lshl_b32 s{sTt}, s{sTt}, 6"); o(f"s_add_u32 s{sTt}, s{sTt}, s{sTok}")
    o("s_waitcnt lgkmcnt(0)")
    srd(o, sX, 40, 0, 8 * MiB); srd(o, sY, sWS, WS_O, 16 * MiB)
    G = Gemm(A, 2, 2, False, "o")
    sOffX, sOffY, sM0, sK = 20, 21, [22, 23], 24
    o(f"s_lshl_b32 s{sOffX}, s{sDt}, 7"); o(f"s_lshl_b32 s{sOffY}, s{sTt}, 6")
    o(f"s_mul_i32 s{sM0[0]}, s{sW}, {G.NIX*1024}"); o(f"s_mul_i32 s{sM0[1]}, s{sW}, {G.NIY*1024}")
    G.setup(sW, 0, 2048, 0, [1, 2, 3, 4, 5, 6], [25, 26, 27, 28])
    gen_loop2(G, sX, sY, sOffX, sOffY, sM0, sK, 32 * 2048, 128 * 1024, 128, f"L_opp{ntok_tiles_log2}", K=opt.get("opK", 4), R=opt.get("opR", 16), sSt=[32, 33, 34])
    E = G.vF
    o("v_and_b32 v1, 15, v0"); o("v_lshrrev_b32 v2, 4, v0"); o("v_and_b32 v3, 1, v2"); o("v_lshrrev_b32 v2, 1, v2")
    o("v_lshlrev_b32 v3, 4, v3"); o("v_lshl_add_u32 v3, v2, 3, v3")
    o(f"s_lshl_b32 s25, s{sDt}, 6"); o(f"s_and_b32 s26, s{sW}, 1"); o("s_lshl_b32 s26, s26, 5"); o("s_add_u32 s25, s25, s26")
    o("v_add_u32 v3, s25, v3")
    o(f"s_lshr_b32 s26, s{sW}, 1"); o("s_lshl_b32 s26, s26, 5"); o(f"s_add_u32 s25, s{sTt}, s26")
    o("v_add_u32 v1, s25, v1")
    o("v_lshlrev_b32 v4, 11, v1"); o("v_lshl_add_u32 v4, v3, 1, v4")
    o("v_lshlrev_b32 v5, 2, v3")
    o(f"s_add_u32 s44, s{sWS}, {WS_MOD + 2*4096}"); o(f"s_addc_u32 s45, s{sWS+1}, 0")
    GA = E + 64; XR = E + 72
    o(f"global_load_dwordx4 {v(GA,4)}, v5, s[44:45]"); o(f"global_load_dwordx4 {v(GA+4,4)}, v5, s[44:45] offset:16")
    for jy in range(2):
        o(f"v_add_u32 v6, {jy*16*2048}, v4"); o(f"global_load_dwordx4 {v(XR+4*jy,4)}, v6, s[46:47]")
    o(f"s_add_u32 s44, s{sWS}, {WS_X1}"); o(f"s_addc_u32 s45, s{sWS+1}, 0")
    for jy in range(2):
        T = E + 16 * jy + 4
        for r in range(4): o(f"v_accvgpr_read_b32 v{T+r}, a{G.accr(0, jy)+r}")
        for r in range(4): o(f"v_accvgpr_read_b32 v{T+4+r}, a{G.accr(1, jy)+r}")
        for r in range(4): o(f"v_permlane16_swap_b32 v{T+r}, v{T+4+r}")
        if jy == 0: o("s_waitcnt vmcnt(0)")
        U = E + 48
        unpack8(o, U, XR + 4 * jy)
        for e in range(8): o(f"v_fma_f32 v{T+e}, v{T+e}, v{GA+e}, v{U+e}")
        P = T - 4
        for d in range(4): o(f"v_cvt_pk_bf16_f32 v{P+d}, v{T+2*d}, v{T+2*d+1}")
        o(f"v_add_u32 v6, {jy*16*2048}, v4")
        o(f"global_store_dwordx4 v6, {v(P,4)}, s[44:45] sc1")
    A.label(f"L_opp_skip{ntok_tiles_log2}")

def ln2_pass(A, nks_log2):
    o = A
    if nks_log2 == 3:
        o(f"s_lshr_b32 s{sCh}, s{sTok}, 8"); ln2_task(A); return
    for h in range(2):
        o(f"s_mov_b32 s76, s{sXb}"); o(f"s_mov_b32 s77, s{sI}"); o(f"s_mov_b32 s78, s{sCh}")
        o(f"s_lshl_b32 s79, s{sXb}, 1"); o(f"s_lshr_b32 s80, s{sI}, 3"); o("s_add_u32 s79, s79, s80")
        o(f"s_and_b32 s80, s{sI}, 7"); o("s_lshl_b32 s80, s80, 1"); o(f"s_add_u32 s{sI}, s80, {h}")
        o(f"s_and_b32 s{sXb}, s79, 7"); o("s_lshr_b32 s79, s79, 3"); o(f"s_lshr_b32 s{sCh}, s{sTok}, 8"); o(f"s_add_u32 s{sCh}, s{sCh}, s79")
        ln2_task(A)
        o(f"s_mov_b32 s{sXb}, s76"); o(f"s_mov_b32 s{sI}, s77"); o(f"s_mov_b32 s{sCh}, s78")
        if h == 0: o("s_barrier")

def g1_pass(A, opt, nit, lab):
    o = A
    sX, sY = 8, 12
    o("s_load_dwordx2 s[40:41], s[0:1], %d" % KA_W1); o("s_waitcnt lgkmcnt(0)")
    srd(o, sX, 40, 0, 2048 * 7168); srd(o, sY, sWS, WS_H2T, 4 * MiB)
    o(f"s_add_u32 s26, s{sTok}, {32*nit}"); o(f"s_lshl_b32 s{sY+2}, s26, 11")
    o(f"s_mul_i32 s{sX+2}, s26, 7168")
    G = Gemm(A, 8, 4, False, "g", accbase=128)
    sOffX, sOffY, sM0, sK = 20, 21, [22, 23], 24
    o(f"s_mul_i32 s{sOffX}, s{sTok}, 7168"); o(f"s_lshl_b32 s26, s{sFt}, 9"); o(f"s_add_u32 s{sOffX}, s{sOffX}, s26")
    o(f"s_lshl_b32 s{sOffY}, s{sTok}, 11"); o(f"s_lshl_b32 s26, s{sDtG}, 13"); o(f"s_add_u32 s{sOffY}, s{sOffY}, s26")
    o(f"s_mul_i32 s{sM0[0]}, s{sW}, {G.NIX*1024}"); o(f"s_mul_i32 s{sM0[1]}, s{sW}, {G.NIY*1024}")
    G.setup(sW, 0, 7168, 0, [1, 2, 3, 4, 5, 6], [25, 26, 27, 28])
    o2 = dict(opt); o2["accum"] = 1; o2["S"] = 5
    gen_loop(G, sX, sY, sOffX, sOffY, sM0, sK, 32 * 7168, 64 * 1024, nit, lab, opt=o2, sSt=[32, 33, 34])
    o("s_barrier")
    return G

def fast_check(A, tag):
    o = A
    LB = 131072 - 64
    o(f"s_cmp_lg_u32 s{sW}, 0"); o(f"s_cbranch_scc1 L_fc_{tag}_w")
    o("s_mov_b64 exec, 0xff"); o("v_lshlrev_b32 v1, 2, v0"); o("s_mov_b32 s13, 0x200000")
    A.label(f"L_fc_{tag}_p")
    o(f"global_load_dword v4, v1, {s(sDBG,2)} sc1"); o("s_waitcnt vmcnt(0)")
    o("v_mov_b32 v5, v4")
    o("v_add_u32_dpp v5, v5, v5 quad_perm:[1,0,3,2] row_mask:0xf bank_mask:0xf")
    o("v_add_u32_dpp v5, v5, v5 quad_perm:[2,3,0,1] row_mask:0xf bank_mask:0xf")
    o("v_add_u32_dpp v5, v5, v5 row_half_mirror row_mask:0xf bank_mask:0xf")
    o("v_readfirstlane_b32 s14, v5")
    o("s_cmp_ge_u32 s14, 256"); o(f"s_cbranch_scc1 L_fc_{tag}_a")
    o("s_sleep 8"); o("s_sub_u32 s13, s13, 1"); o(f"s_cbranch_scc0 L_fc_{tag}_p")
    A.label(f"L_fc_{tag}_a")
    o("v_cmp_ne_u32 vcc, 32, v4"); o("s_nop 1"); o("s_cmp_eq_u64 vcc, 0"); o("s_cselect_b32 s15, 1, 0")
    o("s_mov_b64 exec, 1"); o("v_mov_b32 v6, s15"); o(f"v_mov_b32 v1, {LB}"); o("ds_write_b32 v1, v6"); o("s_waitcnt lgkmcnt(0)"); o("s_mov_b64 exec, -1")
    A.label(f"L_fc_{tag}_w")
    o("s_barrier")
    o(f"v_mov_b32 v1, {LB}"); o("ds_read_b32 v6, v1"); o("s_waitcnt lgkmcnt(0)"); o("v_readfirstlane_b32 s15, v6")
    o("s_barrier")

WS_MODP2 = 128 * 1024
CNT_FILL2 = 43520
def mod_half(A):
    o = A
    o("s_mov_b64 s[8:9], s[76:77]")
    o(f"s_lshr_b32 s12, s{sB}, 6"); o("s_lshl_b32 s12, s12, 9"); o(f"s_lshl_b32 s13, s{sW}, 7"); o("s_add_u32 s12, s12, s13")
    o("v_lshrrev_b32 v5, 2, v0"); o("v_add_u32 v5, s12, v5"); o("v_lshlrev_b32 v6, 2, v5")
    o("s_mov_b32 s13, 12288"); o("v_mul_lo_u32 v7, v5, s13"); o("v_and_b32 v26, 3, v0"); o("v_lshl_add_u32 v7, v26, 4, v7")
    o(f"s_and_b32 s12, s{sB}, 63"); o("s_lshl_b32 s12, s12, 6"); o("v_add_u32 v7, s12, v7")
    W = 32
    for it in range(8):
        o(f"global_load_dwordx4 {v(W+4*it,4)}, v7, s[8:9]"); o(f"v_add_u32 v7, {16*12288}, v7")
    return W

def mod_half_finish(A, W, younger):
    o = A
    Cc, AC = 64, 72
    for it in range(8): o(f"ds_read_b32 v{Cc+it}, v6 offset:{it*64}")
    for e in range(8): o(f"v_mov_b32 v{AC+e}, 0")
    o("s_waitcnt lgkmcnt(0)")
    for it in range(8):
        o(f"s_waitcnt vmcnt({7-it+younger})")
        for d in range(4):
            o(f"v_lshlrev_b32 v27, 16, v{W+4*it+d}"); o(f"v_and_b32 v28, 0xffff0000, v{W+4*it+d}")
            o(f"v_fmac_f32 v{AC+2*d}, v27, v{Cc+it}"); o(f"v_fmac_f32 v{AC+2*d+1}, v28, v{Cc+it}")
    for e in range(8):
        x = AC + e
        o(f"v_add_f32_dpp v{x}, v{x}, v{x} row_ror:4 row_mask:0xf bank_mask:0xf")
        o(f"v_add_f32_dpp v{x}, v{x}, v{x} row_ror:8 row_mask:0xf bank_mask:0xf")
        for sw in ("16", "32"):
            o(f"v_mov_b32 v27, v{x}"); o(f"v_permlane{sw}_swap_b32 v{x}, v27"); o(f"v_add_f32 v{x}, v{x}, v27")
    o(f"s_lshl_b32 s12, s{sW}, 7"); o("v_lshlrev_b32 v5, 5, v26"); o("v_add_u32 v5, s12, v5")
    o("s_mov_b64 exec, 0xf")
    o(f"ds_write_b128 v5, {v(AC,4)} offset:4096"); o(f"ds_write_b128 v5, {v(AC+4,4)} offset:4112")
    o("s_mov_b64 exec, -1")
    o("s_waitcnt lgkmcnt(0)"); o("s_barrier")
    o(f"s_cmp_lg_u32 s{sW}, 0"); o("s_cbranch_scc1 L_mh_d")
    o("v_lshlrev_b32 v5, 2, v0"); o("s_mov_b64 exec, 0xffffffff")
    for w in range(4): o(f"ds_read_b32 v{32+w}, v5 offset:{4096+w*128}")
    o("s_waitcnt lgkmcnt(0)")
    o("v_add_f32 v32, v32, v33"); o("v_add_f32 v34, v34, v35"); o("v_add_f32 v32, v32, v34")
    o(f"s_lshr_b32 s12, s{sB}, 6"); o("s_lshl_b32 s12, s12, 13"); o(f"s_and_b32 s13, s{sB}, 63"); o("s_lshl_b32 s13, s13, 7"); o("s_add_u32 s12, s12, s13"); o(f"s_add_u32 s12, s12, {WS_MODP2}")
    o("v_add_u32 v5, s12, v5")
    o(f"global_store_dword v5, v32, {s(sWS,2)} sc1")
    o("s_mov_b64 exec, -1")
    A.label("L_mh_d")

def ln1_pre(A):
    o = A
    o("s_mov_b64 s[16:17], s[78:79]")
    o("v_lshlrev_b32 v2, 4, v0")
    o(f"s_lshl_b32 s14, s{sB}, 4"); o(f"s_lshl_b32 s15, s{sW}, 2"); o("s_add_u32 s14, s14, s15"); o("s_lshl_b32 s15, s14, 11")
    o("s_add_u32 s16, s16, s15"); o("s_addc_u32 s17, s17, 0")
    for r in range(4):
        off = (r % 2) * 2048
        if r == 2: o("s_add_u32 s16, s16, 4096"); o("s_addc_u32 s17, s17, 0")
        o(f"global_load_dwordx4 {v(96+8*r,4)}, v2, s[16:17] offset:{off}"); o(f"global_load_dwordx4 {v(96+8*r+4,4)}, v2, s[16:17] offset:{off+1024}")

def ln1_stats(A):
    o = A
    X = [128, 144, 160, 176]
    for r in range(4):
        unpack8(o, X[r], 96 + 8 * r); unpack8(o, X[r] + 8, 96 + 8 * r + 4)
    ln_rows(o, X, 4, [4, 5], 1e-5)

def ln1_fin(A):
    o = A
    RAW = 96; X = [128, 144, 160, 176]
    o("v_lshlrev_b32 v3, 5, v0")
    SA, CA = 64, 80
    TT = {SA: 192, CA: 208}
    for dst, base in ((SA, 0), (CA, 4096)):
        for q in range(2):
            o(f"s_add_u32 s12, s{sWS}, {WS_MODP2 + q*8192 + base}"); o(f"s_addc_u32 s13, s{sWS+1}, 0")
            tgt = dst if q == 0 else TT[dst]
            for h in range(2):
                for k in range(2): o(f"global_load_dwordx4 {v(tgt+8*h+4*k,4)}, v3, s[12:13] offset:{h*2048+k*16} sc1")
    o(f"s_lshl_b32 s14, s{sB}, 4"); o(f"s_lshl_b32 s15, s{sW}, 2"); o("s_add_u32 s14, s14, s15")
    o("s_waitcnt vmcnt(0)")
    for dst in (SA, CA):
        for e in range(16): o(f"v_add_f32 v{dst+e}, v{dst+e}, v{TT[dst]+e}")
        for e in range(0, 16, 2):
            o(f"v_cvt_pk_bf16_f32 v6, v{dst+e}, v{dst+e+1}"); o(f"v_lshlrev_b32 v{dst+e}, 16, v6"); o(f"v_and_b32 v{dst+e+1}, 0xffff0000, v6")
    for e in range(16): o(f"v_add_f32 v{CA+e}, 1.0, v{CA+e}")
    for r in range(4):
        R0 = RAW + 8 * r
        for e in range(16): o(f"v_fma_f32 v{X[r]+e}, v{X[r]+e}, v{CA+e}, v{SA+e}")
        for h in range(2):
            for d in range(4): o(f"v_cvt_pk_bf16_f32 v{R0+4*h+d}, v{X[r]+8*h+2*d}, v{X[r]+8*h+2*d+1}")
        o(f"s_add_u32 s16, s14, {r}"); o("s_lshr_b32 s17, s16, 4"); o("s_and_b32 s16, s16, 15")
        o("s_lshr_b32 s18, s16, 2"); o("s_lshr_b32 s19, s18, 1"); o("s_and_b32 s18, s18, 1"); o("s_xor_b32 s18, s18, s19"); o("s_lshl_b32 s18, s18, 1"); o("s_or_b32 s18, s18, s19")
        o("v_and_b32 v4, 3, v0"); o("v_xor_b32 v4, s18, v4"); o("v_lshlrev_b32 v4, 4, v4")
        o("v_lshrrev_b32 v5, 2, v0"); o("v_lshl_add_u32 v4, v5, 17, v4")
        o("s_lshl_b32 s17, s17, 10"); o("s_lshl_b32 s16, s16, 6"); o("s_add_u32 s17, s17, s16"); o(f"s_add_u32 s17, s17, {WS_H}")
        o("v_add_u32 v4, s17, v4")
        o(f"global_store_dwordx4 v4, {v(R0,4)}, {s(sWS,2)} sc1")
        o(f"v_add_u32 v4, {16*131072}, v4")
        o(f"global_store_dwordx4 v4, {v(R0+4,4)}, {s(sWS,2)} sc1")

def gen_bulk(opt):
    A = Asm(); o = A
    bprof = opt.get("bprof")
    def bstamp(k, chunked=True):
        if not bprof: return
        o("s_memrealtime s[72:73]"); o("s_waitcnt lgkmcnt(0)")
        o(f"s_lshl_b32 s74, s{sB}, 10")
        if chunked:
            o(f"s_lshl_b32 s75, s{sCh}, 6"); o("s_add_u32 s74, s74, s75"); o(f"s_add_u32 s74, s74, 64")
        o(f"s_add_u32 s74, s74, {WS_PROF + 4*MiB + 0} + {k*4}")
        o("v_mov_b32 v250, s74"); o("v_mov_b32 v251, s72")
        o("s_mov_b64 exec, 1"); o(f"global_store_dword v250, v251, {s(sWS,2)}"); o("s_mov_b64 exec, -1")
    o(f"s_load_dwordx2 {s(sWS,2)}, s[0:1], {KA_WS}")
    o(f"s_load_dwordx2 s[76:77], s[0:1], {KA_WMOD}"); o(f"s_load_dwordx2 s[78:79], s[0:1], {KA_X}"); o(f"s_load_dwordx2 s[84:85], s[0:1], {KA_C}")
    o("s_waitcnt lgkmcnt(0)")
    o(f"s_add_u32 s{sCNT}, s{sWS}, {WS_CNT}"); o(f"s_addc_u32 s{sCNT+1}, s{sWS+1}, 0")
    o(f"s_cmp_eq_u32 s{sChk}, 0"); o("s_cbranch_scc0 L_cb"); o(f"s_add_u32 s{sCNT}, s{sCNT}, {SLOW_OFF}"); o(f"s_addc_u32 s{sCNT+1}, s{sCNT+1}, 0")
    A.label("L_cb")
    o(f"s_lshl_b32 s{sB}, s{sXb}, 4"); o(f"s_add_u32 s{sB}, s{sB}, s{sI}")
    o(f"s_mov_b32 s{sLim}, 0x400000")
    bstamp(0, False)
    ST2 = opt.get("st2")
    if ST2:
        W_ = mod_half(A)
        ln1_pre(A)
        silu_to_lds(A, pre=84)
        mod_half_finish(A, W_, 0)
        ln1_stats(A)
        o(f"s_cmp_eq_u32 s{sChk}, 0"); o("s_cbranch_scc1 L_nochk")
        fast_check(A, "b")
        o("s_cmp_eq_u32 s15, 0"); o("s_cbranch_scc1 M_slow")
        A.label("L_nochk")
        signal(A, CNT_MODA, "m1")
        bstamp(1, False)
        wait_cnt(A, CNT_MODA, 128, "ma")
        bstamp(2, False)
        ln1_fin(A)
        o(f"s_lshr_b32 s{sCntOff}, s{sB}, 4"); o(f"s_lshl_b32 s{sCntOff}, s{sCntOff}, 7")
        signal(A, CNT_LN1, "l1", off_s=sCntOff)
    else:
        silu_to_lds(A)
        o(f"s_lshl_b32 s{sCt}, s{sB}, 5")
        mod_task(A, sCt, "a")
        o(f"s_cmp_eq_u32 s{sChk}, 0"); o("s_cbranch_scc1 L_nochk")
        fast_check(A, "b")
        o("s_cmp_eq_u32 s15, 0"); o("s_cbranch_scc1 M_slow")
        A.label("L_nochk")
        o(f"s_cmp_lt_u32 s{sB}, 64"); o(f"s_cselect_b32 s{sCntOff}, {CNT_MODA}, s{sCntOff}"); o(f"s_mov_b32 s44, {CNT_MODB}"); o(f"s_cselect_b32 s{sCntOff}, s{sCntOff}, s44")
        signal(A, 0, "m1", off_s=sCntOff)
        bstamp(1, False)
        wait_cnt(A, CNT_MODA, 64, "ma")
        bstamp(2, False)
        ln1_task(A)
        o(f"s_lshr_b32 s{sCntOff}, s{sB}, 4"); o(f"s_lshl_b32 s{sCntOff}, s{sCntOff}, 7")
        signal(A, CNT_LN1, "l1", off_s=sCntOff)
    bstamp(3, False)
    srd_h = lambda: srd(o, 12, sWS, WS_H, 4 * MiB)
    o(f"s_mov_b32 s{sRound}, 0")
    A.label("L_task")
    t0, t1, t2 = 44, 45, 46
    o(f"s_lshl_b32 s{t0}, s{sXb}, 2"); o(f"s_and_b32 s{t1}, s{sI}, 3"); o(f"s_add_u32 s{t0}, s{t0}, s{t1}"); o(f"s_add_u32 s{t0}, s{t0}, 16")
    o(f"s_lshl_b32 s{t1}, s{sXb}, 1"); o(f"s_and_b32 s{t2}, s{sI}, 1"); o(f"s_add_u32 s{t1}, s{t1}, s{t2}")
    o(f"s_lshr_b32 s{t2}, s{sI}, 2")
    o(f"s_cmp_eq_u32 s{sRound}, 0"); o("s_cbranch_scc0 L_r1")
    o(f"s_mov_b32 s{sCt}, s{t0}"); o(f"s_lshl_b32 s{sTok}, s{t2}, 6"); o("s_branch L_dec")
    A.label("L_r1")
    if opt.get("thr"):
        NA = opt["thr"]
        o(f"s_cmp_ge_u32 s{sI}, {NA}"); o("s_cbranch_scc1 L_phase3")
        o(f"s_sub_u32 s{t0}, s{sRound}, 1"); o(f"s_mul_i32 s{t0}, s{t0}, {8*NA}"); o(f"s_mul_i32 s{t1}, s{sXb}, {NA}"); o(f"s_add_u32 s{t0}, s{t0}, s{t1}"); o(f"s_add_u32 s{t0}, s{t0}, s{sI}")
        o(f"s_cmp_ge_u32 s{t0}, 352"); o("s_cbranch_scc1 L_phase3")
        o(f"s_cmp_lt_u32 s{t0}, 224"); o("s_cbranch_scc0 L_thq")
        o(f"s_and_b32 s{sCt}, s{t0}, 31"); o(f"s_add_u32 s{sCt}, s{sCt}, 16"); o(f"s_lshr_b32 s{sTok}, s{t0}, 5"); o(f"s_add_u32 s{sTok}, s{sTok}, 1"); o(f"s_lshl_b32 s{sTok}, s{sTok}, 8"); o("s_branch L_dec")
        A.label("L_thq")
        o(f"s_sub_u32 s{t0}, s{t0}, 224"); o(f"s_and_b32 s{sCt}, s{t0}, 15"); o(f"s_lshr_b32 s{sTok}, s{t0}, 4"); o(f"s_lshl_b32 s{sTok}, s{sTok}, 8")
    else:
        o(f"s_cmp_eq_u32 s{sRound}, 1"); o("s_cbranch_scc0 L_r2")
        o(f"s_mov_b32 s{sCt}, s{t0}"); o(f"s_add_u32 s{sTok}, s{t2}, 1"); o(f"s_lshl_b32 s{sTok}, s{sTok}, 8"); o("s_branch L_dec")
        A.label("L_r2")
        o(f"s_cmp_eq_u32 s{sRound}, 2"); o("s_cbranch_scc0 L_r3")
        o(f"s_cmp_lt_u32 s{sI}, 12"); o("s_cbranch_scc0 L_r2q")
        o(f"s_mov_b32 s{sCt}, s{t0}"); o(f"s_add_u32 s{sTok}, s{t2}, 5"); o(f"s_lshl_b32 s{sTok}, s{sTok}, 8"); o("s_branch L_dec")
        A.label("L_r2q")
        o(f"s_mov_b32 s{sCt}, s{t1}"); o(f"s_sub_u32 s{sTok}, s{sI}, 12"); o(f"s_lshr_b32 s{sTok}, s{sTok}, 1"); o(f"s_lshl_b32 s{sTok}, s{sTok}, 8"); o("s_branch L_dec")
        A.label("L_r3")
        o(f"s_cmp_eq_u32 s{sRound}, 3"); o("s_cbranch_scc0 L_phase3")
        o(f"s_cmp_lt_u32 s{sI}, 12"); o("s_cbranch_scc0 L_phase3")
        o(f"s_mov_b32 s{sCt}, s{t1}"); o(f"s_lshr_b32 s{sTok}, s{sI}, 1"); o(f"s_add_u32 s{sTok}, s{sTok}, 2"); o(f"s_lshl_b32 s{sTok}, s{sTok}, 8")
    A.label("L_dec")
    o(f"s_lshr_b32 s{sCntOff}, s{sTok}, 8"); o(f"s_lshl_b32 s{sCntOff}, s{sCntOff}, 7")
    wait_cnt(A, CNT_LN1, 16, "l1", off_s=sCntOff)
    o(f"s_lshr_b32 s{t0}, s{sTok}, 8")
    o(f"s_lshl_b32 s{t1}, s{t0}, 3"); o(f"s_and_b32 s{t2}, s{sCt}, 15"); o(f"s_lshr_b32 s{t2}, s{t2}, 1"); o(f"s_add_u32 s{t1}, s{t1}, s{t2}"); o(f"s_lshl_b32 s{t1}, s{t1}, 7")
    o(f"s_lshl_b32 s{t0}, s{t0}, 7"); o(f"s_add_u32 s{t0}, s{t0}, {CNT_Q}")
    o(f"s_cmp_lt_u32 s{sCt}, 16"); o(f"s_cselect_b32 s{sCntOff}, s{t0}, s{t1}")
    o(f"s_lshr_b32 s{t0}, s{sCt}, 4"); o(f"s_lshl_b32 s{t1}, s{t0}, 3")
    o(f"s_add_u32 s40, s0, s{t1}"); o(f"s_addc_u32 s41, s1, 0")
    o(f"s_load_dwordx2 s[40:41], s[40:41], {KA_WQ}")
    o(f"s_lshl_b32 s{t1}, s{t0}, 24"); o(f"s_add_u32 s{t1}, s{t1}, {WS_Q}")
    o(f"s_add_u32 s16, s{sWS}, s{t1}"); o(f"s_addc_u32 s17, s{sWS+1}, 0"); o("s_and_b32 s17, s17, 0xffff")
    o(f"s_mov_b32 s18, {16*MiB}"); o("s_mov_b32 s19, 0x00020000")
    srd_h()
    o("s_waitcnt lgkmcnt(0)")
    srd(o, 8, 40, 0, 8 * MiB)
    o(f"s_cmp_eq_u32 s{sRound}, 0"); o("s_cbranch_scc1 L_small")
    o(f"s_cmp_ge_u32 s{sCt}, 32"); o("s_cbranch_scc1 L_bigv")
    qkv_tile(A, 8, False, "L_gA", sW, sCt, sTok, opt, None); o("s_branch L_sig")
    A.label("L_bigv")
    qkv_tile(A, 8, True, "L_gB", sW, sCt, sTok, opt, None); o("s_branch L_sig")
    A.label("L_small")
    osm = dict(opt); osm["S"] = 6
    o(f"s_cmp_ge_u32 s{sCt}, 32"); o("s_cbranch_scc1 L_smallv")
    qkv_tile(A, 2, False, "L_gC", sW, sCt, sTok, osm, None); o("s_branch L_sig")
    A.label("L_smallv")
    qkv_tile(A, 2, True, "L_gD", sW, sCt, sTok, osm, None)
    A.label("L_sig")
    signal(A, 0, "t", off_s=sCntOff)
    if ST2:
        o(f"s_cmp_lg_u32 s{sRound}, 0"); o("s_cbranch_scc1 L_nolate")
        o(f"s_lshl_b32 s12, s{sW}, 10"); o("v_lshlrev_b32 v3, 4, v0"); o("v_add_u32 v3, s12, v3")
        for r in range(4): o(f"v_mov_b32 v{8+r}, -1")
        o(f"s_mul_i32 s12, s{sB}, {7*MiB//128}"); o(f"s_add_u32 s12, s12, {WS_PARTF + MiB}")
        o(f"s_add_u32 s14, s{sWS}, s12"); o(f"s_addc_u32 s15, s{sWS+1}, 0")
        for k in range(14):
            o("global_store_dwordx4 v3, v[8:11], s[14:15] sc1"); o("s_add_u32 s14, s14, 4096"); o("s_addc_u32 s15, s15, 0")
        signal(A, CNT_FILL2, "f2")
        A.label("L_nolate")
    if bprof:
        o("s_memrealtime s[72:73]"); o("s_waitcnt lgkmcnt(0)")
        o(f"s_lshl_b32 s74, s{sB}, 10"); o(f"s_lshl_b32 s75, s{sRound}, 2"); o("s_add_u32 s74, s74, s75"); o(f"s_add_u32 s74, s74, {WS_PROF + 4*MiB + 16}")
        o("v_mov_b32 v250, s74"); o("v_mov_b32 v251, s72")
        o("s_mov_b64 exec, 1"); o(f"global_store_dword v250, v251, {s(sWS,2)}"); o("s_mov_b64 exec, -1")
    o(f"s_add_u32 s{sRound}, s{sRound}, 1")
    o("s_branch L_task")
    A.label("L_phase3")
    if not opt.get("st2"): o(f"s_cmp_ge_u32 s{sB}, 64"); o("s_cbranch_scc1 L_nomod2")
    silu_to_lds(A)
    o(f"s_lshl_b32 s{sCt}, s{sB}, 5"); o(f"s_add_u32 s{sCt}, s{sCt}, {2048 if opt.get('st2') else 4096}")
    mod_task(A, sCt, "b")
    signal(A, CNT_MODC, "m2")
    A.label("L_nomod2")
    if opt.get("late3"):
        wait_cnt(A, CNT_Q + (opt["late3"] - 1) * 128, 16, "lq", sleep=60)
    if opt.get("wpf", 1) == 1:
        prefetch_task(A, KA_WO, 8 * MiB, "wo"); prefetch_task(A, KA_W1, 2048 * 7168, "w1"); prefetch_task(A, KA_W2, 3584 * 4096, "w2")
    if opt.get("wpf", 1) == 2:
        prefetch_task(A, KA_W2, 3584 * 4096, "w2")
    if opt.get("sent"):
        o(f"s_lshl_b32 s12, s{sW}, 10"); o("v_lshlrev_b32 v3, 4, v0"); o("v_add_u32 v3, s12, v3")
        for r in range(4): o(f"v_mov_b32 v{8+r}, -1")
        o(f"s_lshl_b32 s12, s{sB}, 17"); o(f"s_add_u32 s12, s12, {128 * MiB}")
        o(f"s_add_u32 s14, s{sWS}, s12"); o(f"s_addc_u32 s15, s{sWS+1}, 0")
        o("s_mov_b32 s16, 32")
        A.label("L_sfill")
        o("global_store_dwordx4 v3, v[8:11], s[14:15]"); o("s_add_u32 s14, s14, 4096"); o("s_addc_u32 s15, s15, 0")
        o("s_sub_u32 s16, s16, 1"); o("s_cmp_lg_u32 s16, 0"); o("s_cbranch_scc1 L_sfill")
        o(f"s_cmp_ge_u32 s{sB}, 64"); o("s_cbranch_scc1 L_sfill2")
        o(f"s_lshl_b32 s12, s{sB}, 12"); o(f"s_add_u32 s12, s12, {144 * MiB}")
        o(f"s_add_u32 s14, s{sWS}, s12"); o(f"s_addc_u32 s15, s{sWS+1}, 0")
        o("global_store_dwordx4 v3, v[8:11], s[14:15]")
        A.label("L_sfill2")
        o("s_waitcnt vmcnt(0)")
    P3 = opt.get("p3", 4)
    if P3 == 4:
        for r in range(128): o(f"v_accvgpr_write_b32 a{128+r}, 0")
    if P3 == 0:
        o("s_branch L_bulk_done")
    if P3 == 5:
        passes = opt.get("passes", [(0, 2), (2, 2), (4, 2), (6, 1), (7, 1)])
        for r in range(128): o(f"v_accvgpr_write_b32 a{128+r}, 0")
        o(f"s_lshr_b32 s{sDtG}, s{sXb}, 1"); o(f"s_lshl_b32 s{sDtG}, s{sDtG}, 1"); o(f"s_and_b32 s44, s{sI}, 1"); o(f"s_add_u32 s{sDtG}, s{sDtG}, s44")
        o(f"s_and_b32 s{sFt}, s{sXb}, 1"); o(f"s_lshl_b32 s{sFt}, s{sFt}, 3"); o(f"s_lshr_b32 s44, s{sI}, 1"); o(f"s_add_u32 s{sFt}, s{sFt}, s44")
        sPass, sPn = 83, 84
        def att_chunk(tag):
            o(f"s_lshl_b32 s{sCntOff}, s{sCh}, 3"); o(f"s_add_u32 s{sCntOff}, s{sCntOff}, s{sXb}"); o(f"s_lshl_b32 s{sCntOff}, s{sCntOff}, 7")
            wait_cnt(A, CNT_REC, 32, f"rec{tag}", off_s=sCntOff, sleep=8)
            o(f"s_lshl_b32 s{sCntOff}, s{sCh}, 7")
            wait_cnt(A, CNT_Q, 16, f"q{tag}", off_s=sCntOff)
            o(f"s_lshl_b32 s56, s{sB}, 2"); o(f"s_add_u32 s56, s56, s{sW}")
            o(f"s_lshr_b32 s57, s56, 6"); o(f"s_lshl_b32 s58, s{sCh}, 3"); o("s_add_u32 s57, s57, s58")
            o("s_lshr_b32 s58, s56, 1"); o("s_and_b32 s58, s58, 31"); o("s_and_b32 s59, s56, 1")
            attn_body(A, sWS, 57, 58, 59, 0, f"L_at{tag}", sc1=True)
        def rest(nch, tag):
            o(f"s_lshl_b32 s{sCntOff}, s{sPass}, 7")
            signal(A, CNT_ATT, f"a{tag}", off_s=sCntOff)
            wait_cnt(A, CNT_ATT, 128, f"a{tag}", off_s=sCntOff, sleep=4)
            bstamp(2)
            op_pass(A, 2 if nch == 1 else 3, opt)
            signal(A, CNT_OP, f"o{tag}", off_s=sCntOff)
            bstamp(3)
            wait_cnt(A, CNT_OP, 128, f"o{tag}", off_s=sCntOff, sleep=4)
            bstamp(4)
            ln2_pass(A, 3 if nch == 1 else 4)
            signal(A, CNT_LN, f"n{tag}", off_s=sCntOff)
            bstamp(5)
            o(f"s_cmp_ge_u32 s{sFt}, 14"); o(f"s_cbranch_scc1 L_nog1{tag}")
            wait_cnt(A, CNT_LN, 128, f"n{tag}", off_s=sCntOff, sleep=4)
            bstamp(6)
            G_ = g1_pass(A, opt, 8 * nch, f"L_g1{tag}")
            bstamp(7)
            A.label(f"L_nog1{tag}")
            return G_
        wait_cnt(A, CNT_MODB, 64, "mb5"); wait_cnt(A, CNT_MODC, 64, "mc5")
        nd = sum(1 for p in passes if p[1] == 2); ns = sum(1 for p in passes if p[1] == 1)
        o(f"s_mov_b32 s{sPass}, 0")
        A.label("L_dpass")
        o(f"s_lshl_b32 s{sCh}, s{sPass}, 1"); att_chunk("A"); bstamp(0)
        o(f"s_lshl_b32 s{sCh}, s{sPass}, 1"); o(f"s_add_u32 s{sCh}, s{sCh}, 1"); att_chunk("B"); bstamp(1)
        o(f"s_lshl_b32 s{sTok}, s{sPass}, 9"); o(f"s_lshl_b32 s{sCh}, s{sPass}, 1")
        G = rest(2, "D")
        o(f"s_add_u32 s{sPass}, s{sPass}, 1"); o(f"s_cmp_lt_u32 s{sPass}, {nd}"); o("s_cbranch_scc1 L_dpass")
        if ns:
            A.label("L_spass")
            o(f"s_add_u32 s{sCh}, s{sPass}, {nd}"); att_chunk("C"); bstamp(1)
            o(f"s_add_u32 s{sCh}, s{sPass}, {nd}"); o(f"s_lshl_b32 s{sTok}, s{sCh}, 8")
            rest(1, "S")
            o(f"s_add_u32 s{sPass}, s{sPass}, 1"); o(f"s_cmp_lt_u32 s{sPass}, {nd+ns}"); o("s_cbranch_scc1 L_spass")
        o(f"s_cmp_ge_u32 s{sFt}, 14"); o("s_cbranch_scc1 L_bulk_done")
        g1_epilogue(A, G, sFt, sDtG)
        o("s_branch L_bulk_done")
    if P3 not in (0, 5):
        o(f"s_mov_b32 s{sCh}, 0")
        A.label("L_chunk")
        if P3 >= 4:
            o(f"s_lshl_b32 s{sCntOff}, s{sCh}, 10"); o(f"s_add_u32 s{sCntOff}, s{sCntOff}, {7*128}")
            wait_cnt(A, CNT_REC, 32, "rec", off_s=sCntOff)
        else:
            if opt.get("aspread", 1):
                o(f"s_lshr_b32 s55, s{sI}, 1")
            else:
                o(f"s_mov_b32 s55, s{sXb}")
            o(f"s_lshl_b32 s{sCntOff}, s{sCh}, 3"); o(f"s_add_u32 s{sCntOff}, s{sCntOff}, s55"); o(f"s_lshl_b32 s{sCntOff}, s{sCntOff}, 7")
            if opt.get("relay"):
                o(f"s_cmp_lg_u32 s{sI}, 0"); o("s_cbranch_scc1 L_rly_w")
                wait_cnt(A, CNT_REC, 32, "rec", off_s=sCntOff, sleep=opt["relay"])
                signal(A, CNT_RLY, "rly", off_s=sCntOff)
                o("s_branch L_rly_d")
                A.label("L_rly_w")
                wait_cnt(A, CNT_RLY, 1, "rlw", off_s=sCntOff, sleep=16)
                A.label("L_rly_d")
            else:
                wait_cnt(A, CNT_REC, 32, "rec", off_s=sCntOff, sleep=opt.get("slp", 16))
        o(f"s_lshl_b32 s{sCntOff}, s{sCh}, 7")
        wait_cnt(A, CNT_Q, 16, "q", off_s=sCntOff)
        bstamp(0)
        if P3 >= 4 or not opt.get("aspread", 1):
            o(f"s_lshl_b32 s56, s{sB}, 2"); o(f"s_add_u32 s56, s56, s{sW}")
            o(f"s_lshr_b32 s57, s56, 6"); o(f"s_lshl_b32 s58, s{sCh}, 3"); o("s_add_u32 s57, s57, s58")
        else:
            o(f"s_lshl_b32 s56, s{sXb}, 1"); o(f"s_and_b32 s57, s{sI}, 1"); o("s_add_u32 s56, s56, s57"); o("s_lshl_b32 s56, s56, 2"); o(f"s_add_u32 s56, s56, s{sW}")
            o(f"s_lshr_b32 s57, s{sI}, 1"); o(f"s_lshl_b32 s58, s{sCh}, 3"); o("s_add_u32 s57, s57, s58")
        o("s_lshr_b32 s58, s56, 1"); o("s_and_b32 s58, s58, 31"); o("s_and_b32 s59, s56, 1")
        if opt.get("aser"):
            o("s_mov_b32 s54, 0")
            A.label("L_aser")
            o(f"s_cmp_lg_u32 s{sW}, s54"); o("s_cbranch_scc1 L_aser_s")
        attn_body(A, sWS, 57, 58, 59, 0, "L_at", sc1=(P3 >= 4), nt=opt.get("ant", 0))
        if opt.get("aser"):
            o("s_waitcnt vmcnt(0)")
            A.label("L_aser_s")
            o("s_barrier")
            o("s_add_u32 s54, s54, 1"); o("s_cmp_lt_u32 s54, 4"); o("s_cbranch_scc1 L_aser")
        if P3 >= 4:
            signal(A, CNT_ATT, "a", off_s=sCntOff)
            bstamp(1)
            wait_cnt(A, CNT_ATT, 128, "a", off_s=sCntOff)
            wait_cnt(A, CNT_MODB, 64, "mb")
            bstamp(2)
            op_task(A)
            signal(A, CNT_OP, "o", off_s=sCntOff)
            bstamp(3)
            wait_cnt(A, CNT_OP, 128, "o", off_s=sCntOff)
            wait_cnt(A, CNT_MODC, 64, "mc")
            bstamp(4)
            ln2_task(A)
            signal(A, CNT_LN, "n", off_s=sCntOff)
            bstamp(5)
            o(f"s_cmp_ge_u32 s{sI}, 14"); o("s_cbranch_scc1 L_nog1")
            wait_cnt(A, CNT_LN, 128, "n", off_s=sCntOff)
            bstamp(6)
            G = g1_partial(A, opt)
            bstamp(7)
            A.label("L_nog1")
            o(f"s_add_u32 s{sCh}, s{sCh}, 1"); o(f"s_cmp_lt_u32 s{sCh}, 8"); o("s_cbranch_scc1 L_chunk")
            o(f"s_cmp_ge_u32 s{sI}, 14"); o("s_cbranch_scc1 L_bulk_done")
            g1_epilogue(A, G)
        else:
            o("s_waitcnt vmcnt(0)")
            o(f"s_add_u32 s{sCh}, s{sCh}, 1"); o(f"s_cmp_lt_u32 s{sCh}, 8"); o("s_cbranch_scc1 L_chunk")
    A.label("L_bulk_done")
    o("s_waitcnt vmcnt(0)")
    o("s_endpgm")
    return re.sub(r"\bL_", "B_L_", A.finish())

def gen_mega(name="mega_kernel", recopt=None, opt=None, force_slow=False, place=8):
    recopt = recopt or dict(E2_DEPTH=2, E2_SP=3, E2_DELAY=2)
    opt = opt or {"S": 4}
    A = Asm(); o = A
    o("s_cmp_ge_u32 s2, 256"); o("s_cbranch_scc1 M_end")
    o(f"s_load_dwordx2 {s(sDBG,2)}, s[0:1], {KA_DBG}")
    o(f"s_load_dwordx2 {s(sWS,2)}, s[0:1], {KA_WS}")
    o(f"s_load_dwordx2 s[10:11], s[0:1], {KA_MEM0}")
    if recopt.get("prof"): o("s_memrealtime s[92:93]")
    o("v_lshlrev_b32 v3, 4, v0")
    o("v_lshrrev_b32 v1, 6, v0"); o("v_and_b32 v0, 63, v0"); o(f"v_readfirstlane_b32 s{sW}, v1")
    o("s_getreg_b32 s4, hwreg(HW_REG_XCC_ID, 0, 4)"); o("s_and_b32 s4, s4, 7")
    for r in range(4): o(f"v_mov_b32 v{8+r}, -1")
    o("s_waitcnt lgkmcnt(0)")
    if opt.get("tlb"):
        st = opt["tlb"]
        o(f"s_cmp_lg_u32 s{sW}, 1"); o("s_cbranch_scc1 M_notlb")
        o(f"v_lshlrev_b32 v4, {st}, v0")
        srd(o, 16, sWS, 0, 144 * MiB)
        o("buffer_load_dword v40, v4, s[16:19], 0 offen")
        o(f"s_mov_b32 s20, {64 << st}"); o("buffer_load_dword v41, v4, s[16:19], s20 offen")
        for k, (ka, nb) in enumerate(((KA_X, 4 * MiB), (KA_WQ, 8 * MiB), (KA_WK, 8 * MiB), (KA_WV, 8 * MiB), (KA_WO, 8 * MiB), (KA_WMOD, 12 * MiB))):
            o(f"s_load_dwordx2 s[20:21], s[0:1], {ka}"); o("s_waitcnt lgkmcnt(0)")
            srd(o, 16, 20, 0, nb)
            o(f"buffer_load_dword v{42+k}, v4, s[16:19], 0 offen")
        A.label("M_notlb")
    o(f"s_lshl_b32 s12, s2, {12 if opt.get('st2') else 15}"); o(f"s_add_u32 s12, s12, {WS_PARTF}")
    o(f"s_add_u32 s14, s{sWS}, s12"); o(f"s_addc_u32 s15, s{sWS+1}, 0")
    for k in range(1 if opt.get('st2') else 8):
        o("global_store_dwordx4 v3, v[8:11], s[14:15] sc1"); o("s_add_u32 s14, s14, 4096"); o("s_addc_u32 s15, s15, 0")
    o("s_cmp_ge_u32 s2, 128"); o("s_cbranch_scc1 M_f2")
    o("s_lshl_b32 s12, s2, 12")
    o(f"s_add_u32 s13, s12, {WS_RQK}"); o(f"s_add_u32 s14, s{sWS}, s13"); o(f"s_addc_u32 s15, s{sWS+1}, 0")
    o("global_store_dwordx4 v3, v[8:11], s[14:15] sc1")
    o(f"s_add_u32 s13, s12, {WS_RMEM}"); o(f"s_add_u32 s14, s{sWS}, s13"); o(f"s_addc_u32 s15, s{sWS+1}, 0")
    o("s_cmp_lt_u32 s2, 32"); o("s_cbranch_scc1 M_img")
    o("global_store_dwordx4 v3, v[8:11], s[14:15] sc1"); o("s_branch M_f3")
    A.label("M_img")
    o(f"s_and_b32 s16, s2, 3"); o("s_lshl_b32 s16, s16, 2"); o(f"s_add_u32 s16, s16, s{sW}"); o("s_lshl_b32 s16, s16, 7")
    o("v_and_b32 v5, 7, v0"); o("v_lshlrev_b32 v5, 11, v5"); o("v_bfe_u32 v6, v0, 3, 1"); o("v_lshl_add_u32 v5, v6, 6, v5")
    o("v_lshrrev_b32 v6, 4, v0"); o("v_lshl_add_u32 v5, v6, 4, v5"); o("v_add_u32 v5, s16, v5")
    o("global_load_dwordx4 v[16:19], v5, s[10:11]"); o("s_waitcnt vmcnt(0)")
    o("global_store_dwordx4 v3, v[16:19], s[14:15] sc1"); o("s_branch M_f3")
    A.label("M_f2")
    o("s_cmp_ge_u32 s2, 192"); o("s_cbranch_scc1 M_f4")
    o("s_sub_u32 s12, s2, 128"); o("s_lshl_b32 s12, s12, 12")
    o(f"s_add_u32 s13, s12, {WS_RV}"); o(f"s_add_u32 s14, s{sWS}, s13"); o(f"s_addc_u32 s15, s{sWS+1}, 0")
    o("global_store_dwordx4 v3, v[8:11], s[14:15] sc1"); o("s_branch M_f3")
    A.label("M_f4")
    o("s_cmp_ge_u32 s2, 240"); o("s_cbranch_scc1 M_f3")
    o("s_sub_u32 s12, s2, 192"); o("s_lshl_b32 s12, s12, 12"); o(f"s_add_u32 s12, s12, {WS_CNT}")
    o(f"s_add_u32 s14, s{sWS}, s12"); o(f"s_addc_u32 s15, s{sWS+1}, 0")
    for r in range(4): o(f"v_mov_b32 v{8+r}, 0")
    o("global_store_dwordx4 v3, v[8:11], s[14:15] sc1")
    A.label("M_f3")
    o("s_waitcnt vmcnt(0)"); o("s_barrier")
    o(f"s_cmp_lg_u32 s{sW}, 0"); o("s_cbranch_scc1 M_w")
    o("s_lshl_b32 s12, s4, 2"); o("v_mov_b32 v1, s12"); o("v_mov_b32 v2, 1"); o("s_mov_b64 exec, 1")
    o(f"global_atomic_add v3, v1, v2, {s(sDBG,2)} sc0"); o("s_waitcnt vmcnt(0)")
    o("v_mov_b32 v1, 0"); o("ds_write_b32 v1, v3"); o("s_waitcnt lgkmcnt(0)"); o("s_mov_b64 exec, -1")
    A.label("M_w")
    o("s_barrier"); o("v_mov_b32 v1, 0"); o("ds_read_b32 v6, v1"); o("s_waitcnt lgkmcnt(0)"); o("v_readfirstlane_b32 s5, v6"); o("s_barrier")
    o(f"s_mov_b32 s{sChk}, 1")
    if force_slow:
        fast_check(A, "t"); o("s_branch M_slow")
    if place == 8:
        o("s_cmp_lt_u32 s5, 16"); o("s_cbranch_scc1 M_rec_fast")
        o("s_cmp_lt_u32 s5, 32"); o("s_cbranch_scc0 M_idle")
        o("s_sub_u32 s5, s5, 16"); o("s_branch M_bulk")
    else:
        o("s_cmp_lt_u32 s5, 32"); o("s_cbranch_scc0 M_idle")
        o("s_and_b32 s12, s4, 3"); o("s_lshl_b32 s12, s12, 1"); o("s_lshr_b32 s13, s5, 4"); o("s_add_u32 s12, s12, s13"); o("s_and_b32 s5, s5, 15")
        o("s_cmp_lt_u32 s4, 4"); o("s_mov_b32 s4, s12"); o("s_cbranch_scc1 M_rec_fast"); o("s_branch M_bulk")
    A.label("M_idle")
    fast_check(A, "i")
    A.label("M_slow")
    o(f"s_mov_b32 s{sChk}, 0")
    o("s_lshr_b32 s4, s2, 4"); o("s_and_b32 s4, s4, 7"); o("s_and_b32 s5, s2, 15")
    o("s_cmp_lt_u32 s2, 128"); o("s_cbranch_scc1 M_rec_slow")
    o("s_branch M_bulk")
    A.label("M_end"); o("s_endpgm")
    t = A.finish()
    t += "M_bulk:\n" + gen_bulk(opt)
    Ah = Asm(); fast_check(Ah, "r"); Ah("s_cmp_eq_u32 s15, 0"); Ah("s_cbranch_scc1 M_slow")
    hook = Ah.finish()
    pre = ""
    if opt.get("rwait"):
        Ap = Asm()
        fast_check(Ap, "p"); Ap("s_cmp_eq_u32 s15, 0"); Ap("s_cbranch_scc1 M_slow")
        Ap(f"s_load_dwordx2 {s(sWS,2)}, s[0:1], {KA_WS}"); Ap("s_waitcnt lgkmcnt(0)")
        Ap(f"s_add_u32 s{sCNT}, s{sWS}, {WS_CNT}"); Ap(f"s_addc_u32 s{sCNT+1}, s{sWS+1}, 0"); Ap(f"s_mov_b32 s{sLim}, 0x400000")
        wait_cnt(Ap, CNT_MODA if opt["rwait"] == 1 else CNT_LN1, 128 if opt["rwait"] == 1 else 16, "rp", sleep=8)
        pre = re.sub(r"\bL_", "RP_L_", Ap.finish())
    t += "M_rec_fast:\n" + pre + rec.gen_rec(embedded=True, pfx="RF_", fast=True, KVCHK=True, SIG=(opt.get("p3", 4) != 0), hook=hook, cntoff=0, FILL2=(CNT_FILL2 if opt.get('st2') else None), **recopt)
    t += "M_rec_slow:\n" + rec.gen_rec(embedded=True, pfx="RS_", fast=False, KVCHK=True, SIG=(opt.get("p3", 4) != 0), hook=None, cntoff=SLOW_OFF, FILL2=(CNT_FILL2 if opt.get('st2') else None), **recopt)
    return kernel_head(name) + t + kernel_desc(name, 256, 256)
```

```python
from asmlib import *
from layout import *

NSTEPS = 64
SENT = 0xFFFFFFFF

def gen_rec(name="rec_kernel", embedded=False, pfx="", KVCHK=False, SIG=False, hook=None, cntoff=0, EARLY=False, FILL2=None, fast=True, prof=False, nsteps=NSTEPS, E1_EARLY=True, E2_DELAY=0, E3_DELAY=0, KV_FIRST=0, PF=1, PFE=0, REORD=0, FC=0, E3_SP=0, KVFIRST=0, VSP=2, RT=0, E1_AT=7, E3_SALU_FIRST=0, LAST_SHORT=1, NOK=0, NOV=0, E2F='sc1', X4=0, X4LIM=4, E2_DEPTH=3, E2_SP=0, EP=0, FIXKV=0):
    TIMER = "s_memrealtime" if RT else "s_memtime"
    A = Asm()
    o = A
    st_fast = "" if fast else " sc1"
    sWG = 2
    sW, sG, sJ, sHA, sC, sHead = 3, 4, 5, 6, 7, 8
    sWS = 10
    sT0, sT1, sT2, sT3 = 12, 13, 14, 15
    sPtr = 16
    sMEMc, sMEMn, sQK, sVR, sPART, sPART2, sKX, sKX2, sVX, sKM, sVM = 20, 22, 24, 26, 28, 30, 32, 34, 36, 38, 40
    sRq, sRv, sRp, sRm = 42, 44, 46, 48
    sStep, sSlot, sLim = 50, 51, 52
    sMaskQK, sMaskLo = 54, 56
    sSelV = 58
    sScale = 60
    sWQ, sWK, sWV, sWO, sDBG = 62, 64, 66, 68, 70
    sTs = 66
    sProf = 96
    vL = 0; vT = [1, 2, 3, 4, 5, 6, 7]
    vE3, vQKst, vVst, vVld, vPst, vPld, vMst, vKx, vL16, vKMst = 8, 9, 10, 11, 12, 13, 14, 15, 56, 57
    vA0, vA1, vAv0, vAv1 = 16, 20, 24, 28
    vSx, vSm = 32, 40
    vPx, vPmA, vPmB = 44, 48, 50
    vDelta = 52
    vNeg = 60
    vB = 64; vK = 128; vV = 160; vQ = 192; vQr = 200; vKm = 208; vKr = 216; vVm = 224
    vLdsM, vLdsO, vLdsV = 232, 233, 234
    vSent = 236
    vFlag = 57
    vX = 240
    vO = 64; vOb = 96
    vOo = [112, 116, 120, 124] + [160 + 4 * i for i in range(8)]
    LDS_MEM, LDS_O, LDS_V = 0, 16384, 32768

    if not embedded:
        o(f"s_cmp_ge_u32 s{sWG}, {256 if X4 else 128}")
        o("s_cbranch_scc1 L_rec_end")
        o(f"s_load_dwordx2 {s(sWQ,2)}, s[0:1], {KA_WQ}")
        o(f"s_load_dwordx2 {s(sWK,2)}, s[0:1], {KA_WK}")
        o(f"s_load_dwordx2 {s(sWV,2)}, s[0:1], {KA_WV}")
        o(f"s_load_dwordx2 {s(sWO,2)}, s[0:1], {KA_WO}")
        o(f"s_load_dwordx2 {s(sDBG,2)}, s[0:1], {KA_DBG}")
        o(f"s_load_dwordx2 {s(sWS,2)}, s[0:1], {KA_WS}")
        o(f"v_lshrrev_b32 v1, 6, v0")
        o(f"v_and_b32 v{vL}, 63, v0")
        o(f"v_readfirstlane_b32 s{sW}, v1")
        o(f"s_getreg_b32 s{sG}, hwreg(HW_REG_XCC_ID, 0, 4)")
        o("s_waitcnt lgkmcnt(0)")
        o(f"s_cmp_lg_u32 s{sW}, 0")
        o("s_cbranch_scc1 L_rec_noticket")
        o(f"s_lshl_b32 s{sT0}, s{sG}, 2")
        o(f"v_mov_b32 v1, s{sT0}")
        o("v_mov_b32 v2, 1")
        o("s_mov_b64 exec, 1")
        o(f"global_atomic_add v3, v1, v2, {s(sDBG,2)} sc0")
        o("s_waitcnt vmcnt(0)")
        o("v_mov_b32 v1, 0")
        o("ds_write_b32 v1, v3")
        o("s_waitcnt lgkmcnt(0)")
        o("s_mov_b64 exec, -1")
        A.label("L_rec_noticket")
        o("s_barrier")
        o("v_mov_b32 v1, 0")
        o("ds_read_b32 v3, v1")
        o("s_waitcnt lgkmcnt(0)")
        o(f"v_readfirstlane_b32 s{sJ}, v3")
        o("s_barrier")
        if X4:
            o(f"s_cmp_ge_u32 s{sG}, {X4LIM}"); o("s_cbranch_scc1 L_rec_end")
            o(f"s_sub_u32 s{sG}, s{sG}, {X4LIM-4}") if False else None
            o(f"s_lshl_b32 s{sG}, s{sG}, 1"); o(f"s_lshr_b32 s{sT0}, s{sJ}, 4"); o(f"s_add_u32 s{sG}, s{sG}, s{sT0}")
        o(f"s_and_b32 s{sJ}, s{sJ}, 15")
        o(f"s_and_b32 s{sG}, s{sG}, 7")
    else:
        o(f"s_load_dwordx2 {s(sWQ,2)}, s[0:1], {KA_WQ}")
        o(f"s_load_dwordx2 {s(sWK,2)}, s[0:1], {KA_WK}")
        o(f"s_load_dwordx2 {s(sWV,2)}, s[0:1], {KA_WV}")
        o(f"s_load_dwordx2 {s(sWO,2)}, s[0:1], {KA_WO}")
        o(f"s_load_dwordx2 {s(sWS,2)}, s[0:1], {KA_WS}")
        o("s_waitcnt lgkmcnt(0)")
    o(f"s_lshr_b32 s{sHA}, s{sJ}, 2")
    o(f"s_and_b32 s{sC}, s{sJ}, 3")
    o(f"s_lshl_b32 s{sHead}, s{sG}, 2")
    o(f"s_add_u32 s{sHead}, s{sHead}, s{sW}")
    vi, vg, vr = vT[0], vT[1], vT[2]
    o(f"v_and_b32 v{vi}, 15, v{vL}")
    o(f"v_lshrrev_b32 v{vg}, 4, v{vL}")
    o(f"v_and_b32 v{vr}, 7, v{vL}")
    o(f"v_lshlrev_b32 v{vL16}, 4, v{vL}")

    o(f"s_lshl_b32 s{sT0}, s{sG}, 2")
    o(f"s_add_u32 s{sT0}, s{sT0}, s{sHA}")
    o(f"s_lshl_b32 s{sT0}, s{sT0}, 8")
    o(f"s_lshl_b32 s{sT1}, s{sC}, 6")
    o(f"s_add_u32 s{sT0}, s{sT0}, s{sT1}")
    v1, v2, v3, v4 = vT[3], vT[4], vT[5], vT[6]
    o(f"v_lshrrev_b32 v{v1}, 2, v{vL}")
    o(f"v_lshlrev_b32 v{v1}, 13, v{v1}")
    o(f"v_and_b32 v{v2}, 3, v{vL}")
    o(f"v_lshl_add_u32 v{v1}, v{v2}, 4, v{v1}")
    o(f"v_add_u32 v{v1}, s{sT0}, v{v1}")
    o(f"s_lshl_b32 s{sT1}, s{sW}, 21")
    o(f"v_add_u32 v{v1}, s{sT1}, v{v1}")
    def dma_strip(sbase, ldsbase, nblk, rowstep):
        o(f"v_mov_b32 v{v2}, v{v1}")
        o(f"s_lshl_b32 s{sT2}, s{sW}, {(nblk*1024).bit_length()-1}")
        o(f"s_add_u32 s{sT2}, s{sT2}, {ldsbase}")
        for m in range(nblk):
            o(f"s_mov_b32 m0, s{sT2}")
            o(f"s_add_u32 s{sT2}, s{sT2}, 1024")
            o(f"global_load_lds_dwordx4 v{v2}, {s(sbase,2)}")
            if m + 1 < nblk: o(f"v_add_u32 v{v2}, {rowstep}, v{v2}")
    if KVFIRST:
        def rd_qk():
            o(f"s_and_b32 s{sT0}, s{sW}, 1"); o(f"s_lshl_b32 s{sT0}, s{sT0}, 5")
            for i in range(16):
                o(f"s_lshl_b32 s{sT2}, s{sW}, 2"); o(f"s_add_u32 s{sT2}, s{sT2}, {i}"); o(f"s_and_b32 s{sT2}, s{sT2}, 15"); o(f"s_lshl_b32 s{sT2}, s{sT2}, 12")
                o(f"s_add_u32 s{sT2}, s{sT2}, s{sT0}"); o(f"v_add_u32 v{v4}, s{sT2}, v{v3}")
                for half in range(2):
                    d = (i * 2 + half) * 4
                    o(f"ds_read_b64_tr_b16 {a(d,2)}, v{v4} offset:{half*2048}"); o(f"ds_read_b64_tr_b16 {a(d+2,2)}, v{v4} offset:{half*2048+256}")
                if i % 4 == 3: o("s_waitcnt lgkmcnt(0)")
        dma_strip(sWK, 0, 16, 131072)
        dma_strip(sWV, 65536, 16, 131072)
        o(f"v_lshrrev_b32 v{v3}, 2, v{vi}"); o(f"v_lshl_add_u32 v{v3}, v{vg}, 3, v{v3}"); o(f"v_lshlrev_b32 v{v3}, 6, v{v3}")
        o(f"v_and_b32 v{v4}, 3, v{vi}"); o(f"v_lshl_add_u32 v{v3}, v{v4}, 3, v{v3}")
        o("s_waitcnt vmcnt(0)"); o("s_barrier")
        o(f"s_cmp_lt_u32 s{sW}, 2"); o("s_cbranch_scc1 L_kf1")
        rd_qk()
        A.label("L_kf1")
        o(f"s_and_b32 s{sT0}, s{sW}, 1"); o(f"s_lshl_b32 s{sT0}, s{sT0}, 5"); o(f"s_add_u32 s{sT0}, s{sT0}, 65536")
        for i in range(8):
            o(f"s_lshl_b32 s{sT2}, s{sW}, 2"); o(f"s_add_u32 s{sT2}, s{sT2}, {i}"); o(f"s_and_b32 s{sT2}, s{sT2}, 15"); o(f"s_lshl_b32 s{sT2}, s{sT2}, 12")
            o(f"s_add_u32 s{sT2}, s{sT2}, s{sT0}"); o(f"v_add_u32 v{v4}, s{sT2}, v{v3}")
            for half in range(2):
                d = 128 + (i * 2 + half) * 4
                o(f"ds_read_b64_tr_b16 {a(d,2)}, v{v4} offset:{half*2048}"); o(f"ds_read_b64_tr_b16 {a(d+2,2)}, v{v4} offset:{half*2048+256}")
            if i % 4 == 3: o("s_waitcnt lgkmcnt(0)")
        o("s_barrier")
        dma_strip(sWQ, 0, 16, 131072)
        o(f"v_lshrrev_b32 v{v1}, 3, v{vL}"); o(f"v_lshlrev_b32 v{v1}, 11, v{v1}"); o(f"v_and_b32 v{v2}, 7, v{vL}"); o(f"v_lshl_add_u32 v{v1}, v{v2}, 4, v{v1}")
        o(f"s_lshl_b32 s{sT0}, s{sG}, 20"); o(f"s_lshl_b32 s{sT1}, s{sJ}, 7"); o(f"s_add_u32 s{sT0}, s{sT0}, s{sT1}")
        o(f"s_lshl_b32 s{sT1}, s{sW}, 18"); o(f"s_add_u32 s{sT0}, s{sT0}, s{sT1}"); o(f"v_add_u32 v{v1}, s{sT0}, v{v1}")
        dma_strip(sWO, 65536, 16, 16384)
        o("s_waitcnt vmcnt(0)"); o("s_barrier")
        o(f"s_cmp_ge_u32 s{sW}, 2"); o("s_cbranch_scc1 L_kf2")
        rd_qk()
        A.label("L_kf2")
    else:
        dma_strip(sWQ, 0, 16, 131072)
        dma_strip(sWK, 65536, 16, 131072)
        o(f"v_lshrrev_b32 v{v3}, 2, v{vi}")
        o(f"v_lshl_add_u32 v{v3}, v{vg}, 3, v{v3}")
        o(f"v_lshlrev_b32 v{v3}, 6, v{v3}")
        o(f"v_and_b32 v{v4}, 3, v{vi}")
        o(f"v_lshl_add_u32 v{v3}, v{v4}, 3, v{v3}")
        o("s_waitcnt vmcnt(0)")
        o("s_barrier")
        o(f"s_lshr_b32 s{sT0}, s{sW}, 1")
        o(f"s_lshl_b32 s{sT0}, s{sT0}, 16")
        o(f"s_and_b32 s{sT1}, s{sW}, 1")
        o(f"s_lshl_b32 s{sT1}, s{sT1}, 5")
        o(f"s_add_u32 s{sT0}, s{sT0}, s{sT1}")
        for i in range(16):
            o(f"s_lshl_b32 s{sT2}, s{sW}, 2")
            o(f"s_add_u32 s{sT2}, s{sT2}, {i}")
            o(f"s_and_b32 s{sT2}, s{sT2}, 15")
            o(f"s_lshl_b32 s{sT2}, s{sT2}, 12")
            o(f"s_add_u32 s{sT2}, s{sT2}, s{sT0}")
            o(f"v_add_u32 v{v4}, s{sT2}, v{v3}")
            for half in range(2):
                d = (i * 2 + half) * 4
                o(f"ds_read_b64_tr_b16 {a(d,2)}, v{v4} offset:{half*2048}")
                o(f"ds_read_b64_tr_b16 {a(d+2,2)}, v{v4} offset:{half*2048+256}")
            if i % 4 == 3: o("s_waitcnt lgkmcnt(0)")
        o("s_barrier")
        dma_strip(sWV, 0, 16, 131072)
        o(f"v_lshrrev_b32 v{v1}, 3, v{vL}")
        o(f"v_lshlrev_b32 v{v1}, 11, v{v1}")
        o(f"v_and_b32 v{v2}, 7, v{vL}")
        o(f"v_lshl_add_u32 v{v1}, v{v2}, 4, v{v1}")
        o(f"s_lshl_b32 s{sT0}, s{sG}, 20")
        o(f"s_lshl_b32 s{sT1}, s{sJ}, 7")
        o(f"s_add_u32 s{sT0}, s{sT0}, s{sT1}")
        o(f"s_lshl_b32 s{sT1}, s{sW}, 18")
        o(f"s_add_u32 s{sT0}, s{sT0}, s{sT1}")
        o(f"v_add_u32 v{v1}, s{sT0}, v{v1}")
        dma_strip(sWO, 65536, 16, 16384)
        o("s_waitcnt vmcnt(0)")
        o("s_barrier")
        o(f"s_and_b32 s{sT0}, s{sW}, 1")
        o(f"s_lshl_b32 s{sT0}, s{sT0}, 5")
        for i in range(8):
            o(f"s_lshl_b32 s{sT2}, s{sW}, 2")
            o(f"s_add_u32 s{sT2}, s{sT2}, {i}")
            o(f"s_and_b32 s{sT2}, s{sT2}, 15")
            o(f"s_lshl_b32 s{sT2}, s{sT2}, 12")
            o(f"s_add_u32 s{sT2}, s{sT2}, s{sT0}")
            o(f"v_add_u32 v{v4}, s{sT2}, v{v3}")
            for half in range(2):
                d = 128 + (i * 2 + half) * 4
                o(f"ds_read_b64_tr_b16 {a(d,2)}, v{v4} offset:{half*2048}")
                o(f"ds_read_b64_tr_b16 {a(d+2,2)}, v{v4} offset:{half*2048+256}")
            if i % 4 == 3: o("s_waitcnt lgkmcnt(0)")
    o(f"v_lshrrev_b32 v{v3}, 2, v{vi}")
    o(f"v_lshl_add_u32 v{v3}, v{vg}, 2, v{v3}")
    o(f"v_lshlrev_b32 v{v3}, 7, v{v3}")
    o(f"v_and_b32 v{v4}, 3, v{vi}")
    o(f"v_lshl_add_u32 v{v3}, v{v4}, 3, v{v3}")
    o(f"s_lshl_b32 s{sT0}, s{sW}, 14")
    o(f"s_add_u32 s{sT0}, s{sT0}, 65536")
    o(f"v_add_u32 v{v4}, s{sT0}, v{v3}")
    for ct in range(4):
        for u in range(4):
            d = 192 + (ct * 4 + u) * 4
            o(f"ds_read_b64_tr_b16 {a(d,2)}, v{v4} offset:{u*4096+ct*32}")
            o(f"ds_read_b64_tr_b16 {a(d+2,2)}, v{v4} offset:{u*4096+2048+ct*32}")
        o("s_waitcnt lgkmcnt(0)")
    o("s_barrier")

    if hook:
        A.raw(hook)
        o(f"v_and_b32 v{vi}, 15, v{vL}"); o(f"v_lshrrev_b32 v{vg}, 4, v{vL}"); o(f"v_and_b32 v{vr}, 7, v{vL}")
    o(f"s_lshl_b32 s{sT0}, s{sW}, 12")
    o(f"v_add_u32 v{vE3}, s{sT0}, v{vL16}")
    o(f"v_lshrrev_b32 v{v1}, 1, v{vg}")
    o(f"v_lshlrev_b32 v{v1}, 8, v{v1}")
    o(f"v_lshl_add_u32 v{v1}, v{vr}, 4, v{v1}")
    o(f"s_lshr_b32 s{sT0}, s{sC}, 1")
    o(f"s_lshl_b32 s{sT0}, s{sT0}, 10")
    o(f"s_and_b32 s{sT1}, s{sW}, 1")
    o(f"s_lshl_b32 s{sT1}, s{sT1}, 9")
    o(f"s_add_u32 s{sT0}, s{sT0}, s{sT1}")
    o(f"s_and_b32 s{sT1}, s{sC}, 1")
    o(f"s_lshl_b32 s{sT1}, s{sT1}, 7")
    o(f"s_add_u32 s{sT0}, s{sT0}, s{sT1}")
    o(f"v_add_u32 v{vKMst}, s{sT0}, v{v1}")
    o(f"s_lshl_b32 s{sT0}, s{sHA}, 12")
    o(f"s_lshr_b32 s{sT1}, s{sW}, 1")
    o(f"s_lshl_b32 s{sT1}, s{sT1}, 11")
    o(f"s_add_u32 s{sT0}, s{sT0}, s{sT1}")
    o(f"v_add_u32 v{vQKst}, s{sT0}, v{vKMst}")
    o(f"s_lshl_b32 s{sT0}, s{sHA}, 11")
    o(f"s_lshl_b32 s{sT1}, s{sC}, 9")
    o(f"s_add_u32 s{sT0}, s{sT0}, s{sT1}")
    o(f"v_add_u32 v{vVst}, s{sT0}, v{vL16}")
    o(f"s_lshl_b32 s{sT0}, s{sW}, 11")
    o(f"v_add_u32 v{vVld}, s{sT0}, v{vL16}")
    o(f"s_lshl_b32 s{sT0}, s{sG}, 4")
    o(f"s_add_u32 s{sT0}, s{sT0}, s{sJ}")
    o(f"s_lshl_b32 s{sT0}, s{sT0}, 10")
    o(f"s_and_b32 s{sT1}, s{sW}, 1")
    o(f"s_lshl_b32 s{sT1}, s{sT1}, 9")
    o(f"s_add_u32 s{sT0}, s{sT0}, s{sT1}")
    o(f"s_lshr_b32 s{sT1}, s{sW}, 1")
    o(f"s_lshl_b32 s{sT1}, s{sT1}, 7")
    o(f"s_add_u32 s{sT0}, s{sT0}, s{sT1}")
    o(f"v_add_u32 v{vPst}, s{sT0}, v{v1}")
    o(f"v_lshlrev_b32 v{vPld}, 14, v{vg}")
    o(f"v_lshl_add_u32 v{vPld}, v{vi}, 4, v{vPld}")
    o(f"s_lshl_b32 s{sT0}, s{sJ}, 10")
    o(f"s_lshl_b32 s{sT1}, s{sW}, 8")
    o(f"s_add_u32 s{sT0}, s{sT0}, s{sT1}")
    o(f"v_add_u32 v{vPld}, s{sT0}, v{vPld}")
    o(f"v_add_u32 v{vMst}, s{sT0}, v{vL16}")
    o(f"v_lshlrev_b32 v{vKx}, 13, v{vi}")
    o(f"v_lshl_add_u32 v{vKx}, v{vg}, 4, v{vKx}")
    o(f"s_lshl_b32 s{sT0}, s{sHead}, 8")
    o(f"v_add_u32 v{vKx}, s{sT0}, v{vKx}")
    o(f"v_mov_b32 v{vLdsM}, v{vL16}")
    for d in range(4):
        o(f"v_mov_b32 v{vDelta+d}, 0")
        o(f"v_mov_b32 v{v1}, 0x3f80")
        o(f"v_cmp_eq_u32 vcc, {2*d}, v{vi}")
        o(f"v_cndmask_b32 v{vDelta+d}, v{vDelta+d}, v{v1}, vcc")
        o(f"v_mov_b32 v{v1}, 0x3f800000")
        o(f"v_cmp_eq_u32 vcc, {2*d+1}, v{vi}")
        o(f"v_cndmask_b32 v{vDelta+d}, v{vDelta+d}, v{v1}, vcc")
    o(f"v_mov_b32 v{v1}, 0xff800000")
    o(f"v_cmp_lt_u32 vcc, 31, v{vL}")
    o(f"v_cndmask_b32 v{vNeg}, 0, v{v1}, vcc")
    for r in range(1, 4): o(f"v_mov_b32 v{vNeg+r}, v{vNeg}")
    for r in range(4): o(f"v_mov_b32 v{vSent+r}, -1")
    o(f"s_mov_b32 s{sMaskQK}, 0xff"); o(f"s_mov_b32 s{sMaskQK+1}, 0xff")
    o(f"s_mov_b32 s{sSelV}, -1"); o(f"s_mov_b32 s{sSelV+1}, 0")
    import math
    cs = 128 ** -0.5 * math.log2(math.e)
    import struct
    o(f"s_mov_b32 s{sScale}, 0x{struct.unpack('<I', struct.pack('<f', cs))[0]:08x}")
    o(f"s_mov_b32 s{sScale+1}, s{sScale}")
    o(f"s_mov_b32 s{sLim}, 0x400000")
    o(f"s_mov_b32 s{sStep}, 0")
    def addbase(dst, off, extra_s=None):
        o(f"s_add_u32 s{dst}, s{sWS}, {off & 0xffffffff}")
        o(f"s_addc_u32 s{dst+1}, s{sWS+1}, 0")
        if extra_s is not None:
            o(f"s_add_u32 s{dst}, s{dst}, s{extra_s}")
            o(f"s_addc_u32 s{dst+1}, s{dst+1}, 0")
    o(f"s_lshl_b32 s{sT0}, s{sHead}, 13")
    o(f"s_add_u32 s{sT0}, s{sT0}, 4096")
    addbase(sKX, WS_K, sT0)
    o(f"s_lshl_b32 s{sT0}, s{sHead}, 13")
    o(f"s_add_u32 s{sT0}, s{sT0}, 4096")
    addbase(sVX, WS_VT, sT0)
    o(f"s_lshl_b32 s{sT0}, s{sHead}, 11")
    addbase(sKM, WS_KM, sT0)
    addbase(sVM, WS_VM, sT0)
    sCNT = 16
    addbase(sCNT, WS_CNT + cntoff)
    def kv_wait(chunk_sreg_expr_setup, target, tag):
        o(f"s_lshl_b32 s{sT0}, s{sT0}, 3"); o(f"s_add_u32 s{sT0}, s{sT0}, s{sG}"); o(f"s_lshl_b32 s{sT0}, s{sT0}, 7")
        o(f"v_mov_b32 v{vX+2}, s{sT0}")
        A.label(f"L_kvw_{tag}")
        o(f"global_load_dword v{vX+3}, v{vX+2}, {s(sCNT,2)} sc1")
        o("s_waitcnt vmcnt(0)")
        o(f"v_readfirstlane_b32 s{sT1}, v{vX+3}")
        o(f"s_cmp_ge_u32 s{sT1}, {target}")
        o(f"s_cbranch_scc1 L_kvw_{tag}_ok")
        o("s_sleep 4")
        o(f"s_sub_u32 s{sLim}, s{sLim}, 1")
        o(f"s_cbranch_scc0 L_kvw_{tag}")
        o(f"s_mov_b32 s{sLim}, 0")
        A.label(f"L_kvw_{tag}_ok")
    sEC = 94
    def gpoll(base, tag, sleep=12, allwaves=False):
        if not allwaves:
            o(f"s_cmp_lg_u32 s{sW}, 0"); o(f"s_cbranch_scc1 L_gp_{tag}_ok")
        o(f"v_mov_b32 v{vX+2}, s{sT0}")
        A.label(f"L_gp_{tag}")
        o(f"global_load_dword v{vX+3}, v{vX+2}, {s(base,2)} sc1")
        o("s_waitcnt vmcnt(0)")
        o(f"v_readfirstlane_b32 s{sT1}, v{vX+3}")
        o(f"s_cmp_ge_u32 s{sT1}, s{sT2}")
        o(f"s_cbranch_scc1 L_gp_{tag}_ok")
        o(f"s_sleep {sleep}")
        o(f"s_sub_u32 s{sLim}, s{sLim}, 1")
        o(f"s_cbranch_scc0 L_gp_{tag}")
        o(f"s_mov_b32 s{sLim}, 0")
        A.label(f"L_gp_{tag}_ok")
        if not allwaves: o("s_barrier")
    if KVCHK and not EARLY:
        o(f"s_mov_b32 s{sT0}, 0")
        kv_wait(None, 16, "0")
    if KVCHK and EARLY:
        o(f"s_mov_b32 s{sT0}, {EC_FILL*4}"); o(f"s_mov_b32 s{sT2}, 128"); gpoll(sEC, "f")
        o(f"s_lshl_b32 s{sT0}, s{sG}, 2"); o(f"s_add_u32 s{sT0}, s{sT0}, {EC_KVH0*4}"); o(f"s_mov_b32 s{sT2}, 16"); gpoll(sEC, "0")
    def load_kx():
        for t in range(8):
            o(f"global_load_dwordx4 {v(vK+t*4,4)}, v{vL16}, {s(sKX,2)} offset:{t*1024-4096}")
    load_kx()
    if prof:
        o(f"s_lshl_b32 s{sT0}, s{sG}, 4")
        o(f"s_add_u32 s{sT0}, s{sT0}, s{sJ}")
        o(f"s_lshl_b32 s{sT0}, s{sT0}, 2")
        o(f"s_add_u32 s{sT0}, s{sT0}, s{sW}")
        o(f"s_lshl_b32 s{sT0}, s{sT0}, 12")
        addbase(sProf, WS_PROF, sT0)
    nst = [0]
    def stamp():
        if not prof: return
        k = nst[0]; nst[0] += 1
        o(f"{TIMER} {s(sTs + 2*k, 2)}")

    def check(regs, lab_ok, lab_retry, tmp):
        regs = list(regs)
        o(f"v_max3_u32 v{tmp}, v{regs[0]}, v{regs[1]}, v{regs[2]}")
        k = 3
        while k + 1 < len(regs):
            o(f"v_max3_u32 v{tmp}, v{tmp}, v{regs[k]}, v{regs[k+1]}"); k += 2
        if k < len(regs):
            o(f"v_max_u32 v{tmp}, v{tmp}, v{regs[k]}")
        o(f"v_cmp_eq_u32 vcc, -1, v{tmp}")
        o(f"s_cbranch_vccz {lab_ok}")
        o(f"s_sub_u32 s{sLim}, s{sLim}, 1")
        o(f"s_cbranch_scc1 {lab_ok}_to")
        o(f"s_branch {lab_retry}")
        A.label(f"{lab_ok}_to")
        o(f"s_mov_b32 s{sLim}, 0")
        A.label(lab_ok)


    sCnt = 98
    vOo = [112, 116, 120, 124, 192, 196, 200, 204, 216, 220, 224, 228]
    vPf = 252
    def merge(main, side, every, start=0):
        side = list(side); out = [];
        for k, m_ in enumerate(main):
            out.append(m_)
            if side and k >= start and (k - start) % every == every - 1: out.append(side.pop(0))
        return out + side
    def emit(L):
        for x in L: o(x)
    def check(regs, lab_ok, lab_retry, tmp, cnt=None):
        regs = list(regs)
        o(f"v_max3_u32 v{tmp}, v{regs[0]}, v{regs[1]}, v{regs[2]}")
        k = 3
        while k + 1 < len(regs):
            o(f"v_max3_u32 v{tmp}, v{tmp}, v{regs[k]}, v{regs[k+1]}"); k += 2
        if k < len(regs):
            o(f"v_max_u32 v{tmp}, v{tmp}, v{regs[k]}")
        o(f"v_cmp_eq_u32 vcc, -1, v{tmp}")
        o(f"s_cbranch_vccz {lab_ok}")
        if prof and cnt is not None: o(f"s_add_u32 s{sCnt+cnt}, s{sCnt+cnt}, 1")
        o(f"s_sub_u32 s{sLim}, s{sLim}, 1")
        o(f"s_cbranch_scc0 {lab_retry}")
        o(f"s_mov_b32 s{sLim}, 0")
        A.label(lab_ok)
    sM = 88
    def mpoll(loads, tag, cnt):
        n = len(loads)
        regs = [b + r for b, _ in loads for r in range(4)]
        o(f"v_max3_u32 v{vX}, v{regs[0]}, v{regs[1]}, v{regs[2]}")
        k = 3
        while k + 1 < len(regs):
            o(f"v_max3_u32 v{vX}, v{vX}, v{regs[k]}, v{regs[k+1]}"); k += 2
        if k < len(regs): o(f"v_max_u32 v{vX}, v{vX}, v{regs[k]}")
        o(f"v_cmp_eq_u32 vcc, -1, v{vX}")
        o(f"s_cbranch_vccz L_{tag}_ok")
        A.label(f"L_{tag}_retry")
        if prof: o(f"s_add_u32 s{sCnt+cnt}, s{sCnt+cnt}, 1")
        for i, (b, rest) in enumerate(loads):
            o(f"v_max3_u32 v{vX}, v{b}, v{b+1}, v{b+2}")
            o(f"v_max_u32 v{vX}, v{vX}, v{b+3}")
            o(f"v_cmp_eq_u32 vcc, -1, v{vX}")
            o(f"s_cbranch_vccz L_{tag}_sk{i}")
            o("s_mov_b64 exec, vcc")
            o(f"global_load_dwordx4 {v(b,4)}, {rest}")
            o("s_mov_b64 exec, -1")
            A.label(f"L_{tag}_sk{i}")
        o("s_waitcnt vmcnt(0)")
        o(f"v_max3_u32 v{vX}, v{regs[0]}, v{regs[1]}, v{regs[2]}")
        k = 3
        while k + 1 < len(regs):
            o(f"v_max3_u32 v{vX}, v{vX}, v{regs[k]}, v{regs[k+1]}"); k += 2
        if k < len(regs): o(f"v_max_u32 v{vX}, v{vX}, v{regs[k]}")
        o(f"v_cmp_eq_u32 vcc, -1, v{vX}")
        o(f"s_cbranch_vccz L_{tag}_ok")
        o(f"s_sub_u32 s{sLim}, s{sLim}, 1")
        o(f"s_cbranch_scc0 L_{tag}_retry")
        o(f"s_mov_b32 s{sLim}, 0")
        A.label(f"L_{tag}_ok")
    if prof:
        for k in range(4): o(f"s_mov_b32 s{sCnt+k}, 0")
    vPfo = 58
    o(f"s_lshl_b32 s{sT1}, s{sG}, 2"); o(f"s_add_u32 s{sT1}, s{sT1}, s{sHA}"); o(f"s_lshl_b32 s{sT1}, s{sT1}, 13")
    o(f"s_lshl_b32 s{sT2}, s{sC}, 11"); o(f"s_add_u32 s{sT1}, s{sT1}, s{sT2}")
    o(f"s_and_b32 s{sT2}, s{sW}, 1"); o(f"s_lshl_b32 s{sT2}, s{sT2}, 10"); o(f"s_add_u32 s{sT1}, s{sT1}, s{sT2}")
    o(f"v_add_u32 v{vPfo}, s{sT1}, v{vL16}")
    o(f"s_cmp_lt_u32 s{sW}, 2")
    sPF = 18
    o(f"s_mov_b32 s{sT0}, {WS_K + 2*262144}")
    o(f"s_mov_b32 s{sT1}, {WS_VT + 2*262144}")
    o(f"s_cselect_b32 s{sT0}, s{sT0}, s{sT1}")
    o(f"s_add_u32 s{sPF}, s{sWS}, s{sT0}"); o(f"s_addc_u32 s{sPF+1}, s{sWS+1}, 0")
    def kx_loads():
        if NOK: return ["s_nop 0"] * 8
        return [f"global_load_dwordx4 {v(vK+t*4,4)}, v{vL16}, {s(sKX,2)} offset:{t*1024-4096}" for t in range(8)]
    def vx_loads():
        if NOV: return ["s_nop 0"] * 8
        return [f"global_load_dwordx4 {v(vV+4*t,4)}, v{vL16}, {s(sVX,2)} offset:{t*1024-4096}" for t in range(8)]
    vRd = [None, 232, 233, 234]
    for hs in (1, 2, 3):
        o(f"v_add_u32 v{vRd[hs]}, {hs*4096}, v{vE3}")
        o(f"v_and_b32 v{vRd[hs]}, 0x3fff, v{vRd[hs]}")
    vVw, vVr, vRw = 235, 59, 15
    o(f"s_lshl_b32 s{sT0}, s{sW}, 10")
    o(f"v_add_u32 v{vVw}, s{sT0}, v{vL16}")
    o(f"v_and_b32 v{vVr}, 31, v{vL}")
    o(f"v_lshlrev_b32 v{vVr}, 4, v{vVr}")
    o(f"v_lshrrev_b32 v{vX+2}, 5, v{vL}")
    o(f"v_lshl_add_u32 v{vVr}, v{vX+2}, 10, v{vVr}")
    vL4 = vX + 3
    o(f"v_lshlrev_b32 v{vL4}, 2, v{vL}")
    o(f"s_lshl_b32 s{sT0}, s{sW}, 8")
    o(f"v_add_u32 v{vRw}, s{sT0}, v{vL4}")
    vRr = [None, 1, 2, 3]
    for hs in (1, 2, 3):
        o(f"s_add_u32 s{sT0}, s{sW}, {hs}"); o(f"s_and_b32 s{sT0}, s{sT0}, 3"); o(f"s_lshl_b32 s{sT0}, s{sT0}, 8")
        o(f"v_add_u32 v{vRr[hs]}, s{sT0}, v{vL4}")
    vOnes = 4
    for r in range(4): o(f"v_mov_b32 v{vOnes+r}, 0x3f803f80")

    LDS_R = 36864
    A.label("L_step")
    nst[0] = 0
    if KVCHK:
        if FILL2 is not None:
            o(f"s_cmp_lg_u32 s{sStep}, 6"); o("s_cbranch_scc1 L_kvf2")
            o(f"s_mov_b32 s{sT0}, {FILL2}"); o(f"s_mov_b32 s{sT2}, 128"); gpoll(sCNT, "l2", 4)
            A.label("L_kvf2")
        if EARLY:
            o(f"s_cmp_lg_u32 s{sStep}, 2"); o("s_cbranch_scc1 L_kvn2")
            o(f"s_lshl_b32 s{sT0}, s{sG}, 2"); o(f"s_add_u32 s{sT0}, s{sT0}, {EC_KVH1*4}"); o(f"s_mov_b32 s{sT2}, 16"); gpoll(sEC, "h1", 4)
            A.label("L_kvn2")
            o(f"s_cmp_lg_u32 s{sStep}, 6"); o("s_cbranch_scc1 L_kvn6")
            o(f"s_mov_b32 s{sT0}, {EC_FILL2*4}"); o(f"s_mov_b32 s{sT2}, 128"); gpoll(sEC, "f2", 4)
            A.label("L_kvn6")
        o(f"s_add_u32 s{sT0}, s{sStep}, 2"); o(f"s_and_b32 s{sT1}, s{sT0}, 7"); o(f"s_cmp_lg_u32 s{sT1}, 0"); o("s_cbranch_scc1 L_kvskip")
        o(f"s_cmp_ge_u32 s{sT0}, 64"); o("s_cbranch_scc1 L_kvskip")
        o(f"s_lshr_b32 s{sT0}, s{sT0}, 3")
        if EARLY:
            o(f"s_cmp_eq_u32 s{sT0}, 1"); o(f"s_cselect_b32 s{sT2}, 16, 4")
        else:
            o(f"s_mov_b32 s{sT2}, 4")
        o(f"v_readfirstlane_b32 s{sT1}, v{vFlag}")
        o(f"s_cmp_ge_u32 s{sT1}, s{sT2}"); o("s_cbranch_scc1 L_kvskip")
        o(f"s_lshl_b32 s{sT0}, s{sT0}, 3"); o(f"s_add_u32 s{sT0}, s{sT0}, s{sG}"); o(f"s_lshl_b32 s{sT0}, s{sT0}, 7")
        gpoll(sCNT, "n", 4, allwaves=True)
        A.label("L_kvskip")
    o(f"s_and_b32 s{sSlot}, s{sStep}, 3")
    o(f"s_lshl_b32 s{sT0}, s{sSlot}, 17")
    o(f"s_lshl_b32 s{sT1}, s{sG}, 14")
    o(f"s_add_u32 s{sT2}, s{sT0}, s{sT1}")
    addbase(sMEMc, WS_RMEM, sT2)
    e3_loads = [(vB + 4*u, f"v{vE3}, {s(sMEMc,2)} offset:{u*1024} sc1") for u in range(4)]
    def qk_mfma(i, first=False):
        for half, acc in ((0, vA0), (1, vA1)):
            c = "0" if first else v(acc, 4)
            o(f"v_mfma_f32_16x16x32_bf16 {v(acc,4)}, {a((i*2+half)*4,4)}, {v(vB+4*i,4)}, {c}")
    def salu_bases():
        addbase(sQK, WS_RQK, sT2)
        o(f"s_lshl_b32 s{sT3}, s{sStep}, 17")
        addbase(sPART, WS_PARTF, sT3)
        o(f"s_add_u32 s{sPART2}, s{sPART}, 65536"); o(f"s_addc_u32 s{sPART2+1}, s{sPART+1}, 0")
        o(f"s_lshr_b32 s{sT3}, s{sT2}, 1")
        addbase(sVR, WS_RV, sT3)
        o(f"s_add_u32 s{sT3}, s{sStep}, 1"); o(f"s_and_b32 s{sT3}, s{sT3}, 3"); o(f"s_lshl_b32 s{sT3}, s{sT3}, 17"); o(f"s_add_u32 s{sT3}, s{sT3}, s{sT1}")
        addbase(sMEMn, WS_RMEM, sT3)
        o(f"s_xor_b32 s{sT3}, s{sT0}, {2<<17}")
        o(f"s_add_u32 s{sT3}, s{sT3}, s{sT1}")
        addbase(sRq, WS_RQK, sT3)
        o(f"s_lshr_b32 s{sT3}, s{sT3}, 1")
        addbase(sRv, WS_RV, sT3)
        o(f"s_add_u32 s{sT3}, s{sStep}, 3"); o(f"s_and_b32 s{sT3}, s{sT3}, 3"); o(f"s_lshl_b32 s{sT3}, s{sT3}, 17"); o(f"s_add_u32 s{sT3}, s{sT3}, s{sT1}")
        addbase(sRm, WS_RMEM, sT3)
    def simple_poll(loads, tag, cnt, first_wait):
        regs = [b + r for b, _ in loads for r in range(4)]
        o(f"s_waitcnt vmcnt({first_wait})")
        o(f"s_branch L_{tag}_c")
        A.label(f"L_{tag}_r")
        for b, rest in loads: o(f"global_load_dwordx4 {v(b,4)}, {rest}")
        o("s_waitcnt vmcnt(0)")
        A.label(f"L_{tag}_c")
        check(regs, f"L_{tag}_ok", f"L_{tag}_r", vX, cnt)
    def chk_list(regs, tmp):
        regs = list(regs); L = [f"v_max3_u32 v{tmp}, v{regs[0]}, v{regs[1]}, v{regs[2]}"]
        k = 3
        while k + 1 < len(regs):
            L.append(f"v_max3_u32 v{tmp}, v{tmp}, v{regs[k]}, v{regs[k+1]}"); k += 2
        if k < len(regs): L.append(f"v_max_u32 v{tmp}, v{tmp}, v{regs[k]}")
        L.append(f"v_cmp_eq_u32 vcc, -1, v{tmp}")
        return L
    def retry_tail(tag, cnt, issue, back):
        o(f"s_cbranch_vccz L_{tag}_fok")
        if prof: o(f"s_add_u32 s{sCnt+cnt}, s{sCnt+cnt}, 1")
        o(f"s_sub_u32 s{sLim}, s{sLim}, 1")
        o(f"s_cbranch_scc1 L_{tag}_fto")
        issue()
        o("s_waitcnt vmcnt(0)")
        o(f"s_branch {back}")
        A.label(f"L_{tag}_fto")
        o(f"s_mov_b32 s{sLim}, 0")
        A.label(f"L_{tag}_fok")
    n0 = len(A.lines); salu_bases(); sl = A.lines[n0:]; del A.lines[n0:]
    nb = len(sl) if E3_SALU_FIRST == 1 else (0 if E3_SALU_FIRST == 0 else min(len(sl), E3_SALU_FIRST))
    while 0 < nb < len(sl) and sl[nb].startswith("s_addc"): nb += 1
    for x in sl[:nb]: o(x)
    stamp()
    for b, rest in e3_loads: o(f"global_load_dwordx4 {v(b,4)}, {rest}")
    for x in sl[nb:]: o(x)
    if FC & 16:
        def qk1(i, half, first, src=None):
            acc = vA0 if half == 0 else vA1
            c = "0" if first else v(acc, 4)
            sr = (vB + 4 * i) if src is None else src
            return f"v_mfma_f32_16x16x32_bf16 {v(acc,4)}, {a((i*2+half)*4,4)}, {v(sr,4)}, {c}"
        wr = [f"ds_write_b128 v{vE3}, {v(b,4)} offset:{LDS_MEM + u*1024}" for u, (b, rest) in enumerate(e3_loads)]
        if FC & 32:
            v2 = 192
            e3b = [(v2 + 4 * u, rest) for u, (b, rest) in enumerate(e3_loads)]
            issA = lambda: [o(f"global_load_dwordx4 {v(b,4)}, {rest}") for b, rest in e3_loads]
            issB = lambda: [o(f"global_load_dwordx4 {v(b,4)}, {rest}") for b, rest in e3b]
            if E3_SP: o(f"s_sleep {E3_SP}")
            issB()
            A.label("L_e3_lp")
            o("s_waitcnt vmcnt(4)")
            emit(chk_list(range(vB, vB + 16), vX)); o("s_cbranch_vccz L_e3_okA")
            if prof: o(f"s_add_u32 s{sCnt}, s{sCnt}, 1")
            issA()
            o("s_waitcnt vmcnt(4)")
            emit(chk_list(range(v2, v2 + 16), vX)); o("s_cbranch_vccz L_e3_okB")
            if prof: o(f"s_add_u32 s{sCnt}, s{sCnt}, 1")
            issB()
            o(f"s_sub_u32 s{sLim}, s{sLim}, 1"); o("s_cbranch_scc0 L_e3_lp"); o(f"s_mov_b32 s{sLim}, 0")
            A.label("L_e3_okB")
            wrB = [f"ds_write_b128 v{vE3}, {v(b,4)} offset:{LDS_MEM + u*1024}" for u, (b, rest) in enumerate(e3b)]
            emit([wrB[0], qk1(0, 0, True, v2), wrB[1], qk1(0, 1, True, v2), wrB[2], qk1(1, 0, False, v2 + 4), wrB[3], qk1(1, 1, False, v2 + 4),
                  qk1(2, 0, False, v2 + 8), qk1(2, 1, False, v2 + 8), qk1(3, 0, False, v2 + 12), qk1(3, 1, False, v2 + 12)])
            o("s_mov_b32 s89, 1")
            o("s_branch L_e3_j")
            A.label("L_e3_okA")
            o("s_mov_b32 s89, 0")
            emit([wr[0], qk1(0, 0, True), wr[1], qk1(0, 1, True), wr[2], qk1(1, 0, False), wr[3], qk1(1, 1, False)])
            A.label("L_e3_j")
        else:
            simple_poll(e3_loads, "e3", 0, 0)
            emit([wr[0], qk1(0, 0, True), wr[1], qk1(0, 1, True), wr[2], qk1(1, 0, False), wr[3], qk1(1, 1, False)])
        stamp()
        o("s_waitcnt lgkmcnt(0)")
        o("s_barrier")
        for i in range(4, 16):
            o(f"ds_read_b128 {v(vB+4*i,4)}, v{vRd[i//4]} offset:{LDS_MEM + (i%4)*1024}")
        if FC & 32:
            o("s_cmp_lg_u32 s89, 0"); o("s_cbranch_scc1 L_e3_sk")
        for u in (2, 3): qk_mfma(u)
        if FC & 32: A.label("L_e3_sk")
    elif FC & 1:
        assert not SIG
        o("s_waitcnt vmcnt(0)")
        A.label("L_e3_go")
        ck = chk_list(range(vB, vB + 16), vX)
        def qk1(i, half, first):
            acc = vA0 if half == 0 else vA1
            c = "0" if first else v(acc, 4)
            return f"v_mfma_f32_16x16x32_bf16 {v(acc,4)}, {a((i*2+half)*4,4)}, {v(vB+4*i,4)}, {c}"
        wr = [f"ds_write_b128 v{vE3}, {v(b,4)} offset:{LDS_MEM + u*1024}" for u, (b, rest) in enumerate(e3_loads)]
        sq = [wr[0], qk1(0, 0, True), ck[0], ck[1], wr[1], qk1(0, 1, True), ck[2], ck[3], wr[2], qk1(1, 0, False), ck[4], ck[5], wr[3], qk1(1, 1, False)] + ck[6:]
        emit(sq)
        retry_tail("e3", 0, lambda: [o(f"global_load_dwordx4 {v(b,4)}, {rest}") for b, rest in e3_loads], "L_e3_go")
        stamp()
        o("s_waitcnt lgkmcnt(0)")
        o("s_barrier")
        for i in range(4, 16):
            o(f"ds_read_b128 {v(vB+4*i,4)}, v{vRd[i//4]} offset:{LDS_MEM + (i%4)*1024}")
        for u in (2, 3): qk_mfma(u)
    else:
        simple_poll(e3_loads, "e3", 0, 0)
        if SIG:
            o(f"s_sub_u32 s{sT3}, s{sStep}, 1"); o(f"s_cbranch_scc1 L_nosig")
            o(f"s_and_b32 s{sT0}, s{sT3}, 15"); o(f"s_cmp_lg_u32 s{sT0}, s{sJ}"); o("s_cbranch_scc1 L_nosig")
            o(f"s_lshl_b32 s{sT0}, s{sT3}, 7"); o(f"s_add_u32 s{sT0}, s{sT0}, {CNT_REC}")
            o(f"v_mov_b32 v{vX+2}, s{sT0}"); o(f"v_mov_b32 v{vX+3}, 1")
            o("s_mov_b64 exec, 1")
            o(f"global_atomic_add v{vX+2}, v{vX+3}, {s(sCNT,2)}")
            o("s_mov_b64 exec, -1")
            A.label("L_nosig")
        for u, (b, rest) in enumerate(e3_loads):
            o(f"ds_write_b128 v{vE3}, {v(b,4)} offset:{LDS_MEM + u*1024}")
        for u in range(4): qk_mfma(u, first=(u == 0))
        stamp()
        o("s_waitcnt lgkmcnt(0)")
        o("s_barrier")
        for i in range(4, 16):
            o(f"ds_read_b128 {v(vB+4*i,4)}, v{vRd[i//4]} offset:{LDS_MEM + (i%4)*1024}")
    vxl = vx_loads()
    for i in range(4, 16):
        o(f"s_waitcnt lgkmcnt({15-i})")
        qk_mfma(i)
        if i % VSP == VSP - 1 and vxl: o(vxl.pop(0))
    stamp()
    for r in range(4):
        o(f"v_add_f32_dpp v{vA0+r}, v{vA1+r}, v{vA0+r} row_ror:8 row_mask:0xf bank_mask:0xf")
    R = vX + 4
    o(f"v_cvt_pk_bf16_f32 v{R}, v{vA0}, v{vA0+1}")
    o(f"v_cvt_pk_bf16_f32 v{R+1}, v{vA0+2}, v{vA0+3}")
    o(f"v_permlane16_swap_b32 v{R}, v{R+2}")
    o(f"v_permlane16_swap_b32 v{R+1}, v{R+3}")
    o(f"s_mov_b64 exec, {s(sMaskQK,2)}")
    o(f"global_store_dwordx4 v{vQKst}, {v(R,4)}, {s(sQK,2)}{st_fast}")
    o("s_mov_b64 exec, -1")
    stamp()
    if FC & 32: o("s_waitcnt vmcnt(7)")
    e1_loads = [(vQ + 4*cp, f"v{vE3}, {s(sQK,2)} offset:{cp*1024} sc1") for cp in range(2)] + [(vKm + 4*cp, f"v{vE3}, {s(sQK,2)} offset:{2048+cp*1024} sc1") for cp in range(2)]
    def e1_issue():
        for b, rest in e1_loads: o(f"global_load_dwordx4 {v(b,4)}, {rest}")
    for i in range(8):
        for half, acc in ((0, vAv0), (1, vAv1)):
            c = "0" if i == 0 else v(acc, 4)
            o(f"v_mfma_f32_16x16x32_bf16 {v(acc,4)}, {v(vB+4*i,4)}, {a(128+(i*2+half)*4,4)}, {c}")
        if vxl and i % 2 == 1: o(vxl.pop(0))
        if i == E1_AT:
            emit(vxl); vxl = []
            e1_issue()
    emit(vxl)
    for r in range(4):
        o(f"v_cndmask_b32 v{vAv0+r}, v{vAv1+r}, v{vAv0+r}, {s(sSelV,2)}")
    o(f"ds_write_b128 v{vVw}, {v(vAv0,4)} offset:{LDS_V}")
    o("s_waitcnt lgkmcnt(0)")
    o("s_barrier")
    o(f"s_cmp_lg_u32 s{sW}, 0")
    o("s_cbranch_scc1 L_vred_skip")
    T = vA0
    for k, off in enumerate((0, 512, 2048, 2560)):
        o(f"ds_read_b128 {v(T+4*k,4)}, v{vVr} offset:{LDS_V+off}")
    o("s_waitcnt lgkmcnt(0)")
    for r in range(4):
        o(f"v_add_f32 v{T+r}, v{T+r}, v{T+4+r}")
        o(f"v_add_f32 v{T+8+r}, v{T+8+r}, v{T+12+r}")
    for r in range(4):
        o(f"v_add_f32 v{T+r}, v{T+r}, v{T+8+r}")
    o(f"v_cvt_pk_bf16_f32 v{R}, v{T}, v{T+1}")
    o(f"v_cvt_pk_bf16_f32 v{R+1}, v{T+2}, v{T+3}")
    o(f"v_permlane32_swap_b32 v{R}, v{R+2}")
    o(f"v_permlane32_swap_b32 v{R+1}, v{R+3}")
    o(f"s_mov_b64 exec, {s(sSelV,2)}")
    o(f"global_store_dwordx4 v{vVst}, {v(R,4)}, {s(sVR,2)}{st_fast}")
    o("s_mov_b64 exec, -1")
    o("s_waitcnt vmcnt(1)")
    o("s_branch L_e1_c")
    A.label("L_e1_r")
    e1_issue()
    A.label("L_vred_skip")
    o("s_waitcnt vmcnt(0)")
    A.label("L_e1_c")
    if not (FC & 2): check([b + r for b, _ in e1_loads for r in range(4)], "L_e1_ok", "L_e1_r", vX, 1)
    stamp()
    def M32(d, A_, B_, C_): return f"v_mfma_f32_16x16x32_bf16 {v(d,4)}, {A_}, {B_}, {C_}"
    def rot(dst, srcr): return [f"v_mov_b32_dpp v{dst+r}, v{srcr+r} row_ror:8 row_mask:0xf bank_mask:0xf" for r in range(4)]
    Kf = lambda kt, u: v(vK + (kt*4+u)*4, 4)
    seq = []
    seq += [M32(vSx, Kf(0,0), v(vQ,4), "0")] + rot(vQr, vQ)[:2]
    seq += [M32(vSx+4, Kf(1,0), v(vQ,4), "0")] + rot(vQr, vQ)[2:]
    seq += [M32(vSm, v(vKm,4), v(vQ,4), v(vNeg,4))] + rot(vQr+4, vQ+4)[:2]
    seq += [M32(vSx, Kf(0,2), v(vQ+4,4), v(vSx,4))] + rot(vQr+4, vQ+4)[2:]
    seq += [M32(vSx+4, Kf(1,2), v(vQ+4,4), v(vSx+4,4))] + rot(vKr, vKm)[:2]
    seq += [M32(vSm, v(vKm+4,4), v(vQ+4,4), v(vSm,4))] + rot(vKr, vKm)[2:]
    seq += [M32(vSx, Kf(0,1), v(vQr,4), v(vSx,4))] + rot(vKr+4, vKm+4)[:2]
    seq += [M32(vSx+4, Kf(1,1), v(vQr,4), v(vSx+4,4))] + rot(vKr+4, vKm+4)[2:]
    seq += [M32(vSx, Kf(0,3), v(vQr+4,4), v(vSx,4))]
    seq += [M32(vSx+4, Kf(1,3), v(vQr+4,4), v(vSx+4,4))]
    seq += [M32(vSm, v(vKr,4), v(vQr,4), v(vSm,4))]
    seq += [M32(vSm, v(vKr+4,4), v(vQr+4,4), v(vSm,4))]
    if FC & 2:
        ck = chk_list([b + r_ for b, _ in e1_loads for r_ in range(4)], vX)
        tail4 = seq[-4:]; seq = seq[:-4]
        sq2 = []
        for k_, m_ in enumerate(tail4):
            sq2.append(m_); sq2 += ck[2*k_:2*k_+2]
        sq2 += ck[8:]
        emit(seq + sq2)
        retry_tail("e1", 1, e1_issue, "L_e1_c")
    else:
        emit(seq)
    if not FIXKV:
        o(f"s_add_u32 s{sKX}, s{sKX}, 262144"); o(f"s_addc_u32 s{sKX+1}, s{sKX+1}, 0")
    vm_loads = [(vVm + 4*mm, f"v{vVld}, {s(sVR,2)} offset:{mm*1024} sc1") for mm in range(2)]
    for b, rest in vm_loads: o(f"global_load_dwordx4 {v(b,4)}, {rest}")
    if PF and PFE: o(f"global_load_dwordx4 {v(vPf,4)}, v{vPfo}, {s(sPF,2)}")
    m, t = vX + 1, vX + 2
    Sall = list(range(vSx, vSx + 8)) + list(range(vSm, vSm + 4))
    m2 = vX + 3
    o(f"v_max3_f32 v{m}, v{Sall[0]}, v{Sall[1]}, v{Sall[2]}")
    o(f"v_max3_f32 v{m2}, v{Sall[4]}, v{Sall[5]}, v{Sall[6]}")
    o(f"v_max3_f32 v{m}, v{m}, v{Sall[3]}, v{Sall[7]}")
    o(f"v_max3_f32 v{m2}, v{m2}, v{Sall[8]}, v{Sall[9]}")
    o(f"v_max3_f32 v{m}, v{m}, v{Sall[10]}, v{Sall[11]}")
    o(f"v_max_f32 v{m}, v{m}, v{m2}")
    for sw in ("16", "32"):
        o(f"v_mov_b32 v{t}, v{m}")
        o(f"v_permlane{sw}_swap_b32 v{m}, v{t}")
        o(f"v_max_f32 v{m}, v{m}, v{t}")
    mm_ = vX + 2
    o(f"v_mul_f32 v{mm_}, s{sScale}, v{m}")
    kxl = kx_loads()
    main = []
    for r in Sall[::2]: main.append(f"v_pk_fma_f32 {v(r,2)}, {v(r,2)}, {s(sScale,2)}, {v(mm_,2)} op_sel_hi:[1,1,0] neg_lo:[0,0,1] neg_hi:[0,0,1]")
    for k_, r in enumerate(Sall):
        main.append(f"v_exp_f32 v{r}, v{r}")
    emit(merge(main, [kxl.pop(0), kxl.pop(0)], 7))
    o(f"v_cvt_pk_bf16_f32 v{vPx}, v{vSx}, v{vSx+1}")
    o(f"v_cvt_pk_bf16_f32 v{vPx+1}, v{vSx+2}, v{vSx+3}")
    o(f"v_cvt_pk_bf16_f32 v{vPx+2}, v{vSx+4}, v{vSx+5}")
    o(f"v_cvt_pk_bf16_f32 v{vPx+3}, v{vSx+6}, v{vSx+7}")
    o(f"v_cvt_pk_bf16_f32 v{vPmA}, v{vSm}, v{vSm+1}")
    o(f"v_cvt_pk_bf16_f32 v{vPmA+1}, v{vSm+2}, v{vSm+3}")
    stamp()
    vLs = vSx
    pv = [M32(vO+4*tt, v(vV+4*tt,4), v(vPx,4), "0") for tt in range(8)]
    side = [f"v_mov_b32 v{vX+4}, v{vPmA}", f"v_mov_b32 v{vX+5}, v{vPmA+1}", f"v_mov_b32 v{vPmB}, 0", f"v_mov_b32 v{vPmB+1}, 0",
            f"v_permlane32_swap_b32 v{vPmB}, v{vX+4}", f"v_permlane32_swap_b32 v{vPmB+1}, v{vX+5}", kxl.pop(0)]
    if FC & 4:
        o(M32(vLs, v(vOnes,4), v(vPx,4), "0"))
        emit(merge(pv[:5], side, 1)[:12])
        o(f"s_waitcnt vmcnt({4 if (PF and PFE) else 3})")
        A.label("L_vm_go")
        ck = chk_list(range(vVm, vVm + 8), vX)
        sq3 = [pv[5]] + ck[:2] + [pv[6]] + ck[2:4] + [pv[7]] + ck[4:]
        o(f"v_mfma_f32_16x16x16_bf16 {v(vLs,4)}, {v(vOnes,2)}, {v(vPmA,2)}, {v(vLs,4)}")
        emit(sq3)
        o("s_cbranch_vccz L_vm_fok")
        A.label("L_vm_rr")
        if prof: o(f"s_add_u32 s{sCnt+2}, s{sCnt+2}, 1")
        o(f"s_sub_u32 s{sLim}, s{sLim}, 1"); o("s_cbranch_scc1 L_vm_fto")
        for b, rest in vm_loads: o(f"global_load_dwordx4 {v(b,4)}, {rest}")
        o("s_waitcnt vmcnt(0)")
        emit(chk_list(range(vVm, vVm + 8), vX))
        o("s_cbranch_vccnz L_vm_rr"); o("s_branch L_vm_fok")
        A.label("L_vm_fto"); o(f"s_mov_b32 s{sLim}, 0")
        A.label("L_vm_fok")
    else:
        emit(merge(pv, side, 1))
        o(M32(vLs, v(vOnes,4), v(vPx,4), "0"))
        o(f"v_mfma_f32_16x16x16_bf16 {v(vLs,4)}, {v(vOnes,2)}, {v(vPmA,2)}, {v(vLs,4)}")
        simple_poll(vm_loads, "vm", 2, 4 if (PF and PFE) else 3)
    stamp()
    def pvm(tt):
        c, tv = tt >> 1, tt & 1
        pm = vPmB if (c & 1) else vPmA
        return f"v_mfma_f32_16x16x16_bf16 {v(vO+4*tt,4)}, {v(vVm+4*(c>>1)+2*tv,2)}, {v(pm,2)}, {v(vO+4*tt,4)}"
    def cvt(tt):
        u, h = tt >> 1, tt & 1
        return [f"v_cvt_pk_bf16_f32 v{vOb+4*u+2*h}, v{vO+4*tt}, v{vO+4*tt+1}", f"v_cvt_pk_bf16_f32 v{vOb+4*u+2*h+1}, v{vO+4*tt+2}, v{vO+4*tt+3}"]
    if REORD:
        for tt in range(4): o(pvm(tt))
    if KVCHK:
        o(f"s_add_u32 s{sT0}, s{sStep}, 3"); o(f"s_and_b32 s{sT1}, s{sT0}, 7"); o(f"s_cmp_lg_u32 s{sT1}, 0"); o("s_cbranch_scc1 L_nofl")
        o(f"s_lshr_b32 s{sT0}, s{sT0}, 3"); o(f"s_lshl_b32 s{sT0}, s{sT0}, 3"); o(f"s_add_u32 s{sT0}, s{sT0}, s{sG}"); o(f"s_lshl_b32 s{sT0}, s{sT0}, 7")
        o(f"v_mov_b32 v{vFlag}, s{sT0}")
        o(f"global_load_dword v{vFlag}, v{vFlag}, {s(sCNT,2)} sc1")
        A.label("L_nofl")
    o(f"s_and_b32 s{sT0}, s{sStep}, 15"); o(f"s_cmp_lg_u32 s{sT0}, s{sJ}"); o("s_cbranch_scc1 L_nopub")
    for cp in range(2): o(f"global_store_dwordx4 v{vL16}, {v(vKm+4*cp,4)}, {s(sKM,2)} offset:{cp*1024}" + (" sc1" if SIG else ""))
    for cp in range(2): o(f"global_store_dwordx4 v{vL16}, {v(vVm+4*cp,4)}, {s(sVM,2)} offset:{cp*1024}" + (" sc1" if SIG else ""))
    A.label("L_nopub")
    if LAST_SHORT:
        o(f"s_cmp_eq_u32 s{sStep}, {nsteps-1}")
        o("s_cbranch_scc1 L_rec_last")
    if PF and not PFE: o(f"global_load_dwordx4 {v(vPf,4)}, v{vPfo}, {s(sPF,2)}")
    if not REORD:
        for tt in range(3): o(pvm(tt))
    vCa = [16, 20, 24, 28]
    l_ = vX + 1
    def cm(ct, u):
        c = "0" if u == 0 else v(vCa[ct], 4)
        return f"v_mfma_f32_16x16x32_bf16 {v(vCa[ct],4)}, {a(192+(ct*4+u)*4,4)}, {v(vOb+4*u,4)}, {c}"
    pend = []
    for tt in range(8):
        if REORD:
            if tt + 4 < 8: o(pvm(tt + 4))
        elif tt + 3 < 8: o(pvm(tt + 3))
        cv = cvt(tt)
        o(cv[0])
        if pend: o(pend.pop(0))
        o(cv[1])
        if pend: o(pend.pop(0))
        if tt == 0: o(f"v_rcp_f32 v{l_}, v{vLs}")
        if tt % 2 == 1:
            pend += [cm(ct, tt >> 1) for ct in range(4)]
            if kxl: o(kxl.pop(0))
    emit(pend)
    for ct in range(4):
        pass
    o(f"v_mov_b32 v{vX+2}, v{l_}")
    for ct in range(4):
        o(f"v_pk_mul_f32 {v(vCa[ct],2)}, {v(vCa[ct],2)}, {v(vX+2,2)} op_sel_hi:[1,0]")
        o(f"v_pk_mul_f32 {v(vCa[ct]+2,2)}, {v(vCa[ct]+2,2)}, {v(vX+2,2)} op_sel_hi:[1,0]")
        o(f"ds_write_b128 v{vVw}, {v(vCa[ct],4)} offset:{LDS_O+ct*4096}")
    while kxl: o(kxl.pop(0))
    o("s_waitcnt lgkmcnt(0)")
    o("s_barrier")
    stamp()
    Rr = [112, 116, 120, 124]
    for sw in range(4): o(f"ds_read_b128 {v(Rr[sw],4)}, v{vE3} offset:{LDS_O+sw*1024}")
    vC = Rr[0]
    o("s_waitcnt lgkmcnt(2)")
    o(f"v_pk_add_f32 {v(Rr[0],2)}, {v(Rr[0],2)}, {v(Rr[1],2)}"); o(f"v_pk_add_f32 {v(Rr[0]+2,2)}, {v(Rr[0]+2,2)}, {v(Rr[1]+2,2)}")
    o("s_waitcnt lgkmcnt(0)")
    o(f"v_pk_add_f32 {v(Rr[2],2)}, {v(Rr[2],2)}, {v(Rr[3],2)}"); o(f"v_pk_add_f32 {v(Rr[2]+2,2)}, {v(Rr[2]+2,2)}, {v(Rr[3]+2,2)}")
    o(f"v_pk_add_f32 {v(Rr[0],2)}, {v(Rr[0],2)}, {v(Rr[2],2)}"); o(f"v_pk_add_f32 {v(Rr[0]+2,2)}, {v(Rr[0]+2,2)}, {v(Rr[2]+2,2)}")
    o(f"v_cvt_pk_bf16_f32 v{R}, v{vC}, v{vC+1}")
    o(f"v_cvt_pk_bf16_f32 v{R+1}, v{vC+2}, v{vC+3}")
    o(f"v_permlane16_swap_b32 v{R}, v{R+2}")
    o(f"v_permlane16_swap_b32 v{R+1}, v{R+3}")
    o(f"s_mov_b64 exec, {s(sMaskQK,2)}")
    if EP == 2:
        o("s_waitcnt vmcnt(0)")
        o(f"{TIMER} {s(sTs + 2*5, 2)}")
    o(f"global_store_dwordx4 v{vPst}, {v(R,4)}, {s(sPART,2)} sc1")
    stamp()
    if EP == 2:
        o("s_waitcnt vmcnt(0)")
        o(f"{TIMER} {s(sTs + 2*4, 2)}")
    o(f"global_store_dwordx4 v{vQKst}, {v(vSent,4)}, {s(sRq,2)}{st_fast}")
    o(f"s_mov_b64 exec, 0xffff")
    o(f"global_store_dwordx4 v{vMst}, {v(vSent,4)}, {s(sRm,2)}{st_fast}")
    o(f"s_cmp_lg_u32 s{sW}, 0")
    o("s_cbranch_scc1 L_norv")
    o(f"s_mov_b64 exec, {s(sSelV,2)}")
    o(f"global_store_dwordx4 v{vVst}, {v(vSent,4)}, {s(sRv,2)}{st_fast}")
    A.label("L_norv")
    o("s_mov_b64 exec, -1")
    if not FIXKV:
        o(f"s_add_u32 s{sVX}, s{sVX}, 262144"); o(f"s_addc_u32 s{sVX+1}, s{sVX+1}, 0")
    o(f"s_add_u32 s{sKM}, s{sKM}, 65536"); o(f"s_addc_u32 s{sKM+1}, s{sKM+1}, 0")
    o(f"s_add_u32 s{sVM}, s{sVM}, 65536"); o(f"s_addc_u32 s{sVM+1}, s{sVM+1}, 0")
    if E2_DELAY: o(f"s_sleep {E2_DELAY}")
    sets = [vB + 8 * k for k in range(E2_DEPTH)]
    def e2_issue(b):
        o(f"global_load_dwordx4 {v(b,4)}, v{vPld}, {s(sPART,2)} {E2F}")
        o(f"global_load_dwordx4 {v(b+4,4)}, v{vPld}, {s(sPART2,2)} {E2F}")
    if EP: o(f"{TIMER} {s(sTs + 2*2, 2)}")
    for k, b in enumerate(sets):
        e2_issue(b)
        if k + 1 < len(sets) and E2_SP: o(f"s_sleep {E2_SP}")
    if EP:
        o(f"s_waitcnt vmcnt({2*(len(sets)-1)})")
        o(f"{TIMER} {s(sTs + 2*3, 2)}")
    if FC & 8:
        assert E2_DEPTH == 1
        b = sets[0]; D = vA1
        o("s_waitcnt vmcnt(0)")
        A.label("L_e2_go")
        o(f"v_mfma_f32_16x16x32_bf16 {v(D,4)}, {v(vDelta,4)}, {v(b,4)}, 0")
        o(f"v_mfma_f32_16x16x32_bf16 {v(D,4)}, {v(vDelta,4)}, {v(b+4,4)}, {v(D,4)}")
        emit(chk_list(range(b, b + 8), vX))
        retry_tail("e2", 3, lambda: e2_issue(b), "L_e2_go")
    else:
        A.label("L_e2")
        for k, b in enumerate(sets):
            o(f"s_waitcnt vmcnt({2*(len(sets)-1)})")
            regs = list(range(b, b + 8))
            o(f"v_max3_u32 v{vX}, v{regs[0]}, v{regs[1]}, v{regs[2]}")
            o(f"v_max3_u32 v{vX}, v{vX}, v{regs[3]}, v{regs[4]}")
            o(f"v_max3_u32 v{vX}, v{vX}, v{regs[5]}, v{regs[6]}")
            o(f"v_max_u32 v{vX}, v{vX}, v{regs[7]}")
            o(f"v_cmp_eq_u32 vcc, -1, v{vX}")
            o(f"s_cbranch_vccz L_e2_ok{k}")
            if prof: o(f"s_add_u32 s{sCnt+3}, s{sCnt+3}, 1")
            e2_issue(b)
        o(f"s_sub_u32 s{sLim}, s{sLim}, 1")
        o(f"s_cbranch_scc0 L_e2")
        o(f"s_mov_b32 s{sLim}, 0")
        D = vA1
        for k, b in enumerate(sets):
            A.label(f"L_e2_ok{k}")
            o(f"v_mfma_f32_16x16x32_bf16 {v(D,4)}, {v(vDelta,4)}, {v(b,4)}, 0")
            o(f"v_mfma_f32_16x16x32_bf16 {v(D,4)}, {v(vDelta,4)}, {v(b+4,4)}, {v(D,4)}")
            if k + 1 < len(sets): o("s_branch L_e2_done")
    A.label("L_e2_done")
    o(f"s_add_u32 s{sPF}, s{sPF}, 262144"); o(f"s_addc_u32 s{sPF+1}, s{sPF+1}, 0")
    stamp()
    o("s_nop 7")
    o(f"v_cvt_pk_bf16_f32 v{R}, v{D}, v{D+1}")
    o(f"v_cvt_pk_bf16_f32 v{R+1}, v{D+2}, v{D+3}")
    o(f"v_permlane16_swap_b32 v{R}, v{R+2}")
    o(f"v_permlane16_swap_b32 v{R+1}, v{R+3}")
    o(f"s_mov_b64 exec, 0xffff")
    o(f"global_store_dwordx4 v{vMst}, {v(R,4)}, {s(sMEMn,2)}{st_fast}")
    o("s_mov_b64 exec, -1")
    stamp()
    if E3_DELAY: o(f"s_sleep {E3_DELAY}")
    if prof:
        o("s_waitcnt lgkmcnt(0)")
        for k in range(nst[0]):
            o(f"v_writelane_b32 v{vX+8}, s{sTs+2*k}, {k}")
        for k in range(4):
            o(f"v_writelane_b32 v{vX+8}, s{sCnt+k}, {11+k}")
        o(f"v_writelane_b32 v{vX+8}, s92, 15")
        o(f"s_lshl_b32 s{sT0}, s{sW}, 12")
        o(f"s_lshl_b32 s{sT1}, s{sStep}, 6")
        o(f"s_add_u32 s{sT0}, s{sT0}, s{sT1}")
        o(f"s_add_u32 s{sT0}, s{sT0}, 40960")
        o(f"v_lshlrev_b32 v{vX+9}, 2, v{vL}")
        o(f"v_add_u32 v{vX+9}, s{sT0}, v{vX+9}")
        o("s_mov_b64 exec, 0xffff")
        o(f"ds_write_b32 v{vX+9}, v{vX+8}")
        o("s_mov_b64 exec, -1")
    o(f"s_add_u32 s{sStep}, s{sStep}, 1")
    o(f"s_cmp_lt_u32 s{sStep}, {nsteps}")
    o("s_cbranch_scc1 L_step")
    o("s_branch L_rec_fin")
    A.label("L_rec_last")
    if SIG:
        o("s_waitcnt vmcnt(0)")
        o(f"s_and_b32 s{sT0}, s{sStep}, 15"); o(f"s_cmp_lg_u32 s{sT0}, s{sJ}"); o("s_cbranch_scc1 L_rec_fin")
        o(f"s_lshl_b32 s{sT0}, s{sStep}, 7"); o(f"s_add_u32 s{sT0}, s{sT0}, {CNT_REC}")
        o(f"v_mov_b32 v{vX+2}, s{sT0}"); o(f"v_mov_b32 v{vX+3}, 1")
        o("s_mov_b64 exec, 1")
        o(f"global_atomic_add v{vX+2}, v{vX+3}, {s(sCNT,2)}")
        o("s_mov_b64 exec, -1")
    A.label("L_rec_fin")
    if prof:
        o("s_waitcnt lgkmcnt(0)")
        o(f"s_lshl_b32 s{sT0}, s{sW}, 12")
        o(f"s_add_u32 s{sT0}, s{sT0}, 40960")
        o(f"v_add_u32 v{vX+9}, s{sT0}, v{vL16}")
        for k in range(4):
            o(f"ds_read_b128 {v(vB+4*k,4)}, v{vX+9} offset:{k*1024}")
        o("s_waitcnt lgkmcnt(0)")
        for k in range(4):
            o(f"global_store_dwordx4 v{vL16}, {v(vB+4*k,4)}, {s(sProf,2)} offset:{k*1024}")
    o("s_waitcnt vmcnt(0)")
    A.label("L_rec_end")
    o("s_endpgm")
    txt = A.finish()
    if embedded:
        import re
        return re.sub(r"\bL_", pfx + "L_", txt)
    return kernel_head(name) + txt + kernel_desc(name, 256, 256)

if __name__ == "__main__":
    import sys
    fast = "slow" not in sys.argv
    prof = "prof" in sys.argv
    ng = 256 if any(x.startswith("X4=1") for x in sys.argv) else 128
    hdr = f"; @launch kernel=rec_kernel grid=({ng},1,1) block=(256,1,1) lds=131072\n.amdgcn_target \"amdgcn-amd-amdhsa--gfx950\"\n.text\n"
    kw = {}
    for x in sys.argv[1:]:
        if "=" in x:
            k_, v_ = x.split("=");
            if k_ != "out": kw[k_] = int(v_) if v_.isdigit() else v_
    outn = [x.split("=")[1] for x in sys.argv if x.startswith("out=")]
    open(outn[0] if outn else "rec_test.s", "w").write(hdr + gen_rec(fast=fast, prof=prof, **kw))
```

```python
from asmlib import *
from layout import *
from gemm import Gemm, gen_loop, gen_loop2, gen_loop3
from k_qkv import srd
from k_small import fbits, unpack8, LOG2E
import math

def common_head(o, name, ntiles, ptrs):
    o(f"s_cmp_ge_u32 s2, {ntiles}"); o(f"s_cbranch_scc1 L_{name}_end")
    o(f"s_load_dwordx2 s[6:7], s[0:1], {KA_WS}")
    for sreg, ka in ptrs: o(f"s_load_dwordx2 {s(sreg,2)}, s[0:1], {ka}")
    o("v_lshrrev_b32 v1, 6, v0"); o("v_and_b32 v0, 63, v0"); o("v_readfirstlane_b32 s3, v1")
    o("s_waitcnt lgkmcnt(0)")
    prof_start(o)

PROF = False
FUSE = False
def prof_start(o):
    if PROF: o('s_memrealtime s[60:61]'); o('s_memtime s[64:65]')
def prof_mid(o):
    if PROF: o('s_memrealtime s[62:63]'); o('s_memtime s[66:67]')
def prof_end(o, idx):
    if not PROF: return
    o('s_memrealtime s[68:69]'); o('s_waitcnt lgkmcnt(0)')
    o('s_lshl_b32 s25, s2, 6'); o('s_lshl_b32 s26, s3, 4'); o('s_add_u32 s25, s25, s26'); o(f's_add_u32 s25, s25, {WS_PROF + 5*MiB + idx*65536}')
    o('s_sub_u32 s66, s66, s64')
    o('v_mov_b32 v2, s60'); o('v_mov_b32 v3, s62'); o('v_mov_b32 v4, s68'); o('v_mov_b32 v5, s66'); o('v_mov_b32 v6, s25')
    o('s_mov_b64 exec, 1'); o('global_store_dwordx4 v6, v[2:5], s[6:7]'); o('s_waitcnt vmcnt(0)')
sX, sY = 8, 12
sOffX, sOffY, sM0, sK = 20, 21, [22, 23], 24
sT = [25, 26, 27, 28]
sSt = [32, 33, 34]

def pair_pack(o, G, E, k, ra, rb, f=None):
    T = E + 16 * (k % 3) + 4
    for r in range(4): o(f"v_accvgpr_read_b32 v{T+r}, a{ra+r}")
    for r in range(4): o(f"v_accvgpr_read_b32 v{T+4+r}, a{rb+r}")
    return T

def gen_op(name="op_kernel", opt=None):
    A = Asm(); o = A
    common_head(o, name, 256, [(40, KA_WO), (42, KA_X)])
    srd(o, sX, 40, 0, 8 * MiB); srd(o, sY, 6, WS_O, 16 * MiB)
    o("s_and_b32 s25, s2, 7"); o("s_lshr_b32 s26, s2, 3")
    o("s_and_b32 s4, s25, 1"); o("s_lshl_b32 s4, s4, 3"); o("s_and_b32 s27, s26, 7"); o("s_add_u32 s4, s4, s27")
    o("s_lshr_b32 s5, s25, 1"); o("s_lshl_b32 s5, s5, 2"); o("s_lshr_b32 s27, s26, 3"); o("s_add_u32 s5, s5, s27")
    o(f"s_lshl_b32 s{sOffX}, s4, 7"); o(f"s_lshl_b32 s{sOffY}, s5, 13")
    G = Gemm(A, 2, 4, False, "o")
    o(f"s_mul_i32 s{sM0[0]}, s3, {G.NIX*1024}"); o(f"s_mul_i32 s{sM0[1]}, s3, {G.NIY*1024}")
    G.setup(3, 0, 2048, 0, [1, 2, 3, 4, 5, 6], sT)
    gen_loop2(G, sX, sY, sOffX, sOffY, sM0, sK, 32 * 2048, 128 * 1024, 128, f"L_{name}", K=4, R=12, sSt=sSt)
    prof_mid(o)
    E = G.vF
    o("v_and_b32 v1, 15, v0"); o("v_lshrrev_b32 v2, 4, v0"); o("v_and_b32 v3, 1, v2"); o("v_lshrrev_b32 v2, 1, v2")
    o("v_lshlrev_b32 v3, 4, v3"); o("v_lshl_add_u32 v3, v2, 3, v3")
    o("s_lshl_b32 s25, s4, 6"); o("s_and_b32 s26, s3, 1"); o("s_lshl_b32 s26, s26, 5"); o("s_add_u32 s25, s25, s26")
    o("v_add_u32 v3, s25, v3")
    o("s_lshl_b32 s25, s5, 7"); o("s_lshr_b32 s26, s3, 1"); o("s_lshl_b32 s26, s26, 6"); o("s_add_u32 s25, s25, s26")
    o("v_add_u32 v1, s25, v1")
    o("v_lshlrev_b32 v4, 11, v1"); o("v_lshl_add_u32 v4, v3, 1, v4")
    o("v_lshlrev_b32 v5, 2, v3")
    o(f"s_add_u32 s44, s6, {WS_MOD + 2*4096}"); o("s_addc_u32 s45, s7, 0")
    GA = E + 64
    o(f"global_load_dwordx4 {v(GA,4)}, v5, s[44:45]"); o(f"global_load_dwordx4 {v(GA+4,4)}, v5, s[44:45] offset:16")
    XR = E + 72
    for jy in range(4):
        o(f"v_add_u32 v6, {jy*16*2048}, v4")
        o(f"global_load_dwordx4 {v(XR+4*jy,4)}, v6, s[42:43]")
    o(f"s_add_u32 s44, s6, {WS_X1}"); o("s_addc_u32 s45, s7, 0")
    for jy in range(4):
        T = pair_pack(o, G, E, jy, G.accr(0, jy), G.accr(1, jy))
        for r in range(4): o(f"v_permlane16_swap_b32 v{T+r}, v{T+4+r}")
        if jy == 0: o("s_waitcnt vmcnt(0)")
        U = E + 48
        unpack8(o, U, XR + 4 * jy)
        for e in range(8): o(f"v_fma_f32 v{T+e}, v{T+e}, v{GA+e}, v{U+e}")
        P = T - 4
        for d in range(4): o(f"v_cvt_pk_bf16_f32 v{P+d}, v{T+2*d}, v{T+2*d+1}")
        o(f"v_add_u32 v6, {jy*16*2048}, v4")
        o(f"global_store_dwordx4 v6, {v(P,4)}, s[44:45]")
    o("s_waitcnt vmcnt(0)")
    prof_end(o, 0)
    A.label(f"L_{name}_end"); o("s_endpgm")
    return kernel_head(name) + A.finish() + kernel_desc(name, max(G.vEnd2, E + 96), G.nacc), 12 * G.SB

def gen_g1(name="g1_kernel", opt=None):
    A = Asm(); o = A
    if FUSE:
        o("s_cmp_ge_u32 s2, 224"); o("s_cbranch_scc1 T_g2")
        o(f"s_load_dwordx2 s[6:7], s[0:1], {KA_WS}"); o(f"s_load_dwordx2 s[40:41], s[0:1], {KA_W1}"); o(f"s_load_dwordx2 s[42:43], s[0:1], {KA_B1}")
        o("s_waitcnt lgkmcnt(0)")
    else:
        common_head(o, name, 224, [(40, KA_W1), (42, KA_B1)])
    srd(o, sX, 40, 0, 2048 * 7168); srd(o, sY, 6, WS_H2T, 4 * MiB)
    o("s_and_b32 s25, s2, 7"); o("s_lshr_b32 s26, s2, 3")
    o("s_lshr_b32 s4, s25, 1"); o("s_mul_i32 s4, s4, 7"); o("s_lshr_b32 s27, s26, 2"); o("s_add_u32 s4, s4, s27")
    o("s_and_b32 s5, s25, 1"); o("s_lshl_b32 s5, s5, 2"); o("s_and_b32 s27, s26, 3"); o("s_add_u32 s5, s5, s27")
    o(f"s_lshl_b32 s{sOffX}, s4, 8"); o(f"s_lshl_b32 s{sOffY}, s5, 13")
    if FUSE:
        import k_tail
        o(f"s_lshl_b32 s58, s5, 7"); o(f"s_add_u32 s58, s58, {k_tail.CNT_H2}")
        k_tail.wg_wait(A, 58, 32, f"{name}_hw")
    G = Gemm(A, 4, 4, False, "g")
    o(f"s_mul_i32 s{sM0[0]}, s3, {G.NIX*1024}"); o(f"s_mul_i32 s{sM0[1]}, s3, {G.NIY*1024}")
    G.setup(3, 0, 7168, 0, [1, 2, 3, 4, 5, 6], sT)
    gen_loop3(G, sX, sY, sOffX, sOffY, sM0, sK, 32 * 7168, 64 * 1024, 64, f"L_{name}", K=2, R=8)
    prof_mid(o)
    E = G.vF
    o("v_and_b32 v1, 15, v0"); o("v_lshrrev_b32 v2, 4, v0"); o("v_and_b32 v3, 1, v2"); o("v_lshrrev_b32 v2, 1, v2")
    o("v_lshlrev_b32 v4, 4, v3"); o("v_lshl_add_u32 v4, v2, 3, v4")
    o("v_lshl_or_b32 v2, v3, 1, v2")
    from k_small import gfun
    gfun(o, 3, 1, 5)
    o("v_xor_b32 v2, v2, v3"); o("v_lshl_add_u32 v2, v1, 2, v2"); o("v_lshlrev_b32 v2, 4, v2")
    o("s_lshl_b32 s25, s4, 7"); o("s_and_b32 s26, s3, 1"); o("s_lshl_b32 s26, s26, 6"); o("s_add_u32 s25, s25, s26")
    o("v_add_u32 v4, s25, v4"); o("v_lshlrev_b32 v4, 1, v4")
    BR = E + 64
    for jp in range(2): o(f"global_load_dwordx4 {v(BR+4*jp,4)}, v4, s[42:43] offset:{jp*64}")
    o("s_lshr_b32 s26, s25, 5"); o("s_lshl_b32 s26, s26, 16")
    o("s_lshl_b32 s27, s5, 3"); o("s_lshr_b32 s28, s3, 1"); o("s_lshl_b32 s28, s28, 2"); o("s_add_u32 s27, s27, s28"); o("s_lshl_b32 s27, s27, 10")
    o("s_add_u32 s26, s26, s27"); o(f"s_add_u32 s26, s26, {WS_U}")
    o("s_add_u32 s44, s6, s26"); o("s_addc_u32 s45, s7, 0")
    o("s_waitcnt vmcnt(0)")
    BF = E + 72
    for jp in range(2): unpack8(o, BF + 8 * jp, BR + 4 * jp)
    c1 = -2.0 * math.sqrt(2.0 / math.pi) * LOG2E
    o(f"s_mov_b32 s46, {fbits(0.044715)}"); o(f"s_mov_b32 s47, {fbits(c1)}")
    k = 0
    for jp in range(2):
        for jy in range(4):
            T = pair_pack(o, G, E, k, G.accr(2 * jp, jy), G.accr(2 * jp + 1, jy)); k += 1
            for r in range(4): o(f"v_permlane16_swap_b32 v{T+r}, v{T+4+r}")
            U = E + 48
            for e in range(8): o(f"v_add_f32 v{T+e}, v{T+e}, v{BF+8*jp+e}")
            for e in range(8): o(f"v_mul_f32 v{U+e}, v{T+e}, v{T+e}")
            for e in range(8): o(f"v_fma_f32 v{U+e}, v{U+e}, s46, 1.0")
            for e in range(8): o(f"v_mul_f32 v{U+e}, v{U+e}, v{T+e}")
            for e in range(8): o(f"v_mul_f32 v{U+e}, s47, v{U+e}")
            for e in range(8): o(f"v_exp_f32 v{U+e}, v{U+e}")
            for e in range(8): o(f"v_add_f32 v{U+e}, 1.0, v{U+e}")
            for e in range(8): o(f"v_rcp_f32 v{U+e}, v{U+e}")
            for e in range(8): o(f"v_mul_f32 v{T+e}, v{T+e}, v{U+e}")
            P = T - 4
            for d in range(4): o(f"v_cvt_pk_bf16_f32 v{P+d}, v{T+2*d}, v{T+2*d+1}")
            o(f"v_add_u32 v5, {jp*65536 + jy*1024}, v2")
            o(f"global_store_dwordx4 v5, {v(P,4)}, s[44:45]" + (" sc1" if FUSE else ""))
    o("s_waitcnt vmcnt(0)")
    if FUSE:
        import k_tail
        o("s_barrier")
        o("s_cmp_lg_u32 s3, 0"); o(f"s_cbranch_scc1 L_{name}_ns")
        o(f"s_add_u32 s48, s6, {WS_CNT}"); o("s_addc_u32 s49, s7, 0")
        o("s_cmp_ge_u32 s4, 14"); o("s_cselect_b32 s26, 1, 0"); o("s_lshl_b32 s27, s5, 1"); o("s_add_u32 s26, s26, s27"); o("s_lshl_b32 s26, s26, 7"); o(f"s_add_u32 s26, s26, {k_tail.CNT_U}")
        o("v_mov_b32 v14, s26"); o("v_mov_b32 v15, 1"); o("s_mov_b64 exec, 1"); o("global_atomic_add v14, v15, s[48:49]"); o("s_mov_b64 exec, -1")
        A.label(f"L_{name}_ns")
        o("s_branch T_g2")
        return A.finish()
    prof_end(o, 1)
    A.label(f"L_{name}_end"); o("s_endpgm")
    return kernel_head(name) + A.finish() + kernel_desc(name, max(G.vEnd2, E + 96), G.nacc), 8 * G.SB

def gen_g2(name="g2_kernel", opt=None):
    A = Asm(); o = A
    common_head(o, name, 256, [(40, KA_W2), (42, KA_B2), (48, KA_OUT)])
    srd(o, sX, 40, 0, 3584 * 4096); srd(o, sY, 6, WS_U, 112 * 64 * 1024)
    o("s_and_b32 s25, s2, 7"); o("s_lshr_b32 s26, s2, 3")
    o("s_lshr_b32 s4, s25, 1"); o("s_lshl_b32 s4, s4, 2"); o("s_lshr_b32 s27, s26, 3"); o("s_add_u32 s4, s4, s27")
    o("s_and_b32 s5, s25, 1"); o("s_lshl_b32 s5, s5, 3"); o("s_and_b32 s27, s26, 7"); o("s_add_u32 s5, s5, s27")
    o(f"s_lshl_b32 s{sOffX}, s4, 8"); o(f"s_lshl_b32 s{sOffY}, s5, 12")
    G = Gemm(A, 4, 2, True, "h")
    o(f"s_mul_i32 s{sM0[0]}, s3, {G.NIX*1024}"); o(f"s_mul_i32 s{sM0[1]}, s3, {G.NIY*1024}")
    G.setup(3, 0, 4096, 0, [1, 2, 3, 4, 5, 6], sT)
    gen_loop2(G, sX, sY, sOffX, sOffY, sM0, sK, 32 * 4096, 64 * 1024, 112, f"L_{name}", K=4, R=12, sSt=sSt)
    prof_mid(o)
    E = G.vF
    o("v_and_b32 v1, 15, v0"); o("v_lshrrev_b32 v2, 4, v0"); o("v_and_b32 v3, 1, v2"); o("v_lshrrev_b32 v2, 1, v2")
    o("v_lshlrev_b32 v3, 4, v3"); o("v_lshl_add_u32 v3, v2, 3, v3")
    o("s_lshl_b32 s25, s5, 6"); o("s_lshr_b32 s26, s3, 1"); o("s_lshl_b32 s26, s26, 5"); o("s_add_u32 s25, s25, s26")
    o("v_add_u32 v3, s25, v3")
    o("s_lshl_b32 s25, s4, 7"); o("s_and_b32 s26, s3, 1"); o("s_lshl_b32 s26, s26, 6"); o("s_add_u32 s25, s25, s26")
    o("v_add_u32 v1, s25, v1")
    o("v_lshlrev_b32 v4, 11, v1"); o("v_lshl_add_u32 v4, v3, 1, v4")
    o("v_lshlrev_b32 v5, 2, v3")
    o(f"s_add_u32 s44, s6, {WS_MOD + 5*4096}"); o("s_addc_u32 s45, s7, 0")
    GB = E + 64
    o(f"global_load_dwordx4 {v(GB,4)}, v5, s[44:45]"); o(f"global_load_dwordx4 {v(GB+4,4)}, v5, s[44:45] offset:16")
    XR = E + 72; B2 = E + 88
    o(f"s_add_u32 s44, s6, {WS_X1}"); o("s_addc_u32 s45, s7, 0")
    o("v_lshlrev_b32 v7, 1, v1")
    for jx in range(4):
        o(f"v_add_u32 v6, {jx*16*2048}, v4")
        o(f"global_load_dwordx4 {v(XR+4*jx,4)}, v6, s[44:45]")
        o(f"global_load_ushort v{B2+jx}, v7, s[42:43] offset:{jx*32}")
    for jx in range(4):
        T = pair_pack(o, G, E, jx, G.accr(jx, 0), G.accr(jx, 1))
        for r in range(4): o(f"v_permlane16_swap_b32 v{T+r}, v{T+4+r}")
        if jx == 0: o("s_waitcnt vmcnt(0)")
        U = E + 48
        unpack8(o, U, XR + 4 * jx)
        o(f"v_lshlrev_b32 v{B2+jx}, 16, v{B2+jx}")
        for e in range(8): o(f"v_add_f32 v{T+e}, v{T+e}, v{B2+jx}")
        for e in range(8): o(f"v_fma_f32 v{T+e}, v{T+e}, v{GB+e}, v{U+e}")
        P = T - 4
        for d in range(4): o(f"v_cvt_pk_bf16_f32 v{P+d}, v{T+2*d}, v{T+2*d+1}")
        o(f"v_add_u32 v6, {jx*16*2048}, v4")
        o(f"global_store_dwordx4 v6, {v(P,4)}, s[48:49]")
    o("s_waitcnt vmcnt(0)")
    prof_end(o, 2)
    A.label(f"L_{name}_end"); o("s_endpgm")
    return kernel_head(name) + A.finish() + kernel_desc(name, max(G.vEnd2, E + 96), G.nacc), 12 * G.SB
```

```python
from asmlib import *
from layout import *
from gemm import Gemm, gen_loop2, gen_loop3
from k_qkv import srd
from k_small import fbits, unpack8, gfun, LOG2E
import math

SENT = False
FUSE = False
CNT_H2 = 131072 + 32768
CNT_U = 131072 + 34816
WS_STATP = 144 * MiB + 0
WS_XCH = 128 * MiB
WS_STAT = WS_CNT + 131072 + 16384
CNT_XO = 131072
CNT_ST = 131072 + 8192
CNT_XG = 131072 + 4096

sX, sY = 8, 12
sOffX, sOffY, sM0, sK = 20, 21, [22, 23], 24
sSt = [32, 33, 34]

def poll_ge(A, sBase, vAddr, target, tag, vT, sLimReg, sleep=2):
    o = A
    A.label(f"L_{tag}")
    o(f"global_load_dword v{vT}, v{vAddr}, {s(sBase,2)} sc1")
    o("s_waitcnt vmcnt(0)")
    o(f"v_readfirstlane_b32 s44, v{vT}")
    o(f"s_cmp_ge_u32 s44, {target}"); o(f"s_cbranch_scc1 L_{tag}_ok")
    o(f"s_sleep {sleep}")
    o(f"s_sub_u32 s{sLimReg}, s{sLimReg}, 1"); o(f"s_cbranch_scc0 L_{tag}")
    A.label(f"L_{tag}_ok")

def exchange(A, G, keep_tiles, send_tiles, sTile, sKh, xch_off, cnt_off, name):
    o = A
    E = G.vF
    o(f"s_lshl_b32 s25, s{sTile}, 1"); o(f"s_add_u32 s26, s25, s{sKh}"); o("s_lshl_b32 s26, s26, 2"); o("s_add_u32 s26, s26, s3"); o("s_lshl_b32 s26, s26, 13")
    o(f"s_xor_b32 s27, s{sKh}, 1"); o("s_add_u32 s27, s25, s27"); o("s_lshl_b32 s27, s27, 2"); o("s_add_u32 s27, s27, s3"); o("s_lshl_b32 s27, s27, 13")
    o(f"s_add_u32 s26, s26, {xch_off}"); o(f"s_add_u32 s27, s27, {xch_off}")
    o("s_add_u32 s40, s6, s26"); o("s_addc_u32 s41, s7, 0"); o("s_add_u32 s42, s6, s27"); o("s_addc_u32 s43, s7, 0")
    o("s_add_u32 s40, s40, 4096"); o("s_addc_u32 s41, s41, 0"); o("s_add_u32 s42, s42, 4096"); o("s_addc_u32 s43, s43, 0")
    o("v_lshlrev_b32 v1, 4, v0")
    T = E + 32
    for kh in range(2):
        if kh == 0: o(f"s_cmp_lg_u32 s{sKh}, 0"); o(f"s_cbranch_scc1 L_{name}_k1")
        else: A.label(f"L_{name}_k1")
        for t, (jx, jy) in enumerate(send_tiles(kh)):
            R = T + 4 * (t % 4)
            for r in range(4): o(f"v_accvgpr_read_b32 v{R+r}, a{G.accr(jx, jy)+r}")
            o(f"global_store_dwordx4 v1, {v(R,4)}, s[40:41] offset:{t*1024-4096} sc1")
        for t, (jx, jy) in enumerate(keep_tiles(kh)):
            for r in range(4): o(f"v_accvgpr_read_b32 v{E+4*t+r}, a{G.accr(jx, jy)+r}")
        if kh == 0: o(f"s_branch L_{name}_kd")
    A.label(f"L_{name}_kd")
    if SENT:
        o("s_mov_b32 s50, 0x200000")
        A.label(f"L_{name}_sp")
        for k_ in range(8): o(f"global_load_dwordx4 {v(T+4*k_,4)}, v1, s[42:43] offset:{k_*1024-4096} sc1")
        o("s_waitcnt vmcnt(0)")
        regs = list(range(T, T + 32))
        o(f"v_max3_u32 v2, v{regs[0]}, v{regs[1]}, v{regs[2]}")
        k_ = 3
        while k_ + 1 < len(regs):
            o(f"v_max3_u32 v2, v2, v{regs[k_]}, v{regs[k_+1]}"); k_ += 2
        if k_ < len(regs): o(f"v_max_u32 v2, v2, v{regs[k_]}")
        o("v_cmp_eq_u32 vcc, -1, v2"); o(f"s_cbranch_vccz L_{name}_sok")
        o("s_sub_u32 s50, s50, 1"); o(f"s_cbranch_scc0 L_{name}_sp")
        A.label(f"L_{name}_sok")
        for k_ in range(32): o(f"v_add_f32 v{E+k_}, v{E+k_}, v{T+k_}")
        return
    o("s_waitcnt vmcnt(0)")
    o(f"s_add_u32 s48, s6, {WS_CNT}"); o("s_addc_u32 s49, s7, 0")
    o(f"s_add_u32 s26, s25, s{sKh}"); o("s_lshl_b32 s26, s26, 2"); o("s_add_u32 s26, s26, s3"); o("s_lshl_b32 s26, s26, 2"); o(f"s_add_u32 s26, s26, {cnt_off}")
    o("v_mov_b32 v2, s26"); o("v_mov_b32 v3, 1")
    o("s_mov_b64 exec, 1"); o("global_atomic_add v2, v3, s[48:49]"); o("s_mov_b64 exec, -1")
    o(f"s_xor_b32 s27, s{sKh}, 1"); o("s_add_u32 s27, s25, s27"); o("s_lshl_b32 s27, s27, 2"); o("s_add_u32 s27, s27, s3"); o("s_lshl_b32 s27, s27, 2"); o(f"s_add_u32 s27, s27, {cnt_off}")
    o("v_mov_b32 v2, s27")
    o("s_mov_b32 s50, 0x200000")
    poll_ge(A, 48, 2, 1, f"{name}_p", 3, 50)
    for t in range(8): o(f"global_load_dwordx4 {v(T+4*t,4)}, v1, s[42:43] offset:{t*1024-4096} sc1")
    for t in range(8):
        o(f"s_waitcnt vmcnt({7-t})")
        for r in range(4): o(f"v_add_f32 v{E+4*t+r}, v{E+4*t+r}, v{T+4*t+r}")


PROF = False
def pst(o, k):
    if PROF: o(f's_memrealtime s[{64+2*k}:{65+2*k}]')
def pend(o, idx):
    if not PROF: return
    o('s_memrealtime s[76:77]'); o('s_waitcnt lgkmcnt(0)')
    o('s_lshl_b32 s25, s2, 7'); o('s_lshl_b32 s26, s3, 5'); o('s_add_u32 s25, s25, s26'); o(f's_add_u32 s25, s25, {WS_PROF + 7*MiB + idx*65536}')
    for k in range(6): o(f'v_mov_b32 v{2+k}, s{64+2*k}')
    o('v_mov_b32 v8, s76'); o('v_mov_b32 v9, 0'); o('v_mov_b32 v10, s25')
    o('s_mov_b64 exec, 1'); o('global_store_dwordx4 v10, v[2:5], s[6:7]'); o('global_store_dwordx4 v10, v[6:9], s[6:7] offset:16'); o('s_waitcnt vmcnt(0)')

def head(o, name, ptrs, first=True):
    if first: o(f"s_cmp_ge_u32 s2, 256"); o(f"s_cbranch_scc1 L_{name}_end")
    o(f"s_load_dwordx2 s[6:7], s[0:1], {KA_WS}")
    for sreg, ka in ptrs: o(f"s_load_dwordx2 {s(sreg,2)}, s[0:1], {ka}")
    if first: o("v_lshrrev_b32 v1, 6, v0"); o("v_and_b32 v0, 63, v0"); o("v_readfirstlane_b32 s3, v1")
    o("s_waitcnt lgkmcnt(0)")
    pst(o, 0)

LOPT = {}
def wg_wait(A, off_sreg, target, tag):
    o = A
    o(f"s_add_u32 s48, s6, {WS_CNT}"); o("s_addc_u32 s49, s7, 0")
    o("s_cmp_lg_u32 s3, 0"); o(f"s_cbranch_scc1 L_{tag}_b")
    o(f"v_mov_b32 v2, s{off_sreg}"); o("s_mov_b32 s50, 0x200000")
    poll_ge(A, 48, 2, target, tag, 3, 50, sleep=2)
    A.label(f"L_{tag}_b")
    o("s_barrier")

def gen_opln(name="opln_kernel"):
    A = Asm(); o = A
    head(o, name, [(52, KA_WO), (54, KA_X)])
    srd(o, sX, 52, 0, 8 * MiB); srd(o, sY, 6, WS_O, 16 * MiB)
    sDt, sTt, sKh, sTile = 4, 5, 56, 57
    o("s_and_b32 s25, s2, 7"); o("s_lshr_b32 s26, s2, 3"); o(f"s_and_b32 s{sKh}, s25, 1")
    o(f"s_lshr_b32 s{sDt}, s25, 2"); o(f"s_lshl_b32 s{sDt}, s{sDt}, 2"); o("s_and_b32 s27, s26, 3"); o(f"s_add_u32 s{sDt}, s{sDt}, s27")
    o(f"s_bfe_u32 s{sTt}, s25, 0x10001"); o(f"s_lshl_b32 s{sTt}, s{sTt}, 3"); o("s_lshr_b32 s27, s26, 2"); o(f"s_add_u32 s{sTt}, s{sTt}, s27")
    o(f"s_lshl_b32 s{sTile}, s{sTt}, 3"); o(f"s_add_u32 s{sTile}, s{sTile}, s{sDt}")
    o(f"s_lshl_b32 s{sOffX}, s{sDt}, 8"); o(f"s_lshl_b32 s25, s{sKh}, 22"); o(f"s_add_u32 s{sOffX}, s{sOffX}, s25")
    o(f"s_lshl_b32 s{sOffY}, s{sTt}, 13"); o(f"s_lshl_b32 s25, s{sKh}, 23"); o(f"s_add_u32 s{sOffY}, s{sOffY}, s25")
    G = Gemm(A, 4, 4, False, "o")
    o(f"s_mul_i32 s{sM0[0]}, s3, {G.NIX*1024}"); o(f"s_mul_i32 s{sM0[1]}, s3, {G.NIY*1024}")
    G.setup(3, 0, 2048, 0, [1, 2, 3, 4, 5, 6], [25, 26, 27, 28])
    gen_loop3(G, sX, sY, sOffX, sOffY, sM0, sK, 32 * 2048, 128 * 1024, 64, f"L_{name}", K=LOPT.get("K", 2), R=8, opt=LOPT)
    o("s_barrier")
    pst(o, 1)
    E = G.vF
    keep = lambda kh: [(jx, 2 * kh + h) for h in range(2) for jx in range(4)]
    send = lambda kh: keep(kh ^ 1)
    o("v_and_b32 v1, 15, v0"); o("v_lshrrev_b32 v2, 4, v0"); o("v_and_b32 v3, 1, v2"); o("v_lshrrev_b32 v2, 1, v2")
    o("v_lshlrev_b32 v3, 4, v3"); o("v_lshl_add_u32 v3, v2, 3, v3")
    o(f"s_lshl_b32 s25, s{sDt}, 7"); o("s_and_b32 s26, s3, 1"); o("s_lshl_b32 s26, s26, 6"); o("s_add_u32 s25, s25, s26")
    o("v_add_u32 v4, s25, v3")
    o(f"s_lshl_b32 s58, s{sTt}, 7"); o("s_lshr_b32 s26, s3, 1"); o("s_lshl_b32 s26, s26, 6"); o("s_add_u32 s58, s58, s26"); o(f"s_lshl_b32 s26, s{sKh}, 5"); o("s_add_u32 s58, s58, s26")
    o("v_add_u32 v5, s58, v1")
    o("v_lshlrev_b32 v6, 11, v5"); o("v_lshl_add_u32 v6, v4, 1, v6")
    o("v_lshlrev_b32 v7, 2, v4")
    M = E + 64
    XR = E + 112
    for k, sec in enumerate((2, 3, 4)):
        o(f"s_add_u32 s44, s6, {WS_MOD + sec*4096}"); o("s_addc_u32 s45, s7, 0")
        for p in range(2):
            o(f"global_load_dwordx4 {v(M+16*k+8*p,4)}, v7, s[44:45] offset:{p*128}"); o(f"global_load_dwordx4 {v(M+16*k+8*p+4,4)}, v7, s[44:45] offset:{p*128+16}")
    for h in range(2):
        o(f"v_add_u32 v8, {h*16*2048}, v6")
        for p in range(2): o(f"global_load_dwordx4 {v(XR+8*h+4*p,4)}, v8, s[54:55] offset:{p*64}")
    o("v_mov_b32 v17, v1"); o("v_mov_b32 v18, v3"); o("s_mov_b32 s62, s25")
    exchange(A, G, keep, send, sTile, sKh, WS_XCH, CNT_XO, name + "x")
    pst(o, 2)
    for h in range(2):
        for p in range(2):
            a_, b_ = E + 4 * (h * 4 + 2 * p), E + 4 * (h * 4 + 2 * p + 1)
            for r in range(4): o(f"v_permlane16_swap_b32 v{a_+r}, v{b_+r}")
    o("v_mov_b32 v1, v17"); o("v_mov_b32 v3, v18"); o("s_mov_b32 s25, s62")
    o("s_waitcnt vmcnt(0)")
    U = E + 128
    o(f"s_add_u32 s44, s6, {WS_X1}"); o("s_addc_u32 s45, s7, 0")
    for h in range(2):
        o(f"v_add_u32 v8, {h*16*2048}, v6")
        for p in range(2):
            Y = E + 4 * (h * 4 + 2 * p)
            unpack8(o, U, XR + 8 * h + 4 * p)
            for e in range(8): o(f"v_fma_f32 v{Y+e}, v{Y+e}, v{M+8*p+e}, v{U+e}")
            P = XR + 8 * h + 4 * p
            for d in range(4): o(f"v_cvt_pk_bf16_f32 v{P+d}, v{Y+2*d}, v{Y+2*d+1}")
            o(f"global_store_dwordx4 v8, {v(P,4)}, s[44:45] offset:{p*64}" + (" sc1" if FUSE else ""))
            unpack8(o, Y, P)
    S1, S2, t_ = U, U + 2, U + 4
    for h in range(2):
        Y = E + 16 * h
        o(f"v_add_f32 v{S1+h}, v{Y}, v{Y+1}")
        for e in range(2, 16): o(f"v_add_f32 v{S1+h}, v{S1+h}, v{Y+e}")
        o(f"v_mul_f32 v{S2+h}, v{Y}, v{Y}")
        for e in range(1, 16): o(f"v_fmac_f32 v{S2+h}, v{Y+e}, v{Y+e}")
    for x in (S1, S1 + 1, S2, S2 + 1):
        for sw in ("16", "32"):
            o(f"v_mov_b32 v{t_}, v{x}"); o(f"v_permlane{sw}_swap_b32 v{x}, v{t_}"); o(f"v_add_f32 v{x}, v{x}, v{t_}")
    if SENT:
        o("s_lshr_b32 s59, s58, 5")
        o(f"s_lshl_b32 s26, s59, 12"); o(f"s_lshl_b32 s27, s{sDt}, 1"); o("s_and_b32 s28, s3, 1"); o("s_add_u32 s27, s27, s28"); o("s_lshl_b32 s27, s27, 8")
        o(f"s_add_u32 s46, s6, {WS_STATP}"); o("s_addc_u32 s47, s7, 0"); o("s_add_u32 s46, s46, s26"); o("s_addc_u32 s47, s47, 0")
        o("v_lshlrev_b32 v9, 3, v1"); o("v_add_u32 v14, s27, v9")
        for h in range(2):
            o(f"v_mov_b32 v{U+8+2*h}, v{S1+h}"); o(f"v_mov_b32 v{U+9+2*h}, v{S2+h}")
        o("s_mov_b64 exec, 0xffff")
        for h in range(2): o(f"global_store_dwordx2 v14, {v(U+8+2*h,2)}, s[46:47] offset:{h*128} sc1")
        o("s_mov_b64 exec, -1")
        pst(o, 3)
        o("v_lshrrev_b32 v15, 4, v0"); o("v_lshlrev_b32 v15, 10, v15"); o("v_add_u32 v15, v15, v9")
        PS = E + 144 - 0
        PS = E + 32
        o("s_mov_b32 s50, 0x200000")
        A.label(f"L_{name}_stp")
        for h in range(2):
            for k_ in range(4): o(f"global_load_dwordx2 {v(PS+16*h+2*k_+0,2) if False else v(PS+8*h+2*k_,2)}, v15, s[46:47] offset:{k_*256+h*128} sc1")
        o("s_waitcnt vmcnt(0)")
        regs = list(range(PS, PS + 16))
        o(f"v_max3_u32 v2, v{regs[0]}, v{regs[1]}, v{regs[2]}")
        k_ = 3
        while k_ + 1 < len(regs):
            o(f"v_max3_u32 v2, v2, v{regs[k_]}, v{regs[k_+1]}"); k_ += 2
        if k_ < len(regs): o(f"v_max_u32 v2, v2, v{regs[k_]}")
        o("v_cmp_eq_u32 vcc, -1, v2"); o(f"s_cbranch_vccz L_{name}_stok")
        o("s_sleep 1"); o("s_sub_u32 s50, s50, 1"); o(f"s_cbranch_scc0 L_{name}_stp")
        A.label(f"L_{name}_stok")
        for h in range(2):
            b_ = PS + 8 * h
            o(f"v_add_f32 v{U+8+2*h}, v{b_}, v{b_+2}"); o(f"v_add_f32 v{U+9+2*h}, v{b_+1}, v{b_+3}")
            o(f"v_add_f32 v{b_+4}, v{b_+4}, v{b_+6}"); o(f"v_add_f32 v{b_+5}, v{b_+5}, v{b_+7}")
            o(f"v_add_f32 v{U+8+2*h}, v{U+8+2*h}, v{b_+4}"); o(f"v_add_f32 v{U+9+2*h}, v{U+9+2*h}, v{b_+5}")
        for x in range(U + 8, U + 12):
            for sw in ("16", "32"):
                o(f"v_mov_b32 v{t_}, v{x}"); o(f"v_permlane{sw}_swap_b32 v{x}, v{t_}"); o(f"v_add_f32 v{x}, v{x}, v{t_}")
    else:
        o(f"s_add_u32 s46, s6, {WS_STAT}"); o("s_addc_u32 s47, s7, 0")
        o("v_lshlrev_b32 v9, 3, v5")
        o("s_mov_b64 exec, 0xffff")
        for h in range(2):
            o(f"global_atomic_add_f32 v9, v{S1+h}, s[46:47] offset:{h*128}")
            o(f"global_atomic_add_f32 v9, v{S2+h}, s[46:47] offset:{h*128+4}")
        o("s_mov_b64 exec, -1")
        o("s_waitcnt vmcnt(0)")
        pst(o, 3)
        o(f"s_add_u32 s48, s6, {WS_CNT}"); o("s_addc_u32 s49, s7, 0")
        o("s_lshr_b32 s59, s58, 5"); o("s_lshl_b32 s26, s59, 7"); o(f"s_add_u32 s26, s26, {CNT_ST}")
        o("v_mov_b32 v14, s26"); o("v_mov_b32 v15, 1")
        o("s_mov_b64 exec, 1"); o("global_atomic_add v14, v15, s[48:49]"); o("s_mov_b64 exec, -1")
        o("s_mov_b32 s50, 0x200000")
        poll_ge(A, 48, 14, 16, f"{name}_st", 15, 50, sleep=6)
        for h in range(2): o(f"global_load_dwordx2 {v(S1+2*h if False else U+8+2*h,2)}, v9, s[46:47] offset:{h*128} sc1")
        o("s_waitcnt vmcnt(0)")
    pst(o, 4)
    for k in (2, ):
        for e in range(16): o(f"v_add_f32 v{M+32+e}, 1.0, v{M+32+e}")
    RS = 128 + 32
    o("s_lshl_b32 s26, s3, 13")
    o(f"v_mul_u32_u24 v10, {RS}, v1"); o("v_lshl_add_u32 v10, v3, 1, v10"); o("v_add_u32 v10, s26, v10")
    for h in range(2):
        mu, sq = U + 8 + 2 * h, U + 9 + 2 * h
        o(f"v_mul_f32 v{mu}, {fbits(1/1024)}, v{mu}")
        o(f"v_mul_f32 v{sq}, {fbits(1/1024)}, v{sq}")
        o(f"v_fma_f32 v{sq}, -v{mu}, v{mu}, v{sq}")
        o(f"v_max_f32 v{sq}, 0, v{sq}")
        o(f"v_add_f32 v{sq}, {fbits(1e-5)}, v{sq}")
        o(f"v_rsq_f32 v{sq}, v{sq}")
        for p in range(2):
            Y = E + 4 * (h * 4 + 2 * p)
            for e in range(8):
                o(f"v_sub_f32 v{Y+e}, v{Y+e}, v{mu}"); o(f"v_mul_f32 v{Y+e}, v{Y+e}, v{sq}")
                o(f"v_fma_f32 v{Y+e}, v{Y+e}, v{M+32+8*p+e}, v{M+16+8*p+e}")
            P = XR + 8 * h + 4 * p
            for d in range(4): o(f"v_cvt_pk_bf16_f32 v{P+d}, v{Y+2*d}, v{Y+2*d+1}")
            o(f"ds_write_b128 v10, {v(P,4)} offset:{h*16*RS + p*64}")
    o("s_waitcnt lgkmcnt(0)")
    o("v_lshrrev_b32 v2, 4, v0"); o("v_lshrrev_b32 v11, 2, v1"); o("v_lshl_add_u32 v11, v2, 3, v11"); o(f"v_mul_u32_u24 v11, {RS}, v11")
    o("v_and_b32 v12, 3, v1"); o("v_lshl_add_u32 v11, v12, 3, v11"); o("v_add_u32 v11, s26, v11")
    for j in range(4):
        o(f"ds_read_b64_tr_b16 {v(XR+4*j,2)}, v11 offset:{j*32}"); o(f"ds_read_b64_tr_b16 {v(XR+4*j+2,2)}, v11 offset:{j*32+4*RS}")
    gfun(o, 12, 1, 13); o("v_xor_b32 v12, v12, v2"); o("v_lshl_add_u32 v12, v1, 2, v12"); o("v_lshlrev_b32 v12, 4, v12")
    o("s_lshl_b32 s26, s59, 16"); o(f"s_lshl_b32 s27, s25, 6"); o("s_add_u32 s26, s26, s27"); o(f"s_add_u32 s26, s26, {WS_H2T}")
    o("v_add_u32 v12, s26, v12")
    o("s_waitcnt lgkmcnt(0)")
    for j in range(4): o(f"global_store_dwordx4 v12, {v(XR+4*j,4)}, s[6:7] offset:{j*1024}" + (" sc1" if FUSE else ""))
    o("s_waitcnt vmcnt(0)")
    if FUSE:
        o(f"s_add_u32 s48, s6, {WS_CNT}"); o("s_addc_u32 s49, s7, 0")
        o(f"s_lshl_b32 s26, s{sDt}, 7"); o(f"s_add_u32 s26, s26, {CNT_H2}")
        o("v_mov_b32 v14, s26"); o("v_mov_b32 v15, 1"); o("s_mov_b64 exec, 1"); o("global_atomic_add v14, v15, s[48:49]"); o("s_mov_b64 exec, -1")
        o("s_barrier")
        o("s_branch T_g1")
        A.label(f"L_{name}_end"); o("s_endpgm")
        return A.finish()
    pend(o, 0)
    A.label(f"L_{name}_end"); o("s_endpgm")
    return kernel_head(name) + A.finish() + kernel_desc(name, max(G.vEnd2, E + 144), G.nacc), 8 * G.SB

def gen_g2s(name="g2s_kernel"):
    A = Asm(); o = A
    head(o, name, [(52, KA_W2), (54, KA_B2), (60, KA_OUT)], first=not FUSE)
    srd(o, sX, 52, 0, 3584 * 4096); srd(o, sY, 6, WS_U, 112 * 64 * 1024)
    sSt_, sDt, sKh, sTile = 4, 5, 56, 57
    o("s_and_b32 s25, s2, 7"); o("s_lshr_b32 s26, s2, 3"); o(f"s_and_b32 s{sKh}, s25, 1")
    o(f"s_lshr_b32 s{sDt}, s25, 2"); o(f"s_lshl_b32 s{sDt}, s{sDt}, 2"); o("s_and_b32 s27, s26, 3"); o(f"s_add_u32 s{sDt}, s{sDt}, s27")
    o(f"s_bfe_u32 s{sSt_}, s25, 0x10001"); o(f"s_lshl_b32 s{sSt_}, s{sSt_}, 3"); o("s_lshr_b32 s27, s26, 2"); o(f"s_add_u32 s{sSt_}, s{sSt_}, s27")
    o(f"s_lshl_b32 s{sTile}, s{sSt_}, 3"); o(f"s_add_u32 s{sTile}, s{sTile}, s{sDt}")
    o(f"s_lshl_b32 s{sOffX}, s{sSt_}, 8"); o(f"s_mul_i32 s25, s{sKh}, {1792*4096}"); o(f"s_add_u32 s{sOffX}, s{sOffX}, s25")
    o(f"s_lshl_b32 s{sOffY}, s{sDt}, 13"); o(f"s_mul_i32 s25, s{sKh}, {56*65536}"); o(f"s_add_u32 s{sOffY}, s{sOffY}, s25")
    if FUSE:
        o(f"s_lshl_b32 s58, s{sDt}, 1"); o(f"s_add_u32 s58, s58, s{sKh}"); o("s_lshl_b32 s58, s58, 7"); o(f"s_add_u32 s58, s58, {CNT_U}")
        wg_wait(A, 58, 14, f"{name}_uw")
        o(f"s_add_u32 s25, s{sKh}, 1"); o(f"s_mul_i32 s{sY+2}, s25, {56*65536}")
    G = Gemm(A, 4, 4, True, "h")
    o(f"s_mul_i32 s{sM0[0]}, s3, {G.NIX*1024}"); o(f"s_mul_i32 s{sM0[1]}, s3, {G.NIY*1024}")
    G.setup(3, 0, 4096, 0, [1, 2, 3, 4, 5, 6], [25, 26, 27, 28])
    gen_loop3(G, sX, sY, sOffX, sOffY, sM0, sK, 32 * 4096, 64 * 1024, 56, f"L_{name}", K=2, R=8)
    pst(o, 1)
    E = G.vF
    keep = lambda kh: [(2 * kh + h, jy) for h in range(2) for jy in range(4)]
    send = lambda kh: keep(kh ^ 1)
    o("v_and_b32 v1, 15, v0"); o("v_lshrrev_b32 v2, 4, v0"); o("v_and_b32 v3, 1, v2"); o("v_lshrrev_b32 v2, 1, v2")
    o("v_lshlrev_b32 v3, 4, v3"); o("v_lshl_add_u32 v3, v2, 3, v3")
    o(f"s_lshl_b32 s25, s{sDt}, 7"); o("s_lshr_b32 s26, s3, 1"); o("s_lshl_b32 s26, s26, 6"); o("s_add_u32 s25, s25, s26")
    o("v_add_u32 v4, s25, v3")
    o(f"s_lshl_b32 s58, s{sSt_}, 7"); o("s_and_b32 s26, s3, 1"); o("s_lshl_b32 s26, s26, 6"); o("s_add_u32 s58, s58, s26"); o(f"s_lshl_b32 s26, s{sKh}, 5"); o("s_add_u32 s58, s58, s26")
    o("v_add_u32 v5, s58, v1")
    o("v_lshlrev_b32 v6, 11, v5"); o("v_lshl_add_u32 v6, v4, 1, v6")
    o("v_lshlrev_b32 v7, 2, v4")
    M = E + 64; XR = E + 112; B2 = E + 100
    o(f"s_add_u32 s44, s6, {WS_MOD + 5*4096}"); o("s_addc_u32 s45, s7, 0")
    for p in range(2):
        o(f"global_load_dwordx4 {v(M+8*p,4)}, v7, s[44:45] offset:{p*128}"); o(f"global_load_dwordx4 {v(M+8*p+4,4)}, v7, s[44:45] offset:{p*128+16}")
    o(f"s_add_u32 s44, s6, {WS_X1}"); o("s_addc_u32 s45, s7, 0")
    o("v_lshlrev_b32 v9, 1, v5")
    for h in range(2):
        o(f"v_add_u32 v8, {h*16*2048}, v6")
        for p in range(2): o(f"global_load_dwordx4 {v(XR+8*h+4*p,4)}, v8, s[44:45] offset:{p*64}")
        o(f"global_load_ushort v{B2+h}, v9, s[54:55] offset:{h*32}")
    exchange(A, G, keep, send, sTile, sKh, WS_XCH + 8 * MiB, CNT_XG, name + "x")
    pst(o, 2)
    for h in range(2):
        for p in range(2):
            a_, b_ = E + 4 * (h * 4 + 2 * p), E + 4 * (h * 4 + 2 * p + 1)
            for r in range(4): o(f"v_permlane16_swap_b32 v{a_+r}, v{b_+r}")
    o("s_waitcnt vmcnt(0)")
    U = E + 128
    for h in range(2):
        o(f"v_lshlrev_b32 v{B2+h}, 16, v{B2+h}")
        o(f"v_add_u32 v8, {h*16*2048}, v6")
        for p in range(2):
            Y = E + 4 * (h * 4 + 2 * p)
            unpack8(o, U, XR + 8 * h + 4 * p)
            for e in range(8): o(f"v_add_f32 v{Y+e}, v{Y+e}, v{B2+h}")
            for e in range(8): o(f"v_fma_f32 v{Y+e}, v{Y+e}, v{M+8*p+e}, v{U+e}")
            P = XR + 8 * h + 4 * p
            for d in range(4): o(f"v_cvt_pk_bf16_f32 v{P+d}, v{Y+2*d}, v{Y+2*d+1}")
            o(f"global_store_dwordx4 v8, {v(P,4)}, s[60:61] offset:{p*64}")
    o("s_waitcnt vmcnt(0)")
    if FUSE:
        o("s_endpgm")
        return A.finish()
    pend(o, 1)
    A.label(f"L_{name}_end"); o("s_endpgm")
    return kernel_head(name) + A.finish() + kernel_desc(name, max(G.vEnd2, E + 144), G.nacc), 8 * G.SB


def gen_tail(name="tail_kernel"):
    import k_gemms
    global FUSE
    FUSE = True; k_gemms.FUSE = True
    a_ = gen_opln(name="opln")
    b_ = k_gemms.gen_g1(name="g1f")
    c_ = gen_g2s(name="g2f")
    FUSE = False; k_gemms.FUSE = False
    return kernel_head(name) + a_ + "T_g1:\n" + b_ + "T_g2:\n" + c_ + kernel_desc(name, 164, 64), 131072
```

```python
import sys
from layout import *
import k_gemms, mega2, mega3
NAME = "adaLN_cond__memory_aug_recurrent_mem_tr__mixer_token_mlp__prompt"
HDR = open("cdna_kernels/" + NAME + ".s.ref").read().split("; Override launch geometry")[0]
def build(out, prof=False, slow=False, place=8, opt=None):
    import k_small
    g2, l_g2 = k_gemms.gen_g2()
    p3 = (opt or {}).get("p3", 4)
    launches = [("mega_kernel", 256, 256, 131072)]
    extra = ""
    if p3 < 4:
        k_gemms.PROF = bool((opt or {}).get('tprof'))
        op, l_op = k_gemms.gen_op(); g1, l_g1 = k_gemms.gen_g1()
        if p3 == 0:
            import k_attn
            k_attn.PROF = bool((opt or {}).get('tprof'))
            if (opt or {}).get("at2"):
                launches += [("attn_kernel", 512, 256, 0)]; pre_extra = k_attn.gen_attn2()
            else:
                launches += [("attn_kernel", 1024, 256, 0)]; pre_extra = k_attn.gen_attn()
        else: pre_extra = ""
        launches += [("op_kernel", 256, 256, l_op), ("ln2_kernel", 64, 1024, 32 * 2112), ("g1_kernel", 224, 256, l_g1)]
        extra = pre_extra + op + k_small.gen_ln2() + g1
    if (opt or {}).get("tail2"):
        import k_tail
        k_tail.LOPT = {k_[2:]: v_ for k_, v_ in (opt or {}).items() if k_.startswith('l_')}
        k_tail.SENT = bool((opt or {}).get('sent'))
        k_tail.PROF = bool((opt or {}).get('tprof'))
        opln, l_opln = k_tail.gen_opln(); g2s, l_g2s = k_tail.gen_g2s()
        launches = [x for x in launches if x[0] not in ("op_kernel", "ln2_kernel")]
        pos = [i for i, x in enumerate(launches) if x[0] == "g1_kernel"][0]
        launches.insert(pos, ("opln_kernel", 256, 256, l_opln))
        launches += [("g2s_kernel", 256, 256, l_g2s)]
        extra = pre_extra + opln + g1; g2 = g2s
        if (opt or {}).get("fuse"):
            tl, l_tl = k_tail.gen_tail()
            launches = [x for x in launches if x[0] not in ("opln_kernel", "g1_kernel", "g2s_kernel")] + [("tail_kernel", 256, 256, l_tl)]
            extra = pre_extra; g2 = tl
    else:
        launches += [("g2_kernel", 256, 256, l_g2)]
    t = HDR
    for k, g, b, l in launches: t += f"; @launch kernel={k} grid=({g},1,1) block=({b},1,1) lds={l}\n"
    t += '.amdgcn_target "amdgcn-amd-amdhsa--gfx950"\n.text\n'
    t += (mega3 if (opt or {}).get('m3') else mega2).gen_mega(recopt=dict(dict(E2_DEPTH=2, E2_SP=3, E2_DELAY=2, prof=prof, RT=1), **{k_[2:]: v_ for k_, v_ in (opt or {}).items() if k_.startswith('r_')}), force_slow=slow, place=place, opt=opt) + extra + g2
    open(out, "w").write(t)
if __name__ == "__main__":
    opt = {'S': 4}
    for x in sys.argv[2:]:
        if '=' in x: opt[x.split('=')[0]] = int(x.split('=')[1])
    build(sys.argv[1], 'prof' in sys.argv, 'slow' in sys.argv, 4 if 'p4' in sys.argv else 8, opt)
```

```python
from asmlib import *
from layout import *
from k_small import fbits, gfun
import math

def attn_body(A, sWS, sSeg, sHead, sQt, vL, lab, base=8, sc1=False, nt=0):
    NT = ' nt' if nt else ''
    o = A
    r = base
    vQ = r; r += 16
    vK = r; r += 32
    vV = r; r += 32
    vKm = r; r += 8
    vVm = r; r += 8
    vS = r; r += 12
    vD = r; r += 4
    vP = r; r += 8
    vLs = r; r += 4
    vOn = r; r += 4
    vT = r; r += 12
    vO = vK
    sA, sB, sC, sD = 40, 42, 44, 46
    sT0, sT1, sSc, sMk = 48, 49, 50, 52
    l16 = vT + 10; t0, t1 = vT + 8, vT + 9
    o(f"v_lshlrev_b32 v{l16}, 4, v{vL}")
    o(f"s_lshl_b32 s{sT0}, s{sSeg}, 5"); o(f"s_add_u32 s{sT0}, s{sT0}, s{sHead}")
    o(f"s_lshl_b32 s{sT1}, s{sT0}, 13")
    o(f"s_add_u32 s{sT1}, s{sT1}, 4096")
    def base_(dst, off, extra):
        o(f"s_add_u32 s{dst}, s{sWS}, s{extra}"); o(f"s_addc_u32 s{dst+1}, s{sWS+1}, 0")
        o(f"s_add_u32 s{dst}, s{dst}, {off}"); o(f"s_addc_u32 s{dst+1}, s{dst+1}, 0")
    base_(sA, WS_K, sT1); base_(sB, WS_VT, sT1)
    o(f"s_lshl_b32 s{sC}, s{sQt}, 12"); o(f"s_add_u32 s{sT1}, s{sT1}, s{sC}"); o(f"s_sub_u32 s{sT1}, s{sT1}, 4096")
    base_(sC, WS_Q, sT1)
    o(f"s_lshl_b32 s{sT1}, s{sT0}, 11")
    base_(sD, WS_KM, sT1)
    for u in range(4): o(f"global_load_dwordx4 {v(vQ+4*u,4)}, v{l16}, {s(sC,2)} offset:{u*1024}{NT}")
    for t in range(8): o(f"global_load_dwordx4 {v(vK+4*t,4)}, v{l16}, {s(sA,2)} offset:{t*1024-4096}{NT}")
    for c in range(2): o(f"global_load_dwordx4 {v(vKm+4*c,4)}, v{l16}, {s(sD,2)} offset:{c*1024}{NT}")
    o(f"s_add_u32 s{sD}, s{sD}, {WS_VM - WS_KM}"); o(f"s_addc_u32 s{sD+1}, s{sD+1}, 0")
    for c in range(2): o(f"global_load_dwordx4 {v(vVm+4*c,4)}, v{l16}, {s(sD,2)} offset:{c*1024}{NT}")
    for t in range(8): o(f"global_load_dwordx4 {v(vV+4*t,4)}, v{l16}, {s(sB,2)} offset:{t*1024-4096}{NT}")
    for k in range(4): o(f"v_mov_b32 v{vOn+k}, 0x3f803f80")
    o(f"s_mov_b32 s{sSc}, {fbits(128 ** -0.5 * math.log2(math.e))}")
    o(f"v_and_b32 v{t0}, 15, v{vL}"); o(f"v_lshrrev_b32 v{t1}, 4, v{vL}"); o(f"v_lshlrev_b32 v{t1}, 2, v{t1}"); o(f"v_sub_u32 v{t0}, v{t0}, v{t1}")
    o("s_waitcnt vmcnt(10)")
    Sx0, Sx1, Sm = vS, vS + 4, vS + 8
    for u in range(4):
        c = "0" if u == 0 else None
        o(f"v_mfma_f32_16x16x32_bf16 {v(Sx0,4)}, {v(vK+4*u,4)}, {v(vQ+4*u,4)}, {c or v(Sx0,4)}")
        o(f"v_mfma_f32_16x16x32_bf16 {v(Sx1,4)}, {v(vK+16+4*u,4)}, {v(vQ+4*u,4)}, {c or v(Sx1,4)}")
        acc = Sm if u % 2 == 0 else vD
        cc = "0" if u < 2 else v(acc, 4)
        o(f"v_mfma_f32_16x16x32_bf16 {v(acc,4)}, {v(vKm+4*(u>>1),4)}, {v(vQ+4*u,4)}, {cc}")
    NEG = 0xff800000
    for k in range(4):
        o(f"v_mov_b32 v{vT+k}, v{vD+k}")
    for k in range(4):
        o(f"v_permlane32_swap_b32 v{vD+k}, v{vT+k}")
    for k in range(4):
        o(f"v_add_f32 v{Sm+k}, v{Sm+k}, v{vT+k}")
    o(f"v_mov_b32 v{t1}, 0xff800000")
    o(f"v_cmp_lt_u32 vcc, 31, v{vL}")
    for k in range(4): o(f"v_cndmask_b32 v{Sm+k}, v{Sm+k}, v{t1}, vcc")
    o(f"s_cmp_eq_u32 s{sQt}, 0"); o(f"s_cbranch_scc0 {lab}_q1")
    for k in range(4):
        o(f"v_cmp_gt_i32 vcc, {k}, v{t0}")
        o(f"v_cndmask_b32 v{Sx0+k}, v{Sx0+k}, v{t1}, vcc")
        o(f"v_mov_b32 v{Sx1+k}, v{t1}")
    o(f"s_branch {lab}_qd")
    A.label(f"{lab}_q1")
    for k in range(4):
        o(f"v_cmp_gt_i32 vcc, {k}, v{t0}")
        o(f"v_cndmask_b32 v{Sx1+k}, v{Sx1+k}, v{t1}, vcc")
    A.label(f"{lab}_qd")
    Sall = list(range(vS, vS + 12))
    m, t = vT, vT + 1
    o(f"v_max3_f32 v{m}, v{Sall[0]}, v{Sall[1]}, v{Sall[2]}")
    for k in range(3, 11, 2): o(f"v_max3_f32 v{m}, v{m}, v{Sall[k]}, v{Sall[k+1]}")
    o(f"v_max_f32 v{m}, v{m}, v{Sall[11]}")
    for sw in ("16", "32"):
        o(f"v_mov_b32 v{t}, v{m}"); o(f"v_permlane{sw}_swap_b32 v{m}, v{t}"); o(f"v_max_f32 v{m}, v{m}, v{t}")
    o(f"v_mul_f32 v{m}, s{sSc}, v{m}")
    for x in Sall: o(f"v_fma_f32 v{x}, v{x}, s{sSc}, -v{m}")
    for x in Sall: o(f"v_exp_f32 v{x}, v{x}")
    vPx, vPmA, vPmB = vP, vP + 4, vP + 6
    for k in range(4): o(f"v_cvt_pk_bf16_f32 v{vPx+k}, v{vS+2*k}, v{vS+2*k+1}")
    o(f"v_cvt_pk_bf16_f32 v{vPmA}, v{Sm}, v{Sm+1}"); o(f"v_cvt_pk_bf16_f32 v{vPmA+1}, v{Sm+2}, v{Sm+3}")
    o(f"v_mov_b32 v{vT+2}, v{vPmA}"); o(f"v_mov_b32 v{vT+3}, v{vPmA+1}"); o(f"v_mov_b32 v{vPmB}, 0"); o(f"v_mov_b32 v{vPmB+1}, 0")
    o(f"v_permlane32_swap_b32 v{vPmB}, v{vT+2}"); o(f"v_permlane32_swap_b32 v{vPmB+1}, v{vT+3}")
    o("s_waitcnt vmcnt(0)")
    o(f"v_mfma_f32_16x16x32_bf16 {v(vLs,4)}, {v(vOn,4)}, {v(vPx,4)}, 0")
    for tt in range(8): o(f"v_mfma_f32_16x16x32_bf16 {v(vO+4*tt,4)}, {v(vV+4*tt,4)}, {v(vPx,4)}, 0")
    o(f"v_mfma_f32_16x16x16_bf16 {v(vLs,4)}, {v(vOn,2)}, {v(vPmA,2)}, {v(vLs,4)}")
    for tt in range(8):
        c, tv = tt >> 1, tt & 1
        pm = vPmB if (c & 1) else vPmA
        o(f"v_mfma_f32_16x16x16_bf16 {v(vO+4*tt,4)}, {v(vVm+4*(c>>1)+2*tv,2)}, {v(pm,2)}, {v(vO+4*tt,4)}")
    o(f"v_rcp_f32 v{m}, v{vLs}")
    n_, rho, g_ = vT + 4, vT + 5, vT + 6
    o(f"v_and_b32 v{n_}, 15, v{vL}"); o(f"v_lshrrev_b32 v{rho}, 4, v{vL}")
    o(f"v_and_b32 v{g_}, 1, v{rho}"); o(f"v_lshrrev_b32 v{rho}, 1, v{rho}"); o(f"v_lshl_or_b32 v{rho}, v{g_}, 1, v{rho}")
    gfun(o, g_, n_, vT + 7)
    o(f"v_xor_b32 v{rho}, v{rho}, v{g_}"); o(f"v_lshl_add_u32 v{rho}, v{n_}, 2, v{rho}"); o(f"v_lshlrev_b32 v{rho}, 4, v{rho}")
    o(f"s_lshl_b32 s{sT0}, s{sHead}, 19")
    o(f"s_lshl_b32 s{sT1}, s{sSeg}, 1"); o(f"s_add_u32 s{sT1}, s{sT1}, s{sQt}"); o(f"s_lshl_b32 s{sT1}, s{sT1}, 10")
    o(f"s_add_u32 s{sT0}, s{sT0}, s{sT1}")
    base_(sA, WS_O, sT0)
    for u in range(4):
        P = vQ + 4 * u
        for h in range(2):
            tt = 2 * u + h
            for k in range(4): o(f"v_mul_f32 v{vO+4*tt+k}, v{vO+4*tt+k}, v{m}")
            o(f"v_cvt_pk_bf16_f32 v{P+2*h}, v{vO+4*tt}, v{vO+4*tt+1}"); o(f"v_cvt_pk_bf16_f32 v{P+2*h+1}, v{vO+4*tt+2}, v{vO+4*tt+3}")
        o(f"v_permlane16_swap_b32 v{P}, v{P+2}"); o(f"v_permlane16_swap_b32 v{P+1}, v{P+3}")
        o(f"global_store_dwordx4 v{rho}, {v(P,4)}, {s(sA,2)}" + (" sc1" if sc1 else ""))
        if u < 3:
            o(f"s_add_u32 s{sA}, s{sA}, 131072"); o(f"s_addc_u32 s{sA+1}, s{sA+1}, 0")
    return r

PROF = False
def gen_attn(name="attn_kernel"):
    A = Asm(); o = A
    o("s_cmp_ge_u32 s2, 1024"); o(f"s_cbranch_scc1 L_{name}_end")
    o(f"s_load_dwordx2 s[4:5], s[0:1], {KA_WS}")
    o("v_lshrrev_b32 v1, 6, v0"); o("v_and_b32 v0, 63, v0"); o("v_readfirstlane_b32 s3, v1")
    o("s_lshl_b32 s6, s2, 2"); o("s_add_u32 s6, s6, s3")
    o("s_lshr_b32 s7, s6, 6"); o("s_lshr_b32 s8, s6, 1"); o("s_and_b32 s8, s8, 31"); o("s_and_b32 s9, s6, 1")
    o("s_waitcnt lgkmcnt(0)")
    if PROF: o("s_memrealtime s[60:61]")
    nv = attn_body(A, 4, 7, 8, 9, 0, f"L_{name}")
    o("s_waitcnt vmcnt(0)")
    if PROF:
        o("s_memrealtime s[62:63]"); o("s_waitcnt lgkmcnt(0)")
        o("s_lshl_b32 s25, s2, 5"); o("s_lshl_b32 s26, s3, 3"); o("s_add_u32 s25, s25, s26"); o(f"s_add_u32 s25, s25, {WS_PROF + 6*MiB}")
        o("v_mov_b32 v2, s60"); o("v_mov_b32 v3, s62"); o("v_mov_b32 v4, s25"); o("s_mov_b64 exec, 1"); o("global_store_dwordx2 v4, v[2:3], s[4:5]"); o("s_waitcnt vmcnt(0)")
    A.label(f"L_{name}_end"); o("s_endpgm")
    return kernel_head(name) + A.finish() + kernel_desc(name, nv)

def gen_attn2(name="attn_kernel"):
    A = Asm(); o = A
    o("s_cmp_ge_u32 s2, 512"); o(f"s_cbranch_scc1 L_{name}_end")
    o(f"s_load_dwordx2 s[4:5], s[0:1], {KA_WS}")
    o("v_lshrrev_b32 v1, 6, v0"); o("v_and_b32 v0, 63, v0"); o("v_readfirstlane_b32 s3, v1")
    o("s_lshl_b32 s6, s2, 2"); o("s_add_u32 s6, s6, s3")
    sSeg, sHead, sWS = 7, 8, 4
    o(f"s_lshr_b32 s{sSeg}, s6, 5"); o(f"s_and_b32 s{sHead}, s6, 31")
    o("s_waitcnt lgkmcnt(0)")
    if PROF: o("s_memrealtime s[60:61]")
    vL = 0
    r = 8
    vQ = r; r += 32
    vK = r; r += 32
    vV = r; r += 32
    vKm = r; r += 8
    vVm = r; r += 8
    vS = r; r += 12
    vD = r; r += 4
    vP = r; r += 8
    vLs = r; r += 4
    vOn = r; r += 4
    vO = r; r += 32
    vT = r; r += 12
    sA, sB, sC, sD = 40, 42, 44, 46
    sT0, sT1, sSc = 48, 49, 50
    l16 = vT + 10; t0, t1 = vT + 8, vT + 9
    o(f"v_lshlrev_b32 v{l16}, 4, v{vL}")
    o(f"s_lshl_b32 s{sT1}, s6, 13"); o(f"s_add_u32 s{sT1}, s{sT1}, 4096")
    def base_(dst, off, extra):
        o(f"s_add_u32 s{dst}, s{sWS}, s{extra}"); o(f"s_addc_u32 s{dst+1}, s{sWS+1}, 0")
        o(f"s_add_u32 s{dst}, s{dst}, {off}"); o(f"s_addc_u32 s{dst+1}, s{dst+1}, 0")
    base_(sA, WS_K, sT1); base_(sB, WS_VT, sT1); base_(sC, WS_Q, sT1)
    o(f"s_lshl_b32 s{sT1}, s6, 11"); base_(sD, WS_KM, sT1)
    for t in range(8): o(f"global_load_dwordx4 {v(vQ+4*t,4)}, v{l16}, {s(sC,2)} offset:{t*1024-4096}")
    for t in range(8): o(f"global_load_dwordx4 {v(vK+4*t,4)}, v{l16}, {s(sA,2)} offset:{t*1024-4096}")
    for c in range(2): o(f"global_load_dwordx4 {v(vKm+4*c,4)}, v{l16}, {s(sD,2)} offset:{c*1024}")
    o(f"s_add_u32 s{sD}, s{sD}, {WS_VM - WS_KM}"); o(f"s_addc_u32 s{sD+1}, s{sD+1}, 0")
    for c in range(2): o(f"global_load_dwordx4 {v(vVm+4*c,4)}, v{l16}, {s(sD,2)} offset:{c*1024}")
    for t in range(8): o(f"global_load_dwordx4 {v(vV+4*t,4)}, v{l16}, {s(sB,2)} offset:{t*1024-4096}")
    for k in range(4): o(f"v_mov_b32 v{vOn+k}, 0x3f803f80")
    o(f"s_mov_b32 s{sSc}, {fbits(128 ** -0.5 * math.log2(math.e))}")
    o(f"v_and_b32 v{t0}, 15, v{vL}"); o(f"v_lshrrev_b32 v{t1}, 4, v{vL}"); o(f"v_lshlrev_b32 v{t1}, 2, v{t1}"); o(f"v_sub_u32 v{t0}, v{t0}, v{t1}")
    o(f"v_mov_b32 v{t1}, 0xff800000")
    n_, rho, g_ = vT + 4, vT + 11, vT + 6
    o(f"v_and_b32 v{n_}, 15, v{vL}"); o(f"v_lshrrev_b32 v{rho}, 4, v{vL}")
    o(f"v_and_b32 v{g_}, 1, v{rho}"); o(f"v_lshrrev_b32 v{rho}, 1, v{rho}"); o(f"v_lshl_or_b32 v{rho}, v{g_}, 1, v{rho}")
    gfun(o, g_, n_, vT + 7)
    o(f"v_xor_b32 v{rho}, v{rho}, v{g_}"); o(f"v_lshl_add_u32 v{rho}, v{n_}, 2, v{rho}"); o(f"v_lshlrev_b32 v{rho}, 4, v{rho}")
    o("s_waitcnt vmcnt(10)")
    Sx0, Sx1, Sm = vS, vS + 4, vS + 8
    for qt in range(2):
        Q = vQ + 16 * qt
        for u in range(4):
            c = "0" if u == 0 else None
            o(f"v_mfma_f32_16x16x32_bf16 {v(Sx0,4)}, {v(vK+4*u,4)}, {v(Q+4*u,4)}, {c or v(Sx0,4)}")
            if qt == 1: o(f"v_mfma_f32_16x16x32_bf16 {v(Sx1,4)}, {v(vK+16+4*u,4)}, {v(Q+4*u,4)}, {c or v(Sx1,4)}")
            acc = Sm if u % 2 == 0 else vD
            cc = "0" if u < 2 else v(acc, 4)
            o(f"v_mfma_f32_16x16x32_bf16 {v(acc,4)}, {v(vKm+4*(u>>1),4)}, {v(Q+4*u,4)}, {cc}")
        for k in range(4): o(f"v_mov_b32 v{vT+k}, v{vD+k}")
        for k in range(4): o(f"v_permlane32_swap_b32 v{vD+k}, v{vT+k}")
        for k in range(4): o(f"v_add_f32 v{Sm+k}, v{Sm+k}, v{vT+k}")
        o(f"v_cmp_lt_u32 vcc, 31, v{vL}")
        for k in range(4): o(f"v_cndmask_b32 v{Sm+k}, v{Sm+k}, v{t1}, vcc")
        diag = Sx0 if qt == 0 else Sx1
        for k in range(4):
            o(f"v_cmp_gt_i32 vcc, {k}, v{t0}"); o(f"v_cndmask_b32 v{diag+k}, v{diag+k}, v{t1}, vcc")
        Sall = list(range(Sx0, Sx0 + 4)) + (list(range(Sx1, Sx1 + 4)) if qt == 1 else []) + list(range(Sm, Sm + 4))
        m, t = vT, vT + 1
        o(f"v_max3_f32 v{m}, v{Sall[0]}, v{Sall[1]}, v{Sall[2]}")
        k = 3
        while k + 1 < len(Sall): o(f"v_max3_f32 v{m}, v{m}, v{Sall[k]}, v{Sall[k+1]}"); k += 2
        if k < len(Sall): o(f"v_max_f32 v{m}, v{m}, v{Sall[k]}")
        for sw in ("16", "32"):
            o(f"v_mov_b32 v{t}, v{m}"); o(f"v_permlane{sw}_swap_b32 v{m}, v{t}"); o(f"v_max_f32 v{m}, v{m}, v{t}")
        o(f"v_mul_f32 v{m}, s{sSc}, v{m}")
        for x in Sall: o(f"v_fma_f32 v{x}, v{x}, s{sSc}, -v{m}")
        for x in Sall: o(f"v_exp_f32 v{x}, v{x}")
        vPx, vPmA, vPmB = vP, vP + 4, vP + 6
        o(f"v_cvt_pk_bf16_f32 v{vPx}, v{Sx0}, v{Sx0+1}"); o(f"v_cvt_pk_bf16_f32 v{vPx+1}, v{Sx0+2}, v{Sx0+3}")
        if qt == 1:
            o(f"v_cvt_pk_bf16_f32 v{vPx+2}, v{Sx1}, v{Sx1+1}"); o(f"v_cvt_pk_bf16_f32 v{vPx+3}, v{Sx1+2}, v{Sx1+3}")
        else:
            o(f"v_mov_b32 v{vPx+2}, 0"); o(f"v_mov_b32 v{vPx+3}, 0")
        o(f"v_cvt_pk_bf16_f32 v{vPmA}, v{Sm}, v{Sm+1}"); o(f"v_cvt_pk_bf16_f32 v{vPmA+1}, v{Sm+2}, v{Sm+3}")
        o(f"v_mov_b32 v{vT+2}, v{vPmA}"); o(f"v_mov_b32 v{vT+3}, v{vPmA+1}"); o(f"v_mov_b32 v{vPmB}, 0"); o(f"v_mov_b32 v{vPmB+1}, 0")
        o(f"v_permlane32_swap_b32 v{vPmB}, v{vT+2}"); o(f"v_permlane32_swap_b32 v{vPmB+1}, v{vT+3}")
        if qt == 0: o("s_waitcnt vmcnt(0)")
        o(f"v_mfma_f32_16x16x32_bf16 {v(vLs,4)}, {v(vOn,4)}, {v(vPx,4)}, 0")
        for tt in range(8): o(f"v_mfma_f32_16x16x32_bf16 {v(vO+4*tt,4)}, {v(vV+4*tt,4)}, {v(vPx,4)}, 0")
        o(f"v_mfma_f32_16x16x16_bf16 {v(vLs,4)}, {v(vOn,2)}, {v(vPmA,2)}, {v(vLs,4)}")
        for tt in range(8):
            c, tv = tt >> 1, tt & 1
            pm = vPmB if (c & 1) else vPmA
            o(f"v_mfma_f32_16x16x16_bf16 {v(vO+4*tt,4)}, {v(vVm+4*(c>>1)+2*tv,2)}, {v(pm,2)}, {v(vO+4*tt,4)}")
        o(f"v_rcp_f32 v{m}, v{vLs}")
        o(f"s_lshl_b32 s{sT0}, s{sHead}, 19")
        o(f"s_lshl_b32 s{sT1}, s{sSeg}, 1"); o(f"s_add_u32 s{sT1}, s{sT1}, {qt}"); o(f"s_lshl_b32 s{sT1}, s{sT1}, 10")
        o(f"s_add_u32 s{sT0}, s{sT0}, s{sT1}")
        base_(sA, WS_O, sT0)
        for u in range(4):
            P = Q + 4 * u
            for h in range(2):
                tt = 2 * u + h
                for k in range(4): o(f"v_mul_f32 v{vO+4*tt+k}, v{vO+4*tt+k}, v{m}")
                o(f"v_cvt_pk_bf16_f32 v{P+2*h}, v{vO+4*tt}, v{vO+4*tt+1}"); o(f"v_cvt_pk_bf16_f32 v{P+2*h+1}, v{vO+4*tt+2}, v{vO+4*tt+3}")
            o(f"v_permlane16_swap_b32 v{P}, v{P+2}"); o(f"v_permlane16_swap_b32 v{P+1}, v{P+3}")
            o(f"global_store_dwordx4 v{rho}, {v(P,4)}, {s(sA,2)}")
            if u < 3:
                o(f"s_add_u32 s{sA}, s{sA}, 131072"); o(f"s_addc_u32 s{sA+1}, s{sA+1}, 0")
    o("s_waitcnt vmcnt(0)")
    if PROF:
        o("s_memrealtime s[62:63]"); o("s_waitcnt lgkmcnt(0)")
        o("s_lshl_b32 s25, s2, 5"); o("s_lshl_b32 s26, s3, 3"); o("s_add_u32 s25, s25, s26"); o(f"s_add_u32 s25, s25, {WS_PROF + 6*MiB}")
        o("v_mov_b32 v2, s60"); o("v_mov_b32 v3, s62"); o("v_mov_b32 v4, s25"); o("s_mov_b64 exec, 1"); o("global_store_dwordx2 v4, v[2:3], s[4:5]"); o("s_waitcnt vmcnt(0)")
    A.label(f"L_{name}_end"); o("s_endpgm")
    return kernel_head(name) + A.finish() + kernel_desc(name, r)

def attn_phase(A, sc1=True):
    o = A
    sWS = 6
    vL = 0
    r = 8
    vQ = r; r += 32
    vK = r; r += 32
    vV = r; r += 32
    vKm = r; r += 8
    vVm = r; r += 8
    vS = r; r += 12
    vD = r; r += 4
    vP = r; r += 8
    vLs = r; r += 4
    vOn = r; r += 4
    vO = r; r += 32
    vT = r; r += 12
    aQ, aK, aV, aKm, aVm = 0, 32, 64, 96, 104
    sU, sSeg, sHead = 8, 9, 10
    sA, sB, sC, sD = 40, 42, 44, 46
    sT0, sT1, sSc = 48, 49, 50
    l16 = vT + 10; t0, t1 = vT + 8, vT + 9
    o("s_lshl_b32 s8, s2, 2"); o("s_add_u32 s8, s8, s3"); o("s_lshl_b32 s8, s8, 1")
    o(f"v_lshlrev_b32 v{l16}, 4, v{vL}")
    def base_(dst, off, extra):
        o(f"s_add_u32 s{dst}, s{sWS}, s{extra}"); o(f"s_addc_u32 s{dst+1}, s{sWS+1}, 0")
        o(f"s_add_u32 s{dst}, s{dst}, {off}"); o(f"s_addc_u32 s{dst+1}, s{dst+1}, 0")
    def loads(R, du):
        Q, K, V, Km, Vm = R
        o(f"s_add_u32 s{sT0}, s{sU}, {du}")
        o(f"s_lshl_b32 s{sT1}, s{sT0}, 13"); o(f"s_add_u32 s{sT1}, s{sT1}, 4096")
        base_(sA, WS_K, sT1); base_(sB, WS_VT, sT1); base_(sC, WS_Q, sT1)
        o(f"s_lshl_b32 s{sT1}, s{sT0}, 11"); base_(sD, WS_KM, sT1)
        for t in range(8): o(f"global_load_dwordx4 {Q(4*t,4)}, v{l16}, {s(sC,2)} offset:{t*1024-4096}")
        for t in range(8): o(f"global_load_dwordx4 {K(4*t,4)}, v{l16}, {s(sA,2)} offset:{t*1024-4096}")
        for c in range(2): o(f"global_load_dwordx4 {Km(4*c,4)}, v{l16}, {s(sD,2)} offset:{c*1024}")
        o(f"s_add_u32 s{sD}, s{sD}, {WS_VM - WS_KM}"); o(f"s_addc_u32 s{sD+1}, s{sD+1}, 0")
        for c in range(2): o(f"global_load_dwordx4 {Vm(4*c,4)}, v{l16}, {s(sD,2)} offset:{c*1024}")
        for t in range(8): o(f"global_load_dwordx4 {V(4*t,4)}, v{l16}, {s(sB,2)} offset:{t*1024-4096}")
    mk = lambda f, b: (lambda off, n: f(b + off, n))
    RA = (mk(v, vQ), mk(v, vK), mk(v, vV), mk(v, vKm), mk(v, vVm))
    RB = (mk(a, aQ), mk(a, aK), mk(a, aV), mk(a, aKm), mk(a, aVm))
    loads(RA, 0); loads(RB, 1)
    for k in range(4): o(f"v_mov_b32 v{vOn+k}, 0x3f803f80")
    o(f"s_mov_b32 s{sSc}, {fbits(128 ** -0.5 * math.log2(math.e))}")
    o(f"v_and_b32 v{t0}, 15, v{vL}"); o(f"v_lshrrev_b32 v{t1}, 4, v{vL}"); o(f"v_lshlrev_b32 v{t1}, 2, v{t1}"); o(f"v_sub_u32 v{t0}, v{t0}, v{t1}")
    o(f"v_mov_b32 v{t1}, 0xff800000")
    n_, rho, g_ = vT + 4, vT + 11, vT + 6
    o(f"v_and_b32 v{n_}, 15, v{vL}"); o(f"v_lshrrev_b32 v{rho}, 4, v{vL}")
    o(f"v_and_b32 v{g_}, 1, v{rho}"); o(f"v_lshrrev_b32 v{rho}, 1, v{rho}"); o(f"v_lshl_or_b32 v{rho}, v{g_}, 1, v{rho}")
    gfun(o, g_, n_, vT + 7)
    o(f"v_xor_b32 v{rho}, v{rho}, v{g_}"); o(f"v_lshl_add_u32 v{rho}, v{n_}, 2, v{rho}"); o(f"v_lshlrev_b32 v{rho}, 4, v{rho}")
    Sx0, Sx1, Sm = vS, vS + 4, vS + 8
    def unit(R, du, w1, w2):
        Q, K, V, Km, Vm = R
        o(f"s_add_u32 s{sT0}, s{sU}, {du}"); o(f"s_lshr_b32 s{sSeg}, s{sT0}, 5"); o(f"s_and_b32 s{sHead}, s{sT0}, 31")
        o(f"s_waitcnt vmcnt({w1})")
        for qt in range(2):
            for u in range(4):
                c = "0" if u == 0 else None
                o(f"v_mfma_f32_16x16x32_bf16 {v(Sx0,4)}, {K(4*u,4)}, {Q(16*qt+4*u,4)}, {c or v(Sx0,4)}")
                if qt == 1: o(f"v_mfma_f32_16x16x32_bf16 {v(Sx1,4)}, {K(16+4*u,4)}, {Q(16*qt+4*u,4)}, {c or v(Sx1,4)}")
                acc = Sm if u % 2 == 0 else vD
                cc = "0" if u < 2 else v(acc, 4)
                o(f"v_mfma_f32_16x16x32_bf16 {v(acc,4)}, {Km(4*(u>>1),4)}, {Q(16*qt+4*u,4)}, {cc}")
            for k in range(4): o(f"v_mov_b32 v{vT+k}, v{vD+k}")
            for k in range(4): o(f"v_permlane32_swap_b32 v{vD+k}, v{vT+k}")
            for k in range(4): o(f"v_add_f32 v{Sm+k}, v{Sm+k}, v{vT+k}")
            o(f"v_cmp_lt_u32 vcc, 31, v{vL}")
            for k in range(4): o(f"v_cndmask_b32 v{Sm+k}, v{Sm+k}, v{t1}, vcc")
            diag = Sx0 if qt == 0 else Sx1
            for k in range(4):
                o(f"v_cmp_gt_i32 vcc, {k}, v{t0}"); o(f"v_cndmask_b32 v{diag+k}, v{diag+k}, v{t1}, vcc")
            Sall = list(range(Sx0, Sx0 + 4)) + (list(range(Sx1, Sx1 + 4)) if qt == 1 else []) + list(range(Sm, Sm + 4))
            m, t = vT, vT + 1
            o(f"v_max3_f32 v{m}, v{Sall[0]}, v{Sall[1]}, v{Sall[2]}")
            k = 3
            while k + 1 < len(Sall): o(f"v_max3_f32 v{m}, v{m}, v{Sall[k]}, v{Sall[k+1]}"); k += 2
            if k < len(Sall): o(f"v_max_f32 v{m}, v{m}, v{Sall[k]}")
            for sw in ("16", "32"):
                o(f"v_mov_b32 v{t}, v{m}"); o(f"v_permlane{sw}_swap_b32 v{m}, v{t}"); o(f"v_max_f32 v{m}, v{m}, v{t}")
            o(f"v_mul_f32 v{m}, s{sSc}, v{m}")
            for x in Sall: o(f"v_fma_f32 v{x}, v{x}, s{sSc}, -v{m}")
            for x in Sall: o(f"v_exp_f32 v{x}, v{x}")
            vPx, vPmA, vPmB = vP, vP + 4, vP + 6
            o(f"v_cvt_pk_bf16_f32 v{vPx}, v{Sx0}, v{Sx0+1}"); o(f"v_cvt_pk_bf16_f32 v{vPx+1}, v{Sx0+2}, v{Sx0+3}")
            if qt == 1:
                o(f"v_cvt_pk_bf16_f32 v{vPx+2}, v{Sx1}, v{Sx1+1}"); o(f"v_cvt_pk_bf16_f32 v{vPx+3}, v{Sx1+2}, v{Sx1+3}")
            else:
                o(f"v_mov_b32 v{vPx+2}, 0"); o(f"v_mov_b32 v{vPx+3}, 0")
            o(f"v_cvt_pk_bf16_f32 v{vPmA}, v{Sm}, v{Sm+1}"); o(f"v_cvt_pk_bf16_f32 v{vPmA+1}, v{Sm+2}, v{Sm+3}")
            o(f"v_mov_b32 v{vT+2}, v{vPmA}"); o(f"v_mov_b32 v{vT+3}, v{vPmA+1}"); o(f"v_mov_b32 v{vPmB}, 0"); o(f"v_mov_b32 v{vPmB+1}, 0")
            o(f"v_permlane32_swap_b32 v{vPmB}, v{vT+2}"); o(f"v_permlane32_swap_b32 v{vPmB+1}, v{vT+3}")
            if qt == 0: o(f"s_waitcnt vmcnt({w2})")
            o(f"v_mfma_f32_16x16x32_bf16 {v(vLs,4)}, {v(vOn,4)}, {v(vPx,4)}, 0")
            for tt in range(8): o(f"v_mfma_f32_16x16x32_bf16 {v(vO+4*tt,4)}, {V(4*tt,4)}, {v(vPx,4)}, 0")
            o(f"v_mfma_f32_16x16x16_bf16 {v(vLs,4)}, {v(vOn,2)}, {v(vPmA,2)}, {v(vLs,4)}")
            for tt in range(8):
                c, tv = tt >> 1, tt & 1
                pm = vPmB if (c & 1) else vPmA
                o(f"v_mfma_f32_16x16x16_bf16 {v(vO+4*tt,4)}, {Vm(4*(c>>1)+2*tv,2)}, {v(pm,2)}, {v(vO+4*tt,4)}")
            o(f"v_rcp_f32 v{m}, v{vLs}")
            o(f"s_lshl_b32 s{sT0}, s{sHead}, 19")
            o(f"s_lshl_b32 s{sT1}, s{sSeg}, 1"); o(f"s_add_u32 s{sT1}, s{sT1}, {qt}"); o(f"s_lshl_b32 s{sT1}, s{sT1}, 10")
            o(f"s_add_u32 s{sT0}, s{sT0}, s{sT1}")
            base_(sA, WS_O, sT0)
            for u in range(4):
                P = vQ + 16 * qt + 4 * u
                for h in range(2):
                    tt = 2 * u + h
                    for k in range(4): o(f"v_mul_f32 v{vO+4*tt+k}, v{vO+4*tt+k}, v{m}")
                    o(f"v_cvt_pk_bf16_f32 v{P+2*h}, v{vO+4*tt}, v{vO+4*tt+1}"); o(f"v_cvt_pk_bf16_f32 v{P+2*h+1}, v{vO+4*tt+2}, v{vO+4*tt+3}")
                o(f"v_permlane16_swap_b32 v{P}, v{P+2}"); o(f"v_permlane16_swap_b32 v{P+1}, v{P+3}")
                o(f"global_store_dwordx4 v{rho}, {v(P,4)}, {s(sA,2)}" + (" sc1" if sc1 else ""))
                if u < 3:
                    o(f"s_add_u32 s{sA}, s{sA}, 131072"); o(f"s_addc_u32 s{sA+1}, s{sA+1}, 0")
    unit(RA, 0, 38, 28)
    unit(RB, 1, 18, 4)
    o("s_waitcnt vmcnt(0)")
    return r
```

```python
from asmlib import *
from layout import *
from gemm import Gemm, gen_loop2, gen_loop3
from k_qkv import srd
from k_small import fbits, unpack8, gfun, LOG2E
import math

SENT = False
FUSE = False
CNT_H2 = 131072 + 32768
CNT_AT = 131072 + 36864
FUSE_AT = False
CNT_U = 131072 + 34816
WS_STATP = 144 * MiB + 0
WS_XCH = 128 * MiB
WS_STAT = WS_CNT + 131072 + 16384
CNT_XO = 131072
CNT_ST = 131072 + 8192
CNT_XG = 131072 + 4096

sX, sY = 8, 12
sOffX, sOffY, sM0, sK = 20, 21, [22, 23], 24
sSt = [32, 33, 34]

def poll_ge(A, sBase, vAddr, target, tag, vT, sLimReg, sleep=2):
    o = A
    A.label(f"L_{tag}")
    o(f"global_load_dword v{vT}, v{vAddr}, {s(sBase,2)} sc1")
    o("s_waitcnt vmcnt(0)")
    o(f"v_readfirstlane_b32 s44, v{vT}")
    o(f"s_cmp_ge_u32 s44, {target}"); o(f"s_cbranch_scc1 L_{tag}_ok")
    o(f"s_sleep {sleep}")
    o(f"s_sub_u32 s{sLimReg}, s{sLimReg}, 1"); o(f"s_cbranch_scc0 L_{tag}")
    A.label(f"L_{tag}_ok")

def exchange(A, G, keep_tiles, send_tiles, sTile, sKh, xch_off, cnt_off, name):
    o = A
    E = G.vF
    o(f"s_lshl_b32 s25, s{sTile}, 1"); o(f"s_add_u32 s26, s25, s{sKh}"); o("s_lshl_b32 s26, s26, 2"); o("s_add_u32 s26, s26, s3"); o("s_lshl_b32 s26, s26, 13")
    o(f"s_xor_b32 s27, s{sKh}, 1"); o("s_add_u32 s27, s25, s27"); o("s_lshl_b32 s27, s27, 2"); o("s_add_u32 s27, s27, s3"); o("s_lshl_b32 s27, s27, 13")
    o(f"s_add_u32 s26, s26, {xch_off}"); o(f"s_add_u32 s27, s27, {xch_off}")
    o("s_add_u32 s40, s6, s26"); o("s_addc_u32 s41, s7, 0"); o("s_add_u32 s42, s6, s27"); o("s_addc_u32 s43, s7, 0")
    o("s_add_u32 s40, s40, 4096"); o("s_addc_u32 s41, s41, 0"); o("s_add_u32 s42, s42, 4096"); o("s_addc_u32 s43, s43, 0")
    o("v_lshlrev_b32 v1, 4, v0")
    T = E + 32
    for kh in range(2):
        if kh == 0: o(f"s_cmp_lg_u32 s{sKh}, 0"); o(f"s_cbranch_scc1 L_{name}_k1")
        else: A.label(f"L_{name}_k1")
        for t, (jx, jy) in enumerate(send_tiles(kh)):
            R = T + 4 * (t % 4)
            for r in range(4): o(f"v_accvgpr_read_b32 v{R+r}, a{G.accr(jx, jy)+r}")
            o(f"global_store_dwordx4 v1, {v(R,4)}, s[40:41] offset:{t*1024-4096} sc1")
        for t, (jx, jy) in enumerate(keep_tiles(kh)):
            for r in range(4): o(f"v_accvgpr_read_b32 v{E+4*t+r}, a{G.accr(jx, jy)+r}")
        if kh == 0: o(f"s_branch L_{name}_kd")
    A.label(f"L_{name}_kd")
    if SENT:
        o("s_mov_b32 s50, 0x200000")
        A.label(f"L_{name}_sp")
        for k_ in range(8): o(f"global_load_dwordx4 {v(T+4*k_,4)}, v1, s[42:43] offset:{k_*1024-4096} sc1")
        o("s_waitcnt vmcnt(0)")
        regs = list(range(T, T + 32))
        o(f"v_max3_u32 v2, v{regs[0]}, v{regs[1]}, v{regs[2]}")
        k_ = 3
        while k_ + 1 < len(regs):
            o(f"v_max3_u32 v2, v2, v{regs[k_]}, v{regs[k_+1]}"); k_ += 2
        if k_ < len(regs): o(f"v_max_u32 v2, v2, v{regs[k_]}")
        o("v_cmp_eq_u32 vcc, -1, v2"); o(f"s_cbranch_vccz L_{name}_sok")
        o("s_sub_u32 s50, s50, 1"); o(f"s_cbranch_scc0 L_{name}_sp")
        A.label(f"L_{name}_sok")
        for k_ in range(32): o(f"v_add_f32 v{E+k_}, v{E+k_}, v{T+k_}")
        return
    o("s_waitcnt vmcnt(0)")
    o(f"s_add_u32 s48, s6, {WS_CNT}"); o("s_addc_u32 s49, s7, 0")
    o(f"s_add_u32 s26, s25, s{sKh}"); o("s_lshl_b32 s26, s26, 2"); o("s_add_u32 s26, s26, s3"); o("s_lshl_b32 s26, s26, 2"); o(f"s_add_u32 s26, s26, {cnt_off}")
    o("v_mov_b32 v2, s26"); o("v_mov_b32 v3, 1")
    o("s_mov_b64 exec, 1"); o("global_atomic_add v2, v3, s[48:49]"); o("s_mov_b64 exec, -1")
    o(f"s_xor_b32 s27, s{sKh}, 1"); o("s_add_u32 s27, s25, s27"); o("s_lshl_b32 s27, s27, 2"); o("s_add_u32 s27, s27, s3"); o("s_lshl_b32 s27, s27, 2"); o(f"s_add_u32 s27, s27, {cnt_off}")
    o("v_mov_b32 v2, s27")
    o("s_mov_b32 s50, 0x200000")
    poll_ge(A, 48, 2, 1, f"{name}_p", 3, 50)
    for t in range(8): o(f"global_load_dwordx4 {v(T+4*t,4)}, v1, s[42:43] offset:{t*1024-4096} sc1")
    for t in range(8):
        o(f"s_waitcnt vmcnt({7-t})")
        for r in range(4): o(f"v_add_f32 v{E+4*t+r}, v{E+4*t+r}, v{T+4*t+r}")


PROF = False
def pst(o, k):
    if PROF: o(f's_memrealtime s[{64+2*k}:{65+2*k}]')
def pend(o, idx):
    if not PROF: return
    o('s_memrealtime s[76:77]'); o('s_waitcnt lgkmcnt(0)')
    o('s_lshl_b32 s25, s2, 7'); o('s_lshl_b32 s26, s3, 5'); o('s_add_u32 s25, s25, s26'); o(f's_add_u32 s25, s25, {WS_PROF + 7*MiB + idx*65536}')
    for k in range(6): o(f'v_mov_b32 v{2+k}, s{64+2*k}')
    o('v_mov_b32 v8, s76'); o('v_mov_b32 v9, 0'); o('v_mov_b32 v10, s25')
    o('s_mov_b64 exec, 1'); o('global_store_dwordx4 v10, v[2:5], s[6:7]'); o('global_store_dwordx4 v10, v[6:9], s[6:7] offset:16'); o('s_waitcnt vmcnt(0)')

def head(o, name, ptrs, first=True):
    if first: o(f"s_cmp_ge_u32 s2, 256"); o(f"s_cbranch_scc1 L_{name}_end")
    o(f"s_load_dwordx2 s[6:7], s[0:1], {KA_WS}")
    for sreg, ka in ptrs: o(f"s_load_dwordx2 {s(sreg,2)}, s[0:1], {ka}")
    if first: o("v_lshrrev_b32 v1, 6, v0"); o("v_and_b32 v0, 63, v0"); o("v_readfirstlane_b32 s3, v1")
    o("s_waitcnt lgkmcnt(0)")
    pst(o, 0)

LOPT = {}
def wg_wait(A, off_sreg, target, tag):
    o = A
    o(f"s_add_u32 s48, s6, {WS_CNT}"); o("s_addc_u32 s49, s7, 0")
    o("s_cmp_lg_u32 s3, 0"); o(f"s_cbranch_scc1 L_{tag}_b")
    o(f"v_mov_b32 v2, s{off_sreg}"); o("s_mov_b32 s50, 0x200000")
    poll_ge(A, 48, 2, target, tag, 3, 50, sleep=2)
    A.label(f"L_{tag}_b")
    o("s_barrier")

def gen_opln(name="opln_kernel"):
    A = Asm(); o = A
    head(o, name, [(52, KA_WO), (54, KA_X)])
    if FUSE_AT:
        import k_attn
        k_attn.attn_phase(A)
        o(f"s_add_u32 s48, s6, {WS_CNT}"); o("s_addc_u32 s49, s7, 0")
        o("s_lshr_b32 s25, s8, 7"); o("s_lshl_b32 s25, s25, 1"); o("s_bfe_u32 s26, s8, 0x10004"); o("s_add_u32 s25, s25, s26"); o("s_lshl_b32 s25, s25, 7"); o(f"s_add_u32 s25, s25, {CNT_AT}")
        o("v_mov_b32 v14, s25"); o("v_mov_b32 v15, 2"); o("s_mov_b64 exec, 1"); o("global_atomic_add v14, v15, s[48:49]"); o("s_mov_b64 exec, -1")
    srd(o, sX, 52, 0, 8 * MiB); srd(o, sY, 6, WS_O, 16 * MiB)
    sDt, sTt, sKh, sTile = 4, 5, 56, 57
    o("s_and_b32 s25, s2, 7"); o("s_lshr_b32 s26, s2, 3"); o(f"s_and_b32 s{sKh}, s25, 1")
    o(f"s_lshr_b32 s{sDt}, s25, 2"); o(f"s_lshl_b32 s{sDt}, s{sDt}, 2"); o("s_and_b32 s27, s26, 3"); o(f"s_add_u32 s{sDt}, s{sDt}, s27")
    o(f"s_bfe_u32 s{sTt}, s25, 0x10001"); o(f"s_lshl_b32 s{sTt}, s{sTt}, 3"); o("s_lshr_b32 s27, s26, 2"); o(f"s_add_u32 s{sTt}, s{sTt}, s27")
    o(f"s_lshl_b32 s{sTile}, s{sTt}, 3"); o(f"s_add_u32 s{sTile}, s{sTile}, s{sDt}")
    o(f"s_lshl_b32 s{sOffX}, s{sDt}, 8"); o(f"s_lshl_b32 s25, s{sKh}, 22"); o(f"s_add_u32 s{sOffX}, s{sOffX}, s25")
    o(f"s_lshl_b32 s{sOffY}, s{sTt}, 13"); o(f"s_lshl_b32 s25, s{sKh}, 23"); o(f"s_add_u32 s{sOffY}, s{sOffY}, s25")
    if FUSE_AT:
        o(f"s_lshl_b32 s58, s{sTt}, 1"); o(f"s_add_u32 s58, s58, s{sKh}"); o("s_lshl_b32 s58, s58, 7"); o(f"s_add_u32 s58, s58, {CNT_AT}")
        wg_wait(A, 58, 64, f"{name}_aw")
        o(f"s_add_u32 s25, s{sKh}, 1"); o(f"s_lshl_b32 s{sY+2}, s25, 23")
    G = Gemm(A, 4, 4, False, "o")
    o(f"s_mul_i32 s{sM0[0]}, s3, {G.NIX*1024}"); o(f"s_mul_i32 s{sM0[1]}, s3, {G.NIY*1024}")
    G.setup(3, 0, 2048, 0, [1, 2, 3, 4, 5, 6], [25, 26, 27, 28])
    gen_loop3(G, sX, sY, sOffX, sOffY, sM0, sK, 32 * 2048, 128 * 1024, 64, f"L_{name}", K=LOPT.get("K", 2), R=8, opt=LOPT)
    o("s_barrier")
    pst(o, 1)
    E = G.vF
    keep = lambda kh: [(jx, 2 * kh + h) for h in range(2) for jx in range(4)]
    send = lambda kh: keep(kh ^ 1)
    o("v_and_b32 v1, 15, v0"); o("v_lshrrev_b32 v2, 4, v0"); o("v_and_b32 v3, 1, v2"); o("v_lshrrev_b32 v2, 1, v2")
    o("v_lshlrev_b32 v3, 4, v3"); o("v_lshl_add_u32 v3, v2, 3, v3")
    o(f"s_lshl_b32 s25, s{sDt}, 7"); o("s_and_b32 s26, s3, 1"); o("s_lshl_b32 s26, s26, 6"); o("s_add_u32 s25, s25, s26")
    o("v_add_u32 v4, s25, v3")
    o(f"s_lshl_b32 s58, s{sTt}, 7"); o("s_lshr_b32 s26, s3, 1"); o("s_lshl_b32 s26, s26, 6"); o("s_add_u32 s58, s58, s26"); o(f"s_lshl_b32 s26, s{sKh}, 5"); o("s_add_u32 s58, s58, s26")
    o("v_add_u32 v5, s58, v1")
    o("v_lshlrev_b32 v6, 11, v5"); o("v_lshl_add_u32 v6, v4, 1, v6")
    o("v_lshlrev_b32 v7, 2, v4")
    M = E + 64
    XR = E + 112
    for k, sec in enumerate((2, 3, 4)):
        o(f"s_add_u32 s44, s6, {WS_MOD + sec*4096}"); o("s_addc_u32 s45, s7, 0")
        for p in range(2):
            o(f"global_load_dwordx4 {v(M+16*k+8*p,4)}, v7, s[44:45] offset:{p*128}"); o(f"global_load_dwordx4 {v(M+16*k+8*p+4,4)}, v7, s[44:45] offset:{p*128+16}")
    for h in range(2):
        o(f"v_add_u32 v8, {h*16*2048}, v6")
        for p in range(2): o(f"global_load_dwordx4 {v(XR+8*h+4*p,4)}, v8, s[54:55] offset:{p*64}")
    o("v_mov_b32 v17, v1"); o("v_mov_b32 v18, v3"); o("s_mov_b32 s62, s25")
    exchange(A, G, keep, send, sTile, sKh, WS_XCH, CNT_XO, name + "x")
    pst(o, 2)
    for h in range(2):
        for p in range(2):
            a_, b_ = E + 4 * (h * 4 + 2 * p), E + 4 * (h * 4 + 2 * p + 1)
            for r in range(4): o(f"v_permlane16_swap_b32 v{a_+r}, v{b_+r}")
    o("v_mov_b32 v1, v17"); o("v_mov_b32 v3, v18"); o("s_mov_b32 s25, s62")
    o("s_waitcnt vmcnt(0)")
    U = E + 128
    o(f"s_add_u32 s44, s6, {WS_X1}"); o("s_addc_u32 s45, s7, 0")
    for h in range(2):
        o(f"v_add_u32 v8, {h*16*2048}, v6")
        for p in range(2):
            Y = E + 4 * (h * 4 + 2 * p)
            unpack8(o, U, XR + 8 * h + 4 * p)
            for e in range(8): o(f"v_fma_f32 v{Y+e}, v{Y+e}, v{M+8*p+e}, v{U+e}")
            P = XR + 8 * h + 4 * p
            for d in range(4): o(f"v_cvt_pk_bf16_f32 v{P+d}, v{Y+2*d}, v{Y+2*d+1}")
            o(f"global_store_dwordx4 v8, {v(P,4)}, s[44:45] offset:{p*64}" + (" sc1" if FUSE else ""))
            unpack8(o, Y, P)
    S1, S2, t_ = U, U + 2, U + 4
    for h in range(2):
        Y = E + 16 * h
        o(f"v_add_f32 v{S1+h}, v{Y}, v{Y+1}")
        for e in range(2, 16): o(f"v_add_f32 v{S1+h}, v{S1+h}, v{Y+e}")
        o(f"v_mul_f32 v{S2+h}, v{Y}, v{Y}")
        for e in range(1, 16): o(f"v_fmac_f32 v{S2+h}, v{Y+e}, v{Y+e}")
    for x in (S1, S1 + 1, S2, S2 + 1):
        for sw in ("16", "32"):
            o(f"v_mov_b32 v{t_}, v{x}"); o(f"v_permlane{sw}_swap_b32 v{x}, v{t_}"); o(f"v_add_f32 v{x}, v{x}, v{t_}")
    if SENT:
        o("s_lshr_b32 s59, s58, 5")
        o(f"s_lshl_b32 s26, s59, 12"); o(f"s_lshl_b32 s27, s{sDt}, 1"); o("s_and_b32 s28, s3, 1"); o("s_add_u32 s27, s27, s28"); o("s_lshl_b32 s27, s27, 8")
        o(f"s_add_u32 s46, s6, {WS_STATP}"); o("s_addc_u32 s47, s7, 0"); o("s_add_u32 s46, s46, s26"); o("s_addc_u32 s47, s47, 0")
        o("v_lshlrev_b32 v9, 3, v1"); o("v_add_u32 v14, s27, v9")
        for h in range(2):
            o(f"v_mov_b32 v{U+8+2*h}, v{S1+h}"); o(f"v_mov_b32 v{U+9+2*h}, v{S2+h}")
        o("s_mov_b64 exec, 0xffff")
        for h in range(2): o(f"global_store_dwordx2 v14, {v(U+8+2*h,2)}, s[46:47] offset:{h*128} sc1")
        o("s_mov_b64 exec, -1")
        pst(o, 3)
        o("v_lshrrev_b32 v15, 4, v0"); o("v_lshlrev_b32 v15, 10, v15"); o("v_add_u32 v15, v15, v9")
        PS = E + 144 - 0
        PS = E + 32
        o("s_mov_b32 s50, 0x200000")
        A.label(f"L_{name}_stp")
        for h in range(2):
            for k_ in range(4): o(f"global_load_dwordx2 {v(PS+16*h+2*k_+0,2) if False else v(PS+8*h+2*k_,2)}, v15, s[46:47] offset:{k_*256+h*128} sc1")
        o("s_waitcnt vmcnt(0)")
        regs = list(range(PS, PS + 16))
        o(f"v_max3_u32 v2, v{regs[0]}, v{regs[1]}, v{regs[2]}")
        k_ = 3
        while k_ + 1 < len(regs):
            o(f"v_max3_u32 v2, v2, v{regs[k_]}, v{regs[k_+1]}"); k_ += 2
        if k_ < len(regs): o(f"v_max_u32 v2, v2, v{regs[k_]}")
        o("v_cmp_eq_u32 vcc, -1, v2"); o(f"s_cbranch_vccz L_{name}_stok")
        o("s_sleep 1"); o("s_sub_u32 s50, s50, 1"); o(f"s_cbranch_scc0 L_{name}_stp")
        A.label(f"L_{name}_stok")
        for h in range(2):
            b_ = PS + 8 * h
            o(f"v_add_f32 v{U+8+2*h}, v{b_}, v{b_+2}"); o(f"v_add_f32 v{U+9+2*h}, v{b_+1}, v{b_+3}")
            o(f"v_add_f32 v{b_+4}, v{b_+4}, v{b_+6}"); o(f"v_add_f32 v{b_+5}, v{b_+5}, v{b_+7}")
            o(f"v_add_f32 v{U+8+2*h}, v{U+8+2*h}, v{b_+4}"); o(f"v_add_f32 v{U+9+2*h}, v{U+9+2*h}, v{b_+5}")
        for x in range(U + 8, U + 12):
            for sw in ("16", "32"):
                o(f"v_mov_b32 v{t_}, v{x}"); o(f"v_permlane{sw}_swap_b32 v{x}, v{t_}"); o(f"v_add_f32 v{x}, v{x}, v{t_}")
    else:
        o(f"s_add_u32 s46, s6, {WS_STAT}"); o("s_addc_u32 s47, s7, 0")
        o("v_lshlrev_b32 v9, 3, v5")
        o("s_mov_b64 exec, 0xffff")
        for h in range(2):
            o(f"global_atomic_add_f32 v9, v{S1+h}, s[46:47] offset:{h*128}")
            o(f"global_atomic_add_f32 v9, v{S2+h}, s[46:47] offset:{h*128+4}")
        o("s_mov_b64 exec, -1")
        o("s_waitcnt vmcnt(0)")
        pst(o, 3)
        o(f"s_add_u32 s48, s6, {WS_CNT}"); o("s_addc_u32 s49, s7, 0")
        o("s_lshr_b32 s59, s58, 5"); o("s_lshl_b32 s26, s59, 7"); o(f"s_add_u32 s26, s26, {CNT_ST}")
        o("v_mov_b32 v14, s26"); o("v_mov_b32 v15, 1")
        o("s_mov_b64 exec, 1"); o("global_atomic_add v14, v15, s[48:49]"); o("s_mov_b64 exec, -1")
        o("s_mov_b32 s50, 0x200000")
        poll_ge(A, 48, 14, 16, f"{name}_st", 15, 50, sleep=6)
        for h in range(2): o(f"global_load_dwordx2 {v(S1+2*h if False else U+8+2*h,2)}, v9, s[46:47] offset:{h*128} sc1")
        o("s_waitcnt vmcnt(0)")
    pst(o, 4)
    for k in (2, ):
        for e in range(16): o(f"v_add_f32 v{M+32+e}, 1.0, v{M+32+e}")
    RS = 128 + 32
    o("s_lshl_b32 s26, s3, 13")
    o(f"v_mul_u32_u24 v10, {RS}, v1"); o("v_lshl_add_u32 v10, v3, 1, v10"); o("v_add_u32 v10, s26, v10")
    for h in range(2):
        mu, sq = U + 8 + 2 * h, U + 9 + 2 * h
        o(f"v_mul_f32 v{mu}, {fbits(1/1024)}, v{mu}")
        o(f"v_mul_f32 v{sq}, {fbits(1/1024)}, v{sq}")
        o(f"v_fma_f32 v{sq}, -v{mu}, v{mu}, v{sq}")
        o(f"v_max_f32 v{sq}, 0, v{sq}")
        o(f"v_add_f32 v{sq}, {fbits(1e-5)}, v{sq}")
        o(f"v_rsq_f32 v{sq}, v{sq}")
        for p in range(2):
            Y = E + 4 * (h * 4 + 2 * p)
            for e in range(8):
                o(f"v_sub_f32 v{Y+e}, v{Y+e}, v{mu}"); o(f"v_mul_f32 v{Y+e}, v{Y+e}, v{sq}")
                o(f"v_fma_f32 v{Y+e}, v{Y+e}, v{M+32+8*p+e}, v{M+16+8*p+e}")
            P = XR + 8 * h + 4 * p
            for d in range(4): o(f"v_cvt_pk_bf16_f32 v{P+d}, v{Y+2*d}, v{Y+2*d+1}")
            o(f"ds_write_b128 v10, {v(P,4)} offset:{h*16*RS + p*64}")
    o("s_waitcnt lgkmcnt(0)")
    o("v_lshrrev_b32 v2, 4, v0"); o("v_lshrrev_b32 v11, 2, v1"); o("v_lshl_add_u32 v11, v2, 3, v11"); o(f"v_mul_u32_u24 v11, {RS}, v11")
    o("v_and_b32 v12, 3, v1"); o("v_lshl_add_u32 v11, v12, 3, v11"); o("v_add_u32 v11, s26, v11")
    for j in range(4):
        o(f"ds_read_b64_tr_b16 {v(XR+4*j,2)}, v11 offset:{j*32}"); o(f"ds_read_b64_tr_b16 {v(XR+4*j+2,2)}, v11 offset:{j*32+4*RS}")
    gfun(o, 12, 1, 13); o("v_xor_b32 v12, v12, v2"); o("v_lshl_add_u32 v12, v1, 2, v12"); o("v_lshlrev_b32 v12, 4, v12")
    o("s_lshl_b32 s26, s59, 16"); o(f"s_lshl_b32 s27, s25, 6"); o("s_add_u32 s26, s26, s27"); o(f"s_add_u32 s26, s26, {WS_H2T}")
    o("v_add_u32 v12, s26, v12")
    o("s_waitcnt lgkmcnt(0)")
    for j in range(4): o(f"global_store_dwordx4 v12, {v(XR+4*j,4)}, s[6:7] offset:{j*1024}" + (" sc1" if FUSE else ""))
    o("s_waitcnt vmcnt(0)")
    if FUSE:
        o(f"s_add_u32 s48, s6, {WS_CNT}"); o("s_addc_u32 s49, s7, 0")
        o(f"s_lshl_b32 s26, s{sDt}, 7"); o(f"s_add_u32 s26, s26, {CNT_H2}")
        o("v_mov_b32 v14, s26"); o("v_mov_b32 v15, 1"); o("s_mov_b64 exec, 1"); o("global_atomic_add v14, v15, s[48:49]"); o("s_mov_b64 exec, -1")
        o("s_barrier")
        o("s_branch T_g1")
        A.label(f"L_{name}_end"); o("s_endpgm")
        return A.finish()
    pend(o, 0)
    A.label(f"L_{name}_end"); o("s_endpgm")
    return kernel_head(name) + A.finish() + kernel_desc(name, max(G.vEnd2, E + 144), G.nacc), 8 * G.SB

def gen_g2s(name="g2s_kernel"):
    A = Asm(); o = A
    head(o, name, [(52, KA_W2), (54, KA_B2), (60, KA_OUT)], first=not FUSE)
    srd(o, sX, 52, 0, 3584 * 4096); srd(o, sY, 6, WS_U, 112 * 64 * 1024)
    sSt_, sDt, sKh, sTile = 4, 5, 56, 57
    o("s_and_b32 s25, s2, 7"); o("s_lshr_b32 s26, s2, 3"); o(f"s_and_b32 s{sKh}, s25, 1")
    o(f"s_lshr_b32 s{sDt}, s25, 2"); o(f"s_lshl_b32 s{sDt}, s{sDt}, 2"); o("s_and_b32 s27, s26, 3"); o(f"s_add_u32 s{sDt}, s{sDt}, s27")
    o(f"s_bfe_u32 s{sSt_}, s25, 0x10001"); o(f"s_lshl_b32 s{sSt_}, s{sSt_}, 3"); o("s_lshr_b32 s27, s26, 2"); o(f"s_add_u32 s{sSt_}, s{sSt_}, s27")
    o(f"s_lshl_b32 s{sTile}, s{sSt_}, 3"); o(f"s_add_u32 s{sTile}, s{sTile}, s{sDt}")
    o(f"s_lshl_b32 s{sOffX}, s{sSt_}, 8"); o(f"s_mul_i32 s25, s{sKh}, {1792*4096}"); o(f"s_add_u32 s{sOffX}, s{sOffX}, s25")
    o(f"s_lshl_b32 s{sOffY}, s{sDt}, 13"); o(f"s_mul_i32 s25, s{sKh}, {56*65536}"); o(f"s_add_u32 s{sOffY}, s{sOffY}, s25")
    if FUSE:
        o(f"s_lshl_b32 s58, s{sDt}, 1"); o(f"s_add_u32 s58, s58, s{sKh}"); o("s_lshl_b32 s58, s58, 7"); o(f"s_add_u32 s58, s58, {CNT_U}")
        wg_wait(A, 58, 14, f"{name}_uw")
        o(f"s_add_u32 s25, s{sKh}, 1"); o(f"s_mul_i32 s{sY+2}, s25, {56*65536}")
    G = Gemm(A, 4, 4, True, "h")
    o(f"s_mul_i32 s{sM0[0]}, s3, {G.NIX*1024}"); o(f"s_mul_i32 s{sM0[1]}, s3, {G.NIY*1024}")
    G.setup(3, 0, 4096, 0, [1, 2, 3, 4, 5, 6], [25, 26, 27, 28])
    gen_loop3(G, sX, sY, sOffX, sOffY, sM0, sK, 32 * 4096, 64 * 1024, 56, f"L_{name}", K=2, R=8)
    pst(o, 1)
    E = G.vF
    keep = lambda kh: [(2 * kh + h, jy) for h in range(2) for jy in range(4)]
    send = lambda kh: keep(kh ^ 1)
    o("v_and_b32 v1, 15, v0"); o("v_lshrrev_b32 v2, 4, v0"); o("v_and_b32 v3, 1, v2"); o("v_lshrrev_b32 v2, 1, v2")
    o("v_lshlrev_b32 v3, 4, v3"); o("v_lshl_add_u32 v3, v2, 3, v3")
    o(f"s_lshl_b32 s25, s{sDt}, 7"); o("s_lshr_b32 s26, s3, 1"); o("s_lshl_b32 s26, s26, 6"); o("s_add_u32 s25, s25, s26")
    o("v_add_u32 v4, s25, v3")
    o(f"s_lshl_b32 s58, s{sSt_}, 7"); o("s_and_b32 s26, s3, 1"); o("s_lshl_b32 s26, s26, 6"); o("s_add_u32 s58, s58, s26"); o(f"s_lshl_b32 s26, s{sKh}, 5"); o("s_add_u32 s58, s58, s26")
    o("v_add_u32 v5, s58, v1")
    o("v_lshlrev_b32 v6, 11, v5"); o("v_lshl_add_u32 v6, v4, 1, v6")
    o("v_lshlrev_b32 v7, 2, v4")
    M = E + 64; XR = E + 112; B2 = E + 100
    o(f"s_add_u32 s44, s6, {WS_MOD + 5*4096}"); o("s_addc_u32 s45, s7, 0")
    for p in range(2):
        o(f"global_load_dwordx4 {v(M+8*p,4)}, v7, s[44:45] offset:{p*128}"); o(f"global_load_dwordx4 {v(M+8*p+4,4)}, v7, s[44:45] offset:{p*128+16}")
    o(f"s_add_u32 s44, s6, {WS_X1}"); o("s_addc_u32 s45, s7, 0")
    o("v_lshlrev_b32 v9, 1, v5")
    for h in range(2):
        o(f"v_add_u32 v8, {h*16*2048}, v6")
        for p in range(2): o(f"global_load_dwordx4 {v(XR+8*h+4*p,4)}, v8, s[44:45] offset:{p*64}")
        o(f"global_load_ushort v{B2+h}, v9, s[54:55] offset:{h*32}")
    exchange(A, G, keep, send, sTile, sKh, WS_XCH + 8 * MiB, CNT_XG, name + "x")
    pst(o, 2)
    for h in range(2):
        for p in range(2):
            a_, b_ = E + 4 * (h * 4 + 2 * p), E + 4 * (h * 4 + 2 * p + 1)
            for r in range(4): o(f"v_permlane16_swap_b32 v{a_+r}, v{b_+r}")
    o("s_waitcnt vmcnt(0)")
    U = E + 128
    for h in range(2):
        o(f"v_lshlrev_b32 v{B2+h}, 16, v{B2+h}")
        o(f"v_add_u32 v8, {h*16*2048}, v6")
        for p in range(2):
            Y = E + 4 * (h * 4 + 2 * p)
            unpack8(o, U, XR + 8 * h + 4 * p)
            for e in range(8): o(f"v_add_f32 v{Y+e}, v{Y+e}, v{B2+h}")
            for e in range(8): o(f"v_fma_f32 v{Y+e}, v{Y+e}, v{M+8*p+e}, v{U+e}")
            P = XR + 8 * h + 4 * p
            for d in range(4): o(f"v_cvt_pk_bf16_f32 v{P+d}, v{Y+2*d}, v{Y+2*d+1}")
            o(f"global_store_dwordx4 v8, {v(P,4)}, s[60:61] offset:{p*64}")
    o("s_waitcnt vmcnt(0)")
    if FUSE:
        o("s_endpgm")
        return A.finish()
    pend(o, 1)
    A.label(f"L_{name}_end"); o("s_endpgm")
    return kernel_head(name) + A.finish() + kernel_desc(name, max(G.vEnd2, E + 144), G.nacc), 8 * G.SB


def gen_tail(name="tail_kernel", with_attn=False):
    import k_gemms
    global FUSE, FUSE_AT
    FUSE = True; k_gemms.FUSE = True; FUSE_AT = with_attn
    a_ = gen_opln(name="opln")
    b_ = k_gemms.gen_g1(name="g1f")
    c_ = gen_g2s(name="g2f")
    FUSE = False; k_gemms.FUSE = False; FUSE_AT = False
    return kernel_head(name) + a_ + "T_g1:\n" + b_ + "T_g2:\n" + c_ + (kernel_desc(name, 196, 128) if with_attn else kernel_desc(name, 164, 64)), 131072
```

```python
import sys
from layout import *
import k_gemms, mega2, mega3
NAME = "adaLN_cond__memory_aug_recurrent_mem_tr__mixer_token_mlp__prompt"
HDR = open("cdna_kernels/" + NAME + ".s.ref").read().split("; Override launch geometry")[0]
def build(out, prof=False, slow=False, place=8, opt=None):
    import k_small
    g2, l_g2 = k_gemms.gen_g2()
    p3 = (opt or {}).get("p3", 4)
    launches = [("mega_kernel", 256, 256, 131072)]
    extra = ""
    if p3 < 4:
        k_gemms.PROF = bool((opt or {}).get('tprof'))
        op, l_op = k_gemms.gen_op(); g1, l_g1 = k_gemms.gen_g1()
        if p3 == 0:
            import k_attn
            k_attn.PROF = bool((opt or {}).get('tprof'))
            if (opt or {}).get("at2"):
                launches += [("attn_kernel", 512, 256, 0)]; pre_extra = k_attn.gen_attn2()
            else:
                launches += [("attn_kernel", 1024, 256, 0)]; pre_extra = k_attn.gen_attn()
        else: pre_extra = ""
        launches += [("op_kernel", 256, 256, l_op), ("ln2_kernel", 64, 1024, 32 * 2112), ("g1_kernel", 224, 256, l_g1)]
        extra = pre_extra + op + k_small.gen_ln2() + g1
    if (opt or {}).get("tail2"):
        import k_tail
        k_tail.LOPT = {k_[2:]: v_ for k_, v_ in (opt or {}).items() if k_.startswith('l_')}
        k_tail.SENT = bool((opt or {}).get('sent'))
        k_tail.PROF = bool((opt or {}).get('tprof'))
        opln, l_opln = k_tail.gen_opln(); g2s, l_g2s = k_tail.gen_g2s()
        launches = [x for x in launches if x[0] not in ("op_kernel", "ln2_kernel")]
        pos = [i for i, x in enumerate(launches) if x[0] == "g1_kernel"][0]
        launches.insert(pos, ("opln_kernel", 256, 256, l_opln))
        launches += [("g2s_kernel", 256, 256, l_g2s)]
        extra = pre_extra + opln + g1; g2 = g2s
        if (opt or {}).get("fuse"):
            wa = (opt or {}).get("fuse") == 2
            tl, l_tl = k_tail.gen_tail(with_attn=wa)
            launches = [x for x in launches if x[0] not in ("opln_kernel", "g1_kernel", "g2s_kernel") + (("attn_kernel",) if wa else ())] + [("tail_kernel", 256, 256, l_tl)]
            extra = "" if wa else pre_extra; g2 = tl
    else:
        launches += [("g2_kernel", 256, 256, l_g2)]
    t = HDR
    for k, g, b, l in launches: t += f"; @launch kernel={k} grid=({g},1,1) block=({b},1,1) lds={l}\n"
    t += '.amdgcn_target "amdgcn-amd-amdhsa--gfx950"\n.text\n'
    t += (mega3 if (opt or {}).get('m3') else mega2).gen_mega(recopt=dict(dict(E2_DEPTH=2, E2_SP=3, E2_DELAY=2, prof=prof, RT=1), **{k_[2:]: v_ for k_, v_ in (opt or {}).items() if k_.startswith('r_')}), force_slow=slow, place=place, opt=opt) + extra + g2
    open(out, "w").write(t)
if __name__ == "__main__":
    opt = {'S': 4}
    for x in sys.argv[2:]:
        if '=' in x: opt[x.split('=')[0]] = int(x.split('=')[1])
    build(sys.argv[1], 'prof' in sys.argv, 'slow' in sys.argv, 4 if 'p4' in sys.argv else 8, opt)
```

```python
from asmlib import *
from layout import *
from k_small import fbits, gfun
import math

def attn_body(A, sWS, sSeg, sHead, sQt, vL, lab, base=8, sc1=False, nt=0):
    NT = ' nt' if nt else ''
    o = A
    r = base
    vQ = r; r += 16
    vK = r; r += 32
    vV = r; r += 32
    vKm = r; r += 8
    vVm = r; r += 8
    vS = r; r += 12
    vD = r; r += 4
    vP = r; r += 8
    vLs = r; r += 4
    vOn = r; r += 4
    vT = r; r += 12
    vO = vK
    sA, sB, sC, sD = 40, 42, 44, 46
    sT0, sT1, sSc, sMk = 48, 49, 50, 52
    l16 = vT + 10; t0, t1 = vT + 8, vT + 9
    o(f"v_lshlrev_b32 v{l16}, 4, v{vL}")
    o(f"s_lshl_b32 s{sT0}, s{sSeg}, 5"); o(f"s_add_u32 s{sT0}, s{sT0}, s{sHead}")
    o(f"s_lshl_b32 s{sT1}, s{sT0}, 13")
    o(f"s_add_u32 s{sT1}, s{sT1}, 4096")
    def base_(dst, off, extra):
        o(f"s_add_u32 s{dst}, s{sWS}, s{extra}"); o(f"s_addc_u32 s{dst+1}, s{sWS+1}, 0")
        o(f"s_add_u32 s{dst}, s{dst}, {off}"); o(f"s_addc_u32 s{dst+1}, s{dst+1}, 0")
    base_(sA, WS_K, sT1); base_(sB, WS_VT, sT1)
    o(f"s_lshl_b32 s{sC}, s{sQt}, 12"); o(f"s_add_u32 s{sT1}, s{sT1}, s{sC}"); o(f"s_sub_u32 s{sT1}, s{sT1}, 4096")
    base_(sC, WS_Q, sT1)
    o(f"s_lshl_b32 s{sT1}, s{sT0}, 11")
    base_(sD, WS_KM, sT1)
    for u in range(4): o(f"global_load_dwordx4 {v(vQ+4*u,4)}, v{l16}, {s(sC,2)} offset:{u*1024}{NT}")
    for t in range(8): o(f"global_load_dwordx4 {v(vK+4*t,4)}, v{l16}, {s(sA,2)} offset:{t*1024-4096}{NT}")
    for c in range(2): o(f"global_load_dwordx4 {v(vKm+4*c,4)}, v{l16}, {s(sD,2)} offset:{c*1024}{NT}")
    o(f"s_add_u32 s{sD}, s{sD}, {WS_VM - WS_KM}"); o(f"s_addc_u32 s{sD+1}, s{sD+1}, 0")
    for c in range(2): o(f"global_load_dwordx4 {v(vVm+4*c,4)}, v{l16}, {s(sD,2)} offset:{c*1024}{NT}")
    for t in range(8): o(f"global_load_dwordx4 {v(vV+4*t,4)}, v{l16}, {s(sB,2)} offset:{t*1024-4096}{NT}")
    for k in range(4): o(f"v_mov_b32 v{vOn+k}, 0x3f803f80")
    o(f"s_mov_b32 s{sSc}, {fbits(128 ** -0.5 * math.log2(math.e))}")
    o(f"v_and_b32 v{t0}, 15, v{vL}"); o(f"v_lshrrev_b32 v{t1}, 4, v{vL}"); o(f"v_lshlrev_b32 v{t1}, 2, v{t1}"); o(f"v_sub_u32 v{t0}, v{t0}, v{t1}")
    o("s_waitcnt vmcnt(10)")
    Sx0, Sx1, Sm = vS, vS + 4, vS + 8
    for u in range(4):
        c = "0" if u == 0 else None
        o(f"v_mfma_f32_16x16x32_bf16 {v(Sx0,4)}, {v(vK+4*u,4)}, {v(vQ+4*u,4)}, {c or v(Sx0,4)}")
        o(f"v_mfma_f32_16x16x32_bf16 {v(Sx1,4)}, {v(vK+16+4*u,4)}, {v(vQ+4*u,4)}, {c or v(Sx1,4)}")
        acc = Sm if u % 2 == 0 else vD
        cc = "0" if u < 2 else v(acc, 4)
        o(f"v_mfma_f32_16x16x32_bf16 {v(acc,4)}, {v(vKm+4*(u>>1),4)}, {v(vQ+4*u,4)}, {cc}")
    NEG = 0xff800000
    for k in range(4):
        o(f"v_mov_b32 v{vT+k}, v{vD+k}")
    for k in range(4):
        o(f"v_permlane32_swap_b32 v{vD+k}, v{vT+k}")
    for k in range(4):
        o(f"v_add_f32 v{Sm+k}, v{Sm+k}, v{vT+k}")
    o(f"v_mov_b32 v{t1}, 0xff800000")
    o(f"v_cmp_lt_u32 vcc, 31, v{vL}")
    for k in range(4): o(f"v_cndmask_b32 v{Sm+k}, v{Sm+k}, v{t1}, vcc")
    o(f"s_cmp_eq_u32 s{sQt}, 0"); o(f"s_cbranch_scc0 {lab}_q1")
    for k in range(4):
        o(f"v_cmp_gt_i32 vcc, {k}, v{t0}")
        o(f"v_cndmask_b32 v{Sx0+k}, v{Sx0+k}, v{t1}, vcc")
        o(f"v_mov_b32 v{Sx1+k}, v{t1}")
    o(f"s_branch {lab}_qd")
    A.label(f"{lab}_q1")
    for k in range(4):
        o(f"v_cmp_gt_i32 vcc, {k}, v{t0}")
        o(f"v_cndmask_b32 v{Sx1+k}, v{Sx1+k}, v{t1}, vcc")
    A.label(f"{lab}_qd")
    Sall = list(range(vS, vS + 12))
    m, t = vT, vT + 1
    o(f"v_max3_f32 v{m}, v{Sall[0]}, v{Sall[1]}, v{Sall[2]}")
    for k in range(3, 11, 2): o(f"v_max3_f32 v{m}, v{m}, v{Sall[k]}, v{Sall[k+1]}")
    o(f"v_max_f32 v{m}, v{m}, v{Sall[11]}")
    for sw in ("16", "32"):
        o(f"v_mov_b32 v{t}, v{m}"); o(f"v_permlane{sw}_swap_b32 v{m}, v{t}"); o(f"v_max_f32 v{m}, v{m}, v{t}")
    o(f"v_mul_f32 v{m}, s{sSc}, v{m}")
    for x in Sall: o(f"v_fma_f32 v{x}, v{x}, s{sSc}, -v{m}")
    for x in Sall: o(f"v_exp_f32 v{x}, v{x}")
    vPx, vPmA, vPmB = vP, vP + 4, vP + 6
    for k in range(4): o(f"v_cvt_pk_bf16_f32 v{vPx+k}, v{vS+2*k}, v{vS+2*k+1}")
    o(f"v_cvt_pk_bf16_f32 v{vPmA}, v{Sm}, v{Sm+1}"); o(f"v_cvt_pk_bf16_f32 v{vPmA+1}, v{Sm+2}, v{Sm+3}")
    o(f"v_mov_b32 v{vT+2}, v{vPmA}"); o(f"v_mov_b32 v{vT+3}, v{vPmA+1}"); o(f"v_mov_b32 v{vPmB}, 0"); o(f"v_mov_b32 v{vPmB+1}, 0")
    o(f"v_permlane32_swap_b32 v{vPmB}, v{vT+2}"); o(f"v_permlane32_swap_b32 v{vPmB+1}, v{vT+3}")
    o("s_waitcnt vmcnt(0)")
    o(f"v_mfma_f32_16x16x32_bf16 {v(vLs,4)}, {v(vOn,4)}, {v(vPx,4)}, 0")
    for tt in range(8): o(f"v_mfma_f32_16x16x32_bf16 {v(vO+4*tt,4)}, {v(vV+4*tt,4)}, {v(vPx,4)}, 0")
    o(f"v_mfma_f32_16x16x16_bf16 {v(vLs,4)}, {v(vOn,2)}, {v(vPmA,2)}, {v(vLs,4)}")
    for tt in range(8):
        c, tv = tt >> 1, tt & 1
        pm = vPmB if (c & 1) else vPmA
        o(f"v_mfma_f32_16x16x16_bf16 {v(vO+4*tt,4)}, {v(vVm+4*(c>>1)+2*tv,2)}, {v(pm,2)}, {v(vO+4*tt,4)}")
    o(f"v_rcp_f32 v{m}, v{vLs}")
    n_, rho, g_ = vT + 4, vT + 5, vT + 6
    o(f"v_and_b32 v{n_}, 15, v{vL}"); o(f"v_lshrrev_b32 v{rho}, 4, v{vL}")
    o(f"v_and_b32 v{g_}, 1, v{rho}"); o(f"v_lshrrev_b32 v{rho}, 1, v{rho}"); o(f"v_lshl_or_b32 v{rho}, v{g_}, 1, v{rho}")
    gfun(o, g_, n_, vT + 7)
    o(f"v_xor_b32 v{rho}, v{rho}, v{g_}"); o(f"v_lshl_add_u32 v{rho}, v{n_}, 2, v{rho}"); o(f"v_lshlrev_b32 v{rho}, 4, v{rho}")
    o(f"s_lshl_b32 s{sT0}, s{sHead}, 19")
    o(f"s_lshl_b32 s{sT1}, s{sSeg}, 1"); o(f"s_add_u32 s{sT1}, s{sT1}, s{sQt}"); o(f"s_lshl_b32 s{sT1}, s{sT1}, 10")
    o(f"s_add_u32 s{sT0}, s{sT0}, s{sT1}")
    base_(sA, WS_O, sT0)
    for u in range(4):
        P = vQ + 4 * u
        for h in range(2):
            tt = 2 * u + h
            for k in range(4): o(f"v_mul_f32 v{vO+4*tt+k}, v{vO+4*tt+k}, v{m}")
            o(f"v_cvt_pk_bf16_f32 v{P+2*h}, v{vO+4*tt}, v{vO+4*tt+1}"); o(f"v_cvt_pk_bf16_f32 v{P+2*h+1}, v{vO+4*tt+2}, v{vO+4*tt+3}")
        o(f"v_permlane16_swap_b32 v{P}, v{P+2}"); o(f"v_permlane16_swap_b32 v{P+1}, v{P+3}")
        o(f"global_store_dwordx4 v{rho}, {v(P,4)}, {s(sA,2)}" + (" sc1" if sc1 else ""))
        if u < 3:
            o(f"s_add_u32 s{sA}, s{sA}, 131072"); o(f"s_addc_u32 s{sA+1}, s{sA+1}, 0")
    return r

PROF = False
def gen_attn(name="attn_kernel"):
    A = Asm(); o = A
    o("s_cmp_ge_u32 s2, 1024"); o(f"s_cbranch_scc1 L_{name}_end")
    o(f"s_load_dwordx2 s[4:5], s[0:1], {KA_WS}")
    o("v_lshrrev_b32 v1, 6, v0"); o("v_and_b32 v0, 63, v0"); o("v_readfirstlane_b32 s3, v1")
    o("s_lshl_b32 s6, s2, 2"); o("s_add_u32 s6, s6, s3")
    o("s_lshr_b32 s7, s6, 6"); o("s_lshr_b32 s8, s6, 1"); o("s_and_b32 s8, s8, 31"); o("s_and_b32 s9, s6, 1")
    o("s_waitcnt lgkmcnt(0)")
    if PROF: o("s_memrealtime s[60:61]")
    nv = attn_body(A, 4, 7, 8, 9, 0, f"L_{name}")
    o("s_waitcnt vmcnt(0)")
    if PROF:
        o("s_memrealtime s[62:63]"); o("s_waitcnt lgkmcnt(0)")
        o("s_lshl_b32 s25, s2, 5"); o("s_lshl_b32 s26, s3, 3"); o("s_add_u32 s25, s25, s26"); o(f"s_add_u32 s25, s25, {WS_PROF + 6*MiB}")
        o("v_mov_b32 v2, s60"); o("v_mov_b32 v3, s62"); o("v_mov_b32 v4, s25"); o("s_mov_b64 exec, 1"); o("global_store_dwordx2 v4, v[2:3], s[4:5]"); o("s_waitcnt vmcnt(0)")
    A.label(f"L_{name}_end"); o("s_endpgm")
    return kernel_head(name) + A.finish() + kernel_desc(name, nv)

def gen_attn2(name="attn_kernel"):
    A = Asm(); o = A
    o("s_cmp_ge_u32 s2, 512"); o(f"s_cbranch_scc1 L_{name}_end")
    o(f"s_load_dwordx2 s[4:5], s[0:1], {KA_WS}")
    o("v_lshrrev_b32 v1, 6, v0"); o("v_and_b32 v0, 63, v0"); o("v_readfirstlane_b32 s3, v1")
    o("s_lshl_b32 s6, s2, 2"); o("s_add_u32 s6, s6, s3")
    sSeg, sHead, sWS = 7, 8, 4
    o(f"s_lshr_b32 s{sSeg}, s6, 5"); o(f"s_and_b32 s{sHead}, s6, 31")
    o("s_waitcnt lgkmcnt(0)")
    if PROF: o("s_memrealtime s[60:61]")
    vL = 0
    r = 8
    vQ = r; r += 32
    vK = r; r += 32
    vV = r; r += 32
    vKm = r; r += 8
    vVm = r; r += 8
    vS = r; r += 12
    vD = r; r += 4
    vP = r; r += 8
    vLs = r; r += 4
    vOn = r; r += 4
    vO = r; r += 32
    vT = r; r += 12
    sA, sB, sC, sD = 40, 42, 44, 46
    sT0, sT1, sSc = 48, 49, 50
    l16 = vT + 10; t0, t1 = vT + 8, vT + 9
    o(f"v_lshlrev_b32 v{l16}, 4, v{vL}")
    o(f"s_lshl_b32 s{sT1}, s6, 13"); o(f"s_add_u32 s{sT1}, s{sT1}, 4096")
    def base_(dst, off, extra):
        o(f"s_add_u32 s{dst}, s{sWS}, s{extra}"); o(f"s_addc_u32 s{dst+1}, s{sWS+1}, 0")
        o(f"s_add_u32 s{dst}, s{dst}, {off}"); o(f"s_addc_u32 s{dst+1}, s{dst+1}, 0")
    base_(sA, WS_K, sT1); base_(sB, WS_VT, sT1); base_(sC, WS_Q, sT1)
    o(f"s_lshl_b32 s{sT1}, s6, 11"); base_(sD, WS_KM, sT1)
    for t in range(8): o(f"global_load_dwordx4 {v(vQ+4*t,4)}, v{l16}, {s(sC,2)} offset:{t*1024-4096}")
    for t in range(8): o(f"global_load_dwordx4 {v(vK+4*t,4)}, v{l16}, {s(sA,2)} offset:{t*1024-4096}")
    for c in range(2): o(f"global_load_dwordx4 {v(vKm+4*c,4)}, v{l16}, {s(sD,2)} offset:{c*1024}")
    o(f"s_add_u32 s{sD}, s{sD}, {WS_VM - WS_KM}"); o(f"s_addc_u32 s{sD+1}, s{sD+1}, 0")
    for c in range(2): o(f"global_load_dwordx4 {v(vVm+4*c,4)}, v{l16}, {s(sD,2)} offset:{c*1024}")
    for t in range(8): o(f"global_load_dwordx4 {v(vV+4*t,4)}, v{l16}, {s(sB,2)} offset:{t*1024-4096}")
    for k in range(4): o(f"v_mov_b32 v{vOn+k}, 0x3f803f80")
    o(f"s_mov_b32 s{sSc}, {fbits(128 ** -0.5 * math.log2(math.e))}")
    o(f"v_and_b32 v{t0}, 15, v{vL}"); o(f"v_lshrrev_b32 v{t1}, 4, v{vL}"); o(f"v_lshlrev_b32 v{t1}, 2, v{t1}"); o(f"v_sub_u32 v{t0}, v{t0}, v{t1}")
    o(f"v_mov_b32 v{t1}, 0xff800000")
    n_, rho, g_ = vT + 4, vT + 11, vT + 6
    o(f"v_and_b32 v{n_}, 15, v{vL}"); o(f"v_lshrrev_b32 v{rho}, 4, v{vL}")
    o(f"v_and_b32 v{g_}, 1, v{rho}"); o(f"v_lshrrev_b32 v{rho}, 1, v{rho}"); o(f"v_lshl_or_b32 v{rho}, v{g_}, 1, v{rho}")
    gfun(o, g_, n_, vT + 7)
    o(f"v_xor_b32 v{rho}, v{rho}, v{g_}"); o(f"v_lshl_add_u32 v{rho}, v{n_}, 2, v{rho}"); o(f"v_lshlrev_b32 v{rho}, 4, v{rho}")
    o("s_waitcnt vmcnt(10)")
    Sx0, Sx1, Sm = vS, vS + 4, vS + 8
    for qt in range(2):
        Q = vQ + 16 * qt
        for u in range(4):
            c = "0" if u == 0 else None
            o(f"v_mfma_f32_16x16x32_bf16 {v(Sx0,4)}, {v(vK+4*u,4)}, {v(Q+4*u,4)}, {c or v(Sx0,4)}")
            if qt == 1: o(f"v_mfma_f32_16x16x32_bf16 {v(Sx1,4)}, {v(vK+16+4*u,4)}, {v(Q+4*u,4)}, {c or v(Sx1,4)}")
            acc = Sm if u % 2 == 0 else vD
            cc = "0" if u < 2 else v(acc, 4)
            o(f"v_mfma_f32_16x16x32_bf16 {v(acc,4)}, {v(vKm+4*(u>>1),4)}, {v(Q+4*u,4)}, {cc}")
        for k in range(4): o(f"v_mov_b32 v{vT+k}, v{vD+k}")
        for k in range(4): o(f"v_permlane32_swap_b32 v{vD+k}, v{vT+k}")
        for k in range(4): o(f"v_add_f32 v{Sm+k}, v{Sm+k}, v{vT+k}")
        o(f"v_cmp_lt_u32 vcc, 31, v{vL}")
        for k in range(4): o(f"v_cndmask_b32 v{Sm+k}, v{Sm+k}, v{t1}, vcc")
        diag = Sx0 if qt == 0 else Sx1
        for k in range(4):
            o(f"v_cmp_gt_i32 vcc, {k}, v{t0}"); o(f"v_cndmask_b32 v{diag+k}, v{diag+k}, v{t1}, vcc")
        Sall = list(range(Sx0, Sx0 + 4)) + (list(range(Sx1, Sx1 + 4)) if qt == 1 else []) + list(range(Sm, Sm + 4))
        m, t = vT, vT + 1
        o(f"v_max3_f32 v{m}, v{Sall[0]}, v{Sall[1]}, v{Sall[2]}")
        k = 3
        while k + 1 < len(Sall): o(f"v_max3_f32 v{m}, v{m}, v{Sall[k]}, v{Sall[k+1]}"); k += 2
        if k < len(Sall): o(f"v_max_f32 v{m}, v{m}, v{Sall[k]}")
        for sw in ("16", "32"):
            o(f"v_mov_b32 v{t}, v{m}"); o(f"v_permlane{sw}_swap_b32 v{m}, v{t}"); o(f"v_max_f32 v{m}, v{m}, v{t}")
        o(f"v_mul_f32 v{m}, s{sSc}, v{m}")
        for x in Sall: o(f"v_fma_f32 v{x}, v{x}, s{sSc}, -v{m}")
        for x in Sall: o(f"v_exp_f32 v{x}, v{x}")
        vPx, vPmA, vPmB = vP, vP + 4, vP + 6
        o(f"v_cvt_pk_bf16_f32 v{vPx}, v{Sx0}, v{Sx0+1}"); o(f"v_cvt_pk_bf16_f32 v{vPx+1}, v{Sx0+2}, v{Sx0+3}")
        if qt == 1:
            o(f"v_cvt_pk_bf16_f32 v{vPx+2}, v{Sx1}, v{Sx1+1}"); o(f"v_cvt_pk_bf16_f32 v{vPx+3}, v{Sx1+2}, v{Sx1+3}")
        else:
            o(f"v_mov_b32 v{vPx+2}, 0"); o(f"v_mov_b32 v{vPx+3}, 0")
        o(f"v_cvt_pk_bf16_f32 v{vPmA}, v{Sm}, v{Sm+1}"); o(f"v_cvt_pk_bf16_f32 v{vPmA+1}, v{Sm+2}, v{Sm+3}")
        o(f"v_mov_b32 v{vT+2}, v{vPmA}"); o(f"v_mov_b32 v{vT+3}, v{vPmA+1}"); o(f"v_mov_b32 v{vPmB}, 0"); o(f"v_mov_b32 v{vPmB+1}, 0")
        o(f"v_permlane32_swap_b32 v{vPmB}, v{vT+2}"); o(f"v_permlane32_swap_b32 v{vPmB+1}, v{vT+3}")
        if qt == 0: o("s_waitcnt vmcnt(0)")
        o(f"v_mfma_f32_16x16x32_bf16 {v(vLs,4)}, {v(vOn,4)}, {v(vPx,4)}, 0")
        for tt in range(8): o(f"v_mfma_f32_16x16x32_bf16 {v(vO+4*tt,4)}, {v(vV+4*tt,4)}, {v(vPx,4)}, 0")
        o(f"v_mfma_f32_16x16x16_bf16 {v(vLs,4)}, {v(vOn,2)}, {v(vPmA,2)}, {v(vLs,4)}")
        for tt in range(8):
            c, tv = tt >> 1, tt & 1
            pm = vPmB if (c & 1) else vPmA
            o(f"v_mfma_f32_16x16x16_bf16 {v(vO+4*tt,4)}, {v(vVm+4*(c>>1)+2*tv,2)}, {v(pm,2)}, {v(vO+4*tt,4)}")
        o(f"v_rcp_f32 v{m}, v{vLs}")
        o(f"s_lshl_b32 s{sT0}, s{sHead}, 19")
        o(f"s_lshl_b32 s{sT1}, s{sSeg}, 1"); o(f"s_add_u32 s{sT1}, s{sT1}, {qt}"); o(f"s_lshl_b32 s{sT1}, s{sT1}, 10")
        o(f"s_add_u32 s{sT0}, s{sT0}, s{sT1}")
        base_(sA, WS_O, sT0)
        for u in range(4):
            P = Q + 4 * u
            for h in range(2):
                tt = 2 * u + h
                for k in range(4): o(f"v_mul_f32 v{vO+4*tt+k}, v{vO+4*tt+k}, v{m}")
                o(f"v_cvt_pk_bf16_f32 v{P+2*h}, v{vO+4*tt}, v{vO+4*tt+1}"); o(f"v_cvt_pk_bf16_f32 v{P+2*h+1}, v{vO+4*tt+2}, v{vO+4*tt+3}")
            o(f"v_permlane16_swap_b32 v{P}, v{P+2}"); o(f"v_permlane16_swap_b32 v{P+1}, v{P+3}")
            o(f"global_store_dwordx4 v{rho}, {v(P,4)}, {s(sA,2)}")
            if u < 3:
                o(f"s_add_u32 s{sA}, s{sA}, 131072"); o(f"s_addc_u32 s{sA+1}, s{sA+1}, 0")
    o("s_waitcnt vmcnt(0)")
    if PROF:
        o("s_memrealtime s[62:63]"); o("s_waitcnt lgkmcnt(0)")
        o("s_lshl_b32 s25, s2, 5"); o("s_lshl_b32 s26, s3, 3"); o("s_add_u32 s25, s25, s26"); o(f"s_add_u32 s25, s25, {WS_PROF + 6*MiB}")
        o("v_mov_b32 v2, s60"); o("v_mov_b32 v3, s62"); o("v_mov_b32 v4, s25"); o("s_mov_b64 exec, 1"); o("global_store_dwordx2 v4, v[2:3], s[4:5]"); o("s_waitcnt vmcnt(0)")
    A.label(f"L_{name}_end"); o("s_endpgm")
    return kernel_head(name) + A.finish() + kernel_desc(name, r)

def attn_phase(A, sc1=True, unit_sreg=None, single=False, lab=""):
    o = A
    sWS = 6
    vL = 0
    r = 8
    vQ = r; r += 32
    vK = r; r += 32
    vV = r; r += 32
    vKm = r; r += 8
    vVm = r; r += 8
    vS = r; r += 12
    vD = r; r += 4
    vP = r; r += 8
    vLs = r; r += 4
    vOn = r; r += 4
    vO = r; r += 32
    vT = r; r += 12
    aQ, aK, aV, aKm, aVm = 0, 32, 64, 96, 104
    sU, sSeg, sHead = 8, 9, 10
    sA, sB, sC, sD = 40, 42, 44, 46
    sT0, sT1, sSc = 48, 49, 50
    l16 = vT + 10; t0, t1 = vT + 8, vT + 9
    if unit_sreg is None:
        o("s_lshl_b32 s8, s2, 2"); o("s_add_u32 s8, s8, s3"); o("s_lshl_b32 s8, s8, 1")
    else:
        o(f"s_mov_b32 s8, s{unit_sreg}")
    o(f"v_lshlrev_b32 v{l16}, 4, v{vL}")
    def base_(dst, off, extra):
        o(f"s_add_u32 s{dst}, s{sWS}, s{extra}"); o(f"s_addc_u32 s{dst+1}, s{sWS+1}, 0")
        o(f"s_add_u32 s{dst}, s{dst}, {off}"); o(f"s_addc_u32 s{dst+1}, s{dst+1}, 0")
    def loads(R, du):
        Q, K, V, Km, Vm = R
        o(f"s_add_u32 s{sT0}, s{sU}, {du}")
        o(f"s_lshl_b32 s{sT1}, s{sT0}, 13"); o(f"s_add_u32 s{sT1}, s{sT1}, 4096")
        base_(sA, WS_K, sT1); base_(sB, WS_VT, sT1); base_(sC, WS_Q, sT1)
        o(f"s_lshl_b32 s{sT1}, s{sT0}, 11"); base_(sD, WS_KM, sT1)
        for t in range(8): o(f"global_load_dwordx4 {Q(4*t,4)}, v{l16}, {s(sC,2)} offset:{t*1024-4096}")
        for t in range(8): o(f"global_load_dwordx4 {K(4*t,4)}, v{l16}, {s(sA,2)} offset:{t*1024-4096}")
        for c in range(2): o(f"global_load_dwordx4 {Km(4*c,4)}, v{l16}, {s(sD,2)} offset:{c*1024}")
        o(f"s_add_u32 s{sD}, s{sD}, {WS_VM - WS_KM}"); o(f"s_addc_u32 s{sD+1}, s{sD+1}, 0")
        for c in range(2): o(f"global_load_dwordx4 {Vm(4*c,4)}, v{l16}, {s(sD,2)} offset:{c*1024}")
        for t in range(8): o(f"global_load_dwordx4 {V(4*t,4)}, v{l16}, {s(sB,2)} offset:{t*1024-4096}")
    mk = lambda f, b: (lambda off, n: f(b + off, n))
    RA = (mk(v, vQ), mk(v, vK), mk(v, vV), mk(v, vKm), mk(v, vVm))
    RB = (mk(a, aQ), mk(a, aK), mk(a, aV), mk(a, aKm), mk(a, aVm))
    loads(RA, 0)
    if not single: loads(RB, 1)
    for k in range(4): o(f"v_mov_b32 v{vOn+k}, 0x3f803f80")
    o(f"s_mov_b32 s{sSc}, {fbits(128 ** -0.5 * math.log2(math.e))}")
    o(f"v_and_b32 v{t0}, 15, v{vL}"); o(f"v_lshrrev_b32 v{t1}, 4, v{vL}"); o(f"v_lshlrev_b32 v{t1}, 2, v{t1}"); o(f"v_sub_u32 v{t0}, v{t0}, v{t1}")
    o(f"v_mov_b32 v{t1}, 0xff800000")
    n_, rho, g_ = vT + 4, vT + 11, vT + 6
    o(f"v_and_b32 v{n_}, 15, v{vL}"); o(f"v_lshrrev_b32 v{rho}, 4, v{vL}")
    o(f"v_and_b32 v{g_}, 1, v{rho}"); o(f"v_lshrrev_b32 v{rho}, 1, v{rho}"); o(f"v_lshl_or_b32 v{rho}, v{g_}, 1, v{rho}")
    gfun(o, g_, n_, vT + 7)
    o(f"v_xor_b32 v{rho}, v{rho}, v{g_}"); o(f"v_lshl_add_u32 v{rho}, v{n_}, 2, v{rho}"); o(f"v_lshlrev_b32 v{rho}, 4, v{rho}")
    Sx0, Sx1, Sm = vS, vS + 4, vS + 8
    def unit(R, du, w1, w2):
        Q, K, V, Km, Vm = R
        o(f"s_add_u32 s{sT0}, s{sU}, {du}"); o(f"s_lshr_b32 s{sSeg}, s{sT0}, 5"); o(f"s_and_b32 s{sHead}, s{sT0}, 31")
        o(f"s_waitcnt vmcnt({w1})")
        for qt in range(2):
            for u in range(4):
                c = "0" if u == 0 else None
                o(f"v_mfma_f32_16x16x32_bf16 {v(Sx0,4)}, {K(4*u,4)}, {Q(16*qt+4*u,4)}, {c or v(Sx0,4)}")
                if qt == 1: o(f"v_mfma_f32_16x16x32_bf16 {v(Sx1,4)}, {K(16+4*u,4)}, {Q(16*qt+4*u,4)}, {c or v(Sx1,4)}")
                acc = Sm if u % 2 == 0 else vD
                cc = "0" if u < 2 else v(acc, 4)
                o(f"v_mfma_f32_16x16x32_bf16 {v(acc,4)}, {Km(4*(u>>1),4)}, {Q(16*qt+4*u,4)}, {cc}")
            for k in range(4): o(f"v_mov_b32 v{vT+k}, v{vD+k}")
            for k in range(4): o(f"v_permlane32_swap_b32 v{vD+k}, v{vT+k}")
            for k in range(4): o(f"v_add_f32 v{Sm+k}, v{Sm+k}, v{vT+k}")
            o(f"v_cmp_lt_u32 vcc, 31, v{vL}")
            for k in range(4): o(f"v_cndmask_b32 v{Sm+k}, v{Sm+k}, v{t1}, vcc")
            diag = Sx0 if qt == 0 else Sx1
            for k in range(4):
                o(f"v_cmp_gt_i32 vcc, {k}, v{t0}"); o(f"v_cndmask_b32 v{diag+k}, v{diag+k}, v{t1}, vcc")
            Sall = list(range(Sx0, Sx0 + 4)) + (list(range(Sx1, Sx1 + 4)) if qt == 1 else []) + list(range(Sm, Sm + 4))
            m, t = vT, vT + 1
            o(f"v_max3_f32 v{m}, v{Sall[0]}, v{Sall[1]}, v{Sall[2]}")
            k = 3
            while k + 1 < len(Sall): o(f"v_max3_f32 v{m}, v{m}, v{Sall[k]}, v{Sall[k+1]}"); k += 2
            if k < len(Sall): o(f"v_max_f32 v{m}, v{m}, v{Sall[k]}")
            for sw in ("16", "32"):
                o(f"v_mov_b32 v{t}, v{m}"); o(f"v_permlane{sw}_swap_b32 v{m}, v{t}"); o(f"v_max_f32 v{m}, v{m}, v{t}")
            o(f"v_mul_f32 v{m}, s{sSc}, v{m}")
            for x in Sall: o(f"v_fma_f32 v{x}, v{x}, s{sSc}, -v{m}")
            for x in Sall: o(f"v_exp_f32 v{x}, v{x}")
            vPx, vPmA, vPmB = vP, vP + 4, vP + 6
            o(f"v_cvt_pk_bf16_f32 v{vPx}, v{Sx0}, v{Sx0+1}"); o(f"v_cvt_pk_bf16_f32 v{vPx+1}, v{Sx0+2}, v{Sx0+3}")
            if qt == 1:
                o(f"v_cvt_pk_bf16_f32 v{vPx+2}, v{Sx1}, v{Sx1+1}"); o(f"v_cvt_pk_bf16_f32 v{vPx+3}, v{Sx1+2}, v{Sx1+3}")
            else:
                o(f"v_mov_b32 v{vPx+2}, 0"); o(f"v_mov_b32 v{vPx+3}, 0")
            o(f"v_cvt_pk_bf16_f32 v{vPmA}, v{Sm}, v{Sm+1}"); o(f"v_cvt_pk_bf16_f32 v{vPmA+1}, v{Sm+2}, v{Sm+3}")
            o(f"v_mov_b32 v{vT+2}, v{vPmA}"); o(f"v_mov_b32 v{vT+3}, v{vPmA+1}"); o(f"v_mov_b32 v{vPmB}, 0"); o(f"v_mov_b32 v{vPmB+1}, 0")
            o(f"v_permlane32_swap_b32 v{vPmB}, v{vT+2}"); o(f"v_permlane32_swap_b32 v{vPmB+1}, v{vT+3}")
            if qt == 0: o(f"s_waitcnt vmcnt({w2})")
            o(f"v_mfma_f32_16x16x32_bf16 {v(vLs,4)}, {v(vOn,4)}, {v(vPx,4)}, 0")
            for tt in range(8): o(f"v_mfma_f32_16x16x32_bf16 {v(vO+4*tt,4)}, {V(4*tt,4)}, {v(vPx,4)}, 0")
            o(f"v_mfma_f32_16x16x16_bf16 {v(vLs,4)}, {v(vOn,2)}, {v(vPmA,2)}, {v(vLs,4)}")
            for tt in range(8):
                c, tv = tt >> 1, tt & 1
                pm = vPmB if (c & 1) else vPmA
                o(f"v_mfma_f32_16x16x16_bf16 {v(vO+4*tt,4)}, {Vm(4*(c>>1)+2*tv,2)}, {v(pm,2)}, {v(vO+4*tt,4)}")
            o(f"v_rcp_f32 v{m}, v{vLs}")
            o(f"s_lshl_b32 s{sT0}, s{sHead}, 19")
            o(f"s_lshl_b32 s{sT1}, s{sSeg}, 1"); o(f"s_add_u32 s{sT1}, s{sT1}, {qt}"); o(f"s_lshl_b32 s{sT1}, s{sT1}, 10")
            o(f"s_add_u32 s{sT0}, s{sT0}, s{sT1}")
            base_(sA, WS_O, sT0)
            for u in range(4):
                P = vQ + 16 * qt + 4 * u
                for h in range(2):
                    tt = 2 * u + h
                    for k in range(4): o(f"v_mul_f32 v{vO+4*tt+k}, v{vO+4*tt+k}, v{m}")
                    o(f"v_cvt_pk_bf16_f32 v{P+2*h}, v{vO+4*tt}, v{vO+4*tt+1}"); o(f"v_cvt_pk_bf16_f32 v{P+2*h+1}, v{vO+4*tt+2}, v{vO+4*tt+3}")
                o(f"v_permlane16_swap_b32 v{P}, v{P+2}"); o(f"v_permlane16_swap_b32 v{P+1}, v{P+3}")
                o(f"global_store_dwordx4 v{rho}, {v(P,4)}, {s(sA,2)}" + (" sc1" if sc1 else ""))
                if u < 3:
                    o(f"s_add_u32 s{sA}, s{sA}, 131072"); o(f"s_addc_u32 s{sA+1}, s{sA+1}, 0")
    if single:
        unit(RA, 0, 10, 0)
    else:
        unit(RA, 0, 38, 28)
        unit(RB, 1, 18, 4)
    o("s_waitcnt vmcnt(0)")
    return r
```

```python
from asmlib import *
from layout import *
from gemm import Gemm, gen_loop2, gen_loop3
from k_qkv import srd
from k_small import fbits, unpack8, gfun, LOG2E
import math

SENT = False
FUSE = False
CNT_H2 = 131072 + 32768
CNT_AT = 131072 + 36864
FUSE_AT = False
ONE = False
CNT_DONE = 131072 + 40960
CNT_P58 = 131072 + 41984
CNT_BULK = 131072 + 42112
CNT_U = 131072 + 34816
WS_STATP = 144 * MiB + 0
WS_XCH = 128 * MiB
WS_STAT = WS_CNT + 131072 + 16384
CNT_XO = 131072
CNT_ST = 131072 + 8192
CNT_XG = 131072 + 4096

sX, sY = 8, 12
sOffX, sOffY, sM0, sK = 20, 21, [22, 23], 24
sSt = [32, 33, 34]

def poll_ge(A, sBase, vAddr, target, tag, vT, sLimReg, sleep=2):
    o = A
    A.label(f"L_{tag}")
    o(f"global_load_dword v{vT}, v{vAddr}, {s(sBase,2)} sc1")
    o("s_waitcnt vmcnt(0)")
    o(f"v_readfirstlane_b32 s44, v{vT}")
    o(f"s_cmp_ge_u32 s44, {target}"); o(f"s_cbranch_scc1 L_{tag}_ok")
    o(f"s_sleep {sleep}")
    o(f"s_sub_u32 s{sLimReg}, s{sLimReg}, 1"); o(f"s_cbranch_scc0 L_{tag}")
    A.label(f"L_{tag}_ok")

def exchange(A, G, keep_tiles, send_tiles, sTile, sKh, xch_off, cnt_off, name):
    o = A
    E = G.vF
    o(f"s_lshl_b32 s25, s{sTile}, 1"); o(f"s_add_u32 s26, s25, s{sKh}"); o("s_lshl_b32 s26, s26, 2"); o("s_add_u32 s26, s26, s3"); o("s_lshl_b32 s26, s26, 13")
    o(f"s_xor_b32 s27, s{sKh}, 1"); o("s_add_u32 s27, s25, s27"); o("s_lshl_b32 s27, s27, 2"); o("s_add_u32 s27, s27, s3"); o("s_lshl_b32 s27, s27, 13")
    o(f"s_add_u32 s26, s26, {xch_off}"); o(f"s_add_u32 s27, s27, {xch_off}")
    o("s_add_u32 s40, s6, s26"); o("s_addc_u32 s41, s7, 0"); o("s_add_u32 s42, s6, s27"); o("s_addc_u32 s43, s7, 0")
    o("s_add_u32 s40, s40, 4096"); o("s_addc_u32 s41, s41, 0"); o("s_add_u32 s42, s42, 4096"); o("s_addc_u32 s43, s43, 0")
    o("v_lshlrev_b32 v1, 4, v0")
    T = E + 32
    for kh in range(2):
        if kh == 0: o(f"s_cmp_lg_u32 s{sKh}, 0"); o(f"s_cbranch_scc1 L_{name}_k1")
        else: A.label(f"L_{name}_k1")
        for t, (jx, jy) in enumerate(send_tiles(kh)):
            R = T + 4 * (t % 4)
            for r in range(4): o(f"v_accvgpr_read_b32 v{R+r}, a{G.accr(jx, jy)+r}")
            o(f"global_store_dwordx4 v1, {v(R,4)}, s[40:41] offset:{t*1024-4096} sc1")
        for t, (jx, jy) in enumerate(keep_tiles(kh)):
            for r in range(4): o(f"v_accvgpr_read_b32 v{E+4*t+r}, a{G.accr(jx, jy)+r}")
        if kh == 0: o(f"s_branch L_{name}_kd")
    A.label(f"L_{name}_kd")
    if SENT:
        o("s_mov_b32 s50, 0x200000")
        A.label(f"L_{name}_sp")
        for k_ in range(8): o(f"global_load_dwordx4 {v(T+4*k_,4)}, v1, s[42:43] offset:{k_*1024-4096} sc1")
        o("s_waitcnt vmcnt(0)")
        regs = list(range(T, T + 32))
        o(f"v_max3_u32 v2, v{regs[0]}, v{regs[1]}, v{regs[2]}")
        k_ = 3
        while k_ + 1 < len(regs):
            o(f"v_max3_u32 v2, v2, v{regs[k_]}, v{regs[k_+1]}"); k_ += 2
        if k_ < len(regs): o(f"v_max_u32 v2, v2, v{regs[k_]}")
        o("v_cmp_eq_u32 vcc, -1, v2"); o(f"s_cbranch_vccz L_{name}_sok")
        o("s_sub_u32 s50, s50, 1"); o(f"s_cbranch_scc0 L_{name}_sp")
        A.label(f"L_{name}_sok")
        for k_ in range(32): o(f"v_add_f32 v{E+k_}, v{E+k_}, v{T+k_}")
        return
    o("s_waitcnt vmcnt(0)")
    o(f"s_add_u32 s48, s6, {WS_CNT}"); o("s_addc_u32 s49, s7, 0")
    o(f"s_add_u32 s26, s25, s{sKh}"); o("s_lshl_b32 s26, s26, 2"); o("s_add_u32 s26, s26, s3"); o("s_lshl_b32 s26, s26, 2"); o(f"s_add_u32 s26, s26, {cnt_off}")
    o("v_mov_b32 v2, s26"); o("v_mov_b32 v3, 1")
    o("s_mov_b64 exec, 1"); o("global_atomic_add v2, v3, s[48:49]"); o("s_mov_b64 exec, -1")
    o(f"s_xor_b32 s27, s{sKh}, 1"); o("s_add_u32 s27, s25, s27"); o("s_lshl_b32 s27, s27, 2"); o("s_add_u32 s27, s27, s3"); o("s_lshl_b32 s27, s27, 2"); o(f"s_add_u32 s27, s27, {cnt_off}")
    o("v_mov_b32 v2, s27")
    o("s_mov_b32 s50, 0x200000")
    poll_ge(A, 48, 2, 1, f"{name}_p", 3, 50)
    for t in range(8): o(f"global_load_dwordx4 {v(T+4*t,4)}, v1, s[42:43] offset:{t*1024-4096} sc1")
    for t in range(8):
        o(f"s_waitcnt vmcnt({7-t})")
        for r in range(4): o(f"v_add_f32 v{E+4*t+r}, v{E+4*t+r}, v{T+4*t+r}")


PROF = False
def pst(o, k):
    if PROF: o(f's_memrealtime s[{64+2*k}:{65+2*k}]')
def pend(o, idx):
    if not PROF: return
    o('s_memrealtime s[76:77]'); o('s_waitcnt lgkmcnt(0)')
    o('s_lshl_b32 s25, s2, 7'); o('s_lshl_b32 s26, s3, 5'); o('s_add_u32 s25, s25, s26'); o(f's_add_u32 s25, s25, {WS_PROF + 7*MiB + idx*65536}')
    for k in range(6): o(f'v_mov_b32 v{2+k}, s{64+2*k}')
    o('v_mov_b32 v8, s76'); o('v_mov_b32 v9, 0'); o('v_mov_b32 v10, s25')
    o('s_mov_b64 exec, 1'); o('global_store_dwordx4 v10, v[2:5], s[6:7]'); o('global_store_dwordx4 v10, v[6:9], s[6:7] offset:16'); o('s_waitcnt vmcnt(0)')

def head(o, name, ptrs, first=True):
    if first: o(f"s_cmp_ge_u32 s2, 256"); o(f"s_cbranch_scc1 L_{name}_end")
    o(f"s_load_dwordx2 s[6:7], s[0:1], {KA_WS}")
    for sreg, ka in ptrs: o(f"s_load_dwordx2 {s(sreg,2)}, s[0:1], {ka}")
    if first: o("v_lshrrev_b32 v1, 6, v0"); o("v_and_b32 v0, 63, v0"); o("v_readfirstlane_b32 s3, v1")
    o("s_waitcnt lgkmcnt(0)")
    pst(o, 0)

LOPT = {}
def wg_wait(A, off_sreg, target, tag, sleep=5):
    o = A
    o(f"s_add_u32 s48, s6, {WS_CNT}"); o("s_addc_u32 s49, s7, 0")
    o("s_cmp_lg_u32 s3, 0"); o(f"s_cbranch_scc1 L_{tag}_b")
    o(f"v_mov_b32 v2, s{off_sreg}"); o("s_mov_b32 s50, 0x200000")
    poll_ge(A, 48, 2, target, tag, 3, 50, sleep=sleep)
    A.label(f"L_{tag}_b")
    o("s_barrier")

OPROF = False
def ostamp(o, k):
    if not OPROF: return
    o("s_memrealtime s[90:91]"); o("s_waitcnt lgkmcnt(0)")
    o("s_lshl_b32 s88, s2, 6"); o(f"s_add_u32 s88, s88, {WS_PROF + 7*MiB + 262144 + k*4}")
    o("v_mov_b32 v250, s88"); o("v_mov_b32 v251, s90"); o("s_mov_b64 exec, 1"); o("global_store_dword v250, v251, s[6:7]"); o("s_mov_b64 exec, -1")

def att_signal(o, n):
    o(f"s_add_u32 s48, s6, {WS_CNT}"); o("s_addc_u32 s49, s7, 0")
    o("s_lshr_b32 s25, s8, 7"); o("s_lshl_b32 s25, s25, 1"); o("s_bfe_u32 s26, s8, 0x10004"); o("s_add_u32 s25, s25, s26"); o("s_lshl_b32 s25, s25, 7"); o(f"s_add_u32 s25, s25, {CNT_AT}")
    o("v_mov_b32 v14, s25"); o(f"v_mov_b32 v15, {n}"); o("s_mov_b64 exec, 1"); o("global_atomic_add v14, v15, s[48:49]"); o("s_mov_b64 exec, -1")

def gen_opln(name="opln_kernel"):
    A = Asm(); o = A
    head(o, name, [(52, KA_WO), (54, KA_X)], first=not ONE)
    if FUSE_AT and not ONE:
        import k_attn
        k_attn.attn_phase(A)
        att_signal(o, 2)
    if ONE:
        import k_attn
        ostamp(o, 0)
        o(f"s_mov_b32 s58, {CNT_BULK}"); wg_wait(A, 58, 128, f"{name}_bw")
        o(f"s_add_u32 s48, s6, {WS_CNT + CNT_DONE}"); o("s_addc_u32 s49, s7, 0")
        o("s_cmp_lg_u32 s3, 0"); o(f"s_cbranch_scc1 L_{name}_dwb")
        o("v_lshlrev_b32 v2, 3, v0"); o("s_mov_b32 s50, 0x200000")
        A.label(f"L_{name}_dw")
        o("global_load_dwordx2 v[4:5], v2, s[48:49] sc1"); o("s_waitcnt vmcnt(0)")
        o("v_and_b32 v4, v4, v5"); o("v_cmp_eq_u32 vcc, 0, v4"); o(f"s_cbranch_vccz L_{name}_dwb")
        o("s_sleep 6"); o("s_sub_u32 s50, s50, 1"); o(f"s_cbranch_scc0 L_{name}_dw")
        A.label(f"L_{name}_dwb")
        o("s_barrier")
        ostamp(o, 1)
        o("s_cmp_lg_u32 s3, 0"); o(f"s_cbranch_scc1 L_{name}_nolast")
        o(f"s_add_u32 s59, s2, {ONE}")
        k_attn.attn_phase(A, unit_sreg=59, single=True)
        att_signal(o, 1)
        A.label(f"L_{name}_nolast")
    srd(o, sX, 52, 0, 8 * MiB); srd(o, sY, 6, WS_O, 16 * MiB)
    sDt, sTt, sKh, sTile = 4, 5, 56, 57
    o("s_and_b32 s25, s2, 7"); o("s_lshr_b32 s26, s2, 3"); o(f"s_and_b32 s{sKh}, s25, 1")
    o(f"s_lshr_b32 s{sDt}, s25, 2"); o(f"s_lshl_b32 s{sDt}, s{sDt}, 2"); o("s_and_b32 s27, s26, 3"); o(f"s_add_u32 s{sDt}, s{sDt}, s27")
    o(f"s_bfe_u32 s{sTt}, s25, 0x10001"); o(f"s_lshl_b32 s{sTt}, s{sTt}, 3"); o("s_lshr_b32 s27, s26, 2"); o(f"s_add_u32 s{sTt}, s{sTt}, s27")
    o(f"s_lshl_b32 s{sTile}, s{sTt}, 3"); o(f"s_add_u32 s{sTile}, s{sTile}, s{sDt}")
    o(f"s_lshl_b32 s{sOffX}, s{sDt}, 8"); o(f"s_lshl_b32 s25, s{sKh}, 22"); o(f"s_add_u32 s{sOffX}, s{sOffX}, s25")
    o(f"s_lshl_b32 s{sOffY}, s{sTt}, 13"); o(f"s_lshl_b32 s25, s{sKh}, 23"); o(f"s_add_u32 s{sOffY}, s{sOffY}, s25")
    if FUSE_AT:
        o(f"s_lshl_b32 s58, s{sTt}, 1"); o(f"s_add_u32 s58, s58, s{sKh}"); o("s_lshl_b32 s58, s58, 7"); o(f"s_add_u32 s58, s58, {CNT_AT}")
        ostamp(o, 2)
        wg_wait(A, 58, 64, f"{name}_aw")
        ostamp(o, 3)
        o(f"s_add_u32 s25, s{sKh}, 1"); o(f"s_lshl_b32 s{sY+2}, s25, 23")
    G = Gemm(A, 4, 4, False, "o")
    o(f"s_mul_i32 s{sM0[0]}, s3, {G.NIX*1024}"); o(f"s_mul_i32 s{sM0[1]}, s3, {G.NIY*1024}")
    G.setup(3, 0, 2048, 0, [1, 2, 3, 4, 5, 6], [25, 26, 27, 28])
    gen_loop3(G, sX, sY, sOffX, sOffY, sM0, sK, 32 * 2048, 128 * 1024, 64, f"L_{name}", K=LOPT.get("K", 2), R=8, opt=LOPT)
    o("s_barrier")
    pst(o, 1)
    E = G.vF
    keep = lambda kh: [(jx, 2 * kh + h) for h in range(2) for jx in range(4)]
    send = lambda kh: keep(kh ^ 1)
    o("v_and_b32 v1, 15, v0"); o("v_lshrrev_b32 v2, 4, v0"); o("v_and_b32 v3, 1, v2"); o("v_lshrrev_b32 v2, 1, v2")
    o("v_lshlrev_b32 v3, 4, v3"); o("v_lshl_add_u32 v3, v2, 3, v3")
    o(f"s_lshl_b32 s25, s{sDt}, 7"); o("s_and_b32 s26, s3, 1"); o("s_lshl_b32 s26, s26, 6"); o("s_add_u32 s25, s25, s26")
    o("v_add_u32 v4, s25, v3")
    o(f"s_lshl_b32 s58, s{sTt}, 7"); o("s_lshr_b32 s26, s3, 1"); o("s_lshl_b32 s26, s26, 6"); o("s_add_u32 s58, s58, s26"); o(f"s_lshl_b32 s26, s{sKh}, 5"); o("s_add_u32 s58, s58, s26")
    o("v_add_u32 v5, s58, v1")
    o("v_lshlrev_b32 v6, 11, v5"); o("v_lshl_add_u32 v6, v4, 1, v6")
    o("v_lshlrev_b32 v7, 2, v4")
    M = E + 64
    XR = E + 112
    for k, sec in enumerate((2, 3, 4)):
        o(f"s_add_u32 s44, s6, {WS_MOD + sec*4096}"); o("s_addc_u32 s45, s7, 0")
        for p in range(2):
            o(f"global_load_dwordx4 {v(M+16*k+8*p,4)}, v7, s[44:45] offset:{p*128}"); o(f"global_load_dwordx4 {v(M+16*k+8*p+4,4)}, v7, s[44:45] offset:{p*128+16}")
    for h in range(2):
        o(f"v_add_u32 v8, {h*16*2048}, v6")
        for p in range(2): o(f"global_load_dwordx4 {v(XR+8*h+4*p,4)}, v8, s[54:55] offset:{p*64}")
    o("v_mov_b32 v17, v1"); o("v_mov_b32 v18, v3"); o("s_mov_b32 s62, s25")
    exchange(A, G, keep, send, sTile, sKh, WS_XCH, CNT_XO, name + "x")
    pst(o, 2)
    for h in range(2):
        for p in range(2):
            a_, b_ = E + 4 * (h * 4 + 2 * p), E + 4 * (h * 4 + 2 * p + 1)
            for r in range(4): o(f"v_permlane16_swap_b32 v{a_+r}, v{b_+r}")
    o("v_mov_b32 v1, v17"); o("v_mov_b32 v3, v18"); o("s_mov_b32 s25, s62")
    o("s_waitcnt vmcnt(0)")
    U = E + 128
    o(f"s_add_u32 s44, s6, {WS_X1}"); o("s_addc_u32 s45, s7, 0")
    for h in range(2):
        o(f"v_add_u32 v8, {h*16*2048}, v6")
        for p in range(2):
            Y = E + 4 * (h * 4 + 2 * p)
            unpack8(o, U, XR + 8 * h + 4 * p)
            for e in range(8): o(f"v_fma_f32 v{Y+e}, v{Y+e}, v{M+8*p+e}, v{U+e}")
            P = XR + 8 * h + 4 * p
            for d in range(4): o(f"v_cvt_pk_bf16_f32 v{P+d}, v{Y+2*d}, v{Y+2*d+1}")
            o(f"global_store_dwordx4 v8, {v(P,4)}, s[44:45] offset:{p*64}" + (" sc1" if FUSE else ""))
            unpack8(o, Y, P)
    S1, S2, t_ = U, U + 2, U + 4
    for h in range(2):
        Y = E + 16 * h
        o(f"v_add_f32 v{S1+h}, v{Y}, v{Y+1}")
        for e in range(2, 16): o(f"v_add_f32 v{S1+h}, v{S1+h}, v{Y+e}")
        o(f"v_mul_f32 v{S2+h}, v{Y}, v{Y}")
        for e in range(1, 16): o(f"v_fmac_f32 v{S2+h}, v{Y+e}, v{Y+e}")
    for x in (S1, S1 + 1, S2, S2 + 1):
        for sw in ("16", "32"):
            o(f"v_mov_b32 v{t_}, v{x}"); o(f"v_permlane{sw}_swap_b32 v{x}, v{t_}"); o(f"v_add_f32 v{x}, v{x}, v{t_}")
    if SENT:
        o("s_lshr_b32 s59, s58, 5")
        o(f"s_lshl_b32 s26, s59, 12"); o(f"s_lshl_b32 s27, s{sDt}, 1"); o("s_and_b32 s28, s3, 1"); o("s_add_u32 s27, s27, s28"); o("s_lshl_b32 s27, s27, 8")
        o(f"s_add_u32 s46, s6, {WS_STATP}"); o("s_addc_u32 s47, s7, 0"); o("s_add_u32 s46, s46, s26"); o("s_addc_u32 s47, s47, 0")
        o("v_lshlrev_b32 v9, 3, v1"); o("v_add_u32 v14, s27, v9")
        for h in range(2):
            o(f"v_mov_b32 v{U+8+2*h}, v{S1+h}"); o(f"v_mov_b32 v{U+9+2*h}, v{S2+h}")
        o("s_mov_b64 exec, 0xffff")
        for h in range(2): o(f"global_store_dwordx2 v14, {v(U+8+2*h,2)}, s[46:47] offset:{h*128} sc1")
        o("s_mov_b64 exec, -1")
        pst(o, 3)
        o("v_lshrrev_b32 v15, 4, v0"); o("v_lshlrev_b32 v15, 10, v15"); o("v_add_u32 v15, v15, v9")
        PS = E + 144 - 0
        PS = E + 32
        o("s_mov_b32 s50, 0x200000")
        A.label(f"L_{name}_stp")
        for h in range(2):
            for k_ in range(4): o(f"global_load_dwordx2 {v(PS+16*h+2*k_+0,2) if False else v(PS+8*h+2*k_,2)}, v15, s[46:47] offset:{k_*256+h*128} sc1")
        o("s_waitcnt vmcnt(0)")
        regs = list(range(PS, PS + 16))
        o(f"v_max3_u32 v2, v{regs[0]}, v{regs[1]}, v{regs[2]}")
        k_ = 3
        while k_ + 1 < len(regs):
            o(f"v_max3_u32 v2, v2, v{regs[k_]}, v{regs[k_+1]}"); k_ += 2
        if k_ < len(regs): o(f"v_max_u32 v2, v2, v{regs[k_]}")
        o("v_cmp_eq_u32 vcc, -1, v2"); o(f"s_cbranch_vccz L_{name}_stok")
        o("s_sleep 1"); o("s_sub_u32 s50, s50, 1"); o(f"s_cbranch_scc0 L_{name}_stp")
        A.label(f"L_{name}_stok")
        for h in range(2):
            b_ = PS + 8 * h
            o(f"v_add_f32 v{U+8+2*h}, v{b_}, v{b_+2}"); o(f"v_add_f32 v{U+9+2*h}, v{b_+1}, v{b_+3}")
            o(f"v_add_f32 v{b_+4}, v{b_+4}, v{b_+6}"); o(f"v_add_f32 v{b_+5}, v{b_+5}, v{b_+7}")
            o(f"v_add_f32 v{U+8+2*h}, v{U+8+2*h}, v{b_+4}"); o(f"v_add_f32 v{U+9+2*h}, v{U+9+2*h}, v{b_+5}")
        for x in range(U + 8, U + 12):
            for sw in ("16", "32"):
                o(f"v_mov_b32 v{t_}, v{x}"); o(f"v_permlane{sw}_swap_b32 v{x}, v{t_}"); o(f"v_add_f32 v{x}, v{x}, v{t_}")
    else:
        o(f"s_add_u32 s46, s6, {WS_STAT}"); o("s_addc_u32 s47, s7, 0")
        o("v_lshlrev_b32 v9, 3, v5")
        o("s_mov_b64 exec, 0xffff")
        for h in range(2):
            o(f"global_atomic_add_f32 v9, v{S1+h}, s[46:47] offset:{h*128}")
            o(f"global_atomic_add_f32 v9, v{S2+h}, s[46:47] offset:{h*128+4}")
        o("s_mov_b64 exec, -1")
        o("s_waitcnt vmcnt(0)")
        pst(o, 3)
        o(f"s_add_u32 s48, s6, {WS_CNT}"); o("s_addc_u32 s49, s7, 0")
        o("s_lshr_b32 s59, s58, 5"); o("s_lshl_b32 s26, s59, 7"); o(f"s_add_u32 s26, s26, {CNT_ST}")
        o("v_mov_b32 v14, s26"); o("v_mov_b32 v15, 1")
        o("s_mov_b64 exec, 1"); o("global_atomic_add v14, v15, s[48:49]"); o("s_mov_b64 exec, -1")
        o("s_mov_b32 s50, 0x200000")
        poll_ge(A, 48, 14, 16, f"{name}_st", 15, 50, sleep=6)
        for h in range(2): o(f"global_load_dwordx2 {v(S1+2*h if False else U+8+2*h,2)}, v9, s[46:47] offset:{h*128} sc1")
        o("s_waitcnt vmcnt(0)")
    pst(o, 4)
    for k in (2, ):
        for e in range(16): o(f"v_add_f32 v{M+32+e}, 1.0, v{M+32+e}")
    RS = 128 + 32
    o("s_lshl_b32 s26, s3, 13")
    o(f"v_mul_u32_u24 v10, {RS}, v1"); o("v_lshl_add_u32 v10, v3, 1, v10"); o("v_add_u32 v10, s26, v10")
    for h in range(2):
        mu, sq = U + 8 + 2 * h, U + 9 + 2 * h
        o(f"v_mul_f32 v{mu}, {fbits(1/1024)}, v{mu}")
        o(f"v_mul_f32 v{sq}, {fbits(1/1024)}, v{sq}")
        o(f"v_fma_f32 v{sq}, -v{mu}, v{mu}, v{sq}")
        o(f"v_max_f32 v{sq}, 0, v{sq}")
        o(f"v_add_f32 v{sq}, {fbits(1e-5)}, v{sq}")
        o(f"v_rsq_f32 v{sq}, v{sq}")
        for p in range(2):
            Y = E + 4 * (h * 4 + 2 * p)
            for e in range(8):
                o(f"v_sub_f32 v{Y+e}, v{Y+e}, v{mu}"); o(f"v_mul_f32 v{Y+e}, v{Y+e}, v{sq}")
                o(f"v_fma_f32 v{Y+e}, v{Y+e}, v{M+32+8*p+e}, v{M+16+8*p+e}")
            P = XR + 8 * h + 4 * p
            for d in range(4): o(f"v_cvt_pk_bf16_f32 v{P+d}, v{Y+2*d}, v{Y+2*d+1}")
            o(f"ds_write_b128 v10, {v(P,4)} offset:{h*16*RS + p*64}")
    o("s_waitcnt lgkmcnt(0)")
    o("v_lshrrev_b32 v2, 4, v0"); o("v_lshrrev_b32 v11, 2, v1"); o("v_lshl_add_u32 v11, v2, 3, v11"); o(f"v_mul_u32_u24 v11, {RS}, v11")
    o("v_and_b32 v12, 3, v1"); o("v_lshl_add_u32 v11, v12, 3, v11"); o("v_add_u32 v11, s26, v11")
    for j in range(4):
        o(f"ds_read_b64_tr_b16 {v(XR+4*j,2)}, v11 offset:{j*32}"); o(f"ds_read_b64_tr_b16 {v(XR+4*j+2,2)}, v11 offset:{j*32+4*RS}")
    gfun(o, 12, 1, 13); o("v_xor_b32 v12, v12, v2"); o("v_lshl_add_u32 v12, v1, 2, v12"); o("v_lshlrev_b32 v12, 4, v12")
    o("s_lshl_b32 s26, s59, 16"); o(f"s_lshl_b32 s27, s25, 6"); o("s_add_u32 s26, s26, s27"); o(f"s_add_u32 s26, s26, {WS_H2T}")
    o("v_add_u32 v12, s26, v12")
    o("s_waitcnt lgkmcnt(0)")
    for j in range(4): o(f"global_store_dwordx4 v12, {v(XR+4*j,4)}, s[6:7] offset:{j*1024}" + (" sc1" if FUSE else ""))
    o("s_waitcnt vmcnt(0)")
    if FUSE:
        o("s_barrier")
        o("s_cmp_lg_u32 s3, 0"); o(f"s_cbranch_scc1 L_{name}_nh2")
        o(f"s_add_u32 s48, s6, {WS_CNT}"); o("s_addc_u32 s49, s7, 0")
        o(f"s_lshl_b32 s26, s{sDt}, 7"); o(f"s_add_u32 s26, s26, {CNT_H2}")
        o("v_mov_b32 v14, s26"); o("v_mov_b32 v15, 1"); o("s_mov_b64 exec, 1"); o("global_atomic_add v14, v15, s[48:49]"); o("s_mov_b64 exec, -1")
        A.label(f"L_{name}_nh2")
        ostamp(o, 4)
        o("s_branch T_g1")
        A.label(f"L_{name}_end"); o("s_endpgm")
        return A.finish()
    pend(o, 0)
    A.label(f"L_{name}_end"); o("s_endpgm")
    return kernel_head(name) + A.finish() + kernel_desc(name, max(G.vEnd2, E + 144), G.nacc), 8 * G.SB

def gen_g2s(name="g2s_kernel"):
    A = Asm(); o = A
    head(o, name, [(52, KA_W2), (54, KA_B2), (60, KA_OUT)], first=not FUSE)
    srd(o, sX, 52, 0, 3584 * 4096); srd(o, sY, 6, WS_U, 112 * 64 * 1024)
    sSt_, sDt, sKh, sTile = 4, 5, 56, 57
    o("s_and_b32 s25, s2, 7"); o("s_lshr_b32 s26, s2, 3"); o(f"s_and_b32 s{sKh}, s25, 1")
    o(f"s_lshr_b32 s{sDt}, s25, 2"); o(f"s_lshl_b32 s{sDt}, s{sDt}, 2"); o("s_and_b32 s27, s26, 3"); o(f"s_add_u32 s{sDt}, s{sDt}, s27")
    o(f"s_bfe_u32 s{sSt_}, s25, 0x10001"); o(f"s_lshl_b32 s{sSt_}, s{sSt_}, 3"); o("s_lshr_b32 s27, s26, 2"); o(f"s_add_u32 s{sSt_}, s{sSt_}, s27")
    o(f"s_lshl_b32 s{sTile}, s{sSt_}, 3"); o(f"s_add_u32 s{sTile}, s{sTile}, s{sDt}")
    o(f"s_lshl_b32 s{sOffX}, s{sSt_}, 8"); o(f"s_mul_i32 s25, s{sKh}, {1792*4096}"); o(f"s_add_u32 s{sOffX}, s{sOffX}, s25")
    o(f"s_lshl_b32 s{sOffY}, s{sDt}, 13"); o(f"s_mul_i32 s25, s{sKh}, {56*65536}"); o(f"s_add_u32 s{sOffY}, s{sOffY}, s25")
    if FUSE:
        o(f"s_lshl_b32 s58, s{sDt}, 1"); o(f"s_add_u32 s58, s58, s{sKh}"); o("s_lshl_b32 s58, s58, 7"); o(f"s_add_u32 s58, s58, {CNT_U}")
        ostamp(o, 5)
        wg_wait(A, 58, 14, f"{name}_uw")
        ostamp(o, 6)
        o(f"s_add_u32 s25, s{sKh}, 1"); o(f"s_mul_i32 s{sY+2}, s25, {56*65536}")
    G = Gemm(A, 4, 4, True, "h")
    o(f"s_mul_i32 s{sM0[0]}, s3, {G.NIX*1024}"); o(f"s_mul_i32 s{sM0[1]}, s3, {G.NIY*1024}")
    G.setup(3, 0, 4096, 0, [1, 2, 3, 4, 5, 6], [25, 26, 27, 28])
    gen_loop3(G, sX, sY, sOffX, sOffY, sM0, sK, 32 * 4096, 64 * 1024, 56, f"L_{name}", K=2, R=8)
    pst(o, 1)
    E = G.vF
    keep = lambda kh: [(2 * kh + h, jy) for h in range(2) for jy in range(4)]
    send = lambda kh: keep(kh ^ 1)
    o("v_and_b32 v1, 15, v0"); o("v_lshrrev_b32 v2, 4, v0"); o("v_and_b32 v3, 1, v2"); o("v_lshrrev_b32 v2, 1, v2")
    o("v_lshlrev_b32 v3, 4, v3"); o("v_lshl_add_u32 v3, v2, 3, v3")
    o(f"s_lshl_b32 s25, s{sDt}, 7"); o("s_lshr_b32 s26, s3, 1"); o("s_lshl_b32 s26, s26, 6"); o("s_add_u32 s25, s25, s26")
    o("v_add_u32 v4, s25, v3")
    o(f"s_lshl_b32 s58, s{sSt_}, 7"); o("s_and_b32 s26, s3, 1"); o("s_lshl_b32 s26, s26, 6"); o("s_add_u32 s58, s58, s26"); o(f"s_lshl_b32 s26, s{sKh}, 5"); o("s_add_u32 s58, s58, s26")
    o("v_add_u32 v5, s58, v1")
    o("v_lshlrev_b32 v6, 11, v5"); o("v_lshl_add_u32 v6, v4, 1, v6")
    o("v_lshlrev_b32 v7, 2, v4")
    M = E + 64; XR = E + 112; B2 = E + 100
    o(f"s_add_u32 s44, s6, {WS_MOD + 5*4096}"); o("s_addc_u32 s45, s7, 0")
    for p in range(2):
        o(f"global_load_dwordx4 {v(M+8*p,4)}, v7, s[44:45] offset:{p*128}"); o(f"global_load_dwordx4 {v(M+8*p+4,4)}, v7, s[44:45] offset:{p*128+16}")
    o(f"s_add_u32 s44, s6, {WS_X1}"); o("s_addc_u32 s45, s7, 0")
    o("v_lshlrev_b32 v9, 1, v5")
    for h in range(2):
        o(f"v_add_u32 v8, {h*16*2048}, v6")
        for p in range(2): o(f"global_load_dwordx4 {v(XR+8*h+4*p,4)}, v8, s[44:45] offset:{p*64}")
        o(f"global_load_ushort v{B2+h}, v9, s[54:55] offset:{h*32}")
    exchange(A, G, keep, send, sTile, sKh, WS_XCH + 8 * MiB, CNT_XG, name + "x")
    pst(o, 2)
    for h in range(2):
        for p in range(2):
            a_, b_ = E + 4 * (h * 4 + 2 * p), E + 4 * (h * 4 + 2 * p + 1)
            for r in range(4): o(f"v_permlane16_swap_b32 v{a_+r}, v{b_+r}")
    o("s_waitcnt vmcnt(0)")
    U = E + 128
    for h in range(2):
        o(f"v_lshlrev_b32 v{B2+h}, 16, v{B2+h}")
        o(f"v_add_u32 v8, {h*16*2048}, v6")
        for p in range(2):
            Y = E + 4 * (h * 4 + 2 * p)
            unpack8(o, U, XR + 8 * h + 4 * p)
            for e in range(8): o(f"v_add_f32 v{Y+e}, v{Y+e}, v{B2+h}")
            for e in range(8): o(f"v_fma_f32 v{Y+e}, v{Y+e}, v{M+8*p+e}, v{U+e}")
            P = XR + 8 * h + 4 * p
            for d in range(4): o(f"v_cvt_pk_bf16_f32 v{P+d}, v{Y+2*d}, v{Y+2*d+1}")
            o(f"global_store_dwordx4 v8, {v(P,4)}, s[60:61] offset:{p*64}")
    o("s_waitcnt vmcnt(0)")
    if FUSE:
        ostamp(o, 7)
        o("s_waitcnt vmcnt(0)")
        o("s_endpgm")
        return A.finish()
    pend(o, 1)
    A.label(f"L_{name}_end"); o("s_endpgm")
    return kernel_head(name) + A.finish() + kernel_desc(name, max(G.vEnd2, E + 144), G.nacc), 8 * G.SB


def gen_attn_early(uearly):
    import k_attn, re
    A = Asm(); o = A
    for rnd in range(2):
        o("s_lshl_b32 s59, s62, 2"); o("s_add_u32 s59, s59, s3"); o("s_lshl_b32 s59, s59, 1"); o(f"s_add_u32 s59, s59, {rnd*1024}")
        o(f"s_cmp_ge_u32 s59, {uearly}"); o(f"s_cbranch_scc1 L_ae_{rnd}")
        k_attn.attn_phase(A, unit_sreg=59)
        att_signal(o, 2)
        A.label(f"L_ae_{rnd}")
    return A.finish()

def gen_tail_text(uearly):
    import k_gemms
    global FUSE, FUSE_AT, ONE
    FUSE = True; k_gemms.FUSE = True; FUSE_AT = True; ONE = uearly
    a_ = gen_opln(name="opln"); b_ = k_gemms.gen_g1(name="g1f"); c_ = gen_g2s(name="g2f")
    FUSE = False; k_gemms.FUSE = False; FUSE_AT = False; ONE = False
    return "T_last:\n" + a_ + "T_g1:\n" + b_ + "T_g2:\n" + c_

def gen_tail(name="tail_kernel", with_attn=False):
    import k_gemms
    global FUSE, FUSE_AT
    FUSE = True; k_gemms.FUSE = True; FUSE_AT = with_attn
    a_ = gen_opln(name="opln")
    b_ = k_gemms.gen_g1(name="g1f")
    c_ = gen_g2s(name="g2f")
    FUSE = False; k_gemms.FUSE = False; FUSE_AT = False
    return kernel_head(name) + a_ + "T_g1:\n" + b_ + "T_g2:\n" + c_ + (kernel_desc(name, 196, 128) if with_attn else kernel_desc(name, 164, 64)), 131072
```

```python
from asmlib import *
from layout import *
from gemm import Gemm, gen_loop, gen_loop2
from k_qkv import srd
from k_small import fbits, LOG2E, wave_sum, ln_rows, unpack8, gfun
from k_attn import attn_body
from mega import qkv_tile
import rec12 as rec
import re, math

CNT_MODA, CNT_MODB, CNT_MODC = 40960, 40960 + 128, 40960 + 256
CNT_LN1 = 41984
CNT_RLY = 24576
SLOW_OFF = 65536

sW, sXb, sI, sWS = 3, 4, 5, 6
sCNT, sB, sCh, sRound, sChk, sLim = 60, 62, 63, 64, 65, 66
sCt, sTok, sCntOff = 67, 68, 69
sDBG = 70
sFt, sDtG = 81, 82

def wait_cnt(A, off, target, tag, off_s=None, sleep=3):
    o = A
    o(f"s_cmp_lg_u32 s{sW}, 0"); o(f"s_cbranch_scc1 L_wc_{tag}_b")
    if off_s is None: o(f"v_mov_b32 v2, {off}")
    else:
        o(f"s_add_u32 s44, s{off_s}, {off}"); o("v_mov_b32 v2, s44")
    A.label(f"L_wc_{tag}")
    o(f"global_load_dword v3, v2, {s(sCNT,2)} sc1")
    o("s_waitcnt vmcnt(0)")
    o("v_readfirstlane_b32 s44, v3")
    o(f"s_cmp_ge_u32 s44, {target}"); o(f"s_cbranch_scc1 L_wc_{tag}_b")
    o(f"s_sleep {sleep}")
    o(f"s_sub_u32 s{sLim}, s{sLim}, 1"); o(f"s_cbranch_scc0 L_wc_{tag}")
    o(f"s_mov_b32 s{sLim}, 0")
    A.label(f"L_wc_{tag}_b")
    o("s_barrier")

def signal(A, off, tag, off_s=None):
    o = A
    o("s_waitcnt vmcnt(0)"); o("s_barrier")
    o(f"s_cmp_lg_u32 s{sW}, 0"); o(f"s_cbranch_scc1 L_sg_{tag}")
    if off_s is None: o(f"v_mov_b32 v2, {off}")
    else:
        o(f"s_add_u32 s44, s{off_s}, {off}"); o("v_mov_b32 v2, s44")
    o("v_mov_b32 v3, 1"); o("s_mov_b64 exec, 1")
    o(f"global_atomic_add v2, v3, {s(sCNT,2)}")
    o("s_mov_b64 exec, -1")
    A.label(f"L_sg_{tag}")

def mod_task(A, sCol, tag):
    o = A
    o("s_load_dwordx2 s[8:9], s[0:1], %d" % KA_WMOD)
    o("v_lshrrev_b32 v5, 2, v0"); o(f"s_lshl_b32 s12, s{sW}, 8"); o("v_add_u32 v5, s12, v5")
    o("v_lshlrev_b32 v6, 2, v5")
    o("s_mov_b32 s13, 12288"); o("v_mul_lo_u32 v7, v5, s13")
    o("v_and_b32 v26, 3, v0"); o("v_lshl_add_u32 v7, v26, 4, v7")
    o(f"s_lshl_b32 s12, s{sCol}, 1"); o("v_add_u32 v7, s12, v7")
    o("s_waitcnt lgkmcnt(0)")
    W = 32; Cc = 96; AC = 112
    for it in range(16):
        o(f"global_load_dwordx4 {v(W+4*it,4)}, v7, s[8:9]")
        o(f"v_add_u32 v7, {16*12288}, v7")
        o(f"ds_read_b32 v{Cc+it}, v6 offset:{it*64}")
    for e in range(8): o(f"v_mov_b32 v{AC+e}, 0")
    o("s_waitcnt lgkmcnt(0)")
    for it in range(16):
        o(f"s_waitcnt vmcnt({15-it})")
        for d in range(4):
            o(f"v_lshlrev_b32 v27, 16, v{W+4*it+d}")
            o(f"v_and_b32 v28, 0xffff0000, v{W+4*it+d}")
            o(f"v_fmac_f32 v{AC+2*d}, v27, v{Cc+it}")
            o(f"v_fmac_f32 v{AC+2*d+1}, v28, v{Cc+it}")
    for e in range(8):
        x = AC + e
        o(f"v_add_f32_dpp v{x}, v{x}, v{x} row_ror:4 row_mask:0xf bank_mask:0xf")
        o(f"v_add_f32_dpp v{x}, v{x}, v{x} row_ror:8 row_mask:0xf bank_mask:0xf")
        for sw in ("16", "32"):
            o(f"v_mov_b32 v27, v{x}"); o(f"v_permlane{sw}_swap_b32 v{x}, v27"); o(f"v_add_f32 v{x}, v{x}, v27")
    o(f"s_lshl_b32 s12, s{sW}, 7"); o("v_lshlrev_b32 v5, 5, v26"); o("v_add_u32 v5, s12, v5")
    o("s_mov_b64 exec, 0xf")
    o(f"ds_write_b128 v5, {v(AC,4)} offset:4096"); o(f"ds_write_b128 v5, {v(AC+4,4)} offset:4112")
    o("s_mov_b64 exec, -1")
    o("s_waitcnt lgkmcnt(0)"); o("s_barrier")
    o(f"s_cmp_lg_u32 s{sW}, 0"); o(f"s_cbranch_scc1 L_mod_{tag}_d")
    o("v_lshlrev_b32 v5, 2, v0")
    o("s_mov_b64 exec, 0xffffffff")
    for w in range(4): o(f"ds_read_b32 v{32+w}, v5 offset:{4096+w*128}")
    o("s_waitcnt lgkmcnt(0)")
    o("v_add_f32 v32, v32, v33"); o("v_add_f32 v34, v34, v35"); o("v_add_f32 v32, v32, v34")
    o("v_cvt_pk_bf16_f32 v32, v32, v32"); o("v_lshlrev_b32 v32, 16, v32")
    o(f"s_lshl_b32 s12, s{sCol}, 2"); o(f"s_add_u32 s12, s12, {WS_MOD}"); o("v_add_u32 v5, s12, v5")
    o(f"global_store_dword v5, v32, {s(sWS,2)} sc1")
    o("s_mov_b64 exec, -1")
    A.label(f"L_mod_{tag}_d")

def silu_to_lds(A, pre=None):
    o = A
    if pre: o(f"s_mov_b64 s[8:9], s[{pre}:{pre+1}]")
    else: o("s_load_dwordx2 s[8:9], s[0:1], %d" % KA_C)
    o(f"s_lshl_b32 s12, s{sW}, 6"); o("v_add_u32 v4, s12, v0")
    o("v_lshlrev_b32 v5, 3, v4")
    o("s_waitcnt lgkmcnt(0)")
    o("global_load_dwordx2 v[12:13], v5, s[8:9]")
    o("s_waitcnt vmcnt(0)")
    o("v_lshlrev_b32 v14, 16, v12"); o("v_and_b32 v15, 0xffff0000, v12"); o("v_lshlrev_b32 v16, 16, v13"); o("v_and_b32 v17, 0xffff0000, v13")
    o(f"s_mov_b32 s12, {fbits(-LOG2E)}")
    for r in range(4):
        o(f"v_mul_f32 v{20+r}, s12, v{14+r}"); o(f"v_exp_f32 v{20+r}, v{20+r}"); o(f"v_add_f32 v{20+r}, 1.0, v{20+r}")
        o(f"v_rcp_f32 v{20+r}, v{20+r}"); o(f"v_mul_f32 v{20+r}, v{14+r}, v{20+r}")
    o("v_cvt_pk_bf16_f32 v24, v20, v21"); o("v_cvt_pk_bf16_f32 v25, v22, v23")
    o("v_lshlrev_b32 v20, 16, v24"); o("v_and_b32 v21, 0xffff0000, v24"); o("v_lshlrev_b32 v22, 16, v25"); o("v_and_b32 v23, 0xffff0000, v25")
    o("v_lshlrev_b32 v4, 4, v4")
    o("ds_write_b128 v4, v[20:23]")
    o("s_waitcnt lgkmcnt(0)"); o("s_barrier")

def ln1_task(A):
    o = A
    o("s_load_dwordx2 s[8:9], s[0:1], %d" % KA_X)
    o("v_lshlrev_b32 v2, 4, v0"); o("v_lshlrev_b32 v3, 5, v0")
    o(f"s_add_u32 s12, s{sWS}, {WS_MOD}"); o(f"s_addc_u32 s13, s{sWS+1}, 0")
    SA, CA = 64, 80
    for h in range(2):
        for q in range(2): o(f"global_load_dwordx4 {v(SA+8*h+4*q,4)}, v3, s[12:13] offset:{h*2048+q*16}")
    o("s_add_u32 s12, s12, 4096"); o("s_addc_u32 s13, s13, 0")
    for h in range(2):
        for q in range(2): o(f"global_load_dwordx4 {v(CA+8*h+4*q,4)}, v3, s[12:13] offset:{h*2048+q*16}")
    o(f"s_lshl_b32 s14, s{sB}, 4"); o(f"s_lshl_b32 s15, s{sW}, 2"); o("s_add_u32 s14, s14, s15")
    o("s_waitcnt lgkmcnt(0)")
    o("s_lshl_b32 s15, s14, 11"); o("s_add_u32 s10, s8, s15"); o("s_addc_u32 s11, s9, 0")
    RAW = 96
    for r in range(4):
        off = r * 2048
        if off >= 4096:
            if r == 2: o("s_add_u32 s10, s10, 4096"); o("s_addc_u32 s11, s11, 0")
            off -= 4096
        o(f"global_load_dwordx4 {v(RAW+8*r,4)}, v2, s[10:11] offset:{off}")
        o(f"global_load_dwordx4 {v(RAW+8*r+4,4)}, v2, s[10:11] offset:{off+1024}")
    o("s_waitcnt vmcnt(8)")
    for e in range(16): o(f"v_add_f32 v{CA+e}, 1.0, v{CA+e}")
    X = [32, 48]
    for pr in range(2):
        o(f"s_waitcnt vmcnt({4 if pr == 0 else 0})") if pr == 0 else None
        if pr == 1: o("s_waitcnt vmcnt(4)")
        for r in range(2):
            unpack8(o, X[r], RAW + 8 * (2 * pr + r)); unpack8(o, X[r] + 8, RAW + 8 * (2 * pr + r) + 4)
        ln_rows(o, X, 2, [4, 5], 1e-5)
        for r in range(2):
            R0 = 8 + 8 * r
            for e in range(16): o(f"v_fma_f32 v{X[r]+e}, v{X[r]+e}, v{CA+e}, v{SA+e}")
            for h in range(2):
                for d in range(4): o(f"v_cvt_pk_bf16_f32 v{R0+4*h+d}, v{X[r]+8*h+2*d}, v{X[r]+8*h+2*d+1}")
            o(f"s_add_u32 s16, s14, {2*pr+r}"); o("s_lshr_b32 s17, s16, 4"); o("s_and_b32 s16, s16, 15")
            o("s_lshr_b32 s18, s16, 2"); o("s_lshr_b32 s19, s18, 1"); o("s_and_b32 s18, s18, 1"); o("s_xor_b32 s18, s18, s19"); o("s_lshl_b32 s18, s18, 1"); o("s_or_b32 s18, s18, s19")
            o("v_and_b32 v4, 3, v0"); o("v_xor_b32 v4, s18, v4"); o("v_lshlrev_b32 v4, 4, v4")
            o("v_lshrrev_b32 v5, 2, v0"); o("v_lshl_add_u32 v4, v5, 17, v4")
            o("s_lshl_b32 s17, s17, 10"); o("s_lshl_b32 s16, s16, 6"); o("s_add_u32 s17, s17, s16"); o(f"s_add_u32 s17, s17, {WS_H}")
            o("v_add_u32 v4, s17, v4")
            o(f"global_store_dwordx4 v4, {v(R0,4)}, {s(sWS,2)} sc1")
            o(f"v_add_u32 v4, {16*131072}, v4")
            o(f"global_store_dwordx4 v4, {v(R0+4,4)}, {s(sWS,2)} sc1")
        if pr == 0: o("s_nop 1")

def op_task(A):
    o = A
    S = 4; SBW = 6144
    sX, sY = 8, 12
    o("s_load_dwordx2 s[40:41], s[0:1], %d" % KA_WO); o("s_load_dwordx2 s[46:47], s[0:1], %d" % KA_X)
    o("s_waitcnt lgkmcnt(0)")
    srd(o, sX, 40, 0, 8 * MiB); srd(o, sY, sWS, WS_O, 16 * MiB)
    sDt, sTg = 48, 49
    o(f"s_lshl_b32 s{sDt}, s{sXb}, 1"); o(f"s_and_b32 s20, s{sI}, 1"); o(f"s_add_u32 s{sDt}, s{sDt}, s20")
    o(f"s_lshr_b32 s{sTg}, s{sI}, 1"); o(f"s_lshl_b32 s20, s{sCh}, 3"); o(f"s_add_u32 s{sTg}, s{sTg}, s20")
    sOX, sOY, sLb, sRd, sDm, sK = 20, 21, 22, 23, 24, 25
    o(f"s_lshl_b32 s{sOX}, s{sDt}, 7"); o(f"s_lshl_b32 s26, s{sW}, 16"); o(f"s_add_u32 s{sOX}, s{sOX}, s26")
    o(f"s_lshl_b32 s{sOY}, s{sTg}, 11"); o(f"s_lshl_b32 s26, s{sW}, 17"); o(f"s_add_u32 s{sOY}, s{sOY}, s26")
    o(f"s_mul_i32 s{sLb}, s{sW}, {S*SBW}")
    vi, vg, t0, t1, t2, t3 = 1, 2, 3, 4, 5, 6
    vXr, vYr, vXd, vYd, vC = 8, 12, 13, 17, 20
    o(f"v_and_b32 v{vi}, 15, v0"); o(f"v_lshrrev_b32 v{vg}, 4, v0")
    o(f"v_lshrrev_b32 v{t0}, 2, v{vi}"); o(f"v_and_b32 v{t1}, 1, v{vg}"); o(f"v_lshrrev_b32 v{t2}, 1, v{vg}")
    o(f"v_lshlrev_b32 v{t3}, 4, v{t2}"); o(f"v_lshl_add_u32 v{t3}, v{t0}, 1, v{t3}"); o(f"v_add_u32 v{t3}, v{t3}, v{t1}")
    o(f"v_lshlrev_b32 v{t3}, 7, v{t3}"); o(f"v_and_b32 v{t1}, 3, v{vi}"); o(f"v_lshl_add_u32 v{t3}, v{t1}, 3, v{t3}")
    o(f"v_add_u32 v{t3}, s{sLb}, v{t3}")
    for j in range(4):
        o(f"v_xor_b32 v{t1}, {j}, v{t0}"); o(f"v_lshl_add_u32 v{vXr+j}, v{t1}, 5, v{t3}")
    gfun(o, t2, vi, t1); o(f"v_xor_b32 v{t2}, v{t2}, v{vg}"); o(f"v_lshlrev_b32 v{t2}, 4, v{t2}"); o(f"v_lshl_add_u32 v{t2}, v{vi}, 6, v{t2}")
    o(f"s_add_u32 s26, s{sLb}, 4096"); o(f"v_add_u32 v{vYr}, s26, v{t2}")
    o(f"v_lshrrev_b32 v{t0}, 3, v0"); o(f"v_and_b32 v{t1}, 7, v0")
    o(f"v_lshrrev_b32 v{t3}, 1, v{t0}"); o(f"v_and_b32 v{t2}, 1, v{t0}"); o(f"v_lshl_add_u32 v{t2}, v{t2}, 3, v{t3}")
    o(f"v_lshrrev_b32 v{vi}, 1, v{t1}"); o(f"v_xor_b32 v{vi}, v{vi}, v{t3}"); o(f"v_lshlrev_b32 v{vi}, 5, v{vi}")
    o(f"v_and_b32 v{t1}, 1, v{t1}"); o(f"v_lshl_or_b32 v{vi}, v{t1}, 4, v{vi}")
    o(f"v_lshl_add_u32 v{vXd}, v{t2}, 11, v{vi}")
    for t in range(1, 4): o(f"v_add_u32 v{vXd+t}, {(4*(t&1) + 16*(t>>1))*2048}, v{vXd}")
    o(f"v_lshlrev_b32 v{vYd}, 4, v0"); o(f"v_add_u32 v{vYd+1}, 1024, v{vYd}")
    F = 28; FS = 24
    AC = 80
    def dma():
        L = []
        for t in range(4): L.append([f"s_add_u32 m0, s26, {t*1024}", f"buffer_load_dwordx4 v{vXd+t}, {s(sX,4)}, s{sOX} offen lds"])
        for t in range(2): L.append([f"s_add_u32 m0, s26, {4096+t*1024}", f"buffer_load_dwordx4 v{vYd+t}, {s(sY,4)}, s{sOY} offen lds"])
        return L
    def adv(r): return [f"s_add_u32 s{r}, s{r}, {SBW}", f"s_cmp_eq_u32 s{r}, {S*SBW}", f"s_cselect_b32 s{r}, 0, s{r}"]
    def dma_all():
        o(f"s_add_u32 s26, s{sLb}, s{sDm}")
        for g in dma():
            o(g[0]); o("s_nop 0"); o(g[1])
        o(f"s_add_u32 s{sOX}, s{sOX}, {4*32*2048}"); o(f"s_add_u32 s{sOY}, s{sOY}, {4*131072}")
        for x in adv(sDm): o(x)
    def rd(ph):
        for j in range(5): o(f"v_add_u32 v{vC+j}, s{sRd}, v{(vXr+j) if j < 4 else vYr}")
        for j in range(2): o(f"ds_read_b128 {v(F+ph*FS+16+4*j,4)}, v{vC+4} offset:{j*1024}")
        for j in range(4):
            o(f"ds_read_b64_tr_b16 {v(F+ph*FS+4*j,2)}, v{vC+j}"); o(f"ds_read_b64_tr_b16 {v(F+ph*FS+4*j+2,2)}, v{vC+j} offset:1024")
        for x in adv(sRd): o(x)
    o(f"s_mov_b32 s{sDm}, 0"); o(f"s_mov_b32 s{sRd}, 0")
    for st in range(S): dma_all()
    o(f"s_waitcnt vmcnt({6*(S-1)})")
    rd(0)
    def iteration(ph, first):
        o(f"s_waitcnt vmcnt({6*(S-2)}) lgkmcnt(0)")
        dma_all()
        rd(ph ^ 1)
        for jy in range(2):
            for jx in range(4):
                d = AC + (jx * 2 + jy) * 4
                c = "0" if first else v(d, 4)
                o(f"v_mfma_f32_16x16x32_bf16 {v(d,4)}, {v(F+ph*FS+4*jx,4)}, {v(F+ph*FS+16+4*jy,4)}, {c}")
    iteration(0, True); iteration(1, False)
    o(f"s_mov_b32 s{sK}, 15")
    A.label("L_op_loop")
    iteration(0, False); iteration(1, False)
    o(f"s_sub_u32 s{sK}, s{sK}, 1"); o(f"s_cmp_lg_u32 s{sK}, 0"); o("s_cbranch_scc1 L_op_loop")
    o("s_waitcnt vmcnt(0) lgkmcnt(0)")
    o("s_barrier")
    o("v_lshlrev_b32 v1, 4, v0"); o(f"s_lshl_b32 s26, s{sW}, 13"); o("v_add_u32 v2, s26, v1")
    for t in range(8): o(f"ds_write_b128 v2, {v(AC+4*t,4)} offset:{t*1024}")
    o("v_and_b32 v3, 15, v0"); o("v_lshrrev_b32 v4, 4, v0"); o("v_and_b32 v5, 1, v4"); o("v_lshrrev_b32 v4, 1, v4")
    o("v_lshlrev_b32 v5, 4, v5"); o("v_lshl_add_u32 v5, v4, 3, v5")
    o(f"s_lshl_b32 s26, s{sDt}, 6"); o(f"s_and_b32 s27, s{sW}, 1"); o("s_lshl_b32 s27, s27, 5"); o("s_add_u32 s26, s26, s27")
    o("v_add_u32 v5, s26, v5")
    o(f"s_lshl_b32 s26, s{sTg}, 5"); o(f"s_lshr_b32 s27, s{sW}, 1"); o("s_lshl_b32 s27, s27, 4"); o("s_add_u32 s26, s26, s27")
    o("v_add_u32 v3, s26, v3")
    o("v_lshlrev_b32 v6, 11, v3"); o("v_lshl_add_u32 v6, v5, 1, v6")
    o("v_lshlrev_b32 v7, 2, v5")
    o(f"s_add_u32 s44, s{sWS}, {WS_MOD + 2*4096}"); o(f"s_addc_u32 s45, s{sWS+1}, 0")
    GA, XR = 28, 36
    o(f"global_load_dwordx4 {v(GA,4)}, v7, s[44:45]"); o(f"global_load_dwordx4 {v(GA+4,4)}, v7, s[44:45] offset:16")
    o(f"global_load_dwordx4 {v(XR,4)}, v6, s[46:47]")
    o("s_waitcnt lgkmcnt(0)"); o("s_barrier")
    o(f"s_and_b32 s26, s{sW}, 1"); o("s_lshl_b32 s26, s26, 12"); o(f"s_lshr_b32 s27, s{sW}, 1"); o("s_lshl_b32 s27, s27, 10"); o("s_add_u32 s26, s26, s27")
    o("v_add_u32 v2, s26, v1")
    R = 48
    for sw in range(4):
        o(f"ds_read_b128 {v(R+8*sw,4)}, v2 offset:{sw*8192}"); o(f"ds_read_b128 {v(R+8*sw+4,4)}, v2 offset:{sw*8192+2048}")
    o("s_waitcnt lgkmcnt(0)")
    for e in range(8):
        o(f"v_add_f32 v{R+e}, v{R+e}, v{R+8+e}"); o(f"v_add_f32 v{R+16+e}, v{R+16+e}, v{R+24+e}")
    for e in range(8): o(f"v_add_f32 v{R+e}, v{R+e}, v{R+16+e}")
    for r in range(4): o(f"v_permlane16_swap_b32 v{R+r}, v{R+4+r}")
    o("s_waitcnt vmcnt(0)")
    U = 40 + 40
    unpack8(o, U, XR)
    for e in range(8): o(f"v_fma_f32 v{R+e}, v{R+e}, v{GA+e}, v{U+e}")
    for d in range(4): o(f"v_cvt_pk_bf16_f32 v{XR+d}, v{R+2*d}, v{R+2*d+1}")
    o(f"s_add_u32 s44, s{sWS}, {WS_X1}"); o(f"s_addc_u32 s45, s{sWS+1}, 0")
    o(f"global_store_dwordx4 v6, {v(XR,4)}, s[44:45] sc1")

def ln2_task(A):
    o = A
    o(f"s_lshl_b32 s14, s{sCh}, 3"); o(f"s_add_u32 s14, s14, s{sXb}")
    o("v_lshlrev_b32 v2, 4, v0")
    o(f"s_lshl_b32 s15, s14, 16"); o(f"s_lshl_b32 s16, s{sW}, 14"); o("s_add_u32 s15, s15, s16"); o(f"s_add_u32 s15, s15, {WS_X1}")
    o(f"s_add_u32 s10, s{sWS}, s15"); o(f"s_addc_u32 s11, s{sWS+1}, 0")
    RAW = 96
    for r in range(8):
        if r and r % 2 == 0: o("s_add_u32 s10, s10, 4096"); o("s_addc_u32 s11, s11, 0")
        off = (r % 2) * 2048
        o(f"global_load_dwordx4 {v(RAW+8*r,4)}, v2, s[10:11] offset:{off}"); o(f"global_load_dwordx4 {v(RAW+8*r+4,4)}, v2, s[10:11] offset:{off+1024}")
    o("v_lshrrev_b32 v3, 3, v0"); o("v_and_b32 v4, 7, v0")
    o("v_lshlrev_b32 v5, 11, v3"); o("v_lshl_add_u32 v5, v4, 4, v5"); o(f"s_lshl_b32 s16, s{sI}, 7"); o("v_add_u32 v5, s16, v5")
    o(f"s_add_u32 s10, s{sWS}, s15"); o(f"s_addc_u32 s11, s{sWS+1}, 0")
    SL = 24
    o(f"global_load_dwordx4 {v(SL,4)}, v5, s[10:11]")
    o("v_lshlrev_b32 v6, 5, v4"); o(f"s_lshl_b32 s16, s{sI}, 8"); o("v_add_u32 v6, s16, v6")
    o(f"s_add_u32 s12, s{sWS}, {WS_MOD + 3*4096}"); o(f"s_addc_u32 s13, s{sWS+1}, 0")
    SB_, CB_ = 64, 72
    o(f"global_load_dwordx4 {v(SB_,4)}, v6, s[12:13]"); o(f"global_load_dwordx4 {v(SB_+4,4)}, v6, s[12:13] offset:16")
    o("s_add_u32 s12, s12, 4096"); o("s_addc_u32 s13, s13, 0")
    o(f"global_load_dwordx4 {v(CB_,4)}, v6, s[12:13]"); o(f"global_load_dwordx4 {v(CB_+4,4)}, v6, s[12:13] offset:16")
    vMean, vRs, X, sm, t = 80, 81, 32, 7, 8
    for r in range(8):
        o(f"s_waitcnt vmcnt({5 + 2*(7-r)})")
        unpack8(o, X, RAW + 8 * r); unpack8(o, X + 8, RAW + 8 * r + 4)
        o(f"v_add_f32 v{sm}, v{X}, v{X+1}")
        for e in range(2, 16): o(f"v_add_f32 v{sm}, v{sm}, v{X+e}")
        wave_sum(o, sm, t)
        o(f"v_mul_f32 v{sm}, {fbits(1.0/1024)}, v{sm}")
        for e in range(16): o(f"v_sub_f32 v{X+e}, v{X+e}, v{sm}")
        o(f"v_mul_f32 v9, v{X}, v{X}")
        for e in range(1, 16): o(f"v_fmac_f32 v9, v{X+e}, v{X+e}")
        wave_sum(o, 9, t)
        o(f"v_mov_b32 v{t}, {fbits(1e-5)}"); o(f"v_fmac_f32 v{t}, {fbits(1.0/1024)}, v9"); o(f"v_rsq_f32 v{t}, v{t}")
        o(f"v_cmp_eq_u32 vcc, {r}, v3")
        o(f"v_cndmask_b32 v{vMean}, v{vMean}, v{sm}, vcc"); o(f"v_cndmask_b32 v{vRs}, v{vRs}, v{t}, vcc")
    o("s_waitcnt vmcnt(0)")
    unpack8(o, X, SL)
    for e in range(8):
        o(f"v_sub_f32 v{X+e}, v{X+e}, v{vMean}"); o(f"v_mul_f32 v{X+e}, v{X+e}, v{vRs}")
        o(f"v_add_f32 v{CB_+e}, 1.0, v{CB_+e}"); o(f"v_fma_f32 v{X+e}, v{X+e}, v{CB_+e}, v{SB_+e}")
    for d in range(4): o(f"v_cvt_pk_bf16_f32 v{SL+d}, v{X+2*d}, v{X+2*d+1}")
    RS = 128 + 32
    o(f"s_lshl_b32 s16, s{sW}, 3"); o("v_add_u32 v5, s16, v3"); o(f"v_mul_u32_u24 v5, {RS}, v5"); o("v_lshl_add_u32 v5, v4, 4, v5")
    o(f"ds_write_b128 v5, {v(SL,4)}")
    o("s_waitcnt lgkmcnt(0)"); o("s_barrier")
    o("v_and_b32 v5, 15, v0"); o("v_lshrrev_b32 v6, 4, v0")
    o("v_lshrrev_b32 v7, 2, v5"); o("v_lshl_add_u32 v7, v6, 3, v7"); o(f"v_mul_u32_u24 v7, {RS}, v7")
    o("v_and_b32 v8, 3, v5"); o("v_lshl_add_u32 v7, v8, 3, v7"); o(f"s_lshl_b32 s16, s{sW}, 5"); o("v_add_u32 v7, s16, v7")
    o(f"ds_read_b64_tr_b16 {v(SL,2)}, v7"); o(f"ds_read_b64_tr_b16 {v(SL+2,2)}, v7 offset:{4*RS}")
    gfun(o, 8, 5, 9); o("v_xor_b32 v8, v8, v6"); o("v_lshl_add_u32 v8, v5, 2, v8"); o("v_lshlrev_b32 v8, 4, v8")
    o("s_lshl_b32 s16, s14, 16"); o(f"s_lshl_b32 s17, s{sI}, 12"); o("s_add_u32 s16, s16, s17"); o(f"s_lshl_b32 s17, s{sW}, 10"); o("s_add_u32 s16, s16, s17"); o(f"s_add_u32 s16, s16, {WS_H2T}")
    o("v_add_u32 v8, s16, v8")
    o("s_waitcnt lgkmcnt(0)")
    o(f"global_store_dwordx4 v8, {v(SL,4)}, {s(sWS,2)} sc1")

def g1_partial(A, opt):
    o = A
    sX, sY = 8, 12
    o("s_load_dwordx2 s[40:41], s[0:1], %d" % KA_W1); o("s_waitcnt lgkmcnt(0)")
    srd(o, sX, 40, 0, 2048 * 7168); srd(o, sY, sWS, WS_H2T, 4 * MiB)
    o(f"s_add_u32 s26, s{sCh}, 1"); o(f"s_lshl_b32 s{sY+2}, s26, 19")
    o(f"s_mul_i32 s{sX+2}, s26, {256*7168}")
    G = Gemm(A, 8, 4, False, "g", accbase=128)
    sOffX, sOffY, sM0, sK = 20, 21, [22, 23], 24
    o(f"s_mul_i32 s{sOffX}, s{sCh}, {256*7168}"); o(f"s_lshl_b32 s26, s{sI}, 9"); o(f"s_add_u32 s{sOffX}, s{sOffX}, s26")
    o(f"s_lshl_b32 s{sOffY}, s{sCh}, 19"); o(f"s_lshl_b32 s26, s{sXb}, 13"); o(f"s_add_u32 s{sOffY}, s{sOffY}, s26")
    o(f"s_mul_i32 s{sM0[0]}, s{sW}, {G.NIX*1024}"); o(f"s_mul_i32 s{sM0[1]}, s{sW}, {G.NIY*1024}")
    G.setup(sW, 0, 7168, 0, [1, 2, 3, 4, 5, 6], [25, 26, 27, 28])
    o2 = dict(opt); o2["accum"] = 1
    gen_loop(G, sX, sY, sOffX, sOffY, sM0, sK, 32 * 7168, 64 * 1024, 8, "L_g1", opt=o2, sSt=[32, 33, 34])
    o("s_barrier")
    return G

def g1_epilogue(A, G, sF=sI, sD=sXb):
    o = A
    E = G.vF
    o("s_load_dwordx2 s[42:43], s[0:1], %d" % KA_B1)
    o("v_and_b32 v1, 15, v0"); o("v_lshrrev_b32 v2, 4, v0"); o("v_and_b32 v3, 1, v2"); o("v_lshrrev_b32 v2, 1, v2")
    o("v_lshlrev_b32 v4, 4, v3"); o("v_lshl_add_u32 v4, v2, 3, v4")
    o("v_lshl_or_b32 v2, v3, 1, v2")
    gfun(o, 3, 1, 5)
    o("v_xor_b32 v2, v2, v3"); o("v_lshl_add_u32 v2, v1, 2, v2"); o("v_lshlrev_b32 v2, 4, v2")
    o(f"s_lshl_b32 s25, s{sF}, 8"); o(f"s_and_b32 s26, s{sW}, 1"); o("s_lshl_b32 s26, s26, 7"); o("s_add_u32 s25, s25, s26")
    o("v_add_u32 v4, s25, v4"); o("v_lshlrev_b32 v4, 1, v4")
    BR = E + 64
    o("s_waitcnt lgkmcnt(0)")
    for jp in range(4): o(f"global_load_dwordx4 {v(BR+4*jp,4)}, v4, s[42:43] offset:{jp*64}")
    o("s_lshr_b32 s26, s25, 5"); o("s_lshl_b32 s26, s26, 16")
    o(f"s_lshl_b32 s27, s{sD}, 3"); o(f"s_lshr_b32 s28, s{sW}, 1"); o("s_lshl_b32 s28, s28, 2"); o("s_add_u32 s27, s27, s28"); o("s_lshl_b32 s27, s27, 10")
    o("s_add_u32 s26, s26, s27"); o(f"s_add_u32 s26, s26, {WS_U}")
    o(f"s_add_u32 s44, s{sWS}, s26"); o(f"s_addc_u32 s45, s{sWS+1}, 0")
    o("s_waitcnt vmcnt(0)")
    BF = E + 80
    c1 = -2.0 * math.sqrt(2.0 / math.pi) * LOG2E
    o(f"s_mov_b32 s46, {fbits(0.044715)}"); o(f"s_mov_b32 s47, {fbits(c1)}")
    k = 0
    for jp in range(4):
        unpack8(o, BF, BR + 4 * jp)
        for jy in range(4):
            T = E + 16 * (k % 3) + 4; k += 1
            ra, rb = G.accr(2 * jp, jy), G.accr(2 * jp + 1, jy)
            for r in range(4): o(f"v_accvgpr_read_b32 v{T+r}, a{ra+r}")
            for r in range(4): o(f"v_accvgpr_read_b32 v{T+4+r}, a{rb+r}")
            for r in range(4): o(f"v_permlane16_swap_b32 v{T+r}, v{T+4+r}")
            U = E + 48
            for e in range(8): o(f"v_add_f32 v{T+e}, v{T+e}, v{BF+e}")
            for e in range(8): o(f"v_mul_f32 v{U+e}, v{T+e}, v{T+e}")
            for e in range(8): o(f"v_fma_f32 v{U+e}, v{U+e}, s46, 1.0")
            for e in range(8): o(f"v_mul_f32 v{U+e}, v{U+e}, v{T+e}")
            for e in range(8): o(f"v_mul_f32 v{U+e}, s47, v{U+e}")
            for e in range(8): o(f"v_exp_f32 v{U+e}, v{U+e}")
            for e in range(8): o(f"v_add_f32 v{U+e}, 1.0, v{U+e}")
            for e in range(8): o(f"v_rcp_f32 v{U+e}, v{U+e}")
            for e in range(8): o(f"v_mul_f32 v{T+e}, v{T+e}, v{U+e}")
            P = T - 4
            for d in range(4): o(f"v_cvt_pk_bf16_f32 v{P+d}, v{T+2*d}, v{T+2*d+1}")
            o(f"v_add_u32 v5, {jp*65536 + jy*1024}, v2")
            o(f"global_store_dwordx4 v5, {v(P,4)}, s[44:45]")

def prefetch_task(A, ka, nbytes, tag):
    o = A
    per = nbytes // 128
    assert per % 4096 == 0 or True
    n4k = (per + 4095) // 4096
    o(f"s_load_dwordx2 s[40:41], s[0:1], {ka}"); o("s_waitcnt lgkmcnt(0)")
    srd(o, 8, 40, 0, nbytes)
    o(f"s_mul_i32 s20, s{sB}, {n4k*4096}"); o(f"s_lshl_b32 s21, s{sW}, 10"); o("s_add_u32 s20, s20, s21")
    o("v_lshlrev_b32 v2, 4, v0")
    o(f"s_mov_b32 s22, {n4k}")
    A.label(f"L_pf_{tag}")
    o("buffer_load_dwordx4 v[8:11], v2, s[8:11], s20 offen")
    o("s_add_u32 s20, s20, 4096"); o("s_sub_u32 s22, s22, 1"); o("s_cmp_lg_u32 s22, 0")
    o(f"s_cbranch_scc0 L_pf_{tag}_d")
    o("buffer_load_dwordx4 v[12:15], v2, s[8:11], s20 offen")
    o("s_add_u32 s20, s20, 4096"); o("s_sub_u32 s22, s22, 1"); o("s_cmp_lg_u32 s22, 0")
    o("s_waitcnt vmcnt(24)")
    o(f"s_cbranch_scc1 L_pf_{tag}")
    A.label(f"L_pf_{tag}_d")
    o("s_waitcnt vmcnt(0)")

def op_pass(A, ntok_tiles_log2, opt=None):
    opt = opt or {}
    o = A
    sX, sY = 8, 12
    o("s_load_dwordx2 s[40:41], s[0:1], %d" % KA_WO); o("s_load_dwordx2 s[46:47], s[0:1], %d" % KA_X)
    sDt, sTt = 48, 49
    o(f"s_lshr_b32 s{sDt}, s{sXb}, 1"); o(f"s_lshl_b32 s{sDt}, s{sDt}, 2"); o(f"s_and_b32 s20, s{sI}, 3"); o(f"s_add_u32 s{sDt}, s{sDt}, s20")
    o(f"s_and_b32 s{sTt}, s{sXb}, 1"); o(f"s_lshl_b32 s{sTt}, s{sTt}, 2"); o(f"s_lshr_b32 s20, s{sI}, 2"); o(f"s_add_u32 s{sTt}, s{sTt}, s20")
    o(f"s_cmp_ge_u32 s{sTt}, {1 << ntok_tiles_log2}"); o(f"s_cbranch_scc1 L_opp_skip{ntok_tiles_log2}")
    o(f"s_lshl_b32 s{sTt}, s{sTt}, 6"); o(f"s_add_u32 s{sTt}, s{sTt}, s{sTok}")
    o("s_waitcnt lgkmcnt(0)")
    srd(o, sX, 40, 0, 8 * MiB); srd(o, sY, sWS, WS_O, 16 * MiB)
    G = Gemm(A, 2, 2, False, "o")
    sOffX, sOffY, sM0, sK = 20, 21, [22, 23], 24
    o(f"s_lshl_b32 s{sOffX}, s{sDt}, 7"); o(f"s_lshl_b32 s{sOffY}, s{sTt}, 6")
    o(f"s_mul_i32 s{sM0[0]}, s{sW}, {G.NIX*1024}"); o(f"s_mul_i32 s{sM0[1]}, s{sW}, {G.NIY*1024}")
    G.setup(sW, 0, 2048, 0, [1, 2, 3, 4, 5, 6], [25, 26, 27, 28])
    gen_loop2(G, sX, sY, sOffX, sOffY, sM0, sK, 32 * 2048, 128 * 1024, 128, f"L_opp{ntok_tiles_log2}", K=opt.get("opK", 4), R=opt.get("opR", 16), sSt=[32, 33, 34])
    E = G.vF
    o("v_and_b32 v1, 15, v0"); o("v_lshrrev_b32 v2, 4, v0"); o("v_and_b32 v3, 1, v2"); o("v_lshrrev_b32 v2, 1, v2")
    o("v_lshlrev_b32 v3, 4, v3"); o("v_lshl_add_u32 v3, v2, 3, v3")
    o(f"s_lshl_b32 s25, s{sDt}, 6"); o(f"s_and_b32 s26, s{sW}, 1"); o("s_lshl_b32 s26, s26, 5"); o("s_add_u32 s25, s25, s26")
    o("v_add_u32 v3, s25, v3")
    o(f"s_lshr_b32 s26, s{sW}, 1"); o("s_lshl_b32 s26, s26, 5"); o(f"s_add_u32 s25, s{sTt}, s26")
    o("v_add_u32 v1, s25, v1")
    o("v_lshlrev_b32 v4, 11, v1"); o("v_lshl_add_u32 v4, v3, 1, v4")
    o("v_lshlrev_b32 v5, 2, v3")
    o(f"s_add_u32 s44, s{sWS}, {WS_MOD + 2*4096}"); o(f"s_addc_u32 s45, s{sWS+1}, 0")
    GA = E + 64; XR = E + 72
    o(f"global_load_dwordx4 {v(GA,4)}, v5, s[44:45]"); o(f"global_load_dwordx4 {v(GA+4,4)}, v5, s[44:45] offset:16")
    for jy in range(2):
        o(f"v_add_u32 v6, {jy*16*2048}, v4"); o(f"global_load_dwordx4 {v(XR+4*jy,4)}, v6, s[46:47]")
    o(f"s_add_u32 s44, s{sWS}, {WS_X1}"); o(f"s_addc_u32 s45, s{sWS+1}, 0")
    for jy in range(2):
        T = E + 16 * jy + 4
        for r in range(4): o(f"v_accvgpr_read_b32 v{T+r}, a{G.accr(0, jy)+r}")
        for r in range(4): o(f"v_accvgpr_read_b32 v{T+4+r}, a{G.accr(1, jy)+r}")
        for r in range(4): o(f"v_permlane16_swap_b32 v{T+r}, v{T+4+r}")
        if jy == 0: o("s_waitcnt vmcnt(0)")
        U = E + 48
        unpack8(o, U, XR + 4 * jy)
        for e in range(8): o(f"v_fma_f32 v{T+e}, v{T+e}, v{GA+e}, v{U+e}")
        P = T - 4
        for d in range(4): o(f"v_cvt_pk_bf16_f32 v{P+d}, v{T+2*d}, v{T+2*d+1}")
        o(f"v_add_u32 v6, {jy*16*2048}, v4")
        o(f"global_store_dwordx4 v6, {v(P,4)}, s[44:45] sc1")
    A.label(f"L_opp_skip{ntok_tiles_log2}")

def ln2_pass(A, nks_log2):
    o = A
    if nks_log2 == 3:
        o(f"s_lshr_b32 s{sCh}, s{sTok}, 8"); ln2_task(A); return
    for h in range(2):
        o(f"s_mov_b32 s76, s{sXb}"); o(f"s_mov_b32 s77, s{sI}"); o(f"s_mov_b32 s78, s{sCh}")
        o(f"s_lshl_b32 s79, s{sXb}, 1"); o(f"s_lshr_b32 s80, s{sI}, 3"); o("s_add_u32 s79, s79, s80")
        o(f"s_and_b32 s80, s{sI}, 7"); o("s_lshl_b32 s80, s80, 1"); o(f"s_add_u32 s{sI}, s80, {h}")
        o(f"s_and_b32 s{sXb}, s79, 7"); o("s_lshr_b32 s79, s79, 3"); o(f"s_lshr_b32 s{sCh}, s{sTok}, 8"); o(f"s_add_u32 s{sCh}, s{sCh}, s79")
        ln2_task(A)
        o(f"s_mov_b32 s{sXb}, s76"); o(f"s_mov_b32 s{sI}, s77"); o(f"s_mov_b32 s{sCh}, s78")
        if h == 0: o("s_barrier")

def g1_pass(A, opt, nit, lab):
    o = A
    sX, sY = 8, 12
    o("s_load_dwordx2 s[40:41], s[0:1], %d" % KA_W1); o("s_waitcnt lgkmcnt(0)")
    srd(o, sX, 40, 0, 2048 * 7168); srd(o, sY, sWS, WS_H2T, 4 * MiB)
    o(f"s_add_u32 s26, s{sTok}, {32*nit}"); o(f"s_lshl_b32 s{sY+2}, s26, 11")
    o(f"s_mul_i32 s{sX+2}, s26, 7168")
    G = Gemm(A, 8, 4, False, "g", accbase=128)
    sOffX, sOffY, sM0, sK = 20, 21, [22, 23], 24
    o(f"s_mul_i32 s{sOffX}, s{sTok}, 7168"); o(f"s_lshl_b32 s26, s{sFt}, 9"); o(f"s_add_u32 s{sOffX}, s{sOffX}, s26")
    o(f"s_lshl_b32 s{sOffY}, s{sTok}, 11"); o(f"s_lshl_b32 s26, s{sDtG}, 13"); o(f"s_add_u32 s{sOffY}, s{sOffY}, s26")
    o(f"s_mul_i32 s{sM0[0]}, s{sW}, {G.NIX*1024}"); o(f"s_mul_i32 s{sM0[1]}, s{sW}, {G.NIY*1024}")
    G.setup(sW, 0, 7168, 0, [1, 2, 3, 4, 5, 6], [25, 26, 27, 28])
    o2 = dict(opt); o2["accum"] = 1; o2["S"] = 5
    gen_loop(G, sX, sY, sOffX, sOffY, sM0, sK, 32 * 7168, 64 * 1024, nit, lab, opt=o2, sSt=[32, 33, 34])
    o("s_barrier")
    return G

def fast_check(A, tag):
    o = A
    LB = 131072 - 64
    o(f"s_cmp_lg_u32 s{sW}, 0"); o(f"s_cbranch_scc1 L_fc_{tag}_w")
    o("s_mov_b64 exec, 0xff"); o("v_lshlrev_b32 v1, 2, v0"); o("s_mov_b32 s13, 0x200000")
    A.label(f"L_fc_{tag}_p")
    o(f"global_load_dword v4, v1, {s(sDBG,2)} sc1"); o("s_waitcnt vmcnt(0)")
    o("v_mov_b32 v5, v4")
    o("v_add_u32_dpp v5, v5, v5 quad_perm:[1,0,3,2] row_mask:0xf bank_mask:0xf")
    o("v_add_u32_dpp v5, v5, v5 quad_perm:[2,3,0,1] row_mask:0xf bank_mask:0xf")
    o("v_add_u32_dpp v5, v5, v5 row_half_mirror row_mask:0xf bank_mask:0xf")
    o("v_readfirstlane_b32 s14, v5")
    o("s_cmp_ge_u32 s14, 256"); o(f"s_cbranch_scc1 L_fc_{tag}_a")
    o("s_sleep 8"); o("s_sub_u32 s13, s13, 1"); o(f"s_cbranch_scc0 L_fc_{tag}_p")
    A.label(f"L_fc_{tag}_a")
    o("v_cmp_ne_u32 vcc, 32, v4"); o("s_nop 1"); o("s_cmp_eq_u64 vcc, 0"); o("s_cselect_b32 s15, 1, 0")
    o("s_mov_b64 exec, 1"); o("v_mov_b32 v6, s15"); o(f"v_mov_b32 v1, {LB}"); o("ds_write_b32 v1, v6"); o("s_waitcnt lgkmcnt(0)"); o("s_mov_b64 exec, -1")
    A.label(f"L_fc_{tag}_w")
    o("s_barrier")
    o(f"v_mov_b32 v1, {LB}"); o("ds_read_b32 v6, v1"); o("s_waitcnt lgkmcnt(0)"); o("v_readfirstlane_b32 s15, v6")
    o("s_barrier")

WS_MODP2 = 128 * 1024
CNT_FILL2 = 43520
def mod_half(A):
    o = A
    o("s_mov_b64 s[8:9], s[76:77]")
    o(f"s_lshr_b32 s12, s{sB}, 6"); o("s_lshl_b32 s12, s12, 9"); o(f"s_lshl_b32 s13, s{sW}, 7"); o("s_add_u32 s12, s12, s13")
    o("v_lshrrev_b32 v5, 2, v0"); o("v_add_u32 v5, s12, v5"); o("v_lshlrev_b32 v6, 2, v5")
    o("s_mov_b32 s13, 12288"); o("v_mul_lo_u32 v7, v5, s13"); o("v_and_b32 v26, 3, v0"); o("v_lshl_add_u32 v7, v26, 4, v7")
    o(f"s_and_b32 s12, s{sB}, 63"); o("s_lshl_b32 s12, s12, 6"); o("v_add_u32 v7, s12, v7")
    W = 32
    for it in range(8):
        o(f"global_load_dwordx4 {v(W+4*it,4)}, v7, s[8:9]"); o(f"v_add_u32 v7, {16*12288}, v7")
    return W

def mod_half_finish(A, W, younger):
    o = A
    Cc, AC = 64, 72
    for it in range(8): o(f"ds_read_b32 v{Cc+it}, v6 offset:{it*64}")
    for e in range(8): o(f"v_mov_b32 v{AC+e}, 0")
    o("s_waitcnt lgkmcnt(0)")
    for it in range(8):
        o(f"s_waitcnt vmcnt({7-it+younger})")
        for d in range(4):
            o(f"v_lshlrev_b32 v27, 16, v{W+4*it+d}"); o(f"v_and_b32 v28, 0xffff0000, v{W+4*it+d}")
            o(f"v_fmac_f32 v{AC+2*d}, v27, v{Cc+it}"); o(f"v_fmac_f32 v{AC+2*d+1}, v28, v{Cc+it}")
    for e in range(8):
        x = AC + e
        o(f"v_add_f32_dpp v{x}, v{x}, v{x} row_ror:4 row_mask:0xf bank_mask:0xf")
        o(f"v_add_f32_dpp v{x}, v{x}, v{x} row_ror:8 row_mask:0xf bank_mask:0xf")
        for sw in ("16", "32"):
            o(f"v_mov_b32 v27, v{x}"); o(f"v_permlane{sw}_swap_b32 v{x}, v27"); o(f"v_add_f32 v{x}, v{x}, v27")
    o(f"s_lshl_b32 s12, s{sW}, 7"); o("v_lshlrev_b32 v5, 5, v26"); o("v_add_u32 v5, s12, v5")
    o("s_mov_b64 exec, 0xf")
    o(f"ds_write_b128 v5, {v(AC,4)} offset:4096"); o(f"ds_write_b128 v5, {v(AC+4,4)} offset:4112")
    o("s_mov_b64 exec, -1")
    o("s_waitcnt lgkmcnt(0)"); o("s_barrier")
    o(f"s_cmp_lg_u32 s{sW}, 0"); o("s_cbranch_scc1 L_mh_d")
    o("v_lshlrev_b32 v5, 2, v0"); o("s_mov_b64 exec, 0xffffffff")
    for w in range(4): o(f"ds_read_b32 v{32+w}, v5 offset:{4096+w*128}")
    o("s_waitcnt lgkmcnt(0)")
    o("v_add_f32 v32, v32, v33"); o("v_add_f32 v34, v34, v35"); o("v_add_f32 v32, v32, v34")
    o(f"s_lshr_b32 s12, s{sB}, 6"); o("s_lshl_b32 s12, s12, 13"); o(f"s_and_b32 s13, s{sB}, 63"); o("s_lshl_b32 s13, s13, 7"); o("s_add_u32 s12, s12, s13"); o(f"s_add_u32 s12, s12, {WS_MODP2}")
    o("v_add_u32 v5, s12, v5")
    o(f"global_store_dword v5, v32, {s(sWS,2)} sc1")
    o("s_mov_b64 exec, -1")
    A.label("L_mh_d")

def ln1_pre(A):
    o = A
    o("s_mov_b64 s[16:17], s[78:79]")
    o("v_lshlrev_b32 v2, 4, v0")
    o(f"s_lshl_b32 s14, s{sB}, 4"); o(f"s_lshl_b32 s15, s{sW}, 2"); o("s_add_u32 s14, s14, s15"); o("s_lshl_b32 s15, s14, 11")
    o("s_add_u32 s16, s16, s15"); o("s_addc_u32 s17, s17, 0")
    for r in range(4):
        off = (r % 2) * 2048
        if r == 2: o("s_add_u32 s16, s16, 4096"); o("s_addc_u32 s17, s17, 0")
        o(f"global_load_dwordx4 {v(96+8*r,4)}, v2, s[16:17] offset:{off}"); o(f"global_load_dwordx4 {v(96+8*r+4,4)}, v2, s[16:17] offset:{off+1024}")

def ln1_stats(A):
    o = A
    X = [128, 144, 160, 176]
    for r in range(4):
        unpack8(o, X[r], 96 + 8 * r); unpack8(o, X[r] + 8, 96 + 8 * r + 4)
    ln_rows(o, X, 4, [4, 5], 1e-5)

def ln1_fin(A):
    o = A
    RAW = 96; X = [128, 144, 160, 176]
    o("v_lshlrev_b32 v3, 5, v0")
    SA, CA = 64, 80
    TT = {SA: 192, CA: 208}
    for dst, base in ((SA, 0), (CA, 4096)):
        for q in range(2):
            o(f"s_add_u32 s12, s{sWS}, {WS_MODP2 + q*8192 + base}"); o(f"s_addc_u32 s13, s{sWS+1}, 0")
            tgt = dst if q == 0 else TT[dst]
            for h in range(2):
                for k in range(2): o(f"global_load_dwordx4 {v(tgt+8*h+4*k,4)}, v3, s[12:13] offset:{h*2048+k*16} sc1")
    o(f"s_lshl_b32 s14, s{sB}, 4"); o(f"s_lshl_b32 s15, s{sW}, 2"); o("s_add_u32 s14, s14, s15")
    o("s_waitcnt vmcnt(0)")
    for dst in (SA, CA):
        for e in range(16): o(f"v_add_f32 v{dst+e}, v{dst+e}, v{TT[dst]+e}")
        for e in range(0, 16, 2):
            o(f"v_cvt_pk_bf16_f32 v6, v{dst+e}, v{dst+e+1}"); o(f"v_lshlrev_b32 v{dst+e}, 16, v6"); o(f"v_and_b32 v{dst+e+1}, 0xffff0000, v6")
    for e in range(16): o(f"v_add_f32 v{CA+e}, 1.0, v{CA+e}")
    for r in range(4):
        R0 = RAW + 8 * r
        for e in range(16): o(f"v_fma_f32 v{X[r]+e}, v{X[r]+e}, v{CA+e}, v{SA+e}")
        for h in range(2):
            for d in range(4): o(f"v_cvt_pk_bf16_f32 v{R0+4*h+d}, v{X[r]+8*h+2*d}, v{X[r]+8*h+2*d+1}")
        o(f"s_add_u32 s16, s14, {r}"); o("s_lshr_b32 s17, s16, 4"); o("s_and_b32 s16, s16, 15")
        o("s_lshr_b32 s18, s16, 2"); o("s_lshr_b32 s19, s18, 1"); o("s_and_b32 s18, s18, 1"); o("s_xor_b32 s18, s18, s19"); o("s_lshl_b32 s18, s18, 1"); o("s_or_b32 s18, s18, s19")
        o("v_and_b32 v4, 3, v0"); o("v_xor_b32 v4, s18, v4"); o("v_lshlrev_b32 v4, 4, v4")
        o("v_lshrrev_b32 v5, 2, v0"); o("v_lshl_add_u32 v4, v5, 17, v4")
        o("s_lshl_b32 s17, s17, 10"); o("s_lshl_b32 s16, s16, 6"); o("s_add_u32 s17, s17, s16"); o(f"s_add_u32 s17, s17, {WS_H}")
        o("v_add_u32 v4, s17, v4")
        o(f"global_store_dwordx4 v4, {v(R0,4)}, {s(sWS,2)} sc1")
        o(f"v_add_u32 v4, {16*131072}, v4")
        o(f"global_store_dwordx4 v4, {v(R0+4,4)}, {s(sWS,2)} sc1")

def gen_bulk(opt):
    A = Asm(); o = A
    bprof = opt.get("bprof")
    def bstamp(k, chunked=True):
        if not bprof: return
        o("s_memrealtime s[72:73]"); o("s_waitcnt lgkmcnt(0)")
        o(f"s_lshl_b32 s74, s{sB}, 10")
        if chunked:
            o(f"s_lshl_b32 s75, s{sCh}, 6"); o("s_add_u32 s74, s74, s75"); o(f"s_add_u32 s74, s74, 64")
        o(f"s_add_u32 s74, s74, {WS_PROF + 4*MiB + 0} + {k*4}")
        o("v_mov_b32 v250, s74"); o("v_mov_b32 v251, s72")
        o("s_mov_b64 exec, 1"); o(f"global_store_dword v250, v251, {s(sWS,2)}"); o("s_mov_b64 exec, -1")
    o(f"s_load_dwordx2 {s(sWS,2)}, s[0:1], {KA_WS}")
    o(f"s_load_dwordx2 s[76:77], s[0:1], {KA_WMOD}"); o(f"s_load_dwordx2 s[78:79], s[0:1], {KA_X}"); o(f"s_load_dwordx2 s[84:85], s[0:1], {KA_C}")
    o("s_waitcnt lgkmcnt(0)")
    o(f"s_add_u32 s{sCNT}, s{sWS}, {WS_CNT}"); o(f"s_addc_u32 s{sCNT+1}, s{sWS+1}, 0")
    o(f"s_cmp_eq_u32 s{sChk}, 0"); o("s_cbranch_scc0 L_cb"); o(f"s_add_u32 s{sCNT}, s{sCNT}, {SLOW_OFF}"); o(f"s_addc_u32 s{sCNT+1}, s{sCNT+1}, 0")
    A.label("L_cb")
    o(f"s_lshl_b32 s{sB}, s{sXb}, 4"); o(f"s_add_u32 s{sB}, s{sB}, s{sI}")
    o(f"s_mov_b32 s{sLim}, 0x400000")
    bstamp(0, False)
    ST2 = opt.get("st2")
    if ST2:
        W_ = mod_half(A)
        ln1_pre(A)
        silu_to_lds(A, pre=84)
        mod_half_finish(A, W_, 0)
        ln1_stats(A)
        o(f"s_cmp_eq_u32 s{sChk}, 0"); o("s_cbranch_scc1 L_nochk")
        fast_check(A, "b")
        o("s_cmp_eq_u32 s15, 0"); o("s_cbranch_scc1 M_slow")
        A.label("L_nochk")
        signal(A, CNT_MODA, "m1")
        bstamp(1, False)
        wait_cnt(A, CNT_MODA, 128, "ma")
        bstamp(2, False)
        ln1_fin(A)
        o(f"s_lshr_b32 s{sCntOff}, s{sB}, 4"); o(f"s_lshl_b32 s{sCntOff}, s{sCntOff}, 7")
        signal(A, CNT_LN1, "l1", off_s=sCntOff)
    else:
        silu_to_lds(A)
        o(f"s_lshl_b32 s{sCt}, s{sB}, 5")
        mod_task(A, sCt, "a")
        o(f"s_cmp_eq_u32 s{sChk}, 0"); o("s_cbranch_scc1 L_nochk")
        fast_check(A, "b")
        o("s_cmp_eq_u32 s15, 0"); o("s_cbranch_scc1 M_slow")
        A.label("L_nochk")
        o(f"s_cmp_lt_u32 s{sB}, 64"); o(f"s_cselect_b32 s{sCntOff}, {CNT_MODA}, s{sCntOff}"); o(f"s_mov_b32 s44, {CNT_MODB}"); o(f"s_cselect_b32 s{sCntOff}, s{sCntOff}, s44")
        signal(A, 0, "m1", off_s=sCntOff)
        bstamp(1, False)
        wait_cnt(A, CNT_MODA, 64, "ma")
        bstamp(2, False)
        ln1_task(A)
        o(f"s_lshr_b32 s{sCntOff}, s{sB}, 4"); o(f"s_lshl_b32 s{sCntOff}, s{sCntOff}, 7")
        signal(A, CNT_LN1, "l1", off_s=sCntOff)
    bstamp(3, False)
    srd_h = lambda: srd(o, 12, sWS, WS_H, 4 * MiB)
    o(f"s_mov_b32 s{sRound}, 0")
    A.label("L_task")
    t0, t1, t2 = 44, 45, 46
    o(f"s_lshl_b32 s{t0}, s{sXb}, 2"); o(f"s_and_b32 s{t1}, s{sI}, 3"); o(f"s_add_u32 s{t0}, s{t0}, s{t1}"); o(f"s_add_u32 s{t0}, s{t0}, 16")
    o(f"s_lshl_b32 s{t1}, s{sXb}, 1"); o(f"s_and_b32 s{t2}, s{sI}, 1"); o(f"s_add_u32 s{t1}, s{t1}, s{t2}")
    o(f"s_lshr_b32 s{t2}, s{sI}, 2")
    o(f"s_cmp_eq_u32 s{sRound}, 0"); o("s_cbranch_scc0 L_r1")
    o(f"s_mov_b32 s{sCt}, s{t0}"); o(f"s_lshl_b32 s{sTok}, s{t2}, 6"); o("s_branch L_dec")
    A.label("L_r1")
    if opt.get("thr"):
        NA = opt["thr"]
        o(f"s_cmp_ge_u32 s{sI}, {NA}"); o("s_cbranch_scc1 L_phase3")
        o(f"s_sub_u32 s{t0}, s{sRound}, 1"); o(f"s_mul_i32 s{t0}, s{t0}, {8*NA}"); o(f"s_mul_i32 s{t1}, s{sXb}, {NA}"); o(f"s_add_u32 s{t0}, s{t0}, s{t1}"); o(f"s_add_u32 s{t0}, s{t0}, s{sI}")
        o(f"s_cmp_ge_u32 s{t0}, 352"); o("s_cbranch_scc1 L_phase3")
        o(f"s_cmp_lt_u32 s{t0}, 224"); o("s_cbranch_scc0 L_thq")
        o(f"s_and_b32 s{sCt}, s{t0}, 31"); o(f"s_add_u32 s{sCt}, s{sCt}, 16"); o(f"s_lshr_b32 s{sTok}, s{t0}, 5"); o(f"s_add_u32 s{sTok}, s{sTok}, 1"); o(f"s_lshl_b32 s{sTok}, s{sTok}, 8"); o("s_branch L_dec")
        A.label("L_thq")
        o(f"s_sub_u32 s{t0}, s{t0}, 224"); o(f"s_and_b32 s{sCt}, s{t0}, 15"); o(f"s_lshr_b32 s{sTok}, s{t0}, 4"); o(f"s_lshl_b32 s{sTok}, s{sTok}, 8")
    else:
        o(f"s_cmp_eq_u32 s{sRound}, 1"); o("s_cbranch_scc0 L_r2")
        o(f"s_mov_b32 s{sCt}, s{t0}"); o(f"s_add_u32 s{sTok}, s{t2}, 1"); o(f"s_lshl_b32 s{sTok}, s{sTok}, 8"); o("s_branch L_dec")
        A.label("L_r2")
        o(f"s_cmp_eq_u32 s{sRound}, 2"); o("s_cbranch_scc0 L_r3")
        o(f"s_cmp_lt_u32 s{sI}, 12"); o("s_cbranch_scc0 L_r2q")
        o(f"s_mov_b32 s{sCt}, s{t0}"); o(f"s_add_u32 s{sTok}, s{t2}, 5"); o(f"s_lshl_b32 s{sTok}, s{sTok}, 8"); o("s_branch L_dec")
        A.label("L_r2q")
        o(f"s_mov_b32 s{sCt}, s{t1}"); o(f"s_sub_u32 s{sTok}, s{sI}, 12"); o(f"s_lshr_b32 s{sTok}, s{sTok}, 1"); o(f"s_lshl_b32 s{sTok}, s{sTok}, 8"); o("s_branch L_dec")
        A.label("L_r3")
        o(f"s_cmp_eq_u32 s{sRound}, 3"); o("s_cbranch_scc0 L_phase3")
        o(f"s_cmp_lt_u32 s{sI}, 12"); o("s_cbranch_scc0 L_phase3")
        o(f"s_mov_b32 s{sCt}, s{t1}"); o(f"s_lshr_b32 s{sTok}, s{sI}, 1"); o(f"s_add_u32 s{sTok}, s{sTok}, 2"); o(f"s_lshl_b32 s{sTok}, s{sTok}, 8")
    A.label("L_dec")
    o(f"s_lshr_b32 s{sCntOff}, s{sTok}, 8"); o(f"s_lshl_b32 s{sCntOff}, s{sCntOff}, 7")
    wait_cnt(A, CNT_LN1, 16, "l1", off_s=sCntOff)
    o(f"s_lshr_b32 s{t0}, s{sTok}, 8")
    o(f"s_lshl_b32 s{t1}, s{t0}, 3"); o(f"s_and_b32 s{t2}, s{sCt}, 15"); o(f"s_lshr_b32 s{t2}, s{t2}, 1"); o(f"s_add_u32 s{t1}, s{t1}, s{t2}"); o(f"s_lshl_b32 s{t1}, s{t1}, 7")
    o(f"s_lshl_b32 s{t0}, s{t0}, 7"); o(f"s_add_u32 s{t0}, s{t0}, {CNT_Q}")
    o(f"s_cmp_lt_u32 s{sCt}, 16"); o(f"s_cselect_b32 s{sCntOff}, s{t0}, s{t1}")
    o(f"s_lshr_b32 s{t0}, s{sCt}, 4"); o(f"s_lshl_b32 s{t1}, s{t0}, 3")
    o(f"s_add_u32 s40, s0, s{t1}"); o(f"s_addc_u32 s41, s1, 0")
    o(f"s_load_dwordx2 s[40:41], s[40:41], {KA_WQ}")
    o(f"s_lshl_b32 s{t1}, s{t0}, 24"); o(f"s_add_u32 s{t1}, s{t1}, {WS_Q}")
    o(f"s_add_u32 s16, s{sWS}, s{t1}"); o(f"s_addc_u32 s17, s{sWS+1}, 0"); o("s_and_b32 s17, s17, 0xffff")
    o(f"s_mov_b32 s18, {16*MiB}"); o("s_mov_b32 s19, 0x00020000")
    srd_h()
    o("s_waitcnt lgkmcnt(0)")
    srd(o, 8, 40, 0, 8 * MiB)
    o(f"s_cmp_eq_u32 s{sRound}, 0"); o("s_cbranch_scc1 L_small")
    o(f"s_cmp_ge_u32 s{sCt}, 32"); o("s_cbranch_scc1 L_bigv")
    qkv_tile(A, 8, False, "L_gA", sW, sCt, sTok, opt, None); o("s_branch L_sig")
    A.label("L_bigv")
    qkv_tile(A, 8, True, "L_gB", sW, sCt, sTok, opt, None); o("s_branch L_sig")
    A.label("L_small")
    osm = dict(opt); osm["S"] = 6
    o(f"s_cmp_ge_u32 s{sCt}, 32"); o("s_cbranch_scc1 L_smallv")
    qkv_tile(A, 2, False, "L_gC", sW, sCt, sTok, osm, None); o("s_branch L_sig")
    A.label("L_smallv")
    qkv_tile(A, 2, True, "L_gD", sW, sCt, sTok, osm, None)
    A.label("L_sig")
    signal(A, 0, "t", off_s=sCntOff)
    if ST2:
        o(f"s_cmp_lg_u32 s{sRound}, 0"); o("s_cbranch_scc1 L_nolate")
        o(f"s_lshl_b32 s12, s{sW}, 10"); o("v_lshlrev_b32 v3, 4, v0"); o("v_add_u32 v3, s12, v3")
        for r in range(4): o(f"v_mov_b32 v{8+r}, -1")
        o(f"s_mul_i32 s12, s{sB}, {7*MiB//128}"); o(f"s_add_u32 s12, s12, {WS_PARTF + MiB}")
        o(f"s_add_u32 s14, s{sWS}, s12"); o(f"s_addc_u32 s15, s{sWS+1}, 0")
        for k in range(14):
            o("global_store_dwordx4 v3, v[8:11], s[14:15] sc1"); o("s_add_u32 s14, s14, 4096"); o("s_addc_u32 s15, s15, 0")
        signal(A, CNT_FILL2, "f2")
        A.label("L_nolate")
    if bprof:
        o("s_memrealtime s[72:73]"); o("s_waitcnt lgkmcnt(0)")
        o(f"s_lshl_b32 s74, s{sB}, 10"); o(f"s_lshl_b32 s75, s{sRound}, 2"); o("s_add_u32 s74, s74, s75"); o(f"s_add_u32 s74, s74, {WS_PROF + 4*MiB + 16}")
        o("v_mov_b32 v250, s74"); o("v_mov_b32 v251, s72")
        o("s_mov_b64 exec, 1"); o(f"global_store_dword v250, v251, {s(sWS,2)}"); o("s_mov_b64 exec, -1")
    o(f"s_add_u32 s{sRound}, s{sRound}, 1")
    o("s_branch L_task")
    A.label("L_phase3")
    if not opt.get("st2"): o(f"s_cmp_ge_u32 s{sB}, 64"); o("s_cbranch_scc1 L_nomod2")
    silu_to_lds(A)
    o(f"s_lshl_b32 s{sCt}, s{sB}, 5"); o(f"s_add_u32 s{sCt}, s{sCt}, {2048 if opt.get('st2') else 4096}")
    mod_task(A, sCt, "b")
    signal(A, CNT_MODC, "m2")
    A.label("L_nomod2")
    if opt.get("late3"):
        wait_cnt(A, CNT_Q + (opt["late3"] - 1) * 128, 16, "lq", sleep=60)
    if opt.get("wpf", 1) == 1:
        prefetch_task(A, KA_WO, 8 * MiB, "wo"); prefetch_task(A, KA_W1, 2048 * 7168, "w1"); prefetch_task(A, KA_W2, 3584 * 4096, "w2")
    if opt.get("wpf", 1) == 2:
        prefetch_task(A, KA_W2, 3584 * 4096, "w2")
    if opt.get("sent"):
        o(f"s_lshl_b32 s12, s{sW}, 10"); o("v_lshlrev_b32 v3, 4, v0"); o("v_add_u32 v3, s12, v3")
        for r in range(4): o(f"v_mov_b32 v{8+r}, -1")
        o(f"s_lshl_b32 s12, s{sB}, 17"); o(f"s_add_u32 s12, s12, {128 * MiB}")
        o(f"s_add_u32 s14, s{sWS}, s12"); o(f"s_addc_u32 s15, s{sWS+1}, 0")
        o("s_mov_b32 s16, 32")
        A.label("L_sfill")
        o("global_store_dwordx4 v3, v[8:11], s[14:15]" + (" sc1" if opt.get("one") else "")); o("s_add_u32 s14, s14, 4096"); o("s_addc_u32 s15, s15, 0")
        o("s_sub_u32 s16, s16, 1"); o("s_cmp_lg_u32 s16, 0"); o("s_cbranch_scc1 L_sfill")
        o(f"s_cmp_ge_u32 s{sB}, 64"); o("s_cbranch_scc1 L_sfill2")
        o(f"s_lshl_b32 s12, s{sB}, 12"); o(f"s_add_u32 s12, s12, {144 * MiB}")
        o(f"s_add_u32 s14, s{sWS}, s12"); o(f"s_addc_u32 s15, s{sWS+1}, 0")
        o("global_store_dwordx4 v3, v[8:11], s[14:15]" + (" sc1" if opt.get("one") else ""))
        A.label("L_sfill2")
        o("s_waitcnt vmcnt(0)")
    P3 = opt.get("p3", 4)
    if P3 == 4:
        for r in range(128): o(f"v_accvgpr_write_b32 a{128+r}, 0")
    if P3 == 0:
        o("s_branch L_bulk_done")
    if P3 == 5:
        passes = opt.get("passes", [(0, 2), (2, 2), (4, 2), (6, 1), (7, 1)])
        for r in range(128): o(f"v_accvgpr_write_b32 a{128+r}, 0")
        o(f"s_lshr_b32 s{sDtG}, s{sXb}, 1"); o(f"s_lshl_b32 s{sDtG}, s{sDtG}, 1"); o(f"s_and_b32 s44, s{sI}, 1"); o(f"s_add_u32 s{sDtG}, s{sDtG}, s44")
        o(f"s_and_b32 s{sFt}, s{sXb}, 1"); o(f"s_lshl_b32 s{sFt}, s{sFt}, 3"); o(f"s_lshr_b32 s44, s{sI}, 1"); o(f"s_add_u32 s{sFt}, s{sFt}, s44")
        sPass, sPn = 83, 84
        def att_chunk(tag):
            o(f"s_lshl_b32 s{sCntOff}, s{sCh}, 3"); o(f"s_add_u32 s{sCntOff}, s{sCntOff}, s{sXb}"); o(f"s_lshl_b32 s{sCntOff}, s{sCntOff}, 7")
            wait_cnt(A, CNT_REC, 32, f"rec{tag}", off_s=sCntOff, sleep=8)
            o(f"s_lshl_b32 s{sCntOff}, s{sCh}, 7")
            wait_cnt(A, CNT_Q, 16, f"q{tag}", off_s=sCntOff)
            o(f"s_lshl_b32 s56, s{sB}, 2"); o(f"s_add_u32 s56, s56, s{sW}")
            o(f"s_lshr_b32 s57, s56, 6"); o(f"s_lshl_b32 s58, s{sCh}, 3"); o("s_add_u32 s57, s57, s58")
            o("s_lshr_b32 s58, s56, 1"); o("s_and_b32 s58, s58, 31"); o("s_and_b32 s59, s56, 1")
            attn_body(A, sWS, 57, 58, 59, 0, f"L_at{tag}", sc1=True)
        def rest(nch, tag):
            o(f"s_lshl_b32 s{sCntOff}, s{sPass}, 7")
            signal(A, CNT_ATT, f"a{tag}", off_s=sCntOff)
            wait_cnt(A, CNT_ATT, 128, f"a{tag}", off_s=sCntOff, sleep=4)
            bstamp(2)
            op_pass(A, 2 if nch == 1 else 3, opt)
            signal(A, CNT_OP, f"o{tag}", off_s=sCntOff)
            bstamp(3)
            wait_cnt(A, CNT_OP, 128, f"o{tag}", off_s=sCntOff, sleep=4)
            bstamp(4)
            ln2_pass(A, 3 if nch == 1 else 4)
            signal(A, CNT_LN, f"n{tag}", off_s=sCntOff)
            bstamp(5)
            o(f"s_cmp_ge_u32 s{sFt}, 14"); o(f"s_cbranch_scc1 L_nog1{tag}")
            wait_cnt(A, CNT_LN, 128, f"n{tag}", off_s=sCntOff, sleep=4)
            bstamp(6)
            G_ = g1_pass(A, opt, 8 * nch, f"L_g1{tag}")
            bstamp(7)
            A.label(f"L_nog1{tag}")
            return G_
        wait_cnt(A, CNT_MODB, 64, "mb5"); wait_cnt(A, CNT_MODC, 64, "mc5")
        nd = sum(1 for p in passes if p[1] == 2); ns = sum(1 for p in passes if p[1] == 1)
        o(f"s_mov_b32 s{sPass}, 0")
        A.label("L_dpass")
        o(f"s_lshl_b32 s{sCh}, s{sPass}, 1"); att_chunk("A"); bstamp(0)
        o(f"s_lshl_b32 s{sCh}, s{sPass}, 1"); o(f"s_add_u32 s{sCh}, s{sCh}, 1"); att_chunk("B"); bstamp(1)
        o(f"s_lshl_b32 s{sTok}, s{sPass}, 9"); o(f"s_lshl_b32 s{sCh}, s{sPass}, 1")
        G = rest(2, "D")
        o(f"s_add_u32 s{sPass}, s{sPass}, 1"); o(f"s_cmp_lt_u32 s{sPass}, {nd}"); o("s_cbranch_scc1 L_dpass")
        if ns:
            A.label("L_spass")
            o(f"s_add_u32 s{sCh}, s{sPass}, {nd}"); att_chunk("C"); bstamp(1)
            o(f"s_add_u32 s{sCh}, s{sPass}, {nd}"); o(f"s_lshl_b32 s{sTok}, s{sCh}, 8")
            rest(1, "S")
            o(f"s_add_u32 s{sPass}, s{sPass}, 1"); o(f"s_cmp_lt_u32 s{sPass}, {nd+ns}"); o("s_cbranch_scc1 L_spass")
        o(f"s_cmp_ge_u32 s{sFt}, 14"); o("s_cbranch_scc1 L_bulk_done")
        g1_epilogue(A, G, sFt, sDtG)
        o("s_branch L_bulk_done")
    if P3 not in (0, 5):
        o(f"s_mov_b32 s{sCh}, 0")
        A.label("L_chunk")
        if P3 >= 4:
            o(f"s_lshl_b32 s{sCntOff}, s{sCh}, 10"); o(f"s_add_u32 s{sCntOff}, s{sCntOff}, {7*128}")
            wait_cnt(A, CNT_REC, 32, "rec", off_s=sCntOff)
        else:
            if opt.get("aspread", 1):
                o(f"s_lshr_b32 s55, s{sI}, 1")
            else:
                o(f"s_mov_b32 s55, s{sXb}")
            o(f"s_lshl_b32 s{sCntOff}, s{sCh}, 3"); o(f"s_add_u32 s{sCntOff}, s{sCntOff}, s55"); o(f"s_lshl_b32 s{sCntOff}, s{sCntOff}, 7")
            if opt.get("relay"):
                o(f"s_cmp_lg_u32 s{sI}, 0"); o("s_cbranch_scc1 L_rly_w")
                wait_cnt(A, CNT_REC, 32, "rec", off_s=sCntOff, sleep=opt["relay"])
                signal(A, CNT_RLY, "rly", off_s=sCntOff)
                o("s_branch L_rly_d")
                A.label("L_rly_w")
                wait_cnt(A, CNT_RLY, 1, "rlw", off_s=sCntOff, sleep=16)
                A.label("L_rly_d")
            else:
                wait_cnt(A, CNT_REC, 32, "rec", off_s=sCntOff, sleep=opt.get("slp", 16))
        o(f"s_lshl_b32 s{sCntOff}, s{sCh}, 7")
        wait_cnt(A, CNT_Q, 16, "q", off_s=sCntOff)
        bstamp(0)
        if P3 >= 4 or not opt.get("aspread", 1):
            o(f"s_lshl_b32 s56, s{sB}, 2"); o(f"s_add_u32 s56, s56, s{sW}")
            o(f"s_lshr_b32 s57, s56, 6"); o(f"s_lshl_b32 s58, s{sCh}, 3"); o("s_add_u32 s57, s57, s58")
        else:
            o(f"s_lshl_b32 s56, s{sXb}, 1"); o(f"s_and_b32 s57, s{sI}, 1"); o("s_add_u32 s56, s56, s57"); o("s_lshl_b32 s56, s56, 2"); o(f"s_add_u32 s56, s56, s{sW}")
            o(f"s_lshr_b32 s57, s{sI}, 1"); o(f"s_lshl_b32 s58, s{sCh}, 3"); o("s_add_u32 s57, s57, s58")
        o("s_lshr_b32 s58, s56, 1"); o("s_and_b32 s58, s58, 31"); o("s_and_b32 s59, s56, 1")
        if opt.get("aser"):
            o("s_mov_b32 s54, 0")
            A.label("L_aser")
            o(f"s_cmp_lg_u32 s{sW}, s54"); o("s_cbranch_scc1 L_aser_s")
        attn_body(A, sWS, 57, 58, 59, 0, "L_at", sc1=(P3 >= 4), nt=opt.get("ant", 0))
        if opt.get("aser"):
            o("s_waitcnt vmcnt(0)")
            A.label("L_aser_s")
            o("s_barrier")
            o("s_add_u32 s54, s54, 1"); o("s_cmp_lt_u32 s54, 4"); o("s_cbranch_scc1 L_aser")
        if P3 >= 4:
            signal(A, CNT_ATT, "a", off_s=sCntOff)
            bstamp(1)
            wait_cnt(A, CNT_ATT, 128, "a", off_s=sCntOff)
            wait_cnt(A, CNT_MODB, 64, "mb")
            bstamp(2)
            op_task(A)
            signal(A, CNT_OP, "o", off_s=sCntOff)
            bstamp(3)
            wait_cnt(A, CNT_OP, 128, "o", off_s=sCntOff)
            wait_cnt(A, CNT_MODC, 64, "mc")
            bstamp(4)
            ln2_task(A)
            signal(A, CNT_LN, "n", off_s=sCntOff)
            bstamp(5)
            o(f"s_cmp_ge_u32 s{sI}, 14"); o("s_cbranch_scc1 L_nog1")
            wait_cnt(A, CNT_LN, 128, "n", off_s=sCntOff)
            bstamp(6)
            G = g1_partial(A, opt)
            bstamp(7)
            A.label("L_nog1")
            o(f"s_add_u32 s{sCh}, s{sCh}, 1"); o(f"s_cmp_lt_u32 s{sCh}, 8"); o("s_cbranch_scc1 L_chunk")
            o(f"s_cmp_ge_u32 s{sI}, 14"); o("s_cbranch_scc1 L_bulk_done")
            g1_epilogue(A, G)
        else:
            o("s_waitcnt vmcnt(0)")
            o(f"s_add_u32 s{sCh}, s{sCh}, 1"); o(f"s_cmp_lt_u32 s{sCh}, 8"); o("s_cbranch_scc1 L_chunk")
    A.label("L_bulk_done")
    o("s_waitcnt vmcnt(0)")
    if opt.get("one"):
        import k_tail
        k_tail.SENT = True
        o("s_barrier")
        o(f"s_add_u32 s{sCNT}, s{sWS}, {WS_CNT}"); o(f"s_addc_u32 s{sCNT+1}, s{sWS+1}, 0")
        signal(A, k_tail.CNT_BULK, "bk")
        o(f"s_cmp_eq_u32 s{sChk}, 0"); o("s_cbranch_scc0 L_one_c1"); o(f"s_add_u32 s{sCNT}, s{sCNT}, {SLOW_OFF}"); o(f"s_addc_u32 s{sCNT+1}, s{sCNT+1}, 0")
        A.label("L_one_c1")
        for c in range(8): wait_cnt(A, CNT_Q + c * 128, 16, f"oq{c}", sleep=opt.get("qs", 100))
        o(f"s_add_u32 s{sCNT}, s{sWS}, {WS_CNT}"); o(f"s_addc_u32 s{sCNT+1}, s{sWS+1}, 0")
        wait_cnt(A, k_tail.CNT_P58, 1, "p58", sleep=opt.get("ps", 100))
        A.raw(k_tail.gen_attn_early(opt["one"]))
        o("s_branch T_last")
    else:
        o("s_endpgm")
    return re.sub(r"\bL_", "B_L_", A.finish())

def gen_mega(name="mega_kernel", recopt=None, opt=None, force_slow=False, place=8):
    recopt = recopt or dict(E2_DEPTH=2, E2_SP=3, E2_DELAY=2)
    opt = opt or {"S": 4}
    A = Asm(); o = A
    o("s_cmp_ge_u32 s2, 256"); o("s_cbranch_scc1 M_end")
    o(f"s_load_dwordx2 {s(sDBG,2)}, s[0:1], {KA_DBG}")
    o(f"s_load_dwordx2 {s(sWS,2)}, s[0:1], {KA_WS}")
    o(f"s_load_dwordx2 s[10:11], s[0:1], {KA_MEM0}")
    if recopt.get("prof"): o("s_memrealtime s[92:93]")
    o("v_lshlrev_b32 v3, 4, v0")
    o("v_lshrrev_b32 v1, 6, v0"); o("v_and_b32 v0, 63, v0"); o(f"v_readfirstlane_b32 s{sW}, v1")
    o("s_getreg_b32 s4, hwreg(HW_REG_XCC_ID, 0, 4)"); o("s_and_b32 s4, s4, 7")
    for r in range(4): o(f"v_mov_b32 v{8+r}, -1")
    o("s_waitcnt lgkmcnt(0)")
    if opt.get("tlb"):
        st = opt["tlb"]
        o(f"s_cmp_lg_u32 s{sW}, 1"); o("s_cbranch_scc1 M_notlb")
        o(f"v_lshlrev_b32 v4, {st}, v0")
        srd(o, 16, sWS, 0, 144 * MiB)
        o("buffer_load_dword v40, v4, s[16:19], 0 offen")
        o(f"s_mov_b32 s20, {64 << st}"); o("buffer_load_dword v41, v4, s[16:19], s20 offen")
        for k, (ka, nb) in enumerate(((KA_X, 4 * MiB), (KA_WQ, 8 * MiB), (KA_WK, 8 * MiB), (KA_WV, 8 * MiB), (KA_WO, 8 * MiB), (KA_WMOD, 12 * MiB))):
            o(f"s_load_dwordx2 s[20:21], s[0:1], {ka}"); o("s_waitcnt lgkmcnt(0)")
            srd(o, 16, 20, 0, nb)
            o(f"buffer_load_dword v{42+k}, v4, s[16:19], 0 offen")
        A.label("M_notlb")
    o(f"s_lshl_b32 s12, s2, {12 if opt.get('st2') else 15}"); o(f"s_add_u32 s12, s12, {WS_PARTF}")
    o(f"s_add_u32 s14, s{sWS}, s12"); o(f"s_addc_u32 s15, s{sWS+1}, 0")
    for k in range(1 if opt.get('st2') else 8):
        o("global_store_dwordx4 v3, v[8:11], s[14:15] sc1"); o("s_add_u32 s14, s14, 4096"); o("s_addc_u32 s15, s15, 0")
    o("s_cmp_ge_u32 s2, 128"); o("s_cbranch_scc1 M_f2")
    o("s_lshl_b32 s12, s2, 12")
    o(f"s_add_u32 s13, s12, {WS_RQK}"); o(f"s_add_u32 s14, s{sWS}, s13"); o(f"s_addc_u32 s15, s{sWS+1}, 0")
    o("global_store_dwordx4 v3, v[8:11], s[14:15] sc1")
    o(f"s_add_u32 s13, s12, {WS_RMEM}"); o(f"s_add_u32 s14, s{sWS}, s13"); o(f"s_addc_u32 s15, s{sWS+1}, 0")
    o("s_cmp_lt_u32 s2, 32"); o("s_cbranch_scc1 M_img")
    o("global_store_dwordx4 v3, v[8:11], s[14:15] sc1"); o("s_branch M_f3")
    A.label("M_img")
    o(f"s_and_b32 s16, s2, 3"); o("s_lshl_b32 s16, s16, 2"); o(f"s_add_u32 s16, s16, s{sW}"); o("s_lshl_b32 s16, s16, 7")
    o("v_and_b32 v5, 7, v0"); o("v_lshlrev_b32 v5, 11, v5"); o("v_bfe_u32 v6, v0, 3, 1"); o("v_lshl_add_u32 v5, v6, 6, v5")
    o("v_lshrrev_b32 v6, 4, v0"); o("v_lshl_add_u32 v5, v6, 4, v5"); o("v_add_u32 v5, s16, v5")
    o("global_load_dwordx4 v[16:19], v5, s[10:11]"); o("s_waitcnt vmcnt(0)")
    o("global_store_dwordx4 v3, v[16:19], s[14:15] sc1"); o("s_branch M_f3")
    A.label("M_f2")
    o("s_cmp_ge_u32 s2, 192"); o("s_cbranch_scc1 M_f4")
    o("s_sub_u32 s12, s2, 128"); o("s_lshl_b32 s12, s12, 12")
    o(f"s_add_u32 s13, s12, {WS_RV}"); o(f"s_add_u32 s14, s{sWS}, s13"); o(f"s_addc_u32 s15, s{sWS+1}, 0")
    o("global_store_dwordx4 v3, v[8:11], s[14:15] sc1"); o("s_branch M_f3")
    A.label("M_f4")
    o("s_cmp_ge_u32 s2, 240"); o("s_cbranch_scc1 M_f3")
    o("s_sub_u32 s12, s2, 192"); o("s_lshl_b32 s12, s12, 12"); o(f"s_add_u32 s12, s12, {WS_CNT}")
    o(f"s_add_u32 s14, s{sWS}, s12"); o(f"s_addc_u32 s15, s{sWS+1}, 0")
    for r in range(4): o(f"v_mov_b32 v{8+r}, 0")
    o("global_store_dwordx4 v3, v[8:11], s[14:15] sc1")
    A.label("M_f3")
    o("s_waitcnt vmcnt(0)"); o("s_barrier")
    o(f"s_cmp_lg_u32 s{sW}, 0"); o("s_cbranch_scc1 M_w")
    o("s_lshl_b32 s12, s4, 2"); o("v_mov_b32 v1, s12"); o("v_mov_b32 v2, 1"); o("s_mov_b64 exec, 1")
    o(f"global_atomic_add v3, v1, v2, {s(sDBG,2)} sc0"); o("s_waitcnt vmcnt(0)")
    o("v_mov_b32 v1, 0"); o("ds_write_b32 v1, v3"); o("s_waitcnt lgkmcnt(0)"); o("s_mov_b64 exec, -1")
    A.label("M_w")
    o("s_barrier"); o("v_mov_b32 v1, 0"); o("ds_read_b32 v6, v1"); o("s_waitcnt lgkmcnt(0)"); o("v_readfirstlane_b32 s5, v6"); o("s_barrier")
    o(f"s_mov_b32 s{sChk}, 1")
    if force_slow:
        fast_check(A, "t"); o("s_branch M_slow")
    if place == 8:
        o("s_cmp_lt_u32 s5, 16"); o("s_cbranch_scc1 M_rec_fast")
        o("s_cmp_lt_u32 s5, 32"); o("s_cbranch_scc0 M_idle")
        o("s_sub_u32 s5, s5, 16"); o("s_branch M_bulk")
    else:
        o("s_cmp_lt_u32 s5, 32"); o("s_cbranch_scc0 M_idle")
        o("s_and_b32 s12, s4, 3"); o("s_lshl_b32 s12, s12, 1"); o("s_lshr_b32 s13, s5, 4"); o("s_add_u32 s12, s12, s13"); o("s_and_b32 s5, s5, 15")
        o("s_cmp_lt_u32 s4, 4"); o("s_mov_b32 s4, s12"); o("s_cbranch_scc1 M_rec_fast"); o("s_branch M_bulk")
    A.label("M_idle")
    fast_check(A, "i")
    A.label("M_slow")
    o(f"s_mov_b32 s{sChk}, 0")
    o("s_lshr_b32 s4, s2, 4"); o("s_and_b32 s4, s4, 7"); o("s_and_b32 s5, s2, 15")
    o("s_cmp_lt_u32 s2, 128"); o("s_cbranch_scc1 M_rec_slow")
    o("s_branch M_bulk")
    A.label("M_end"); o("s_endpgm")
    t = A.finish()
    t += "M_bulk:\n" + gen_bulk(opt)
    Ah = Asm(); fast_check(Ah, "r"); Ah("s_cmp_eq_u32 s15, 0"); Ah("s_cbranch_scc1 M_slow")
    hook = Ah.finish()
    one_ = None
    if opt.get("one"):
        import k_tail
        pstep = opt["one"] // 32 + 2
        one_ = dict(done=k_tail.CNT_DONE, p58=k_tail.CNT_P58, pstep=pstep)
        recopt = dict(recopt); recopt["KMSC1"] = 1
    pre = ""
    if opt.get("rwait"):
        Ap = Asm()
        fast_check(Ap, "p"); Ap("s_cmp_eq_u32 s15, 0"); Ap("s_cbranch_scc1 M_slow")
        Ap(f"s_load_dwordx2 {s(sWS,2)}, s[0:1], {KA_WS}"); Ap("s_waitcnt lgkmcnt(0)")
        Ap(f"s_add_u32 s{sCNT}, s{sWS}, {WS_CNT}"); Ap(f"s_addc_u32 s{sCNT+1}, s{sWS+1}, 0"); Ap(f"s_mov_b32 s{sLim}, 0x400000")
        wait_cnt(Ap, CNT_MODA if opt["rwait"] == 1 else CNT_LN1, 128 if opt["rwait"] == 1 else 16, "rp", sleep=8)
        pre = re.sub(r"\bL_", "RP_L_", Ap.finish())
    t += "M_rec_fast:\n" + pre + rec.gen_rec(embedded=True, pfx="RF_", fast=True, KVCHK=True, SIG=(opt.get("p3", 4) != 0), hook=hook, cntoff=0, ONE=one_, FILL2=(CNT_FILL2 if opt.get('st2') else None), **recopt)
    t += "M_rec_slow:\n" + rec.gen_rec(embedded=True, pfx="RS_", fast=False, KVCHK=True, SIG=(opt.get("p3", 4) != 0), hook=None, cntoff=SLOW_OFF, ONE=one_, FILL2=(CNT_FILL2 if opt.get('st2') else None), **recopt)
    if opt.get("one"):
        import k_tail
        k_tail.SENT = True
        t += k_tail.gen_tail_text(opt["one"])
    return kernel_head(name) + t + kernel_desc(name, 256, 256)
```

```python
from asmlib import *
from layout import *

NSTEPS = 64
SENT = 0xFFFFFFFF

def gen_rec(name="rec_kernel", embedded=False, pfx="", KVCHK=False, SIG=False, hook=None, cntoff=0, EARLY=False, FILL2=None, fast=True, prof=False, nsteps=NSTEPS, E1_EARLY=True, E2_DELAY=0, E3_DELAY=0, KV_FIRST=0, PF=1, PFE=0, REORD=0, FC=0, E3_SP=0, KVFIRST=0, KMSC1=0, ONE=None, VSP=2, RT=0, E1_AT=7, E3_SALU_FIRST=0, LAST_SHORT=1, NOK=0, NOV=0, E2F='sc1', X4=0, X4LIM=4, E2_DEPTH=3, E2_SP=0, EP=0, FIXKV=0):
    TIMER = "s_memrealtime" if RT else "s_memtime"
    A = Asm()
    o = A
    st_fast = "" if fast else " sc1"
    sWG = 2
    sW, sG, sJ, sHA, sC, sHead = 3, 4, 5, 6, 7, 8
    sWS = 10
    sT0, sT1, sT2, sT3 = 12, 13, 14, 15
    sPtr = 16
    sMEMc, sMEMn, sQK, sVR, sPART, sPART2, sKX, sKX2, sVX, sKM, sVM = 20, 22, 24, 26, 28, 30, 32, 34, 36, 38, 40
    sRq, sRv, sRp, sRm = 42, 44, 46, 48
    sStep, sSlot, sLim = 50, 51, 52
    sMaskQK, sMaskLo = 54, 56
    sSelV = 58
    sScale = 60
    sWQ, sWK, sWV, sWO, sDBG = 62, 64, 66, 68, 70
    sTs = 66
    sProf = 96
    vL = 0; vT = [1, 2, 3, 4, 5, 6, 7]
    vE3, vQKst, vVst, vVld, vPst, vPld, vMst, vKx, vL16, vKMst = 8, 9, 10, 11, 12, 13, 14, 15, 56, 57
    vA0, vA1, vAv0, vAv1 = 16, 20, 24, 28
    vSx, vSm = 32, 40
    vPx, vPmA, vPmB = 44, 48, 50
    vDelta = 52
    vNeg = 60
    vB = 64; vK = 128; vV = 160; vQ = 192; vQr = 200; vKm = 208; vKr = 216; vVm = 224
    vLdsM, vLdsO, vLdsV = 232, 233, 234
    vSent = 236
    vFlag = 57
    vX = 240
    vO = 64; vOb = 96
    vOo = [112, 116, 120, 124] + [160 + 4 * i for i in range(8)]
    LDS_MEM, LDS_O, LDS_V = 0, 16384, 32768

    if not embedded:
        o(f"s_cmp_ge_u32 s{sWG}, {256 if X4 else 128}")
        o("s_cbranch_scc1 L_rec_end")
        o(f"s_load_dwordx2 {s(sWQ,2)}, s[0:1], {KA_WQ}")
        o(f"s_load_dwordx2 {s(sWK,2)}, s[0:1], {KA_WK}")
        o(f"s_load_dwordx2 {s(sWV,2)}, s[0:1], {KA_WV}")
        o(f"s_load_dwordx2 {s(sWO,2)}, s[0:1], {KA_WO}")
        o(f"s_load_dwordx2 {s(sDBG,2)}, s[0:1], {KA_DBG}")
        o(f"s_load_dwordx2 {s(sWS,2)}, s[0:1], {KA_WS}")
        o(f"v_lshrrev_b32 v1, 6, v0")
        o(f"v_and_b32 v{vL}, 63, v0")
        o(f"v_readfirstlane_b32 s{sW}, v1")
        o(f"s_getreg_b32 s{sG}, hwreg(HW_REG_XCC_ID, 0, 4)")
        o("s_waitcnt lgkmcnt(0)")
        o(f"s_cmp_lg_u32 s{sW}, 0")
        o("s_cbranch_scc1 L_rec_noticket")
        o(f"s_lshl_b32 s{sT0}, s{sG}, 2")
        o(f"v_mov_b32 v1, s{sT0}")
        o("v_mov_b32 v2, 1")
        o("s_mov_b64 exec, 1")
        o(f"global_atomic_add v3, v1, v2, {s(sDBG,2)} sc0")
        o("s_waitcnt vmcnt(0)")
        o("v_mov_b32 v1, 0")
        o("ds_write_b32 v1, v3")
        o("s_waitcnt lgkmcnt(0)")
        o("s_mov_b64 exec, -1")
        A.label("L_rec_noticket")
        o("s_barrier")
        o("v_mov_b32 v1, 0")
        o("ds_read_b32 v3, v1")
        o("s_waitcnt lgkmcnt(0)")
        o(f"v_readfirstlane_b32 s{sJ}, v3")
        o("s_barrier")
        if X4:
            o(f"s_cmp_ge_u32 s{sG}, {X4LIM}"); o("s_cbranch_scc1 L_rec_end")
            o(f"s_sub_u32 s{sG}, s{sG}, {X4LIM-4}") if False else None
            o(f"s_lshl_b32 s{sG}, s{sG}, 1"); o(f"s_lshr_b32 s{sT0}, s{sJ}, 4"); o(f"s_add_u32 s{sG}, s{sG}, s{sT0}")
        o(f"s_and_b32 s{sJ}, s{sJ}, 15")
        o(f"s_and_b32 s{sG}, s{sG}, 7")
    else:
        o(f"s_load_dwordx2 {s(sWQ,2)}, s[0:1], {KA_WQ}")
        o(f"s_load_dwordx2 {s(sWK,2)}, s[0:1], {KA_WK}")
        o(f"s_load_dwordx2 {s(sWV,2)}, s[0:1], {KA_WV}")
        o(f"s_load_dwordx2 {s(sWO,2)}, s[0:1], {KA_WO}")
        o(f"s_load_dwordx2 {s(sWS,2)}, s[0:1], {KA_WS}")
        o("s_waitcnt lgkmcnt(0)")
    o(f"s_lshr_b32 s{sHA}, s{sJ}, 2")
    o(f"s_and_b32 s{sC}, s{sJ}, 3")
    o(f"s_lshl_b32 s{sHead}, s{sG}, 2")
    o(f"s_add_u32 s{sHead}, s{sHead}, s{sW}")
    vi, vg, vr = vT[0], vT[1], vT[2]
    o(f"v_and_b32 v{vi}, 15, v{vL}")
    o(f"v_lshrrev_b32 v{vg}, 4, v{vL}")
    o(f"v_and_b32 v{vr}, 7, v{vL}")
    o(f"v_lshlrev_b32 v{vL16}, 4, v{vL}")

    o(f"s_lshl_b32 s{sT0}, s{sG}, 2")
    o(f"s_add_u32 s{sT0}, s{sT0}, s{sHA}")
    o(f"s_lshl_b32 s{sT0}, s{sT0}, 8")
    o(f"s_lshl_b32 s{sT1}, s{sC}, 6")
    o(f"s_add_u32 s{sT0}, s{sT0}, s{sT1}")
    v1, v2, v3, v4 = vT[3], vT[4], vT[5], vT[6]
    o(f"v_lshrrev_b32 v{v1}, 2, v{vL}")
    o(f"v_lshlrev_b32 v{v1}, 13, v{v1}")
    o(f"v_and_b32 v{v2}, 3, v{vL}")
    o(f"v_lshl_add_u32 v{v1}, v{v2}, 4, v{v1}")
    o(f"v_add_u32 v{v1}, s{sT0}, v{v1}")
    o(f"s_lshl_b32 s{sT1}, s{sW}, 21")
    o(f"v_add_u32 v{v1}, s{sT1}, v{v1}")
    def dma_strip(sbase, ldsbase, nblk, rowstep):
        o(f"v_mov_b32 v{v2}, v{v1}")
        o(f"s_lshl_b32 s{sT2}, s{sW}, {(nblk*1024).bit_length()-1}")
        o(f"s_add_u32 s{sT2}, s{sT2}, {ldsbase}")
        for m in range(nblk):
            o(f"s_mov_b32 m0, s{sT2}")
            o(f"s_add_u32 s{sT2}, s{sT2}, 1024")
            o(f"global_load_lds_dwordx4 v{v2}, {s(sbase,2)}")
            if m + 1 < nblk: o(f"v_add_u32 v{v2}, {rowstep}, v{v2}")
    if KVFIRST:
        def rd_qk():
            o(f"s_and_b32 s{sT0}, s{sW}, 1"); o(f"s_lshl_b32 s{sT0}, s{sT0}, 5")
            for i in range(16):
                o(f"s_lshl_b32 s{sT2}, s{sW}, 2"); o(f"s_add_u32 s{sT2}, s{sT2}, {i}"); o(f"s_and_b32 s{sT2}, s{sT2}, 15"); o(f"s_lshl_b32 s{sT2}, s{sT2}, 12")
                o(f"s_add_u32 s{sT2}, s{sT2}, s{sT0}"); o(f"v_add_u32 v{v4}, s{sT2}, v{v3}")
                for half in range(2):
                    d = (i * 2 + half) * 4
                    o(f"ds_read_b64_tr_b16 {a(d,2)}, v{v4} offset:{half*2048}"); o(f"ds_read_b64_tr_b16 {a(d+2,2)}, v{v4} offset:{half*2048+256}")
                if i % 4 == 3: o("s_waitcnt lgkmcnt(0)")
        dma_strip(sWK, 0, 16, 131072)
        dma_strip(sWV, 65536, 16, 131072)
        o(f"v_lshrrev_b32 v{v3}, 2, v{vi}"); o(f"v_lshl_add_u32 v{v3}, v{vg}, 3, v{v3}"); o(f"v_lshlrev_b32 v{v3}, 6, v{v3}")
        o(f"v_and_b32 v{v4}, 3, v{vi}"); o(f"v_lshl_add_u32 v{v3}, v{v4}, 3, v{v3}")
        o("s_waitcnt vmcnt(0)"); o("s_barrier")
        o(f"s_cmp_lt_u32 s{sW}, 2"); o("s_cbranch_scc1 L_kf1")
        rd_qk()
        A.label("L_kf1")
        o(f"s_and_b32 s{sT0}, s{sW}, 1"); o(f"s_lshl_b32 s{sT0}, s{sT0}, 5"); o(f"s_add_u32 s{sT0}, s{sT0}, 65536")
        for i in range(8):
            o(f"s_lshl_b32 s{sT2}, s{sW}, 2"); o(f"s_add_u32 s{sT2}, s{sT2}, {i}"); o(f"s_and_b32 s{sT2}, s{sT2}, 15"); o(f"s_lshl_b32 s{sT2}, s{sT2}, 12")
            o(f"s_add_u32 s{sT2}, s{sT2}, s{sT0}"); o(f"v_add_u32 v{v4}, s{sT2}, v{v3}")
            for half in range(2):
                d = 128 + (i * 2 + half) * 4
                o(f"ds_read_b64_tr_b16 {a(d,2)}, v{v4} offset:{half*2048}"); o(f"ds_read_b64_tr_b16 {a(d+2,2)}, v{v4} offset:{half*2048+256}")
            if i % 4 == 3: o("s_waitcnt lgkmcnt(0)")
        o("s_barrier")
        dma_strip(sWQ, 0, 16, 131072)
        o(f"v_lshrrev_b32 v{v1}, 3, v{vL}"); o(f"v_lshlrev_b32 v{v1}, 11, v{v1}"); o(f"v_and_b32 v{v2}, 7, v{vL}"); o(f"v_lshl_add_u32 v{v1}, v{v2}, 4, v{v1}")
        o(f"s_lshl_b32 s{sT0}, s{sG}, 20"); o(f"s_lshl_b32 s{sT1}, s{sJ}, 7"); o(f"s_add_u32 s{sT0}, s{sT0}, s{sT1}")
        o(f"s_lshl_b32 s{sT1}, s{sW}, 18"); o(f"s_add_u32 s{sT0}, s{sT0}, s{sT1}"); o(f"v_add_u32 v{v1}, s{sT0}, v{v1}")
        dma_strip(sWO, 65536, 16, 16384)
        o("s_waitcnt vmcnt(0)"); o("s_barrier")
        o(f"s_cmp_ge_u32 s{sW}, 2"); o("s_cbranch_scc1 L_kf2")
        rd_qk()
        A.label("L_kf2")
    else:
        dma_strip(sWQ, 0, 16, 131072)
        dma_strip(sWK, 65536, 16, 131072)
        o(f"v_lshrrev_b32 v{v3}, 2, v{vi}")
        o(f"v_lshl_add_u32 v{v3}, v{vg}, 3, v{v3}")
        o(f"v_lshlrev_b32 v{v3}, 6, v{v3}")
        o(f"v_and_b32 v{v4}, 3, v{vi}")
        o(f"v_lshl_add_u32 v{v3}, v{v4}, 3, v{v3}")
        o("s_waitcnt vmcnt(0)")
        o("s_barrier")
        o(f"s_lshr_b32 s{sT0}, s{sW}, 1")
        o(f"s_lshl_b32 s{sT0}, s{sT0}, 16")
        o(f"s_and_b32 s{sT1}, s{sW}, 1")
        o(f"s_lshl_b32 s{sT1}, s{sT1}, 5")
        o(f"s_add_u32 s{sT0}, s{sT0}, s{sT1}")
        for i in range(16):
            o(f"s_lshl_b32 s{sT2}, s{sW}, 2")
            o(f"s_add_u32 s{sT2}, s{sT2}, {i}")
            o(f"s_and_b32 s{sT2}, s{sT2}, 15")
            o(f"s_lshl_b32 s{sT2}, s{sT2}, 12")
            o(f"s_add_u32 s{sT2}, s{sT2}, s{sT0}")
            o(f"v_add_u32 v{v4}, s{sT2}, v{v3}")
            for half in range(2):
                d = (i * 2 + half) * 4
                o(f"ds_read_b64_tr_b16 {a(d,2)}, v{v4} offset:{half*2048}")
                o(f"ds_read_b64_tr_b16 {a(d+2,2)}, v{v4} offset:{half*2048+256}")
            if i % 4 == 3: o("s_waitcnt lgkmcnt(0)")
        o("s_barrier")
        dma_strip(sWV, 0, 16, 131072)
        o(f"v_lshrrev_b32 v{v1}, 3, v{vL}")
        o(f"v_lshlrev_b32 v{v1}, 11, v{v1}")
        o(f"v_and_b32 v{v2}, 7, v{vL}")
        o(f"v_lshl_add_u32 v{v1}, v{v2}, 4, v{v1}")
        o(f"s_lshl_b32 s{sT0}, s{sG}, 20")
        o(f"s_lshl_b32 s{sT1}, s{sJ}, 7")
        o(f"s_add_u32 s{sT0}, s{sT0}, s{sT1}")
        o(f"s_lshl_b32 s{sT1}, s{sW}, 18")
        o(f"s_add_u32 s{sT0}, s{sT0}, s{sT1}")
        o(f"v_add_u32 v{v1}, s{sT0}, v{v1}")
        dma_strip(sWO, 65536, 16, 16384)
        o("s_waitcnt vmcnt(0)")
        o("s_barrier")
        o(f"s_and_b32 s{sT0}, s{sW}, 1")
        o(f"s_lshl_b32 s{sT0}, s{sT0}, 5")
        for i in range(8):
            o(f"s_lshl_b32 s{sT2}, s{sW}, 2")
            o(f"s_add_u32 s{sT2}, s{sT2}, {i}")
            o(f"s_and_b32 s{sT2}, s{sT2}, 15")
            o(f"s_lshl_b32 s{sT2}, s{sT2}, 12")
            o(f"s_add_u32 s{sT2}, s{sT2}, s{sT0}")
            o(f"v_add_u32 v{v4}, s{sT2}, v{v3}")
            for half in range(2):
                d = 128 + (i * 2 + half) * 4
                o(f"ds_read_b64_tr_b16 {a(d,2)}, v{v4} offset:{half*2048}")
                o(f"ds_read_b64_tr_b16 {a(d+2,2)}, v{v4} offset:{half*2048+256}")
            if i % 4 == 3: o("s_waitcnt lgkmcnt(0)")
    o(f"v_lshrrev_b32 v{v3}, 2, v{vi}")
    o(f"v_lshl_add_u32 v{v3}, v{vg}, 2, v{v3}")
    o(f"v_lshlrev_b32 v{v3}, 7, v{v3}")
    o(f"v_and_b32 v{v4}, 3, v{vi}")
    o(f"v_lshl_add_u32 v{v3}, v{v4}, 3, v{v3}")
    o(f"s_lshl_b32 s{sT0}, s{sW}, 14")
    o(f"s_add_u32 s{sT0}, s{sT0}, 65536")
    o(f"v_add_u32 v{v4}, s{sT0}, v{v3}")
    for ct in range(4):
        for u in range(4):
            d = 192 + (ct * 4 + u) * 4
            o(f"ds_read_b64_tr_b16 {a(d,2)}, v{v4} offset:{u*4096+ct*32}")
            o(f"ds_read_b64_tr_b16 {a(d+2,2)}, v{v4} offset:{u*4096+2048+ct*32}")
        o("s_waitcnt lgkmcnt(0)")
    o("s_barrier")

    if hook:
        A.raw(hook)
        o(f"v_and_b32 v{vi}, 15, v{vL}"); o(f"v_lshrrev_b32 v{vg}, 4, v{vL}"); o(f"v_and_b32 v{vr}, 7, v{vL}")
    o(f"s_lshl_b32 s{sT0}, s{sW}, 12")
    o(f"v_add_u32 v{vE3}, s{sT0}, v{vL16}")
    o(f"v_lshrrev_b32 v{v1}, 1, v{vg}")
    o(f"v_lshlrev_b32 v{v1}, 8, v{v1}")
    o(f"v_lshl_add_u32 v{v1}, v{vr}, 4, v{v1}")
    o(f"s_lshr_b32 s{sT0}, s{sC}, 1")
    o(f"s_lshl_b32 s{sT0}, s{sT0}, 10")
    o(f"s_and_b32 s{sT1}, s{sW}, 1")
    o(f"s_lshl_b32 s{sT1}, s{sT1}, 9")
    o(f"s_add_u32 s{sT0}, s{sT0}, s{sT1}")
    o(f"s_and_b32 s{sT1}, s{sC}, 1")
    o(f"s_lshl_b32 s{sT1}, s{sT1}, 7")
    o(f"s_add_u32 s{sT0}, s{sT0}, s{sT1}")
    o(f"v_add_u32 v{vKMst}, s{sT0}, v{v1}")
    o(f"s_lshl_b32 s{sT0}, s{sHA}, 12")
    o(f"s_lshr_b32 s{sT1}, s{sW}, 1")
    o(f"s_lshl_b32 s{sT1}, s{sT1}, 11")
    o(f"s_add_u32 s{sT0}, s{sT0}, s{sT1}")
    o(f"v_add_u32 v{vQKst}, s{sT0}, v{vKMst}")
    o(f"s_lshl_b32 s{sT0}, s{sHA}, 11")
    o(f"s_lshl_b32 s{sT1}, s{sC}, 9")
    o(f"s_add_u32 s{sT0}, s{sT0}, s{sT1}")
    o(f"v_add_u32 v{vVst}, s{sT0}, v{vL16}")
    o(f"s_lshl_b32 s{sT0}, s{sW}, 11")
    o(f"v_add_u32 v{vVld}, s{sT0}, v{vL16}")
    o(f"s_lshl_b32 s{sT0}, s{sG}, 4")
    o(f"s_add_u32 s{sT0}, s{sT0}, s{sJ}")
    o(f"s_lshl_b32 s{sT0}, s{sT0}, 10")
    o(f"s_and_b32 s{sT1}, s{sW}, 1")
    o(f"s_lshl_b32 s{sT1}, s{sT1}, 9")
    o(f"s_add_u32 s{sT0}, s{sT0}, s{sT1}")
    o(f"s_lshr_b32 s{sT1}, s{sW}, 1")
    o(f"s_lshl_b32 s{sT1}, s{sT1}, 7")
    o(f"s_add_u32 s{sT0}, s{sT0}, s{sT1}")
    o(f"v_add_u32 v{vPst}, s{sT0}, v{v1}")
    o(f"v_lshlrev_b32 v{vPld}, 14, v{vg}")
    o(f"v_lshl_add_u32 v{vPld}, v{vi}, 4, v{vPld}")
    o(f"s_lshl_b32 s{sT0}, s{sJ}, 10")
    o(f"s_lshl_b32 s{sT1}, s{sW}, 8")
    o(f"s_add_u32 s{sT0}, s{sT0}, s{sT1}")
    o(f"v_add_u32 v{vPld}, s{sT0}, v{vPld}")
    o(f"v_add_u32 v{vMst}, s{sT0}, v{vL16}")
    o(f"v_lshlrev_b32 v{vKx}, 13, v{vi}")
    o(f"v_lshl_add_u32 v{vKx}, v{vg}, 4, v{vKx}")
    o(f"s_lshl_b32 s{sT0}, s{sHead}, 8")
    o(f"v_add_u32 v{vKx}, s{sT0}, v{vKx}")
    o(f"v_mov_b32 v{vLdsM}, v{vL16}")
    for d in range(4):
        o(f"v_mov_b32 v{vDelta+d}, 0")
        o(f"v_mov_b32 v{v1}, 0x3f80")
        o(f"v_cmp_eq_u32 vcc, {2*d}, v{vi}")
        o(f"v_cndmask_b32 v{vDelta+d}, v{vDelta+d}, v{v1}, vcc")
        o(f"v_mov_b32 v{v1}, 0x3f800000")
        o(f"v_cmp_eq_u32 vcc, {2*d+1}, v{vi}")
        o(f"v_cndmask_b32 v{vDelta+d}, v{vDelta+d}, v{v1}, vcc")
    o(f"v_mov_b32 v{v1}, 0xff800000")
    o(f"v_cmp_lt_u32 vcc, 31, v{vL}")
    o(f"v_cndmask_b32 v{vNeg}, 0, v{v1}, vcc")
    for r in range(1, 4): o(f"v_mov_b32 v{vNeg+r}, v{vNeg}")
    for r in range(4): o(f"v_mov_b32 v{vSent+r}, -1")
    o(f"s_mov_b32 s{sMaskQK}, 0xff"); o(f"s_mov_b32 s{sMaskQK+1}, 0xff")
    o(f"s_mov_b32 s{sSelV}, -1"); o(f"s_mov_b32 s{sSelV+1}, 0")
    import math
    cs = 128 ** -0.5 * math.log2(math.e)
    import struct
    o(f"s_mov_b32 s{sScale}, 0x{struct.unpack('<I', struct.pack('<f', cs))[0]:08x}")
    o(f"s_mov_b32 s{sScale+1}, s{sScale}")
    o(f"s_mov_b32 s{sLim}, 0x400000")
    o(f"s_mov_b32 s{sStep}, 0")
    def addbase(dst, off, extra_s=None):
        o(f"s_add_u32 s{dst}, s{sWS}, {off & 0xffffffff}")
        o(f"s_addc_u32 s{dst+1}, s{sWS+1}, 0")
        if extra_s is not None:
            o(f"s_add_u32 s{dst}, s{dst}, s{extra_s}")
            o(f"s_addc_u32 s{dst+1}, s{dst+1}, 0")
    o(f"s_lshl_b32 s{sT0}, s{sHead}, 13")
    o(f"s_add_u32 s{sT0}, s{sT0}, 4096")
    addbase(sKX, WS_K, sT0)
    o(f"s_lshl_b32 s{sT0}, s{sHead}, 13")
    o(f"s_add_u32 s{sT0}, s{sT0}, 4096")
    addbase(sVX, WS_VT, sT0)
    o(f"s_lshl_b32 s{sT0}, s{sHead}, 11")
    addbase(sKM, WS_KM, sT0)
    addbase(sVM, WS_VM, sT0)
    sCNT = 16
    addbase(sCNT, WS_CNT + cntoff)
    def kv_wait(chunk_sreg_expr_setup, target, tag):
        o(f"s_lshl_b32 s{sT0}, s{sT0}, 3"); o(f"s_add_u32 s{sT0}, s{sT0}, s{sG}"); o(f"s_lshl_b32 s{sT0}, s{sT0}, 7")
        o(f"v_mov_b32 v{vX+2}, s{sT0}")
        A.label(f"L_kvw_{tag}")
        o(f"global_load_dword v{vX+3}, v{vX+2}, {s(sCNT,2)} sc1")
        o("s_waitcnt vmcnt(0)")
        o(f"v_readfirstlane_b32 s{sT1}, v{vX+3}")
        o(f"s_cmp_ge_u32 s{sT1}, {target}")
        o(f"s_cbranch_scc1 L_kvw_{tag}_ok")
        o("s_sleep 4")
        o(f"s_sub_u32 s{sLim}, s{sLim}, 1")
        o(f"s_cbranch_scc0 L_kvw_{tag}")
        o(f"s_mov_b32 s{sLim}, 0")
        A.label(f"L_kvw_{tag}_ok")
    sEC = 94
    def gpoll(base, tag, sleep=12, allwaves=False):
        if not allwaves:
            o(f"s_cmp_lg_u32 s{sW}, 0"); o(f"s_cbranch_scc1 L_gp_{tag}_ok")
        o(f"v_mov_b32 v{vX+2}, s{sT0}")
        A.label(f"L_gp_{tag}")
        o(f"global_load_dword v{vX+3}, v{vX+2}, {s(base,2)} sc1")
        o("s_waitcnt vmcnt(0)")
        o(f"v_readfirstlane_b32 s{sT1}, v{vX+3}")
        o(f"s_cmp_ge_u32 s{sT1}, s{sT2}")
        o(f"s_cbranch_scc1 L_gp_{tag}_ok")
        o(f"s_sleep {sleep}")
        o(f"s_sub_u32 s{sLim}, s{sLim}, 1")
        o(f"s_cbranch_scc0 L_gp_{tag}")
        o(f"s_mov_b32 s{sLim}, 0")
        A.label(f"L_gp_{tag}_ok")
        if not allwaves: o("s_barrier")
    if KVCHK and not EARLY:
        o(f"s_mov_b32 s{sT0}, 0")
        kv_wait(None, 16, "0")
    if KVCHK and EARLY:
        o(f"s_mov_b32 s{sT0}, {EC_FILL*4}"); o(f"s_mov_b32 s{sT2}, 128"); gpoll(sEC, "f")
        o(f"s_lshl_b32 s{sT0}, s{sG}, 2"); o(f"s_add_u32 s{sT0}, s{sT0}, {EC_KVH0*4}"); o(f"s_mov_b32 s{sT2}, 16"); gpoll(sEC, "0")
    def load_kx():
        for t in range(8):
            o(f"global_load_dwordx4 {v(vK+t*4,4)}, v{vL16}, {s(sKX,2)} offset:{t*1024-4096}")
    load_kx()
    if prof:
        o(f"s_lshl_b32 s{sT0}, s{sG}, 4")
        o(f"s_add_u32 s{sT0}, s{sT0}, s{sJ}")
        o(f"s_lshl_b32 s{sT0}, s{sT0}, 2")
        o(f"s_add_u32 s{sT0}, s{sT0}, s{sW}")
        o(f"s_lshl_b32 s{sT0}, s{sT0}, 12")
        addbase(sProf, WS_PROF, sT0)
    nst = [0]
    def stamp():
        if not prof: return
        k = nst[0]; nst[0] += 1
        o(f"{TIMER} {s(sTs + 2*k, 2)}")

    def check(regs, lab_ok, lab_retry, tmp):
        regs = list(regs)
        o(f"v_max3_u32 v{tmp}, v{regs[0]}, v{regs[1]}, v{regs[2]}")
        k = 3
        while k + 1 < len(regs):
            o(f"v_max3_u32 v{tmp}, v{tmp}, v{regs[k]}, v{regs[k+1]}"); k += 2
        if k < len(regs):
            o(f"v_max_u32 v{tmp}, v{tmp}, v{regs[k]}")
        o(f"v_cmp_eq_u32 vcc, -1, v{tmp}")
        o(f"s_cbranch_vccz {lab_ok}")
        o(f"s_sub_u32 s{sLim}, s{sLim}, 1")
        o(f"s_cbranch_scc1 {lab_ok}_to")
        o(f"s_branch {lab_retry}")
        A.label(f"{lab_ok}_to")
        o(f"s_mov_b32 s{sLim}, 0")
        A.label(lab_ok)


    sCnt = 98
    vOo = [112, 116, 120, 124, 192, 196, 200, 204, 216, 220, 224, 228]
    vPf = 252
    def merge(main, side, every, start=0):
        side = list(side); out = [];
        for k, m_ in enumerate(main):
            out.append(m_)
            if side and k >= start and (k - start) % every == every - 1: out.append(side.pop(0))
        return out + side
    def emit(L):
        for x in L: o(x)
    def check(regs, lab_ok, lab_retry, tmp, cnt=None):
        regs = list(regs)
        o(f"v_max3_u32 v{tmp}, v{regs[0]}, v{regs[1]}, v{regs[2]}")
        k = 3
        while k + 1 < len(regs):
            o(f"v_max3_u32 v{tmp}, v{tmp}, v{regs[k]}, v{regs[k+1]}"); k += 2
        if k < len(regs):
            o(f"v_max_u32 v{tmp}, v{tmp}, v{regs[k]}")
        o(f"v_cmp_eq_u32 vcc, -1, v{tmp}")
        o(f"s_cbranch_vccz {lab_ok}")
        if prof and cnt is not None: o(f"s_add_u32 s{sCnt+cnt}, s{sCnt+cnt}, 1")
        o(f"s_sub_u32 s{sLim}, s{sLim}, 1")
        o(f"s_cbranch_scc0 {lab_retry}")
        o(f"s_mov_b32 s{sLim}, 0")
        A.label(lab_ok)
    sM = 88
    def mpoll(loads, tag, cnt):
        n = len(loads)
        regs = [b + r for b, _ in loads for r in range(4)]
        o(f"v_max3_u32 v{vX}, v{regs[0]}, v{regs[1]}, v{regs[2]}")
        k = 3
        while k + 1 < len(regs):
            o(f"v_max3_u32 v{vX}, v{vX}, v{regs[k]}, v{regs[k+1]}"); k += 2
        if k < len(regs): o(f"v_max_u32 v{vX}, v{vX}, v{regs[k]}")
        o(f"v_cmp_eq_u32 vcc, -1, v{vX}")
        o(f"s_cbranch_vccz L_{tag}_ok")
        A.label(f"L_{tag}_retry")
        if prof: o(f"s_add_u32 s{sCnt+cnt}, s{sCnt+cnt}, 1")
        for i, (b, rest) in enumerate(loads):
            o(f"v_max3_u32 v{vX}, v{b}, v{b+1}, v{b+2}")
            o(f"v_max_u32 v{vX}, v{vX}, v{b+3}")
            o(f"v_cmp_eq_u32 vcc, -1, v{vX}")
            o(f"s_cbranch_vccz L_{tag}_sk{i}")
            o("s_mov_b64 exec, vcc")
            o(f"global_load_dwordx4 {v(b,4)}, {rest}")
            o("s_mov_b64 exec, -1")
            A.label(f"L_{tag}_sk{i}")
        o("s_waitcnt vmcnt(0)")
        o(f"v_max3_u32 v{vX}, v{regs[0]}, v{regs[1]}, v{regs[2]}")
        k = 3
        while k + 1 < len(regs):
            o(f"v_max3_u32 v{vX}, v{vX}, v{regs[k]}, v{regs[k+1]}"); k += 2
        if k < len(regs): o(f"v_max_u32 v{vX}, v{vX}, v{regs[k]}")
        o(f"v_cmp_eq_u32 vcc, -1, v{vX}")
        o(f"s_cbranch_vccz L_{tag}_ok")
        o(f"s_sub_u32 s{sLim}, s{sLim}, 1")
        o(f"s_cbranch_scc0 L_{tag}_retry")
        o(f"s_mov_b32 s{sLim}, 0")
        A.label(f"L_{tag}_ok")
    if prof:
        for k in range(4): o(f"s_mov_b32 s{sCnt+k}, 0")
    vPfo = 58
    o(f"s_lshl_b32 s{sT1}, s{sG}, 2"); o(f"s_add_u32 s{sT1}, s{sT1}, s{sHA}"); o(f"s_lshl_b32 s{sT1}, s{sT1}, 13")
    o(f"s_lshl_b32 s{sT2}, s{sC}, 11"); o(f"s_add_u32 s{sT1}, s{sT1}, s{sT2}")
    o(f"s_and_b32 s{sT2}, s{sW}, 1"); o(f"s_lshl_b32 s{sT2}, s{sT2}, 10"); o(f"s_add_u32 s{sT1}, s{sT1}, s{sT2}")
    o(f"v_add_u32 v{vPfo}, s{sT1}, v{vL16}")
    o(f"s_cmp_lt_u32 s{sW}, 2")
    sPF = 18
    o(f"s_mov_b32 s{sT0}, {WS_K + 2*262144}")
    o(f"s_mov_b32 s{sT1}, {WS_VT + 2*262144}")
    o(f"s_cselect_b32 s{sT0}, s{sT0}, s{sT1}")
    o(f"s_add_u32 s{sPF}, s{sWS}, s{sT0}"); o(f"s_addc_u32 s{sPF+1}, s{sWS+1}, 0")
    def kx_loads():
        if NOK: return ["s_nop 0"] * 8
        return [f"global_load_dwordx4 {v(vK+t*4,4)}, v{vL16}, {s(sKX,2)} offset:{t*1024-4096}" for t in range(8)]
    def vx_loads():
        if NOV: return ["s_nop 0"] * 8
        return [f"global_load_dwordx4 {v(vV+4*t,4)}, v{vL16}, {s(sVX,2)} offset:{t*1024-4096}" for t in range(8)]
    vRd = [None, 232, 233, 234]
    for hs in (1, 2, 3):
        o(f"v_add_u32 v{vRd[hs]}, {hs*4096}, v{vE3}")
        o(f"v_and_b32 v{vRd[hs]}, 0x3fff, v{vRd[hs]}")
    vVw, vVr, vRw = 235, 59, 15
    o(f"s_lshl_b32 s{sT0}, s{sW}, 10")
    o(f"v_add_u32 v{vVw}, s{sT0}, v{vL16}")
    o(f"v_and_b32 v{vVr}, 31, v{vL}")
    o(f"v_lshlrev_b32 v{vVr}, 4, v{vVr}")
    o(f"v_lshrrev_b32 v{vX+2}, 5, v{vL}")
    o(f"v_lshl_add_u32 v{vVr}, v{vX+2}, 10, v{vVr}")
    vL4 = vX + 3
    o(f"v_lshlrev_b32 v{vL4}, 2, v{vL}")
    o(f"s_lshl_b32 s{sT0}, s{sW}, 8")
    o(f"v_add_u32 v{vRw}, s{sT0}, v{vL4}")
    vRr = [None, 1, 2, 3]
    for hs in (1, 2, 3):
        o(f"s_add_u32 s{sT0}, s{sW}, {hs}"); o(f"s_and_b32 s{sT0}, s{sT0}, 3"); o(f"s_lshl_b32 s{sT0}, s{sT0}, 8")
        o(f"v_add_u32 v{vRr[hs]}, s{sT0}, v{vL4}")
    vOnes = 4
    for r in range(4): o(f"v_mov_b32 v{vOnes+r}, 0x3f803f80")

    LDS_R = 36864
    A.label("L_step")
    nst[0] = 0
    if KVCHK:
        if FILL2 is not None:
            o(f"s_cmp_lg_u32 s{sStep}, 6"); o("s_cbranch_scc1 L_kvf2")
            o(f"s_mov_b32 s{sT0}, {FILL2}"); o(f"s_mov_b32 s{sT2}, 128"); gpoll(sCNT, "l2", 4)
            A.label("L_kvf2")
        if EARLY:
            o(f"s_cmp_lg_u32 s{sStep}, 2"); o("s_cbranch_scc1 L_kvn2")
            o(f"s_lshl_b32 s{sT0}, s{sG}, 2"); o(f"s_add_u32 s{sT0}, s{sT0}, {EC_KVH1*4}"); o(f"s_mov_b32 s{sT2}, 16"); gpoll(sEC, "h1", 4)
            A.label("L_kvn2")
            o(f"s_cmp_lg_u32 s{sStep}, 6"); o("s_cbranch_scc1 L_kvn6")
            o(f"s_mov_b32 s{sT0}, {EC_FILL2*4}"); o(f"s_mov_b32 s{sT2}, 128"); gpoll(sEC, "f2", 4)
            A.label("L_kvn6")
        o(f"s_add_u32 s{sT0}, s{sStep}, 2"); o(f"s_and_b32 s{sT1}, s{sT0}, 7"); o(f"s_cmp_lg_u32 s{sT1}, 0"); o("s_cbranch_scc1 L_kvskip")
        o(f"s_cmp_ge_u32 s{sT0}, 64"); o("s_cbranch_scc1 L_kvskip")
        o(f"s_lshr_b32 s{sT0}, s{sT0}, 3")
        if EARLY:
            o(f"s_cmp_eq_u32 s{sT0}, 1"); o(f"s_cselect_b32 s{sT2}, 16, 4")
        else:
            o(f"s_mov_b32 s{sT2}, 4")
        o(f"v_readfirstlane_b32 s{sT1}, v{vFlag}")
        o(f"s_cmp_ge_u32 s{sT1}, s{sT2}"); o("s_cbranch_scc1 L_kvskip")
        o(f"s_lshl_b32 s{sT0}, s{sT0}, 3"); o(f"s_add_u32 s{sT0}, s{sT0}, s{sG}"); o(f"s_lshl_b32 s{sT0}, s{sT0}, 7")
        gpoll(sCNT, "n", 4, allwaves=True)
        A.label("L_kvskip")
    o(f"s_and_b32 s{sSlot}, s{sStep}, 3")
    o(f"s_lshl_b32 s{sT0}, s{sSlot}, 17")
    o(f"s_lshl_b32 s{sT1}, s{sG}, 14")
    o(f"s_add_u32 s{sT2}, s{sT0}, s{sT1}")
    addbase(sMEMc, WS_RMEM, sT2)
    e3_loads = [(vB + 4*u, f"v{vE3}, {s(sMEMc,2)} offset:{u*1024} sc1") for u in range(4)]
    def qk_mfma(i, first=False):
        for half, acc in ((0, vA0), (1, vA1)):
            c = "0" if first else v(acc, 4)
            o(f"v_mfma_f32_16x16x32_bf16 {v(acc,4)}, {a((i*2+half)*4,4)}, {v(vB+4*i,4)}, {c}")
    def salu_bases():
        addbase(sQK, WS_RQK, sT2)
        o(f"s_lshl_b32 s{sT3}, s{sStep}, 17")
        addbase(sPART, WS_PARTF, sT3)
        o(f"s_add_u32 s{sPART2}, s{sPART}, 65536"); o(f"s_addc_u32 s{sPART2+1}, s{sPART+1}, 0")
        o(f"s_lshr_b32 s{sT3}, s{sT2}, 1")
        addbase(sVR, WS_RV, sT3)
        o(f"s_add_u32 s{sT3}, s{sStep}, 1"); o(f"s_and_b32 s{sT3}, s{sT3}, 3"); o(f"s_lshl_b32 s{sT3}, s{sT3}, 17"); o(f"s_add_u32 s{sT3}, s{sT3}, s{sT1}")
        addbase(sMEMn, WS_RMEM, sT3)
        o(f"s_xor_b32 s{sT3}, s{sT0}, {2<<17}")
        o(f"s_add_u32 s{sT3}, s{sT3}, s{sT1}")
        addbase(sRq, WS_RQK, sT3)
        o(f"s_lshr_b32 s{sT3}, s{sT3}, 1")
        addbase(sRv, WS_RV, sT3)
        o(f"s_add_u32 s{sT3}, s{sStep}, 3"); o(f"s_and_b32 s{sT3}, s{sT3}, 3"); o(f"s_lshl_b32 s{sT3}, s{sT3}, 17"); o(f"s_add_u32 s{sT3}, s{sT3}, s{sT1}")
        addbase(sRm, WS_RMEM, sT3)
    def simple_poll(loads, tag, cnt, first_wait):
        regs = [b + r for b, _ in loads for r in range(4)]
        o(f"s_waitcnt vmcnt({first_wait})")
        o(f"s_branch L_{tag}_c")
        A.label(f"L_{tag}_r")
        for b, rest in loads: o(f"global_load_dwordx4 {v(b,4)}, {rest}")
        o("s_waitcnt vmcnt(0)")
        A.label(f"L_{tag}_c")
        check(regs, f"L_{tag}_ok", f"L_{tag}_r", vX, cnt)
    def chk_list(regs, tmp):
        regs = list(regs); L = [f"v_max3_u32 v{tmp}, v{regs[0]}, v{regs[1]}, v{regs[2]}"]
        k = 3
        while k + 1 < len(regs):
            L.append(f"v_max3_u32 v{tmp}, v{tmp}, v{regs[k]}, v{regs[k+1]}"); k += 2
        if k < len(regs): L.append(f"v_max_u32 v{tmp}, v{tmp}, v{regs[k]}")
        L.append(f"v_cmp_eq_u32 vcc, -1, v{tmp}")
        return L
    def retry_tail(tag, cnt, issue, back):
        o(f"s_cbranch_vccz L_{tag}_fok")
        if prof: o(f"s_add_u32 s{sCnt+cnt}, s{sCnt+cnt}, 1")
        o(f"s_sub_u32 s{sLim}, s{sLim}, 1")
        o(f"s_cbranch_scc1 L_{tag}_fto")
        issue()
        o("s_waitcnt vmcnt(0)")
        o(f"s_branch {back}")
        A.label(f"L_{tag}_fto")
        o(f"s_mov_b32 s{sLim}, 0")
        A.label(f"L_{tag}_fok")
    n0 = len(A.lines); salu_bases(); sl = A.lines[n0:]; del A.lines[n0:]
    nb = len(sl) if E3_SALU_FIRST == 1 else (0 if E3_SALU_FIRST == 0 else min(len(sl), E3_SALU_FIRST))
    while 0 < nb < len(sl) and sl[nb].startswith("s_addc"): nb += 1
    for x in sl[:nb]: o(x)
    stamp()
    for b, rest in e3_loads: o(f"global_load_dwordx4 {v(b,4)}, {rest}")
    for x in sl[nb:]: o(x)
    if FC & 16:
        def qk1(i, half, first, src=None):
            acc = vA0 if half == 0 else vA1
            c = "0" if first else v(acc, 4)
            sr = (vB + 4 * i) if src is None else src
            return f"v_mfma_f32_16x16x32_bf16 {v(acc,4)}, {a((i*2+half)*4,4)}, {v(sr,4)}, {c}"
        wr = [f"ds_write_b128 v{vE3}, {v(b,4)} offset:{LDS_MEM + u*1024}" for u, (b, rest) in enumerate(e3_loads)]
        if FC & 32:
            v2 = 192
            e3b = [(v2 + 4 * u, rest) for u, (b, rest) in enumerate(e3_loads)]
            issA = lambda: [o(f"global_load_dwordx4 {v(b,4)}, {rest}") for b, rest in e3_loads]
            issB = lambda: [o(f"global_load_dwordx4 {v(b,4)}, {rest}") for b, rest in e3b]
            if E3_SP: o(f"s_sleep {E3_SP}")
            issB()
            A.label("L_e3_lp")
            o("s_waitcnt vmcnt(4)")
            emit(chk_list(range(vB, vB + 16), vX)); o("s_cbranch_vccz L_e3_okA")
            if prof: o(f"s_add_u32 s{sCnt}, s{sCnt}, 1")
            issA()
            o("s_waitcnt vmcnt(4)")
            emit(chk_list(range(v2, v2 + 16), vX)); o("s_cbranch_vccz L_e3_okB")
            if prof: o(f"s_add_u32 s{sCnt}, s{sCnt}, 1")
            issB()
            o(f"s_sub_u32 s{sLim}, s{sLim}, 1"); o("s_cbranch_scc0 L_e3_lp"); o(f"s_mov_b32 s{sLim}, 0")
            A.label("L_e3_okB")
            wrB = [f"ds_write_b128 v{vE3}, {v(b,4)} offset:{LDS_MEM + u*1024}" for u, (b, rest) in enumerate(e3b)]
            emit([wrB[0], qk1(0, 0, True, v2), wrB[1], qk1(0, 1, True, v2), wrB[2], qk1(1, 0, False, v2 + 4), wrB[3], qk1(1, 1, False, v2 + 4),
                  qk1(2, 0, False, v2 + 8), qk1(2, 1, False, v2 + 8), qk1(3, 0, False, v2 + 12), qk1(3, 1, False, v2 + 12)])
            o("s_mov_b32 s89, 1")
            o("s_branch L_e3_j")
            A.label("L_e3_okA")
            o("s_mov_b32 s89, 0")
            emit([wr[0], qk1(0, 0, True), wr[1], qk1(0, 1, True), wr[2], qk1(1, 0, False), wr[3], qk1(1, 1, False)])
            A.label("L_e3_j")
        else:
            simple_poll(e3_loads, "e3", 0, 0)
            emit([wr[0], qk1(0, 0, True), wr[1], qk1(0, 1, True), wr[2], qk1(1, 0, False), wr[3], qk1(1, 1, False)])
        stamp()
        o("s_waitcnt lgkmcnt(0)")
        o("s_barrier")
        for i in range(4, 16):
            o(f"ds_read_b128 {v(vB+4*i,4)}, v{vRd[i//4]} offset:{LDS_MEM + (i%4)*1024}")
        if FC & 32:
            o("s_cmp_lg_u32 s89, 0"); o("s_cbranch_scc1 L_e3_sk")
        for u in (2, 3): qk_mfma(u)
        if FC & 32: A.label("L_e3_sk")
    elif FC & 1:
        assert not SIG
        o("s_waitcnt vmcnt(0)")
        A.label("L_e3_go")
        ck = chk_list(range(vB, vB + 16), vX)
        def qk1(i, half, first):
            acc = vA0 if half == 0 else vA1
            c = "0" if first else v(acc, 4)
            return f"v_mfma_f32_16x16x32_bf16 {v(acc,4)}, {a((i*2+half)*4,4)}, {v(vB+4*i,4)}, {c}"
        wr = [f"ds_write_b128 v{vE3}, {v(b,4)} offset:{LDS_MEM + u*1024}" for u, (b, rest) in enumerate(e3_loads)]
        sq = [wr[0], qk1(0, 0, True), ck[0], ck[1], wr[1], qk1(0, 1, True), ck[2], ck[3], wr[2], qk1(1, 0, False), ck[4], ck[5], wr[3], qk1(1, 1, False)] + ck[6:]
        emit(sq)
        retry_tail("e3", 0, lambda: [o(f"global_load_dwordx4 {v(b,4)}, {rest}") for b, rest in e3_loads], "L_e3_go")
        stamp()
        o("s_waitcnt lgkmcnt(0)")
        o("s_barrier")
        for i in range(4, 16):
            o(f"ds_read_b128 {v(vB+4*i,4)}, v{vRd[i//4]} offset:{LDS_MEM + (i%4)*1024}")
        for u in (2, 3): qk_mfma(u)
    else:
        simple_poll(e3_loads, "e3", 0, 0)
        if SIG:
            o(f"s_sub_u32 s{sT3}, s{sStep}, 1"); o(f"s_cbranch_scc1 L_nosig")
            o(f"s_and_b32 s{sT0}, s{sT3}, 15"); o(f"s_cmp_lg_u32 s{sT0}, s{sJ}"); o("s_cbranch_scc1 L_nosig")
            o(f"s_lshl_b32 s{sT0}, s{sT3}, 7"); o(f"s_add_u32 s{sT0}, s{sT0}, {CNT_REC}")
            o(f"v_mov_b32 v{vX+2}, s{sT0}"); o(f"v_mov_b32 v{vX+3}, 1")
            o("s_mov_b64 exec, 1")
            o(f"global_atomic_add v{vX+2}, v{vX+3}, {s(sCNT,2)}")
            o("s_mov_b64 exec, -1")
            A.label("L_nosig")
        for u, (b, rest) in enumerate(e3_loads):
            o(f"ds_write_b128 v{vE3}, {v(b,4)} offset:{LDS_MEM + u*1024}")
        for u in range(4): qk_mfma(u, first=(u == 0))
        stamp()
        o("s_waitcnt lgkmcnt(0)")
        o("s_barrier")
        for i in range(4, 16):
            o(f"ds_read_b128 {v(vB+4*i,4)}, v{vRd[i//4]} offset:{LDS_MEM + (i%4)*1024}")
    vxl = vx_loads()
    for i in range(4, 16):
        o(f"s_waitcnt lgkmcnt({15-i})")
        qk_mfma(i)
        if i % VSP == VSP - 1 and vxl: o(vxl.pop(0))
    stamp()
    for r in range(4):
        o(f"v_add_f32_dpp v{vA0+r}, v{vA1+r}, v{vA0+r} row_ror:8 row_mask:0xf bank_mask:0xf")
    R = vX + 4
    o(f"v_cvt_pk_bf16_f32 v{R}, v{vA0}, v{vA0+1}")
    o(f"v_cvt_pk_bf16_f32 v{R+1}, v{vA0+2}, v{vA0+3}")
    o(f"v_permlane16_swap_b32 v{R}, v{R+2}")
    o(f"v_permlane16_swap_b32 v{R+1}, v{R+3}")
    o(f"s_mov_b64 exec, {s(sMaskQK,2)}")
    o(f"global_store_dwordx4 v{vQKst}, {v(R,4)}, {s(sQK,2)}{st_fast}")
    o("s_mov_b64 exec, -1")
    stamp()
    if ONE:
        o(f"s_cmp_lg_u32 s{sStep}, {ONE['pstep']}"); o("s_cbranch_scc1 L_one_np")
        o(f"s_or_b32 s{sT0}, s{sG}, s{sJ}"); o(f"s_or_b32 s{sT0}, s{sT0}, s{sW}"); o(f"s_cmp_lg_u32 s{sT0}, 0"); o("s_cbranch_scc1 L_one_np")
        o(f"s_add_u32 s{sT0}, s{sWS}, {WS_CNT}"); o(f"s_addc_u32 s{sT1}, s{sWS+1}, 0")
        o(f"v_mov_b32 v{vX+2}, {ONE['p58']}"); o(f"v_mov_b32 v{vX+3}, 1"); o("s_mov_b64 exec, 1")
        o(f"global_atomic_add v{vX+2}, v{vX+3}, {s(sT0,2)}"); o("s_mov_b64 exec, -1")
        A.label("L_one_np")
    if FC & 32: o("s_waitcnt vmcnt(7)")
    e1_loads = [(vQ + 4*cp, f"v{vE3}, {s(sQK,2)} offset:{cp*1024} sc1") for cp in range(2)] + [(vKm + 4*cp, f"v{vE3}, {s(sQK,2)} offset:{2048+cp*1024} sc1") for cp in range(2)]
    def e1_issue():
        for b, rest in e1_loads: o(f"global_load_dwordx4 {v(b,4)}, {rest}")
    for i in range(8):
        for half, acc in ((0, vAv0), (1, vAv1)):
            c = "0" if i == 0 else v(acc, 4)
            o(f"v_mfma_f32_16x16x32_bf16 {v(acc,4)}, {v(vB+4*i,4)}, {a(128+(i*2+half)*4,4)}, {c}")
        if vxl and i % 2 == 1: o(vxl.pop(0))
        if i == E1_AT:
            emit(vxl); vxl = []
            e1_issue()
    emit(vxl)
    for r in range(4):
        o(f"v_cndmask_b32 v{vAv0+r}, v{vAv1+r}, v{vAv0+r}, {s(sSelV,2)}")
    o(f"ds_write_b128 v{vVw}, {v(vAv0,4)} offset:{LDS_V}")
    o("s_waitcnt lgkmcnt(0)")
    o("s_barrier")
    o(f"s_cmp_lg_u32 s{sW}, 0")
    o("s_cbranch_scc1 L_vred_skip")
    T = vA0
    for k, off in enumerate((0, 512, 2048, 2560)):
        o(f"ds_read_b128 {v(T+4*k,4)}, v{vVr} offset:{LDS_V+off}")
    o("s_waitcnt lgkmcnt(0)")
    for r in range(4):
        o(f"v_add_f32 v{T+r}, v{T+r}, v{T+4+r}")
        o(f"v_add_f32 v{T+8+r}, v{T+8+r}, v{T+12+r}")
    for r in range(4):
        o(f"v_add_f32 v{T+r}, v{T+r}, v{T+8+r}")
    o(f"v_cvt_pk_bf16_f32 v{R}, v{T}, v{T+1}")
    o(f"v_cvt_pk_bf16_f32 v{R+1}, v{T+2}, v{T+3}")
    o(f"v_permlane32_swap_b32 v{R}, v{R+2}")
    o(f"v_permlane32_swap_b32 v{R+1}, v{R+3}")
    o(f"s_mov_b64 exec, {s(sSelV,2)}")
    o(f"global_store_dwordx4 v{vVst}, {v(R,4)}, {s(sVR,2)}{st_fast}")
    o("s_mov_b64 exec, -1")
    o("s_waitcnt vmcnt(1)")
    o("s_branch L_e1_c")
    A.label("L_e1_r")
    e1_issue()
    A.label("L_vred_skip")
    o("s_waitcnt vmcnt(0)")
    A.label("L_e1_c")
    if not (FC & 2): check([b + r for b, _ in e1_loads for r in range(4)], "L_e1_ok", "L_e1_r", vX, 1)
    stamp()
    def M32(d, A_, B_, C_): return f"v_mfma_f32_16x16x32_bf16 {v(d,4)}, {A_}, {B_}, {C_}"
    def rot(dst, srcr): return [f"v_mov_b32_dpp v{dst+r}, v{srcr+r} row_ror:8 row_mask:0xf bank_mask:0xf" for r in range(4)]
    Kf = lambda kt, u: v(vK + (kt*4+u)*4, 4)
    seq = []
    seq += [M32(vSx, Kf(0,0), v(vQ,4), "0")] + rot(vQr, vQ)[:2]
    seq += [M32(vSx+4, Kf(1,0), v(vQ,4), "0")] + rot(vQr, vQ)[2:]
    seq += [M32(vSm, v(vKm,4), v(vQ,4), v(vNeg,4))] + rot(vQr+4, vQ+4)[:2]
    seq += [M32(vSx, Kf(0,2), v(vQ+4,4), v(vSx,4))] + rot(vQr+4, vQ+4)[2:]
    seq += [M32(vSx+4, Kf(1,2), v(vQ+4,4), v(vSx+4,4))] + rot(vKr, vKm)[:2]
    seq += [M32(vSm, v(vKm+4,4), v(vQ+4,4), v(vSm,4))] + rot(vKr, vKm)[2:]
    seq += [M32(vSx, Kf(0,1), v(vQr,4), v(vSx,4))] + rot(vKr+4, vKm+4)[:2]
    seq += [M32(vSx+4, Kf(1,1), v(vQr,4), v(vSx+4,4))] + rot(vKr+4, vKm+4)[2:]
    seq += [M32(vSx, Kf(0,3), v(vQr+4,4), v(vSx,4))]
    seq += [M32(vSx+4, Kf(1,3), v(vQr+4,4), v(vSx+4,4))]
    seq += [M32(vSm, v(vKr,4), v(vQr,4), v(vSm,4))]
    seq += [M32(vSm, v(vKr+4,4), v(vQr+4,4), v(vSm,4))]
    if FC & 2:
        ck = chk_list([b + r_ for b, _ in e1_loads for r_ in range(4)], vX)
        tail4 = seq[-4:]; seq = seq[:-4]
        sq2 = []
        for k_, m_ in enumerate(tail4):
            sq2.append(m_); sq2 += ck[2*k_:2*k_+2]
        sq2 += ck[8:]
        emit(seq + sq2)
        retry_tail("e1", 1, e1_issue, "L_e1_c")
    else:
        emit(seq)
    if not FIXKV:
        o(f"s_add_u32 s{sKX}, s{sKX}, 262144"); o(f"s_addc_u32 s{sKX+1}, s{sKX+1}, 0")
    vm_loads = [(vVm + 4*mm, f"v{vVld}, {s(sVR,2)} offset:{mm*1024} sc1") for mm in range(2)]
    for b, rest in vm_loads: o(f"global_load_dwordx4 {v(b,4)}, {rest}")
    if PF and PFE: o(f"global_load_dwordx4 {v(vPf,4)}, v{vPfo}, {s(sPF,2)}")
    m, t = vX + 1, vX + 2
    Sall = list(range(vSx, vSx + 8)) + list(range(vSm, vSm + 4))
    m2 = vX + 3
    o(f"v_max3_f32 v{m}, v{Sall[0]}, v{Sall[1]}, v{Sall[2]}")
    o(f"v_max3_f32 v{m2}, v{Sall[4]}, v{Sall[5]}, v{Sall[6]}")
    o(f"v_max3_f32 v{m}, v{m}, v{Sall[3]}, v{Sall[7]}")
    o(f"v_max3_f32 v{m2}, v{m2}, v{Sall[8]}, v{Sall[9]}")
    o(f"v_max3_f32 v{m}, v{m}, v{Sall[10]}, v{Sall[11]}")
    o(f"v_max_f32 v{m}, v{m}, v{m2}")
    for sw in ("16", "32"):
        o(f"v_mov_b32 v{t}, v{m}")
        o(f"v_permlane{sw}_swap_b32 v{m}, v{t}")
        o(f"v_max_f32 v{m}, v{m}, v{t}")
    mm_ = vX + 2
    o(f"v_mul_f32 v{mm_}, s{sScale}, v{m}")
    kxl = kx_loads()
    main = []
    for r in Sall[::2]: main.append(f"v_pk_fma_f32 {v(r,2)}, {v(r,2)}, {s(sScale,2)}, {v(mm_,2)} op_sel_hi:[1,1,0] neg_lo:[0,0,1] neg_hi:[0,0,1]")
    for k_, r in enumerate(Sall):
        main.append(f"v_exp_f32 v{r}, v{r}")
    emit(merge(main, [kxl.pop(0), kxl.pop(0)], 7))
    o(f"v_cvt_pk_bf16_f32 v{vPx}, v{vSx}, v{vSx+1}")
    o(f"v_cvt_pk_bf16_f32 v{vPx+1}, v{vSx+2}, v{vSx+3}")
    o(f"v_cvt_pk_bf16_f32 v{vPx+2}, v{vSx+4}, v{vSx+5}")
    o(f"v_cvt_pk_bf16_f32 v{vPx+3}, v{vSx+6}, v{vSx+7}")
    o(f"v_cvt_pk_bf16_f32 v{vPmA}, v{vSm}, v{vSm+1}")
    o(f"v_cvt_pk_bf16_f32 v{vPmA+1}, v{vSm+2}, v{vSm+3}")
    stamp()
    vLs = vSx
    pv = [M32(vO+4*tt, v(vV+4*tt,4), v(vPx,4), "0") for tt in range(8)]
    side = [f"v_mov_b32 v{vX+4}, v{vPmA}", f"v_mov_b32 v{vX+5}, v{vPmA+1}", f"v_mov_b32 v{vPmB}, 0", f"v_mov_b32 v{vPmB+1}, 0",
            f"v_permlane32_swap_b32 v{vPmB}, v{vX+4}", f"v_permlane32_swap_b32 v{vPmB+1}, v{vX+5}", kxl.pop(0)]
    if FC & 4:
        o(M32(vLs, v(vOnes,4), v(vPx,4), "0"))
        emit(merge(pv[:5], side, 1)[:12])
        o(f"s_waitcnt vmcnt({4 if (PF and PFE) else 3})")
        A.label("L_vm_go")
        ck = chk_list(range(vVm, vVm + 8), vX)
        sq3 = [pv[5]] + ck[:2] + [pv[6]] + ck[2:4] + [pv[7]] + ck[4:]
        o(f"v_mfma_f32_16x16x16_bf16 {v(vLs,4)}, {v(vOnes,2)}, {v(vPmA,2)}, {v(vLs,4)}")
        emit(sq3)
        o("s_cbranch_vccz L_vm_fok")
        A.label("L_vm_rr")
        if prof: o(f"s_add_u32 s{sCnt+2}, s{sCnt+2}, 1")
        o(f"s_sub_u32 s{sLim}, s{sLim}, 1"); o("s_cbranch_scc1 L_vm_fto")
        for b, rest in vm_loads: o(f"global_load_dwordx4 {v(b,4)}, {rest}")
        o("s_waitcnt vmcnt(0)")
        emit(chk_list(range(vVm, vVm + 8), vX))
        o("s_cbranch_vccnz L_vm_rr"); o("s_branch L_vm_fok")
        A.label("L_vm_fto"); o(f"s_mov_b32 s{sLim}, 0")
        A.label("L_vm_fok")
    else:
        emit(merge(pv, side, 1))
        o(M32(vLs, v(vOnes,4), v(vPx,4), "0"))
        o(f"v_mfma_f32_16x16x16_bf16 {v(vLs,4)}, {v(vOnes,2)}, {v(vPmA,2)}, {v(vLs,4)}")
        simple_poll(vm_loads, "vm", 2, 4 if (PF and PFE) else 3)
    stamp()
    def pvm(tt):
        c, tv = tt >> 1, tt & 1
        pm = vPmB if (c & 1) else vPmA
        return f"v_mfma_f32_16x16x16_bf16 {v(vO+4*tt,4)}, {v(vVm+4*(c>>1)+2*tv,2)}, {v(pm,2)}, {v(vO+4*tt,4)}"
    def cvt(tt):
        u, h = tt >> 1, tt & 1
        return [f"v_cvt_pk_bf16_f32 v{vOb+4*u+2*h}, v{vO+4*tt}, v{vO+4*tt+1}", f"v_cvt_pk_bf16_f32 v{vOb+4*u+2*h+1}, v{vO+4*tt+2}, v{vO+4*tt+3}"]
    if REORD:
        for tt in range(4): o(pvm(tt))
    if KVCHK:
        o(f"s_add_u32 s{sT0}, s{sStep}, 3"); o(f"s_and_b32 s{sT1}, s{sT0}, 7"); o(f"s_cmp_lg_u32 s{sT1}, 0"); o("s_cbranch_scc1 L_nofl")
        o(f"s_lshr_b32 s{sT0}, s{sT0}, 3"); o(f"s_lshl_b32 s{sT0}, s{sT0}, 3"); o(f"s_add_u32 s{sT0}, s{sT0}, s{sG}"); o(f"s_lshl_b32 s{sT0}, s{sT0}, 7")
        o(f"v_mov_b32 v{vFlag}, s{sT0}")
        o(f"global_load_dword v{vFlag}, v{vFlag}, {s(sCNT,2)} sc1")
        A.label("L_nofl")
    o(f"s_and_b32 s{sT0}, s{sStep}, 15"); o(f"s_cmp_lg_u32 s{sT0}, s{sJ}"); o("s_cbranch_scc1 L_nopub")
    for cp in range(2): o(f"global_store_dwordx4 v{vL16}, {v(vKm+4*cp,4)}, {s(sKM,2)} offset:{cp*1024}" + (" sc1" if (SIG or KMSC1) else ""))
    for cp in range(2): o(f"global_store_dwordx4 v{vL16}, {v(vVm+4*cp,4)}, {s(sVM,2)} offset:{cp*1024}" + (" sc1" if (SIG or KMSC1) else ""))
    A.label("L_nopub")
    if LAST_SHORT:
        o(f"s_cmp_eq_u32 s{sStep}, {nsteps-1}")
        o("s_cbranch_scc1 L_rec_last")
    if PF and not PFE: o(f"global_load_dwordx4 {v(vPf,4)}, v{vPfo}, {s(sPF,2)}")
    if not REORD:
        for tt in range(3): o(pvm(tt))
    vCa = [16, 20, 24, 28]
    l_ = vX + 1
    def cm(ct, u):
        c = "0" if u == 0 else v(vCa[ct], 4)
        return f"v_mfma_f32_16x16x32_bf16 {v(vCa[ct],4)}, {a(192+(ct*4+u)*4,4)}, {v(vOb+4*u,4)}, {c}"
    pend = []
    for tt in range(8):
        if REORD:
            if tt + 4 < 8: o(pvm(tt + 4))
        elif tt + 3 < 8: o(pvm(tt + 3))
        cv = cvt(tt)
        o(cv[0])
        if pend: o(pend.pop(0))
        o(cv[1])
        if pend: o(pend.pop(0))
        if tt == 0: o(f"v_rcp_f32 v{l_}, v{vLs}")
        if tt % 2 == 1:
            pend += [cm(ct, tt >> 1) for ct in range(4)]
            if kxl: o(kxl.pop(0))
    emit(pend)
    for ct in range(4):
        pass
    o(f"v_mov_b32 v{vX+2}, v{l_}")
    for ct in range(4):
        o(f"v_pk_mul_f32 {v(vCa[ct],2)}, {v(vCa[ct],2)}, {v(vX+2,2)} op_sel_hi:[1,0]")
        o(f"v_pk_mul_f32 {v(vCa[ct]+2,2)}, {v(vCa[ct]+2,2)}, {v(vX+2,2)} op_sel_hi:[1,0]")
        o(f"ds_write_b128 v{vVw}, {v(vCa[ct],4)} offset:{LDS_O+ct*4096}")
    while kxl: o(kxl.pop(0))
    o("s_waitcnt lgkmcnt(0)")
    o("s_barrier")
    stamp()
    Rr = [112, 116, 120, 124]
    for sw in range(4): o(f"ds_read_b128 {v(Rr[sw],4)}, v{vE3} offset:{LDS_O+sw*1024}")
    vC = Rr[0]
    o("s_waitcnt lgkmcnt(2)")
    o(f"v_pk_add_f32 {v(Rr[0],2)}, {v(Rr[0],2)}, {v(Rr[1],2)}"); o(f"v_pk_add_f32 {v(Rr[0]+2,2)}, {v(Rr[0]+2,2)}, {v(Rr[1]+2,2)}")
    o("s_waitcnt lgkmcnt(0)")
    o(f"v_pk_add_f32 {v(Rr[2],2)}, {v(Rr[2],2)}, {v(Rr[3],2)}"); o(f"v_pk_add_f32 {v(Rr[2]+2,2)}, {v(Rr[2]+2,2)}, {v(Rr[3]+2,2)}")
    o(f"v_pk_add_f32 {v(Rr[0],2)}, {v(Rr[0],2)}, {v(Rr[2],2)}"); o(f"v_pk_add_f32 {v(Rr[0]+2,2)}, {v(Rr[0]+2,2)}, {v(Rr[2]+2,2)}")
    o(f"v_cvt_pk_bf16_f32 v{R}, v{vC}, v{vC+1}")
    o(f"v_cvt_pk_bf16_f32 v{R+1}, v{vC+2}, v{vC+3}")
    o(f"v_permlane16_swap_b32 v{R}, v{R+2}")
    o(f"v_permlane16_swap_b32 v{R+1}, v{R+3}")
    o(f"s_mov_b64 exec, {s(sMaskQK,2)}")
    if EP == 2:
        o("s_waitcnt vmcnt(0)")
        o(f"{TIMER} {s(sTs + 2*5, 2)}")
    o(f"global_store_dwordx4 v{vPst}, {v(R,4)}, {s(sPART,2)} sc1")
    stamp()
    if EP == 2:
        o("s_waitcnt vmcnt(0)")
        o(f"{TIMER} {s(sTs + 2*4, 2)}")
    o(f"global_store_dwordx4 v{vQKst}, {v(vSent,4)}, {s(sRq,2)}{st_fast}")
    o(f"s_mov_b64 exec, 0xffff")
    o(f"global_store_dwordx4 v{vMst}, {v(vSent,4)}, {s(sRm,2)}{st_fast}")
    o(f"s_cmp_lg_u32 s{sW}, 0")
    o("s_cbranch_scc1 L_norv")
    o(f"s_mov_b64 exec, {s(sSelV,2)}")
    o(f"global_store_dwordx4 v{vVst}, {v(vSent,4)}, {s(sRv,2)}{st_fast}")
    A.label("L_norv")
    o("s_mov_b64 exec, -1")
    if not FIXKV:
        o(f"s_add_u32 s{sVX}, s{sVX}, 262144"); o(f"s_addc_u32 s{sVX+1}, s{sVX+1}, 0")
    o(f"s_add_u32 s{sKM}, s{sKM}, 65536"); o(f"s_addc_u32 s{sKM+1}, s{sKM+1}, 0")
    o(f"s_add_u32 s{sVM}, s{sVM}, 65536"); o(f"s_addc_u32 s{sVM+1}, s{sVM+1}, 0")
    if E2_DELAY: o(f"s_sleep {E2_DELAY}")
    sets = [vB + 8 * k for k in range(E2_DEPTH)]
    def e2_issue(b):
        o(f"global_load_dwordx4 {v(b,4)}, v{vPld}, {s(sPART,2)} {E2F}")
        o(f"global_load_dwordx4 {v(b+4,4)}, v{vPld}, {s(sPART2,2)} {E2F}")
    if EP: o(f"{TIMER} {s(sTs + 2*2, 2)}")
    for k, b in enumerate(sets):
        e2_issue(b)
        if k + 1 < len(sets) and E2_SP: o(f"s_sleep {E2_SP}")
    if EP:
        o(f"s_waitcnt vmcnt({2*(len(sets)-1)})")
        o(f"{TIMER} {s(sTs + 2*3, 2)}")
    if FC & 8:
        assert E2_DEPTH == 1
        b = sets[0]; D = vA1
        o("s_waitcnt vmcnt(0)")
        A.label("L_e2_go")
        o(f"v_mfma_f32_16x16x32_bf16 {v(D,4)}, {v(vDelta,4)}, {v(b,4)}, 0")
        o(f"v_mfma_f32_16x16x32_bf16 {v(D,4)}, {v(vDelta,4)}, {v(b+4,4)}, {v(D,4)}")
        emit(chk_list(range(b, b + 8), vX))
        retry_tail("e2", 3, lambda: e2_issue(b), "L_e2_go")
    else:
        A.label("L_e2")
        for k, b in enumerate(sets):
            o(f"s_waitcnt vmcnt({2*(len(sets)-1)})")
            regs = list(range(b, b + 8))
            o(f"v_max3_u32 v{vX}, v{regs[0]}, v{regs[1]}, v{regs[2]}")
            o(f"v_max3_u32 v{vX}, v{vX}, v{regs[3]}, v{regs[4]}")
            o(f"v_max3_u32 v{vX}, v{vX}, v{regs[5]}, v{regs[6]}")
            o(f"v_max_u32 v{vX}, v{vX}, v{regs[7]}")
            o(f"v_cmp_eq_u32 vcc, -1, v{vX}")
            o(f"s_cbranch_vccz L_e2_ok{k}")
            if prof: o(f"s_add_u32 s{sCnt+3}, s{sCnt+3}, 1")
            e2_issue(b)
        o(f"s_sub_u32 s{sLim}, s{sLim}, 1")
        o(f"s_cbranch_scc0 L_e2")
        o(f"s_mov_b32 s{sLim}, 0")
        D = vA1
        for k, b in enumerate(sets):
            A.label(f"L_e2_ok{k}")
            o(f"v_mfma_f32_16x16x32_bf16 {v(D,4)}, {v(vDelta,4)}, {v(b,4)}, 0")
            o(f"v_mfma_f32_16x16x32_bf16 {v(D,4)}, {v(vDelta,4)}, {v(b+4,4)}, {v(D,4)}")
            if k + 1 < len(sets): o("s_branch L_e2_done")
    A.label("L_e2_done")
    o(f"s_add_u32 s{sPF}, s{sPF}, 262144"); o(f"s_addc_u32 s{sPF+1}, s{sPF+1}, 0")
    stamp()
    o("s_nop 7")
    o(f"v_cvt_pk_bf16_f32 v{R}, v{D}, v{D+1}")
    o(f"v_cvt_pk_bf16_f32 v{R+1}, v{D+2}, v{D+3}")
    o(f"v_permlane16_swap_b32 v{R}, v{R+2}")
    o(f"v_permlane16_swap_b32 v{R+1}, v{R+3}")
    o(f"s_mov_b64 exec, 0xffff")
    o(f"global_store_dwordx4 v{vMst}, {v(R,4)}, {s(sMEMn,2)}{st_fast}")
    o("s_mov_b64 exec, -1")
    stamp()
    if E3_DELAY: o(f"s_sleep {E3_DELAY}")
    if prof:
        o("s_waitcnt lgkmcnt(0)")
        for k in range(nst[0]):
            o(f"v_writelane_b32 v{vX+8}, s{sTs+2*k}, {k}")
        for k in range(4):
            o(f"v_writelane_b32 v{vX+8}, s{sCnt+k}, {11+k}")
        o(f"v_writelane_b32 v{vX+8}, s92, 15")
        o(f"s_lshl_b32 s{sT0}, s{sW}, 12")
        o(f"s_lshl_b32 s{sT1}, s{sStep}, 6")
        o(f"s_add_u32 s{sT0}, s{sT0}, s{sT1}")
        o(f"s_add_u32 s{sT0}, s{sT0}, 40960")
        o(f"v_lshlrev_b32 v{vX+9}, 2, v{vL}")
        o(f"v_add_u32 v{vX+9}, s{sT0}, v{vX+9}")
        o("s_mov_b64 exec, 0xffff")
        o(f"ds_write_b32 v{vX+9}, v{vX+8}")
        o("s_mov_b64 exec, -1")
    o(f"s_add_u32 s{sStep}, s{sStep}, 1")
    o(f"s_cmp_lt_u32 s{sStep}, {nsteps}")
    o("s_cbranch_scc1 L_step")
    o("s_branch L_rec_fin")
    A.label("L_rec_last")
    if SIG:
        o("s_waitcnt vmcnt(0)")
        o(f"s_and_b32 s{sT0}, s{sStep}, 15"); o(f"s_cmp_lg_u32 s{sT0}, s{sJ}"); o("s_cbranch_scc1 L_rec_fin")
        o(f"s_lshl_b32 s{sT0}, s{sStep}, 7"); o(f"s_add_u32 s{sT0}, s{sT0}, {CNT_REC}")
        o(f"v_mov_b32 v{vX+2}, s{sT0}"); o(f"v_mov_b32 v{vX+3}, 1")
        o("s_mov_b64 exec, 1")
        o(f"global_atomic_add v{vX+2}, v{vX+3}, {s(sCNT,2)}")
        o("s_mov_b64 exec, -1")
    A.label("L_rec_fin")
    if prof:
        o("s_waitcnt lgkmcnt(0)")
        o(f"s_lshl_b32 s{sT0}, s{sW}, 12")
        o(f"s_add_u32 s{sT0}, s{sT0}, 40960")
        o(f"v_add_u32 v{vX+9}, s{sT0}, v{vL16}")
        for k in range(4):
            o(f"ds_read_b128 {v(vB+4*k,4)}, v{vX+9} offset:{k*1024}")
        o("s_waitcnt lgkmcnt(0)")
        for k in range(4):
            o(f"global_store_dwordx4 v{vL16}, {v(vB+4*k,4)}, {s(sProf,2)} offset:{k*1024}")
    o("s_waitcnt vmcnt(0)")
    if ONE:
        o("s_barrier")
        o(f"s_cmp_lg_u32 s{sW}, 0"); o("s_cbranch_scc1 L_one_j")
        o(f"s_add_u32 s{sT0}, s{sWS}, {WS_CNT}"); o(f"s_addc_u32 s{sT1}, s{sWS+1}, 0")
        o(f"s_lshl_b32 s{sT2}, s{sG}, 4"); o(f"s_add_u32 s{sT2}, s{sT2}, s{sJ}"); o(f"s_lshl_b32 s{sT2}, s{sT2}, 2"); o(f"s_add_u32 s{sT2}, s{sT2}, {ONE['done']}")
        o(f"v_mov_b32 v2, s{sT2}"); o("v_mov_b32 v3, 1"); o("s_mov_b64 exec, 1")
        o(f"global_store_dword v2, v3, {s(sT0,2)} sc1"); o("s_mov_b64 exec, -1")
        A.label("L_one_j")
        o("s_branch T_last")
    A.label("L_rec_end")
    o("s_endpgm")
    txt = A.finish()
    if embedded:
        import re
        return re.sub(r"\bL_", pfx + "L_", txt)
    return kernel_head(name) + txt + kernel_desc(name, 256, 256)

if __name__ == "__main__":
    import sys
    fast = "slow" not in sys.argv
    prof = "prof" in sys.argv
    ng = 256 if any(x.startswith("X4=1") for x in sys.argv) else 128
    hdr = f"; @launch kernel=rec_kernel grid=({ng},1,1) block=(256,1,1) lds=131072\n.amdgcn_target \"amdgcn-amd-amdhsa--gfx950\"\n.text\n"
    kw = {}
    for x in sys.argv[1:]:
        if "=" in x:
            k_, v_ = x.split("=");
            if k_ != "out": kw[k_] = int(v_) if v_.isdigit() else v_
    outn = [x.split("=")[1] for x in sys.argv if x.startswith("out=")]
    open(outn[0] if outn else "rec_test.s", "w").write(hdr + gen_rec(fast=fast, prof=prof, **kw))
```

```python
import sys
from layout import *
import k_gemms, mega2, mega3
NAME = "adaLN_cond__memory_aug_recurrent_mem_tr__mixer_token_mlp__prompt"
HDR = open("cdna_kernels/" + NAME + ".s.ref").read().split("; Override launch geometry")[0]
def build(out, prof=False, slow=False, place=8, opt=None):
    import k_tail as _kt
    _kt.OPROF = bool((opt or {}).get('oprof'))
    import k_small
    g2, l_g2 = k_gemms.gen_g2()
    p3 = (opt or {}).get("p3", 4)
    launches = [("mega_kernel", 256, 256, 131072)]
    extra = ""
    if p3 < 4:
        k_gemms.PROF = bool((opt or {}).get('tprof'))
        op, l_op = k_gemms.gen_op(); g1, l_g1 = k_gemms.gen_g1()
        if p3 == 0:
            import k_attn
            k_attn.PROF = bool((opt or {}).get('tprof'))
            if (opt or {}).get("at2"):
                launches += [("attn_kernel", 512, 256, 0)]; pre_extra = k_attn.gen_attn2()
            else:
                launches += [("attn_kernel", 1024, 256, 0)]; pre_extra = k_attn.gen_attn()
        else: pre_extra = ""
        launches += [("op_kernel", 256, 256, l_op), ("ln2_kernel", 64, 1024, 32 * 2112), ("g1_kernel", 224, 256, l_g1)]
        extra = pre_extra + op + k_small.gen_ln2() + g1
    if (opt or {}).get("tail2"):
        import k_tail
        k_tail.LOPT = {k_[2:]: v_ for k_, v_ in (opt or {}).items() if k_.startswith('l_')}
        k_tail.SPLIT = bool((opt or {}).get('split'))
        k_tail.SENT = bool((opt or {}).get('sent'))
        k_tail.PROF = bool((opt or {}).get('tprof'))
        opln, l_opln = k_tail.gen_opln(); g2s, l_g2s = k_tail.gen_g2s()
        launches = [x for x in launches if x[0] not in ("op_kernel", "ln2_kernel")]
        pos = [i for i, x in enumerate(launches) if x[0] == "g1_kernel"][0]
        launches.insert(pos, ("opln_kernel", 256, 256, l_opln))
        launches += [("g2s_kernel", 256, 256, l_g2s)]
        extra = pre_extra + opln + g1; g2 = g2s
        if (opt or {}).get("fuse"):
            wa = (opt or {}).get("fuse") == 2
            tl, l_tl = k_tail.gen_tail(with_attn=wa)
            launches = [x for x in launches if x[0] not in ("opln_kernel", "g1_kernel", "g2s_kernel") + (("attn_kernel",) if wa else ())] + [("tail_kernel", 256, 256, l_tl)]
            extra = "" if wa else pre_extra; g2 = tl
    else:
        launches += [("g2_kernel", 256, 256, l_g2)]
    if (opt or {}).get("one"):
        launches = [x for x in launches if x[0] == "mega_kernel"]; extra = ""; g2 = ""
    t = HDR
    for k, g, b, l in launches: t += f"; @launch kernel={k} grid=({g},1,1) block=({b},1,1) lds={l}\n"
    t += '.amdgcn_target "amdgcn-amd-amdhsa--gfx950"\n.text\n'
    t += (mega3 if (opt or {}).get('m3') else mega2).gen_mega(recopt=dict(dict(E2_DEPTH=2, E2_SP=3, E2_DELAY=2, prof=prof, RT=1), **{k_[2:]: v_ for k_, v_ in (opt or {}).items() if k_.startswith('r_')}), force_slow=slow, place=place, opt=opt) + extra + g2
    open(out, "w").write(t)
if __name__ == "__main__":
    opt = {'S': 4}
    for x in sys.argv[2:]:
        if '=' in x: opt[x.split('=')[0]] = int(x.split('=')[1])
    build(sys.argv[1], 'prof' in sys.argv, 'slow' in sys.argv, 4 if 'p4' in sys.argv else 8, opt)
```

```python
from asmlib import *
from layout import *
from gemm import Gemm, gen_loop, gen_loop2
from k_qkv import srd
from k_small import fbits, LOG2E, wave_sum, ln_rows, unpack8, gfun
from k_attn import attn_body
from mega import qkv_tile
import rec12 as rec
import re, math

CNT_MODA, CNT_MODB, CNT_MODC = 40960, 40960 + 128, 40960 + 256
CNT_LN1 = 41984
CNT_RLY = 24576
SLOW_OFF = 65536

sW, sXb, sI, sWS = 3, 4, 5, 6
sCNT, sB, sCh, sRound, sChk, sLim = 60, 62, 63, 64, 65, 66
sCt, sTok, sCntOff = 67, 68, 69
sDBG = 70
sFt, sDtG = 81, 82

def wait_cnt(A, off, target, tag, off_s=None, sleep=3):
    o = A
    o(f"s_cmp_lg_u32 s{sW}, 0"); o(f"s_cbranch_scc1 L_wc_{tag}_b")
    if off_s is None: o(f"v_mov_b32 v2, {off}")
    else:
        o(f"s_add_u32 s44, s{off_s}, {off}"); o("v_mov_b32 v2, s44")
    A.label(f"L_wc_{tag}")
    o(f"global_load_dword v3, v2, {s(sCNT,2)} sc1")
    o("s_waitcnt vmcnt(0)")
    o("v_readfirstlane_b32 s44, v3")
    o(f"s_cmp_ge_u32 s44, {target}"); o(f"s_cbranch_scc1 L_wc_{tag}_b")
    o(f"s_sleep {sleep}")
    o(f"s_sub_u32 s{sLim}, s{sLim}, 1"); o(f"s_cbranch_scc0 L_wc_{tag}")
    o(f"s_mov_b32 s{sLim}, 0")
    A.label(f"L_wc_{tag}_b")
    o("s_barrier")

def signal(A, off, tag, off_s=None):
    o = A
    o("s_waitcnt vmcnt(0)"); o("s_barrier")
    o(f"s_cmp_lg_u32 s{sW}, 0"); o(f"s_cbranch_scc1 L_sg_{tag}")
    if off_s is None: o(f"v_mov_b32 v2, {off}")
    else:
        o(f"s_add_u32 s44, s{off_s}, {off}"); o("v_mov_b32 v2, s44")
    o("v_mov_b32 v3, 1"); o("s_mov_b64 exec, 1")
    o(f"global_atomic_add v2, v3, {s(sCNT,2)}")
    o("s_mov_b64 exec, -1")
    A.label(f"L_sg_{tag}")

CNT_MODAF, CNT_LN1F, CNT_KV0F = 44032, 44544, 45568
def fsignal(A, off, tag, idx_s, off_s=None):
    o = A
    o("s_waitcnt vmcnt(0)"); o("s_barrier")
    o(f"s_cmp_lg_u32 s{sW}, 0"); o(f"s_cbranch_scc1 L_fs_{tag}")
    o(f"s_lshl_b32 s44, s{idx_s}, 2"); o(f"s_add_u32 s44, s44, {off}")
    if off_s is not None: o(f"s_add_u32 s44, s44, s{off_s}")
    o("v_mov_b32 v2, s44"); o("v_mov_b32 v3, 1"); o("s_mov_b64 exec, 1")
    o(f"global_store_dword v2, v3, {s(sCNT,2)} sc1"); o("s_mov_b64 exec, -1")
    A.label(f"L_fs_{tag}")

def fwait(A, off, n, tag, off_s=None, sleep=4):
    o = A
    o(f"s_cmp_lg_u32 s{sW}, 0"); o(f"s_cbranch_scc1 L_fw_{tag}_b")
    o("v_lshlrev_b32 v2, 2, v0")
    if off_s is not None:
        o(f"s_add_u32 s44, s{off_s}, {off}"); o("v_add_u32 v2, s44, v2")
    else:
        o(f"v_add_u32 v2, {off}, v2")
    o(f"s_mov_b64 exec, {hex((1 << n) - 1) if n < 64 else -1}")
    A.label(f"L_fw_{tag}")
    o(f"global_load_dword v3, v2, {s(sCNT,2)} sc1"); o("s_waitcnt vmcnt(0)")
    o("v_cmp_eq_u32 vcc, 0, v3"); o(f"s_cbranch_vccz L_fw_{tag}_o")
    o(f"s_sleep {sleep}"); o(f"s_sub_u32 s{sLim}, s{sLim}, 1"); o(f"s_cbranch_scc0 L_fw_{tag}"); o(f"s_mov_b32 s{sLim}, 0")
    A.label(f"L_fw_{tag}_o")
    o("s_mov_b64 exec, -1")
    A.label(f"L_fw_{tag}_b")
    o("s_barrier")

def mod_task(A, sCol, tag):
    o = A
    o("s_load_dwordx2 s[8:9], s[0:1], %d" % KA_WMOD)
    o("v_lshrrev_b32 v5, 2, v0"); o(f"s_lshl_b32 s12, s{sW}, 8"); o("v_add_u32 v5, s12, v5")
    o("v_lshlrev_b32 v6, 2, v5")
    o("s_mov_b32 s13, 12288"); o("v_mul_lo_u32 v7, v5, s13")
    o("v_and_b32 v26, 3, v0"); o("v_lshl_add_u32 v7, v26, 4, v7")
    o(f"s_lshl_b32 s12, s{sCol}, 1"); o("v_add_u32 v7, s12, v7")
    o("s_waitcnt lgkmcnt(0)")
    W = 32; Cc = 96; AC = 112
    for it in range(16):
        o(f"global_load_dwordx4 {v(W+4*it,4)}, v7, s[8:9]")
        o(f"v_add_u32 v7, {16*12288}, v7")
        o(f"ds_read_b32 v{Cc+it}, v6 offset:{it*64}")
    for e in range(8): o(f"v_mov_b32 v{AC+e}, 0")
    o("s_waitcnt lgkmcnt(0)")
    for it in range(16):
        o(f"s_waitcnt vmcnt({15-it})")
        for d in range(4):
            o(f"v_lshlrev_b32 v27, 16, v{W+4*it+d}")
            o(f"v_and_b32 v28, 0xffff0000, v{W+4*it+d}")
            o(f"v_fmac_f32 v{AC+2*d}, v27, v{Cc+it}")
            o(f"v_fmac_f32 v{AC+2*d+1}, v28, v{Cc+it}")
    for e in range(8):
        x = AC + e
        o(f"v_add_f32_dpp v{x}, v{x}, v{x} row_ror:4 row_mask:0xf bank_mask:0xf")
        o(f"v_add_f32_dpp v{x}, v{x}, v{x} row_ror:8 row_mask:0xf bank_mask:0xf")
        for sw in ("16", "32"):
            o(f"v_mov_b32 v27, v{x}"); o(f"v_permlane{sw}_swap_b32 v{x}, v27"); o(f"v_add_f32 v{x}, v{x}, v27")
    o(f"s_lshl_b32 s12, s{sW}, 7"); o("v_lshlrev_b32 v5, 5, v26"); o("v_add_u32 v5, s12, v5")
    o("s_mov_b64 exec, 0xf")
    o(f"ds_write_b128 v5, {v(AC,4)} offset:4096"); o(f"ds_write_b128 v5, {v(AC+4,4)} offset:4112")
    o("s_mov_b64 exec, -1")
    o("s_waitcnt lgkmcnt(0)"); o("s_barrier")
    o(f"s_cmp_lg_u32 s{sW}, 0"); o(f"s_cbranch_scc1 L_mod_{tag}_d")
    o("v_lshlrev_b32 v5, 2, v0")
    o("s_mov_b64 exec, 0xffffffff")
    for w in range(4): o(f"ds_read_b32 v{32+w}, v5 offset:{4096+w*128}")
    o("s_waitcnt lgkmcnt(0)")
    o("v_add_f32 v32, v32, v33"); o("v_add_f32 v34, v34, v35"); o("v_add_f32 v32, v32, v34")
    o("v_cvt_pk_bf16_f32 v32, v32, v32"); o("v_lshlrev_b32 v32, 16, v32")
    o(f"s_lshl_b32 s12, s{sCol}, 2"); o(f"s_add_u32 s12, s12, {WS_MOD}"); o("v_add_u32 v5, s12, v5")
    o(f"global_store_dword v5, v32, {s(sWS,2)} sc1")
    o("s_mov_b64 exec, -1")
    A.label(f"L_mod_{tag}_d")

def silu_to_lds(A, pre=None):
    o = A
    if pre: o(f"s_mov_b64 s[8:9], s[{pre}:{pre+1}]")
    else: o("s_load_dwordx2 s[8:9], s[0:1], %d" % KA_C)
    o(f"s_lshl_b32 s12, s{sW}, 6"); o("v_add_u32 v4, s12, v0")
    o("v_lshlrev_b32 v5, 3, v4")
    o("s_waitcnt lgkmcnt(0)")
    o("global_load_dwordx2 v[12:13], v5, s[8:9]")
    o("s_waitcnt vmcnt(0)")
    o("v_lshlrev_b32 v14, 16, v12"); o("v_and_b32 v15, 0xffff0000, v12"); o("v_lshlrev_b32 v16, 16, v13"); o("v_and_b32 v17, 0xffff0000, v13")
    o(f"s_mov_b32 s12, {fbits(-LOG2E)}")
    for r in range(4):
        o(f"v_mul_f32 v{20+r}, s12, v{14+r}"); o(f"v_exp_f32 v{20+r}, v{20+r}"); o(f"v_add_f32 v{20+r}, 1.0, v{20+r}")
        o(f"v_rcp_f32 v{20+r}, v{20+r}"); o(f"v_mul_f32 v{20+r}, v{14+r}, v{20+r}")
    o("v_cvt_pk_bf16_f32 v24, v20, v21"); o("v_cvt_pk_bf16_f32 v25, v22, v23")
    o("v_lshlrev_b32 v20, 16, v24"); o("v_and_b32 v21, 0xffff0000, v24"); o("v_lshlrev_b32 v22, 16, v25"); o("v_and_b32 v23, 0xffff0000, v25")
    o("v_lshlrev_b32 v4, 4, v4")
    o("ds_write_b128 v4, v[20:23]")
    o("s_waitcnt lgkmcnt(0)"); o("s_barrier")

def ln1_task(A):
    o = A
    o("s_load_dwordx2 s[8:9], s[0:1], %d" % KA_X)
    o("v_lshlrev_b32 v2, 4, v0"); o("v_lshlrev_b32 v3, 5, v0")
    o(f"s_add_u32 s12, s{sWS}, {WS_MOD}"); o(f"s_addc_u32 s13, s{sWS+1}, 0")
    SA, CA = 64, 80
    for h in range(2):
        for q in range(2): o(f"global_load_dwordx4 {v(SA+8*h+4*q,4)}, v3, s[12:13] offset:{h*2048+q*16}")
    o("s_add_u32 s12, s12, 4096"); o("s_addc_u32 s13, s13, 0")
    for h in range(2):
        for q in range(2): o(f"global_load_dwordx4 {v(CA+8*h+4*q,4)}, v3, s[12:13] offset:{h*2048+q*16}")
    o(f"s_lshl_b32 s14, s{sB}, 4"); o(f"s_lshl_b32 s15, s{sW}, 2"); o("s_add_u32 s14, s14, s15")
    o("s_waitcnt lgkmcnt(0)")
    o("s_lshl_b32 s15, s14, 11"); o("s_add_u32 s10, s8, s15"); o("s_addc_u32 s11, s9, 0")
    RAW = 96
    for r in range(4):
        off = r * 2048
        if off >= 4096:
            if r == 2: o("s_add_u32 s10, s10, 4096"); o("s_addc_u32 s11, s11, 0")
            off -= 4096
        o(f"global_load_dwordx4 {v(RAW+8*r,4)}, v2, s[10:11] offset:{off}")
        o(f"global_load_dwordx4 {v(RAW+8*r+4,4)}, v2, s[10:11] offset:{off+1024}")
    o("s_waitcnt vmcnt(8)")
    for e in range(16): o(f"v_add_f32 v{CA+e}, 1.0, v{CA+e}")
    X = [32, 48]
    for pr in range(2):
        o(f"s_waitcnt vmcnt({4 if pr == 0 else 0})") if pr == 0 else None
        if pr == 1: o("s_waitcnt vmcnt(4)")
        for r in range(2):
            unpack8(o, X[r], RAW + 8 * (2 * pr + r)); unpack8(o, X[r] + 8, RAW + 8 * (2 * pr + r) + 4)
        ln_rows(o, X, 2, [4, 5], 1e-5)
        for r in range(2):
            R0 = 8 + 8 * r
            for e in range(16): o(f"v_fma_f32 v{X[r]+e}, v{X[r]+e}, v{CA+e}, v{SA+e}")
            for h in range(2):
                for d in range(4): o(f"v_cvt_pk_bf16_f32 v{R0+4*h+d}, v{X[r]+8*h+2*d}, v{X[r]+8*h+2*d+1}")
            o(f"s_add_u32 s16, s14, {2*pr+r}"); o("s_lshr_b32 s17, s16, 4"); o("s_and_b32 s16, s16, 15")
            o("s_lshr_b32 s18, s16, 2"); o("s_lshr_b32 s19, s18, 1"); o("s_and_b32 s18, s18, 1"); o("s_xor_b32 s18, s18, s19"); o("s_lshl_b32 s18, s18, 1"); o("s_or_b32 s18, s18, s19")
            o("v_and_b32 v4, 3, v0"); o("v_xor_b32 v4, s18, v4"); o("v_lshlrev_b32 v4, 4, v4")
            o("v_lshrrev_b32 v5, 2, v0"); o("v_lshl_add_u32 v4, v5, 17, v4")
            o("s_lshl_b32 s17, s17, 10"); o("s_lshl_b32 s16, s16, 6"); o("s_add_u32 s17, s17, s16"); o(f"s_add_u32 s17, s17, {WS_H}")
            o("v_add_u32 v4, s17, v4")
            o(f"global_store_dwordx4 v4, {v(R0,4)}, {s(sWS,2)} sc1")
            o(f"v_add_u32 v4, {16*131072}, v4")
            o(f"global_store_dwordx4 v4, {v(R0+4,4)}, {s(sWS,2)} sc1")
        if pr == 0: o("s_nop 1")

def op_task(A):
    o = A
    S = 4; SBW = 6144
    sX, sY = 8, 12
    o("s_load_dwordx2 s[40:41], s[0:1], %d" % KA_WO); o("s_load_dwordx2 s[46:47], s[0:1], %d" % KA_X)
    o("s_waitcnt lgkmcnt(0)")
    srd(o, sX, 40, 0, 8 * MiB); srd(o, sY, sWS, WS_O, 16 * MiB)
    sDt, sTg = 48, 49
    o(f"s_lshl_b32 s{sDt}, s{sXb}, 1"); o(f"s_and_b32 s20, s{sI}, 1"); o(f"s_add_u32 s{sDt}, s{sDt}, s20")
    o(f"s_lshr_b32 s{sTg}, s{sI}, 1"); o(f"s_lshl_b32 s20, s{sCh}, 3"); o(f"s_add_u32 s{sTg}, s{sTg}, s20")
    sOX, sOY, sLb, sRd, sDm, sK = 20, 21, 22, 23, 24, 25
    o(f"s_lshl_b32 s{sOX}, s{sDt}, 7"); o(f"s_lshl_b32 s26, s{sW}, 16"); o(f"s_add_u32 s{sOX}, s{sOX}, s26")
    o(f"s_lshl_b32 s{sOY}, s{sTg}, 11"); o(f"s_lshl_b32 s26, s{sW}, 17"); o(f"s_add_u32 s{sOY}, s{sOY}, s26")
    o(f"s_mul_i32 s{sLb}, s{sW}, {S*SBW}")
    vi, vg, t0, t1, t2, t3 = 1, 2, 3, 4, 5, 6
    vXr, vYr, vXd, vYd, vC = 8, 12, 13, 17, 20
    o(f"v_and_b32 v{vi}, 15, v0"); o(f"v_lshrrev_b32 v{vg}, 4, v0")
    o(f"v_lshrrev_b32 v{t0}, 2, v{vi}"); o(f"v_and_b32 v{t1}, 1, v{vg}"); o(f"v_lshrrev_b32 v{t2}, 1, v{vg}")
    o(f"v_lshlrev_b32 v{t3}, 4, v{t2}"); o(f"v_lshl_add_u32 v{t3}, v{t0}, 1, v{t3}"); o(f"v_add_u32 v{t3}, v{t3}, v{t1}")
    o(f"v_lshlrev_b32 v{t3}, 7, v{t3}"); o(f"v_and_b32 v{t1}, 3, v{vi}"); o(f"v_lshl_add_u32 v{t3}, v{t1}, 3, v{t3}")
    o(f"v_add_u32 v{t3}, s{sLb}, v{t3}")
    for j in range(4):
        o(f"v_xor_b32 v{t1}, {j}, v{t0}"); o(f"v_lshl_add_u32 v{vXr+j}, v{t1}, 5, v{t3}")
    gfun(o, t2, vi, t1); o(f"v_xor_b32 v{t2}, v{t2}, v{vg}"); o(f"v_lshlrev_b32 v{t2}, 4, v{t2}"); o(f"v_lshl_add_u32 v{t2}, v{vi}, 6, v{t2}")
    o(f"s_add_u32 s26, s{sLb}, 4096"); o(f"v_add_u32 v{vYr}, s26, v{t2}")
    o(f"v_lshrrev_b32 v{t0}, 3, v0"); o(f"v_and_b32 v{t1}, 7, v0")
    o(f"v_lshrrev_b32 v{t3}, 1, v{t0}"); o(f"v_and_b32 v{t2}, 1, v{t0}"); o(f"v_lshl_add_u32 v{t2}, v{t2}, 3, v{t3}")
    o(f"v_lshrrev_b32 v{vi}, 1, v{t1}"); o(f"v_xor_b32 v{vi}, v{vi}, v{t3}"); o(f"v_lshlrev_b32 v{vi}, 5, v{vi}")
    o(f"v_and_b32 v{t1}, 1, v{t1}"); o(f"v_lshl_or_b32 v{vi}, v{t1}, 4, v{vi}")
    o(f"v_lshl_add_u32 v{vXd}, v{t2}, 11, v{vi}")
    for t in range(1, 4): o(f"v_add_u32 v{vXd+t}, {(4*(t&1) + 16*(t>>1))*2048}, v{vXd}")
    o(f"v_lshlrev_b32 v{vYd}, 4, v0"); o(f"v_add_u32 v{vYd+1}, 1024, v{vYd}")
    F = 28; FS = 24
    AC = 80
    def dma():
        L = []
        for t in range(4): L.append([f"s_add_u32 m0, s26, {t*1024}", f"buffer_load_dwordx4 v{vXd+t}, {s(sX,4)}, s{sOX} offen lds"])
        for t in range(2): L.append([f"s_add_u32 m0, s26, {4096+t*1024}", f"buffer_load_dwordx4 v{vYd+t}, {s(sY,4)}, s{sOY} offen lds"])
        return L
    def adv(r): return [f"s_add_u32 s{r}, s{r}, {SBW}", f"s_cmp_eq_u32 s{r}, {S*SBW}", f"s_cselect_b32 s{r}, 0, s{r}"]
    def dma_all():
        o(f"s_add_u32 s26, s{sLb}, s{sDm}")
        for g in dma():
            o(g[0]); o("s_nop 0"); o(g[1])
        o(f"s_add_u32 s{sOX}, s{sOX}, {4*32*2048}"); o(f"s_add_u32 s{sOY}, s{sOY}, {4*131072}")
        for x in adv(sDm): o(x)
    def rd(ph):
        for j in range(5): o(f"v_add_u32 v{vC+j}, s{sRd}, v{(vXr+j) if j < 4 else vYr}")
        for j in range(2): o(f"ds_read_b128 {v(F+ph*FS+16+4*j,4)}, v{vC+4} offset:{j*1024}")
        for j in range(4):
            o(f"ds_read_b64_tr_b16 {v(F+ph*FS+4*j,2)}, v{vC+j}"); o(f"ds_read_b64_tr_b16 {v(F+ph*FS+4*j+2,2)}, v{vC+j} offset:1024")
        for x in adv(sRd): o(x)
    o(f"s_mov_b32 s{sDm}, 0"); o(f"s_mov_b32 s{sRd}, 0")
    for st in range(S): dma_all()
    o(f"s_waitcnt vmcnt({6*(S-1)})")
    rd(0)
    def iteration(ph, first):
        o(f"s_waitcnt vmcnt({6*(S-2)}) lgkmcnt(0)")
        dma_all()
        rd(ph ^ 1)
        for jy in range(2):
            for jx in range(4):
                d = AC + (jx * 2 + jy) * 4
                c = "0" if first else v(d, 4)
                o(f"v_mfma_f32_16x16x32_bf16 {v(d,4)}, {v(F+ph*FS+4*jx,4)}, {v(F+ph*FS+16+4*jy,4)}, {c}")
    iteration(0, True); iteration(1, False)
    o(f"s_mov_b32 s{sK}, 15")
    A.label("L_op_loop")
    iteration(0, False); iteration(1, False)
    o(f"s_sub_u32 s{sK}, s{sK}, 1"); o(f"s_cmp_lg_u32 s{sK}, 0"); o("s_cbranch_scc1 L_op_loop")
    o("s_waitcnt vmcnt(0) lgkmcnt(0)")
    o("s_barrier")
    o("v_lshlrev_b32 v1, 4, v0"); o(f"s_lshl_b32 s26, s{sW}, 13"); o("v_add_u32 v2, s26, v1")
    for t in range(8): o(f"ds_write_b128 v2, {v(AC+4*t,4)} offset:{t*1024}")
    o("v_and_b32 v3, 15, v0"); o("v_lshrrev_b32 v4, 4, v0"); o("v_and_b32 v5, 1, v4"); o("v_lshrrev_b32 v4, 1, v4")
    o("v_lshlrev_b32 v5, 4, v5"); o("v_lshl_add_u32 v5, v4, 3, v5")
    o(f"s_lshl_b32 s26, s{sDt}, 6"); o(f"s_and_b32 s27, s{sW}, 1"); o("s_lshl_b32 s27, s27, 5"); o("s_add_u32 s26, s26, s27")
    o("v_add_u32 v5, s26, v5")
    o(f"s_lshl_b32 s26, s{sTg}, 5"); o(f"s_lshr_b32 s27, s{sW}, 1"); o("s_lshl_b32 s27, s27, 4"); o("s_add_u32 s26, s26, s27")
    o("v_add_u32 v3, s26, v3")
    o("v_lshlrev_b32 v6, 11, v3"); o("v_lshl_add_u32 v6, v5, 1, v6")
    o("v_lshlrev_b32 v7, 2, v5")
    o(f"s_add_u32 s44, s{sWS}, {WS_MOD + 2*4096}"); o(f"s_addc_u32 s45, s{sWS+1}, 0")
    GA, XR = 28, 36
    o(f"global_load_dwordx4 {v(GA,4)}, v7, s[44:45]"); o(f"global_load_dwordx4 {v(GA+4,4)}, v7, s[44:45] offset:16")
    o(f"global_load_dwordx4 {v(XR,4)}, v6, s[46:47]")
    o("s_waitcnt lgkmcnt(0)"); o("s_barrier")
    o(f"s_and_b32 s26, s{sW}, 1"); o("s_lshl_b32 s26, s26, 12"); o(f"s_lshr_b32 s27, s{sW}, 1"); o("s_lshl_b32 s27, s27, 10"); o("s_add_u32 s26, s26, s27")
    o("v_add_u32 v2, s26, v1")
    R = 48
    for sw in range(4):
        o(f"ds_read_b128 {v(R+8*sw,4)}, v2 offset:{sw*8192}"); o(f"ds_read_b128 {v(R+8*sw+4,4)}, v2 offset:{sw*8192+2048}")
    o("s_waitcnt lgkmcnt(0)")
    for e in range(8):
        o(f"v_add_f32 v{R+e}, v{R+e}, v{R+8+e}"); o(f"v_add_f32 v{R+16+e}, v{R+16+e}, v{R+24+e}")
    for e in range(8): o(f"v_add_f32 v{R+e}, v{R+e}, v{R+16+e}")
    for r in range(4): o(f"v_permlane16_swap_b32 v{R+r}, v{R+4+r}")
    o("s_waitcnt vmcnt(0)")
    U = 40 + 40
    unpack8(o, U, XR)
    for e in range(8): o(f"v_fma_f32 v{R+e}, v{R+e}, v{GA+e}, v{U+e}")
    for d in range(4): o(f"v_cvt_pk_bf16_f32 v{XR+d}, v{R+2*d}, v{R+2*d+1}")
    o(f"s_add_u32 s44, s{sWS}, {WS_X1}"); o(f"s_addc_u32 s45, s{sWS+1}, 0")
    o(f"global_store_dwordx4 v6, {v(XR,4)}, s[44:45] sc1")

def ln2_task(A):
    o = A
    o(f"s_lshl_b32 s14, s{sCh}, 3"); o(f"s_add_u32 s14, s14, s{sXb}")
    o("v_lshlrev_b32 v2, 4, v0")
    o(f"s_lshl_b32 s15, s14, 16"); o(f"s_lshl_b32 s16, s{sW}, 14"); o("s_add_u32 s15, s15, s16"); o(f"s_add_u32 s15, s15, {WS_X1}")
    o(f"s_add_u32 s10, s{sWS}, s15"); o(f"s_addc_u32 s11, s{sWS+1}, 0")
    RAW = 96
    for r in range(8):
        if r and r % 2 == 0: o("s_add_u32 s10, s10, 4096"); o("s_addc_u32 s11, s11, 0")
        off = (r % 2) * 2048
        o(f"global_load_dwordx4 {v(RAW+8*r,4)}, v2, s[10:11] offset:{off}"); o(f"global_load_dwordx4 {v(RAW+8*r+4,4)}, v2, s[10:11] offset:{off+1024}")
    o("v_lshrrev_b32 v3, 3, v0"); o("v_and_b32 v4, 7, v0")
    o("v_lshlrev_b32 v5, 11, v3"); o("v_lshl_add_u32 v5, v4, 4, v5"); o(f"s_lshl_b32 s16, s{sI}, 7"); o("v_add_u32 v5, s16, v5")
    o(f"s_add_u32 s10, s{sWS}, s15"); o(f"s_addc_u32 s11, s{sWS+1}, 0")
    SL = 24
    o(f"global_load_dwordx4 {v(SL,4)}, v5, s[10:11]")
    o("v_lshlrev_b32 v6, 5, v4"); o(f"s_lshl_b32 s16, s{sI}, 8"); o("v_add_u32 v6, s16, v6")
    o(f"s_add_u32 s12, s{sWS}, {WS_MOD + 3*4096}"); o(f"s_addc_u32 s13, s{sWS+1}, 0")
    SB_, CB_ = 64, 72
    o(f"global_load_dwordx4 {v(SB_,4)}, v6, s[12:13]"); o(f"global_load_dwordx4 {v(SB_+4,4)}, v6, s[12:13] offset:16")
    o("s_add_u32 s12, s12, 4096"); o("s_addc_u32 s13, s13, 0")
    o(f"global_load_dwordx4 {v(CB_,4)}, v6, s[12:13]"); o(f"global_load_dwordx4 {v(CB_+4,4)}, v6, s[12:13] offset:16")
    vMean, vRs, X, sm, t = 80, 81, 32, 7, 8
    for r in range(8):
        o(f"s_waitcnt vmcnt({5 + 2*(7-r)})")
        unpack8(o, X, RAW + 8 * r); unpack8(o, X + 8, RAW + 8 * r + 4)
        o(f"v_add_f32 v{sm}, v{X}, v{X+1}")
        for e in range(2, 16): o(f"v_add_f32 v{sm}, v{sm}, v{X+e}")
        wave_sum(o, sm, t)
        o(f"v_mul_f32 v{sm}, {fbits(1.0/1024)}, v{sm}")
        for e in range(16): o(f"v_sub_f32 v{X+e}, v{X+e}, v{sm}")
        o(f"v_mul_f32 v9, v{X}, v{X}")
        for e in range(1, 16): o(f"v_fmac_f32 v9, v{X+e}, v{X+e}")
        wave_sum(o, 9, t)
        o(f"v_mov_b32 v{t}, {fbits(1e-5)}"); o(f"v_fmac_f32 v{t}, {fbits(1.0/1024)}, v9"); o(f"v_rsq_f32 v{t}, v{t}")
        o(f"v_cmp_eq_u32 vcc, {r}, v3")
        o(f"v_cndmask_b32 v{vMean}, v{vMean}, v{sm}, vcc"); o(f"v_cndmask_b32 v{vRs}, v{vRs}, v{t}, vcc")
    o("s_waitcnt vmcnt(0)")
    unpack8(o, X, SL)
    for e in range(8):
        o(f"v_sub_f32 v{X+e}, v{X+e}, v{vMean}"); o(f"v_mul_f32 v{X+e}, v{X+e}, v{vRs}")
        o(f"v_add_f32 v{CB_+e}, 1.0, v{CB_+e}"); o(f"v_fma_f32 v{X+e}, v{X+e}, v{CB_+e}, v{SB_+e}")
    for d in range(4): o(f"v_cvt_pk_bf16_f32 v{SL+d}, v{X+2*d}, v{X+2*d+1}")
    RS = 128 + 32
    o(f"s_lshl_b32 s16, s{sW}, 3"); o("v_add_u32 v5, s16, v3"); o(f"v_mul_u32_u24 v5, {RS}, v5"); o("v_lshl_add_u32 v5, v4, 4, v5")
    o(f"ds_write_b128 v5, {v(SL,4)}")
    o("s_waitcnt lgkmcnt(0)"); o("s_barrier")
    o("v_and_b32 v5, 15, v0"); o("v_lshrrev_b32 v6, 4, v0")
    o("v_lshrrev_b32 v7, 2, v5"); o("v_lshl_add_u32 v7, v6, 3, v7"); o(f"v_mul_u32_u24 v7, {RS}, v7")
    o("v_and_b32 v8, 3, v5"); o("v_lshl_add_u32 v7, v8, 3, v7"); o(f"s_lshl_b32 s16, s{sW}, 5"); o("v_add_u32 v7, s16, v7")
    o(f"ds_read_b64_tr_b16 {v(SL,2)}, v7"); o(f"ds_read_b64_tr_b16 {v(SL+2,2)}, v7 offset:{4*RS}")
    gfun(o, 8, 5, 9); o("v_xor_b32 v8, v8, v6"); o("v_lshl_add_u32 v8, v5, 2, v8"); o("v_lshlrev_b32 v8, 4, v8")
    o("s_lshl_b32 s16, s14, 16"); o(f"s_lshl_b32 s17, s{sI}, 12"); o("s_add_u32 s16, s16, s17"); o(f"s_lshl_b32 s17, s{sW}, 10"); o("s_add_u32 s16, s16, s17"); o(f"s_add_u32 s16, s16, {WS_H2T}")
    o("v_add_u32 v8, s16, v8")
    o("s_waitcnt lgkmcnt(0)")
    o(f"global_store_dwordx4 v8, {v(SL,4)}, {s(sWS,2)} sc1")

def g1_partial(A, opt):
    o = A
    sX, sY = 8, 12
    o("s_load_dwordx2 s[40:41], s[0:1], %d" % KA_W1); o("s_waitcnt lgkmcnt(0)")
    srd(o, sX, 40, 0, 2048 * 7168); srd(o, sY, sWS, WS_H2T, 4 * MiB)
    o(f"s_add_u32 s26, s{sCh}, 1"); o(f"s_lshl_b32 s{sY+2}, s26, 19")
    o(f"s_mul_i32 s{sX+2}, s26, {256*7168}")
    G = Gemm(A, 8, 4, False, "g", accbase=128)
    sOffX, sOffY, sM0, sK = 20, 21, [22, 23], 24
    o(f"s_mul_i32 s{sOffX}, s{sCh}, {256*7168}"); o(f"s_lshl_b32 s26, s{sI}, 9"); o(f"s_add_u32 s{sOffX}, s{sOffX}, s26")
    o(f"s_lshl_b32 s{sOffY}, s{sCh}, 19"); o(f"s_lshl_b32 s26, s{sXb}, 13"); o(f"s_add_u32 s{sOffY}, s{sOffY}, s26")
    o(f"s_mul_i32 s{sM0[0]}, s{sW}, {G.NIX*1024}"); o(f"s_mul_i32 s{sM0[1]}, s{sW}, {G.NIY*1024}")
    G.setup(sW, 0, 7168, 0, [1, 2, 3, 4, 5, 6], [25, 26, 27, 28])
    o2 = dict(opt); o2["accum"] = 1
    gen_loop(G, sX, sY, sOffX, sOffY, sM0, sK, 32 * 7168, 64 * 1024, 8, "L_g1", opt=o2, sSt=[32, 33, 34])
    o("s_barrier")
    return G

def g1_epilogue(A, G, sF=sI, sD=sXb):
    o = A
    E = G.vF
    o("s_load_dwordx2 s[42:43], s[0:1], %d" % KA_B1)
    o("v_and_b32 v1, 15, v0"); o("v_lshrrev_b32 v2, 4, v0"); o("v_and_b32 v3, 1, v2"); o("v_lshrrev_b32 v2, 1, v2")
    o("v_lshlrev_b32 v4, 4, v3"); o("v_lshl_add_u32 v4, v2, 3, v4")
    o("v_lshl_or_b32 v2, v3, 1, v2")
    gfun(o, 3, 1, 5)
    o("v_xor_b32 v2, v2, v3"); o("v_lshl_add_u32 v2, v1, 2, v2"); o("v_lshlrev_b32 v2, 4, v2")
    o(f"s_lshl_b32 s25, s{sF}, 8"); o(f"s_and_b32 s26, s{sW}, 1"); o("s_lshl_b32 s26, s26, 7"); o("s_add_u32 s25, s25, s26")
    o("v_add_u32 v4, s25, v4"); o("v_lshlrev_b32 v4, 1, v4")
    BR = E + 64
    o("s_waitcnt lgkmcnt(0)")
    for jp in range(4): o(f"global_load_dwordx4 {v(BR+4*jp,4)}, v4, s[42:43] offset:{jp*64}")
    o("s_lshr_b32 s26, s25, 5"); o("s_lshl_b32 s26, s26, 16")
    o(f"s_lshl_b32 s27, s{sD}, 3"); o(f"s_lshr_b32 s28, s{sW}, 1"); o("s_lshl_b32 s28, s28, 2"); o("s_add_u32 s27, s27, s28"); o("s_lshl_b32 s27, s27, 10")
    o("s_add_u32 s26, s26, s27"); o(f"s_add_u32 s26, s26, {WS_U}")
    o(f"s_add_u32 s44, s{sWS}, s26"); o(f"s_addc_u32 s45, s{sWS+1}, 0")
    o("s_waitcnt vmcnt(0)")
    BF = E + 80
    c1 = -2.0 * math.sqrt(2.0 / math.pi) * LOG2E
    o(f"s_mov_b32 s46, {fbits(0.044715)}"); o(f"s_mov_b32 s47, {fbits(c1)}")
    k = 0
    for jp in range(4):
        unpack8(o, BF, BR + 4 * jp)
        for jy in range(4):
            T = E + 16 * (k % 3) + 4; k += 1
            ra, rb = G.accr(2 * jp, jy), G.accr(2 * jp + 1, jy)
            for r in range(4): o(f"v_accvgpr_read_b32 v{T+r}, a{ra+r}")
            for r in range(4): o(f"v_accvgpr_read_b32 v{T+4+r}, a{rb+r}")
            for r in range(4): o(f"v_permlane16_swap_b32 v{T+r}, v{T+4+r}")
            U = E + 48
            for e in range(8): o(f"v_add_f32 v{T+e}, v{T+e}, v{BF+e}")
            for e in range(8): o(f"v_mul_f32 v{U+e}, v{T+e}, v{T+e}")
            for e in range(8): o(f"v_fma_f32 v{U+e}, v{U+e}, s46, 1.0")
            for e in range(8): o(f"v_mul_f32 v{U+e}, v{U+e}, v{T+e}")
            for e in range(8): o(f"v_mul_f32 v{U+e}, s47, v{U+e}")
            for e in range(8): o(f"v_exp_f32 v{U+e}, v{U+e}")
            for e in range(8): o(f"v_add_f32 v{U+e}, 1.0, v{U+e}")
            for e in range(8): o(f"v_rcp_f32 v{U+e}, v{U+e}")
            for e in range(8): o(f"v_mul_f32 v{T+e}, v{T+e}, v{U+e}")
            P = T - 4
            for d in range(4): o(f"v_cvt_pk_bf16_f32 v{P+d}, v{T+2*d}, v{T+2*d+1}")
            o(f"v_add_u32 v5, {jp*65536 + jy*1024}, v2")
            o(f"global_store_dwordx4 v5, {v(P,4)}, s[44:45]")

def prefetch_task(A, ka, nbytes, tag):
    o = A
    per = nbytes // 128
    assert per % 4096 == 0 or True
    n4k = (per + 4095) // 4096
    o(f"s_load_dwordx2 s[40:41], s[0:1], {ka}"); o("s_waitcnt lgkmcnt(0)")
    srd(o, 8, 40, 0, nbytes)
    o(f"s_mul_i32 s20, s{sB}, {n4k*4096}"); o(f"s_lshl_b32 s21, s{sW}, 10"); o("s_add_u32 s20, s20, s21")
    o("v_lshlrev_b32 v2, 4, v0")
    o(f"s_mov_b32 s22, {n4k}")
    A.label(f"L_pf_{tag}")
    o("buffer_load_dwordx4 v[8:11], v2, s[8:11], s20 offen")
    o("s_add_u32 s20, s20, 4096"); o("s_sub_u32 s22, s22, 1"); o("s_cmp_lg_u32 s22, 0")
    o(f"s_cbranch_scc0 L_pf_{tag}_d")
    o("buffer_load_dwordx4 v[12:15], v2, s[8:11], s20 offen")
    o("s_add_u32 s20, s20, 4096"); o("s_sub_u32 s22, s22, 1"); o("s_cmp_lg_u32 s22, 0")
    o("s_waitcnt vmcnt(24)")
    o(f"s_cbranch_scc1 L_pf_{tag}")
    A.label(f"L_pf_{tag}_d")
    o("s_waitcnt vmcnt(0)")

def op_pass(A, ntok_tiles_log2, opt=None):
    opt = opt or {}
    o = A
    sX, sY = 8, 12
    o("s_load_dwordx2 s[40:41], s[0:1], %d" % KA_WO); o("s_load_dwordx2 s[46:47], s[0:1], %d" % KA_X)
    sDt, sTt = 48, 49
    o(f"s_lshr_b32 s{sDt}, s{sXb}, 1"); o(f"s_lshl_b32 s{sDt}, s{sDt}, 2"); o(f"s_and_b32 s20, s{sI}, 3"); o(f"s_add_u32 s{sDt}, s{sDt}, s20")
    o(f"s_and_b32 s{sTt}, s{sXb}, 1"); o(f"s_lshl_b32 s{sTt}, s{sTt}, 2"); o(f"s_lshr_b32 s20, s{sI}, 2"); o(f"s_add_u32 s{sTt}, s{sTt}, s20")
    o(f"s_cmp_ge_u32 s{sTt}, {1 << ntok_tiles_log2}"); o(f"s_cbranch_scc1 L_opp_skip{ntok_tiles_log2}")
    o(f"s_lshl_b32 s{sTt}, s{sTt}, 6"); o(f"s_add_u32 s{sTt}, s{sTt}, s{sTok}")
    o("s_waitcnt lgkmcnt(0)")
    srd(o, sX, 40, 0, 8 * MiB); srd(o, sY, sWS, WS_O, 16 * MiB)
    G = Gemm(A, 2, 2, False, "o")
    sOffX, sOffY, sM0, sK = 20, 21, [22, 23], 24
    o(f"s_lshl_b32 s{sOffX}, s{sDt}, 7"); o(f"s_lshl_b32 s{sOffY}, s{sTt}, 6")
    o(f"s_mul_i32 s{sM0[0]}, s{sW}, {G.NIX*1024}"); o(f"s_mul_i32 s{sM0[1]}, s{sW}, {G.NIY*1024}")
    G.setup(sW, 0, 2048, 0, [1, 2, 3, 4, 5, 6], [25, 26, 27, 28])
    gen_loop2(G, sX, sY, sOffX, sOffY, sM0, sK, 32 * 2048, 128 * 1024, 128, f"L_opp{ntok_tiles_log2}", K=opt.get("opK", 4), R=opt.get("opR", 16), sSt=[32, 33, 34])
    E = G.vF
    o("v_and_b32 v1, 15, v0"); o("v_lshrrev_b32 v2, 4, v0"); o("v_and_b32 v3, 1, v2"); o("v_lshrrev_b32 v2, 1, v2")
    o("v_lshlrev_b32 v3, 4, v3"); o("v_lshl_add_u32 v3, v2, 3, v3")
    o(f"s_lshl_b32 s25, s{sDt}, 6"); o(f"s_and_b32 s26, s{sW}, 1"); o("s_lshl_b32 s26, s26, 5"); o("s_add_u32 s25, s25, s26")
    o("v_add_u32 v3, s25, v3")
    o(f"s_lshr_b32 s26, s{sW}, 1"); o("s_lshl_b32 s26, s26, 5"); o(f"s_add_u32 s25, s{sTt}, s26")
    o("v_add_u32 v1, s25, v1")
    o("v_lshlrev_b32 v4, 11, v1"); o("v_lshl_add_u32 v4, v3, 1, v4")
    o("v_lshlrev_b32 v5, 2, v3")
    o(f"s_add_u32 s44, s{sWS}, {WS_MOD + 2*4096}"); o(f"s_addc_u32 s45, s{sWS+1}, 0")
    GA = E + 64; XR = E + 72
    o(f"global_load_dwordx4 {v(GA,4)}, v5, s[44:45]"); o(f"global_load_dwordx4 {v(GA+4,4)}, v5, s[44:45] offset:16")
    for jy in range(2):
        o(f"v_add_u32 v6, {jy*16*2048}, v4"); o(f"global_load_dwordx4 {v(XR+4*jy,4)}, v6, s[46:47]")
    o(f"s_add_u32 s44, s{sWS}, {WS_X1}"); o(f"s_addc_u32 s45, s{sWS+1}, 0")
    for jy in range(2):
        T = E + 16 * jy + 4
        for r in range(4): o(f"v_accvgpr_read_b32 v{T+r}, a{G.accr(0, jy)+r}")
        for r in range(4): o(f"v_accvgpr_read_b32 v{T+4+r}, a{G.accr(1, jy)+r}")
        for r in range(4): o(f"v_permlane16_swap_b32 v{T+r}, v{T+4+r}")
        if jy == 0: o("s_waitcnt vmcnt(0)")
        U = E + 48
        unpack8(o, U, XR + 4 * jy)
        for e in range(8): o(f"v_fma_f32 v{T+e}, v{T+e}, v{GA+e}, v{U+e}")
        P = T - 4
        for d in range(4): o(f"v_cvt_pk_bf16_f32 v{P+d}, v{T+2*d}, v{T+2*d+1}")
        o(f"v_add_u32 v6, {jy*16*2048}, v4")
        o(f"global_store_dwordx4 v6, {v(P,4)}, s[44:45] sc1")
    A.label(f"L_opp_skip{ntok_tiles_log2}")

def ln2_pass(A, nks_log2):
    o = A
    if nks_log2 == 3:
        o(f"s_lshr_b32 s{sCh}, s{sTok}, 8"); ln2_task(A); return
    for h in range(2):
        o(f"s_mov_b32 s76, s{sXb}"); o(f"s_mov_b32 s77, s{sI}"); o(f"s_mov_b32 s78, s{sCh}")
        o(f"s_lshl_b32 s79, s{sXb}, 1"); o(f"s_lshr_b32 s80, s{sI}, 3"); o("s_add_u32 s79, s79, s80")
        o(f"s_and_b32 s80, s{sI}, 7"); o("s_lshl_b32 s80, s80, 1"); o(f"s_add_u32 s{sI}, s80, {h}")
        o(f"s_and_b32 s{sXb}, s79, 7"); o("s_lshr_b32 s79, s79, 3"); o(f"s_lshr_b32 s{sCh}, s{sTok}, 8"); o(f"s_add_u32 s{sCh}, s{sCh}, s79")
        ln2_task(A)
        o(f"s_mov_b32 s{sXb}, s76"); o(f"s_mov_b32 s{sI}, s77"); o(f"s_mov_b32 s{sCh}, s78")
        if h == 0: o("s_barrier")

def g1_pass(A, opt, nit, lab):
    o = A
    sX, sY = 8, 12
    o("s_load_dwordx2 s[40:41], s[0:1], %d" % KA_W1); o("s_waitcnt lgkmcnt(0)")
    srd(o, sX, 40, 0, 2048 * 7168); srd(o, sY, sWS, WS_H2T, 4 * MiB)
    o(f"s_add_u32 s26, s{sTok}, {32*nit}"); o(f"s_lshl_b32 s{sY+2}, s26, 11")
    o(f"s_mul_i32 s{sX+2}, s26, 7168")
    G = Gemm(A, 8, 4, False, "g", accbase=128)
    sOffX, sOffY, sM0, sK = 20, 21, [22, 23], 24
    o(f"s_mul_i32 s{sOffX}, s{sTok}, 7168"); o(f"s_lshl_b32 s26, s{sFt}, 9"); o(f"s_add_u32 s{sOffX}, s{sOffX}, s26")
    o(f"s_lshl_b32 s{sOffY}, s{sTok}, 11"); o(f"s_lshl_b32 s26, s{sDtG}, 13"); o(f"s_add_u32 s{sOffY}, s{sOffY}, s26")
    o(f"s_mul_i32 s{sM0[0]}, s{sW}, {G.NIX*1024}"); o(f"s_mul_i32 s{sM0[1]}, s{sW}, {G.NIY*1024}")
    G.setup(sW, 0, 7168, 0, [1, 2, 3, 4, 5, 6], [25, 26, 27, 28])
    o2 = dict(opt); o2["accum"] = 1; o2["S"] = 5
    gen_loop(G, sX, sY, sOffX, sOffY, sM0, sK, 32 * 7168, 64 * 1024, nit, lab, opt=o2, sSt=[32, 33, 34])
    o("s_barrier")
    return G

def fast_check(A, tag):
    o = A
    LB = 131072 - 64
    o(f"s_cmp_lg_u32 s{sW}, 0"); o(f"s_cbranch_scc1 L_fc_{tag}_w")
    o("s_mov_b64 exec, 0xff"); o("v_and_b32 v1, 3, v0"); o("v_lshlrev_b32 v1, 2, v1"); o("v_lshrrev_b32 v5, 2, v0"); o("v_lshl_add_u32 v1, v5, 7, v1"); o("s_mov_b32 s13, 0x200000")
    A.label(f"L_fc_{tag}_p")
    o(f"global_load_dword v4, v1, {s(sDBG,2)} sc1"); o("s_waitcnt vmcnt(0)")
    o("v_mov_b32 v5, v4")
    o("v_add_u32_dpp v5, v5, v5 quad_perm:[1,0,3,2] row_mask:0xf bank_mask:0xf")
    o("v_add_u32_dpp v5, v5, v5 quad_perm:[2,3,0,1] row_mask:0xf bank_mask:0xf")
    o("v_add_u32_dpp v5, v5, v5 row_half_mirror row_mask:0xf bank_mask:0xf")
    o("v_readfirstlane_b32 s14, v5")
    o("s_cmp_ge_u32 s14, 256"); o(f"s_cbranch_scc1 L_fc_{tag}_a")
    o("s_sleep 8"); o("s_sub_u32 s13, s13, 1"); o(f"s_cbranch_scc0 L_fc_{tag}_p")
    A.label(f"L_fc_{tag}_a")
    o("v_cmp_ne_u32 vcc, 32, v4"); o("s_nop 1"); o("s_cmp_eq_u64 vcc, 0"); o("s_cselect_b32 s15, 1, 0")
    o("s_mov_b64 exec, 1"); o("v_mov_b32 v6, s15"); o(f"v_mov_b32 v1, {LB}"); o("ds_write_b32 v1, v6"); o("s_waitcnt lgkmcnt(0)"); o("s_mov_b64 exec, -1")
    A.label(f"L_fc_{tag}_w")
    o("s_barrier")
    o(f"v_mov_b32 v1, {LB}"); o("ds_read_b32 v6, v1"); o("s_waitcnt lgkmcnt(0)"); o("v_readfirstlane_b32 s15, v6")
    o("s_barrier")

WS_MODP2 = 128 * 1024
CNT_FILL2 = 43520
def mod_half(A):
    o = A
    o("s_mov_b64 s[8:9], s[76:77]")
    o(f"s_lshr_b32 s12, s{sB}, 6"); o("s_lshl_b32 s12, s12, 9"); o(f"s_lshl_b32 s13, s{sW}, 7"); o("s_add_u32 s12, s12, s13")
    o("v_lshrrev_b32 v5, 2, v0"); o("v_add_u32 v5, s12, v5"); o("v_lshlrev_b32 v6, 2, v5")
    o("s_mov_b32 s13, 12288"); o("v_mul_lo_u32 v7, v5, s13"); o("v_and_b32 v26, 3, v0"); o("v_lshl_add_u32 v7, v26, 4, v7")
    o(f"s_and_b32 s12, s{sB}, 63"); o("s_lshl_b32 s12, s12, 6"); o("v_add_u32 v7, s12, v7")
    W = 32
    for it in range(8):
        o(f"global_load_dwordx4 {v(W+4*it,4)}, v7, s[8:9]"); o(f"v_add_u32 v7, {16*12288}, v7")
    return W

def mod_half_finish(A, W, younger):
    o = A
    Cc, AC = 64, 72
    for it in range(8): o(f"ds_read_b32 v{Cc+it}, v6 offset:{it*64}")
    for e in range(8): o(f"v_mov_b32 v{AC+e}, 0")
    o("s_waitcnt lgkmcnt(0)")
    for it in range(8):
        o(f"s_waitcnt vmcnt({7-it+younger})")
        for d in range(4):
            o(f"v_lshlrev_b32 v27, 16, v{W+4*it+d}"); o(f"v_and_b32 v28, 0xffff0000, v{W+4*it+d}")
            o(f"v_fmac_f32 v{AC+2*d}, v27, v{Cc+it}"); o(f"v_fmac_f32 v{AC+2*d+1}, v28, v{Cc+it}")
    for e in range(8):
        x = AC + e
        o(f"v_add_f32_dpp v{x}, v{x}, v{x} row_ror:4 row_mask:0xf bank_mask:0xf")
        o(f"v_add_f32_dpp v{x}, v{x}, v{x} row_ror:8 row_mask:0xf bank_mask:0xf")
        for sw in ("16", "32"):
            o(f"v_mov_b32 v27, v{x}"); o(f"v_permlane{sw}_swap_b32 v{x}, v27"); o(f"v_add_f32 v{x}, v{x}, v27")
    o(f"s_lshl_b32 s12, s{sW}, 7"); o("v_lshlrev_b32 v5, 5, v26"); o("v_add_u32 v5, s12, v5")
    o("s_mov_b64 exec, 0xf")
    o(f"ds_write_b128 v5, {v(AC,4)} offset:4096"); o(f"ds_write_b128 v5, {v(AC+4,4)} offset:4112")
    o("s_mov_b64 exec, -1")
    o("s_waitcnt lgkmcnt(0)"); o("s_barrier")
    o(f"s_cmp_lg_u32 s{sW}, 0"); o("s_cbranch_scc1 L_mh_d")
    o("v_lshlrev_b32 v5, 2, v0"); o("s_mov_b64 exec, 0xffffffff")
    for w in range(4): o(f"ds_read_b32 v{32+w}, v5 offset:{4096+w*128}")
    o("s_waitcnt lgkmcnt(0)")
    o("v_add_f32 v32, v32, v33"); o("v_add_f32 v34, v34, v35"); o("v_add_f32 v32, v32, v34")
    o(f"s_lshr_b32 s12, s{sB}, 6"); o("s_lshl_b32 s12, s12, 13"); o(f"s_and_b32 s13, s{sB}, 63"); o("s_lshl_b32 s13, s13, 7"); o("s_add_u32 s12, s12, s13"); o(f"s_add_u32 s12, s12, {WS_MODP2}")
    o("v_add_u32 v5, s12, v5")
    o(f"global_store_dword v5, v32, {s(sWS,2)} sc1")
    o("s_mov_b64 exec, -1")
    A.label("L_mh_d")

def ln1_pre(A):
    o = A
    o("s_mov_b64 s[16:17], s[78:79]")
    o("v_lshlrev_b32 v2, 4, v0")
    o(f"s_lshl_b32 s14, s{sB}, 4"); o(f"s_lshl_b32 s15, s{sW}, 2"); o("s_add_u32 s14, s14, s15"); o("s_lshl_b32 s15, s14, 11")
    o("s_add_u32 s16, s16, s15"); o("s_addc_u32 s17, s17, 0")
    for r in range(4):
        off = (r % 2) * 2048
        if r == 2: o("s_add_u32 s16, s16, 4096"); o("s_addc_u32 s17, s17, 0")
        o(f"global_load_dwordx4 {v(96+8*r,4)}, v2, s[16:17] offset:{off}"); o(f"global_load_dwordx4 {v(96+8*r+4,4)}, v2, s[16:17] offset:{off+1024}")

def ln1_stats(A):
    o = A
    X = [128, 144, 160, 176]
    for r in range(4):
        unpack8(o, X[r], 96 + 8 * r); unpack8(o, X[r] + 8, 96 + 8 * r + 4)
    ln_rows(o, X, 4, [4, 5], 1e-5)

def ln1_fin(A):
    o = A
    RAW = 96; X = [128, 144, 160, 176]
    o("v_lshlrev_b32 v3, 5, v0")
    SA, CA = 64, 80
    TT = {SA: 192, CA: 208}
    for dst, base in ((SA, 0), (CA, 4096)):
        for q in range(2):
            o(f"s_add_u32 s12, s{sWS}, {WS_MODP2 + q*8192 + base}"); o(f"s_addc_u32 s13, s{sWS+1}, 0")
            tgt = dst if q == 0 else TT[dst]
            for h in range(2):
                for k in range(2): o(f"global_load_dwordx4 {v(tgt+8*h+4*k,4)}, v3, s[12:13] offset:{h*2048+k*16} sc1")
    o(f"s_lshl_b32 s14, s{sB}, 4"); o(f"s_lshl_b32 s15, s{sW}, 2"); o("s_add_u32 s14, s14, s15")
    o("s_waitcnt vmcnt(0)")
    for dst in (SA, CA):
        for e in range(16): o(f"v_add_f32 v{dst+e}, v{dst+e}, v{TT[dst]+e}")
        for e in range(0, 16, 2):
            o(f"v_cvt_pk_bf16_f32 v6, v{dst+e}, v{dst+e+1}"); o(f"v_lshlrev_b32 v{dst+e}, 16, v6"); o(f"v_and_b32 v{dst+e+1}, 0xffff0000, v6")
    for e in range(16): o(f"v_add_f32 v{CA+e}, 1.0, v{CA+e}")
    for r in range(4):
        R0 = RAW + 8 * r
        for e in range(16): o(f"v_fma_f32 v{X[r]+e}, v{X[r]+e}, v{CA+e}, v{SA+e}")
        for h in range(2):
            for d in range(4): o(f"v_cvt_pk_bf16_f32 v{R0+4*h+d}, v{X[r]+8*h+2*d}, v{X[r]+8*h+2*d+1}")
        o(f"s_add_u32 s16, s14, {r}"); o("s_lshr_b32 s17, s16, 4"); o("s_and_b32 s16, s16, 15")
        o("s_lshr_b32 s18, s16, 2"); o("s_lshr_b32 s19, s18, 1"); o("s_and_b32 s18, s18, 1"); o("s_xor_b32 s18, s18, s19"); o("s_lshl_b32 s18, s18, 1"); o("s_or_b32 s18, s18, s19")
        o("v_and_b32 v4, 3, v0"); o("v_xor_b32 v4, s18, v4"); o("v_lshlrev_b32 v4, 4, v4")
        o("v_lshrrev_b32 v5, 2, v0"); o("v_lshl_add_u32 v4, v5, 17, v4")
        o("s_lshl_b32 s17, s17, 10"); o("s_lshl_b32 s16, s16, 6"); o("s_add_u32 s17, s17, s16"); o(f"s_add_u32 s17, s17, {WS_H}")
        o("v_add_u32 v4, s17, v4")
        o(f"global_store_dwordx4 v4, {v(R0,4)}, {s(sWS,2)} sc1")
        o(f"v_add_u32 v4, {16*131072}, v4")
        o(f"global_store_dwordx4 v4, {v(R0+4,4)}, {s(sWS,2)} sc1")

def gen_bulk(opt):
    A = Asm(); o = A
    bprof = opt.get("bprof")
    def bstamp(k, chunked=True):
        if not bprof: return
        o("s_memrealtime s[72:73]"); o("s_waitcnt lgkmcnt(0)")
        o(f"s_lshl_b32 s74, s{sB}, 10")
        if chunked:
            o(f"s_lshl_b32 s75, s{sCh}, 6"); o("s_add_u32 s74, s74, s75"); o(f"s_add_u32 s74, s74, 64")
        o(f"s_add_u32 s74, s74, {WS_PROF + 4*MiB + 0} + {k*4}")
        o("v_mov_b32 v250, s74"); o("v_mov_b32 v251, s72")
        o("s_mov_b64 exec, 1"); o(f"global_store_dword v250, v251, {s(sWS,2)}"); o("s_mov_b64 exec, -1")
    o(f"s_load_dwordx2 {s(sWS,2)}, s[0:1], {KA_WS}")
    o(f"s_load_dwordx2 s[76:77], s[0:1], {KA_WMOD}"); o(f"s_load_dwordx2 s[78:79], s[0:1], {KA_X}"); o(f"s_load_dwordx2 s[84:85], s[0:1], {KA_C}")
    o("s_waitcnt lgkmcnt(0)")
    o(f"s_add_u32 s{sCNT}, s{sWS}, {WS_CNT}"); o(f"s_addc_u32 s{sCNT+1}, s{sWS+1}, 0")
    o(f"s_cmp_eq_u32 s{sChk}, 0"); o("s_cbranch_scc0 L_cb"); o(f"s_add_u32 s{sCNT}, s{sCNT}, {SLOW_OFF}"); o(f"s_addc_u32 s{sCNT+1}, s{sCNT+1}, 0")
    A.label("L_cb")
    o(f"s_lshl_b32 s{sB}, s{sXb}, 4"); o(f"s_add_u32 s{sB}, s{sB}, s{sI}")
    o(f"s_mov_b32 s{sLim}, 0x400000")
    bstamp(0, False)
    ST2 = opt.get("st2")
    if ST2:
        W_ = mod_half(A)
        ln1_pre(A)
        silu_to_lds(A, pre=84)
        mod_half_finish(A, W_, 0)
        ln1_stats(A)
        o(f"s_cmp_eq_u32 s{sChk}, 0"); o("s_cbranch_scc1 L_nochk")
        fast_check(A, "b")
        o("s_cmp_eq_u32 s15, 0"); o("s_cbranch_scc1 M_slow")
        A.label("L_nochk")
        signal(A, CNT_MODA, "m1")
        bstamp(1, False)
        wait_cnt(A, CNT_MODA, 128, "ma")
        bstamp(2, False)
        ln1_fin(A)
        o(f"s_lshr_b32 s{sCntOff}, s{sB}, 4"); o(f"s_lshl_b32 s{sCntOff}, s{sCntOff}, 7")
        signal(A, CNT_LN1, "l1", off_s=sCntOff)
    else:
        silu_to_lds(A)
        o(f"s_lshl_b32 s{sCt}, s{sB}, 5")
        mod_task(A, sCt, "a")
        o(f"s_cmp_eq_u32 s{sChk}, 0"); o("s_cbranch_scc1 L_nochk")
        fast_check(A, "b")
        o("s_cmp_eq_u32 s15, 0"); o("s_cbranch_scc1 M_slow")
        A.label("L_nochk")
        if opt.get("flg"):
            o(f"s_cmp_lt_u32 s{sB}, 64"); o("s_cbranch_scc0 L_m1b")
            fsignal(A, CNT_MODAF, "m1", sB)
            o("s_branch L_m1c")
            A.label("L_m1b")
            signal(A, CNT_MODB, "m1b")
            A.label("L_m1c")
            bstamp(1, False)
            fwait(A, CNT_MODAF, 64, "ma")
            bstamp(2, False)
            ln1_task(A)
            o(f"s_lshr_b32 s{sCntOff}, s{sB}, 4"); o(f"s_lshl_b32 s{sCntOff}, s{sCntOff}, 7"); o(f"s_and_b32 s45, s{sB}, 15"); o("s_mov_b32 s75, s45")
            fsignal(A, CNT_LN1F, "l1", 75, off_s=sCntOff)
        else:
            o(f"s_cmp_lt_u32 s{sB}, 64"); o(f"s_cselect_b32 s{sCntOff}, {CNT_MODA}, s{sCntOff}"); o(f"s_mov_b32 s44, {CNT_MODB}"); o(f"s_cselect_b32 s{sCntOff}, s{sCntOff}, s44")
            signal(A, 0, "m1", off_s=sCntOff)
            bstamp(1, False)
            wait_cnt(A, CNT_MODA, 64, "ma")
            bstamp(2, False)
            ln1_task(A)
            o(f"s_lshr_b32 s{sCntOff}, s{sB}, 4"); o(f"s_lshl_b32 s{sCntOff}, s{sCntOff}, 7")
            signal(A, CNT_LN1, "l1", off_s=sCntOff)
    bstamp(3, False)
    srd_h = lambda: srd(o, 12, sWS, WS_H, 4 * MiB)
    o(f"s_mov_b32 s{sRound}, 0")
    A.label("L_task")
    t0, t1, t2 = 44, 45, 46
    o(f"s_lshl_b32 s{t0}, s{sXb}, 2"); o(f"s_and_b32 s{t1}, s{sI}, 3"); o(f"s_add_u32 s{t0}, s{t0}, s{t1}"); o(f"s_add_u32 s{t0}, s{t0}, 16")
    o(f"s_lshl_b32 s{t1}, s{sXb}, 1"); o(f"s_and_b32 s{t2}, s{sI}, 1"); o(f"s_add_u32 s{t1}, s{t1}, s{t2}")
    o(f"s_lshr_b32 s{t2}, s{sI}, 2")
    o(f"s_cmp_eq_u32 s{sRound}, 0"); o("s_cbranch_scc0 L_r1")
    o(f"s_mov_b32 s{sCt}, s{t0}"); o(f"s_lshl_b32 s{sTok}, s{t2}, 6"); o("s_branch L_dec")
    A.label("L_r1")
    if opt.get("thr"):
        NA = opt["thr"]
        o(f"s_cmp_ge_u32 s{sI}, {NA}"); o("s_cbranch_scc1 L_phase3")
        o(f"s_sub_u32 s{t0}, s{sRound}, 1"); o(f"s_mul_i32 s{t0}, s{t0}, {8*NA}"); o(f"s_mul_i32 s{t1}, s{sXb}, {NA}"); o(f"s_add_u32 s{t0}, s{t0}, s{t1}"); o(f"s_add_u32 s{t0}, s{t0}, s{sI}")
        o(f"s_cmp_ge_u32 s{t0}, 352"); o("s_cbranch_scc1 L_phase3")
        o(f"s_cmp_lt_u32 s{t0}, 224"); o("s_cbranch_scc0 L_thq")
        o(f"s_and_b32 s{sCt}, s{t0}, 31"); o(f"s_add_u32 s{sCt}, s{sCt}, 16"); o(f"s_lshr_b32 s{sTok}, s{t0}, 5"); o(f"s_add_u32 s{sTok}, s{sTok}, 1"); o(f"s_lshl_b32 s{sTok}, s{sTok}, 8"); o("s_branch L_dec")
        A.label("L_thq")
        o(f"s_sub_u32 s{t0}, s{t0}, 224"); o(f"s_and_b32 s{sCt}, s{t0}, 15"); o(f"s_lshr_b32 s{sTok}, s{t0}, 4"); o(f"s_lshl_b32 s{sTok}, s{sTok}, 8")
    else:
        o(f"s_cmp_eq_u32 s{sRound}, 1"); o("s_cbranch_scc0 L_r2")
        o(f"s_mov_b32 s{sCt}, s{t0}"); o(f"s_add_u32 s{sTok}, s{t2}, 1"); o(f"s_lshl_b32 s{sTok}, s{sTok}, 8"); o("s_branch L_dec")
        A.label("L_r2")
        o(f"s_cmp_eq_u32 s{sRound}, 2"); o("s_cbranch_scc0 L_r3")
        o(f"s_cmp_lt_u32 s{sI}, 12"); o("s_cbranch_scc0 L_r2q")
        o(f"s_mov_b32 s{sCt}, s{t0}"); o(f"s_add_u32 s{sTok}, s{t2}, 5"); o(f"s_lshl_b32 s{sTok}, s{sTok}, 8"); o("s_branch L_dec")
        A.label("L_r2q")
        o(f"s_mov_b32 s{sCt}, s{t1}"); o(f"s_sub_u32 s{sTok}, s{sI}, 12"); o(f"s_lshr_b32 s{sTok}, s{sTok}, 1"); o(f"s_lshl_b32 s{sTok}, s{sTok}, 8"); o("s_branch L_dec")
        A.label("L_r3")
        o(f"s_cmp_eq_u32 s{sRound}, 3"); o("s_cbranch_scc0 L_phase3")
        o(f"s_cmp_lt_u32 s{sI}, 12"); o("s_cbranch_scc0 L_phase3")
        o(f"s_mov_b32 s{sCt}, s{t1}"); o(f"s_lshr_b32 s{sTok}, s{sI}, 1"); o(f"s_add_u32 s{sTok}, s{sTok}, 2"); o(f"s_lshl_b32 s{sTok}, s{sTok}, 8")
    A.label("L_dec")
    o(f"s_lshr_b32 s{sCntOff}, s{sTok}, 8"); o(f"s_lshl_b32 s{sCntOff}, s{sCntOff}, 7")
    if opt.get("flg"): fwait(A, CNT_LN1F, 16, "l1", off_s=sCntOff)
    else: wait_cnt(A, CNT_LN1, 16, "l1", off_s=sCntOff)
    o(f"s_lshr_b32 s{t0}, s{sTok}, 8")
    o(f"s_lshl_b32 s{t1}, s{t0}, 3"); o(f"s_and_b32 s{t2}, s{sCt}, 15"); o(f"s_lshr_b32 s{t2}, s{t2}, 1"); o(f"s_add_u32 s{t1}, s{t1}, s{t2}"); o(f"s_lshl_b32 s{t1}, s{t1}, 7")
    o(f"s_lshl_b32 s{t0}, s{t0}, 7"); o(f"s_add_u32 s{t0}, s{t0}, {CNT_Q}")
    o(f"s_cmp_lt_u32 s{sCt}, 16"); o(f"s_cselect_b32 s{sCntOff}, s{t0}, s{t1}")
    o(f"s_lshr_b32 s{t0}, s{sCt}, 4"); o(f"s_lshl_b32 s{t1}, s{t0}, 3")
    o(f"s_add_u32 s40, s0, s{t1}"); o(f"s_addc_u32 s41, s1, 0")
    o(f"s_load_dwordx2 s[40:41], s[40:41], {KA_WQ}")
    o(f"s_lshl_b32 s{t1}, s{t0}, 24"); o(f"s_add_u32 s{t1}, s{t1}, {WS_Q}")
    o(f"s_add_u32 s16, s{sWS}, s{t1}"); o(f"s_addc_u32 s17, s{sWS+1}, 0"); o("s_and_b32 s17, s17, 0xffff")
    o(f"s_mov_b32 s18, {16*MiB}"); o("s_mov_b32 s19, 0x00020000")
    srd_h()
    o("s_waitcnt lgkmcnt(0)")
    srd(o, 8, 40, 0, 8 * MiB)
    o(f"s_cmp_eq_u32 s{sRound}, 0"); o("s_cbranch_scc1 L_small")
    o(f"s_cmp_ge_u32 s{sCt}, 32"); o("s_cbranch_scc1 L_bigv")
    qkv_tile(A, 8, False, "L_gA", sW, sCt, sTok, opt, None); o("s_branch L_sig")
    A.label("L_bigv")
    qkv_tile(A, 8, True, "L_gB", sW, sCt, sTok, opt, None); o("s_branch L_sig")
    A.label("L_small")
    osm = dict(opt); osm["S"] = 6
    o(f"s_cmp_ge_u32 s{sCt}, 32"); o("s_cbranch_scc1 L_smallv")
    qkv_tile(A, 2, False, "L_gC", sW, sCt, sTok, osm, None); o("s_branch L_sig")
    A.label("L_smallv")
    qkv_tile(A, 2, True, "L_gD", sW, sCt, sTok, osm, None)
    A.label("L_sig")
    if opt.get("flg"):
        o(f"s_cmp_lg_u32 s{sRound}, 0"); o("s_cbranch_scc1 L_sgn")
        o(f"s_lshr_b32 s75, s{sTok}, 6"); o("s_lshl_b32 s75, s75, 2"); o(f"s_lshr_b32 s45, s{sCt}, 5"); o("s_lshl_b32 s45, s45, 1"); o("s_add_u32 s75, s75, s45")
        o(f"s_and_b32 s45, s{sCt}, 1"); o("s_add_u32 s75, s75, s45")
        o(f"s_and_b32 s74, s{sCt}, 15"); o("s_lshr_b32 s74, s74, 1"); o("s_lshl_b32 s74, s74, 7")
        fsignal(A, CNT_KV0F, "k0", 75, off_s=74)
        o("s_branch L_sgd")
        A.label("L_sgn")
        signal(A, 0, "t", off_s=sCntOff)
        A.label("L_sgd")
    else:
        signal(A, 0, "t", off_s=sCntOff)
    if ST2:
        o(f"s_cmp_lg_u32 s{sRound}, 0"); o("s_cbranch_scc1 L_nolate")
        o(f"s_lshl_b32 s12, s{sW}, 10"); o("v_lshlrev_b32 v3, 4, v0"); o("v_add_u32 v3, s12, v3")
        for r in range(4): o(f"v_mov_b32 v{8+r}, -1")
        o(f"s_mul_i32 s12, s{sB}, {7*MiB//128}"); o(f"s_add_u32 s12, s12, {WS_PARTF + MiB}")
        o(f"s_add_u32 s14, s{sWS}, s12"); o(f"s_addc_u32 s15, s{sWS+1}, 0")
        for k in range(14):
            o("global_store_dwordx4 v3, v[8:11], s[14:15] sc1"); o("s_add_u32 s14, s14, 4096"); o("s_addc_u32 s15, s15, 0")
        signal(A, CNT_FILL2, "f2")
        A.label("L_nolate")
    if bprof:
        o("s_memrealtime s[72:73]"); o("s_waitcnt lgkmcnt(0)")
        o(f"s_lshl_b32 s74, s{sB}, 10"); o(f"s_lshl_b32 s75, s{sRound}, 2"); o("s_add_u32 s74, s74, s75"); o(f"s_add_u32 s74, s74, {WS_PROF + 4*MiB + 16}")
        o("v_mov_b32 v250, s74"); o("v_mov_b32 v251, s72")
        o("s_mov_b64 exec, 1"); o(f"global_store_dword v250, v251, {s(sWS,2)}"); o("s_mov_b64 exec, -1")
    o(f"s_add_u32 s{sRound}, s{sRound}, 1")
    o("s_branch L_task")
    A.label("L_phase3")
    if not opt.get("st2"): o(f"s_cmp_ge_u32 s{sB}, 64"); o("s_cbranch_scc1 L_nomod2")
    silu_to_lds(A)
    o(f"s_lshl_b32 s{sCt}, s{sB}, 5"); o(f"s_add_u32 s{sCt}, s{sCt}, {2048 if opt.get('st2') else 4096}")
    mod_task(A, sCt, "b")
    signal(A, CNT_MODC, "m2")
    A.label("L_nomod2")
    if opt.get("late3"):
        wait_cnt(A, CNT_Q + (opt["late3"] - 1) * 128, 16, "lq", sleep=60)
    if opt.get("wpf", 1) == 1:
        prefetch_task(A, KA_WO, 8 * MiB, "wo"); prefetch_task(A, KA_W1, 2048 * 7168, "w1"); prefetch_task(A, KA_W2, 3584 * 4096, "w2")
    if opt.get("wpf", 1) == 2:
        prefetch_task(A, KA_W2, 3584 * 4096, "w2")
    if opt.get("sent"):
        o(f"s_lshl_b32 s12, s{sW}, 10"); o("v_lshlrev_b32 v3, 4, v0"); o("v_add_u32 v3, s12, v3")
        for r in range(4): o(f"v_mov_b32 v{8+r}, -1")
        o(f"s_lshl_b32 s12, s{sB}, 17"); o(f"s_add_u32 s12, s12, {128 * MiB}")
        o(f"s_add_u32 s14, s{sWS}, s12"); o(f"s_addc_u32 s15, s{sWS+1}, 0")
        o("s_mov_b32 s16, 32")
        A.label("L_sfill")
        o("global_store_dwordx4 v3, v[8:11], s[14:15]" + (" sc1" if opt.get("one") else "")); o("s_add_u32 s14, s14, 4096"); o("s_addc_u32 s15, s15, 0")
        o("s_sub_u32 s16, s16, 1"); o("s_cmp_lg_u32 s16, 0"); o("s_cbranch_scc1 L_sfill")
        o(f"s_cmp_ge_u32 s{sB}, 64"); o("s_cbranch_scc1 L_sfill2")
        o(f"s_lshl_b32 s12, s{sB}, 12"); o(f"s_add_u32 s12, s12, {144 * MiB}")
        o(f"s_add_u32 s14, s{sWS}, s12"); o(f"s_addc_u32 s15, s{sWS+1}, 0")
        o("global_store_dwordx4 v3, v[8:11], s[14:15]" + (" sc1" if opt.get("one") else ""))
        A.label("L_sfill2")
        o("s_waitcnt vmcnt(0)")
    P3 = opt.get("p3", 4)
    if P3 == 4:
        for r in range(128): o(f"v_accvgpr_write_b32 a{128+r}, 0")
    if P3 == 0:
        o("s_branch L_bulk_done")
    if P3 == 5:
        passes = opt.get("passes", [(0, 2), (2, 2), (4, 2), (6, 1), (7, 1)])
        for r in range(128): o(f"v_accvgpr_write_b32 a{128+r}, 0")
        o(f"s_lshr_b32 s{sDtG}, s{sXb}, 1"); o(f"s_lshl_b32 s{sDtG}, s{sDtG}, 1"); o(f"s_and_b32 s44, s{sI}, 1"); o(f"s_add_u32 s{sDtG}, s{sDtG}, s44")
        o(f"s_and_b32 s{sFt}, s{sXb}, 1"); o(f"s_lshl_b32 s{sFt}, s{sFt}, 3"); o(f"s_lshr_b32 s44, s{sI}, 1"); o(f"s_add_u32 s{sFt}, s{sFt}, s44")
        sPass, sPn = 83, 84
        def att_chunk(tag):
            o(f"s_lshl_b32 s{sCntOff}, s{sCh}, 3"); o(f"s_add_u32 s{sCntOff}, s{sCntOff}, s{sXb}"); o(f"s_lshl_b32 s{sCntOff}, s{sCntOff}, 7")
            wait_cnt(A, CNT_REC, 32, f"rec{tag}", off_s=sCntOff, sleep=8)
            o(f"s_lshl_b32 s{sCntOff}, s{sCh}, 7")
            wait_cnt(A, CNT_Q, 16, f"q{tag}", off_s=sCntOff)
            o(f"s_lshl_b32 s56, s{sB}, 2"); o(f"s_add_u32 s56, s56, s{sW}")
            o(f"s_lshr_b32 s57, s56, 6"); o(f"s_lshl_b32 s58, s{sCh}, 3"); o("s_add_u32 s57, s57, s58")
            o("s_lshr_b32 s58, s56, 1"); o("s_and_b32 s58, s58, 31"); o("s_and_b32 s59, s56, 1")
            attn_body(A, sWS, 57, 58, 59, 0, f"L_at{tag}", sc1=True)
        def rest(nch, tag):
            o(f"s_lshl_b32 s{sCntOff}, s{sPass}, 7")
            signal(A, CNT_ATT, f"a{tag}", off_s=sCntOff)
            wait_cnt(A, CNT_ATT, 128, f"a{tag}", off_s=sCntOff, sleep=4)
            bstamp(2)
            op_pass(A, 2 if nch == 1 else 3, opt)
            signal(A, CNT_OP, f"o{tag}", off_s=sCntOff)
            bstamp(3)
            wait_cnt(A, CNT_OP, 128, f"o{tag}", off_s=sCntOff, sleep=4)
            bstamp(4)
            ln2_pass(A, 3 if nch == 1 else 4)
            signal(A, CNT_LN, f"n{tag}", off_s=sCntOff)
            bstamp(5)
            o(f"s_cmp_ge_u32 s{sFt}, 14"); o(f"s_cbranch_scc1 L_nog1{tag}")
            wait_cnt(A, CNT_LN, 128, f"n{tag}", off_s=sCntOff, sleep=4)
            bstamp(6)
            G_ = g1_pass(A, opt, 8 * nch, f"L_g1{tag}")
            bstamp(7)
            A.label(f"L_nog1{tag}")
            return G_
        wait_cnt(A, CNT_MODB, 64, "mb5"); wait_cnt(A, CNT_MODC, 64, "mc5")
        nd = sum(1 for p in passes if p[1] == 2); ns = sum(1 for p in passes if p[1] == 1)
        o(f"s_mov_b32 s{sPass}, 0")
        A.label("L_dpass")
        o(f"s_lshl_b32 s{sCh}, s{sPass}, 1"); att_chunk("A"); bstamp(0)
        o(f"s_lshl_b32 s{sCh}, s{sPass}, 1"); o(f"s_add_u32 s{sCh}, s{sCh}, 1"); att_chunk("B"); bstamp(1)
        o(f"s_lshl_b32 s{sTok}, s{sPass}, 9"); o(f"s_lshl_b32 s{sCh}, s{sPass}, 1")
        G = rest(2, "D")
        o(f"s_add_u32 s{sPass}, s{sPass}, 1"); o(f"s_cmp_lt_u32 s{sPass}, {nd}"); o("s_cbranch_scc1 L_dpass")
        if ns:
            A.label("L_spass")
            o(f"s_add_u32 s{sCh}, s{sPass}, {nd}"); att_chunk("C"); bstamp(1)
            o(f"s_add_u32 s{sCh}, s{sPass}, {nd}"); o(f"s_lshl_b32 s{sTok}, s{sCh}, 8")
            rest(1, "S")
            o(f"s_add_u32 s{sPass}, s{sPass}, 1"); o(f"s_cmp_lt_u32 s{sPass}, {nd+ns}"); o("s_cbranch_scc1 L_spass")
        o(f"s_cmp_ge_u32 s{sFt}, 14"); o("s_cbranch_scc1 L_bulk_done")
        g1_epilogue(A, G, sFt, sDtG)
        o("s_branch L_bulk_done")
    if P3 not in (0, 5):
        o(f"s_mov_b32 s{sCh}, 0")
        A.label("L_chunk")
        if P3 >= 4:
            o(f"s_lshl_b32 s{sCntOff}, s{sCh}, 10"); o(f"s_add_u32 s{sCntOff}, s{sCntOff}, {7*128}")
            wait_cnt(A, CNT_REC, 32, "rec", off_s=sCntOff)
        else:
            if opt.get("aspread", 1):
                o(f"s_lshr_b32 s55, s{sI}, 1")
            else:
                o(f"s_mov_b32 s55, s{sXb}")
            o(f"s_lshl_b32 s{sCntOff}, s{sCh}, 3"); o(f"s_add_u32 s{sCntOff}, s{sCntOff}, s55"); o(f"s_lshl_b32 s{sCntOff}, s{sCntOff}, 7")
            if opt.get("relay"):
                o(f"s_cmp_lg_u32 s{sI}, 0"); o("s_cbranch_scc1 L_rly_w")
                wait_cnt(A, CNT_REC, 32, "rec", off_s=sCntOff, sleep=opt["relay"])
                signal(A, CNT_RLY, "rly", off_s=sCntOff)
                o("s_branch L_rly_d")
                A.label("L_rly_w")
                wait_cnt(A, CNT_RLY, 1, "rlw", off_s=sCntOff, sleep=16)
                A.label("L_rly_d")
            else:
                wait_cnt(A, CNT_REC, 32, "rec", off_s=sCntOff, sleep=opt.get("slp", 16))
        o(f"s_lshl_b32 s{sCntOff}, s{sCh}, 7")
        wait_cnt(A, CNT_Q, 16, "q", off_s=sCntOff)
        bstamp(0)
        if P3 >= 4 or not opt.get("aspread", 1):
            o(f"s_lshl_b32 s56, s{sB}, 2"); o(f"s_add_u32 s56, s56, s{sW}")
            o(f"s_lshr_b32 s57, s56, 6"); o(f"s_lshl_b32 s58, s{sCh}, 3"); o("s_add_u32 s57, s57, s58")
        else:
            o(f"s_lshl_b32 s56, s{sXb}, 1"); o(f"s_and_b32 s57, s{sI}, 1"); o("s_add_u32 s56, s56, s57"); o("s_lshl_b32 s56, s56, 2"); o(f"s_add_u32 s56, s56, s{sW}")
            o(f"s_lshr_b32 s57, s{sI}, 1"); o(f"s_lshl_b32 s58, s{sCh}, 3"); o("s_add_u32 s57, s57, s58")
        o("s_lshr_b32 s58, s56, 1"); o("s_and_b32 s58, s58, 31"); o("s_and_b32 s59, s56, 1")
        if opt.get("aser"):
            o("s_mov_b32 s54, 0")
            A.label("L_aser")
            o(f"s_cmp_lg_u32 s{sW}, s54"); o("s_cbranch_scc1 L_aser_s")
        attn_body(A, sWS, 57, 58, 59, 0, "L_at", sc1=(P3 >= 4), nt=opt.get("ant", 0))
        if opt.get("aser"):
            o("s_waitcnt vmcnt(0)")
            A.label("L_aser_s")
            o("s_barrier")
            o("s_add_u32 s54, s54, 1"); o("s_cmp_lt_u32 s54, 4"); o("s_cbranch_scc1 L_aser")
        if P3 >= 4:
            signal(A, CNT_ATT, "a", off_s=sCntOff)
            bstamp(1)
            wait_cnt(A, CNT_ATT, 128, "a", off_s=sCntOff)
            wait_cnt(A, CNT_MODB, 64, "mb")
            bstamp(2)
            op_task(A)
            signal(A, CNT_OP, "o", off_s=sCntOff)
            bstamp(3)
            wait_cnt(A, CNT_OP, 128, "o", off_s=sCntOff)
            wait_cnt(A, CNT_MODC, 64, "mc")
            bstamp(4)
            ln2_task(A)
            signal(A, CNT_LN, "n", off_s=sCntOff)
            bstamp(5)
            o(f"s_cmp_ge_u32 s{sI}, 14"); o("s_cbranch_scc1 L_nog1")
            wait_cnt(A, CNT_LN, 128, "n", off_s=sCntOff)
            bstamp(6)
            G = g1_partial(A, opt)
            bstamp(7)
            A.label("L_nog1")
            o(f"s_add_u32 s{sCh}, s{sCh}, 1"); o(f"s_cmp_lt_u32 s{sCh}, 8"); o("s_cbranch_scc1 L_chunk")
            o(f"s_cmp_ge_u32 s{sI}, 14"); o("s_cbranch_scc1 L_bulk_done")
            g1_epilogue(A, G)
        else:
            o("s_waitcnt vmcnt(0)")
            o(f"s_add_u32 s{sCh}, s{sCh}, 1"); o(f"s_cmp_lt_u32 s{sCh}, 8"); o("s_cbranch_scc1 L_chunk")
    A.label("L_bulk_done")
    o("s_waitcnt vmcnt(0)")
    if opt.get("one"):
        import k_tail
        k_tail.SENT = True
        o("s_barrier")
        o(f"s_add_u32 s{sCNT}, s{sWS}, {WS_CNT}"); o(f"s_addc_u32 s{sCNT+1}, s{sWS+1}, 0")
        signal(A, k_tail.CNT_BULK, "bk")
        o(f"s_cmp_eq_u32 s{sChk}, 0"); o("s_cbranch_scc0 L_one_c1"); o(f"s_add_u32 s{sCNT}, s{sCNT}, {SLOW_OFF}"); o(f"s_addc_u32 s{sCNT+1}, s{sCNT+1}, 0")
        A.label("L_one_c1")
        for c in range(8): wait_cnt(A, CNT_Q + c * 128, 16, f"oq{c}", sleep=opt.get("qs", 100))
        o(f"s_add_u32 s{sCNT}, s{sWS}, {WS_CNT}"); o(f"s_addc_u32 s{sCNT+1}, s{sWS+1}, 0")
        wait_cnt(A, k_tail.CNT_P58, 1, "p58", sleep=opt.get("ps", 100))
        A.raw(k_tail.gen_attn_early(opt["one"]))
        o("s_branch T_last")
    else:
        o("s_endpgm")
    return re.sub(r"\bL_", "B_L_", A.finish())

def gen_mega(name="mega_kernel", recopt=None, opt=None, force_slow=False, place=8):
    recopt = recopt or dict(E2_DEPTH=2, E2_SP=3, E2_DELAY=2)
    opt = opt or {"S": 4}
    A = Asm(); o = A
    o("s_cmp_ge_u32 s2, 256"); o("s_cbranch_scc1 M_end")
    o(f"s_load_dwordx2 {s(sDBG,2)}, s[0:1], {KA_DBG}")
    o(f"s_load_dwordx2 {s(sWS,2)}, s[0:1], {KA_WS}")
    o(f"s_load_dwordx2 s[10:11], s[0:1], {KA_MEM0}")
    if recopt.get("prof"): o("s_memrealtime s[92:93]")
    o("v_lshlrev_b32 v3, 4, v0")
    o("v_lshrrev_b32 v1, 6, v0"); o("v_and_b32 v0, 63, v0"); o(f"v_readfirstlane_b32 s{sW}, v1")
    o("s_getreg_b32 s4, hwreg(HW_REG_XCC_ID, 0, 4)"); o("s_and_b32 s4, s4, 7")
    for r in range(4): o(f"v_mov_b32 v{8+r}, -1")
    o("s_waitcnt lgkmcnt(0)")
    if opt.get("tlb"):
        st = opt["tlb"]
        o(f"s_cmp_lg_u32 s{sW}, 1"); o("s_cbranch_scc1 M_notlb")
        o(f"v_lshlrev_b32 v4, {st}, v0")
        srd(o, 16, sWS, 0, 144 * MiB)
        o("buffer_load_dword v40, v4, s[16:19], 0 offen")
        o(f"s_mov_b32 s20, {64 << st}"); o("buffer_load_dword v41, v4, s[16:19], s20 offen")
        for k, (ka, nb) in enumerate(((KA_X, 4 * MiB), (KA_WQ, 8 * MiB), (KA_WK, 8 * MiB), (KA_WV, 8 * MiB), (KA_WO, 8 * MiB), (KA_WMOD, 12 * MiB))):
            o(f"s_load_dwordx2 s[20:21], s[0:1], {ka}"); o("s_waitcnt lgkmcnt(0)")
            srd(o, 16, 20, 0, nb)
            o(f"buffer_load_dword v{42+k}, v4, s[16:19], 0 offen")
        A.label("M_notlb")
    o(f"s_lshl_b32 s12, s2, {12 if opt.get('st2') else 15}"); o(f"s_add_u32 s12, s12, {WS_PARTF}")
    o(f"s_add_u32 s14, s{sWS}, s12"); o(f"s_addc_u32 s15, s{sWS+1}, 0")
    for k in range(1 if opt.get('st2') else 8):
        o("global_store_dwordx4 v3, v[8:11], s[14:15] sc1"); o("s_add_u32 s14, s14, 4096"); o("s_addc_u32 s15, s15, 0")
    o("s_cmp_ge_u32 s2, 128"); o("s_cbranch_scc1 M_f2")
    o("s_lshl_b32 s12, s2, 12")
    o(f"s_add_u32 s13, s12, {WS_RQK}"); o(f"s_add_u32 s14, s{sWS}, s13"); o(f"s_addc_u32 s15, s{sWS+1}, 0")
    o("global_store_dwordx4 v3, v[8:11], s[14:15] sc1")
    o(f"s_add_u32 s13, s12, {WS_RMEM}"); o(f"s_add_u32 s14, s{sWS}, s13"); o(f"s_addc_u32 s15, s{sWS+1}, 0")
    o("s_cmp_lt_u32 s2, 32"); o("s_cbranch_scc1 M_img")
    o("global_store_dwordx4 v3, v[8:11], s[14:15] sc1"); o("s_branch M_f3")
    A.label("M_img")
    o(f"s_and_b32 s16, s2, 3"); o("s_lshl_b32 s16, s16, 2"); o(f"s_add_u32 s16, s16, s{sW}"); o("s_lshl_b32 s16, s16, 7")
    o("v_and_b32 v5, 7, v0"); o("v_lshlrev_b32 v5, 11, v5"); o("v_bfe_u32 v6, v0, 3, 1"); o("v_lshl_add_u32 v5, v6, 6, v5")
    o("v_lshrrev_b32 v6, 4, v0"); o("v_lshl_add_u32 v5, v6, 4, v5"); o("v_add_u32 v5, s16, v5")
    o("global_load_dwordx4 v[16:19], v5, s[10:11]"); o("s_waitcnt vmcnt(0)")
    o("global_store_dwordx4 v3, v[16:19], s[14:15] sc1"); o("s_branch M_f3")
    A.label("M_f2")
    o("s_cmp_ge_u32 s2, 192"); o("s_cbranch_scc1 M_f4")
    o("s_sub_u32 s12, s2, 128"); o("s_lshl_b32 s12, s12, 12")
    o(f"s_add_u32 s13, s12, {WS_RV}"); o(f"s_add_u32 s14, s{sWS}, s13"); o(f"s_addc_u32 s15, s{sWS+1}, 0")
    o("global_store_dwordx4 v3, v[8:11], s[14:15] sc1"); o("s_branch M_f3")
    A.label("M_f4")
    o("s_cmp_ge_u32 s2, 240"); o("s_cbranch_scc1 M_f3")
    o("s_sub_u32 s12, s2, 192"); o("s_lshl_b32 s12, s12, 12"); o(f"s_add_u32 s12, s12, {WS_CNT}")
    o(f"s_add_u32 s14, s{sWS}, s12"); o(f"s_addc_u32 s15, s{sWS+1}, 0")
    for r in range(4): o(f"v_mov_b32 v{8+r}, 0")
    o("global_store_dwordx4 v3, v[8:11], s[14:15] sc1")
    A.label("M_f3")
    o("s_waitcnt vmcnt(0)"); o("s_barrier")
    o(f"s_cmp_lg_u32 s{sW}, 0"); o("s_cbranch_scc1 M_w")
    o("s_and_b32 s12, s4, 3"); o("s_lshl_b32 s12, s12, 2"); o("s_lshr_b32 s13, s4, 2"); o("s_lshl_b32 s13, s13, 7"); o("s_add_u32 s12, s12, s13")
    o("v_mov_b32 v1, s12"); o("v_mov_b32 v2, 1"); o("s_mov_b64 exec, 1")
    o(f"global_atomic_add v3, v1, v2, {s(sDBG,2)} sc0"); o("s_waitcnt vmcnt(0)")
    o("v_mov_b32 v1, 0"); o("ds_write_b32 v1, v3"); o("s_waitcnt lgkmcnt(0)"); o("s_mov_b64 exec, -1")
    A.label("M_w")
    o("s_barrier"); o("v_mov_b32 v1, 0"); o("ds_read_b32 v6, v1"); o("s_waitcnt lgkmcnt(0)"); o("v_readfirstlane_b32 s5, v6"); o("s_barrier")
    o(f"s_mov_b32 s{sChk}, 1")
    if force_slow:
        fast_check(A, "t"); o("s_branch M_slow")
    if place == 8:
        o("s_cmp_lt_u32 s5, 16"); o("s_cbranch_scc1 M_rec_fast")
        o("s_cmp_lt_u32 s5, 32"); o("s_cbranch_scc0 M_idle")
        o("s_sub_u32 s5, s5, 16"); o("s_branch M_bulk")
    else:
        o("s_cmp_lt_u32 s5, 32"); o("s_cbranch_scc0 M_idle")
        o("s_and_b32 s12, s4, 3"); o("s_lshl_b32 s12, s12, 1"); o("s_lshr_b32 s13, s5, 4"); o("s_add_u32 s12, s12, s13"); o("s_and_b32 s5, s5, 15")
        o("s_cmp_lt_u32 s4, 4"); o("s_mov_b32 s4, s12"); o("s_cbranch_scc1 M_rec_fast"); o("s_branch M_bulk")
    A.label("M_idle")
    fast_check(A, "i")
    A.label("M_slow")
    o(f"s_mov_b32 s{sChk}, 0")
    o("s_lshr_b32 s4, s2, 4"); o("s_and_b32 s4, s4, 7"); o("s_and_b32 s5, s2, 15")
    o("s_cmp_lt_u32 s2, 128"); o("s_cbranch_scc1 M_rec_slow")
    o("s_branch M_bulk")
    A.label("M_end"); o("s_endpgm")
    t = A.finish()
    t += "M_bulk:\n" + gen_bulk(opt)
    Ah = Asm(); fast_check(Ah, "r"); Ah("s_cmp_eq_u32 s15, 0"); Ah("s_cbranch_scc1 M_slow")
    hook = Ah.finish()
    one_ = None
    if opt.get("one"):
        import k_tail
        pstep = opt["one"] // 32 + 2
        one_ = dict(done=k_tail.CNT_DONE, p58=k_tail.CNT_P58, pstep=pstep)
        recopt = dict(recopt); recopt["KMSC1"] = 1
    pre = ""
    if opt.get("rwait"):
        Ap = Asm()
        fast_check(Ap, "p"); Ap("s_cmp_eq_u32 s15, 0"); Ap("s_cbranch_scc1 M_slow")
        Ap(f"s_load_dwordx2 {s(sWS,2)}, s[0:1], {KA_WS}"); Ap("s_waitcnt lgkmcnt(0)")
        Ap(f"s_add_u32 s{sCNT}, s{sWS}, {WS_CNT}"); Ap(f"s_addc_u32 s{sCNT+1}, s{sWS+1}, 0"); Ap(f"s_mov_b32 s{sLim}, 0x400000")
        wait_cnt(Ap, CNT_MODA if opt["rwait"] == 1 else CNT_LN1, 128 if opt["rwait"] == 1 else 16, "rp", sleep=8)
        pre = re.sub(r"\bL_", "RP_L_", Ap.finish())
    t += "M_rec_fast:\n" + pre + rec.gen_rec(embedded=True, pfx="RF_", fast=True, KVCHK=True, SIG=(opt.get("p3", 4) != 0), hook=hook, cntoff=0, KV0F=(CNT_KV0F if opt.get('flg') else None), ONE=one_, FILL2=(CNT_FILL2 if opt.get('st2') else None), **recopt)
    t += "M_rec_slow:\n" + rec.gen_rec(embedded=True, pfx="RS_", fast=False, KVCHK=True, SIG=(opt.get("p3", 4) != 0), hook=None, cntoff=SLOW_OFF, KV0F=(CNT_KV0F if opt.get('flg') else None), ONE=one_, FILL2=(CNT_FILL2 if opt.get('st2') else None), **recopt)
    if opt.get("one"):
        import k_tail
        k_tail.SENT = True
        t += k_tail.gen_tail_text(opt["one"])
    return kernel_head(name) + t + kernel_desc(name, 256, 256)
```

```python
from asmlib import *
from layout import *

NSTEPS = 64
SENT = 0xFFFFFFFF

def gen_rec(name="rec_kernel", embedded=False, pfx="", KVCHK=False, SIG=False, hook=None, cntoff=0, EARLY=False, FILL2=None, fast=True, prof=False, nsteps=NSTEPS, E1_EARLY=True, E2_DELAY=0, E3_DELAY=0, KV_FIRST=0, PF=1, PFE=0, REORD=0, FC=0, E3_SP=0, KVFIRST=0, KMSC1=0, ONE=None, KV0F=None, VSP=2, RT=0, E1_AT=7, E3_SALU_FIRST=0, LAST_SHORT=1, NOK=0, NOV=0, E2F='sc1', X4=0, X4LIM=4, E2_DEPTH=3, E2_SP=0, EP=0, FIXKV=0):
    TIMER = "s_memrealtime" if RT else "s_memtime"
    A = Asm()
    o = A
    st_fast = "" if fast else " sc1"
    sWG = 2
    sW, sG, sJ, sHA, sC, sHead = 3, 4, 5, 6, 7, 8
    sWS = 10
    sT0, sT1, sT2, sT3 = 12, 13, 14, 15
    sPtr = 16
    sMEMc, sMEMn, sQK, sVR, sPART, sPART2, sKX, sKX2, sVX, sKM, sVM = 20, 22, 24, 26, 28, 30, 32, 34, 36, 38, 40
    sRq, sRv, sRp, sRm = 42, 44, 46, 48
    sStep, sSlot, sLim = 50, 51, 52
    sMaskQK, sMaskLo = 54, 56
    sSelV = 58
    sScale = 60
    sWQ, sWK, sWV, sWO, sDBG = 62, 64, 66, 68, 70
    sTs = 66
    sProf = 96
    vL = 0; vT = [1, 2, 3, 4, 5, 6, 7]
    vE3, vQKst, vVst, vVld, vPst, vPld, vMst, vKx, vL16, vKMst = 8, 9, 10, 11, 12, 13, 14, 15, 56, 57
    vA0, vA1, vAv0, vAv1 = 16, 20, 24, 28
    vSx, vSm = 32, 40
    vPx, vPmA, vPmB = 44, 48, 50
    vDelta = 52
    vNeg = 60
    vB = 64; vK = 128; vV = 160; vQ = 192; vQr = 200; vKm = 208; vKr = 216; vVm = 224
    vLdsM, vLdsO, vLdsV = 232, 233, 234
    vSent = 236
    vFlag = 57
    vX = 240
    vO = 64; vOb = 96
    vOo = [112, 116, 120, 124] + [160 + 4 * i for i in range(8)]
    LDS_MEM, LDS_O, LDS_V = 0, 16384, 32768

    if not embedded:
        o(f"s_cmp_ge_u32 s{sWG}, {256 if X4 else 128}")
        o("s_cbranch_scc1 L_rec_end")
        o(f"s_load_dwordx2 {s(sWQ,2)}, s[0:1], {KA_WQ}")
        o(f"s_load_dwordx2 {s(sWK,2)}, s[0:1], {KA_WK}")
        o(f"s_load_dwordx2 {s(sWV,2)}, s[0:1], {KA_WV}")
        o(f"s_load_dwordx2 {s(sWO,2)}, s[0:1], {KA_WO}")
        o(f"s_load_dwordx2 {s(sDBG,2)}, s[0:1], {KA_DBG}")
        o(f"s_load_dwordx2 {s(sWS,2)}, s[0:1], {KA_WS}")
        o(f"v_lshrrev_b32 v1, 6, v0")
        o(f"v_and_b32 v{vL}, 63, v0")
        o(f"v_readfirstlane_b32 s{sW}, v1")
        o(f"s_getreg_b32 s{sG}, hwreg(HW_REG_XCC_ID, 0, 4)")
        o("s_waitcnt lgkmcnt(0)")
        o(f"s_cmp_lg_u32 s{sW}, 0")
        o("s_cbranch_scc1 L_rec_noticket")
        o(f"s_lshl_b32 s{sT0}, s{sG}, 2")
        o(f"v_mov_b32 v1, s{sT0}")
        o("v_mov_b32 v2, 1")
        o("s_mov_b64 exec, 1")
        o(f"global_atomic_add v3, v1, v2, {s(sDBG,2)} sc0")
        o("s_waitcnt vmcnt(0)")
        o("v_mov_b32 v1, 0")
        o("ds_write_b32 v1, v3")
        o("s_waitcnt lgkmcnt(0)")
        o("s_mov_b64 exec, -1")
        A.label("L_rec_noticket")
        o("s_barrier")
        o("v_mov_b32 v1, 0")
        o("ds_read_b32 v3, v1")
        o("s_waitcnt lgkmcnt(0)")
        o(f"v_readfirstlane_b32 s{sJ}, v3")
        o("s_barrier")
        if X4:
            o(f"s_cmp_ge_u32 s{sG}, {X4LIM}"); o("s_cbranch_scc1 L_rec_end")
            o(f"s_sub_u32 s{sG}, s{sG}, {X4LIM-4}") if False else None
            o(f"s_lshl_b32 s{sG}, s{sG}, 1"); o(f"s_lshr_b32 s{sT0}, s{sJ}, 4"); o(f"s_add_u32 s{sG}, s{sG}, s{sT0}")
        o(f"s_and_b32 s{sJ}, s{sJ}, 15")
        o(f"s_and_b32 s{sG}, s{sG}, 7")
    else:
        o(f"s_load_dwordx2 {s(sWQ,2)}, s[0:1], {KA_WQ}")
        o(f"s_load_dwordx2 {s(sWK,2)}, s[0:1], {KA_WK}")
        o(f"s_load_dwordx2 {s(sWV,2)}, s[0:1], {KA_WV}")
        o(f"s_load_dwordx2 {s(sWO,2)}, s[0:1], {KA_WO}")
        o(f"s_load_dwordx2 {s(sWS,2)}, s[0:1], {KA_WS}")
        o("s_waitcnt lgkmcnt(0)")
    o(f"s_lshr_b32 s{sHA}, s{sJ}, 2")
    o(f"s_and_b32 s{sC}, s{sJ}, 3")
    o(f"s_lshl_b32 s{sHead}, s{sG}, 2")
    o(f"s_add_u32 s{sHead}, s{sHead}, s{sW}")
    vi, vg, vr = vT[0], vT[1], vT[2]
    o(f"v_and_b32 v{vi}, 15, v{vL}")
    o(f"v_lshrrev_b32 v{vg}, 4, v{vL}")
    o(f"v_and_b32 v{vr}, 7, v{vL}")
    o(f"v_lshlrev_b32 v{vL16}, 4, v{vL}")

    o(f"s_lshl_b32 s{sT0}, s{sG}, 2")
    o(f"s_add_u32 s{sT0}, s{sT0}, s{sHA}")
    o(f"s_lshl_b32 s{sT0}, s{sT0}, 8")
    o(f"s_lshl_b32 s{sT1}, s{sC}, 6")
    o(f"s_add_u32 s{sT0}, s{sT0}, s{sT1}")
    v1, v2, v3, v4 = vT[3], vT[4], vT[5], vT[6]
    o(f"v_lshrrev_b32 v{v1}, 2, v{vL}")
    o(f"v_lshlrev_b32 v{v1}, 13, v{v1}")
    o(f"v_and_b32 v{v2}, 3, v{vL}")
    o(f"v_lshl_add_u32 v{v1}, v{v2}, 4, v{v1}")
    o(f"v_add_u32 v{v1}, s{sT0}, v{v1}")
    o(f"s_lshl_b32 s{sT1}, s{sW}, 21")
    o(f"v_add_u32 v{v1}, s{sT1}, v{v1}")
    def dma_strip(sbase, ldsbase, nblk, rowstep):
        o(f"v_mov_b32 v{v2}, v{v1}")
        o(f"s_lshl_b32 s{sT2}, s{sW}, {(nblk*1024).bit_length()-1}")
        o(f"s_add_u32 s{sT2}, s{sT2}, {ldsbase}")
        for m in range(nblk):
            o(f"s_mov_b32 m0, s{sT2}")
            o(f"s_add_u32 s{sT2}, s{sT2}, 1024")
            o(f"global_load_lds_dwordx4 v{v2}, {s(sbase,2)}")
            if m + 1 < nblk: o(f"v_add_u32 v{v2}, {rowstep}, v{v2}")
    if KVFIRST:
        def rd_qk():
            o(f"s_and_b32 s{sT0}, s{sW}, 1"); o(f"s_lshl_b32 s{sT0}, s{sT0}, 5")
            for i in range(16):
                o(f"s_lshl_b32 s{sT2}, s{sW}, 2"); o(f"s_add_u32 s{sT2}, s{sT2}, {i}"); o(f"s_and_b32 s{sT2}, s{sT2}, 15"); o(f"s_lshl_b32 s{sT2}, s{sT2}, 12")
                o(f"s_add_u32 s{sT2}, s{sT2}, s{sT0}"); o(f"v_add_u32 v{v4}, s{sT2}, v{v3}")
                for half in range(2):
                    d = (i * 2 + half) * 4
                    o(f"ds_read_b64_tr_b16 {a(d,2)}, v{v4} offset:{half*2048}"); o(f"ds_read_b64_tr_b16 {a(d+2,2)}, v{v4} offset:{half*2048+256}")
                if i % 4 == 3: o("s_waitcnt lgkmcnt(0)")
        dma_strip(sWK, 0, 16, 131072)
        dma_strip(sWV, 65536, 16, 131072)
        o(f"v_lshrrev_b32 v{v3}, 2, v{vi}"); o(f"v_lshl_add_u32 v{v3}, v{vg}, 3, v{v3}"); o(f"v_lshlrev_b32 v{v3}, 6, v{v3}")
        o(f"v_and_b32 v{v4}, 3, v{vi}"); o(f"v_lshl_add_u32 v{v3}, v{v4}, 3, v{v3}")
        o("s_waitcnt vmcnt(0)"); o("s_barrier")
        o(f"s_cmp_lt_u32 s{sW}, 2"); o("s_cbranch_scc1 L_kf1")
        rd_qk()
        A.label("L_kf1")
        o(f"s_and_b32 s{sT0}, s{sW}, 1"); o(f"s_lshl_b32 s{sT0}, s{sT0}, 5"); o(f"s_add_u32 s{sT0}, s{sT0}, 65536")
        for i in range(8):
            o(f"s_lshl_b32 s{sT2}, s{sW}, 2"); o(f"s_add_u32 s{sT2}, s{sT2}, {i}"); o(f"s_and_b32 s{sT2}, s{sT2}, 15"); o(f"s_lshl_b32 s{sT2}, s{sT2}, 12")
            o(f"s_add_u32 s{sT2}, s{sT2}, s{sT0}"); o(f"v_add_u32 v{v4}, s{sT2}, v{v3}")
            for half in range(2):
                d = 128 + (i * 2 + half) * 4
                o(f"ds_read_b64_tr_b16 {a(d,2)}, v{v4} offset:{half*2048}"); o(f"ds_read_b64_tr_b16 {a(d+2,2)}, v{v4} offset:{half*2048+256}")
            if i % 4 == 3: o("s_waitcnt lgkmcnt(0)")
        o("s_barrier")
        dma_strip(sWQ, 0, 16, 131072)
        o(f"v_lshrrev_b32 v{v1}, 3, v{vL}"); o(f"v_lshlrev_b32 v{v1}, 11, v{v1}"); o(f"v_and_b32 v{v2}, 7, v{vL}"); o(f"v_lshl_add_u32 v{v1}, v{v2}, 4, v{v1}")
        o(f"s_lshl_b32 s{sT0}, s{sG}, 20"); o(f"s_lshl_b32 s{sT1}, s{sJ}, 7"); o(f"s_add_u32 s{sT0}, s{sT0}, s{sT1}")
        o(f"s_lshl_b32 s{sT1}, s{sW}, 18"); o(f"s_add_u32 s{sT0}, s{sT0}, s{sT1}"); o(f"v_add_u32 v{v1}, s{sT0}, v{v1}")
        dma_strip(sWO, 65536, 16, 16384)
        o("s_waitcnt vmcnt(0)"); o("s_barrier")
        o(f"s_cmp_ge_u32 s{sW}, 2"); o("s_cbranch_scc1 L_kf2")
        rd_qk()
        A.label("L_kf2")
    else:
        dma_strip(sWQ, 0, 16, 131072)
        dma_strip(sWK, 65536, 16, 131072)
        o(f"v_lshrrev_b32 v{v3}, 2, v{vi}")
        o(f"v_lshl_add_u32 v{v3}, v{vg}, 3, v{v3}")
        o(f"v_lshlrev_b32 v{v3}, 6, v{v3}")
        o(f"v_and_b32 v{v4}, 3, v{vi}")
        o(f"v_lshl_add_u32 v{v3}, v{v4}, 3, v{v3}")
        o("s_waitcnt vmcnt(0)")
        o("s_barrier")
        o(f"s_lshr_b32 s{sT0}, s{sW}, 1")
        o(f"s_lshl_b32 s{sT0}, s{sT0}, 16")
        o(f"s_and_b32 s{sT1}, s{sW}, 1")
        o(f"s_lshl_b32 s{sT1}, s{sT1}, 5")
        o(f"s_add_u32 s{sT0}, s{sT0}, s{sT1}")
        for i in range(16):
            o(f"s_lshl_b32 s{sT2}, s{sW}, 2")
            o(f"s_add_u32 s{sT2}, s{sT2}, {i}")
            o(f"s_and_b32 s{sT2}, s{sT2}, 15")
            o(f"s_lshl_b32 s{sT2}, s{sT2}, 12")
            o(f"s_add_u32 s{sT2}, s{sT2}, s{sT0}")
            o(f"v_add_u32 v{v4}, s{sT2}, v{v3}")
            for half in range(2):
                d = (i * 2 + half) * 4
                o(f"ds_read_b64_tr_b16 {a(d,2)}, v{v4} offset:{half*2048}")
                o(f"ds_read_b64_tr_b16 {a(d+2,2)}, v{v4} offset:{half*2048+256}")
            if i % 4 == 3: o("s_waitcnt lgkmcnt(0)")
        o("s_barrier")
        dma_strip(sWV, 0, 16, 131072)
        o(f"v_lshrrev_b32 v{v1}, 3, v{vL}")
        o(f"v_lshlrev_b32 v{v1}, 11, v{v1}")
        o(f"v_and_b32 v{v2}, 7, v{vL}")
        o(f"v_lshl_add_u32 v{v1}, v{v2}, 4, v{v1}")
        o(f"s_lshl_b32 s{sT0}, s{sG}, 20")
        o(f"s_lshl_b32 s{sT1}, s{sJ}, 7")
        o(f"s_add_u32 s{sT0}, s{sT0}, s{sT1}")
        o(f"s_lshl_b32 s{sT1}, s{sW}, 18")
        o(f"s_add_u32 s{sT0}, s{sT0}, s{sT1}")
        o(f"v_add_u32 v{v1}, s{sT0}, v{v1}")
        dma_strip(sWO, 65536, 16, 16384)
        o("s_waitcnt vmcnt(0)")
        o("s_barrier")
        o(f"s_and_b32 s{sT0}, s{sW}, 1")
        o(f"s_lshl_b32 s{sT0}, s{sT0}, 5")
        for i in range(8):
            o(f"s_lshl_b32 s{sT2}, s{sW}, 2")
            o(f"s_add_u32 s{sT2}, s{sT2}, {i}")
            o(f"s_and_b32 s{sT2}, s{sT2}, 15")
            o(f"s_lshl_b32 s{sT2}, s{sT2}, 12")
            o(f"s_add_u32 s{sT2}, s{sT2}, s{sT0}")
            o(f"v_add_u32 v{v4}, s{sT2}, v{v3}")
            for half in range(2):
                d = 128 + (i * 2 + half) * 4
                o(f"ds_read_b64_tr_b16 {a(d,2)}, v{v4} offset:{half*2048}")
                o(f"ds_read_b64_tr_b16 {a(d+2,2)}, v{v4} offset:{half*2048+256}")
            if i % 4 == 3: o("s_waitcnt lgkmcnt(0)")
    o(f"v_lshrrev_b32 v{v3}, 2, v{vi}")
    o(f"v_lshl_add_u32 v{v3}, v{vg}, 2, v{v3}")
    o(f"v_lshlrev_b32 v{v3}, 7, v{v3}")
    o(f"v_and_b32 v{v4}, 3, v{vi}")
    o(f"v_lshl_add_u32 v{v3}, v{v4}, 3, v{v3}")
    o(f"s_lshl_b32 s{sT0}, s{sW}, 14")
    o(f"s_add_u32 s{sT0}, s{sT0}, 65536")
    o(f"v_add_u32 v{v4}, s{sT0}, v{v3}")
    for ct in range(4):
        for u in range(4):
            d = 192 + (ct * 4 + u) * 4
            o(f"ds_read_b64_tr_b16 {a(d,2)}, v{v4} offset:{u*4096+ct*32}")
            o(f"ds_read_b64_tr_b16 {a(d+2,2)}, v{v4} offset:{u*4096+2048+ct*32}")
        o("s_waitcnt lgkmcnt(0)")
    o("s_barrier")

    if hook:
        A.raw(hook)
        o(f"v_and_b32 v{vi}, 15, v{vL}"); o(f"v_lshrrev_b32 v{vg}, 4, v{vL}"); o(f"v_and_b32 v{vr}, 7, v{vL}")
    o(f"s_lshl_b32 s{sT0}, s{sW}, 12")
    o(f"v_add_u32 v{vE3}, s{sT0}, v{vL16}")
    o(f"v_lshrrev_b32 v{v1}, 1, v{vg}")
    o(f"v_lshlrev_b32 v{v1}, 8, v{v1}")
    o(f"v_lshl_add_u32 v{v1}, v{vr}, 4, v{v1}")
    o(f"s_lshr_b32 s{sT0}, s{sC}, 1")
    o(f"s_lshl_b32 s{sT0}, s{sT0}, 10")
    o(f"s_and_b32 s{sT1}, s{sW}, 1")
    o(f"s_lshl_b32 s{sT1}, s{sT1}, 9")
    o(f"s_add_u32 s{sT0}, s{sT0}, s{sT1}")
    o(f"s_and_b32 s{sT1}, s{sC}, 1")
    o(f"s_lshl_b32 s{sT1}, s{sT1}, 7")
    o(f"s_add_u32 s{sT0}, s{sT0}, s{sT1}")
    o(f"v_add_u32 v{vKMst}, s{sT0}, v{v1}")
    o(f"s_lshl_b32 s{sT0}, s{sHA}, 12")
    o(f"s_lshr_b32 s{sT1}, s{sW}, 1")
    o(f"s_lshl_b32 s{sT1}, s{sT1}, 11")
    o(f"s_add_u32 s{sT0}, s{sT0}, s{sT1}")
    o(f"v_add_u32 v{vQKst}, s{sT0}, v{vKMst}")
    o(f"s_lshl_b32 s{sT0}, s{sHA}, 11")
    o(f"s_lshl_b32 s{sT1}, s{sC}, 9")
    o(f"s_add_u32 s{sT0}, s{sT0}, s{sT1}")
    o(f"v_add_u32 v{vVst}, s{sT0}, v{vL16}")
    o(f"s_lshl_b32 s{sT0}, s{sW}, 11")
    o(f"v_add_u32 v{vVld}, s{sT0}, v{vL16}")
    o(f"s_lshl_b32 s{sT0}, s{sG}, 4")
    o(f"s_add_u32 s{sT0}, s{sT0}, s{sJ}")
    o(f"s_lshl_b32 s{sT0}, s{sT0}, 10")
    o(f"s_and_b32 s{sT1}, s{sW}, 1")
    o(f"s_lshl_b32 s{sT1}, s{sT1}, 9")
    o(f"s_add_u32 s{sT0}, s{sT0}, s{sT1}")
    o(f"s_lshr_b32 s{sT1}, s{sW}, 1")
    o(f"s_lshl_b32 s{sT1}, s{sT1}, 7")
    o(f"s_add_u32 s{sT0}, s{sT0}, s{sT1}")
    o(f"v_add_u32 v{vPst}, s{sT0}, v{v1}")
    o(f"v_lshlrev_b32 v{vPld}, 14, v{vg}")
    o(f"v_lshl_add_u32 v{vPld}, v{vi}, 4, v{vPld}")
    o(f"s_lshl_b32 s{sT0}, s{sJ}, 10")
    o(f"s_lshl_b32 s{sT1}, s{sW}, 8")
    o(f"s_add_u32 s{sT0}, s{sT0}, s{sT1}")
    o(f"v_add_u32 v{vPld}, s{sT0}, v{vPld}")
    o(f"v_add_u32 v{vMst}, s{sT0}, v{vL16}")
    o(f"v_lshlrev_b32 v{vKx}, 13, v{vi}")
    o(f"v_lshl_add_u32 v{vKx}, v{vg}, 4, v{vKx}")
    o(f"s_lshl_b32 s{sT0}, s{sHead}, 8")
    o(f"v_add_u32 v{vKx}, s{sT0}, v{vKx}")
    o(f"v_mov_b32 v{vLdsM}, v{vL16}")
    for d in range(4):
        o(f"v_mov_b32 v{vDelta+d}, 0")
        o(f"v_mov_b32 v{v1}, 0x3f80")
        o(f"v_cmp_eq_u32 vcc, {2*d}, v{vi}")
        o(f"v_cndmask_b32 v{vDelta+d}, v{vDelta+d}, v{v1}, vcc")
        o(f"v_mov_b32 v{v1}, 0x3f800000")
        o(f"v_cmp_eq_u32 vcc, {2*d+1}, v{vi}")
        o(f"v_cndmask_b32 v{vDelta+d}, v{vDelta+d}, v{v1}, vcc")
    o(f"v_mov_b32 v{v1}, 0xff800000")
    o(f"v_cmp_lt_u32 vcc, 31, v{vL}")
    o(f"v_cndmask_b32 v{vNeg}, 0, v{v1}, vcc")
    for r in range(1, 4): o(f"v_mov_b32 v{vNeg+r}, v{vNeg}")
    for r in range(4): o(f"v_mov_b32 v{vSent+r}, -1")
    o(f"s_mov_b32 s{sMaskQK}, 0xff"); o(f"s_mov_b32 s{sMaskQK+1}, 0xff")
    o(f"s_mov_b32 s{sSelV}, -1"); o(f"s_mov_b32 s{sSelV+1}, 0")
    import math
    cs = 128 ** -0.5 * math.log2(math.e)
    import struct
    o(f"s_mov_b32 s{sScale}, 0x{struct.unpack('<I', struct.pack('<f', cs))[0]:08x}")
    o(f"s_mov_b32 s{sScale+1}, s{sScale}")
    o(f"s_mov_b32 s{sLim}, 0x400000")
    o(f"s_mov_b32 s{sStep}, 0")
    def addbase(dst, off, extra_s=None):
        o(f"s_add_u32 s{dst}, s{sWS}, {off & 0xffffffff}")
        o(f"s_addc_u32 s{dst+1}, s{sWS+1}, 0")
        if extra_s is not None:
            o(f"s_add_u32 s{dst}, s{dst}, s{extra_s}")
            o(f"s_addc_u32 s{dst+1}, s{dst+1}, 0")
    o(f"s_lshl_b32 s{sT0}, s{sHead}, 13")
    o(f"s_add_u32 s{sT0}, s{sT0}, 4096")
    addbase(sKX, WS_K, sT0)
    o(f"s_lshl_b32 s{sT0}, s{sHead}, 13")
    o(f"s_add_u32 s{sT0}, s{sT0}, 4096")
    addbase(sVX, WS_VT, sT0)
    o(f"s_lshl_b32 s{sT0}, s{sHead}, 11")
    addbase(sKM, WS_KM, sT0)
    addbase(sVM, WS_VM, sT0)
    sCNT = 16
    addbase(sCNT, WS_CNT + cntoff)
    def kv_wait(chunk_sreg_expr_setup, target, tag):
        o(f"s_lshl_b32 s{sT0}, s{sT0}, 3"); o(f"s_add_u32 s{sT0}, s{sT0}, s{sG}"); o(f"s_lshl_b32 s{sT0}, s{sT0}, 7")
        o(f"v_mov_b32 v{vX+2}, s{sT0}")
        A.label(f"L_kvw_{tag}")
        o(f"global_load_dword v{vX+3}, v{vX+2}, {s(sCNT,2)} sc1")
        o("s_waitcnt vmcnt(0)")
        o(f"v_readfirstlane_b32 s{sT1}, v{vX+3}")
        o(f"s_cmp_ge_u32 s{sT1}, {target}")
        o(f"s_cbranch_scc1 L_kvw_{tag}_ok")
        o("s_sleep 4")
        o(f"s_sub_u32 s{sLim}, s{sLim}, 1")
        o(f"s_cbranch_scc0 L_kvw_{tag}")
        o(f"s_mov_b32 s{sLim}, 0")
        A.label(f"L_kvw_{tag}_ok")
    sEC = 94
    def gpoll(base, tag, sleep=12, allwaves=False):
        if not allwaves:
            o(f"s_cmp_lg_u32 s{sW}, 0"); o(f"s_cbranch_scc1 L_gp_{tag}_ok")
        o(f"v_mov_b32 v{vX+2}, s{sT0}")
        A.label(f"L_gp_{tag}")
        o(f"global_load_dword v{vX+3}, v{vX+2}, {s(base,2)} sc1")
        o("s_waitcnt vmcnt(0)")
        o(f"v_readfirstlane_b32 s{sT1}, v{vX+3}")
        o(f"s_cmp_ge_u32 s{sT1}, s{sT2}")
        o(f"s_cbranch_scc1 L_gp_{tag}_ok")
        o(f"s_sleep {sleep}")
        o(f"s_sub_u32 s{sLim}, s{sLim}, 1")
        o(f"s_cbranch_scc0 L_gp_{tag}")
        o(f"s_mov_b32 s{sLim}, 0")
        A.label(f"L_gp_{tag}_ok")
        if not allwaves: o("s_barrier")
    if KVCHK and not EARLY and KV0F is None:
        o(f"s_mov_b32 s{sT0}, 0")
        kv_wait(None, 16, "0")
    if KVCHK and KV0F is not None:
        o(f"s_cmp_lg_u32 s{sW}, 0"); o("s_cbranch_scc1 L_k0_b")
        o(f"s_lshl_b32 s{sT0}, s{sG}, 7"); o(f"s_add_u32 s{sT0}, s{sT0}, {KV0F}")
        o(f"v_lshlrev_b32 v{vX+2}, 2, v{vL}"); o(f"v_add_u32 v{vX+2}, s{sT0}, v{vX+2}")
        o("s_mov_b64 exec, 0xffff")
        A.label("L_k0_p")
        o(f"global_load_dword v{vX+3}, v{vX+2}, {s(sCNT,2)} sc1"); o("s_waitcnt vmcnt(0)")
        o(f"v_cmp_eq_u32 vcc, 0, v{vX+3}"); o("s_cbranch_vccz L_k0_o")
        o("s_sleep 6"); o(f"s_sub_u32 s{sLim}, s{sLim}, 1"); o("s_cbranch_scc0 L_k0_p"); o(f"s_mov_b32 s{sLim}, 0")
        A.label("L_k0_o")
        o("s_mov_b64 exec, -1")
        A.label("L_k0_b")
        o("s_barrier")
    if KVCHK and EARLY:
        o(f"s_mov_b32 s{sT0}, {EC_FILL*4}"); o(f"s_mov_b32 s{sT2}, 128"); gpoll(sEC, "f")
        o(f"s_lshl_b32 s{sT0}, s{sG}, 2"); o(f"s_add_u32 s{sT0}, s{sT0}, {EC_KVH0*4}"); o(f"s_mov_b32 s{sT2}, 16"); gpoll(sEC, "0")
    def load_kx():
        for t in range(8):
            o(f"global_load_dwordx4 {v(vK+t*4,4)}, v{vL16}, {s(sKX,2)} offset:{t*1024-4096}")
    load_kx()
    if prof:
        o(f"s_lshl_b32 s{sT0}, s{sG}, 4")
        o(f"s_add_u32 s{sT0}, s{sT0}, s{sJ}")
        o(f"s_lshl_b32 s{sT0}, s{sT0}, 2")
        o(f"s_add_u32 s{sT0}, s{sT0}, s{sW}")
        o(f"s_lshl_b32 s{sT0}, s{sT0}, 12")
        addbase(sProf, WS_PROF, sT0)
    nst = [0]
    def stamp():
        if not prof: return
        k = nst[0]; nst[0] += 1
        o(f"{TIMER} {s(sTs + 2*k, 2)}")

    def check(regs, lab_ok, lab_retry, tmp):
        regs = list(regs)
        o(f"v_max3_u32 v{tmp}, v{regs[0]}, v{regs[1]}, v{regs[2]}")
        k = 3
        while k + 1 < len(regs):
            o(f"v_max3_u32 v{tmp}, v{tmp}, v{regs[k]}, v{regs[k+1]}"); k += 2
        if k < len(regs):
            o(f"v_max_u32 v{tmp}, v{tmp}, v{regs[k]}")
        o(f"v_cmp_eq_u32 vcc, -1, v{tmp}")
        o(f"s_cbranch_vccz {lab_ok}")
        o(f"s_sub_u32 s{sLim}, s{sLim}, 1")
        o(f"s_cbranch_scc1 {lab_ok}_to")
        o(f"s_branch {lab_retry}")
        A.label(f"{lab_ok}_to")
        o(f"s_mov_b32 s{sLim}, 0")
        A.label(lab_ok)


    sCnt = 98
    vOo = [112, 116, 120, 124, 192, 196, 200, 204, 216, 220, 224, 228]
    vPf = 252
    def merge(main, side, every, start=0):
        side = list(side); out = [];
        for k, m_ in enumerate(main):
            out.append(m_)
            if side and k >= start and (k - start) % every == every - 1: out.append(side.pop(0))
        return out + side
    def emit(L):
        for x in L: o(x)
    def check(regs, lab_ok, lab_retry, tmp, cnt=None):
        regs = list(regs)
        o(f"v_max3_u32 v{tmp}, v{regs[0]}, v{regs[1]}, v{regs[2]}")
        k = 3
        while k + 1 < len(regs):
            o(f"v_max3_u32 v{tmp}, v{tmp}, v{regs[k]}, v{regs[k+1]}"); k += 2
        if k < len(regs):
            o(f"v_max_u32 v{tmp}, v{tmp}, v{regs[k]}")
        o(f"v_cmp_eq_u32 vcc, -1, v{tmp}")
        o(f"s_cbranch_vccz {lab_ok}")
        if prof and cnt is not None: o(f"s_add_u32 s{sCnt+cnt}, s{sCnt+cnt}, 1")
        o(f"s_sub_u32 s{sLim}, s{sLim}, 1")
        o(f"s_cbranch_scc0 {lab_retry}")
        o(f"s_mov_b32 s{sLim}, 0")
        A.label(lab_ok)
    sM = 88
    def mpoll(loads, tag, cnt):
        n = len(loads)
        regs = [b + r for b, _ in loads for r in range(4)]
        o(f"v_max3_u32 v{vX}, v{regs[0]}, v{regs[1]}, v{regs[2]}")
        k = 3
        while k + 1 < len(regs):
            o(f"v_max3_u32 v{vX}, v{vX}, v{regs[k]}, v{regs[k+1]}"); k += 2
        if k < len(regs): o(f"v_max_u32 v{vX}, v{vX}, v{regs[k]}")
        o(f"v_cmp_eq_u32 vcc, -1, v{vX}")
        o(f"s_cbranch_vccz L_{tag}_ok")
        A.label(f"L_{tag}_retry")
        if prof: o(f"s_add_u32 s{sCnt+cnt}, s{sCnt+cnt}, 1")
        for i, (b, rest) in enumerate(loads):
            o(f"v_max3_u32 v{vX}, v{b}, v{b+1}, v{b+2}")
            o(f"v_max_u32 v{vX}, v{vX}, v{b+3}")
            o(f"v_cmp_eq_u32 vcc, -1, v{vX}")
            o(f"s_cbranch_vccz L_{tag}_sk{i}")
            o("s_mov_b64 exec, vcc")
            o(f"global_load_dwordx4 {v(b,4)}, {rest}")
            o("s_mov_b64 exec, -1")
            A.label(f"L_{tag}_sk{i}")
        o("s_waitcnt vmcnt(0)")
        o(f"v_max3_u32 v{vX}, v{regs[0]}, v{regs[1]}, v{regs[2]}")
        k = 3
        while k + 1 < len(regs):
            o(f"v_max3_u32 v{vX}, v{vX}, v{regs[k]}, v{regs[k+1]}"); k += 2
        if k < len(regs): o(f"v_max_u32 v{vX}, v{vX}, v{regs[k]}")
        o(f"v_cmp_eq_u32 vcc, -1, v{vX}")
        o(f"s_cbranch_vccz L_{tag}_ok")
        o(f"s_sub_u32 s{sLim}, s{sLim}, 1")
        o(f"s_cbranch_scc0 L_{tag}_retry")
        o(f"s_mov_b32 s{sLim}, 0")
        A.label(f"L_{tag}_ok")
    if prof:
        for k in range(4): o(f"s_mov_b32 s{sCnt+k}, 0")
    vPfo = 58
    o(f"s_lshl_b32 s{sT1}, s{sG}, 2"); o(f"s_add_u32 s{sT1}, s{sT1}, s{sHA}"); o(f"s_lshl_b32 s{sT1}, s{sT1}, 13")
    o(f"s_lshl_b32 s{sT2}, s{sC}, 11"); o(f"s_add_u32 s{sT1}, s{sT1}, s{sT2}")
    o(f"s_and_b32 s{sT2}, s{sW}, 1"); o(f"s_lshl_b32 s{sT2}, s{sT2}, 10"); o(f"s_add_u32 s{sT1}, s{sT1}, s{sT2}")
    o(f"v_add_u32 v{vPfo}, s{sT1}, v{vL16}")
    o(f"s_cmp_lt_u32 s{sW}, 2")
    sPF = 18
    o(f"s_mov_b32 s{sT0}, {WS_K + 2*262144}")
    o(f"s_mov_b32 s{sT1}, {WS_VT + 2*262144}")
    o(f"s_cselect_b32 s{sT0}, s{sT0}, s{sT1}")
    o(f"s_add_u32 s{sPF}, s{sWS}, s{sT0}"); o(f"s_addc_u32 s{sPF+1}, s{sWS+1}, 0")
    def kx_loads():
        if NOK: return ["s_nop 0"] * 8
        return [f"global_load_dwordx4 {v(vK+t*4,4)}, v{vL16}, {s(sKX,2)} offset:{t*1024-4096}" for t in range(8)]
    def vx_loads():
        if NOV: return ["s_nop 0"] * 8
        return [f"global_load_dwordx4 {v(vV+4*t,4)}, v{vL16}, {s(sVX,2)} offset:{t*1024-4096}" for t in range(8)]
    vRd = [None, 232, 233, 234]
    for hs in (1, 2, 3):
        o(f"v_add_u32 v{vRd[hs]}, {hs*4096}, v{vE3}")
        o(f"v_and_b32 v{vRd[hs]}, 0x3fff, v{vRd[hs]}")
    vVw, vVr, vRw = 235, 59, 15
    o(f"s_lshl_b32 s{sT0}, s{sW}, 10")
    o(f"v_add_u32 v{vVw}, s{sT0}, v{vL16}")
    o(f"v_and_b32 v{vVr}, 31, v{vL}")
    o(f"v_lshlrev_b32 v{vVr}, 4, v{vVr}")
    o(f"v_lshrrev_b32 v{vX+2}, 5, v{vL}")
    o(f"v_lshl_add_u32 v{vVr}, v{vX+2}, 10, v{vVr}")
    vL4 = vX + 3
    o(f"v_lshlrev_b32 v{vL4}, 2, v{vL}")
    o(f"s_lshl_b32 s{sT0}, s{sW}, 8")
    o(f"v_add_u32 v{vRw}, s{sT0}, v{vL4}")
    vRr = [None, 1, 2, 3]
    for hs in (1, 2, 3):
        o(f"s_add_u32 s{sT0}, s{sW}, {hs}"); o(f"s_and_b32 s{sT0}, s{sT0}, 3"); o(f"s_lshl_b32 s{sT0}, s{sT0}, 8")
        o(f"v_add_u32 v{vRr[hs]}, s{sT0}, v{vL4}")
    vOnes = 4
    for r in range(4): o(f"v_mov_b32 v{vOnes+r}, 0x3f803f80")

    LDS_R = 36864
    A.label("L_step")
    nst[0] = 0
    if KVCHK:
        if FILL2 is not None:
            o(f"s_cmp_lg_u32 s{sStep}, 6"); o("s_cbranch_scc1 L_kvf2")
            o(f"s_mov_b32 s{sT0}, {FILL2}"); o(f"s_mov_b32 s{sT2}, 128"); gpoll(sCNT, "l2", 4)
            A.label("L_kvf2")
        if EARLY:
            o(f"s_cmp_lg_u32 s{sStep}, 2"); o("s_cbranch_scc1 L_kvn2")
            o(f"s_lshl_b32 s{sT0}, s{sG}, 2"); o(f"s_add_u32 s{sT0}, s{sT0}, {EC_KVH1*4}"); o(f"s_mov_b32 s{sT2}, 16"); gpoll(sEC, "h1", 4)
            A.label("L_kvn2")
            o(f"s_cmp_lg_u32 s{sStep}, 6"); o("s_cbranch_scc1 L_kvn6")
            o(f"s_mov_b32 s{sT0}, {EC_FILL2*4}"); o(f"s_mov_b32 s{sT2}, 128"); gpoll(sEC, "f2", 4)
            A.label("L_kvn6")
        o(f"s_add_u32 s{sT0}, s{sStep}, 2"); o(f"s_and_b32 s{sT1}, s{sT0}, 7"); o(f"s_cmp_lg_u32 s{sT1}, 0"); o("s_cbranch_scc1 L_kvskip")
        o(f"s_cmp_ge_u32 s{sT0}, 64"); o("s_cbranch_scc1 L_kvskip")
        o(f"s_lshr_b32 s{sT0}, s{sT0}, 3")
        if EARLY:
            o(f"s_cmp_eq_u32 s{sT0}, 1"); o(f"s_cselect_b32 s{sT2}, 16, 4")
        else:
            o(f"s_mov_b32 s{sT2}, 4")
        o(f"v_readfirstlane_b32 s{sT1}, v{vFlag}")
        o(f"s_cmp_ge_u32 s{sT1}, s{sT2}"); o("s_cbranch_scc1 L_kvskip")
        o(f"s_lshl_b32 s{sT0}, s{sT0}, 3"); o(f"s_add_u32 s{sT0}, s{sT0}, s{sG}"); o(f"s_lshl_b32 s{sT0}, s{sT0}, 7")
        gpoll(sCNT, "n", 4, allwaves=True)
        A.label("L_kvskip")
    o(f"s_and_b32 s{sSlot}, s{sStep}, 3")
    o(f"s_lshl_b32 s{sT0}, s{sSlot}, 17")
    o(f"s_lshl_b32 s{sT1}, s{sG}, 14")
    o(f"s_add_u32 s{sT2}, s{sT0}, s{sT1}")
    addbase(sMEMc, WS_RMEM, sT2)
    e3_loads = [(vB + 4*u, f"v{vE3}, {s(sMEMc,2)} offset:{u*1024} sc1") for u in range(4)]
    def qk_mfma(i, first=False):
        for half, acc in ((0, vA0), (1, vA1)):
            c = "0" if first else v(acc, 4)
            o(f"v_mfma_f32_16x16x32_bf16 {v(acc,4)}, {a((i*2+half)*4,4)}, {v(vB+4*i,4)}, {c}")
    def salu_bases():
        addbase(sQK, WS_RQK, sT2)
        o(f"s_lshl_b32 s{sT3}, s{sStep}, 17")
        addbase(sPART, WS_PARTF, sT3)
        o(f"s_add_u32 s{sPART2}, s{sPART}, 65536"); o(f"s_addc_u32 s{sPART2+1}, s{sPART+1}, 0")
        o(f"s_lshr_b32 s{sT3}, s{sT2}, 1")
        addbase(sVR, WS_RV, sT3)
        o(f"s_add_u32 s{sT3}, s{sStep}, 1"); o(f"s_and_b32 s{sT3}, s{sT3}, 3"); o(f"s_lshl_b32 s{sT3}, s{sT3}, 17"); o(f"s_add_u32 s{sT3}, s{sT3}, s{sT1}")
        addbase(sMEMn, WS_RMEM, sT3)
        o(f"s_xor_b32 s{sT3}, s{sT0}, {2<<17}")
        o(f"s_add_u32 s{sT3}, s{sT3}, s{sT1}")
        addbase(sRq, WS_RQK, sT3)
        o(f"s_lshr_b32 s{sT3}, s{sT3}, 1")
        addbase(sRv, WS_RV, sT3)
        o(f"s_add_u32 s{sT3}, s{sStep}, 3"); o(f"s_and_b32 s{sT3}, s{sT3}, 3"); o(f"s_lshl_b32 s{sT3}, s{sT3}, 17"); o(f"s_add_u32 s{sT3}, s{sT3}, s{sT1}")
        addbase(sRm, WS_RMEM, sT3)
    def simple_poll(loads, tag, cnt, first_wait):
        regs = [b + r for b, _ in loads for r in range(4)]
        o(f"s_waitcnt vmcnt({first_wait})")
        o(f"s_branch L_{tag}_c")
        A.label(f"L_{tag}_r")
        for b, rest in loads: o(f"global_load_dwordx4 {v(b,4)}, {rest}")
        o("s_waitcnt vmcnt(0)")
        A.label(f"L_{tag}_c")
        check(regs, f"L_{tag}_ok", f"L_{tag}_r", vX, cnt)
    def chk_list(regs, tmp):
        regs = list(regs); L = [f"v_max3_u32 v{tmp}, v{regs[0]}, v{regs[1]}, v{regs[2]}"]
        k = 3
        while k + 1 < len(regs):
            L.append(f"v_max3_u32 v{tmp}, v{tmp}, v{regs[k]}, v{regs[k+1]}"); k += 2
        if k < len(regs): L.append(f"v_max_u32 v{tmp}, v{tmp}, v{regs[k]}")
        L.append(f"v_cmp_eq_u32 vcc, -1, v{tmp}")
        return L
    def retry_tail(tag, cnt, issue, back):
        o(f"s_cbranch_vccz L_{tag}_fok")
        if prof: o(f"s_add_u32 s{sCnt+cnt}, s{sCnt+cnt}, 1")
        o(f"s_sub_u32 s{sLim}, s{sLim}, 1")
        o(f"s_cbranch_scc1 L_{tag}_fto")
        issue()
        o("s_waitcnt vmcnt(0)")
        o(f"s_branch {back}")
        A.label(f"L_{tag}_fto")
        o(f"s_mov_b32 s{sLim}, 0")
        A.label(f"L_{tag}_fok")
    n0 = len(A.lines); salu_bases(); sl = A.lines[n0:]; del A.lines[n0:]
    nb = len(sl) if E3_SALU_FIRST == 1 else (0 if E3_SALU_FIRST == 0 else min(len(sl), E3_SALU_FIRST))
    while 0 < nb < len(sl) and sl[nb].startswith("s_addc"): nb += 1
    for x in sl[:nb]: o(x)
    stamp()
    for b, rest in e3_loads: o(f"global_load_dwordx4 {v(b,4)}, {rest}")
    for x in sl[nb:]: o(x)
    if FC & 16:
        def qk1(i, half, first, src=None):
            acc = vA0 if half == 0 else vA1
            c = "0" if first else v(acc, 4)
            sr = (vB + 4 * i) if src is None else src
            return f"v_mfma_f32_16x16x32_bf16 {v(acc,4)}, {a((i*2+half)*4,4)}, {v(sr,4)}, {c}"
        wr = [f"ds_write_b128 v{vE3}, {v(b,4)} offset:{LDS_MEM + u*1024}" for u, (b, rest) in enumerate(e3_loads)]
        if FC & 32:
            v2 = 192
            e3b = [(v2 + 4 * u, rest) for u, (b, rest) in enumerate(e3_loads)]
            issA = lambda: [o(f"global_load_dwordx4 {v(b,4)}, {rest}") for b, rest in e3_loads]
            issB = lambda: [o(f"global_load_dwordx4 {v(b,4)}, {rest}") for b, rest in e3b]
            if E3_SP: o(f"s_sleep {E3_SP}")
            issB()
            A.label("L_e3_lp")
            o("s_waitcnt vmcnt(4)")
            emit(chk_list(range(vB, vB + 16), vX)); o("s_cbranch_vccz L_e3_okA")
            if prof: o(f"s_add_u32 s{sCnt}, s{sCnt}, 1")
            issA()
            o("s_waitcnt vmcnt(4)")
            emit(chk_list(range(v2, v2 + 16), vX)); o("s_cbranch_vccz L_e3_okB")
            if prof: o(f"s_add_u32 s{sCnt}, s{sCnt}, 1")
            issB()
            o(f"s_sub_u32 s{sLim}, s{sLim}, 1"); o("s_cbranch_scc0 L_e3_lp"); o(f"s_mov_b32 s{sLim}, 0")
            A.label("L_e3_okB")
            wrB = [f"ds_write_b128 v{vE3}, {v(b,4)} offset:{LDS_MEM + u*1024}" for u, (b, rest) in enumerate(e3b)]
            emit([wrB[0], qk1(0, 0, True, v2), wrB[1], qk1(0, 1, True, v2), wrB[2], qk1(1, 0, False, v2 + 4), wrB[3], qk1(1, 1, False, v2 + 4),
                  qk1(2, 0, False, v2 + 8), qk1(2, 1, False, v2 + 8), qk1(3, 0, False, v2 + 12), qk1(3, 1, False, v2 + 12)])
            o("s_mov_b32 s89, 1")
            o("s_branch L_e3_j")
            A.label("L_e3_okA")
            o("s_mov_b32 s89, 0")
            emit([wr[0], qk1(0, 0, True), wr[1], qk1(0, 1, True), wr[2], qk1(1, 0, False), wr[3], qk1(1, 1, False)])
            A.label("L_e3_j")
        else:
            simple_poll(e3_loads, "e3", 0, 0)
            emit([wr[0], qk1(0, 0, True), wr[1], qk1(0, 1, True), wr[2], qk1(1, 0, False), wr[3], qk1(1, 1, False)])
        stamp()
        o("s_waitcnt lgkmcnt(0)")
        o("s_barrier")
        for i in range(4, 16):
            o(f"ds_read_b128 {v(vB+4*i,4)}, v{vRd[i//4]} offset:{LDS_MEM + (i%4)*1024}")
        if FC & 32:
            o("s_cmp_lg_u32 s89, 0"); o("s_cbranch_scc1 L_e3_sk")
        for u in (2, 3): qk_mfma(u)
        if FC & 32: A.label("L_e3_sk")
    elif FC & 1:
        assert not SIG
        o("s_waitcnt vmcnt(0)")
        A.label("L_e3_go")
        ck = chk_list(range(vB, vB + 16), vX)
        def qk1(i, half, first):
            acc = vA0 if half == 0 else vA1
            c = "0" if first else v(acc, 4)
            return f"v_mfma_f32_16x16x32_bf16 {v(acc,4)}, {a((i*2+half)*4,4)}, {v(vB+4*i,4)}, {c}"
        wr = [f"ds_write_b128 v{vE3}, {v(b,4)} offset:{LDS_MEM + u*1024}" for u, (b, rest) in enumerate(e3_loads)]
        sq = [wr[0], qk1(0, 0, True), ck[0], ck[1], wr[1], qk1(0, 1, True), ck[2], ck[3], wr[2], qk1(1, 0, False), ck[4], ck[5], wr[3], qk1(1, 1, False)] + ck[6:]
        emit(sq)
        retry_tail("e3", 0, lambda: [o(f"global_load_dwordx4 {v(b,4)}, {rest}") for b, rest in e3_loads], "L_e3_go")
        stamp()
        o("s_waitcnt lgkmcnt(0)")
        o("s_barrier")
        for i in range(4, 16):
            o(f"ds_read_b128 {v(vB+4*i,4)}, v{vRd[i//4]} offset:{LDS_MEM + (i%4)*1024}")
        for u in (2, 3): qk_mfma(u)
    else:
        simple_poll(e3_loads, "e3", 0, 0)
        if SIG:
            o(f"s_sub_u32 s{sT3}, s{sStep}, 1"); o(f"s_cbranch_scc1 L_nosig")
            o(f"s_and_b32 s{sT0}, s{sT3}, 15"); o(f"s_cmp_lg_u32 s{sT0}, s{sJ}"); o("s_cbranch_scc1 L_nosig")
            o(f"s_lshl_b32 s{sT0}, s{sT3}, 7"); o(f"s_add_u32 s{sT0}, s{sT0}, {CNT_REC}")
            o(f"v_mov_b32 v{vX+2}, s{sT0}"); o(f"v_mov_b32 v{vX+3}, 1")
            o("s_mov_b64 exec, 1")
            o(f"global_atomic_add v{vX+2}, v{vX+3}, {s(sCNT,2)}")
            o("s_mov_b64 exec, -1")
            A.label("L_nosig")
        for u, (b, rest) in enumerate(e3_loads):
            o(f"ds_write_b128 v{vE3}, {v(b,4)} offset:{LDS_MEM + u*1024}")
        for u in range(4): qk_mfma(u, first=(u == 0))
        stamp()
        o("s_waitcnt lgkmcnt(0)")
        o("s_barrier")
        for i in range(4, 16):
            o(f"ds_read_b128 {v(vB+4*i,4)}, v{vRd[i//4]} offset:{LDS_MEM + (i%4)*1024}")
    vxl = vx_loads()
    for i in range(4, 16):
        o(f"s_waitcnt lgkmcnt({15-i})")
        qk_mfma(i)
        if i % VSP == VSP - 1 and vxl: o(vxl.pop(0))
    stamp()
    for r in range(4):
        o(f"v_add_f32_dpp v{vA0+r}, v{vA1+r}, v{vA0+r} row_ror:8 row_mask:0xf bank_mask:0xf")
    R = vX + 4
    o(f"v_cvt_pk_bf16_f32 v{R}, v{vA0}, v{vA0+1}")
    o(f"v_cvt_pk_bf16_f32 v{R+1}, v{vA0+2}, v{vA0+3}")
    o(f"v_permlane16_swap_b32 v{R}, v{R+2}")
    o(f"v_permlane16_swap_b32 v{R+1}, v{R+3}")
    o(f"s_mov_b64 exec, {s(sMaskQK,2)}")
    o(f"global_store_dwordx4 v{vQKst}, {v(R,4)}, {s(sQK,2)}{st_fast}")
    o("s_mov_b64 exec, -1")
    stamp()
    if ONE:
        o(f"s_cmp_lg_u32 s{sStep}, {ONE['pstep']}"); o("s_cbranch_scc1 L_one_np")
        o(f"s_or_b32 s{sT0}, s{sG}, s{sJ}"); o(f"s_or_b32 s{sT0}, s{sT0}, s{sW}"); o(f"s_cmp_lg_u32 s{sT0}, 0"); o("s_cbranch_scc1 L_one_np")
        o(f"s_add_u32 s{sT0}, s{sWS}, {WS_CNT}"); o(f"s_addc_u32 s{sT1}, s{sWS+1}, 0")
        o(f"v_mov_b32 v{vX+2}, {ONE['p58']}"); o(f"v_mov_b32 v{vX+3}, 1"); o("s_mov_b64 exec, 1")
        o(f"global_atomic_add v{vX+2}, v{vX+3}, {s(sT0,2)}"); o("s_mov_b64 exec, -1")
        A.label("L_one_np")
    if FC & 32: o("s_waitcnt vmcnt(7)")
    e1_loads = [(vQ + 4*cp, f"v{vE3}, {s(sQK,2)} offset:{cp*1024} sc1") for cp in range(2)] + [(vKm + 4*cp, f"v{vE3}, {s(sQK,2)} offset:{2048+cp*1024} sc1") for cp in range(2)]
    def e1_issue():
        for b, rest in e1_loads: o(f"global_load_dwordx4 {v(b,4)}, {rest}")
    for i in range(8):
        for half, acc in ((0, vAv0), (1, vAv1)):
            c = "0" if i == 0 else v(acc, 4)
            o(f"v_mfma_f32_16x16x32_bf16 {v(acc,4)}, {v(vB+4*i,4)}, {a(128+(i*2+half)*4,4)}, {c}")
        if vxl and i % 2 == 1: o(vxl.pop(0))
        if i == E1_AT:
            emit(vxl); vxl = []
            e1_issue()
    emit(vxl)
    for r in range(4):
        o(f"v_cndmask_b32 v{vAv0+r}, v{vAv1+r}, v{vAv0+r}, {s(sSelV,2)}")
    o(f"ds_write_b128 v{vVw}, {v(vAv0,4)} offset:{LDS_V}")
    o("s_waitcnt lgkmcnt(0)")
    o("s_barrier")
    o(f"s_cmp_lg_u32 s{sW}, 0")
    o("s_cbranch_scc1 L_vred_skip")
    T = vA0
    for k, off in enumerate((0, 512, 2048, 2560)):
        o(f"ds_read_b128 {v(T+4*k,4)}, v{vVr} offset:{LDS_V+off}")
    o("s_waitcnt lgkmcnt(0)")
    for r in range(4):
        o(f"v_add_f32 v{T+r}, v{T+r}, v{T+4+r}")
        o(f"v_add_f32 v{T+8+r}, v{T+8+r}, v{T+12+r}")
    for r in range(4):
        o(f"v_add_f32 v{T+r}, v{T+r}, v{T+8+r}")
    o(f"v_cvt_pk_bf16_f32 v{R}, v{T}, v{T+1}")
    o(f"v_cvt_pk_bf16_f32 v{R+1}, v{T+2}, v{T+3}")
    o(f"v_permlane32_swap_b32 v{R}, v{R+2}")
    o(f"v_permlane32_swap_b32 v{R+1}, v{R+3}")
    o(f"s_mov_b64 exec, {s(sSelV,2)}")
    o(f"global_store_dwordx4 v{vVst}, {v(R,4)}, {s(sVR,2)}{st_fast}")
    o("s_mov_b64 exec, -1")
    o("s_waitcnt vmcnt(1)")
    o("s_branch L_e1_c")
    A.label("L_e1_r")
    e1_issue()
    A.label("L_vred_skip")
    o("s_waitcnt vmcnt(0)")
    A.label("L_e1_c")
    if not (FC & 2): check([b + r for b, _ in e1_loads for r in range(4)], "L_e1_ok", "L_e1_r", vX, 1)
    stamp()
    def M32(d, A_, B_, C_): return f"v_mfma_f32_16x16x32_bf16 {v(d,4)}, {A_}, {B_}, {C_}"
    def rot(dst, srcr): return [f"v_mov_b32_dpp v{dst+r}, v{srcr+r} row_ror:8 row_mask:0xf bank_mask:0xf" for r in range(4)]
    Kf = lambda kt, u: v(vK + (kt*4+u)*4, 4)
    seq = []
    seq += [M32(vSx, Kf(0,0), v(vQ,4), "0")] + rot(vQr, vQ)[:2]
    seq += [M32(vSx+4, Kf(1,0), v(vQ,4), "0")] + rot(vQr, vQ)[2:]
    seq += [M32(vSm, v(vKm,4), v(vQ,4), v(vNeg,4))] + rot(vQr+4, vQ+4)[:2]
    seq += [M32(vSx, Kf(0,2), v(vQ+4,4), v(vSx,4))] + rot(vQr+4, vQ+4)[2:]
    seq += [M32(vSx+4, Kf(1,2), v(vQ+4,4), v(vSx+4,4))] + rot(vKr, vKm)[:2]
    seq += [M32(vSm, v(vKm+4,4), v(vQ+4,4), v(vSm,4))] + rot(vKr, vKm)[2:]
    seq += [M32(vSx, Kf(0,1), v(vQr,4), v(vSx,4))] + rot(vKr+4, vKm+4)[:2]
    seq += [M32(vSx+4, Kf(1,1), v(vQr,4), v(vSx+4,4))] + rot(vKr+4, vKm+4)[2:]
    seq += [M32(vSx, Kf(0,3), v(vQr+4,4), v(vSx,4))]
    seq += [M32(vSx+4, Kf(1,3), v(vQr+4,4), v(vSx+4,4))]
    seq += [M32(vSm, v(vKr,4), v(vQr,4), v(vSm,4))]
    seq += [M32(vSm, v(vKr+4,4), v(vQr+4,4), v(vSm,4))]
    if FC & 2:
        ck = chk_list([b + r_ for b, _ in e1_loads for r_ in range(4)], vX)
        tail4 = seq[-4:]; seq = seq[:-4]
        sq2 = []
        for k_, m_ in enumerate(tail4):
            sq2.append(m_); sq2 += ck[2*k_:2*k_+2]
        sq2 += ck[8:]
        emit(seq + sq2)
        retry_tail("e1", 1, e1_issue, "L_e1_c")
    else:
        emit(seq)
    if not FIXKV:
        o(f"s_add_u32 s{sKX}, s{sKX}, 262144"); o(f"s_addc_u32 s{sKX+1}, s{sKX+1}, 0")
    vm_loads = [(vVm + 4*mm, f"v{vVld}, {s(sVR,2)} offset:{mm*1024} sc1") for mm in range(2)]
    for b, rest in vm_loads: o(f"global_load_dwordx4 {v(b,4)}, {rest}")
    if PF and PFE: o(f"global_load_dwordx4 {v(vPf,4)}, v{vPfo}, {s(sPF,2)}")
    m, t = vX + 1, vX + 2
    Sall = list(range(vSx, vSx + 8)) + list(range(vSm, vSm + 4))
    m2 = vX + 3
    o(f"v_max3_f32 v{m}, v{Sall[0]}, v{Sall[1]}, v{Sall[2]}")
    o(f"v_max3_f32 v{m2}, v{Sall[4]}, v{Sall[5]}, v{Sall[6]}")
    o(f"v_max3_f32 v{m}, v{m}, v{Sall[3]}, v{Sall[7]}")
    o(f"v_max3_f32 v{m2}, v{m2}, v{Sall[8]}, v{Sall[9]}")
    o(f"v_max3_f32 v{m}, v{m}, v{Sall[10]}, v{Sall[11]}")
    o(f"v_max_f32 v{m}, v{m}, v{m2}")
    for sw in ("16", "32"):
        o(f"v_mov_b32 v{t}, v{m}")
        o(f"v_permlane{sw}_swap_b32 v{m}, v{t}")
        o(f"v_max_f32 v{m}, v{m}, v{t}")
    mm_ = vX + 2
    o(f"v_mul_f32 v{mm_}, s{sScale}, v{m}")
    kxl = kx_loads()
    main = []
    for r in Sall[::2]: main.append(f"v_pk_fma_f32 {v(r,2)}, {v(r,2)}, {s(sScale,2)}, {v(mm_,2)} op_sel_hi:[1,1,0] neg_lo:[0,0,1] neg_hi:[0,0,1]")
    for k_, r in enumerate(Sall):
        main.append(f"v_exp_f32 v{r}, v{r}")
    emit(merge(main, [kxl.pop(0), kxl.pop(0)], 7))
    o(f"v_cvt_pk_bf16_f32 v{vPx}, v{vSx}, v{vSx+1}")
    o(f"v_cvt_pk_bf16_f32 v{vPx+1}, v{vSx+2}, v{vSx+3}")
    o(f"v_cvt_pk_bf16_f32 v{vPx+2}, v{vSx+4}, v{vSx+5}")
    o(f"v_cvt_pk_bf16_f32 v{vPx+3}, v{vSx+6}, v{vSx+7}")
    o(f"v_cvt_pk_bf16_f32 v{vPmA}, v{vSm}, v{vSm+1}")
    o(f"v_cvt_pk_bf16_f32 v{vPmA+1}, v{vSm+2}, v{vSm+3}")
    stamp()
    vLs = vSx
    pv = [M32(vO+4*tt, v(vV+4*tt,4), v(vPx,4), "0") for tt in range(8)]
    side = [f"v_mov_b32 v{vX+4}, v{vPmA}", f"v_mov_b32 v{vX+5}, v{vPmA+1}", f"v_mov_b32 v{vPmB}, 0", f"v_mov_b32 v{vPmB+1}, 0",
            f"v_permlane32_swap_b32 v{vPmB}, v{vX+4}", f"v_permlane32_swap_b32 v{vPmB+1}, v{vX+5}", kxl.pop(0)]
    if FC & 4:
        o(M32(vLs, v(vOnes,4), v(vPx,4), "0"))
        emit(merge(pv[:5], side, 1)[:12])
        o(f"s_waitcnt vmcnt({4 if (PF and PFE) else 3})")
        A.label("L_vm_go")
        ck = chk_list(range(vVm, vVm + 8), vX)
        sq3 = [pv[5]] + ck[:2] + [pv[6]] + ck[2:4] + [pv[7]] + ck[4:]
        o(f"v_mfma_f32_16x16x16_bf16 {v(vLs,4)}, {v(vOnes,2)}, {v(vPmA,2)}, {v(vLs,4)}")
        emit(sq3)
        o("s_cbranch_vccz L_vm_fok")
        A.label("L_vm_rr")
        if prof: o(f"s_add_u32 s{sCnt+2}, s{sCnt+2}, 1")
        o(f"s_sub_u32 s{sLim}, s{sLim}, 1"); o("s_cbranch_scc1 L_vm_fto")
        for b, rest in vm_loads: o(f"global_load_dwordx4 {v(b,4)}, {rest}")
        o("s_waitcnt vmcnt(0)")
        emit(chk_list(range(vVm, vVm + 8), vX))
        o("s_cbranch_vccnz L_vm_rr"); o("s_branch L_vm_fok")
        A.label("L_vm_fto"); o(f"s_mov_b32 s{sLim}, 0")
        A.label("L_vm_fok")
    else:
        emit(merge(pv, side, 1))
        o(M32(vLs, v(vOnes,4), v(vPx,4), "0"))
        o(f"v_mfma_f32_16x16x16_bf16 {v(vLs,4)}, {v(vOnes,2)}, {v(vPmA,2)}, {v(vLs,4)}")
        simple_poll(vm_loads, "vm", 2, 4 if (PF and PFE) else 3)
    stamp()
    def pvm(tt):
        c, tv = tt >> 1, tt & 1
        pm = vPmB if (c & 1) else vPmA
        return f"v_mfma_f32_16x16x16_bf16 {v(vO+4*tt,4)}, {v(vVm+4*(c>>1)+2*tv,2)}, {v(pm,2)}, {v(vO+4*tt,4)}"
    def cvt(tt):
        u, h = tt >> 1, tt & 1
        return [f"v_cvt_pk_bf16_f32 v{vOb+4*u+2*h}, v{vO+4*tt}, v{vO+4*tt+1}", f"v_cvt_pk_bf16_f32 v{vOb+4*u+2*h+1}, v{vO+4*tt+2}, v{vO+4*tt+3}"]
    if REORD:
        for tt in range(4): o(pvm(tt))
    if KVCHK:
        o(f"s_add_u32 s{sT0}, s{sStep}, 3"); o(f"s_and_b32 s{sT1}, s{sT0}, 7"); o(f"s_cmp_lg_u32 s{sT1}, 0"); o("s_cbranch_scc1 L_nofl")
        o(f"s_lshr_b32 s{sT0}, s{sT0}, 3"); o(f"s_lshl_b32 s{sT0}, s{sT0}, 3"); o(f"s_add_u32 s{sT0}, s{sT0}, s{sG}"); o(f"s_lshl_b32 s{sT0}, s{sT0}, 7")
        o(f"v_mov_b32 v{vFlag}, s{sT0}")
        o(f"global_load_dword v{vFlag}, v{vFlag}, {s(sCNT,2)} sc1")
        A.label("L_nofl")
    o(f"s_and_b32 s{sT0}, s{sStep}, 15"); o(f"s_cmp_lg_u32 s{sT0}, s{sJ}"); o("s_cbranch_scc1 L_nopub")
    for cp in range(2): o(f"global_store_dwordx4 v{vL16}, {v(vKm+4*cp,4)}, {s(sKM,2)} offset:{cp*1024}" + (" sc1" if (SIG or KMSC1) else ""))
    for cp in range(2): o(f"global_store_dwordx4 v{vL16}, {v(vVm+4*cp,4)}, {s(sVM,2)} offset:{cp*1024}" + (" sc1" if (SIG or KMSC1) else ""))
    A.label("L_nopub")
    if LAST_SHORT:
        o(f"s_cmp_eq_u32 s{sStep}, {nsteps-1}")
        o("s_cbranch_scc1 L_rec_last")
    if PF and not PFE: o(f"global_load_dwordx4 {v(vPf,4)}, v{vPfo}, {s(sPF,2)}")
    if not REORD:
        for tt in range(3): o(pvm(tt))
    vCa = [16, 20, 24, 28]
    l_ = vX + 1
    def cm(ct, u):
        c = "0" if u == 0 else v(vCa[ct], 4)
        return f"v_mfma_f32_16x16x32_bf16 {v(vCa[ct],4)}, {a(192+(ct*4+u)*4,4)}, {v(vOb+4*u,4)}, {c}"
    pend = []
    for tt in range(8):
        if REORD:
            if tt + 4 < 8: o(pvm(tt + 4))
        elif tt + 3 < 8: o(pvm(tt + 3))
        cv = cvt(tt)
        o(cv[0])
        if pend: o(pend.pop(0))
        o(cv[1])
        if pend: o(pend.pop(0))
        if tt == 0: o(f"v_rcp_f32 v{l_}, v{vLs}")
        if tt % 2 == 1:
            pend += [cm(ct, tt >> 1) for ct in range(4)]
            if kxl: o(kxl.pop(0))
    emit(pend)
    for ct in range(4):
        pass
    o(f"v_mov_b32 v{vX+2}, v{l_}")
    for ct in range(4):
        o(f"v_pk_mul_f32 {v(vCa[ct],2)}, {v(vCa[ct],2)}, {v(vX+2,2)} op_sel_hi:[1,0]")
        o(f"v_pk_mul_f32 {v(vCa[ct]+2,2)}, {v(vCa[ct]+2,2)}, {v(vX+2,2)} op_sel_hi:[1,0]")
        o(f"ds_write_b128 v{vVw}, {v(vCa[ct],4)} offset:{LDS_O+ct*4096}")
    while kxl: o(kxl.pop(0))
    o("s_waitcnt lgkmcnt(0)")
    o("s_barrier")
    stamp()
    Rr = [112, 116, 120, 124]
    for sw in range(4): o(f"ds_read_b128 {v(Rr[sw],4)}, v{vE3} offset:{LDS_O+sw*1024}")
    vC = Rr[0]
    o("s_waitcnt lgkmcnt(2)")
    o(f"v_pk_add_f32 {v(Rr[0],2)}, {v(Rr[0],2)}, {v(Rr[1],2)}"); o(f"v_pk_add_f32 {v(Rr[0]+2,2)}, {v(Rr[0]+2,2)}, {v(Rr[1]+2,2)}")
    o("s_waitcnt lgkmcnt(0)")
    o(f"v_pk_add_f32 {v(Rr[2],2)}, {v(Rr[2],2)}, {v(Rr[3],2)}"); o(f"v_pk_add_f32 {v(Rr[2]+2,2)}, {v(Rr[2]+2,2)}, {v(Rr[3]+2,2)}")
    o(f"v_pk_add_f32 {v(Rr[0],2)}, {v(Rr[0],2)}, {v(Rr[2],2)}"); o(f"v_pk_add_f32 {v(Rr[0]+2,2)}, {v(Rr[0]+2,2)}, {v(Rr[2]+2,2)}")
    o(f"v_cvt_pk_bf16_f32 v{R}, v{vC}, v{vC+1}")
    o(f"v_cvt_pk_bf16_f32 v{R+1}, v{vC+2}, v{vC+3}")
    o(f"v_permlane16_swap_b32 v{R}, v{R+2}")
    o(f"v_permlane16_swap_b32 v{R+1}, v{R+3}")
    o(f"s_mov_b64 exec, {s(sMaskQK,2)}")
    if EP == 2:
        o("s_waitcnt vmcnt(0)")
        o(f"{TIMER} {s(sTs + 2*5, 2)}")
    o(f"global_store_dwordx4 v{vPst}, {v(R,4)}, {s(sPART,2)} sc1")
    stamp()
    if EP == 2:
        o("s_waitcnt vmcnt(0)")
        o(f"{TIMER} {s(sTs + 2*4, 2)}")
    o(f"global_store_dwordx4 v{vQKst}, {v(vSent,4)}, {s(sRq,2)}{st_fast}")
    o(f"s_mov_b64 exec, 0xffff")
    o(f"global_store_dwordx4 v{vMst}, {v(vSent,4)}, {s(sRm,2)}{st_fast}")
    o(f"s_cmp_lg_u32 s{sW}, 0")
    o("s_cbranch_scc1 L_norv")
    o(f"s_mov_b64 exec, {s(sSelV,2)}")
    o(f"global_store_dwordx4 v{vVst}, {v(vSent,4)}, {s(sRv,2)}{st_fast}")
    A.label("L_norv")
    o("s_mov_b64 exec, -1")
    if not FIXKV:
        o(f"s_add_u32 s{sVX}, s{sVX}, 262144"); o(f"s_addc_u32 s{sVX+1}, s{sVX+1}, 0")
    o(f"s_add_u32 s{sKM}, s{sKM}, 65536"); o(f"s_addc_u32 s{sKM+1}, s{sKM+1}, 0")
    o(f"s_add_u32 s{sVM}, s{sVM}, 65536"); o(f"s_addc_u32 s{sVM+1}, s{sVM+1}, 0")
    if E2_DELAY: o(f"s_sleep {E2_DELAY}")
    sets = [vB + 8 * k for k in range(E2_DEPTH)]
    def e2_issue(b):
        o(f"global_load_dwordx4 {v(b,4)}, v{vPld}, {s(sPART,2)} {E2F}")
        o(f"global_load_dwordx4 {v(b+4,4)}, v{vPld}, {s(sPART2,2)} {E2F}")
    if EP: o(f"{TIMER} {s(sTs + 2*2, 2)}")
    for k, b in enumerate(sets):
        e2_issue(b)
        if k + 1 < len(sets) and E2_SP: o(f"s_sleep {E2_SP}")
    if EP:
        o(f"s_waitcnt vmcnt({2*(len(sets)-1)})")
        o(f"{TIMER} {s(sTs + 2*3, 2)}")
    if FC & 8:
        assert E2_DEPTH == 1
        b = sets[0]; D = vA1
        o("s_waitcnt vmcnt(0)")
        A.label("L_e2_go")
        o(f"v_mfma_f32_16x16x32_bf16 {v(D,4)}, {v(vDelta,4)}, {v(b,4)}, 0")
        o(f"v_mfma_f32_16x16x32_bf16 {v(D,4)}, {v(vDelta,4)}, {v(b+4,4)}, {v(D,4)}")
        emit(chk_list(range(b, b + 8), vX))
        retry_tail("e2", 3, lambda: e2_issue(b), "L_e2_go")
    else:
        A.label("L_e2")
        for k, b in enumerate(sets):
            o(f"s_waitcnt vmcnt({2*(len(sets)-1)})")
            regs = list(range(b, b + 8))
            o(f"v_max3_u32 v{vX}, v{regs[0]}, v{regs[1]}, v{regs[2]}")
            o(f"v_max3_u32 v{vX}, v{vX}, v{regs[3]}, v{regs[4]}")
            o(f"v_max3_u32 v{vX}, v{vX}, v{regs[5]}, v{regs[6]}")
            o(f"v_max_u32 v{vX}, v{vX}, v{regs[7]}")
            o(f"v_cmp_eq_u32 vcc, -1, v{vX}")
            o(f"s_cbranch_vccz L_e2_ok{k}")
            if prof: o(f"s_add_u32 s{sCnt+3}, s{sCnt+3}, 1")
            e2_issue(b)
        o(f"s_sub_u32 s{sLim}, s{sLim}, 1")
        o(f"s_cbranch_scc0 L_e2")
        o(f"s_mov_b32 s{sLim}, 0")
        D = vA1
        for k, b in enumerate(sets):
            A.label(f"L_e2_ok{k}")
            o(f"v_mfma_f32_16x16x32_bf16 {v(D,4)}, {v(vDelta,4)}, {v(b,4)}, 0")
            o(f"v_mfma_f32_16x16x32_bf16 {v(D,4)}, {v(vDelta,4)}, {v(b+4,4)}, {v(D,4)}")
            if k + 1 < len(sets): o("s_branch L_e2_done")
    A.label("L_e2_done")
    o(f"s_add_u32 s{sPF}, s{sPF}, 262144"); o(f"s_addc_u32 s{sPF+1}, s{sPF+1}, 0")
    stamp()
    o("s_nop 7")
    o(f"v_cvt_pk_bf16_f32 v{R}, v{D}, v{D+1}")
    o(f"v_cvt_pk_bf16_f32 v{R+1}, v{D+2}, v{D+3}")
    o(f"v_permlane16_swap_b32 v{R}, v{R+2}")
    o(f"v_permlane16_swap_b32 v{R+1}, v{R+3}")
    o(f"s_mov_b64 exec, 0xffff")
    o(f"global_store_dwordx4 v{vMst}, {v(R,4)}, {s(sMEMn,2)}{st_fast}")
    o("s_mov_b64 exec, -1")
    stamp()
    if E3_DELAY: o(f"s_sleep {E3_DELAY}")
    if prof:
        o("s_waitcnt lgkmcnt(0)")
        for k in range(nst[0]):
            o(f"v_writelane_b32 v{vX+8}, s{sTs+2*k}, {k}")
        for k in range(4):
            o(f"v_writelane_b32 v{vX+8}, s{sCnt+k}, {11+k}")
        o(f"v_writelane_b32 v{vX+8}, s92, 15")
        o(f"s_lshl_b32 s{sT0}, s{sW}, 12")
        o(f"s_lshl_b32 s{sT1}, s{sStep}, 6")
        o(f"s_add_u32 s{sT0}, s{sT0}, s{sT1}")
        o(f"s_add_u32 s{sT0}, s{sT0}, 40960")
        o(f"v_lshlrev_b32 v{vX+9}, 2, v{vL}")
        o(f"v_add_u32 v{vX+9}, s{sT0}, v{vX+9}")
        o("s_mov_b64 exec, 0xffff")
        o(f"ds_write_b32 v{vX+9}, v{vX+8}")
        o("s_mov_b64 exec, -1")
    o(f"s_add_u32 s{sStep}, s{sStep}, 1")
    o(f"s_cmp_lt_u32 s{sStep}, {nsteps}")
    o("s_cbranch_scc1 L_step")
    o("s_branch L_rec_fin")
    A.label("L_rec_last")
    if SIG:
        o("s_waitcnt vmcnt(0)")
        o(f"s_and_b32 s{sT0}, s{sStep}, 15"); o(f"s_cmp_lg_u32 s{sT0}, s{sJ}"); o("s_cbranch_scc1 L_rec_fin")
        o(f"s_lshl_b32 s{sT0}, s{sStep}, 7"); o(f"s_add_u32 s{sT0}, s{sT0}, {CNT_REC}")
        o(f"v_mov_b32 v{vX+2}, s{sT0}"); o(f"v_mov_b32 v{vX+3}, 1")
        o("s_mov_b64 exec, 1")
        o(f"global_atomic_add v{vX+2}, v{vX+3}, {s(sCNT,2)}")
        o("s_mov_b64 exec, -1")
    A.label("L_rec_fin")
    if prof:
        o("s_waitcnt lgkmcnt(0)")
        o(f"s_lshl_b32 s{sT0}, s{sW}, 12")
        o(f"s_add_u32 s{sT0}, s{sT0}, 40960")
        o(f"v_add_u32 v{vX+9}, s{sT0}, v{vL16}")
        for k in range(4):
            o(f"ds_read_b128 {v(vB+4*k,4)}, v{vX+9} offset:{k*1024}")
        o("s_waitcnt lgkmcnt(0)")
        for k in range(4):
            o(f"global_store_dwordx4 v{vL16}, {v(vB+4*k,4)}, {s(sProf,2)} offset:{k*1024}")
    o("s_waitcnt vmcnt(0)")
    if ONE:
        o("s_barrier")
        o(f"s_cmp_lg_u32 s{sW}, 0"); o("s_cbranch_scc1 L_one_j")
        o(f"s_add_u32 s{sT0}, s{sWS}, {WS_CNT}"); o(f"s_addc_u32 s{sT1}, s{sWS+1}, 0")
        o(f"s_lshl_b32 s{sT2}, s{sG}, 4"); o(f"s_add_u32 s{sT2}, s{sT2}, s{sJ}"); o(f"s_lshl_b32 s{sT2}, s{sT2}, 2"); o(f"s_add_u32 s{sT2}, s{sT2}, {ONE['done']}")
        o(f"v_mov_b32 v2, s{sT2}"); o("v_mov_b32 v3, 1"); o("s_mov_b64 exec, 1")
        o(f"global_store_dword v2, v3, {s(sT0,2)} sc1"); o("s_mov_b64 exec, -1")
        A.label("L_one_j")
        o("s_branch T_last")
    A.label("L_rec_end")
    o("s_endpgm")
    txt = A.finish()
    if embedded:
        import re
        return re.sub(r"\bL_", pfx + "L_", txt)
    return kernel_head(name) + txt + kernel_desc(name, 256, 256)

if __name__ == "__main__":
    import sys
    fast = "slow" not in sys.argv
    prof = "prof" in sys.argv
    ng = 256 if any(x.startswith("X4=1") for x in sys.argv) else 128
    hdr = f"; @launch kernel=rec_kernel grid=({ng},1,1) block=(256,1,1) lds=131072\n.amdgcn_target \"amdgcn-amd-amdhsa--gfx950\"\n.text\n"
    kw = {}
    for x in sys.argv[1:]:
        if "=" in x:
            k_, v_ = x.split("=");
            if k_ != "out": kw[k_] = int(v_) if v_.isdigit() else v_
    outn = [x.split("=")[1] for x in sys.argv if x.startswith("out=")]
    open(outn[0] if outn else "rec_test.s", "w").write(hdr + gen_rec(fast=fast, prof=prof, **kw))
```

```python
from asmlib import *
from layout import *

class Gemm:
    def __init__(self, A, NX, NY, swap, pfx, acc_agpr=True, accbase=0):
        self.accbase = accbase
        self.A = A; self.NX = NX; self.NY = NY; self.swap = swap; self.pfx = pfx
        self.XW = 2 * NX * 16; self.YH = 2 * NY * 16
        self.RB = 2 * self.XW
        self.NIX = self.XW // 64; self.NIY = self.YH // 64
        self.XB = 32 * self.RB; self.YB = self.YH * 64
        self.SB = self.XB + self.YB
        self.NDMA = self.NIX + self.NIY
        self.nacc = NX * NY * 4
        r = 8
        self.vXr = r; r += NX
        self.vYr = r; r += 1
        self.vXd = r; r += self.NIX
        self.vYd = r; r += self.NIY
        r = (r + 3) // 4 * 4
        self.vF = r
        self.FS = (NX + NY) * 4
        r += 2 * self.FS
        self.vEnd = r
    def acc(self, jx, jy):
        return a(self.accbase + (jx * self.NY + jy) * 4, 4)
    def accr(self, jx, jy): return self.accbase + (jx * self.NY + jy) * 4
    def fX(self, ph, j): return self.vF + ph * self.FS + 4 * j
    def fY(self, ph, j): return self.vF + ph * self.FS + 4 * (self.NX + j)

    def setup(self, sW, vL, ldx, ldy, T, sTmp):
        o = self.A; NX, NY = self.NX, self.NY
        vi, vg, t0, t1, t2, t3 = T[:6]
        s0, s1 = sTmp[:2]
        o(f"v_and_b32 v{vi}, 15, v{vL}")
        o(f"v_lshrrev_b32 v{vg}, 4, v{vL}")
        o(f"v_lshrrev_b32 v{t0}, 2, v{vi}")
        o(f"v_and_b32 v{t1}, 1, v{vg}")
        o(f"v_lshrrev_b32 v{t2}, 1, v{vg}")
        if self.XW == 256:
            o(f"v_lshlrev_b32 v{t3}, 3, v{t0}")
            o(f"v_lshl_add_u32 v{t3}, v{t2}, 2, v{t3}")
            o(f"v_add_u32 v{t3}, v{t3}, v{t1}")
            o(f"v_lshl_or_b32 v{t0}, v{t1}, 2, v{t0}")
        elif self.XW == 128:
            o(f"v_lshl_add_u32 v{t3}, v{vg}, 3, v{t0}")
            o(f"v_lshl_or_b32 v{t0}, v{t1}, 2, v{t0}")
        else:
            o(f"v_lshlrev_b32 v{t3}, 4, v{t2}")
            o(f"v_lshl_add_u32 v{t3}, v{t0}, 1, v{t3}")
            o(f"v_add_u32 v{t3}, v{t3}, v{t1}")
        sh = self.RB.bit_length() - 1
        o(f"v_lshlrev_b32 v{t3}, {sh}, v{t3}")
        o(f"v_and_b32 v{t1}, 3, v{vi}")
        o(f"v_lshl_add_u32 v{t3}, v{t1}, 3, v{t3}")
        o(f"s_and_b32 s{s0}, s{sW}, 1")
        o(f"s_mul_i32 s{s0}, s{s0}, {NX}")
        for j in range(NX):
            o(f"s_add_u32 s{s1}, s{s0}, {j}")
            o(f"v_xor_b32 v{t1}, s{s1}, v{t0}")
            o(f"v_lshl_add_u32 v{self.vXr+j}, v{t1}, 5, v{t3}")
        o(f"v_lshrrev_b32 v{t0}, 2, v{vi}")
        o(f"v_lshrrev_b32 v{t1}, 1, v{t0}")
        o(f"v_and_b32 v{t2}, 1, v{t0}")
        o(f"v_xor_b32 v{t2}, v{t2}, v{t1}")
        o(f"v_lshl_or_b32 v{t2}, v{t2}, 1, v{t1}")
        o(f"v_xor_b32 v{t2}, v{t2}, v{vg}")
        o(f"v_lshlrev_b32 v{t2}, 4, v{t2}")
        o(f"v_lshl_add_u32 v{t2}, v{vi}, 6, v{t2}")
        o(f"s_lshr_b32 s{s0}, s{sW}, 1")
        o(f"s_mul_i32 s{s0}, s{s0}, {NY*16*64}")
        o(f"s_add_u32 s{s0}, s{s0}, {self.XB}")
        o(f"v_add_u32 v{self.vYr}, s{s0}, v{t2}")
        ppr = self.RB // 16
        lg = ppr.bit_length() - 1
        o(f"v_lshrrev_b32 v{t0}, {lg}, v{vL}")
        o(f"v_and_b32 v{t1}, {ppr-1}, v{vL}")
        if self.XW == 256:
            o(f"v_lshlrev_b32 v{t2}, 3, v{t0}")
            o(f"v_add_u32 v{t2}, s{sW}, v{t2}")
            o(f"v_lshlrev_b32 v{t3}, 2, v{t0}")
            o(f"v_or_b32 v{t3}, s{sW}, v{t3}")
            toff = [0, 4, 16, 20]
        elif self.XW == 128:
            o(f"s_and_b32 s{s0}, s{sW}, 1")
            o(f"s_lshl_b32 s{s1}, s{s0}, 3")
            o(f"v_add_u32 v{t2}, s{s1}, v{t0}")
            o(f"s_lshr_b32 s{s1}, s{sW}, 1"); o(f"s_lshl_b32 s{s1}, s{s1}, 4")
            o(f"v_add_u32 v{t2}, s{s1}, v{t2}")
            o(f"s_lshl_b32 s{s0}, s{s0}, 2")
            o(f"v_or_b32 v{t3}, s{s0}, v{t0}")
            toff = [0, 4]
        else:
            o(f"v_lshrrev_b32 v{t3}, 1, v{t0}")
            o(f"v_and_b32 v{t2}, 1, v{t0}")
            o(f"v_lshl_add_u32 v{t2}, v{t2}, 3, v{t3}")
            o(f"s_and_b32 s{s0}, s{sW}, 1"); o(f"s_lshl_b32 s{s0}, s{s0}, 2")
            o(f"s_lshr_b32 s{s1}, s{sW}, 1"); o(f"s_lshl_b32 s{s1}, s{s1}, 4")
            o(f"s_add_u32 s{s0}, s{s0}, s{s1}")
            o(f"v_add_u32 v{t2}, s{s0}, v{t2}")
            toff = [0]
        o(f"v_lshrrev_b32 v{vi}, 1, v{t1}")
        o(f"v_xor_b32 v{vi}, v{vi}, v{t3}")
        o(f"v_lshlrev_b32 v{vi}, 5, v{vi}")
        o(f"v_and_b32 v{t1}, 1, v{t1}")
        o(f"v_lshl_or_b32 v{vi}, v{t1}, 4, v{vi}")
        o(f"s_mov_b32 s{s0}, {ldx}")
        o(f"v_mul_lo_u32 v{t2}, v{t2}, s{s0}")
        o(f"v_add_u32 v{self.vXd}, v{t2}, v{vi}")
        for t in range(1, self.NIX):
            o(f"v_add_u32 v{self.vXd+t}, {toff[t]*ldx}, v{self.vXd}")
        o(f"v_lshlrev_b32 v{t0}, 4, v{vL}")
        o(f"s_mul_i32 s{s0}, s{sW}, {self.NIY*1024}")
        o(f"v_add_u32 v{self.vYd}, s{s0}, v{t0}")
        for t in range(1, self.NIY):
            o(f"v_add_u32 v{self.vYd+t}, {t*1024}, v{self.vYd}")

    def dma(self, stage, sSrdX, sSrdY, sOffX, sOffY, sM0base):
        L = []
        for t in range(self.NIX):
            L.append([f"s_add_u32 m0, s{sM0base[0]}, {stage*self.SB + t*1024}",
                      f"buffer_load_dwordx4 v{self.vXd+t}, {s(sSrdX,4)}, s{sOffX} offen lds"])
        for t in range(self.NIY):
            L.append([f"s_add_u32 m0, s{sM0base[1]}, {stage*self.SB + self.XB + t*1024}",
                      f"buffer_load_dwordx4 v{self.vYd+t}, {s(sSrdY,4)}, s{sOffY} offen lds"])
        return L
    def reads(self, stage, ph, hi):
        L = []
        base = stage * self.SB
        def addr(reg, off):
            if off <= 65535 - 1024: return f"v{reg} offset:{off}"
            return None
        for j in range(max(self.NX, self.NY)):
            if j < self.NY:
                L.append(("Y", j, base + j * 1024))
            if j < self.NX:
                L.append(("X", j, base));
        return L

def gen_loop(G, sSrdX, sSrdY, sOffX, sOffY, sM0, sKcnt, stepX, stepY, niter, label, sW=None, stagger=False, opt=None, sSt=None, pf=None):
    opt = opt or {}
    o = G.A; NX, NY = G.NX, G.NY
    S = opt.get("S", 4)
    SB = G.SB
    sRd, sDm, sTm = sSt
    vC = G.vEnd
    G.vEnd2 = vC + NX + 1
    def rd(ph):
        L = []
        for j in range(max(NX, NY)):
            if j < NY: L.append(f"ds_read_b128 {v(G.fY(ph,j),4)}, v{vC+NX} offset:{j*1024}")
            if j < NX:
                L.append(f"ds_read_b64_tr_b16 {v(G.fX(ph,j),2)}, v{vC+j}")
                L.append(f"ds_read_b64_tr_b16 {v(G.fX(ph,j)+2,2)}, v{vC+j} offset:1024")
        return L
    def setaddr():
        return [f"v_add_u32 v{vC+j}, s{sRd}, v{G.vXr+j}" for j in range(NX)] + [f"v_add_u32 v{vC+NX}, s{sRd}, v{G.vYr}"]
    def adv(sreg):
        return [f"s_add_u32 s{sreg}, s{sreg}, {SB}", f"s_cmp_eq_u32 s{sreg}, {S*SB}", f"s_cselect_b32 s{sreg}, 0, s{sreg}"]
    def dma_groups():
        L = []
        for t in range(G.NIX):
            L.append([f"s_add_u32 m0, s{sTm}, {t*1024}", f"buffer_load_dwordx4 v{G.vXd+t}, {s(sSrdX,4)}, s{sOffX} offen lds"])
        for t in range(G.NIY):
            L.append([f"s_add_u32 m0, s{sTm+1}, {t*1024}", f"buffer_load_dwordx4 v{G.vYd+t}, {s(sSrdY,4)}, s{sOffY} offen lds"])
        return L
    def dma_pre():
        return [f"s_add_u32 s{sTm}, s{sM0[0]}, s{sDm}", f"s_add_u32 s{sTm+1}, s{sM0[1]}, s{sDm}"]
    def dma_post():
        return [f"s_add_u32 s{sOffX}, s{sOffX}, {stepX}", f"s_add_u32 s{sOffY}, s{sOffY}, {stepY}"] + adv(sDm)
    def mf(jx, jy, ph, first):
        c = "0" if first else G.acc(jx, jy)
        if G.swap: return f"v_mfma_f32_16x16x32_bf16 {G.acc(jx,jy)}, {v(G.fY(ph,jy),4)}, {v(G.fX(ph,jx),4)}, {c}"
        return f"v_mfma_f32_16x16x32_bf16 {G.acc(jx,jy)}, {v(G.fX(ph,jx),4)}, {v(G.fY(ph,jy),4)}, {c}"
    NPF = 1 if pf else 0
    def pf_ins():
        return [f"buffer_load_dword v{pf['vd']}, v{pf['vo']}, {s(pf['srd'],4)}, s{pf['off']} offen", f"s_add_u32 s{pf['off']}, s{pf['off']}, s{pf['step']}"]
    o(f"s_add_u32 s{sM0[1]}, s{sM0[1]}, {G.XB}")
    o(f"s_mov_b32 s{sDm}, 0"); o(f"s_mov_b32 s{sRd}, 0")
    for st in range(S):
        for x in dma_pre(): o(x)
        for g in dma_groups():
            for x in g: o(x)
        for x in dma_post(): o(x)
    npro = 0
    if pf:
        npro = pf['D']
        for d in range(npro):
            for x in pf_ins(): o(x)
    for x in setaddr(): o(x)
    o(f"s_waitcnt vmcnt({min(63, G.NDMA*(S-1) + npro)})")
    o("s_barrier")
    for x in rd(0): o(x)
    for x in adv(sRd): o(x)
    for x in setaddr(): o(x)
    for x in dma_pre(): o(x)
    o(f"s_waitcnt vmcnt({min(63, G.NDMA*(S-2) + npro)}) lgkmcnt(0)")
    o("s_barrier")
    def iteration(ph, first, itn=99):
        mfl = [mf(jx, jy, ph, first) for jy in range(NY) for jx in range(NX)]
        rl = rd(ph ^ 1)
        dl = dma_groups()
        if opt.get('nodma'): dl = []
        if opt.get('noread'): rl = []
        n = len(mfl)
        pre = [[] for _ in range(n)]; slots = [[] for _ in range(n)]
        used = set()
        per = max(1, n // max(1, len(dl)))
        for k, g in enumerate(dl):
            p = min(n - 1, k * per + 2)
            pre[p].append(g[0]); slots[p].append(g[1]); used.add(p)
        nr = len(rl); rspan = opt.get("rspan", n * 3 // 4)
        for k, x in enumerate(rl):
            p = min(n - 1, 1 + (k * rspan) // max(1, nr))
            while p in used and p + 1 < n: p += 1
            slots[p].append(x)
        lastr = max([k for k in range(n) if any(x.startswith("ds_read") for x in slots[k])] + [0])
        lastd = max([k for k in range(n) if any(x.startswith("buffer_load") for x in slots[k])] + [0])
        tail1 = [adv(sRd)] + [[x] for x in setaddr()]
        p = lastr + 1
        for k_, g in enumerate(tail1):
            slots[min(p, n - 1)] += g
            if n - p > len(tail1) - k_ or True: p += 1
        dp = dma_post()
        tail2 = [dp[:2], dp[2:], dma_pre()]
        p = lastd + 1
        for g in tail2:
            slots[min(p, n - 1)] += g; p += 1
        if pf: slots[n - 1] += pf_ins()
        for k in range(n):
            for x in pre[k]: o(x)
            o(mfl[k])
            for x in slots[k]: o(x)
        extra = 0
        if pf: extra = (npro + itn + 1) if itn < S - 2 else (S - 1)
        o(f"s_waitcnt vmcnt({min(63, G.NDMA*(S-2) + extra)}) lgkmcnt(0)")
        if not opt.get('nobar'): o("s_barrier")
    iteration(0, not opt.get('accum'), 0); iteration(1, False, 1)
    if niter > 2:
        o(f"s_mov_b32 s{sKcnt}, {niter//2 - 1}")
        o.label(f"{label}_loop")
        iteration(0, False); iteration(1, False)
        o(f"s_sub_u32 s{sKcnt}, s{sKcnt}, 1")
        o(f"s_cmp_lg_u32 s{sKcnt}, 0")
        o(f"s_cbranch_scc1 {label}_loop")
    o("s_waitcnt vmcnt(0)")

def gen_loop2(G, sSrdX, sSrdY, sOffX, sOffY, sM0, sKcnt, stepX, stepY, niter, label, K=4, R=12, sSt=None, opt=None):
    opt = opt or {}
    o = G.A; NX, NY = G.NX, G.NY
    SB = G.SB
    sRd, sDm, sTm = sSt
    FS = G.FS
    vF = G.vF
    vC = vF + 4 * FS
    G.vEnd2 = vC + NX + 1
    fX = lambda ph, j: vF + ph * FS + 4 * j
    fY = lambda ph, j: vF + ph * FS + 4 * (NX + j)
    def rd(ph):
        L = []
        for j in range(max(NX, NY)):
            if j < NY: L.append(f"ds_read_b128 {v(fY(ph,j),4)}, v{vC+NX} offset:{j*1024}")
            if j < NX:
                L.append(f"ds_read_b64_tr_b16 {v(fX(ph,j),2)}, v{vC+j}")
                L.append(f"ds_read_b64_tr_b16 {v(fX(ph,j)+2,2)}, v{vC+j} offset:1024")
        return L
    NRD = 2 * NX + NY
    def setaddr():
        return [f"v_add_u32 v{vC+j}, s{sRd}, v{G.vXr+j}" for j in range(NX)] + [f"v_add_u32 v{vC+NX}, s{sRd}, v{G.vYr}"]
    def adv(sreg):
        return [f"s_add_u32 s{sreg}, s{sreg}, {SB}", f"s_cmp_eq_u32 s{sreg}, {R*SB}", f"s_cselect_b32 s{sreg}, 0, s{sreg}"]
    def dma_groups():
        L = []
        for t in range(G.NIX):
            L.append([f"s_add_u32 m0, s{sTm}, {t*1024}", f"buffer_load_dwordx4 v{G.vXd+t}, {s(sSrdX,4)}, s{sOffX} offen lds"])
        for t in range(G.NIY):
            L.append([f"s_add_u32 m0, s{sTm+1}, {t*1024}", f"buffer_load_dwordx4 v{G.vYd+t}, {s(sSrdY,4)}, s{sOffY} offen lds"])
        return L
    dma_pre = lambda: [f"s_add_u32 s{sTm}, s{sM0[0]}, s{sDm}", f"s_add_u32 s{sTm+1}, s{sM0[1]}, s{sDm}"]
    dma_post = lambda: [f"s_add_u32 s{sOffX}, s{sOffX}, {stepX}", f"s_add_u32 s{sOffY}, s{sOffY}, {stepY}"] + adv(sDm)
    def mf(jx, jy, ph, first):
        c = "0" if first else G.acc(jx, jy)
        if G.swap: return f"v_mfma_f32_16x16x32_bf16 {G.acc(jx,jy)}, {v(fY(ph,jy),4)}, {v(fX(ph,jx),4)}, {c}"
        return f"v_mfma_f32_16x16x32_bf16 {G.acc(jx,jy)}, {v(fX(ph,jx),4)}, {v(fY(ph,jy),4)}, {c}"
    o(f"s_add_u32 s{sM0[1]}, s{sM0[1]}, {G.XB}")
    o(f"s_mov_b32 s{sDm}, 0"); o(f"s_mov_b32 s{sRd}, 0")
    npro = R - K + 1
    for st in range(npro):
        for x in dma_pre(): o(x)
        for g in dma_groups():
            for x in g: o(x)
        for x in dma_post(): o(x)
    for x in dma_pre(): o(x)
    OUT = (R - 2 * K - 1) * G.NDMA
    assert 0 <= OUT <= 63
    o(f"s_waitcnt vmcnt({min(63, (npro - 2) * G.NDMA)})")
    o("s_barrier")
    for ph in range(2):
        for x in setaddr(): o(x)
        for x in rd(ph): o(x)
        for x in adv(sRd): o(x)
    for x in setaddr(): o(x)
    o(f"s_waitcnt vmcnt({OUT}) lgkmcnt({NRD})")
    o("s_barrier")
    def iteration(it, first):
        ph = it % 4
        mfl = [mf(jx, jy, ph, first) for jy in range(NY) for jx in range(NX)]
        rl = rd((ph + 2) % 4)
        dl = dma_groups()
        n = len(mfl)
        pre = [[] for _ in range(n)]; slots = [[] for _ in range(n)]
        per = max(1, n // len(dl))
        for k, g in enumerate(dl):
            p = min(n - 1, k * per + 1)
            pre[p].append(g[0]); slots[p].append(g[1])
        for k, x in enumerate(rl):
            slots[min(n - 1, (k * n) // (len(rl) + len(rl) // 2))].append(x)
        slots[n - 1] += adv(sRd) + setaddr() + dma_post()[:2] + adv(sDm) + dma_pre()
        for k in range(n):
            for x in pre[k]: o(x)
            o(mfl[k])
            for x in slots[k]: o(x)
        if (it + 1) % K == 0:
            o(f"s_waitcnt vmcnt({OUT}) lgkmcnt({NRD})")
            o("s_barrier")
        else:
            o(f"s_waitcnt lgkmcnt({NRD})")
    for it in range(4): iteration(it, it == 0 and not opt.get("accum"))
    if niter > 4:
        o(f"s_mov_b32 s{sKcnt}, {niter//4 - 1}")
        o.label(f"{label}_loop")
        for it in range(4): iteration(it, False)
        o(f"s_sub_u32 s{sKcnt}, s{sKcnt}, 1")
        o(f"s_cmp_lg_u32 s{sKcnt}, 0")
        o(f"s_cbranch_scc1 {label}_loop")
    o("s_waitcnt vmcnt(0) lgkmcnt(0)")

def gen_loop3(G, sSrdX, sSrdY, sOffX, sOffY, sM0, sKcnt, stepX, stepY, niter, label, K=2, R=8, opt=None, dep_wait=None, sTmp=None):
    opt = opt or {}
    o = G.A; NX, NY = G.NX, G.NY
    SB = G.SB; FS = G.FS; vF = G.vF
    assert niter % R == 0 and R % 4 == 0 and R % K == 0
    nsets = (R * SB + 65535) // 65536
    vH = vF + 4 * FS
    G.vEnd2 = vH + (NX + 1) * (nsets - 1)
    per_win = max(1, 65536 // SB)
    for ws_ in range(1, (R + per_win - 1) // per_win):
        for j in range(NX): o(f"v_add_u32 v{vH+(ws_-1)*(NX+1)+j}, {ws_*per_win*SB}, v{G.vXr+j}")
        o(f"v_add_u32 v{vH+(ws_-1)*(NX+1)+NX}, {ws_*per_win*SB}, v{G.vYr}")
    G.vEnd2 = vH + (NX + 1) * ((R + per_win - 1) // per_win - 1)
    fX = lambda ph, j: vF + ph * FS + 4 * j
    fY = lambda ph, j: vF + ph * FS + 4 * (NX + j)
    def rd(stage, ph):
        ws_, rel = divmod(stage, per_win)
        xa = (lambda j: G.vXr + j) if ws_ == 0 else (lambda j: vH + (ws_ - 1) * (NX + 1) + j)
        ya = G.vYr if ws_ == 0 else vH + (ws_ - 1) * (NX + 1) + NX
        base = rel * SB
        L = []
        for j in range(max(NX, NY)):
            if j < NY: L.append(f"ds_read_b128 {v(fY(ph,j),4)}, v{ya} offset:{base + j*1024}")
            if j < NX:
                L.append(f"ds_read_b64_tr_b16 {v(fX(ph,j),2)}, v{xa(j)} offset:{base}")
                L.append(f"ds_read_b64_tr_b16 {v(fX(ph,j)+2,2)}, v{xa(j)} offset:{base+1024}")
        return L
    NRD = 2 * NX + NY
    def dma_groups(stage):
        L = []
        for t in range(G.NIX):
            L.append([f"s_add_u32 m0, s{sM0[0]}, {stage*SB + t*1024}", f"buffer_load_dwordx4 v{G.vXd+t}, {s(sSrdX,4)}, s{sOffX} offen lds"])
        for t in range(G.NIY):
            L.append([f"s_add_u32 m0, s{sM0[1]}, {stage*SB + G.XB + t*1024}", f"buffer_load_dwordx4 v{G.vYd+t}, {s(sSrdY,4)}, s{sOffY} offen lds"])
        return L
    post = lambda: [f"s_add_u32 s{sOffX}, s{sOffX}, {stepX}", f"s_add_u32 s{sOffY}, s{sOffY}, {stepY}"]
    def mf(jx, jy, ph, first):
        c = "0" if first else G.acc(jx, jy)
        if G.swap: return f"v_mfma_f32_16x16x32_bf16 {G.acc(jx,jy)}, {v(fY(ph,jy),4)}, {v(fX(ph,jx),4)}, {c}"
        return f"v_mfma_f32_16x16x32_bf16 {G.acc(jx,jy)}, {v(fX(ph,jx),4)}, {v(fY(ph,jy),4)}, {c}"
    npro = R - K + 1
    OUT = (R - 2 * K - 1) * G.NDMA
    assert 0 <= OUT <= 63
    split = dep_wait is not None
    if split:
        o(f"s_mov_b32 s{sTmp}, s{sOffX}")
        for st in range(npro):
            for g in dma_groups(st % R)[:G.NIX]:
                o(g[0]); o("s_nop 0"); o(g[1])
            o(post()[0])
        dep_wait()
        for st in range(npro):
            for g in dma_groups(st % R)[G.NIX:]:
                o(g[0]); o("s_nop 0"); o(g[1])
            o(post()[1])
        o(f"s_waitcnt vmcnt({(npro - 2) * G.NIY})")
    else:
        for st in range(npro):
            for g in dma_groups(st % R):
                o(g[0]); o("s_nop 0"); o(g[1])
            for x in post(): o(x)
        o(f"s_waitcnt vmcnt({min(63, (npro - 2) * G.NDMA)})")
    o("s_barrier")
    for ph in range(2):
        for x in rd(ph, ph): o(x)
    o(f"s_waitcnt vmcnt({(npro - (K + 2)) * G.NIY if split else OUT}) lgkmcnt({NRD})")
    o("s_barrier")
    def iteration(it, first, peeled=False):
        ph = it % 4
        mfl = [mf(jx, jy, ph, first) for jy in range(NY) for jx in range(NX)]
        rl = rd((it + 2) % R, (ph + 2) % 4)
        dl = dma_groups((it + npro) % R)
        if opt.get('noread'): rl = []
        if opt.get('nomfma'): mfl = mfl[:1] * 1
        n = len(mfl)
        pre = [[] for _ in range(n)]; slots = [[] for _ in range(n)]
        per = max(1, n // len(dl))
        if not opt.get('nodma'):
            for k, g in enumerate(dl):
                p = min(n - 1, k * per + 1)
                pre[p].append(g[0]); slots[p].append(g[1])
        for k, x in enumerate(rl):
            slots[min(n - 1, (k * n) // len(rl))].append(x)
        slots[n - 1] += post()
        for k in range(n):
            for x in pre[k]: o(x)
            o(mfl[k])
            for x in slots[k]: o(x)
        if (it + 1) % K == 0:
            allowed = OUT
            n_need = (it + 1 - K) + 2 * K + 1
            if split and peeled and n_need < npro: allowed = (npro - 1 - n_need) * G.NIY + (it + 1) * G.NDMA
            o(f"s_waitcnt vmcnt({allowed}) lgkmcnt({NRD})")
            if not opt.get('nobar'): o("s_barrier")
        else:
            o(f"s_waitcnt lgkmcnt({NRD})")
    if opt.get("accum"):
        first_block = False
    else:
        for it in range(R): iteration(it, it == 0, True)
        first_block = True
    nloop = niter // R - (1 if first_block else 0)
    if nloop > 0:
        o(f"s_mov_b32 s{sKcnt}, {nloop}")
        o.label(f"{label}_loop")
        for it in range(R): iteration(it, False)
        o(f"s_sub_u32 s{sKcnt}, s{sKcnt}, 1")
        o(f"s_cmp_lg_u32 s{sKcnt}, 0")
        o(f"s_cbranch_scc1 {label}_loop")
    o("s_waitcnt vmcnt(0) lgkmcnt(0)")
```

```python
from asmlib import *
from layout import *
from gemm import Gemm, gen_loop, gen_loop2, gen_loop3
from k_qkv import srd
from k_small import fbits, unpack8, LOG2E
import math

def common_head(o, name, ntiles, ptrs):
    o(f"s_cmp_ge_u32 s2, {ntiles}"); o(f"s_cbranch_scc1 L_{name}_end")
    o(f"s_load_dwordx2 s[6:7], s[0:1], {KA_WS}")
    for sreg, ka in ptrs: o(f"s_load_dwordx2 {s(sreg,2)}, s[0:1], {ka}")
    o("v_lshrrev_b32 v1, 6, v0"); o("v_and_b32 v0, 63, v0"); o("v_readfirstlane_b32 s3, v1")
    o("s_waitcnt lgkmcnt(0)")
    prof_start(o)

PROF = False
FUSE = False
def prof_start(o):
    if PROF: o('s_memrealtime s[60:61]'); o('s_memtime s[64:65]')
def prof_mid(o):
    if PROF: o('s_memrealtime s[62:63]'); o('s_memtime s[66:67]')
def prof_end(o, idx):
    if not PROF: return
    o('s_memrealtime s[68:69]'); o('s_waitcnt lgkmcnt(0)')
    o('s_lshl_b32 s25, s2, 6'); o('s_lshl_b32 s26, s3, 4'); o('s_add_u32 s25, s25, s26'); o(f's_add_u32 s25, s25, {WS_PROF + 5*MiB + idx*65536}')
    o('s_sub_u32 s66, s66, s64')
    o('v_mov_b32 v2, s60'); o('v_mov_b32 v3, s62'); o('v_mov_b32 v4, s68'); o('v_mov_b32 v5, s66'); o('v_mov_b32 v6, s25')
    o('s_mov_b64 exec, 1'); o('global_store_dwordx4 v6, v[2:5], s[6:7]'); o('s_waitcnt vmcnt(0)')
sX, sY = 8, 12
sOffX, sOffY, sM0, sK = 20, 21, [22, 23], 24
sT = [25, 26, 27, 28]
sSt = [32, 33, 34]

def pair_pack(o, G, E, k, ra, rb, f=None):
    T = E + 16 * (k % 3) + 4
    for r in range(4): o(f"v_accvgpr_read_b32 v{T+r}, a{ra+r}")
    for r in range(4): o(f"v_accvgpr_read_b32 v{T+4+r}, a{rb+r}")
    return T

def gen_op(name="op_kernel", opt=None):
    A = Asm(); o = A
    common_head(o, name, 256, [(40, KA_WO), (42, KA_X)])
    srd(o, sX, 40, 0, 8 * MiB); srd(o, sY, 6, WS_O, 16 * MiB)
    o("s_and_b32 s25, s2, 7"); o("s_lshr_b32 s26, s2, 3")
    o("s_and_b32 s4, s25, 1"); o("s_lshl_b32 s4, s4, 3"); o("s_and_b32 s27, s26, 7"); o("s_add_u32 s4, s4, s27")
    o("s_lshr_b32 s5, s25, 1"); o("s_lshl_b32 s5, s5, 2"); o("s_lshr_b32 s27, s26, 3"); o("s_add_u32 s5, s5, s27")
    o(f"s_lshl_b32 s{sOffX}, s4, 7"); o(f"s_lshl_b32 s{sOffY}, s5, 13")
    G = Gemm(A, 2, 4, False, "o")
    o(f"s_mul_i32 s{sM0[0]}, s3, {G.NIX*1024}"); o(f"s_mul_i32 s{sM0[1]}, s3, {G.NIY*1024}")
    G.setup(3, 0, 2048, 0, [1, 2, 3, 4, 5, 6], sT)
    gen_loop2(G, sX, sY, sOffX, sOffY, sM0, sK, 32 * 2048, 128 * 1024, 128, f"L_{name}", K=4, R=12, sSt=sSt)
    prof_mid(o)
    E = G.vF
    o("v_and_b32 v1, 15, v0"); o("v_lshrrev_b32 v2, 4, v0"); o("v_and_b32 v3, 1, v2"); o("v_lshrrev_b32 v2, 1, v2")
    o("v_lshlrev_b32 v3, 4, v3"); o("v_lshl_add_u32 v3, v2, 3, v3")
    o("s_lshl_b32 s25, s4, 6"); o("s_and_b32 s26, s3, 1"); o("s_lshl_b32 s26, s26, 5"); o("s_add_u32 s25, s25, s26")
    o("v_add_u32 v3, s25, v3")
    o("s_lshl_b32 s25, s5, 7"); o("s_lshr_b32 s26, s3, 1"); o("s_lshl_b32 s26, s26, 6"); o("s_add_u32 s25, s25, s26")
    o("v_add_u32 v1, s25, v1")
    o("v_lshlrev_b32 v4, 11, v1"); o("v_lshl_add_u32 v4, v3, 1, v4")
    o("v_lshlrev_b32 v5, 2, v3")
    o(f"s_add_u32 s44, s6, {WS_MOD + 2*4096}"); o("s_addc_u32 s45, s7, 0")
    GA = E + 64
    o(f"global_load_dwordx4 {v(GA,4)}, v5, s[44:45]"); o(f"global_load_dwordx4 {v(GA+4,4)}, v5, s[44:45] offset:16")
    XR = E + 72
    for jy in range(4):
        o(f"v_add_u32 v6, {jy*16*2048}, v4")
        o(f"global_load_dwordx4 {v(XR+4*jy,4)}, v6, s[42:43]")
    o(f"s_add_u32 s44, s6, {WS_X1}"); o("s_addc_u32 s45, s7, 0")
    for jy in range(4):
        T = pair_pack(o, G, E, jy, G.accr(0, jy), G.accr(1, jy))
        for r in range(4): o(f"v_permlane16_swap_b32 v{T+r}, v{T+4+r}")
        if jy == 0: o("s_waitcnt vmcnt(0)")
        U = E + 48
        unpack8(o, U, XR + 4 * jy)
        for e in range(8): o(f"v_fma_f32 v{T+e}, v{T+e}, v{GA+e}, v{U+e}")
        P = T - 4
        for d in range(4): o(f"v_cvt_pk_bf16_f32 v{P+d}, v{T+2*d}, v{T+2*d+1}")
        o(f"v_add_u32 v6, {jy*16*2048}, v4")
        o(f"global_store_dwordx4 v6, {v(P,4)}, s[44:45]")
    o("s_waitcnt vmcnt(0)")
    prof_end(o, 0)
    A.label(f"L_{name}_end"); o("s_endpgm")
    return kernel_head(name) + A.finish() + kernel_desc(name, max(G.vEnd2, E + 96), G.nacc), 12 * G.SB

def gen_g1(name="g1_kernel", opt=None):
    A = Asm(); o = A
    if FUSE:
        o("s_cmp_ge_u32 s2, 224"); o("s_cbranch_scc1 T_g2")
        o(f"s_load_dwordx2 s[6:7], s[0:1], {KA_WS}"); o(f"s_load_dwordx2 s[40:41], s[0:1], {KA_W1}"); o(f"s_load_dwordx2 s[42:43], s[0:1], {KA_B1}")
        o("s_waitcnt lgkmcnt(0)")
    else:
        common_head(o, name, 224, [(40, KA_W1), (42, KA_B1)])
    srd(o, sX, 40, 0, 2048 * 7168); srd(o, sY, 6, WS_H2T, 4 * MiB)
    o("s_and_b32 s25, s2, 7"); o("s_lshr_b32 s26, s2, 3")
    o("s_lshr_b32 s4, s25, 1"); o("s_mul_i32 s4, s4, 7"); o("s_lshr_b32 s27, s26, 2"); o("s_add_u32 s4, s4, s27")
    o("s_and_b32 s5, s25, 1"); o("s_lshl_b32 s5, s5, 2"); o("s_and_b32 s27, s26, 3"); o("s_add_u32 s5, s5, s27")
    o(f"s_lshl_b32 s{sOffX}, s4, 8"); o(f"s_lshl_b32 s{sOffY}, s5, 13")
    dep_h = None
    if FUSE:
        import k_tail
        def dep_h():
            o(f"s_lshl_b32 s58, s5, 7"); o(f"s_add_u32 s58, s58, {k_tail.CNT_H2}")
            k_tail.wg_wait(A, 58, 32, f"{name}_hw")
        if not k_tail.SPLIT: dep_h(); dep_h = None
    G = Gemm(A, 4, 4, False, "g")
    o(f"s_mul_i32 s{sM0[0]}, s3, {G.NIX*1024}"); o(f"s_mul_i32 s{sM0[1]}, s3, {G.NIY*1024}")
    G.setup(3, 0, 7168, 0, [1, 2, 3, 4, 5, 6], sT)
    gen_loop3(G, sX, sY, sOffX, sOffY, sM0, sK, 32 * 7168, 64 * 1024, 64, f"L_{name}", K=2, R=8, dep_wait=dep_h, sTmp=35)
    prof_mid(o)
    E = G.vF
    o("v_and_b32 v1, 15, v0"); o("v_lshrrev_b32 v2, 4, v0"); o("v_and_b32 v3, 1, v2"); o("v_lshrrev_b32 v2, 1, v2")
    o("v_lshlrev_b32 v4, 4, v3"); o("v_lshl_add_u32 v4, v2, 3, v4")
    o("v_lshl_or_b32 v2, v3, 1, v2")
    from k_small import gfun
    gfun(o, 3, 1, 5)
    o("v_xor_b32 v2, v2, v3"); o("v_lshl_add_u32 v2, v1, 2, v2"); o("v_lshlrev_b32 v2, 4, v2")
    o("s_lshl_b32 s25, s4, 7"); o("s_and_b32 s26, s3, 1"); o("s_lshl_b32 s26, s26, 6"); o("s_add_u32 s25, s25, s26")
    o("v_add_u32 v4, s25, v4"); o("v_lshlrev_b32 v4, 1, v4")
    BR = E + 64
    for jp in range(2): o(f"global_load_dwordx4 {v(BR+4*jp,4)}, v4, s[42:43] offset:{jp*64}")
    o("s_lshr_b32 s26, s25, 5"); o("s_lshl_b32 s26, s26, 16")
    o("s_lshl_b32 s27, s5, 3"); o("s_lshr_b32 s28, s3, 1"); o("s_lshl_b32 s28, s28, 2"); o("s_add_u32 s27, s27, s28"); o("s_lshl_b32 s27, s27, 10")
    o("s_add_u32 s26, s26, s27"); o(f"s_add_u32 s26, s26, {WS_U}")
    o("s_add_u32 s44, s6, s26"); o("s_addc_u32 s45, s7, 0")
    o("s_waitcnt vmcnt(0)")
    BF = E + 72
    for jp in range(2): unpack8(o, BF + 8 * jp, BR + 4 * jp)
    c1 = -2.0 * math.sqrt(2.0 / math.pi) * LOG2E
    o(f"s_mov_b32 s46, {fbits(0.044715)}"); o(f"s_mov_b32 s47, {fbits(c1)}")
    k = 0
    for jp in range(2):
        for jy in range(4):
            T = pair_pack(o, G, E, k, G.accr(2 * jp, jy), G.accr(2 * jp + 1, jy)); k += 1
            for r in range(4): o(f"v_permlane16_swap_b32 v{T+r}, v{T+4+r}")
            U = E + 48
            for e in range(8): o(f"v_add_f32 v{T+e}, v{T+e}, v{BF+8*jp+e}")
            for e in range(8): o(f"v_mul_f32 v{U+e}, v{T+e}, v{T+e}")
            for e in range(8): o(f"v_fma_f32 v{U+e}, v{U+e}, s46, 1.0")
            for e in range(8): o(f"v_mul_f32 v{U+e}, v{U+e}, v{T+e}")
            for e in range(8): o(f"v_mul_f32 v{U+e}, s47, v{U+e}")
            for e in range(8): o(f"v_exp_f32 v{U+e}, v{U+e}")
            for e in range(8): o(f"v_add_f32 v{U+e}, 1.0, v{U+e}")
            for e in range(8): o(f"v_rcp_f32 v{U+e}, v{U+e}")
            for e in range(8): o(f"v_mul_f32 v{T+e}, v{T+e}, v{U+e}")
            P = T - 4
            for d in range(4): o(f"v_cvt_pk_bf16_f32 v{P+d}, v{T+2*d}, v{T+2*d+1}")
            o(f"v_add_u32 v5, {jp*65536 + jy*1024}, v2")
            o(f"global_store_dwordx4 v5, {v(P,4)}, s[44:45]" + (" sc1" if FUSE else ""))
    o("s_waitcnt vmcnt(0)")
    if FUSE:
        import k_tail
        o("s_barrier")
        o("s_cmp_lg_u32 s3, 0"); o(f"s_cbranch_scc1 L_{name}_ns")
        o(f"s_add_u32 s48, s6, {WS_CNT}"); o("s_addc_u32 s49, s7, 0")
        o("s_cmp_ge_u32 s4, 14"); o("s_cselect_b32 s26, 1, 0"); o("s_lshl_b32 s27, s5, 1"); o("s_add_u32 s26, s26, s27"); o("s_lshl_b32 s26, s26, 7"); o(f"s_add_u32 s26, s26, {k_tail.CNT_U}")
        o("v_mov_b32 v14, s26"); o("v_mov_b32 v15, 1"); o("s_mov_b64 exec, 1"); o("global_atomic_add v14, v15, s[48:49]"); o("s_mov_b64 exec, -1")
        A.label(f"L_{name}_ns")
        o("s_branch T_g2")
        return A.finish()
    prof_end(o, 1)
    A.label(f"L_{name}_end"); o("s_endpgm")
    return kernel_head(name) + A.finish() + kernel_desc(name, max(G.vEnd2, E + 96), G.nacc), 8 * G.SB

def gen_g2(name="g2_kernel", opt=None):
    A = Asm(); o = A
    common_head(o, name, 256, [(40, KA_W2), (42, KA_B2), (48, KA_OUT)])
    srd(o, sX, 40, 0, 3584 * 4096); srd(o, sY, 6, WS_U, 112 * 64 * 1024)
    o("s_and_b32 s25, s2, 7"); o("s_lshr_b32 s26, s2, 3")
    o("s_lshr_b32 s4, s25, 1"); o("s_lshl_b32 s4, s4, 2"); o("s_lshr_b32 s27, s26, 3"); o("s_add_u32 s4, s4, s27")
    o("s_and_b32 s5, s25, 1"); o("s_lshl_b32 s5, s5, 3"); o("s_and_b32 s27, s26, 7"); o("s_add_u32 s5, s5, s27")
    o(f"s_lshl_b32 s{sOffX}, s4, 8"); o(f"s_lshl_b32 s{sOffY}, s5, 12")
    G = Gemm(A, 4, 2, True, "h")
    o(f"s_mul_i32 s{sM0[0]}, s3, {G.NIX*1024}"); o(f"s_mul_i32 s{sM0[1]}, s3, {G.NIY*1024}")
    G.setup(3, 0, 4096, 0, [1, 2, 3, 4, 5, 6], sT)
    gen_loop2(G, sX, sY, sOffX, sOffY, sM0, sK, 32 * 4096, 64 * 1024, 112, f"L_{name}", K=4, R=12, sSt=sSt)
    prof_mid(o)
    E = G.vF
    o("v_and_b32 v1, 15, v0"); o("v_lshrrev_b32 v2, 4, v0"); o("v_and_b32 v3, 1, v2"); o("v_lshrrev_b32 v2, 1, v2")
    o("v_lshlrev_b32 v3, 4, v3"); o("v_lshl_add_u32 v3, v2, 3, v3")
    o("s_lshl_b32 s25, s5, 6"); o("s_lshr_b32 s26, s3, 1"); o("s_lshl_b32 s26, s26, 5"); o("s_add_u32 s25, s25, s26")
    o("v_add_u32 v3, s25, v3")
    o("s_lshl_b32 s25, s4, 7"); o("s_and_b32 s26, s3, 1"); o("s_lshl_b32 s26, s26, 6"); o("s_add_u32 s25, s25, s26")
    o("v_add_u32 v1, s25, v1")
    o("v_lshlrev_b32 v4, 11, v1"); o("v_lshl_add_u32 v4, v3, 1, v4")
    o("v_lshlrev_b32 v5, 2, v3")
    o(f"s_add_u32 s44, s6, {WS_MOD + 5*4096}"); o("s_addc_u32 s45, s7, 0")
    GB = E + 64
    o(f"global_load_dwordx4 {v(GB,4)}, v5, s[44:45]"); o(f"global_load_dwordx4 {v(GB+4,4)}, v5, s[44:45] offset:16")
    XR = E + 72; B2 = E + 88
    o(f"s_add_u32 s44, s6, {WS_X1}"); o("s_addc_u32 s45, s7, 0")
    o("v_lshlrev_b32 v7, 1, v1")
    for jx in range(4):
        o(f"v_add_u32 v6, {jx*16*2048}, v4")
        o(f"global_load_dwordx4 {v(XR+4*jx,4)}, v6, s[44:45]")
        o(f"global_load_ushort v{B2+jx}, v7, s[42:43] offset:{jx*32}")
    for jx in range(4):
        T = pair_pack(o, G, E, jx, G.accr(jx, 0), G.accr(jx, 1))
        for r in range(4): o(f"v_permlane16_swap_b32 v{T+r}, v{T+4+r}")
        if jx == 0: o("s_waitcnt vmcnt(0)")
        U = E + 48
        unpack8(o, U, XR + 4 * jx)
        o(f"v_lshlrev_b32 v{B2+jx}, 16, v{B2+jx}")
        for e in range(8): o(f"v_add_f32 v{T+e}, v{T+e}, v{B2+jx}")
        for e in range(8): o(f"v_fma_f32 v{T+e}, v{T+e}, v{GB+e}, v{U+e}")
        P = T - 4
        for d in range(4): o(f"v_cvt_pk_bf16_f32 v{P+d}, v{T+2*d}, v{T+2*d+1}")
        o(f"v_add_u32 v6, {jx*16*2048}, v4")
        o(f"global_store_dwordx4 v6, {v(P,4)}, s[48:49]")
    o("s_waitcnt vmcnt(0)")
    prof_end(o, 2)
    A.label(f"L_{name}_end"); o("s_endpgm")
    return kernel_head(name) + A.finish() + kernel_desc(name, max(G.vEnd2, E + 96), G.nacc), 12 * G.SB
```

```python
from asmlib import *
from layout import *
from gemm import Gemm, gen_loop2, gen_loop3
from k_qkv import srd
from k_small import fbits, unpack8, gfun, LOG2E
import math

SENT = False
SPLIT = False
FUSE = False
CNT_H2 = 131072 + 32768
CNT_AT = 131072 + 36864
FUSE_AT = False
ONE = False
CNT_DONE = 131072 + 40960
CNT_P58 = 131072 + 41984
CNT_BULK = 131072 + 42112
CNT_U = 131072 + 34816
WS_STATP = 144 * MiB + 0
WS_XCH = 128 * MiB
WS_STAT = WS_CNT + 131072 + 16384
CNT_XO = 131072
CNT_ST = 131072 + 8192
CNT_XG = 131072 + 4096

sX, sY = 8, 12
sOffX, sOffY, sM0, sK = 20, 21, [22, 23], 24
sSt = [32, 33, 34]

def poll_ge(A, sBase, vAddr, target, tag, vT, sLimReg, sleep=2):
    o = A
    A.label(f"L_{tag}")
    o(f"global_load_dword v{vT}, v{vAddr}, {s(sBase,2)} sc1")
    o("s_waitcnt vmcnt(0)")
    o(f"v_readfirstlane_b32 s44, v{vT}")
    o(f"s_cmp_ge_u32 s44, {target}"); o(f"s_cbranch_scc1 L_{tag}_ok")
    o(f"s_sleep {sleep}")
    o(f"s_sub_u32 s{sLimReg}, s{sLimReg}, 1"); o(f"s_cbranch_scc0 L_{tag}")
    A.label(f"L_{tag}_ok")

def exchange(A, G, keep_tiles, send_tiles, sTile, sKh, xch_off, cnt_off, name):
    o = A
    E = G.vF
    o(f"s_lshl_b32 s25, s{sTile}, 1"); o(f"s_add_u32 s26, s25, s{sKh}"); o("s_lshl_b32 s26, s26, 2"); o("s_add_u32 s26, s26, s3"); o("s_lshl_b32 s26, s26, 13")
    o(f"s_xor_b32 s27, s{sKh}, 1"); o("s_add_u32 s27, s25, s27"); o("s_lshl_b32 s27, s27, 2"); o("s_add_u32 s27, s27, s3"); o("s_lshl_b32 s27, s27, 13")
    o(f"s_add_u32 s26, s26, {xch_off}"); o(f"s_add_u32 s27, s27, {xch_off}")
    o("s_add_u32 s40, s6, s26"); o("s_addc_u32 s41, s7, 0"); o("s_add_u32 s42, s6, s27"); o("s_addc_u32 s43, s7, 0")
    o("s_add_u32 s40, s40, 4096"); o("s_addc_u32 s41, s41, 0"); o("s_add_u32 s42, s42, 4096"); o("s_addc_u32 s43, s43, 0")
    o("v_lshlrev_b32 v1, 4, v0")
    T = E + 32
    for kh in range(2):
        if kh == 0: o(f"s_cmp_lg_u32 s{sKh}, 0"); o(f"s_cbranch_scc1 L_{name}_k1")
        else: A.label(f"L_{name}_k1")
        for t, (jx, jy) in enumerate(send_tiles(kh)):
            R = T + 4 * (t % 4)
            for r in range(4): o(f"v_accvgpr_read_b32 v{R+r}, a{G.accr(jx, jy)+r}")
            o(f"global_store_dwordx4 v1, {v(R,4)}, s[40:41] offset:{t*1024-4096} sc1")
        for t, (jx, jy) in enumerate(keep_tiles(kh)):
            for r in range(4): o(f"v_accvgpr_read_b32 v{E+4*t+r}, a{G.accr(jx, jy)+r}")
        if kh == 0: o(f"s_branch L_{name}_kd")
    A.label(f"L_{name}_kd")
    if SENT:
        o("s_mov_b32 s50, 0x200000")
        A.label(f"L_{name}_sp")
        for k_ in range(8): o(f"global_load_dwordx4 {v(T+4*k_,4)}, v1, s[42:43] offset:{k_*1024-4096} sc1")
        o("s_waitcnt vmcnt(0)")
        regs = list(range(T, T + 32))
        o(f"v_max3_u32 v2, v{regs[0]}, v{regs[1]}, v{regs[2]}")
        k_ = 3
        while k_ + 1 < len(regs):
            o(f"v_max3_u32 v2, v2, v{regs[k_]}, v{regs[k_+1]}"); k_ += 2
        if k_ < len(regs): o(f"v_max_u32 v2, v2, v{regs[k_]}")
        o("v_cmp_eq_u32 vcc, -1, v2"); o(f"s_cbranch_vccz L_{name}_sok")
        o("s_sub_u32 s50, s50, 1"); o(f"s_cbranch_scc0 L_{name}_sp")
        A.label(f"L_{name}_sok")
        for k_ in range(32): o(f"v_add_f32 v{E+k_}, v{E+k_}, v{T+k_}")
        return
    o("s_waitcnt vmcnt(0)")
    o(f"s_add_u32 s48, s6, {WS_CNT}"); o("s_addc_u32 s49, s7, 0")
    o(f"s_add_u32 s26, s25, s{sKh}"); o("s_lshl_b32 s26, s26, 2"); o("s_add_u32 s26, s26, s3"); o("s_lshl_b32 s26, s26, 2"); o(f"s_add_u32 s26, s26, {cnt_off}")
    o("v_mov_b32 v2, s26"); o("v_mov_b32 v3, 1")
    o("s_mov_b64 exec, 1"); o("global_atomic_add v2, v3, s[48:49]"); o("s_mov_b64 exec, -1")
    o(f"s_xor_b32 s27, s{sKh}, 1"); o("s_add_u32 s27, s25, s27"); o("s_lshl_b32 s27, s27, 2"); o("s_add_u32 s27, s27, s3"); o("s_lshl_b32 s27, s27, 2"); o(f"s_add_u32 s27, s27, {cnt_off}")
    o("v_mov_b32 v2, s27")
    o("s_mov_b32 s50, 0x200000")
    poll_ge(A, 48, 2, 1, f"{name}_p", 3, 50)
    for t in range(8): o(f"global_load_dwordx4 {v(T+4*t,4)}, v1, s[42:43] offset:{t*1024-4096} sc1")
    for t in range(8):
        o(f"s_waitcnt vmcnt({7-t})")
        for r in range(4): o(f"v_add_f32 v{E+4*t+r}, v{E+4*t+r}, v{T+4*t+r}")


PROF = False
def pst(o, k):
    if PROF: o(f's_memrealtime s[{64+2*k}:{65+2*k}]')
def pend(o, idx):
    if not PROF: return
    o('s_memrealtime s[76:77]'); o('s_waitcnt lgkmcnt(0)')
    o('s_lshl_b32 s25, s2, 7'); o('s_lshl_b32 s26, s3, 5'); o('s_add_u32 s25, s25, s26'); o(f's_add_u32 s25, s25, {WS_PROF + 7*MiB + idx*65536}')
    for k in range(6): o(f'v_mov_b32 v{2+k}, s{64+2*k}')
    o('v_mov_b32 v8, s76'); o('v_mov_b32 v9, 0'); o('v_mov_b32 v10, s25')
    o('s_mov_b64 exec, 1'); o('global_store_dwordx4 v10, v[2:5], s[6:7]'); o('global_store_dwordx4 v10, v[6:9], s[6:7] offset:16'); o('s_waitcnt vmcnt(0)')

def head(o, name, ptrs, first=True):
    if first: o(f"s_cmp_ge_u32 s2, 256"); o(f"s_cbranch_scc1 L_{name}_end")
    o(f"s_load_dwordx2 s[6:7], s[0:1], {KA_WS}")
    for sreg, ka in ptrs: o(f"s_load_dwordx2 {s(sreg,2)}, s[0:1], {ka}")
    if first: o("v_lshrrev_b32 v1, 6, v0"); o("v_and_b32 v0, 63, v0"); o("v_readfirstlane_b32 s3, v1")
    o("s_waitcnt lgkmcnt(0)")
    pst(o, 0)

LOPT = {}
def wg_wait(A, off_sreg, target, tag, sleep=5):
    o = A
    o(f"s_add_u32 s48, s6, {WS_CNT}"); o("s_addc_u32 s49, s7, 0")
    o("s_cmp_lg_u32 s3, 0"); o(f"s_cbranch_scc1 L_{tag}_b")
    o(f"v_mov_b32 v2, s{off_sreg}"); o("s_mov_b32 s50, 0x200000")
    poll_ge(A, 48, 2, target, tag, 3, 50, sleep=sleep)
    A.label(f"L_{tag}_b")
    o("s_barrier")

OPROF = False
def ostamp(o, k):
    if not OPROF: return
    o("s_memrealtime s[90:91]"); o("s_waitcnt lgkmcnt(0)")
    o("s_lshl_b32 s88, s2, 6"); o(f"s_add_u32 s88, s88, {WS_PROF + 7*MiB + 262144 + k*4}")
    o("v_mov_b32 v250, s88"); o("v_mov_b32 v251, s90"); o("s_mov_b64 exec, 1"); o("global_store_dword v250, v251, s[6:7]"); o("s_mov_b64 exec, -1")

def att_signal(o, n):
    o(f"s_add_u32 s48, s6, {WS_CNT}"); o("s_addc_u32 s49, s7, 0")
    o("s_lshr_b32 s25, s8, 7"); o("s_lshl_b32 s25, s25, 1"); o("s_bfe_u32 s26, s8, 0x10004"); o("s_add_u32 s25, s25, s26"); o("s_lshl_b32 s25, s25, 7"); o(f"s_add_u32 s25, s25, {CNT_AT}")
    o("v_mov_b32 v14, s25"); o(f"v_mov_b32 v15, {n}"); o("s_mov_b64 exec, 1"); o("global_atomic_add v14, v15, s[48:49]"); o("s_mov_b64 exec, -1")

def gen_opln(name="opln_kernel"):
    A = Asm(); o = A
    head(o, name, [(52, KA_WO), (54, KA_X)], first=not ONE)
    if FUSE_AT and not ONE:
        import k_attn
        k_attn.attn_phase(A)
        att_signal(o, 2)
    if ONE:
        import k_attn
        ostamp(o, 0)
        o(f"s_mov_b32 s58, {CNT_BULK}"); wg_wait(A, 58, 128, f"{name}_bw")
        o(f"s_add_u32 s48, s6, {WS_CNT + CNT_DONE}"); o("s_addc_u32 s49, s7, 0")
        o("s_cmp_lg_u32 s3, 0"); o(f"s_cbranch_scc1 L_{name}_dwb")
        o("v_lshlrev_b32 v2, 3, v0"); o("s_mov_b32 s50, 0x200000")
        A.label(f"L_{name}_dw")
        o("global_load_dwordx2 v[4:5], v2, s[48:49] sc1"); o("s_waitcnt vmcnt(0)")
        o("v_and_b32 v4, v4, v5"); o("v_cmp_eq_u32 vcc, 0, v4"); o(f"s_cbranch_vccz L_{name}_dwb")
        o("s_sleep 6"); o("s_sub_u32 s50, s50, 1"); o(f"s_cbranch_scc0 L_{name}_dw")
        A.label(f"L_{name}_dwb")
        o("s_barrier")
        ostamp(o, 1)
        o("s_cmp_lg_u32 s3, 0"); o(f"s_cbranch_scc1 L_{name}_nolast")
        o(f"s_add_u32 s59, s2, {ONE}")
        k_attn.attn_phase(A, unit_sreg=59, single=True)
        att_signal(o, 1)
        A.label(f"L_{name}_nolast")
    srd(o, sX, 52, 0, 8 * MiB); srd(o, sY, 6, WS_O, 16 * MiB)
    sDt, sTt, sKh, sTile = 4, 5, 56, 57
    o("s_and_b32 s25, s2, 7"); o("s_lshr_b32 s26, s2, 3"); o(f"s_and_b32 s{sKh}, s25, 1")
    o(f"s_lshr_b32 s{sDt}, s25, 2"); o(f"s_lshl_b32 s{sDt}, s{sDt}, 2"); o("s_and_b32 s27, s26, 3"); o(f"s_add_u32 s{sDt}, s{sDt}, s27")
    o(f"s_bfe_u32 s{sTt}, s25, 0x10001"); o(f"s_lshl_b32 s{sTt}, s{sTt}, 3"); o("s_lshr_b32 s27, s26, 2"); o(f"s_add_u32 s{sTt}, s{sTt}, s27")
    o(f"s_lshl_b32 s{sTile}, s{sTt}, 3"); o(f"s_add_u32 s{sTile}, s{sTile}, s{sDt}")
    o(f"s_lshl_b32 s{sOffX}, s{sDt}, 8"); o(f"s_lshl_b32 s25, s{sKh}, 22"); o(f"s_add_u32 s{sOffX}, s{sOffX}, s25")
    o(f"s_lshl_b32 s{sOffY}, s{sTt}, 13"); o(f"s_lshl_b32 s25, s{sKh}, 23"); o(f"s_add_u32 s{sOffY}, s{sOffY}, s25")
    dep_o = None
    if FUSE_AT:
        o(f"s_add_u32 s25, s{sKh}, 1"); o(f"s_lshl_b32 s{sY+2}, s25, 23")
        def dep_o():
            o(f"s_lshl_b32 s58, s{sTt}, 1"); o(f"s_add_u32 s58, s58, s{sKh}"); o("s_lshl_b32 s58, s58, 7"); o(f"s_add_u32 s58, s58, {CNT_AT}")
            ostamp(o, 2)
            wg_wait(A, 58, 64, f"{name}_aw")
            ostamp(o, 3)
        if not SPLIT: dep_o(); dep_o = None
    G = Gemm(A, 4, 4, False, "o")
    o(f"s_mul_i32 s{sM0[0]}, s3, {G.NIX*1024}"); o(f"s_mul_i32 s{sM0[1]}, s3, {G.NIY*1024}")
    G.setup(3, 0, 2048, 0, [1, 2, 3, 4, 5, 6], [25, 26, 27, 28])
    gen_loop3(G, sX, sY, sOffX, sOffY, sM0, sK, 32 * 2048, 128 * 1024, 64, f"L_{name}", K=LOPT.get("K", 2), R=8, opt=LOPT, dep_wait=dep_o, sTmp=35)
    o("s_barrier")
    pst(o, 1)
    E = G.vF
    keep = lambda kh: [(jx, 2 * kh + h) for h in range(2) for jx in range(4)]
    send = lambda kh: keep(kh ^ 1)
    o("v_and_b32 v1, 15, v0"); o("v_lshrrev_b32 v2, 4, v0"); o("v_and_b32 v3, 1, v2"); o("v_lshrrev_b32 v2, 1, v2")
    o("v_lshlrev_b32 v3, 4, v3"); o("v_lshl_add_u32 v3, v2, 3, v3")
    o(f"s_lshl_b32 s25, s{sDt}, 7"); o("s_and_b32 s26, s3, 1"); o("s_lshl_b32 s26, s26, 6"); o("s_add_u32 s25, s25, s26")
    o("v_add_u32 v4, s25, v3")
    o(f"s_lshl_b32 s58, s{sTt}, 7"); o("s_lshr_b32 s26, s3, 1"); o("s_lshl_b32 s26, s26, 6"); o("s_add_u32 s58, s58, s26"); o(f"s_lshl_b32 s26, s{sKh}, 5"); o("s_add_u32 s58, s58, s26")
    o("v_add_u32 v5, s58, v1")
    o("v_lshlrev_b32 v6, 11, v5"); o("v_lshl_add_u32 v6, v4, 1, v6")
    o("v_lshlrev_b32 v7, 2, v4")
    M = E + 64
    XR = E + 112
    for k, sec in enumerate((2, 3, 4)):
        o(f"s_add_u32 s44, s6, {WS_MOD + sec*4096}"); o("s_addc_u32 s45, s7, 0")
        for p in range(2):
            o(f"global_load_dwordx4 {v(M+16*k+8*p,4)}, v7, s[44:45] offset:{p*128}"); o(f"global_load_dwordx4 {v(M+16*k+8*p+4,4)}, v7, s[44:45] offset:{p*128+16}")
    for h in range(2):
        o(f"v_add_u32 v8, {h*16*2048}, v6")
        for p in range(2): o(f"global_load_dwordx4 {v(XR+8*h+4*p,4)}, v8, s[54:55] offset:{p*64}")
    o("v_mov_b32 v17, v1"); o("v_mov_b32 v18, v3"); o("s_mov_b32 s62, s25")
    exchange(A, G, keep, send, sTile, sKh, WS_XCH, CNT_XO, name + "x")
    pst(o, 2)
    for h in range(2):
        for p in range(2):
            a_, b_ = E + 4 * (h * 4 + 2 * p), E + 4 * (h * 4 + 2 * p + 1)
            for r in range(4): o(f"v_permlane16_swap_b32 v{a_+r}, v{b_+r}")
    o("v_mov_b32 v1, v17"); o("v_mov_b32 v3, v18"); o("s_mov_b32 s25, s62")
    o("s_waitcnt vmcnt(0)")
    U = E + 128
    o(f"s_add_u32 s44, s6, {WS_X1}"); o("s_addc_u32 s45, s7, 0")
    for h in range(2):
        o(f"v_add_u32 v8, {h*16*2048}, v6")
        for p in range(2):
            Y = E + 4 * (h * 4 + 2 * p)
            unpack8(o, U, XR + 8 * h + 4 * p)
            for e in range(8): o(f"v_fma_f32 v{Y+e}, v{Y+e}, v{M+8*p+e}, v{U+e}")
            P = XR + 8 * h + 4 * p
            for d in range(4): o(f"v_cvt_pk_bf16_f32 v{P+d}, v{Y+2*d}, v{Y+2*d+1}")
            o(f"global_store_dwordx4 v8, {v(P,4)}, s[44:45] offset:{p*64}" + (" sc1" if FUSE else ""))
            unpack8(o, Y, P)
    S1, S2, t_ = U, U + 2, U + 4
    for h in range(2):
        Y = E + 16 * h
        o(f"v_add_f32 v{S1+h}, v{Y}, v{Y+1}")
        for e in range(2, 16): o(f"v_add_f32 v{S1+h}, v{S1+h}, v{Y+e}")
        o(f"v_mul_f32 v{S2+h}, v{Y}, v{Y}")
        for e in range(1, 16): o(f"v_fmac_f32 v{S2+h}, v{Y+e}, v{Y+e}")
    for x in (S1, S1 + 1, S2, S2 + 1):
        for sw in ("16", "32"):
            o(f"v_mov_b32 v{t_}, v{x}"); o(f"v_permlane{sw}_swap_b32 v{x}, v{t_}"); o(f"v_add_f32 v{x}, v{x}, v{t_}")
    if SENT:
        o("s_lshr_b32 s59, s58, 5")
        o(f"s_lshl_b32 s26, s59, 12"); o(f"s_lshl_b32 s27, s{sDt}, 1"); o("s_and_b32 s28, s3, 1"); o("s_add_u32 s27, s27, s28"); o("s_lshl_b32 s27, s27, 8")
        o(f"s_add_u32 s46, s6, {WS_STATP}"); o("s_addc_u32 s47, s7, 0"); o("s_add_u32 s46, s46, s26"); o("s_addc_u32 s47, s47, 0")
        o("v_lshlrev_b32 v9, 3, v1"); o("v_add_u32 v14, s27, v9")
        for h in range(2):
            o(f"v_mov_b32 v{U+8+2*h}, v{S1+h}"); o(f"v_mov_b32 v{U+9+2*h}, v{S2+h}")
        o("s_mov_b64 exec, 0xffff")
        for h in range(2): o(f"global_store_dwordx2 v14, {v(U+8+2*h,2)}, s[46:47] offset:{h*128} sc1")
        o("s_mov_b64 exec, -1")
        pst(o, 3)
        o("v_lshrrev_b32 v15, 4, v0"); o("v_lshlrev_b32 v15, 10, v15"); o("v_add_u32 v15, v15, v9")
        PS = E + 144 - 0
        PS = E + 32
        o("s_mov_b32 s50, 0x200000")
        A.label(f"L_{name}_stp")
        for h in range(2):
            for k_ in range(4): o(f"global_load_dwordx2 {v(PS+16*h+2*k_+0,2) if False else v(PS+8*h+2*k_,2)}, v15, s[46:47] offset:{k_*256+h*128} sc1")
        o("s_waitcnt vmcnt(0)")
        regs = list(range(PS, PS + 16))
        o(f"v_max3_u32 v2, v{regs[0]}, v{regs[1]}, v{regs[2]}")
        k_ = 3
        while k_ + 1 < len(regs):
            o(f"v_max3_u32 v2, v2, v{regs[k_]}, v{regs[k_+1]}"); k_ += 2
        if k_ < len(regs): o(f"v_max_u32 v2, v2, v{regs[k_]}")
        o("v_cmp_eq_u32 vcc, -1, v2"); o(f"s_cbranch_vccz L_{name}_stok")
        o("s_sleep 1"); o("s_sub_u32 s50, s50, 1"); o(f"s_cbranch_scc0 L_{name}_stp")
        A.label(f"L_{name}_stok")
        for h in range(2):
            b_ = PS + 8 * h
            o(f"v_add_f32 v{U+8+2*h}, v{b_}, v{b_+2}"); o(f"v_add_f32 v{U+9+2*h}, v{b_+1}, v{b_+3}")
            o(f"v_add_f32 v{b_+4}, v{b_+4}, v{b_+6}"); o(f"v_add_f32 v{b_+5}, v{b_+5}, v{b_+7}")
            o(f"v_add_f32 v{U+8+2*h}, v{U+8+2*h}, v{b_+4}"); o(f"v_add_f32 v{U+9+2*h}, v{U+9+2*h}, v{b_+5}")
        for x in range(U + 8, U + 12):
            for sw in ("16", "32"):
                o(f"v_mov_b32 v{t_}, v{x}"); o(f"v_permlane{sw}_swap_b32 v{x}, v{t_}"); o(f"v_add_f32 v{x}, v{x}, v{t_}")
    else:
        o(f"s_add_u32 s46, s6, {WS_STAT}"); o("s_addc_u32 s47, s7, 0")
        o("v_lshlrev_b32 v9, 3, v5")
        o("s_mov_b64 exec, 0xffff")
        for h in range(2):
            o(f"global_atomic_add_f32 v9, v{S1+h}, s[46:47] offset:{h*128}")
            o(f"global_atomic_add_f32 v9, v{S2+h}, s[46:47] offset:{h*128+4}")
        o("s_mov_b64 exec, -1")
        o("s_waitcnt vmcnt(0)")
        pst(o, 3)
        o(f"s_add_u32 s48, s6, {WS_CNT}"); o("s_addc_u32 s49, s7, 0")
        o("s_lshr_b32 s59, s58, 5"); o("s_lshl_b32 s26, s59, 7"); o(f"s_add_u32 s26, s26, {CNT_ST}")
        o("v_mov_b32 v14, s26"); o("v_mov_b32 v15, 1")
        o("s_mov_b64 exec, 1"); o("global_atomic_add v14, v15, s[48:49]"); o("s_mov_b64 exec, -1")
        o("s_mov_b32 s50, 0x200000")
        poll_ge(A, 48, 14, 16, f"{name}_st", 15, 50, sleep=6)
        for h in range(2): o(f"global_load_dwordx2 {v(S1+2*h if False else U+8+2*h,2)}, v9, s[46:47] offset:{h*128} sc1")
        o("s_waitcnt vmcnt(0)")
    pst(o, 4)
    for k in (2, ):
        for e in range(16): o(f"v_add_f32 v{M+32+e}, 1.0, v{M+32+e}")
    RS = 128 + 32
    o("s_lshl_b32 s26, s3, 13")
    o(f"v_mul_u32_u24 v10, {RS}, v1"); o("v_lshl_add_u32 v10, v3, 1, v10"); o("v_add_u32 v10, s26, v10")
    for h in range(2):
        mu, sq = U + 8 + 2 * h, U + 9 + 2 * h
        o(f"v_mul_f32 v{mu}, {fbits(1/1024)}, v{mu}")
        o(f"v_mul_f32 v{sq}, {fbits(1/1024)}, v{sq}")
        o(f"v_fma_f32 v{sq}, -v{mu}, v{mu}, v{sq}")
        o(f"v_max_f32 v{sq}, 0, v{sq}")
        o(f"v_add_f32 v{sq}, {fbits(1e-5)}, v{sq}")
        o(f"v_rsq_f32 v{sq}, v{sq}")
        for p in range(2):
            Y = E + 4 * (h * 4 + 2 * p)
            for e in range(8):
                o(f"v_sub_f32 v{Y+e}, v{Y+e}, v{mu}"); o(f"v_mul_f32 v{Y+e}, v{Y+e}, v{sq}")
                o(f"v_fma_f32 v{Y+e}, v{Y+e}, v{M+32+8*p+e}, v{M+16+8*p+e}")
            P = XR + 8 * h + 4 * p
            for d in range(4): o(f"v_cvt_pk_bf16_f32 v{P+d}, v{Y+2*d}, v{Y+2*d+1}")
            o(f"ds_write_b128 v10, {v(P,4)} offset:{h*16*RS + p*64}")
    o("s_waitcnt lgkmcnt(0)")
    o("v_lshrrev_b32 v2, 4, v0"); o("v_lshrrev_b32 v11, 2, v1"); o("v_lshl_add_u32 v11, v2, 3, v11"); o(f"v_mul_u32_u24 v11, {RS}, v11")
    o("v_and_b32 v12, 3, v1"); o("v_lshl_add_u32 v11, v12, 3, v11"); o("v_add_u32 v11, s26, v11")
    for j in range(4):
        o(f"ds_read_b64_tr_b16 {v(XR+4*j,2)}, v11 offset:{j*32}"); o(f"ds_read_b64_tr_b16 {v(XR+4*j+2,2)}, v11 offset:{j*32+4*RS}")
    gfun(o, 12, 1, 13); o("v_xor_b32 v12, v12, v2"); o("v_lshl_add_u32 v12, v1, 2, v12"); o("v_lshlrev_b32 v12, 4, v12")
    o("s_lshl_b32 s26, s59, 16"); o(f"s_lshl_b32 s27, s25, 6"); o("s_add_u32 s26, s26, s27"); o(f"s_add_u32 s26, s26, {WS_H2T}")
    o("v_add_u32 v12, s26, v12")
    o("s_waitcnt lgkmcnt(0)")
    for j in range(4): o(f"global_store_dwordx4 v12, {v(XR+4*j,4)}, s[6:7] offset:{j*1024}" + (" sc1" if FUSE else ""))
    o("s_waitcnt vmcnt(0)")
    if FUSE:
        o("s_barrier")
        o("s_cmp_lg_u32 s3, 0"); o(f"s_cbranch_scc1 L_{name}_nh2")
        o(f"s_add_u32 s48, s6, {WS_CNT}"); o("s_addc_u32 s49, s7, 0")
        o(f"s_lshl_b32 s26, s{sDt}, 7"); o(f"s_add_u32 s26, s26, {CNT_H2}")
        o("v_mov_b32 v14, s26"); o("v_mov_b32 v15, 1"); o("s_mov_b64 exec, 1"); o("global_atomic_add v14, v15, s[48:49]"); o("s_mov_b64 exec, -1")
        A.label(f"L_{name}_nh2")
        ostamp(o, 4)
        o("s_branch T_g1")
        A.label(f"L_{name}_end"); o("s_endpgm")
        return A.finish()
    pend(o, 0)
    A.label(f"L_{name}_end"); o("s_endpgm")
    return kernel_head(name) + A.finish() + kernel_desc(name, max(G.vEnd2, E + 144), G.nacc), 8 * G.SB

def gen_g2s(name="g2s_kernel"):
    A = Asm(); o = A
    head(o, name, [(52, KA_W2), (54, KA_B2), (60, KA_OUT)], first=not FUSE)
    srd(o, sX, 52, 0, 3584 * 4096); srd(o, sY, 6, WS_U, 112 * 64 * 1024)
    sSt_, sDt, sKh, sTile = 4, 5, 56, 57
    o("s_and_b32 s25, s2, 7"); o("s_lshr_b32 s26, s2, 3"); o(f"s_and_b32 s{sKh}, s25, 1")
    o(f"s_lshr_b32 s{sDt}, s25, 2"); o(f"s_lshl_b32 s{sDt}, s{sDt}, 2"); o("s_and_b32 s27, s26, 3"); o(f"s_add_u32 s{sDt}, s{sDt}, s27")
    o(f"s_bfe_u32 s{sSt_}, s25, 0x10001"); o(f"s_lshl_b32 s{sSt_}, s{sSt_}, 3"); o("s_lshr_b32 s27, s26, 2"); o(f"s_add_u32 s{sSt_}, s{sSt_}, s27")
    o(f"s_lshl_b32 s{sTile}, s{sSt_}, 3"); o(f"s_add_u32 s{sTile}, s{sTile}, s{sDt}")
    o(f"s_lshl_b32 s{sOffX}, s{sSt_}, 8"); o(f"s_mul_i32 s25, s{sKh}, {1792*4096}"); o(f"s_add_u32 s{sOffX}, s{sOffX}, s25")
    o(f"s_lshl_b32 s{sOffY}, s{sDt}, 13"); o(f"s_mul_i32 s25, s{sKh}, {56*65536}"); o(f"s_add_u32 s{sOffY}, s{sOffY}, s25")
    dep_u = None
    if FUSE:
        o(f"s_add_u32 s25, s{sKh}, 1"); o(f"s_mul_i32 s{sY+2}, s25, {56*65536}")
        def dep_u():
            o(f"s_lshl_b32 s58, s{sDt}, 1"); o(f"s_add_u32 s58, s58, s{sKh}"); o("s_lshl_b32 s58, s58, 7"); o(f"s_add_u32 s58, s58, {CNT_U}")
            ostamp(o, 5)
            wg_wait(A, 58, 14, f"{name}_uw")
            ostamp(o, 6)
        if not SPLIT: dep_u(); dep_u = None
    G = Gemm(A, 4, 4, True, "h")
    o(f"s_mul_i32 s{sM0[0]}, s3, {G.NIX*1024}"); o(f"s_mul_i32 s{sM0[1]}, s3, {G.NIY*1024}")
    G.setup(3, 0, 4096, 0, [1, 2, 3, 4, 5, 6], [25, 26, 27, 28])
    gen_loop3(G, sX, sY, sOffX, sOffY, sM0, sK, 32 * 4096, 64 * 1024, 56, f"L_{name}", K=2, R=8, dep_wait=dep_u, sTmp=35)
    pst(o, 1)
    E = G.vF
    keep = lambda kh: [(2 * kh + h, jy) for h in range(2) for jy in range(4)]
    send = lambda kh: keep(kh ^ 1)
    o("v_and_b32 v1, 15, v0"); o("v_lshrrev_b32 v2, 4, v0"); o("v_and_b32 v3, 1, v2"); o("v_lshrrev_b32 v2, 1, v2")
    o("v_lshlrev_b32 v3, 4, v3"); o("v_lshl_add_u32 v3, v2, 3, v3")
    o(f"s_lshl_b32 s25, s{sDt}, 7"); o("s_lshr_b32 s26, s3, 1"); o("s_lshl_b32 s26, s26, 6"); o("s_add_u32 s25, s25, s26")
    o("v_add_u32 v4, s25, v3")
    o(f"s_lshl_b32 s58, s{sSt_}, 7"); o("s_and_b32 s26, s3, 1"); o("s_lshl_b32 s26, s26, 6"); o("s_add_u32 s58, s58, s26"); o(f"s_lshl_b32 s26, s{sKh}, 5"); o("s_add_u32 s58, s58, s26")
    o("v_add_u32 v5, s58, v1")
    o("v_lshlrev_b32 v6, 11, v5"); o("v_lshl_add_u32 v6, v4, 1, v6")
    o("v_lshlrev_b32 v7, 2, v4")
    M = E + 64; XR = E + 112; B2 = E + 100
    o(f"s_add_u32 s44, s6, {WS_MOD + 5*4096}"); o("s_addc_u32 s45, s7, 0")
    for p in range(2):
        o(f"global_load_dwordx4 {v(M+8*p,4)}, v7, s[44:45] offset:{p*128}"); o(f"global_load_dwordx4 {v(M+8*p+4,4)}, v7, s[44:45] offset:{p*128+16}")
    o(f"s_add_u32 s44, s6, {WS_X1}"); o("s_addc_u32 s45, s7, 0")
    o("v_lshlrev_b32 v9, 1, v5")
    for h in range(2):
        o(f"v_add_u32 v8, {h*16*2048}, v6")
        for p in range(2): o(f"global_load_dwordx4 {v(XR+8*h+4*p,4)}, v8, s[44:45] offset:{p*64}")
        o(f"global_load_ushort v{B2+h}, v9, s[54:55] offset:{h*32}")
    exchange(A, G, keep, send, sTile, sKh, WS_XCH + 8 * MiB, CNT_XG, name + "x")
    pst(o, 2)
    for h in range(2):
        for p in range(2):
            a_, b_ = E + 4 * (h * 4 + 2 * p), E + 4 * (h * 4 + 2 * p + 1)
            for r in range(4): o(f"v_permlane16_swap_b32 v{a_+r}, v{b_+r}")
    o("s_waitcnt vmcnt(0)")
    U = E + 128
    for h in range(2):
        o(f"v_lshlrev_b32 v{B2+h}, 16, v{B2+h}")
        o(f"v_add_u32 v8, {h*16*2048}, v6")
        for p in range(2):
            Y = E + 4 * (h * 4 + 2 * p)
            unpack8(o, U, XR + 8 * h + 4 * p)
            for e in range(8): o(f"v_add_f32 v{Y+e}, v{Y+e}, v{B2+h}")
            for e in range(8): o(f"v_fma_f32 v{Y+e}, v{Y+e}, v{M+8*p+e}, v{U+e}")
            P = XR + 8 * h + 4 * p
            for d in range(4): o(f"v_cvt_pk_bf16_f32 v{P+d}, v{Y+2*d}, v{Y+2*d+1}")
            o(f"global_store_dwordx4 v8, {v(P,4)}, s[60:61] offset:{p*64}")
    o("s_waitcnt vmcnt(0)")
    if FUSE:
        ostamp(o, 7)
        o("s_waitcnt vmcnt(0)")
        o("s_endpgm")
        return A.finish()
    pend(o, 1)
    A.label(f"L_{name}_end"); o("s_endpgm")
    return kernel_head(name) + A.finish() + kernel_desc(name, max(G.vEnd2, E + 144), G.nacc), 8 * G.SB


def gen_attn_early(uearly):
    import k_attn, re
    A = Asm(); o = A
    for rnd in range(2):
        o("s_lshl_b32 s59, s62, 2"); o("s_add_u32 s59, s59, s3"); o("s_lshl_b32 s59, s59, 1"); o(f"s_add_u32 s59, s59, {rnd*1024}")
        o(f"s_cmp_ge_u32 s59, {uearly}"); o(f"s_cbranch_scc1 L_ae_{rnd}")
        k_attn.attn_phase(A, unit_sreg=59)
        att_signal(o, 2)
        A.label(f"L_ae_{rnd}")
    return A.finish()

def gen_tail_text(uearly):
    import k_gemms
    global FUSE, FUSE_AT, ONE
    FUSE = True; k_gemms.FUSE = True; FUSE_AT = True; ONE = uearly
    a_ = gen_opln(name="opln"); b_ = k_gemms.gen_g1(name="g1f"); c_ = gen_g2s(name="g2f")
    FUSE = False; k_gemms.FUSE = False; FUSE_AT = False; ONE = False
    return "T_last:\n" + a_ + "T_g1:\n" + b_ + "T_g2:\n" + c_

def gen_tail(name="tail_kernel", with_attn=False):
    import k_gemms
    global FUSE, FUSE_AT
    FUSE = True; k_gemms.FUSE = True; FUSE_AT = with_attn
    a_ = gen_opln(name="opln")
    b_ = k_gemms.gen_g1(name="g1f")
    c_ = gen_g2s(name="g2f")
    FUSE = False; k_gemms.FUSE = False; FUSE_AT = False
    return kernel_head(name) + a_ + "T_g1:\n" + b_ + "T_g2:\n" + c_ + (kernel_desc(name, 196, 128) if with_attn else kernel_desc(name, 164, 64)), 131072
```

```python
from asmlib import *
from layout import *

class Gemm:
    def __init__(self, A, NX, NY, swap, pfx, acc_agpr=True, accbase=0):
        self.accbase = accbase
        self.A = A; self.NX = NX; self.NY = NY; self.swap = swap; self.pfx = pfx
        self.XW = 2 * NX * 16; self.YH = 2 * NY * 16
        self.RB = 2 * self.XW
        self.NIX = self.XW // 64; self.NIY = self.YH // 64
        self.XB = 32 * self.RB; self.YB = self.YH * 64
        self.SB = self.XB + self.YB
        self.NDMA = self.NIX + self.NIY
        self.nacc = NX * NY * 4
        r = 8
        self.vXr = r; r += NX
        self.vYr = r; r += 1
        self.vXd = r; r += self.NIX
        self.vYd = r; r += self.NIY
        r = (r + 3) // 4 * 4
        self.vF = r
        self.FS = (NX + NY) * 4
        r += 2 * self.FS
        self.vEnd = r
    def acc(self, jx, jy):
        return a(self.accbase + (jx * self.NY + jy) * 4, 4)
    def accr(self, jx, jy): return self.accbase + (jx * self.NY + jy) * 4
    def fX(self, ph, j): return self.vF + ph * self.FS + 4 * j
    def fY(self, ph, j): return self.vF + ph * self.FS + 4 * (self.NX + j)

    def setup(self, sW, vL, ldx, ldy, T, sTmp):
        o = self.A; NX, NY = self.NX, self.NY
        vi, vg, t0, t1, t2, t3 = T[:6]
        s0, s1 = sTmp[:2]
        o(f"v_and_b32 v{vi}, 15, v{vL}")
        o(f"v_lshrrev_b32 v{vg}, 4, v{vL}")
        o(f"v_lshrrev_b32 v{t0}, 2, v{vi}")
        o(f"v_and_b32 v{t1}, 1, v{vg}")
        o(f"v_lshrrev_b32 v{t2}, 1, v{vg}")
        if self.XW == 256:
            o(f"v_lshlrev_b32 v{t3}, 3, v{t0}")
            o(f"v_lshl_add_u32 v{t3}, v{t2}, 2, v{t3}")
            o(f"v_add_u32 v{t3}, v{t3}, v{t1}")
            o(f"v_lshl_or_b32 v{t0}, v{t1}, 2, v{t0}")
        elif self.XW == 128:
            o(f"v_lshl_add_u32 v{t3}, v{vg}, 3, v{t0}")
            o(f"v_lshl_or_b32 v{t0}, v{t1}, 2, v{t0}")
        else:
            o(f"v_lshlrev_b32 v{t3}, 4, v{t2}")
            o(f"v_lshl_add_u32 v{t3}, v{t0}, 1, v{t3}")
            o(f"v_add_u32 v{t3}, v{t3}, v{t1}")
        sh = self.RB.bit_length() - 1
        o(f"v_lshlrev_b32 v{t3}, {sh}, v{t3}")
        o(f"v_and_b32 v{t1}, 3, v{vi}")
        o(f"v_lshl_add_u32 v{t3}, v{t1}, 3, v{t3}")
        o(f"s_and_b32 s{s0}, s{sW}, 1")
        o(f"s_mul_i32 s{s0}, s{s0}, {NX}")
        for j in range(NX):
            o(f"s_add_u32 s{s1}, s{s0}, {j}")
            o(f"v_xor_b32 v{t1}, s{s1}, v{t0}")
            o(f"v_lshl_add_u32 v{self.vXr+j}, v{t1}, 5, v{t3}")
        o(f"v_lshrrev_b32 v{t0}, 2, v{vi}")
        o(f"v_lshrrev_b32 v{t1}, 1, v{t0}")
        o(f"v_and_b32 v{t2}, 1, v{t0}")
        o(f"v_xor_b32 v{t2}, v{t2}, v{t1}")
        o(f"v_lshl_or_b32 v{t2}, v{t2}, 1, v{t1}")
        o(f"v_xor_b32 v{t2}, v{t2}, v{vg}")
        o(f"v_lshlrev_b32 v{t2}, 4, v{t2}")
        o(f"v_lshl_add_u32 v{t2}, v{vi}, 6, v{t2}")
        o(f"s_lshr_b32 s{s0}, s{sW}, 1")
        o(f"s_mul_i32 s{s0}, s{s0}, {NY*16*64}")
        o(f"s_add_u32 s{s0}, s{s0}, {self.XB}")
        o(f"v_add_u32 v{self.vYr}, s{s0}, v{t2}")
        ppr = self.RB // 16
        lg = ppr.bit_length() - 1
        o(f"v_lshrrev_b32 v{t0}, {lg}, v{vL}")
        o(f"v_and_b32 v{t1}, {ppr-1}, v{vL}")
        if self.XW == 256:
            o(f"v_lshlrev_b32 v{t2}, 3, v{t0}")
            o(f"v_add_u32 v{t2}, s{sW}, v{t2}")
            o(f"v_lshlrev_b32 v{t3}, 2, v{t0}")
            o(f"v_or_b32 v{t3}, s{sW}, v{t3}")
            toff = [0, 4, 16, 20]
        elif self.XW == 128:
            o(f"s_and_b32 s{s0}, s{sW}, 1")
            o(f"s_lshl_b32 s{s1}, s{s0}, 3")
            o(f"v_add_u32 v{t2}, s{s1}, v{t0}")
            o(f"s_lshr_b32 s{s1}, s{sW}, 1"); o(f"s_lshl_b32 s{s1}, s{s1}, 4")
            o(f"v_add_u32 v{t2}, s{s1}, v{t2}")
            o(f"s_lshl_b32 s{s0}, s{s0}, 2")
            o(f"v_or_b32 v{t3}, s{s0}, v{t0}")
            toff = [0, 4]
        else:
            o(f"v_lshrrev_b32 v{t3}, 1, v{t0}")
            o(f"v_and_b32 v{t2}, 1, v{t0}")
            o(f"v_lshl_add_u32 v{t2}, v{t2}, 3, v{t3}")
            o(f"s_and_b32 s{s0}, s{sW}, 1"); o(f"s_lshl_b32 s{s0}, s{s0}, 2")
            o(f"s_lshr_b32 s{s1}, s{sW}, 1"); o(f"s_lshl_b32 s{s1}, s{s1}, 4")
            o(f"s_add_u32 s{s0}, s{s0}, s{s1}")
            o(f"v_add_u32 v{t2}, s{s0}, v{t2}")
            toff = [0]
        o(f"v_lshrrev_b32 v{vi}, 1, v{t1}")
        o(f"v_xor_b32 v{vi}, v{vi}, v{t3}")
        o(f"v_lshlrev_b32 v{vi}, 5, v{vi}")
        o(f"v_and_b32 v{t1}, 1, v{t1}")
        o(f"v_lshl_or_b32 v{vi}, v{t1}, 4, v{vi}")
        o(f"s_mov_b32 s{s0}, {ldx}")
        o(f"v_mul_lo_u32 v{t2}, v{t2}, s{s0}")
        o(f"v_add_u32 v{self.vXd}, v{t2}, v{vi}")
        for t in range(1, self.NIX):
            o(f"v_add_u32 v{self.vXd+t}, {toff[t]*ldx}, v{self.vXd}")
        o(f"v_lshlrev_b32 v{t0}, 4, v{vL}")
        o(f"s_mul_i32 s{s0}, s{sW}, {self.NIY*1024}")
        o(f"v_add_u32 v{self.vYd}, s{s0}, v{t0}")
        for t in range(1, self.NIY):
            o(f"v_add_u32 v{self.vYd+t}, {t*1024}, v{self.vYd}")

    def dma(self, stage, sSrdX, sSrdY, sOffX, sOffY, sM0base):
        L = []
        for t in range(self.NIX):
            L.append([f"s_add_u32 m0, s{sM0base[0]}, {stage*self.SB + t*1024}",
                      f"buffer_load_dwordx4 v{self.vXd+t}, {s(sSrdX,4)}, s{sOffX} offen lds"])
        for t in range(self.NIY):
            L.append([f"s_add_u32 m0, s{sM0base[1]}, {stage*self.SB + self.XB + t*1024}",
                      f"buffer_load_dwordx4 v{self.vYd+t}, {s(sSrdY,4)}, s{sOffY} offen lds"])
        return L
    def reads(self, stage, ph, hi):
        L = []
        base = stage * self.SB
        def addr(reg, off):
            if off <= 65535 - 1024: return f"v{reg} offset:{off}"
            return None
        for j in range(max(self.NX, self.NY)):
            if j < self.NY:
                L.append(("Y", j, base + j * 1024))
            if j < self.NX:
                L.append(("X", j, base));
        return L

def gen_loop(G, sSrdX, sSrdY, sOffX, sOffY, sM0, sKcnt, stepX, stepY, niter, label, sW=None, stagger=False, opt=None, sSt=None, pf=None, dep_wait=None):
    opt = opt or {}
    o = G.A; NX, NY = G.NX, G.NY
    S = opt.get("S", 4)
    SB = G.SB
    sRd, sDm, sTm = sSt
    vC = G.vEnd
    G.vEnd2 = vC + NX + 1
    def rd(ph):
        L = []
        for j in range(max(NX, NY)):
            if j < NY: L.append(f"ds_read_b128 {v(G.fY(ph,j),4)}, v{vC+NX} offset:{j*1024}")
            if j < NX:
                L.append(f"ds_read_b64_tr_b16 {v(G.fX(ph,j),2)}, v{vC+j}")
                L.append(f"ds_read_b64_tr_b16 {v(G.fX(ph,j)+2,2)}, v{vC+j} offset:1024")
        return L
    def setaddr():
        return [f"v_add_u32 v{vC+j}, s{sRd}, v{G.vXr+j}" for j in range(NX)] + [f"v_add_u32 v{vC+NX}, s{sRd}, v{G.vYr}"]
    def adv(sreg):
        return [f"s_add_u32 s{sreg}, s{sreg}, {SB}", f"s_cmp_eq_u32 s{sreg}, {S*SB}", f"s_cselect_b32 s{sreg}, 0, s{sreg}"]
    def dma_groups():
        L = []
        for t in range(G.NIX):
            L.append([f"s_add_u32 m0, s{sTm}, {t*1024}", f"buffer_load_dwordx4 v{G.vXd+t}, {s(sSrdX,4)}, s{sOffX} offen lds"])
        for t in range(G.NIY):
            L.append([f"s_add_u32 m0, s{sTm+1}, {t*1024}", f"buffer_load_dwordx4 v{G.vYd+t}, {s(sSrdY,4)}, s{sOffY} offen lds"])
        return L
    def dma_pre():
        return [f"s_add_u32 s{sTm}, s{sM0[0]}, s{sDm}", f"s_add_u32 s{sTm+1}, s{sM0[1]}, s{sDm}"]
    def dma_post():
        return [f"s_add_u32 s{sOffX}, s{sOffX}, {stepX}", f"s_add_u32 s{sOffY}, s{sOffY}, {stepY}"] + adv(sDm)
    def mf(jx, jy, ph, first):
        c = "0" if first else G.acc(jx, jy)
        if G.swap: return f"v_mfma_f32_16x16x32_bf16 {G.acc(jx,jy)}, {v(G.fY(ph,jy),4)}, {v(G.fX(ph,jx),4)}, {c}"
        return f"v_mfma_f32_16x16x32_bf16 {G.acc(jx,jy)}, {v(G.fX(ph,jx),4)}, {v(G.fY(ph,jy),4)}, {c}"
    NPF = 1 if pf else 0
    def pf_ins():
        return [f"buffer_load_dword v{pf['vd']}, v{pf['vo']}, {s(pf['srd'],4)}, s{pf['off']} offen", f"s_add_u32 s{pf['off']}, s{pf['off']}, s{pf['step']}"]
    o(f"s_add_u32 s{sM0[1]}, s{sM0[1]}, {G.XB}")
    o(f"s_mov_b32 s{sDm}, 0"); o(f"s_mov_b32 s{sRd}, 0")
    split = dep_wait is not None
    if split:
        for st in range(S):
            for x in dma_pre(): o(x)
            for g in dma_groups()[:G.NIX]:
                for x in g: o(x)
            o(dma_post()[0])
            for x in adv(sDm): o(x)
        dep_wait()
        for st in range(S):
            for x in dma_pre(): o(x)
            for g in dma_groups()[G.NIX:]:
                for x in g: o(x)
            o(dma_post()[1])
            for x in adv(sDm): o(x)
    else:
        for st in range(S):
            for x in dma_pre(): o(x)
            for g in dma_groups():
                for x in g: o(x)
            for x in dma_post(): o(x)
    npro = 0
    if pf:
        npro = pf['D']
        for d in range(npro):
            for x in pf_ins(): o(x)
    for x in setaddr(): o(x)
    o(f"s_waitcnt vmcnt({min(63, (G.NIY if split else G.NDMA)*(S-1) + npro)})")
    o("s_barrier")
    for x in rd(0): o(x)
    for x in adv(sRd): o(x)
    for x in setaddr(): o(x)
    for x in dma_pre(): o(x)
    o(f"s_waitcnt vmcnt({min(63, (G.NIY if split else G.NDMA)*(S-2) + npro)}) lgkmcnt(0)")
    o("s_barrier")
    def iteration(ph, first, itn=99):
        mfl = [mf(jx, jy, ph, first) for jy in range(NY) for jx in range(NX)]
        rl = rd(ph ^ 1)
        dl = dma_groups()
        if opt.get('nodma'): dl = []
        if opt.get('noread'): rl = []
        n = len(mfl)
        pre = [[] for _ in range(n)]; slots = [[] for _ in range(n)]
        used = set()
        per = max(1, n // max(1, len(dl)))
        for k, g in enumerate(dl):
            p = min(n - 1, k * per + 2)
            pre[p].append(g[0]); slots[p].append(g[1]); used.add(p)
        nr = len(rl); rspan = opt.get("rspan", n * 3 // 4)
        for k, x in enumerate(rl):
            p = min(n - 1, 1 + (k * rspan) // max(1, nr))
            while p in used and p + 1 < n: p += 1
            slots[p].append(x)
        lastr = max([k for k in range(n) if any(x.startswith("ds_read") for x in slots[k])] + [0])
        lastd = max([k for k in range(n) if any(x.startswith("buffer_load") for x in slots[k])] + [0])
        tail1 = [adv(sRd)] + [[x] for x in setaddr()]
        p = lastr + 1
        for k_, g in enumerate(tail1):
            slots[min(p, n - 1)] += g
            if n - p > len(tail1) - k_ or True: p += 1
        dp = dma_post()
        tail2 = [dp[:2], dp[2:], dma_pre()]
        p = lastd + 1
        for g in tail2:
            slots[min(p, n - 1)] += g; p += 1
        if pf: slots[n - 1] += pf_ins()
        for k in range(n):
            for x in pre[k]: o(x)
            o(mfl[k])
            for x in slots[k]: o(x)
        extra = 0
        if pf: extra = (npro + itn + 1) if itn < S - 2 else (S - 1)
        allowed = G.NDMA * (S - 2) + extra
        if split:
            t_ = min(itn, 2)
            allowed = min(allowed, max(0, S - 3 - t_) * G.NIY + (t_ + 1) * G.NDMA)
        o(f"s_waitcnt vmcnt({min(63, allowed)}) lgkmcnt(0)")
        if not opt.get('nobar'): o("s_barrier")
    iteration(0, not opt.get('accum'), 0); iteration(1, False, 1)
    if niter > 2:
        o(f"s_mov_b32 s{sKcnt}, {niter//2 - 1}")
        o.label(f"{label}_loop")
        iteration(0, False); iteration(1, False)
        o(f"s_sub_u32 s{sKcnt}, s{sKcnt}, 1")
        o(f"s_cmp_lg_u32 s{sKcnt}, 0")
        o(f"s_cbranch_scc1 {label}_loop")
    o("s_waitcnt vmcnt(0)")

def gen_loop2(G, sSrdX, sSrdY, sOffX, sOffY, sM0, sKcnt, stepX, stepY, niter, label, K=4, R=12, sSt=None, opt=None):
    opt = opt or {}
    o = G.A; NX, NY = G.NX, G.NY
    SB = G.SB
    sRd, sDm, sTm = sSt
    FS = G.FS
    vF = G.vF
    vC = vF + 4 * FS
    G.vEnd2 = vC + NX + 1
    fX = lambda ph, j: vF + ph * FS + 4 * j
    fY = lambda ph, j: vF + ph * FS + 4 * (NX + j)
    def rd(ph):
        L = []
        for j in range(max(NX, NY)):
            if j < NY: L.append(f"ds_read_b128 {v(fY(ph,j),4)}, v{vC+NX} offset:{j*1024}")
            if j < NX:
                L.append(f"ds_read_b64_tr_b16 {v(fX(ph,j),2)}, v{vC+j}")
                L.append(f"ds_read_b64_tr_b16 {v(fX(ph,j)+2,2)}, v{vC+j} offset:1024")
        return L
    NRD = 2 * NX + NY
    def setaddr():
        return [f"v_add_u32 v{vC+j}, s{sRd}, v{G.vXr+j}" for j in range(NX)] + [f"v_add_u32 v{vC+NX}, s{sRd}, v{G.vYr}"]
    def adv(sreg):
        return [f"s_add_u32 s{sreg}, s{sreg}, {SB}", f"s_cmp_eq_u32 s{sreg}, {R*SB}", f"s_cselect_b32 s{sreg}, 0, s{sreg}"]
    def dma_groups():
        L = []
        for t in range(G.NIX):
            L.append([f"s_add_u32 m0, s{sTm}, {t*1024}", f"buffer_load_dwordx4 v{G.vXd+t}, {s(sSrdX,4)}, s{sOffX} offen lds"])
        for t in range(G.NIY):
            L.append([f"s_add_u32 m0, s{sTm+1}, {t*1024}", f"buffer_load_dwordx4 v{G.vYd+t}, {s(sSrdY,4)}, s{sOffY} offen lds"])
        return L
    dma_pre = lambda: [f"s_add_u32 s{sTm}, s{sM0[0]}, s{sDm}", f"s_add_u32 s{sTm+1}, s{sM0[1]}, s{sDm}"]
    dma_post = lambda: [f"s_add_u32 s{sOffX}, s{sOffX}, {stepX}", f"s_add_u32 s{sOffY}, s{sOffY}, {stepY}"] + adv(sDm)
    def mf(jx, jy, ph, first):
        c = "0" if first else G.acc(jx, jy)
        if G.swap: return f"v_mfma_f32_16x16x32_bf16 {G.acc(jx,jy)}, {v(fY(ph,jy),4)}, {v(fX(ph,jx),4)}, {c}"
        return f"v_mfma_f32_16x16x32_bf16 {G.acc(jx,jy)}, {v(fX(ph,jx),4)}, {v(fY(ph,jy),4)}, {c}"
    o(f"s_add_u32 s{sM0[1]}, s{sM0[1]}, {G.XB}")
    o(f"s_mov_b32 s{sDm}, 0"); o(f"s_mov_b32 s{sRd}, 0")
    npro = R - K + 1
    for st in range(npro):
        for x in dma_pre(): o(x)
        for g in dma_groups():
            for x in g: o(x)
        for x in dma_post(): o(x)
    for x in dma_pre(): o(x)
    OUT = (R - 2 * K - 1) * G.NDMA
    assert 0 <= OUT <= 63
    o(f"s_waitcnt vmcnt({min(63, (npro - 2) * G.NDMA)})")
    o("s_barrier")
    for ph in range(2):
        for x in setaddr(): o(x)
        for x in rd(ph): o(x)
        for x in adv(sRd): o(x)
    for x in setaddr(): o(x)
    o(f"s_waitcnt vmcnt({OUT}) lgkmcnt({NRD})")
    o("s_barrier")
    def iteration(it, first):
        ph = it % 4
        mfl = [mf(jx, jy, ph, first) for jy in range(NY) for jx in range(NX)]
        rl = rd((ph + 2) % 4)
        dl = dma_groups()
        n = len(mfl)
        pre = [[] for _ in range(n)]; slots = [[] for _ in range(n)]
        per = max(1, n // len(dl))
        for k, g in enumerate(dl):
            p = min(n - 1, k * per + 1)
            pre[p].append(g[0]); slots[p].append(g[1])
        for k, x in enumerate(rl):
            slots[min(n - 1, (k * n) // (len(rl) + len(rl) // 2))].append(x)
        slots[n - 1] += adv(sRd) + setaddr() + dma_post()[:2] + adv(sDm) + dma_pre()
        for k in range(n):
            for x in pre[k]: o(x)
            o(mfl[k])
            for x in slots[k]: o(x)
        if (it + 1) % K == 0:
            o(f"s_waitcnt vmcnt({OUT}) lgkmcnt({NRD})")
            o("s_barrier")
        else:
            o(f"s_waitcnt lgkmcnt({NRD})")
    for it in range(4): iteration(it, it == 0 and not opt.get("accum"))
    if niter > 4:
        o(f"s_mov_b32 s{sKcnt}, {niter//4 - 1}")
        o.label(f"{label}_loop")
        for it in range(4): iteration(it, False)
        o(f"s_sub_u32 s{sKcnt}, s{sKcnt}, 1")
        o(f"s_cmp_lg_u32 s{sKcnt}, 0")
        o(f"s_cbranch_scc1 {label}_loop")
    o("s_waitcnt vmcnt(0) lgkmcnt(0)")

def gen_loop3(G, sSrdX, sSrdY, sOffX, sOffY, sM0, sKcnt, stepX, stepY, niter, label, K=2, R=8, opt=None, dep_wait=None, sTmp=None):
    opt = opt or {}
    o = G.A; NX, NY = G.NX, G.NY
    SB = G.SB; FS = G.FS; vF = G.vF
    assert niter % R == 0 and R % 4 == 0 and R % K == 0
    nsets = (R * SB + 65535) // 65536
    vH = vF + 4 * FS
    G.vEnd2 = vH + (NX + 1) * (nsets - 1)
    per_win = max(1, 65536 // SB)
    for ws_ in range(1, (R + per_win - 1) // per_win):
        for j in range(NX): o(f"v_add_u32 v{vH+(ws_-1)*(NX+1)+j}, {ws_*per_win*SB}, v{G.vXr+j}")
        o(f"v_add_u32 v{vH+(ws_-1)*(NX+1)+NX}, {ws_*per_win*SB}, v{G.vYr}")
    G.vEnd2 = vH + (NX + 1) * ((R + per_win - 1) // per_win - 1)
    fX = lambda ph, j: vF + ph * FS + 4 * j
    fY = lambda ph, j: vF + ph * FS + 4 * (NX + j)
    def rd(stage, ph):
        ws_, rel = divmod(stage, per_win)
        xa = (lambda j: G.vXr + j) if ws_ == 0 else (lambda j: vH + (ws_ - 1) * (NX + 1) + j)
        ya = G.vYr if ws_ == 0 else vH + (ws_ - 1) * (NX + 1) + NX
        base = rel * SB
        L = []
        for j in range(max(NX, NY)):
            if j < NY: L.append(f"ds_read_b128 {v(fY(ph,j),4)}, v{ya} offset:{base + j*1024}")
            if j < NX:
                L.append(f"ds_read_b64_tr_b16 {v(fX(ph,j),2)}, v{xa(j)} offset:{base}")
                L.append(f"ds_read_b64_tr_b16 {v(fX(ph,j)+2,2)}, v{xa(j)} offset:{base+1024}")
        return L
    NRD = 2 * NX + NY
    def dma_groups(stage):
        L = []
        for t in range(G.NIX):
            L.append([f"s_add_u32 m0, s{sM0[0]}, {stage*SB + t*1024}", f"buffer_load_dwordx4 v{G.vXd+t}, {s(sSrdX,4)}, s{sOffX} offen lds"])
        for t in range(G.NIY):
            L.append([f"s_add_u32 m0, s{sM0[1]}, {stage*SB + G.XB + t*1024}", f"buffer_load_dwordx4 v{G.vYd+t}, {s(sSrdY,4)}, s{sOffY} offen lds"])
        return L
    post = lambda: [f"s_add_u32 s{sOffX}, s{sOffX}, {stepX}", f"s_add_u32 s{sOffY}, s{sOffY}, {stepY}"]
    def mf(jx, jy, ph, first):
        c = "0" if first else G.acc(jx, jy)
        if G.swap: return f"v_mfma_f32_16x16x32_bf16 {G.acc(jx,jy)}, {v(fY(ph,jy),4)}, {v(fX(ph,jx),4)}, {c}"
        return f"v_mfma_f32_16x16x32_bf16 {G.acc(jx,jy)}, {v(fX(ph,jx),4)}, {v(fY(ph,jy),4)}, {c}"
    npro = R - K + 1
    OUT = (R - 2 * K - 1) * G.NDMA
    assert 0 <= OUT <= 63
    split = dep_wait is not None
    if split:
        o(f"s_mov_b32 s{sTmp}, s{sOffX}")
        for st in range(npro):
            for g in dma_groups(st % R)[:G.NIX]:
                o(g[0]); o("s_nop 0"); o(g[1])
            o(post()[0])
        dep_wait()
        for st in range(npro):
            for g in dma_groups(st % R)[G.NIX:]:
                o(g[0]); o("s_nop 0"); o(g[1])
            o(post()[1])
        o(f"s_waitcnt vmcnt({(npro - 2) * G.NIY})")
    else:
        for st in range(npro):
            for g in dma_groups(st % R):
                o(g[0]); o("s_nop 0"); o(g[1])
            for x in post(): o(x)
        o(f"s_waitcnt vmcnt({min(63, (npro - 2) * G.NDMA)})")
    o("s_barrier")
    for ph in range(2):
        for x in rd(ph, ph): o(x)
    o(f"s_waitcnt vmcnt({(npro - (K + 2)) * G.NIY if split else OUT}) lgkmcnt({NRD})")
    o("s_barrier")
    def iteration(it, first, peeled=False):
        ph = it % 4
        mfl = [mf(jx, jy, ph, first) for jy in range(NY) for jx in range(NX)]
        rl = rd((it + 2) % R, (ph + 2) % 4)
        dl = dma_groups((it + npro) % R)
        if opt.get('noread'): rl = []
        if opt.get('nomfma'): mfl = mfl[:1] * 1
        n = len(mfl)
        pre = [[] for _ in range(n)]; slots = [[] for _ in range(n)]
        per = max(1, n // len(dl))
        if not opt.get('nodma'):
            for k, g in enumerate(dl):
                p = min(n - 1, k * per + 1)
                pre[p].append(g[0]); slots[p].append(g[1])
        for k, x in enumerate(rl):
            slots[min(n - 1, (k * n) // len(rl))].append(x)
        slots[n - 1] += post()
        for k in range(n):
            for x in pre[k]: o(x)
            o(mfl[k])
            for x in slots[k]: o(x)
        if (it + 1) % K == 0:
            allowed = OUT
            n_need = (it + 1 - K) + 2 * K + 1
            if split and peeled and n_need < npro: allowed = (npro - 1 - n_need) * G.NIY + (it + 1) * G.NDMA
            o(f"s_waitcnt vmcnt({allowed}) lgkmcnt({NRD})")
            if not opt.get('nobar'): o("s_barrier")
        else:
            o(f"s_waitcnt lgkmcnt({NRD})")
    if opt.get("accum"):
        first_block = False
    else:
        for it in range(R): iteration(it, it == 0, True)
        first_block = True
    nloop = niter // R - (1 if first_block else 0)
    if nloop > 0:
        o(f"s_mov_b32 s{sKcnt}, {nloop}")
        o.label(f"{label}_loop")
        for it in range(R): iteration(it, False)
        o(f"s_sub_u32 s{sKcnt}, s{sKcnt}, 1")
        o(f"s_cmp_lg_u32 s{sKcnt}, 0")
        o(f"s_cbranch_scc1 {label}_loop")
    o("s_waitcnt vmcnt(0) lgkmcnt(0)")
```

```python
from asmlib import *
from layout import *
from gemm import Gemm, gen_loop, gen_loop2
from k_qkv import srd
from k_small import fbits, LOG2E, wave_sum, ln_rows, unpack8, gfun
from k_attn import attn_body
from mega import qkv_tile
import rec12 as rec
import re, math

CNT_MODA, CNT_MODB, CNT_MODC = 40960, 40960 + 128, 40960 + 256
CNT_LN1 = 41984
CNT_RLY = 24576
SLOW_OFF = 65536

sW, sXb, sI, sWS = 3, 4, 5, 6
sCNT, sB, sCh, sRound, sChk, sLim = 60, 62, 63, 64, 65, 66
sCt, sTok, sCntOff = 67, 68, 69
sDBG = 70
sFt, sDtG = 81, 82

def wait_cnt(A, off, target, tag, off_s=None, sleep=3):
    o = A
    o(f"s_cmp_lg_u32 s{sW}, 0"); o(f"s_cbranch_scc1 L_wc_{tag}_b")
    if off_s is None: o(f"v_mov_b32 v2, {off}")
    else:
        o(f"s_add_u32 s44, s{off_s}, {off}"); o("v_mov_b32 v2, s44")
    A.label(f"L_wc_{tag}")
    o(f"global_load_dword v3, v2, {s(sCNT,2)} sc1")
    o("s_waitcnt vmcnt(0)")
    o("v_readfirstlane_b32 s44, v3")
    o(f"s_cmp_ge_u32 s44, {target}"); o(f"s_cbranch_scc1 L_wc_{tag}_b")
    o(f"s_sleep {sleep}")
    o(f"s_sub_u32 s{sLim}, s{sLim}, 1"); o(f"s_cbranch_scc0 L_wc_{tag}")
    o(f"s_mov_b32 s{sLim}, 0")
    A.label(f"L_wc_{tag}_b")
    o("s_barrier")

def signal(A, off, tag, off_s=None):
    o = A
    o("s_waitcnt vmcnt(0)"); o("s_barrier")
    o(f"s_cmp_lg_u32 s{sW}, 0"); o(f"s_cbranch_scc1 L_sg_{tag}")
    if off_s is None: o(f"v_mov_b32 v2, {off}")
    else:
        o(f"s_add_u32 s44, s{off_s}, {off}"); o("v_mov_b32 v2, s44")
    o("v_mov_b32 v3, 1"); o("s_mov_b64 exec, 1")
    o(f"global_atomic_add v2, v3, {s(sCNT,2)}")
    o("s_mov_b64 exec, -1")
    A.label(f"L_sg_{tag}")

CNT_MODAF, CNT_LN1F, CNT_KV0F = 44032, 44544, 45568
def fsignal(A, off, tag, idx_s, off_s=None):
    o = A
    o("s_waitcnt vmcnt(0)"); o("s_barrier")
    o(f"s_cmp_lg_u32 s{sW}, 0"); o(f"s_cbranch_scc1 L_fs_{tag}")
    o(f"s_lshl_b32 s44, s{idx_s}, 2"); o(f"s_add_u32 s44, s44, {off}")
    if off_s is not None: o(f"s_add_u32 s44, s44, s{off_s}")
    o("v_mov_b32 v2, s44"); o("v_mov_b32 v3, 1"); o("s_mov_b64 exec, 1")
    o(f"global_store_dword v2, v3, {s(sCNT,2)} sc1"); o("s_mov_b64 exec, -1")
    A.label(f"L_fs_{tag}")

def fwait(A, off, n, tag, off_s=None, sleep=4):
    o = A
    o(f"s_cmp_lg_u32 s{sW}, 0"); o(f"s_cbranch_scc1 L_fw_{tag}_b")
    o("v_lshlrev_b32 v2, 2, v0")
    if off_s is not None:
        o(f"s_add_u32 s44, s{off_s}, {off}"); o("v_add_u32 v2, s44, v2")
    else:
        o(f"v_add_u32 v2, {off}, v2")
    o(f"s_mov_b64 exec, {hex((1 << n) - 1) if n < 64 else -1}")
    A.label(f"L_fw_{tag}")
    o(f"global_load_dword v3, v2, {s(sCNT,2)} sc1"); o("s_waitcnt vmcnt(0)")
    o("v_cmp_eq_u32 vcc, 0, v3"); o(f"s_cbranch_vccz L_fw_{tag}_o")
    o(f"s_sleep {sleep}"); o(f"s_sub_u32 s{sLim}, s{sLim}, 1"); o(f"s_cbranch_scc0 L_fw_{tag}"); o(f"s_mov_b32 s{sLim}, 0")
    A.label(f"L_fw_{tag}_o")
    o("s_mov_b64 exec, -1")
    A.label(f"L_fw_{tag}_b")
    o("s_barrier")

def mod_task(A, sCol, tag):
    o = A
    o("s_load_dwordx2 s[8:9], s[0:1], %d" % KA_WMOD)
    o("v_lshrrev_b32 v5, 2, v0"); o(f"s_lshl_b32 s12, s{sW}, 8"); o("v_add_u32 v5, s12, v5")
    o("v_lshlrev_b32 v6, 2, v5")
    o("s_mov_b32 s13, 12288"); o("v_mul_lo_u32 v7, v5, s13")
    o("v_and_b32 v26, 3, v0"); o("v_lshl_add_u32 v7, v26, 4, v7")
    o(f"s_lshl_b32 s12, s{sCol}, 1"); o("v_add_u32 v7, s12, v7")
    o("s_waitcnt lgkmcnt(0)")
    W = 32; Cc = 96; AC = 112
    for it in range(16):
        o(f"global_load_dwordx4 {v(W+4*it,4)}, v7, s[8:9]")
        o(f"v_add_u32 v7, {16*12288}, v7")
        o(f"ds_read_b32 v{Cc+it}, v6 offset:{it*64}")
    for e in range(8): o(f"v_mov_b32 v{AC+e}, 0")
    o("s_waitcnt lgkmcnt(0)")
    for it in range(16):
        o(f"s_waitcnt vmcnt({15-it})")
        for d in range(4):
            o(f"v_lshlrev_b32 v27, 16, v{W+4*it+d}")
            o(f"v_and_b32 v28, 0xffff0000, v{W+4*it+d}")
            o(f"v_fmac_f32 v{AC+2*d}, v27, v{Cc+it}")
            o(f"v_fmac_f32 v{AC+2*d+1}, v28, v{Cc+it}")
    for e in range(8):
        x = AC + e
        o(f"v_add_f32_dpp v{x}, v{x}, v{x} row_ror:4 row_mask:0xf bank_mask:0xf")
        o(f"v_add_f32_dpp v{x}, v{x}, v{x} row_ror:8 row_mask:0xf bank_mask:0xf")
        for sw in ("16", "32"):
            o(f"v_mov_b32 v27, v{x}"); o(f"v_permlane{sw}_swap_b32 v{x}, v27"); o(f"v_add_f32 v{x}, v{x}, v27")
    o(f"s_lshl_b32 s12, s{sW}, 7"); o("v_lshlrev_b32 v5, 5, v26"); o("v_add_u32 v5, s12, v5")
    o("s_mov_b64 exec, 0xf")
    o(f"ds_write_b128 v5, {v(AC,4)} offset:4096"); o(f"ds_write_b128 v5, {v(AC+4,4)} offset:4112")
    o("s_mov_b64 exec, -1")
    o("s_waitcnt lgkmcnt(0)"); o("s_barrier")
    o(f"s_cmp_lg_u32 s{sW}, 0"); o(f"s_cbranch_scc1 L_mod_{tag}_d")
    o("v_lshlrev_b32 v5, 2, v0")
    o("s_mov_b64 exec, 0xffffffff")
    for w in range(4): o(f"ds_read_b32 v{32+w}, v5 offset:{4096+w*128}")
    o("s_waitcnt lgkmcnt(0)")
    o("v_add_f32 v32, v32, v33"); o("v_add_f32 v34, v34, v35"); o("v_add_f32 v32, v32, v34")
    o("v_cvt_pk_bf16_f32 v32, v32, v32"); o("v_lshlrev_b32 v32, 16, v32")
    o(f"s_lshl_b32 s12, s{sCol}, 2"); o(f"s_add_u32 s12, s12, {WS_MOD}"); o("v_add_u32 v5, s12, v5")
    o(f"global_store_dword v5, v32, {s(sWS,2)} sc1")
    o("s_mov_b64 exec, -1")
    A.label(f"L_mod_{tag}_d")

def silu_to_lds(A, pre=None):
    o = A
    if pre: o(f"s_mov_b64 s[8:9], s[{pre}:{pre+1}]")
    else: o("s_load_dwordx2 s[8:9], s[0:1], %d" % KA_C)
    o(f"s_lshl_b32 s12, s{sW}, 6"); o("v_add_u32 v4, s12, v0")
    o("v_lshlrev_b32 v5, 3, v4")
    o("s_waitcnt lgkmcnt(0)")
    o("global_load_dwordx2 v[12:13], v5, s[8:9]")
    o("s_waitcnt vmcnt(0)")
    o("v_lshlrev_b32 v14, 16, v12"); o("v_and_b32 v15, 0xffff0000, v12"); o("v_lshlrev_b32 v16, 16, v13"); o("v_and_b32 v17, 0xffff0000, v13")
    o(f"s_mov_b32 s12, {fbits(-LOG2E)}")
    for r in range(4):
        o(f"v_mul_f32 v{20+r}, s12, v{14+r}"); o(f"v_exp_f32 v{20+r}, v{20+r}"); o(f"v_add_f32 v{20+r}, 1.0, v{20+r}")
        o(f"v_rcp_f32 v{20+r}, v{20+r}"); o(f"v_mul_f32 v{20+r}, v{14+r}, v{20+r}")
    o("v_cvt_pk_bf16_f32 v24, v20, v21"); o("v_cvt_pk_bf16_f32 v25, v22, v23")
    o("v_lshlrev_b32 v20, 16, v24"); o("v_and_b32 v21, 0xffff0000, v24"); o("v_lshlrev_b32 v22, 16, v25"); o("v_and_b32 v23, 0xffff0000, v25")
    o("v_lshlrev_b32 v4, 4, v4")
    o("ds_write_b128 v4, v[20:23]")
    o("s_waitcnt lgkmcnt(0)"); o("s_barrier")

def ln1_task(A):
    o = A
    o("s_load_dwordx2 s[8:9], s[0:1], %d" % KA_X)
    o("v_lshlrev_b32 v2, 4, v0"); o("v_lshlrev_b32 v3, 5, v0")
    o(f"s_add_u32 s12, s{sWS}, {WS_MOD}"); o(f"s_addc_u32 s13, s{sWS+1}, 0")
    SA, CA = 64, 80
    for h in range(2):
        for q in range(2): o(f"global_load_dwordx4 {v(SA+8*h+4*q,4)}, v3, s[12:13] offset:{h*2048+q*16}")
    o("s_add_u32 s12, s12, 4096"); o("s_addc_u32 s13, s13, 0")
    for h in range(2):
        for q in range(2): o(f"global_load_dwordx4 {v(CA+8*h+4*q,4)}, v3, s[12:13] offset:{h*2048+q*16}")
    o(f"s_lshl_b32 s14, s{sB}, 4"); o(f"s_lshl_b32 s15, s{sW}, 2"); o("s_add_u32 s14, s14, s15")
    o("s_waitcnt lgkmcnt(0)")
    o("s_lshl_b32 s15, s14, 11"); o("s_add_u32 s10, s8, s15"); o("s_addc_u32 s11, s9, 0")
    RAW = 96
    for r in range(4):
        off = r * 2048
        if off >= 4096:
            if r == 2: o("s_add_u32 s10, s10, 4096"); o("s_addc_u32 s11, s11, 0")
            off -= 4096
        o(f"global_load_dwordx4 {v(RAW+8*r,4)}, v2, s[10:11] offset:{off}")
        o(f"global_load_dwordx4 {v(RAW+8*r+4,4)}, v2, s[10:11] offset:{off+1024}")
    o("s_waitcnt vmcnt(8)")
    for e in range(16): o(f"v_add_f32 v{CA+e}, 1.0, v{CA+e}")
    X = [32, 48]
    for pr in range(2):
        o(f"s_waitcnt vmcnt({4 if pr == 0 else 0})") if pr == 0 else None
        if pr == 1: o("s_waitcnt vmcnt(4)")
        for r in range(2):
            unpack8(o, X[r], RAW + 8 * (2 * pr + r)); unpack8(o, X[r] + 8, RAW + 8 * (2 * pr + r) + 4)
        ln_rows(o, X, 2, [4, 5], 1e-5)
        for r in range(2):
            R0 = 8 + 8 * r
            for e in range(16): o(f"v_fma_f32 v{X[r]+e}, v{X[r]+e}, v{CA+e}, v{SA+e}")
            for h in range(2):
                for d in range(4): o(f"v_cvt_pk_bf16_f32 v{R0+4*h+d}, v{X[r]+8*h+2*d}, v{X[r]+8*h+2*d+1}")
            o(f"s_add_u32 s16, s14, {2*pr+r}"); o("s_lshr_b32 s17, s16, 4"); o("s_and_b32 s16, s16, 15")
            o("s_lshr_b32 s18, s16, 2"); o("s_lshr_b32 s19, s18, 1"); o("s_and_b32 s18, s18, 1"); o("s_xor_b32 s18, s18, s19"); o("s_lshl_b32 s18, s18, 1"); o("s_or_b32 s18, s18, s19")
            o("v_and_b32 v4, 3, v0"); o("v_xor_b32 v4, s18, v4"); o("v_lshlrev_b32 v4, 4, v4")
            o("v_lshrrev_b32 v5, 2, v0"); o("v_lshl_add_u32 v4, v5, 17, v4")
            o("s_lshl_b32 s17, s17, 10"); o("s_lshl_b32 s16, s16, 6"); o("s_add_u32 s17, s17, s16"); o(f"s_add_u32 s17, s17, {WS_H}")
            o("v_add_u32 v4, s17, v4")
            o(f"global_store_dwordx4 v4, {v(R0,4)}, {s(sWS,2)} sc1")
            o(f"v_add_u32 v4, {16*131072}, v4")
            o(f"global_store_dwordx4 v4, {v(R0+4,4)}, {s(sWS,2)} sc1")
        if pr == 0: o("s_nop 1")

def op_task(A):
    o = A
    S = 4; SBW = 6144
    sX, sY = 8, 12
    o("s_load_dwordx2 s[40:41], s[0:1], %d" % KA_WO); o("s_load_dwordx2 s[46:47], s[0:1], %d" % KA_X)
    o("s_waitcnt lgkmcnt(0)")
    srd(o, sX, 40, 0, 8 * MiB); srd(o, sY, sWS, WS_O, 16 * MiB)
    sDt, sTg = 48, 49
    o(f"s_lshl_b32 s{sDt}, s{sXb}, 1"); o(f"s_and_b32 s20, s{sI}, 1"); o(f"s_add_u32 s{sDt}, s{sDt}, s20")
    o(f"s_lshr_b32 s{sTg}, s{sI}, 1"); o(f"s_lshl_b32 s20, s{sCh}, 3"); o(f"s_add_u32 s{sTg}, s{sTg}, s20")
    sOX, sOY, sLb, sRd, sDm, sK = 20, 21, 22, 23, 24, 25
    o(f"s_lshl_b32 s{sOX}, s{sDt}, 7"); o(f"s_lshl_b32 s26, s{sW}, 16"); o(f"s_add_u32 s{sOX}, s{sOX}, s26")
    o(f"s_lshl_b32 s{sOY}, s{sTg}, 11"); o(f"s_lshl_b32 s26, s{sW}, 17"); o(f"s_add_u32 s{sOY}, s{sOY}, s26")
    o(f"s_mul_i32 s{sLb}, s{sW}, {S*SBW}")
    vi, vg, t0, t1, t2, t3 = 1, 2, 3, 4, 5, 6
    vXr, vYr, vXd, vYd, vC = 8, 12, 13, 17, 20
    o(f"v_and_b32 v{vi}, 15, v0"); o(f"v_lshrrev_b32 v{vg}, 4, v0")
    o(f"v_lshrrev_b32 v{t0}, 2, v{vi}"); o(f"v_and_b32 v{t1}, 1, v{vg}"); o(f"v_lshrrev_b32 v{t2}, 1, v{vg}")
    o(f"v_lshlrev_b32 v{t3}, 4, v{t2}"); o(f"v_lshl_add_u32 v{t3}, v{t0}, 1, v{t3}"); o(f"v_add_u32 v{t3}, v{t3}, v{t1}")
    o(f"v_lshlrev_b32 v{t3}, 7, v{t3}"); o(f"v_and_b32 v{t1}, 3, v{vi}"); o(f"v_lshl_add_u32 v{t3}, v{t1}, 3, v{t3}")
    o(f"v_add_u32 v{t3}, s{sLb}, v{t3}")
    for j in range(4):
        o(f"v_xor_b32 v{t1}, {j}, v{t0}"); o(f"v_lshl_add_u32 v{vXr+j}, v{t1}, 5, v{t3}")
    gfun(o, t2, vi, t1); o(f"v_xor_b32 v{t2}, v{t2}, v{vg}"); o(f"v_lshlrev_b32 v{t2}, 4, v{t2}"); o(f"v_lshl_add_u32 v{t2}, v{vi}, 6, v{t2}")
    o(f"s_add_u32 s26, s{sLb}, 4096"); o(f"v_add_u32 v{vYr}, s26, v{t2}")
    o(f"v_lshrrev_b32 v{t0}, 3, v0"); o(f"v_and_b32 v{t1}, 7, v0")
    o(f"v_lshrrev_b32 v{t3}, 1, v{t0}"); o(f"v_and_b32 v{t2}, 1, v{t0}"); o(f"v_lshl_add_u32 v{t2}, v{t2}, 3, v{t3}")
    o(f"v_lshrrev_b32 v{vi}, 1, v{t1}"); o(f"v_xor_b32 v{vi}, v{vi}, v{t3}"); o(f"v_lshlrev_b32 v{vi}, 5, v{vi}")
    o(f"v_and_b32 v{t1}, 1, v{t1}"); o(f"v_lshl_or_b32 v{vi}, v{t1}, 4, v{vi}")
    o(f"v_lshl_add_u32 v{vXd}, v{t2}, 11, v{vi}")
    for t in range(1, 4): o(f"v_add_u32 v{vXd+t}, {(4*(t&1) + 16*(t>>1))*2048}, v{vXd}")
    o(f"v_lshlrev_b32 v{vYd}, 4, v0"); o(f"v_add_u32 v{vYd+1}, 1024, v{vYd}")
    F = 28; FS = 24
    AC = 80
    def dma():
        L = []
        for t in range(4): L.append([f"s_add_u32 m0, s26, {t*1024}", f"buffer_load_dwordx4 v{vXd+t}, {s(sX,4)}, s{sOX} offen lds"])
        for t in range(2): L.append([f"s_add_u32 m0, s26, {4096+t*1024}", f"buffer_load_dwordx4 v{vYd+t}, {s(sY,4)}, s{sOY} offen lds"])
        return L
    def adv(r): return [f"s_add_u32 s{r}, s{r}, {SBW}", f"s_cmp_eq_u32 s{r}, {S*SBW}", f"s_cselect_b32 s{r}, 0, s{r}"]
    def dma_all():
        o(f"s_add_u32 s26, s{sLb}, s{sDm}")
        for g in dma():
            o(g[0]); o("s_nop 0"); o(g[1])
        o(f"s_add_u32 s{sOX}, s{sOX}, {4*32*2048}"); o(f"s_add_u32 s{sOY}, s{sOY}, {4*131072}")
        for x in adv(sDm): o(x)
    def rd(ph):
        for j in range(5): o(f"v_add_u32 v{vC+j}, s{sRd}, v{(vXr+j) if j < 4 else vYr}")
        for j in range(2): o(f"ds_read_b128 {v(F+ph*FS+16+4*j,4)}, v{vC+4} offset:{j*1024}")
        for j in range(4):
            o(f"ds_read_b64_tr_b16 {v(F+ph*FS+4*j,2)}, v{vC+j}"); o(f"ds_read_b64_tr_b16 {v(F+ph*FS+4*j+2,2)}, v{vC+j} offset:1024")
        for x in adv(sRd): o(x)
    o(f"s_mov_b32 s{sDm}, 0"); o(f"s_mov_b32 s{sRd}, 0")
    for st in range(S): dma_all()
    o(f"s_waitcnt vmcnt({6*(S-1)})")
    rd(0)
    def iteration(ph, first):
        o(f"s_waitcnt vmcnt({6*(S-2)}) lgkmcnt(0)")
        dma_all()
        rd(ph ^ 1)
        for jy in range(2):
            for jx in range(4):
                d = AC + (jx * 2 + jy) * 4
                c = "0" if first else v(d, 4)
                o(f"v_mfma_f32_16x16x32_bf16 {v(d,4)}, {v(F+ph*FS+4*jx,4)}, {v(F+ph*FS+16+4*jy,4)}, {c}")
    iteration(0, True); iteration(1, False)
    o(f"s_mov_b32 s{sK}, 15")
    A.label("L_op_loop")
    iteration(0, False); iteration(1, False)
    o(f"s_sub_u32 s{sK}, s{sK}, 1"); o(f"s_cmp_lg_u32 s{sK}, 0"); o("s_cbranch_scc1 L_op_loop")
    o("s_waitcnt vmcnt(0) lgkmcnt(0)")
    o("s_barrier")
    o("v_lshlrev_b32 v1, 4, v0"); o(f"s_lshl_b32 s26, s{sW}, 13"); o("v_add_u32 v2, s26, v1")
    for t in range(8): o(f"ds_write_b128 v2, {v(AC+4*t,4)} offset:{t*1024}")
    o("v_and_b32 v3, 15, v0"); o("v_lshrrev_b32 v4, 4, v0"); o("v_and_b32 v5, 1, v4"); o("v_lshrrev_b32 v4, 1, v4")
    o("v_lshlrev_b32 v5, 4, v5"); o("v_lshl_add_u32 v5, v4, 3, v5")
    o(f"s_lshl_b32 s26, s{sDt}, 6"); o(f"s_and_b32 s27, s{sW}, 1"); o("s_lshl_b32 s27, s27, 5"); o("s_add_u32 s26, s26, s27")
    o("v_add_u32 v5, s26, v5")
    o(f"s_lshl_b32 s26, s{sTg}, 5"); o(f"s_lshr_b32 s27, s{sW}, 1"); o("s_lshl_b32 s27, s27, 4"); o("s_add_u32 s26, s26, s27")
    o("v_add_u32 v3, s26, v3")
    o("v_lshlrev_b32 v6, 11, v3"); o("v_lshl_add_u32 v6, v5, 1, v6")
    o("v_lshlrev_b32 v7, 2, v5")
    o(f"s_add_u32 s44, s{sWS}, {WS_MOD + 2*4096}"); o(f"s_addc_u32 s45, s{sWS+1}, 0")
    GA, XR = 28, 36
    o(f"global_load_dwordx4 {v(GA,4)}, v7, s[44:45]"); o(f"global_load_dwordx4 {v(GA+4,4)}, v7, s[44:45] offset:16")
    o(f"global_load_dwordx4 {v(XR,4)}, v6, s[46:47]")
    o("s_waitcnt lgkmcnt(0)"); o("s_barrier")
    o(f"s_and_b32 s26, s{sW}, 1"); o("s_lshl_b32 s26, s26, 12"); o(f"s_lshr_b32 s27, s{sW}, 1"); o("s_lshl_b32 s27, s27, 10"); o("s_add_u32 s26, s26, s27")
    o("v_add_u32 v2, s26, v1")
    R = 48
    for sw in range(4):
        o(f"ds_read_b128 {v(R+8*sw,4)}, v2 offset:{sw*8192}"); o(f"ds_read_b128 {v(R+8*sw+4,4)}, v2 offset:{sw*8192+2048}")
    o("s_waitcnt lgkmcnt(0)")
    for e in range(8):
        o(f"v_add_f32 v{R+e}, v{R+e}, v{R+8+e}"); o(f"v_add_f32 v{R+16+e}, v{R+16+e}, v{R+24+e}")
    for e in range(8): o(f"v_add_f32 v{R+e}, v{R+e}, v{R+16+e}")
    for r in range(4): o(f"v_permlane16_swap_b32 v{R+r}, v{R+4+r}")
    o("s_waitcnt vmcnt(0)")
    U = 40 + 40
    unpack8(o, U, XR)
    for e in range(8): o(f"v_fma_f32 v{R+e}, v{R+e}, v{GA+e}, v{U+e}")
    for d in range(4): o(f"v_cvt_pk_bf16_f32 v{XR+d}, v{R+2*d}, v{R+2*d+1}")
    o(f"s_add_u32 s44, s{sWS}, {WS_X1}"); o(f"s_addc_u32 s45, s{sWS+1}, 0")
    o(f"global_store_dwordx4 v6, {v(XR,4)}, s[44:45] sc1")

def ln2_task(A):
    o = A
    o(f"s_lshl_b32 s14, s{sCh}, 3"); o(f"s_add_u32 s14, s14, s{sXb}")
    o("v_lshlrev_b32 v2, 4, v0")
    o(f"s_lshl_b32 s15, s14, 16"); o(f"s_lshl_b32 s16, s{sW}, 14"); o("s_add_u32 s15, s15, s16"); o(f"s_add_u32 s15, s15, {WS_X1}")
    o(f"s_add_u32 s10, s{sWS}, s15"); o(f"s_addc_u32 s11, s{sWS+1}, 0")
    RAW = 96
    for r in range(8):
        if r and r % 2 == 0: o("s_add_u32 s10, s10, 4096"); o("s_addc_u32 s11, s11, 0")
        off = (r % 2) * 2048
        o(f"global_load_dwordx4 {v(RAW+8*r,4)}, v2, s[10:11] offset:{off}"); o(f"global_load_dwordx4 {v(RAW+8*r+4,4)}, v2, s[10:11] offset:{off+1024}")
    o("v_lshrrev_b32 v3, 3, v0"); o("v_and_b32 v4, 7, v0")
    o("v_lshlrev_b32 v5, 11, v3"); o("v_lshl_add_u32 v5, v4, 4, v5"); o(f"s_lshl_b32 s16, s{sI}, 7"); o("v_add_u32 v5, s16, v5")
    o(f"s_add_u32 s10, s{sWS}, s15"); o(f"s_addc_u32 s11, s{sWS+1}, 0")
    SL = 24
    o(f"global_load_dwordx4 {v(SL,4)}, v5, s[10:11]")
    o("v_lshlrev_b32 v6, 5, v4"); o(f"s_lshl_b32 s16, s{sI}, 8"); o("v_add_u32 v6, s16, v6")
    o(f"s_add_u32 s12, s{sWS}, {WS_MOD + 3*4096}"); o(f"s_addc_u32 s13, s{sWS+1}, 0")
    SB_, CB_ = 64, 72
    o(f"global_load_dwordx4 {v(SB_,4)}, v6, s[12:13]"); o(f"global_load_dwordx4 {v(SB_+4,4)}, v6, s[12:13] offset:16")
    o("s_add_u32 s12, s12, 4096"); o("s_addc_u32 s13, s13, 0")
    o(f"global_load_dwordx4 {v(CB_,4)}, v6, s[12:13]"); o(f"global_load_dwordx4 {v(CB_+4,4)}, v6, s[12:13] offset:16")
    vMean, vRs, X, sm, t = 80, 81, 32, 7, 8
    for r in range(8):
        o(f"s_waitcnt vmcnt({5 + 2*(7-r)})")
        unpack8(o, X, RAW + 8 * r); unpack8(o, X + 8, RAW + 8 * r + 4)
        o(f"v_add_f32 v{sm}, v{X}, v{X+1}")
        for e in range(2, 16): o(f"v_add_f32 v{sm}, v{sm}, v{X+e}")
        wave_sum(o, sm, t)
        o(f"v_mul_f32 v{sm}, {fbits(1.0/1024)}, v{sm}")
        for e in range(16): o(f"v_sub_f32 v{X+e}, v{X+e}, v{sm}")
        o(f"v_mul_f32 v9, v{X}, v{X}")
        for e in range(1, 16): o(f"v_fmac_f32 v9, v{X+e}, v{X+e}")
        wave_sum(o, 9, t)
        o(f"v_mov_b32 v{t}, {fbits(1e-5)}"); o(f"v_fmac_f32 v{t}, {fbits(1.0/1024)}, v9"); o(f"v_rsq_f32 v{t}, v{t}")
        o(f"v_cmp_eq_u32 vcc, {r}, v3")
        o(f"v_cndmask_b32 v{vMean}, v{vMean}, v{sm}, vcc"); o(f"v_cndmask_b32 v{vRs}, v{vRs}, v{t}, vcc")
    o("s_waitcnt vmcnt(0)")
    unpack8(o, X, SL)
    for e in range(8):
        o(f"v_sub_f32 v{X+e}, v{X+e}, v{vMean}"); o(f"v_mul_f32 v{X+e}, v{X+e}, v{vRs}")
        o(f"v_add_f32 v{CB_+e}, 1.0, v{CB_+e}"); o(f"v_fma_f32 v{X+e}, v{X+e}, v{CB_+e}, v{SB_+e}")
    for d in range(4): o(f"v_cvt_pk_bf16_f32 v{SL+d}, v{X+2*d}, v{X+2*d+1}")
    RS = 128 + 32
    o(f"s_lshl_b32 s16, s{sW}, 3"); o("v_add_u32 v5, s16, v3"); o(f"v_mul_u32_u24 v5, {RS}, v5"); o("v_lshl_add_u32 v5, v4, 4, v5")
    o(f"ds_write_b128 v5, {v(SL,4)}")
    o("s_waitcnt lgkmcnt(0)"); o("s_barrier")
    o("v_and_b32 v5, 15, v0"); o("v_lshrrev_b32 v6, 4, v0")
    o("v_lshrrev_b32 v7, 2, v5"); o("v_lshl_add_u32 v7, v6, 3, v7"); o(f"v_mul_u32_u24 v7, {RS}, v7")
    o("v_and_b32 v8, 3, v5"); o("v_lshl_add_u32 v7, v8, 3, v7"); o(f"s_lshl_b32 s16, s{sW}, 5"); o("v_add_u32 v7, s16, v7")
    o(f"ds_read_b64_tr_b16 {v(SL,2)}, v7"); o(f"ds_read_b64_tr_b16 {v(SL+2,2)}, v7 offset:{4*RS}")
    gfun(o, 8, 5, 9); o("v_xor_b32 v8, v8, v6"); o("v_lshl_add_u32 v8, v5, 2, v8"); o("v_lshlrev_b32 v8, 4, v8")
    o("s_lshl_b32 s16, s14, 16"); o(f"s_lshl_b32 s17, s{sI}, 12"); o("s_add_u32 s16, s16, s17"); o(f"s_lshl_b32 s17, s{sW}, 10"); o("s_add_u32 s16, s16, s17"); o(f"s_add_u32 s16, s16, {WS_H2T}")
    o("v_add_u32 v8, s16, v8")
    o("s_waitcnt lgkmcnt(0)")
    o(f"global_store_dwordx4 v8, {v(SL,4)}, {s(sWS,2)} sc1")

def g1_partial(A, opt):
    o = A
    sX, sY = 8, 12
    o("s_load_dwordx2 s[40:41], s[0:1], %d" % KA_W1); o("s_waitcnt lgkmcnt(0)")
    srd(o, sX, 40, 0, 2048 * 7168); srd(o, sY, sWS, WS_H2T, 4 * MiB)
    o(f"s_add_u32 s26, s{sCh}, 1"); o(f"s_lshl_b32 s{sY+2}, s26, 19")
    o(f"s_mul_i32 s{sX+2}, s26, {256*7168}")
    G = Gemm(A, 8, 4, False, "g", accbase=128)
    sOffX, sOffY, sM0, sK = 20, 21, [22, 23], 24
    o(f"s_mul_i32 s{sOffX}, s{sCh}, {256*7168}"); o(f"s_lshl_b32 s26, s{sI}, 9"); o(f"s_add_u32 s{sOffX}, s{sOffX}, s26")
    o(f"s_lshl_b32 s{sOffY}, s{sCh}, 19"); o(f"s_lshl_b32 s26, s{sXb}, 13"); o(f"s_add_u32 s{sOffY}, s{sOffY}, s26")
    o(f"s_mul_i32 s{sM0[0]}, s{sW}, {G.NIX*1024}"); o(f"s_mul_i32 s{sM0[1]}, s{sW}, {G.NIY*1024}")
    G.setup(sW, 0, 7168, 0, [1, 2, 3, 4, 5, 6], [25, 26, 27, 28])
    o2 = dict(opt); o2["accum"] = 1
    gen_loop(G, sX, sY, sOffX, sOffY, sM0, sK, 32 * 7168, 64 * 1024, 8, "L_g1", opt=o2, sSt=[32, 33, 34])
    o("s_barrier")
    return G

def g1_epilogue(A, G, sF=sI, sD=sXb):
    o = A
    E = G.vF
    o("s_load_dwordx2 s[42:43], s[0:1], %d" % KA_B1)
    o("v_and_b32 v1, 15, v0"); o("v_lshrrev_b32 v2, 4, v0"); o("v_and_b32 v3, 1, v2"); o("v_lshrrev_b32 v2, 1, v2")
    o("v_lshlrev_b32 v4, 4, v3"); o("v_lshl_add_u32 v4, v2, 3, v4")
    o("v_lshl_or_b32 v2, v3, 1, v2")
    gfun(o, 3, 1, 5)
    o("v_xor_b32 v2, v2, v3"); o("v_lshl_add_u32 v2, v1, 2, v2"); o("v_lshlrev_b32 v2, 4, v2")
    o(f"s_lshl_b32 s25, s{sF}, 8"); o(f"s_and_b32 s26, s{sW}, 1"); o("s_lshl_b32 s26, s26, 7"); o("s_add_u32 s25, s25, s26")
    o("v_add_u32 v4, s25, v4"); o("v_lshlrev_b32 v4, 1, v4")
    BR = E + 64
    o("s_waitcnt lgkmcnt(0)")
    for jp in range(4): o(f"global_load_dwordx4 {v(BR+4*jp,4)}, v4, s[42:43] offset:{jp*64}")
    o("s_lshr_b32 s26, s25, 5"); o("s_lshl_b32 s26, s26, 16")
    o(f"s_lshl_b32 s27, s{sD}, 3"); o(f"s_lshr_b32 s28, s{sW}, 1"); o("s_lshl_b32 s28, s28, 2"); o("s_add_u32 s27, s27, s28"); o("s_lshl_b32 s27, s27, 10")
    o("s_add_u32 s26, s26, s27"); o(f"s_add_u32 s26, s26, {WS_U}")
    o(f"s_add_u32 s44, s{sWS}, s26"); o(f"s_addc_u32 s45, s{sWS+1}, 0")
    o("s_waitcnt vmcnt(0)")
    BF = E + 80
    c1 = -2.0 * math.sqrt(2.0 / math.pi) * LOG2E
    o(f"s_mov_b32 s46, {fbits(0.044715)}"); o(f"s_mov_b32 s47, {fbits(c1)}")
    k = 0
    for jp in range(4):
        unpack8(o, BF, BR + 4 * jp)
        for jy in range(4):
            T = E + 16 * (k % 3) + 4; k += 1
            ra, rb = G.accr(2 * jp, jy), G.accr(2 * jp + 1, jy)
            for r in range(4): o(f"v_accvgpr_read_b32 v{T+r}, a{ra+r}")
            for r in range(4): o(f"v_accvgpr_read_b32 v{T+4+r}, a{rb+r}")
            for r in range(4): o(f"v_permlane16_swap_b32 v{T+r}, v{T+4+r}")
            U = E + 48
            for e in range(8): o(f"v_add_f32 v{T+e}, v{T+e}, v{BF+e}")
            for e in range(8): o(f"v_mul_f32 v{U+e}, v{T+e}, v{T+e}")
            for e in range(8): o(f"v_fma_f32 v{U+e}, v{U+e}, s46, 1.0")
            for e in range(8): o(f"v_mul_f32 v{U+e}, v{U+e}, v{T+e}")
            for e in range(8): o(f"v_mul_f32 v{U+e}, s47, v{U+e}")
            for e in range(8): o(f"v_exp_f32 v{U+e}, v{U+e}")
            for e in range(8): o(f"v_add_f32 v{U+e}, 1.0, v{U+e}")
            for e in range(8): o(f"v_rcp_f32 v{U+e}, v{U+e}")
            for e in range(8): o(f"v_mul_f32 v{T+e}, v{T+e}, v{U+e}")
            P = T - 4
            for d in range(4): o(f"v_cvt_pk_bf16_f32 v{P+d}, v{T+2*d}, v{T+2*d+1}")
            o(f"v_add_u32 v5, {jp*65536 + jy*1024}, v2")
            o(f"global_store_dwordx4 v5, {v(P,4)}, s[44:45]")

def prefetch_task(A, ka, nbytes, tag):
    o = A
    per = nbytes // 128
    assert per % 4096 == 0 or True
    n4k = (per + 4095) // 4096
    o(f"s_load_dwordx2 s[40:41], s[0:1], {ka}"); o("s_waitcnt lgkmcnt(0)")
    srd(o, 8, 40, 0, nbytes)
    o(f"s_mul_i32 s20, s{sB}, {n4k*4096}"); o(f"s_lshl_b32 s21, s{sW}, 10"); o("s_add_u32 s20, s20, s21")
    o("v_lshlrev_b32 v2, 4, v0")
    o(f"s_mov_b32 s22, {n4k}")
    A.label(f"L_pf_{tag}")
    o("buffer_load_dwordx4 v[8:11], v2, s[8:11], s20 offen")
    o("s_add_u32 s20, s20, 4096"); o("s_sub_u32 s22, s22, 1"); o("s_cmp_lg_u32 s22, 0")
    o(f"s_cbranch_scc0 L_pf_{tag}_d")
    o("buffer_load_dwordx4 v[12:15], v2, s[8:11], s20 offen")
    o("s_add_u32 s20, s20, 4096"); o("s_sub_u32 s22, s22, 1"); o("s_cmp_lg_u32 s22, 0")
    o("s_waitcnt vmcnt(24)")
    o(f"s_cbranch_scc1 L_pf_{tag}")
    A.label(f"L_pf_{tag}_d")
    o("s_waitcnt vmcnt(0)")

def op_pass(A, ntok_tiles_log2, opt=None):
    opt = opt or {}
    o = A
    sX, sY = 8, 12
    o("s_load_dwordx2 s[40:41], s[0:1], %d" % KA_WO); o("s_load_dwordx2 s[46:47], s[0:1], %d" % KA_X)
    sDt, sTt = 48, 49
    o(f"s_lshr_b32 s{sDt}, s{sXb}, 1"); o(f"s_lshl_b32 s{sDt}, s{sDt}, 2"); o(f"s_and_b32 s20, s{sI}, 3"); o(f"s_add_u32 s{sDt}, s{sDt}, s20")
    o(f"s_and_b32 s{sTt}, s{sXb}, 1"); o(f"s_lshl_b32 s{sTt}, s{sTt}, 2"); o(f"s_lshr_b32 s20, s{sI}, 2"); o(f"s_add_u32 s{sTt}, s{sTt}, s20")
    o(f"s_cmp_ge_u32 s{sTt}, {1 << ntok_tiles_log2}"); o(f"s_cbranch_scc1 L_opp_skip{ntok_tiles_log2}")
    o(f"s_lshl_b32 s{sTt}, s{sTt}, 6"); o(f"s_add_u32 s{sTt}, s{sTt}, s{sTok}")
    o("s_waitcnt lgkmcnt(0)")
    srd(o, sX, 40, 0, 8 * MiB); srd(o, sY, sWS, WS_O, 16 * MiB)
    G = Gemm(A, 2, 2, False, "o")
    sOffX, sOffY, sM0, sK = 20, 21, [22, 23], 24
    o(f"s_lshl_b32 s{sOffX}, s{sDt}, 7"); o(f"s_lshl_b32 s{sOffY}, s{sTt}, 6")
    o(f"s_mul_i32 s{sM0[0]}, s{sW}, {G.NIX*1024}"); o(f"s_mul_i32 s{sM0[1]}, s{sW}, {G.NIY*1024}")
    G.setup(sW, 0, 2048, 0, [1, 2, 3, 4, 5, 6], [25, 26, 27, 28])
    gen_loop2(G, sX, sY, sOffX, sOffY, sM0, sK, 32 * 2048, 128 * 1024, 128, f"L_opp{ntok_tiles_log2}", K=opt.get("opK", 4), R=opt.get("opR", 16), sSt=[32, 33, 34])
    E = G.vF
    o("v_and_b32 v1, 15, v0"); o("v_lshrrev_b32 v2, 4, v0"); o("v_and_b32 v3, 1, v2"); o("v_lshrrev_b32 v2, 1, v2")
    o("v_lshlrev_b32 v3, 4, v3"); o("v_lshl_add_u32 v3, v2, 3, v3")
    o(f"s_lshl_b32 s25, s{sDt}, 6"); o(f"s_and_b32 s26, s{sW}, 1"); o("s_lshl_b32 s26, s26, 5"); o("s_add_u32 s25, s25, s26")
    o("v_add_u32 v3, s25, v3")
    o(f"s_lshr_b32 s26, s{sW}, 1"); o("s_lshl_b32 s26, s26, 5"); o(f"s_add_u32 s25, s{sTt}, s26")
    o("v_add_u32 v1, s25, v1")
    o("v_lshlrev_b32 v4, 11, v1"); o("v_lshl_add_u32 v4, v3, 1, v4")
    o("v_lshlrev_b32 v5, 2, v3")
    o(f"s_add_u32 s44, s{sWS}, {WS_MOD + 2*4096}"); o(f"s_addc_u32 s45, s{sWS+1}, 0")
    GA = E + 64; XR = E + 72
    o(f"global_load_dwordx4 {v(GA,4)}, v5, s[44:45]"); o(f"global_load_dwordx4 {v(GA+4,4)}, v5, s[44:45] offset:16")
    for jy in range(2):
        o(f"v_add_u32 v6, {jy*16*2048}, v4"); o(f"global_load_dwordx4 {v(XR+4*jy,4)}, v6, s[46:47]")
    o(f"s_add_u32 s44, s{sWS}, {WS_X1}"); o(f"s_addc_u32 s45, s{sWS+1}, 0")
    for jy in range(2):
        T = E + 16 * jy + 4
        for r in range(4): o(f"v_accvgpr_read_b32 v{T+r}, a{G.accr(0, jy)+r}")
        for r in range(4): o(f"v_accvgpr_read_b32 v{T+4+r}, a{G.accr(1, jy)+r}")
        for r in range(4): o(f"v_permlane16_swap_b32 v{T+r}, v{T+4+r}")
        if jy == 0: o("s_waitcnt vmcnt(0)")
        U = E + 48
        unpack8(o, U, XR + 4 * jy)
        for e in range(8): o(f"v_fma_f32 v{T+e}, v{T+e}, v{GA+e}, v{U+e}")
        P = T - 4
        for d in range(4): o(f"v_cvt_pk_bf16_f32 v{P+d}, v{T+2*d}, v{T+2*d+1}")
        o(f"v_add_u32 v6, {jy*16*2048}, v4")
        o(f"global_store_dwordx4 v6, {v(P,4)}, s[44:45] sc1")
    A.label(f"L_opp_skip{ntok_tiles_log2}")

def ln2_pass(A, nks_log2):
    o = A
    if nks_log2 == 3:
        o(f"s_lshr_b32 s{sCh}, s{sTok}, 8"); ln2_task(A); return
    for h in range(2):
        o(f"s_mov_b32 s76, s{sXb}"); o(f"s_mov_b32 s77, s{sI}"); o(f"s_mov_b32 s78, s{sCh}")
        o(f"s_lshl_b32 s79, s{sXb}, 1"); o(f"s_lshr_b32 s80, s{sI}, 3"); o("s_add_u32 s79, s79, s80")
        o(f"s_and_b32 s80, s{sI}, 7"); o("s_lshl_b32 s80, s80, 1"); o(f"s_add_u32 s{sI}, s80, {h}")
        o(f"s_and_b32 s{sXb}, s79, 7"); o("s_lshr_b32 s79, s79, 3"); o(f"s_lshr_b32 s{sCh}, s{sTok}, 8"); o(f"s_add_u32 s{sCh}, s{sCh}, s79")
        ln2_task(A)
        o(f"s_mov_b32 s{sXb}, s76"); o(f"s_mov_b32 s{sI}, s77"); o(f"s_mov_b32 s{sCh}, s78")
        if h == 0: o("s_barrier")

def g1_pass(A, opt, nit, lab):
    o = A
    sX, sY = 8, 12
    o("s_load_dwordx2 s[40:41], s[0:1], %d" % KA_W1); o("s_waitcnt lgkmcnt(0)")
    srd(o, sX, 40, 0, 2048 * 7168); srd(o, sY, sWS, WS_H2T, 4 * MiB)
    o(f"s_add_u32 s26, s{sTok}, {32*nit}"); o(f"s_lshl_b32 s{sY+2}, s26, 11")
    o(f"s_mul_i32 s{sX+2}, s26, 7168")
    G = Gemm(A, 8, 4, False, "g", accbase=128)
    sOffX, sOffY, sM0, sK = 20, 21, [22, 23], 24
    o(f"s_mul_i32 s{sOffX}, s{sTok}, 7168"); o(f"s_lshl_b32 s26, s{sFt}, 9"); o(f"s_add_u32 s{sOffX}, s{sOffX}, s26")
    o(f"s_lshl_b32 s{sOffY}, s{sTok}, 11"); o(f"s_lshl_b32 s26, s{sDtG}, 13"); o(f"s_add_u32 s{sOffY}, s{sOffY}, s26")
    o(f"s_mul_i32 s{sM0[0]}, s{sW}, {G.NIX*1024}"); o(f"s_mul_i32 s{sM0[1]}, s{sW}, {G.NIY*1024}")
    G.setup(sW, 0, 7168, 0, [1, 2, 3, 4, 5, 6], [25, 26, 27, 28])
    o2 = dict(opt); o2["accum"] = 1; o2["S"] = 5
    gen_loop(G, sX, sY, sOffX, sOffY, sM0, sK, 32 * 7168, 64 * 1024, nit, lab, opt=o2, sSt=[32, 33, 34])
    o("s_barrier")
    return G

def fast_check(A, tag):
    o = A
    LB = 131072 - 64
    o(f"s_cmp_lg_u32 s{sW}, 0"); o(f"s_cbranch_scc1 L_fc_{tag}_w")
    o("s_mov_b64 exec, 0xff"); o("v_and_b32 v1, 3, v0"); o("v_lshlrev_b32 v1, 2, v1"); o("v_lshrrev_b32 v5, 2, v0"); o("v_lshl_add_u32 v1, v5, 7, v1"); o("s_mov_b32 s13, 0x200000")
    A.label(f"L_fc_{tag}_p")
    o(f"global_load_dword v4, v1, {s(sDBG,2)} sc1"); o("s_waitcnt vmcnt(0)")
    o("v_mov_b32 v5, v4")
    o("v_add_u32_dpp v5, v5, v5 quad_perm:[1,0,3,2] row_mask:0xf bank_mask:0xf")
    o("v_add_u32_dpp v5, v5, v5 quad_perm:[2,3,0,1] row_mask:0xf bank_mask:0xf")
    o("v_add_u32_dpp v5, v5, v5 row_half_mirror row_mask:0xf bank_mask:0xf")
    o("v_readfirstlane_b32 s14, v5")
    o("s_cmp_ge_u32 s14, 256"); o(f"s_cbranch_scc1 L_fc_{tag}_a")
    o("s_sleep 8"); o("s_sub_u32 s13, s13, 1"); o(f"s_cbranch_scc0 L_fc_{tag}_p")
    A.label(f"L_fc_{tag}_a")
    o("v_cmp_ne_u32 vcc, 32, v4"); o("s_nop 1"); o("s_cmp_eq_u64 vcc, 0"); o("s_cselect_b32 s15, 1, 0")
    o("s_mov_b64 exec, 1"); o("v_mov_b32 v6, s15"); o(f"v_mov_b32 v1, {LB}"); o("ds_write_b32 v1, v6"); o("s_waitcnt lgkmcnt(0)"); o("s_mov_b64 exec, -1")
    A.label(f"L_fc_{tag}_w")
    o("s_barrier")
    o(f"v_mov_b32 v1, {LB}"); o("ds_read_b32 v6, v1"); o("s_waitcnt lgkmcnt(0)"); o("v_readfirstlane_b32 s15, v6")
    o("s_barrier")

WS_MODP2 = 128 * 1024
CNT_FILL2 = 43520
def mod_half(A):
    o = A
    o("s_mov_b64 s[8:9], s[76:77]")
    o(f"s_lshr_b32 s12, s{sB}, 6"); o("s_lshl_b32 s12, s12, 9"); o(f"s_lshl_b32 s13, s{sW}, 7"); o("s_add_u32 s12, s12, s13")
    o("v_lshrrev_b32 v5, 2, v0"); o("v_add_u32 v5, s12, v5"); o("v_lshlrev_b32 v6, 2, v5")
    o("s_mov_b32 s13, 12288"); o("v_mul_lo_u32 v7, v5, s13"); o("v_and_b32 v26, 3, v0"); o("v_lshl_add_u32 v7, v26, 4, v7")
    o(f"s_and_b32 s12, s{sB}, 63"); o("s_lshl_b32 s12, s12, 6"); o("v_add_u32 v7, s12, v7")
    W = 32
    for it in range(8):
        o(f"global_load_dwordx4 {v(W+4*it,4)}, v7, s[8:9]"); o(f"v_add_u32 v7, {16*12288}, v7")
    return W

def mod_half_finish(A, W, younger):
    o = A
    Cc, AC = 64, 72
    for it in range(8): o(f"ds_read_b32 v{Cc+it}, v6 offset:{it*64}")
    for e in range(8): o(f"v_mov_b32 v{AC+e}, 0")
    o("s_waitcnt lgkmcnt(0)")
    for it in range(8):
        o(f"s_waitcnt vmcnt({7-it+younger})")
        for d in range(4):
            o(f"v_lshlrev_b32 v27, 16, v{W+4*it+d}"); o(f"v_and_b32 v28, 0xffff0000, v{W+4*it+d}")
            o(f"v_fmac_f32 v{AC+2*d}, v27, v{Cc+it}"); o(f"v_fmac_f32 v{AC+2*d+1}, v28, v{Cc+it}")
    for e in range(8):
        x = AC + e
        o(f"v_add_f32_dpp v{x}, v{x}, v{x} row_ror:4 row_mask:0xf bank_mask:0xf")
        o(f"v_add_f32_dpp v{x}, v{x}, v{x} row_ror:8 row_mask:0xf bank_mask:0xf")
        for sw in ("16", "32"):
            o(f"v_mov_b32 v27, v{x}"); o(f"v_permlane{sw}_swap_b32 v{x}, v27"); o(f"v_add_f32 v{x}, v{x}, v27")
    o(f"s_lshl_b32 s12, s{sW}, 7"); o("v_lshlrev_b32 v5, 5, v26"); o("v_add_u32 v5, s12, v5")
    o("s_mov_b64 exec, 0xf")
    o(f"ds_write_b128 v5, {v(AC,4)} offset:4096"); o(f"ds_write_b128 v5, {v(AC+4,4)} offset:4112")
    o("s_mov_b64 exec, -1")
    o("s_waitcnt lgkmcnt(0)"); o("s_barrier")
    o(f"s_cmp_lg_u32 s{sW}, 0"); o("s_cbranch_scc1 L_mh_d")
    o("v_lshlrev_b32 v5, 2, v0"); o("s_mov_b64 exec, 0xffffffff")
    for w in range(4): o(f"ds_read_b32 v{32+w}, v5 offset:{4096+w*128}")
    o("s_waitcnt lgkmcnt(0)")
    o("v_add_f32 v32, v32, v33"); o("v_add_f32 v34, v34, v35"); o("v_add_f32 v32, v32, v34")
    o(f"s_lshr_b32 s12, s{sB}, 6"); o("s_lshl_b32 s12, s12, 13"); o(f"s_and_b32 s13, s{sB}, 63"); o("s_lshl_b32 s13, s13, 7"); o("s_add_u32 s12, s12, s13"); o(f"s_add_u32 s12, s12, {WS_MODP2}")
    o("v_add_u32 v5, s12, v5")
    o(f"global_store_dword v5, v32, {s(sWS,2)} sc1")
    o("s_mov_b64 exec, -1")
    A.label("L_mh_d")

def ln1_pre(A):
    o = A
    o("s_mov_b64 s[16:17], s[78:79]")
    o("v_lshlrev_b32 v2, 4, v0")
    o(f"s_lshl_b32 s14, s{sB}, 4"); o(f"s_lshl_b32 s15, s{sW}, 2"); o("s_add_u32 s14, s14, s15"); o("s_lshl_b32 s15, s14, 11")
    o("s_add_u32 s16, s16, s15"); o("s_addc_u32 s17, s17, 0")
    for r in range(4):
        off = (r % 2) * 2048
        if r == 2: o("s_add_u32 s16, s16, 4096"); o("s_addc_u32 s17, s17, 0")
        o(f"global_load_dwordx4 {v(96+8*r,4)}, v2, s[16:17] offset:{off}"); o(f"global_load_dwordx4 {v(96+8*r+4,4)}, v2, s[16:17] offset:{off+1024}")

def ln1_stats(A):
    o = A
    X = [128, 144, 160, 176]
    for r in range(4):
        unpack8(o, X[r], 96 + 8 * r); unpack8(o, X[r] + 8, 96 + 8 * r + 4)
    ln_rows(o, X, 4, [4, 5], 1e-5)

def ln1_fin(A):
    o = A
    RAW = 96; X = [128, 144, 160, 176]
    o("v_lshlrev_b32 v3, 5, v0")
    SA, CA = 64, 80
    TT = {SA: 192, CA: 208}
    for dst, base in ((SA, 0), (CA, 4096)):
        for q in range(2):
            o(f"s_add_u32 s12, s{sWS}, {WS_MODP2 + q*8192 + base}"); o(f"s_addc_u32 s13, s{sWS+1}, 0")
            tgt = dst if q == 0 else TT[dst]
            for h in range(2):
                for k in range(2): o(f"global_load_dwordx4 {v(tgt+8*h+4*k,4)}, v3, s[12:13] offset:{h*2048+k*16} sc1")
    o(f"s_lshl_b32 s14, s{sB}, 4"); o(f"s_lshl_b32 s15, s{sW}, 2"); o("s_add_u32 s14, s14, s15")
    o("s_waitcnt vmcnt(0)")
    for dst in (SA, CA):
        for e in range(16): o(f"v_add_f32 v{dst+e}, v{dst+e}, v{TT[dst]+e}")
        for e in range(0, 16, 2):
            o(f"v_cvt_pk_bf16_f32 v6, v{dst+e}, v{dst+e+1}"); o(f"v_lshlrev_b32 v{dst+e}, 16, v6"); o(f"v_and_b32 v{dst+e+1}, 0xffff0000, v6")
    for e in range(16): o(f"v_add_f32 v{CA+e}, 1.0, v{CA+e}")
    for r in range(4):
        R0 = RAW + 8 * r
        for e in range(16): o(f"v_fma_f32 v{X[r]+e}, v{X[r]+e}, v{CA+e}, v{SA+e}")
        for h in range(2):
            for d in range(4): o(f"v_cvt_pk_bf16_f32 v{R0+4*h+d}, v{X[r]+8*h+2*d}, v{X[r]+8*h+2*d+1}")
        o(f"s_add_u32 s16, s14, {r}"); o("s_lshr_b32 s17, s16, 4"); o("s_and_b32 s16, s16, 15")
        o("s_lshr_b32 s18, s16, 2"); o("s_lshr_b32 s19, s18, 1"); o("s_and_b32 s18, s18, 1"); o("s_xor_b32 s18, s18, s19"); o("s_lshl_b32 s18, s18, 1"); o("s_or_b32 s18, s18, s19")
        o("v_and_b32 v4, 3, v0"); o("v_xor_b32 v4, s18, v4"); o("v_lshlrev_b32 v4, 4, v4")
        o("v_lshrrev_b32 v5, 2, v0"); o("v_lshl_add_u32 v4, v5, 17, v4")
        o("s_lshl_b32 s17, s17, 10"); o("s_lshl_b32 s16, s16, 6"); o("s_add_u32 s17, s17, s16"); o(f"s_add_u32 s17, s17, {WS_H}")
        o("v_add_u32 v4, s17, v4")
        o(f"global_store_dwordx4 v4, {v(R0,4)}, {s(sWS,2)} sc1")
        o(f"v_add_u32 v4, {16*131072}, v4")
        o(f"global_store_dwordx4 v4, {v(R0+4,4)}, {s(sWS,2)} sc1")

def gen_bulk(opt):
    A = Asm(); o = A
    bprof = opt.get("bprof")
    def bstamp(k, chunked=True):
        if not bprof: return
        o("s_memrealtime s[72:73]"); o("s_waitcnt lgkmcnt(0)")
        o(f"s_lshl_b32 s74, s{sB}, 10")
        if chunked:
            o(f"s_lshl_b32 s75, s{sCh}, 6"); o("s_add_u32 s74, s74, s75"); o(f"s_add_u32 s74, s74, 64")
        o(f"s_add_u32 s74, s74, {WS_PROF + 4*MiB + 0} + {k*4}")
        o("v_mov_b32 v250, s74"); o("v_mov_b32 v251, s72")
        o("s_mov_b64 exec, 1"); o(f"global_store_dword v250, v251, {s(sWS,2)}"); o("s_mov_b64 exec, -1")
    o(f"s_load_dwordx2 {s(sWS,2)}, s[0:1], {KA_WS}")
    o(f"s_load_dwordx2 s[76:77], s[0:1], {KA_WMOD}"); o(f"s_load_dwordx2 s[78:79], s[0:1], {KA_X}"); o(f"s_load_dwordx2 s[84:85], s[0:1], {KA_C}")
    o("s_waitcnt lgkmcnt(0)")
    o(f"s_add_u32 s{sCNT}, s{sWS}, {WS_CNT}"); o(f"s_addc_u32 s{sCNT+1}, s{sWS+1}, 0")
    o(f"s_cmp_eq_u32 s{sChk}, 0"); o("s_cbranch_scc0 L_cb"); o(f"s_add_u32 s{sCNT}, s{sCNT}, {SLOW_OFF}"); o(f"s_addc_u32 s{sCNT+1}, s{sCNT+1}, 0")
    A.label("L_cb")
    o(f"s_lshl_b32 s{sB}, s{sXb}, 4"); o(f"s_add_u32 s{sB}, s{sB}, s{sI}")
    o(f"s_mov_b32 s{sLim}, 0x400000")
    bstamp(0, False)
    ST2 = opt.get("st2")
    if ST2:
        W_ = mod_half(A)
        ln1_pre(A)
        silu_to_lds(A, pre=84)
        mod_half_finish(A, W_, 0)
        ln1_stats(A)
        o(f"s_cmp_eq_u32 s{sChk}, 0"); o("s_cbranch_scc1 L_nochk")
        fast_check(A, "b")
        o("s_cmp_eq_u32 s15, 0"); o("s_cbranch_scc1 M_slow")
        A.label("L_nochk")
        signal(A, CNT_MODA, "m1")
        bstamp(1, False)
        wait_cnt(A, CNT_MODA, 128, "ma")
        bstamp(2, False)
        ln1_fin(A)
        o(f"s_lshr_b32 s{sCntOff}, s{sB}, 4"); o(f"s_lshl_b32 s{sCntOff}, s{sCntOff}, 7")
        signal(A, CNT_LN1, "l1", off_s=sCntOff)
    else:
        silu_to_lds(A)
        o(f"s_lshl_b32 s{sCt}, s{sB}, 5")
        mod_task(A, sCt, "a")
        o(f"s_cmp_eq_u32 s{sChk}, 0"); o("s_cbranch_scc1 L_nochk")
        fast_check(A, "b")
        o("s_cmp_eq_u32 s15, 0"); o("s_cbranch_scc1 M_slow")
        A.label("L_nochk")
        if opt.get("flg"):
            o(f"s_cmp_lt_u32 s{sB}, 64"); o("s_cbranch_scc0 L_m1b")
            fsignal(A, CNT_MODAF, "m1", sB)
            o("s_branch L_m1c")
            A.label("L_m1b")
            signal(A, CNT_MODB, "m1b")
            A.label("L_m1c")
            bstamp(1, False)
            fwait(A, CNT_MODAF, 64, "ma")
            bstamp(2, False)
            ln1_task(A)
            o(f"s_lshr_b32 s{sCntOff}, s{sB}, 4"); o(f"s_lshl_b32 s{sCntOff}, s{sCntOff}, 7"); o(f"s_and_b32 s45, s{sB}, 15"); o("s_mov_b32 s75, s45")
            fsignal(A, CNT_LN1F, "l1", 75, off_s=sCntOff)
        else:
            o(f"s_cmp_lt_u32 s{sB}, 64"); o(f"s_cselect_b32 s{sCntOff}, {CNT_MODA}, s{sCntOff}"); o(f"s_mov_b32 s44, {CNT_MODB}"); o(f"s_cselect_b32 s{sCntOff}, s{sCntOff}, s44")
            signal(A, 0, "m1", off_s=sCntOff)
            bstamp(1, False)
            wait_cnt(A, CNT_MODA, 64, "ma")
            bstamp(2, False)
            ln1_task(A)
            o(f"s_lshr_b32 s{sCntOff}, s{sB}, 4"); o(f"s_lshl_b32 s{sCntOff}, s{sCntOff}, 7")
            signal(A, CNT_LN1, "l1", off_s=sCntOff)
    bstamp(3, False)
    srd_h = lambda: srd(o, 12, sWS, WS_H, 4 * MiB)
    o(f"s_mov_b32 s{sRound}, 0")
    A.label("L_task")
    t0, t1, t2 = 44, 45, 46
    o(f"s_lshl_b32 s{t0}, s{sXb}, 2"); o(f"s_and_b32 s{t1}, s{sI}, 3"); o(f"s_add_u32 s{t0}, s{t0}, s{t1}"); o(f"s_add_u32 s{t0}, s{t0}, 16")
    o(f"s_lshl_b32 s{t1}, s{sXb}, 1"); o(f"s_and_b32 s{t2}, s{sI}, 1"); o(f"s_add_u32 s{t1}, s{t1}, s{t2}")
    o(f"s_lshr_b32 s{t2}, s{sI}, 2")
    o(f"s_cmp_eq_u32 s{sRound}, 0"); o("s_cbranch_scc0 L_r1")
    o(f"s_mov_b32 s{sCt}, s{t0}"); o(f"s_lshl_b32 s{sTok}, s{t2}, 6"); o("s_branch L_dec")
    A.label("L_r1")
    if opt.get("thr"):
        NA = opt["thr"]
        o(f"s_cmp_ge_u32 s{sI}, {NA}"); o("s_cbranch_scc1 L_phase3")
        o(f"s_sub_u32 s{t0}, s{sRound}, 1"); o(f"s_mul_i32 s{t0}, s{t0}, {8*NA}"); o(f"s_mul_i32 s{t1}, s{sXb}, {NA}"); o(f"s_add_u32 s{t0}, s{t0}, s{t1}"); o(f"s_add_u32 s{t0}, s{t0}, s{sI}")
        o(f"s_cmp_ge_u32 s{t0}, 352"); o("s_cbranch_scc1 L_phase3")
        o(f"s_cmp_lt_u32 s{t0}, 224"); o("s_cbranch_scc0 L_thq")
        o(f"s_and_b32 s{sCt}, s{t0}, 31"); o(f"s_add_u32 s{sCt}, s{sCt}, 16"); o(f"s_lshr_b32 s{sTok}, s{t0}, 5"); o(f"s_add_u32 s{sTok}, s{sTok}, 1"); o(f"s_lshl_b32 s{sTok}, s{sTok}, 8"); o("s_branch L_dec")
        A.label("L_thq")
        o(f"s_sub_u32 s{t0}, s{t0}, 224"); o(f"s_and_b32 s{sCt}, s{t0}, 15"); o(f"s_lshr_b32 s{sTok}, s{t0}, 4"); o(f"s_lshl_b32 s{sTok}, s{sTok}, 8")
    else:
        o(f"s_cmp_eq_u32 s{sRound}, 1"); o("s_cbranch_scc0 L_r2")
        o(f"s_mov_b32 s{sCt}, s{t0}"); o(f"s_add_u32 s{sTok}, s{t2}, 1"); o(f"s_lshl_b32 s{sTok}, s{sTok}, 8"); o("s_branch L_dec")
        A.label("L_r2")
        o(f"s_cmp_eq_u32 s{sRound}, 2"); o("s_cbranch_scc0 L_r3")
        o(f"s_cmp_lt_u32 s{sI}, 12"); o("s_cbranch_scc0 L_r2q")
        o(f"s_mov_b32 s{sCt}, s{t0}"); o(f"s_add_u32 s{sTok}, s{t2}, 5"); o(f"s_lshl_b32 s{sTok}, s{sTok}, 8"); o("s_branch L_dec")
        A.label("L_r2q")
        o(f"s_mov_b32 s{sCt}, s{t1}"); o(f"s_sub_u32 s{sTok}, s{sI}, 12"); o(f"s_lshr_b32 s{sTok}, s{sTok}, 1"); o(f"s_lshl_b32 s{sTok}, s{sTok}, 8"); o("s_branch L_dec")
        A.label("L_r3")
        o(f"s_cmp_eq_u32 s{sRound}, 3"); o("s_cbranch_scc0 L_phase3")
        o(f"s_cmp_lt_u32 s{sI}, 12"); o("s_cbranch_scc0 L_phase3")
        o(f"s_mov_b32 s{sCt}, s{t1}"); o(f"s_lshr_b32 s{sTok}, s{sI}, 1"); o(f"s_add_u32 s{sTok}, s{sTok}, 2"); o(f"s_lshl_b32 s{sTok}, s{sTok}, 8")
    A.label("L_dec")
    o(f"s_lshr_b32 s{sCntOff}, s{sTok}, 8"); o(f"s_lshl_b32 s{sCntOff}, s{sCntOff}, 7")
    if opt.get("ksplit"):
        o(f"s_mov_b32 s73, s{sCntOff}")
        o(f"s_cmp_eq_u32 s{sRound}, 0"); o("s_cbranch_scc1 L_l1skip")
    if opt.get("flg"): fwait(A, CNT_LN1F, 16, "l1", off_s=sCntOff)
    else: wait_cnt(A, CNT_LN1, 16, "l1", off_s=sCntOff)
    if opt.get("ksplit"): A.label("L_l1skip")
    o(f"s_lshr_b32 s{t0}, s{sTok}, 8")
    o(f"s_lshl_b32 s{t1}, s{t0}, 3"); o(f"s_and_b32 s{t2}, s{sCt}, 15"); o(f"s_lshr_b32 s{t2}, s{t2}, 1"); o(f"s_add_u32 s{t1}, s{t1}, s{t2}"); o(f"s_lshl_b32 s{t1}, s{t1}, 7")
    o(f"s_lshl_b32 s{t0}, s{t0}, 7"); o(f"s_add_u32 s{t0}, s{t0}, {CNT_Q}")
    o(f"s_cmp_lt_u32 s{sCt}, 16"); o(f"s_cselect_b32 s{sCntOff}, s{t0}, s{t1}")
    o(f"s_lshr_b32 s{t0}, s{sCt}, 4"); o(f"s_lshl_b32 s{t1}, s{t0}, 3")
    o(f"s_add_u32 s40, s0, s{t1}"); o(f"s_addc_u32 s41, s1, 0")
    o(f"s_load_dwordx2 s[40:41], s[40:41], {KA_WQ}")
    o(f"s_lshl_b32 s{t1}, s{t0}, 24"); o(f"s_add_u32 s{t1}, s{t1}, {WS_Q}")
    o(f"s_add_u32 s16, s{sWS}, s{t1}"); o(f"s_addc_u32 s17, s{sWS+1}, 0"); o("s_and_b32 s17, s17, 0xffff")
    o(f"s_mov_b32 s18, {16*MiB}"); o("s_mov_b32 s19, 0x00020000")
    srd_h()
    o("s_waitcnt lgkmcnt(0)")
    srd(o, 8, 40, 0, 8 * MiB)
    o(f"s_cmp_eq_u32 s{sRound}, 0"); o("s_cbranch_scc1 L_small")
    o(f"s_cmp_ge_u32 s{sCt}, 32"); o("s_cbranch_scc1 L_bigv")
    qkv_tile(A, 8, False, "L_gA", sW, sCt, sTok, opt, None); o("s_branch L_sig")
    A.label("L_bigv")
    qkv_tile(A, 8, True, "L_gB", sW, sCt, sTok, opt, None); o("s_branch L_sig")
    A.label("L_small")
    osm = dict(opt); osm["S"] = 6
    o(f"s_cmp_ge_u32 s{sCt}, 32"); o("s_cbranch_scc1 L_smallv")
    dw = (lambda tg: (lambda: wait_cnt(A, CNT_LN1, 16, "l1" + tg, off_s=73))) if opt.get("ksplit") else (lambda tg: None)
    qkv_tile(A, 2, False, "L_gC", sW, sCt, sTok, osm, None, dep_wait=dw("c")); o("s_branch L_sig")
    A.label("L_smallv")
    qkv_tile(A, 2, True, "L_gD", sW, sCt, sTok, osm, None, dep_wait=dw("d"))
    A.label("L_sig")
    if opt.get("flg"):
        o(f"s_cmp_lg_u32 s{sRound}, 0"); o("s_cbranch_scc1 L_sgn")
        o(f"s_lshr_b32 s75, s{sTok}, 6"); o("s_lshl_b32 s75, s75, 2"); o(f"s_lshr_b32 s45, s{sCt}, 5"); o("s_lshl_b32 s45, s45, 1"); o("s_add_u32 s75, s75, s45")
        o(f"s_and_b32 s45, s{sCt}, 1"); o("s_add_u32 s75, s75, s45")
        o(f"s_and_b32 s74, s{sCt}, 15"); o("s_lshr_b32 s74, s74, 1"); o("s_lshl_b32 s74, s74, 7")
        fsignal(A, CNT_KV0F, "k0", 75, off_s=74)
        o("s_branch L_sgd")
        A.label("L_sgn")
        signal(A, 0, "t", off_s=sCntOff)
        A.label("L_sgd")
    else:
        signal(A, 0, "t", off_s=sCntOff)
    if ST2:
        o(f"s_cmp_lg_u32 s{sRound}, 0"); o("s_cbranch_scc1 L_nolate")
        o(f"s_lshl_b32 s12, s{sW}, 10"); o("v_lshlrev_b32 v3, 4, v0"); o("v_add_u32 v3, s12, v3")
        for r in range(4): o(f"v_mov_b32 v{8+r}, -1")
        o(f"s_mul_i32 s12, s{sB}, {7*MiB//128}"); o(f"s_add_u32 s12, s12, {WS_PARTF + MiB}")
        o(f"s_add_u32 s14, s{sWS}, s12"); o(f"s_addc_u32 s15, s{sWS+1}, 0")
        for k in range(14):
            o("global_store_dwordx4 v3, v[8:11], s[14:15] sc1"); o("s_add_u32 s14, s14, 4096"); o("s_addc_u32 s15, s15, 0")
        signal(A, CNT_FILL2, "f2")
        A.label("L_nolate")
    if bprof:
        o("s_memrealtime s[72:73]"); o("s_waitcnt lgkmcnt(0)")
        o(f"s_lshl_b32 s74, s{sB}, 10"); o(f"s_lshl_b32 s75, s{sRound}, 2"); o("s_add_u32 s74, s74, s75"); o(f"s_add_u32 s74, s74, {WS_PROF + 4*MiB + 16}")
        o("v_mov_b32 v250, s74"); o("v_mov_b32 v251, s72")
        o("s_mov_b64 exec, 1"); o(f"global_store_dword v250, v251, {s(sWS,2)}"); o("s_mov_b64 exec, -1")
    o(f"s_add_u32 s{sRound}, s{sRound}, 1")
    o("s_branch L_task")
    A.label("L_phase3")
    if not opt.get("st2"): o(f"s_cmp_ge_u32 s{sB}, 64"); o("s_cbranch_scc1 L_nomod2")
    silu_to_lds(A)
    o(f"s_lshl_b32 s{sCt}, s{sB}, 5"); o(f"s_add_u32 s{sCt}, s{sCt}, {2048 if opt.get('st2') else 4096}")
    mod_task(A, sCt, "b")
    signal(A, CNT_MODC, "m2")
    A.label("L_nomod2")
    if opt.get("late3"):
        wait_cnt(A, CNT_Q + (opt["late3"] - 1) * 128, 16, "lq", sleep=60)
    if opt.get("wpf", 1) == 1:
        prefetch_task(A, KA_WO, 8 * MiB, "wo"); prefetch_task(A, KA_W1, 2048 * 7168, "w1"); prefetch_task(A, KA_W2, 3584 * 4096, "w2")
    if opt.get("wpf", 1) == 2:
        prefetch_task(A, KA_W2, 3584 * 4096, "w2")
    if opt.get("sent"):
        o(f"s_lshl_b32 s12, s{sW}, 10"); o("v_lshlrev_b32 v3, 4, v0"); o("v_add_u32 v3, s12, v3")
        for r in range(4): o(f"v_mov_b32 v{8+r}, -1")
        o(f"s_lshl_b32 s12, s{sB}, 17"); o(f"s_add_u32 s12, s12, {128 * MiB}")
        o(f"s_add_u32 s14, s{sWS}, s12"); o(f"s_addc_u32 s15, s{sWS+1}, 0")
        o("s_mov_b32 s16, 32")
        A.label("L_sfill")
        o("global_store_dwordx4 v3, v[8:11], s[14:15]" + (" sc1" if opt.get("one") else "")); o("s_add_u32 s14, s14, 4096"); o("s_addc_u32 s15, s15, 0")
        o("s_sub_u32 s16, s16, 1"); o("s_cmp_lg_u32 s16, 0"); o("s_cbranch_scc1 L_sfill")
        o(f"s_cmp_ge_u32 s{sB}, 64"); o("s_cbranch_scc1 L_sfill2")
        o(f"s_lshl_b32 s12, s{sB}, 12"); o(f"s_add_u32 s12, s12, {144 * MiB}")
        o(f"s_add_u32 s14, s{sWS}, s12"); o(f"s_addc_u32 s15, s{sWS+1}, 0")
        o("global_store_dwordx4 v3, v[8:11], s[14:15]" + (" sc1" if opt.get("one") else ""))
        A.label("L_sfill2")
        o("s_waitcnt vmcnt(0)")
    P3 = opt.get("p3", 4)
    if P3 == 4:
        for r in range(128): o(f"v_accvgpr_write_b32 a{128+r}, 0")
    if P3 == 0:
        o("s_branch L_bulk_done")
    if P3 == 5:
        passes = opt.get("passes", [(0, 2), (2, 2), (4, 2), (6, 1), (7, 1)])
        for r in range(128): o(f"v_accvgpr_write_b32 a{128+r}, 0")
        o(f"s_lshr_b32 s{sDtG}, s{sXb}, 1"); o(f"s_lshl_b32 s{sDtG}, s{sDtG}, 1"); o(f"s_and_b32 s44, s{sI}, 1"); o(f"s_add_u32 s{sDtG}, s{sDtG}, s44")
        o(f"s_and_b32 s{sFt}, s{sXb}, 1"); o(f"s_lshl_b32 s{sFt}, s{sFt}, 3"); o(f"s_lshr_b32 s44, s{sI}, 1"); o(f"s_add_u32 s{sFt}, s{sFt}, s44")
        sPass, sPn = 83, 84
        def att_chunk(tag):
            o(f"s_lshl_b32 s{sCntOff}, s{sCh}, 3"); o(f"s_add_u32 s{sCntOff}, s{sCntOff}, s{sXb}"); o(f"s_lshl_b32 s{sCntOff}, s{sCntOff}, 7")
            wait_cnt(A, CNT_REC, 32, f"rec{tag}", off_s=sCntOff, sleep=8)
            o(f"s_lshl_b32 s{sCntOff}, s{sCh}, 7")
            wait_cnt(A, CNT_Q, 16, f"q{tag}", off_s=sCntOff)
            o(f"s_lshl_b32 s56, s{sB}, 2"); o(f"s_add_u32 s56, s56, s{sW}")
            o(f"s_lshr_b32 s57, s56, 6"); o(f"s_lshl_b32 s58, s{sCh}, 3"); o("s_add_u32 s57, s57, s58")
            o("s_lshr_b32 s58, s56, 1"); o("s_and_b32 s58, s58, 31"); o("s_and_b32 s59, s56, 1")
            attn_body(A, sWS, 57, 58, 59, 0, f"L_at{tag}", sc1=True)
        def rest(nch, tag):
            o(f"s_lshl_b32 s{sCntOff}, s{sPass}, 7")
            signal(A, CNT_ATT, f"a{tag}", off_s=sCntOff)
            wait_cnt(A, CNT_ATT, 128, f"a{tag}", off_s=sCntOff, sleep=4)
            bstamp(2)
            op_pass(A, 2 if nch == 1 else 3, opt)
            signal(A, CNT_OP, f"o{tag}", off_s=sCntOff)
            bstamp(3)
            wait_cnt(A, CNT_OP, 128, f"o{tag}", off_s=sCntOff, sleep=4)
            bstamp(4)
            ln2_pass(A, 3 if nch == 1 else 4)
            signal(A, CNT_LN, f"n{tag}", off_s=sCntOff)
            bstamp(5)
            o(f"s_cmp_ge_u32 s{sFt}, 14"); o(f"s_cbranch_scc1 L_nog1{tag}")
            wait_cnt(A, CNT_LN, 128, f"n{tag}", off_s=sCntOff, sleep=4)
            bstamp(6)
            G_ = g1_pass(A, opt, 8 * nch, f"L_g1{tag}")
            bstamp(7)
            A.label(f"L_nog1{tag}")
            return G_
        wait_cnt(A, CNT_MODB, 64, "mb5"); wait_cnt(A, CNT_MODC, 64, "mc5")
        nd = sum(1 for p in passes if p[1] == 2); ns = sum(1 for p in passes if p[1] == 1)
        o(f"s_mov_b32 s{sPass}, 0")
        A.label("L_dpass")
        o(f"s_lshl_b32 s{sCh}, s{sPass}, 1"); att_chunk("A"); bstamp(0)
        o(f"s_lshl_b32 s{sCh}, s{sPass}, 1"); o(f"s_add_u32 s{sCh}, s{sCh}, 1"); att_chunk("B"); bstamp(1)
        o(f"s_lshl_b32 s{sTok}, s{sPass}, 9"); o(f"s_lshl_b32 s{sCh}, s{sPass}, 1")
        G = rest(2, "D")
        o(f"s_add_u32 s{sPass}, s{sPass}, 1"); o(f"s_cmp_lt_u32 s{sPass}, {nd}"); o("s_cbranch_scc1 L_dpass")
        if ns:
            A.label("L_spass")
            o(f"s_add_u32 s{sCh}, s{sPass}, {nd}"); att_chunk("C"); bstamp(1)
            o(f"s_add_u32 s{sCh}, s{sPass}, {nd}"); o(f"s_lshl_b32 s{sTok}, s{sCh}, 8")
            rest(1, "S")
            o(f"s_add_u32 s{sPass}, s{sPass}, 1"); o(f"s_cmp_lt_u32 s{sPass}, {nd+ns}"); o("s_cbranch_scc1 L_spass")
        o(f"s_cmp_ge_u32 s{sFt}, 14"); o("s_cbranch_scc1 L_bulk_done")
        g1_epilogue(A, G, sFt, sDtG)
        o("s_branch L_bulk_done")
    if P3 not in (0, 5):
        o(f"s_mov_b32 s{sCh}, 0")
        A.label("L_chunk")
        if P3 >= 4:
            o(f"s_lshl_b32 s{sCntOff}, s{sCh}, 10"); o(f"s_add_u32 s{sCntOff}, s{sCntOff}, {7*128}")
            wait_cnt(A, CNT_REC, 32, "rec", off_s=sCntOff)
        else:
            if opt.get("aspread", 1):
                o(f"s_lshr_b32 s55, s{sI}, 1")
            else:
                o(f"s_mov_b32 s55, s{sXb}")
            o(f"s_lshl_b32 s{sCntOff}, s{sCh}, 3"); o(f"s_add_u32 s{sCntOff}, s{sCntOff}, s55"); o(f"s_lshl_b32 s{sCntOff}, s{sCntOff}, 7")
            if opt.get("relay"):
                o(f"s_cmp_lg_u32 s{sI}, 0"); o("s_cbranch_scc1 L_rly_w")
                wait_cnt(A, CNT_REC, 32, "rec", off_s=sCntOff, sleep=opt["relay"])
                signal(A, CNT_RLY, "rly", off_s=sCntOff)
                o("s_branch L_rly_d")
                A.label("L_rly_w")
                wait_cnt(A, CNT_RLY, 1, "rlw", off_s=sCntOff, sleep=16)
                A.label("L_rly_d")
            else:
                wait_cnt(A, CNT_REC, 32, "rec", off_s=sCntOff, sleep=opt.get("slp", 16))
        o(f"s_lshl_b32 s{sCntOff}, s{sCh}, 7")
        wait_cnt(A, CNT_Q, 16, "q", off_s=sCntOff)
        bstamp(0)
        if P3 >= 4 or not opt.get("aspread", 1):
            o(f"s_lshl_b32 s56, s{sB}, 2"); o(f"s_add_u32 s56, s56, s{sW}")
            o(f"s_lshr_b32 s57, s56, 6"); o(f"s_lshl_b32 s58, s{sCh}, 3"); o("s_add_u32 s57, s57, s58")
        else:
            o(f"s_lshl_b32 s56, s{sXb}, 1"); o(f"s_and_b32 s57, s{sI}, 1"); o("s_add_u32 s56, s56, s57"); o("s_lshl_b32 s56, s56, 2"); o(f"s_add_u32 s56, s56, s{sW}")
            o(f"s_lshr_b32 s57, s{sI}, 1"); o(f"s_lshl_b32 s58, s{sCh}, 3"); o("s_add_u32 s57, s57, s58")
        o("s_lshr_b32 s58, s56, 1"); o("s_and_b32 s58, s58, 31"); o("s_and_b32 s59, s56, 1")
        if opt.get("aser"):
            o("s_mov_b32 s54, 0")
            A.label("L_aser")
            o(f"s_cmp_lg_u32 s{sW}, s54"); o("s_cbranch_scc1 L_aser_s")
        attn_body(A, sWS, 57, 58, 59, 0, "L_at", sc1=(P3 >= 4), nt=opt.get("ant", 0))
        if opt.get("aser"):
            o("s_waitcnt vmcnt(0)")
            A.label("L_aser_s")
            o("s_barrier")
            o("s_add_u32 s54, s54, 1"); o("s_cmp_lt_u32 s54, 4"); o("s_cbranch_scc1 L_aser")
        if P3 >= 4:
            signal(A, CNT_ATT, "a", off_s=sCntOff)
            bstamp(1)
            wait_cnt(A, CNT_ATT, 128, "a", off_s=sCntOff)
            wait_cnt(A, CNT_MODB, 64, "mb")
            bstamp(2)
            op_task(A)
            signal(A, CNT_OP, "o", off_s=sCntOff)
            bstamp(3)
            wait_cnt(A, CNT_OP, 128, "o", off_s=sCntOff)
            wait_cnt(A, CNT_MODC, 64, "mc")
            bstamp(4)
            ln2_task(A)
            signal(A, CNT_LN, "n", off_s=sCntOff)
            bstamp(5)
            o(f"s_cmp_ge_u32 s{sI}, 14"); o("s_cbranch_scc1 L_nog1")
            wait_cnt(A, CNT_LN, 128, "n", off_s=sCntOff)
            bstamp(6)
            G = g1_partial(A, opt)
            bstamp(7)
            A.label("L_nog1")
            o(f"s_add_u32 s{sCh}, s{sCh}, 1"); o(f"s_cmp_lt_u32 s{sCh}, 8"); o("s_cbranch_scc1 L_chunk")
            o(f"s_cmp_ge_u32 s{sI}, 14"); o("s_cbranch_scc1 L_bulk_done")
            g1_epilogue(A, G)
        else:
            o("s_waitcnt vmcnt(0)")
            o(f"s_add_u32 s{sCh}, s{sCh}, 1"); o(f"s_cmp_lt_u32 s{sCh}, 8"); o("s_cbranch_scc1 L_chunk")
    A.label("L_bulk_done")
    o("s_waitcnt vmcnt(0)")
    if opt.get("one"):
        import k_tail
        k_tail.SENT = True
        o("s_barrier")
        o(f"s_add_u32 s{sCNT}, s{sWS}, {WS_CNT}"); o(f"s_addc_u32 s{sCNT+1}, s{sWS+1}, 0")
        signal(A, k_tail.CNT_BULK, "bk")
        o(f"s_cmp_eq_u32 s{sChk}, 0"); o("s_cbranch_scc0 L_one_c1"); o(f"s_add_u32 s{sCNT}, s{sCNT}, {SLOW_OFF}"); o(f"s_addc_u32 s{sCNT+1}, s{sCNT+1}, 0")
        A.label("L_one_c1")
        for c in range(8): wait_cnt(A, CNT_Q + c * 128, 16, f"oq{c}", sleep=opt.get("qs", 100))
        o(f"s_add_u32 s{sCNT}, s{sWS}, {WS_CNT}"); o(f"s_addc_u32 s{sCNT+1}, s{sWS+1}, 0")
        wait_cnt(A, k_tail.CNT_P58, 1, "p58", sleep=opt.get("ps", 100))
        A.raw(k_tail.gen_attn_early(opt["one"]))
        o("s_branch T_last")
    else:
        o("s_endpgm")
    return re.sub(r"\bL_", "B_L_", A.finish())

def gen_mega(name="mega_kernel", recopt=None, opt=None, force_slow=False, place=8):
    recopt = recopt or dict(E2_DEPTH=2, E2_SP=3, E2_DELAY=2)
    opt = opt or {"S": 4}
    A = Asm(); o = A
    o("s_cmp_ge_u32 s2, 256"); o("s_cbranch_scc1 M_end")
    o(f"s_load_dwordx2 {s(sDBG,2)}, s[0:1], {KA_DBG}")
    o(f"s_load_dwordx2 {s(sWS,2)}, s[0:1], {KA_WS}")
    o(f"s_load_dwordx2 s[10:11], s[0:1], {KA_MEM0}")
    if recopt.get("prof"): o("s_memrealtime s[92:93]")
    o("v_lshlrev_b32 v3, 4, v0")
    o("v_lshrrev_b32 v1, 6, v0"); o("v_and_b32 v0, 63, v0"); o(f"v_readfirstlane_b32 s{sW}, v1")
    o("s_getreg_b32 s4, hwreg(HW_REG_XCC_ID, 0, 4)"); o("s_and_b32 s4, s4, 7")
    for r in range(4): o(f"v_mov_b32 v{8+r}, -1")
    o("s_waitcnt lgkmcnt(0)")
    if opt.get("tlb"):
        st = opt["tlb"]
        o(f"s_cmp_lg_u32 s{sW}, 1"); o("s_cbranch_scc1 M_notlb")
        o(f"v_lshlrev_b32 v4, {st}, v0")
        srd(o, 16, sWS, 0, 144 * MiB)
        o("buffer_load_dword v40, v4, s[16:19], 0 offen")
        o(f"s_mov_b32 s20, {64 << st}"); o("buffer_load_dword v41, v4, s[16:19], s20 offen")
        for k, (ka, nb) in enumerate(((KA_X, 4 * MiB), (KA_WQ, 8 * MiB), (KA_WK, 8 * MiB), (KA_WV, 8 * MiB), (KA_WO, 8 * MiB), (KA_WMOD, 12 * MiB))):
            o(f"s_load_dwordx2 s[20:21], s[0:1], {ka}"); o("s_waitcnt lgkmcnt(0)")
            srd(o, 16, 20, 0, nb)
            o(f"buffer_load_dword v{42+k}, v4, s[16:19], 0 offen")
        A.label("M_notlb")
    o(f"s_lshl_b32 s12, s2, {12 if opt.get('st2') else 15}"); o(f"s_add_u32 s12, s12, {WS_PARTF}")
    o(f"s_add_u32 s14, s{sWS}, s12"); o(f"s_addc_u32 s15, s{sWS+1}, 0")
    for k in range(1 if opt.get('st2') else 8):
        o("global_store_dwordx4 v3, v[8:11], s[14:15] sc1"); o("s_add_u32 s14, s14, 4096"); o("s_addc_u32 s15, s15, 0")
    o("s_cmp_ge_u32 s2, 128"); o("s_cbranch_scc1 M_f2")
    o("s_lshl_b32 s12, s2, 12")
    o(f"s_add_u32 s13, s12, {WS_RQK}"); o(f"s_add_u32 s14, s{sWS}, s13"); o(f"s_addc_u32 s15, s{sWS+1}, 0")
    o("global_store_dwordx4 v3, v[8:11], s[14:15] sc1")
    o(f"s_add_u32 s13, s12, {WS_RMEM}"); o(f"s_add_u32 s14, s{sWS}, s13"); o(f"s_addc_u32 s15, s{sWS+1}, 0")
    o("s_cmp_lt_u32 s2, 32"); o("s_cbranch_scc1 M_img")
    o("global_store_dwordx4 v3, v[8:11], s[14:15] sc1"); o("s_branch M_f3")
    A.label("M_img")
    o(f"s_and_b32 s16, s2, 3"); o("s_lshl_b32 s16, s16, 2"); o(f"s_add_u32 s16, s16, s{sW}"); o("s_lshl_b32 s16, s16, 7")
    o("v_and_b32 v5, 7, v0"); o("v_lshlrev_b32 v5, 11, v5"); o("v_bfe_u32 v6, v0, 3, 1"); o("v_lshl_add_u32 v5, v6, 6, v5")
    o("v_lshrrev_b32 v6, 4, v0"); o("v_lshl_add_u32 v5, v6, 4, v5"); o("v_add_u32 v5, s16, v5")
    o("global_load_dwordx4 v[16:19], v5, s[10:11]"); o("s_waitcnt vmcnt(0)")
    o("global_store_dwordx4 v3, v[16:19], s[14:15] sc1"); o("s_branch M_f3")
    A.label("M_f2")
    o("s_cmp_ge_u32 s2, 192"); o("s_cbranch_scc1 M_f4")
    o("s_sub_u32 s12, s2, 128"); o("s_lshl_b32 s12, s12, 12")
    o(f"s_add_u32 s13, s12, {WS_RV}"); o(f"s_add_u32 s14, s{sWS}, s13"); o(f"s_addc_u32 s15, s{sWS+1}, 0")
    o("global_store_dwordx4 v3, v[8:11], s[14:15] sc1"); o("s_branch M_f3")
    A.label("M_f4")
    o("s_cmp_ge_u32 s2, 240"); o("s_cbranch_scc1 M_f3")
    o("s_sub_u32 s12, s2, 192"); o("s_lshl_b32 s12, s12, 12"); o(f"s_add_u32 s12, s12, {WS_CNT}")
    o(f"s_add_u32 s14, s{sWS}, s12"); o(f"s_addc_u32 s15, s{sWS+1}, 0")
    for r in range(4): o(f"v_mov_b32 v{8+r}, 0")
    o("global_store_dwordx4 v3, v[8:11], s[14:15] sc1")
    A.label("M_f3")
    o("s_waitcnt vmcnt(0)"); o("s_barrier")
    o(f"s_cmp_lg_u32 s{sW}, 0"); o("s_cbranch_scc1 M_w")
    o("s_and_b32 s12, s4, 3"); o("s_lshl_b32 s12, s12, 2"); o("s_lshr_b32 s13, s4, 2"); o("s_lshl_b32 s13, s13, 7"); o("s_add_u32 s12, s12, s13")
    o("v_mov_b32 v1, s12"); o("v_mov_b32 v2, 1"); o("s_mov_b64 exec, 1")
    o(f"global_atomic_add v3, v1, v2, {s(sDBG,2)} sc0"); o("s_waitcnt vmcnt(0)")
    o("v_mov_b32 v1, 0"); o("ds_write_b32 v1, v3"); o("s_waitcnt lgkmcnt(0)"); o("s_mov_b64 exec, -1")
    A.label("M_w")
    o("s_barrier"); o("v_mov_b32 v1, 0"); o("ds_read_b32 v6, v1"); o("s_waitcnt lgkmcnt(0)"); o("v_readfirstlane_b32 s5, v6"); o("s_barrier")
    o(f"s_mov_b32 s{sChk}, 1")
    if force_slow:
        fast_check(A, "t"); o("s_branch M_slow")
    if place == 8:
        o("s_cmp_lt_u32 s5, 16"); o("s_cbranch_scc1 M_rec_fast")
        o("s_cmp_lt_u32 s5, 32"); o("s_cbranch_scc0 M_idle")
        o("s_sub_u32 s5, s5, 16"); o("s_branch M_bulk")
    else:
        o("s_cmp_lt_u32 s5, 32"); o("s_cbranch_scc0 M_idle")
        o("s_and_b32 s12, s4, 3"); o("s_lshl_b32 s12, s12, 1"); o("s_lshr_b32 s13, s5, 4"); o("s_add_u32 s12, s12, s13"); o("s_and_b32 s5, s5, 15")
        o("s_cmp_lt_u32 s4, 4"); o("s_mov_b32 s4, s12"); o("s_cbranch_scc1 M_rec_fast"); o("s_branch M_bulk")
    A.label("M_idle")
    fast_check(A, "i")
    A.label("M_slow")
    o(f"s_mov_b32 s{sChk}, 0")
    o("s_lshr_b32 s4, s2, 4"); o("s_and_b32 s4, s4, 7"); o("s_and_b32 s5, s2, 15")
    o("s_cmp_lt_u32 s2, 128"); o("s_cbranch_scc1 M_rec_slow")
    o("s_branch M_bulk")
    A.label("M_end"); o("s_endpgm")
    t = A.finish()
    t += "M_bulk:\n" + gen_bulk(opt)
    Ah = Asm(); fast_check(Ah, "r"); Ah("s_cmp_eq_u32 s15, 0"); Ah("s_cbranch_scc1 M_slow")
    hook = Ah.finish()
    one_ = None
    if opt.get("one"):
        import k_tail
        pstep = opt["one"] // 32 + 2
        one_ = dict(done=k_tail.CNT_DONE, p58=k_tail.CNT_P58, pstep=pstep)
        recopt = dict(recopt); recopt["KMSC1"] = 1
    pre = ""
    if opt.get("rwait"):
        Ap = Asm()
        fast_check(Ap, "p"); Ap("s_cmp_eq_u32 s15, 0"); Ap("s_cbranch_scc1 M_slow")
        Ap(f"s_load_dwordx2 {s(sWS,2)}, s[0:1], {KA_WS}"); Ap("s_waitcnt lgkmcnt(0)")
        Ap(f"s_add_u32 s{sCNT}, s{sWS}, {WS_CNT}"); Ap(f"s_addc_u32 s{sCNT+1}, s{sWS+1}, 0"); Ap(f"s_mov_b32 s{sLim}, 0x400000")
        wait_cnt(Ap, CNT_MODA if opt["rwait"] == 1 else CNT_LN1, 128 if opt["rwait"] == 1 else 16, "rp", sleep=8)
        pre = re.sub(r"\bL_", "RP_L_", Ap.finish())
    t += "M_rec_fast:\n" + pre + rec.gen_rec(embedded=True, pfx="RF_", fast=True, KVCHK=True, SIG=(opt.get("p3", 4) != 0), hook=hook, cntoff=0, KV0F=(CNT_KV0F if opt.get('flg') else None), ONE=one_, FILL2=(CNT_FILL2 if opt.get('st2') else None), **recopt)
    t += "M_rec_slow:\n" + rec.gen_rec(embedded=True, pfx="RS_", fast=False, KVCHK=True, SIG=(opt.get("p3", 4) != 0), hook=None, cntoff=SLOW_OFF, KV0F=(CNT_KV0F if opt.get('flg') else None), ONE=one_, FILL2=(CNT_FILL2 if opt.get('st2') else None), **recopt)
    if opt.get("one"):
        import k_tail
        k_tail.SENT = True
        t += k_tail.gen_tail_text(opt["one"])
    return kernel_head(name) + t + kernel_desc(name, 256, 256)
```

```python
from asmlib import *
from layout import *
from gemm import Gemm, gen_loop, gen_loop2
from k_qkv import srd
from k_small import fbits, LOG2E, wave_sum, ln_rows, unpack8, gfun
from k_attn import attn_body
from mega import qkv_tile
import rec12 as rec
import re, math

CNT_MODA, CNT_MODB, CNT_MODC = 40960, 40960 + 128, 40960 + 256
CNT_LN1 = 41984
CNT_RLY = 24576
SLOW_OFF = 65536

sW, sXb, sI, sWS = 3, 4, 5, 6
sCNT, sB, sCh, sRound, sChk, sLim = 60, 62, 63, 64, 65, 66
sCt, sTok, sCntOff = 67, 68, 69
sDBG = 70
sFt, sDtG = 81, 82

def wait_cnt(A, off, target, tag, off_s=None, sleep=3):
    o = A
    o(f"s_cmp_lg_u32 s{sW}, 0"); o(f"s_cbranch_scc1 L_wc_{tag}_b")
    if off_s is None: o(f"v_mov_b32 v2, {off}")
    else:
        o(f"s_add_u32 s44, s{off_s}, {off}"); o("v_mov_b32 v2, s44")
    A.label(f"L_wc_{tag}")
    o(f"global_load_dword v3, v2, {s(sCNT,2)} sc1")
    o("s_waitcnt vmcnt(0)")
    o("v_readfirstlane_b32 s44, v3")
    o(f"s_cmp_ge_u32 s44, {target}"); o(f"s_cbranch_scc1 L_wc_{tag}_b")
    o(f"s_sleep {sleep}")
    o(f"s_sub_u32 s{sLim}, s{sLim}, 1"); o(f"s_cbranch_scc0 L_wc_{tag}")
    o(f"s_mov_b32 s{sLim}, 0")
    A.label(f"L_wc_{tag}_b")
    o("s_barrier")

def signal(A, off, tag, off_s=None):
    o = A
    o("s_waitcnt vmcnt(0)"); o("s_barrier")
    o(f"s_cmp_lg_u32 s{sW}, 0"); o(f"s_cbranch_scc1 L_sg_{tag}")
    if off_s is None: o(f"v_mov_b32 v2, {off}")
    else:
        o(f"s_add_u32 s44, s{off_s}, {off}"); o("v_mov_b32 v2, s44")
    o("v_mov_b32 v3, 1"); o("s_mov_b64 exec, 1")
    o(f"global_atomic_add v2, v3, {s(sCNT,2)}")
    o("s_mov_b64 exec, -1")
    A.label(f"L_sg_{tag}")

CNT_MODAF, CNT_LN1F, CNT_KV0F = 44032, 44544, 45568
def fsignal(A, off, tag, idx_s, off_s=None):
    o = A
    o("s_waitcnt vmcnt(0)"); o("s_barrier")
    o(f"s_cmp_lg_u32 s{sW}, 0"); o(f"s_cbranch_scc1 L_fs_{tag}")
    o(f"s_lshl_b32 s44, s{idx_s}, 2"); o(f"s_add_u32 s44, s44, {off}")
    if off_s is not None: o(f"s_add_u32 s44, s44, s{off_s}")
    o("v_mov_b32 v2, s44"); o("v_mov_b32 v3, 1"); o("s_mov_b64 exec, 1")
    o(f"global_store_dword v2, v3, {s(sCNT,2)} sc1"); o("s_mov_b64 exec, -1")
    A.label(f"L_fs_{tag}")

def fwait(A, off, n, tag, off_s=None, sleep=4):
    o = A
    o(f"s_cmp_lg_u32 s{sW}, 0"); o(f"s_cbranch_scc1 L_fw_{tag}_b")
    o("v_lshlrev_b32 v2, 2, v0")
    if off_s is not None:
        o(f"s_add_u32 s44, s{off_s}, {off}"); o("v_add_u32 v2, s44, v2")
    else:
        o(f"v_add_u32 v2, {off}, v2")
    o(f"s_mov_b64 exec, {hex((1 << n) - 1) if n < 64 else -1}")
    A.label(f"L_fw_{tag}")
    o(f"global_load_dword v3, v2, {s(sCNT,2)} sc1"); o("s_waitcnt vmcnt(0)")
    o("v_cmp_eq_u32 vcc, 0, v3"); o(f"s_cbranch_vccz L_fw_{tag}_o")
    o(f"s_sleep {sleep}"); o(f"s_sub_u32 s{sLim}, s{sLim}, 1"); o(f"s_cbranch_scc0 L_fw_{tag}"); o(f"s_mov_b32 s{sLim}, 0")
    A.label(f"L_fw_{tag}_o")
    o("s_mov_b64 exec, -1")
    A.label(f"L_fw_{tag}_b")
    o("s_barrier")

def mod_task(A, sCol, tag):
    o = A
    o("s_load_dwordx2 s[8:9], s[0:1], %d" % KA_WMOD)
    o("v_lshrrev_b32 v5, 2, v0"); o(f"s_lshl_b32 s12, s{sW}, 8"); o("v_add_u32 v5, s12, v5")
    o("v_lshlrev_b32 v6, 2, v5")
    o("s_mov_b32 s13, 12288"); o("v_mul_lo_u32 v7, v5, s13")
    o("v_and_b32 v26, 3, v0"); o("v_lshl_add_u32 v7, v26, 4, v7")
    o(f"s_lshl_b32 s12, s{sCol}, 1"); o("v_add_u32 v7, s12, v7")
    o("s_waitcnt lgkmcnt(0)")
    W = 32; Cc = 96; AC = 112
    for it in range(16):
        o(f"global_load_dwordx4 {v(W+4*it,4)}, v7, s[8:9]")
        o(f"v_add_u32 v7, {16*12288}, v7")
        o(f"ds_read_b32 v{Cc+it}, v6 offset:{it*64}")
    for e in range(8): o(f"v_mov_b32 v{AC+e}, 0")
    o("s_waitcnt lgkmcnt(0)")
    for it in range(16):
        o(f"s_waitcnt vmcnt({15-it})")
        for d in range(4):
            o(f"v_lshlrev_b32 v27, 16, v{W+4*it+d}")
            o(f"v_and_b32 v28, 0xffff0000, v{W+4*it+d}")
            o(f"v_fmac_f32 v{AC+2*d}, v27, v{Cc+it}")
            o(f"v_fmac_f32 v{AC+2*d+1}, v28, v{Cc+it}")
    for e in range(8):
        x = AC + e
        o(f"v_add_f32_dpp v{x}, v{x}, v{x} row_ror:4 row_mask:0xf bank_mask:0xf")
        o(f"v_add_f32_dpp v{x}, v{x}, v{x} row_ror:8 row_mask:0xf bank_mask:0xf")
        for sw in ("16", "32"):
            o(f"v_mov_b32 v27, v{x}"); o(f"v_permlane{sw}_swap_b32 v{x}, v27"); o(f"v_add_f32 v{x}, v{x}, v27")
    o(f"s_lshl_b32 s12, s{sW}, 7"); o("v_lshlrev_b32 v5, 5, v26"); o("v_add_u32 v5, s12, v5")
    o("s_mov_b64 exec, 0xf")
    o(f"ds_write_b128 v5, {v(AC,4)} offset:4096"); o(f"ds_write_b128 v5, {v(AC+4,4)} offset:4112")
    o("s_mov_b64 exec, -1")
    o("s_waitcnt lgkmcnt(0)"); o("s_barrier")
    o(f"s_cmp_lg_u32 s{sW}, 0"); o(f"s_cbranch_scc1 L_mod_{tag}_d")
    o("v_lshlrev_b32 v5, 2, v0")
    o("s_mov_b64 exec, 0xffffffff")
    for w in range(4): o(f"ds_read_b32 v{32+w}, v5 offset:{4096+w*128}")
    o("s_waitcnt lgkmcnt(0)")
    o("v_add_f32 v32, v32, v33"); o("v_add_f32 v34, v34, v35"); o("v_add_f32 v32, v32, v34")
    o("v_cvt_pk_bf16_f32 v32, v32, v32"); o("v_lshlrev_b32 v32, 16, v32")
    o(f"s_lshl_b32 s12, s{sCol}, 2"); o(f"s_add_u32 s12, s12, {WS_MOD}"); o("v_add_u32 v5, s12, v5")
    o(f"global_store_dword v5, v32, {s(sWS,2)} sc1")
    o("s_mov_b64 exec, -1")
    A.label(f"L_mod_{tag}_d")

def silu_to_lds(A, pre=None):
    o = A
    if pre: o(f"s_mov_b64 s[8:9], s[{pre}:{pre+1}]")
    else: o("s_load_dwordx2 s[8:9], s[0:1], %d" % KA_C)
    o(f"s_lshl_b32 s12, s{sW}, 6"); o("v_add_u32 v4, s12, v0")
    o("v_lshlrev_b32 v5, 3, v4")
    o("s_waitcnt lgkmcnt(0)")
    o("global_load_dwordx2 v[12:13], v5, s[8:9]")
    o("s_waitcnt vmcnt(0)")
    o("v_lshlrev_b32 v14, 16, v12"); o("v_and_b32 v15, 0xffff0000, v12"); o("v_lshlrev_b32 v16, 16, v13"); o("v_and_b32 v17, 0xffff0000, v13")
    o(f"s_mov_b32 s12, {fbits(-LOG2E)}")
    for r in range(4):
        o(f"v_mul_f32 v{20+r}, s12, v{14+r}"); o(f"v_exp_f32 v{20+r}, v{20+r}"); o(f"v_add_f32 v{20+r}, 1.0, v{20+r}")
        o(f"v_rcp_f32 v{20+r}, v{20+r}"); o(f"v_mul_f32 v{20+r}, v{14+r}, v{20+r}")
    o("v_cvt_pk_bf16_f32 v24, v20, v21"); o("v_cvt_pk_bf16_f32 v25, v22, v23")
    o("v_lshlrev_b32 v20, 16, v24"); o("v_and_b32 v21, 0xffff0000, v24"); o("v_lshlrev_b32 v22, 16, v25"); o("v_and_b32 v23, 0xffff0000, v25")
    o("v_lshlrev_b32 v4, 4, v4")
    o("ds_write_b128 v4, v[20:23]")
    o("s_waitcnt lgkmcnt(0)"); o("s_barrier")

def ln1_task(A):
    o = A
    o("s_load_dwordx2 s[8:9], s[0:1], %d" % KA_X)
    o("v_lshlrev_b32 v2, 4, v0"); o("v_lshlrev_b32 v3, 5, v0")
    o(f"s_add_u32 s12, s{sWS}, {WS_MOD}"); o(f"s_addc_u32 s13, s{sWS+1}, 0")
    SA, CA = 64, 80
    for h in range(2):
        for q in range(2): o(f"global_load_dwordx4 {v(SA+8*h+4*q,4)}, v3, s[12:13] offset:{h*2048+q*16}")
    o("s_add_u32 s12, s12, 4096"); o("s_addc_u32 s13, s13, 0")
    for h in range(2):
        for q in range(2): o(f"global_load_dwordx4 {v(CA+8*h+4*q,4)}, v3, s[12:13] offset:{h*2048+q*16}")
    o(f"s_lshl_b32 s14, s{sB}, 4"); o(f"s_lshl_b32 s15, s{sW}, 2"); o("s_add_u32 s14, s14, s15")
    o("s_waitcnt lgkmcnt(0)")
    o("s_lshl_b32 s15, s14, 11"); o("s_add_u32 s10, s8, s15"); o("s_addc_u32 s11, s9, 0")
    RAW = 96
    for r in range(4):
        off = r * 2048
        if off >= 4096:
            if r == 2: o("s_add_u32 s10, s10, 4096"); o("s_addc_u32 s11, s11, 0")
            off -= 4096
        o(f"global_load_dwordx4 {v(RAW+8*r,4)}, v2, s[10:11] offset:{off}")
        o(f"global_load_dwordx4 {v(RAW+8*r+4,4)}, v2, s[10:11] offset:{off+1024}")
    o("s_waitcnt vmcnt(8)")
    for e in range(16): o(f"v_add_f32 v{CA+e}, 1.0, v{CA+e}")
    X = [32, 48]
    for pr in range(2):
        o(f"s_waitcnt vmcnt({4 if pr == 0 else 0})") if pr == 0 else None
        if pr == 1: o("s_waitcnt vmcnt(4)")
        for r in range(2):
            unpack8(o, X[r], RAW + 8 * (2 * pr + r)); unpack8(o, X[r] + 8, RAW + 8 * (2 * pr + r) + 4)
        ln_rows(o, X, 2, [4, 5], 1e-5)
        for r in range(2):
            R0 = 8 + 8 * r
            for e in range(16): o(f"v_fma_f32 v{X[r]+e}, v{X[r]+e}, v{CA+e}, v{SA+e}")
            for h in range(2):
                for d in range(4): o(f"v_cvt_pk_bf16_f32 v{R0+4*h+d}, v{X[r]+8*h+2*d}, v{X[r]+8*h+2*d+1}")
            o(f"s_add_u32 s16, s14, {2*pr+r}"); o("s_lshr_b32 s17, s16, 4"); o("s_and_b32 s16, s16, 15")
            o("s_lshr_b32 s18, s16, 2"); o("s_lshr_b32 s19, s18, 1"); o("s_and_b32 s18, s18, 1"); o("s_xor_b32 s18, s18, s19"); o("s_lshl_b32 s18, s18, 1"); o("s_or_b32 s18, s18, s19")
            o("v_and_b32 v4, 3, v0"); o("v_xor_b32 v4, s18, v4"); o("v_lshlrev_b32 v4, 4, v4")
            o("v_lshrrev_b32 v5, 2, v0"); o("v_lshl_add_u32 v4, v5, 17, v4")
            o("s_lshl_b32 s17, s17, 10"); o("s_lshl_b32 s16, s16, 6"); o("s_add_u32 s17, s17, s16"); o(f"s_add_u32 s17, s17, {WS_H}")
            o("v_add_u32 v4, s17, v4")
            o(f"global_store_dwordx4 v4, {v(R0,4)}, {s(sWS,2)} sc1")
            o(f"v_add_u32 v4, {16*131072}, v4")
            o(f"global_store_dwordx4 v4, {v(R0+4,4)}, {s(sWS,2)} sc1")
        if pr == 0: o("s_nop 1")

def op_task(A):
    o = A
    S = 4; SBW = 6144
    sX, sY = 8, 12
    o("s_load_dwordx2 s[40:41], s[0:1], %d" % KA_WO); o("s_load_dwordx2 s[46:47], s[0:1], %d" % KA_X)
    o("s_waitcnt lgkmcnt(0)")
    srd(o, sX, 40, 0, 8 * MiB); srd(o, sY, sWS, WS_O, 16 * MiB)
    sDt, sTg = 48, 49
    o(f"s_lshl_b32 s{sDt}, s{sXb}, 1"); o(f"s_and_b32 s20, s{sI}, 1"); o(f"s_add_u32 s{sDt}, s{sDt}, s20")
    o(f"s_lshr_b32 s{sTg}, s{sI}, 1"); o(f"s_lshl_b32 s20, s{sCh}, 3"); o(f"s_add_u32 s{sTg}, s{sTg}, s20")
    sOX, sOY, sLb, sRd, sDm, sK = 20, 21, 22, 23, 24, 25
    o(f"s_lshl_b32 s{sOX}, s{sDt}, 7"); o(f"s_lshl_b32 s26, s{sW}, 16"); o(f"s_add_u32 s{sOX}, s{sOX}, s26")
    o(f"s_lshl_b32 s{sOY}, s{sTg}, 11"); o(f"s_lshl_b32 s26, s{sW}, 17"); o(f"s_add_u32 s{sOY}, s{sOY}, s26")
    o(f"s_mul_i32 s{sLb}, s{sW}, {S*SBW}")
    vi, vg, t0, t1, t2, t3 = 1, 2, 3, 4, 5, 6
    vXr, vYr, vXd, vYd, vC = 8, 12, 13, 17, 20
    o(f"v_and_b32 v{vi}, 15, v0"); o(f"v_lshrrev_b32 v{vg}, 4, v0")
    o(f"v_lshrrev_b32 v{t0}, 2, v{vi}"); o(f"v_and_b32 v{t1}, 1, v{vg}"); o(f"v_lshrrev_b32 v{t2}, 1, v{vg}")
    o(f"v_lshlrev_b32 v{t3}, 4, v{t2}"); o(f"v_lshl_add_u32 v{t3}, v{t0}, 1, v{t3}"); o(f"v_add_u32 v{t3}, v{t3}, v{t1}")
    o(f"v_lshlrev_b32 v{t3}, 7, v{t3}"); o(f"v_and_b32 v{t1}, 3, v{vi}"); o(f"v_lshl_add_u32 v{t3}, v{t1}, 3, v{t3}")
    o(f"v_add_u32 v{t3}, s{sLb}, v{t3}")
    for j in range(4):
        o(f"v_xor_b32 v{t1}, {j}, v{t0}"); o(f"v_lshl_add_u32 v{vXr+j}, v{t1}, 5, v{t3}")
    gfun(o, t2, vi, t1); o(f"v_xor_b32 v{t2}, v{t2}, v{vg}"); o(f"v_lshlrev_b32 v{t2}, 4, v{t2}"); o(f"v_lshl_add_u32 v{t2}, v{vi}, 6, v{t2}")
    o(f"s_add_u32 s26, s{sLb}, 4096"); o(f"v_add_u32 v{vYr}, s26, v{t2}")
    o(f"v_lshrrev_b32 v{t0}, 3, v0"); o(f"v_and_b32 v{t1}, 7, v0")
    o(f"v_lshrrev_b32 v{t3}, 1, v{t0}"); o(f"v_and_b32 v{t2}, 1, v{t0}"); o(f"v_lshl_add_u32 v{t2}, v{t2}, 3, v{t3}")
    o(f"v_lshrrev_b32 v{vi}, 1, v{t1}"); o(f"v_xor_b32 v{vi}, v{vi}, v{t3}"); o(f"v_lshlrev_b32 v{vi}, 5, v{vi}")
    o(f"v_and_b32 v{t1}, 1, v{t1}"); o(f"v_lshl_or_b32 v{vi}, v{t1}, 4, v{vi}")
    o(f"v_lshl_add_u32 v{vXd}, v{t2}, 11, v{vi}")
    for t in range(1, 4): o(f"v_add_u32 v{vXd+t}, {(4*(t&1) + 16*(t>>1))*2048}, v{vXd}")
    o(f"v_lshlrev_b32 v{vYd}, 4, v0"); o(f"v_add_u32 v{vYd+1}, 1024, v{vYd}")
    F = 28; FS = 24
    AC = 80
    def dma():
        L = []
        for t in range(4): L.append([f"s_add_u32 m0, s26, {t*1024}", f"buffer_load_dwordx4 v{vXd+t}, {s(sX,4)}, s{sOX} offen lds"])
        for t in range(2): L.append([f"s_add_u32 m0, s26, {4096+t*1024}", f"buffer_load_dwordx4 v{vYd+t}, {s(sY,4)}, s{sOY} offen lds"])
        return L
    def adv(r): return [f"s_add_u32 s{r}, s{r}, {SBW}", f"s_cmp_eq_u32 s{r}, {S*SBW}", f"s_cselect_b32 s{r}, 0, s{r}"]
    def dma_all():
        o(f"s_add_u32 s26, s{sLb}, s{sDm}")
        for g in dma():
            o(g[0]); o("s_nop 0"); o(g[1])
        o(f"s_add_u32 s{sOX}, s{sOX}, {4*32*2048}"); o(f"s_add_u32 s{sOY}, s{sOY}, {4*131072}")
        for x in adv(sDm): o(x)
    def rd(ph):
        for j in range(5): o(f"v_add_u32 v{vC+j}, s{sRd}, v{(vXr+j) if j < 4 else vYr}")
        for j in range(2): o(f"ds_read_b128 {v(F+ph*FS+16+4*j,4)}, v{vC+4} offset:{j*1024}")
        for j in range(4):
            o(f"ds_read_b64_tr_b16 {v(F+ph*FS+4*j,2)}, v{vC+j}"); o(f"ds_read_b64_tr_b16 {v(F+ph*FS+4*j+2,2)}, v{vC+j} offset:1024")
        for x in adv(sRd): o(x)
    o(f"s_mov_b32 s{sDm}, 0"); o(f"s_mov_b32 s{sRd}, 0")
    for st in range(S): dma_all()
    o(f"s_waitcnt vmcnt({6*(S-1)})")
    rd(0)
    def iteration(ph, first):
        o(f"s_waitcnt vmcnt({6*(S-2)}) lgkmcnt(0)")
        dma_all()
        rd(ph ^ 1)
        for jy in range(2):
            for jx in range(4):
                d = AC + (jx * 2 + jy) * 4
                c = "0" if first else v(d, 4)
                o(f"v_mfma_f32_16x16x32_bf16 {v(d,4)}, {v(F+ph*FS+4*jx,4)}, {v(F+ph*FS+16+4*jy,4)}, {c}")
    iteration(0, True); iteration(1, False)
    o(f"s_mov_b32 s{sK}, 15")
    A.label("L_op_loop")
    iteration(0, False); iteration(1, False)
    o(f"s_sub_u32 s{sK}, s{sK}, 1"); o(f"s_cmp_lg_u32 s{sK}, 0"); o("s_cbranch_scc1 L_op_loop")
    o("s_waitcnt vmcnt(0) lgkmcnt(0)")
    o("s_barrier")
    o("v_lshlrev_b32 v1, 4, v0"); o(f"s_lshl_b32 s26, s{sW}, 13"); o("v_add_u32 v2, s26, v1")
    for t in range(8): o(f"ds_write_b128 v2, {v(AC+4*t,4)} offset:{t*1024}")
    o("v_and_b32 v3, 15, v0"); o("v_lshrrev_b32 v4, 4, v0"); o("v_and_b32 v5, 1, v4"); o("v_lshrrev_b32 v4, 1, v4")
    o("v_lshlrev_b32 v5, 4, v5"); o("v_lshl_add_u32 v5, v4, 3, v5")
    o(f"s_lshl_b32 s26, s{sDt}, 6"); o(f"s_and_b32 s27, s{sW}, 1"); o("s_lshl_b32 s27, s27, 5"); o("s_add_u32 s26, s26, s27")
    o("v_add_u32 v5, s26, v5")
    o(f"s_lshl_b32 s26, s{sTg}, 5"); o(f"s_lshr_b32 s27, s{sW}, 1"); o("s_lshl_b32 s27, s27, 4"); o("s_add_u32 s26, s26, s27")
    o("v_add_u32 v3, s26, v3")
    o("v_lshlrev_b32 v6, 11, v3"); o("v_lshl_add_u32 v6, v5, 1, v6")
    o("v_lshlrev_b32 v7, 2, v5")
    o(f"s_add_u32 s44, s{sWS}, {WS_MOD + 2*4096}"); o(f"s_addc_u32 s45, s{sWS+1}, 0")
    GA, XR = 28, 36
    o(f"global_load_dwordx4 {v(GA,4)}, v7, s[44:45]"); o(f"global_load_dwordx4 {v(GA+4,4)}, v7, s[44:45] offset:16")
    o(f"global_load_dwordx4 {v(XR,4)}, v6, s[46:47]")
    o("s_waitcnt lgkmcnt(0)"); o("s_barrier")
    o(f"s_and_b32 s26, s{sW}, 1"); o("s_lshl_b32 s26, s26, 12"); o(f"s_lshr_b32 s27, s{sW}, 1"); o("s_lshl_b32 s27, s27, 10"); o("s_add_u32 s26, s26, s27")
    o("v_add_u32 v2, s26, v1")
    R = 48
    for sw in range(4):
        o(f"ds_read_b128 {v(R+8*sw,4)}, v2 offset:{sw*8192}"); o(f"ds_read_b128 {v(R+8*sw+4,4)}, v2 offset:{sw*8192+2048}")
    o("s_waitcnt lgkmcnt(0)")
    for e in range(8):
        o(f"v_add_f32 v{R+e}, v{R+e}, v{R+8+e}"); o(f"v_add_f32 v{R+16+e}, v{R+16+e}, v{R+24+e}")
    for e in range(8): o(f"v_add_f32 v{R+e}, v{R+e}, v{R+16+e}")
    for r in range(4): o(f"v_permlane16_swap_b32 v{R+r}, v{R+4+r}")
    o("s_waitcnt vmcnt(0)")
    U = 40 + 40
    unpack8(o, U, XR)
    for e in range(8): o(f"v_fma_f32 v{R+e}, v{R+e}, v{GA+e}, v{U+e}")
    for d in range(4): o(f"v_cvt_pk_bf16_f32 v{XR+d}, v{R+2*d}, v{R+2*d+1}")
    o(f"s_add_u32 s44, s{sWS}, {WS_X1}"); o(f"s_addc_u32 s45, s{sWS+1}, 0")
    o(f"global_store_dwordx4 v6, {v(XR,4)}, s[44:45] sc1")

def ln2_task(A):
    o = A
    o(f"s_lshl_b32 s14, s{sCh}, 3"); o(f"s_add_u32 s14, s14, s{sXb}")
    o("v_lshlrev_b32 v2, 4, v0")
    o(f"s_lshl_b32 s15, s14, 16"); o(f"s_lshl_b32 s16, s{sW}, 14"); o("s_add_u32 s15, s15, s16"); o(f"s_add_u32 s15, s15, {WS_X1}")
    o(f"s_add_u32 s10, s{sWS}, s15"); o(f"s_addc_u32 s11, s{sWS+1}, 0")
    RAW = 96
    for r in range(8):
        if r and r % 2 == 0: o("s_add_u32 s10, s10, 4096"); o("s_addc_u32 s11, s11, 0")
        off = (r % 2) * 2048
        o(f"global_load_dwordx4 {v(RAW+8*r,4)}, v2, s[10:11] offset:{off}"); o(f"global_load_dwordx4 {v(RAW+8*r+4,4)}, v2, s[10:11] offset:{off+1024}")
    o("v_lshrrev_b32 v3, 3, v0"); o("v_and_b32 v4, 7, v0")
    o("v_lshlrev_b32 v5, 11, v3"); o("v_lshl_add_u32 v5, v4, 4, v5"); o(f"s_lshl_b32 s16, s{sI}, 7"); o("v_add_u32 v5, s16, v5")
    o(f"s_add_u32 s10, s{sWS}, s15"); o(f"s_addc_u32 s11, s{sWS+1}, 0")
    SL = 24
    o(f"global_load_dwordx4 {v(SL,4)}, v5, s[10:11]")
    o("v_lshlrev_b32 v6, 5, v4"); o(f"s_lshl_b32 s16, s{sI}, 8"); o("v_add_u32 v6, s16, v6")
    o(f"s_add_u32 s12, s{sWS}, {WS_MOD + 3*4096}"); o(f"s_addc_u32 s13, s{sWS+1}, 0")
    SB_, CB_ = 64, 72
    o(f"global_load_dwordx4 {v(SB_,4)}, v6, s[12:13]"); o(f"global_load_dwordx4 {v(SB_+4,4)}, v6, s[12:13] offset:16")
    o("s_add_u32 s12, s12, 4096"); o("s_addc_u32 s13, s13, 0")
    o(f"global_load_dwordx4 {v(CB_,4)}, v6, s[12:13]"); o(f"global_load_dwordx4 {v(CB_+4,4)}, v6, s[12:13] offset:16")
    vMean, vRs, X, sm, t = 80, 81, 32, 7, 8
    for r in range(8):
        o(f"s_waitcnt vmcnt({5 + 2*(7-r)})")
        unpack8(o, X, RAW + 8 * r); unpack8(o, X + 8, RAW + 8 * r + 4)
        o(f"v_add_f32 v{sm}, v{X}, v{X+1}")
        for e in range(2, 16): o(f"v_add_f32 v{sm}, v{sm}, v{X+e}")
        wave_sum(o, sm, t)
        o(f"v_mul_f32 v{sm}, {fbits(1.0/1024)}, v{sm}")
        for e in range(16): o(f"v_sub_f32 v{X+e}, v{X+e}, v{sm}")
        o(f"v_mul_f32 v9, v{X}, v{X}")
        for e in range(1, 16): o(f"v_fmac_f32 v9, v{X+e}, v{X+e}")
        wave_sum(o, 9, t)
        o(f"v_mov_b32 v{t}, {fbits(1e-5)}"); o(f"v_fmac_f32 v{t}, {fbits(1.0/1024)}, v9"); o(f"v_rsq_f32 v{t}, v{t}")
        o(f"v_cmp_eq_u32 vcc, {r}, v3")
        o(f"v_cndmask_b32 v{vMean}, v{vMean}, v{sm}, vcc"); o(f"v_cndmask_b32 v{vRs}, v{vRs}, v{t}, vcc")
    o("s_waitcnt vmcnt(0)")
    unpack8(o, X, SL)
    for e in range(8):
        o(f"v_sub_f32 v{X+e}, v{X+e}, v{vMean}"); o(f"v_mul_f32 v{X+e}, v{X+e}, v{vRs}")
        o(f"v_add_f32 v{CB_+e}, 1.0, v{CB_+e}"); o(f"v_fma_f32 v{X+e}, v{X+e}, v{CB_+e}, v{SB_+e}")
    for d in range(4): o(f"v_cvt_pk_bf16_f32 v{SL+d}, v{X+2*d}, v{X+2*d+1}")
    RS = 128 + 32
    o(f"s_lshl_b32 s16, s{sW}, 3"); o("v_add_u32 v5, s16, v3"); o(f"v_mul_u32_u24 v5, {RS}, v5"); o("v_lshl_add_u32 v5, v4, 4, v5")
    o(f"ds_write_b128 v5, {v(SL,4)}")
    o("s_waitcnt lgkmcnt(0)"); o("s_barrier")
    o("v_and_b32 v5, 15, v0"); o("v_lshrrev_b32 v6, 4, v0")
    o("v_lshrrev_b32 v7, 2, v5"); o("v_lshl_add_u32 v7, v6, 3, v7"); o(f"v_mul_u32_u24 v7, {RS}, v7")
    o("v_and_b32 v8, 3, v5"); o("v_lshl_add_u32 v7, v8, 3, v7"); o(f"s_lshl_b32 s16, s{sW}, 5"); o("v_add_u32 v7, s16, v7")
    o(f"ds_read_b64_tr_b16 {v(SL,2)}, v7"); o(f"ds_read_b64_tr_b16 {v(SL+2,2)}, v7 offset:{4*RS}")
    gfun(o, 8, 5, 9); o("v_xor_b32 v8, v8, v6"); o("v_lshl_add_u32 v8, v5, 2, v8"); o("v_lshlrev_b32 v8, 4, v8")
    o("s_lshl_b32 s16, s14, 16"); o(f"s_lshl_b32 s17, s{sI}, 12"); o("s_add_u32 s16, s16, s17"); o(f"s_lshl_b32 s17, s{sW}, 10"); o("s_add_u32 s16, s16, s17"); o(f"s_add_u32 s16, s16, {WS_H2T}")
    o("v_add_u32 v8, s16, v8")
    o("s_waitcnt lgkmcnt(0)")
    o(f"global_store_dwordx4 v8, {v(SL,4)}, {s(sWS,2)} sc1")

def g1_partial(A, opt):
    o = A
    sX, sY = 8, 12
    o("s_load_dwordx2 s[40:41], s[0:1], %d" % KA_W1); o("s_waitcnt lgkmcnt(0)")
    srd(o, sX, 40, 0, 2048 * 7168); srd(o, sY, sWS, WS_H2T, 4 * MiB)
    o(f"s_add_u32 s26, s{sCh}, 1"); o(f"s_lshl_b32 s{sY+2}, s26, 19")
    o(f"s_mul_i32 s{sX+2}, s26, {256*7168}")
    G = Gemm(A, 8, 4, False, "g", accbase=128)
    sOffX, sOffY, sM0, sK = 20, 21, [22, 23], 24
    o(f"s_mul_i32 s{sOffX}, s{sCh}, {256*7168}"); o(f"s_lshl_b32 s26, s{sI}, 9"); o(f"s_add_u32 s{sOffX}, s{sOffX}, s26")
    o(f"s_lshl_b32 s{sOffY}, s{sCh}, 19"); o(f"s_lshl_b32 s26, s{sXb}, 13"); o(f"s_add_u32 s{sOffY}, s{sOffY}, s26")
    o(f"s_mul_i32 s{sM0[0]}, s{sW}, {G.NIX*1024}"); o(f"s_mul_i32 s{sM0[1]}, s{sW}, {G.NIY*1024}")
    G.setup(sW, 0, 7168, 0, [1, 2, 3, 4, 5, 6], [25, 26, 27, 28])
    o2 = dict(opt); o2["accum"] = 1
    gen_loop(G, sX, sY, sOffX, sOffY, sM0, sK, 32 * 7168, 64 * 1024, 8, "L_g1", opt=o2, sSt=[32, 33, 34])
    o("s_barrier")
    return G

def g1_epilogue(A, G, sF=sI, sD=sXb):
    o = A
    E = G.vF
    o("s_load_dwordx2 s[42:43], s[0:1], %d" % KA_B1)
    o("v_and_b32 v1, 15, v0"); o("v_lshrrev_b32 v2, 4, v0"); o("v_and_b32 v3, 1, v2"); o("v_lshrrev_b32 v2, 1, v2")
    o("v_lshlrev_b32 v4, 4, v3"); o("v_lshl_add_u32 v4, v2, 3, v4")
    o("v_lshl_or_b32 v2, v3, 1, v2")
    gfun(o, 3, 1, 5)
    o("v_xor_b32 v2, v2, v3"); o("v_lshl_add_u32 v2, v1, 2, v2"); o("v_lshlrev_b32 v2, 4, v2")
    o(f"s_lshl_b32 s25, s{sF}, 8"); o(f"s_and_b32 s26, s{sW}, 1"); o("s_lshl_b32 s26, s26, 7"); o("s_add_u32 s25, s25, s26")
    o("v_add_u32 v4, s25, v4"); o("v_lshlrev_b32 v4, 1, v4")
    BR = E + 64
    o("s_waitcnt lgkmcnt(0)")
    for jp in range(4): o(f"global_load_dwordx4 {v(BR+4*jp,4)}, v4, s[42:43] offset:{jp*64}")
    o("s_lshr_b32 s26, s25, 5"); o("s_lshl_b32 s26, s26, 16")
    o(f"s_lshl_b32 s27, s{sD}, 3"); o(f"s_lshr_b32 s28, s{sW}, 1"); o("s_lshl_b32 s28, s28, 2"); o("s_add_u32 s27, s27, s28"); o("s_lshl_b32 s27, s27, 10")
    o("s_add_u32 s26, s26, s27"); o(f"s_add_u32 s26, s26, {WS_U}")
    o(f"s_add_u32 s44, s{sWS}, s26"); o(f"s_addc_u32 s45, s{sWS+1}, 0")
    o("s_waitcnt vmcnt(0)")
    BF = E + 80
    c1 = -2.0 * math.sqrt(2.0 / math.pi) * LOG2E
    o(f"s_mov_b32 s46, {fbits(0.044715)}"); o(f"s_mov_b32 s47, {fbits(c1)}")
    k = 0
    for jp in range(4):
        unpack8(o, BF, BR + 4 * jp)
        for jy in range(4):
            T = E + 16 * (k % 3) + 4; k += 1
            ra, rb = G.accr(2 * jp, jy), G.accr(2 * jp + 1, jy)
            for r in range(4): o(f"v_accvgpr_read_b32 v{T+r}, a{ra+r}")
            for r in range(4): o(f"v_accvgpr_read_b32 v{T+4+r}, a{rb+r}")
            for r in range(4): o(f"v_permlane16_swap_b32 v{T+r}, v{T+4+r}")
            U = E + 48
            for e in range(8): o(f"v_add_f32 v{T+e}, v{T+e}, v{BF+e}")
            for e in range(8): o(f"v_mul_f32 v{U+e}, v{T+e}, v{T+e}")
            for e in range(8): o(f"v_fma_f32 v{U+e}, v{U+e}, s46, 1.0")
            for e in range(8): o(f"v_mul_f32 v{U+e}, v{U+e}, v{T+e}")
            for e in range(8): o(f"v_mul_f32 v{U+e}, s47, v{U+e}")
            for e in range(8): o(f"v_exp_f32 v{U+e}, v{U+e}")
            for e in range(8): o(f"v_add_f32 v{U+e}, 1.0, v{U+e}")
            for e in range(8): o(f"v_rcp_f32 v{U+e}, v{U+e}")
            for e in range(8): o(f"v_mul_f32 v{T+e}, v{T+e}, v{U+e}")
            P = T - 4
            for d in range(4): o(f"v_cvt_pk_bf16_f32 v{P+d}, v{T+2*d}, v{T+2*d+1}")
            o(f"v_add_u32 v5, {jp*65536 + jy*1024}, v2")
            o(f"global_store_dwordx4 v5, {v(P,4)}, s[44:45]")

def prefetch_task(A, ka, nbytes, tag):
    o = A
    per = nbytes // 128
    assert per % 4096 == 0 or True
    n4k = (per + 4095) // 4096
    o(f"s_load_dwordx2 s[40:41], s[0:1], {ka}"); o("s_waitcnt lgkmcnt(0)")
    srd(o, 8, 40, 0, nbytes)
    o(f"s_mul_i32 s20, s{sB}, {n4k*4096}"); o(f"s_lshl_b32 s21, s{sW}, 10"); o("s_add_u32 s20, s20, s21")
    o("v_lshlrev_b32 v2, 4, v0")
    o(f"s_mov_b32 s22, {n4k}")
    A.label(f"L_pf_{tag}")
    o("buffer_load_dwordx4 v[8:11], v2, s[8:11], s20 offen")
    o("s_add_u32 s20, s20, 4096"); o("s_sub_u32 s22, s22, 1"); o("s_cmp_lg_u32 s22, 0")
    o(f"s_cbranch_scc0 L_pf_{tag}_d")
    o("buffer_load_dwordx4 v[12:15], v2, s[8:11], s20 offen")
    o("s_add_u32 s20, s20, 4096"); o("s_sub_u32 s22, s22, 1"); o("s_cmp_lg_u32 s22, 0")
    o("s_waitcnt vmcnt(24)")
    o(f"s_cbranch_scc1 L_pf_{tag}")
    A.label(f"L_pf_{tag}_d")
    o("s_waitcnt vmcnt(0)")

def op_pass(A, ntok_tiles_log2, opt=None):
    opt = opt or {}
    o = A
    sX, sY = 8, 12
    o("s_load_dwordx2 s[40:41], s[0:1], %d" % KA_WO); o("s_load_dwordx2 s[46:47], s[0:1], %d" % KA_X)
    sDt, sTt = 48, 49
    o(f"s_lshr_b32 s{sDt}, s{sXb}, 1"); o(f"s_lshl_b32 s{sDt}, s{sDt}, 2"); o(f"s_and_b32 s20, s{sI}, 3"); o(f"s_add_u32 s{sDt}, s{sDt}, s20")
    o(f"s_and_b32 s{sTt}, s{sXb}, 1"); o(f"s_lshl_b32 s{sTt}, s{sTt}, 2"); o(f"s_lshr_b32 s20, s{sI}, 2"); o(f"s_add_u32 s{sTt}, s{sTt}, s20")
    o(f"s_cmp_ge_u32 s{sTt}, {1 << ntok_tiles_log2}"); o(f"s_cbranch_scc1 L_opp_skip{ntok_tiles_log2}")
    o(f"s_lshl_b32 s{sTt}, s{sTt}, 6"); o(f"s_add_u32 s{sTt}, s{sTt}, s{sTok}")
    o("s_waitcnt lgkmcnt(0)")
    srd(o, sX, 40, 0, 8 * MiB); srd(o, sY, sWS, WS_O, 16 * MiB)
    G = Gemm(A, 2, 2, False, "o")
    sOffX, sOffY, sM0, sK = 20, 21, [22, 23], 24
    o(f"s_lshl_b32 s{sOffX}, s{sDt}, 7"); o(f"s_lshl_b32 s{sOffY}, s{sTt}, 6")
    o(f"s_mul_i32 s{sM0[0]}, s{sW}, {G.NIX*1024}"); o(f"s_mul_i32 s{sM0[1]}, s{sW}, {G.NIY*1024}")
    G.setup(sW, 0, 2048, 0, [1, 2, 3, 4, 5, 6], [25, 26, 27, 28])
    gen_loop2(G, sX, sY, sOffX, sOffY, sM0, sK, 32 * 2048, 128 * 1024, 128, f"L_opp{ntok_tiles_log2}", K=opt.get("opK", 4), R=opt.get("opR", 16), sSt=[32, 33, 34])
    E = G.vF
    o("v_and_b32 v1, 15, v0"); o("v_lshrrev_b32 v2, 4, v0"); o("v_and_b32 v3, 1, v2"); o("v_lshrrev_b32 v2, 1, v2")
    o("v_lshlrev_b32 v3, 4, v3"); o("v_lshl_add_u32 v3, v2, 3, v3")
    o(f"s_lshl_b32 s25, s{sDt}, 6"); o(f"s_and_b32 s26, s{sW}, 1"); o("s_lshl_b32 s26, s26, 5"); o("s_add_u32 s25, s25, s26")
    o("v_add_u32 v3, s25, v3")
    o(f"s_lshr_b32 s26, s{sW}, 1"); o("s_lshl_b32 s26, s26, 5"); o(f"s_add_u32 s25, s{sTt}, s26")
    o("v_add_u32 v1, s25, v1")
    o("v_lshlrev_b32 v4, 11, v1"); o("v_lshl_add_u32 v4, v3, 1, v4")
    o("v_lshlrev_b32 v5, 2, v3")
    o(f"s_add_u32 s44, s{sWS}, {WS_MOD + 2*4096}"); o(f"s_addc_u32 s45, s{sWS+1}, 0")
    GA = E + 64; XR = E + 72
    o(f"global_load_dwordx4 {v(GA,4)}, v5, s[44:45]"); o(f"global_load_dwordx4 {v(GA+4,4)}, v5, s[44:45] offset:16")
    for jy in range(2):
        o(f"v_add_u32 v6, {jy*16*2048}, v4"); o(f"global_load_dwordx4 {v(XR+4*jy,4)}, v6, s[46:47]")
    o(f"s_add_u32 s44, s{sWS}, {WS_X1}"); o(f"s_addc_u32 s45, s{sWS+1}, 0")
    for jy in range(2):
        T = E + 16 * jy + 4
        for r in range(4): o(f"v_accvgpr_read_b32 v{T+r}, a{G.accr(0, jy)+r}")
        for r in range(4): o(f"v_accvgpr_read_b32 v{T+4+r}, a{G.accr(1, jy)+r}")
        for r in range(4): o(f"v_permlane16_swap_b32 v{T+r}, v{T+4+r}")
        if jy == 0: o("s_waitcnt vmcnt(0)")
        U = E + 48
        unpack8(o, U, XR + 4 * jy)
        for e in range(8): o(f"v_fma_f32 v{T+e}, v{T+e}, v{GA+e}, v{U+e}")
        P = T - 4
        for d in range(4): o(f"v_cvt_pk_bf16_f32 v{P+d}, v{T+2*d}, v{T+2*d+1}")
        o(f"v_add_u32 v6, {jy*16*2048}, v4")
        o(f"global_store_dwordx4 v6, {v(P,4)}, s[44:45] sc1")
    A.label(f"L_opp_skip{ntok_tiles_log2}")

def ln2_pass(A, nks_log2):
    o = A
    if nks_log2 == 3:
        o(f"s_lshr_b32 s{sCh}, s{sTok}, 8"); ln2_task(A); return
    for h in range(2):
        o(f"s_mov_b32 s76, s{sXb}"); o(f"s_mov_b32 s77, s{sI}"); o(f"s_mov_b32 s78, s{sCh}")
        o(f"s_lshl_b32 s79, s{sXb}, 1"); o(f"s_lshr_b32 s80, s{sI}, 3"); o("s_add_u32 s79, s79, s80")
        o(f"s_and_b32 s80, s{sI}, 7"); o("s_lshl_b32 s80, s80, 1"); o(f"s_add_u32 s{sI}, s80, {h}")
        o(f"s_and_b32 s{sXb}, s79, 7"); o("s_lshr_b32 s79, s79, 3"); o(f"s_lshr_b32 s{sCh}, s{sTok}, 8"); o(f"s_add_u32 s{sCh}, s{sCh}, s79")
        ln2_task(A)
        o(f"s_mov_b32 s{sXb}, s76"); o(f"s_mov_b32 s{sI}, s77"); o(f"s_mov_b32 s{sCh}, s78")
        if h == 0: o("s_barrier")

def g1_pass(A, opt, nit, lab):
    o = A
    sX, sY = 8, 12
    o("s_load_dwordx2 s[40:41], s[0:1], %d" % KA_W1); o("s_waitcnt lgkmcnt(0)")
    srd(o, sX, 40, 0, 2048 * 7168); srd(o, sY, sWS, WS_H2T, 4 * MiB)
    o(f"s_add_u32 s26, s{sTok}, {32*nit}"); o(f"s_lshl_b32 s{sY+2}, s26, 11")
    o(f"s_mul_i32 s{sX+2}, s26, 7168")
    G = Gemm(A, 8, 4, False, "g", accbase=128)
    sOffX, sOffY, sM0, sK = 20, 21, [22, 23], 24
    o(f"s_mul_i32 s{sOffX}, s{sTok}, 7168"); o(f"s_lshl_b32 s26, s{sFt}, 9"); o(f"s_add_u32 s{sOffX}, s{sOffX}, s26")
    o(f"s_lshl_b32 s{sOffY}, s{sTok}, 11"); o(f"s_lshl_b32 s26, s{sDtG}, 13"); o(f"s_add_u32 s{sOffY}, s{sOffY}, s26")
    o(f"s_mul_i32 s{sM0[0]}, s{sW}, {G.NIX*1024}"); o(f"s_mul_i32 s{sM0[1]}, s{sW}, {G.NIY*1024}")
    G.setup(sW, 0, 7168, 0, [1, 2, 3, 4, 5, 6], [25, 26, 27, 28])
    o2 = dict(opt); o2["accum"] = 1; o2["S"] = 5
    gen_loop(G, sX, sY, sOffX, sOffY, sM0, sK, 32 * 7168, 64 * 1024, nit, lab, opt=o2, sSt=[32, 33, 34])
    o("s_barrier")
    return G

def fast_check(A, tag):
    o = A
    LB = 131072 - 64
    o(f"s_cmp_lg_u32 s{sW}, 0"); o(f"s_cbranch_scc1 L_fc_{tag}_w")
    o("s_mov_b64 exec, 0xff"); o("v_and_b32 v1, 3, v0"); o("v_lshlrev_b32 v1, 2, v1"); o("v_lshrrev_b32 v5, 2, v0"); o("v_lshl_add_u32 v1, v5, 7, v1"); o("s_mov_b32 s13, 0x200000")
    A.label(f"L_fc_{tag}_p")
    o(f"global_load_dword v4, v1, {s(sDBG,2)} sc1"); o("s_waitcnt vmcnt(0)")
    o("v_mov_b32 v5, v4")
    o("v_add_u32_dpp v5, v5, v5 quad_perm:[1,0,3,2] row_mask:0xf bank_mask:0xf")
    o("v_add_u32_dpp v5, v5, v5 quad_perm:[2,3,0,1] row_mask:0xf bank_mask:0xf")
    o("v_add_u32_dpp v5, v5, v5 row_half_mirror row_mask:0xf bank_mask:0xf")
    o("v_readfirstlane_b32 s14, v5")
    o("s_cmp_ge_u32 s14, 256"); o(f"s_cbranch_scc1 L_fc_{tag}_a")
    o("s_sleep 8"); o("s_sub_u32 s13, s13, 1"); o(f"s_cbranch_scc0 L_fc_{tag}_p")
    A.label(f"L_fc_{tag}_a")
    o("v_cmp_ne_u32 vcc, 32, v4"); o("s_nop 1"); o("s_cmp_eq_u64 vcc, 0"); o("s_cselect_b32 s15, 1, 0")
    o("s_mov_b64 exec, 1"); o("v_mov_b32 v6, s15"); o(f"v_mov_b32 v1, {LB}"); o("ds_write_b32 v1, v6"); o("s_waitcnt lgkmcnt(0)"); o("s_mov_b64 exec, -1")
    A.label(f"L_fc_{tag}_w")
    o("s_barrier")
    o(f"v_mov_b32 v1, {LB}"); o("ds_read_b32 v6, v1"); o("s_waitcnt lgkmcnt(0)"); o("v_readfirstlane_b32 s15, v6")
    o("s_barrier")

WS_MODP2 = 128 * 1024
CNT_FILL2 = 43520
def mod_half(A):
    o = A
    o("s_mov_b64 s[8:9], s[76:77]")
    o(f"s_lshr_b32 s12, s{sB}, 6"); o("s_lshl_b32 s12, s12, 9"); o(f"s_lshl_b32 s13, s{sW}, 7"); o("s_add_u32 s12, s12, s13")
    o("v_lshrrev_b32 v5, 2, v0"); o("v_add_u32 v5, s12, v5"); o("v_lshlrev_b32 v6, 2, v5")
    o("s_mov_b32 s13, 12288"); o("v_mul_lo_u32 v7, v5, s13"); o("v_and_b32 v26, 3, v0"); o("v_lshl_add_u32 v7, v26, 4, v7")
    o(f"s_and_b32 s12, s{sB}, 63"); o("s_lshl_b32 s12, s12, 6"); o("v_add_u32 v7, s12, v7")
    W = 32
    for it in range(8):
        o(f"global_load_dwordx4 {v(W+4*it,4)}, v7, s[8:9]"); o(f"v_add_u32 v7, {16*12288}, v7")
    return W

def mod_half_finish(A, W, younger):
    o = A
    Cc, AC = 64, 72
    for it in range(8): o(f"ds_read_b32 v{Cc+it}, v6 offset:{it*64}")
    for e in range(8): o(f"v_mov_b32 v{AC+e}, 0")
    o("s_waitcnt lgkmcnt(0)")
    for it in range(8):
        o(f"s_waitcnt vmcnt({7-it+younger})")
        for d in range(4):
            o(f"v_lshlrev_b32 v27, 16, v{W+4*it+d}"); o(f"v_and_b32 v28, 0xffff0000, v{W+4*it+d}")
            o(f"v_fmac_f32 v{AC+2*d}, v27, v{Cc+it}"); o(f"v_fmac_f32 v{AC+2*d+1}, v28, v{Cc+it}")
    for e in range(8):
        x = AC + e
        o(f"v_add_f32_dpp v{x}, v{x}, v{x} row_ror:4 row_mask:0xf bank_mask:0xf")
        o(f"v_add_f32_dpp v{x}, v{x}, v{x} row_ror:8 row_mask:0xf bank_mask:0xf")
        for sw in ("16", "32"):
            o(f"v_mov_b32 v27, v{x}"); o(f"v_permlane{sw}_swap_b32 v{x}, v27"); o(f"v_add_f32 v{x}, v{x}, v27")
    o(f"s_lshl_b32 s12, s{sW}, 7"); o("v_lshlrev_b32 v5, 5, v26"); o("v_add_u32 v5, s12, v5")
    o("s_mov_b64 exec, 0xf")
    o(f"ds_write_b128 v5, {v(AC,4)} offset:4096"); o(f"ds_write_b128 v5, {v(AC+4,4)} offset:4112")
    o("s_mov_b64 exec, -1")
    o("s_waitcnt lgkmcnt(0)"); o("s_barrier")
    o(f"s_cmp_lg_u32 s{sW}, 0"); o("s_cbranch_scc1 L_mh_d")
    o("v_lshlrev_b32 v5, 2, v0"); o("s_mov_b64 exec, 0xffffffff")
    for w in range(4): o(f"ds_read_b32 v{32+w}, v5 offset:{4096+w*128}")
    o("s_waitcnt lgkmcnt(0)")
    o("v_add_f32 v32, v32, v33"); o("v_add_f32 v34, v34, v35"); o("v_add_f32 v32, v32, v34")
    o(f"s_lshr_b32 s12, s{sB}, 6"); o("s_lshl_b32 s12, s12, 13"); o(f"s_and_b32 s13, s{sB}, 63"); o("s_lshl_b32 s13, s13, 7"); o("s_add_u32 s12, s12, s13"); o(f"s_add_u32 s12, s12, {WS_MODP2}")
    o("v_add_u32 v5, s12, v5")
    o(f"global_store_dword v5, v32, {s(sWS,2)} sc1")
    o("s_mov_b64 exec, -1")
    A.label("L_mh_d")

def ln1_pre(A):
    o = A
    o("s_mov_b64 s[16:17], s[78:79]")
    o("v_lshlrev_b32 v2, 4, v0")
    o(f"s_lshl_b32 s14, s{sB}, 4"); o(f"s_lshl_b32 s15, s{sW}, 2"); o("s_add_u32 s14, s14, s15"); o("s_lshl_b32 s15, s14, 11")
    o("s_add_u32 s16, s16, s15"); o("s_addc_u32 s17, s17, 0")
    for r in range(4):
        off = (r % 2) * 2048
        if r == 2: o("s_add_u32 s16, s16, 4096"); o("s_addc_u32 s17, s17, 0")
        o(f"global_load_dwordx4 {v(96+8*r,4)}, v2, s[16:17] offset:{off}"); o(f"global_load_dwordx4 {v(96+8*r+4,4)}, v2, s[16:17] offset:{off+1024}")

def ln1_stats(A):
    o = A
    X = [128, 144, 160, 176]
    for r in range(4):
        unpack8(o, X[r], 96 + 8 * r); unpack8(o, X[r] + 8, 96 + 8 * r + 4)
    ln_rows(o, X, 4, [4, 5], 1e-5)

def ln1_fin(A):
    o = A
    RAW = 96; X = [128, 144, 160, 176]
    o("v_lshlrev_b32 v3, 5, v0")
    SA, CA = 64, 80
    TT = {SA: 192, CA: 208}
    for dst, base in ((SA, 0), (CA, 4096)):
        for q in range(2):
            o(f"s_add_u32 s12, s{sWS}, {WS_MODP2 + q*8192 + base}"); o(f"s_addc_u32 s13, s{sWS+1}, 0")
            tgt = dst if q == 0 else TT[dst]
            for h in range(2):
                for k in range(2): o(f"global_load_dwordx4 {v(tgt+8*h+4*k,4)}, v3, s[12:13] offset:{h*2048+k*16} sc1")
    o(f"s_lshl_b32 s14, s{sB}, 4"); o(f"s_lshl_b32 s15, s{sW}, 2"); o("s_add_u32 s14, s14, s15")
    o("s_waitcnt vmcnt(0)")
    for dst in (SA, CA):
        for e in range(16): o(f"v_add_f32 v{dst+e}, v{dst+e}, v{TT[dst]+e}")
        for e in range(0, 16, 2):
            o(f"v_cvt_pk_bf16_f32 v6, v{dst+e}, v{dst+e+1}"); o(f"v_lshlrev_b32 v{dst+e}, 16, v6"); o(f"v_and_b32 v{dst+e+1}, 0xffff0000, v6")
    for e in range(16): o(f"v_add_f32 v{CA+e}, 1.0, v{CA+e}")
    for r in range(4):
        R0 = RAW + 8 * r
        for e in range(16): o(f"v_fma_f32 v{X[r]+e}, v{X[r]+e}, v{CA+e}, v{SA+e}")
        for h in range(2):
            for d in range(4): o(f"v_cvt_pk_bf16_f32 v{R0+4*h+d}, v{X[r]+8*h+2*d}, v{X[r]+8*h+2*d+1}")
        o(f"s_add_u32 s16, s14, {r}"); o("s_lshr_b32 s17, s16, 4"); o("s_and_b32 s16, s16, 15")
        o("s_lshr_b32 s18, s16, 2"); o("s_lshr_b32 s19, s18, 1"); o("s_and_b32 s18, s18, 1"); o("s_xor_b32 s18, s18, s19"); o("s_lshl_b32 s18, s18, 1"); o("s_or_b32 s18, s18, s19")
        o("v_and_b32 v4, 3, v0"); o("v_xor_b32 v4, s18, v4"); o("v_lshlrev_b32 v4, 4, v4")
        o("v_lshrrev_b32 v5, 2, v0"); o("v_lshl_add_u32 v4, v5, 17, v4")
        o("s_lshl_b32 s17, s17, 10"); o("s_lshl_b32 s16, s16, 6"); o("s_add_u32 s17, s17, s16"); o(f"s_add_u32 s17, s17, {WS_H}")
        o("v_add_u32 v4, s17, v4")
        o(f"global_store_dwordx4 v4, {v(R0,4)}, {s(sWS,2)} sc1")
        o(f"v_add_u32 v4, {16*131072}, v4")
        o(f"global_store_dwordx4 v4, {v(R0+4,4)}, {s(sWS,2)} sc1")

def gen_bulk(opt):
    A = Asm(); o = A
    bprof = opt.get("bprof")
    def bstamp(k, chunked=True):
        if not bprof: return
        o("s_memrealtime s[72:73]"); o("s_waitcnt lgkmcnt(0)")
        o(f"s_lshl_b32 s74, s{sB}, 10")
        if chunked:
            o(f"s_lshl_b32 s75, s{sCh}, 6"); o("s_add_u32 s74, s74, s75"); o(f"s_add_u32 s74, s74, 64")
        o(f"s_add_u32 s74, s74, {WS_PROF + 4*MiB + 0} + {k*4}")
        o("v_mov_b32 v250, s74"); o("v_mov_b32 v251, s72")
        o("s_mov_b64 exec, 1"); o(f"global_store_dword v250, v251, {s(sWS,2)}"); o("s_mov_b64 exec, -1")
    o(f"s_load_dwordx2 {s(sWS,2)}, s[0:1], {KA_WS}")
    o(f"s_load_dwordx2 s[76:77], s[0:1], {KA_WMOD}"); o(f"s_load_dwordx2 s[78:79], s[0:1], {KA_X}"); o(f"s_load_dwordx2 s[84:85], s[0:1], {KA_C}")
    o("s_waitcnt lgkmcnt(0)")
    o(f"s_add_u32 s{sCNT}, s{sWS}, {WS_CNT}"); o(f"s_addc_u32 s{sCNT+1}, s{sWS+1}, 0")
    o(f"s_cmp_eq_u32 s{sChk}, 0"); o("s_cbranch_scc0 L_cb"); o(f"s_add_u32 s{sCNT}, s{sCNT}, {SLOW_OFF}"); o(f"s_addc_u32 s{sCNT+1}, s{sCNT+1}, 0")
    A.label("L_cb")
    o(f"s_lshl_b32 s{sB}, s{sXb}, 4"); o(f"s_add_u32 s{sB}, s{sB}, s{sI}")
    o(f"s_mov_b32 s{sLim}, 0x400000")
    bstamp(0, False)
    ST2 = opt.get("st2")
    if ST2:
        W_ = mod_half(A)
        ln1_pre(A)
        silu_to_lds(A, pre=84)
        mod_half_finish(A, W_, 0)
        ln1_stats(A)
        o(f"s_cmp_eq_u32 s{sChk}, 0"); o("s_cbranch_scc1 L_nochk")
        fast_check(A, "b")
        o("s_cmp_eq_u32 s15, 0"); o("s_cbranch_scc1 M_slow")
        A.label("L_nochk")
        signal(A, CNT_MODA, "m1")
        bstamp(1, False)
        wait_cnt(A, CNT_MODA, 128, "ma")
        bstamp(2, False)
        ln1_fin(A)
        o(f"s_lshr_b32 s{sCntOff}, s{sB}, 4"); o(f"s_lshl_b32 s{sCntOff}, s{sCntOff}, 7")
        signal(A, CNT_LN1, "l1", off_s=sCntOff)
    else:
        silu_to_lds(A)
        o(f"s_lshl_b32 s{sCt}, s{sB}, 5")
        mod_task(A, sCt, "a")
        o(f"s_cmp_eq_u32 s{sChk}, 0"); o("s_cbranch_scc1 L_nochk")
        fast_check(A, "b")
        o("s_cmp_eq_u32 s15, 0"); o("s_cbranch_scc1 M_slow")
        A.label("L_nochk")
        if opt.get("flg"):
            o(f"s_cmp_lt_u32 s{sB}, 64"); o("s_cbranch_scc0 L_m1b")
            fsignal(A, CNT_MODAF, "m1", sB)
            o("s_branch L_m1c")
            A.label("L_m1b")
            signal(A, CNT_MODB, "m1b")
            A.label("L_m1c")
            bstamp(1, False)
            fwait(A, CNT_MODAF, 64, "ma")
            bstamp(2, False)
            ln1_task(A)
            o(f"s_lshr_b32 s{sCntOff}, s{sB}, 4"); o(f"s_lshl_b32 s{sCntOff}, s{sCntOff}, 7"); o(f"s_and_b32 s45, s{sB}, 15"); o("s_mov_b32 s75, s45")
            fsignal(A, CNT_LN1F, "l1", 75, off_s=sCntOff)
        else:
            o(f"s_cmp_lt_u32 s{sB}, 64"); o(f"s_cselect_b32 s{sCntOff}, {CNT_MODA}, s{sCntOff}"); o(f"s_mov_b32 s44, {CNT_MODB}"); o(f"s_cselect_b32 s{sCntOff}, s{sCntOff}, s44")
            signal(A, 0, "m1", off_s=sCntOff)
            bstamp(1, False)
            wait_cnt(A, CNT_MODA, 64, "ma")
            bstamp(2, False)
            ln1_task(A)
            o(f"s_lshr_b32 s{sCntOff}, s{sB}, 4"); o(f"s_lshl_b32 s{sCntOff}, s{sCntOff}, 7")
            signal(A, CNT_LN1, "l1", off_s=sCntOff)
    bstamp(3, False)
    srd_h = lambda: srd(o, 12, sWS, WS_H, 4 * MiB)
    o(f"s_mov_b32 s{sRound}, 0")
    A.label("L_task")
    t0, t1, t2 = 44, 45, 46
    o(f"s_lshl_b32 s{t0}, s{sXb}, 2"); o(f"s_and_b32 s{t1}, s{sI}, 3"); o(f"s_add_u32 s{t0}, s{t0}, s{t1}"); o(f"s_add_u32 s{t0}, s{t0}, 16")
    o(f"s_lshl_b32 s{t1}, s{sXb}, 1"); o(f"s_and_b32 s{t2}, s{sI}, 1"); o(f"s_add_u32 s{t1}, s{t1}, s{t2}")
    o(f"s_lshr_b32 s{t2}, s{sI}, 2")
    o(f"s_cmp_eq_u32 s{sRound}, 0"); o("s_cbranch_scc0 L_r1")
    if opt.get("t0map"):
        o(f"s_lshl_b32 s{sCt}, s{sXb}, 1"); o(f"s_and_b32 s45, s{sI}, 1"); o(f"s_add_u32 s{sCt}, s{sCt}, s45")
        o(f"s_bfe_u32 s45, s{sI}, 0x10001"); o("s_lshl_b32 s45, s45, 4"); o(f"s_add_u32 s{sCt}, s{sCt}, s45"); o(f"s_add_u32 s{sCt}, s{sCt}, 16")
        o(f"s_lshl_b32 s{sTok}, s{t2}, 6"); o("s_branch L_dec")
    else:
        o(f"s_mov_b32 s{sCt}, s{t0}"); o(f"s_lshl_b32 s{sTok}, s{t2}, 6"); o("s_branch L_dec")
    A.label("L_r1")
    if opt.get("thr"):
        NA = opt["thr"]
        o(f"s_cmp_ge_u32 s{sI}, {NA}"); o("s_cbranch_scc1 L_phase3")
        o(f"s_sub_u32 s{t0}, s{sRound}, 1"); o(f"s_mul_i32 s{t0}, s{t0}, {8*NA}"); o(f"s_mul_i32 s{t1}, s{sXb}, {NA}"); o(f"s_add_u32 s{t0}, s{t0}, s{t1}"); o(f"s_add_u32 s{t0}, s{t0}, s{sI}")
        o(f"s_cmp_ge_u32 s{t0}, 352"); o("s_cbranch_scc1 L_phase3")
        o(f"s_cmp_lt_u32 s{t0}, 224"); o("s_cbranch_scc0 L_thq")
        o(f"s_and_b32 s{sCt}, s{t0}, 31"); o(f"s_add_u32 s{sCt}, s{sCt}, 16"); o(f"s_lshr_b32 s{sTok}, s{t0}, 5"); o(f"s_add_u32 s{sTok}, s{sTok}, 1"); o(f"s_lshl_b32 s{sTok}, s{sTok}, 8"); o("s_branch L_dec")
        A.label("L_thq")
        o(f"s_sub_u32 s{t0}, s{t0}, 224"); o(f"s_and_b32 s{sCt}, s{t0}, 15"); o(f"s_lshr_b32 s{sTok}, s{t0}, 4"); o(f"s_lshl_b32 s{sTok}, s{sTok}, 8")
    else:
        o(f"s_cmp_eq_u32 s{sRound}, 1"); o("s_cbranch_scc0 L_r2")
        o(f"s_mov_b32 s{sCt}, s{t0}"); o(f"s_add_u32 s{sTok}, s{t2}, 1"); o(f"s_lshl_b32 s{sTok}, s{sTok}, 8"); o("s_branch L_dec")
        A.label("L_r2")
        o(f"s_cmp_eq_u32 s{sRound}, 2"); o("s_cbranch_scc0 L_r3")
        o(f"s_cmp_lt_u32 s{sI}, 12"); o("s_cbranch_scc0 L_r2q")
        o(f"s_mov_b32 s{sCt}, s{t0}"); o(f"s_add_u32 s{sTok}, s{t2}, 5"); o(f"s_lshl_b32 s{sTok}, s{sTok}, 8"); o("s_branch L_dec")
        A.label("L_r2q")
        o(f"s_mov_b32 s{sCt}, s{t1}"); o(f"s_sub_u32 s{sTok}, s{sI}, 12"); o(f"s_lshr_b32 s{sTok}, s{sTok}, 1"); o(f"s_lshl_b32 s{sTok}, s{sTok}, 8"); o("s_branch L_dec")
        A.label("L_r3")
        o(f"s_cmp_eq_u32 s{sRound}, 3"); o("s_cbranch_scc0 L_phase3")
        o(f"s_cmp_lt_u32 s{sI}, 12"); o("s_cbranch_scc0 L_phase3")
        o(f"s_mov_b32 s{sCt}, s{t1}"); o(f"s_lshr_b32 s{sTok}, s{sI}, 1"); o(f"s_add_u32 s{sTok}, s{sTok}, 2"); o(f"s_lshl_b32 s{sTok}, s{sTok}, 8")
    A.label("L_dec")
    o(f"s_lshr_b32 s{sCntOff}, s{sTok}, 8"); o(f"s_lshl_b32 s{sCntOff}, s{sCntOff}, 7")
    if opt.get("ksplit"):
        o(f"s_mov_b32 s73, s{sCntOff}")
        o(f"s_cmp_eq_u32 s{sRound}, 0"); o("s_cbranch_scc1 L_l1skip")
    if opt.get("flg"): fwait(A, CNT_LN1F, 16, "l1", off_s=sCntOff)
    else: wait_cnt(A, CNT_LN1, 16, "l1", off_s=sCntOff)
    if opt.get("ksplit"): A.label("L_l1skip")
    o(f"s_lshr_b32 s{t0}, s{sTok}, 8")
    o(f"s_lshl_b32 s{t1}, s{t0}, 3"); o(f"s_and_b32 s{t2}, s{sCt}, 15"); o(f"s_lshr_b32 s{t2}, s{t2}, 1"); o(f"s_add_u32 s{t1}, s{t1}, s{t2}"); o(f"s_lshl_b32 s{t1}, s{t1}, 7")
    o(f"s_lshl_b32 s{t0}, s{t0}, 7"); o(f"s_add_u32 s{t0}, s{t0}, {CNT_Q}")
    o(f"s_cmp_lt_u32 s{sCt}, 16"); o(f"s_cselect_b32 s{sCntOff}, s{t0}, s{t1}")
    o(f"s_lshr_b32 s{t0}, s{sCt}, 4"); o(f"s_lshl_b32 s{t1}, s{t0}, 3")
    o(f"s_add_u32 s40, s0, s{t1}"); o(f"s_addc_u32 s41, s1, 0")
    o(f"s_load_dwordx2 s[40:41], s[40:41], {KA_WQ}")
    o(f"s_lshl_b32 s{t1}, s{t0}, 24"); o(f"s_add_u32 s{t1}, s{t1}, {WS_Q}")
    o(f"s_add_u32 s16, s{sWS}, s{t1}"); o(f"s_addc_u32 s17, s{sWS+1}, 0"); o("s_and_b32 s17, s17, 0xffff")
    o(f"s_mov_b32 s18, {16*MiB}"); o("s_mov_b32 s19, 0x00020000")
    srd_h()
    o("s_waitcnt lgkmcnt(0)")
    srd(o, 8, 40, 0, 8 * MiB)
    o(f"s_cmp_eq_u32 s{sRound}, 0"); o("s_cbranch_scc1 L_small")
    o(f"s_cmp_ge_u32 s{sCt}, 32"); o("s_cbranch_scc1 L_bigv")
    qkv_tile(A, 8, False, "L_gA", sW, sCt, sTok, opt, None); o("s_branch L_sig")
    A.label("L_bigv")
    qkv_tile(A, 8, True, "L_gB", sW, sCt, sTok, opt, None); o("s_branch L_sig")
    A.label("L_small")
    osm = dict(opt); osm["S"] = 6
    o(f"s_cmp_ge_u32 s{sCt}, 32"); o("s_cbranch_scc1 L_smallv")
    dw = (lambda tg: (lambda: wait_cnt(A, CNT_LN1, 16, "l1" + tg, off_s=73))) if opt.get("ksplit") else (lambda tg: None)
    qkv_tile(A, 2, False, "L_gC", sW, sCt, sTok, osm, None, dep_wait=dw("c")); o("s_branch L_sig")
    A.label("L_smallv")
    qkv_tile(A, 2, True, "L_gD", sW, sCt, sTok, osm, None, dep_wait=dw("d"))
    A.label("L_sig")
    if opt.get("flg"):
        o(f"s_cmp_lg_u32 s{sRound}, 0"); o("s_cbranch_scc1 L_sgn")
        o(f"s_lshr_b32 s75, s{sTok}, 6"); o("s_lshl_b32 s75, s75, 2"); o(f"s_lshr_b32 s45, s{sCt}, 5"); o("s_lshl_b32 s45, s45, 1"); o("s_add_u32 s75, s75, s45")
        o(f"s_and_b32 s45, s{sCt}, 1"); o("s_add_u32 s75, s75, s45")
        o(f"s_and_b32 s74, s{sCt}, 15"); o("s_lshr_b32 s74, s74, 1"); o("s_lshl_b32 s74, s74, 7")
        fsignal(A, CNT_KV0F, "k0", 75, off_s=74)
        o("s_branch L_sgd")
        A.label("L_sgn")
        signal(A, 0, "t", off_s=sCntOff)
        A.label("L_sgd")
    else:
        signal(A, 0, "t", off_s=sCntOff)
    if ST2:
        o(f"s_cmp_lg_u32 s{sRound}, 0"); o("s_cbranch_scc1 L_nolate")
        o(f"s_lshl_b32 s12, s{sW}, 10"); o("v_lshlrev_b32 v3, 4, v0"); o("v_add_u32 v3, s12, v3")
        for r in range(4): o(f"v_mov_b32 v{8+r}, -1")
        o(f"s_mul_i32 s12, s{sB}, {7*MiB//128}"); o(f"s_add_u32 s12, s12, {WS_PARTF + MiB}")
        o(f"s_add_u32 s14, s{sWS}, s12"); o(f"s_addc_u32 s15, s{sWS+1}, 0")
        for k in range(14):
            o("global_store_dwordx4 v3, v[8:11], s[14:15] sc1"); o("s_add_u32 s14, s14, 4096"); o("s_addc_u32 s15, s15, 0")
        signal(A, CNT_FILL2, "f2")
        A.label("L_nolate")
    if bprof:
        o("s_memrealtime s[72:73]"); o("s_waitcnt lgkmcnt(0)")
        o(f"s_lshl_b32 s74, s{sB}, 10"); o(f"s_lshl_b32 s75, s{sRound}, 2"); o("s_add_u32 s74, s74, s75"); o(f"s_add_u32 s74, s74, {WS_PROF + 4*MiB + 16}")
        o("v_mov_b32 v250, s74"); o("v_mov_b32 v251, s72")
        o("s_mov_b64 exec, 1"); o(f"global_store_dword v250, v251, {s(sWS,2)}"); o("s_mov_b64 exec, -1")
    o(f"s_add_u32 s{sRound}, s{sRound}, 1")
    o("s_branch L_task")
    A.label("L_phase3")
    if not opt.get("st2"): o(f"s_cmp_ge_u32 s{sB}, 64"); o("s_cbranch_scc1 L_nomod2")
    silu_to_lds(A)
    o(f"s_lshl_b32 s{sCt}, s{sB}, 5"); o(f"s_add_u32 s{sCt}, s{sCt}, {2048 if opt.get('st2') else 4096}")
    mod_task(A, sCt, "b")
    signal(A, CNT_MODC, "m2")
    A.label("L_nomod2")
    if opt.get("late3"):
        wait_cnt(A, CNT_Q + (opt["late3"] - 1) * 128, 16, "lq", sleep=60)
    if opt.get("wpf", 1) == 1:
        prefetch_task(A, KA_WO, 8 * MiB, "wo"); prefetch_task(A, KA_W1, 2048 * 7168, "w1"); prefetch_task(A, KA_W2, 3584 * 4096, "w2")
    if opt.get("wpf", 1) == 2:
        prefetch_task(A, KA_W2, 3584 * 4096, "w2")
    if opt.get("sent"):
        o(f"s_lshl_b32 s12, s{sW}, 10"); o("v_lshlrev_b32 v3, 4, v0"); o("v_add_u32 v3, s12, v3")
        for r in range(4): o(f"v_mov_b32 v{8+r}, -1")
        o(f"s_lshl_b32 s12, s{sB}, 17"); o(f"s_add_u32 s12, s12, {128 * MiB}")
        o(f"s_add_u32 s14, s{sWS}, s12"); o(f"s_addc_u32 s15, s{sWS+1}, 0")
        o("s_mov_b32 s16, 32")
        A.label("L_sfill")
        o("global_store_dwordx4 v3, v[8:11], s[14:15]" + (" sc1" if opt.get("one") else "")); o("s_add_u32 s14, s14, 4096"); o("s_addc_u32 s15, s15, 0")
        o("s_sub_u32 s16, s16, 1"); o("s_cmp_lg_u32 s16, 0"); o("s_cbranch_scc1 L_sfill")
        o(f"s_cmp_ge_u32 s{sB}, 64"); o("s_cbranch_scc1 L_sfill2")
        o(f"s_lshl_b32 s12, s{sB}, 12"); o(f"s_add_u32 s12, s12, {144 * MiB}")
        o(f"s_add_u32 s14, s{sWS}, s12"); o(f"s_addc_u32 s15, s{sWS+1}, 0")
        o("global_store_dwordx4 v3, v[8:11], s[14:15]" + (" sc1" if opt.get("one") else ""))
        A.label("L_sfill2")
        o("s_waitcnt vmcnt(0)")
    P3 = opt.get("p3", 4)
    if P3 == 4:
        for r in range(128): o(f"v_accvgpr_write_b32 a{128+r}, 0")
    if P3 == 0:
        o("s_branch L_bulk_done")
    if P3 == 5:
        passes = opt.get("passes", [(0, 2), (2, 2), (4, 2), (6, 1), (7, 1)])
        for r in range(128): o(f"v_accvgpr_write_b32 a{128+r}, 0")
        o(f"s_lshr_b32 s{sDtG}, s{sXb}, 1"); o(f"s_lshl_b32 s{sDtG}, s{sDtG}, 1"); o(f"s_and_b32 s44, s{sI}, 1"); o(f"s_add_u32 s{sDtG}, s{sDtG}, s44")
        o(f"s_and_b32 s{sFt}, s{sXb}, 1"); o(f"s_lshl_b32 s{sFt}, s{sFt}, 3"); o(f"s_lshr_b32 s44, s{sI}, 1"); o(f"s_add_u32 s{sFt}, s{sFt}, s44")
        sPass, sPn = 83, 84
        def att_chunk(tag):
            o(f"s_lshl_b32 s{sCntOff}, s{sCh}, 3"); o(f"s_add_u32 s{sCntOff}, s{sCntOff}, s{sXb}"); o(f"s_lshl_b32 s{sCntOff}, s{sCntOff}, 7")
            wait_cnt(A, CNT_REC, 32, f"rec{tag}", off_s=sCntOff, sleep=8)
            o(f"s_lshl_b32 s{sCntOff}, s{sCh}, 7")
            wait_cnt(A, CNT_Q, 16, f"q{tag}", off_s=sCntOff)
            o(f"s_lshl_b32 s56, s{sB}, 2"); o(f"s_add_u32 s56, s56, s{sW}")
            o(f"s_lshr_b32 s57, s56, 6"); o(f"s_lshl_b32 s58, s{sCh}, 3"); o("s_add_u32 s57, s57, s58")
            o("s_lshr_b32 s58, s56, 1"); o("s_and_b32 s58, s58, 31"); o("s_and_b32 s59, s56, 1")
            attn_body(A, sWS, 57, 58, 59, 0, f"L_at{tag}", sc1=True)
        def rest(nch, tag):
            o(f"s_lshl_b32 s{sCntOff}, s{sPass}, 7")
            signal(A, CNT_ATT, f"a{tag}", off_s=sCntOff)
            wait_cnt(A, CNT_ATT, 128, f"a{tag}", off_s=sCntOff, sleep=4)
            bstamp(2)
            op_pass(A, 2 if nch == 1 else 3, opt)
            signal(A, CNT_OP, f"o{tag}", off_s=sCntOff)
            bstamp(3)
            wait_cnt(A, CNT_OP, 128, f"o{tag}", off_s=sCntOff, sleep=4)
            bstamp(4)
            ln2_pass(A, 3 if nch == 1 else 4)
            signal(A, CNT_LN, f"n{tag}", off_s=sCntOff)
            bstamp(5)
            o(f"s_cmp_ge_u32 s{sFt}, 14"); o(f"s_cbranch_scc1 L_nog1{tag}")
            wait_cnt(A, CNT_LN, 128, f"n{tag}", off_s=sCntOff, sleep=4)
            bstamp(6)
            G_ = g1_pass(A, opt, 8 * nch, f"L_g1{tag}")
            bstamp(7)
            A.label(f"L_nog1{tag}")
            return G_
        wait_cnt(A, CNT_MODB, 64, "mb5"); wait_cnt(A, CNT_MODC, 64, "mc5")
        nd = sum(1 for p in passes if p[1] == 2); ns = sum(1 for p in passes if p[1] == 1)
        o(f"s_mov_b32 s{sPass}, 0")
        A.label("L_dpass")
        o(f"s_lshl_b32 s{sCh}, s{sPass}, 1"); att_chunk("A"); bstamp(0)
        o(f"s_lshl_b32 s{sCh}, s{sPass}, 1"); o(f"s_add_u32 s{sCh}, s{sCh}, 1"); att_chunk("B"); bstamp(1)
        o(f"s_lshl_b32 s{sTok}, s{sPass}, 9"); o(f"s_lshl_b32 s{sCh}, s{sPass}, 1")
        G = rest(2, "D")
        o(f"s_add_u32 s{sPass}, s{sPass}, 1"); o(f"s_cmp_lt_u32 s{sPass}, {nd}"); o("s_cbranch_scc1 L_dpass")
        if ns:
            A.label("L_spass")
            o(f"s_add_u32 s{sCh}, s{sPass}, {nd}"); att_chunk("C"); bstamp(1)
            o(f"s_add_u32 s{sCh}, s{sPass}, {nd}"); o(f"s_lshl_b32 s{sTok}, s{sCh}, 8")
            rest(1, "S")
            o(f"s_add_u32 s{sPass}, s{sPass}, 1"); o(f"s_cmp_lt_u32 s{sPass}, {nd+ns}"); o("s_cbranch_scc1 L_spass")
        o(f"s_cmp_ge_u32 s{sFt}, 14"); o("s_cbranch_scc1 L_bulk_done")
        g1_epilogue(A, G, sFt, sDtG)
        o("s_branch L_bulk_done")
    if P3 not in (0, 5):
        o(f"s_mov_b32 s{sCh}, 0")
        A.label("L_chunk")
        if P3 >= 4:
            o(f"s_lshl_b32 s{sCntOff}, s{sCh}, 10"); o(f"s_add_u32 s{sCntOff}, s{sCntOff}, {7*128}")
            wait_cnt(A, CNT_REC, 32, "rec", off_s=sCntOff)
        else:
            if opt.get("aspread", 1):
                o(f"s_lshr_b32 s55, s{sI}, 1")
            else:
                o(f"s_mov_b32 s55, s{sXb}")
            o(f"s_lshl_b32 s{sCntOff}, s{sCh}, 3"); o(f"s_add_u32 s{sCntOff}, s{sCntOff}, s55"); o(f"s_lshl_b32 s{sCntOff}, s{sCntOff}, 7")
            if opt.get("relay"):
                o(f"s_cmp_lg_u32 s{sI}, 0"); o("s_cbranch_scc1 L_rly_w")
                wait_cnt(A, CNT_REC, 32, "rec", off_s=sCntOff, sleep=opt["relay"])
                signal(A, CNT_RLY, "rly", off_s=sCntOff)
                o("s_branch L_rly_d")
                A.label("L_rly_w")
                wait_cnt(A, CNT_RLY, 1, "rlw", off_s=sCntOff, sleep=16)
                A.label("L_rly_d")
            else:
                wait_cnt(A, CNT_REC, 32, "rec", off_s=sCntOff, sleep=opt.get("slp", 16))
        o(f"s_lshl_b32 s{sCntOff}, s{sCh}, 7")
        wait_cnt(A, CNT_Q, 16, "q", off_s=sCntOff)
        bstamp(0)
        if P3 >= 4 or not opt.get("aspread", 1):
            o(f"s_lshl_b32 s56, s{sB}, 2"); o(f"s_add_u32 s56, s56, s{sW}")
            o(f"s_lshr_b32 s57, s56, 6"); o(f"s_lshl_b32 s58, s{sCh}, 3"); o("s_add_u32 s57, s57, s58")
        else:
            o(f"s_lshl_b32 s56, s{sXb}, 1"); o(f"s_and_b32 s57, s{sI}, 1"); o("s_add_u32 s56, s56, s57"); o("s_lshl_b32 s56, s56, 2"); o(f"s_add_u32 s56, s56, s{sW}")
            o(f"s_lshr_b32 s57, s{sI}, 1"); o(f"s_lshl_b32 s58, s{sCh}, 3"); o("s_add_u32 s57, s57, s58")
        o("s_lshr_b32 s58, s56, 1"); o("s_and_b32 s58, s58, 31"); o("s_and_b32 s59, s56, 1")
        if opt.get("aser"):
            o("s_mov_b32 s54, 0")
            A.label("L_aser")
            o(f"s_cmp_lg_u32 s{sW}, s54"); o("s_cbranch_scc1 L_aser_s")
        attn_body(A, sWS, 57, 58, 59, 0, "L_at", sc1=(P3 >= 4), nt=opt.get("ant", 0))
        if opt.get("aser"):
            o("s_waitcnt vmcnt(0)")
            A.label("L_aser_s")
            o("s_barrier")
            o("s_add_u32 s54, s54, 1"); o("s_cmp_lt_u32 s54, 4"); o("s_cbranch_scc1 L_aser")
        if P3 >= 4:
            signal(A, CNT_ATT, "a", off_s=sCntOff)
            bstamp(1)
            wait_cnt(A, CNT_ATT, 128, "a", off_s=sCntOff)
            wait_cnt(A, CNT_MODB, 64, "mb")
            bstamp(2)
            op_task(A)
            signal(A, CNT_OP, "o", off_s=sCntOff)
            bstamp(3)
            wait_cnt(A, CNT_OP, 128, "o", off_s=sCntOff)
            wait_cnt(A, CNT_MODC, 64, "mc")
            bstamp(4)
            ln2_task(A)
            signal(A, CNT_LN, "n", off_s=sCntOff)
            bstamp(5)
            o(f"s_cmp_ge_u32 s{sI}, 14"); o("s_cbranch_scc1 L_nog1")
            wait_cnt(A, CNT_LN, 128, "n", off_s=sCntOff)
            bstamp(6)
            G = g1_partial(A, opt)
            bstamp(7)
            A.label("L_nog1")
            o(f"s_add_u32 s{sCh}, s{sCh}, 1"); o(f"s_cmp_lt_u32 s{sCh}, 8"); o("s_cbranch_scc1 L_chunk")
            o(f"s_cmp_ge_u32 s{sI}, 14"); o("s_cbranch_scc1 L_bulk_done")
            g1_epilogue(A, G)
        else:
            o("s_waitcnt vmcnt(0)")
            o(f"s_add_u32 s{sCh}, s{sCh}, 1"); o(f"s_cmp_lt_u32 s{sCh}, 8"); o("s_cbranch_scc1 L_chunk")
    A.label("L_bulk_done")
    o("s_waitcnt vmcnt(0)")
    if opt.get("one"):
        import k_tail
        k_tail.SENT = True
        o("s_barrier")
        o(f"s_add_u32 s{sCNT}, s{sWS}, {WS_CNT}"); o(f"s_addc_u32 s{sCNT+1}, s{sWS+1}, 0")
        signal(A, k_tail.CNT_BULK, "bk")
        o(f"s_cmp_eq_u32 s{sChk}, 0"); o("s_cbranch_scc0 L_one_c1"); o(f"s_add_u32 s{sCNT}, s{sCNT}, {SLOW_OFF}"); o(f"s_addc_u32 s{sCNT+1}, s{sCNT+1}, 0")
        A.label("L_one_c1")
        for c in range(8): wait_cnt(A, CNT_Q + c * 128, 16, f"oq{c}", sleep=opt.get("qs", 100))
        o(f"s_add_u32 s{sCNT}, s{sWS}, {WS_CNT}"); o(f"s_addc_u32 s{sCNT+1}, s{sWS+1}, 0")
        wait_cnt(A, k_tail.CNT_P58, 1, "p58", sleep=opt.get("ps", 100))
        A.raw(k_tail.gen_attn_early(opt["one"]))
        o("s_branch T_last")
    else:
        o("s_endpgm")
    return re.sub(r"\bL_", "B_L_", A.finish())

def gen_mega(name="mega_kernel", recopt=None, opt=None, force_slow=False, place=8):
    recopt = recopt or dict(E2_DEPTH=2, E2_SP=3, E2_DELAY=2)
    opt = opt or {"S": 4}
    A = Asm(); o = A
    o("s_cmp_ge_u32 s2, 256"); o("s_cbranch_scc1 M_end")
    o(f"s_load_dwordx2 {s(sDBG,2)}, s[0:1], {KA_DBG}")
    o(f"s_load_dwordx2 {s(sWS,2)}, s[0:1], {KA_WS}")
    o(f"s_load_dwordx2 s[10:11], s[0:1], {KA_MEM0}")
    if recopt.get("prof"): o("s_memrealtime s[92:93]")
    o("v_lshlrev_b32 v3, 4, v0")
    o("v_lshrrev_b32 v1, 6, v0"); o("v_and_b32 v0, 63, v0"); o(f"v_readfirstlane_b32 s{sW}, v1")
    o("s_getreg_b32 s4, hwreg(HW_REG_XCC_ID, 0, 4)"); o("s_and_b32 s4, s4, 7")
    for r in range(4): o(f"v_mov_b32 v{8+r}, -1")
    o("s_waitcnt lgkmcnt(0)")
    if opt.get("tlb"):
        st = opt["tlb"]
        o(f"s_cmp_lg_u32 s{sW}, 1"); o("s_cbranch_scc1 M_notlb")
        o(f"v_lshlrev_b32 v4, {st}, v0")
        srd(o, 16, sWS, 0, 144 * MiB)
        o("buffer_load_dword v40, v4, s[16:19], 0 offen")
        o(f"s_mov_b32 s20, {64 << st}"); o("buffer_load_dword v41, v4, s[16:19], s20 offen")
        for k, (ka, nb) in enumerate(((KA_X, 4 * MiB), (KA_WQ, 8 * MiB), (KA_WK, 8 * MiB), (KA_WV, 8 * MiB), (KA_WO, 8 * MiB), (KA_WMOD, 12 * MiB))):
            o(f"s_load_dwordx2 s[20:21], s[0:1], {ka}"); o("s_waitcnt lgkmcnt(0)")
            srd(o, 16, 20, 0, nb)
            o(f"buffer_load_dword v{42+k}, v4, s[16:19], 0 offen")
        A.label("M_notlb")
    o(f"s_lshl_b32 s12, s2, {12 if opt.get('st2') else 15}"); o(f"s_add_u32 s12, s12, {WS_PARTF}")
    o(f"s_add_u32 s14, s{sWS}, s12"); o(f"s_addc_u32 s15, s{sWS+1}, 0")
    for k in range(1 if opt.get('st2') else 8):
        o("global_store_dwordx4 v3, v[8:11], s[14:15] sc1"); o("s_add_u32 s14, s14, 4096"); o("s_addc_u32 s15, s15, 0")
    o("s_cmp_ge_u32 s2, 128"); o("s_cbranch_scc1 M_f2")
    o("s_lshl_b32 s12, s2, 12")
    o(f"s_add_u32 s13, s12, {WS_RQK}"); o(f"s_add_u32 s14, s{sWS}, s13"); o(f"s_addc_u32 s15, s{sWS+1}, 0")
    o("global_store_dwordx4 v3, v[8:11], s[14:15] sc1")
    o(f"s_add_u32 s13, s12, {WS_RMEM}"); o(f"s_add_u32 s14, s{sWS}, s13"); o(f"s_addc_u32 s15, s{sWS+1}, 0")
    o("s_cmp_lt_u32 s2, 32"); o("s_cbranch_scc1 M_img")
    o("global_store_dwordx4 v3, v[8:11], s[14:15] sc1"); o("s_branch M_f3")
    A.label("M_img")
    o(f"s_and_b32 s16, s2, 3"); o("s_lshl_b32 s16, s16, 2"); o(f"s_add_u32 s16, s16, s{sW}"); o("s_lshl_b32 s16, s16, 7")
    o("v_and_b32 v5, 7, v0"); o("v_lshlrev_b32 v5, 11, v5"); o("v_bfe_u32 v6, v0, 3, 1"); o("v_lshl_add_u32 v5, v6, 6, v5")
    o("v_lshrrev_b32 v6, 4, v0"); o("v_lshl_add_u32 v5, v6, 4, v5"); o("v_add_u32 v5, s16, v5")
    o("global_load_dwordx4 v[16:19], v5, s[10:11]"); o("s_waitcnt vmcnt(0)")
    o("global_store_dwordx4 v3, v[16:19], s[14:15] sc1"); o("s_branch M_f3")
    A.label("M_f2")
    o("s_cmp_ge_u32 s2, 192"); o("s_cbranch_scc1 M_f4")
    o("s_sub_u32 s12, s2, 128"); o("s_lshl_b32 s12, s12, 12")
    o(f"s_add_u32 s13, s12, {WS_RV}"); o(f"s_add_u32 s14, s{sWS}, s13"); o(f"s_addc_u32 s15, s{sWS+1}, 0")
    o("global_store_dwordx4 v3, v[8:11], s[14:15] sc1"); o("s_branch M_f3")
    A.label("M_f4")
    o("s_cmp_ge_u32 s2, 240"); o("s_cbranch_scc1 M_f3")
    o("s_sub_u32 s12, s2, 192"); o("s_lshl_b32 s12, s12, 12"); o(f"s_add_u32 s12, s12, {WS_CNT}")
    o(f"s_add_u32 s14, s{sWS}, s12"); o(f"s_addc_u32 s15, s{sWS+1}, 0")
    for r in range(4): o(f"v_mov_b32 v{8+r}, 0")
    o("global_store_dwordx4 v3, v[8:11], s[14:15] sc1")
    A.label("M_f3")
    o("s_waitcnt vmcnt(0)"); o("s_barrier")
    o(f"s_cmp_lg_u32 s{sW}, 0"); o("s_cbranch_scc1 M_w")
    o("s_and_b32 s12, s4, 3"); o("s_lshl_b32 s12, s12, 2"); o("s_lshr_b32 s13, s4, 2"); o("s_lshl_b32 s13, s13, 7"); o("s_add_u32 s12, s12, s13")
    o("v_mov_b32 v1, s12"); o("v_mov_b32 v2, 1"); o("s_mov_b64 exec, 1")
    o(f"global_atomic_add v3, v1, v2, {s(sDBG,2)} sc0"); o("s_waitcnt vmcnt(0)")
    o("v_mov_b32 v1, 0"); o("ds_write_b32 v1, v3"); o("s_waitcnt lgkmcnt(0)"); o("s_mov_b64 exec, -1")
    A.label("M_w")
    o("s_barrier"); o("v_mov_b32 v1, 0"); o("ds_read_b32 v6, v1"); o("s_waitcnt lgkmcnt(0)"); o("v_readfirstlane_b32 s5, v6"); o("s_barrier")
    o(f"s_mov_b32 s{sChk}, 1")
    if force_slow:
        fast_check(A, "t"); o("s_branch M_slow")
    if place == 8:
        o("s_cmp_lt_u32 s5, 16"); o("s_cbranch_scc1 M_rec_fast")
        o("s_cmp_lt_u32 s5, 32"); o("s_cbranch_scc0 M_idle")
        o("s_sub_u32 s5, s5, 16"); o("s_branch M_bulk")
    else:
        o("s_cmp_lt_u32 s5, 32"); o("s_cbranch_scc0 M_idle")
        o("s_and_b32 s12, s4, 3"); o("s_lshl_b32 s12, s12, 1"); o("s_lshr_b32 s13, s5, 4"); o("s_add_u32 s12, s12, s13"); o("s_and_b32 s5, s5, 15")
        o("s_cmp_lt_u32 s4, 4"); o("s_mov_b32 s4, s12"); o("s_cbranch_scc1 M_rec_fast"); o("s_branch M_bulk")
    A.label("M_idle")
    fast_check(A, "i")
    A.label("M_slow")
    o(f"s_mov_b32 s{sChk}, 0")
    o("s_lshr_b32 s4, s2, 4"); o("s_and_b32 s4, s4, 7"); o("s_and_b32 s5, s2, 15")
    o("s_cmp_lt_u32 s2, 128"); o("s_cbranch_scc1 M_rec_slow")
    o("s_branch M_bulk")
    A.label("M_end"); o("s_endpgm")
    t = A.finish()
    t += "M_bulk:\n" + gen_bulk(opt)
    Ah = Asm(); fast_check(Ah, "r"); Ah("s_cmp_eq_u32 s15, 0"); Ah("s_cbranch_scc1 M_slow")
    hook = Ah.finish()
    one_ = None
    if opt.get("one"):
        import k_tail
        pstep = opt["one"] // 32 + 2
        one_ = dict(done=k_tail.CNT_DONE, p58=k_tail.CNT_P58, pstep=pstep)
        recopt = dict(recopt); recopt["KMSC1"] = 1
    pre = ""
    if opt.get("rwait"):
        Ap = Asm()
        fast_check(Ap, "p"); Ap("s_cmp_eq_u32 s15, 0"); Ap("s_cbranch_scc1 M_slow")
        Ap(f"s_load_dwordx2 {s(sWS,2)}, s[0:1], {KA_WS}"); Ap("s_waitcnt lgkmcnt(0)")
        Ap(f"s_add_u32 s{sCNT}, s{sWS}, {WS_CNT}"); Ap(f"s_addc_u32 s{sCNT+1}, s{sWS+1}, 0"); Ap(f"s_mov_b32 s{sLim}, 0x400000")
        wait_cnt(Ap, CNT_MODA if opt["rwait"] == 1 else CNT_LN1, 128 if opt["rwait"] == 1 else 16, "rp", sleep=8)
        pre = re.sub(r"\bL_", "RP_L_", Ap.finish())
    t += "M_rec_fast:\n" + pre + rec.gen_rec(embedded=True, pfx="RF_", fast=True, KVCHK=True, SIG=(opt.get("p3", 4) != 0), hook=hook, cntoff=0, KV0F=(CNT_KV0F if opt.get('flg') else None), ONE=one_, FILL2=(CNT_FILL2 if opt.get('st2') else None), **recopt)
    t += "M_rec_slow:\n" + rec.gen_rec(embedded=True, pfx="RS_", fast=False, KVCHK=True, SIG=(opt.get("p3", 4) != 0), hook=None, cntoff=SLOW_OFF, KV0F=(CNT_KV0F if opt.get('flg') else None), ONE=one_, FILL2=(CNT_FILL2 if opt.get('st2') else None), **recopt)
    if opt.get("one"):
        import k_tail
        k_tail.SENT = True
        t += k_tail.gen_tail_text(opt["one"])
    return kernel_head(name) + t + kernel_desc(name, 256, 256)
```

```python
from asmlib import *
from layout import *
from gemm import Gemm, gen_loop, gen_loop2
from k_qkv import srd
from k_small import fbits, LOG2E, wave_sum, ln_rows, unpack8, gfun
from k_attn import attn_body
from mega import qkv_tile
import rec12 as rec
import re, math

CNT_MODA, CNT_MODB, CNT_MODC = 40960, 40960 + 128, 40960 + 256
CNT_LN1 = 41984
CNT_RLY = 24576
SLOW_OFF = 65536

sW, sXb, sI, sWS = 3, 4, 5, 6
sCNT, sB, sCh, sRound, sChk, sLim = 60, 62, 63, 64, 65, 66
sCt, sTok, sCntOff = 67, 68, 69
sDBG = 70
sFt, sDtG = 81, 82

WSLEEP = 3
def wait_cnt(A, off, target, tag, off_s=None, sleep=None):
    if sleep is None: sleep = WSLEEP
    o = A
    o(f"s_cmp_lg_u32 s{sW}, 0"); o(f"s_cbranch_scc1 L_wc_{tag}_b")
    if off_s is None: o(f"v_mov_b32 v2, {off}")
    else:
        o(f"s_add_u32 s44, s{off_s}, {off}"); o("v_mov_b32 v2, s44")
    A.label(f"L_wc_{tag}")
    o(f"global_load_dword v3, v2, {s(sCNT,2)} sc1")
    o("s_waitcnt vmcnt(0)")
    o("v_readfirstlane_b32 s44, v3")
    o(f"s_cmp_ge_u32 s44, {target}"); o(f"s_cbranch_scc1 L_wc_{tag}_b")
    o(f"s_sleep {sleep}")
    o(f"s_sub_u32 s{sLim}, s{sLim}, 1"); o(f"s_cbranch_scc0 L_wc_{tag}")
    o(f"s_mov_b32 s{sLim}, 0")
    A.label(f"L_wc_{tag}_b")
    o("s_barrier")

def signal(A, off, tag, off_s=None):
    o = A
    o("s_waitcnt vmcnt(0)"); o("s_barrier")
    o(f"s_cmp_lg_u32 s{sW}, 0"); o(f"s_cbranch_scc1 L_sg_{tag}")
    if off_s is None: o(f"v_mov_b32 v2, {off}")
    else:
        o(f"s_add_u32 s44, s{off_s}, {off}"); o("v_mov_b32 v2, s44")
    o("v_mov_b32 v3, 1"); o("s_mov_b64 exec, 1")
    o(f"global_atomic_add v2, v3, {s(sCNT,2)}")
    o("s_mov_b64 exec, -1")
    A.label(f"L_sg_{tag}")

CNT_MODAF, CNT_LN1F, CNT_KV0F = 44032, 44544, 45568
def fsignal(A, off, tag, idx_s, off_s=None):
    o = A
    o("s_waitcnt vmcnt(0)"); o("s_barrier")
    o(f"s_cmp_lg_u32 s{sW}, 0"); o(f"s_cbranch_scc1 L_fs_{tag}")
    o(f"s_lshl_b32 s44, s{idx_s}, 2"); o(f"s_add_u32 s44, s44, {off}")
    if off_s is not None: o(f"s_add_u32 s44, s44, s{off_s}")
    o("v_mov_b32 v2, s44"); o("v_mov_b32 v3, 1"); o("s_mov_b64 exec, 1")
    o(f"global_store_dword v2, v3, {s(sCNT,2)} sc1"); o("s_mov_b64 exec, -1")
    A.label(f"L_fs_{tag}")

def fwait(A, off, n, tag, off_s=None, sleep=4):
    o = A
    o(f"s_cmp_lg_u32 s{sW}, 0"); o(f"s_cbranch_scc1 L_fw_{tag}_b")
    o("v_lshlrev_b32 v2, 2, v0")
    if off_s is not None:
        o(f"s_add_u32 s44, s{off_s}, {off}"); o("v_add_u32 v2, s44, v2")
    else:
        o(f"v_add_u32 v2, {off}, v2")
    o(f"s_mov_b64 exec, {hex((1 << n) - 1) if n < 64 else -1}")
    A.label(f"L_fw_{tag}")
    o(f"global_load_dword v3, v2, {s(sCNT,2)} sc1"); o("s_waitcnt vmcnt(0)")
    o("v_cmp_eq_u32 vcc, 0, v3"); o(f"s_cbranch_vccz L_fw_{tag}_o")
    o(f"s_sleep {sleep}"); o(f"s_sub_u32 s{sLim}, s{sLim}, 1"); o(f"s_cbranch_scc0 L_fw_{tag}"); o(f"s_mov_b32 s{sLim}, 0")
    A.label(f"L_fw_{tag}_o")
    o("s_mov_b64 exec, -1")
    A.label(f"L_fw_{tag}_b")
    o("s_barrier")

def mod_task(A, sCol, tag):
    o = A
    o("s_load_dwordx2 s[8:9], s[0:1], %d" % KA_WMOD)
    o("v_lshrrev_b32 v5, 2, v0"); o(f"s_lshl_b32 s12, s{sW}, 8"); o("v_add_u32 v5, s12, v5")
    o("v_lshlrev_b32 v6, 2, v5")
    o("s_mov_b32 s13, 12288"); o("v_mul_lo_u32 v7, v5, s13")
    o("v_and_b32 v26, 3, v0"); o("v_lshl_add_u32 v7, v26, 4, v7")
    o(f"s_lshl_b32 s12, s{sCol}, 1"); o("v_add_u32 v7, s12, v7")
    o("s_waitcnt lgkmcnt(0)")
    W = 32; Cc = 96; AC = 112
    for it in range(16):
        o(f"global_load_dwordx4 {v(W+4*it,4)}, v7, s[8:9]")
        o(f"v_add_u32 v7, {16*12288}, v7")
        o(f"ds_read_b32 v{Cc+it}, v6 offset:{it*64}")
    for e in range(8): o(f"v_mov_b32 v{AC+e}, 0")
    o("s_waitcnt lgkmcnt(0)")
    for it in range(16):
        o(f"s_waitcnt vmcnt({15-it})")
        for d in range(4):
            o(f"v_lshlrev_b32 v27, 16, v{W+4*it+d}")
            o(f"v_and_b32 v28, 0xffff0000, v{W+4*it+d}")
            o(f"v_fmac_f32 v{AC+2*d}, v27, v{Cc+it}")
            o(f"v_fmac_f32 v{AC+2*d+1}, v28, v{Cc+it}")
    for e in range(8):
        x = AC + e
        o(f"v_add_f32_dpp v{x}, v{x}, v{x} row_ror:4 row_mask:0xf bank_mask:0xf")
        o(f"v_add_f32_dpp v{x}, v{x}, v{x} row_ror:8 row_mask:0xf bank_mask:0xf")
        for sw in ("16", "32"):
            o(f"v_mov_b32 v27, v{x}"); o(f"v_permlane{sw}_swap_b32 v{x}, v27"); o(f"v_add_f32 v{x}, v{x}, v27")
    o(f"s_lshl_b32 s12, s{sW}, 7"); o("v_lshlrev_b32 v5, 5, v26"); o("v_add_u32 v5, s12, v5")
    o("s_mov_b64 exec, 0xf")
    o(f"ds_write_b128 v5, {v(AC,4)} offset:4096"); o(f"ds_write_b128 v5, {v(AC+4,4)} offset:4112")
    o("s_mov_b64 exec, -1")
    o("s_waitcnt lgkmcnt(0)"); o("s_barrier")
    o(f"s_cmp_lg_u32 s{sW}, 0"); o(f"s_cbranch_scc1 L_mod_{tag}_d")
    o("v_lshlrev_b32 v5, 2, v0")
    o("s_mov_b64 exec, 0xffffffff")
    for w in range(4): o(f"ds_read_b32 v{32+w}, v5 offset:{4096+w*128}")
    o("s_waitcnt lgkmcnt(0)")
    o("v_add_f32 v32, v32, v33"); o("v_add_f32 v34, v34, v35"); o("v_add_f32 v32, v32, v34")
    o("v_cvt_pk_bf16_f32 v32, v32, v32"); o("v_lshlrev_b32 v32, 16, v32")
    o(f"s_lshl_b32 s12, s{sCol}, 2"); o(f"s_add_u32 s12, s12, {WS_MOD}"); o("v_add_u32 v5, s12, v5")
    o(f"global_store_dword v5, v32, {s(sWS,2)} sc1")
    o("s_mov_b64 exec, -1")
    A.label(f"L_mod_{tag}_d")

def silu_to_lds(A, pre=None):
    o = A
    if pre: o(f"s_mov_b64 s[8:9], s[{pre}:{pre+1}]")
    else: o("s_load_dwordx2 s[8:9], s[0:1], %d" % KA_C)
    o(f"s_lshl_b32 s12, s{sW}, 6"); o("v_add_u32 v4, s12, v0")
    o("v_lshlrev_b32 v5, 3, v4")
    o("s_waitcnt lgkmcnt(0)")
    o("global_load_dwordx2 v[12:13], v5, s[8:9]")
    o("s_waitcnt vmcnt(0)")
    o("v_lshlrev_b32 v14, 16, v12"); o("v_and_b32 v15, 0xffff0000, v12"); o("v_lshlrev_b32 v16, 16, v13"); o("v_and_b32 v17, 0xffff0000, v13")
    o(f"s_mov_b32 s12, {fbits(-LOG2E)}")
    for r in range(4):
        o(f"v_mul_f32 v{20+r}, s12, v{14+r}"); o(f"v_exp_f32 v{20+r}, v{20+r}"); o(f"v_add_f32 v{20+r}, 1.0, v{20+r}")
        o(f"v_rcp_f32 v{20+r}, v{20+r}"); o(f"v_mul_f32 v{20+r}, v{14+r}, v{20+r}")
    o("v_cvt_pk_bf16_f32 v24, v20, v21"); o("v_cvt_pk_bf16_f32 v25, v22, v23")
    o("v_lshlrev_b32 v20, 16, v24"); o("v_and_b32 v21, 0xffff0000, v24"); o("v_lshlrev_b32 v22, 16, v25"); o("v_and_b32 v23, 0xffff0000, v25")
    o("v_lshlrev_b32 v4, 4, v4")
    o("ds_write_b128 v4, v[20:23]")
    o("s_waitcnt lgkmcnt(0)"); o("s_barrier")

def ln1_task(A):
    o = A
    o("s_load_dwordx2 s[8:9], s[0:1], %d" % KA_X)
    o("v_lshlrev_b32 v2, 4, v0"); o("v_lshlrev_b32 v3, 5, v0")
    o(f"s_add_u32 s12, s{sWS}, {WS_MOD}"); o(f"s_addc_u32 s13, s{sWS+1}, 0")
    SA, CA = 64, 80
    for h in range(2):
        for q in range(2): o(f"global_load_dwordx4 {v(SA+8*h+4*q,4)}, v3, s[12:13] offset:{h*2048+q*16}")
    o("s_add_u32 s12, s12, 4096"); o("s_addc_u32 s13, s13, 0")
    for h in range(2):
        for q in range(2): o(f"global_load_dwordx4 {v(CA+8*h+4*q,4)}, v3, s[12:13] offset:{h*2048+q*16}")
    o(f"s_lshl_b32 s14, s{sB}, 4"); o(f"s_lshl_b32 s15, s{sW}, 2"); o("s_add_u32 s14, s14, s15")
    o("s_waitcnt lgkmcnt(0)")
    o("s_lshl_b32 s15, s14, 11"); o("s_add_u32 s10, s8, s15"); o("s_addc_u32 s11, s9, 0")
    RAW = 96
    for r in range(4):
        off = r * 2048
        if off >= 4096:
            if r == 2: o("s_add_u32 s10, s10, 4096"); o("s_addc_u32 s11, s11, 0")
            off -= 4096
        o(f"global_load_dwordx4 {v(RAW+8*r,4)}, v2, s[10:11] offset:{off}")
        o(f"global_load_dwordx4 {v(RAW+8*r+4,4)}, v2, s[10:11] offset:{off+1024}")
    o("s_waitcnt vmcnt(8)")
    for e in range(16): o(f"v_add_f32 v{CA+e}, 1.0, v{CA+e}")
    X = [32, 48]
    for pr in range(2):
        o(f"s_waitcnt vmcnt({4 if pr == 0 else 0})") if pr == 0 else None
        if pr == 1: o("s_waitcnt vmcnt(4)")
        for r in range(2):
            unpack8(o, X[r], RAW + 8 * (2 * pr + r)); unpack8(o, X[r] + 8, RAW + 8 * (2 * pr + r) + 4)
        ln_rows(o, X, 2, [4, 5], 1e-5)
        for r in range(2):
            R0 = 8 + 8 * r
            for e in range(16): o(f"v_fma_f32 v{X[r]+e}, v{X[r]+e}, v{CA+e}, v{SA+e}")
            for h in range(2):
                for d in range(4): o(f"v_cvt_pk_bf16_f32 v{R0+4*h+d}, v{X[r]+8*h+2*d}, v{X[r]+8*h+2*d+1}")
            o(f"s_add_u32 s16, s14, {2*pr+r}"); o("s_lshr_b32 s17, s16, 4"); o("s_and_b32 s16, s16, 15")
            o("s_lshr_b32 s18, s16, 2"); o("s_lshr_b32 s19, s18, 1"); o("s_and_b32 s18, s18, 1"); o("s_xor_b32 s18, s18, s19"); o("s_lshl_b32 s18, s18, 1"); o("s_or_b32 s18, s18, s19")
            o("v_and_b32 v4, 3, v0"); o("v_xor_b32 v4, s18, v4"); o("v_lshlrev_b32 v4, 4, v4")
            o("v_lshrrev_b32 v5, 2, v0"); o("v_lshl_add_u32 v4, v5, 17, v4")
            o("s_lshl_b32 s17, s17, 10"); o("s_lshl_b32 s16, s16, 6"); o("s_add_u32 s17, s17, s16"); o(f"s_add_u32 s17, s17, {WS_H}")
            o("v_add_u32 v4, s17, v4")
            o(f"global_store_dwordx4 v4, {v(R0,4)}, {s(sWS,2)} sc1")
            o(f"v_add_u32 v4, {16*131072}, v4")
            o(f"global_store_dwordx4 v4, {v(R0+4,4)}, {s(sWS,2)} sc1")
        if pr == 0: o("s_nop 1")

def op_task(A):
    o = A
    S = 4; SBW = 6144
    sX, sY = 8, 12
    o("s_load_dwordx2 s[40:41], s[0:1], %d" % KA_WO); o("s_load_dwordx2 s[46:47], s[0:1], %d" % KA_X)
    o("s_waitcnt lgkmcnt(0)")
    srd(o, sX, 40, 0, 8 * MiB); srd(o, sY, sWS, WS_O, 16 * MiB)
    sDt, sTg = 48, 49
    o(f"s_lshl_b32 s{sDt}, s{sXb}, 1"); o(f"s_and_b32 s20, s{sI}, 1"); o(f"s_add_u32 s{sDt}, s{sDt}, s20")
    o(f"s_lshr_b32 s{sTg}, s{sI}, 1"); o(f"s_lshl_b32 s20, s{sCh}, 3"); o(f"s_add_u32 s{sTg}, s{sTg}, s20")
    sOX, sOY, sLb, sRd, sDm, sK = 20, 21, 22, 23, 24, 25
    o(f"s_lshl_b32 s{sOX}, s{sDt}, 7"); o(f"s_lshl_b32 s26, s{sW}, 16"); o(f"s_add_u32 s{sOX}, s{sOX}, s26")
    o(f"s_lshl_b32 s{sOY}, s{sTg}, 11"); o(f"s_lshl_b32 s26, s{sW}, 17"); o(f"s_add_u32 s{sOY}, s{sOY}, s26")
    o(f"s_mul_i32 s{sLb}, s{sW}, {S*SBW}")
    vi, vg, t0, t1, t2, t3 = 1, 2, 3, 4, 5, 6
    vXr, vYr, vXd, vYd, vC = 8, 12, 13, 17, 20
    o(f"v_and_b32 v{vi}, 15, v0"); o(f"v_lshrrev_b32 v{vg}, 4, v0")
    o(f"v_lshrrev_b32 v{t0}, 2, v{vi}"); o(f"v_and_b32 v{t1}, 1, v{vg}"); o(f"v_lshrrev_b32 v{t2}, 1, v{vg}")
    o(f"v_lshlrev_b32 v{t3}, 4, v{t2}"); o(f"v_lshl_add_u32 v{t3}, v{t0}, 1, v{t3}"); o(f"v_add_u32 v{t3}, v{t3}, v{t1}")
    o(f"v_lshlrev_b32 v{t3}, 7, v{t3}"); o(f"v_and_b32 v{t1}, 3, v{vi}"); o(f"v_lshl_add_u32 v{t3}, v{t1}, 3, v{t3}")
    o(f"v_add_u32 v{t3}, s{sLb}, v{t3}")
    for j in range(4):
        o(f"v_xor_b32 v{t1}, {j}, v{t0}"); o(f"v_lshl_add_u32 v{vXr+j}, v{t1}, 5, v{t3}")
    gfun(o, t2, vi, t1); o(f"v_xor_b32 v{t2}, v{t2}, v{vg}"); o(f"v_lshlrev_b32 v{t2}, 4, v{t2}"); o(f"v_lshl_add_u32 v{t2}, v{vi}, 6, v{t2}")
    o(f"s_add_u32 s26, s{sLb}, 4096"); o(f"v_add_u32 v{vYr}, s26, v{t2}")
    o(f"v_lshrrev_b32 v{t0}, 3, v0"); o(f"v_and_b32 v{t1}, 7, v0")
    o(f"v_lshrrev_b32 v{t3}, 1, v{t0}"); o(f"v_and_b32 v{t2}, 1, v{t0}"); o(f"v_lshl_add_u32 v{t2}, v{t2}, 3, v{t3}")
    o(f"v_lshrrev_b32 v{vi}, 1, v{t1}"); o(f"v_xor_b32 v{vi}, v{vi}, v{t3}"); o(f"v_lshlrev_b32 v{vi}, 5, v{vi}")
    o(f"v_and_b32 v{t1}, 1, v{t1}"); o(f"v_lshl_or_b32 v{vi}, v{t1}, 4, v{vi}")
    o(f"v_lshl_add_u32 v{vXd}, v{t2}, 11, v{vi}")
    for t in range(1, 4): o(f"v_add_u32 v{vXd+t}, {(4*(t&1) + 16*(t>>1))*2048}, v{vXd}")
    o(f"v_lshlrev_b32 v{vYd}, 4, v0"); o(f"v_add_u32 v{vYd+1}, 1024, v{vYd}")
    F = 28; FS = 24
    AC = 80
    def dma():
        L = []
        for t in range(4): L.append([f"s_add_u32 m0, s26, {t*1024}", f"buffer_load_dwordx4 v{vXd+t}, {s(sX,4)}, s{sOX} offen lds"])
        for t in range(2): L.append([f"s_add_u32 m0, s26, {4096+t*1024}", f"buffer_load_dwordx4 v{vYd+t}, {s(sY,4)}, s{sOY} offen lds"])
        return L
    def adv(r): return [f"s_add_u32 s{r}, s{r}, {SBW}", f"s_cmp_eq_u32 s{r}, {S*SBW}", f"s_cselect_b32 s{r}, 0, s{r}"]
    def dma_all():
        o(f"s_add_u32 s26, s{sLb}, s{sDm}")
        for g in dma():
            o(g[0]); o("s_nop 0"); o(g[1])
        o(f"s_add_u32 s{sOX}, s{sOX}, {4*32*2048}"); o(f"s_add_u32 s{sOY}, s{sOY}, {4*131072}")
        for x in adv(sDm): o(x)
    def rd(ph):
        for j in range(5): o(f"v_add_u32 v{vC+j}, s{sRd}, v{(vXr+j) if j < 4 else vYr}")
        for j in range(2): o(f"ds_read_b128 {v(F+ph*FS+16+4*j,4)}, v{vC+4} offset:{j*1024}")
        for j in range(4):
            o(f"ds_read_b64_tr_b16 {v(F+ph*FS+4*j,2)}, v{vC+j}"); o(f"ds_read_b64_tr_b16 {v(F+ph*FS+4*j+2,2)}, v{vC+j} offset:1024")
        for x in adv(sRd): o(x)
    o(f"s_mov_b32 s{sDm}, 0"); o(f"s_mov_b32 s{sRd}, 0")
    for st in range(S): dma_all()
    o(f"s_waitcnt vmcnt({6*(S-1)})")
    rd(0)
    def iteration(ph, first):
        o(f"s_waitcnt vmcnt({6*(S-2)}) lgkmcnt(0)")
        dma_all()
        rd(ph ^ 1)
        for jy in range(2):
            for jx in range(4):
                d = AC + (jx * 2 + jy) * 4
                c = "0" if first else v(d, 4)
                o(f"v_mfma_f32_16x16x32_bf16 {v(d,4)}, {v(F+ph*FS+4*jx,4)}, {v(F+ph*FS+16+4*jy,4)}, {c}")
    iteration(0, True); iteration(1, False)
    o(f"s_mov_b32 s{sK}, 15")
    A.label("L_op_loop")
    iteration(0, False); iteration(1, False)
    o(f"s_sub_u32 s{sK}, s{sK}, 1"); o(f"s_cmp_lg_u32 s{sK}, 0"); o("s_cbranch_scc1 L_op_loop")
    o("s_waitcnt vmcnt(0) lgkmcnt(0)")
    o("s_barrier")
    o("v_lshlrev_b32 v1, 4, v0"); o(f"s_lshl_b32 s26, s{sW}, 13"); o("v_add_u32 v2, s26, v1")
    for t in range(8): o(f"ds_write_b128 v2, {v(AC+4*t,4)} offset:{t*1024}")
    o("v_and_b32 v3, 15, v0"); o("v_lshrrev_b32 v4, 4, v0"); o("v_and_b32 v5, 1, v4"); o("v_lshrrev_b32 v4, 1, v4")
    o("v_lshlrev_b32 v5, 4, v5"); o("v_lshl_add_u32 v5, v4, 3, v5")
    o(f"s_lshl_b32 s26, s{sDt}, 6"); o(f"s_and_b32 s27, s{sW}, 1"); o("s_lshl_b32 s27, s27, 5"); o("s_add_u32 s26, s26, s27")
    o("v_add_u32 v5, s26, v5")
    o(f"s_lshl_b32 s26, s{sTg}, 5"); o(f"s_lshr_b32 s27, s{sW}, 1"); o("s_lshl_b32 s27, s27, 4"); o("s_add_u32 s26, s26, s27")
    o("v_add_u32 v3, s26, v3")
    o("v_lshlrev_b32 v6, 11, v3"); o("v_lshl_add_u32 v6, v5, 1, v6")
    o("v_lshlrev_b32 v7, 2, v5")
    o(f"s_add_u32 s44, s{sWS}, {WS_MOD + 2*4096}"); o(f"s_addc_u32 s45, s{sWS+1}, 0")
    GA, XR = 28, 36
    o(f"global_load_dwordx4 {v(GA,4)}, v7, s[44:45]"); o(f"global_load_dwordx4 {v(GA+4,4)}, v7, s[44:45] offset:16")
    o(f"global_load_dwordx4 {v(XR,4)}, v6, s[46:47]")
    o("s_waitcnt lgkmcnt(0)"); o("s_barrier")
    o(f"s_and_b32 s26, s{sW}, 1"); o("s_lshl_b32 s26, s26, 12"); o(f"s_lshr_b32 s27, s{sW}, 1"); o("s_lshl_b32 s27, s27, 10"); o("s_add_u32 s26, s26, s27")
    o("v_add_u32 v2, s26, v1")
    R = 48
    for sw in range(4):
        o(f"ds_read_b128 {v(R+8*sw,4)}, v2 offset:{sw*8192}"); o(f"ds_read_b128 {v(R+8*sw+4,4)}, v2 offset:{sw*8192+2048}")
    o("s_waitcnt lgkmcnt(0)")
    for e in range(8):
        o(f"v_add_f32 v{R+e}, v{R+e}, v{R+8+e}"); o(f"v_add_f32 v{R+16+e}, v{R+16+e}, v{R+24+e}")
    for e in range(8): o(f"v_add_f32 v{R+e}, v{R+e}, v{R+16+e}")
    for r in range(4): o(f"v_permlane16_swap_b32 v{R+r}, v{R+4+r}")
    o("s_waitcnt vmcnt(0)")
    U = 40 + 40
    unpack8(o, U, XR)
    for e in range(8): o(f"v_fma_f32 v{R+e}, v{R+e}, v{GA+e}, v{U+e}")
    for d in range(4): o(f"v_cvt_pk_bf16_f32 v{XR+d}, v{R+2*d}, v{R+2*d+1}")
    o(f"s_add_u32 s44, s{sWS}, {WS_X1}"); o(f"s_addc_u32 s45, s{sWS+1}, 0")
    o(f"global_store_dwordx4 v6, {v(XR,4)}, s[44:45] sc1")

def ln2_task(A):
    o = A
    o(f"s_lshl_b32 s14, s{sCh}, 3"); o(f"s_add_u32 s14, s14, s{sXb}")
    o("v_lshlrev_b32 v2, 4, v0")
    o(f"s_lshl_b32 s15, s14, 16"); o(f"s_lshl_b32 s16, s{sW}, 14"); o("s_add_u32 s15, s15, s16"); o(f"s_add_u32 s15, s15, {WS_X1}")
    o(f"s_add_u32 s10, s{sWS}, s15"); o(f"s_addc_u32 s11, s{sWS+1}, 0")
    RAW = 96
    for r in range(8):
        if r and r % 2 == 0: o("s_add_u32 s10, s10, 4096"); o("s_addc_u32 s11, s11, 0")
        off = (r % 2) * 2048
        o(f"global_load_dwordx4 {v(RAW+8*r,4)}, v2, s[10:11] offset:{off}"); o(f"global_load_dwordx4 {v(RAW+8*r+4,4)}, v2, s[10:11] offset:{off+1024}")
    o("v_lshrrev_b32 v3, 3, v0"); o("v_and_b32 v4, 7, v0")
    o("v_lshlrev_b32 v5, 11, v3"); o("v_lshl_add_u32 v5, v4, 4, v5"); o(f"s_lshl_b32 s16, s{sI}, 7"); o("v_add_u32 v5, s16, v5")
    o(f"s_add_u32 s10, s{sWS}, s15"); o(f"s_addc_u32 s11, s{sWS+1}, 0")
    SL = 24
    o(f"global_load_dwordx4 {v(SL,4)}, v5, s[10:11]")
    o("v_lshlrev_b32 v6, 5, v4"); o(f"s_lshl_b32 s16, s{sI}, 8"); o("v_add_u32 v6, s16, v6")
    o(f"s_add_u32 s12, s{sWS}, {WS_MOD + 3*4096}"); o(f"s_addc_u32 s13, s{sWS+1}, 0")
    SB_, CB_ = 64, 72
    o(f"global_load_dwordx4 {v(SB_,4)}, v6, s[12:13]"); o(f"global_load_dwordx4 {v(SB_+4,4)}, v6, s[12:13] offset:16")
    o("s_add_u32 s12, s12, 4096"); o("s_addc_u32 s13, s13, 0")
    o(f"global_load_dwordx4 {v(CB_,4)}, v6, s[12:13]"); o(f"global_load_dwordx4 {v(CB_+4,4)}, v6, s[12:13] offset:16")
    vMean, vRs, X, sm, t = 80, 81, 32, 7, 8
    for r in range(8):
        o(f"s_waitcnt vmcnt({5 + 2*(7-r)})")
        unpack8(o, X, RAW + 8 * r); unpack8(o, X + 8, RAW + 8 * r + 4)
        o(f"v_add_f32 v{sm}, v{X}, v{X+1}")
        for e in range(2, 16): o(f"v_add_f32 v{sm}, v{sm}, v{X+e}")
        wave_sum(o, sm, t)
        o(f"v_mul_f32 v{sm}, {fbits(1.0/1024)}, v{sm}")
        for e in range(16): o(f"v_sub_f32 v{X+e}, v{X+e}, v{sm}")
        o(f"v_mul_f32 v9, v{X}, v{X}")
        for e in range(1, 16): o(f"v_fmac_f32 v9, v{X+e}, v{X+e}")
        wave_sum(o, 9, t)
        o(f"v_mov_b32 v{t}, {fbits(1e-5)}"); o(f"v_fmac_f32 v{t}, {fbits(1.0/1024)}, v9"); o(f"v_rsq_f32 v{t}, v{t}")
        o(f"v_cmp_eq_u32 vcc, {r}, v3")
        o(f"v_cndmask_b32 v{vMean}, v{vMean}, v{sm}, vcc"); o(f"v_cndmask_b32 v{vRs}, v{vRs}, v{t}, vcc")
    o("s_waitcnt vmcnt(0)")
    unpack8(o, X, SL)
    for e in range(8):
        o(f"v_sub_f32 v{X+e}, v{X+e}, v{vMean}"); o(f"v_mul_f32 v{X+e}, v{X+e}, v{vRs}")
        o(f"v_add_f32 v{CB_+e}, 1.0, v{CB_+e}"); o(f"v_fma_f32 v{X+e}, v{X+e}, v{CB_+e}, v{SB_+e}")
    for d in range(4): o(f"v_cvt_pk_bf16_f32 v{SL+d}, v{X+2*d}, v{X+2*d+1}")
    RS = 128 + 32
    o(f"s_lshl_b32 s16, s{sW}, 3"); o("v_add_u32 v5, s16, v3"); o(f"v_mul_u32_u24 v5, {RS}, v5"); o("v_lshl_add_u32 v5, v4, 4, v5")
    o(f"ds_write_b128 v5, {v(SL,4)}")
    o("s_waitcnt lgkmcnt(0)"); o("s_barrier")
    o("v_and_b32 v5, 15, v0"); o("v_lshrrev_b32 v6, 4, v0")
    o("v_lshrrev_b32 v7, 2, v5"); o("v_lshl_add_u32 v7, v6, 3, v7"); o(f"v_mul_u32_u24 v7, {RS}, v7")
    o("v_and_b32 v8, 3, v5"); o("v_lshl_add_u32 v7, v8, 3, v7"); o(f"s_lshl_b32 s16, s{sW}, 5"); o("v_add_u32 v7, s16, v7")
    o(f"ds_read_b64_tr_b16 {v(SL,2)}, v7"); o(f"ds_read_b64_tr_b16 {v(SL+2,2)}, v7 offset:{4*RS}")
    gfun(o, 8, 5, 9); o("v_xor_b32 v8, v8, v6"); o("v_lshl_add_u32 v8, v5, 2, v8"); o("v_lshlrev_b32 v8, 4, v8")
    o("s_lshl_b32 s16, s14, 16"); o(f"s_lshl_b32 s17, s{sI}, 12"); o("s_add_u32 s16, s16, s17"); o(f"s_lshl_b32 s17, s{sW}, 10"); o("s_add_u32 s16, s16, s17"); o(f"s_add_u32 s16, s16, {WS_H2T}")
    o("v_add_u32 v8, s16, v8")
    o("s_waitcnt lgkmcnt(0)")
    o(f"global_store_dwordx4 v8, {v(SL,4)}, {s(sWS,2)} sc1")

def g1_partial(A, opt):
    o = A
    sX, sY = 8, 12
    o("s_load_dwordx2 s[40:41], s[0:1], %d" % KA_W1); o("s_waitcnt lgkmcnt(0)")
    srd(o, sX, 40, 0, 2048 * 7168); srd(o, sY, sWS, WS_H2T, 4 * MiB)
    o(f"s_add_u32 s26, s{sCh}, 1"); o(f"s_lshl_b32 s{sY+2}, s26, 19")
    o(f"s_mul_i32 s{sX+2}, s26, {256*7168}")
    G = Gemm(A, 8, 4, False, "g", accbase=128)
    sOffX, sOffY, sM0, sK = 20, 21, [22, 23], 24
    o(f"s_mul_i32 s{sOffX}, s{sCh}, {256*7168}"); o(f"s_lshl_b32 s26, s{sI}, 9"); o(f"s_add_u32 s{sOffX}, s{sOffX}, s26")
    o(f"s_lshl_b32 s{sOffY}, s{sCh}, 19"); o(f"s_lshl_b32 s26, s{sXb}, 13"); o(f"s_add_u32 s{sOffY}, s{sOffY}, s26")
    o(f"s_mul_i32 s{sM0[0]}, s{sW}, {G.NIX*1024}"); o(f"s_mul_i32 s{sM0[1]}, s{sW}, {G.NIY*1024}")
    G.setup(sW, 0, 7168, 0, [1, 2, 3, 4, 5, 6], [25, 26, 27, 28])
    o2 = dict(opt); o2["accum"] = 1
    gen_loop(G, sX, sY, sOffX, sOffY, sM0, sK, 32 * 7168, 64 * 1024, 8, "L_g1", opt=o2, sSt=[32, 33, 34])
    o("s_barrier")
    return G

def g1_epilogue(A, G, sF=sI, sD=sXb):
    o = A
    E = G.vF
    o("s_load_dwordx2 s[42:43], s[0:1], %d" % KA_B1)
    o("v_and_b32 v1, 15, v0"); o("v_lshrrev_b32 v2, 4, v0"); o("v_and_b32 v3, 1, v2"); o("v_lshrrev_b32 v2, 1, v2")
    o("v_lshlrev_b32 v4, 4, v3"); o("v_lshl_add_u32 v4, v2, 3, v4")
    o("v_lshl_or_b32 v2, v3, 1, v2")
    gfun(o, 3, 1, 5)
    o("v_xor_b32 v2, v2, v3"); o("v_lshl_add_u32 v2, v1, 2, v2"); o("v_lshlrev_b32 v2, 4, v2")
    o(f"s_lshl_b32 s25, s{sF}, 8"); o(f"s_and_b32 s26, s{sW}, 1"); o("s_lshl_b32 s26, s26, 7"); o("s_add_u32 s25, s25, s26")
    o("v_add_u32 v4, s25, v4"); o("v_lshlrev_b32 v4, 1, v4")
    BR = E + 64
    o("s_waitcnt lgkmcnt(0)")
    for jp in range(4): o(f"global_load_dwordx4 {v(BR+4*jp,4)}, v4, s[42:43] offset:{jp*64}")
    o("s_lshr_b32 s26, s25, 5"); o("s_lshl_b32 s26, s26, 16")
    o(f"s_lshl_b32 s27, s{sD}, 3"); o(f"s_lshr_b32 s28, s{sW}, 1"); o("s_lshl_b32 s28, s28, 2"); o("s_add_u32 s27, s27, s28"); o("s_lshl_b32 s27, s27, 10")
    o("s_add_u32 s26, s26, s27"); o(f"s_add_u32 s26, s26, {WS_U}")
    o(f"s_add_u32 s44, s{sWS}, s26"); o(f"s_addc_u32 s45, s{sWS+1}, 0")
    o("s_waitcnt vmcnt(0)")
    BF = E + 80
    c1 = -2.0 * math.sqrt(2.0 / math.pi) * LOG2E
    o(f"s_mov_b32 s46, {fbits(0.044715)}"); o(f"s_mov_b32 s47, {fbits(c1)}")
    k = 0
    for jp in range(4):
        unpack8(o, BF, BR + 4 * jp)
        for jy in range(4):
            T = E + 16 * (k % 3) + 4; k += 1
            ra, rb = G.accr(2 * jp, jy), G.accr(2 * jp + 1, jy)
            for r in range(4): o(f"v_accvgpr_read_b32 v{T+r}, a{ra+r}")
            for r in range(4): o(f"v_accvgpr_read_b32 v{T+4+r}, a{rb+r}")
            for r in range(4): o(f"v_permlane16_swap_b32 v{T+r}, v{T+4+r}")
            U = E + 48
            for e in range(8): o(f"v_add_f32 v{T+e}, v{T+e}, v{BF+e}")
            for e in range(8): o(f"v_mul_f32 v{U+e}, v{T+e}, v{T+e}")
            for e in range(8): o(f"v_fma_f32 v{U+e}, v{U+e}, s46, 1.0")
            for e in range(8): o(f"v_mul_f32 v{U+e}, v{U+e}, v{T+e}")
            for e in range(8): o(f"v_mul_f32 v{U+e}, s47, v{U+e}")
            for e in range(8): o(f"v_exp_f32 v{U+e}, v{U+e}")
            for e in range(8): o(f"v_add_f32 v{U+e}, 1.0, v{U+e}")
            for e in range(8): o(f"v_rcp_f32 v{U+e}, v{U+e}")
            for e in range(8): o(f"v_mul_f32 v{T+e}, v{T+e}, v{U+e}")
            P = T - 4
            for d in range(4): o(f"v_cvt_pk_bf16_f32 v{P+d}, v{T+2*d}, v{T+2*d+1}")
            o(f"v_add_u32 v5, {jp*65536 + jy*1024}, v2")
            o(f"global_store_dwordx4 v5, {v(P,4)}, s[44:45]")

def prefetch_task(A, ka, nbytes, tag):
    o = A
    per = nbytes // 128
    assert per % 4096 == 0 or True
    n4k = (per + 4095) // 4096
    o(f"s_load_dwordx2 s[40:41], s[0:1], {ka}"); o("s_waitcnt lgkmcnt(0)")
    srd(o, 8, 40, 0, nbytes)
    o(f"s_mul_i32 s20, s{sB}, {n4k*4096}"); o(f"s_lshl_b32 s21, s{sW}, 10"); o("s_add_u32 s20, s20, s21")
    o("v_lshlrev_b32 v2, 4, v0")
    o(f"s_mov_b32 s22, {n4k}")
    A.label(f"L_pf_{tag}")
    o("buffer_load_dwordx4 v[8:11], v2, s[8:11], s20 offen")
    o("s_add_u32 s20, s20, 4096"); o("s_sub_u32 s22, s22, 1"); o("s_cmp_lg_u32 s22, 0")
    o(f"s_cbranch_scc0 L_pf_{tag}_d")
    o("buffer_load_dwordx4 v[12:15], v2, s[8:11], s20 offen")
    o("s_add_u32 s20, s20, 4096"); o("s_sub_u32 s22, s22, 1"); o("s_cmp_lg_u32 s22, 0")
    o("s_waitcnt vmcnt(24)")
    o(f"s_cbranch_scc1 L_pf_{tag}")
    A.label(f"L_pf_{tag}_d")
    o("s_waitcnt vmcnt(0)")

def op_pass(A, ntok_tiles_log2, opt=None):
    opt = opt or {}
    o = A
    sX, sY = 8, 12
    o("s_load_dwordx2 s[40:41], s[0:1], %d" % KA_WO); o("s_load_dwordx2 s[46:47], s[0:1], %d" % KA_X)
    sDt, sTt = 48, 49
    o(f"s_lshr_b32 s{sDt}, s{sXb}, 1"); o(f"s_lshl_b32 s{sDt}, s{sDt}, 2"); o(f"s_and_b32 s20, s{sI}, 3"); o(f"s_add_u32 s{sDt}, s{sDt}, s20")
    o(f"s_and_b32 s{sTt}, s{sXb}, 1"); o(f"s_lshl_b32 s{sTt}, s{sTt}, 2"); o(f"s_lshr_b32 s20, s{sI}, 2"); o(f"s_add_u32 s{sTt}, s{sTt}, s20")
    o(f"s_cmp_ge_u32 s{sTt}, {1 << ntok_tiles_log2}"); o(f"s_cbranch_scc1 L_opp_skip{ntok_tiles_log2}")
    o(f"s_lshl_b32 s{sTt}, s{sTt}, 6"); o(f"s_add_u32 s{sTt}, s{sTt}, s{sTok}")
    o("s_waitcnt lgkmcnt(0)")
    srd(o, sX, 40, 0, 8 * MiB); srd(o, sY, sWS, WS_O, 16 * MiB)
    G = Gemm(A, 2, 2, False, "o")
    sOffX, sOffY, sM0, sK = 20, 21, [22, 23], 24
    o(f"s_lshl_b32 s{sOffX}, s{sDt}, 7"); o(f"s_lshl_b32 s{sOffY}, s{sTt}, 6")
    o(f"s_mul_i32 s{sM0[0]}, s{sW}, {G.NIX*1024}"); o(f"s_mul_i32 s{sM0[1]}, s{sW}, {G.NIY*1024}")
    G.setup(sW, 0, 2048, 0, [1, 2, 3, 4, 5, 6], [25, 26, 27, 28])
    gen_loop2(G, sX, sY, sOffX, sOffY, sM0, sK, 32 * 2048, 128 * 1024, 128, f"L_opp{ntok_tiles_log2}", K=opt.get("opK", 4), R=opt.get("opR", 16), sSt=[32, 33, 34])
    E = G.vF
    o("v_and_b32 v1, 15, v0"); o("v_lshrrev_b32 v2, 4, v0"); o("v_and_b32 v3, 1, v2"); o("v_lshrrev_b32 v2, 1, v2")
    o("v_lshlrev_b32 v3, 4, v3"); o("v_lshl_add_u32 v3, v2, 3, v3")
    o(f"s_lshl_b32 s25, s{sDt}, 6"); o(f"s_and_b32 s26, s{sW}, 1"); o("s_lshl_b32 s26, s26, 5"); o("s_add_u32 s25, s25, s26")
    o("v_add_u32 v3, s25, v3")
    o(f"s_lshr_b32 s26, s{sW}, 1"); o("s_lshl_b32 s26, s26, 5"); o(f"s_add_u32 s25, s{sTt}, s26")
    o("v_add_u32 v1, s25, v1")
    o("v_lshlrev_b32 v4, 11, v1"); o("v_lshl_add_u32 v4, v3, 1, v4")
    o("v_lshlrev_b32 v5, 2, v3")
    o(f"s_add_u32 s44, s{sWS}, {WS_MOD + 2*4096}"); o(f"s_addc_u32 s45, s{sWS+1}, 0")
    GA = E + 64; XR = E + 72
    o(f"global_load_dwordx4 {v(GA,4)}, v5, s[44:45]"); o(f"global_load_dwordx4 {v(GA+4,4)}, v5, s[44:45] offset:16")
    for jy in range(2):
        o(f"v_add_u32 v6, {jy*16*2048}, v4"); o(f"global_load_dwordx4 {v(XR+4*jy,4)}, v6, s[46:47]")
    o(f"s_add_u32 s44, s{sWS}, {WS_X1}"); o(f"s_addc_u32 s45, s{sWS+1}, 0")
    for jy in range(2):
        T = E + 16 * jy + 4
        for r in range(4): o(f"v_accvgpr_read_b32 v{T+r}, a{G.accr(0, jy)+r}")
        for r in range(4): o(f"v_accvgpr_read_b32 v{T+4+r}, a{G.accr(1, jy)+r}")
        for r in range(4): o(f"v_permlane16_swap_b32 v{T+r}, v{T+4+r}")
        if jy == 0: o("s_waitcnt vmcnt(0)")
        U = E + 48
        unpack8(o, U, XR + 4 * jy)
        for e in range(8): o(f"v_fma_f32 v{T+e}, v{T+e}, v{GA+e}, v{U+e}")
        P = T - 4
        for d in range(4): o(f"v_cvt_pk_bf16_f32 v{P+d}, v{T+2*d}, v{T+2*d+1}")
        o(f"v_add_u32 v6, {jy*16*2048}, v4")
        o(f"global_store_dwordx4 v6, {v(P,4)}, s[44:45] sc1")
    A.label(f"L_opp_skip{ntok_tiles_log2}")

def ln2_pass(A, nks_log2):
    o = A
    if nks_log2 == 3:
        o(f"s_lshr_b32 s{sCh}, s{sTok}, 8"); ln2_task(A); return
    for h in range(2):
        o(f"s_mov_b32 s76, s{sXb}"); o(f"s_mov_b32 s77, s{sI}"); o(f"s_mov_b32 s78, s{sCh}")
        o(f"s_lshl_b32 s79, s{sXb}, 1"); o(f"s_lshr_b32 s80, s{sI}, 3"); o("s_add_u32 s79, s79, s80")
        o(f"s_and_b32 s80, s{sI}, 7"); o("s_lshl_b32 s80, s80, 1"); o(f"s_add_u32 s{sI}, s80, {h}")
        o(f"s_and_b32 s{sXb}, s79, 7"); o("s_lshr_b32 s79, s79, 3"); o(f"s_lshr_b32 s{sCh}, s{sTok}, 8"); o(f"s_add_u32 s{sCh}, s{sCh}, s79")
        ln2_task(A)
        o(f"s_mov_b32 s{sXb}, s76"); o(f"s_mov_b32 s{sI}, s77"); o(f"s_mov_b32 s{sCh}, s78")
        if h == 0: o("s_barrier")

def g1_pass(A, opt, nit, lab):
    o = A
    sX, sY = 8, 12
    o("s_load_dwordx2 s[40:41], s[0:1], %d" % KA_W1); o("s_waitcnt lgkmcnt(0)")
    srd(o, sX, 40, 0, 2048 * 7168); srd(o, sY, sWS, WS_H2T, 4 * MiB)
    o(f"s_add_u32 s26, s{sTok}, {32*nit}"); o(f"s_lshl_b32 s{sY+2}, s26, 11")
    o(f"s_mul_i32 s{sX+2}, s26, 7168")
    G = Gemm(A, 8, 4, False, "g", accbase=128)
    sOffX, sOffY, sM0, sK = 20, 21, [22, 23], 24
    o(f"s_mul_i32 s{sOffX}, s{sTok}, 7168"); o(f"s_lshl_b32 s26, s{sFt}, 9"); o(f"s_add_u32 s{sOffX}, s{sOffX}, s26")
    o(f"s_lshl_b32 s{sOffY}, s{sTok}, 11"); o(f"s_lshl_b32 s26, s{sDtG}, 13"); o(f"s_add_u32 s{sOffY}, s{sOffY}, s26")
    o(f"s_mul_i32 s{sM0[0]}, s{sW}, {G.NIX*1024}"); o(f"s_mul_i32 s{sM0[1]}, s{sW}, {G.NIY*1024}")
    G.setup(sW, 0, 7168, 0, [1, 2, 3, 4, 5, 6], [25, 26, 27, 28])
    o2 = dict(opt); o2["accum"] = 1; o2["S"] = 5
    gen_loop(G, sX, sY, sOffX, sOffY, sM0, sK, 32 * 7168, 64 * 1024, nit, lab, opt=o2, sSt=[32, 33, 34])
    o("s_barrier")
    return G

def fast_check(A, tag):
    o = A
    LB = 131072 - 64
    o(f"s_cmp_lg_u32 s{sW}, 0"); o(f"s_cbranch_scc1 L_fc_{tag}_w")
    o("s_mov_b64 exec, 0xff"); o("v_and_b32 v1, 3, v0"); o("v_lshlrev_b32 v1, 2, v1"); o("v_lshrrev_b32 v5, 2, v0"); o("v_lshl_add_u32 v1, v5, 7, v1"); o("s_mov_b32 s13, 0x200000")
    A.label(f"L_fc_{tag}_p")
    o(f"global_load_dword v4, v1, {s(sDBG,2)} sc1"); o("s_waitcnt vmcnt(0)")
    o("v_mov_b32 v5, v4")
    o("v_add_u32_dpp v5, v5, v5 quad_perm:[1,0,3,2] row_mask:0xf bank_mask:0xf")
    o("v_add_u32_dpp v5, v5, v5 quad_perm:[2,3,0,1] row_mask:0xf bank_mask:0xf")
    o("v_add_u32_dpp v5, v5, v5 row_half_mirror row_mask:0xf bank_mask:0xf")
    o("v_readfirstlane_b32 s14, v5")
    o("s_cmp_ge_u32 s14, 256"); o(f"s_cbranch_scc1 L_fc_{tag}_a")
    o("s_sleep 8"); o("s_sub_u32 s13, s13, 1"); o(f"s_cbranch_scc0 L_fc_{tag}_p")
    A.label(f"L_fc_{tag}_a")
    o("v_cmp_ne_u32 vcc, 32, v4"); o("s_nop 1"); o("s_cmp_eq_u64 vcc, 0"); o("s_cselect_b32 s15, 1, 0")
    o("s_mov_b64 exec, 1"); o("v_mov_b32 v6, s15"); o(f"v_mov_b32 v1, {LB}"); o("ds_write_b32 v1, v6"); o("s_waitcnt lgkmcnt(0)"); o("s_mov_b64 exec, -1")
    A.label(f"L_fc_{tag}_w")
    o("s_barrier")
    o(f"v_mov_b32 v1, {LB}"); o("ds_read_b32 v6, v1"); o("s_waitcnt lgkmcnt(0)"); o("v_readfirstlane_b32 s15, v6")
    o("s_barrier")

WS_MODP2 = 128 * 1024
CNT_FILL2 = 43520
def mod_half(A):
    o = A
    o("s_mov_b64 s[8:9], s[76:77]")
    o(f"s_lshr_b32 s12, s{sB}, 6"); o("s_lshl_b32 s12, s12, 9"); o(f"s_lshl_b32 s13, s{sW}, 7"); o("s_add_u32 s12, s12, s13")
    o("v_lshrrev_b32 v5, 2, v0"); o("v_add_u32 v5, s12, v5"); o("v_lshlrev_b32 v6, 2, v5")
    o("s_mov_b32 s13, 12288"); o("v_mul_lo_u32 v7, v5, s13"); o("v_and_b32 v26, 3, v0"); o("v_lshl_add_u32 v7, v26, 4, v7")
    o(f"s_and_b32 s12, s{sB}, 63"); o("s_lshl_b32 s12, s12, 6"); o("v_add_u32 v7, s12, v7")
    W = 32
    for it in range(8):
        o(f"global_load_dwordx4 {v(W+4*it,4)}, v7, s[8:9]"); o(f"v_add_u32 v7, {16*12288}, v7")
    return W

def mod_half_finish(A, W, younger):
    o = A
    Cc, AC = 64, 72
    for it in range(8): o(f"ds_read_b32 v{Cc+it}, v6 offset:{it*64}")
    for e in range(8): o(f"v_mov_b32 v{AC+e}, 0")
    o("s_waitcnt lgkmcnt(0)")
    for it in range(8):
        o(f"s_waitcnt vmcnt({7-it+younger})")
        for d in range(4):
            o(f"v_lshlrev_b32 v27, 16, v{W+4*it+d}"); o(f"v_and_b32 v28, 0xffff0000, v{W+4*it+d}")
            o(f"v_fmac_f32 v{AC+2*d}, v27, v{Cc+it}"); o(f"v_fmac_f32 v{AC+2*d+1}, v28, v{Cc+it}")
    for e in range(8):
        x = AC + e
        o(f"v_add_f32_dpp v{x}, v{x}, v{x} row_ror:4 row_mask:0xf bank_mask:0xf")
        o(f"v_add_f32_dpp v{x}, v{x}, v{x} row_ror:8 row_mask:0xf bank_mask:0xf")
        for sw in ("16", "32"):
            o(f"v_mov_b32 v27, v{x}"); o(f"v_permlane{sw}_swap_b32 v{x}, v27"); o(f"v_add_f32 v{x}, v{x}, v27")
    o(f"s_lshl_b32 s12, s{sW}, 7"); o("v_lshlrev_b32 v5, 5, v26"); o("v_add_u32 v5, s12, v5")
    o("s_mov_b64 exec, 0xf")
    o(f"ds_write_b128 v5, {v(AC,4)} offset:4096"); o(f"ds_write_b128 v5, {v(AC+4,4)} offset:4112")
    o("s_mov_b64 exec, -1")
    o("s_waitcnt lgkmcnt(0)"); o("s_barrier")
    o(f"s_cmp_lg_u32 s{sW}, 0"); o("s_cbranch_scc1 L_mh_d")
    o("v_lshlrev_b32 v5, 2, v0"); o("s_mov_b64 exec, 0xffffffff")
    for w in range(4): o(f"ds_read_b32 v{32+w}, v5 offset:{4096+w*128}")
    o("s_waitcnt lgkmcnt(0)")
    o("v_add_f32 v32, v32, v33"); o("v_add_f32 v34, v34, v35"); o("v_add_f32 v32, v32, v34")
    o(f"s_lshr_b32 s12, s{sB}, 6"); o("s_lshl_b32 s12, s12, 13"); o(f"s_and_b32 s13, s{sB}, 63"); o("s_lshl_b32 s13, s13, 7"); o("s_add_u32 s12, s12, s13"); o(f"s_add_u32 s12, s12, {WS_MODP2}")
    o("v_add_u32 v5, s12, v5")
    o(f"global_store_dword v5, v32, {s(sWS,2)} sc1")
    o("s_mov_b64 exec, -1")
    A.label("L_mh_d")

def ln1_pre(A):
    o = A
    o("s_mov_b64 s[16:17], s[78:79]")
    o("v_lshlrev_b32 v2, 4, v0")
    o(f"s_lshl_b32 s14, s{sB}, 4"); o(f"s_lshl_b32 s15, s{sW}, 2"); o("s_add_u32 s14, s14, s15"); o("s_lshl_b32 s15, s14, 11")
    o("s_add_u32 s16, s16, s15"); o("s_addc_u32 s17, s17, 0")
    for r in range(4):
        off = (r % 2) * 2048
        if r == 2: o("s_add_u32 s16, s16, 4096"); o("s_addc_u32 s17, s17, 0")
        o(f"global_load_dwordx4 {v(96+8*r,4)}, v2, s[16:17] offset:{off}"); o(f"global_load_dwordx4 {v(96+8*r+4,4)}, v2, s[16:17] offset:{off+1024}")

def ln1_stats(A):
    o = A
    X = [128, 144, 160, 176]
    for r in range(4):
        unpack8(o, X[r], 96 + 8 * r); unpack8(o, X[r] + 8, 96 + 8 * r + 4)
    ln_rows(o, X, 4, [4, 5], 1e-5)

def ln1_fin(A):
    o = A
    RAW = 96; X = [128, 144, 160, 176]
    o("v_lshlrev_b32 v3, 5, v0")
    SA, CA = 64, 80
    TT = {SA: 192, CA: 208}
    for dst, base in ((SA, 0), (CA, 4096)):
        for q in range(2):
            o(f"s_add_u32 s12, s{sWS}, {WS_MODP2 + q*8192 + base}"); o(f"s_addc_u32 s13, s{sWS+1}, 0")
            tgt = dst if q == 0 else TT[dst]
            for h in range(2):
                for k in range(2): o(f"global_load_dwordx4 {v(tgt+8*h+4*k,4)}, v3, s[12:13] offset:{h*2048+k*16} sc1")
    o(f"s_lshl_b32 s14, s{sB}, 4"); o(f"s_lshl_b32 s15, s{sW}, 2"); o("s_add_u32 s14, s14, s15")
    o("s_waitcnt vmcnt(0)")
    for dst in (SA, CA):
        for e in range(16): o(f"v_add_f32 v{dst+e}, v{dst+e}, v{TT[dst]+e}")
        for e in range(0, 16, 2):
            o(f"v_cvt_pk_bf16_f32 v6, v{dst+e}, v{dst+e+1}"); o(f"v_lshlrev_b32 v{dst+e}, 16, v6"); o(f"v_and_b32 v{dst+e+1}, 0xffff0000, v6")
    for e in range(16): o(f"v_add_f32 v{CA+e}, 1.0, v{CA+e}")
    for r in range(4):
        R0 = RAW + 8 * r
        for e in range(16): o(f"v_fma_f32 v{X[r]+e}, v{X[r]+e}, v{CA+e}, v{SA+e}")
        for h in range(2):
            for d in range(4): o(f"v_cvt_pk_bf16_f32 v{R0+4*h+d}, v{X[r]+8*h+2*d}, v{X[r]+8*h+2*d+1}")
        o(f"s_add_u32 s16, s14, {r}"); o("s_lshr_b32 s17, s16, 4"); o("s_and_b32 s16, s16, 15")
        o("s_lshr_b32 s18, s16, 2"); o("s_lshr_b32 s19, s18, 1"); o("s_and_b32 s18, s18, 1"); o("s_xor_b32 s18, s18, s19"); o("s_lshl_b32 s18, s18, 1"); o("s_or_b32 s18, s18, s19")
        o("v_and_b32 v4, 3, v0"); o("v_xor_b32 v4, s18, v4"); o("v_lshlrev_b32 v4, 4, v4")
        o("v_lshrrev_b32 v5, 2, v0"); o("v_lshl_add_u32 v4, v5, 17, v4")
        o("s_lshl_b32 s17, s17, 10"); o("s_lshl_b32 s16, s16, 6"); o("s_add_u32 s17, s17, s16"); o(f"s_add_u32 s17, s17, {WS_H}")
        o("v_add_u32 v4, s17, v4")
        o(f"global_store_dwordx4 v4, {v(R0,4)}, {s(sWS,2)} sc1")
        o(f"v_add_u32 v4, {16*131072}, v4")
        o(f"global_store_dwordx4 v4, {v(R0+4,4)}, {s(sWS,2)} sc1")

def gen_bulk(opt):
    A = Asm(); o = A
    bprof = opt.get("bprof")
    def bstamp(k, chunked=True):
        if not bprof: return
        o("s_memrealtime s[72:73]"); o("s_waitcnt lgkmcnt(0)")
        o(f"s_lshl_b32 s74, s{sB}, 10")
        if chunked:
            o(f"s_lshl_b32 s75, s{sCh}, 6"); o("s_add_u32 s74, s74, s75"); o(f"s_add_u32 s74, s74, 64")
        o(f"s_add_u32 s74, s74, {WS_PROF + 4*MiB + 0} + {k*4}")
        o("v_mov_b32 v250, s74"); o("v_mov_b32 v251, s72")
        o("s_mov_b64 exec, 1"); o(f"global_store_dword v250, v251, {s(sWS,2)}"); o("s_mov_b64 exec, -1")
    o(f"s_load_dwordx2 {s(sWS,2)}, s[0:1], {KA_WS}")
    o(f"s_load_dwordx2 s[76:77], s[0:1], {KA_WMOD}"); o(f"s_load_dwordx2 s[78:79], s[0:1], {KA_X}"); o(f"s_load_dwordx2 s[84:85], s[0:1], {KA_C}")
    o("s_waitcnt lgkmcnt(0)")
    o(f"s_add_u32 s{sCNT}, s{sWS}, {WS_CNT}"); o(f"s_addc_u32 s{sCNT+1}, s{sWS+1}, 0")
    o(f"s_cmp_eq_u32 s{sChk}, 0"); o("s_cbranch_scc0 L_cb"); o(f"s_add_u32 s{sCNT}, s{sCNT}, {SLOW_OFF}"); o(f"s_addc_u32 s{sCNT+1}, s{sCNT+1}, 0")
    A.label("L_cb")
    o(f"s_lshl_b32 s{sB}, s{sXb}, 4"); o(f"s_add_u32 s{sB}, s{sB}, s{sI}")
    o(f"s_mov_b32 s{sLim}, 0x400000")
    bstamp(0, False)
    ST2 = opt.get("st2")
    if ST2:
        W_ = mod_half(A)
        ln1_pre(A)
        silu_to_lds(A, pre=84)
        mod_half_finish(A, W_, 0)
        ln1_stats(A)
        o(f"s_cmp_eq_u32 s{sChk}, 0"); o("s_cbranch_scc1 L_nochk")
        fast_check(A, "b")
        o("s_cmp_eq_u32 s15, 0"); o("s_cbranch_scc1 M_slow")
        A.label("L_nochk")
        signal(A, CNT_MODA, "m1")
        bstamp(1, False)
        wait_cnt(A, CNT_MODA, 128, "ma")
        bstamp(2, False)
        ln1_fin(A)
        o(f"s_lshr_b32 s{sCntOff}, s{sB}, 4"); o(f"s_lshl_b32 s{sCntOff}, s{sCntOff}, 7")
        signal(A, CNT_LN1, "l1", off_s=sCntOff)
    else:
        silu_to_lds(A)
        o(f"s_lshl_b32 s{sCt}, s{sB}, 5")
        mod_task(A, sCt, "a")
        o(f"s_cmp_eq_u32 s{sChk}, 0"); o("s_cbranch_scc1 L_nochk")
        fast_check(A, "b")
        o("s_cmp_eq_u32 s15, 0"); o("s_cbranch_scc1 M_slow")
        A.label("L_nochk")
        if opt.get("flg"):
            o(f"s_cmp_lt_u32 s{sB}, 64"); o("s_cbranch_scc0 L_m1b")
            fsignal(A, CNT_MODAF, "m1", sB)
            o("s_branch L_m1c")
            A.label("L_m1b")
            signal(A, CNT_MODB, "m1b")
            A.label("L_m1c")
            bstamp(1, False)
            fwait(A, CNT_MODAF, 64, "ma")
            bstamp(2, False)
            ln1_task(A)
            o(f"s_lshr_b32 s{sCntOff}, s{sB}, 4"); o(f"s_lshl_b32 s{sCntOff}, s{sCntOff}, 7"); o(f"s_and_b32 s45, s{sB}, 15"); o("s_mov_b32 s75, s45")
            fsignal(A, CNT_LN1F, "l1", 75, off_s=sCntOff)
        else:
            o(f"s_cmp_lt_u32 s{sB}, 64"); o(f"s_cselect_b32 s{sCntOff}, {CNT_MODA}, s{sCntOff}"); o(f"s_mov_b32 s44, {CNT_MODB}"); o(f"s_cselect_b32 s{sCntOff}, s{sCntOff}, s44")
            signal(A, 0, "m1", off_s=sCntOff)
            bstamp(1, False)
            wait_cnt(A, CNT_MODA, 64, "ma")
            bstamp(2, False)
            ln1_task(A)
            o(f"s_lshr_b32 s{sCntOff}, s{sB}, 4"); o(f"s_lshl_b32 s{sCntOff}, s{sCntOff}, 7")
            signal(A, CNT_LN1, "l1", off_s=sCntOff)
    bstamp(3, False)
    srd_h = lambda: srd(o, 12, sWS, WS_H, 4 * MiB)
    o(f"s_mov_b32 s{sRound}, 0")
    A.label("L_task")
    t0, t1, t2 = 44, 45, 46
    o(f"s_lshl_b32 s{t0}, s{sXb}, 2"); o(f"s_and_b32 s{t1}, s{sI}, 3"); o(f"s_add_u32 s{t0}, s{t0}, s{t1}"); o(f"s_add_u32 s{t0}, s{t0}, 16")
    o(f"s_lshl_b32 s{t1}, s{sXb}, 1"); o(f"s_and_b32 s{t2}, s{sI}, 1"); o(f"s_add_u32 s{t1}, s{t1}, s{t2}")
    o(f"s_lshr_b32 s{t2}, s{sI}, 2")
    o(f"s_cmp_eq_u32 s{sRound}, 0"); o("s_cbranch_scc0 L_r1")
    if opt.get("t0map"):
        o(f"s_lshl_b32 s{sCt}, s{sXb}, 1"); o(f"s_and_b32 s45, s{sI}, 1"); o(f"s_add_u32 s{sCt}, s{sCt}, s45")
        o(f"s_bfe_u32 s45, s{sI}, 0x10001"); o("s_lshl_b32 s45, s45, 4"); o(f"s_add_u32 s{sCt}, s{sCt}, s45"); o(f"s_add_u32 s{sCt}, s{sCt}, 16")
        o(f"s_lshl_b32 s{sTok}, s{t2}, 6"); o("s_branch L_dec")
    else:
        o(f"s_mov_b32 s{sCt}, s{t0}"); o(f"s_lshl_b32 s{sTok}, s{t2}, 6"); o("s_branch L_dec")
    A.label("L_r1")
    if opt.get("thr"):
        NA = opt["thr"]
        o(f"s_cmp_ge_u32 s{sI}, {NA}"); o("s_cbranch_scc1 L_phase3")
        o(f"s_sub_u32 s{t0}, s{sRound}, 1"); o(f"s_mul_i32 s{t0}, s{t0}, {8*NA}"); o(f"s_mul_i32 s{t1}, s{sXb}, {NA}"); o(f"s_add_u32 s{t0}, s{t0}, s{t1}"); o(f"s_add_u32 s{t0}, s{t0}, s{sI}")
        o(f"s_cmp_ge_u32 s{t0}, 352"); o("s_cbranch_scc1 L_phase3")
        o(f"s_cmp_lt_u32 s{t0}, 224"); o("s_cbranch_scc0 L_thq")
        o(f"s_and_b32 s{sCt}, s{t0}, 31"); o(f"s_add_u32 s{sCt}, s{sCt}, 16"); o(f"s_lshr_b32 s{sTok}, s{t0}, 5"); o(f"s_add_u32 s{sTok}, s{sTok}, 1"); o(f"s_lshl_b32 s{sTok}, s{sTok}, 8"); o("s_branch L_dec")
        A.label("L_thq")
        o(f"s_sub_u32 s{t0}, s{t0}, 224"); o(f"s_and_b32 s{sCt}, s{t0}, 15"); o(f"s_lshr_b32 s{sTok}, s{t0}, 4"); o(f"s_lshl_b32 s{sTok}, s{sTok}, 8")
    else:
        o(f"s_cmp_eq_u32 s{sRound}, 1"); o("s_cbranch_scc0 L_r2")
        o(f"s_mov_b32 s{sCt}, s{t0}"); o(f"s_add_u32 s{sTok}, s{t2}, 1"); o(f"s_lshl_b32 s{sTok}, s{sTok}, 8"); o("s_branch L_dec")
        A.label("L_r2")
        o(f"s_cmp_eq_u32 s{sRound}, 2"); o("s_cbranch_scc0 L_r3")
        o(f"s_cmp_lt_u32 s{sI}, 12"); o("s_cbranch_scc0 L_r2q")
        o(f"s_mov_b32 s{sCt}, s{t0}"); o(f"s_add_u32 s{sTok}, s{t2}, 5"); o(f"s_lshl_b32 s{sTok}, s{sTok}, 8"); o("s_branch L_dec")
        A.label("L_r2q")
        o(f"s_mov_b32 s{sCt}, s{t1}"); o(f"s_sub_u32 s{sTok}, s{sI}, 12"); o(f"s_lshr_b32 s{sTok}, s{sTok}, 1"); o(f"s_lshl_b32 s{sTok}, s{sTok}, 8"); o("s_branch L_dec")
        A.label("L_r3")
        o(f"s_cmp_eq_u32 s{sRound}, 3"); o("s_cbranch_scc0 L_phase3")
        o(f"s_cmp_lt_u32 s{sI}, 12"); o("s_cbranch_scc0 L_phase3")
        o(f"s_mov_b32 s{sCt}, s{t1}"); o(f"s_lshr_b32 s{sTok}, s{sI}, 1"); o(f"s_add_u32 s{sTok}, s{sTok}, 2"); o(f"s_lshl_b32 s{sTok}, s{sTok}, 8")
    A.label("L_dec")
    o(f"s_lshr_b32 s{sCntOff}, s{sTok}, 8"); o(f"s_lshl_b32 s{sCntOff}, s{sCntOff}, 7")
    if opt.get("ksplit"):
        o(f"s_mov_b32 s73, s{sCntOff}")
        o(f"s_cmp_eq_u32 s{sRound}, 0"); o("s_cbranch_scc1 L_l1skip")
    if opt.get("flg"): fwait(A, CNT_LN1F, 16, "l1", off_s=sCntOff)
    else: wait_cnt(A, CNT_LN1, 16, "l1", off_s=sCntOff)
    if opt.get("ksplit"): A.label("L_l1skip")
    o(f"s_lshr_b32 s{t0}, s{sTok}, 8")
    o(f"s_lshl_b32 s{t1}, s{t0}, 3"); o(f"s_and_b32 s{t2}, s{sCt}, 15"); o(f"s_lshr_b32 s{t2}, s{t2}, 1"); o(f"s_add_u32 s{t1}, s{t1}, s{t2}"); o(f"s_lshl_b32 s{t1}, s{t1}, 7")
    o(f"s_lshl_b32 s{t0}, s{t0}, 7"); o(f"s_add_u32 s{t0}, s{t0}, {CNT_Q}")
    o(f"s_cmp_lt_u32 s{sCt}, 16"); o(f"s_cselect_b32 s{sCntOff}, s{t0}, s{t1}")
    o(f"s_lshr_b32 s{t0}, s{sCt}, 4"); o(f"s_lshl_b32 s{t1}, s{t0}, 3")
    o(f"s_add_u32 s40, s0, s{t1}"); o(f"s_addc_u32 s41, s1, 0")
    o(f"s_load_dwordx2 s[40:41], s[40:41], {KA_WQ}")
    o(f"s_lshl_b32 s{t1}, s{t0}, 24"); o(f"s_add_u32 s{t1}, s{t1}, {WS_Q}")
    o(f"s_add_u32 s16, s{sWS}, s{t1}"); o(f"s_addc_u32 s17, s{sWS+1}, 0"); o("s_and_b32 s17, s17, 0xffff")
    o(f"s_mov_b32 s18, {16*MiB}"); o("s_mov_b32 s19, 0x00020000")
    srd_h()
    o("s_waitcnt lgkmcnt(0)")
    srd(o, 8, 40, 0, 8 * MiB)
    o(f"s_cmp_eq_u32 s{sRound}, 0"); o("s_cbranch_scc1 L_small")
    o(f"s_cmp_ge_u32 s{sCt}, 32"); o("s_cbranch_scc1 L_bigv")
    qkv_tile(A, 8, False, "L_gA", sW, sCt, sTok, opt, None); o("s_branch L_sig")
    A.label("L_bigv")
    qkv_tile(A, 8, True, "L_gB", sW, sCt, sTok, opt, None); o("s_branch L_sig")
    A.label("L_small")
    osm = dict(opt); osm["S"] = 6
    o(f"s_cmp_ge_u32 s{sCt}, 32"); o("s_cbranch_scc1 L_smallv")
    dw = (lambda tg: (lambda: wait_cnt(A, CNT_LN1, 16, "l1" + tg, off_s=73))) if opt.get("ksplit") else (lambda tg: None)
    qkv_tile(A, 2, False, "L_gC", sW, sCt, sTok, osm, None, dep_wait=dw("c")); o("s_branch L_sig")
    A.label("L_smallv")
    qkv_tile(A, 2, True, "L_gD", sW, sCt, sTok, osm, None, dep_wait=dw("d"))
    A.label("L_sig")
    if opt.get("flg"):
        o(f"s_cmp_lg_u32 s{sRound}, 0"); o("s_cbranch_scc1 L_sgn")
        o(f"s_lshr_b32 s75, s{sTok}, 6"); o("s_lshl_b32 s75, s75, 2"); o(f"s_lshr_b32 s45, s{sCt}, 5"); o("s_lshl_b32 s45, s45, 1"); o("s_add_u32 s75, s75, s45")
        o(f"s_and_b32 s45, s{sCt}, 1"); o("s_add_u32 s75, s75, s45")
        o(f"s_and_b32 s74, s{sCt}, 15"); o("s_lshr_b32 s74, s74, 1"); o("s_lshl_b32 s74, s74, 7")
        fsignal(A, CNT_KV0F, "k0", 75, off_s=74)
        o("s_branch L_sgd")
        A.label("L_sgn")
        signal(A, 0, "t", off_s=sCntOff)
        A.label("L_sgd")
    else:
        signal(A, 0, "t", off_s=sCntOff)
    if ST2:
        o(f"s_cmp_lg_u32 s{sRound}, 0"); o("s_cbranch_scc1 L_nolate")
        o(f"s_lshl_b32 s12, s{sW}, 10"); o("v_lshlrev_b32 v3, 4, v0"); o("v_add_u32 v3, s12, v3")
        for r in range(4): o(f"v_mov_b32 v{8+r}, -1")
        o(f"s_mul_i32 s12, s{sB}, {7*MiB//128}"); o(f"s_add_u32 s12, s12, {WS_PARTF + MiB}")
        o(f"s_add_u32 s14, s{sWS}, s12"); o(f"s_addc_u32 s15, s{sWS+1}, 0")
        for k in range(14):
            o("global_store_dwordx4 v3, v[8:11], s[14:15] sc1"); o("s_add_u32 s14, s14, 4096"); o("s_addc_u32 s15, s15, 0")
        signal(A, CNT_FILL2, "f2")
        A.label("L_nolate")
    if bprof:
        o("s_memrealtime s[72:73]"); o("s_waitcnt lgkmcnt(0)")
        o(f"s_lshl_b32 s74, s{sB}, 10"); o(f"s_lshl_b32 s75, s{sRound}, 2"); o("s_add_u32 s74, s74, s75"); o(f"s_add_u32 s74, s74, {WS_PROF + 4*MiB + 16}")
        o("v_mov_b32 v250, s74"); o("v_mov_b32 v251, s72")
        o("s_mov_b64 exec, 1"); o(f"global_store_dword v250, v251, {s(sWS,2)}"); o("s_mov_b64 exec, -1")
    o(f"s_add_u32 s{sRound}, s{sRound}, 1")
    o("s_branch L_task")
    A.label("L_phase3")
    if not opt.get("st2"): o(f"s_cmp_ge_u32 s{sB}, 64"); o("s_cbranch_scc1 L_nomod2")
    silu_to_lds(A)
    o(f"s_lshl_b32 s{sCt}, s{sB}, 5"); o(f"s_add_u32 s{sCt}, s{sCt}, {2048 if opt.get('st2') else 4096}")
    mod_task(A, sCt, "b")
    signal(A, CNT_MODC, "m2")
    A.label("L_nomod2")
    if opt.get("late3"):
        wait_cnt(A, CNT_Q + (opt["late3"] - 1) * 128, 16, "lq", sleep=60)
    if opt.get("wpf", 1) == 1:
        prefetch_task(A, KA_WO, 8 * MiB, "wo"); prefetch_task(A, KA_W1, 2048 * 7168, "w1"); prefetch_task(A, KA_W2, 3584 * 4096, "w2")
    if opt.get("wpf", 1) == 2:
        prefetch_task(A, KA_W2, 3584 * 4096, "w2")
    if opt.get("sent"):
        o(f"s_lshl_b32 s12, s{sW}, 10"); o("v_lshlrev_b32 v3, 4, v0"); o("v_add_u32 v3, s12, v3")
        for r in range(4): o(f"v_mov_b32 v{8+r}, -1")
        o(f"s_lshl_b32 s12, s{sB}, 17"); o(f"s_add_u32 s12, s12, {128 * MiB}")
        o(f"s_add_u32 s14, s{sWS}, s12"); o(f"s_addc_u32 s15, s{sWS+1}, 0")
        o("s_mov_b32 s16, 32")
        A.label("L_sfill")
        o("global_store_dwordx4 v3, v[8:11], s[14:15]" + (" sc1" if opt.get("one") else "")); o("s_add_u32 s14, s14, 4096"); o("s_addc_u32 s15, s15, 0")
        o("s_sub_u32 s16, s16, 1"); o("s_cmp_lg_u32 s16, 0"); o("s_cbranch_scc1 L_sfill")
        o(f"s_cmp_ge_u32 s{sB}, 64"); o("s_cbranch_scc1 L_sfill2")
        o(f"s_lshl_b32 s12, s{sB}, 12"); o(f"s_add_u32 s12, s12, {144 * MiB}")
        o(f"s_add_u32 s14, s{sWS}, s12"); o(f"s_addc_u32 s15, s{sWS+1}, 0")
        o("global_store_dwordx4 v3, v[8:11], s[14:15]" + (" sc1" if opt.get("one") else ""))
        A.label("L_sfill2")
        o("s_waitcnt vmcnt(0)")
    P3 = opt.get("p3", 4)
    if P3 == 4:
        for r in range(128): o(f"v_accvgpr_write_b32 a{128+r}, 0")
    if P3 == 0:
        o("s_branch L_bulk_done")
    if P3 == 5:
        passes = opt.get("passes", [(0, 2), (2, 2), (4, 2), (6, 1), (7, 1)])
        for r in range(128): o(f"v_accvgpr_write_b32 a{128+r}, 0")
        o(f"s_lshr_b32 s{sDtG}, s{sXb}, 1"); o(f"s_lshl_b32 s{sDtG}, s{sDtG}, 1"); o(f"s_and_b32 s44, s{sI}, 1"); o(f"s_add_u32 s{sDtG}, s{sDtG}, s44")
        o(f"s_and_b32 s{sFt}, s{sXb}, 1"); o(f"s_lshl_b32 s{sFt}, s{sFt}, 3"); o(f"s_lshr_b32 s44, s{sI}, 1"); o(f"s_add_u32 s{sFt}, s{sFt}, s44")
        sPass, sPn = 83, 84
        def att_chunk(tag):
            o(f"s_lshl_b32 s{sCntOff}, s{sCh}, 3"); o(f"s_add_u32 s{sCntOff}, s{sCntOff}, s{sXb}"); o(f"s_lshl_b32 s{sCntOff}, s{sCntOff}, 7")
            wait_cnt(A, CNT_REC, 32, f"rec{tag}", off_s=sCntOff, sleep=8)
            o(f"s_lshl_b32 s{sCntOff}, s{sCh}, 7")
            wait_cnt(A, CNT_Q, 16, f"q{tag}", off_s=sCntOff)
            o(f"s_lshl_b32 s56, s{sB}, 2"); o(f"s_add_u32 s56, s56, s{sW}")
            o(f"s_lshr_b32 s57, s56, 6"); o(f"s_lshl_b32 s58, s{sCh}, 3"); o("s_add_u32 s57, s57, s58")
            o("s_lshr_b32 s58, s56, 1"); o("s_and_b32 s58, s58, 31"); o("s_and_b32 s59, s56, 1")
            attn_body(A, sWS, 57, 58, 59, 0, f"L_at{tag}", sc1=True)
        def rest(nch, tag):
            o(f"s_lshl_b32 s{sCntOff}, s{sPass}, 7")
            signal(A, CNT_ATT, f"a{tag}", off_s=sCntOff)
            wait_cnt(A, CNT_ATT, 128, f"a{tag}", off_s=sCntOff, sleep=4)
            bstamp(2)
            op_pass(A, 2 if nch == 1 else 3, opt)
            signal(A, CNT_OP, f"o{tag}", off_s=sCntOff)
            bstamp(3)
            wait_cnt(A, CNT_OP, 128, f"o{tag}", off_s=sCntOff, sleep=4)
            bstamp(4)
            ln2_pass(A, 3 if nch == 1 else 4)
            signal(A, CNT_LN, f"n{tag}", off_s=sCntOff)
            bstamp(5)
            o(f"s_cmp_ge_u32 s{sFt}, 14"); o(f"s_cbranch_scc1 L_nog1{tag}")
            wait_cnt(A, CNT_LN, 128, f"n{tag}", off_s=sCntOff, sleep=4)
            bstamp(6)
            G_ = g1_pass(A, opt, 8 * nch, f"L_g1{tag}")
            bstamp(7)
            A.label(f"L_nog1{tag}")
            return G_
        wait_cnt(A, CNT_MODB, 64, "mb5"); wait_cnt(A, CNT_MODC, 64, "mc5")
        nd = sum(1 for p in passes if p[1] == 2); ns = sum(1 for p in passes if p[1] == 1)
        o(f"s_mov_b32 s{sPass}, 0")
        A.label("L_dpass")
        o(f"s_lshl_b32 s{sCh}, s{sPass}, 1"); att_chunk("A"); bstamp(0)
        o(f"s_lshl_b32 s{sCh}, s{sPass}, 1"); o(f"s_add_u32 s{sCh}, s{sCh}, 1"); att_chunk("B"); bstamp(1)
        o(f"s_lshl_b32 s{sTok}, s{sPass}, 9"); o(f"s_lshl_b32 s{sCh}, s{sPass}, 1")
        G = rest(2, "D")
        o(f"s_add_u32 s{sPass}, s{sPass}, 1"); o(f"s_cmp_lt_u32 s{sPass}, {nd}"); o("s_cbranch_scc1 L_dpass")
        if ns:
            A.label("L_spass")
            o(f"s_add_u32 s{sCh}, s{sPass}, {nd}"); att_chunk("C"); bstamp(1)
            o(f"s_add_u32 s{sCh}, s{sPass}, {nd}"); o(f"s_lshl_b32 s{sTok}, s{sCh}, 8")
            rest(1, "S")
            o(f"s_add_u32 s{sPass}, s{sPass}, 1"); o(f"s_cmp_lt_u32 s{sPass}, {nd+ns}"); o("s_cbranch_scc1 L_spass")
        o(f"s_cmp_ge_u32 s{sFt}, 14"); o("s_cbranch_scc1 L_bulk_done")
        g1_epilogue(A, G, sFt, sDtG)
        o("s_branch L_bulk_done")
    if P3 not in (0, 5):
        o(f"s_mov_b32 s{sCh}, 0")
        A.label("L_chunk")
        if P3 >= 4:
            o(f"s_lshl_b32 s{sCntOff}, s{sCh}, 10"); o(f"s_add_u32 s{sCntOff}, s{sCntOff}, {7*128}")
            wait_cnt(A, CNT_REC, 32, "rec", off_s=sCntOff)
        else:
            if opt.get("aspread", 1):
                o(f"s_lshr_b32 s55, s{sI}, 1")
            else:
                o(f"s_mov_b32 s55, s{sXb}")
            o(f"s_lshl_b32 s{sCntOff}, s{sCh}, 3"); o(f"s_add_u32 s{sCntOff}, s{sCntOff}, s55"); o(f"s_lshl_b32 s{sCntOff}, s{sCntOff}, 7")
            if opt.get("relay"):
                o(f"s_cmp_lg_u32 s{sI}, 0"); o("s_cbranch_scc1 L_rly_w")
                wait_cnt(A, CNT_REC, 32, "rec", off_s=sCntOff, sleep=opt["relay"])
                signal(A, CNT_RLY, "rly", off_s=sCntOff)
                o("s_branch L_rly_d")
                A.label("L_rly_w")
                wait_cnt(A, CNT_RLY, 1, "rlw", off_s=sCntOff, sleep=16)
                A.label("L_rly_d")
            else:
                wait_cnt(A, CNT_REC, 32, "rec", off_s=sCntOff, sleep=opt.get("slp", 16))
        o(f"s_lshl_b32 s{sCntOff}, s{sCh}, 7")
        wait_cnt(A, CNT_Q, 16, "q", off_s=sCntOff)
        bstamp(0)
        if P3 >= 4 or not opt.get("aspread", 1):
            o(f"s_lshl_b32 s56, s{sB}, 2"); o(f"s_add_u32 s56, s56, s{sW}")
            o(f"s_lshr_b32 s57, s56, 6"); o(f"s_lshl_b32 s58, s{sCh}, 3"); o("s_add_u32 s57, s57, s58")
        else:
            o(f"s_lshl_b32 s56, s{sXb}, 1"); o(f"s_and_b32 s57, s{sI}, 1"); o("s_add_u32 s56, s56, s57"); o("s_lshl_b32 s56, s56, 2"); o(f"s_add_u32 s56, s56, s{sW}")
            o(f"s_lshr_b32 s57, s{sI}, 1"); o(f"s_lshl_b32 s58, s{sCh}, 3"); o("s_add_u32 s57, s57, s58")
        o("s_lshr_b32 s58, s56, 1"); o("s_and_b32 s58, s58, 31"); o("s_and_b32 s59, s56, 1")
        if opt.get("aser"):
            o("s_mov_b32 s54, 0")
            A.label("L_aser")
            o(f"s_cmp_lg_u32 s{sW}, s54"); o("s_cbranch_scc1 L_aser_s")
        attn_body(A, sWS, 57, 58, 59, 0, "L_at", sc1=(P3 >= 4), nt=opt.get("ant", 0))
        if opt.get("aser"):
            o("s_waitcnt vmcnt(0)")
            A.label("L_aser_s")
            o("s_barrier")
            o("s_add_u32 s54, s54, 1"); o("s_cmp_lt_u32 s54, 4"); o("s_cbranch_scc1 L_aser")
        if P3 >= 4:
            signal(A, CNT_ATT, "a", off_s=sCntOff)
            bstamp(1)
            wait_cnt(A, CNT_ATT, 128, "a", off_s=sCntOff)
            wait_cnt(A, CNT_MODB, 64, "mb")
            bstamp(2)
            op_task(A)
            signal(A, CNT_OP, "o", off_s=sCntOff)
            bstamp(3)
            wait_cnt(A, CNT_OP, 128, "o", off_s=sCntOff)
            wait_cnt(A, CNT_MODC, 64, "mc")
            bstamp(4)
            ln2_task(A)
            signal(A, CNT_LN, "n", off_s=sCntOff)
            bstamp(5)
            o(f"s_cmp_ge_u32 s{sI}, 14"); o("s_cbranch_scc1 L_nog1")
            wait_cnt(A, CNT_LN, 128, "n", off_s=sCntOff)
            bstamp(6)
            G = g1_partial(A, opt)
            bstamp(7)
            A.label("L_nog1")
            o(f"s_add_u32 s{sCh}, s{sCh}, 1"); o(f"s_cmp_lt_u32 s{sCh}, 8"); o("s_cbranch_scc1 L_chunk")
            o(f"s_cmp_ge_u32 s{sI}, 14"); o("s_cbranch_scc1 L_bulk_done")
            g1_epilogue(A, G)
        else:
            o("s_waitcnt vmcnt(0)")
            o(f"s_add_u32 s{sCh}, s{sCh}, 1"); o(f"s_cmp_lt_u32 s{sCh}, 8"); o("s_cbranch_scc1 L_chunk")
    A.label("L_bulk_done")
    o("s_waitcnt vmcnt(0)")
    if opt.get("one"):
        import k_tail
        k_tail.SENT = True
        o("s_barrier")
        o(f"s_add_u32 s{sCNT}, s{sWS}, {WS_CNT}"); o(f"s_addc_u32 s{sCNT+1}, s{sWS+1}, 0")
        signal(A, k_tail.CNT_BULK, "bk")
        o(f"s_cmp_eq_u32 s{sChk}, 0"); o("s_cbranch_scc0 L_one_c1"); o(f"s_add_u32 s{sCNT}, s{sCNT}, {SLOW_OFF}"); o(f"s_addc_u32 s{sCNT+1}, s{sCNT+1}, 0")
        A.label("L_one_c1")
        for c in range(8): wait_cnt(A, CNT_Q + c * 128, 16, f"oq{c}", sleep=opt.get("qs", 100))
        o(f"s_add_u32 s{sCNT}, s{sWS}, {WS_CNT}"); o(f"s_addc_u32 s{sCNT+1}, s{sWS+1}, 0")
        wait_cnt(A, k_tail.CNT_P58, 1, "p58", sleep=opt.get("ps", 100))
        A.raw(k_tail.gen_attn_early(opt["one"]))
        o("s_branch T_last")
    else:
        o("s_endpgm")
    return re.sub(r"\bL_", "B_L_", A.finish())

def gen_mega(name="mega_kernel", recopt=None, opt=None, force_slow=False, place=8):
    global WSLEEP
    WSLEEP = (opt or {}).get('wsleep', 3)
    recopt = recopt or dict(E2_DEPTH=2, E2_SP=3, E2_DELAY=2)
    opt = opt or {"S": 4}
    A = Asm(); o = A
    o("s_cmp_ge_u32 s2, 256"); o("s_cbranch_scc1 M_end")
    o(f"s_load_dwordx2 {s(sDBG,2)}, s[0:1], {KA_DBG}")
    o(f"s_load_dwordx2 {s(sWS,2)}, s[0:1], {KA_WS}")
    o(f"s_load_dwordx2 s[10:11], s[0:1], {KA_MEM0}")
    if recopt.get("prof"): o("s_memrealtime s[92:93]")
    o("v_lshlrev_b32 v3, 4, v0")
    o("v_lshrrev_b32 v1, 6, v0"); o("v_and_b32 v0, 63, v0"); o(f"v_readfirstlane_b32 s{sW}, v1")
    o("s_getreg_b32 s4, hwreg(HW_REG_XCC_ID, 0, 4)"); o("s_and_b32 s4, s4, 7")
    for r in range(4): o(f"v_mov_b32 v{8+r}, -1")
    o("s_waitcnt lgkmcnt(0)")
    if opt.get("tlb"):
        st = opt["tlb"]
        o(f"s_cmp_lg_u32 s{sW}, 1"); o("s_cbranch_scc1 M_notlb")
        o(f"v_lshlrev_b32 v4, {st}, v0")
        srd(o, 16, sWS, 0, 144 * MiB)
        o("buffer_load_dword v40, v4, s[16:19], 0 offen")
        o(f"s_mov_b32 s20, {64 << st}"); o("buffer_load_dword v41, v4, s[16:19], s20 offen")
        for k, (ka, nb) in enumerate(((KA_X, 4 * MiB), (KA_WQ, 8 * MiB), (KA_WK, 8 * MiB), (KA_WV, 8 * MiB), (KA_WO, 8 * MiB), (KA_WMOD, 12 * MiB))):
            o(f"s_load_dwordx2 s[20:21], s[0:1], {ka}"); o("s_waitcnt lgkmcnt(0)")
            srd(o, 16, 20, 0, nb)
            o(f"buffer_load_dword v{42+k}, v4, s[16:19], 0 offen")
        A.label("M_notlb")
    o(f"s_lshl_b32 s12, s2, {12 if opt.get('st2') else 15}"); o(f"s_add_u32 s12, s12, {WS_PARTF}")
    o(f"s_add_u32 s14, s{sWS}, s12"); o(f"s_addc_u32 s15, s{sWS+1}, 0")
    for k in range(1 if opt.get('st2') else 8):
        o("global_store_dwordx4 v3, v[8:11], s[14:15] sc1"); o("s_add_u32 s14, s14, 4096"); o("s_addc_u32 s15, s15, 0")
    o("s_cmp_ge_u32 s2, 128"); o("s_cbranch_scc1 M_f2")
    o("s_lshl_b32 s12, s2, 12")
    o(f"s_add_u32 s13, s12, {WS_RQK}"); o(f"s_add_u32 s14, s{sWS}, s13"); o(f"s_addc_u32 s15, s{sWS+1}, 0")
    o("global_store_dwordx4 v3, v[8:11], s[14:15] sc1")
    o(f"s_add_u32 s13, s12, {WS_RMEM}"); o(f"s_add_u32 s14, s{sWS}, s13"); o(f"s_addc_u32 s15, s{sWS+1}, 0")
    o("s_cmp_lt_u32 s2, 32"); o("s_cbranch_scc1 M_img")
    o("global_store_dwordx4 v3, v[8:11], s[14:15] sc1"); o("s_branch M_f3")
    A.label("M_img")
    o(f"s_and_b32 s16, s2, 3"); o("s_lshl_b32 s16, s16, 2"); o(f"s_add_u32 s16, s16, s{sW}"); o("s_lshl_b32 s16, s16, 7")
    o("v_and_b32 v5, 7, v0"); o("v_lshlrev_b32 v5, 11, v5"); o("v_bfe_u32 v6, v0, 3, 1"); o("v_lshl_add_u32 v5, v6, 6, v5")
    o("v_lshrrev_b32 v6, 4, v0"); o("v_lshl_add_u32 v5, v6, 4, v5"); o("v_add_u32 v5, s16, v5")
    o("global_load_dwordx4 v[16:19], v5, s[10:11]"); o("s_waitcnt vmcnt(0)")
    o("global_store_dwordx4 v3, v[16:19], s[14:15] sc1"); o("s_branch M_f3")
    A.label("M_f2")
    o("s_cmp_ge_u32 s2, 192"); o("s_cbranch_scc1 M_f4")
    o("s_sub_u32 s12, s2, 128"); o("s_lshl_b32 s12, s12, 12")
    o(f"s_add_u32 s13, s12, {WS_RV}"); o(f"s_add_u32 s14, s{sWS}, s13"); o(f"s_addc_u32 s15, s{sWS+1}, 0")
    o("global_store_dwordx4 v3, v[8:11], s[14:15] sc1"); o("s_branch M_f3")
    A.label("M_f4")
    o("s_cmp_ge_u32 s2, 240"); o("s_cbranch_scc1 M_f3")
    o("s_sub_u32 s12, s2, 192"); o("s_lshl_b32 s12, s12, 12"); o(f"s_add_u32 s12, s12, {WS_CNT}")
    o(f"s_add_u32 s14, s{sWS}, s12"); o(f"s_addc_u32 s15, s{sWS+1}, 0")
    for r in range(4): o(f"v_mov_b32 v{8+r}, 0")
    o("global_store_dwordx4 v3, v[8:11], s[14:15] sc1")
    A.label("M_f3")
    o("s_waitcnt vmcnt(0)"); o("s_barrier")
    o(f"s_cmp_lg_u32 s{sW}, 0"); o("s_cbranch_scc1 M_w")
    o("s_and_b32 s12, s4, 3"); o("s_lshl_b32 s12, s12, 2"); o("s_lshr_b32 s13, s4, 2"); o("s_lshl_b32 s13, s13, 7"); o("s_add_u32 s12, s12, s13")
    o("v_mov_b32 v1, s12"); o("v_mov_b32 v2, 1"); o("s_mov_b64 exec, 1")
    o(f"global_atomic_add v3, v1, v2, {s(sDBG,2)} sc0"); o("s_waitcnt vmcnt(0)")
    o("v_mov_b32 v1, 0"); o("ds_write_b32 v1, v3"); o("s_waitcnt lgkmcnt(0)"); o("s_mov_b64 exec, -1")
    A.label("M_w")
    o("s_barrier"); o("v_mov_b32 v1, 0"); o("ds_read_b32 v6, v1"); o("s_waitcnt lgkmcnt(0)"); o("v_readfirstlane_b32 s5, v6"); o("s_barrier")
    o(f"s_mov_b32 s{sChk}, 1")
    if force_slow:
        fast_check(A, "t"); o("s_branch M_slow")
    if place == 8:
        o("s_cmp_lt_u32 s5, 16"); o("s_cbranch_scc1 M_rec_fast")
        o("s_cmp_lt_u32 s5, 32"); o("s_cbranch_scc0 M_idle")
        o("s_sub_u32 s5, s5, 16"); o("s_branch M_bulk")
    else:
        o("s_cmp_lt_u32 s5, 32"); o("s_cbranch_scc0 M_idle")
        o("s_and_b32 s12, s4, 3"); o("s_lshl_b32 s12, s12, 1"); o("s_lshr_b32 s13, s5, 4"); o("s_add_u32 s12, s12, s13"); o("s_and_b32 s5, s5, 15")
        o("s_cmp_lt_u32 s4, 4"); o("s_mov_b32 s4, s12"); o("s_cbranch_scc1 M_rec_fast"); o("s_branch M_bulk")
    A.label("M_idle")
    fast_check(A, "i")
    A.label("M_slow")
    o(f"s_mov_b32 s{sChk}, 0")
    o("s_lshr_b32 s4, s2, 4"); o("s_and_b32 s4, s4, 7"); o("s_and_b32 s5, s2, 15")
    o("s_cmp_lt_u32 s2, 128"); o("s_cbranch_scc1 M_rec_slow")
    o("s_branch M_bulk")
    A.label("M_end"); o("s_endpgm")
    t = A.finish()
    t += "M_bulk:\n" + gen_bulk(opt)
    Ah = Asm(); fast_check(Ah, "r"); Ah("s_cmp_eq_u32 s15, 0"); Ah("s_cbranch_scc1 M_slow")
    hook = Ah.finish()
    one_ = None
    if opt.get("one"):
        import k_tail
        pstep = opt["one"] // 32 + 2
        one_ = dict(done=k_tail.CNT_DONE, p58=k_tail.CNT_P58, pstep=pstep)
        recopt = dict(recopt); recopt["KMSC1"] = 1
    pre = ""
    if opt.get("rwait"):
        Ap = Asm()
        fast_check(Ap, "p"); Ap("s_cmp_eq_u32 s15, 0"); Ap("s_cbranch_scc1 M_slow")
        Ap(f"s_load_dwordx2 {s(sWS,2)}, s[0:1], {KA_WS}"); Ap("s_waitcnt lgkmcnt(0)")
        Ap(f"s_add_u32 s{sCNT}, s{sWS}, {WS_CNT}"); Ap(f"s_addc_u32 s{sCNT+1}, s{sWS+1}, 0"); Ap(f"s_mov_b32 s{sLim}, 0x400000")
        wait_cnt(Ap, CNT_MODA if opt["rwait"] == 1 else CNT_LN1, 128 if opt["rwait"] == 1 else 16, "rp", sleep=8)
        pre = re.sub(r"\bL_", "RP_L_", Ap.finish())
    t += "M_rec_fast:\n" + pre + rec.gen_rec(embedded=True, pfx="RF_", fast=True, KVCHK=True, SIG=(opt.get("p3", 4) != 0), hook=hook, cntoff=0, KV0F=(CNT_KV0F if opt.get('flg') else None), ONE=one_, FILL2=(CNT_FILL2 if opt.get('st2') else None), **recopt)
    t += "M_rec_slow:\n" + rec.gen_rec(embedded=True, pfx="RS_", fast=False, KVCHK=True, SIG=(opt.get("p3", 4) != 0), hook=None, cntoff=SLOW_OFF, KV0F=(CNT_KV0F if opt.get('flg') else None), ONE=one_, FILL2=(CNT_FILL2 if opt.get('st2') else None), **recopt)
    if opt.get("one"):
        import k_tail
        k_tail.SENT = True
        t += k_tail.gen_tail_text(opt["one"])
    return kernel_head(name) + t + kernel_desc(name, 256, 256)
```

```python
from asmlib import *
from layout import *

NSTEPS = 64
SENT = 0xFFFFFFFF

def gen_rec(name="rec_kernel", embedded=False, pfx="", KVCHK=False, SIG=False, hook=None, cntoff=0, EARLY=False, FILL2=None, fast=True, prof=False, nsteps=NSTEPS, E1_EARLY=True, E2_DELAY=0, E3_DELAY=0, KV_FIRST=0, PF=1, PFE=0, REORD=0, FC=0, E3_SP=0, KVFIRST=0, KMSC1=0, ONE=None, KV0F=None, K0W=0, VSP=2, RT=0, E1_AT=7, E3_SALU_FIRST=0, LAST_SHORT=1, NOK=0, NOV=0, E2F='sc1', X4=0, X4LIM=4, E2_DEPTH=3, E2_SP=0, EP=0, FIXKV=0):
    TIMER = "s_memrealtime" if RT else "s_memtime"
    A = Asm()
    o = A
    st_fast = "" if fast else " sc1"
    sWG = 2
    sW, sG, sJ, sHA, sC, sHead = 3, 4, 5, 6, 7, 8
    sWS = 10
    sT0, sT1, sT2, sT3 = 12, 13, 14, 15
    sPtr = 16
    sMEMc, sMEMn, sQK, sVR, sPART, sPART2, sKX, sKX2, sVX, sKM, sVM = 20, 22, 24, 26, 28, 30, 32, 34, 36, 38, 40
    sRq, sRv, sRp, sRm = 42, 44, 46, 48
    sStep, sSlot, sLim = 50, 51, 52
    sMaskQK, sMaskLo = 54, 56
    sSelV = 58
    sScale = 60
    sWQ, sWK, sWV, sWO, sDBG = 62, 64, 66, 68, 70
    sTs = 66
    sProf = 96
    vL = 0; vT = [1, 2, 3, 4, 5, 6, 7]
    vE3, vQKst, vVst, vVld, vPst, vPld, vMst, vKx, vL16, vKMst = 8, 9, 10, 11, 12, 13, 14, 15, 56, 57
    vA0, vA1, vAv0, vAv1 = 16, 20, 24, 28
    vSx, vSm = 32, 40
    vPx, vPmA, vPmB = 44, 48, 50
    vDelta = 52
    vNeg = 60
    vB = 64; vK = 128; vV = 160; vQ = 192; vQr = 200; vKm = 208; vKr = 216; vVm = 224
    vLdsM, vLdsO, vLdsV = 232, 233, 234
    vSent = 236
    vFlag = 57
    vX = 240
    vO = 64; vOb = 96
    vOo = [112, 116, 120, 124] + [160 + 4 * i for i in range(8)]
    LDS_MEM, LDS_O, LDS_V = 0, 16384, 32768

    if not embedded:
        o(f"s_cmp_ge_u32 s{sWG}, {256 if X4 else 128}")
        o("s_cbranch_scc1 L_rec_end")
        o(f"s_load_dwordx2 {s(sWQ,2)}, s[0:1], {KA_WQ}")
        o(f"s_load_dwordx2 {s(sWK,2)}, s[0:1], {KA_WK}")
        o(f"s_load_dwordx2 {s(sWV,2)}, s[0:1], {KA_WV}")
        o(f"s_load_dwordx2 {s(sWO,2)}, s[0:1], {KA_WO}")
        o(f"s_load_dwordx2 {s(sDBG,2)}, s[0:1], {KA_DBG}")
        o(f"s_load_dwordx2 {s(sWS,2)}, s[0:1], {KA_WS}")
        o(f"v_lshrrev_b32 v1, 6, v0")
        o(f"v_and_b32 v{vL}, 63, v0")
        o(f"v_readfirstlane_b32 s{sW}, v1")
        o(f"s_getreg_b32 s{sG}, hwreg(HW_REG_XCC_ID, 0, 4)")
        o("s_waitcnt lgkmcnt(0)")
        o(f"s_cmp_lg_u32 s{sW}, 0")
        o("s_cbranch_scc1 L_rec_noticket")
        o(f"s_lshl_b32 s{sT0}, s{sG}, 2")
        o(f"v_mov_b32 v1, s{sT0}")
        o("v_mov_b32 v2, 1")
        o("s_mov_b64 exec, 1")
        o(f"global_atomic_add v3, v1, v2, {s(sDBG,2)} sc0")
        o("s_waitcnt vmcnt(0)")
        o("v_mov_b32 v1, 0")
        o("ds_write_b32 v1, v3")
        o("s_waitcnt lgkmcnt(0)")
        o("s_mov_b64 exec, -1")
        A.label("L_rec_noticket")
        o("s_barrier")
        o("v_mov_b32 v1, 0")
        o("ds_read_b32 v3, v1")
        o("s_waitcnt lgkmcnt(0)")
        o(f"v_readfirstlane_b32 s{sJ}, v3")
        o("s_barrier")
        if X4:
            o(f"s_cmp_ge_u32 s{sG}, {X4LIM}"); o("s_cbranch_scc1 L_rec_end")
            o(f"s_sub_u32 s{sG}, s{sG}, {X4LIM-4}") if False else None
            o(f"s_lshl_b32 s{sG}, s{sG}, 1"); o(f"s_lshr_b32 s{sT0}, s{sJ}, 4"); o(f"s_add_u32 s{sG}, s{sG}, s{sT0}")
        o(f"s_and_b32 s{sJ}, s{sJ}, 15")
        o(f"s_and_b32 s{sG}, s{sG}, 7")
    else:
        o(f"s_load_dwordx2 {s(sWQ,2)}, s[0:1], {KA_WQ}")
        o(f"s_load_dwordx2 {s(sWK,2)}, s[0:1], {KA_WK}")
        o(f"s_load_dwordx2 {s(sWV,2)}, s[0:1], {KA_WV}")
        o(f"s_load_dwordx2 {s(sWO,2)}, s[0:1], {KA_WO}")
        o(f"s_load_dwordx2 {s(sWS,2)}, s[0:1], {KA_WS}")
        o("s_waitcnt lgkmcnt(0)")
    o(f"s_lshr_b32 s{sHA}, s{sJ}, 2")
    o(f"s_and_b32 s{sC}, s{sJ}, 3")
    o(f"s_lshl_b32 s{sHead}, s{sG}, 2")
    o(f"s_add_u32 s{sHead}, s{sHead}, s{sW}")
    vi, vg, vr = vT[0], vT[1], vT[2]
    o(f"v_and_b32 v{vi}, 15, v{vL}")
    o(f"v_lshrrev_b32 v{vg}, 4, v{vL}")
    o(f"v_and_b32 v{vr}, 7, v{vL}")
    o(f"v_lshlrev_b32 v{vL16}, 4, v{vL}")

    o(f"s_lshl_b32 s{sT0}, s{sG}, 2")
    o(f"s_add_u32 s{sT0}, s{sT0}, s{sHA}")
    o(f"s_lshl_b32 s{sT0}, s{sT0}, 8")
    o(f"s_lshl_b32 s{sT1}, s{sC}, 6")
    o(f"s_add_u32 s{sT0}, s{sT0}, s{sT1}")
    v1, v2, v3, v4 = vT[3], vT[4], vT[5], vT[6]
    o(f"v_lshrrev_b32 v{v1}, 2, v{vL}")
    o(f"v_lshlrev_b32 v{v1}, 13, v{v1}")
    o(f"v_and_b32 v{v2}, 3, v{vL}")
    o(f"v_lshl_add_u32 v{v1}, v{v2}, 4, v{v1}")
    o(f"v_add_u32 v{v1}, s{sT0}, v{v1}")
    o(f"s_lshl_b32 s{sT1}, s{sW}, 21")
    o(f"v_add_u32 v{v1}, s{sT1}, v{v1}")
    def dma_strip(sbase, ldsbase, nblk, rowstep):
        o(f"v_mov_b32 v{v2}, v{v1}")
        o(f"s_lshl_b32 s{sT2}, s{sW}, {(nblk*1024).bit_length()-1}")
        o(f"s_add_u32 s{sT2}, s{sT2}, {ldsbase}")
        for m in range(nblk):
            o(f"s_mov_b32 m0, s{sT2}")
            o(f"s_add_u32 s{sT2}, s{sT2}, 1024")
            o(f"global_load_lds_dwordx4 v{v2}, {s(sbase,2)}")
            if m + 1 < nblk: o(f"v_add_u32 v{v2}, {rowstep}, v{v2}")
    if KVFIRST:
        def rd_qk():
            o(f"s_and_b32 s{sT0}, s{sW}, 1"); o(f"s_lshl_b32 s{sT0}, s{sT0}, 5")
            for i in range(16):
                o(f"s_lshl_b32 s{sT2}, s{sW}, 2"); o(f"s_add_u32 s{sT2}, s{sT2}, {i}"); o(f"s_and_b32 s{sT2}, s{sT2}, 15"); o(f"s_lshl_b32 s{sT2}, s{sT2}, 12")
                o(f"s_add_u32 s{sT2}, s{sT2}, s{sT0}"); o(f"v_add_u32 v{v4}, s{sT2}, v{v3}")
                for half in range(2):
                    d = (i * 2 + half) * 4
                    o(f"ds_read_b64_tr_b16 {a(d,2)}, v{v4} offset:{half*2048}"); o(f"ds_read_b64_tr_b16 {a(d+2,2)}, v{v4} offset:{half*2048+256}")
                if i % 4 == 3: o("s_waitcnt lgkmcnt(0)")
        dma_strip(sWK, 0, 16, 131072)
        dma_strip(sWV, 65536, 16, 131072)
        o(f"v_lshrrev_b32 v{v3}, 2, v{vi}"); o(f"v_lshl_add_u32 v{v3}, v{vg}, 3, v{v3}"); o(f"v_lshlrev_b32 v{v3}, 6, v{v3}")
        o(f"v_and_b32 v{v4}, 3, v{vi}"); o(f"v_lshl_add_u32 v{v3}, v{v4}, 3, v{v3}")
        o("s_waitcnt vmcnt(0)"); o("s_barrier")
        o(f"s_cmp_lt_u32 s{sW}, 2"); o("s_cbranch_scc1 L_kf1")
        rd_qk()
        A.label("L_kf1")
        o(f"s_and_b32 s{sT0}, s{sW}, 1"); o(f"s_lshl_b32 s{sT0}, s{sT0}, 5"); o(f"s_add_u32 s{sT0}, s{sT0}, 65536")
        for i in range(8):
            o(f"s_lshl_b32 s{sT2}, s{sW}, 2"); o(f"s_add_u32 s{sT2}, s{sT2}, {i}"); o(f"s_and_b32 s{sT2}, s{sT2}, 15"); o(f"s_lshl_b32 s{sT2}, s{sT2}, 12")
            o(f"s_add_u32 s{sT2}, s{sT2}, s{sT0}"); o(f"v_add_u32 v{v4}, s{sT2}, v{v3}")
            for half in range(2):
                d = 128 + (i * 2 + half) * 4
                o(f"ds_read_b64_tr_b16 {a(d,2)}, v{v4} offset:{half*2048}"); o(f"ds_read_b64_tr_b16 {a(d+2,2)}, v{v4} offset:{half*2048+256}")
            if i % 4 == 3: o("s_waitcnt lgkmcnt(0)")
        o("s_barrier")
        dma_strip(sWQ, 0, 16, 131072)
        o(f"v_lshrrev_b32 v{v1}, 3, v{vL}"); o(f"v_lshlrev_b32 v{v1}, 11, v{v1}"); o(f"v_and_b32 v{v2}, 7, v{vL}"); o(f"v_lshl_add_u32 v{v1}, v{v2}, 4, v{v1}")
        o(f"s_lshl_b32 s{sT0}, s{sG}, 20"); o(f"s_lshl_b32 s{sT1}, s{sJ}, 7"); o(f"s_add_u32 s{sT0}, s{sT0}, s{sT1}")
        o(f"s_lshl_b32 s{sT1}, s{sW}, 18"); o(f"s_add_u32 s{sT0}, s{sT0}, s{sT1}"); o(f"v_add_u32 v{v1}, s{sT0}, v{v1}")
        dma_strip(sWO, 65536, 16, 16384)
        o("s_waitcnt vmcnt(0)"); o("s_barrier")
        o(f"s_cmp_ge_u32 s{sW}, 2"); o("s_cbranch_scc1 L_kf2")
        rd_qk()
        A.label("L_kf2")
    else:
        dma_strip(sWQ, 0, 16, 131072)
        dma_strip(sWK, 65536, 16, 131072)
        o(f"v_lshrrev_b32 v{v3}, 2, v{vi}")
        o(f"v_lshl_add_u32 v{v3}, v{vg}, 3, v{v3}")
        o(f"v_lshlrev_b32 v{v3}, 6, v{v3}")
        o(f"v_and_b32 v{v4}, 3, v{vi}")
        o(f"v_lshl_add_u32 v{v3}, v{v4}, 3, v{v3}")
        o("s_waitcnt vmcnt(0)")
        o("s_barrier")
        o(f"s_lshr_b32 s{sT0}, s{sW}, 1")
        o(f"s_lshl_b32 s{sT0}, s{sT0}, 16")
        o(f"s_and_b32 s{sT1}, s{sW}, 1")
        o(f"s_lshl_b32 s{sT1}, s{sT1}, 5")
        o(f"s_add_u32 s{sT0}, s{sT0}, s{sT1}")
        for i in range(16):
            o(f"s_lshl_b32 s{sT2}, s{sW}, 2")
            o(f"s_add_u32 s{sT2}, s{sT2}, {i}")
            o(f"s_and_b32 s{sT2}, s{sT2}, 15")
            o(f"s_lshl_b32 s{sT2}, s{sT2}, 12")
            o(f"s_add_u32 s{sT2}, s{sT2}, s{sT0}")
            o(f"v_add_u32 v{v4}, s{sT2}, v{v3}")
            for half in range(2):
                d = (i * 2 + half) * 4
                o(f"ds_read_b64_tr_b16 {a(d,2)}, v{v4} offset:{half*2048}")
                o(f"ds_read_b64_tr_b16 {a(d+2,2)}, v{v4} offset:{half*2048+256}")
            if i % 4 == 3: o("s_waitcnt lgkmcnt(0)")
        o("s_barrier")
        dma_strip(sWV, 0, 16, 131072)
        o(f"v_lshrrev_b32 v{v1}, 3, v{vL}")
        o(f"v_lshlrev_b32 v{v1}, 11, v{v1}")
        o(f"v_and_b32 v{v2}, 7, v{vL}")
        o(f"v_lshl_add_u32 v{v1}, v{v2}, 4, v{v1}")
        o(f"s_lshl_b32 s{sT0}, s{sG}, 20")
        o(f"s_lshl_b32 s{sT1}, s{sJ}, 7")
        o(f"s_add_u32 s{sT0}, s{sT0}, s{sT1}")
        o(f"s_lshl_b32 s{sT1}, s{sW}, 18")
        o(f"s_add_u32 s{sT0}, s{sT0}, s{sT1}")
        o(f"v_add_u32 v{v1}, s{sT0}, v{v1}")
        dma_strip(sWO, 65536, 16, 16384)
        o("s_waitcnt vmcnt(0)")
        o("s_barrier")
        o(f"s_and_b32 s{sT0}, s{sW}, 1")
        o(f"s_lshl_b32 s{sT0}, s{sT0}, 5")
        for i in range(8):
            o(f"s_lshl_b32 s{sT2}, s{sW}, 2")
            o(f"s_add_u32 s{sT2}, s{sT2}, {i}")
            o(f"s_and_b32 s{sT2}, s{sT2}, 15")
            o(f"s_lshl_b32 s{sT2}, s{sT2}, 12")
            o(f"s_add_u32 s{sT2}, s{sT2}, s{sT0}")
            o(f"v_add_u32 v{v4}, s{sT2}, v{v3}")
            for half in range(2):
                d = 128 + (i * 2 + half) * 4
                o(f"ds_read_b64_tr_b16 {a(d,2)}, v{v4} offset:{half*2048}")
                o(f"ds_read_b64_tr_b16 {a(d+2,2)}, v{v4} offset:{half*2048+256}")
            if i % 4 == 3: o("s_waitcnt lgkmcnt(0)")
    o(f"v_lshrrev_b32 v{v3}, 2, v{vi}")
    o(f"v_lshl_add_u32 v{v3}, v{vg}, 2, v{v3}")
    o(f"v_lshlrev_b32 v{v3}, 7, v{v3}")
    o(f"v_and_b32 v{v4}, 3, v{vi}")
    o(f"v_lshl_add_u32 v{v3}, v{v4}, 3, v{v3}")
    o(f"s_lshl_b32 s{sT0}, s{sW}, 14")
    o(f"s_add_u32 s{sT0}, s{sT0}, 65536")
    o(f"v_add_u32 v{v4}, s{sT0}, v{v3}")
    for ct in range(4):
        for u in range(4):
            d = 192 + (ct * 4 + u) * 4
            o(f"ds_read_b64_tr_b16 {a(d,2)}, v{v4} offset:{u*4096+ct*32}")
            o(f"ds_read_b64_tr_b16 {a(d+2,2)}, v{v4} offset:{u*4096+2048+ct*32}")
        o("s_waitcnt lgkmcnt(0)")
    o("s_barrier")

    if hook:
        A.raw(hook)
        o(f"v_and_b32 v{vi}, 15, v{vL}"); o(f"v_lshrrev_b32 v{vg}, 4, v{vL}"); o(f"v_and_b32 v{vr}, 7, v{vL}")
    o(f"s_lshl_b32 s{sT0}, s{sW}, 12")
    o(f"v_add_u32 v{vE3}, s{sT0}, v{vL16}")
    o(f"v_lshrrev_b32 v{v1}, 1, v{vg}")
    o(f"v_lshlrev_b32 v{v1}, 8, v{v1}")
    o(f"v_lshl_add_u32 v{v1}, v{vr}, 4, v{v1}")
    o(f"s_lshr_b32 s{sT0}, s{sC}, 1")
    o(f"s_lshl_b32 s{sT0}, s{sT0}, 10")
    o(f"s_and_b32 s{sT1}, s{sW}, 1")
    o(f"s_lshl_b32 s{sT1}, s{sT1}, 9")
    o(f"s_add_u32 s{sT0}, s{sT0}, s{sT1}")
    o(f"s_and_b32 s{sT1}, s{sC}, 1")
    o(f"s_lshl_b32 s{sT1}, s{sT1}, 7")
    o(f"s_add_u32 s{sT0}, s{sT0}, s{sT1}")
    o(f"v_add_u32 v{vKMst}, s{sT0}, v{v1}")
    o(f"s_lshl_b32 s{sT0}, s{sHA}, 12")
    o(f"s_lshr_b32 s{sT1}, s{sW}, 1")
    o(f"s_lshl_b32 s{sT1}, s{sT1}, 11")
    o(f"s_add_u32 s{sT0}, s{sT0}, s{sT1}")
    o(f"v_add_u32 v{vQKst}, s{sT0}, v{vKMst}")
    o(f"s_lshl_b32 s{sT0}, s{sHA}, 11")
    o(f"s_lshl_b32 s{sT1}, s{sC}, 9")
    o(f"s_add_u32 s{sT0}, s{sT0}, s{sT1}")
    o(f"v_add_u32 v{vVst}, s{sT0}, v{vL16}")
    o(f"s_lshl_b32 s{sT0}, s{sW}, 11")
    o(f"v_add_u32 v{vVld}, s{sT0}, v{vL16}")
    o(f"s_lshl_b32 s{sT0}, s{sG}, 4")
    o(f"s_add_u32 s{sT0}, s{sT0}, s{sJ}")
    o(f"s_lshl_b32 s{sT0}, s{sT0}, 10")
    o(f"s_and_b32 s{sT1}, s{sW}, 1")
    o(f"s_lshl_b32 s{sT1}, s{sT1}, 9")
    o(f"s_add_u32 s{sT0}, s{sT0}, s{sT1}")
    o(f"s_lshr_b32 s{sT1}, s{sW}, 1")
    o(f"s_lshl_b32 s{sT1}, s{sT1}, 7")
    o(f"s_add_u32 s{sT0}, s{sT0}, s{sT1}")
    o(f"v_add_u32 v{vPst}, s{sT0}, v{v1}")
    o(f"v_lshlrev_b32 v{vPld}, 14, v{vg}")
    o(f"v_lshl_add_u32 v{vPld}, v{vi}, 4, v{vPld}")
    o(f"s_lshl_b32 s{sT0}, s{sJ}, 10")
    o(f"s_lshl_b32 s{sT1}, s{sW}, 8")
    o(f"s_add_u32 s{sT0}, s{sT0}, s{sT1}")
    o(f"v_add_u32 v{vPld}, s{sT0}, v{vPld}")
    o(f"v_add_u32 v{vMst}, s{sT0}, v{vL16}")
    o(f"v_lshlrev_b32 v{vKx}, 13, v{vi}")
    o(f"v_lshl_add_u32 v{vKx}, v{vg}, 4, v{vKx}")
    o(f"s_lshl_b32 s{sT0}, s{sHead}, 8")
    o(f"v_add_u32 v{vKx}, s{sT0}, v{vKx}")
    o(f"v_mov_b32 v{vLdsM}, v{vL16}")
    for d in range(4):
        o(f"v_mov_b32 v{vDelta+d}, 0")
        o(f"v_mov_b32 v{v1}, 0x3f80")
        o(f"v_cmp_eq_u32 vcc, {2*d}, v{vi}")
        o(f"v_cndmask_b32 v{vDelta+d}, v{vDelta+d}, v{v1}, vcc")
        o(f"v_mov_b32 v{v1}, 0x3f800000")
        o(f"v_cmp_eq_u32 vcc, {2*d+1}, v{vi}")
        o(f"v_cndmask_b32 v{vDelta+d}, v{vDelta+d}, v{v1}, vcc")
    o(f"v_mov_b32 v{v1}, 0xff800000")
    o(f"v_cmp_lt_u32 vcc, 31, v{vL}")
    o(f"v_cndmask_b32 v{vNeg}, 0, v{v1}, vcc")
    for r in range(1, 4): o(f"v_mov_b32 v{vNeg+r}, v{vNeg}")
    for r in range(4): o(f"v_mov_b32 v{vSent+r}, -1")
    o(f"s_mov_b32 s{sMaskQK}, 0xff"); o(f"s_mov_b32 s{sMaskQK+1}, 0xff")
    o(f"s_mov_b32 s{sSelV}, -1"); o(f"s_mov_b32 s{sSelV+1}, 0")
    import math
    cs = 128 ** -0.5 * math.log2(math.e)
    import struct
    o(f"s_mov_b32 s{sScale}, 0x{struct.unpack('<I', struct.pack('<f', cs))[0]:08x}")
    o(f"s_mov_b32 s{sScale+1}, s{sScale}")
    o(f"s_mov_b32 s{sLim}, 0x400000")
    o(f"s_mov_b32 s{sStep}, 0")
    def addbase(dst, off, extra_s=None):
        o(f"s_add_u32 s{dst}, s{sWS}, {off & 0xffffffff}")
        o(f"s_addc_u32 s{dst+1}, s{sWS+1}, 0")
        if extra_s is not None:
            o(f"s_add_u32 s{dst}, s{dst}, s{extra_s}")
            o(f"s_addc_u32 s{dst+1}, s{dst+1}, 0")
    o(f"s_lshl_b32 s{sT0}, s{sHead}, 13")
    o(f"s_add_u32 s{sT0}, s{sT0}, 4096")
    addbase(sKX, WS_K, sT0)
    o(f"s_lshl_b32 s{sT0}, s{sHead}, 13")
    o(f"s_add_u32 s{sT0}, s{sT0}, 4096")
    addbase(sVX, WS_VT, sT0)
    o(f"s_lshl_b32 s{sT0}, s{sHead}, 11")
    addbase(sKM, WS_KM, sT0)
    addbase(sVM, WS_VM, sT0)
    sCNT = 16
    addbase(sCNT, WS_CNT + cntoff)
    def kv_wait(chunk_sreg_expr_setup, target, tag):
        o(f"s_lshl_b32 s{sT0}, s{sT0}, 3"); o(f"s_add_u32 s{sT0}, s{sT0}, s{sG}"); o(f"s_lshl_b32 s{sT0}, s{sT0}, 7")
        o(f"v_mov_b32 v{vX+2}, s{sT0}")
        A.label(f"L_kvw_{tag}")
        o(f"global_load_dword v{vX+3}, v{vX+2}, {s(sCNT,2)} sc1")
        o("s_waitcnt vmcnt(0)")
        o(f"v_readfirstlane_b32 s{sT1}, v{vX+3}")
        o(f"s_cmp_ge_u32 s{sT1}, {target}")
        o(f"s_cbranch_scc1 L_kvw_{tag}_ok")
        o("s_sleep 4")
        o(f"s_sub_u32 s{sLim}, s{sLim}, 1")
        o(f"s_cbranch_scc0 L_kvw_{tag}")
        o(f"s_mov_b32 s{sLim}, 0")
        A.label(f"L_kvw_{tag}_ok")
    sEC = 94
    def gpoll(base, tag, sleep=12, allwaves=False):
        if not allwaves:
            o(f"s_cmp_lg_u32 s{sW}, 0"); o(f"s_cbranch_scc1 L_gp_{tag}_ok")
        o(f"v_mov_b32 v{vX+2}, s{sT0}")
        A.label(f"L_gp_{tag}")
        o(f"global_load_dword v{vX+3}, v{vX+2}, {s(base,2)} sc1")
        o("s_waitcnt vmcnt(0)")
        o(f"v_readfirstlane_b32 s{sT1}, v{vX+3}")
        o(f"s_cmp_ge_u32 s{sT1}, s{sT2}")
        o(f"s_cbranch_scc1 L_gp_{tag}_ok")
        o(f"s_sleep {sleep}")
        o(f"s_sub_u32 s{sLim}, s{sLim}, 1")
        o(f"s_cbranch_scc0 L_gp_{tag}")
        o(f"s_mov_b32 s{sLim}, 0")
        A.label(f"L_gp_{tag}_ok")
        if not allwaves: o("s_barrier")
    if KVCHK and not EARLY and KV0F is None:
        if K0W:
            o(f"s_lshl_b32 s{sT0}, s{sG}, 7"); o(f"s_mov_b32 s{sT2}, 16"); gpoll(sCNT, "k0", K0W)
        else:
            o(f"s_mov_b32 s{sT0}, 0")
            kv_wait(None, 16, "0")
    if KVCHK and KV0F is not None:
        o(f"s_cmp_lg_u32 s{sW}, 0"); o("s_cbranch_scc1 L_k0_b")
        o(f"s_lshl_b32 s{sT0}, s{sG}, 7"); o(f"s_add_u32 s{sT0}, s{sT0}, {KV0F}")
        o(f"v_lshlrev_b32 v{vX+2}, 2, v{vL}"); o(f"v_add_u32 v{vX+2}, s{sT0}, v{vX+2}")
        o("s_mov_b64 exec, 0xffff")
        A.label("L_k0_p")
        o(f"global_load_dword v{vX+3}, v{vX+2}, {s(sCNT,2)} sc1"); o("s_waitcnt vmcnt(0)")
        o(f"v_cmp_eq_u32 vcc, 0, v{vX+3}"); o("s_cbranch_vccz L_k0_o")
        o("s_sleep 6"); o(f"s_sub_u32 s{sLim}, s{sLim}, 1"); o("s_cbranch_scc0 L_k0_p"); o(f"s_mov_b32 s{sLim}, 0")
        A.label("L_k0_o")
        o("s_mov_b64 exec, -1")
        A.label("L_k0_b")
        o("s_barrier")
    if KVCHK and EARLY:
        o(f"s_mov_b32 s{sT0}, {EC_FILL*4}"); o(f"s_mov_b32 s{sT2}, 128"); gpoll(sEC, "f")
        o(f"s_lshl_b32 s{sT0}, s{sG}, 2"); o(f"s_add_u32 s{sT0}, s{sT0}, {EC_KVH0*4}"); o(f"s_mov_b32 s{sT2}, 16"); gpoll(sEC, "0")
    def load_kx():
        for t in range(8):
            o(f"global_load_dwordx4 {v(vK+t*4,4)}, v{vL16}, {s(sKX,2)} offset:{t*1024-4096}")
    load_kx()
    if prof:
        o(f"s_lshl_b32 s{sT0}, s{sG}, 4")
        o(f"s_add_u32 s{sT0}, s{sT0}, s{sJ}")
        o(f"s_lshl_b32 s{sT0}, s{sT0}, 2")
        o(f"s_add_u32 s{sT0}, s{sT0}, s{sW}")
        o(f"s_lshl_b32 s{sT0}, s{sT0}, 12")
        addbase(sProf, WS_PROF, sT0)
    nst = [0]
    def stamp():
        if not prof: return
        k = nst[0]; nst[0] += 1
        o(f"{TIMER} {s(sTs + 2*k, 2)}")

    def check(regs, lab_ok, lab_retry, tmp):
        regs = list(regs)
        o(f"v_max3_u32 v{tmp}, v{regs[0]}, v{regs[1]}, v{regs[2]}")
        k = 3
        while k + 1 < len(regs):
            o(f"v_max3_u32 v{tmp}, v{tmp}, v{regs[k]}, v{regs[k+1]}"); k += 2
        if k < len(regs):
            o(f"v_max_u32 v{tmp}, v{tmp}, v{regs[k]}")
        o(f"v_cmp_eq_u32 vcc, -1, v{tmp}")
        o(f"s_cbranch_vccz {lab_ok}")
        o(f"s_sub_u32 s{sLim}, s{sLim}, 1")
        o(f"s_cbranch_scc1 {lab_ok}_to")
        o(f"s_branch {lab_retry}")
        A.label(f"{lab_ok}_to")
        o(f"s_mov_b32 s{sLim}, 0")
        A.label(lab_ok)


    sCnt = 98
    vOo = [112, 116, 120, 124, 192, 196, 200, 204, 216, 220, 224, 228]
    vPf = 252
    def merge(main, side, every, start=0):
        side = list(side); out = [];
        for k, m_ in enumerate(main):
            out.append(m_)
            if side and k >= start and (k - start) % every == every - 1: out.append(side.pop(0))
        return out + side
    def emit(L):
        for x in L: o(x)
    def check(regs, lab_ok, lab_retry, tmp, cnt=None):
        regs = list(regs)
        o(f"v_max3_u32 v{tmp}, v{regs[0]}, v{regs[1]}, v{regs[2]}")
        k = 3
        while k + 1 < len(regs):
            o(f"v_max3_u32 v{tmp}, v{tmp}, v{regs[k]}, v{regs[k+1]}"); k += 2
        if k < len(regs):
            o(f"v_max_u32 v{tmp}, v{tmp}, v{regs[k]}")
        o(f"v_cmp_eq_u32 vcc, -1, v{tmp}")
        o(f"s_cbranch_vccz {lab_ok}")
        if prof and cnt is not None: o(f"s_add_u32 s{sCnt+cnt}, s{sCnt+cnt}, 1")
        o(f"s_sub_u32 s{sLim}, s{sLim}, 1")
        o(f"s_cbranch_scc0 {lab_retry}")
        o(f"s_mov_b32 s{sLim}, 0")
        A.label(lab_ok)
    sM = 88
    def mpoll(loads, tag, cnt):
        n = len(loads)
        regs = [b + r for b, _ in loads for r in range(4)]
        o(f"v_max3_u32 v{vX}, v{regs[0]}, v{regs[1]}, v{regs[2]}")
        k = 3
        while k + 1 < len(regs):
            o(f"v_max3_u32 v{vX}, v{vX}, v{regs[k]}, v{regs[k+1]}"); k += 2
        if k < len(regs): o(f"v_max_u32 v{vX}, v{vX}, v{regs[k]}")
        o(f"v_cmp_eq_u32 vcc, -1, v{vX}")
        o(f"s_cbranch_vccz L_{tag}_ok")
        A.label(f"L_{tag}_retry")
        if prof: o(f"s_add_u32 s{sCnt+cnt}, s{sCnt+cnt}, 1")
        for i, (b, rest) in enumerate(loads):
            o(f"v_max3_u32 v{vX}, v{b}, v{b+1}, v{b+2}")
            o(f"v_max_u32 v{vX}, v{vX}, v{b+3}")
            o(f"v_cmp_eq_u32 vcc, -1, v{vX}")
            o(f"s_cbranch_vccz L_{tag}_sk{i}")
            o("s_mov_b64 exec, vcc")
            o(f"global_load_dwordx4 {v(b,4)}, {rest}")
            o("s_mov_b64 exec, -1")
            A.label(f"L_{tag}_sk{i}")
        o("s_waitcnt vmcnt(0)")
        o(f"v_max3_u32 v{vX}, v{regs[0]}, v{regs[1]}, v{regs[2]}")
        k = 3
        while k + 1 < len(regs):
            o(f"v_max3_u32 v{vX}, v{vX}, v{regs[k]}, v{regs[k+1]}"); k += 2
        if k < len(regs): o(f"v_max_u32 v{vX}, v{vX}, v{regs[k]}")
        o(f"v_cmp_eq_u32 vcc, -1, v{vX}")
        o(f"s_cbranch_vccz L_{tag}_ok")
        o(f"s_sub_u32 s{sLim}, s{sLim}, 1")
        o(f"s_cbranch_scc0 L_{tag}_retry")
        o(f"s_mov_b32 s{sLim}, 0")
        A.label(f"L_{tag}_ok")
    if prof:
        for k in range(4): o(f"s_mov_b32 s{sCnt+k}, 0")
    vPfo = 58
    o(f"s_lshl_b32 s{sT1}, s{sG}, 2"); o(f"s_add_u32 s{sT1}, s{sT1}, s{sHA}"); o(f"s_lshl_b32 s{sT1}, s{sT1}, 13")
    o(f"s_lshl_b32 s{sT2}, s{sC}, 11"); o(f"s_add_u32 s{sT1}, s{sT1}, s{sT2}")
    o(f"s_and_b32 s{sT2}, s{sW}, 1"); o(f"s_lshl_b32 s{sT2}, s{sT2}, 10"); o(f"s_add_u32 s{sT1}, s{sT1}, s{sT2}")
    o(f"v_add_u32 v{vPfo}, s{sT1}, v{vL16}")
    o(f"s_cmp_lt_u32 s{sW}, 2")
    sPF = 18
    o(f"s_mov_b32 s{sT0}, {WS_K + 2*262144}")
    o(f"s_mov_b32 s{sT1}, {WS_VT + 2*262144}")
    o(f"s_cselect_b32 s{sT0}, s{sT0}, s{sT1}")
    o(f"s_add_u32 s{sPF}, s{sWS}, s{sT0}"); o(f"s_addc_u32 s{sPF+1}, s{sWS+1}, 0")
    def kx_loads():
        if NOK: return ["s_nop 0"] * 8
        return [f"global_load_dwordx4 {v(vK+t*4,4)}, v{vL16}, {s(sKX,2)} offset:{t*1024-4096}" for t in range(8)]
    def vx_loads():
        if NOV: return ["s_nop 0"] * 8
        return [f"global_load_dwordx4 {v(vV+4*t,4)}, v{vL16}, {s(sVX,2)} offset:{t*1024-4096}" for t in range(8)]
    vRd = [None, 232, 233, 234]
    for hs in (1, 2, 3):
        o(f"v_add_u32 v{vRd[hs]}, {hs*4096}, v{vE3}")
        o(f"v_and_b32 v{vRd[hs]}, 0x3fff, v{vRd[hs]}")
    vVw, vVr, vRw = 235, 59, 15
    o(f"s_lshl_b32 s{sT0}, s{sW}, 10")
    o(f"v_add_u32 v{vVw}, s{sT0}, v{vL16}")
    o(f"v_and_b32 v{vVr}, 31, v{vL}")
    o(f"v_lshlrev_b32 v{vVr}, 4, v{vVr}")
    o(f"v_lshrrev_b32 v{vX+2}, 5, v{vL}")
    o(f"v_lshl_add_u32 v{vVr}, v{vX+2}, 10, v{vVr}")
    vL4 = vX + 3
    o(f"v_lshlrev_b32 v{vL4}, 2, v{vL}")
    o(f"s_lshl_b32 s{sT0}, s{sW}, 8")
    o(f"v_add_u32 v{vRw}, s{sT0}, v{vL4}")
    vRr = [None, 1, 2, 3]
    for hs in (1, 2, 3):
        o(f"s_add_u32 s{sT0}, s{sW}, {hs}"); o(f"s_and_b32 s{sT0}, s{sT0}, 3"); o(f"s_lshl_b32 s{sT0}, s{sT0}, 8")
        o(f"v_add_u32 v{vRr[hs]}, s{sT0}, v{vL4}")
    vOnes = 4
    for r in range(4): o(f"v_mov_b32 v{vOnes+r}, 0x3f803f80")

    LDS_R = 36864
    A.label("L_step")
    nst[0] = 0
    if KVCHK:
        if FILL2 is not None:
            o(f"s_cmp_lg_u32 s{sStep}, 6"); o("s_cbranch_scc1 L_kvf2")
            o(f"s_mov_b32 s{sT0}, {FILL2}"); o(f"s_mov_b32 s{sT2}, 128"); gpoll(sCNT, "l2", 4)
            A.label("L_kvf2")
        if EARLY:
            o(f"s_cmp_lg_u32 s{sStep}, 2"); o("s_cbranch_scc1 L_kvn2")
            o(f"s_lshl_b32 s{sT0}, s{sG}, 2"); o(f"s_add_u32 s{sT0}, s{sT0}, {EC_KVH1*4}"); o(f"s_mov_b32 s{sT2}, 16"); gpoll(sEC, "h1", 4)
            A.label("L_kvn2")
            o(f"s_cmp_lg_u32 s{sStep}, 6"); o("s_cbranch_scc1 L_kvn6")
            o(f"s_mov_b32 s{sT0}, {EC_FILL2*4}"); o(f"s_mov_b32 s{sT2}, 128"); gpoll(sEC, "f2", 4)
            A.label("L_kvn6")
        o(f"s_add_u32 s{sT0}, s{sStep}, 2"); o(f"s_and_b32 s{sT1}, s{sT0}, 7"); o(f"s_cmp_lg_u32 s{sT1}, 0"); o("s_cbranch_scc1 L_kvskip")
        o(f"s_cmp_ge_u32 s{sT0}, 64"); o("s_cbranch_scc1 L_kvskip")
        o(f"s_lshr_b32 s{sT0}, s{sT0}, 3")
        if EARLY:
            o(f"s_cmp_eq_u32 s{sT0}, 1"); o(f"s_cselect_b32 s{sT2}, 16, 4")
        else:
            o(f"s_mov_b32 s{sT2}, 4")
        o(f"v_readfirstlane_b32 s{sT1}, v{vFlag}")
        o(f"s_cmp_ge_u32 s{sT1}, s{sT2}"); o("s_cbranch_scc1 L_kvskip")
        o(f"s_lshl_b32 s{sT0}, s{sT0}, 3"); o(f"s_add_u32 s{sT0}, s{sT0}, s{sG}"); o(f"s_lshl_b32 s{sT0}, s{sT0}, 7")
        gpoll(sCNT, "n", 4, allwaves=True)
        A.label("L_kvskip")
    o(f"s_and_b32 s{sSlot}, s{sStep}, 3")
    o(f"s_lshl_b32 s{sT0}, s{sSlot}, 17")
    o(f"s_lshl_b32 s{sT1}, s{sG}, 14")
    o(f"s_add_u32 s{sT2}, s{sT0}, s{sT1}")
    addbase(sMEMc, WS_RMEM, sT2)
    e3_loads = [(vB + 4*u, f"v{vE3}, {s(sMEMc,2)} offset:{u*1024} sc1") for u in range(4)]
    def qk_mfma(i, first=False):
        for half, acc in ((0, vA0), (1, vA1)):
            c = "0" if first else v(acc, 4)
            o(f"v_mfma_f32_16x16x32_bf16 {v(acc,4)}, {a((i*2+half)*4,4)}, {v(vB+4*i,4)}, {c}")
    def salu_bases():
        addbase(sQK, WS_RQK, sT2)
        o(f"s_lshl_b32 s{sT3}, s{sStep}, 17")
        addbase(sPART, WS_PARTF, sT3)
        o(f"s_add_u32 s{sPART2}, s{sPART}, 65536"); o(f"s_addc_u32 s{sPART2+1}, s{sPART+1}, 0")
        o(f"s_lshr_b32 s{sT3}, s{sT2}, 1")
        addbase(sVR, WS_RV, sT3)
        o(f"s_add_u32 s{sT3}, s{sStep}, 1"); o(f"s_and_b32 s{sT3}, s{sT3}, 3"); o(f"s_lshl_b32 s{sT3}, s{sT3}, 17"); o(f"s_add_u32 s{sT3}, s{sT3}, s{sT1}")
        addbase(sMEMn, WS_RMEM, sT3)
        o(f"s_xor_b32 s{sT3}, s{sT0}, {2<<17}")
        o(f"s_add_u32 s{sT3}, s{sT3}, s{sT1}")
        addbase(sRq, WS_RQK, sT3)
        o(f"s_lshr_b32 s{sT3}, s{sT3}, 1")
        addbase(sRv, WS_RV, sT3)
        o(f"s_add_u32 s{sT3}, s{sStep}, 3"); o(f"s_and_b32 s{sT3}, s{sT3}, 3"); o(f"s_lshl_b32 s{sT3}, s{sT3}, 17"); o(f"s_add_u32 s{sT3}, s{sT3}, s{sT1}")
        addbase(sRm, WS_RMEM, sT3)
    def simple_poll(loads, tag, cnt, first_wait):
        regs = [b + r for b, _ in loads for r in range(4)]
        o(f"s_waitcnt vmcnt({first_wait})")
        o(f"s_branch L_{tag}_c")
        A.label(f"L_{tag}_r")
        for b, rest in loads: o(f"global_load_dwordx4 {v(b,4)}, {rest}")
        o("s_waitcnt vmcnt(0)")
        A.label(f"L_{tag}_c")
        check(regs, f"L_{tag}_ok", f"L_{tag}_r", vX, cnt)
    def chk_list(regs, tmp):
        regs = list(regs); L = [f"v_max3_u32 v{tmp}, v{regs[0]}, v{regs[1]}, v{regs[2]}"]
        k = 3
        while k + 1 < len(regs):
            L.append(f"v_max3_u32 v{tmp}, v{tmp}, v{regs[k]}, v{regs[k+1]}"); k += 2
        if k < len(regs): L.append(f"v_max_u32 v{tmp}, v{tmp}, v{regs[k]}")
        L.append(f"v_cmp_eq_u32 vcc, -1, v{tmp}")
        return L
    def retry_tail(tag, cnt, issue, back):
        o(f"s_cbranch_vccz L_{tag}_fok")
        if prof: o(f"s_add_u32 s{sCnt+cnt}, s{sCnt+cnt}, 1")
        o(f"s_sub_u32 s{sLim}, s{sLim}, 1")
        o(f"s_cbranch_scc1 L_{tag}_fto")
        issue()
        o("s_waitcnt vmcnt(0)")
        o(f"s_branch {back}")
        A.label(f"L_{tag}_fto")
        o(f"s_mov_b32 s{sLim}, 0")
        A.label(f"L_{tag}_fok")
    n0 = len(A.lines); salu_bases(); sl = A.lines[n0:]; del A.lines[n0:]
    nb = len(sl) if E3_SALU_FIRST == 1 else (0 if E3_SALU_FIRST == 0 else min(len(sl), E3_SALU_FIRST))
    while 0 < nb < len(sl) and sl[nb].startswith("s_addc"): nb += 1
    for x in sl[:nb]: o(x)
    stamp()
    for b, rest in e3_loads: o(f"global_load_dwordx4 {v(b,4)}, {rest}")
    for x in sl[nb:]: o(x)
    if FC & 16:
        def qk1(i, half, first, src=None):
            acc = vA0 if half == 0 else vA1
            c = "0" if first else v(acc, 4)
            sr = (vB + 4 * i) if src is None else src
            return f"v_mfma_f32_16x16x32_bf16 {v(acc,4)}, {a((i*2+half)*4,4)}, {v(sr,4)}, {c}"
        wr = [f"ds_write_b128 v{vE3}, {v(b,4)} offset:{LDS_MEM + u*1024}" for u, (b, rest) in enumerate(e3_loads)]
        if FC & 32:
            v2 = 192
            e3b = [(v2 + 4 * u, rest) for u, (b, rest) in enumerate(e3_loads)]
            issA = lambda: [o(f"global_load_dwordx4 {v(b,4)}, {rest}") for b, rest in e3_loads]
            issB = lambda: [o(f"global_load_dwordx4 {v(b,4)}, {rest}") for b, rest in e3b]
            if E3_SP: o(f"s_sleep {E3_SP}")
            issB()
            A.label("L_e3_lp")
            o("s_waitcnt vmcnt(4)")
            emit(chk_list(range(vB, vB + 16), vX)); o("s_cbranch_vccz L_e3_okA")
            if prof: o(f"s_add_u32 s{sCnt}, s{sCnt}, 1")
            issA()
            o("s_waitcnt vmcnt(4)")
            emit(chk_list(range(v2, v2 + 16), vX)); o("s_cbranch_vccz L_e3_okB")
            if prof: o(f"s_add_u32 s{sCnt}, s{sCnt}, 1")
            issB()
            o(f"s_sub_u32 s{sLim}, s{sLim}, 1"); o("s_cbranch_scc0 L_e3_lp"); o(f"s_mov_b32 s{sLim}, 0")
            A.label("L_e3_okB")
            wrB = [f"ds_write_b128 v{vE3}, {v(b,4)} offset:{LDS_MEM + u*1024}" for u, (b, rest) in enumerate(e3b)]
            emit([wrB[0], qk1(0, 0, True, v2), wrB[1], qk1(0, 1, True, v2), wrB[2], qk1(1, 0, False, v2 + 4), wrB[3], qk1(1, 1, False, v2 + 4),
                  qk1(2, 0, False, v2 + 8), qk1(2, 1, False, v2 + 8), qk1(3, 0, False, v2 + 12), qk1(3, 1, False, v2 + 12)])
            o("s_mov_b32 s89, 1")
            o("s_branch L_e3_j")
            A.label("L_e3_okA")
            o("s_mov_b32 s89, 0")
            emit([wr[0], qk1(0, 0, True), wr[1], qk1(0, 1, True), wr[2], qk1(1, 0, False), wr[3], qk1(1, 1, False)])
            A.label("L_e3_j")
        else:
            simple_poll(e3_loads, "e3", 0, 0)
            emit([wr[0], qk1(0, 0, True), wr[1], qk1(0, 1, True), wr[2], qk1(1, 0, False), wr[3], qk1(1, 1, False)])
        stamp()
        o("s_waitcnt lgkmcnt(0)")
        o("s_barrier")
        for i in range(4, 16):
            o(f"ds_read_b128 {v(vB+4*i,4)}, v{vRd[i//4]} offset:{LDS_MEM + (i%4)*1024}")
        if FC & 32:
            o("s_cmp_lg_u32 s89, 0"); o("s_cbranch_scc1 L_e3_sk")
        for u in (2, 3): qk_mfma(u)
        if FC & 32: A.label("L_e3_sk")
    elif FC & 1:
        assert not SIG
        o("s_waitcnt vmcnt(0)")
        A.label("L_e3_go")
        ck = chk_list(range(vB, vB + 16), vX)
        def qk1(i, half, first):
            acc = vA0 if half == 0 else vA1
            c = "0" if first else v(acc, 4)
            return f"v_mfma_f32_16x16x32_bf16 {v(acc,4)}, {a((i*2+half)*4,4)}, {v(vB+4*i,4)}, {c}"
        wr = [f"ds_write_b128 v{vE3}, {v(b,4)} offset:{LDS_MEM + u*1024}" for u, (b, rest) in enumerate(e3_loads)]
        sq = [wr[0], qk1(0, 0, True), ck[0], ck[1], wr[1], qk1(0, 1, True), ck[2], ck[3], wr[2], qk1(1, 0, False), ck[4], ck[5], wr[3], qk1(1, 1, False)] + ck[6:]
        emit(sq)
        retry_tail("e3", 0, lambda: [o(f"global_load_dwordx4 {v(b,4)}, {rest}") for b, rest in e3_loads], "L_e3_go")
        stamp()
        o("s_waitcnt lgkmcnt(0)")
        o("s_barrier")
        for i in range(4, 16):
            o(f"ds_read_b128 {v(vB+4*i,4)}, v{vRd[i//4]} offset:{LDS_MEM + (i%4)*1024}")
        for u in (2, 3): qk_mfma(u)
    else:
        simple_poll(e3_loads, "e3", 0, 0)
        if SIG:
            o(f"s_sub_u32 s{sT3}, s{sStep}, 1"); o(f"s_cbranch_scc1 L_nosig")
            o(f"s_and_b32 s{sT0}, s{sT3}, 15"); o(f"s_cmp_lg_u32 s{sT0}, s{sJ}"); o("s_cbranch_scc1 L_nosig")
            o(f"s_lshl_b32 s{sT0}, s{sT3}, 7"); o(f"s_add_u32 s{sT0}, s{sT0}, {CNT_REC}")
            o(f"v_mov_b32 v{vX+2}, s{sT0}"); o(f"v_mov_b32 v{vX+3}, 1")
            o("s_mov_b64 exec, 1")
            o(f"global_atomic_add v{vX+2}, v{vX+3}, {s(sCNT,2)}")
            o("s_mov_b64 exec, -1")
            A.label("L_nosig")
        for u, (b, rest) in enumerate(e3_loads):
            o(f"ds_write_b128 v{vE3}, {v(b,4)} offset:{LDS_MEM + u*1024}")
        for u in range(4): qk_mfma(u, first=(u == 0))
        stamp()
        o("s_waitcnt lgkmcnt(0)")
        o("s_barrier")
        for i in range(4, 16):
            o(f"ds_read_b128 {v(vB+4*i,4)}, v{vRd[i//4]} offset:{LDS_MEM + (i%4)*1024}")
    vxl = vx_loads()
    for i in range(4, 16):
        o(f"s_waitcnt lgkmcnt({15-i})")
        qk_mfma(i)
        if i % VSP == VSP - 1 and vxl: o(vxl.pop(0))
    stamp()
    for r in range(4):
        o(f"v_add_f32_dpp v{vA0+r}, v{vA1+r}, v{vA0+r} row_ror:8 row_mask:0xf bank_mask:0xf")
    R = vX + 4
    o(f"v_cvt_pk_bf16_f32 v{R}, v{vA0}, v{vA0+1}")
    o(f"v_cvt_pk_bf16_f32 v{R+1}, v{vA0+2}, v{vA0+3}")
    o(f"v_permlane16_swap_b32 v{R}, v{R+2}")
    o(f"v_permlane16_swap_b32 v{R+1}, v{R+3}")
    o(f"s_mov_b64 exec, {s(sMaskQK,2)}")
    o(f"global_store_dwordx4 v{vQKst}, {v(R,4)}, {s(sQK,2)}{st_fast}")
    o("s_mov_b64 exec, -1")
    stamp()
    if ONE:
        o(f"s_cmp_lg_u32 s{sStep}, {ONE['pstep']}"); o("s_cbranch_scc1 L_one_np")
        o(f"s_or_b32 s{sT0}, s{sG}, s{sJ}"); o(f"s_or_b32 s{sT0}, s{sT0}, s{sW}"); o(f"s_cmp_lg_u32 s{sT0}, 0"); o("s_cbranch_scc1 L_one_np")
        o(f"s_add_u32 s{sT0}, s{sWS}, {WS_CNT}"); o(f"s_addc_u32 s{sT1}, s{sWS+1}, 0")
        o(f"v_mov_b32 v{vX+2}, {ONE['p58']}"); o(f"v_mov_b32 v{vX+3}, 1"); o("s_mov_b64 exec, 1")
        o(f"global_atomic_add v{vX+2}, v{vX+3}, {s(sT0,2)}"); o("s_mov_b64 exec, -1")
        A.label("L_one_np")
    if FC & 32: o("s_waitcnt vmcnt(7)")
    e1_loads = [(vQ + 4*cp, f"v{vE3}, {s(sQK,2)} offset:{cp*1024} sc1") for cp in range(2)] + [(vKm + 4*cp, f"v{vE3}, {s(sQK,2)} offset:{2048+cp*1024} sc1") for cp in range(2)]
    def e1_issue():
        for b, rest in e1_loads: o(f"global_load_dwordx4 {v(b,4)}, {rest}")
    for i in range(8):
        for half, acc in ((0, vAv0), (1, vAv1)):
            c = "0" if i == 0 else v(acc, 4)
            o(f"v_mfma_f32_16x16x32_bf16 {v(acc,4)}, {v(vB+4*i,4)}, {a(128+(i*2+half)*4,4)}, {c}")
        if vxl and i % 2 == 1: o(vxl.pop(0))
        if i == E1_AT:
            emit(vxl); vxl = []
            e1_issue()
    emit(vxl)
    for r in range(4):
        o(f"v_cndmask_b32 v{vAv0+r}, v{vAv1+r}, v{vAv0+r}, {s(sSelV,2)}")
    o(f"ds_write_b128 v{vVw}, {v(vAv0,4)} offset:{LDS_V}")
    o("s_waitcnt lgkmcnt(0)")
    o("s_barrier")
    o(f"s_cmp_lg_u32 s{sW}, 0")
    o("s_cbranch_scc1 L_vred_skip")
    T = vA0
    for k, off in enumerate((0, 512, 2048, 2560)):
        o(f"ds_read_b128 {v(T+4*k,4)}, v{vVr} offset:{LDS_V+off}")
    o("s_waitcnt lgkmcnt(0)")
    for r in range(4):
        o(f"v_add_f32 v{T+r}, v{T+r}, v{T+4+r}")
        o(f"v_add_f32 v{T+8+r}, v{T+8+r}, v{T+12+r}")
    for r in range(4):
        o(f"v_add_f32 v{T+r}, v{T+r}, v{T+8+r}")
    o(f"v_cvt_pk_bf16_f32 v{R}, v{T}, v{T+1}")
    o(f"v_cvt_pk_bf16_f32 v{R+1}, v{T+2}, v{T+3}")
    o(f"v_permlane32_swap_b32 v{R}, v{R+2}")
    o(f"v_permlane32_swap_b32 v{R+1}, v{R+3}")
    o(f"s_mov_b64 exec, {s(sSelV,2)}")
    o(f"global_store_dwordx4 v{vVst}, {v(R,4)}, {s(sVR,2)}{st_fast}")
    o("s_mov_b64 exec, -1")
    o("s_waitcnt vmcnt(1)")
    o("s_branch L_e1_c")
    A.label("L_e1_r")
    e1_issue()
    A.label("L_vred_skip")
    o("s_waitcnt vmcnt(0)")
    A.label("L_e1_c")
    if not (FC & 2): check([b + r for b, _ in e1_loads for r in range(4)], "L_e1_ok", "L_e1_r", vX, 1)
    stamp()
    def M32(d, A_, B_, C_): return f"v_mfma_f32_16x16x32_bf16 {v(d,4)}, {A_}, {B_}, {C_}"
    def rot(dst, srcr): return [f"v_mov_b32_dpp v{dst+r}, v{srcr+r} row_ror:8 row_mask:0xf bank_mask:0xf" for r in range(4)]
    Kf = lambda kt, u: v(vK + (kt*4+u)*4, 4)
    seq = []
    seq += [M32(vSx, Kf(0,0), v(vQ,4), "0")] + rot(vQr, vQ)[:2]
    seq += [M32(vSx+4, Kf(1,0), v(vQ,4), "0")] + rot(vQr, vQ)[2:]
    seq += [M32(vSm, v(vKm,4), v(vQ,4), v(vNeg,4))] + rot(vQr+4, vQ+4)[:2]
    seq += [M32(vSx, Kf(0,2), v(vQ+4,4), v(vSx,4))] + rot(vQr+4, vQ+4)[2:]
    seq += [M32(vSx+4, Kf(1,2), v(vQ+4,4), v(vSx+4,4))] + rot(vKr, vKm)[:2]
    seq += [M32(vSm, v(vKm+4,4), v(vQ+4,4), v(vSm,4))] + rot(vKr, vKm)[2:]
    seq += [M32(vSx, Kf(0,1), v(vQr,4), v(vSx,4))] + rot(vKr+4, vKm+4)[:2]
    seq += [M32(vSx+4, Kf(1,1), v(vQr,4), v(vSx+4,4))] + rot(vKr+4, vKm+4)[2:]
    seq += [M32(vSx, Kf(0,3), v(vQr+4,4), v(vSx,4))]
    seq += [M32(vSx+4, Kf(1,3), v(vQr+4,4), v(vSx+4,4))]
    seq += [M32(vSm, v(vKr,4), v(vQr,4), v(vSm,4))]
    seq += [M32(vSm, v(vKr+4,4), v(vQr+4,4), v(vSm,4))]
    if FC & 2:
        ck = chk_list([b + r_ for b, _ in e1_loads for r_ in range(4)], vX)
        tail4 = seq[-4:]; seq = seq[:-4]
        sq2 = []
        for k_, m_ in enumerate(tail4):
            sq2.append(m_); sq2 += ck[2*k_:2*k_+2]
        sq2 += ck[8:]
        emit(seq + sq2)
        retry_tail("e1", 1, e1_issue, "L_e1_c")
    else:
        emit(seq)
    if not FIXKV:
        o(f"s_add_u32 s{sKX}, s{sKX}, 262144"); o(f"s_addc_u32 s{sKX+1}, s{sKX+1}, 0")
    vm_loads = [(vVm + 4*mm, f"v{vVld}, {s(sVR,2)} offset:{mm*1024} sc1") for mm in range(2)]
    for b, rest in vm_loads: o(f"global_load_dwordx4 {v(b,4)}, {rest}")
    if PF and PFE: o(f"global_load_dwordx4 {v(vPf,4)}, v{vPfo}, {s(sPF,2)}")
    m, t = vX + 1, vX + 2
    Sall = list(range(vSx, vSx + 8)) + list(range(vSm, vSm + 4))
    m2 = vX + 3
    o(f"v_max3_f32 v{m}, v{Sall[0]}, v{Sall[1]}, v{Sall[2]}")
    o(f"v_max3_f32 v{m2}, v{Sall[4]}, v{Sall[5]}, v{Sall[6]}")
    o(f"v_max3_f32 v{m}, v{m}, v{Sall[3]}, v{Sall[7]}")
    o(f"v_max3_f32 v{m2}, v{m2}, v{Sall[8]}, v{Sall[9]}")
    o(f"v_max3_f32 v{m}, v{m}, v{Sall[10]}, v{Sall[11]}")
    o(f"v_max_f32 v{m}, v{m}, v{m2}")
    for sw in ("16", "32"):
        o(f"v_mov_b32 v{t}, v{m}")
        o(f"v_permlane{sw}_swap_b32 v{m}, v{t}")
        o(f"v_max_f32 v{m}, v{m}, v{t}")
    mm_ = vX + 2
    o(f"v_mul_f32 v{mm_}, s{sScale}, v{m}")
    kxl = kx_loads()
    main = []
    for r in Sall[::2]: main.append(f"v_pk_fma_f32 {v(r,2)}, {v(r,2)}, {s(sScale,2)}, {v(mm_,2)} op_sel_hi:[1,1,0] neg_lo:[0,0,1] neg_hi:[0,0,1]")
    for k_, r in enumerate(Sall):
        main.append(f"v_exp_f32 v{r}, v{r}")
    emit(merge(main, [kxl.pop(0), kxl.pop(0)], 7))
    o(f"v_cvt_pk_bf16_f32 v{vPx}, v{vSx}, v{vSx+1}")
    o(f"v_cvt_pk_bf16_f32 v{vPx+1}, v{vSx+2}, v{vSx+3}")
    o(f"v_cvt_pk_bf16_f32 v{vPx+2}, v{vSx+4}, v{vSx+5}")
    o(f"v_cvt_pk_bf16_f32 v{vPx+3}, v{vSx+6}, v{vSx+7}")
    o(f"v_cvt_pk_bf16_f32 v{vPmA}, v{vSm}, v{vSm+1}")
    o(f"v_cvt_pk_bf16_f32 v{vPmA+1}, v{vSm+2}, v{vSm+3}")
    stamp()
    vLs = vSx
    pv = [M32(vO+4*tt, v(vV+4*tt,4), v(vPx,4), "0") for tt in range(8)]
    side = [f"v_mov_b32 v{vX+4}, v{vPmA}", f"v_mov_b32 v{vX+5}, v{vPmA+1}", f"v_mov_b32 v{vPmB}, 0", f"v_mov_b32 v{vPmB+1}, 0",
            f"v_permlane32_swap_b32 v{vPmB}, v{vX+4}", f"v_permlane32_swap_b32 v{vPmB+1}, v{vX+5}", kxl.pop(0)]
    if FC & 4:
        o(M32(vLs, v(vOnes,4), v(vPx,4), "0"))
        emit(merge(pv[:5], side, 1)[:12])
        o(f"s_waitcnt vmcnt({4 if (PF and PFE) else 3})")
        A.label("L_vm_go")
        ck = chk_list(range(vVm, vVm + 8), vX)
        sq3 = [pv[5]] + ck[:2] + [pv[6]] + ck[2:4] + [pv[7]] + ck[4:]
        o(f"v_mfma_f32_16x16x16_bf16 {v(vLs,4)}, {v(vOnes,2)}, {v(vPmA,2)}, {v(vLs,4)}")
        emit(sq3)
        o("s_cbranch_vccz L_vm_fok")
        A.label("L_vm_rr")
        if prof: o(f"s_add_u32 s{sCnt+2}, s{sCnt+2}, 1")
        o(f"s_sub_u32 s{sLim}, s{sLim}, 1"); o("s_cbranch_scc1 L_vm_fto")
        for b, rest in vm_loads: o(f"global_load_dwordx4 {v(b,4)}, {rest}")
        o("s_waitcnt vmcnt(0)")
        emit(chk_list(range(vVm, vVm + 8), vX))
        o("s_cbranch_vccnz L_vm_rr"); o("s_branch L_vm_fok")
        A.label("L_vm_fto"); o(f"s_mov_b32 s{sLim}, 0")
        A.label("L_vm_fok")
    else:
        emit(merge(pv, side, 1))
        o(M32(vLs, v(vOnes,4), v(vPx,4), "0"))
        o(f"v_mfma_f32_16x16x16_bf16 {v(vLs,4)}, {v(vOnes,2)}, {v(vPmA,2)}, {v(vLs,4)}")
        simple_poll(vm_loads, "vm", 2, 4 if (PF and PFE) else 3)
    stamp()
    def pvm(tt):
        c, tv = tt >> 1, tt & 1
        pm = vPmB if (c & 1) else vPmA
        return f"v_mfma_f32_16x16x16_bf16 {v(vO+4*tt,4)}, {v(vVm+4*(c>>1)+2*tv,2)}, {v(pm,2)}, {v(vO+4*tt,4)}"
    def cvt(tt):
        u, h = tt >> 1, tt & 1
        return [f"v_cvt_pk_bf16_f32 v{vOb+4*u+2*h}, v{vO+4*tt}, v{vO+4*tt+1}", f"v_cvt_pk_bf16_f32 v{vOb+4*u+2*h+1}, v{vO+4*tt+2}, v{vO+4*tt+3}"]
    if REORD:
        for tt in range(4): o(pvm(tt))
    if KVCHK:
        o(f"s_add_u32 s{sT0}, s{sStep}, 3"); o(f"s_and_b32 s{sT1}, s{sT0}, 7"); o(f"s_cmp_lg_u32 s{sT1}, 0"); o("s_cbranch_scc1 L_nofl")
        o(f"s_lshr_b32 s{sT0}, s{sT0}, 3"); o(f"s_lshl_b32 s{sT0}, s{sT0}, 3"); o(f"s_add_u32 s{sT0}, s{sT0}, s{sG}"); o(f"s_lshl_b32 s{sT0}, s{sT0}, 7")
        o(f"v_mov_b32 v{vFlag}, s{sT0}")
        o(f"global_load_dword v{vFlag}, v{vFlag}, {s(sCNT,2)} sc1")
        A.label("L_nofl")
    o(f"s_and_b32 s{sT0}, s{sStep}, 15"); o(f"s_cmp_lg_u32 s{sT0}, s{sJ}"); o("s_cbranch_scc1 L_nopub")
    for cp in range(2): o(f"global_store_dwordx4 v{vL16}, {v(vKm+4*cp,4)}, {s(sKM,2)} offset:{cp*1024}" + (" sc1" if (SIG or KMSC1) else ""))
    for cp in range(2): o(f"global_store_dwordx4 v{vL16}, {v(vVm+4*cp,4)}, {s(sVM,2)} offset:{cp*1024}" + (" sc1" if (SIG or KMSC1) else ""))
    A.label("L_nopub")
    if LAST_SHORT:
        o(f"s_cmp_eq_u32 s{sStep}, {nsteps-1}")
        o("s_cbranch_scc1 L_rec_last")
    if PF and not PFE: o(f"global_load_dwordx4 {v(vPf,4)}, v{vPfo}, {s(sPF,2)}")
    if not REORD:
        for tt in range(3): o(pvm(tt))
    vCa = [16, 20, 24, 28]
    l_ = vX + 1
    def cm(ct, u):
        c = "0" if u == 0 else v(vCa[ct], 4)
        return f"v_mfma_f32_16x16x32_bf16 {v(vCa[ct],4)}, {a(192+(ct*4+u)*4,4)}, {v(vOb+4*u,4)}, {c}"
    pend = []
    for tt in range(8):
        if REORD:
            if tt + 4 < 8: o(pvm(tt + 4))
        elif tt + 3 < 8: o(pvm(tt + 3))
        cv = cvt(tt)
        o(cv[0])
        if pend: o(pend.pop(0))
        o(cv[1])
        if pend: o(pend.pop(0))
        if tt == 0: o(f"v_rcp_f32 v{l_}, v{vLs}")
        if tt % 2 == 1:
            pend += [cm(ct, tt >> 1) for ct in range(4)]
            if kxl: o(kxl.pop(0))
    emit(pend)
    for ct in range(4):
        pass
    o(f"v_mov_b32 v{vX+2}, v{l_}")
    for ct in range(4):
        o(f"v_pk_mul_f32 {v(vCa[ct],2)}, {v(vCa[ct],2)}, {v(vX+2,2)} op_sel_hi:[1,0]")
        o(f"v_pk_mul_f32 {v(vCa[ct]+2,2)}, {v(vCa[ct]+2,2)}, {v(vX+2,2)} op_sel_hi:[1,0]")
        o(f"ds_write_b128 v{vVw}, {v(vCa[ct],4)} offset:{LDS_O+ct*4096}")
    while kxl: o(kxl.pop(0))
    o("s_waitcnt lgkmcnt(0)")
    o("s_barrier")
    stamp()
    Rr = [112, 116, 120, 124]
    for sw in range(4): o(f"ds_read_b128 {v(Rr[sw],4)}, v{vE3} offset:{LDS_O+sw*1024}")
    vC = Rr[0]
    o("s_waitcnt lgkmcnt(2)")
    o(f"v_pk_add_f32 {v(Rr[0],2)}, {v(Rr[0],2)}, {v(Rr[1],2)}"); o(f"v_pk_add_f32 {v(Rr[0]+2,2)}, {v(Rr[0]+2,2)}, {v(Rr[1]+2,2)}")
    o("s_waitcnt lgkmcnt(0)")
    o(f"v_pk_add_f32 {v(Rr[2],2)}, {v(Rr[2],2)}, {v(Rr[3],2)}"); o(f"v_pk_add_f32 {v(Rr[2]+2,2)}, {v(Rr[2]+2,2)}, {v(Rr[3]+2,2)}")
    o(f"v_pk_add_f32 {v(Rr[0],2)}, {v(Rr[0],2)}, {v(Rr[2],2)}"); o(f"v_pk_add_f32 {v(Rr[0]+2,2)}, {v(Rr[0]+2,2)}, {v(Rr[2]+2,2)}")
    o(f"v_cvt_pk_bf16_f32 v{R}, v{vC}, v{vC+1}")
    o(f"v_cvt_pk_bf16_f32 v{R+1}, v{vC+2}, v{vC+3}")
    o(f"v_permlane16_swap_b32 v{R}, v{R+2}")
    o(f"v_permlane16_swap_b32 v{R+1}, v{R+3}")
    o(f"s_mov_b64 exec, {s(sMaskQK,2)}")
    if EP == 2:
        o("s_waitcnt vmcnt(0)")
        o(f"{TIMER} {s(sTs + 2*5, 2)}")
    o(f"global_store_dwordx4 v{vPst}, {v(R,4)}, {s(sPART,2)} sc1")
    stamp()
    if EP == 2:
        o("s_waitcnt vmcnt(0)")
        o(f"{TIMER} {s(sTs + 2*4, 2)}")
    o(f"global_store_dwordx4 v{vQKst}, {v(vSent,4)}, {s(sRq,2)}{st_fast}")
    o(f"s_mov_b64 exec, 0xffff")
    o(f"global_store_dwordx4 v{vMst}, {v(vSent,4)}, {s(sRm,2)}{st_fast}")
    o(f"s_cmp_lg_u32 s{sW}, 0")
    o("s_cbranch_scc1 L_norv")
    o(f"s_mov_b64 exec, {s(sSelV,2)}")
    o(f"global_store_dwordx4 v{vVst}, {v(vSent,4)}, {s(sRv,2)}{st_fast}")
    A.label("L_norv")
    o("s_mov_b64 exec, -1")
    if not FIXKV:
        o(f"s_add_u32 s{sVX}, s{sVX}, 262144"); o(f"s_addc_u32 s{sVX+1}, s{sVX+1}, 0")
    o(f"s_add_u32 s{sKM}, s{sKM}, 65536"); o(f"s_addc_u32 s{sKM+1}, s{sKM+1}, 0")
    o(f"s_add_u32 s{sVM}, s{sVM}, 65536"); o(f"s_addc_u32 s{sVM+1}, s{sVM+1}, 0")
    if E2_DELAY: o(f"s_sleep {E2_DELAY}")
    sets = [vB + 8 * k for k in range(E2_DEPTH)]
    def e2_issue(b):
        o(f"global_load_dwordx4 {v(b,4)}, v{vPld}, {s(sPART,2)} {E2F}")
        o(f"global_load_dwordx4 {v(b+4,4)}, v{vPld}, {s(sPART2,2)} {E2F}")
    if EP: o(f"{TIMER} {s(sTs + 2*2, 2)}")
    for k, b in enumerate(sets):
        e2_issue(b)
        if k + 1 < len(sets) and E2_SP: o(f"s_sleep {E2_SP}")
    if EP:
        o(f"s_waitcnt vmcnt({2*(len(sets)-1)})")
        o(f"{TIMER} {s(sTs + 2*3, 2)}")
    if FC & 8:
        assert E2_DEPTH == 1
        b = sets[0]; D = vA1
        o("s_waitcnt vmcnt(0)")
        A.label("L_e2_go")
        o(f"v_mfma_f32_16x16x32_bf16 {v(D,4)}, {v(vDelta,4)}, {v(b,4)}, 0")
        o(f"v_mfma_f32_16x16x32_bf16 {v(D,4)}, {v(vDelta,4)}, {v(b+4,4)}, {v(D,4)}")
        emit(chk_list(range(b, b + 8), vX))
        retry_tail("e2", 3, lambda: e2_issue(b), "L_e2_go")
    else:
        A.label("L_e2")
        for k, b in enumerate(sets):
            o(f"s_waitcnt vmcnt({2*(len(sets)-1)})")
            regs = list(range(b, b + 8))
            o(f"v_max3_u32 v{vX}, v{regs[0]}, v{regs[1]}, v{regs[2]}")
            o(f"v_max3_u32 v{vX}, v{vX}, v{regs[3]}, v{regs[4]}")
            o(f"v_max3_u32 v{vX}, v{vX}, v{regs[5]}, v{regs[6]}")
            o(f"v_max_u32 v{vX}, v{vX}, v{regs[7]}")
            o(f"v_cmp_eq_u32 vcc, -1, v{vX}")
            o(f"s_cbranch_vccz L_e2_ok{k}")
            if prof: o(f"s_add_u32 s{sCnt+3}, s{sCnt+3}, 1")
            e2_issue(b)
        o(f"s_sub_u32 s{sLim}, s{sLim}, 1")
        o(f"s_cbranch_scc0 L_e2")
        o(f"s_mov_b32 s{sLim}, 0")
        D = vA1
        for k, b in enumerate(sets):
            A.label(f"L_e2_ok{k}")
            o(f"v_mfma_f32_16x16x32_bf16 {v(D,4)}, {v(vDelta,4)}, {v(b,4)}, 0")
            o(f"v_mfma_f32_16x16x32_bf16 {v(D,4)}, {v(vDelta,4)}, {v(b+4,4)}, {v(D,4)}")
            if k + 1 < len(sets): o("s_branch L_e2_done")
    A.label("L_e2_done")
    o(f"s_add_u32 s{sPF}, s{sPF}, 262144"); o(f"s_addc_u32 s{sPF+1}, s{sPF+1}, 0")
    stamp()
    o("s_nop 7")
    o(f"v_cvt_pk_bf16_f32 v{R}, v{D}, v{D+1}")
    o(f"v_cvt_pk_bf16_f32 v{R+1}, v{D+2}, v{D+3}")
    o(f"v_permlane16_swap_b32 v{R}, v{R+2}")
    o(f"v_permlane16_swap_b32 v{R+1}, v{R+3}")
    o(f"s_mov_b64 exec, 0xffff")
    o(f"global_store_dwordx4 v{vMst}, {v(R,4)}, {s(sMEMn,2)}{st_fast}")
    o("s_mov_b64 exec, -1")
    stamp()
    if E3_DELAY: o(f"s_sleep {E3_DELAY}")
    if prof:
        o("s_waitcnt lgkmcnt(0)")
        for k in range(nst[0]):
            o(f"v_writelane_b32 v{vX+8}, s{sTs+2*k}, {k}")
        for k in range(4):
            o(f"v_writelane_b32 v{vX+8}, s{sCnt+k}, {11+k}")
        o(f"v_writelane_b32 v{vX+8}, s92, 15")
        o(f"s_lshl_b32 s{sT0}, s{sW}, 12")
        o(f"s_lshl_b32 s{sT1}, s{sStep}, 6")
        o(f"s_add_u32 s{sT0}, s{sT0}, s{sT1}")
        o(f"s_add_u32 s{sT0}, s{sT0}, 40960")
        o(f"v_lshlrev_b32 v{vX+9}, 2, v{vL}")
        o(f"v_add_u32 v{vX+9}, s{sT0}, v{vX+9}")
        o("s_mov_b64 exec, 0xffff")
        o(f"ds_write_b32 v{vX+9}, v{vX+8}")
        o("s_mov_b64 exec, -1")
    o(f"s_add_u32 s{sStep}, s{sStep}, 1")
    o(f"s_cmp_lt_u32 s{sStep}, {nsteps}")
    o("s_cbranch_scc1 L_step")
    o("s_branch L_rec_fin")
    A.label("L_rec_last")
    if SIG:
        o("s_waitcnt vmcnt(0)")
        o(f"s_and_b32 s{sT0}, s{sStep}, 15"); o(f"s_cmp_lg_u32 s{sT0}, s{sJ}"); o("s_cbranch_scc1 L_rec_fin")
        o(f"s_lshl_b32 s{sT0}, s{sStep}, 7"); o(f"s_add_u32 s{sT0}, s{sT0}, {CNT_REC}")
        o(f"v_mov_b32 v{vX+2}, s{sT0}"); o(f"v_mov_b32 v{vX+3}, 1")
        o("s_mov_b64 exec, 1")
        o(f"global_atomic_add v{vX+2}, v{vX+3}, {s(sCNT,2)}")
        o("s_mov_b64 exec, -1")
    A.label("L_rec_fin")
    if prof:
        o("s_waitcnt lgkmcnt(0)")
        o(f"s_lshl_b32 s{sT0}, s{sW}, 12")
        o(f"s_add_u32 s{sT0}, s{sT0}, 40960")
        o(f"v_add_u32 v{vX+9}, s{sT0}, v{vL16}")
        for k in range(4):
            o(f"ds_read_b128 {v(vB+4*k,4)}, v{vX+9} offset:{k*1024}")
        o("s_waitcnt lgkmcnt(0)")
        for k in range(4):
            o(f"global_store_dwordx4 v{vL16}, {v(vB+4*k,4)}, {s(sProf,2)} offset:{k*1024}")
    o("s_waitcnt vmcnt(0)")
    if ONE:
        o("s_barrier")
        o(f"s_cmp_lg_u32 s{sW}, 0"); o("s_cbranch_scc1 L_one_j")
        o(f"s_add_u32 s{sT0}, s{sWS}, {WS_CNT}"); o(f"s_addc_u32 s{sT1}, s{sWS+1}, 0")
        o(f"s_lshl_b32 s{sT2}, s{sG}, 4"); o(f"s_add_u32 s{sT2}, s{sT2}, s{sJ}"); o(f"s_lshl_b32 s{sT2}, s{sT2}, 2"); o(f"s_add_u32 s{sT2}, s{sT2}, {ONE['done']}")
        o(f"v_mov_b32 v2, s{sT2}"); o("v_mov_b32 v3, 1"); o("s_mov_b64 exec, 1")
        o(f"global_store_dword v2, v3, {s(sT0,2)} sc1"); o("s_mov_b64 exec, -1")
        A.label("L_one_j")
        o("s_branch T_last")
    A.label("L_rec_end")
    o("s_endpgm")
    txt = A.finish()
    if embedded:
        import re
        return re.sub(r"\bL_", pfx + "L_", txt)
    return kernel_head(name) + txt + kernel_desc(name, 256, 256)

if __name__ == "__main__":
    import sys
    fast = "slow" not in sys.argv
    prof = "prof" in sys.argv
    ng = 256 if any(x.startswith("X4=1") for x in sys.argv) else 128
    hdr = f"; @launch kernel=rec_kernel grid=({ng},1,1) block=(256,1,1) lds=131072\n.amdgcn_target \"amdgcn-amd-amdhsa--gfx950\"\n.text\n"
    kw = {}
    for x in sys.argv[1:]:
        if "=" in x:
            k_, v_ = x.split("=");
            if k_ != "out": kw[k_] = int(v_) if v_.isdigit() else v_
    outn = [x.split("=")[1] for x in sys.argv if x.startswith("out=")]
    open(outn[0] if outn else "rec_test.s", "w").write(hdr + gen_rec(fast=fast, prof=prof, **kw))
```
